```python
import torch

def _softmax(x, axis=-1):
    return torch.softmax(x, dim=axis)
def _gelu(x):
    return torch.nn.functional.gelu(x, approximate="tanh")
def _silu(x):
    return torch.nn.functional.silu(x)
def _sigmoid(x):
    return torch.sigmoid(x)
def _layernorm(x, axis=-1, eps=1e-5):
    m = x.mean(dim=axis, keepdim=True)
    v = x.var(dim=axis, keepdim=True, unbiased=False)
    return (x - m) / torch.sqrt(v + eps)
def _scatter_add(tgt, idx, src, axis=0):
    return tgt.clone().index_add_(axis, idx, src)
def _segment_sum(src, seg, n):
    out = torch.zeros((n,) + src.shape[1:], dtype=src.dtype)
    return out.index_add_(0, seg, src)
def _pad(x, pw):
    flat = tuple(v for pair in reversed(pw) for v in pair)
    return torch.nn.functional.pad(x, flat)

kernel_name = 'sequential_preLN__linear_kernel_hedgehog__dense_activation_silu__prompt'

def setup_inputs():

    _w = (lambda a: (lambda t: t.to(torch.bfloat16) if t.is_floating_point() else t)(torch.as_tensor(a)))
    def _A_setup():
        B, S, D, H = 1, 2048, 448, 16
        Dh = D // H
        return {
            "x": _w((lambda *s: torch.randn(*s, dtype=torch.bfloat16) * 0.05)(B, S, D)),
            "wqkv": _w((lambda *s: torch.randn(*s, dtype=torch.bfloat16) * 0.2)(D, 3 * D)),
            "w_phi": _w((lambda *s: torch.randn(*s, dtype=torch.bfloat16) * 0.2)(H, Dh, Dh) * (Dh ** -0.5)),
            "wo": _w((lambda *s: torch.randn(*s, dtype=torch.bfloat16) * 0.05)(D, D)),
        }
    _A_in = _A_setup()

    def _B_setup():
        B, S, D, F = 1, 2048, 448, 1792
        return {
            "x": _w((lambda *s: torch.randn(*s, dtype=torch.bfloat16) * 0.05)(B, S, D)),
            "w1": _w((lambda *s: torch.randn(*s, dtype=torch.bfloat16) * 3.2)(D, F) * (D ** -0.5)),
            "w2": _w((lambda *s: torch.randn(*s, dtype=torch.bfloat16) * 0.1)(F, D) * (F ** -0.5)),
        }
    _B_in = _B_setup()

    return {
        "A_x": _A_in["x"],
        "A_wqkv": _A_in["wqkv"],
        "A_w_phi": _A_in["w_phi"],
        "A_wo": _A_in["wo"],
        "B_x": _B_in["x"],
        "B_w1": _B_in["w1"],
        "B_w2": _B_in["w2"],
    }

def reference(A_x, A_wqkv, A_w_phi, A_wo, B_x, B_w1, B_w2):
    def _A_ref(x, wqkv, w_phi, wo):
        B, S, D = x.shape
        H = 16; Dh = D // H
        qkv = (lambda x, *d: x.permute(*d))((x @ wqkv).reshape(B, S, 3, H, Dh), 2, 0, 3, 1, 4)
        q, k, v = qkv[0], qkv[1], qkv[2]
        pq = torch.einsum("bhsd,hdf->bhsf", q, w_phi)
        pk = torch.einsum("bhsd,hdf->bhsf", k, w_phi)
        phi_q = torch.concatenate([_softmax(pq, axis=-1), _softmax(-pq, axis=-1)], axis=-1)
        phi_k = torch.concatenate([_softmax(pk, axis=-1), _softmax(-pk, axis=-1)], axis=-1)
        kv = torch.einsum("bhsf,bhsd->bhfd", phi_k, v)
        z  = torch.einsum("bhsf->bhf", phi_k)
        num = torch.einsum("bhqf,bhfd->bhqd", phi_q, kv)
        den = torch.einsum("bhqf,bhf->bhq", phi_q, z)[..., None] + 1e-6
        o = num / den
        return (lambda x, *d: x.permute(*d))(o, 0, 2, 1, 3).reshape(B, S, D) @ wo

    def _B_ref(x, w1, w2):
        h = torch.einsum("bsd,df->bsf", x, w1)
        h = _silu(h)
        out = torch.einsum("bsf,fd->bsd", h, w2)
        return out

    x = A_x
    h = x + _A_ref(_layernorm(x, axis=-1), A_wqkv, A_w_phi, A_wo)
    h2 = h + _B_ref(_layernorm(h, axis=-1), B_w1, B_w2)
    return h2
```

```python
import re

REG_RE = re.compile(r'(?<![\w.])([vas])(?:(\d+)|\[(\d+):(\d+)\])(?![\w])')

def regs_of(tok):
    out = []
    for m in REG_RE.finditer(tok):
        k = m.group(1)
        if m.group(2) is not None: out.append((k, int(m.group(2))))
        else: out += [(k, i) for i in range(int(m.group(3)), int(m.group(4)) + 1)]
    if re.search(r'\bvcc\b', tok): out += [('s', 106), ('s', 107)]
    if re.search(r'\bexec\b', tok): out += [('s', 126), ('s', 127)]
    if re.search(r'\bm0\b', tok): out += [('s', 124)]
    return out

TRANS = ('v_exp_f32', 'v_log_f32', 'v_rcp_f32', 'v_rsq_f32', 'v_sqrt_f32', 'v_sin_f32', 'v_cos_f32')

class Ins:
    __slots__ = ('text', 'op', 'defs', 'uses', 'cls', 'tag', 'uncounted', 'passes', 'srcc', 'srcab', 'data', 'raw', 'extra')
    def __init__(self, text, tag=None, uncounted=False):
        self.text = text; self.tag = tag; self.uncounted = uncounted
        self.defs = []; self.uses = []; self.cls = 'other'; self.passes = 0
        self.srcc = []; self.srcab = []; self.data = []; self.raw = False; self.extra = []
        t = text.split(';')[0].strip()
        if not t or t.endswith(':') or t.startswith('.'):
            self.op = ''; self.cls = 'label' if t.endswith(':') else 'dir'; return
        parts = t.split(None, 1)
        op = self.op = parts[0]
        rest = parts[1] if len(parts) > 1 else ''
        ops = [x.strip() for x in re.split(r',(?![^\[]*\])', rest)] if rest else []
        R = regs_of
        if op.startswith('v_mfma'):
            self.cls = 'mfma'
            self.passes = 8 if '32x32' in op else 4
            self.defs = R(ops[0]); self.srcab = R(ops[1]) + R(ops[2]); self.srcc = R(ops[3].split()[0])
            self.uses = self.srcab + self.srcc
        elif op.startswith('buffer_') or op.startswith('global_'):
            self.cls = 'vmem'
            islds = bool(re.search(r'\blds\b', rest)) or '_lds_' in op
            if 'load' in op and not islds:
                self.defs = R(ops[0]); self.uses = sum((R(x) for x in ops[1:]), [])
            elif islds:
                self.cls = 'vmem'; self.uses = sum((R(x) for x in ops), []) + [('s', 124)]; self.raw = True
            elif 'store' in op or 'atomic' in op:
                self.uses = sum((R(x) for x in ops), [])
                d = ops[0] if op.startswith('buffer_') else ops[1]
                if op.endswith('x4') or op.endswith('x3'): self.data = R(d)
            else:
                pass
        elif op.startswith('ds_'):
            self.cls = 'ds'
            if 'read' in op or 'permute' in op or 'swizzle' in op:
                self.defs = R(ops[0]); self.uses = sum((R(x) for x in ops[1:]), [])
            else:
                self.uses = sum((R(x) for x in ops), [])
        elif op.startswith('v_'):
            self.cls = 'valu'
            if op.startswith('v_cmp'):
                self.defs = R(ops[0]); self.uses = sum((R(x) for x in ops[1:]), [])
            elif 'permlane' in op and 'swap' in op:
                self.defs = R(ops[0]) + R(ops[1]); self.uses = list(self.defs)
            elif op.startswith(('v_add_co', 'v_sub_co', 'v_addc_co', 'v_subb_co')):
                self.defs = R(ops[0]) + R(ops[1]); self.uses = sum((R(x) for x in ops[2:]), [])
            else:
                self.defs = R(ops[0]); self.uses = sum((R(x) for x in ops[1:]), [])
                if op.startswith(('v_fmac', 'v_dot2c', 'v_writelane')): self.uses += self.defs
        elif op.startswith('s_'):
            self.cls = 'salu'
            if op.startswith(('s_load', 's_memtime', 's_memrealtime')):
                self.cls = 'smem'; self.defs = R(ops[0]); self.uses = sum((R(x) for x in ops[1:]), [])
            elif op.startswith(('s_cmp', 's_cbranch', 's_branch', 's_waitcnt', 's_barrier', 's_nop', 's_sleep', 's_endpgm', 's_setprio', 's_bitcmp')):
                self.uses = sum((R(x) for x in ops), []) if op.startswith(('s_cmp', 's_bitcmp')) else []
            else:
                self.defs = R(ops[0]); self.uses = sum((R(x) for x in ops[1:]), [])
                if 'saveexec' in op: self.defs += [('s', 126), ('s', 127)]

class WaitTag:
    def __init__(self, tags): self.tags = set(tags)

class Prog:
    def __init__(self): self.items = []
    def I(self, text, tag=None, unc=False):
        for l in text.strip('\n').split('\n'):
            l = l.strip()
            if l and not l.startswith(';'): self.items.append(Ins(l, tag, unc))
    def add(self, items): self.items += items
    def wait(self, *tags): self.items.append(WaitTag(tags))

def mk(text, tag=None, unc=False):
    p = Prog(); p.I(text, tag, unc); return p.items

def interleave(main, fill, per=None):
    out = []; n = len(main); k = 0
    for i, g in enumerate(main):
        out += g
        tgt = (len(fill) * (i + 1)) // n if per is None else min(len(fill), per * (i + 1))
        out += fill[k:tgt]; k = max(k, tgt)
    out += fill[k:]
    return out

def insert_waits(items):
    out = []
    vq = []
    lq = []
    def need(q, regs):
        idx = -1
        for i, e in enumerate(q):
            if e[0] & regs: idx = i
        return idx
    for it in items:
        if isinstance(it, WaitTag):
            idx = -1
            for i, e in enumerate(vq):
                if e[1] in it.tags: idx = i
            if idx >= 0:
                n = min(len(vq) - 1 - idx, 63)
                out.append(Ins(f's_waitcnt vmcnt({n})')); vq = vq[len(vq) - n:] if n else []
            continue
        if it.cls in ('label', 'dir') or it.uncounted:
            out.append(it); continue
        if it.op == 's_waitcnt':
            m = re.search(r'vmcnt\((\d+)\)', it.text)
            if m: n = int(m.group(1)); vq = vq[max(0, len(vq) - n):] if n else []
            m = re.search(r'lgkmcnt\((\d+)\)', it.text)
            if m: n = int(m.group(1)); lq = lq[max(0, len(lq) - n):] if n else []
            out.append(it); continue
        regs = set(r for r in it.uses + it.defs + it.extra if r[0] != 's')
        w = []
        i = need(vq, regs)
        if i >= 0 and not (it.cls == 'vmem' and not (set(it.uses) & vq[i][0]) and False):
            n = min(len(vq) - 1 - i, 63); w.append(f'vmcnt({n})'); vq = vq[len(vq) - n:] if n else []
        i = need(lq, regs)
        if i >= 0:
            n = min(len(lq) - 1 - i, 15); w.append(f'lgkmcnt({n})'); lq = lq[len(lq) - n:] if n else []
        if w: out.append(Ins('s_waitcnt ' + ' '.join(w)))
        out.append(it)
        if it.cls == 'vmem': vq.append((set(it.defs), it.tag))
        elif it.cls == 'ds': lq.append((set(it.defs), it.tag))
        elif it.cls == 'smem': assert not lq or True
    return out

def states(it):
    if it.cls in ('label', 'dir'): return 0
    if it.op == 's_nop': return int(it.text.split()[1], 0) + 1
    return 1

def required(p, c):
    pd = set(p.defs); cu = set(c.uses); cd = set(c.defs); r = 0
    vec = lambda s: set(x for x in s if x[0] != 's')
    sc = lambda s: set(x for x in s if x[0] == 's')
    if p.cls == 'valu':
        isdot = p.op.startswith('v_dot')
        if c.cls == 'mfma' and vec(pd) & cu: r = max(r, 3 if isdot else 2)
        if c.cls == 'valu':
            if p.op.startswith(TRANS) and pd & cu and not c.op.startswith(TRANS): r = max(r, 1)
            if ('permlane' in c.op or 'row_' in c.text or 'quad_perm' in c.text) and vec(pd) & cu: r = max(r, 2)
            if c.op.startswith(('v_readlane', 'v_readfirstlane')) and vec(pd) & cu: r = max(r, 1)
            if sc(pd) & cu: r = max(r, 4 if c.op.startswith(('v_readlane', 'v_writelane')) else 2)
            if isdot and (pd & (cu | cd)):
                if c.op == p.op:
                    ops = [x.strip() for x in re.split(r',(?![^\[]*\])', c.text.split(None, 1)[1])]
                    ab = set(regs_of(ops[1]) + regs_of(ops[2]))
                    if pd & ab: r = max(r, 3)
                else: r = max(r, 3)
        if isdot and c.cls in ('vmem', 'ds') and pd & cu: r = max(r, 3)
        if c.cls == 'vmem' and sc(pd) & cu: r = max(r, 5)
        if c.cls in ('salu', 'smem') and sc(pd) & cu: r = max(r, 1)
        if ('s', 126) in pd and c.cls == 'mfma': r = max(r, 4)
    if p.cls == 'mfma':
        big = p.passes == 8
        if c.cls == 'mfma':
            if pd & set(c.srcab): r = max(r, 12 if big else 8)
            if pd & set(c.srcc):
                if not (set(c.srcc) == pd and c.passes == p.passes): r = max(r, 10 if big else 6)
            elif pd & cd: r = max(r, 10 if big else 6)
        elif c.cls in ('valu', 'vmem', 'ds'):
            if pd & (cu | cd): r = max(r, 12 if big else 8)
            if c.cls == 'valu' and set(p.srcc) & cd: r = max(r, 7 if big else 3)
    if p.cls == 'salu' and ('s', 124) in pd and c.cls == 'vmem' and c.raw: r = max(r, 1)
    if p.cls == 'vmem' and p.data and set(p.data) & cd: r = max(r, 2 if c.cls in ('valu', 'mfma') else 1)
    return r

def insert_nops(items):
    out = []
    for it in items:
        if it.cls not in ('label', 'dir'):
            dist = 0; need = 0
            for p in reversed(out):
                if dist >= 12: break
                if p.cls not in ('label', 'dir'):
                    need = max(need, required(p, it) - dist)
                if not (p.uncounted and not it.uncounted): dist += states(p)
            while need > 0:
                n = min(need, 16); out.append(Ins(f's_nop {n-1}', None, it.uncounted)); need -= n
        out.append(it)
    return out

def render(items):
    items = insert_nops(insert_waits(items))
    return '\n'.join(('' if i.cls == 'label' else '  ') + i.text for i in items) + '\n', items
```

```python
import sys
from asmlib import *

NAME = "sequential_preLN__linear_kernel_hedgehog__dense_activation_silu__prompt"
DIAG = int(sys.argv[2]) if len(sys.argv) > 2 else 0

WS_EPOCH = 0
WS_FLAG = 4096
WS_PART = 0x40000
WS_O    = 0x240000
WS_H    = 0x440000
WS_ST   = 0x600000
WS_H1   = 0x640000
WS_DIAG = 0xD40000
WS_SIZE = 0xE00000
L_WK, L_WV, L_WQ = 0, 28672, 57344
L_IMG = 0
L_WO = 86016
L_KVX = 143616
L_XCH = 147456
L_W1 = 0
L_UP = 114688
LDS_SIZE = 163840
sW, sT, sH, sT2, sR = 3, 4, 5, 6, 7
X, WQKV, WPHI, WO, W1, W2, OUT, WS = [f"s[{i}:{i+3}]" for i in range(8, 40, 4)]
sU, sC, sE = 60, 61, 62
sHI = "s[64:65]"
sLOG = "s[66:67]"
sONES = 68
sA, sB, sCt, sD = 70, 71, 72, 73
sRact = 74
sSTAMP = 80

def v(a, n=1): return f"v{a}" if n == 1 else f"v[{a}:{a+n-1}]"
def a_(a, n=1): return f"a{a}" if n == 1 else f"a[{a}:{a+n-1}]"

P = Prog()
I = P.I
nstamp = [0]
def stamp():
    if not DIAG: return
    k = nstamp[0]; nstamp[0] += 1
    assert k < 20
    op = "s_memtime" if DIAG == 2 else "s_memrealtime"
    I(f"s_waitcnt lgkmcnt(0)\n{op} s[78:79]\ns_waitcnt lgkmcnt(0)\ns_mov_b32 s{sSTAMP+k}, s78")

lbl = [0]
def signal(sync, line_sreg_expr, slot_sreg, tags):
    P.wait(*tags)
    I("s_barrier")
    lbl[0] += 1; L = f"L_sig{lbl[0]}"
    I(f"s_cmp_lg_u32 s{sW}, 0\ns_cbranch_scc1 {L}")
    I(line_sreg_expr, unc=True)
    I(f"""s_lshl_b32 s{sA}, s{sA}, 7
s_lshl_b32 s{sB}, s{slot_sreg}, 2
s_add_u32 s{sA}, s{sA}, s{sB}
s_add_u32 s{sA}, s{sA}, {WS_FLAG + sync*32768}
s_mov_b64 exec, 0xffff
buffer_store_dword v5, v6, {WS}, s{sA} offen sc1
s_mov_b64 exec, -1""", unc=True)
    I(f"{L}:")

def waitflag(sync, line_expr, voff):
    lbl[0] += 1; L = f"L_pol{lbl[0]}"
    I(f"s_cmp_lg_u32 s{sW}, 1\ns_cbranch_scc1 {L}_done")
    I(line_expr, unc=True)
    I(f"""s_lshl_b32 s{sA}, s{sA}, 7
s_add_u32 s{sA}, s{sA}, {WS_FLAG + sync*32768}
s_mov_b32 s{sB}, 0
{L}:
buffer_load_dword v9, v{voff}, {WS}, s{sA} offen sc1
s_add_u32 s{sB}, s{sB}, 1
s_waitcnt vmcnt(0)
v_cmp_ne_u32 vcc, v9, v5
s_cmp_gt_u32 s{sB}, 0x20000
s_cbranch_scc1 {L}_done
s_nop 1
s_cbranch_vccnz {L}""", unc=True)
    I(f"{L}_done:")
    I("s_barrier")

def softmax(p, t, o):
    q = Prog(); J = q.I
    m, n = t + 14, t + 15
    r0, r1 = t + 16, t + 17
    J(f"v_max3_f32 v{m}, v{p}, v{p+1}, v{p+2}")
    J(f"v_max3_f32 v{n}, -v{p}, -v{p+1}, -v{p+2}")
    for k in range(3, 13, 2):
        J(f"v_max3_f32 v{m}, v{m}, v{p+k}, v{p+k+1}")
        J(f"v_max3_f32 v{n}, v{n}, -v{p+k}, -v{p+k+1}")
    J(f"v_max_f32 v{m}, v{m}, v{p+13}")
    J(f"v_max_f32 v{n}, v{n}, -v{p+13}")
    J(f"v_permlane32_swap_b32 v{m}, v{n}")
    J(f"v_max_f32 v{m}, v{m}, v{n}")
    J(f"v_mul_f32 v{m}, 0xbfb8aa3b, v{m}")
    J(f"v_mov_b32 v{n}, v{m}")
    J(f"v_permlane32_swap_b32 v{m}, v{n}")
    for k in range(0, 14, 2):
        J(f"v_pk_fma_f32 {v(t+k,2)}, {v(p+k,2)}, {sLOG}, {v(m,2)} op_sel_hi:[1,1,0]")
        J(f"v_pk_fma_f32 {v(p+k,2)}, {v(p+k,2)}, {sLOG}, {v(m,2)} op_sel:[0,0,1] op_sel_hi:[1,1,1] neg_lo:[1,0,0] neg_hi:[1,0,0]")
    for k in range(14):
        J(f"v_exp_f32 v{t+k}, v{t+k}")
    for k in range(14):
        J(f"v_exp_f32 v{p+k}, v{p+k}")
    J(f"v_pk_add_f32 {v(m,2)}, {v(t,2)}, {v(t+2,2)}")
    J(f"v_pk_add_f32 {v(r0,2)}, {v(p,2)}, {v(p+2,2)}")
    for k in range(4, 14, 2):
        J(f"v_pk_add_f32 {v(m,2)}, {v(m,2)}, {v(t+k,2)}")
        J(f"v_pk_add_f32 {v(r0,2)}, {v(r0,2)}, {v(p+k,2)}")
    J(f"v_add_f32 v{m}, v{m}, v{n}")
    J(f"v_add_f32 v{n}, v{r0}, v{r1}")
    J(f"v_permlane32_swap_b32 v{m}, v{n}")
    J(f"v_add_f32 v{m}, v{m}, v{n}")
    J(f"v_rcp_f32 v{m}, v{m}")
    J(f"v_mov_b32 v{n}, v{m}")
    J(f"v_permlane32_swap_b32 v{m}, v{n}")
    for k in range(0, 14, 2):
        J(f"v_pk_mul_f32 {v(t+k,2)}, {v(t+k,2)}, {v(m,2)} op_sel_hi:[1,0]")
        J(f"v_pk_mul_f32 {v(p+k,2)}, {v(p+k,2)}, {v(m,2)} op_sel:[0,1] op_sel_hi:[1,1]")
    for k in range(7):
        J(f"v_cvt_pk_bf16_f32 v{o+k}, v{t+2*k}, v{t+2*k+1}")
    for k in range(7):
        J(f"v_cvt_pk_bf16_f32 v{o+7+k}, v{p+2*k}, v{p+2*k+1}")
    return q.items

def dma(vaddr, srd, soff_init, soff_step, m0_init, m0_step, n, tag, flags=""):
    q = Prog(); J = q.I
    J(soff_init); J(m0_init)
    for i in range(n):
        J(f"s_mov_b32 m0, s{sD}")
        if i + 1 < n: J(f"s_add_u32 s{sD}, s{sD}, {m0_step}")
        J(f"buffer_load_dwordx4 v{vaddr}, {srd}, s{sCt} offen {flags} lds", tag=tag)
        if i + 1 < n: J(f"s_add_u32 s{sCt}, s{sCt}, {soff_step}")
    return q.items

def gemm_lds(steps, ring, nring, ahead=2):
    def rd(i):
        av, o1, o2 = steps[i][:3]; r = ring + 4 * (i % nring)
        return mk(f"ds_read_b64_tr_b16 {v(r,2)}, v{av} offset:{o1}\nds_read_b64_tr_b16 {v(r+2,2)}, v{av} offset:{o2}")
    pro = []
    for i in range(min(ahead, len(steps))): pro += rd(i)
    groups = []
    for i, st in enumerate(steps):
        g = []
        if i + ahead < len(steps): g += rd(i + ahead)
        r = ring + 4 * (i % nring); acc = st[4]
        c = "0" if st[5] else v(acc, 16)
        g += mk(f"v_mfma_f32_32x32x16_bf16 {v(acc,16)}, {v(r,4)}, {v(st[3],4)}, {c}")
        groups.append(g)
    return pro, groups

I(f"""s_cmp_ge_u32 s2, 256
s_cbranch_scc1 L_end
s_load_dwordx2 s[8:9], s[0:1], 0
s_load_dwordx2 s[12:13], s[0:1], 8
s_load_dwordx2 s[16:17], s[0:1], 16
s_load_dwordx2 s[20:21], s[0:1], 24
s_load_dwordx2 s[24:25], s[0:1], 40
s_load_dwordx2 s[28:29], s[0:1], 48
s_load_dwordx2 s[32:33], s[0:1], 56
s_load_dwordx2 s[36:37], s[0:1], 72
s_getpc_b64 s[76:77]
v_and_b32 v1, 63, v0
v_lshrrev_b32 v2, 6, v0
s_and_b32 s{sA}, s2, 7
v_readfirstlane_b32 s{sW}, v2
s_lshr_b32 s{sB}, s2, 3
s_and_b32 s{sT}, s{sA}, 1
s_lshl_b32 s{sT}, s{sT}, 3
s_and_b32 s{sCt}, s{sB}, 7
s_add_u32 s{sT}, s{sT}, s{sCt}
s_lshr_b32 s{sH}, s{sA}, 1
s_lshl_b32 s{sH}, s{sH}, 2
s_lshr_b32 s{sD}, s{sB}, 3
s_add_u32 s{sH}, s{sH}, s{sD}
s_lshl_b32 s{sT2}, s{sA}, 1
s_lshr_b32 s{sD}, s{sB}, 4
s_add_u32 s{sT2}, s{sT2}, s{sD}
s_and_b32 s{sRact}, s{sB}, 15
s_min_u32 s{sR}, s{sRact}, 13
s_mov_b32 s10, 1835008
s_mov_b32 s11, 0x20000
s_mov_b32 s14, 1204224
s_mov_b32 s15, 0x20000
s_mov_b32 s38, {WS_SIZE}
s_mov_b32 s39, 0x20000
""")
I(f"""v_and_b32 v3, 7, v0
v_cmp_eq_u32 vcc, s{sCt}, v3
v_lshlrev_b32 v3, 7, v0
s_and_b32 s76, s76, 0xffffff00
s_mov_b64 exec, vcc
global_load_dword v4, v3, s[76:77]
s_mov_b64 exec, -1""")
I(f"""v_and_b32 v2, 31, v1
v_mul_u32_u24 v2, 896, v2
v_lshrrev_b32 v3, 5, v1
v_lshl_add_u32 v2, v3, 4, v2
s_lshl_b32 s{sA}, s{sT}, 2
s_add_u32 s{sA}, s{sA}, s{sW}
s_mul_i32 s{sA}, s{sA}, {32*896}
v_lshrrev_b32 v7, 2, v1
v_mul_u32_u24 v7, 2688, v7
v_and_b32 v8, 3, v1
v_lshl_add_u32 v7, v8, 4, v7
v_mov_b32 v10, 0
s_waitcnt lgkmcnt(0)""")
stamp()
XF = 16
for t in range(28):
    I(f"buffer_load_dwordx4 {v(XF+4*t,4)}, v2, {X}, s{sA} offen offset:{32*t}")
I(f"buffer_load_dword v5, v10, {WS}, 0 offen sc1")
def wdma(part_off, region, tag):
    return dma(7, WQKV,
        f"s_mul_i32 s{sCt}, s{sH}, 56\ns_mul_i32 s{sD}, s{sW}, 43008\ns_add_u32 s{sCt}, s{sCt}, s{sD}\ns_add_u32 s{sCt}, s{sCt}, {part_off}",
        4 * 43008,
        f"s_lshl_b32 s{sD}, s{sW}, 10\ns_add_u32 s{sD}, s{sD}, {region}", 4096, 7, tag)
P.add(wdma(896, L_WK, "wk"))
P.add(wdma(1792, L_WV, "wv"))
I(f"""s_mov_b32 s18, 25088
s_mov_b32 s19, 0x20000
s_mov_b32 s22, 401408
s_mov_b32 s23, 0x20000
s_mov_b32 s26, 1605632
s_mov_b32 s27, 0x20000
s_mov_b32 s30, 1605632
s_mov_b32 s31, 0x20000
s_mov_b32 s34, 1835008
s_mov_b32 s35, 0x20000
s_mov_b32 s64, 0
s_mov_b32 s65, -1
s_mov_b32 s66, 0x3fb8aa3b
s_mov_b32 s67, 0x3fb8aa3b
s_mov_b32 s{sONES}, 0x3f803f80
s_cmp_ge_u32 s{sR}, 7
s_cselect_b32 s{sU}, 1, 0
s_mul_i32 s{sA}, s{sU}, 7
s_sub_u32 s{sC}, s{sR}, s{sA}""")
WPA = 192; WPT = 200
I(f"""v_bfe_u32 v11, v1, 3, 2
v_and_b32 v12, 3, v1
v_lshl_add_u32 v11, v11, 2, v12
v_bfe_u32 v12, v1, 2, 1
v_mul_u32_u24 v12, 14, v12
v_min_u32 v13, 13, v11
v_add_u32 v13, v13, v12
v_lshlrev_b32 v13, 1, v13
v_mad_u32_u24 v13, v3, {4*56//4}, v13
v_mad_u32_u24 v13, v3, {4*56//4}, v13
v_mad_u32_u24 v13, v3, {4*56//4}, v13
v_mad_u32_u24 v13, v3, {4*56//4}, v13
v_lshl_add_u32 v14, v3, 20, v13
s_mul_i32 s{sA}, s{sH}, 1568""")
for t in range(2):
    for j in range(8):
        d = 16 * t + 8 * (j >> 2) + (j & 3)
        av = 14 if (t == 1 and j >= 4) else 13
        dst = (WPA if j % 2 == 0 else WPT) + 4 * t + j // 2
        op = "buffer_load_short_d16" if j % 2 == 0 else "buffer_load_short_d16_hi"
        I(f"{op} v{dst}, v{av}, {WPHI}, s{sA} offen offset:{d*56}")
I(f"""v_add_u32 v12, v12, v11
v_cmp_gt_u32 vcc, 14, v11
v_cndmask_b32 v12, 28, v12, vcc
v_lshl_add_u32 v12, v3, 5, v12
v_lshlrev_b32 v15, 4, v12""")
I(f"""v_bfe_u32 v11, v1, 2, 2
v_lshl_add_u32 v11, v3, 3, v11
v_lshlrev_b32 v11, 6, v11
v_bfe_u32 v12, v1, 4, 1
v_lshl_add_u32 v11, v12, 5, v11
v_lshl_add_u32 v11, v8, 3, v11
v_add_u32 v12, {L_WQ}, v11
v_lshlrev_b32 v6, 7, v1
v_mov_b32 v232, 0
v_mov_b32 v233, 0""")
for i in range(112):
    I(f"v_dot2c_f32_bf16 v232, s{sONES}, v{XF+i}\nv_dot2c_f32_bf16 v233, v{XF+i}, v{XF+i}")
stamp()
P.add(wdma(0, L_WQ, "wq"))
I(f"""v_lshrrev_b32 v13, 3, v1
v_mul_u32_u24 v14, 896, v13
v_bfe_u32 v13, v1, 4, 1
v_lshlrev_b32 v13, 2, v13
v_and_b32 v9, 7, v1
v_xor_b32 v13, v13, v9
v_lshl_add_u32 v14, v13, 4, v14""")
P.add(dma(14, WO, f"s_lshl_b32 s{sCt}, s{sC}, 7\ns_mul_i32 s{sD}, s{sW}, {8*896}\ns_add_u32 s{sCt}, s{sCt}, s{sD}", 32 * 896,
          f"s_lshl_b32 s{sD}, s{sW}, 10\ns_add_u32 s{sD}, s{sD}, {L_WO}", 4096, 14, "wo"))
I(f"""v_permlane32_swap_b32 v232, v233
v_add_f32 v232, v232, v233
v_mul_f32 v232, {hex(__import__('struct').unpack('<I', __import__('struct').pack('<f', 1/448))[0])}, v232
v_mov_b32 v233, v232
v_permlane32_swap_b32 v232, v233
v_fma_f32 v233, -v232, v232, v233
v_max_f32 v233, 0, v233
v_add_f32 v233, 0x3727c5ac, v233
v_rsq_f32 v234, v233
v_mul_f32 v235, -v232, v234""")
I(f"""s_mov_b32 s{sA}, 0x9E3779B1
v_mul_lo_u32 v5, v5, s{sA}
v_add_u32 v5, 0x7F4A7C15, v5""")
for q in range(8):
    I(f"v_or_b32 v{WPA+q}, v{WPA+q}, v{WPT+q}")
RING = 128; ACK = 144; ACV = 160; PK = 176; IMG = 208; TMP = 236
def norm(t):
    q = Prog()
    for i in range(4):
        r = XF + 4 * t + i; tt = TMP + 2 * i
        q.I(f"v_lshlrev_b32 v{tt}, 16, v{r}\nv_and_b32 v{tt+1}, 0xffff0000, v{r}")
    for i in range(4):
        tt = TMP + 2 * i
        q.I(f"v_pk_fma_f32 {v(tt,2)}, {v(tt,2)}, v[234:235], v[234:235] op_sel:[0,0,1] op_sel_hi:[1,0,1]")
    for i in range(4):
        r = XF + 4 * t + i; tt = TMP + 2 * i
        q.I(f"v_cvt_pk_bf16_f32 v{r}, v{tt}, v{tt+1}")
    return q.items
P.add(norm(0))
P.wait("wk"); I("s_barrier")
stamp()
pro, groups = gemm_lds([(11, L_WK + 1024*t, L_WK + 1024*t + 256, XF + 4*t, ACK, t == 0) for t in range(28)], RING, 4)
P.add(pro)
for t in range(28):
    if t + 1 < 28: P.add(norm(t + 1))
    P.add(groups[t])
P.wait("wv"); I("s_barrier")
stamp()
KB = WPT
def phi_pre(acc):
    q = Prog()
    for i in range(8): q.I(f"v_cvt_pk_bf16_f32 v{KB+i}, v{acc+2*i}, v{acc+2*i+1}")
    q.I(f"v_mfma_f32_32x32x16_bf16 {v(PK,16)}, {v(WPA,4)}, {v(KB,4)}, 0")
    q.I(f"v_mfma_f32_32x32x16_bf16 {v(PK,16)}, {v(WPA+4,4)}, {v(KB+4,4)}, {v(PK,16)}")
    return q.items
pro, groups = gemm_lds([(11, L_WV + 1024*t, L_WV + 1024*t + 256, XF + 4*t, ACV, t == 0) for t in range(28)], RING, 4)
P.add(pro)
P.add(groups[0] + groups[1] + groups[2])
P.add(phi_pre(ACK))
P.add(groups[3] + groups[4] + groups[5])
P.add(interleave(groups[6:], softmax(PK, TMP, IMG)))
I(f"""v_and_b32 v13, 31, v1
s_lshl_b32 s{sA}, s{sW}, 5
v_add_u32 v13, s{sA}, v13
v_mul_u32_u24 v13, 208, v13
v_mad_u32_u24 v13, v3, 48, v13
v_mad_u32_u24 v13, v3, 48, v13
v_cndmask_b32 v{ACV+12}, v{ACV+12}, 1.0, {sHI}""")
for i in range(8): I(f"v_cvt_pk_bf16_f32 v{IMG+16+i}, v{ACV+2*i}, v{ACV+2*i+1}")
for i in range(6): I(f"ds_write_b128 v13, {v(IMG+4*i,4)} offset:{L_IMG+16*i}")
I(f"""v_lshrrev_b32 v9, 4, v1
v_bfe_u32 v13, v1, 2, 2
v_lshl_add_u32 v9, v9, 3, v13
v_mul_u32_u24 v9, 208, v9
v_and_b32 v13, 1, v1
v_mad_u32_u24 v9, v13, 48, v9
v_mad_u32_u24 v9, v13, 48, v9
v_bfe_u32 v13, v1, 1, 1
v_lshl_add_u32 v9, v13, 3, v9
s_lshl_b32 s{sA}, s{sW}, 4
v_add_u32 v13, s{sA}, v9""")
P.wait("wq")
I("s_waitcnt lgkmcnt(0)\ns_barrier")
stamp()
KA = 144; KBv = 208; KD = 176
for k in range(4):
    for u in range(2):
        I(f"ds_read_b64_tr_b16 {v(KA+4*k+2*u,2)}, v13 offset:{L_IMG+(32*k+4*u)*208}")
    for nu in range(2):
        for u in range(2):
            I(f"ds_read_b64_tr_b16 {v(KBv+8*k+4*nu+2*u,2)}, v9 offset:{L_IMG+(32*k+4*u)*208+64+16*nu}")
proq, groupsq = gemm_lds([(12, 1024*t, 1024*t + 256, XF + 4*t, ACV, t == 0) for t in range(28)], RING, 4)
for k in range(4):
    for nu in range(2):
        c = "0" if k == 0 else v(KD+4*nu,4)
        I(f"v_mfma_f32_16x16x32_bf16 {v(KD+4*nu,4)}, {v(KA+4*k,4)}, {v(KBv+8*k+4*nu,4)}, {c}")
P.add(proq)
I(f"""v_lshrrev_b32 v9, 4, v1
v_lshlrev_b32 v9, 9, v9
v_and_b32 v13, 15, v1
v_lshl_add_u32 v9, v13, 4, v9
s_lshl_b32 s{sA}, s{sH}, 4
s_add_u32 s{sA}, s{sA}, s{sT}
s_lshl_b32 s{sA}, s{sA}, 13
s_lshl_b32 s{sB}, s{sW}, 11
s_add_u32 s{sA}, s{sA}, s{sB}
s_add_u32 s{sA}, s{sA}, {WS_PART}""")
P.add(groupsq[0])
I(f"buffer_store_dwordx4 {v(KD,4)}, v9, {WS}, s{sA} offen sc1", tag="part")
I(f"buffer_store_dwordx4 {v(KD+4,4)}, v9, {WS}, s{sA} offen offset:256 sc1", tag="part")
for g in groupsq[1:]: P.add(g)
signal(0, f"s_lshl_b32 s{sA}, s{sH}, 4", sT, ["part"])
stamp()
P.add(phi_pre(ACV))
PQ = 208
I(f"""v_bfe_u32 v9, v1, 2, 2
v_mad_u32_u24 v9, v3, 14, v9
v_lshlrev_b32 v9, 7, v9
v_bfe_u32 v13, v1, 3, 1
v_xor_b32 v13, v13, v3
s_lshr_b32 s{sA}, s{sW}, 1
v_xor_b32 v13, s{sA}, v13
v_lshl_add_u32 v9, v13, 6, v9
v_bfe_u32 v13, v1, 4, 1
v_lshl_add_u32 v9, v13, 5, v9
v_lshl_add_u32 v9, v8, 3, v9
s_mul_i32 s{sA}, s{sA}, {8*28*128}
s_add_u32 s{sA}, s{sA}, {L_WO}
v_add_u32 v9, s{sA}, v9
v_xor_b32 v13, 64, v9""")
P.wait("wo")
I(f"""v_mov_b32 v240, 0
v_lshlrev_b32 v241, 2, v1
v_add_u32 v241, {L_WO + 57344}, v241
ds_write_b32 v241, v240
s_waitcnt lgkmcnt(0)
s_barrier""")
wor = []
for s in range(16):
    hh, e = s >> 1, s & 1
    for k, av in ((0, 9), (1, 13)):
        for u in range(2):
            wor.append(mk(f"ds_read_b64_tr_b16 {a_(128+8*s+4*k+2*u,2)}, v{av} offset:{(28*hh+8*e+4*u)*128}"))
P.add(interleave(wor, softmax(PK, TMP, PQ)))
XR = 224
I(f"""v_and_b32 v9, 31, v1
v_mul_u32_u24 v9, 896, v9
v_lshl_add_u32 v9, v3, 3, v9
s_lshl_b32 s{sA}, s{sT2}, 2
s_lshl_b32 s{sB}, s{sU}, 1
s_add_u32 s{sA}, s{sA}, s{sB}
s_and_b32 s{sB}, s{sW}, 1
s_add_u32 s69, s{sA}, s{sB}
s_mul_i32 s{sA}, s69, {32*896}
s_lshl_b32 s{sB}, s{sC}, 7
s_add_u32 s{sA}, s{sA}, s{sB}
s_lshr_b32 s{sB}, s{sW}, 1
s_lshl_b32 s{sB}, s{sB}, 6
s_add_u32 s75, s{sA}, s{sB}
v_mov_b32 v4, v9""")
for i in range(4):
    I(f"buffer_load_dwordx2 {v(XR+2*i,2)}, v4, {X}, s75 offen offset:{16*i}")
I(f"v_and_b32 v7, 15, v1\nv_lshlrev_b32 v7, 2, v7\nv_min_u32 v10, 13, v1\nv_lshlrev_b32 v10, 2, v10")
I("s_waitcnt lgkmcnt(0)")
stamp()
waitflag(0, f"s_lshl_b32 s{sA}, s{sH}, 4\ns_add_u32 s{sA}, s{sA}, s{sT}", 7)
stamp()
G = 16
I(f"""s_lshl_b32 s{sA}, s{sH}, 17
s_lshl_b32 s{sB}, s{sW}, 10
s_add_u32 s{sA}, s{sA}, s{sB}
s_add_u32 s{sA}, s{sA}, {WS_PART}
s_cmp_eq_u32 s{sW}, 3
s_cselect_b32 s{sB}, 28, 12
s_lshl_b32 s{sB}, 1, s{sB}
v_add_u32 v9, s{sB}, v15""")
for T in range(16):
    I(f"buffer_load_dwordx4 {v(G+8*T,4)}, v15, {WS}, s{sA} offen sc1")
    I(f"buffer_load_dwordx4 {v(G+8*T+4,4)}, v9, {WS}, s{sA} offen sc1")
    if T < 15: I(f"s_add_u32 s{sA}, s{sA}, 8192")
def w2_issue(idxs, base, tag):
    q = Prog(); n = len(idxs)
    q.I(f"s_mul_i32 s{sD}, s{sW}, {n*2048}\ns_add_u32 s{sD}, s{sD}, {base}\ns_mul_i32 s{sB}, s{sW}, {16*896}\ns_lshl_b32 s{sCt}, s{sC}, 7\ns_add_u32 s{sB}, s{sB}, s{sCt}")
    for k, i in enumerate(idxs):
        ks = 8 * (i % 14) + 4 * (i // 14)
        for hf in range(2):
            q.I(f"s_mov_b32 m0, s{sD}\ns_add_u32 s{sCt}, s{sB}, {(16*ks+8*hf)*896}")
            q.I(f"buffer_load_dwordx4 v14, {W2}, s{sCt} offen lds", tag=tag)
            q.I(f"s_add_u32 s{sD}, s{sD}, 1024")
    return q.items
def w2_read(idxs, base, va, vb):
    n = len(idxs); q = Prog()
    q.I(f"""v_bfe_u32 v{va}, v1, 2, 2
v_lshl_add_u32 v{va}, v3, 2, v{va}
v_lshlrev_b32 v{va}, 7, v{va}
v_bfe_u32 v{vb}, v1, 3, 1
v_lshl_add_u32 v{va}, v{vb}, 6, v{va}
v_bfe_u32 v{vb}, v1, 4, 1
v_lshl_add_u32 v{va}, v{vb}, 5, v{va}
v_lshl_add_u32 v{va}, v8, 3, v{va}
s_mul_i32 s{sD}, s{sW}, {n*2048}
s_add_u32 s{sD}, s{sD}, {base}
v_add_u32 v{va}, s{sD}, v{va}
v_xor_b32 v{vb}, 64, v{va}""")
    gs = []
    for k, i in enumerate(idxs):
        for mu, av in ((0, va), (1, vb)):
            for u in range(2):
                gs.append(mk(f"ds_read_b64_tr_b16 {a_(8*i+4*mu+2*u,2)}, v{av} offset:{k*2048+u*1024}"))
    return q.items, gs
R1 = list(range(0, 16)); R2 = [16, 17, 18]; R3 = list(range(19, 24)); R4 = [24, 25, 26, 27]
P.add(w2_issue(R1, 0, "w2a"))
for T in range(1, 16):
    for k in range(0, 8, 2):
        I(f"v_pk_add_f32 {v(G+k,2)}, {v(G+k,2)}, {v(G+8*T+k,2)}")
I(f"""v_cvt_pk_bf16_f32 v{G+8}, v{G}, v{G+1}
v_cvt_pk_bf16_f32 v{G+9}, v{G+2}, v{G+3}
v_cvt_pk_bf16_f32 v{G+10}, v{G+4}, v{G+5}
v_cvt_pk_bf16_f32 v{G+11}, v{G+6}, v{G+7}
v_lshlrev_b32 v9, 3, v0
v_add_u32 v9, {L_KVX}, v9
v_lshlrev_b32 v13, 3, v1
v_add_u32 v13, {L_KVX}, v13
ds_write_b64 v9, {v(G+8,2)}
ds_write_b64 v9, {v(G+10,2)} offset:2048
s_waitcnt lgkmcnt(0)
s_barrier""")
KVA = 32; OD = 48
for q in range(7): I(f"ds_read_b64 {v(KVA+2*q,2)}, v13 offset:{512*q}")
for s in range(3):
    c = "0" if s == 0 else v(OD,16)
    I(f"v_mfma_f32_32x32x16_bf16 {v(OD,16)}, {v(KVA+4*s,4)}, {v(PQ+4*s,4)}, {c}")
I(f"v_mfma_f32_32x32x8_bf16 {v(OD,16)}, {v(KVA+12,2)}, {v(PQ+12,2)}, {v(OD,16)}")
I(f"""s_lshl_b32 s{sA}, s{sT}, 2
s_add_u32 s{sA}, s{sA}, s{sW}
s_lshl_b32 s{sA}, s{sA}, 15
s_lshl_b32 s{sB}, s{sH}, 11
s_add_u32 s{sA}, s{sA}, s{sB}
s_add_u32 s{sA}, s{sA}, {WS_O}
v_lshlrev_b32 v2, 4, v1
v_mov_b32 v71, 0
v_add_f32 v{OD+14}, 0x358637bd, v{OD+14}
v_rcp_f32 v{OD+14}, v{OD+14}""")
for k in range(0, 14, 2): I(f"v_pk_mul_f32 {v(OD+k,2)}, {v(OD+k,2)}, {v(OD+14,2)} op_sel_hi:[1,0]")
for k in range(7): I(f"v_cvt_pk_bf16_f32 v{64+k}, v{OD+2*k}, v{OD+2*k+1}")
I(f"buffer_store_dwordx4 v[64:67], v2, {WS}, s{sA} offen sc1", tag="o")
I(f"buffer_store_dwordx4 v[68:71], v2, {WS}, s{sA} offen offset:1024 sc1", tag="o")
signal(1, f"s_lshl_b32 s{sA}, s{sT}, 4", sH, ["o"])
stamp()
I(f"s_cmp_ge_u32 s{sRact}, 14\ns_cbranch_scc1 L_exit")
su, gs = w2_read(R1, 0, 9, 13)
P.add(su); P.wait("w2a")
for g in gs: P.add(g)
I("s_waitcnt lgkmcnt(0)")
LINE2 = f"s_lshl_b32 s{sA}, s{sT2}, 4\ns_add_u32 s{sA}, s{sA}, s{sR}"
LINE2B = f"s_lshl_b32 s{sA}, s{sT2}, 4"
waitflag(1, LINE2, 7)
stamp()
OB = 16
I(f"""s_lshl_b32 s{sA}, s69, 15
s_lshr_b32 s{sB}, s{sW}, 1
s_lshl_b32 s{sB}, s{sB}, 14
s_add_u32 s{sA}, s{sA}, s{sB}
s_add_u32 s{sA}, s{sA}, {WS_O}""")
for s in range(16):
    I(f"buffer_load_dwordx4 {v(OB+4*s,4)}, v2, {WS}, s{sA} offen offset:{1024*(s%4)} sc1")
    if s % 4 == 3 and s < 15: I(f"s_add_u32 s{sA}, s{sA}, 4096")
I(f"""v_lshrrev_b32 v9, 4, v1
v_mul_u32_u24 v13, 3584, v9
v_lshlrev_b32 v9, 2, v9
v_and_b32 v12, 15, v1
v_xor_b32 v9, v9, v12
v_lshl_add_u32 v13, v9, 4, v13""")
P.add(dma(13, W1, f"s_lshl_b32 s{sCt}, s{sR}, 8\ns_mul_i32 s{sD}, s{sW}, {4*3584}\ns_add_u32 s{sCt}, s{sCt}, s{sD}", 16 * 3584,
          f"s_lshl_b32 s{sD}, s{sW}, 10\ns_add_u32 s{sD}, s{sD}, {L_W1}", 4096, 28, "w1"))
P.add(w2_issue(R2, L_UP, "w2b"))
AO, AT = 80, 96
for s in range(16):
    for k, acc in ((1, AT), (0, AO)):
        c = "0" if s == 0 else v(acc,16)
        I(f"v_mfma_f32_32x32x16_bf16 {v(acc,16)}, {a_(128+8*s+4*k,4)}, {v(OB+4*s,4)}, {c}")
I(f"""s_lshl_b32 s{sA}, s{sW}, 12
s_add_u32 s{sA}, s{sA}, {L_XCH}
v_add_u32 v9, s{sA}, v2
v_xor_b32 v12, 8192, v9""")
for i in range(4): I(f"ds_write_b128 v9, {v(AT+4*i,4)} offset:{1024*i}")
I("s_waitcnt lgkmcnt(0)\ns_barrier")
for i in range(4): I(f"ds_read_b128 {v(AT+4*i,4)}, v12 offset:{1024*i}")
for i in range(8):
    I(f"v_lshlrev_b32 v{112+2*i}, 16, v{XR+i}\nv_and_b32 v{113+2*i}, 0xffff0000, v{XR+i}")
for k in range(0, 16, 2): I(f"v_pk_add_f32 {v(AO+k,2)}, {v(AO+k,2)}, {v(112+k,2)}")
for k in range(0, 16, 2): I(f"v_pk_add_f32 {v(AO+k,2)}, {v(AO+k,2)}, {v(AT+k,2)}")
HR = XR
for i in range(8): I(f"v_cvt_pk_bf16_f32 v{HR+i}, v{AO+2*i}, v{AO+2*i+1}")
I(f"""s_mul_i32 s{sA}, s69, {28*1024}
s_lshl_b32 s{sB}, s{sC}, 1
s_lshr_b32 s{sD}, s{sW}, 1
s_add_u32 s{sB}, s{sB}, s{sD}
s_lshl_b32 s{sD}, s{sB}, 11
s_add_u32 s{sA}, s{sA}, s{sD}
s_add_u32 s{sA}, s{sA}, {WS_H}
v_mov_b32 v112, 0
v_mov_b32 v113, 0""")
I(f"buffer_store_dwordx4 {v(HR,4)}, v2, {WS}, s{sA} offen sc1", tag="h")
I(f"buffer_store_dwordx4 {v(HR+4,4)}, v2, {WS}, s{sA} offen offset:1024 sc1", tag="h")
for i in range(8):
    I(f"v_dot2c_f32_bf16 v112, s{sONES}, v{HR+i}\nv_dot2c_f32_bf16 v113, v{HR+i}, v{HR+i}")
I(f"""s_mul_i32 s{sA}, s69, {14*256}
s_lshl_b32 s{sB}, s{sB}, 8
s_add_u32 s{sA}, s{sA}, s{sB}
s_add_u32 s{sA}, s{sA}, {WS_ST}
v_lshlrev_b32 v12, 2, v1
v_permlane32_swap_b32 v112, v113
v_add_f32 v112, v112, v113""")
I(f"buffer_store_dword v112, v12, {WS}, s{sA} offen sc1", tag="h")
signal(2, LINE2B, sR, ["h", "w1", "w2b"])
stamp()
su, gs = w2_read(R2, L_UP, 9, 13)
P.add(su)
for g in gs: P.add(g)
I(f"""v_bfe_u32 v9, v1, 2, 2
v_lshl_add_u32 v240, v3, 2, v9
v_lshlrev_b32 v240, 8, v240
v_lshl_add_u32 v240, v9, 6, v240
v_bfe_u32 v9, v1, 4, 1
v_lshl_add_u32 v240, v9, 5, v240
v_lshl_add_u32 v240, v8, 3, v240
v_xor_b32 v241, 64, v240
v_xor_b32 v242, 128, v240
v_xor_b32 v243, 192, v240""")
for m in range(4): I(f"v_add_u32 v{244+m}, 57344, v{240+m}")
I(f"""s_lshl_b32 s{sA}, s{sW}, 6
v_xor_b32 v248, s{sA}, v240
v_add_u32 v249, 57344, v248""")
for i in range(4): I(f"v_mov_b32 v{16+i}, s{sONES}")
def w1step(t, base):
    return (base + (4 if t >= 14 else 0), (t % 14) * 4096, (t % 14) * 4096 + 2048)
pro, groups = gemm_lds([(248 + (1 if t >= 14 else 0), (t % 14) * 4096, (t % 14) * 4096 + 2048, 16, 32, t == 0) for t in range(28)], RING, 4)
for g in groups:
    it = g[-1]; ops = it.text.split(None, 1)[1].split(', ')
    g[-1] = Ins(f"v_mfma_f32_32x32x16_bf16 {ops[0]}, {ops[2]}, {ops[1]}, {ops[3]}")
P.add(pro)
for g in groups: P.add(g)
I("s_waitcnt lgkmcnt(0)\ns_barrier")
P.add(w2_issue(R3, L_UP, "w2c"))
L_AUG = 163840 - 2048
I(f"""v_cvt_pk_bf16_f32 v20, v32, v32
v_lshlrev_b32 v21, 16, v20
v_sub_f32 v21, v32, v21
v_cvt_pk_bf16_f32 v20, v32, v21
v_and_b32 v21, 0xffff, v20
v_cndmask_b32 v20, v20, 0, {sHI}
v_cndmask_b32 v21, v21, 0, {sHI}
v_lshlrev_b32 v9, 3, v0
v_add_u32 v9, {L_AUG}, v9
v_lshlrev_b32 v13, 3, v1
v_add_u32 v13, {L_AUG}, v13
ds_write_b64 v9, v[20:21]
s_waitcnt lgkmcnt(0)""")
waitflag(2, LINE2, 10)
stamp()
HB = 16
I(f"""s_lshl_b32 s{sB}, s{sT2}, 2
s_add_u32 s{sB}, s{sB}, s{sW}
s_mul_i32 s{sA}, s{sB}, {28*1024}
s_add_u32 s{sA}, s{sA}, {WS_H}
s_mul_i32 s{sD}, s{sB}, {14*256}
s_add_u32 s{sD}, s{sD}, {WS_ST}
s_mul_i32 s63, s{sB}, {112*1024}
s_lshl_b32 s{sB}, s{sR}, 13
s_add_u32 s63, s63, s{sB}
s_add_u32 s63, s63, {WS_H1}""")
ST = 208
for t in range(28):
    I(f"buffer_load_dwordx4 {v(HB+4*t,4)}, v2, {WS}, s{sA} offen offset:{1024*(t%4)} sc1")
    if t % 4 == 3: I(f"s_add_u32 s{sA}, s{sA}, 4096")
for k in range(14):
    I(f"buffer_load_dword v{ST+k}, v12, {WS}, s{sD} offen offset:{256*k} sc1")
AUG = 232
for m in range(4): I(f"ds_read_b64 {v(AUG+2*m,2)}, v13 offset:{512*m}")
ACC = [144, 160, 176, 192]
def steps3(ms): return [w1step(t, 240 + m) + (HB + 4*t, ACC[m], t == 0) for t in range(28) for m in ms]
allsteps = steps3([0, 1]) + steps3([2]) + steps3([3])
pro, groups = gemm_lds(allsteps, RING, 4, ahead=3)
P.add(pro)
for g in groups[:56]: P.add(g)
stt = Prog()
for k in range(2, 14, 2): stt.I(f"v_pk_add_f32 {v(ST,2)}, {v(ST,2)}, {v(ST+k,2)}")
stt.I(f"""v_add_f32 v{ST}, v{ST}, v{ST+1}
v_mul_f32 v{ST}, 0x3b124925, v{ST}
v_mov_b32 v{ST+1}, v{ST}
v_permlane32_swap_b32 v{ST}, v{ST+1}
v_fma_f32 v{ST+1}, -v{ST}, v{ST}, v{ST+1}
v_max_f32 v{ST+1}, 0, v{ST+1}
v_add_f32 v{ST+1}, 0x3727c5ac, v{ST+1}
v_rsq_f32 v250, v{ST+1}
v_cvt_pk_bf16_f32 v222, -v{ST}, -v{ST}
v_lshlrev_b32 v{ST+2}, 16, v222
v_sub_f32 v{ST+2}, -v{ST}, v{ST+2}
v_cvt_pk_bf16_f32 v223, v{ST+2}, 0
v_mul_f32 v251, 0xbfb8aa3b, v250
v_cndmask_b32 v222, v222, 0, {sHI}
v_cndmask_b32 v223, v223, 0, {sHI}""")
P.add(stt.items)
def aug(m): return mk(f"v_mfma_f32_32x32x8_bf16 {v(ACC[m],16)}, {v(AUG+2*m,2)}, v[222:223], {v(ACC[m],16)}")
def silu(m, tag):
    q = Prog(); a = ACC[m]; t = 208
    for half in range(2):
        b = a + 8 * half
        for k in range(0, 8, 2): q.I(f"v_pk_mul_f32 {v(t+k,2)}, {v(b+k,2)}, v[250:251] op_sel:[0,1] op_sel_hi:[1,1]")
        for k in range(8): q.I(f"v_exp_f32 v{t+k}, v{t+k}")
        for k in range(0, 8, 2): q.I(f"v_pk_mul_f32 {v(b+k,2)}, {v(b+k,2)}, v[250:251] op_sel_hi:[1,0]")
        for k in range(0, 8, 2): q.I(f"v_pk_add_f32 {v(t+k,2)}, {v(t+k,2)}, 1.0 op_sel_hi:[1,0]")
        for k in range(8): q.I(f"v_rcp_f32 v{t+k}, v{t+k}")
        for k in range(0, 8, 2): q.I(f"v_pk_mul_f32 {v(b+k,2)}, {v(b+k,2)}, {v(t+k,2)}")
        for k in range(4): q.I(f"v_cvt_pk_bf16_f32 v{b+k}, v{b+2*k}, v{b+2*k+1}")
        ks = 2 * m + half
        so = "s63" if ks < 4 else "s59"
        q.I(f"buffer_store_dwordx4 {v(b,4)}, v2, {WS}, {so} offen offset:{1024*(ks%4)} sc1", tag=tag)
    return q.items
I("s_add_u32 s59, s63, 4096")
P.add(aug(0)); P.add(aug(1))
P.add(groups[56]); P.add(groups[57])
P.add(interleave(groups[58:84], silu(0, "h1a") + silu(1, "h1a")))
P.add(aug(2))
P.add(groups[84]); P.add(groups[85])
su3, gs3 = w2_read(R3, L_UP, 9, 13)
P.add(interleave(groups[86:98], silu(2, "h1b")[:50]))
signal(3, LINE2B, sR, ["h1a", "w2c"])
P.add(interleave(groups[98:112], silu(2, "h1b")[50:]))
P.add(aug(3))
P.add(su3)
for g in gs3: P.add(g)
P.add(silu(3, "h1b"))
I("s_waitcnt lgkmcnt(0)")
P.add(w2_issue(R4, L_UP + 0, "w2d") if False else [])
signal(4, LINE2B, sR, ["h1b"])
stamp()
P.add(w2_issue(R4, 0, "w2d"))
waitflag(3, LINE2, 10)
stamp()
B4 = 16
C4 = [[144, 160], [176, 192]]
I(f"""s_lshl_b32 s{sA}, s{sT2}, 2
s_lshl_b32 s{sB}, s{sU}, 1
s_add_u32 s{sA}, s{sA}, s{sB}
s_mul_i32 s{sA}, s{sA}, {112*1024}
s_lshl_b32 s{sB}, s{sW}, 10
s_add_u32 s{sA}, s{sA}, s{sB}
s_add_u32 s63, s{sA}, {WS_H1}
v_add_u32 v12, {112*1024}, v2""")
def p4loads(late):
    q = Prog()
    q.I(f"s_add_u32 s59, s63, {4096*late}")
    gl = []
    for p in range(14):
        g = mk(f"buffer_load_dwordx4 {v(B4+8*p,4)}, v2, {WS}, s59 offen sc1\nbuffer_load_dwordx4 {v(B4+8*p+4,4)}, v12, {WS}, s59 offen sc1\ns_add_u32 s59, s59, 8192")
        gl.append(g)
    return q.items, gl
def p4mma(i):
    p = i % 14; q = Prog()
    for nu in range(2):
        for mu in range(2):
            c = "0" if i == 0 else v(C4[mu][nu],16)
            q.I(f"v_mfma_f32_32x32x16_bf16 {v(C4[mu][nu],16)}, {a_(8*i+4*mu,4)}, {v(B4+8*p+4*nu,4)}, {c}")
    return q.items
su, gl = p4loads(0)
P.add(su)
for g in gl: P.add(g)
su, gs = w2_read(R4, 0, 9, 13)
P.add(su); P.wait("w2d")
for g in gs: P.add(g)
for i in range(14): P.add(p4mma(i))
I("s_waitcnt lgkmcnt(0)")
waitflag(4, LINE2, 10)
stamp()
su, gl = p4loads(1)
P.add(su)
for g in gl: P.add(g)
for i in range(14, 28): P.add(p4mma(i))
I(f"""s_lshl_b32 s{sA}, s{sW}, 12
v_add_u32 v9, s{sA}, v2
s_lshl_b32 s{sA}, s{sW}, 14
v_add_u32 v13, s{sA}, v2""")
for mu in range(2):
    for nu in range(2):
        for i in range(4): I(f"ds_write_b128 v9, {v(C4[mu][nu]+4*i,4)} offset:{16384*(2*mu+nu)+1024*i}")
I("s_waitcnt lgkmcnt(0)\ns_barrier")
for s in range(4):
    for i in range(4): I(f"ds_read_b128 {v(16+16*s+4*i,4)}, v13 offset:{4096*s+1024*i}")
for i in range(8):
    I(f"v_lshlrev_b32 v{80+2*i}, 16, v{HR+i}\nv_and_b32 v{81+2*i}, 0xffff0000, v{HR+i}")
for s in range(4):
    for k in range(0, 16, 2): I(f"v_pk_add_f32 {v(80+k,2)}, {v(80+k,2)}, {v(16+16*s+k,2)}")
for i in range(8): I(f"v_cvt_pk_bf16_f32 v{96+i}, v{80+2*i}, v{80+2*i+1}")
for i in range(4): I(f"buffer_store_dwordx2 {v(96+2*i,2)}, v4, {OUT}, s75 offen offset:{16*i}")
stamp()
I(f"""s_cmp_lg_u32 s2, 0
s_cbranch_scc1 L_exit
v_mov_b32 v9, 0""")
I(f"buffer_store_dword v5, v9, {WS}, 0 offen sc1", unc=True)
I("L_exit:")
if DIAG:
    I(f"s_cmp_lg_u32 s{sW}, 0\ns_cbranch_scc1 L_end\ns_lshl_b32 s{sA}, s2, 7\ns_add_u32 s{sA}, s{sA}, {WS_DIAG}\nv_mov_b32 v9, 0", unc=True)
    for k in range(nstamp[0]):
        I(f"v_mov_b32 v10, s{sSTAMP+k}\nbuffer_store_dword v10, v9, {WS}, s{sA} offen offset:{4*k}", unc=True)
I("L_end:\ns_endpgm")

body, items = render(P.items)
hdr = open("cdna_kernels/" + NAME + ".s.ref").read().split("; Override launch")[0]
out = hdr + f"""; @launch grid=(256,1,1) block=(256,1,1) lds={LDS_SIZE}
.amdgcn_target "amdgcn-amd-amdhsa--gfx950"
.text
.globl {NAME}_kernel
.p2align 8
.type {NAME}_kernel,@function
{NAME}_kernel:
{body}.fill 8192, 4, 0xbf800000
.section .rodata,"a"
.p2align 6
.amdhsa_kernel {NAME}_kernel
  .amdhsa_next_free_vgpr 512
  .amdhsa_next_free_sgpr 102
  .amdhsa_accum_offset 256
  .amdhsa_group_segment_fixed_size 0
  .amdhsa_kernarg_size 80
  .amdhsa_user_sgpr_count 2
  .amdhsa_user_sgpr_kernarg_segment_ptr 1
  .amdhsa_system_sgpr_workgroup_id_x 1
.end_amdhsa_kernel
"""
open(sys.argv[1], "w").write(out)
n = sum(1 for i in items if i.cls not in ('label', 'dir'))
print("instructions:", n, "nops:", sum(1 for i in items if i.op == 's_nop'), "waits:", sum(1 for i in items if i.op == 's_waitcnt'), "stamps", nstamp[0])
```

```python
import sys, struct
from asmlib import *

NAME = "sequential_preLN__linear_kernel_hedgehog__dense_activation_silu__prompt"
DIAG = int(sys.argv[2]) if len(sys.argv) > 2 else 0
OPT = dict(a.split('=') for a in sys.argv[3:])
def opt(k, d): return type(d)(OPT.get(k, d))

WS_FLAG = 4096
WS_PART = 0x40000
WS_O    = 0x240000
WS_H    = 0x440000
WS_ST   = 0x600000
WS_H1   = 0x680000
WS_C1   = 0xD80000
WS_DIAG = 0xE80000
WS_SIZE = 0xF00000
XW = 28672
L_WV, L_WQ, L_WK, L_WO = 0, 28672, 57344, 86016
L_IMG = L_WK
L_KVX = 143360
L_XCH = 147456
L_W1 = 0
L_SCR = 114688
L_AUG = 131072
LDS_SIZE = 163840
sW, sT, sH, sT2, sR = 3, 4, 5, 6, 7
X, WQKV, WPHI, WO, W1, W2, OUT, WS = [f"s[{i}:{i+3}]" for i in range(8, 40, 4)]
sKX, sKW = 40, 47
sHQ = 54
sRET = "s[56:57]"
sSPIN = 58
sP, sQ = 59, 63
sU, sC = 60, 61
sMASK = 62
sHI = "s[64:65]"
sLOG = "s[66:67]"
sONES = 68
sTILE = 69
sA, sB, sCt, sD = 70, 71, 72, 73
sRact = 74
sXO = 75
sHIM = 55
sSTAMP = 80

def v(a, n=1): return f"v{a}" if n == 1 else f"v[{a}:{a+n-1}]"
def a_(a, n=1): return f"a{a}" if n == 1 else f"a[{a}:{a+n-1}]"
def fhex(x): return hex(struct.unpack('<I', struct.pack('<f', x))[0])

P = Prog(); I = P.I
TAIL = Prog()
nstamp = [0]
SEL = OPT.get("st", "")
def stamp(name="", grp="m"):
    if not DIAG: return
    if name != "start" and grp not in (SEL.split(",") if SEL else ["m"]): return
    k = nstamp[0]; nstamp[0] += 1
    assert k < 22
    print(f"stamp {k}: {name}")
    op = "s_memtime" if DIAG == 2 else "s_memrealtime"
    I(f"s_waitcnt lgkmcnt(0)\n{op} s[78:79]\ns_waitcnt lgkmcnt(0)\ns_mov_b32 s{sSTAMP+k}, s78")

def chk_code(regs, masked):
    r = list(regs) + [5]; t = []
    t.append(f"v_bitop3_b32 v10, v{r[0]}, v{r[1]}, v{r[2]} bitop3:0x96"); r = r[3:]
    while len(r) >= 3 or (len(r) == 2 and not masked and False):
        t.append(f"v_bitop3_b32 v10, v10, v{r[0]}, v{r[1]} bitop3:0x96"); r = r[2:]
    if masked:
        if len(r) == 2: t.append(f"v_bitop3_b32 v10, v10, v{r[0]}, v{r[1]} bitop3:0x96"); r = []
        elif len(r) == 1: t.append(f"v_xor_b32 v10, v10, v{r[0]}"); r = []
        t.append(f"v_and_b32 v10, s{sMASK}, v10")
        t.append("v_cmp_ne_u32 vcc, 0, v10")
    else:
        if len(r) == 2: t.append(f"v_xor_b32 v10, v10, v{r[0]}"); r = r[1:]
        t.append(f"v_cmp_ne_u32 vcc, v10, v{r[0]}")
    return "\n".join(t)

class Fetch:
    def __init__(self, name, pieces, masked=False):
        self.name, self.pieces, self.masked = name, pieces, masked
        T = TAIL.I
        T(f"L_{name}_refresh:", unc=True)
        T("s_waitcnt vmcnt(0)", unc=True)
        for i, (ld, regs) in enumerate(pieces):
            T(chk_code(regs, masked), unc=True)
            T(f"s_cbranch_vccz L_{name}_r{i}", unc=True)
            for c in ld: T(c, unc=True)
            T(f"L_{name}_r{i}:", unc=True)
        T(f"""s_add_u32 s{sSPIN}, s{sSPIN}, 1
s_cmp_gt_u32 s{sSPIN}, 0x40000
s_cbranch_scc1 L_end
s_waitcnt vmcnt(0)
s_setpc_b64 {sRET}""", unc=True)
        for i in range(len(pieces)):
            T(f"L_{name}_s{i}:\ns_call_b64 {sRET}, L_{name}_refresh\n" + chk_code(pieces[i][1], masked) +
              f"\ns_cbranch_vccnz L_{name}_s{i}\ns_branch L_{name}_ok{i}", unc=True)
    def loadc(self, i): return [mk(c) for c in self.pieces[i][0]]
    def load(self, i): return sum(self.loadc(i), [])
    def checkc(self, i):
        it = mk(chk_code(self.pieces[i][1], self.masked))
        return [[x] for x in it] + [mk(f"s_cbranch_vccnz L_{self.name}_s{i}\nL_{self.name}_ok{i}:")]
    def check(self, i): return sum(self.checkc(i), [])

def cost(it):
    if isinstance(it, WaitTag): return 4
    if it.cls in ('label', 'dir'): return 0
    if it.op.startswith(TRANS) or 'permlane' in it.op: return 8
    if it.op.startswith('ds_write_b128'): return 28
    if it.cls == 'mfma': return 8
    return 4.5

class Sched:
    def __init__(self, groups):
        self.groups = groups; self.gap = [[] for _ in groups]; self.seq = 0
    def at(self, g, items, frac=0.5):
        self.seq += 1; self.gap[g].append((frac, self.seq, list(items)))
    def spread(self, chunks, a, b):
        chunks = [c if isinstance(c, list) else [c] for c in chunks]
        tot = sum(cost(i) for c in chunks for i in c) or 1; acc = 0
        for c in chunks:
            pos = a + (b - a) * acc / tot
            self.at(int(pos), c, pos - int(pos))
            acc += sum(cost(i) for i in c)
    def emit(self):
        out = []
        for g, gp in zip(self.groups, self.gap):
            out += g
            for _, _, c in sorted(gp, key=lambda x: (x[0], x[1])): out += c
        return out

def softmax(p, t, o, pk):
    q = Prog(); J = q.I
    m, n = t + 14, t + 15
    r0, r1 = t + 16, t + 17
    J(f"v_max3_f32 v{m}, v{p}, v{p+1}, v{p+2}")
    J(f"v_max3_f32 v{n}, -v{p}, -v{p+1}, -v{p+2}")
    for k in range(3, 13, 2):
        J(f"v_max3_f32 v{m}, v{m}, v{p+k}, v{p+k+1}")
        J(f"v_max3_f32 v{n}, v{n}, -v{p+k}, -v{p+k+1}")
    J(f"v_max_f32 v{m}, v{m}, v{p+13}")
    J(f"v_max_f32 v{n}, v{n}, -v{p+13}")
    J(f"v_permlane32_swap_b32 v{m}, v{n}")
    J(f"v_max_f32 v{m}, v{m}, v{n}")
    J(f"v_mul_f32 v{m}, 0xbfb8aa3b, v{m}")
    J(f"v_mov_b32 v{n}, v{m}")
    J(f"v_permlane32_swap_b32 v{m}, v{n}")
    if pk:
        for k in range(0, 14, 2):
            J(f"v_pk_fma_f32 {v(t+k,2)}, {v(p+k,2)}, {sLOG}, {v(m,2)} op_sel_hi:[1,1,0]")
            J(f"v_pk_fma_f32 {v(p+k,2)}, {v(p+k,2)}, {sLOG}, {v(m,2)} op_sel:[0,0,1] op_sel_hi:[1,1,1] neg_lo:[1,0,0] neg_hi:[1,0,0]")
        for k in range(14): J(f"v_exp_f32 v{t+k}, v{t+k}")
        for k in range(14): J(f"v_exp_f32 v{p+k}, v{p+k}")
        J(f"v_pk_add_f32 {v(m,2)}, {v(t,2)}, {v(t+2,2)}")
        J(f"v_pk_add_f32 {v(r0,2)}, {v(p,2)}, {v(p+2,2)}")
        for k in range(4, 14, 2):
            J(f"v_pk_add_f32 {v(m,2)}, {v(m,2)}, {v(t+k,2)}")
            J(f"v_pk_add_f32 {v(r0,2)}, {v(r0,2)}, {v(p+k,2)}")
        J(f"v_add_f32 v{m}, v{m}, v{n}")
        J(f"v_add_f32 v{n}, v{r0}, v{r1}")
    else:
        for k in range(14):
            J(f"v_fma_f32 v{t+k}, v{p+k}, s66, v{m}")
            J(f"v_fma_f32 v{p+k}, -v{p+k}, s66, v{n}")
            J(f"v_exp_f32 v{t+k}, v{t+k}")
            J(f"v_exp_f32 v{p+k}, v{p+k}")
            if k == 1: pass
            if k >= 2:
                a0 = f"v{t}" if k == 2 else f"v{r0}"; a1 = f"v{p}" if k == 2 else f"v{r1}"
                J(f"v_add_f32 v{r0}, {a0}, v{t+k-1}")
                J(f"v_add_f32 v{r1}, {a1}, v{p+k-1}")
        J(f"v_add_f32 v{m}, v{r0}, v{t+13}")
        J(f"v_add_f32 v{n}, v{r1}, v{p+13}")
    J(f"v_permlane32_swap_b32 v{m}, v{n}")
    J(f"v_add_f32 v{m}, v{m}, v{n}")
    J(f"v_rcp_f32 v{m}, v{m}")
    J(f"v_mov_b32 v{n}, v{m}")
    J(f"v_permlane32_swap_b32 v{m}, v{n}")
    if pk:
        for k in range(0, 14, 2):
            J(f"v_pk_mul_f32 {v(t+k,2)}, {v(t+k,2)}, {v(m,2)} op_sel_hi:[1,0]")
            J(f"v_pk_mul_f32 {v(p+k,2)}, {v(p+k,2)}, {v(m,2)} op_sel:[0,1] op_sel_hi:[1,1]")
    else:
        for k in range(14):
            J(f"v_mul_f32 v{t+k}, v{t+k}, v{m}")
            J(f"v_mul_f32 v{p+k}, v{p+k}, v{n}")
    for k in range(7): J(f"v_cvt_pk_bf16_f32 v{o+k}, v{t+2*k}, v{t+2*k+1}")
    for k in range(7): J(f"v_cvt_pk_bf16_f32 v{o+7+k}, v{p+2*k}, v{p+2*k+1}")
    return q.items

def dma1(vaddr, srd, sbase, sadd, mbase, madd, tag):
    return mk(f"s_add_u32 m0, s{mbase}, {madd}\ns_add_u32 s{sCt}, s{sbase}, {sadd}") + \
           mk(f"buffer_load_dwordx4 v{vaddr}, {srd}, s{sCt} offen lds", tag=tag)

RINGA, NRING = 224, 8
def gemm_lds(steps, ahead=6):
    def rd(i):
        av, o1, o2 = steps[i][:3]; r = RINGA + 4 * (i % NRING)
        return mk(f"ds_read_b64_tr_b16 {a_(r,2)}, v{av} offset:{o1}\nds_read_b64_tr_b16 {a_(r+2,2)}, v{av} offset:{o2}")
    rds = [rd(i) for i in range(len(steps))]
    mm = []
    for i, st in enumerate(steps):
        r = RINGA + 4 * (i % NRING); g = []
        for (b, acc, first, swap) in st[3]:
            c = "0" if first else v(acc, 16)
            A, B = a_(r, 4), v(b, 4)
            if swap: A, B = B, A
            g += mk(f"v_mfma_f32_32x32x16_bf16 {v(acc,16)}, {A}, {B}, {c}")
        if i % 2 == 0 and i + 1 < len(steps):
            r2 = RINGA + 4 * ((i + 1) % NRING); g[0].extra = [('a', r2 + x) for x in range(4)]
        mm.append(g)
    pro = sum(rds[:ahead], [])
    groups = []
    for i in range(len(steps)):
        r = rds[i + ahead] if i + ahead < len(steps) else []
        if len(mm[i]) == 1: groups.append(mm[i] + r)
        else:
            groups.append(mm[i][:1] + r[:1]); groups.append(mm[i][1:] + r[1:])
    return pro, groups

def sprinkle(items, groups, start, step):
    out = []; groups = list(groups); nxt = start
    for i, it in enumerate(items):
        if groups and i == nxt:
            out += groups.pop(0); nxt += step
        out.append(it)
    for g in groups: out += g
    return out

def flat(l): return sum(l, [])

I(f"""s_cmp_ge_u32 s2, 256
s_cbranch_scc1 L_end
s_load_dwordx2 s[8:9], s[0:1], 0
s_load_dwordx2 s[12:13], s[0:1], 8
s_load_dwordx2 s[16:17], s[0:1], 16
s_load_dwordx2 s[20:21], s[0:1], 24
s_load_dwordx2 s[24:25], s[0:1], 40
s_load_dwordx2 s[28:29], s[0:1], 48
s_load_dwordx2 s[32:33], s[0:1], 56
s_load_dwordx2 s[36:37], s[0:1], 72
s_getpc_b64 s[76:77]
v_and_b32 v1, 63, v0
v_lshrrev_b32 v2, 6, v0
s_and_b32 s{sA}, s2, 7
v_readfirstlane_b32 s{sW}, v2
s_lshr_b32 s{sB}, s2, 3
s_and_b32 s{sCt}, s{sB}, 7""")
I(f"""v_and_b32 v3, 7, v0
v_cmp_eq_u32 vcc, s{sCt}, v3
v_lshlrev_b32 v3, 7, v0
s_and_b32 s76, s76, 0xffffff00
s_mov_b64 exec, vcc
global_load_dword v4, v3, s[76:77]
s_mov_b64 exec, -1
s_and_b32 s{sT}, s{sA}, 3
s_lshl_b32 s{sT}, s{sT}, 2
s_and_b32 s{sD}, s{sB}, 3
s_add_u32 s{sT}, s{sT}, s{sD}
s_lshr_b32 s{sP}, s{sA}, 2
s_lshl_b32 s{sH}, s{sP}, 3
s_lshr_b32 s{sD}, s{sB}, 2
s_add_u32 s{sH}, s{sH}, s{sD}
s_cmp_eq_u32 s{sD}, 7
s_cselect_b32 s{sD}, 3, s{sD}
s_lshl_b32 s{sKX}, s{sD}, 7
s_mov_b32 s10, 1835008
s_mov_b32 s11, 0x20000
s_mov_b32 s14, 1204224
s_mov_b32 s15, 0x20000""")
I(f"""v_lshrrev_b32 v2, 3, v1
v_mul_u32_u24 v9, 896, v2
v_lshrrev_b32 v2, 4, v1
v_and_b32 v8, 7, v1
v_xor_b32 v2, v2, v8
v_lshl_add_u32 v9, v2, 4, v9
v_xor_b32 v10, 64, v9
s_lshl_b32 s{sQ}, s{sT}, 2
s_add_u32 s{sQ}, s{sQ}, s{sW}
s_mul_i32 s{sQ}, s{sQ}, {32*896}
s_lshr_b32 s{sXO}, s{sW}, 1
s_add_u32 s{sXO}, s{sXO}, s{sW}
s_mul_i32 s{sXO}, s{sXO}, {XW}""")
I(f"""v_lshrrev_b32 v11, 4, v0
v_min_u32 v11, 13, v11
v_mul_u32_u24 v14, 2688, v11
v_bfe_u32 v12, v0, 2, 2
v_mul_u32_u24 v12, 896, v12
v_and_b32 v13, 3, v0
v_lshl_add_u32 v12, v13, 7, v12
v_add_u32 v14, v14, v12
s_mul_i32 s{sP}, s{sP}, 384
s_mul_i32 s{sD}, s{sB}, {14*2688}
s_add_u32 s{sP}, s{sP}, s{sD}
v_add_u32 v255, s{sP}, v14""")
def wtouch(mask16, dst):
    m = mask16 | (mask16 << 16)
    return mk(f"s_mov_b32 exec_lo, {hex(m)}\ns_mov_b32 exec_hi, {hex(m)}\nbuffer_load_dword v{dst}, v255, {WQKV}, 0 offen\ns_mov_b64 exec, -1")
for g in range(1, 7):
    I(f"s_add_u32 s{sKX+g}, s{sKX+g-1}, 128\ns_cmp_ge_u32 s{sKX+g}, 896\ns_cselect_b32 s{sD}, 896, 0\ns_sub_u32 s{sKX+g}, s{sKX+g}, s{sD}")
I("s_waitcnt lgkmcnt(0)")
stamp("start")
def xdma(g, i):
    return mk(f"s_add_u32 m0, s{sXO}, {(4*g+i)*1024}\ns_add_u32 s{sCt}, s{sQ}, s{sKX+g}" + (f"\ns_add_u32 s{sCt}, s{sCt}, {i*8*896}" if i else "")) + \
           mk(f"buffer_load_dwordx4 v{9 + (i&1)}, {X}, s{sCt} offen lds", tag=f"x{g}")
NX0 = opt("nx0", 1)
for i in range(4): P.add(xdma(0, i))
P.add(wtouch(opt("wt0", 0x0ff0), 15))
for g in range(1, NX0):
    for i in range(4): P.add(xdma(g, i))
I(f"""s_lshl_b32 s{sT2}, s{sA}, 1
s_lshr_b32 s{sD}, s{sB}, 4
s_add_u32 s{sT2}, s{sT2}, s{sD}
s_and_b32 s{sRact}, s{sB}, 15
s_min_u32 s{sR}, s{sRact}, 13
s_xor_b32 s{sHQ}, s{sH}, 1
s_mov_b32 s38, {WS_SIZE}
s_mov_b32 s39, 0x20000
s_mov_b32 s18, 25088
s_mov_b32 s19, 0x20000
s_mov_b32 s22, 401408
s_mov_b32 s23, 0x20000
s_mov_b32 s26, 1605632
s_mov_b32 s27, 0x20000
s_mov_b32 s30, 1605632
s_mov_b32 s31, 0x20000
s_mov_b32 s34, 1835008
s_mov_b32 s35, 0x20000
s_mov_b32 s64, 0
s_mov_b32 s65, -1
s_mov_b32 s66, 0x3fb8aa3b
s_mov_b32 s67, 0x3fb8aa3b
s_mov_b32 s{sONES}, 0x3f803f80
s_mov_b32 s{sMASK}, 0xbfffbfff
s_mov_b32 s{sHIM}, 0xffff0000
s_mov_b32 s{sSPIN}, 0
s_cmp_ge_u32 s{sR}, 7
s_cselect_b32 s{sU}, 1, 0
s_mul_i32 s{sA}, s{sU}, 7
s_sub_u32 s{sC}, s{sR}, s{sA}""")
for g in range(7): I(f"s_mul_i32 s{sKW+g}, s{sKX+g}, {172032//128}")
I(f"""v_lshrrev_b32 v3, 5, v1
v_and_b32 v8, 3, v1
v_lshlrev_b32 v2, 4, v1
v_lshlrev_b32 v6, 7, v1
v_mov_b32 v11, 0""")
I(f"buffer_load_dword v5, v11, {WS}, 0 offen sc1")
I(f"""s_lshl_b32 s{sA}, s2, 2
s_add_u32 s{sA}, s{sA}, s{sW}
s_lshl_b32 s{sA}, s{sA}, 9
s_mov_b64 exec, 15
buffer_load_dword v252, v6, {WO}, s{sA} offen
s_mov_b64 exec, -1""")
WPK, WPQ, WPT = 192, 200, 208
I(f"""v_bfe_u32 v11, v1, 3, 2
v_lshl_add_u32 v11, v11, 2, v8
v_bfe_u32 v12, v1, 2, 1
v_mul_u32_u24 v12, 14, v12
v_min_u32 v13, 13, v11
v_add_u32 v13, v13, v12
v_lshlrev_b32 v13, 1, v13
v_mul_u32_u24 v14, 224, v3
v_add_u32 v13, v13, v14
v_lshl_add_u32 v14, v3, 20, v13
s_mul_i32 s{sA}, s{sH}, 1568
s_mul_i32 s{sB}, s{sHQ}, 1568""")
def wphi(dst, tmp, so):
    q = Prog()
    for t in range(2):
        for j in range(8):
            d = 16 * t + 8 * (j >> 2) + (j & 3)
            av = 14 if (t == 1 and j >= 4) else 13
            r = (dst if j % 2 == 0 else tmp) + 4 * t + j // 2
            op = "buffer_load_short_d16" if j % 2 == 0 else "buffer_load_short_d16_hi"
            q.I(f"{op} v{r}, v{av}, {WPHI}, s{so} offen offset:{d*56}")
    return q.items
P.add(wphi(WPK, WPT, sA)); P.add(wphi(WPQ, WPT+8, sB))
stamp("wphi issued")
I(f"""v_add_u32 v12, v12, v11
v_cmp_gt_u32 vcc, 14, v11
v_cndmask_b32 v12, 28, v12, vcc
v_and_b32 v253, 15, v12
v_lshlrev_b32 v253, 4, v253
v_lshrrev_b32 v12, 4, v12
v_lshl_add_u32 v253, v12, 3, v253
v_lshl_add_u32 v253, v3, 8, v253
v_add_u32 v253, {L_KVX}, v253""")
I(f"""v_lshrrev_b32 v7, 2, v1
v_mul_u32_u24 v7, 2688, v7
v_lshlrev_b32 v11, 4, v8
v_min_u32 v11, 40, v11
v_add_u32 v7, v7, v11""")
I(f"""v_and_b32 v11, 31, v1
v_lshlrev_b32 v240, 7, v11
v_bfe_u32 v11, v1, 1, 3
v_xor_b32 v11, v11, v3
v_lshl_add_u32 v240, v11, 4, v240
v_add_u32 v240, s{sXO}, v240
v_xor_b32 v241, 32, v240
v_xor_b32 v242, 64, v240
v_xor_b32 v243, 96, v240
v_mov_b32 v250, 0
v_mov_b32 v251, 0""")
I(f"""v_bfe_u32 v11, v1, 2, 2
v_lshl_add_u32 v11, v3, 3, v11
v_lshlrev_b32 v11, 6, v11
v_bfe_u32 v12, v1, 4, 1
v_lshl_add_u32 v12, v12, 2, v8
v_cmp_lt_u32 vcc, 5, v12
v_xor_b32 v13, 1, v12
v_cndmask_b32 v12, v12, v13, vcc
v_lshl_add_u32 v11, v12, 3, v11
v_add_u32 v13, {L_WK}, v11""")
I(f"""v_lshrrev_b32 v12, 3, v1
v_mul_u32_u24 v14, 896, v12
v_bfe_u32 v12, v1, 4, 1
v_lshlrev_b32 v12, 2, v12
v_and_b32 v244, 7, v1
v_xor_b32 v12, v12, v244
v_lshl_add_u32 v14, v12, 4, v14""")
sWB, sWQ, sWM = 76, 77, 59
I(f"""s_mul_i32 s{sWB}, s{sH}, 56
s_mul_i32 s{sD}, s{sW}, 43008
s_add_u32 s{sWB}, s{sWB}, s{sD}
s_mul_i32 s{sWQ}, s{sHQ}, 56
s_add_u32 s{sWQ}, s{sWQ}, s{sD}
s_add_u32 s{sWB}, s{sWB}, 896
s_lshl_b32 s{sWM}, s{sW}, 10""")
def wkdma(g): return dma1(7, WQKV, sWB, f"s{sKW+g}", sWM, L_WK + 4096*g, f"wk{g}")
def wvdma(g): return mk(f"s_add_u32 m0, s{sWM}, {L_WV+4096*g}\ns_add_u32 s{sCt}, s{sWB}, s{sKW+g}\ns_add_u32 s{sCt}, s{sCt}, 896") + mk(f"buffer_load_dwordx4 v7, {WQKV}, s{sCt} offen lds", tag=f"wv{g}")
def wqdma(g): return dma1(7, WQKV, sWQ, f"s{sKW+g}", sWM, L_WQ + 4096*g, f"wq{g}")
XF = 16
pend = [flat([xdma(g, i) for i in range(4)]) for g in range(NX0, 7)]
wkl = [wkdma(g) for g in range(7)]
while len(pend) < 8: pend.append(wkl.pop(0))
if opt("wt1", 0x000f): pend[opt("wt1p", 5)] += wtouch(opt("wt1", 0x000f), 254)
P.add(pend.pop(0))
for g in range(7):
    P.wait(f"x{g}")
    for e in range(4): I(f"ds_read_b128 {v(XF+16*g+4*e,4)}, v{240+e} offset:{4096*g}")
    P.add(pend.pop(0))
    for i in range(16):
        r = XF + 16*g + i
        I(f"v_dot2c_f32_bf16 v250, s{sONES}, v{r}\nv_dot2c_f32_bf16 v251, v{r}, v{r}")
    if g == 0: stamp("x0 done")
stamp("x stats done")
I(f"""v_permlane32_swap_b32 v250, v251
v_add_f32 v250, v250, v251
v_mul_f32 v250, {fhex(1/448)}, v250
v_mov_b32 v251, v250
v_permlane32_swap_b32 v250, v251
v_fma_f32 v251, -v250, v250, v251
v_max_f32 v251, 0, v251
v_add_f32 v251, 0x3727c5ac, v251
v_mov_b32 v249, v250
v_rsq_f32 v250, v251
v_or_b32 v5, 1, v5
s_mov_b32 s{sA}, 0x9E3779B5
v_mul_f32 v251, -v249, v250
v_mul_lo_u32 v5, v5, s{sA}
s_lshl_b32 s{sQ}, s{sC}, 7
s_mul_i32 s{sD}, s{sW}, {8*896}
s_add_u32 s{sQ}, s{sQ}, s{sD}""")
def wodma(i): return dma1(14, WO, sQ, i*32*896, sWM, L_WO + 4096*i, "wo")
ACK = 144; ACV = 160; PK = 176; IMG = 208; TMP = 232
def norm(t):
    q = Prog()
    for i in range(4):
        r = XF + 4 * t + i; tt = TMP + 2 * i
        q.I(f"v_lshlrev_b32 v{tt}, 16, v{r}\nv_and_b32 v{tt+1}, s{sHIM}, v{r}")
    for i in range(4):
        tt = TMP + 2 * i
        q.I(f"v_pk_fma_f32 {v(tt,2)}, {v(tt,2)}, v[250:251], v[250:251] op_sel:[0,0,1] op_sel_hi:[1,0,1]")
    for i in range(4):
        r = XF + 4 * t + i; tt = TMP + 2 * i
        q.I(f"v_cvt_pk_bf16_f32 v{r}, v{tt}, v{tt+1}")
    return q.items
NPRE = opt("npre", 12)
P.add(sprinkle(flat([norm(t) for t in range(NPRE)]), wkl, 0, opt("wkstep", 48)))
P.wait("wk0", "wk1", "wk2", "wk3"); I("s_barrier")
stamp("wk half")
AH = 6
pro, gk = gemm_lds([(13, 1024*t, 1024*t + 256, [(XF + 4*t, ACK, t == 0, False)]) for t in range(28)], AH)
P.add(pro)
extra = {0: wvdma(0), 3: wvdma(1), 6: wvdma(2), 9: wvdma(3), 12: wvdma(4), 16: wvdma(5), 24: wvdma(6)}
for t in range(28):
    if t == 16 - AH: P.wait("wk4", "wk5", "wk6"); I("s_barrier")
    P.add(gk[t])
    if t + NPRE < 28: P.add(norm(t + NPRE))
    if t in extra: P.add(extra[t])
    if t == 20:
        for q in range(8): I(f"v_or_b32 v{WPK+q}, v{WPK+q}, v{WPT+q}\nv_or_b32 v{WPQ+q}, v{WPQ+q}, v{WPT+8+q}")
def phi_pre(acc, wp):
    q = Prog()
    for i in range(8): q.I(f"v_cvt_pk_bf16_f32 v{acc+i}, v{acc+2*i}, v{acc+2*i+1}")
    q.I(f"v_mfma_f32_32x32x16_bf16 {v(PK,16)}, {v(wp,4)}, {v(acc,4)}, 0")
    q.I(f"v_mfma_f32_32x32x16_bf16 {v(PK,16)}, {v(wp+4,4)}, {v(acc+4,4)}, {v(PK,16)}")
    return q.items
P.wait("wv0", "wv1", "wv2", "wv3"); I("s_barrier")
stamp("k gemm done, wv half")
pro, gv = gemm_lds([(11, L_WV + 1024*t, L_WV + 1024*t + 256, [(XF + 4*t, ACV, t == 0, False)]) for t in range(28)], AH)
P.add(pro)
P.add(phi_pre(ACK, WPK))
sm = softmax(PK, TMP, IMG, False)
touch = mk(f"""s_mul_i32 s{sA}, s2, {52*128}
s_mul_i32 s{sB}, s{sW}, {13*128}
s_add_u32 s{sA}, s{sA}, s{sB}
s_mov_b64 exec, 0x1fff
buffer_load_dword v252, v6, {W1}, s{sA} offen
buffer_load_dword v254, v6, {W2}, s{sA} offen
s_mov_b64 exec, -1""")
S = Sched(gv)
S.spread(sm, 2, 28)
S.spread([wqdma(k) for k in range(7)], 1, 25)
if opt("touch", 1): S.at(26, touch)
S.at(15 - AH, [WaitTag(["wv4", "wv5", "wv6"])] + mk("s_barrier"), 1.0)
P.add(S.emit())
stamp("v gemm done", "p")
I(f"""v_and_b32 v9, 31, v1
s_lshl_b32 s{sA}, s{sW}, 5
v_add_u32 v9, s{sA}, v9
v_mul_u32_u24 v9, 208, v9
v_mul_u32_u24 v10, 96, v3
v_add_u32 v9, v9, v10""")
for i in range(3): I(f"ds_write_b128 v9, {v(IMG+4*i,4)} offset:{L_IMG+16*i}")
I(f"ds_write_b64 v9, {v(IMG+12,2)} offset:{L_IMG+48}")
I(f"v_cndmask_b32 v{ACV+12}, v{ACV+12}, 1.0, {sHI}")
for i in range(8): I(f"v_cvt_pk_bf16_f32 v{IMG+16+i}, v{ACV+2*i}, v{ACV+2*i+1}")
for i in range(4, 6): I(f"ds_write_b128 v9, {v(IMG+4*i,4)} offset:{L_IMG+16*i}")
I(f"""v_lshrrev_b32 v9, 4, v1
v_bfe_u32 v10, v1, 2, 2
v_lshl_add_u32 v9, v9, 3, v10
v_mul_u32_u24 v9, 208, v9
v_and_b32 v10, 1, v1
v_mul_u32_u24 v10, 96, v10
v_add_u32 v9, v9, v10
v_bfe_u32 v10, v1, 1, 1
v_lshl_add_u32 v9, v10, 3, v9
v_add_u32 v9, {L_IMG}, v9
s_lshl_b32 s{sA}, s{sW}, 4
v_add_u32 v13, s{sA}, v9""")
P.wait("wq0", "wq1", "wq2", "wq3")
I("s_waitcnt lgkmcnt(0)\ns_barrier")
stamp("img written")
KA = 144; KBv = 208; KD = 176
for k in range(4):
    for u in range(2):
        I(f"ds_read_b64_tr_b16 {v(KA+4*k+2*u,2)}, v13 offset:{(32*k+4*u)*208}")
    for nu in range(2):
        for u in range(2):
            I(f"ds_read_b64_tr_b16 {v(KBv+8*k+4*nu+2*u,2)}, v9 offset:{(32*k+4*u)*208+64+16*nu}")
proq, gq = gemm_lds([(11, L_WQ + 1024*t, L_WQ + 1024*t + 256, [(XF + 4*t, ACV, t == 0, False)]) for t in range(28)], AH)
I(f"""s_lshl_b32 s{sA}, s{sH}, 4
s_add_u32 s{sA}, s{sA}, s{sT}
s_mul_i32 s{sA}, s{sA}, 5120
s_lshl_b32 s{sB}, s{sW}, 10
s_add_u32 s{sA}, s{sA}, {WS_PART}
s_add_u32 s{sB}, s{sA}, s{sB}
s_lshl_b32 s{sD}, s{sW}, 8
s_add_u32 s{sA}, s{sA}, s{sD}
s_add_u32 s{sA}, s{sA}, 4096
v_lshlrev_b32 v4, 2, v1""")
for k in range(4):
    for nu in range(2):
        c = "0" if k == 0 else v(KD+4*nu,4)
        I(f"v_mfma_f32_16x16x32_bf16 {v(KD+4*nu,4)}, {v(KA+4*k,4)}, {v(KBv+8*k+4*nu,4)}, {c}")
P.add(proq)
for i in range(4): I(f"v_cvt_pk_bf16_f32 v{KD+8+i}, v{KD+2*i}, v{KD+2*i+1}")
I(f"buffer_store_dwordx4 {v(KD+8,4)}, v2, {WS}, s{sB} offen sc1")
I(f"v_bitop3_b32 v10, v{KD+8}, v{KD+9}, v{KD+10} bitop3:0x96\nv_bitop3_b32 v10, v10, v{KD+11}, v5 bitop3:0x96")
I(f"buffer_store_dword v10, v4, {WS}, s{sA} offen sc1")
stamp("partial stored")
I(f"""s_lshl_b32 s{sA}, s{sT2}, 2
s_lshl_b32 s{sB}, s{sU}, 1
s_add_u32 s{sA}, s{sA}, s{sB}
s_and_b32 s{sB}, s{sW}, 1
s_add_u32 s{sTILE}, s{sA}, s{sB}
s_mul_i32 s{sA}, s{sA}, {32*896}
s_lshl_b32 s{sB}, s{sC}, 7
s_add_u32 s{sA}, s{sA}, s{sB}
s_mul_i32 s{sD}, s{sW}, {16*896}
s_add_u32 s{sWQ}, s{sA}, s{sD}
s_lshl_b32 s{sWB}, s{sW}, 11
s_mul_i32 s{sA}, s{sTILE}, {32*896}
s_add_u32 s{sA}, s{sA}, s{sB}
s_lshr_b32 s{sB}, s{sW}, 1
s_lshl_b32 s{sB}, s{sB}, 6
s_add_u32 s{sXO}, s{sA}, s{sB}
v_lshrrev_b32 v9, 3, v1
v_mul_u32_u24 v12, 896, v9
v_and_b32 v10, 7, v1
v_xor_b32 v9, v9, v10
v_lshl_add_u32 v12, v9, 4, v12""")
wo_l = [wodma(i) for i in range(14)] + [dma1(12, X, sWQ, i*8*896, sWB, L_XCH + 1024*i, "wo") for i in range(2)]
for t in range(28):
    if t == 16 - AH: P.wait("wq4", "wq5", "wq6"); I("s_barrier")
    P.add(gq[t])
    if (t % 2 == 0 or t > 24) and wo_l: P.add(wo_l.pop(0))
assert not wo_l
stamp("q gemm done")
G = 16; GC = 80
I(f"""s_mul_i32 s{sP}, s{sHQ}, {16*5120}
s_add_u32 s{sP}, s{sP}, {WS_PART}
s_lshl_b32 s{sD}, s{sW}, 10
v_add_u32 v9, s{sD}, v2
s_lshl_b32 s{sD}, s{sW}, 8
s_add_u32 s{sD}, s{sD}, 4096
v_add_u32 v13, s{sD}, v4""")
FP = Fetch("fp", [([f"s_add_u32 s{sCt}, s{sP}, {5120*T}\nbuffer_load_dwordx4 {v(G+4*T,4)}, v9, {WS}, s{sCt} offen sc1\nbuffer_load_dword v{GC+T}, v13, {WS}, s{sCt} offen sc1"],
                   [G+4*T, G+4*T+1, G+4*T+2, G+4*T+3, GC+T]) for T in range(16)])
I("s_barrier")
P.add(phi_pre(ACV, WPQ))
PQ = 208
P.add(interleave([FP.load(T) for T in range(16)], softmax(PK, TMP, PQ, True)))
stamp("softmax q done")
sW1B, sW1M, sW2E, sW2L = 40, 41, 42, 43
I(f"""v_lshrrev_b32 v10, 4, v1
v_mul_u32_u24 v15, 3584, v10
v_lshlrev_b32 v10, 2, v10
v_and_b32 v12, 15, v1
v_xor_b32 v10, v10, v12
v_lshl_add_u32 v15, v10, 4, v15
s_lshl_b32 s{sW1B}, s{sR}, 8
s_mul_i32 s{sD}, s{sW}, {4*3584}
s_add_u32 s{sW1B}, s{sW1B}, s{sD}
s_lshl_b32 s{sW1M}, s{sW}, 10
s_lshr_b32 s{sA}, s{sW}, 1
s_lshl_b32 s{sA}, s{sA}, 2
s_and_b32 s{sB}, s{sW}, 1
s_add_u32 s{sA}, s{sA}, s{sB}
s_lshl_b32 s{sB}, s{sU}, 1
s_add_u32 s44, s{sA}, s{sB}
s_xor_b32 s45, s44, 2
s_lshl_b32 s{sD}, s{sC}, 7
s_mul_i32 s{sW2E}, s44, {32*896}
s_add_u32 s{sW2E}, s{sW2E}, s{sD}
s_mul_i32 s{sW2L}, s45, {32*896}
s_add_u32 s{sW2L}, s{sW2L}, s{sD}""")
w1_l = [dma1(15, W1, sW1B, i*16*3584, sW1M, L_W1 + 4096*i, "w1") for i in range(28)]
def w2raw(k):
    j, q = k >> 2, k & 3
    base = sW2E if j < 7 else sW2L
    return mk(f"s_add_u32 s{sCt}, s{base}, {((j%7)*256 + 8*q)*896}\nbuffer_load_dwordx4 {a_(4*k,4)}, v14, {W2}, s{sCt} offen")
w2_l = [w2raw(k) for k in range(56)]
SA = 96
I(f"s_mov_b32 s{sA}, 0x3f80\ns_mov_b32 s{sB}, 0x3f800000")
for i in range(8): I(f"v_mov_b32 v{SA+i}, 0")
for T in range(16):
    P.add(FP.check(T))
    for i in range(4):
        I(f"v_dot2c_f32_bf16 v{SA+2*i}, s{sA}, v{G+4*T+i}\nv_dot2c_f32_bf16 v{SA+2*i+1}, s{sB}, v{G+4*T+i}")
    if T >= 6: P.add(w1_l.pop(0))
for i in range(4): I(f"v_cvt_pk_bf16_f32 v{SA+8+i}, v{SA+2*i}, v{SA+2*i+1}")
I(f"v_add_u32 v9, {L_KVX}, v9\nds_write_b128 v9, {v(SA+8,4)}")
P.wait("wo")
I("s_waitcnt lgkmcnt(0)\ns_barrier")
stamp("kv summed")
KVA = 32; OD = 48
for q in range(7): I(f"ds_read_b64 {v(KVA+2*q,2)}, v253 offset:{512*q}")
I(f"""v_bfe_u32 v9, v1, 2, 2
v_mad_u32_u24 v9, v3, 14, v9
v_lshlrev_b32 v9, 7, v9
v_bfe_u32 v13, v1, 3, 1
v_xor_b32 v13, v13, v3
s_lshr_b32 s{sA}, s{sW}, 1
v_xor_b32 v13, s{sA}, v13
v_lshl_add_u32 v9, v13, 6, v9
v_bfe_u32 v13, v1, 4, 1
v_lshl_add_u32 v9, v13, 5, v9
v_lshl_add_u32 v9, v8, 3, v9
s_mul_i32 s{sA}, s{sA}, {8*28*128}
s_add_u32 s{sA}, s{sA}, {L_WO}
v_add_u32 v9, s{sA}, v9
v_xor_b32 v13, 64, v9""")
P.add(w1_l.pop(0))
for s in range(3):
    c = "0" if s == 0 else v(OD,16)
    I(f"v_mfma_f32_32x32x16_bf16 {v(OD,16)}, {v(KVA+4*s,4)}, {v(PQ+4*s,4)}, {c}")
I(f"v_mfma_f32_32x32x8_bf16 {v(OD,16)}, {v(KVA+12,2)}, {v(PQ+12,2)}, {v(OD,16)}")
wor = []
for s in range(16):
    hh, e = s >> 1, s & 1
    for k, av in ((0, 9), (1, 13)):
        for u in range(2):
            wor.append(mk(f"ds_read_b64_tr_b16 {a_(128+8*s+4*k+2*u,2)}, v{av} offset:{(28*hh+8*e+4*u)*128}"))
P.add(flat(wor[:10]))
P.add(w1_l.pop(0))
I(f"""s_lshl_b32 s{sA}, s{sT}, 2
s_add_u32 s{sA}, s{sA}, s{sW}
s_lshl_b32 s{sA}, s{sA}, 15
s_lshl_b32 s{sB}, s{sHQ}, 11
s_add_u32 s{sA}, s{sA}, s{sB}
s_add_u32 s{sA}, s{sA}, {WS_O}
v_add_f32 v{OD+14}, 0x358637bd, v{OD+14}
v_rcp_f32 v{OD+14}, v{OD+14}""")
for k in range(0, 14, 2): I(f"v_pk_mul_f32 {v(OD+k,2)}, {v(OD+k,2)}, {v(OD+14,2)} op_sel_hi:[1,0]")
for k in range(4): I(f"v_cvt_pk_bf16_f32 v{64+k}, v{OD+2*k}, v{OD+2*k+1}")
I(f"buffer_store_dwordx4 v[64:67], v2, {WS}, s{sA} offen sc1")
for k in range(4, 7): I(f"v_cvt_pk_bf16_f32 v{64+k}, v{OD+2*k}, v{OD+2*k+1}")
I(f"""v_bitop3_b32 v71, v64, v65, v66 bitop3:0x96
v_bitop3_b32 v71, v71, v67, v68 bitop3:0x96
v_bitop3_b32 v71, v71, v69, v70 bitop3:0x96
v_xor_b32 v71, v71, v5
v_and_b32 v71, s{sMASK}, v71""")
I(f"buffer_store_dwordx4 v[68:71], v2, {WS}, s{sA} offen offset:1024 sc1")
stamp("o stored")
I(f"s_cmp_ge_u32 s{sRact}, 14\ns_cbranch_scc1 L_exit")
nb = 21 - (28 - len(w1_l))
P.add(sprinkle(flat(wor[10:]), [w1_l.pop(0) for _ in range(nb)], 0, 6))
XR = 224
I(f"""v_and_b32 v9, 31, v1
v_mul_u32_u24 v4, 896, v9
v_lshl_add_u32 v4, v3, 3, v4
s_and_b32 s{sA}, s{sW}, 1
s_lshl_b32 s{sA}, s{sA}, 12
s_add_u32 s{sA}, s{sA}, {L_XCH}
v_lshlrev_b32 v9, 7, v9
v_lshl_add_u32 v9, v3, 3, v9
v_add_u32 v9, s{sA}, v9
s_lshr_b32 s{sA}, s{sW}, 1
s_lshl_b32 s{sA}, s{sA}, 2
v_and_b32 v10, 7, v1
v_xor_b32 v10, s{sA}, v10
v_lshl_add_u32 v9, v10, 4, v9""")
for i in range(4):
    if i: I(f"v_xor_b32 v10, {16*i}, v9")
    I(f"ds_read_b64 {v(XR+2*i,2)}, v{10 if i else 9}")
for s in range(1, 16, 2):
    I(f"v_accvgpr_write_b32 a{128+8*s+3}, 0\nv_accvgpr_write_b32 a{128+8*s+7}, 0")
I("s_waitcnt lgkmcnt(0)\ns_barrier")
stamp("pre o fetch"); stamp("pre o fetch", "o")
OB = 16
I(f"""s_lshl_b32 s{sP}, s{sTILE}, 15
s_lshr_b32 s{sB}, s{sW}, 1
s_lshl_b32 s{sB}, s{sB}, 14
s_add_u32 s{sP}, s{sP}, s{sB}
s_add_u32 s{sP}, s{sP}, {WS_O}""")
FO = Fetch("fo", [([f"s_add_u32 s{sCt}, s{sP}, {2048*hh}\nbuffer_load_dwordx4 {v(OB+8*hh,4)}, v2, {WS}, s{sCt} offen sc1\nbuffer_load_dwordx4 {v(OB+8*hh+4,4)}, v2, {WS}, s{sCt} offen offset:1024 sc1"],
                   list(range(OB+8*hh, OB+8*hh+8))) for hh in range(8)], masked=True)
NO0 = 5
for hh in range(NO0): P.add(FO.load(hh))
AO, AT = 80, 96
for i in range(8):
    I(f"v_lshlrev_b32 v{112+2*i}, 16, v{XR+i}\nv_and_b32 v{113+2*i}, s{sHIM}, v{XR+i}")
I(f"""s_lshl_b32 s{sA}, s{sW}, 12
s_add_u32 s{sA}, s{sA}, {L_XCH}
v_add_u32 v9, s{sA}, v2
v_xor_b32 v12, 8192, v9""")
for hh in range(NO0, 8): P.add(FO.load(hh))
stamp("fo issued", "o")
bg = w1_l + w2_l
g2 = []
for s in range(16):
    for k, acc in ((1, AT), (0, AO)):
        c = ("0" if k else v(112,16)) if s == 0 else v(acc,16)
        g2.append(mk(f"v_mfma_f32_32x32x16_bf16 {v(acc,16)}, {a_(128+8*s+4*k,4)}, {v(OB+4*s,4)}, {c}"))
P.add(FO.check(0))
S = Sched(g2)
for hh in range(1, 8): S.spread(FO.checkc(hh), 4*hh - 3, 4*hh)
S.spread([bg.pop(0) for _ in range(opt("bg1", 10))], 12, 32)
P.add(S.emit())
stamp("p2 gemm done")
ep = Prog(); J = ep.I
for i in range(4): J(f"ds_write_b128 v9, {v(AT+4*i,4)} offset:{1024*i}")
J(f"""s_mul_i32 s{sA}, s{sTILE}, {28*1024}
s_lshl_b32 s{sB}, s{sC}, 1
s_lshr_b32 s{sD}, s{sW}, 1
s_add_u32 s{sB}, s{sB}, s{sD}
s_lshl_b32 s{sD}, s{sB}, 11
s_add_u32 s{sA}, s{sA}, s{sD}
s_add_u32 s{sA}, s{sA}, {WS_H}
v_mov_b32 v112, 0
v_mov_b32 v113, 0""")
J("s_waitcnt lgkmcnt(0)\ns_barrier")
for i in range(4): J(f"ds_read_b128 {v(AT+4*i,4)}, v12 offset:{1024*i}")
HR = XR
for k in range(0, 16, 2): J(f"v_pk_add_f32 {v(AO+k,2)}, {v(AO+k,2)}, {v(AT+k,2)}")
for i in range(4): J(f"v_cvt_pk_bf16_f32 v{HR+i}, v{AO+2*i}, v{AO+2*i+1}")
J(f"buffer_store_dwordx4 {v(HR,4)}, v2, {WS}, s{sA} offen sc1")
for i in range(4, 8): J(f"v_cvt_pk_bf16_f32 v{HR+i}, v{AO+2*i}, v{AO+2*i+1}")
J(f"buffer_store_dwordx4 {v(HR+4,4)}, v2, {WS}, s{sA} offen offset:1024 sc1")
for i in range(8):
    J(f"v_dot2c_f32_bf16 v112, s{sONES}, v{HR+i}\nv_dot2c_f32_bf16 v113, v{HR+i}, v{HR+i}")
J(f"""s_mul_i32 s{sA}, s{sTILE}, {14*512}
s_lshl_b32 s{sB}, s{sB}, 9
s_add_u32 s{sA}, s{sA}, s{sB}
s_add_u32 s{sA}, s{sA}, {WS_ST}
v_lshlrev_b32 v7, 2, v1
v_bitop3_b32 v10, v{HR}, v{HR+1}, v{HR+2} bitop3:0x96
v_permlane32_swap_b32 v112, v113
v_bitop3_b32 v10, v10, v{HR+3}, v{HR+4} bitop3:0x96
v_bitop3_b32 v10, v10, v{HR+5}, v{HR+6} bitop3:0x96
v_add_f32 v112, v112, v113
v_bitop3_b32 v10, v10, v{HR+7}, v5 bitop3:0x96
v_xor_b32 v113, v10, v112""")
J(f"buffer_store_dword v112, v7, {WS}, s{sA} offen sc1\nbuffer_store_dword v113, v7, {WS}, s{sA} offen offset:256 sc1")
P.add(ep.items)
stamp("h stored")
for _ in range(opt("bg2", 9)): P.add(bg.pop(0))
I(f"""v_bfe_u32 v9, v1, 2, 2
v_lshl_add_u32 v240, v3, 2, v9
v_lshlrev_b32 v254, 7, v240
v_lshlrev_b32 v240, 8, v240
v_xor_b32 v9, s{sW}, v9
v_lshl_add_u32 v240, v9, 6, v240
v_bfe_u32 v9, v1, 4, 1
v_lshlrev_b32 v9, 5, v9
v_lshl_add_u32 v9, v8, 3, v9
v_add_u32 v240, v240, v9
v_add_u32 v254, v254, v9
v_bfe_u32 v9, v1, 3, 1
v_lshl_add_u32 v254, v9, 6, v254
s_lshl_b32 s{sA}, s{sW}, 12
s_add_u32 s{sA}, s{sA}, {L_SCR}
v_add_u32 v254, s{sA}, v254
v_xor_b32 v255, 64, v254
v_add_u32 v253, s{sA}, v2
v_xor_b32 v241, 64, v240
v_xor_b32 v242, 128, v240
v_xor_b32 v243, 192, v240""")
for m in range(4): I(f"v_add_u32 v{244+m}, 57344, v{240+m}")
HB = 16; ST = 176
I(f"""s_lshl_b32 s{sB}, s{sT2}, 2
s_add_u32 s{sB}, s{sB}, s{sW}
s_mul_i32 s{sP}, s{sB}, {28*1024}
s_add_u32 s{sP}, s{sP}, {WS_H}
s_mul_i32 s46, s{sB}, {14*512}
s_add_u32 s46, s46, {WS_ST}
s_add_u32 s47, s46, 3584
s_mul_i32 s{sQ}, s{sB}, {112*1024}
s_lshl_b32 s{sA}, s{sR}, 13
s_add_u32 s{sQ}, s{sQ}, s{sA}
s_add_u32 s{sQ}, s{sQ}, {WS_H1}
s_mul_i32 s48, s{sB}, {56*256}
s_lshl_b32 s{sA}, s{sR}, 10
s_add_u32 s48, s48, s{sA}
s_add_u32 s48, s48, {WS_C1}
v_lshlrev_b32 v12, 3, v1
s_lshl_b32 s{sA}, s{sW}, 9
s_add_u32 s{sA}, s{sA}, {L_AUG}
v_add_u32 v13, s{sA}, v12
v_mov_b32 v222, 0""")
FH = Fetch("fh", [([f"s_add_u32 s{sCt}, s{sP}, {2048*p}\nbuffer_load_dwordx4 {v(HB+8*p,4)}, v2, {WS}, s{sCt} offen sc1\nbuffer_load_dwordx4 {v(HB+8*p+4,4)}, v2, {WS}, s{sCt} offen offset:1024 sc1",
                    f"buffer_load_dword v{ST+2*p}, v7, {WS}, s{46 if p < 7 else 47} offen offset:{512*(p%7)} sc1\nbuffer_load_dword v{ST+2*p+1}, v7, {WS}, s{46 if p < 7 else 47} offen offset:{512*(p%7)+256} sc1"],
                   list(range(HB+8*p, HB+8*p+8)) + [ST+2*p, ST+2*p+1]) for p in range(14)])
for i in range(4): I(f"v_mov_b32 v{208+i}, s{sONES}")
def w2tr(k):
    o = 2048 * (k & 1); q = Prog()
    q.I(f"ds_write_b128 v253, {a_(8*k,4)} offset:{o}\nds_write_b128 v253, {a_(8*k+4,4)} offset:{o+1024}")
    for mu, av in ((0, 254), (1, 255)):
        for u in range(2): q.I(f"ds_read_b64_tr_b16 {a_(8*k+4*mu+2*u,2)}, v{av} offset:{o+u*1024}")
    return q.items
stamp("pre h fetch"); stamp("pre h fetch", "h")
ACC = [144, 160, 176, 192]; CS = 128
def w1a(t, k): return (240 + k + (4 if t >= 14 else 0), (t % 14) * 4096, (t % 14) * 4096 + 2048)
st3 = []
for t in range(28):
    st3.append(w1a(t, 0) + ([(HB + 4*t, ACC[0], t == 0, False), (208, CS, t == 0, True)],))
    st3.append(w1a(t, 1) + ([(HB + 4*t, ACC[1], t == 0, False)],))
for k in (2, 3):
    for t in range(28): st3.append(w1a(t, k) + ([(HB + 4*t, ACC[k], t == 0, False)],))
pro, g3 = gemm_lds(st3, AH)
NH0 = opt("nh0", 4)
for p in range(NH0): P.add(FH.load(p))
P.wait("w1"); I("s_barrier")
P.add(pro)
P.add(FH.check(0))
S3 = Sched(g3)
for p in range(14):
    if p + NH0 < 14: S3.spread(FH.loadc(p + NH0), 6*p, 6*p + 2)
    else: S3.spread([bg.pop(0), bg.pop(0)], 6*p, 6*p + 2)
    S3.at(6*p, mk(f"v_add_f32 v222, v222, v{ST+2*p}"), 0.0)
    if p + 1 < 14: S3.spread(FH.checkc(p + 1), 6*p + 2, 6*p + 6)
mid = Prog(); J = mid.I
J(f"""v_mul_f32 v208, {fhex(1/448)}, v222
v_mov_b32 v209, v208
v_cvt_pk_bf16_f32 v212, v{CS}, v{CS}
v_permlane32_swap_b32 v208, v209
v_lshlrev_b32 v213, 16, v212
v_sub_f32 v213, v{CS}, v213
v_cvt_pk_bf16_f32 v212, v{CS}, v213
v_and_b32 v213, 0xffff, v212
v_cndmask_b32 v212, v212, 0, {sHI}
v_cndmask_b32 v213, v213, 0, {sHI}
ds_write_b64 v13, v[212:213]
v_fma_f32 v209, -v208, v208, v209
v_max_f32 v209, 0, v209
v_add_f32 v209, 0x3727c5ac, v209
v_rsq_f32 v251, v209
v_cvt_pk_bf16_f32 v222, -v208, -v208
v_lshlrev_b32 v210, 16, v222
v_sub_f32 v210, -v208, v210
v_cvt_pk_bf16_f32 v223, v210, 0
v_mul_f32 v250, v209, v251
v_mul_f32 v251, 0xbfb8aa3b, v251
v_cndmask_b32 v222, v222, 0, {sHI}
v_cndmask_b32 v223, v223, 0, {sHI}""")
AUG = 232
S3.spread(mid.items, 85, 91)
S3.at(91, mk("s_waitcnt lgkmcnt(0)\ns_barrier") + flat([mk(f"v_xor_b32 v9, {512*k}, v13\nds_read_b64 {v(AUG+2*k,2)}, v9") for k in range(1, 4)]), 0.0)
def aug(k): return mk(f"v_mfma_f32_32x32x8_bf16 {v(ACC[k],16)}, {v(AUG+2*k,2) if k else 'v[212:213]'}, v[222:223], {v(ACC[k],16)}")
def silu(k):
    q = Prog(); a = ACC[k]; t = 128
    q.I(f"s_xor_b32 s49, s{sW}, {k}\ns_lshl_b32 s50, s49, 11\ns_add_u32 s50, s50, s{sQ}\ns_lshl_b32 s49, s49, 8\ns_add_u32 s49, s49, s48")
    for half in range(2):
        b = a + 8 * half
        for j in range(8): q.I(f"v_mul_f32 v{t+j}, v{b+j}, v251")
        for j in range(8): q.I(f"v_exp_f32 v{t+j}, v{t+j}")
        for j in range(8): q.I(f"v_fma_f32 v{t+j}, v{t+j}, v250, v250")
        for j in range(8): q.I(f"v_rcp_f32 v{t+j}, v{t+j}")
        for j in range(8): q.I(f"v_mul_f32 v{b+j}, v{b+j}, v{t+j}")
        for j in range(4): q.I(f"v_cvt_pk_bf16_f32 v{b+j}, v{b+2*j}, v{b+2*j+1}")
        q.I(f"buffer_store_dwordx4 {v(b,4)}, v2, {WS}, s50 offen offset:{1024*half} sc1")
        src = "v5" if half == 0 else "v136"
        q.I(f"v_bitop3_b32 v136, {src}, v{b}, v{b+1} bitop3:0x96\nv_bitop3_b32 v136, v136, v{b+2}, v{b+3} bitop3:0x96")
    q.I(f"buffer_store_dword v136, v7, {WS}, s49 offen sc1")
    return q.items
g3[91] = g3[91] + aug(0)
g3[94] = g3[94] + aug(1)
g3[113] = g3[113] + aug(2)
S3.spread(silu(0) + silu(1) + silu(2), 93, 140)
nb3 = min(len(bg), opt("bg3", 24))
S3.spread([bg.pop(0) for _ in range(nb3)], 92, 140)
P.add(S3.emit())
P.add(aug(3))
stamp("p3 gemm done"); stamp("p3 gemm done", "e")
B4 = 16; CK = 208
C4 = [[144, 160], [176, 192]]
I(f"""s_lshl_b32 s{sA}, s{sT2}, 2
s_lshl_b32 s{sB}, s{sU}, 1
s_add_u32 s{sA}, s{sA}, s{sB}
s_mul_i32 s{sB}, s{sA}, {112*1024}
s_add_u32 s{sB}, s{sB}, {WS_H1}
s_lshl_b32 s51, s44, 11
s_add_u32 s51, s51, s{sB}
s_lshl_b32 s52, s45, 11
s_add_u32 s52, s52, s{sB}
s_mul_i32 s{sB}, s{sA}, {56*256}
s_add_u32 s{sB}, s{sB}, {WS_C1}
s_lshl_b32 s53, s44, 8
s_add_u32 s53, s53, s{sB}
s_lshl_b32 s54, s45, 8
s_add_u32 s54, s54, s{sB}""")
def piece4(hf, i, nu):
    n = 2 * i + nu; r = B4 + 8 * n
    return ([f"s_add_u32 s{sCt}, s{51+hf}, {16384*i + nu*112*1024}\nbuffer_load_dwordx4 {v(r,4)}, v2, {WS}, s{sCt} offen sc1\nbuffer_load_dwordx4 {v(r+4,4)}, v2, {WS}, s{sCt} offen offset:1024 sc1",
            f"s_add_u32 s{sCt}, s{53+hf}, {2048*i + nu*56*256}\nbuffer_load_dword v{CK+n}, v7, {WS}, s{sCt} offen sc1"],
            list(range(r, r+8)) + [CK+n])
ordE = [(i, nu) for i in range(7) for nu in range(2)]
ordL = [(i, 0) for i in range(7)] + [(i, 1) for i in range(7)]
FE = Fetch("fe", [piece4(0, *x) for x in ordE])
FL = Fetch("fl", [piece4(1, *x) for x in ordL])
def p4mm(hf, i, nu):
    q = Prog(); r = B4 + 8 * (2*i + nu)
    for e in range(2):
        k = 2 * (7*hf + i) + e
        for mu in range(2):
            c = "0" if k == 0 else v(C4[mu][nu],16)
            q.I(f"v_mfma_f32_32x32x16_bf16 {v(C4[mu][nu],16)}, {a_(8*k+4*mu,4)}, {v(r+4*e,4)}, {c}")
    return q.items
NE0 = opt("ne0", 5)
print("w2 loads left at P4:", len(bg))
trk = list(range(28))
tl = sprinkle(silu(3), [FE.load(n) for n in range(NE0)], 2, 16)
tl = sprinkle(tl, [[x] for x in flat([w2tr(trk.pop(0)) for _ in range(4)])], 1, 4)
P.add(tl)
stamp("p3 done")
P.add(FE.check(0))
S = Sched([[m] for n in range(14) for m in p4mm(0, *ordE[n])])
for n in range(14):
    if n + NE0 < 14: S.spread(FE.loadc(n + NE0), 4*n + 2, 4*n + 4)
    else: S.spread([bg.pop(0) for _ in range(min(3, len(bg)))], 4*n + 2, 4*n + 4)
    if n + 1 < 14: S.spread(FE.checkc(n + 1), 4*n + 2, 4*n + 4)
    t_ = w2tr(trk.pop(0))
    S.at(4*n, t_[:1]); S.at(4*n + 1, t_[1:2]); S.at(4*n + 2, t_[2:4], 0.0); S.at(4*n + 3, t_[4:], 0.0)
P.add(S.emit())
for g in bg: P.add(g)
stamp("p4 first half")
NL0 = opt("nl0", 5)
for n in range(NL0): P.add(FL.load(n))
for _ in range(4): P.add(w2tr(trk.pop(0)))
I("s_barrier")
I(f"""s_lshl_b32 s{sA}, s{sW}, 12
v_add_u32 v9, s{sA}, v2
s_lshl_b32 s{sA}, s{sW}, 14
v_add_u32 v13, s{sA}, v2""")
wr0 = [mk(f"ds_write_b128 v9, {v(C4[mu][0]+4*i,4)} offset:{16384*(2*mu)+1024*i}") for mu in range(2) for i in range(4)]
P.add(FL.check(0))
S = Sched([[m] for n in range(14) for m in p4mm(1, *ordL[n])])
for n in range(14):
    if n + NL0 < 14: S.spread(FL.loadc(n + NL0), 4*n + 2, 4*n + 4)
    if n + 1 < 14: S.spread(FL.checkc(n + 1), 4*n + 2, 4*n + 4)
S.spread(flat([w2tr(k) for k in trk]), 0, 14)
S.spread(wr0, 34, 50)
unp = []
for i in range(8): unp += mk(f"v_lshlrev_b32 v{128+2*i}, 16, v{HR+i}\nv_and_b32 v{129+2*i}, s{sHIM}, v{HR+i}")
S.spread(unp, 50, 56)
P.add(S.emit())
stamp("p4 gemm done")
for mu in range(2):
    for i in range(4): I(f"ds_write_b128 v9, {v(C4[mu][1]+4*i,4)} offset:{16384*(2*mu+1)+1024*i}")
I("s_waitcnt lgkmcnt(0)\ns_barrier")
for s in range(4):
    for i in range(4): I(f"ds_read_b128 {v(16+16*s+4*i,4)}, v13 offset:{4096*s+1024*i}")
for s in range(4):
    for k in range(0, 16, 2): I(f"v_pk_add_f32 {v(128+k,2)}, {v(128+k,2)}, {v(16+16*s+k,2)}")
for i in range(8): I(f"v_cvt_pk_bf16_f32 v{96+i}, v{128+2*i}, v{128+2*i+1}")
for i in range(4): I(f"buffer_store_dwordx2 {v(96+2*i,2)}, v4, {OUT}, s{sXO} offen offset:{16*i}")
stamp("end")
I(f"""s_cmp_lg_u32 s2, 0
s_cbranch_scc1 L_exit
v_mov_b32 v9, 0""")
I(f"buffer_store_dword v5, v9, {WS}, 0 offen sc1", unc=True)
I("L_exit:")
if DIAG:
    I(f"s_cmp_lg_u32 s{sW}, 0\ns_cbranch_scc1 L_end\ns_lshl_b32 s{sA}, s2, 7\ns_add_u32 s{sA}, s{sA}, {WS_DIAG}\nv_mov_b32 v9, 0", unc=True)
    for k in range(nstamp[0]):
        I(f"v_mov_b32 v10, s{sSTAMP+k}\nbuffer_store_dword v10, v9, {WS}, s{sA} offen offset:{4*k}", unc=True)
    I(f"v_mov_b32 v10, s{sSPIN}\nbuffer_store_dword v10, v9, {WS}, s{sA} offen offset:124", unc=True)
I("L_end:\ns_endpgm")
P.add(TAIL.items)

body, items = render(P.items)
hdr = open("cdna_kernels/" + NAME + ".s.ref").read().split("; Override launch")[0]
out = hdr + f"""; @launch grid=(256,1,1) block=(256,1,1) lds={LDS_SIZE}
.amdgcn_target "amdgcn-amd-amdhsa--gfx950"
.text
.globl {NAME}_kernel
.p2align 8
.type {NAME}_kernel,@function
{NAME}_kernel:
{body}.fill 2048, 4, 0xbf810000
.section .rodata,"a"
.p2align 6
.amdhsa_kernel {NAME}_kernel
  .amdhsa_next_free_vgpr 512
  .amdhsa_next_free_sgpr 102
  .amdhsa_accum_offset 256
  .amdhsa_group_segment_fixed_size 0
  .amdhsa_kernarg_size 80
  .amdhsa_user_sgpr_count 2
  .amdhsa_user_sgpr_kernarg_segment_ptr 1
  .amdhsa_system_sgpr_workgroup_id_x 1
.end_amdhsa_kernel
"""
open(sys.argv[1], "w").write(out)
n = sum(1 for i in items if i.cls not in ('label', 'dir'))
print("instructions:", n, "nops:", sum(1 for i in items if i.op == 's_nop'), "waits:", sum(1 for i in items if i.op == 's_waitcnt'), "stamps", nstamp[0])
```

```python
import sys, struct
from asmlib import *

NAME = "sequential_preLN__linear_kernel_hedgehog__dense_activation_silu__prompt"
DIAG = int(sys.argv[2]) if len(sys.argv) > 2 else 0
OPT = dict(a.split('=') for a in sys.argv[3:])
def opt(k, d): return int(OPT[k], 0) if k in OPT else d

WS_PART = 0x40000
WS_O    = 0x240000
WS_H    = 0x440000
WS_ST   = 0x600000
WS_H1   = 0x680000
WS_C1   = 0xD80000
WS_DIAG = 0xE80000
WS_FLG  = 0xF00000
WS_SIZE = 0xF80000
XW = 28672
L_WV, L_WQ, L_WK, L_WO = 0, 28672, 57344, 86016
L_IMG = L_WK
L_KVX = 143360
L_XCH = 147456
L_SCR = 114688
L_AUG = 147456
LDS_SIZE = 163840
sW, sT, sH, sT2, sR = 3, 4, 5, 6, 7
X, WQKV, WPHI, WO, W1, W2, OUT, WS = [f"s[{i}:{i+3}]" for i in range(8, 40, 4)]
sKX, sKW = 40, 47
sHQ, sHIM = 54, 55
sRET = "s[56:57]"
sSPIN, sP, sU, sC, sMASK, sQ = 58, 59, 60, 61, 62, 63
sHI = "s[64:65]"
sLOG = "s[66:67]"
sONES, sTILE = 68, 69
sA, sB, sCt, sD = 70, 71, 72, 73
sRact, sXO = 74, 75
sWB, sWQ = 76, 77
sLAST, sFLAG, sWM, sPST, sPCK, sOST, sXRB, sOUT = 80, 81, 82, 83, 84, 85, 86, 87
sSTAMP = 88

def v(a, n=1): return f"v{a}" if n == 1 else f"v[{a}:{a+n-1}]"
def a_(a, n=1): return f"a{a}" if n == 1 else f"a[{a}:{a+n-1}]"
def fhex(x): return hex(struct.unpack('<I', struct.pack('<f', x))[0])
def flat(l): return sum(l, [])
P = Prog(); I = P.I
TAIL = Prog()
nstamp = [0]
SEL = OPT.get("st", "m").split(",")
def stampi(name, grp="m"):
    if not DIAG or (name != "start" and not (set(grp) & set(SEL))): return []
    k = nstamp[0]; nstamp[0] += 1
    assert k < 14
    print(f"stamp {k}: {name}")
    op = "s_memtime" if DIAG == 2 else "s_memrealtime"
    return mk(f"s_waitcnt lgkmcnt(0)\n{op} s[78:79]\ns_waitcnt lgkmcnt(0)\ns_mov_b32 s{sSTAMP+k}, s78")
def stamp(name, grp="m"): P.add(stampi(name, grp))
X3 = "bitop3:0x96"

def chk_code(regs, masked):
    r = list(regs)
    if masked: return f"v_bitop3_b32 v10, v{r[0]}, v{r[1]}, s{sMASK} bitop3:0x28\nv_cmp_ne_u32 vcc, v10, v6"
    if len(r) == 1: return f"v_cmp_ne_u32 vcc, v{r[0]}, v5"
    if len(r) == 2: t = f"v_xor_b32 v10, v{r[0]}, v{r[1]}"
    else:
        t = f"v_bitop3_b32 v10, v{r[0]}, v{r[1]}, v{r[2]} {X3}"
        if len(r) == 4: t += f"\nv_xor_b32 v10, v10, v{r[3]}"
    return t + "\nv_cmp_ne_u32 vcc, v10, v5"

GUARD = f"s_add_u32 s{sSPIN}, s{sSPIN}, 1\ns_cmp_gt_u32 s{sSPIN}, 0x40000\ns_cbranch_scc1 L_end\ns_waitcnt vmcnt(0)"
class Fetch:
    def __init__(self, name, pieces, masked=False, nre=1):
        self.name, self.pieces, self.masked, self.nre = name, pieces, masked, nre
    def loadc(self, i): return [mk(c) for c in self.pieces[i][0]]
    def load(self, i): return flat(self.loadc(i))
    def stub(self, i, last):
        n = self.name
        rel = "\n".join(c for j in range(i, min(last, i + self.nre - 1) + 1) for c in self.pieces[j][0])
        return mk(f"s_cbranch_vccz L_{n}_ok{i}\nL_{n}_r{i}:") + \
               mk(rel + "\n" + GUARD + "\n" + chk_code(self.pieces[i][1], self.masked) + f"\ns_cbranch_vccnz L_{n}_r{i}", unc=True) + mk(f"L_{n}_ok{i}:")
    def checkc(self, i, last):
        return [[x] for x in mk(chk_code(self.pieces[i][1], self.masked))] + [self.stub(i, last)]
    def check(self, i, last): return flat(self.checkc(i, last))

sFS, sFP = 80, 81
vL512, vPO, vPF = 0, 142, 143
def flag_store(nl): return mk(f"s_mov_b64 exec, {(1 << nl) - 1}\nbuffer_store_dword v5, v{vL512}, {WS}, s{sFS} offen sc1\ns_mov_b64 exec, -1")
def gate(name, vo, vf): return Fetch(name, [([f"buffer_load_dword v{vf}, v{vo}, {WS}, s{sFP} offen sc1"], [vf])])
GATE = opt("gate", 0)

def cost(it):
    if isinstance(it, WaitTag): return 4
    if it.cls in ('label', 'dir') or it.uncounted: return 0
    if it.op.startswith(TRANS) or 'permlane' in it.op: return 8
    if it.op.startswith('ds_write_b128'): return 28
    if it.cls == 'mfma': return 8
    return 4.5
class Sched:
    def __init__(self, groups):
        self.groups = groups; self.gap = [[] for _ in groups]; self.seq = 0
    def at(self, g, items, frac=0.5):
        self.seq += 1; self.gap[g].append((frac, self.seq, list(items)))
    def spread(self, chunks, a, b):
        chunks = [c if isinstance(c, list) else [c] for c in chunks]
        tot = sum(cost(i) for c in chunks for i in c) or 1; acc = 0
        for c in chunks:
            pos = a + (b - a) * acc / tot
            self.at(int(pos), c, pos - int(pos))
            acc += sum(cost(i) for i in c)
    def emit(self):
        out = []
        for g, gp in zip(self.groups, self.gap):
            out += g
            for _, _, c in sorted(gp, key=lambda x: (x[0], x[1])): out += c
        return out
def sprinkle(items, groups, start, step):
    out = []; groups = list(groups); nxt = start
    for i, it in enumerate(items):
        if groups and i == nxt: out += groups.pop(0); nxt += step
        out.append(it)
    for g in groups: out += g
    return out

def softmax(p, t, o, pk):
    q = Prog(); J = q.I
    m, n = t + 14, t + 15; r0, r1 = t + 16, t + 17
    J(f"v_max3_f32 v{m}, v{p}, v{p+1}, v{p+2}\nv_max3_f32 v{n}, -v{p}, -v{p+1}, -v{p+2}")
    for k in range(3, 13, 2):
        J(f"v_max3_f32 v{m}, v{m}, v{p+k}, v{p+k+1}\nv_max3_f32 v{n}, v{n}, -v{p+k}, -v{p+k+1}")
    J(f"""v_max_f32 v{m}, v{m}, v{p+13}
v_max_f32 v{n}, v{n}, -v{p+13}
v_permlane32_swap_b32 v{m}, v{n}
v_max_f32 v{m}, v{m}, v{n}
v_mul_f32 v{m}, v253, v{m}
v_mov_b32 v{n}, v{m}
v_permlane32_swap_b32 v{m}, v{n}""")
    if pk:
        for k in range(0, 14, 2):
            J(f"v_pk_fma_f32 {v(t+k,2)}, {v(p+k,2)}, v[252:253], {v(m,2)} op_sel_hi:[1,0,0]")
            J(f"v_pk_fma_f32 {v(p+k,2)}, {v(p+k,2)}, v[252:253], {v(m,2)} op_sel:[0,1,1] op_sel_hi:[1,1,1]")
        for k in range(14): J(f"v_exp_f32 v{t+k}, v{t+k}")
        for k in range(14): J(f"v_exp_f32 v{p+k}, v{p+k}")
        J(f"v_pk_add_f32 {v(m,2)}, {v(t,2)}, {v(t+2,2)}\nv_pk_add_f32 {v(r0,2)}, {v(p,2)}, {v(p+2,2)}")
        for k in range(4, 14, 2):
            J(f"v_pk_add_f32 {v(m,2)}, {v(m,2)}, {v(t+k,2)}\nv_pk_add_f32 {v(r0,2)}, {v(r0,2)}, {v(p+k,2)}")
        J(f"v_add_f32 v{m}, v{m}, v{n}\nv_add_f32 v{n}, v{r0}, v{r1}")
    else:
        for k in range(14):
            J(f"v_fma_f32 v{t+k}, v{p+k}, v252, v{m}\nv_fma_f32 v{p+k}, v{p+k}, v253, v{n}\nv_exp_f32 v{t+k}, v{t+k}\nv_exp_f32 v{p+k}, v{p+k}")
            if k >= 2:
                a0 = f"v{t}" if k == 2 else f"v{r0}"; a1 = f"v{p}" if k == 2 else f"v{r1}"
                J(f"v_add_f32 v{r0}, {a0}, v{t+k-1}\nv_add_f32 v{r1}, {a1}, v{p+k-1}")
        J(f"v_add_f32 v{m}, v{r0}, v{t+13}\nv_add_f32 v{n}, v{r1}, v{p+13}")
    J(f"""v_permlane32_swap_b32 v{m}, v{n}
v_add_f32 v{m}, v{m}, v{n}
v_rcp_f32 v{m}, v{m}
v_mov_b32 v{n}, v{m}
v_permlane32_swap_b32 v{m}, v{n}""")
    if pk:
        for k in range(0, 14, 2):
            J(f"v_pk_mul_f32 {v(t+k,2)}, {v(t+k,2)}, {v(m,2)} op_sel_hi:[1,0]")
            J(f"v_pk_mul_f32 {v(p+k,2)}, {v(p+k,2)}, {v(m,2)} op_sel:[0,1] op_sel_hi:[1,1]")
    else:
        for k in range(14): J(f"v_mul_f32 v{t+k}, v{t+k}, v{m}\nv_mul_f32 v{p+k}, v{p+k}, v{n}")
    for k in range(7): J(f"v_cvt_pk_bf16_f32 v{o+k}, v{t+2*k}, v{t+2*k+1}")
    for k in range(7): J(f"v_cvt_pk_bf16_f32 v{o+7+k}, v{p+2*k}, v{p+2*k+1}")
    return q.items

def dmag(vaddrs, srd, sbase, sadd, mbase, madd, tag, sreg=None):
    sr = sCt if sreg is None else sreg
    ch = [mk(f"buffer_load_dwordx4 v{a}, {srd}, s{sr} offen offset:{1024*i} lds", tag=tag) for i, a in enumerate(vaddrs)]
    ch[0] = mk(f"s_add_u32 m0, s{mbase}, {madd}\ns_add_u32 s{sr}, s{sbase}, {sadd}") + ch[0]
    return ch

MF = "v_mfma_f32_32x32x16_bf16"
RINGA, NRING = 224, 8
def gemm_lds(steps, ahead=6):
    def rd(i):
        av, o1, o2 = steps[i][:3]; r = RINGA + 4 * (i % NRING)
        return mk(f"ds_read_b64_tr_b16 {a_(r,2)}, v{av} offset:{o1}\nds_read_b64_tr_b16 {a_(r+2,2)}, v{av} offset:{o2}")
    rds = [rd(i) for i in range(len(steps))]
    groups = []
    for i, st in enumerate(steps):
        r = RINGA + 4 * (i % NRING); b, acc, first, swap = st[3]
        A, B = a_(r, 4), v(b, 4)
        if swap: A, B = B, A
        g = mk(f"{MF} {v(acc,16)}, {A}, {B}, {'0' if first else v(acc,16)}")
        if i % 2 == 0 and i + 1 < len(steps):
            r2 = RINGA + 4 * ((i + 1) % NRING); g[0].extra = [('a', r2 + x) for x in range(4)]
        groups.append(g + (rds[i + ahead] if i + ahead < len(steps) else []))
    return flat(rds[:ahead]), groups

MAP1 = [f"""s_and_b32 s{sT}, s{sA}, 3
s_lshl_b32 s{sT}, s{sT}, 2
s_and_b32 s{sD}, s{sB}, 3
s_add_u32 s{sT}, s{sT}, s{sD}
s_lshr_b32 s{sP}, s{sA}, 2
s_lshl_b32 s{sH}, s{sP}, 3
s_lshr_b32 s{sD}, s{sB}, 2
s_add_u32 s{sH}, s{sH}, s{sD}
s_cmp_eq_u32 s{sD}, 7
s_cselect_b32 s{sD}, 3, s{sD}
s_lshl_b32 s{sKX}, s{sD}, 7
""",
f"""s_lshl_b32 s{sT}, s{sA}, 1
s_lshr_b32 s{sD}, s{sB}, 4
s_add_u32 s{sT}, s{sT}, s{sD}
s_mov_b32 s{sH}, s{sCt}
s_and_b32 s{sD}, s{sH}, 7
s_cmp_eq_u32 s{sD}, 7
s_cselect_b32 s{sD}, 3, s{sD}
s_lshl_b32 s{sKX}, s{sD}, 7
""",
f"""s_mov_b32 s{sT}, s{sCt}
s_lshl_b32 s{sH}, s{sA}, 1
s_lshr_b32 s{sD}, s{sB}, 4
s_add_u32 s{sH}, s{sH}, s{sD}
s_and_b32 s{sD}, s{sH}, 7
s_mul_i32 s{sD}, s{sD}, 3
s_mul_i32 s{sP}, s{sD}, 37
s_lshr_b32 s{sP}, s{sP}, 8
s_mul_i32 s{sP}, s{sP}, 7
s_sub_u32 s{sD}, s{sD}, s{sP}
s_lshl_b32 s{sKX}, s{sD}, 7
"""][opt("map1", 0)]
I(f"""s_cmp_ge_u32 s2, 256
s_cbranch_scc1 L_end
s_load_dwordx2 s[8:9], s[0:1], 0
s_load_dwordx2 s[12:13], s[0:1], 8
s_load_dwordx2 s[16:17], s[0:1], 16
s_load_dwordx2 s[20:21], s[0:1], 24
s_load_dwordx2 s[24:25], s[0:1], 40
s_load_dwordx2 s[28:29], s[0:1], 48
s_load_dwordx2 s[32:33], s[0:1], 56
s_load_dwordx2 s[36:37], s[0:1], 72
s_getpc_b64 s[76:77]
v_and_b32 v1, 63, v0
v_lshrrev_b32 v2, 6, v0
s_and_b32 s{sA}, s2, 7
v_readfirstlane_b32 s{sW}, v2
s_lshr_b32 s{sB}, s2, 3
s_and_b32 s{sCt}, s{sB}, 15
v_lshlrev_b32 v3, 4, v1
v_lshl_add_u32 v3, v2, 6, v3
v_lshl_add_u32 v3, v2, 4, v3
v_add_u32 v3, s{sCt}, v3
v_lshlrev_b32 v3, 7, v3
s_and_b32 s76, s76, 0xffffff00
s_mov_b64 exec, 31
global_load_dword v236, v3, s[76:77]
s_mov_b64 exec, -1
{MAP1}
s_mov_b32 s10, 1835008
s_mov_b32 s11, 0x20000
v_lshrrev_b32 v2, 3, v1
v_mul_u32_u24 v244, 896, v2
v_lshrrev_b32 v2, 4, v1
v_and_b32 v8, 7, v1
v_xor_b32 v2, v2, v8
v_lshl_add_u32 v244, v2, 4, v244
v_xor_b32 v245, 64, v244
v_add_u32 v245, {7168-1024}, v245
v_add_u32 v246, {2*(7168-1024)}, v244
v_add_u32 v247, {2*(7168-1024)}, v245
s_lshl_b32 s{sQ}, s{sT}, 2
s_add_u32 s{sQ}, s{sQ}, s{sW}
s_mul_i32 s{sQ}, s{sQ}, {32*896}
s_lshr_b32 s{sXO}, s{sW}, 1
s_add_u32 s{sXO}, s{sXO}, s{sW}
s_mul_i32 s{sXO}, s{sXO}, {XW}
s_waitcnt lgkmcnt(0)""")
stamp("start")
def xdma(g): return flat(dmag([244, 245, 246, 247], X, sQ, f"s{sKX+g}", sXO, 4096*g, f"x{g}"))
P.add(xdma(0))
I(f"""s_mov_b32 s14, 1204224
s_mov_b32 s15, 0x20000
v_and_b32 v8, 3, v1""")
def wtouch(mask16, dst):
    m = mask16 | (mask16 << 16)
    return mk(f"s_mov_b32 exec_lo, {hex(m)}\ns_mov_b32 exec_hi, {hex(m)}\nbuffer_load_dword v{dst}, v255, {WQKV}, 0 offen\ns_mov_b64 exec, -1")
def kxs(g): return mk(f"s_add_u32 s{sKX+g}, s{sKX+g-1}, 128\ns_cmp_ge_u32 s{sKX+g}, 896\ns_cselect_b32 s{sD}, 896, 0\ns_sub_u32 s{sKX+g}, s{sKX+g}, s{sD}")
NXE = opt("nxe", 2)
if opt("wtfirst", 1) and opt("wt0", 0): P.add(wtouch(opt("wt0", 0), 237))
for g in range(1, NXE): P.add(kxs(g) + xdma(g))
if not opt("wtfirst", 1) and opt("wt0", 0): P.add(wtouch(opt("wt0", 0), 237))
I(f"""s_mov_b32 s38, {WS_SIZE}
s_mov_b32 s39, 0x20000
s_mov_b32 s18, 25088
s_mov_b32 s19, 0x20000
s_mov_b32 s22, 401408
s_mov_b32 s23, 0x20000
s_xor_b32 s{sHQ}, s{sH}, 1
v_mov_b32 v11, 0
v_lshlrev_b32 v6, 7, v1""")
I(f"buffer_load_dword v5, v11, {WS}, 0 offen sc1")
I(f"""s_lshl_b32 s{sD}, s2, 2
s_add_u32 s{sD}, s{sD}, s{sW}
s_lshl_b32 s{sD}, s{sD}, 9
s_and_b32 s{sCt}, s{sH}, 14
s_mul_i32 s{sCt}, s{sCt}, 1568
s_mul_i32 s{sP}, s{sW}, 896
s_add_u32 s{sCt}, s{sCt}, s{sP}
s_mov_b64 exec, 15
buffer_load_dword v238, v6, {WO}, s{sD} offen
s_mov_b64 exec, 127
buffer_load_dword v239, v6, {WPHI}, s{sCt} offen
s_mov_b64 exec, -1""")
for g in range(NXE, 7): P.add(kxs(g))
I(f"""s_lshl_b32 s{sT2}, s{sA}, 1
s_lshr_b32 s{sD}, s{sB}, 4
s_add_u32 s{sT2}, s{sT2}, s{sD}
s_and_b32 s{sRact}, s{sB}, 15
s_min_u32 s{sR}, s{sRact}, 13
s_mov_b32 s26, 1605632
s_mov_b32 s27, 0x20000
s_mov_b32 s30, 1605632
s_mov_b32 s31, 0x20000
s_mov_b32 s34, 1835008
s_mov_b32 s35, 0x20000
s_mov_b32 s64, 0
s_mov_b32 s65, -1
s_mov_b32 s{sONES}, 0x3f803f80
s_mov_b32 s{sMASK}, 0xbfffbfff
s_mov_b32 s{sHIM}, 0xffff0000
s_mov_b32 s{sSPIN}, 0
s_cmp_ge_u32 s{sR}, 7
s_cselect_b32 s{sU}, 1, 0
s_mul_i32 s{sA}, s{sU}, 7
s_sub_u32 s{sC}, s{sR}, s{sA}""")
sT3 = 67
if opt("map3", 0):
    I(f"""s_and_b32 s{sA}, s{sT2}, 12
s_and_b32 s{sD}, s{sT2}, 1
s_lshl_b32 s{sD}, s{sD}, 1
s_add_u32 s{sA}, s{sA}, s{sD}
s_add_u32 s{sT3}, s{sA}, s{sU}
s_bfe_u32 s{sA}, s{sT2}, 0x10001
s_mul_i32 s{sA}, s{sA}, 7
s_add_u32 s{sR}, s{sA}, s{sC}""")
else: I(f"s_mov_b32 s{sT3}, s{sT2}")
for g in range(7): I(f"s_mul_i32 s{sKW+g}, s{sKX+g}, {172032//128}")
I(f"""s_mul_i32 s{sWB}, s{sH}, 56
s_mul_i32 s{sD}, s{sW}, 43008
s_add_u32 s{sWB}, s{sWB}, s{sD}
s_mul_i32 s{sWQ}, s{sHQ}, 56
s_add_u32 s{sWQ}, s{sWQ}, s{sD}
s_add_u32 s{sWB}, s{sWB}, 896
s_lshl_b32 s{sWM}, s{sW}, 10
s_lshl_b32 s{sA}, s{sH}, 4
s_add_u32 s{sA}, s{sA}, s{sT}
s_mul_i32 s{sA}, s{sA}, 5120
s_add_u32 s{sA}, s{sA}, {WS_PART}
s_add_u32 s{sPST}, s{sA}, s{sWM}
s_lshl_b32 s{sD}, s{sW}, 8
s_add_u32 s{sA}, s{sA}, s{sD}
s_add_u32 s{sPCK}, s{sA}, 4096
s_lshl_b32 s{sA}, s{sT}, 2
s_add_u32 s{sA}, s{sA}, s{sW}
s_lshl_b32 s{sA}, s{sA}, 15
s_lshl_b32 s{sB}, s{sHQ}, 11
s_add_u32 s{sA}, s{sA}, s{sB}
s_add_u32 s{sOST}, s{sA}, {WS_O}
s_lshl_b32 s{sA}, s{sT2}, 2
s_lshl_b32 s{sB}, s{sU}, 1
s_add_u32 s{sA}, s{sA}, s{sB}
s_and_b32 s{sB}, s{sW}, 1
s_add_u32 s{sTILE}, s{sA}, s{sB}
s_mul_i32 s{sA}, s{sA}, {32*896}
s_lshl_b32 s{sB}, s{sC}, 7
s_add_u32 s{sA}, s{sA}, s{sB}
s_mul_i32 s{sD}, s{sW}, {16*896}
s_add_u32 s{sXRB}, s{sA}, s{sD}
s_mul_i32 s{sA}, s{sTILE}, {32*896}
s_add_u32 s{sA}, s{sA}, s{sB}
s_lshr_b32 s{sB}, s{sW}, 1
s_lshl_b32 s{sB}, s{sB}, 6
s_add_u32 s{sOUT}, s{sA}, s{sB}
s_mul_i32 s{sP}, s{sHQ}, {16*5120}
s_add_u32 s{sP}, s{sP}, {WS_PART}""")
WPK, WPQ, WPT = 192, 200, 208
vWPA, vWPB, vKVX, vIMW, vKA, vKB, vFPD, vFPC, vWO0, vWO1, vXRD0, vXRD1, vXRR, vWOR = range(128, 142)
I(f"""v_lshrrev_b32 v3, 5, v1
v_lshlrev_b32 v2, 4, v1
v_lshlrev_b32 v4, 2, v1
v_bfe_u32 v11, v1, 3, 2
v_lshl_add_u32 v11, v11, 2, v8
v_bfe_u32 v12, v1, 2, 1
v_mul_u32_u24 v12, 14, v12
v_min_u32 v13, 13, v11
v_add_u32 v13, v13, v12
v_lshlrev_b32 v13, 1, v13
v_mul_u32_u24 v14, 224, v3
v_add_u32 v{vWPA}, v13, v14
v_lshl_add_u32 v{vWPB}, v3, 20, v{vWPA}
v_add_u32 v12, v12, v11
v_cmp_gt_u32 vcc, 14, v11
v_lshrrev_b32 v7, 2, v1
v_mul_u32_u24 v7, 2688, v7
v_cndmask_b32 v12, 28, v12, vcc
v_and_b32 v13, 15, v12
v_lshlrev_b32 v13, 4, v13
v_lshrrev_b32 v12, 4, v12
v_lshl_add_u32 v13, v12, 3, v13
v_lshl_add_u32 v13, v3, 8, v13
v_add_u32 v{vKVX}, {L_KVX}, v13
v_lshlrev_b32 v11, 4, v8
v_min_u32 v11, 40, v11
v_add_u32 v7, v7, v11
v_and_b32 v9, 31, v1
v_lshlrev_b32 v240, 7, v9
v_bfe_u32 v11, v1, 1, 3
v_xor_b32 v11, v11, v3
v_lshl_add_u32 v240, v11, 4, v240
v_add_u32 v240, s{sXO}, v240
v_xor_b32 v241, 32, v240
v_xor_b32 v242, 64, v240
v_xor_b32 v243, 96, v240
v_mov_b32 v250, 0
v_mov_b32 v251, 0
s_lshl_b32 s{sA}, s{sW}, 5
v_add_u32 v10, s{sA}, v9
v_mul_u32_u24 v10, 208, v10
v_mul_u32_u24 v11, 96, v3
v_add_u32 v{vIMW}, v10, v11
v_lshrrev_b32 v10, 4, v1
v_bfe_u32 v15, v1, 2, 2
v_lshl_add_u32 v10, v10, 3, v15
v_mul_u32_u24 v10, 208, v10
v_and_b32 v11, 1, v1
v_mul_u32_u24 v11, 96, v11
v_add_u32 v10, v10, v11
v_bfe_u32 v11, v1, 1, 1
v_lshl_add_u32 v10, v11, 3, v10
v_add_u32 v{vKB}, {L_IMG}, v10
s_lshl_b32 s{sA}, s{sW}, 4
v_add_u32 v{vKA}, s{sA}, v{vKB}
v_add_u32 v{vFPD}, s{sWM}, v2
s_lshl_b32 s{sD}, s{sW}, 8
s_add_u32 s{sD}, s{sD}, 4096
v_add_u32 v{vFPC}, s{sD}, v4
v_lshrrev_b32 v12, 3, v1
v_mul_u32_u24 v14, 896, v12
v_and_b32 v13, 7, v1
v_xor_b32 v12, v12, v13
v_lshl_add_u32 v{vXRD0}, v12, 4, v14
v_add_u32 v{vXRD1}, {7168-1024}, v{vXRD0}
v_bfe_u32 v12, v1, 4, 1
v_lshlrev_b32 v11, 2, v12
v_xor_b32 v11, v11, v13
v_lshl_add_u32 v{vWO0}, v11, 4, v14
v_add_u32 v{vWO1}, {7168-1024}, v{vWO0}
s_and_b32 s{sA}, s{sW}, 1
s_lshl_b32 s{sA}, s{sA}, 12
s_add_u32 s{sA}, s{sA}, {L_XCH}
v_lshlrev_b32 v10, 7, v9
v_lshl_add_u32 v10, v3, 3, v10
v_add_u32 v10, s{sA}, v10
s_lshr_b32 s{sA}, s{sW}, 1
s_lshl_b32 s{sB}, s{sA}, 2
v_xor_b32 v13, s{sB}, v13
v_lshl_add_u32 v{vXRR}, v13, 4, v10
v_mad_u32_u24 v10, v3, 14, v15
v_lshlrev_b32 v10, 7, v10
v_bfe_u32 v13, v1, 3, 1
v_xor_b32 v13, v13, v3
v_xor_b32 v13, s{sA}, v13
v_lshl_add_u32 v10, v13, 6, v10
v_lshl_add_u32 v10, v12, 5, v10
v_lshl_add_u32 v10, v8, 3, v10
s_mul_i32 s{sA}, s{sA}, {8*28*128}
s_add_u32 s{sA}, s{sA}, {L_WO}
v_add_u32 v{vWOR}, s{sA}, v10
v_lshl_add_u32 v11, v3, 3, v15
v_lshlrev_b32 v11, 6, v11
v_lshl_add_u32 v12, v12, 2, v8
v_cmp_lt_u32 vcc, 5, v12
v_xor_b32 v13, 1, v12
s_mul_i32 s{sA}, s{sH}, 1568
s_mul_i32 s{sB}, s{sHQ}, 1568
v_cndmask_b32 v12, v12, v13, vcc
v_lshl_add_u32 v11, v12, 3, v11
v_add_u32 v13, {L_WK}, v11""")
I(f"""v_bfe_u32 v10, v1, 2, 1
v_bfe_u32 v14, v1, 4, 1
v_lshl_add_u32 v10, v14, 1, v10
v_cmp_eq_u32 vcc, v10, v3
v_and_b32 v10, 1, v1
v_lshlrev_b32 v10, 4, v10
v_mov_b32 v14, 0x3f80
v_lshlrev_b32 v10, v10, v14
v_cndmask_b32 v10, 0, v10, vcc
v_bfe_u32 v14, v1, 3, 1
v_bfe_u32 v15, v1, 1, 1
v_lshl_add_u32 v14, v14, 1, v15""")
for q in range(4): I(f"v_cmp_eq_u32 vcc, {q}, v14\nv_cndmask_b32 v15, 0, v10, vcc\nv_accvgpr_write_b32 a{220+q}, v15")
I(f"""v_lshlrev_b32 v{vL512}, 9, v1
s_lshl_b32 s{sFS}, s{sH}, 13
s_lshl_b32 s{sD}, s{sW}, 7
s_add_u32 s{sD}, s{sD}, {WS_FLG}
s_add_u32 s{sFS}, s{sFS}, s{sD}
s_lshl_b32 s{sCt}, s{sT}, 2
s_add_u32 s{sFS}, s{sFS}, s{sCt}
s_lshl_b32 s{sFP}, s{sHQ}, 13
s_add_u32 s{sFP}, s{sFP}, s{sD}
s_lshl_b32 s{sCt}, s{sT}, 9
s_add_u32 s{sFP}, s{sFP}, s{sCt}
v_and_b32 v{vPO}, 60, v4""")
stamp("setup done", "p")
def wphi(dst, tmp, so):
    q = []
    for t in range(2):
        for j in range(8):
            d = 16 * t + 8 * (j >> 2) + (j & 3)
            av = vWPB if (t == 1 and j >= 4) else vWPA
            r = (dst if j % 2 == 0 else tmp) + 4 * t + j // 2
            op = "buffer_load_short_d16" if j % 2 == 0 else "buffer_load_short_d16_hi"
            q += mk(f"{op} v{r}, v{av}, {WPHI}, s{so} offen offset:{d*56}")
    return q
def wkdma(g): return flat(dmag([7], WQKV, sWB, f"s{sKW+g}", sWM, L_WK + 4096*g, f"wk{g}"))
def wvdma(g): return flat(dmag([9], WQKV, sWB, f"s{sKW+g}", sWM, L_WV + 4096*g, f"wv{g}"))
def wqdma(g): return flat(dmag([7], WQKV, sWQ, f"s{sKW+g}", sWM, L_WQ + 4096*g, f"wq{g}"))
I("v_add_u32 v9, 896, v7")
XF = 16
NX0 = opt("nx0", 4)
if opt("wt1", 0): P.add(wtouch(opt("wt1", 0), 249))
for g in range(NXE, NX0): P.add(xdma(g))
pend = [xdma(g) for g in range(NX0, 7)]
wkl = [wkdma(g) for g in range(7)]
if opt("wt2", 0): pend[-1] = pend[-1] + wtouch(opt("wt2", 0), 248)
pend.append(wkl.pop(0) + wphi(WPK, WPT, sA))
pend.append(wkl.pop(0) + wphi(WPQ, WPT+8, sB))
while len(pend) < 7: pend.append(wkl.pop(0))
def xrd(g): return flat([mk(f"ds_read_b128 {v(XF+16*g+4*e,4)}, v{240+e} offset:{4096*g}") for e in range(4)])
P.wait("x0"); P.add(xrd(0))
for g in range(7):
    if pend: P.add(pend.pop(0))
    if g + 1 < 7: P.wait(f"x{g+1}"); P.add(xrd(g + 1))
    for i in range(16):
        r = XF + 16*g + i
        I(f"v_dot2c_f32_bf16 v250, s{sONES}, v{r}\nv_dot2c_f32_bf16 v251, v{r}, v{r}")
    if g == 0: stamp("x0 done", "p")
for x_ in pend: P.add(x_)
stamp("x stats done", "mp")
I(f"""v_permlane32_swap_b32 v250, v251
v_or_b32 v5, 1, v5
s_mov_b32 s{sA}, 0x9E3779B5
v_add_f32 v250, v250, v251
v_mul_f32 v250, {fhex(-1/448)}, v250
v_mov_b32 v251, v250
v_mul_lo_u32 v5, v5, s{sA}
s_mov_b32 s{sA}, 0x3f80
v_permlane32_swap_b32 v250, v251
s_mov_b32 s{sB}, 0x3f800000""")
fin = mk(f"""v_fma_f32 v251, -v250, v250, -v251
v_max_f32 v251, 0, v251
v_add_f32 v251, 0x3727c5ac, v251
v_rsq_f32 v251, v251
s_lshl_b32 s{sQ}, s{sC}, 7
s_mul_i32 s{sD}, s{sW}, {16*896}
v_mul_f32 v252, 0x3fb8aa3b, v251
v_mul_f32 v253, 0xbfb8aa3b, v251
s_add_u32 s{sQ}, s{sQ}, s{sD}
s_lshl_b32 s{sXO}, s{sW}, 11""")
ACK = 144; ACV = 160; PK = 176; IMG = 208; TMP = 232
def norm(t):
    q = Prog(); tb = TMP + 8 * (t & 1)
    for i in range(4):
        r = XF + 4 * t + i
        q.I(f"v_dot2_f32_bf16 v{tb+2*i}, v{r}, s{sA}, v250\nv_dot2_f32_bf16 v{tb+2*i+1}, v{r}, s{sB}, v250")
    return q.items
def normc(t):
    tb = TMP + 8 * (t & 1)
    return flat([mk(f"v_cvt_pk_bf16_f32 v{XF+4*t+i}, v{tb+2*i}, v{tb+2*i+1}") for i in range(4)])
def l2t(srd, k, dst):
    return mk(f"""s_lshr_b32 s{sCt}, s2, 3
s_lshl_b32 s{sCt}, s{sCt}, 2
s_add_u32 s{sCt}, s{sCt}, s{sW}
s_mul_i32 s{sCt}, s{sCt}, {98*128}
s_mov_b32 exec_hi, 0x1ffff
s_add_u32 s{sCt}, s{sCt}, {k*49*128}
buffer_load_dword v{dst}, v6, {srd}, s{sCt} offen
s_mov_b32 exec_hi, -1""")
L2A, L2B = opt("l2a", -1), opt("l2b", -1)
ns = norm(0)
for t in range(1, 28): ns += norm(t) + normc(t - 1)
ns += normc(27)
NBAR = opt("nbar", 100)
wvl = [wvdma(k) for k in range(7)]
P.add(sprinkle(ns[:NBAR], wkl, 0, opt("wkstep", 30)))
I("s_barrier")
NWV0 = opt("nwv0", 3)
P.add(sprinkle(ns[NBAR:], [wvl.pop(0) for _ in range(NWV0)], opt("wv0", 60), opt("wvstep", 60)))
P.wait(*[f"wk{k}" for k in range(7)]); I("s_barrier")
stamp("wk landed", "p")
AH = 6
pro, gk = gemm_lds([(13, 1024*t, 1024*t + 256, (XF + 4*t, ACK, t == 0, False)) for t in range(28)], AH)
P.add(pro)
S = Sched(gk)
S.spread(wvl, 0, opt("wve", 28))
for k, ps in enumerate((L2A, L2B)):
    if 0 <= ps < 28: S.at(ps, l2t(W1, k, 248 + k))
S.spread(fin + flat([mk(f"v_or_b32 v{WPK+q}, v{WPK+q}, v{WPT+q}\nv_or_b32 v{WPQ+q}, v{WPQ+q}, v{WPT+8+q}") for q in range(8)]), 2, 26)
P.add(S.emit())
def phi_pre(acc, wp):
    q = Prog()
    for i in range(8): q.I(f"v_cvt_pk_bf16_f32 v{acc+i}, v{acc+2*i}, v{acc+2*i+1}")
    q.I(f"{MF} {v(PK,16)}, {v(wp,4)}, {v(acc,4)}, 0\n{MF} {v(PK,16)}, {v(wp+4,4)}, {v(acc+4,4)}, {v(PK,16)}")
    return q.items
stamp("k gemm done", "mp")
wql = [wqdma(k) for k in range(7)]
P.add(wql.pop(0))
P.add(phi_pre(ACK, WPK))
imw = flat([mk(f"ds_write_b128 v{vIMW}, {v(IMG+4*i,4)} offset:{L_IMG+16*i}") for i in range(3)]) + mk(f"ds_write_b64 v{vIMW}, {v(IMG+12,2)} offset:{L_IMG+48}")
touch = mk(f"""s_mul_i32 s{sA}, s2, {52*128}
s_mul_i32 s{sB}, s{sW}, {13*128}
s_add_u32 s{sA}, s{sA}, s{sB}
s_mov_b64 exec, 0x1fff
buffer_load_dword v255, v6, {W1}, s{sA} offen
buffer_load_dword v254, v6, {W2}, s{sA} offen
s_mov_b64 exec, -1""")
smk = sprinkle(softmax(PK, TMP, IMG, True), [wql.pop(0) for _ in range(opt("nwq0", 3))], 10, opt("wqs", 40))
P.add(smk)
P.wait(*[f"wv{k}" for k in range(7)]); I("s_barrier")
stamp("softmax k done", "p")
pro, gv = gemm_lds([(11, L_WV + 1024*t, L_WV + 1024*t + 256, (XF + 4*t, ACV, t == 0, False)) for t in range(28)], AH)
P.add(pro)
S = Sched(gv)
S.spread(imw, 2, 10)
wo_l = [flat(dmag([vWO0, vWO1], WO, sQ, i*64*896, sXO, L_WO + 8192*i, "wo")) for i in range(7)] + [flat(dmag([vXRD0, vXRD1], X, sXRB, 0, sXO, L_XCH, "wo"))]
S.spread(wql, 0, 14)
if L2A >= 0: touch = [x for x in touch if W1 not in x.text]
if opt("touch", 1): S.at(15, touch)
for k, ps in enumerate((L2A, L2B)):
    if 200 <= ps < 228: S.at(ps - 200, l2t(W1, k, 248 + k))
S.spread([wo_l.pop(0) for _ in range(opt("nwo0", 0))], 17, 28)
P.add(S.emit())
for k in range(0, 16, 2): I(f"v_pk_mul_f32 {v(ACV+k,2)}, {v(ACV+k,2)}, v[250:251] op_sel:[0,1] op_sel_hi:[1,1]")
I(f"v_cndmask_b32 v{ACV+12}, v{ACV+12}, 1.0, {sHI}")
for i in range(8): I(f"v_cvt_pk_bf16_f32 v{IMG+16+i}, v{ACV+2*i}, v{ACV+2*i+1}")
for i in range(4, 6): I(f"ds_write_b128 v{vIMW}, {v(IMG+4*i,4)} offset:{L_IMG+16*i}")
P.wait("wq0", "wq1", "wq2", "wq3")
I("s_waitcnt lgkmcnt(0)\ns_barrier")
stamp("img written", "p")
KA = 144; KBv = 208; KD = 176
for k in range(4):
    for u in range(2):
        I(f"ds_read_b64_tr_b16 {v(KA+4*k+2*u,2)}, v{vKA} offset:{(32*k+4*u)*208}")
    for nu in range(2):
        for u in range(2):
            I(f"ds_read_b64_tr_b16 {v(KBv+8*k+4*nu+2*u,2)}, v{vKB} offset:{(32*k+4*u)*208+64+16*nu}")
proq, gq = gemm_lds([(11, L_WQ + 1024*t, L_WQ + 1024*t + 256, (XF + 4*t, ACV, t == 0, False)) for t in range(28)], AH)
for k in range(4):
    for nu in range(2):
        I(f"v_mfma_f32_16x16x32_bf16 {v(KD+4*nu,4)}, {v(KA+4*k,4)}, {v(KBv+8*k+4*nu,4)}, {'0' if k == 0 else v(KD+4*nu,4)}")
P.add(proq[:8])
for i in range(4): I(f"v_cvt_pk_bf16_f32 v{KD+8+i}, v{KD+2*i}, v{KD+2*i+1}")
I(f"buffer_store_dwordx4 {v(KD+8,4)}, v2, {WS}, s{sPST} offen sc1")
I(f"v_xor_b32 v10, v{KD+8}, v5")
I(f"buffer_store_dword v10, v4, {WS}, s{sPCK} offen sc1")
if GATE & 1: P.add(flag_store(16))
P.add(proq[8:])
stamp("partial stored", "mp")
sW1B, sW1M, sW2E, sW2L = 40, 41, 42, 43
set2 = mk(f"""v_lshrrev_b32 v10, 4, v1
v_mul_u32_u24 v12, 3584, v10
v_lshlrev_b32 v10, 2, v10
v_and_b32 v13, 15, v1
v_xor_b32 v10, v10, v13
v_lshl_add_u32 v12, v10, 4, v12
v_add_u32 v13, {4*3584-1024}, v12
v_add_u32 v14, {2*(4*3584-1024)}, v12
v_add_u32 v15, {3*(4*3584-1024)}, v12
s_lshl_b32 s{sW1B}, s{sR}, 8
s_mul_i32 s{sD}, s{sW}, {16*3584}
s_add_u32 s{sW1B}, s{sW1B}, s{sD}
s_lshl_b32 s{sW1M}, s{sW}, 12
s_lshr_b32 s{sA}, s{sW}, 1
s_lshl_b32 s{sA}, s{sA}, 2
s_and_b32 s{sB}, s{sW}, 1
s_add_u32 s{sA}, s{sA}, s{sB}
s_lshl_b32 s{sB}, s{sU}, 1
s_add_u32 s44, s{sA}, s{sB}
s_xor_b32 s45, s44, 2
s_lshl_b32 s{sD}, s{sC}, 7
s_mul_i32 s{sW2E}, s44, {32*896}
s_add_u32 s{sW2E}, s{sW2E}, s{sD}
s_mul_i32 s{sW2L}, s45, {32*896}
s_add_u32 s{sW2L}, s{sW2L}, s{sD}
""")
vW2 = [vWO0, vWO1, 128, 129]
sSCR, sBIG = 46, 47
NUP = 6
NRAW = opt("nraw", 5)
def UA(j): return 16*(j - 7) if j >= 7 else 112 + 16*j
def w2slot(j): return (sSCR, 4096*(j & 1), 254) if j < NUP else (sBIG, 4096*((j - NUP) % 7), 252)
def w2dma(j):
    mb, mo, _ = w2slot(j)
    return flat(dmag(vW2, W2, sW2E if j < 7 else sW2L, (j%7)*256*896, mb, mo, f"w2_{j}"))
def w2raw(j):
    ch = [mk(f"buffer_load_dwordx4 {a_(UA(j)+4*q,4)}, v{vW2[q]}, {W2}, s53 offen offset:{1024*q}") for q in range(4)]
    ch[0] = mk(f"s_add_u32 s53, s{sW2L}, {(j%7)*256*896}") + ch[0]
    return ch
def w2rd(j):
    _, mo, av = w2slot(j)
    if 7 <= j < 7 + NRAW: out = [mk(f"ds_write_b128 v131, {a_(UA(j)+4*q,4)} offset:{mo+1024*q}") for q in range(4)]
    else: out = [[WaitTag([f"w2_{j}"])]]
    for e in range(2):
        for mu in range(2):
            for u in range(2): out.append(mk(f"ds_read_b64_tr_b16 {a_(UA(j)+8*e+4*mu+2*u,2)}, v{av+mu} offset:{mo+2048*e+1024*u}"))
    return out
raw = flat([w2raw(j) for j in range(7, 7 + NRAW)])
set2 += mk(f"v_add_u32 v128, {2*(7168-1024)}, v{vWO0}\nv_add_u32 v129, {3*(7168-1024)}, v{vWO0}")
S = Sched(gq)
S.spread(wo_l, 0, opt("woe", 20))
S.spread(set2, 2, 18)
S.spread([raw.pop(0) for _ in range(opt("rawa", 0))], 20, 28)
G0 = gate("g0", vPO, vPF)
if GATE & 1: S.at(opt("g0", 14), G0.load(0))
S.at(15 - AH, [WaitTag(["wq4", "wq5", "wq6"])] + mk("s_barrier"), 1.0)
P.add(S.emit())
stamp("q gemm done", "p")
G = 16; GC = 80; SA = 96
FP = Fetch("fp", [([f"s_add_u32 s{sCt}, s{sP}, {5120*T}\nbuffer_load_dwordx4 {v(G+4*T,4)}, v{vFPD}, {WS}, s{sCt} offen sc1\nbuffer_load_dword v{GC+T}, v{vFPC}, {WS}, s{sCt} offen sc1"],
                   [G+4*T, GC+T]) for T in range(16)])
P.add(phi_pre(ACV, WPQ))
if GATE & 1: P.add(G0.check(0, 0))
I("s_barrier")
PQ = 208
P.add(sprinkle(softmax(PK, TMP, PQ, True), [FP.load(T) for T in range(16)], opt("fp0", 0), opt("fpstep", 8)))
stamp("softmax q done", "p")
w1_l = [flat(dmag([12, 13, 14, 15], W1, sW1B, i*64*3584, sW1M, 16384*i, "w1")) for i in range(7)]
def fpb(b):
    t = []
    for k, T in enumerate(range(4*b, 4*b+4)):
        t.append(f"v_bitop3_b32 v{10 if k == 0 else 9}, v{G+4*T}, v{GC+T}, v5 {X3}" + ("" if k == 0 else "\nv_or_b32 v10, v10, v9"))
    return "\n".join(t) + "\nv_cmp_ne_u32 vcc, 0, v10"
I("s_branch L_fp_go\nL_fp_retry:")
for b in range(4):
    I(fpb(b) + f"\ns_cbranch_vccz L_fp_k{b}\n" + "\n".join(FP.pieces[T][0][0] for T in range(4*b, 4*b+4)) + f"\nL_fp_k{b}:", unc=True)
I(GUARD, unc=True)
I("L_fp_go:")
I(fpb(0) + "\ns_cbranch_vccnz L_fp_retry")
S = Sched([mk(f"{MF} {v(SA,16)}, a[220:223], {v(G+4*T,4)}, {'0' if T == 0 else v(SA,16)}") for T in range(16)])
for b in range(1, 4): S.spread(mk(fpb(b) + "\ns_cbranch_vccnz L_fp_retry"), 4*b - 3, 4*b)
S.spread([w1_l.pop(0) for _ in range(opt("nw1a", 2))], 12, 16)
P.add(S.emit())
I(f"v_add_u32 v9, {L_KVX}, v{vFPD}")
for i in range(4): I(f"v_cvt_pk_bf16_f32 v{SA+8+i}, v{SA+2*i}, v{SA+2*i+1}")
I(f"ds_write_b128 v9, {v(SA+8,4)}\ns_waitcnt lgkmcnt(0)\ns_barrier")
stamp("kv summed", "mp")
KVA = 32; OD = 48
for q in range(7): I(f"ds_read_b64 {v(KVA+2*q,2)}, v{vKVX} offset:{512*q}")
P.add(w1_l.pop(0))
for s in range(3): I(f"{MF} {v(OD,16)}, {v(KVA+4*s,4)}, {v(PQ+4*s,4)}, {'0' if s == 0 else v(OD,16)}")
I(f"v_mfma_f32_32x32x8_bf16 {v(OD,16)}, {v(KVA+12,2)}, {v(PQ+12,2)}, {v(OD,16)}")
I(f"""s_lshl_b32 s{sP}, s{sTILE}, 15
s_lshr_b32 s{sB}, s{sW}, 1
s_lshl_b32 s{sB}, s{sB}, 14
s_add_u32 s{sP}, s{sP}, s{sB}
s_add_u32 s{sP}, s{sP}, {WS_O}
s_add_u32 s{sA}, s{sW1M}, {L_XCH}
v_add_u32 v132, s{sA}, v2
v_xor_b32 v133, 8192, v132
s_lshr_b32 s{sA}, s{sW}, 1
s_mul_i32 s{sA}, s{sA}, 7
s_lshl_b32 s{sB}, s{sT}, 4
s_add_u32 s{sA}, s{sA}, s{sB}
s_lshl_b32 s{sA}, s{sA}, 2
s_lshr_b32 s{sB}, s{sHQ}, 3
s_lshl_b32 s{sB}, s{sB}, 1
s_add_u32 s{sA}, s{sA}, s{sB}
s_and_b32 s{sB}, s{sW}, 1
s_add_u32 s{sA}, s{sA}, s{sB}
s_lshl_b32 s{sA}, s{sA}, 7
s_and_b32 s{sB}, s{sHQ}, 7
s_lshl_b32 s{sB}, s{sB}, 2
s_add_u32 s{sA}, s{sA}, s{sB}
s_add_u32 s{sFS}, s{sA}, {WS_FLG + 131072}
v_xor_b32 v9, 64, v{vWOR}
v_and_b32 v7, 31, v1
v_mul_u32_u24 v7, 896, v7
v_add_f32 v{OD+14}, 0x358637bd, v{OD+14}
v_rcp_f32 v{OD+14}, v{OD+14}
v_lshl_add_u32 v7, v3, 4, v7""")
for k in range(0, 14, 2): I(f"v_pk_mul_f32 {v(OD+k,2)}, {v(OD+k,2)}, {v(OD+14,2)} op_sel_hi:[1,0]")
for k in range(4): I(f"v_cvt_pk_bf16_f32 v{64+k}, v{OD+2*k}, v{OD+2*k+1}")
I(f"buffer_store_dwordx4 v[64:67], v2, {WS}, s{sOST} offen sc1")
for k in range(4, 7): I(f"v_cvt_pk_bf16_f32 v{64+k}, v{OD+2*k}, v{OD+2*k+1}")
I(f"""v_bitop3_b32 v71, v64, v5, s{sMASK} bitop3:0x28
v_and_b32 v6, s{sMASK}, v5
buffer_store_dwordx4 v[68:71], v2, {WS}, s{sOST} offen offset:1024 sc1""")
if GATE & 2: P.add(flag_store(7))
stamp("o stored", "mo")
I(f"""s_mul_i32 s{sA}, s{sU}, 7
s_add_u32 s{sA}, s{sA}, s{sC}
s_lshl_b32 s{sB}, s{sT2}, 4
s_add_u32 s{sA}, s{sA}, s{sB}
s_lshl_b32 s{sA}, s{sA}, 2
s_add_u32 s{sA}, s{sA}, s{sW}
s_lshl_b32 s66, s{sA}, 7
s_add_u32 s{sFP}, s66, {WS_FLG + 131072}
v_and_b32 v{vPO}, 28, v4""")
P.wait("wo")
I(f"s_cmp_ge_u32 s{sRact}, 14\ns_cbranch_scc1 L_exit\ns_barrier")
wor = []
for s in range(16):
    hh, e = s >> 1, s & 1
    for k, av in ((0, vWOR), (1, 9)):
        for u in range(2):
            wor += mk(f"ds_read_b64_tr_b16 {a_(128+8*s+4*k+2*u,2)}, v{av} offset:{(28*hh+8*e+4*u)*128}")
XR = 224
xrr = []
for i in range(4): xrr += mk((f"v_xor_b32 v10, {16*i}, v{vXRR}\n" if i else "") + f"ds_read_b64 {v(XR+2*i,2)}, v{10 if i else vXRR}")
P.add(xrr)
G1 = gate("g1", vPO, vPF)
wor = sprinkle(wor, [w1_l.pop(0) for _ in range(opt("nw1b", 2))], 0, opt("w1bs", 12))
if GATE & 2: wor = sprinkle(wor, [G1.load(0)], opt("g1", 40), 1)
P.add(wor)
OB = 16
FO = Fetch("fo", [([f"s_add_u32 s{sCt}, s{sP}, {2048*hh}\nbuffer_load_dwordx4 {v(OB+8*hh,4)}, v2, {WS}, s{sCt} offen sc1\nbuffer_load_dwordx4 {v(OB+8*hh+4,4)}, v2, {WS}, s{sCt} offen offset:1024 sc1"],
                   [OB+8*hh, OB+8*hh+7]) for hh in range(8)], masked=True, nre=opt('reo', 2))
stamp("pre o fetch", "o")
AO, AT = 80, 96
pre2 = []
for i in range(8): pre2 += mk(f"v_lshlrev_b32 v{112+2*i}, 16, v{XR+i}\nv_and_b32 v{113+2*i}, s{sHIM}, v{XR+i}")
for s in range(1, 16, 2): pre2 += mk(f"v_accvgpr_write_b32 a{128+8*s+3}, 0\nv_accvgpr_write_b32 a{128+8*s+7}, 0")
if GATE & 2:
    P.add(pre2); P.add(G1.check(0, 0))
    stamp("gate1", "o")
    for hh in range(8): P.add(FO.load(hh))
else: P.add(sprinkle(pre2, [FO.load(hh) for hh in range(8)], 0, 4))
I("s_waitcnt lgkmcnt(0)\ns_barrier")
stamp("fo issued", "o")
g2 = []
for s in range(16):
    for k, acc in ((1, AT), (0, AO)):
        c = ("0" if k else v(112,16)) if s == 0 else v(acc,16)
        g2.append(mk(f"{MF} {v(acc,16)}, {a_(128+8*s+4*k,4)}, {v(OB+4*s,4)}, {c}"))
set3 = mk(f"""s_lshl_b32 s{sSCR}, s{sW}, 13
s_mul_i32 s{sBIG}, s{sW}, 28672
v_add_u32 v131, s{sBIG}, v2
s_lshl_b32 s{sB}, s{sC}, 1
s_lshr_b32 s{sD}, s{sW}, 1
s_add_u32 s{sB}, s{sB}, s{sD}
s_lshl_b32 s{sFS}, s{sB}, 2
s_lshl_b32 s{sA}, s{sT2}, 13
s_add_u32 s{sFS}, s{sFS}, s{sA}
s_and_b32 s{sA}, s{sTILE}, 3
s_lshl_b32 s{sA}, s{sA}, 7
s_add_u32 s{sFS}, s{sFS}, s{sA}
s_add_u32 s{sFS}, s{sFS}, {WS_FLG + 2*131072}
s_mul_i32 s{sA}, s{sTILE}, 14
s_add_u32 s{sB}, s{sB}, s{sA}
s_lshl_b32 s{sPST}, s{sB}, 11
s_add_u32 s{sPST}, s{sPST}, {WS_H}
s_lshl_b32 s{sPCK}, s{sB}, 9
s_add_u32 s{sPCK}, s{sPCK}, {WS_ST}
v_bfe_u32 v9, v1, 2, 2
v_lshl_add_u32 v240, v3, 2, v9
v_lshlrev_b32 v254, 7, v240
v_lshlrev_b32 v240, 8, v240
v_xor_b32 v9, s{sW}, v9
v_lshl_add_u32 v240, v9, 6, v240
v_bfe_u32 v9, v1, 4, 1
v_lshlrev_b32 v9, 5, v9
v_lshl_add_u32 v9, v8, 3, v9
v_add_u32 v240, v240, v9
v_add_u32 v254, v254, v9
v_bfe_u32 v9, v1, 3, 1
v_lshl_add_u32 v254, v9, 6, v254
s_add_u32 s{sSCR}, s{sSCR}, {L_SCR}
v_add_u32 v252, s{sBIG}, v254
v_xor_b32 v253, 64, v252
v_add_u32 v254, s{sSCR}, v254
v_xor_b32 v255, 64, v254
v_xor_b32 v241, 64, v240
v_xor_b32 v242, 128, v240
v_xor_b32 v243, 192, v240""") + flat([mk(f"v_add_u32 v{244+m}, 57344, v{240+m}") for m in range(4)])
P.add(flat(w1_l))
P.add(set3[:21])
P.add(FO.check(0, 7))
stamp("fo0", "o")
S = Sched(g2)
for hh in range(1, 8): S.spread(FO.checkc(hh, 7), 4*hh - 3, 4*hh)
S.spread([raw.pop(0) for _ in range(min(len(raw), opt("rawb", 4)))], 28, 32)
S.spread(set3[21:], 0, 30)
P.add(S.emit())
stamp("p2 gemm done", "o")
for i in range(4): I(f"ds_write_b128 v132, {v(AT+4*i,4)} offset:{1024*i}")
I("v_mov_b32 v112, 0\nv_mov_b32 v113, 0\ns_waitcnt lgkmcnt(0)\ns_barrier")
for i in range(4): I(f"ds_read_b128 {v(AT+4*i,4)}, v133 offset:{1024*i}")
HR = XR
for k in range(0, 8, 2): I(f"v_pk_add_f32 {v(AO+k,2)}, {v(AO+k,2)}, {v(AT+k,2)}")
for i in range(4): I(f"v_cvt_pk_bf16_f32 v{HR+i}, v{AO+2*i}, v{AO+2*i+1}")
I(f"buffer_store_dwordx4 {v(HR,4)}, v2, {WS}, s{sPST} offen sc1")
for k in range(8, 16, 2): I(f"v_pk_add_f32 {v(AO+k,2)}, {v(AO+k,2)}, {v(AT+k,2)}")
for i in range(4, 8): I(f"v_cvt_pk_bf16_f32 v{HR+i}, v{AO+2*i}, v{AO+2*i+1}")
I(f"buffer_store_dwordx4 {v(HR+4,4)}, v2, {WS}, s{sPST} offen offset:1024 sc1")
for i in range(8): I(f"v_dot2c_f32_bf16 v112, s{sONES}, v{HR+i}\nv_dot2c_f32_bf16 v113, v{HR+i}, v{HR+i}")
I(f"""v_bitop3_b32 v10, v{HR}, v{HR+4}, v5 {X3}
v_permlane32_swap_b32 v112, v113
v_add_f32 v112, v112, v113
buffer_store_dword v112, v4, {WS}, s{sPCK} offen sc1
v_xor_b32 v113, v10, v112
buffer_store_dword v113, v4, {WS}, s{sPCK} offen offset:256 sc1""")
if GATE & 4: P.add(flag_store(14))
stamp("h stored", "moh")
HB = 16; ST = 192
ACC = [144, 160, 176, 192]; AUG = 232
set4 = mk(f"""s_lshl_b32 s{sB}, s{sT3}, 2
s_add_u32 s{sB}, s{sB}, s{sW}
s_mul_i32 s{sP}, s{sB}, {28*1024}
s_add_u32 s{sP}, s{sP}, {WS_H}
s_mul_i32 s{sPST}, s{sB}, {14*512}
s_add_u32 s{sPST}, s{sPST}, {WS_ST}
s_add_u32 s{sPCK}, s{sPST}, 3584
s_mul_i32 s{sA}, s{sB}, 56
s_lshl_b32 s{sD}, s{sR}, 2
s_add_u32 s{sA}, s{sA}, s{sD}
s_lshl_b32 s{sQ}, s{sA}, 11
s_add_u32 s{sQ}, s{sQ}, {WS_H1}
s_lshl_b32 s48, s{sA}, 8
s_add_u32 s48, s48, {WS_C1}
v_lshlrev_b32 v13, 3, v1
s_lshl_b32 s{sA}, s{sW}, 9
s_add_u32 s{sA}, s{sA}, {L_AUG}
v_add_u32 v13, s{sA}, v13
v_mov_b32 v222, 0
s_lshl_b32 s{sA}, s{sT3}, 4
s_add_u32 s{sA}, s{sA}, s{sR}
s_lshl_b32 s{sA}, s{sA}, 2
s_add_u32 s{sA}, s{sA}, s{sW}
s_lshl_b32 s{sA}, s{sA}, 7
s_add_u32 s{sFP}, s{sA}, {WS_FLG + 2*131072}
v_min_u32 v{vPO}, 52, v4
s_lshr_b32 s{sA}, s{sW}, 1
s_mul_i32 s{sA}, s{sA}, 7
s_lshl_b32 s{sB}, s{sT3}, 4
s_add_u32 s{sA}, s{sA}, s{sB}
s_lshl_b32 s{sA}, s{sA}, 2
s_and_b32 s{sB}, s{sR}, 1
s_lshl_b32 s{sB}, s{sB}, 1
s_add_u32 s{sA}, s{sA}, s{sB}
s_and_b32 s{sB}, s{sW}, 1
s_add_u32 s{sA}, s{sA}, s{sB}
s_lshl_b32 s{sA}, s{sA}, 7
s_lshr_b32 s{sB}, s{sR}, 1
s_lshl_b32 s{sB}, s{sB}, 2
s_add_u32 s{sA}, s{sA}, s{sB}
s_add_u32 s{sFS}, s{sA}, {WS_FLG + 3*131072}""")
FH = Fetch("fh", [([f"s_add_u32 s{sCt}, s{sP}, {2048*p}\nbuffer_load_dwordx4 {v(HB+8*p,4)}, v2, {WS}, s{sCt} offen sc1\nbuffer_load_dwordx4 {v(HB+8*p+4,4)}, v2, {WS}, s{sCt} offen offset:1024 sc1",
                    f"buffer_load_dword v{ST+2*p}, v4, {WS}, s{sPST if p < 7 else sPCK} offen offset:{512*(p%7)} sc1\nbuffer_load_dword v{ST+2*p+1}, v4, {WS}, s{sPST if p < 7 else sPCK} offen offset:{512*(p%7)+256} sc1"],
                   [HB+8*p, HB+8*p+4, ST+2*p, ST+2*p+1]) for p in range(14)], nre=opt('reh', 2))
for i in range(4): I(f"v_mov_b32 v{AUG+i}, s{sONES}")
for _ in range(min(len(raw), opt("rawc", 4))): P.add(raw.pop(0))
P.wait("w1"); I("s_barrier")
stamp("w1 landed", "h")
def w1a(t, k): return (240 + k + (4 if t >= 14 else 0), (t % 14) * 4096, (t % 14) * 4096 + 2048)
st3 = [w1a(t, 0) + ((AUG, ACC[2], t == 0, True),) for t in range(28)]
for t in range(28):
    for k in range(3): st3.append(w1a(t, k) + ((HB + 4*t, ACC[k], t == 0, False),))
for t in range(28): st3.append(w1a(t, 3) + ((HB + 4*t, ACC[3], t == 0, False),))
pro, g3 = gemm_lds(st3, AH)
P.add(pro)
S3 = Sched(g3)
S3.spread(set4, 0, 12)
S3.spread([w2dma(0), w2dma(1)], 0, 8)
NH0 = opt("nh0", 4); H0 = opt("h0", 20)
G2 = gate("g2", vPO, vPF)
if GATE & 4:
    S3.at(opt("g2", 12), G2.load(0), 0.9)
    S3.at(27, G2.check(0, 0) + stampi("gate2", "h") + flat([FH.load(p) for p in range(NH0)]), 0.5)
else: S3.spread(flat([FH.loadc(p) for p in range(NH0)]), H0, 27)
cs = ACC[2]
csx = mk(f"""v_cvt_pk_bf16_f32 v{AUG}, v{cs}, v{cs}
v_lshlrev_b32 v{AUG+1}, 16, v{AUG}
v_sub_f32 v{AUG+1}, v{cs}, v{AUG+1}
v_cvt_pk_bf16_f32 v{AUG}, v{cs}, v{AUG+1}
v_and_b32 v{AUG+1}, 0xffff, v{AUG}
v_cndmask_b32 v{AUG}, v{AUG}, 0, {sHI}
v_cndmask_b32 v{AUG+1}, v{AUG+1}, 0, {sHI}
ds_write_b64 v13, {v(AUG,2)}""")
S3.at(27, stampi("colsum done", "h") + csx + FH.check(0, NH0 - 1) + stampi("fh0", "h"), 1.0)
B0 = 28
for p in range(14):
    b = B0 + 6*p
    if p + NH0 < 14: S3.spread(FH.loadc(p + NH0), b, b + 2)
    S3.at(b, mk(f"v_add_f32 v222, v222, v{ST+2*p}"), 0.0)
    if p + 1 < 14: S3.spread(FH.checkc(p + 1, min(13, p + NH0)), b + 2, b + 6)
    if p in (3, 7, 11): S3.at(b + 5, stampi(f"fh{p+1}", "h"), 1.0)
S3.at(B0 + 20, mk("s_waitcnt lgkmcnt(0)\ns_barrier") + flat([mk(f"v_xor_b32 v9, {512*k}, v13\nds_read_b64 {v(AUG+2*k,2)}, v9") for k in range(1, 4)]), 0.0)
mid = mk(f"""v_mul_f32 v220, {fhex(1/448)}, v222
v_mov_b32 v221, v220
s_nop 0
v_permlane32_swap_b32 v220, v221
v_fma_f32 v221, -v220, v220, v221
v_max_f32 v221, 0, v221
v_add_f32 v221, 0x3727c5ac, v221
v_rsq_f32 v251, v221
v_cvt_pk_bf16_f32 v222, -v220, -v220
v_lshlrev_b32 v9, 16, v222
v_sub_f32 v9, -v220, v9
v_cvt_pk_bf16_f32 v223, v9, 0
v_mul_f32 v250, v221, v251
v_mul_f32 v251, 0xbfb8aa3b, v251
v_cndmask_b32 v222, v222, 0, {sHI}
v_cndmask_b32 v223, v223, 0, {sHI}""")
S3.spread(mid, B0 + 79, B0 + 84)
def aug(k): return mk(f"v_mfma_f32_32x32x8_bf16 {v(ACC[k],16)}, {v(AUG+2*k,2)}, v[222:223], {v(ACC[k],16)}")
SLT = 132
def silu(k, pk):
    q = Prog(); a = ACC[k]; t = 208
    q.I(f"s_xor_b32 s49, s{sW}, {k}\ns_lshl_b32 s50, s49, 11\ns_add_u32 s50, s50, s{sQ}\ns_lshl_b32 s49, s49, 8\ns_add_u32 s49, s49, s48")
    for half in range(2):
        b = a + 8 * half
        if pk:
            for j in range(0, 8, 2): q.I(f"v_pk_mul_f32 {v(t+j,2)}, {v(b+j,2)}, v[250:251] op_sel:[0,1] op_sel_hi:[1,1]")
        else:
            for j in range(8): q.I(f"v_mul_f32 v{t+j}, v{b+j}, v251")
        for j in range(8): q.I(f"v_exp_f32 v{t+j}, v{t+j}")
        if pk:
            for j in range(0, 8, 2): q.I(f"v_pk_fma_f32 {v(t+j,2)}, {v(t+j,2)}, v[250:251], v[250:251] op_sel_hi:[1,0,0]")
        else:
            for j in range(8): q.I(f"v_fma_f32 v{t+j}, v{t+j}, v250, v250")
        for j in range(8): q.I(f"v_rcp_f32 v{t+j}, v{t+j}")
        if pk:
            for j in range(0, 8, 2): q.I(f"v_pk_mul_f32 {v(b+j,2)}, {v(b+j,2)}, {v(t+j,2)}")
        else:
            for j in range(8): q.I(f"v_mul_f32 v{b+j}, v{b+j}, v{t+j}")
        for j in range(4): q.I(f"v_cvt_pk_bf16_f32 v{b+j}, v{b+2*j}, v{b+2*j+1}")
        q.I(f"buffer_store_dwordx4 {v(b,4)}, v2, {WS}, s50 offen offset:{1024*half} sc1")
    q.I(f"v_bitop3_b32 v216, v5, v{a}, v{a+8} {X3}")
    q.I(f"buffer_store_dword v216, v4, {WS}, s49 offen sc1")
    return q.items
E0 = B0 + 84
g3[E0] = aug(0) + g3[E0]
g3[E0+1] = aug(1) + g3[E0+1]
g3[E0+2] = aug(2) + g3[E0+2]
S3.at(E0 - 1, stampi("p3 pass1 done", "mh"), 1.0)
S3.spread(silu(0, False) + ([flag_store(7)] if GATE & 8 else []), E0 + 2, E0 + 28)
LG = mk("s_waitcnt lgkmcnt(0)")
S3.spread(w2rd(0) + w2rd(1), B0 + 30, B0 + 54)
S3.at(B0 + 62, w2dma(2)); S3.at(B0 + 68, w2dma(3))
S3.spread(raw, B0 + 74, E0 + 16)
S3.spread(w2rd(2) + w2rd(3), E0 + 2, E0 + 12)
S3.at(E0 + 18, w2dma(4)); S3.at(E0 + 22, w2dma(5))
P.add(S3.emit())
P.add(aug(3))
I("s_barrier")
stamp("p3 gemm done", "e")
B4 = 16; CK = 240
CKR = list(range(240, 250)) + [217, 218, 219, 130]
C4 = [[ACC[0], ACC[1]], [ACC[2], ACC[3]]]
set5 = mk(f"""s_mul_i32 s{sA}, s{sTILE}, 56
s_xor_b32 s{sB}, s{sTILE}, 1
s_mul_i32 s{sB}, s{sB}, 56
s_add_u32 s51, s{sA}, s44
s_add_u32 s52, s{sB}, s44
s_add_u32 s53, s{sA}, s45
s_add_u32 s54, s{sB}, s45""")
for k in range(4):
    set5 += mk(f"s_lshl_b32 s{83+k}, s{51+k}, 8\ns_add_u32 s{83+k}, s{83+k}, {WS_C1}\ns_lshl_b32 s{51+k}, s{51+k}, 11\ns_add_u32 s{51+k}, s{51+k}, {WS_H1}")
def piece4(n):
    st, i = n // 7, n % 7; r = B4 + 8 * (n % 14); c = CKR[n % 14]
    return ([f"s_add_u32 s{sCt}, s{51+st}, {16384*i}\nbuffer_load_dwordx4 {v(r,4)}, v2, {WS}, s{sCt} offen sc1\nbuffer_load_dwordx4 {v(r+4,4)}, v2, {WS}, s{sCt} offen offset:1024 sc1",
             (f"s_add_u32 s{sCt}, s{83+st}, {4096*(i>>1)}\n" if i >= 2 else "") + f"buffer_load_dword v{c}, v4, {WS}, s{sCt if i >= 2 else 83+st} offen offset:{2048*(i&1)} sc1"],
            [r, r+4, c])
F4 = Fetch("f4", [piece4(n) for n in range(28)], nre=opt("re4", 1))
ND = opt("nd", 5)
rest = [6] + list(range(7 + NRAW, 14))
NB4 = min(len(rest), opt("nb4", 2))
t1 = sprinkle(set5 + silu(1, True), [w2dma(j) for j in rest[:NB4]], 0, 40)
G3 = gate("g3", vPO, vPF)
if GATE & 8:
    t1 = mk(f"s_add_u32 s{sFP}, s66, {WS_FLG + 3*131072}\nv_min_u32 v{vPO}, 24, v4") + t1
    t1 = sprinkle(t1, [G3.load(0)], opt("g3", 60), 1)
t2 = sprinkle(silu(2, True), ([G3.check(0, 0)] if GATE & 8 else []) + flat([F4.loadc(n) for n in range(ND)]), opt("f4s", 10), 6)
P.add(t1 + t2 + flat(w2rd(4) + w2rd(5)))
stamp("silu2 done", "me")
g4 = []
for n in range(28):
    st, i = n // 7, n % 7; hf, nu = st >> 1, st & 1
    for e in range(2):
        k = 2 * (7*hf + i) + e
        for mu in range(2):
            g4.append(mk(f"{MF} {v(C4[nu][mu],16)}, {a_(UA(7*hf+i)+8*e+4*mu,4)}, {v(B4+8*(n%14)+4*e,4)}, {'0' if k == 0 else v(C4[nu][mu],16)}"))
P.add(F4.check(0, ND - 1))
S = Sched(g4)
for n in range(28):
    if n + ND < 28: S.spread(F4.loadc(n + ND), 4*n, 4*n + 2)
    if n + 1 < 28: S.spread(F4.checkc(n + 1, min(27, n + ND)), 4*n + 2, 4*n + 4)
    if n in (6, 13, 20): S.at(4*n + 3, stampi(f"stage{n//7} done", "e"), 1.0)
S.spread(silu(3, False), 0, 26)
S.spread(w2rd(6), 4, 16)
S.spread([w2dma(j) for j in rest[NB4:]], opt("w2a", 28), opt("w2b", 44))
for j in range(7, 14): S.spread(w2rd(j), 28 + 6*(j-7), 34 + 6*(j-7))
S.at(80, mk(f"""s_waitcnt lgkmcnt(0)
s_barrier
s_and_b32 s{sA}, s{sW}, 1
s_lshl_b32 s{sA}, s{sA}, 14
s_add_u32 s{sA}, s{sA}, s{sW1M}
v_add_u32 v9, s{sA}, v2
v_xor_b32 v12, 16384, v9
s_lshl_b32 s{sA}, s{sW}, 14
v_add_u32 v13, s{sA}, v2"""))
def redw(nu): return [mk(f"ds_write_b128 v{9 if nu == 0 else 12}, {v(C4[nu][mu]+4*i,4)} offset:{32768*mu+1024*i}") for mu in range(2) for i in range(4)]
S.spread(redw(0), 88, 106)
unp = []
for i in range(8): unp += mk(f"v_lshlrev_b32 v{232+2*i}, 16, v{HR+i}\nv_and_b32 v{233+2*i}, s{sHIM}, v{HR+i}")
P.add(S.emit())
stamp("p4 gemm done", "me")
P.add(unp[:12])
P.add(flat(redw(1)))
P.add(unp[12:])
I("s_waitcnt lgkmcnt(0)\ns_barrier")
for s in range(4):
    for i in range(4): I(f"ds_read_b128 {v(16+16*s+4*i,4)}, v13 offset:{4096*s+1024*i}")
for s in range(4):
    for k in range(0, 16, 2): I(f"v_pk_add_f32 {v(232+k,2)}, {v(232+k,2)}, {v(16+16*s+k,2)}")
for i in range(8): I(f"v_cvt_pk_bf16_f32 v{96+i}, v{232+2*i}, v{232+2*i+1}")
I(f"""v_permlane32_swap_b32 v96, v98
v_permlane32_swap_b32 v97, v99
buffer_store_dwordx4 v[96:99], v7, {OUT}, s{sOUT} offen
v_permlane32_swap_b32 v100, v102
v_permlane32_swap_b32 v101, v103
buffer_store_dwordx4 v[100:103], v7, {OUT}, s{sOUT} offen offset:32""")
stamp("end", "mpohez")
I(f"""s_cmp_lg_u32 s2, 0
s_cbranch_scc1 L_exit
v_mov_b32 v9, 0""")
I(f"buffer_store_dword v5, v9, {WS}, 0 offen sc1", unc=True)
I("L_exit:")
if DIAG:
    I(f"s_cmp_lg_u32 s{sW}, {opt('dw', 0)}\ns_cbranch_scc1 L_end\ns_lshl_b32 s{sA}, s2, 7\ns_add_u32 s{sA}, s{sA}, {WS_DIAG}\nv_mov_b32 v9, 0", unc=True)
    for k in range(nstamp[0]):
        I(f"v_mov_b32 v10, s{sSTAMP+k}\nbuffer_store_dword v10, v9, {WS}, s{sA} offen offset:{4*k}", unc=True)
    I(f"v_mov_b32 v10, s{sSPIN}\nbuffer_store_dword v10, v9, {WS}, s{sA} offen offset:124", unc=True)
I("L_end:\ns_endpgm")
P.add(TAIL.items)

body, items = render(P.items)
hdr = open("cdna_kernels/" + NAME + ".s.ref").read().split("; Override launch")[0]
out = hdr + f"""; @launch grid=(256,1,1) block=(256,1,1) lds={LDS_SIZE}
.amdgcn_target "amdgcn-amd-amdhsa--gfx950"
.text
.globl {NAME}_kernel
.p2align 8
.type {NAME}_kernel,@function
{NAME}_kernel:
{body}.fill 2048, 4, 0xbf810000
.section .rodata,"a"
.p2align 6
.amdhsa_kernel {NAME}_kernel
  .amdhsa_next_free_vgpr 512
  .amdhsa_next_free_sgpr 102
  .amdhsa_accum_offset 256
  .amdhsa_group_segment_fixed_size 0
  .amdhsa_kernarg_size 80
  .amdhsa_user_sgpr_count 2
  .amdhsa_user_sgpr_kernarg_segment_ptr 1
  .amdhsa_system_sgpr_workgroup_id_x 1
.end_amdhsa_kernel
"""
open(sys.argv[1], "w").write(out)
n = sum(1 for i in items if i.cls not in ('label', 'dir'))
nu_ = sum(1 for i in items if i.cls not in ('label', 'dir') and i.uncounted)
print("instructions:", n, "(slow path", nu_, ") nops:", sum(1 for i in items if i.op == 's_nop'), "waits:", sum(1 for i in items if i.op == 's_waitcnt'), "stamps", nstamp[0])
```

```python
import sys, struct
from asmlib import *

NAME = "sequential_preLN__linear_kernel_hedgehog__dense_activation_silu__prompt"
DIAG = int(sys.argv[2]) if len(sys.argv) > 2 else 0
OPT = dict(a.split('=') for a in sys.argv[3:])
def opt(k, d): return int(OPT[k], 0) if k in OPT else d

WS_PART = 0x40000
WS_O    = 0x240000
WS_H    = 0x440000
WS_H1   = 0x680000
WS_DIAG = 0xE80000
WS_FLG  = 0xF00000
WS_SIZE = 0xF80000
XW = 28672
L_WV, L_WQ, L_WK, L_WO = 0, 28672, 57344, 86016
L_IMG = L_WK
L_KVX = 143360
L_XCH = 147456
L_SCR = 114688
L_AUG = 147456
LDS_SIZE = 163840
sW, sT, sH, sT2, sR = 3, 4, 5, 6, 7
X, WQKV, WPHI, WO, W1, W2, OUT, WS = [f"s[{i}:{i+3}]" for i in range(8, 40, 4)]
sKX, sKW = 40, 47
sHQ, sHIM = 54, 55
sRET = "s[56:57]"
sSPIN, sP, sU, sC, sMASK, sQ = 58, 59, 60, 61, 62, 63
sHI = "s[64:65]"
sLOG = "s[66:67]"
sONES, sTILE = 68, 69
sA, sB, sCt, sD = 70, 71, 72, 73
sRact, sXO = 74, 75
sWB, sWQ = 76, 77
sLAST, sFLAG, sWM, sPST, sPCK, sOST, sXRB, sOUT = 80, 81, 82, 83, 84, 85, 86, 87
sSTAMP = 88

def v(a, n=1): return f"v{a}" if n == 1 else f"v[{a}:{a+n-1}]"
def a_(a, n=1): return f"a{a}" if n == 1 else f"a[{a}:{a+n-1}]"
def fhex(x): return hex(struct.unpack('<I', struct.pack('<f', x))[0])
def flat(l): return sum(l, [])
P = Prog(); I = P.I
TAIL = Prog()
nstamp = [0]
SEL = OPT.get("st", "m").split(",")
def stampi(name, grp="m"):
    if not DIAG or (name != "start" and not (set(grp) & set(SEL))): return []
    k = nstamp[0]; nstamp[0] += 1
    assert k < 14
    print(f"stamp {k}: {name}")
    op = "s_memtime" if DIAG == 2 else "s_memrealtime"
    return mk(f"s_waitcnt lgkmcnt(0)\n{op} s[78:79]\ns_waitcnt lgkmcnt(0)\ns_mov_b32 s{sSTAMP+k}, s78")
def stamp(name, grp="m"): P.add(stampi(name, grp))
X3 = "bitop3:0x96"

def chk_code(regs, masked):
    r = list(regs)
    if masked: return f"v_bitop3_b32 v10, v{r[0]}, v{r[1]}, s{sMASK} bitop3:0x28\nv_cmp_ne_u32 vcc, v10, v6"
    if len(r) == 1: return f"v_cmp_ne_u32 vcc, v{r[0]}, v5"
    if len(r) == 2: t = f"v_xor_b32 v10, v{r[0]}, v{r[1]}"
    else:
        t = f"v_bitop3_b32 v10, v{r[0]}, v{r[1]}, v{r[2]} {X3}"
        if len(r) == 4: t += f"\nv_xor_b32 v10, v10, v{r[3]}"
    return t + "\nv_cmp_ne_u32 vcc, v10, v5"

GUARD = f"s_add_u32 s{sSPIN}, s{sSPIN}, 1\ns_cmp_gt_u32 s{sSPIN}, 0x40000\ns_cbranch_scc1 L_end\ns_waitcnt vmcnt(0)"
class Fetch:
    def __init__(self, name, pieces, masked=False, nre=1):
        self.name, self.pieces, self.masked, self.nre = name, pieces, masked, nre
    def loadc(self, i): return [mk(c) for c in self.pieces[i][0]]
    def load(self, i): return flat(self.loadc(i))
    def stub(self, i, last):
        n = self.name
        rel = "\n".join(c for j in range(i, min(last, i + self.nre - 1) + 1) for c in self.pieces[j][0])
        return mk(f"s_cbranch_vccz L_{n}_ok{i}\nL_{n}_r{i}:") + \
               mk(rel + "\n" + GUARD + "\n" + chk_code(self.pieces[i][1], self.masked) + f"\ns_cbranch_vccnz L_{n}_r{i}", unc=True) + mk(f"L_{n}_ok{i}:")
    def checkc(self, i, last):
        return [[x] for x in mk(chk_code(self.pieces[i][1], self.masked))] + [self.stub(i, last)]
    def check(self, i, last): return flat(self.checkc(i, last))

sFS, sFP = 80, 81
vL512, vPO, vPF = 0, 142, 143
def flag_store(nl): return mk(f"s_mov_b64 exec, {(1 << nl) - 1}\nbuffer_store_dword v5, v{vL512}, {WS}, s{sFS} offen sc1\ns_mov_b64 exec, -1")
def gate(name, vo, vf): return Fetch(name, [([f"buffer_load_dword v{vf}, v{vo}, {WS}, s{sFP} offen sc1"], [vf])])
GATE = opt("gate", 0)

def cost(it):
    if isinstance(it, WaitTag): return 4
    if it.cls in ('label', 'dir') or it.uncounted: return 0
    if it.op.startswith(TRANS) or 'permlane' in it.op: return 8
    if it.op.startswith('ds_write_b128'): return 28
    if it.cls == 'mfma': return 8
    return 4.5
class Sched:
    def __init__(self, groups):
        self.groups = groups; self.gap = [[] for _ in groups]; self.seq = 0
    def at(self, g, items, frac=0.5):
        self.seq += 1; self.gap[g].append((frac, self.seq, list(items)))
    def spread(self, chunks, a, b):
        chunks = [c if isinstance(c, list) else [c] for c in chunks]
        tot = sum(cost(i) for c in chunks for i in c) or 1; acc = 0
        for c in chunks:
            pos = a + (b - a) * acc / tot
            self.at(int(pos), c, pos - int(pos))
            acc += sum(cost(i) for i in c)
    def emit(self):
        out = []
        for g, gp in zip(self.groups, self.gap):
            out += g
            for _, _, c in sorted(gp, key=lambda x: (x[0], x[1])): out += c
        return out
def sprinkle(items, groups, start, step):
    out = []; groups = list(groups); nxt = start
    for i, it in enumerate(items):
        if groups and i == nxt: out += groups.pop(0); nxt += step
        out.append(it)
    for g in groups: out += g
    return out

def softmax(p, t, o, pk):
    q = Prog(); J = q.I
    m, n = t + 14, t + 15; r0, r1 = t + 16, t + 17
    J(f"v_max3_f32 v{m}, v{p}, v{p+1}, v{p+2}\nv_max3_f32 v{n}, -v{p}, -v{p+1}, -v{p+2}")
    for k in range(3, 13, 2):
        J(f"v_max3_f32 v{m}, v{m}, v{p+k}, v{p+k+1}\nv_max3_f32 v{n}, v{n}, -v{p+k}, -v{p+k+1}")
    J(f"""v_max_f32 v{m}, v{m}, v{p+13}
v_max_f32 v{n}, v{n}, -v{p+13}
v_permlane32_swap_b32 v{m}, v{n}
v_max_f32 v{m}, v{m}, v{n}
v_mul_f32 v{m}, v253, v{m}
v_mov_b32 v{n}, v{m}
v_permlane32_swap_b32 v{m}, v{n}""")
    if pk:
        for k in range(0, 14, 2):
            J(f"v_pk_fma_f32 {v(t+k,2)}, {v(p+k,2)}, v[252:253], {v(m,2)} op_sel_hi:[1,0,0]")
            J(f"v_pk_fma_f32 {v(p+k,2)}, {v(p+k,2)}, v[252:253], {v(m,2)} op_sel:[0,1,1] op_sel_hi:[1,1,1]")
        for k in range(14): J(f"v_exp_f32 v{t+k}, v{t+k}")
        for k in range(14): J(f"v_exp_f32 v{p+k}, v{p+k}")
        J(f"v_pk_add_f32 {v(m,2)}, {v(t,2)}, {v(t+2,2)}\nv_pk_add_f32 {v(r0,2)}, {v(p,2)}, {v(p+2,2)}")
        for k in range(4, 14, 2):
            J(f"v_pk_add_f32 {v(m,2)}, {v(m,2)}, {v(t+k,2)}\nv_pk_add_f32 {v(r0,2)}, {v(r0,2)}, {v(p+k,2)}")
        J(f"v_add_f32 v{m}, v{m}, v{n}\nv_add_f32 v{n}, v{r0}, v{r1}")
    else:
        for k in range(14):
            J(f"v_fma_f32 v{t+k}, v{p+k}, v252, v{m}\nv_fma_f32 v{p+k}, v{p+k}, v253, v{n}\nv_exp_f32 v{t+k}, v{t+k}\nv_exp_f32 v{p+k}, v{p+k}")
            if k >= 2:
                a0 = f"v{t}" if k == 2 else f"v{r0}"; a1 = f"v{p}" if k == 2 else f"v{r1}"
                J(f"v_add_f32 v{r0}, {a0}, v{t+k-1}\nv_add_f32 v{r1}, {a1}, v{p+k-1}")
        J(f"v_add_f32 v{m}, v{r0}, v{t+13}\nv_add_f32 v{n}, v{r1}, v{p+13}")
    J(f"""v_permlane32_swap_b32 v{m}, v{n}
v_add_f32 v{m}, v{m}, v{n}
v_rcp_f32 v{m}, v{m}
v_mov_b32 v{n}, v{m}
v_permlane32_swap_b32 v{m}, v{n}""")
    if pk:
        for k in range(0, 14, 2):
            J(f"v_pk_mul_f32 {v(t+k,2)}, {v(t+k,2)}, {v(m,2)} op_sel_hi:[1,0]")
            J(f"v_pk_mul_f32 {v(p+k,2)}, {v(p+k,2)}, {v(m,2)} op_sel:[0,1] op_sel_hi:[1,1]")
    else:
        for k in range(14): J(f"v_mul_f32 v{t+k}, v{t+k}, v{m}\nv_mul_f32 v{p+k}, v{p+k}, v{n}")
    for k in range(7): J(f"v_cvt_pk_bf16_f32 v{o+k}, v{t+2*k}, v{t+2*k+1}")
    for k in range(7): J(f"v_cvt_pk_bf16_f32 v{o+7+k}, v{p+2*k}, v{p+2*k+1}")
    return q.items

def dmag(vaddrs, srd, sbase, sadd, mbase, madd, tag, sreg=None):
    sr = sCt if sreg is None else sreg
    ch = [mk(f"buffer_load_dwordx4 v{a}, {srd}, s{sr} offen offset:{1024*i} lds", tag=tag) for i, a in enumerate(vaddrs)]
    ch[0] = mk(f"s_add_u32 m0, s{mbase}, {madd}\ns_add_u32 s{sr}, s{sbase}, {sadd}") + ch[0]
    return ch

MF = "v_mfma_f32_32x32x16_bf16"
RINGA, NRING = 224, 8
def gemm_lds(steps, ahead=6):
    def rd(i):
        av, o1, o2 = steps[i][:3]; r = RINGA + 4 * (i % NRING)
        return mk(f"ds_read_b64_tr_b16 {a_(r,2)}, v{av} offset:{o1}\nds_read_b64_tr_b16 {a_(r+2,2)}, v{av} offset:{o2}")
    rds = [rd(i) for i in range(len(steps))]
    groups = []
    for i, st in enumerate(steps):
        r = RINGA + 4 * (i % NRING); b, acc, first, swap = st[3]
        A, B = a_(r, 4), v(b, 4)
        if swap: A, B = B, A
        g = mk(f"{MF} {v(acc,16)}, {A}, {B}, {'0' if first else v(acc,16)}")
        if i % 2 == 0 and i + 1 < len(steps):
            r2 = RINGA + 4 * ((i + 1) % NRING); g[0].extra = [('a', r2 + x) for x in range(4)]
        groups.append(g + (rds[i + ahead] if i + ahead < len(steps) else []))
    return flat(rds[:ahead]), groups

MAP1 = [f"""s_and_b32 s{sT}, s{sA}, 3
s_lshl_b32 s{sT}, s{sT}, 2
s_and_b32 s{sD}, s{sB}, 3
s_add_u32 s{sT}, s{sT}, s{sD}
s_lshr_b32 s{sP}, s{sA}, 2
s_lshl_b32 s{sH}, s{sP}, 3
s_lshr_b32 s{sD}, s{sB}, 2
s_add_u32 s{sH}, s{sH}, s{sD}
s_cmp_eq_u32 s{sD}, 7
s_cselect_b32 s{sD}, 3, s{sD}
s_lshl_b32 s{sKX}, s{sD}, 7
""",
f"""s_lshl_b32 s{sT}, s{sA}, 1
s_lshr_b32 s{sD}, s{sB}, 4
s_add_u32 s{sT}, s{sT}, s{sD}
s_mov_b32 s{sH}, s{sCt}
s_and_b32 s{sD}, s{sH}, 7
s_cmp_eq_u32 s{sD}, 7
s_cselect_b32 s{sD}, 3, s{sD}
s_lshl_b32 s{sKX}, s{sD}, 7
""",
f"""s_mov_b32 s{sT}, s{sCt}
s_lshl_b32 s{sH}, s{sA}, 1
s_lshr_b32 s{sD}, s{sB}, 4
s_add_u32 s{sH}, s{sH}, s{sD}
s_and_b32 s{sD}, s{sH}, 7
s_mul_i32 s{sD}, s{sD}, 3
s_mul_i32 s{sP}, s{sD}, 37
s_lshr_b32 s{sP}, s{sP}, 8
s_mul_i32 s{sP}, s{sP}, 7
s_sub_u32 s{sD}, s{sD}, s{sP}
s_lshl_b32 s{sKX}, s{sD}, 7
"""][opt("map1", 0)]
if DIAG: I("s_memrealtime s[90:91]")
I(f"""s_cmp_ge_u32 s2, 256
s_cbranch_scc1 L_end
s_load_dwordx2 s[8:9], s[0:1], 0
s_load_dwordx2 s[12:13], s[0:1], 8
s_load_dwordx2 s[16:17], s[0:1], 16
s_load_dwordx2 s[20:21], s[0:1], 24
s_load_dwordx2 s[24:25], s[0:1], 40
s_load_dwordx2 s[28:29], s[0:1], 48
s_load_dwordx2 s[32:33], s[0:1], 56
s_load_dwordx2 s[36:37], s[0:1], 72
s_getpc_b64 s[76:77]
v_and_b32 v1, 63, v0
v_lshrrev_b32 v2, 6, v0
s_and_b32 s{sA}, s2, 7
v_readfirstlane_b32 s{sW}, v2
s_lshr_b32 s{sB}, s2, 3
s_and_b32 s{sCt}, s{sB}, 15
v_lshlrev_b32 v3, 4, v1
v_lshl_add_u32 v3, v2, 6, v3
v_lshl_add_u32 v3, v2, 4, v3
v_add_u32 v3, s{sCt}, v3
v_lshlrev_b32 v3, 7, v3
s_and_b32 s76, s76, 0xffffff00
s_mov_b64 exec, 31
global_load_dword v236, v3, s[76:77]
s_mov_b64 exec, -1
{MAP1}
s_mov_b32 s10, 1835008
s_mov_b32 s11, 0x20000
v_lshrrev_b32 v2, 3, v1
v_mul_u32_u24 v244, 896, v2
v_lshrrev_b32 v2, 4, v1
v_and_b32 v8, 7, v1
v_xor_b32 v2, v2, v8
v_lshl_add_u32 v244, v2, 4, v244
v_xor_b32 v245, 64, v244
v_add_u32 v245, {7168-1024}, v245
v_add_u32 v246, {2*(7168-1024)}, v244
v_add_u32 v247, {2*(7168-1024)}, v245
s_lshl_b32 s{sQ}, s{sT}, 2
s_add_u32 s{sQ}, s{sQ}, s{sW}
s_mul_i32 s{sQ}, s{sQ}, {32*896}
s_lshr_b32 s{sXO}, s{sW}, 1
s_add_u32 s{sXO}, s{sXO}, s{sW}
s_mul_i32 s{sXO}, s{sXO}, {XW}
s_waitcnt lgkmcnt(0)""")
stamp("start")
def xdma(g): return flat(dmag([244, 245, 246, 247], X, sQ, f"s{sKX+g}", sXO, 4096*g, f"x{g}"))
P.add(xdma(0))
I(f"""s_mov_b32 s14, {0 if opt('abl',0)&8 else 1204224}
s_mov_b32 s15, 0x20000
v_and_b32 v8, 3, v1""")
def wtouch(mask16, dst):
    m = mask16 | (mask16 << 16)
    return mk(f"s_mov_b32 exec_lo, {hex(m)}\ns_mov_b32 exec_hi, {hex(m)}\nbuffer_load_dword v{dst}, v255, {WQKV}, 0 offen\ns_mov_b64 exec, -1")
def kxs(g): return mk(f"s_add_u32 s{sKX+g}, s{sKX+g-1}, 128\ns_cmp_ge_u32 s{sKX+g}, 896\ns_cselect_b32 s{sD}, 896, 0\ns_sub_u32 s{sKX+g}, s{sKX+g}, s{sD}")
NXE = opt("nxe", 2)
if opt("wtfirst", 1) and opt("wt0", 0): P.add(wtouch(opt("wt0", 0), 237))
for g in range(1, NXE): P.add(kxs(g) + xdma(g))
if not opt("wtfirst", 1) and opt("wt0", 0): P.add(wtouch(opt("wt0", 0), 237))
if opt("wsoff", 0): I(f"s_add_u32 s36, s36, {opt('wsoff', 0)}\ns_addc_u32 s37, s37, 0")
I(f"""s_mov_b32 s38, {WS_SIZE}
s_mov_b32 s39, 0x20000
s_mov_b32 s18, 25088
s_mov_b32 s19, 0x20000
s_mov_b32 s22, {0 if opt('abl',0)&4 else 401408}
s_mov_b32 s23, 0x20000
s_xor_b32 s{sHQ}, s{sH}, 1
v_mov_b32 v11, 0
v_lshlrev_b32 v6, 7, v1""")
I(f"buffer_load_dword v5, v11, {WS}, 0 offen sc1")
I(f"""s_lshl_b32 s{sD}, s2, 2
s_add_u32 s{sD}, s{sD}, s{sW}
s_lshl_b32 s{sD}, s{sD}, 9
s_and_b32 s{sCt}, s{sH}, 14
s_mul_i32 s{sCt}, s{sCt}, 1568
s_mul_i32 s{sP}, s{sW}, 896
s_add_u32 s{sCt}, s{sCt}, s{sP}
s_mov_b64 exec, 15
buffer_load_dword v238, v6, {WO}, s{sD} offen
s_mov_b64 exec, 127
buffer_load_dword v239, v6, {WPHI}, s{sCt} offen
s_mov_b64 exec, -1""")
for g in range(NXE, 7): P.add(kxs(g))
I(f"""s_lshl_b32 s{sT2}, s{sA}, 1
s_lshr_b32 s{sD}, s{sB}, 4
s_add_u32 s{sT2}, s{sT2}, s{sD}
s_and_b32 s{sRact}, s{sB}, 15
s_min_u32 s{sR}, s{sRact}, 13
s_mov_b32 s26, {0 if opt('abl',0)&1 else 1605632}
s_mov_b32 s27, 0x20000
s_mov_b32 s30, {0 if opt('abl',0)&2 else 1605632}
s_mov_b32 s31, 0x20000
s_mov_b32 s34, 1835008
s_mov_b32 s35, 0x20000
s_mov_b32 s64, 0
s_mov_b32 s65, -1
s_mov_b32 s{sONES}, 0x3f803f80
s_mov_b32 s{sMASK}, 0xbfffbfff
s_mov_b32 s{sHIM}, 0xffff0000
s_mov_b32 s{sSPIN}, 0
s_cmp_ge_u32 s{sR}, 7
s_cselect_b32 s{sU}, 1, 0
s_mul_i32 s{sA}, s{sU}, 7
s_sub_u32 s{sC}, s{sR}, s{sA}""")
sT3 = 67
if opt("map3", 0):
    I(f"""s_and_b32 s{sA}, s{sT2}, 12
s_and_b32 s{sD}, s{sT2}, 1
s_lshl_b32 s{sD}, s{sD}, 1
s_add_u32 s{sA}, s{sA}, s{sD}
s_add_u32 s{sT3}, s{sA}, s{sU}
s_bfe_u32 s{sA}, s{sT2}, 0x10001
s_mul_i32 s{sA}, s{sA}, 7
s_add_u32 s{sR}, s{sA}, s{sC}""")
else: I(f"s_mov_b32 s{sT3}, s{sT2}")
for g in range(7): I(f"s_mul_i32 s{sKW+g}, s{sKX+g}, {172032//128}")
I(f"""s_mul_i32 s{sWB}, s{sH}, 56
s_mul_i32 s{sD}, s{sW}, 43008
s_add_u32 s{sWB}, s{sWB}, s{sD}
s_mul_i32 s{sWQ}, s{sHQ}, 56
s_add_u32 s{sWQ}, s{sWQ}, s{sD}
s_add_u32 s{sWB}, s{sWB}, 896
s_lshl_b32 s{sWM}, s{sW}, 10
s_lshl_b32 s{sA}, s{sH}, 4
s_add_u32 s{sA}, s{sA}, s{sT}
s_mul_i32 s{sA}, s{sA}, 5120
s_add_u32 s{sA}, s{sA}, {WS_PART}
s_add_u32 s{sPST}, s{sA}, s{sWM}
s_lshl_b32 s{sD}, s{sW}, 8
s_add_u32 s{sA}, s{sA}, s{sD}
s_add_u32 s{sPCK}, s{sA}, 4096
s_lshl_b32 s{sA}, s{sT}, 2
s_add_u32 s{sA}, s{sA}, s{sW}
s_lshl_b32 s{sA}, s{sA}, 15
s_lshl_b32 s{sB}, s{sHQ}, 11
s_add_u32 s{sA}, s{sA}, s{sB}
s_add_u32 s{sOST}, s{sA}, {WS_O}
s_lshl_b32 s{sA}, s{sT2}, 2
s_lshl_b32 s{sB}, s{sU}, 1
s_add_u32 s{sA}, s{sA}, s{sB}
s_and_b32 s{sB}, s{sW}, 1
s_add_u32 s{sTILE}, s{sA}, s{sB}
s_mul_i32 s{sA}, s{sA}, {32*896}
s_lshl_b32 s{sB}, s{sC}, 7
s_add_u32 s{sA}, s{sA}, s{sB}
s_mul_i32 s{sD}, s{sW}, {16*896}
s_add_u32 s{sXRB}, s{sA}, s{sD}
s_mul_i32 s{sA}, s{sTILE}, {32*896}
s_add_u32 s{sA}, s{sA}, s{sB}
s_lshr_b32 s{sB}, s{sW}, 1
s_lshl_b32 s{sB}, s{sB}, 6
s_add_u32 s{sOUT}, s{sA}, s{sB}
s_mul_i32 s{sP}, s{sHQ}, {16*5120}
s_add_u32 s{sP}, s{sP}, {WS_PART}""")
WPK, WPQ, WPT = 192, 200, 208
vWPA, vWPB, vKVX, vIMW, vKA, vKB, vFPD, vFPC, vWO0, vWO1, vXRD0, vXRD1, vXRR, vWOR = range(128, 142)
I(f"""v_lshrrev_b32 v3, 5, v1
v_lshlrev_b32 v2, 4, v1
v_lshlrev_b32 v4, 2, v1
v_bfe_u32 v11, v1, 3, 2
v_lshl_add_u32 v11, v11, 2, v8
v_bfe_u32 v12, v1, 2, 1
v_mul_u32_u24 v12, 14, v12
v_min_u32 v13, 13, v11
v_add_u32 v13, v13, v12
v_lshlrev_b32 v13, 1, v13
v_mul_u32_u24 v14, 224, v3
v_add_u32 v{vWPA}, v13, v14
v_lshl_add_u32 v{vWPB}, v3, 20, v{vWPA}
v_add_u32 v12, v12, v11
v_cmp_gt_u32 vcc, 14, v11
v_lshrrev_b32 v7, 2, v1
v_mul_u32_u24 v7, 2688, v7
v_cndmask_b32 v12, 28, v12, vcc
v_and_b32 v13, 15, v12
v_lshlrev_b32 v13, 4, v13
v_lshrrev_b32 v12, 4, v12
v_lshl_add_u32 v13, v12, 3, v13
v_lshl_add_u32 v13, v3, 8, v13
v_add_u32 v{vKVX}, {L_KVX}, v13
v_lshlrev_b32 v11, 4, v8
v_min_u32 v11, 40, v11
v_add_u32 v7, v7, v11
v_and_b32 v9, 31, v1
v_lshlrev_b32 v240, 7, v9
v_bfe_u32 v11, v1, 1, 3
v_xor_b32 v11, v11, v3
v_lshl_add_u32 v240, v11, 4, v240
v_add_u32 v240, s{sXO}, v240
v_xor_b32 v241, 32, v240
v_xor_b32 v242, 64, v240
v_xor_b32 v243, 96, v240
v_mov_b32 v250, 0
v_mov_b32 v251, 0
s_lshl_b32 s{sA}, s{sW}, 5
v_add_u32 v10, s{sA}, v9
v_mul_u32_u24 v10, 208, v10
v_mul_u32_u24 v11, 96, v3
v_add_u32 v{vIMW}, v10, v11
v_lshrrev_b32 v10, 4, v1
v_bfe_u32 v15, v1, 2, 2
v_lshl_add_u32 v10, v10, 3, v15
v_mul_u32_u24 v10, 208, v10
v_and_b32 v11, 1, v1
v_mul_u32_u24 v11, 96, v11
v_add_u32 v10, v10, v11
v_bfe_u32 v11, v1, 1, 1
v_lshl_add_u32 v10, v11, 3, v10
v_add_u32 v{vKB}, {L_IMG}, v10
s_lshl_b32 s{sA}, s{sW}, 4
v_add_u32 v{vKA}, s{sA}, v{vKB}
v_add_u32 v{vFPD}, s{sWM}, v2
s_lshl_b32 s{sD}, s{sW}, 8
s_add_u32 s{sD}, s{sD}, 4096
v_add_u32 v{vFPC}, s{sD}, v4
v_lshrrev_b32 v12, 3, v1
v_mul_u32_u24 v14, 896, v12
v_and_b32 v13, 7, v1
v_xor_b32 v12, v12, v13
v_lshl_add_u32 v{vXRD0}, v12, 4, v14
v_add_u32 v{vXRD1}, {7168-1024}, v{vXRD0}
v_bfe_u32 v12, v1, 4, 1
v_lshlrev_b32 v11, 2, v12
v_xor_b32 v11, v11, v13
v_lshl_add_u32 v{vWO0}, v11, 4, v14
v_add_u32 v{vWO1}, {7168-1024}, v{vWO0}
s_and_b32 s{sA}, s{sW}, 1
s_lshl_b32 s{sA}, s{sA}, 12
s_add_u32 s{sA}, s{sA}, {L_XCH}
v_lshlrev_b32 v10, 7, v9
v_lshl_add_u32 v10, v3, 3, v10
v_add_u32 v10, s{sA}, v10
s_lshr_b32 s{sA}, s{sW}, 1
s_lshl_b32 s{sB}, s{sA}, 2
v_xor_b32 v13, s{sB}, v13
v_lshl_add_u32 v{vXRR}, v13, 4, v10
v_mad_u32_u24 v10, v3, 14, v15
v_lshlrev_b32 v10, 7, v10
v_bfe_u32 v13, v1, 3, 1
v_xor_b32 v13, v13, v3
v_xor_b32 v13, s{sA}, v13
v_lshl_add_u32 v10, v13, 6, v10
v_lshl_add_u32 v10, v12, 5, v10
v_lshl_add_u32 v10, v8, 3, v10
s_mul_i32 s{sA}, s{sA}, {8*28*128}
s_add_u32 s{sA}, s{sA}, {L_WO}
v_add_u32 v{vWOR}, s{sA}, v10
v_lshl_add_u32 v11, v3, 3, v15
v_lshlrev_b32 v11, 6, v11
v_lshl_add_u32 v12, v12, 2, v8
v_cmp_lt_u32 vcc, 5, v12
v_xor_b32 v13, 1, v12
s_mul_i32 s{sA}, s{sH}, 1568
s_mul_i32 s{sB}, s{sHQ}, 1568
v_cndmask_b32 v12, v12, v13, vcc
v_lshl_add_u32 v11, v12, 3, v11
v_add_u32 v13, {L_WK}, v11""")
I(f"""v_bfe_u32 v10, v1, 2, 1
v_bfe_u32 v14, v1, 4, 1
v_lshl_add_u32 v10, v14, 1, v10
v_cmp_eq_u32 vcc, v10, v3
v_and_b32 v10, 1, v1
v_lshlrev_b32 v10, 4, v10
v_mov_b32 v14, 0x3f80
v_lshlrev_b32 v10, v10, v14
v_cndmask_b32 v10, 0, v10, vcc
v_bfe_u32 v14, v1, 3, 1
v_bfe_u32 v15, v1, 1, 1
v_lshl_add_u32 v14, v14, 1, v15""")
for q in range(4): I(f"v_cmp_eq_u32 vcc, {q}, v14\nv_cndmask_b32 v15, 0, v10, vcc\nv_accvgpr_write_b32 a{220+q}, v15")
I(f"""v_lshlrev_b32 v{vL512}, 9, v1
s_lshl_b32 s{sFS}, s{sH}, 13
s_lshl_b32 s{sD}, s{sW}, 7
s_add_u32 s{sD}, s{sD}, {WS_FLG}
s_add_u32 s{sFS}, s{sFS}, s{sD}
s_lshl_b32 s{sCt}, s{sT}, 2
s_add_u32 s{sFS}, s{sFS}, s{sCt}
s_lshl_b32 s{sFP}, s{sHQ}, 13
s_add_u32 s{sFP}, s{sFP}, s{sD}
s_lshl_b32 s{sCt}, s{sT}, 9
s_add_u32 s{sFP}, s{sFP}, s{sCt}
v_and_b32 v{vPO}, 60, v4""")
stamp("setup done", "p")
def wphi(dst, tmp, so):
    q = []
    for t in range(2):
        for j in range(8):
            d = 16 * t + 8 * (j >> 2) + (j & 3)
            av = vWPB if (t == 1 and j >= 4) else vWPA
            r = (dst if j % 2 == 0 else tmp) + 4 * t + j // 2
            op = "buffer_load_short_d16" if j % 2 == 0 else "buffer_load_short_d16_hi"
            q += mk(f"{op} v{r}, v{av}, {WPHI}, s{so} offen offset:{d*56}")
    return q
def wkdma(g): return flat(dmag([7], WQKV, sWB, f"s{sKW+g}", sWM, L_WK + 4096*g, f"wk{g}"))
def wvdma(g): return flat(dmag([9], WQKV, sWB, f"s{sKW+g}", sWM, L_WV + 4096*g, f"wv{g}"))
def wqdma(g): return flat(dmag([7], WQKV, sWQ, f"s{sKW+g}", sWM, L_WQ + 4096*g, f"wq{g}"))
I("v_add_u32 v9, 896, v7")
XF = 16
NX0 = opt("nx0", 4)
if opt("wt1", 0): P.add(wtouch(opt("wt1", 0), 249))
for g in range(NXE, NX0): P.add(xdma(g))
pend = [xdma(g) for g in range(NX0, 7)]
wkl = [wkdma(g) for g in range(7)]
if opt("wt2", 0): pend[-1] = pend[-1] + wtouch(opt("wt2", 0), 248)
pend.append(wkl.pop(0) + wphi(WPK, WPT, sA))
pend.append(wkl.pop(0) + wphi(WPQ, WPT+8, sB))
while len(pend) < 7: pend.append(wkl.pop(0))
def xrd(g): return flat([mk(f"ds_read_b128 {v(XF+16*g+4*e,4)}, v{240+e} offset:{4096*g}") for e in range(4)])
P.wait("x0"); P.add(xrd(0))
for g in range(7):
    if pend: P.add(pend.pop(0))
    if g + 1 < 7: P.wait(f"x{g+1}"); P.add(xrd(g + 1))
    for i in range(16):
        r = XF + 16*g + i
        I(f"v_dot2c_f32_bf16 v250, s{sONES}, v{r}\nv_dot2c_f32_bf16 v251, v{r}, v{r}")
    if g == 0: stamp("x0 done", "p")
for x_ in pend: P.add(x_)
stamp("x stats done", "mp")
I(f"""v_permlane32_swap_b32 v250, v251
v_or_b32 v5, 1, v5
s_mov_b32 s{sA}, 0x9E3779B5
v_add_f32 v250, v250, v251
v_mul_f32 v250, {fhex(-1/448)}, v250
v_mov_b32 v251, v250
v_mul_lo_u32 v5, v5, s{sA}
s_mov_b32 s{sA}, 0x3f80
v_permlane32_swap_b32 v250, v251
s_mov_b32 s{sB}, 0x3f800000""")
fin = mk(f"""v_fma_f32 v251, -v250, v250, -v251
v_max_f32 v251, 0, v251
v_add_f32 v251, 0x3727c5ac, v251
v_rsq_f32 v251, v251
s_lshl_b32 s{sQ}, s{sC}, 7
s_mul_i32 s{sD}, s{sW}, {16*896}
v_mul_f32 v252, 0x3fb8aa3b, v251
v_mul_f32 v253, 0xbfb8aa3b, v251
s_add_u32 s{sQ}, s{sQ}, s{sD}
s_lshl_b32 s{sXO}, s{sW}, 11""")
if opt("noid", 1): fin = [mk(f"s_cmp_ge_u32 s{sRact}, 14\ns_cselect_b32 s22, 0, s22")] + fin
ACK = 144; ACV = 160; PK = 176; IMG = 208; TMP = 232
def norm(t):
    q = Prog(); tb = TMP + 8 * (t & 1)
    for i in range(4):
        r = XF + 4 * t + i
        q.I(f"v_dot2_f32_bf16 v{tb+2*i}, v{r}, s{sA}, v250\nv_dot2_f32_bf16 v{tb+2*i+1}, v{r}, s{sB}, v250")
    return q.items
def normc(t):
    tb = TMP + 8 * (t & 1)
    return flat([mk(f"v_cvt_pk_bf16_f32 v{XF+4*t+i}, v{tb+2*i}, v{tb+2*i+1}") for i in range(4)])
def l2t(srd, k, dst):
    return mk(f"""s_lshr_b32 s{sCt}, s2, 3
s_lshl_b32 s{sCt}, s{sCt}, 2
s_add_u32 s{sCt}, s{sCt}, s{sW}
s_mul_i32 s{sCt}, s{sCt}, {98*128}
s_mov_b32 exec_hi, 0x1ffff
s_add_u32 s{sCt}, s{sCt}, {k*49*128}
buffer_load_dword v{dst}, v6, {srd}, s{sCt} offen
s_mov_b32 exec_hi, -1""")
L2A, L2B = opt("l2a", -1), opt("l2b", -1)
ns = norm(0)
for t in range(1, 28): ns += norm(t) + normc(t - 1)
ns += normc(27)
NBAR = opt("nbar", 100)
wvl = [wvdma(k) for k in range(7)]
P.add(sprinkle(ns[:NBAR], wkl, 0, opt("wkstep", 30)))
I("s_barrier")
NWV0 = opt("nwv0", 3)
P.add(sprinkle(ns[NBAR:], [wvl.pop(0) for _ in range(NWV0)], opt("wv0", 60), opt("wvstep", 60)))
P.wait(*[f"wk{k}" for k in range(7)]); I("s_barrier")
stamp("wk landed", "p")
AH = 6
pro, gk = gemm_lds([(13, 1024*t, 1024*t + 256, (XF + 4*t, ACK, t == 0, False)) for t in range(28)], AH)
P.add(pro)
S = Sched(gk)
S.spread(wvl, 0, opt("wve", 28))
for k, ps in enumerate((L2A, L2B)):
    if 0 <= ps < 28: S.at(ps, l2t(W1, k, 248 + k))
S.spread(fin + flat([mk(f"v_or_b32 v{WPK+q}, v{WPK+q}, v{WPT+q}\nv_or_b32 v{WPQ+q}, v{WPQ+q}, v{WPT+8+q}") for q in range(8)]), 2, 26)
P.add(S.emit())
def phi_pre(acc, wp):
    q = Prog()
    for i in range(8): q.I(f"v_cvt_pk_bf16_f32 v{acc+i}, v{acc+2*i}, v{acc+2*i+1}")
    q.I(f"{MF} {v(PK,16)}, {v(wp,4)}, {v(acc,4)}, 0\n{MF} {v(PK,16)}, {v(wp+4,4)}, {v(acc+4,4)}, {v(PK,16)}")
    return q.items
stamp("k gemm done", "mp")
wql = [wqdma(k) for k in range(7)]
P.add(wql.pop(0))
P.add(phi_pre(ACK, WPK))
imw = flat([mk(f"ds_write_b128 v{vIMW}, {v(IMG+4*i,4)} offset:{L_IMG+16*i}") for i in range(3)]) + mk(f"ds_write_b64 v{vIMW}, {v(IMG+12,2)} offset:{L_IMG+48}")
touch = mk(f"""s_mul_i32 s{sA}, s2, {52*128}
s_mul_i32 s{sB}, s{sW}, {13*128}
s_add_u32 s{sA}, s{sA}, s{sB}
s_mov_b64 exec, 0x1fff
buffer_load_dword v255, v6, {W1}, s{sA} offen
buffer_load_dword v254, v6, {W2}, s{sA} offen
s_mov_b64 exec, -1""")
smk = sprinkle(softmax(PK, TMP, IMG, True), [wql.pop(0) for _ in range(opt("nwq0", 3))], 10, opt("wqs", 40))
P.add(smk)
P.wait(*[f"wv{k}" for k in range(7)]); I("s_barrier")
stamp("softmax k done", "p")
pro, gv = gemm_lds([(11, L_WV + 1024*t, L_WV + 1024*t + 256, (XF + 4*t, ACV, t == 0, False)) for t in range(28)], AH)
P.add(pro)
S = Sched(gv)
S.spread(imw, 2, 10)
wo_l = [flat(dmag([vWO0, vWO1], WO, sQ, i*64*896, sXO, L_WO + 8192*i, "wo")) for i in range(7)] + [flat(dmag([vXRD0, vXRD1], X, sXRB, 0, sXO, L_XCH, "wo"))]
S.spread(wql, 0, 14)
if L2A >= 0: touch = [x for x in touch if W1 not in x.text]
if opt("touch", 1): S.at(15, touch)
for k, ps in enumerate((L2A, L2B)):
    if 200 <= ps < 228: S.at(ps - 200, l2t(W1, k, 248 + k))
S.spread([wo_l.pop(0) for _ in range(opt("nwo0", 0))], 17, 28)
P.add(S.emit())
for k in range(0, 16, 2): I(f"v_pk_mul_f32 {v(ACV+k,2)}, {v(ACV+k,2)}, v[250:251] op_sel:[0,1] op_sel_hi:[1,1]")
I(f"v_cndmask_b32 v{ACV+12}, v{ACV+12}, 1.0, {sHI}")
for i in range(8): I(f"v_cvt_pk_bf16_f32 v{IMG+16+i}, v{ACV+2*i}, v{ACV+2*i+1}")
for i in range(4, 6): I(f"ds_write_b128 v{vIMW}, {v(IMG+4*i,4)} offset:{L_IMG+16*i}")
P.wait("wq0", "wq1", "wq2", "wq3")
I("s_waitcnt lgkmcnt(0)\ns_barrier")
stamp("img written", "p")
KA = 144; KBv = 208; KD = 176
for k in range(4):
    for u in range(2):
        I(f"ds_read_b64_tr_b16 {v(KA+4*k+2*u,2)}, v{vKA} offset:{(32*k+4*u)*208}")
    for nu in range(2):
        for u in range(2):
            I(f"ds_read_b64_tr_b16 {v(KBv+8*k+4*nu+2*u,2)}, v{vKB} offset:{(32*k+4*u)*208+64+16*nu}")
proq, gq = gemm_lds([(11, L_WQ + 1024*t, L_WQ + 1024*t + 256, (XF + 4*t, ACV, t == 0, False)) for t in range(28)], AH)
for k in range(4):
    for nu in range(2):
        I(f"v_mfma_f32_16x16x32_bf16 {v(KD+4*nu,4)}, {v(KA+4*k,4)}, {v(KBv+8*k+4*nu,4)}, {'0' if k == 0 else v(KD+4*nu,4)}")
P.add(proq[:8])
for i in range(4): I(f"v_cvt_pk_bf16_f32 v{KD+8+i}, v{KD+2*i}, v{KD+2*i+1}")
I(f"buffer_store_dwordx4 {v(KD+8,4)}, v2, {WS}, s{sPST} offen sc1")
I(f"v_xor_b32 v10, v{KD+8}, v5")
I(f"buffer_store_dword v10, v4, {WS}, s{sPCK} offen sc1")
if GATE & 1: P.add(flag_store(16))
P.add(proq[8:])
stamp("partial stored", "mp")
sW1B, sW1M, sW2E, sW2L = 40, 41, 42, 43
set2 = mk(f"""v_lshrrev_b32 v10, 4, v1
v_mul_u32_u24 v12, 3584, v10
v_lshlrev_b32 v10, 2, v10
v_and_b32 v13, 15, v1
v_xor_b32 v10, v10, v13
v_lshl_add_u32 v12, v10, 4, v12
v_add_u32 v13, {4*3584-1024}, v12
v_add_u32 v14, {2*(4*3584-1024)}, v12
v_add_u32 v15, {3*(4*3584-1024)}, v12
s_lshl_b32 s{sW1B}, s{sR}, 8
s_mul_i32 s{sD}, s{sW}, {16*3584}
s_add_u32 s{sW1B}, s{sW1B}, s{sD}
s_lshl_b32 s{sW1M}, s{sW}, 12
s_lshr_b32 s{sA}, s{sW}, 1
s_lshl_b32 s{sA}, s{sA}, 2
s_and_b32 s{sB}, s{sW}, 1
s_add_u32 s{sA}, s{sA}, s{sB}
s_lshl_b32 s{sB}, s{sU}, 1
s_add_u32 s44, s{sA}, s{sB}
s_xor_b32 s45, s44, 2
s_lshl_b32 s{sD}, s{sC}, 7
s_mul_i32 s{sW2E}, s44, {32*896}
s_add_u32 s{sW2E}, s{sW2E}, s{sD}
s_mul_i32 s{sW2L}, s45, {32*896}
s_add_u32 s{sW2L}, s{sW2L}, s{sD}
""")
vW2 = [vWO0, vWO1, 128, 129]
sSCR, sBIG = 46, 47
NUP = 6
NRAW = opt("nraw", 5)
def UA(j): return 16*(j - 7) if j >= 7 else 112 + 16*j
def w2slot(j): return (sSCR, 4096*(j & 1), 254) if j < NUP else (sBIG, 4096*((j - NUP) % 7), 252)
def w2dma(j):
    mb, mo, _ = w2slot(j)
    return flat(dmag(vW2, W2, sW2E if j < 7 else sW2L, (j%7)*256*896, mb, mo, f"w2_{j}"))
def w2raw(j):
    ch = [mk(f"buffer_load_dwordx4 {a_(UA(j)+4*q,4)}, v{vW2[q]}, {W2}, s53 offen offset:{1024*q}") for q in range(4)]
    ch[0] = mk(f"s_add_u32 s53, s{sW2L}, {(j%7)*256*896}") + ch[0]
    return ch
def w2rd(j):
    _, mo, av = w2slot(j)
    if 7 <= j < 7 + NRAW: out = [mk(f"ds_write_b128 v131, {a_(UA(j)+4*q,4)} offset:{mo+1024*q}") for q in range(4)]
    else: out = [[WaitTag([f"w2_{j}"])]]
    for e in range(2):
        for mu in range(2):
            for u in range(2): out.append(mk(f"ds_read_b64_tr_b16 {a_(UA(j)+8*e+4*mu+2*u,2)}, v{av+mu} offset:{mo+2048*e+1024*u}"))
    return out
raw = flat([w2raw(j) for j in range(7, 7 + NRAW)])
if opt("noid", 1): set2 = [mk(f"s_cmp_ge_u32 s{sRact}, 14\ns_cselect_b32 s26, 0, s26")] + set2
set2 += mk(f"v_add_u32 v128, {2*(7168-1024)}, v{vWO0}\nv_add_u32 v129, {3*(7168-1024)}, v{vWO0}")
S = Sched(gq)
S.spread(wo_l, 0, opt("woe", 20))
S.spread(set2, 2, 18)
S.spread([raw.pop(0) for _ in range(opt("rawa", 0))], 20, 28)
G0 = gate("g0", vPO, vPF)
if GATE & 1: S.at(opt("g0", 14), G0.load(0))
S.at(15 - AH, [WaitTag(["wq4", "wq5", "wq6"])] + mk("s_barrier"), 1.0)
P.add(S.emit())
stamp("q gemm done", "p")
G = 16; GC = 80; SA = 96
FP = Fetch("fp", [([f"s_add_u32 s{sCt}, s{sP}, {5120*T}\nbuffer_load_dwordx4 {v(G+4*T,4)}, v{vFPD}, {WS}, s{sCt} offen sc1\nbuffer_load_dword v{GC+T}, v{vFPC}, {WS}, s{sCt} offen sc1"],
                   [G+4*T, GC+T]) for T in range(16)])
P.add(phi_pre(ACV, WPQ))
if GATE & 1: P.add(G0.check(0, 0))
I("s_barrier")
PQ = 208
P.add(sprinkle(softmax(PK, TMP, PQ, True), [FP.load(T) for T in range(16)], opt("fp0", 0), opt("fpstep", 8)))
stamp("softmax q done", "p")
w1_l = [flat(dmag([12, 13, 14, 15], W1, sW1B, i*64*3584, sW1M, 16384*i, "w1")) for i in range(7)]
def fpb(b):
    t = []
    for k, T in enumerate(range(4*b, 4*b+4)):
        t.append(f"v_bitop3_b32 v{10 if k == 0 else 9}, v{G+4*T}, v{GC+T}, v5 {X3}" + ("" if k == 0 else "\nv_or_b32 v10, v10, v9"))
    return "\n".join(t) + "\nv_cmp_ne_u32 vcc, 0, v10"
I("s_branch L_fp_go\nL_fp_retry:")
for b in range(4):
    I(fpb(b) + f"\ns_cbranch_vccz L_fp_k{b}\n" + "\n".join(FP.pieces[T][0][0] for T in range(4*b, 4*b+4)) + f"\nL_fp_k{b}:", unc=True)
I(GUARD, unc=True)
I("L_fp_go:")
I(fpb(0) + "\ns_cbranch_vccnz L_fp_retry")
S = Sched([mk(f"{MF} {v(SA,16)}, a[220:223], {v(G+4*T,4)}, {'0' if T == 0 else v(SA,16)}") for T in range(16)])
for b in range(1, 4): S.spread(mk(fpb(b) + "\ns_cbranch_vccnz L_fp_retry"), 4*b - 3, 4*b)
S.spread([w1_l.pop(0) for _ in range(opt("nw1a", 2))], 12, 16)
P.add(S.emit())
I(f"v_add_u32 v9, {L_KVX}, v{vFPD}")
for i in range(4): I(f"v_cvt_pk_bf16_f32 v{SA+8+i}, v{SA+2*i}, v{SA+2*i+1}")
I(f"ds_write_b128 v9, {v(SA+8,4)}\ns_waitcnt lgkmcnt(0)\ns_barrier")
stamp("kv summed", "mp")
KVA = 32; OD = 48
for q in range(7): I(f"ds_read_b64 {v(KVA+2*q,2)}, v{vKVX} offset:{512*q}")
P.add(w1_l.pop(0))
for s in range(3): I(f"{MF} {v(OD,16)}, {v(KVA+4*s,4)}, {v(PQ+4*s,4)}, {'0' if s == 0 else v(OD,16)}")
I(f"v_mfma_f32_32x32x8_bf16 {v(OD,16)}, {v(KVA+12,2)}, {v(PQ+12,2)}, {v(OD,16)}")
I(f"""s_lshl_b32 s{sP}, s{sTILE}, 15
s_lshr_b32 s{sB}, s{sW}, 1
s_lshl_b32 s{sB}, s{sB}, 14
s_add_u32 s{sP}, s{sP}, s{sB}
s_add_u32 s{sP}, s{sP}, {WS_O}
s_add_u32 s{sA}, s{sW1M}, {L_XCH}
v_add_u32 v132, s{sA}, v2
v_xor_b32 v133, 8192, v132
s_lshr_b32 s{sA}, s{sW}, 1
s_mul_i32 s{sA}, s{sA}, 7
s_lshl_b32 s{sB}, s{sT}, 4
s_add_u32 s{sA}, s{sA}, s{sB}
s_lshl_b32 s{sA}, s{sA}, 2
s_lshr_b32 s{sB}, s{sHQ}, 3
s_lshl_b32 s{sB}, s{sB}, 1
s_add_u32 s{sA}, s{sA}, s{sB}
s_and_b32 s{sB}, s{sW}, 1
s_add_u32 s{sA}, s{sA}, s{sB}
s_lshl_b32 s{sA}, s{sA}, 7
s_and_b32 s{sB}, s{sHQ}, 7
s_lshl_b32 s{sB}, s{sB}, 2
s_add_u32 s{sA}, s{sA}, s{sB}
s_add_u32 s{sFS}, s{sA}, {WS_FLG + 131072}
v_xor_b32 v9, 64, v{vWOR}
v_and_b32 v7, 31, v1
v_mul_u32_u24 v7, 896, v7
v_add_f32 v{OD+14}, 0x358637bd, v{OD+14}
v_rcp_f32 v{OD+14}, v{OD+14}
v_lshl_add_u32 v7, v3, 4, v7""")
for k in range(0, 14, 2): I(f"v_pk_mul_f32 {v(OD+k,2)}, {v(OD+k,2)}, {v(OD+14,2)} op_sel_hi:[1,0]")
for k in range(4): I(f"v_cvt_pk_bf16_f32 v{64+k}, v{OD+2*k}, v{OD+2*k+1}")
I(f"buffer_store_dwordx4 v[64:67], v2, {WS}, s{sOST} offen sc1")
for k in range(4, 7): I(f"v_cvt_pk_bf16_f32 v{64+k}, v{OD+2*k}, v{OD+2*k+1}")
I(f"""v_bitop3_b32 v71, v64, v5, s{sMASK} bitop3:0x28
v_and_b32 v6, s{sMASK}, v5
buffer_store_dwordx4 v[68:71], v2, {WS}, s{sOST} offen offset:1024 sc1""")
if GATE & 2: P.add(flag_store(7))
stamp("o stored", "mo")
I(f"""s_mul_i32 s{sA}, s{sU}, 7
s_add_u32 s{sA}, s{sA}, s{sC}
s_lshl_b32 s{sB}, s{sT2}, 4
s_add_u32 s{sA}, s{sA}, s{sB}
s_lshl_b32 s{sA}, s{sA}, 2
s_add_u32 s{sA}, s{sA}, s{sW}
s_lshl_b32 s66, s{sA}, 7
s_add_u32 s{sFP}, s66, {WS_FLG + 131072}
v_and_b32 v{vPO}, 28, v4""")
P.wait("wo")
I(f"s_cmp_ge_u32 s{sRact}, 14\ns_cbranch_scc1 L_idle\ns_barrier")
wor = []
for s in range(16):
    hh, e = s >> 1, s & 1
    for k, av in ((0, vWOR), (1, 9)):
        for u in range(2):
            wor += mk(f"ds_read_b64_tr_b16 {a_(128+8*s+4*k+2*u,2)}, v{av} offset:{(28*hh+8*e+4*u)*128}")
XR = 224
xrr = []
for i in range(4): xrr += mk((f"v_xor_b32 v10, {16*i}, v{vXRR}\n" if i else "") + f"ds_read_b64 {v(XR+2*i,2)}, v{10 if i else vXRR}")
P.add(xrr)
G1 = gate("g1", vPO, vPF)
wor = sprinkle(wor, [w1_l.pop(0) for _ in range(opt("nw1b", 2))], 0, opt("w1bs", 12))
if GATE & 2: wor = sprinkle(wor, [G1.load(0)], opt("g1", 40), 1)
P.add(wor)
OB = 16
FO = Fetch("fo", [([f"s_add_u32 s{sCt}, s{sP}, {2048*hh}\nbuffer_load_dwordx4 {v(OB+8*hh,4)}, v2, {WS}, s{sCt} offen sc1\nbuffer_load_dwordx4 {v(OB+8*hh+4,4)}, v2, {WS}, s{sCt} offen offset:1024 sc1"],
                   [OB+8*hh, OB+8*hh+7]) for hh in range(8)], masked=True, nre=opt('reo', 2))
stamp("pre o fetch", "o")
AO, AT = 80, 96
pre2 = []
for i in range(8): pre2 += mk(f"v_lshlrev_b32 v{112+2*i}, 16, v{XR+i}\nv_and_b32 v{113+2*i}, s{sHIM}, v{XR+i}")
for s in range(1, 16, 2): pre2 += mk(f"v_accvgpr_write_b32 a{128+8*s+3}, 0\nv_accvgpr_write_b32 a{128+8*s+7}, 0")
if GATE & 2:
    P.add(pre2); P.add(G1.check(0, 0))
    stamp("gate1", "o")
    for hh in range(8): P.add(FO.load(hh))
else: P.add(sprinkle(pre2, [FO.load(hh) for hh in range(8)], 0, 4))
I("s_waitcnt lgkmcnt(0)\ns_barrier")
stamp("fo issued", "o")
g2 = []
for s in range(16):
    for k, acc in ((1, AT), (0, AO)):
        c = ("0" if k else v(112,16)) if s == 0 else v(acc,16)
        g2.append(mk(f"{MF} {v(acc,16)}, {a_(128+8*s+4*k,4)}, {v(OB+4*s,4)}, {c}"))
set3 = mk(f"""s_lshl_b32 s{sSCR}, s{sW}, 13
s_mul_i32 s{sBIG}, s{sW}, 28672
v_add_u32 v131, s{sBIG}, v2
s_lshl_b32 s{sB}, s{sC}, 1
s_lshr_b32 s{sD}, s{sW}, 1
s_add_u32 s{sB}, s{sB}, s{sD}
s_lshl_b32 s{sFS}, s{sB}, 2
s_lshl_b32 s{sA}, s{sT2}, 13
s_add_u32 s{sFS}, s{sFS}, s{sA}
s_and_b32 s{sA}, s{sTILE}, 3
s_lshl_b32 s{sA}, s{sA}, 7
s_add_u32 s{sFS}, s{sFS}, s{sA}
s_add_u32 s{sFS}, s{sFS}, {WS_FLG + 2*131072}
s_mul_i32 s{sA}, s{sTILE}, 14
s_add_u32 s{sB}, s{sB}, s{sA}
s_mul_i32 s{sPST}, s{sB}, 2560
s_add_u32 s{sPST}, s{sPST}, {WS_H}
v_lshlrev_b32 v134, 7, v1
s_nop 0
v_bfe_u32 v9, v1, 2, 2
v_lshl_add_u32 v240, v3, 2, v9
v_lshlrev_b32 v254, 7, v240
v_lshlrev_b32 v240, 8, v240
v_xor_b32 v9, s{sW}, v9
v_lshl_add_u32 v240, v9, 6, v240
v_bfe_u32 v9, v1, 4, 1
v_lshlrev_b32 v9, 5, v9
v_lshl_add_u32 v9, v8, 3, v9
v_add_u32 v240, v240, v9
v_add_u32 v254, v254, v9
v_bfe_u32 v9, v1, 3, 1
v_lshl_add_u32 v254, v9, 6, v254
s_add_u32 s{sSCR}, s{sSCR}, {L_SCR}
v_add_u32 v252, s{sBIG}, v254
v_xor_b32 v253, 64, v252
v_add_u32 v254, s{sSCR}, v254
v_xor_b32 v255, 64, v254
v_xor_b32 v241, 64, v240
v_xor_b32 v242, 128, v240
v_xor_b32 v243, 192, v240""") + flat([mk(f"v_add_u32 v{244+m}, 57344, v{240+m}") for m in range(4)])
P.add(flat(w1_l))
P.add(set3[:21])
P.add(FO.check(0, 7))
stamp("fo0", "o")
S = Sched(g2)
for hh in range(1, 8): S.spread(FO.checkc(hh, 7), 4*hh - 3, 4*hh)
S.spread([raw.pop(0) for _ in range(min(len(raw), opt("rawb", 4)))], 28, 32)
S.spread(set3[21:], 0, 30)
P.add(S.emit())
stamp("p2 gemm done", "o")
for i in range(4): I(f"ds_write_b128 v132, {v(AT+4*i,4)} offset:{1024*i}")
I("v_mov_b32 v112, 0\nv_mov_b32 v113, 0\ns_waitcnt lgkmcnt(0)\ns_barrier")
for i in range(4): I(f"ds_read_b128 {v(AT+4*i,4)}, v133 offset:{1024*i}")
HR = XR
for k in range(0, 8, 2): I(f"v_pk_add_f32 {v(AO+k,2)}, {v(AO+k,2)}, {v(AT+k,2)}")
for i in range(4): I(f"v_cvt_pk_bf16_f32 v{HR+i}, v{AO+2*i}, v{AO+2*i+1}")
I(f"buffer_store_dwordx4 {v(HR,4)}, v2, {WS}, s{sPST} offen sc1")
for k in range(8, 16, 2): I(f"v_pk_add_f32 {v(AO+k,2)}, {v(AO+k,2)}, {v(AT+k,2)}")
for i in range(4, 8): I(f"v_cvt_pk_bf16_f32 v{HR+i}, v{AO+2*i}, v{AO+2*i+1}")
I(f"buffer_store_dwordx4 {v(HR+4,4)}, v2, {WS}, s{sPST} offen offset:1024 sc1")
for i in range(8): I(f"v_dot2c_f32_bf16 v112, s{sONES}, v{HR+i}\nv_dot2c_f32_bf16 v113, v{HR+i}, v{HR+i}")
I(f"""v_bitop3_b32 v10, v{HR}, v{HR+4}, v5 {X3}
v_permlane32_swap_b32 v112, v113
v_add_f32 v112, v112, v113
buffer_store_dword v112, v4, {WS}, s{sPST} offen offset:2048 sc1
v_xor_b32 v113, v10, v112
buffer_store_dword v113, v4, {WS}, s{sPST} offen offset:2304 sc1""")
def selft(sreg, nl): return mk(f"s_mov_b64 exec, {(1 << nl) - 1}\nbuffer_load_dword v135, v134, {WS}, s{sreg} offen sc1\ns_mov_b64 exec, -1")
SELF = opt("self", 0)
if SELF & 1: P.add(selft(sPST, 20))
if GATE & 4: P.add(flag_store(14))
stamp("h stored", "moh")
HB = 16; ST = 192
ACC = [144, 160, 176, 192]; AUG = 232
set4 = mk(f"""s_lshl_b32 s{sB}, s{sT3}, 2
s_add_u32 s{sB}, s{sB}, s{sW}
s_mul_i32 s{sP}, s{sB}, {14*2560}
s_add_u32 s{sP}, s{sP}, {WS_H}
s_mul_i32 s{sA}, s{sB}, 56
s_lshl_b32 s{sD}, s{sR}, 2
s_add_u32 s{sA}, s{sA}, s{sD}
s_mul_i32 s{sQ}, s{sA}, 2304
s_add_u32 s{sQ}, s{sQ}, {WS_H1}
v_lshlrev_b32 v13, 3, v1
s_lshl_b32 s{sA}, s{sW}, 9
s_add_u32 s{sA}, s{sA}, {L_AUG}
v_add_u32 v13, s{sA}, v13
v_mov_b32 v222, 0
s_lshl_b32 s{sA}, s{sT3}, 4
s_add_u32 s{sA}, s{sA}, s{sR}
s_lshl_b32 s{sA}, s{sA}, 2
s_add_u32 s{sA}, s{sA}, s{sW}
s_lshl_b32 s{sA}, s{sA}, 7
s_add_u32 s{sFP}, s{sA}, {WS_FLG + 2*131072}
v_min_u32 v{vPO}, 52, v4
s_lshr_b32 s{sA}, s{sW}, 1
s_mul_i32 s{sA}, s{sA}, 7
s_lshl_b32 s{sB}, s{sT3}, 4
s_add_u32 s{sA}, s{sA}, s{sB}
s_lshl_b32 s{sA}, s{sA}, 2
s_and_b32 s{sB}, s{sR}, 1
s_lshl_b32 s{sB}, s{sB}, 1
s_add_u32 s{sA}, s{sA}, s{sB}
s_and_b32 s{sB}, s{sW}, 1
s_add_u32 s{sA}, s{sA}, s{sB}
s_lshl_b32 s{sA}, s{sA}, 7
s_lshr_b32 s{sB}, s{sR}, 1
s_lshl_b32 s{sB}, s{sB}, 2
s_add_u32 s{sA}, s{sA}, s{sB}
s_add_u32 s{sFS}, s{sA}, {WS_FLG + 3*131072}""")
FH = Fetch("fh", [([f"s_add_u32 s{sCt}, s{sP}, {2560*p}\nbuffer_load_dwordx4 {v(HB+8*p,4)}, v2, {WS}, s{sCt} offen sc1\nbuffer_load_dwordx4 {v(HB+8*p+4,4)}, v2, {WS}, s{sCt} offen offset:1024 sc1\n"
                    f"buffer_load_dword v{ST+2*p}, v4, {WS}, s{sCt} offen offset:2048 sc1\nbuffer_load_dword v{ST+2*p+1}, v4, {WS}, s{sCt} offen offset:2304 sc1"],
                   [HB+8*p, HB+8*p+4, ST+2*p, ST+2*p+1]) for p in range(14)], nre=opt('reh', 2))
for i in range(4): I(f"v_mov_b32 v{AUG+i}, s{sONES}")
for _ in range(min(len(raw), opt("rawc", 4))): P.add(raw.pop(0))
P.wait("w1"); I("s_barrier")
stamp("w1 landed", "h")
def w1a(t, k): return (240 + k + (4 if t >= 14 else 0), (t % 14) * 4096, (t % 14) * 4096 + 2048)
st3 = [w1a(t, 0) + ((AUG, ACC[2], t == 0, True),) for t in range(28)]
for t in range(28):
    for k in range(3): st3.append(w1a(t, k) + ((HB + 4*t, ACC[k], t == 0, False),))
for t in range(28): st3.append(w1a(t, 3) + ((HB + 4*t, ACC[3], t == 0, False),))
pro, g3 = gemm_lds(st3, AH)
P.add(pro)
S3 = Sched(g3)
S3.spread(set4, 0, 12)
S3.spread([w2dma(0), w2dma(1)], 0, 8)
NH0 = opt("nh0", 4); H0 = opt("h0", 20)
G2 = gate("g2", vPO, vPF)
if GATE & 4:
    S3.at(opt("g2", 12), G2.load(0), 0.9)
    S3.at(27, G2.check(0, 0) + stampi("gate2", "h") + flat([FH.load(p) for p in range(NH0)]), 0.5)
else: S3.spread(flat([FH.loadc(p) for p in range(NH0)]), H0, 27)
cs = ACC[2]
csx = mk(f"""v_cvt_pk_bf16_f32 v{AUG}, v{cs}, v{cs}
v_lshlrev_b32 v{AUG+1}, 16, v{AUG}
v_sub_f32 v{AUG+1}, v{cs}, v{AUG+1}
v_cvt_pk_bf16_f32 v{AUG}, v{cs}, v{AUG+1}
v_and_b32 v{AUG+1}, 0xffff, v{AUG}
v_cndmask_b32 v{AUG}, v{AUG}, 0, {sHI}
v_cndmask_b32 v{AUG+1}, v{AUG+1}, 0, {sHI}
ds_write_b64 v13, {v(AUG,2)}""")
S3.at(27, stampi("colsum done", "h") + csx + FH.check(0, NH0 - 1) + stampi("fh0", "h"), 1.0)
B0 = 28
for p in range(14):
    b = B0 + 6*p
    if p + NH0 < 14: S3.spread(FH.loadc(p + NH0), b, b + 2)
    S3.at(b, mk(f"v_add_f32 v222, v222, v{ST+2*p}"), 0.0)
    if p + 1 < 14: S3.spread(FH.checkc(p + 1, min(13, p + NH0)), b + 2, b + 6)
    if p in (3, 7, 11): S3.at(b + 5, stampi(f"fh{p+1}", "h"), 1.0)
S3.at(B0 + 20, mk("s_waitcnt lgkmcnt(0)\ns_barrier") + flat([mk(f"v_xor_b32 v9, {512*k}, v13\nds_read_b64 {v(AUG+2*k,2)}, v9") for k in range(1, 4)]), 0.0)
mid = mk(f"""v_mul_f32 v220, {fhex(1/448)}, v222
v_mov_b32 v221, v220
s_nop 0
v_permlane32_swap_b32 v220, v221
v_fma_f32 v221, -v220, v220, v221
v_max_f32 v221, 0, v221
v_add_f32 v221, 0x3727c5ac, v221
v_rsq_f32 v251, v221
v_cvt_pk_bf16_f32 v222, -v220, -v220
v_lshlrev_b32 v9, 16, v222
v_sub_f32 v9, -v220, v9
v_cvt_pk_bf16_f32 v223, v9, 0
v_mul_f32 v250, v221, v251
v_mul_f32 v251, 0xbfb8aa3b, v251
v_cndmask_b32 v222, v222, 0, {sHI}
v_cndmask_b32 v223, v223, 0, {sHI}""")
S3.spread(mid, B0 + 79, B0 + 84)
def aug(k): return mk(f"v_mfma_f32_32x32x8_bf16 {v(ACC[k],16)}, {v(AUG+2*k,2)}, v[222:223], {v(ACC[k],16)}")
SLT = 132
def silu(k, pk):
    q = Prog(); a = ACC[k]; t = 208
    q.I(f"s_xor_b32 s50, s{sW}, {k}\ns_mul_i32 s50, s50, 2304\ns_add_u32 s50, s50, s{sQ}")
    for half in range(2):
        b = a + 8 * half
        if pk:
            for j in range(0, 8, 2): q.I(f"v_pk_mul_f32 {v(t+j,2)}, {v(b+j,2)}, v[250:251] op_sel:[0,1] op_sel_hi:[1,1]")
        else:
            for j in range(8): q.I(f"v_mul_f32 v{t+j}, v{b+j}, v251")
        for j in range(8): q.I(f"v_exp_f32 v{t+j}, v{t+j}")
        if pk:
            for j in range(0, 8, 2): q.I(f"v_pk_fma_f32 {v(t+j,2)}, {v(t+j,2)}, v[250:251], v[250:251] op_sel_hi:[1,0,0]")
        else:
            for j in range(8): q.I(f"v_fma_f32 v{t+j}, v{t+j}, v250, v250")
        for j in range(8): q.I(f"v_rcp_f32 v{t+j}, v{t+j}")
        if pk:
            for j in range(0, 8, 2): q.I(f"v_pk_mul_f32 {v(b+j,2)}, {v(b+j,2)}, {v(t+j,2)}")
        else:
            for j in range(8): q.I(f"v_mul_f32 v{b+j}, v{b+j}, v{t+j}")
        for j in range(4): q.I(f"v_cvt_pk_bf16_f32 v{b+j}, v{b+2*j}, v{b+2*j+1}")
        q.I(f"buffer_store_dwordx4 {v(b,4)}, v2, {WS}, s50 offen offset:{1024*half} sc1")
    q.I(f"v_bitop3_b32 v216, v5, v{a}, v{a+8} {X3}")
    q.I(f"buffer_store_dword v216, v4, {WS}, s50 offen offset:2048 sc1")
    return q.items + ([selft(50, 18)] if SELF & 2 and not pk else [])
E0 = B0 + 84
g3[E0] = aug(0) + g3[E0]
g3[E0+1] = aug(1) + g3[E0+1]
g3[E0+2] = aug(2) + g3[E0+2]
S3.at(E0 - 1, stampi("p3 pass1 done", "mh"), 1.0)
S3.spread(silu(0, False) + ([flag_store(7)] if GATE & 8 else []), E0 + 2, E0 + 28)
LG = mk("s_waitcnt lgkmcnt(0)")
S3.spread(w2rd(0) + w2rd(1), B0 + 30, B0 + 54)
S3.at(B0 + 62, w2dma(2)); S3.at(B0 + 68, w2dma(3))
S3.spread(raw, B0 + 74, E0 + 16)
S3.spread(w2rd(2) + w2rd(3), E0 + 2, E0 + 12)
S3.at(E0 + 18, w2dma(4)); S3.at(E0 + 22, w2dma(5))
P.add(S3.emit())
P.add(aug(3))
I("s_barrier")
stamp("p3 gemm done", "e")
B4 = 16; CK = 240
CKR = list(range(240, 250)) + [217, 218, 219, 130]
C4 = [[ACC[0], ACC[1]], [ACC[2], ACC[3]]]
set5 = mk(f"""s_mul_i32 s{sA}, s{sTILE}, 56
s_xor_b32 s{sB}, s{sTILE}, 1
s_mul_i32 s{sB}, s{sB}, 56
s_add_u32 s51, s{sA}, s44
s_add_u32 s52, s{sB}, s44
s_add_u32 s53, s{sA}, s45
s_add_u32 s54, s{sB}, s45""")
for k in range(4):
    set5 += mk(f"s_mul_i32 s{51+k}, s{51+k}, 2304\ns_add_u32 s{51+k}, s{51+k}, {WS_H1}")
def piece4(n):
    st, i = n // 7, n % 7; r = B4 + 8 * (n % 14); c = CKR[n % 14]
    return ([f"s_add_u32 s{sCt}, s{51+st}, {8*2304*i}\nbuffer_load_dwordx4 {v(r,4)}, v2, {WS}, s{sCt} offen sc1\nbuffer_load_dwordx4 {v(r+4,4)}, v2, {WS}, s{sCt} offen offset:1024 sc1\n"
             f"buffer_load_dword v{c}, v4, {WS}, s{sCt} offen offset:2048 sc1"], [r, r+4, c])
F4 = Fetch("f4", [piece4(n) for n in range(28)], nre=opt("re4", 1))
ND = opt("nd", 5)
rest = [6] + list(range(7 + NRAW, 14))
NB4 = min(len(rest), opt("nb4", 2))
t1 = sprinkle(set5 + silu(1, True), [w2dma(j) for j in rest[:NB4]], 0, 40)
G3 = gate("g3", vPO, vPF)
if GATE & 8:
    t1 = mk(f"s_add_u32 s{sFP}, s66, {WS_FLG + 3*131072}\nv_min_u32 v{vPO}, 24, v4") + t1
    t1 = sprinkle(t1, [G3.load(0)], opt("g3", 60), 1)
t2 = sprinkle(silu(2, True), ([G3.check(0, 0)] if GATE & 8 else []) + flat([F4.loadc(n) for n in range(ND)]), opt("f4s", 10), 12)
st_ = lambda: selft(50, 18) if SELF & 2 else []
P.add(t1 + st_() + t2 + st_() + flat(w2rd(4) + w2rd(5)))
stamp("silu2 done", "me")
g4 = []
for n in range(28):
    st, i = n // 7, n % 7; hf, nu = st >> 1, st & 1
    for e in range(2):
        k = 2 * (7*hf + i) + e
        for mu in range(2):
            g4.append(mk(f"{MF} {v(C4[nu][mu],16)}, {a_(UA(7*hf+i)+8*e+4*mu,4)}, {v(B4+8*(n%14)+4*e,4)}, {'0' if k == 0 else v(C4[nu][mu],16)}"))
P.add(F4.check(0, ND - 1))
S = Sched(g4)
for n in range(28):
    if n + ND < 28: S.spread(F4.loadc(n + ND), 4*n, 4*n + 2)
    if n + 1 < 28: S.spread(F4.checkc(n + 1, min(27, n + ND)), 4*n + 2, 4*n + 4)
    if n in (6, 13, 20): S.at(4*n + 3, stampi(f"stage{n//7} done", "e"), 1.0)
S.spread(silu(3, False), 0, 26)
S.spread(w2rd(6), 4, 16)
S.spread([w2dma(j) for j in rest[NB4:]], opt("w2a", 28), opt("w2b", 44))
for j in range(7, 14): S.spread(w2rd(j), 28 + 6*(j-7), 34 + 6*(j-7))
S.at(80, mk(f"""s_waitcnt lgkmcnt(0)
s_barrier
s_and_b32 s{sA}, s{sW}, 1
s_lshl_b32 s{sA}, s{sA}, 14
s_add_u32 s{sA}, s{sA}, s{sW1M}
v_add_u32 v9, s{sA}, v2
v_xor_b32 v12, 16384, v9
s_lshl_b32 s{sA}, s{sW}, 14
v_add_u32 v13, s{sA}, v2"""))
def redw(nu): return [mk(f"ds_write_b128 v{9 if nu == 0 else 12}, {v(C4[nu][mu]+4*i,4)} offset:{32768*mu+1024*i}") for mu in range(2) for i in range(4)]
S.spread(redw(0), 88, 106)
unp = []
for i in range(8): unp += mk(f"v_lshlrev_b32 v{232+2*i}, 16, v{HR+i}\nv_and_b32 v{233+2*i}, s{sHIM}, v{HR+i}")
P.add(S.emit())
stamp("p4 gemm done", "me")
P.add(unp[:12])
P.add(flat(redw(1)))
P.add(unp[12:])
I("s_waitcnt lgkmcnt(0)\ns_barrier")
for s in range(4):
    for i in range(4): I(f"ds_read_b128 {v(16+16*s+4*i,4)}, v13 offset:{4096*s+1024*i}")
for s in range(4):
    for k in range(0, 16, 2): I(f"v_pk_add_f32 {v(232+k,2)}, {v(232+k,2)}, {v(16+16*s+k,2)}")
for i in range(8): I(f"v_cvt_pk_bf16_f32 v{96+i}, v{232+2*i}, v{232+2*i+1}")
I(f"""v_permlane32_swap_b32 v96, v98
v_permlane32_swap_b32 v97, v99
buffer_store_dwordx4 v[96:99], v7, {OUT}, s{sOUT} offen
v_permlane32_swap_b32 v100, v102
v_permlane32_swap_b32 v101, v103
buffer_store_dwordx4 v[100:103], v7, {OUT}, s{sOUT} offen offset:32""")
stamp("end", "mpohez")
I(f"""s_cmp_lg_u32 s2, 0
s_cbranch_scc1 L_exit
v_mov_b32 v9, 0""")
I(f"buffer_store_dword v5, v9, {WS}, 0 offen sc1", unc=True)
I("L_exit:")
if DIAG:
    I(f"s_cmp_lg_u32 s{sW}, {opt('dw', 0)}\ns_cbranch_scc1 L_end\ns_lshl_b32 s{sA}, s2, 7\ns_add_u32 s{sA}, s{sA}, {WS_DIAG}\nv_mov_b32 v9, 0", unc=True)
    for k in range(nstamp[0]):
        I(f"v_mov_b32 v10, s{sSTAMP+k}\nbuffer_store_dword v10, v9, {WS}, s{sA} offen offset:{4*k}", unc=True)
    if SEL == ["z"]: I(f"v_mov_b32 v10, s90\nbuffer_store_dword v10, v9, {WS}, s{sA} offen offset:120", unc=True)
    I(f"v_mov_b32 v10, s{sSPIN}\nbuffer_store_dword v10, v9, {WS}, s{sA} offen offset:124", unc=True)
I("L_end:\ns_endpgm")
I(f"""L_idle:
s_and_b32 s{sA}, s{sT2}, 1
s_lshl_b32 s{sA}, s{sA}, 1
s_add_u32 s{sA}, s{sA}, s{sRact}
s_sub_u32 s{sA}, s{sA}, 14
s_lshl_b32 s{sA}, s{sA}, 2
s_add_u32 s{sA}, s{sA}, s{sW}
s_lshl_b32 s{sA}, s{sA}, 13
v_lshlrev_b32 v9, 7, v1
s_mov_b32 s{sB}, {opt("idle", 0)}
s_cmp_eq_u32 s{sB}, 0
s_cbranch_scc1 L_exit
L_idle1:
buffer_load_dword v10, v9, {W2}, s{sA} offen
s_add_u32 s{sA}, s{sA}, {16*8192}
s_sub_u32 s{sB}, s{sB}, 1
s_cmp_lg_u32 s{sB}, 0
s_cbranch_scc1 L_idle1
s_branch L_exit""", unc=True)
P.add(TAIL.items)

PL = opt("plain", 0)
for it in P.items:
    if isinstance(it, Ins) and it.op.startswith("buffer_store") and "sc1" in it.text:
        ish1 = " s50 " in it.text or " s49 " in it.text
        ish = ("v[224:227]" in it.text or "v[228:231]" in it.text or "v112," in it.text or "v113," in it.text)
        if (ish and PL & 1) or (ish1 and PL & 2): it.text = it.text.replace(" sc1", OPT.get("pfl", ""))
body, items = render(P.items)
hdr = open("cdna_kernels/" + NAME + ".s.ref").read().split("; Override launch")[0]
out = hdr + f"""; @launch grid=(256,1,1) block=(256,1,1) lds={LDS_SIZE}
.amdgcn_target "amdgcn-amd-amdhsa--gfx950"
.text
.globl {NAME}_kernel
.p2align 8
.type {NAME}_kernel,@function
{NAME}_kernel:
{body}.fill 2048, 4, 0xbf810000
.section .rodata,"a"
.p2align 6
.amdhsa_kernel {NAME}_kernel
  .amdhsa_next_free_vgpr 512
  .amdhsa_next_free_sgpr 102
  .amdhsa_accum_offset 256
  .amdhsa_group_segment_fixed_size 0
  .amdhsa_kernarg_size 80
  .amdhsa_user_sgpr_count 2
  .amdhsa_user_sgpr_kernarg_segment_ptr 1
  .amdhsa_system_sgpr_workgroup_id_x 1
.end_amdhsa_kernel
"""
open(sys.argv[1], "w").write(out)
n = sum(1 for i in items if i.cls not in ('label', 'dir'))
nu_ = sum(1 for i in items if i.cls not in ('label', 'dir') and i.uncounted)
print("instructions:", n, "(slow path", nu_, ") nops:", sum(1 for i in items if i.op == 's_nop'), "waits:", sum(1 for i in items if i.op == 's_waitcnt'), "stamps", nstamp[0])
```

```python
import sys, struct
from asmlib import *

NAME = "sequential_preLN__linear_kernel_hedgehog__dense_activation_silu__prompt"
DIAG = int(sys.argv[2]) if len(sys.argv) > 2 else 0
OPT = dict(a.split('=') for a in sys.argv[3:])
def opt(k, d): return int(OPT[k], 0) if k in OPT else d

WS_PART = 0x40000
WS_O    = 0x240000
WS_H    = 0x440000
WS_H1   = 0x680000
WS_DIAG = 0xE80000
WS_FLG  = 0xF00000
WS_SIZE = 0xF80000
XW = 28672
L_WV, L_WQ, L_WK, L_WO = 0, 28672, 57344, 86016
L_IMG = L_WK
L_KVX = 143360
L_XCH = 147456
L_SCR = 114688
L_AUG = 161792
LDS_SIZE = 163840
sW, sT, sH, sT2, sR = 3, 4, 5, 6, 7
X, WQKV, WPHI, WO, W1, W2, OUT, WS = [f"s[{i}:{i+3}]" for i in range(8, 40, 4)]
sKX, sKW = 40, 47
sHQ, sHIM = 54, 55
sRET = "s[56:57]"
sSPIN, sP, sU, sC, sMASK, sQ = 58, 59, 60, 61, 62, 63
sHI = "s[64:65]"
sLOG = "s[66:67]"
sONES, sTILE = 68, 69
sA, sB, sCt, sD = 70, 71, 72, 73
sRact, sXO = 74, 75
sWB, sWQ = 76, 77
sLAST, sFLAG, sWM, sPST, sPCK, sOST, sXRB, sOUT = 80, 81, 82, 83, 84, 85, 86, 87
sSTAMP = 88

def v(a, n=1): return f"v{a}" if n == 1 else f"v[{a}:{a+n-1}]"
def a_(a, n=1): return f"a{a}" if n == 1 else f"a[{a}:{a+n-1}]"
def fhex(x): return hex(struct.unpack('<I', struct.pack('<f', x))[0])
def flat(l): return sum(l, [])
P = Prog(); I = P.I
TAIL = Prog()
nstamp = [0]
SEL = OPT.get("st", "m").split(",")
PICK = [int(x) for x in OPT["pick"].split(",")] if "pick" in OPT else None
allst = [0]
def stampi(name, grp="m"):
    idx = allst[0]; allst[0] += 1
    if not DIAG: return []
    if PICK is not None:
        if name != "start" and idx not in PICK:
            print(f"   - {idx}: {name}"); return []
    elif name != "start" and not (set(grp) & set(SEL)): return []
    k = nstamp[0]; nstamp[0] += 1
    assert k < 7
    print(f"stamp {k}: [{idx}] {name}")
    op = "s_memtime" if DIAG == 2 else "s_memrealtime"
    return mk(f"{op} s[{sSTAMP+2*k}:{sSTAMP+2*k+1}]")
def stamp(name, grp="m"): P.add(stampi(name, grp))
X3 = "bitop3:0x96"

def chk_code(regs, masked):
    r = list(regs)
    if masked: return f"v_bitop3_b32 v10, v{r[0]}, v{r[1]}, s{sMASK} bitop3:0x28\nv_cmp_ne_u32 vcc, v10, v6"
    if len(r) == 1: return f"v_cmp_ne_u32 vcc, v{r[0]}, v5"
    if len(r) == 2: t = f"v_xor_b32 v10, v{r[0]}, v{r[1]}"
    else:
        t = f"v_bitop3_b32 v10, v{r[0]}, v{r[1]}, v{r[2]} {X3}"
        if len(r) == 4: t += f"\nv_xor_b32 v10, v10, v{r[3]}"
    return t + "\nv_cmp_ne_u32 vcc, v10, v5"

sFL, sDM = 56, 57
GUARD = f"s_add_u32 s{sSPIN}, s{sSPIN}, 1\ns_cmp_gt_u32 s{sSPIN}, 0x40000\ns_cbranch_scc1 L_end\ns_waitcnt vmcnt(0)"
class Fetch:
    def __init__(self, name, pieces, masked=False, nre=1):
        self.name, self.pieces, self.masked, self.nre = name, pieces, masked, nre
    def loadc(self, i):
        it = flat([mk(c.replace(f"s{sCt}", f"s{sFL}")) for c in self.pieces[i][0]])
        out = []; cur = []
        for x in it:
            cur.append(x)
            if x.cls == 'vmem': out.append(cur); cur = []
        return out
    def load(self, i): return flat(self.loadc(i))
    def stub(self, i, last):
        n = self.name
        rel = "\n".join(c for j in range(i, min(last, i + self.nre - 1) + 1) for c in self.pieces[j][0])
        return mk(f"s_cbranch_vccz L_{n}_ok{i}\nL_{n}_r{i}:") + \
               mk(rel + "\n" + GUARD + "\n" + chk_code(self.pieces[i][1], self.masked) + f"\ns_cbranch_vccnz L_{n}_r{i}", unc=True) + mk(f"L_{n}_ok{i}:")
    def checkc(self, i, last):
        return [[x] for x in mk(chk_code(self.pieces[i][1], self.masked))] + [self.stub(i, last)]
    def check(self, i, last): return flat(self.checkc(i, last))

sFS, sFP = 80, 81
vL512, vPO, vPF = 0, 142, 143
def flag_store(nl): return mk(f"s_mov_b64 exec, {(1 << nl) - 1}\nbuffer_store_dword v5, v{vL512}, {WS}, s{sFS} offen sc1\ns_mov_b64 exec, -1")
def gate(name, vo, vf): return Fetch(name, [([f"buffer_load_dword v{vf}, v{vo}, {WS}, s{sFP} offen sc1"], [vf])])
GATE = opt("gate", 0)

def cost(it):
    if isinstance(it, WaitTag): return 4
    if it.cls in ('label', 'dir') or it.uncounted: return 0
    if it.op.startswith(TRANS) or 'permlane' in it.op: return 8
    if it.op.startswith('ds_write_b128'): return 28
    if it.cls == 'mfma': return 8
    return 4.5
class Sched:
    def __init__(self, groups):
        self.groups = groups; self.gap = [[] for _ in groups]; self.seq = 0
    def at(self, g, items, frac=0.5):
        self.seq += 1; self.gap[g].append((frac, self.seq, list(items)))
    def spread(self, chunks, a, b):
        chunks = [c if isinstance(c, list) else [c] for c in chunks]
        tot = sum(cost(i) for c in chunks for i in c) or 1; acc = 0
        for c in chunks:
            pos = a + (b - a) * acc / tot
            self.at(int(pos), c, pos - int(pos))
            acc += sum(cost(i) for i in c)
    def emit(self):
        out = []
        for g, gp in zip(self.groups, self.gap):
            out += g
            for _, _, c in sorted(gp, key=lambda x: (x[0], x[1])): out += c
        return out
def sprinkle(items, groups, start, step):
    out = []; groups = list(groups); nxt = start
    for i, it in enumerate(items):
        if groups and i == nxt: out += groups.pop(0); nxt += step
        out.append(it)
    for g in groups: out += g
    return out

def softmax(p, t, o, pk):
    q = Prog(); J = q.I
    m, n = t + 14, t + 15; r0, r1 = t + 16, t + 17
    J(f"v_max3_f32 v{m}, v{p}, v{p+1}, v{p+2}\nv_max3_f32 v{n}, -v{p}, -v{p+1}, -v{p+2}")
    for k in range(3, 13, 2):
        J(f"v_max3_f32 v{m}, v{m}, v{p+k}, v{p+k+1}\nv_max3_f32 v{n}, v{n}, -v{p+k}, -v{p+k+1}")
    J(f"""v_max_f32 v{m}, v{m}, v{p+13}
v_max_f32 v{n}, v{n}, -v{p+13}
v_permlane32_swap_b32 v{m}, v{n}
v_max_f32 v{m}, v{m}, v{n}
v_mul_f32 v{m}, v253, v{m}
v_mov_b32 v{n}, v{m}
v_permlane32_swap_b32 v{m}, v{n}""")
    if pk:
        for k in range(0, 14, 2):
            J(f"v_pk_fma_f32 {v(t+k,2)}, {v(p+k,2)}, v[252:253], {v(m,2)} op_sel_hi:[1,0,0]")
            J(f"v_pk_fma_f32 {v(p+k,2)}, {v(p+k,2)}, v[252:253], {v(m,2)} op_sel:[0,1,1] op_sel_hi:[1,1,1]")
        for k in range(14): J(f"v_exp_f32 v{t+k}, v{t+k}")
        for k in range(14): J(f"v_exp_f32 v{p+k}, v{p+k}")
        J(f"v_pk_add_f32 {v(m,2)}, {v(t,2)}, {v(t+2,2)}\nv_pk_add_f32 {v(r0,2)}, {v(p,2)}, {v(p+2,2)}")
        for k in range(4, 14, 2):
            J(f"v_pk_add_f32 {v(m,2)}, {v(m,2)}, {v(t+k,2)}\nv_pk_add_f32 {v(r0,2)}, {v(r0,2)}, {v(p+k,2)}")
        J(f"v_add_f32 v{m}, v{m}, v{n}\nv_add_f32 v{n}, v{r0}, v{r1}")
    else:
        for k in range(14):
            J(f"v_fma_f32 v{t+k}, v{p+k}, v252, v{m}\nv_fma_f32 v{p+k}, v{p+k}, v253, v{n}\nv_exp_f32 v{t+k}, v{t+k}\nv_exp_f32 v{p+k}, v{p+k}")
            if k >= 2:
                a0 = f"v{t}" if k == 2 else f"v{r0}"; a1 = f"v{p}" if k == 2 else f"v{r1}"
                J(f"v_add_f32 v{r0}, {a0}, v{t+k-1}\nv_add_f32 v{r1}, {a1}, v{p+k-1}")
        J(f"v_add_f32 v{m}, v{r0}, v{t+13}\nv_add_f32 v{n}, v{r1}, v{p+13}")
    J(f"""v_permlane32_swap_b32 v{m}, v{n}
v_add_f32 v{m}, v{m}, v{n}
v_rcp_f32 v{m}, v{m}
v_mov_b32 v{n}, v{m}
v_permlane32_swap_b32 v{m}, v{n}""")
    if pk:
        for k in range(0, 14, 2):
            J(f"v_pk_mul_f32 {v(t+k,2)}, {v(t+k,2)}, {v(m,2)} op_sel_hi:[1,0]")
            J(f"v_pk_mul_f32 {v(p+k,2)}, {v(p+k,2)}, {v(m,2)} op_sel:[0,1] op_sel_hi:[1,1]")
    else:
        for k in range(14): J(f"v_mul_f32 v{t+k}, v{t+k}, v{m}\nv_mul_f32 v{p+k}, v{p+k}, v{n}")
    for k in range(7): J(f"v_cvt_pk_bf16_f32 v{o+k}, v{t+2*k}, v{t+2*k+1}")
    for k in range(7): J(f"v_cvt_pk_bf16_f32 v{o+7+k}, v{p+2*k}, v{p+2*k+1}")
    return q.items

def dmag(vaddrs, srd, sbase, sadd, mbase, madd, tag, sreg=None):
    sr = sCt if sreg is None else sreg
    ch = [mk(f"buffer_load_dwordx4 v{a}, {srd}, s{sr} offen offset:{1024*i} lds", tag=tag) for i, a in enumerate(vaddrs)]
    ch[0] = mk(f"s_add_u32 m0, s{mbase}, {madd}\ns_add_u32 s{sr}, s{sbase}, {sadd}") + ch[0]
    return ch

MF = "v_mfma_f32_32x32x16_bf16"
RINGA, NRING = 224, 8
def gemm_lds(steps, ahead=6):
    def rd(i):
        av, o1, o2 = steps[i][:3]; r = RINGA + 4 * (i % NRING)
        return mk(f"ds_read_b64_tr_b16 {a_(r,2)}, v{av} offset:{o1}\nds_read_b64_tr_b16 {a_(r+2,2)}, v{av} offset:{o2}")
    rds = [rd(i) for i in range(len(steps))]
    groups = []
    for i, st in enumerate(steps):
        r = RINGA + 4 * (i % NRING); b, acc, first, swap = st[3]
        A, B = a_(r, 4), v(b, 4)
        if swap: A, B = B, A
        g = mk(f"{MF} {v(acc,16)}, {A}, {B}, {'0' if first else v(acc,16)}")
        if i % 2 == 0 and i + 1 < len(steps):
            r2 = RINGA + 4 * ((i + 1) % NRING); g[0].extra = [('a', r2 + x) for x in range(4)]
        groups.append(g + (rds[i + ahead] if i + ahead < len(steps) else []))
    return flat(rds[:ahead]), groups

MAP1 = [f"""s_and_b32 s{sT}, s{sA}, 3
s_lshl_b32 s{sT}, s{sT}, 2
s_and_b32 s{sD}, s{sB}, 3
s_add_u32 s{sT}, s{sT}, s{sD}
s_lshr_b32 s{sP}, s{sA}, 2
s_lshl_b32 s{sH}, s{sP}, 3
s_lshr_b32 s{sD}, s{sB}, 2
s_add_u32 s{sH}, s{sH}, s{sD}
s_cmp_eq_u32 s{sD}, 7
s_cselect_b32 s{sD}, 3, s{sD}
s_lshl_b32 s{sKX}, s{sD}, 7
""",
f"""s_lshl_b32 s{sT}, s{sA}, 1
s_lshr_b32 s{sD}, s{sB}, 4
s_add_u32 s{sT}, s{sT}, s{sD}
s_mov_b32 s{sH}, s{sCt}
s_and_b32 s{sD}, s{sH}, 7
s_cmp_eq_u32 s{sD}, 7
s_cselect_b32 s{sD}, 3, s{sD}
s_lshl_b32 s{sKX}, s{sD}, 7
""",
f"""s_mov_b32 s{sT}, s{sCt}
s_lshl_b32 s{sH}, s{sA}, 1
s_lshr_b32 s{sD}, s{sB}, 4
s_add_u32 s{sH}, s{sH}, s{sD}
s_and_b32 s{sD}, s{sH}, 7
s_mul_i32 s{sD}, s{sD}, 3
s_mul_i32 s{sP}, s{sD}, 37
s_lshr_b32 s{sP}, s{sP}, 8
s_mul_i32 s{sP}, s{sP}, 7
s_sub_u32 s{sD}, s{sD}, s{sP}
s_lshl_b32 s{sKX}, s{sD}, 7
"""][opt("map1", 0)]
if DIAG: I("s_memrealtime s[78:79]")
I(f"""s_cmp_ge_u32 s2, 256
s_cbranch_scc1 L_end
s_load_dwordx2 s[8:9], s[0:1], 0
s_load_dwordx2 s[12:13], s[0:1], 8
s_load_dwordx2 s[16:17], s[0:1], 16
s_load_dwordx2 s[20:21], s[0:1], 24
s_load_dwordx2 s[24:25], s[0:1], 40
s_load_dwordx2 s[28:29], s[0:1], 48
s_load_dwordx2 s[32:33], s[0:1], 56
s_load_dwordx2 s[36:37], s[0:1], 72
s_getpc_b64 s[76:77]
v_and_b32 v1, 63, v0
v_lshrrev_b32 v2, 6, v0
s_and_b32 s{sA}, s2, 7
v_readfirstlane_b32 s{sW}, v2
s_lshr_b32 s{sB}, s2, 3
s_and_b32 s{sCt}, s{sB}, 15
v_lshlrev_b32 v3, 4, v1
v_lshl_add_u32 v3, v2, 6, v3
v_lshl_add_u32 v3, v2, 4, v3
v_add_u32 v3, s{sCt}, v3
v_lshlrev_b32 v3, 7, v3
s_and_b32 s76, s76, 0xffffff00
s_mov_b64 exec, 31
global_load_dword v236, v3, s[76:77]
s_mov_b64 exec, -1
{MAP1}
s_mov_b32 s10, 1835008
s_mov_b32 s11, 0x20000
v_lshrrev_b32 v2, 3, v1
v_mul_u32_u24 v244, 896, v2
v_lshrrev_b32 v2, 4, v1
v_and_b32 v8, 7, v1
v_xor_b32 v2, v2, v8
v_lshl_add_u32 v244, v2, 4, v244
v_xor_b32 v245, 64, v244
v_add_u32 v245, {7168-1024}, v245
v_add_u32 v246, {2*(7168-1024)}, v244
v_add_u32 v247, {2*(7168-1024)}, v245
s_lshl_b32 s{sQ}, s{sT}, 2
s_add_u32 s{sQ}, s{sQ}, s{sW}
s_mul_i32 s{sQ}, s{sQ}, {32*896}
s_lshr_b32 s{sXO}, s{sW}, 1
s_add_u32 s{sXO}, s{sXO}, s{sW}
s_mul_i32 s{sXO}, s{sXO}, {XW}
s_waitcnt lgkmcnt(0)""")
stamp("start")
def xdma(g): return flat(dmag([244, 245, 246, 247], X, sQ, f"s{sKX+g}", sXO, 4096*g, f"x{g}"))
P.add(xdma(0))
I(f"""s_mov_b32 s14, {0 if opt('abl',0)&8 else 1204224}
s_mov_b32 s15, 0x20000
v_and_b32 v8, 3, v1""")
def wtouch(mask16, dst):
    m = mask16 | (mask16 << 16)
    return mk(f"s_mov_b32 exec_lo, {hex(m)}\ns_mov_b32 exec_hi, {hex(m)}\nbuffer_load_dword v{dst}, v255, {WQKV}, 0 offen\ns_mov_b64 exec, -1")
def kxs(g): return mk(f"s_add_u32 s{sKX+g}, s{sKX+g-1}, 128\ns_cmp_ge_u32 s{sKX+g}, 896\ns_cselect_b32 s{sD}, 896, 0\ns_sub_u32 s{sKX+g}, s{sKX+g}, s{sD}")
NXE = opt("nxe", 2)
if opt("wtfirst", 1) and opt("wt0", 0): P.add(wtouch(opt("wt0", 0), 237))
for g in range(1, NXE): P.add(kxs(g) + xdma(g))
if not opt("wtfirst", 1) and opt("wt0", 0): P.add(wtouch(opt("wt0", 0), 237))
if opt("wsoff", 0): I(f"s_add_u32 s36, s36, {opt('wsoff', 0)}\ns_addc_u32 s37, s37, 0")
I(f"""s_mov_b32 s38, {WS_SIZE}
s_mov_b32 s39, 0x20000
s_mov_b32 s18, 25088
s_mov_b32 s19, 0x20000
s_mov_b32 s22, {0 if opt('abl',0)&4 else 401408}
s_mov_b32 s23, 0x20000
s_xor_b32 s{sHQ}, s{sH}, 1
v_mov_b32 v11, 0
v_lshlrev_b32 v6, 7, v1""")
I(f"buffer_load_dword v5, v11, {WS}, 0 offen sc1")
I(f"""s_lshl_b32 s{sD}, s2, 2
s_add_u32 s{sD}, s{sD}, s{sW}
s_lshl_b32 s{sD}, s{sD}, 9
s_and_b32 s{sCt}, s{sH}, 14
s_mul_i32 s{sCt}, s{sCt}, 1568
s_mul_i32 s{sP}, s{sW}, 896
s_add_u32 s{sCt}, s{sCt}, s{sP}
s_mov_b64 exec, 15
buffer_load_dword v238, v6, {WO}, s{sD} offen
s_mov_b64 exec, 127
buffer_load_dword v239, v6, {WPHI}, s{sCt} offen
s_mov_b64 exec, -1""")
for g in range(NXE, 7): P.add(kxs(g))
I(f"""s_lshl_b32 s{sT2}, s{sA}, 1
s_lshr_b32 s{sD}, s{sB}, 4
s_add_u32 s{sT2}, s{sT2}, s{sD}
s_and_b32 s{sRact}, s{sB}, 15
s_min_u32 s{sR}, s{sRact}, 13
s_mov_b32 s26, {0 if opt('abl',0)&1 else 1605632}
s_mov_b32 s27, 0x20000
s_mov_b32 s30, {0 if opt('abl',0)&2 else 1605632}
s_mov_b32 s31, 0x20000
s_mov_b32 s34, 1835008
s_mov_b32 s35, 0x20000
s_mov_b32 s64, 0
s_mov_b32 s65, -1
s_mov_b32 s{sONES}, 0x3f803f80
s_mov_b32 s{sMASK}, 0xbfffbfff
s_mov_b32 s{sHIM}, 0xffff0000
s_mov_b32 s{sSPIN}, 0
s_cmp_ge_u32 s{sR}, 7
s_cselect_b32 s{sU}, 1, 0
s_mul_i32 s{sA}, s{sU}, 7
s_sub_u32 s{sC}, s{sR}, s{sA}""")
sT3 = 67
if opt("map3", 0):
    I(f"""s_and_b32 s{sA}, s{sT2}, 12
s_and_b32 s{sD}, s{sT2}, 1
s_lshl_b32 s{sD}, s{sD}, 1
s_add_u32 s{sA}, s{sA}, s{sD}
s_add_u32 s{sT3}, s{sA}, s{sU}
s_bfe_u32 s{sA}, s{sT2}, 0x10001
s_mul_i32 s{sA}, s{sA}, 7
s_add_u32 s{sR}, s{sA}, s{sC}""")
else: I(f"s_mov_b32 s{sT3}, s{sT2}")
for g in range(7): I(f"s_mul_i32 s{sKW+g}, s{sKX+g}, {172032//128}")
I(f"""s_mul_i32 s{sWB}, s{sH}, 56
s_mul_i32 s{sD}, s{sW}, 43008
s_add_u32 s{sWB}, s{sWB}, s{sD}
s_mul_i32 s{sWQ}, s{sHQ}, 56
s_add_u32 s{sWQ}, s{sWQ}, s{sD}
s_add_u32 s{sWB}, s{sWB}, 896
s_lshl_b32 s{sWM}, s{sW}, 10
s_lshl_b32 s{sA}, s{sH}, 4
s_add_u32 s{sA}, s{sA}, s{sT}
s_mul_i32 s{sA}, s{sA}, 5120
s_add_u32 s{sA}, s{sA}, {WS_PART}
s_add_u32 s{sPST}, s{sA}, s{sWM}
s_lshl_b32 s{sD}, s{sW}, 8
s_add_u32 s{sA}, s{sA}, s{sD}
s_add_u32 s{sPCK}, s{sA}, 4096
s_lshl_b32 s{sA}, s{sT}, 2
s_add_u32 s{sA}, s{sA}, s{sW}
s_lshl_b32 s{sA}, s{sA}, 15
s_lshl_b32 s{sB}, s{sHQ}, 11
s_add_u32 s{sA}, s{sA}, s{sB}
s_add_u32 s{sOST}, s{sA}, {WS_O}
s_lshl_b32 s{sA}, s{sT2}, 2
s_lshl_b32 s{sB}, s{sU}, 1
s_add_u32 s{sA}, s{sA}, s{sB}
s_and_b32 s{sB}, s{sW}, 1
s_add_u32 s{sTILE}, s{sA}, s{sB}
s_mul_i32 s{sA}, s{sA}, {32*896}
s_lshl_b32 s{sB}, s{sC}, 7
s_add_u32 s{sA}, s{sA}, s{sB}
s_mul_i32 s{sD}, s{sW}, {16*896}
s_add_u32 s{sXRB}, s{sA}, s{sD}
s_mul_i32 s{sA}, s{sTILE}, {32*896}
s_add_u32 s{sA}, s{sA}, s{sB}
s_lshr_b32 s{sB}, s{sW}, 1
s_lshl_b32 s{sB}, s{sB}, 6
s_add_u32 s{sOUT}, s{sA}, s{sB}
s_mul_i32 s{sP}, s{sHQ}, {16*5120}
s_add_u32 s{sP}, s{sP}, {WS_PART}""")
WPK, WPQ, WPT = 192, 200, 208
vWPA, vWPB, vKVX, vIMW, vKA, vKB, vFPD, vFPC, vWO0, vWO1, vXRD0, vXRD1, vXRR, vWOR = range(128, 142)
I(f"""v_lshrrev_b32 v3, 5, v1
v_lshlrev_b32 v2, 4, v1
v_lshlrev_b32 v4, 2, v1
v_bfe_u32 v11, v1, 3, 2
v_lshl_add_u32 v11, v11, 2, v8
v_bfe_u32 v12, v1, 2, 1
v_mul_u32_u24 v12, 14, v12
v_min_u32 v13, 13, v11
v_add_u32 v13, v13, v12
v_lshlrev_b32 v13, 1, v13
v_mul_u32_u24 v14, 224, v3
v_add_u32 v{vWPA}, v13, v14
v_lshl_add_u32 v{vWPB}, v3, 20, v{vWPA}
v_add_u32 v12, v12, v11
v_cmp_gt_u32 vcc, 14, v11
v_lshrrev_b32 v7, 2, v1
v_mul_u32_u24 v7, 2688, v7
v_cndmask_b32 v12, 28, v12, vcc
v_and_b32 v13, 15, v12
v_lshlrev_b32 v13, 4, v13
v_lshrrev_b32 v12, 4, v12
v_lshl_add_u32 v13, v12, 3, v13
v_lshl_add_u32 v13, v3, 8, v13
v_add_u32 v{vKVX}, {L_KVX}, v13
v_lshlrev_b32 v11, 4, v8
v_min_u32 v11, 40, v11
v_add_u32 v7, v7, v11
v_and_b32 v9, 31, v1
v_lshlrev_b32 v240, 7, v9
v_bfe_u32 v11, v1, 1, 3
v_xor_b32 v11, v11, v3
v_lshl_add_u32 v240, v11, 4, v240
v_add_u32 v240, s{sXO}, v240
v_xor_b32 v241, 32, v240
v_xor_b32 v242, 64, v240
v_xor_b32 v243, 96, v240
v_mov_b32 v250, 0
v_mov_b32 v251, 0
s_lshl_b32 s{sA}, s{sW}, 5
v_add_u32 v10, s{sA}, v9
v_mul_u32_u24 v10, 208, v10
v_mul_u32_u24 v11, 96, v3
v_add_u32 v{vIMW}, v10, v11
v_lshrrev_b32 v10, 4, v1
v_bfe_u32 v15, v1, 2, 2
v_lshl_add_u32 v10, v10, 3, v15
v_mul_u32_u24 v10, 208, v10
v_and_b32 v11, 1, v1
v_mul_u32_u24 v11, 96, v11
v_add_u32 v10, v10, v11
v_bfe_u32 v11, v1, 1, 1
v_lshl_add_u32 v10, v11, 3, v10
v_add_u32 v{vKB}, {L_IMG}, v10
s_lshl_b32 s{sA}, s{sW}, 4
v_add_u32 v{vKA}, s{sA}, v{vKB}
v_add_u32 v{vFPD}, s{sWM}, v2
s_lshl_b32 s{sD}, s{sW}, 8
s_add_u32 s{sD}, s{sD}, 4096
v_add_u32 v{vFPC}, s{sD}, v4
v_lshrrev_b32 v12, 3, v1
v_mul_u32_u24 v14, 896, v12
v_and_b32 v13, 7, v1
v_xor_b32 v12, v12, v13
v_lshl_add_u32 v{vXRD0}, v12, 4, v14
v_add_u32 v{vXRD1}, {7168-1024}, v{vXRD0}
v_bfe_u32 v12, v1, 4, 1
v_lshlrev_b32 v11, 2, v12
v_xor_b32 v11, v11, v13
v_lshl_add_u32 v{vWO0}, v11, 4, v14
v_add_u32 v{vWO1}, {7168-1024}, v{vWO0}
s_and_b32 s{sA}, s{sW}, 1
s_lshl_b32 s{sA}, s{sA}, 12
s_add_u32 s{sA}, s{sA}, {L_XCH}
v_lshlrev_b32 v10, 7, v9
v_lshl_add_u32 v10, v3, 3, v10
v_add_u32 v10, s{sA}, v10
s_lshr_b32 s{sA}, s{sW}, 1
s_lshl_b32 s{sB}, s{sA}, 2
v_xor_b32 v13, s{sB}, v13
v_lshl_add_u32 v{vXRR}, v13, 4, v10
v_mad_u32_u24 v10, v3, 14, v15
v_lshlrev_b32 v10, 7, v10
v_bfe_u32 v13, v1, 3, 1
v_xor_b32 v13, v13, v3
v_xor_b32 v13, s{sA}, v13
v_lshl_add_u32 v10, v13, 6, v10
v_lshl_add_u32 v10, v12, 5, v10
v_lshl_add_u32 v10, v8, 3, v10
s_mul_i32 s{sA}, s{sA}, {8*28*128}
s_add_u32 s{sA}, s{sA}, {L_WO}
v_add_u32 v{vWOR}, s{sA}, v10
v_lshl_add_u32 v11, v3, 3, v15
v_lshlrev_b32 v11, 6, v11
v_lshl_add_u32 v12, v12, 2, v8
v_cmp_lt_u32 vcc, 5, v12
v_xor_b32 v13, 1, v12
s_mul_i32 s{sA}, s{sH}, 1568
s_mul_i32 s{sB}, s{sHQ}, 1568
v_cndmask_b32 v12, v12, v13, vcc
v_lshl_add_u32 v11, v12, 3, v11
v_add_u32 v13, {L_WK}, v11""")
I(f"""v_bfe_u32 v10, v1, 2, 1
v_bfe_u32 v14, v1, 4, 1
v_lshl_add_u32 v10, v14, 1, v10
v_cmp_eq_u32 vcc, v10, v3
v_and_b32 v10, 1, v1
v_lshlrev_b32 v10, 4, v10
v_mov_b32 v14, 0x3f80
v_lshlrev_b32 v10, v10, v14
v_cndmask_b32 v10, 0, v10, vcc
v_bfe_u32 v14, v1, 3, 1
v_bfe_u32 v15, v1, 1, 1
v_lshl_add_u32 v14, v14, 1, v15""")
for q in range(4): I(f"v_cmp_eq_u32 vcc, {q}, v14\nv_cndmask_b32 v15, 0, v10, vcc\nv_accvgpr_write_b32 a{220+q}, v15")
I(f"""v_lshlrev_b32 v{vL512}, 9, v1
s_lshl_b32 s{sFS}, s{sH}, 13
s_lshl_b32 s{sD}, s{sW}, 7
s_add_u32 s{sD}, s{sD}, {WS_FLG}
s_add_u32 s{sFS}, s{sFS}, s{sD}
s_lshl_b32 s{sCt}, s{sT}, 2
s_add_u32 s{sFS}, s{sFS}, s{sCt}
s_lshl_b32 s{sFP}, s{sHQ}, 13
s_add_u32 s{sFP}, s{sFP}, s{sD}
s_lshl_b32 s{sCt}, s{sT}, 9
s_add_u32 s{sFP}, s{sFP}, s{sCt}
v_and_b32 v{vPO}, 60, v4""")
stamp("setup done", "p")
def wphi(dst, tmp, so):
    q = []
    for t in range(2):
        for j in range(8):
            d = 16 * t + 8 * (j >> 2) + (j & 3)
            av = vWPB if (t == 1 and j >= 4) else vWPA
            r = (dst if j % 2 == 0 else tmp) + 4 * t + j // 2
            op = "buffer_load_short_d16" if j % 2 == 0 else "buffer_load_short_d16_hi"
            q += mk(f"{op} v{r}, v{av}, {WPHI}, s{so} offen offset:{d*56}")
    return q
def wkdma(g): return flat(dmag([7], WQKV, sWB, f"s{sKW+g}", sWM, L_WK + 4096*g, f"wk{g}"))
def wvdma(g): return flat(dmag([9], WQKV, sWB, f"s{sKW+g}", sWM, L_WV + 4096*g, f"wv{g}"))
def wqdma(g): return flat(dmag([7], WQKV, sWQ, f"s{sKW+g}", sWM, L_WQ + 4096*g, f"wq{g}"))
I("v_add_u32 v9, 896, v7")
XF = 16
NX0 = opt("nx0", 4)
if opt("wt1", 0): P.add(wtouch(opt("wt1", 0), 249))
for g in range(NXE, NX0): P.add(xdma(g))
pend = [xdma(g) for g in range(NX0, 7)]
wkl = [wkdma(g) for g in range(7)]
if opt("wt2", 0): pend[-1] = pend[-1] + wtouch(opt("wt2", 0), 248)
pend.append(wkl.pop(0) + wphi(WPK, WPT, sA))
pend.append(wkl.pop(0) + wphi(WPQ, WPT+8, sB))
while len(pend) < 7: pend.append(wkl.pop(0))
def xrd(g): return flat([mk(f"ds_read_b128 {v(XF+16*g+4*e,4)}, v{240+e} offset:{4096*g}") for e in range(4)])
P.wait("x0"); P.add(xrd(0))
for g in range(7):
    if pend: P.add(pend.pop(0))
    if g + 1 < 7: P.wait(f"x{g+1}"); P.add(xrd(g + 1))
    for i in range(16):
        r = XF + 16*g + i
        I(f"v_dot2c_f32_bf16 v250, s{sONES}, v{r}\nv_dot2c_f32_bf16 v251, v{r}, v{r}")
    if g == 0: stamp("x0 done", "p")
for x_ in pend: P.add(x_)
stamp("x stats done", "mp")
I(f"""v_permlane32_swap_b32 v250, v251
v_or_b32 v5, 1, v5
s_mov_b32 s{sA}, 0x9E3779B5
v_add_f32 v250, v250, v251
v_mul_f32 v250, {fhex(-1/448)}, v250
v_mov_b32 v251, v250
v_mul_lo_u32 v5, v5, s{sA}
s_mov_b32 s{sA}, 0x3f80
v_permlane32_swap_b32 v250, v251
s_mov_b32 s{sB}, 0x3f800000""")
fin = mk(f"""v_fma_f32 v251, -v250, v250, -v251
v_max_f32 v251, 0, v251
v_add_f32 v251, 0x3727c5ac, v251
v_rsq_f32 v251, v251
s_lshl_b32 s{sQ}, s{sC}, 7
s_mul_i32 s{sD}, s{sW}, {16*896}
v_mul_f32 v252, 0x3fb8aa3b, v251
v_mul_f32 v253, 0xbfb8aa3b, v251
s_add_u32 s{sQ}, s{sQ}, s{sD}
s_lshl_b32 s{sXO}, s{sW}, 11""")
if opt("noid", 1): fin = [mk(f"s_cmp_ge_u32 s{sRact}, 14\ns_cselect_b32 s22, 0, s22")] + fin
ACK = 144; ACV = 160; PK = 176; IMG = 208; TMP = 232
def norm(t):
    q = Prog(); tb = TMP + 8 * (t & 1)
    for i in range(4):
        r = XF + 4 * t + i
        q.I(f"v_dot2_f32_bf16 v{tb+2*i}, v{r}, s{sA}, v250\nv_dot2_f32_bf16 v{tb+2*i+1}, v{r}, s{sB}, v250")
    return q.items
def normc(t):
    tb = TMP + 8 * (t & 1)
    return flat([mk(f"v_cvt_pk_bf16_f32 v{XF+4*t+i}, v{tb+2*i}, v{tb+2*i+1}") for i in range(4)])
def l2t(srd, k, dst):
    return mk(f"""s_lshr_b32 s{sCt}, s2, 3
s_lshl_b32 s{sCt}, s{sCt}, 2
s_add_u32 s{sCt}, s{sCt}, s{sW}
s_mul_i32 s{sCt}, s{sCt}, {98*128}
s_mov_b32 exec_hi, 0x1ffff
s_add_u32 s{sCt}, s{sCt}, {k*49*128}
buffer_load_dword v{dst}, v6, {srd}, s{sCt} offen
s_mov_b32 exec_hi, -1""")
L2A, L2B = opt("l2a", -1), opt("l2b", -1)
ns = norm(0)
for t in range(1, 28): ns += norm(t) + normc(t - 1)
ns += normc(27)
NBAR = opt("nbar", 100)
wvl = [wvdma(k) for k in range(7)]
if opt("loop2", 0):
    I("s_mov_b32 s80, 0\nL_lp2:\ns_mov_b32 s101, s100\ns_memtime s[78:79]\ns_waitcnt lgkmcnt(0)\ns_mov_b32 s99, s78")
    P.add([Ins(x.text) for x in ns])
    I("s_memtime s[78:79]\ns_waitcnt lgkmcnt(0)\ns_sub_u32 s100, s78, s99\ns_add_u32 s100, s100, s88\ns_add_u32 s80, s80, 1\ns_cmp_lt_u32 s80, 2\ns_cbranch_scc1 L_lp2")
    nstamp[0] = 14
P.add(sprinkle(ns[:NBAR], wkl, 0, opt("wkstep", 30)))
I("s_barrier")
NWV0 = opt("nwv0", 3)
P.add(sprinkle(ns[NBAR:], [wvl.pop(0) for _ in range(NWV0)], opt("wv0", 60), opt("wvstep", 60)))
P.wait(*[f"wk{k}" for k in range(7)]); I("s_barrier")
stamp("wk landed", "p")
AH = 6
pro, gk = gemm_lds([(13, 1024*t, 1024*t + 256, (XF + 4*t, ACK, t == 0, False)) for t in range(28)], AH)
P.add(pro)
S = Sched(gk)
S.spread(wvl, 0, opt("wve", 28))
for k, ps in enumerate((L2A, L2B)):
    if 0 <= ps < 28: S.at(ps, l2t(W1, k, 248 + k))
S.spread(fin + flat([mk(f"v_or_b32 v{WPK+q}, v{WPK+q}, v{WPT+q}\nv_or_b32 v{WPQ+q}, v{WPQ+q}, v{WPT+8+q}") for q in range(8)]), 2, 26)
P.add(S.emit())
def phi_pre(acc, wp):
    q = Prog()
    for i in range(8): q.I(f"v_cvt_pk_bf16_f32 v{acc+i}, v{acc+2*i}, v{acc+2*i+1}")
    q.I(f"{MF} {v(PK,16)}, {v(wp,4)}, {v(acc,4)}, 0\n{MF} {v(PK,16)}, {v(wp+4,4)}, {v(acc+4,4)}, {v(PK,16)}")
    return q.items
stamp("k gemm done", "mp")
wql = [wqdma(k) for k in range(7)]
P.add(wql.pop(0))
P.add(phi_pre(ACK, WPK))
imw = flat([mk(f"ds_write_b128 v{vIMW}, {v(IMG+4*i,4)} offset:{L_IMG+16*i}") for i in range(3)]) + mk(f"ds_write_b64 v{vIMW}, {v(IMG+12,2)} offset:{L_IMG+48}")
touch = mk(f"""s_mul_i32 s{sA}, s2, {52*128}
s_mul_i32 s{sB}, s{sW}, {13*128}
s_add_u32 s{sA}, s{sA}, s{sB}
s_mov_b64 exec, 0x1fff
buffer_load_dword v255, v6, {W1}, s{sA} offen
buffer_load_dword v254, v6, {W2}, s{sA} offen
s_mov_b64 exec, -1""")
smk = sprinkle(softmax(PK, TMP, IMG, True), [wql.pop(0) for _ in range(opt("nwq0", 3))], 10, opt("wqs", 40))
P.add(smk)
P.wait(*[f"wv{k}" for k in range(7)]); I("s_barrier")
stamp("softmax k done", "p")
pro, gv = gemm_lds([(11, L_WV + 1024*t, L_WV + 1024*t + 256, (XF + 4*t, ACV, t == 0, False)) for t in range(28)], AH)
P.add(pro)
S = Sched(gv)
S.spread(imw, 2, 10)
wo_l = flat([dmag([vWO0, vWO1], WO, sQ, i*64*896, sXO, L_WO + 8192*i, "wo", sDM) for i in range(7)] + [dmag([vXRD0, vXRD1], X, sXRB, 0, sXO, L_XCH, "wo", sDM)])
S.spread(wql, 0, 14)
if L2A >= 0: touch = [x for x in touch if W1 not in x.text]
if opt("touch", 1): S.at(15, touch)
for k, ps in enumerate((L2A, L2B)):
    if 200 <= ps < 228: S.at(ps - 200, l2t(W1, k, 248 + k))
S.spread([wo_l.pop(0) for _ in range(2*opt("nwo0", 0))], 17, 28)
P.add(S.emit())
for k in range(0, 16, 2): I(f"v_pk_mul_f32 {v(ACV+k,2)}, {v(ACV+k,2)}, v[250:251] op_sel:[0,1] op_sel_hi:[1,1]")
I(f"v_cndmask_b32 v{ACV+12}, v{ACV+12}, 1.0, {sHI}")
for i in range(8): I(f"v_cvt_pk_bf16_f32 v{IMG+16+i}, v{ACV+2*i}, v{ACV+2*i+1}")
for i in range(4, 6): I(f"ds_write_b128 v{vIMW}, {v(IMG+4*i,4)} offset:{L_IMG+16*i}")
P.wait("wq0", "wq1", "wq2", "wq3")
I("s_waitcnt lgkmcnt(0)\ns_barrier")
stamp("img written", "p")
KA = 144; KBv = 208; KD = 176
for k in range(4):
    for u in range(2):
        I(f"ds_read_b64_tr_b16 {v(KA+4*k+2*u,2)}, v{vKA} offset:{(32*k+4*u)*208}")
    for nu in range(2):
        for u in range(2):
            I(f"ds_read_b64_tr_b16 {v(KBv+8*k+4*nu+2*u,2)}, v{vKB} offset:{(32*k+4*u)*208+64+16*nu}")
proq, gq = gemm_lds([(11, L_WQ + 1024*t, L_WQ + 1024*t + 256, (XF + 4*t, ACV, t == 0, False)) for t in range(28)], AH)
for k in range(4):
    for nu in range(2):
        I(f"v_mfma_f32_16x16x32_bf16 {v(KD+4*nu,4)}, {v(KA+4*k,4)}, {v(KBv+8*k+4*nu,4)}, {'0' if k == 0 else v(KD+4*nu,4)}")
P.add(proq[:8])
for i in range(4): I(f"v_cvt_pk_bf16_f32 v{KD+8+i}, v{KD+2*i}, v{KD+2*i+1}")
I(f"buffer_store_dwordx4 {v(KD+8,4)}, v2, {WS}, s{sPST} offen sc1")
I(f"v_xor_b32 v10, v{KD+8}, v5")
I(f"buffer_store_dword v10, v4, {WS}, s{sPCK} offen sc1")
if GATE & 1: P.add(flag_store(16))
P.add(proq[8:])
stamp("partial stored", "mp")
sW1B, sW1M, sW2E, sW2L = 40, 41, 42, 43
set2 = mk(f"""v_lshrrev_b32 v10, 4, v1
v_mul_u32_u24 v12, 3584, v10
v_lshlrev_b32 v10, 2, v10
v_and_b32 v13, 15, v1
v_xor_b32 v10, v10, v13
v_lshl_add_u32 v12, v10, 4, v12
v_add_u32 v13, {4*3584-1024}, v12
v_add_u32 v14, {2*(4*3584-1024)}, v12
v_add_u32 v15, {3*(4*3584-1024)}, v12
s_lshl_b32 s{sW1B}, s{sR}, 8
s_mul_i32 s{sD}, s{sW}, {16*3584}
s_add_u32 s{sW1B}, s{sW1B}, s{sD}
s_lshl_b32 s{sW1M}, s{sW}, 12
s_lshr_b32 s{sA}, s{sW}, 1
s_lshl_b32 s{sA}, s{sA}, 2
s_andn2_b32 s{sB}, 1, s{sW}
s_add_u32 s{sA}, s{sA}, s{sB}
s_lshl_b32 s{sB}, s{sU}, 1
s_add_u32 s44, s{sA}, s{sB}
s_xor_b32 s45, s44, 2
s_lshl_b32 s{sD}, s{sC}, 7
s_mul_i32 s{sW2E}, s44, {32*896}
s_add_u32 s{sW2E}, s{sW2E}, s{sD}
s_mul_i32 s{sW2L}, s45, {32*896}
s_add_u32 s{sW2L}, s{sW2L}, s{sD}
""")
vW2 = [vWO0, vWO1, 128, 129]
sSCR, sBIG = 46, 47
NRL = opt("nrl", 3)
RAWS = [2, 3] + list(range(7, 7 + NRL))
def UA(j): return 16*j
def w2slot(j): return (sSCR, 4096*{0:0, 1:1, 2:0, 3:1, 4:0, 5:1, 6:2}[j], 254) if j < 7 else (sBIG, 4096*(j - 7), 252)
def w2dma(j):
    mb, mo, _ = w2slot(j)
    return dmag(vW2, W2, sW2E if j < 7 else sW2L, (j%7)*256*896, mb, mo, f"w2_{j}", sDM)
def w2raw(j):
    ch = [mk(f"buffer_load_dwordx4 {a_(UA(j)+4*q,4)}, v{vW2[q]}, {W2}, s49 offen offset:{1024*q}") for q in range(4)]
    ch[0] = mk(f"s_add_u32 s49, s{sW2E if j < 7 else sW2L}, {(j%7)*256*896}") + ch[0]
    return ch
def w2rd(j):
    _, mo, av = w2slot(j)
    if j in RAWS: out = [mk(f"ds_write_b128 v{131 if j >= 7 else 134}, {a_(UA(j)+4*q,4)} offset:{mo+1024*q}") for q in range(4)]
    else: out = [[WaitTag([f"w2_{j}"])]]
    for e in range(2):
        for mu in range(2):
            for u in range(2): out.append(mk(f"ds_read_b64_tr_b16 {a_(UA(j)+8*e+4*mu+2*u,2)}, v{av+mu} offset:{mo+2048*e+1024*u}"))
    return out
raw = w2raw(2) + w2raw(3)
if opt("noid", 1): set2 = [mk(f"s_cmp_ge_u32 s{sRact}, 14\ns_cselect_b32 s26, 0, s26")] + set2
set2 += mk(f"v_add_u32 v128, {2*(7168-1024)}, v{vWO0}\nv_add_u32 v129, {3*(7168-1024)}, v{vWO0}")
S = Sched(gq)
S.spread(wo_l, 0, opt("woe", 28))
S.spread(set2, 2, 18)
S.spread([raw.pop(0) for _ in range(opt("rawa", 0))], 20, 28)
G0 = gate("g0", vPO, vPF)
if GATE & 1: S.at(opt("g0", 14), G0.load(0))
S.at(15 - AH, [WaitTag(["wq4", "wq5", "wq6"])] + mk("s_barrier"), 1.0)
P.add(S.emit())
stamp("q gemm done", "p")
G = 16; GC = 80; SA = 96
FP = Fetch("fp", [([f"s_add_u32 s{sCt}, s{sP}, {5120*T}\nbuffer_load_dwordx4 {v(G+4*T,4)}, v{vFPD}, {WS}, s{sCt} offen sc1\nbuffer_load_dword v{GC+T}, v{vFPC}, {WS}, s{sCt} offen sc1"],
                   [G+4*T, GC+T]) for T in range(16)])
P.add(phi_pre(ACV, WPQ))
if GATE & 1: P.add(G0.check(0, 0))
I("s_barrier")
PQ = 208
P.add(sprinkle(softmax(PK, TMP, PQ, True), [FP.load(T) for T in range(16)], opt("fp0", 0), opt("fpstep", 8)))
stamp("softmax q done", "p")
w1_l = flat([dmag([12, 13, 14, 15], W1, sW1B, i*64*3584, sW1M, 16384*i, "w1", sDM) for i in range(7)])
def fpb(b):
    t = []
    for k, T in enumerate(range(4*b, 4*b+4)):
        t.append(f"v_bitop3_b32 v{10 if k == 0 else 9}, v{G+4*T}, v{GC+T}, v5 {X3}" + ("" if k == 0 else "\nv_or_b32 v10, v10, v9"))
    return "\n".join(t) + "\nv_cmp_ne_u32 vcc, 0, v10"
I("s_branch L_fp_go\nL_fp_retry:")
for b in range(4):
    I(fpb(b) + f"\ns_cbranch_vccz L_fp_k{b}\n" + "\n".join(FP.pieces[T][0][0] for T in range(4*b, 4*b+4)) + f"\nL_fp_k{b}:", unc=True)
I(GUARD, unc=True)
I("L_fp_go:")
I(fpb(0) + "\ns_cbranch_vccnz L_fp_retry")
S = Sched([mk(f"{MF} {v(SA,16)}, a[220:223], {v(G+4*T,4)}, {'0' if T == 0 else v(SA,16)}") for T in range(16)])
for b in range(1, 4): S.spread(mk(fpb(b) + "\ns_cbranch_vccnz L_fp_retry"), 4*b - 3, 4*b)
S.spread([w1_l.pop(0) for _ in range(opt("nw1a", 2))], 12, 16)
P.add(S.emit())
I(f"v_add_u32 v9, {L_KVX}, v{vFPD}")
for i in range(4): I(f"v_cvt_pk_bf16_f32 v{SA+8+i}, v{SA+2*i}, v{SA+2*i+1}")
I(f"ds_write_b128 v9, {v(SA+8,4)}\ns_waitcnt lgkmcnt(0)\ns_barrier")
stamp("kv summed", "mp")
KVA = 32; OD = 48
for q in range(7): I(f"ds_read_b64 {v(KVA+2*q,2)}, v{vKVX} offset:{512*q}")
P.add(w1_l.pop(0))
for s in range(3):
    I(f"{MF} {v(OD,16)}, {v(KVA+4*s,4)}, {v(PQ+4*s,4)}, {'0' if s == 0 else v(OD,16)}")
    if s == 1: P.add(w1_l.pop(0))
I(f"v_mfma_f32_32x32x8_bf16 {v(OD,16)}, {v(KVA+12,2)}, {v(PQ+12,2)}, {v(OD,16)}")
I(f"""s_lshl_b32 s{sP}, s{sTILE}, 15
s_lshr_b32 s{sB}, s{sW}, 1
s_lshl_b32 s{sB}, s{sB}, 14
s_add_u32 s{sP}, s{sP}, s{sB}
s_add_u32 s{sP}, s{sP}, {WS_O}
s_add_u32 s{sA}, s{sW1M}, {L_XCH}
v_add_u32 v132, s{sA}, v2
v_xor_b32 v133, 8192, v132
s_lshr_b32 s{sA}, s{sW}, 1
s_mul_i32 s{sA}, s{sA}, 7
s_lshl_b32 s{sB}, s{sT}, 4
s_add_u32 s{sA}, s{sA}, s{sB}
s_lshl_b32 s{sA}, s{sA}, 2
s_lshr_b32 s{sB}, s{sHQ}, 3
s_lshl_b32 s{sB}, s{sB}, 1
s_add_u32 s{sA}, s{sA}, s{sB}
s_and_b32 s{sB}, s{sW}, 1
s_add_u32 s{sA}, s{sA}, s{sB}
s_lshl_b32 s{sA}, s{sA}, 7
s_and_b32 s{sB}, s{sHQ}, 7
s_lshl_b32 s{sB}, s{sB}, 2
s_add_u32 s{sA}, s{sA}, s{sB}
s_add_u32 s{sFS}, s{sA}, {WS_FLG + 131072}
v_xor_b32 v9, 64, v{vWOR}
v_and_b32 v7, 31, v1
v_mul_u32_u24 v7, 896, v7
v_add_f32 v{OD+14}, 0x358637bd, v{OD+14}
v_rcp_f32 v{OD+14}, v{OD+14}
v_lshl_add_u32 v7, v3, 4, v7""")
for k in range(0, 14, 2): I(f"v_pk_mul_f32 {v(OD+k,2)}, {v(OD+k,2)}, {v(OD+14,2)} op_sel_hi:[1,0]")
for k in range(4): I(f"v_cvt_pk_bf16_f32 v{64+k}, v{OD+2*k}, v{OD+2*k+1}")
I(f"buffer_store_dwordx4 v[64:67], v2, {WS}, s{sOST} offen sc1")
for k in range(4, 7): I(f"v_cvt_pk_bf16_f32 v{64+k}, v{OD+2*k}, v{OD+2*k+1}")
I(f"""v_bitop3_b32 v71, v64, v5, s{sMASK} bitop3:0x28
v_and_b32 v6, s{sMASK}, v5
buffer_store_dwordx4 v[68:71], v2, {WS}, s{sOST} offen offset:1024 sc1""")
if GATE & 2: P.add(flag_store(7))
stamp("o stored", "mo")
I(f"""s_mul_i32 s{sA}, s{sU}, 7
s_add_u32 s{sA}, s{sA}, s{sC}
s_lshl_b32 s{sB}, s{sT2}, 4
s_add_u32 s{sA}, s{sA}, s{sB}
s_lshl_b32 s{sA}, s{sA}, 2
s_add_u32 s{sA}, s{sA}, s{sW}
s_lshl_b32 s66, s{sA}, 7
s_add_u32 s{sFP}, s66, {WS_FLG + 131072}
v_and_b32 v{vPO}, 28, v4""")
P.wait("wo")
I(f"s_cmp_ge_u32 s{sRact}, 14\ns_cbranch_scc1 L_idle\ns_barrier")
wor = []
for s in range(16):
    hh, e = s >> 1, s & 1
    for k, av in ((0, vWOR), (1, 9)):
        for u in range(2):
            wor += mk(f"ds_read_b64_tr_b16 {a_(128+8*s+4*k+2*u,2)}, v{av} offset:{(28*hh+8*e+4*u)*128}")
XR = 224
xrr = []
for i in range(4): xrr += mk((f"v_xor_b32 v10, {16*i}, v{vXRR}\n" if i else "") + f"ds_read_b64 {v(XR+2*i,2)}, v{10 if i else vXRR}")
P.add(xrr)
G1 = gate("g1", vPO, vPF)
nb_ = min(opt("nw1b", 12), len(w1_l) - 8)
wor = sprinkle(wor, [w1_l.pop(0) for _ in range(nb_)], 0, opt("w1bs", 5))
if GATE & 2: wor = sprinkle(wor, [G1.load(0)], opt("g1", 40), 1)
P.add(wor)
OB = 16
FO = Fetch("fo", [([f"s_add_u32 s{sCt}, s{sP}, {2048*hh}\nbuffer_load_dwordx4 {v(OB+8*hh,4)}, v2, {WS}, s{sCt} offen sc1\nbuffer_load_dwordx4 {v(OB+8*hh+4,4)}, v2, {WS}, s{sCt} offen offset:1024 sc1"],
                   [OB+8*hh, OB+8*hh+7]) for hh in range(8)], masked=True, nre=opt('reo', 2))
stamp("pre o fetch", "o")
AO, AT = 80, 96
pre2 = []
for i in range(8): pre2 += mk(f"v_lshlrev_b32 v{112+2*i}, 16, v{XR+i}\nv_and_b32 v{113+2*i}, s{sHIM}, v{XR+i}")
for s in range(1, 16, 2): pre2 += mk(f"v_accvgpr_write_b32 a{128+8*s+3}, 0\nv_accvgpr_write_b32 a{128+8*s+7}, 0")
if GATE & 2:
    P.add(pre2); P.add(G1.check(0, 0))
    stamp("gate1", "o")
    for hh in range(8): P.add(FO.load(hh))
else: P.add(sprinkle(pre2, [FO.load(hh) for hh in range(8)], 0, 4))
I("s_waitcnt lgkmcnt(0)\ns_barrier")
stamp("fo issued", "o")
g2 = []
for s in range(16):
    for k, acc in ((1, AT), (0, AO)):
        c = ("0" if k else v(112,16)) if s == 0 else v(acc,16)
        g2.append(mk(f"{MF} {v(acc,16)}, {a_(128+8*s+4*k,4)}, {v(OB+4*s,4)}, {c}"))
set3 = mk(f"""s_mul_i32 s{sSCR}, s{sW}, 12288
s_mul_i32 s{sBIG}, s{sW}, 28672
v_add_u32 v131, s{sBIG}, v2
s_lshl_b32 s{sB}, s{sC}, 1
s_lshr_b32 s{sD}, s{sW}, 1
s_add_u32 s{sB}, s{sB}, s{sD}
s_lshl_b32 s{sFS}, s{sB}, 2
s_lshl_b32 s{sA}, s{sT2}, 13
s_add_u32 s{sFS}, s{sFS}, s{sA}
s_and_b32 s{sA}, s{sTILE}, 3
s_lshl_b32 s{sA}, s{sA}, 7
s_add_u32 s{sFS}, s{sFS}, s{sA}
s_add_u32 s{sFS}, s{sFS}, {WS_FLG + 2*131072}
s_mul_i32 s{sA}, s{sTILE}, 14
s_add_u32 s{sB}, s{sB}, s{sA}
s_mul_i32 s{sPST}, s{sB}, 2560
s_add_u32 s{sPST}, s{sPST}, {WS_H}
s_lshr_b32 s48, s{sW}, 1
s_nop 0
v_bfe_u32 v9, v1, 2, 2
v_lshl_add_u32 v240, v3, 2, v9
v_lshlrev_b32 v254, 7, v240
v_lshlrev_b32 v240, 8, v240
v_xor_b32 v9, s{sW}, v9
v_lshl_add_u32 v240, v9, 6, v240
v_bfe_u32 v9, v1, 4, 1
v_lshlrev_b32 v9, 5, v9
v_lshl_add_u32 v9, v8, 3, v9
v_add_u32 v240, v240, v9
v_add_u32 v254, v254, v9
v_bfe_u32 v9, v1, 3, 1
v_xor_b32 v9, s48, v9
v_lshl_add_u32 v254, v9, 6, v254
s_add_u32 s{sSCR}, s{sSCR}, {L_SCR}
v_add_u32 v252, s{sBIG}, v254
v_xor_b32 v253, 64, v252
v_add_u32 v254, s{sSCR}, v254
v_add_u32 v134, s{sSCR}, v2
v_xor_b32 v255, 64, v254
v_xor_b32 v241, 64, v240
v_xor_b32 v242, 128, v240
v_xor_b32 v243, 192, v240""") + flat([mk(f"v_add_u32 v{244+m}, 57344, v{240+m}") for m in range(4)])
P.add(sprinkle(set3[:21], [w1_l.pop(0) for _ in range(opt("nw1c", 4))], 0, 5))
P.add(FO.check(0, 7))
stamp("fo0", "o")
S = Sched(g2)
for hh in range(1, 8): S.spread(FO.checkc(hh, 7), 4*hh - 3, 4*hh)
S.spread(w1_l + [raw.pop(0) for _ in range(min(len(raw), opt("rawb", 4)))], 0, 32)
S.spread(set3[21:], 0, 30)
P.add(S.emit())
stamp("p2 gemm done", "o")
for i in range(4): I(f"ds_write_b128 v132, {v(AT+4*i,4)} offset:{1024*i}")
I("v_mov_b32 v112, 0\nv_mov_b32 v113, 0\ns_waitcnt lgkmcnt(0)\ns_barrier")
for i in range(4): I(f"ds_read_b128 {v(AT+4*i,4)}, v133 offset:{1024*i}")
HR = XR
for k in range(0, 8, 2): I(f"v_pk_add_f32 {v(AO+k,2)}, {v(AO+k,2)}, {v(AT+k,2)}")
for i in range(4): I(f"v_cvt_pk_bf16_f32 v{HR+i}, v{AO+2*i}, v{AO+2*i+1}")
I(f"buffer_store_dwordx4 {v(HR,4)}, v2, {WS}, s{sPST} offen sc1")
for k in range(8, 16, 2): I(f"v_pk_add_f32 {v(AO+k,2)}, {v(AO+k,2)}, {v(AT+k,2)}")
for i in range(4, 8): I(f"v_cvt_pk_bf16_f32 v{HR+i}, v{AO+2*i}, v{AO+2*i+1}")
I(f"buffer_store_dwordx4 {v(HR+4,4)}, v2, {WS}, s{sPST} offen offset:1024 sc1")
for i in range(8): I(f"v_dot2c_f32_bf16 v112, s{sONES}, v{HR+i}\nv_dot2c_f32_bf16 v113, v{HR+i}, v{HR+i}")
I(f"""v_bitop3_b32 v10, v{HR}, v{HR+4}, v5 {X3}
v_permlane32_swap_b32 v112, v113
v_add_f32 v112, v112, v113
buffer_store_dword v112, v4, {WS}, s{sPST} offen offset:2048 sc1
v_xor_b32 v113, v10, v112
buffer_store_dword v113, v4, {WS}, s{sPST} offen offset:2304 sc1""")
def selft(sreg, nl): return mk(f"s_mov_b64 exec, {(1 << nl) - 1}\nbuffer_load_dword v135, v134, {WS}, s{sreg} offen sc1\ns_mov_b64 exec, -1")
SELF = opt("self", 0)
if SELF & 1: P.add(selft(sPST, 20))
if GATE & 4: P.add(flag_store(14))
stamp("h stored", "moh")
HB = 16; ST = 192
ACC = [144, 160, 176, 192]; AUG = 232
set4 = mk(f"""s_lshl_b32 s{sB}, s{sT3}, 2
s_add_u32 s{sB}, s{sB}, s{sW}
s_mul_i32 s{sP}, s{sB}, {14*2560}
s_add_u32 s{sP}, s{sP}, {WS_H}
s_mul_i32 s{sA}, s{sB}, 56
s_lshl_b32 s{sD}, s{sR}, 2
s_add_u32 s{sA}, s{sA}, s{sD}
s_mul_i32 s{sQ}, s{sA}, 2304
s_add_u32 s{sQ}, s{sQ}, {WS_H1}
v_lshlrev_b32 v13, 3, v1
s_lshl_b32 s{sA}, s{sW}, 9
s_add_u32 s{sA}, s{sA}, {L_AUG}
v_add_u32 v13, s{sA}, v13
v_mov_b32 v222, 0
s_lshl_b32 s{sA}, s{sT3}, 4
s_add_u32 s{sA}, s{sA}, s{sR}
s_lshl_b32 s{sA}, s{sA}, 2
s_add_u32 s{sA}, s{sA}, s{sW}
s_lshl_b32 s{sA}, s{sA}, 7
s_add_u32 s{sFP}, s{sA}, {WS_FLG + 2*131072}
v_min_u32 v{vPO}, 52, v4
s_lshr_b32 s{sA}, s{sW}, 1
s_mul_i32 s{sA}, s{sA}, 7
s_lshl_b32 s{sB}, s{sT3}, 4
s_add_u32 s{sA}, s{sA}, s{sB}
s_lshl_b32 s{sA}, s{sA}, 2
s_and_b32 s{sB}, s{sR}, 1
s_lshl_b32 s{sB}, s{sB}, 1
s_add_u32 s{sA}, s{sA}, s{sB}
s_and_b32 s{sB}, s{sW}, 1
s_add_u32 s{sA}, s{sA}, s{sB}
s_lshl_b32 s{sA}, s{sA}, 7
s_lshr_b32 s{sB}, s{sR}, 1
s_lshl_b32 s{sB}, s{sB}, 2
s_add_u32 s{sA}, s{sA}, s{sB}
s_add_u32 s{sFS}, s{sA}, {WS_FLG + 3*131072}""")
FH = Fetch("fh", [([f"s_add_u32 s{sCt}, s{sP}, {2560*p}\nbuffer_load_dwordx4 {v(HB+8*p,4)}, v2, {WS}, s{sCt} offen sc1\nbuffer_load_dwordx4 {v(HB+8*p+4,4)}, v2, {WS}, s{sCt} offen offset:1024 sc1\n"
                    f"buffer_load_dword v{ST+2*p}, v4, {WS}, s{sCt} offen offset:2048 sc1\nbuffer_load_dword v{ST+2*p+1}, v4, {WS}, s{sCt} offen offset:2304 sc1"],
                   [HB+8*p, HB+8*p+4, ST+2*p, ST+2*p+1]) for p in range(14)], nre=opt('reh', 2))
for i in range(4): I(f"v_mov_b32 v{AUG+i}, s{sONES}")
P.wait("w1"); I("s_barrier")
stamp("w1 landed", "h")
def w1a(t, k): return (240 + k + (4 if t >= 14 else 0), (t % 14) * 4096, (t % 14) * 4096 + 2048)
st3 = [w1a(t, 0) + ((AUG, ACC[2], t == 0, True),) for t in range(28)]
for t in range(28):
    for k in range(3): st3.append(w1a(t, k) + ((HB + 4*t, ACC[k], t == 0, False),))
for t in range(28): st3.append(w1a(t, 3) + ((HB + 4*t, ACC[3], t == 0, False),))
pro, g3 = gemm_lds(st3, AH)
P.add(pro)
S3 = Sched(g3)
S3.spread(set4, 0, 12)
S3.spread(raw + w2dma(0) + w2dma(1), 0, opt("c0e", 20)); raw = []
NH0 = opt("nh0", 4); H0 = opt("h0", 20)
G2 = gate("g2", vPO, vPF)
if GATE & 4:
    S3.at(opt("g2", 12), G2.load(0), 0.9)
    S3.at(27, G2.check(0, 0) + stampi("gate2", "h") + flat([FH.load(p) for p in range(NH0)]), 0.5)
else: S3.spread(flat([FH.loadc(p) for p in range(NH0)]), H0, 27)
cs = ACC[2]
csx = mk(f"""v_cvt_pk_bf16_f32 v{AUG}, v{cs}, v{cs}
v_lshlrev_b32 v{AUG+1}, 16, v{AUG}
v_sub_f32 v{AUG+1}, v{cs}, v{AUG+1}
v_cvt_pk_bf16_f32 v{AUG}, v{cs}, v{AUG+1}
v_and_b32 v{AUG+1}, 0xffff, v{AUG}
v_cndmask_b32 v{AUG}, v{AUG}, 0, {sHI}
v_cndmask_b32 v{AUG+1}, v{AUG+1}, 0, {sHI}
ds_write_b64 v13, {v(AUG,2)}""")
S3.at(27, stampi("colsum done", "h") + csx + FH.check(0, NH0 - 1) + stampi("fh0", "h"), 1.0)
B0 = 28
for p in range(14):
    b = B0 + 6*p
    if p + NH0 < 14:
        for k_, c_ in enumerate(FH.loadc(p + NH0)): S3.at(b + (0, 2, 4, 4)[k_], c_, 0.2)
    S3.at(b, mk(f"v_add_f32 v222, v222, v{ST+2*p}"), 0.0)
    if p + 1 < 14: S3.spread(FH.checkc(p + 1, min(13, p + NH0 - 1)), b + 1, b + 6)
    if p in (3, 7, 11): S3.at(b + 5, stampi(f"fh{p+1}", "h"), 1.0)
S3.at(B0 + 20, mk("s_waitcnt lgkmcnt(0)\ns_barrier") + flat([mk(f"v_xor_b32 v9, {512*k}, v13\nds_read_b64 {v(AUG+2*k,2)}, v9") for k in range(1, 4)]), 0.0)
mid = mk(f"""v_mul_f32 v220, {fhex(1/448)}, v222
v_mov_b32 v221, v220
s_nop 0
v_permlane32_swap_b32 v220, v221
v_fma_f32 v221, -v220, v220, v221
v_max_f32 v221, 0, v221
v_add_f32 v221, 0x3727c5ac, v221
v_rsq_f32 v251, v221
v_cvt_pk_bf16_f32 v222, -v220, -v220
v_lshlrev_b32 v9, 16, v222
v_sub_f32 v9, -v220, v9
v_cvt_pk_bf16_f32 v223, v9, 0
v_mul_f32 v250, v221, v251
v_mul_f32 v251, 0xbfb8aa3b, v251
v_cndmask_b32 v222, v222, 0, {sHI}
v_cndmask_b32 v223, v223, 0, {sHI}""")
S3.spread(mid, B0 + 79, B0 + 84)
def aug(k): return mk(f"v_mfma_f32_32x32x8_bf16 {v(ACC[k],16)}, {v(AUG+2*k,2)}, v[222:223], {v(ACC[k],16)}")
SLT = 132
def silu(k, pk):
    q = Prog(); a = ACC[k]; t = 208
    q.I(f"s_xor_b32 s50, s{sW}, {k}\ns_mul_i32 s50, s50, 2304\ns_add_u32 s50, s50, s{sQ}")
    for half in range(2):
        b = a + 8 * half
        if pk:
            for j in range(0, 8, 2): q.I(f"v_pk_mul_f32 {v(t+j,2)}, {v(b+j,2)}, v[250:251] op_sel:[0,1] op_sel_hi:[1,1]")
        else:
            for j in range(8): q.I(f"v_mul_f32 v{t+j}, v{b+j}, v251")
        for j in range(8): q.I(f"v_exp_f32 v{t+j}, v{t+j}")
        if pk:
            for j in range(0, 8, 2): q.I(f"v_pk_fma_f32 {v(t+j,2)}, {v(t+j,2)}, v[250:251], v[250:251] op_sel_hi:[1,0,0]")
        else:
            for j in range(8): q.I(f"v_fma_f32 v{t+j}, v{t+j}, v250, v250")
        for j in range(8): q.I(f"v_rcp_f32 v{t+j}, v{t+j}")
        if pk:
            for j in range(0, 8, 2): q.I(f"v_pk_mul_f32 {v(b+j,2)}, {v(b+j,2)}, {v(t+j,2)}")
        else:
            for j in range(8): q.I(f"v_mul_f32 v{b+j}, v{b+j}, v{t+j}")
        for j in range(4): q.I(f"v_cvt_pk_bf16_f32 v{b+j}, v{b+2*j}, v{b+2*j+1}")
        q.I(f"buffer_store_dwordx4 {v(b,4)}, v2, {WS}, s50 offen offset:{1024*half} sc1")
    q.I(f"v_bitop3_b32 v216, v5, v{a}, v{a+8} {X3}")
    q.I(f"buffer_store_dword v216, v4, {WS}, s50 offen offset:2048 sc1")
    return q.items + ([selft(50, 18)] if SELF & 2 and not pk else [])
E0 = B0 + 84
assert not raw
S3.spread(w2rd(0) + w2rd(1) + w2rd(2) + w2rd(3), B0 + 22, B0 + 58)
S3.at(B0 + 44, mk("s_barrier"), 0.0)
WD = opt("wd", 64)
S3.spread(w2dma(4) + w2dma(5) + w2dma(6), B0 + WD, E0)
B4 = 16
CKR = [240, 241, 242, 244, 245, 246, 248, 249, 217, 218, 219, 130, 243, 247]
C4 = [[a_(224,16), a_(240,16)], [v(ACC[0],16), v(ACC[1],16)]]
set5 = mk(f"""s_mul_i32 s{sA}, s{sTILE}, 56
s_xor_b32 s{sB}, s{sTILE}, 1
s_mul_i32 s{sB}, s{sB}, 56
s_add_u32 s51, s{sB}, s44
s_add_u32 s52, s{sA}, s44
s_add_u32 s53, s{sB}, s45
s_add_u32 s54, s{sA}, s45""")
for k in range(4):
    set5 += mk(f"s_mul_i32 s{51+k}, s{51+k}, 2304\ns_add_u32 s{51+k}, s{51+k}, {WS_H1}")
S3.spread(set5, B0 + 60, B0 + 78)
def piece4(n):
    st, i = n // 7, n % 7; r = B4 + 8 * (n % 14); c = CKR[n % 14]
    return ([f"s_add_u32 s{sCt}, s{51+st}, {8*2304*i}\nbuffer_load_dwordx4 {v(r,4)}, v2, {WS}, s{sCt} offen sc1\nbuffer_load_dwordx4 {v(r+4,4)}, v2, {WS}, s{sCt} offen offset:1024 sc1\n"
             f"buffer_load_dword v{c}, v4, {WS}, s{sCt} offen offset:2048 sc1"], [r, r+4, c])
F4 = Fetch("f4", [piece4(n) for n in range(28)], nre=opt("re4", 1))
ND = opt("nd", 4)
rawl = flat([w2raw(j) for j in range(7, 7 + NRL)])
nr0 = min(len(rawl), opt("nr0", 4))
S3.at(E0 - 1, stampi("p3 pass1 done", "mh") + aug(0) + aug(1) + aug(2) + sprinkle(silu(0, True), rawl[:nr0], 3, 12) + stampi("silu0 done", "e"), 1.0)
S3.spread(silu(1, False), E0, E0 + 26)
S3.spread(rawl[nr0:], E0, E0 + 14)
F4S = opt("f4s", 16)
S3.spread(flat([F4.loadc(n) for n in range(ND)]), E0 + F4S, E0 + 28)
P.add(S3.emit())
P.add(aug(3))
I("s_barrier")
stamp("p3 gemm done", "me")
g4 = []
for n in range(28):
    st, i = n // 7, n % 7; hf, par = st >> 1, st & 1
    for e in range(2):
        for mu in range(2):
            zero = hf == 0 and i == 0 and e == 0 and not (par == 1 and mu == 0)
            g4.append(mk(f"{MF} {C4[par][mu]}, {a_(UA(7*hf+i)+8*e+4*mu,4)}, {v(B4+8*(n%14)+4*e,4)}, {'0' if zero else C4[par][mu]}"))
P.add(F4.check(0, ND - 1))
S = Sched(g4)
for n in range(28):
    if n + ND < 28:
        for k_, c_ in enumerate(F4.loadc(n + ND)): S.at(4*n + (0, 2, 1)[k_], c_, 0.2)
    if n + 1 < 28: S.spread(F4.checkc(n + 1, min(27, n + ND)), 4*n + 2, 4*n + 4)
    if n in (6, 13, 20): S.at(4*n + 3, stampi(f"stage{n//7} done", "e"), 1.0)
unp = []
for i in range(8): unp += mk(f"v_lshlrev_b32 v{ACC[0]+2*i}, 16, v{HR+i}\nv_and_b32 v{ACC[0]+1+2*i}, s{sHIM}, v{HR+i}")
S.spread(silu(2, False), 0, 22)
S.spread(unp, 22, 27)
S.spread(silu(3, False), 27, 50)
S.spread(w2rd(4) + w2rd(5) + w2rd(6), 0, 14)
S.spread(flat([w2dma(j) for j in range(7 + NRL, 14)]), opt("w2a", 2), opt("w2b", 44))
for j in range(7, 14): S.spread(w2rd(j), 44 + 5*(j-7), 49 + 5*(j-7))
S.at(82, mk(f"""s_lshl_b32 s{sA}, s{sW}, 14
v_add_u32 v13, s{sA}, v2
v_xor_b32 v9, 16384, v13
v_xor_b32 v12, 32768, v13
v_xor_b32 v14, 49152, v13
s_waitcnt lgkmcnt(0)
s_barrier"""))
S.spread([mk(f"ds_write_b128 v{9 if mu == 0 else 14}, {a_(224+16*mu+4*i,4)} offset:{4096*(2*mu+1)+1024*i}") for mu in range(2) for i in range(4)], 87, 99)
S.at(100, mk("s_waitcnt lgkmcnt(0)\ns_barrier"), 0.0)
S.spread([mk(f"ds_read_b128 {v(ACC[2+mu]+4*i,4)}, v13 offset:{4096*(2*mu+1)+1024*i}") for mu in range(2) for i in range(4)], 100, 104)
S.spread([mk(f"v_add_f32 v{ACC[2]+k}, v{ACC[2]+k}, v{ACC[3]+k}") for k in range(16)], 107, 112)
P.add(S.emit())
stamp("p4 gemm done", "me")
for i in range(4): I(f"ds_write_b128 v12, {v(ACC[1]+4*i,4)} offset:{8192+1024*i}")
I("s_waitcnt lgkmcnt(0)\ns_barrier")
for i in range(4): I(f"ds_read_b128 {v(ACC[3]+4*i,4)}, v13 offset:{8192+1024*i}")
for k in range(0, 16, 2): I(f"v_pk_add_f32 {v(ACC[0]+k,2)}, {v(ACC[0]+k,2)}, {v(ACC[2]+k,2)}")
for hf in range(2):
    b = ACC[0] + 8*hf
    for k in range(0, 8, 2): I(f"v_pk_add_f32 {v(b+k,2)}, {v(b+k,2)}, {v(ACC[3]+8*hf+k,2)}")
    for i in range(4): I(f"v_cvt_pk_bf16_f32 v{96+4*hf+i}, v{b+2*i}, v{b+2*i+1}")
    I(f"v_permlane32_swap_b32 v{96+4*hf}, v{98+4*hf}\nv_permlane32_swap_b32 v{97+4*hf}, v{99+4*hf}\nbuffer_store_dwordx4 {v(96+4*hf,4)}, v7, {OUT}, s{sOUT} offen offset:{32*hf} {OPT.get('ofl', '')}")
stamp("end", "mpohez")
I(f"""s_cmp_lg_u32 s2, 0
s_cbranch_scc1 L_exit
v_mov_b32 v9, 0""")
I(f"buffer_store_dword v5, v9, {WS}, 0 offen sc1", unc=True)
I("L_exit:")
if DIAG:
    I(f"s_cmp_lg_u32 s{sW}, {opt('dw', 0)}\ns_cbranch_scc1 L_end\ns_lshl_b32 s{sA}, s2, 7\ns_add_u32 s{sA}, s{sA}, {WS_DIAG}\nv_mov_b32 v9, 0", unc=True)
    for k in range(nstamp[0]):
        I(f"s_waitcnt lgkmcnt(0)\nv_mov_b32 v10, s{sSTAMP+2*k}\nbuffer_store_dword v10, v9, {WS}, s{sA} offen offset:{4*k}", unc=True)
    if SEL == ["z"]: I(f"v_mov_b32 v10, s78\nbuffer_store_dword v10, v9, {WS}, s{sA} offen offset:120", unc=True)
    I(f"v_mov_b32 v10, s{sSPIN}\nbuffer_store_dword v10, v9, {WS}, s{sA} offen offset:124", unc=True)
I("L_end:\ns_endpgm")
I(f"""L_idle:
s_and_b32 s{sA}, s{sT2}, 1
s_lshl_b32 s{sA}, s{sA}, 1
s_add_u32 s{sA}, s{sA}, s{sRact}
s_sub_u32 s{sA}, s{sA}, 14
s_lshl_b32 s{sA}, s{sA}, 2
s_add_u32 s{sA}, s{sA}, s{sW}
s_lshl_b32 s{sA}, s{sA}, 13
v_lshlrev_b32 v9, 7, v1
s_mov_b32 s{sB}, {opt("idle", 0)}
s_cmp_eq_u32 s{sB}, 0
s_cbranch_scc1 L_exit
L_idle1:
buffer_load_dword v10, v9, {W2}, s{sA} offen
s_add_u32 s{sA}, s{sA}, {16*8192}
s_sub_u32 s{sB}, s{sB}, 1
s_cmp_lg_u32 s{sB}, 0
s_cbranch_scc1 L_idle1
s_branch L_exit""", unc=True)
P.add(TAIL.items)

PL = opt("plain", 0)
for it in P.items:
    if isinstance(it, Ins) and it.op.startswith("buffer_store") and "sc1" in it.text:
        ish1 = " s50 " in it.text or " s49 " in it.text
        ish = ("v[224:227]" in it.text or "v[228:231]" in it.text or "v112," in it.text or "v113," in it.text)
        if (ish and PL & 1) or (ish1 and PL & 2): it.text = it.text.replace(" sc1", OPT.get("pfl", ""))
if opt("nochk", 0):
    new = []; seen_end = False
    for it in P.items:
        if isinstance(it, Ins):
            if opt("nochk", 0) == 2 and not seen_end:
                if it.text.startswith("L_exit"): seen_end = True
                elif it.uncounted or it.op in ("s_cbranch_vccz", "s_branch"): continue
            if it.op == "s_cbranch_vccz" and not it.uncounted: it = Ins(it.text.replace("s_cbranch_vccz", "s_branch"))
            elif it.op == "s_cbranch_vccnz" and not it.uncounted: continue
            t = it.text
            if it.op.startswith("buffer_store") and "sc1" in t and not it.uncounted:
                kind = 8 if " s50 " in t else 4 if ("v[224" in t or "v[228" in t or "v112," in t or "v113," in t) else 2 if f" s{sOST} " in t else 1
                if opt("nost", 0) & kind: continue
            if it.op.startswith("buffer_load") and "sc1" in t and " s56 " in t and not it.uncounted:
                cnt_ld = globals().setdefault("_c", [0]); cnt_ld[0] += 1; c = cnt_ld[0]
                kind = 1 if c <= 32 else 2 if c <= 48 else 4 if c <= 104 else 8
                if opt("nold", 0) & kind: continue
        new.append(it)
    P.items = new
body, items = render(P.items)
if opt("align", 1):
    import subprocess, re as _re
    open("_al.s", "w").write('.amdgcn_target "amdgcn-amd-amdhsa--gfx950"\n.text\n' + body)
    subprocess.run(["clang", "-x", "assembler", "-target", "amdgcn-amd-amdhsa", "-mcpu=gfx950", "-c", "_al.s", "-o", "_al.o"], check=True)
    dis = subprocess.run(["llvm-objdump", "-d", "--mcpu=gfx950", "_al.o"], capture_output=True, text=True).stdout
    sizes = [4 * len(m.group(1).split()) for m in _re.finditer(r"// [0-9A-F]{12}: ((?:[0-9A-F]{8} ?)+)", dis)]
    real = [i for i in items if i.cls not in ('label', 'dir')]
    assert len(sizes) == len(real), (len(sizes), len(real))
    sz = {id(i): n for i, n in zip(real, sizes)}
    new = []; off = 0; nal = 0; MINRUN = opt("minrun", 6)
    for k, it in enumerate(items):
        if id(it) in sz and sz[id(it)] == 8 and off % 8 == 4 and not it.uncounted:
            run = 0
            for j in items[k:k + MINRUN + 4]:
                if id(j) not in sz: continue
                if sz[id(j)] != 8 or j.cls == 'mfma': break
                run += 1
            if run >= MINRUN:
                p = new[-1] if new else None
                if p is not None and p.cls == 'valu' and sz.get(id(p)) == 4 and not p.op.startswith(('v_permlane', 'v_dot2c', 'v_readfirst', 'v_accvgpr', 'v_cmp', 'v_cndmask')) and not p.op.endswith('_e64'):
                    p.text = p.text.replace(p.op, p.op + "_e64", 1)
                else: new.append(Ins("s_nop 0"))
                off += 4; nal += 1
        new.append(it); off += sz.get(id(it), 0)
    items = new
    body = '\n'.join(('' if i.cls == 'label' else '  ') + i.text for i in items) + '\n'
    print("alignment fixes:", nal, "code bytes", off)
hdr = open("cdna_kernels/" + NAME + ".s.ref").read().split("; Override launch")[0]
out = hdr + f"""; @launch grid=(256,1,1) block=(256,1,1) lds={LDS_SIZE}
.amdgcn_target "amdgcn-amd-amdhsa--gfx950"
.text
.globl {NAME}_kernel
.p2align 8
.type {NAME}_kernel,@function
{NAME}_kernel:
{body}.fill 2048, 4, 0xbf810000
.section .rodata,"a"
.p2align 6
.amdhsa_kernel {NAME}_kernel
  .amdhsa_next_free_vgpr 512
  .amdhsa_next_free_sgpr 102
  .amdhsa_accum_offset 256
  .amdhsa_group_segment_fixed_size 0
  .amdhsa_kernarg_size 80
  .amdhsa_user_sgpr_count 2
  .amdhsa_user_sgpr_kernarg_segment_ptr 1
  .amdhsa_system_sgpr_workgroup_id_x 1
.end_amdhsa_kernel
"""
open(sys.argv[1], "w").write(out)
n = sum(1 for i in items if i.cls not in ('label', 'dir'))
nu_ = sum(1 for i in items if i.cls not in ('label', 'dir') and i.uncounted)
print("instructions:", n, "(slow path", nu_, ") nops:", sum(1 for i in items if i.op == 's_nop'), "waits:", sum(1 for i in items if i.op == 's_waitcnt'), "stamps", nstamp[0])
```

```python
import sys, struct
from asmlib import *

NAME = "sequential_preLN__linear_kernel_hedgehog__dense_activation_silu__prompt"
DIAG = int(sys.argv[2]) if len(sys.argv) > 2 else 0
OPT = dict(a.split('=') for a in sys.argv[3:])
def opt(k, d): return int(OPT[k], 0) if k in OPT else d

WS_PART = 0x40000
WS_O    = 0x240000
WS_H    = 0x440000
WS_H1   = 0x680000
WS_DIAG = 0xE80000
WS_FLG  = 0xF00000
WS_SIZE = 0xF80000
XW = 28672
L_WV, L_WQ, L_WK, L_WO = 0, 28672, 57344, 86016
L_IMG = L_WK
L_KVX = 143360
L_XCH = 147456
L_SCR = 114688
L_AUG = 161792
LDS_SIZE = 163840
sW, sT, sH, sT2, sR = 3, 4, 5, 6, 7
X, WQKV, WPHI, WO, W1, W2, OUT, WS = [f"s[{i}:{i+3}]" for i in range(8, 40, 4)]
sKX, sKW = 40, 47
sHQ, sHIM = 54, 55
sRET = "s[56:57]"
sSPIN, sP, sU, sC, sMASK, sQ = 58, 59, 60, 61, 62, 63
sHI = "s[64:65]"
sLOG = "s[66:67]"
sONES, sTILE = 68, 69
sA, sB, sCt, sD = 70, 71, 72, 73
sRact, sXO = 74, 75
sWB, sWQ = 76, 77
sLAST, sFLAG, sWM, sPST, sPCK, sOST, sXRB, sOUT = 80, 81, 82, 83, 84, 85, 86, 87
sSTAMP = 88

def v(a, n=1): return f"v{a}" if n == 1 else f"v[{a}:{a+n-1}]"
def a_(a, n=1): return f"a{a}" if n == 1 else f"a[{a}:{a+n-1}]"
def fhex(x): return hex(struct.unpack('<I', struct.pack('<f', x))[0])
def flat(l): return sum(l, [])
P = Prog(); I = P.I
TAIL = Prog()
nstamp = [0]
SEL = OPT.get("st", "m").split(",")
PICK = [int(x) for x in OPT["pick"].split(",")] if "pick" in OPT else None
allst = [0]
def stampi(name, grp="m"):
    idx = allst[0]; allst[0] += 1
    if not DIAG: return []
    if PICK is not None:
        if name != "start" and idx not in PICK:
            print(f"   - {idx}: {name}"); return []
    elif name != "start" and not (set(grp) & set(SEL)): return []
    k = nstamp[0]; nstamp[0] += 1
    assert k < 7
    print(f"stamp {k}: [{idx}] {name}")
    op = "s_memtime" if DIAG == 2 else "s_memrealtime"
    return mk(f"{op} s[{sSTAMP+2*k}:{sSTAMP+2*k+1}]")
def stamp(name, grp="m"): P.add(stampi(name, grp))
X3 = "bitop3:0x96"

def chk_code(regs, masked):
    r = list(regs)
    if masked: return f"v_bitop3_b32 v10, v{r[0]}, v{r[1]}, s{sMASK} bitop3:0x28\nv_cmp_ne_u32 vcc, v10, v6"
    if len(r) == 1: return f"v_cmp_ne_u32 vcc, v{r[0]}, v5"
    if len(r) == 2: t = f"v_xor_b32 v10, v{r[0]}, v{r[1]}"
    else:
        t = f"v_bitop3_b32 v10, v{r[0]}, v{r[1]}, v{r[2]} {X3}"
        if len(r) == 4: t += f"\nv_xor_b32 v10, v10, v{r[3]}"
    return t + "\nv_cmp_ne_u32 vcc, v10, v5"

sFL, sDM = 56, 57
GUARD = f"s_add_u32 s{sSPIN}, s{sSPIN}, 1\ns_cmp_gt_u32 s{sSPIN}, 0x40000\ns_cbranch_scc1 L_end\ns_waitcnt vmcnt(0)"
class Fetch:
    def __init__(self, name, pieces, masked=False, nre=1):
        self.name, self.pieces, self.masked, self.nre = name, pieces, masked, nre
    def loadc(self, i):
        it = flat([mk(c.replace(f"s{sCt}", f"s{sFL}")) for c in self.pieces[i][0]])
        out = []; cur = []
        for x in it:
            cur.append(x)
            if x.cls == 'vmem': out.append(cur); cur = []
        return out
    def load(self, i): return flat(self.loadc(i))
    def stub(self, i, last):
        n = self.name
        rel = "\n".join(c for j in range(i, min(last, i + self.nre - 1) + 1) for c in self.pieces[j][0])
        return mk(f"s_cbranch_vccz L_{n}_ok{i}\nL_{n}_r{i}:") + \
               mk(rel + "\n" + GUARD + "\n" + chk_code(self.pieces[i][1], self.masked) + f"\ns_cbranch_vccnz L_{n}_r{i}", unc=True) + mk(f"L_{n}_ok{i}:")
    def checkc(self, i, last):
        return [[x] for x in mk(chk_code(self.pieces[i][1], self.masked))] + [self.stub(i, last)]
    def check(self, i, last): return flat(self.checkc(i, last))

sFS, sFP = 80, 81
vL512, vPO, vPF = 0, 142, 143
def flag_store(nl): return mk(f"s_mov_b64 exec, {(1 << nl) - 1}\nbuffer_store_dword v5, v{vL512}, {WS}, s{sFS} offen sc1\ns_mov_b64 exec, -1")
def gate(name, vo, vf): return Fetch(name, [([f"buffer_load_dword v{vf}, v{vo}, {WS}, s{sFP} offen sc1"], [vf])])
GATE = opt("gate", 0)

def cost(it):
    if isinstance(it, WaitTag): return 4
    if it.cls in ('label', 'dir') or it.uncounted: return 0
    if it.op.startswith(TRANS) or 'permlane' in it.op: return 8
    if it.op.startswith('ds_write_b128'): return 28
    if it.cls == 'mfma': return 8
    return 4.5
class Sched:
    def __init__(self, groups):
        self.groups = groups; self.gap = [[] for _ in groups]; self.seq = 0
    def at(self, g, items, frac=0.5):
        self.seq += 1; self.gap[g].append((frac, self.seq, list(items)))
    def spread(self, chunks, a, b):
        chunks = [c if isinstance(c, list) else [c] for c in chunks]
        tot = sum(cost(i) for c in chunks for i in c) or 1; acc = 0
        for c in chunks:
            pos = a + (b - a) * acc / tot
            self.at(int(pos), c, pos - int(pos))
            acc += sum(cost(i) for i in c)
    def emit(self):
        out = []
        for g, gp in zip(self.groups, self.gap):
            out += g
            for _, _, c in sorted(gp, key=lambda x: (x[0], x[1])): out += c
        return out
def sprinkle(items, groups, start, step):
    out = []; groups = list(groups); nxt = start
    for i, it in enumerate(items):
        if groups and i == nxt: out += groups.pop(0); nxt += step
        out.append(it)
    for g in groups: out += g
    return out

def softmax(p, t, o, pk):
    q = Prog(); J = q.I
    m, n = t + 14, t + 15; r0, r1 = t + 16, t + 17
    J(f"v_max3_f32 v{m}, v{p}, v{p+1}, v{p+2}\nv_max3_f32 v{n}, -v{p}, -v{p+1}, -v{p+2}")
    for k in range(3, 13, 2):
        J(f"v_max3_f32 v{m}, v{m}, v{p+k}, v{p+k+1}\nv_max3_f32 v{n}, v{n}, -v{p+k}, -v{p+k+1}")
    J(f"""v_max_f32 v{m}, v{m}, v{p+13}
v_max_f32 v{n}, v{n}, -v{p+13}
v_permlane32_swap_b32 v{m}, v{n}
v_max_f32 v{m}, v{m}, v{n}
v_mul_f32 v{m}, v253, v{m}
v_mov_b32 v{n}, v{m}
v_permlane32_swap_b32 v{m}, v{n}""")
    if pk:
        for k in range(0, 14, 2):
            J(f"v_pk_fma_f32 {v(t+k,2)}, {v(p+k,2)}, v[252:253], {v(m,2)} op_sel_hi:[1,0,0]")
            J(f"v_pk_fma_f32 {v(p+k,2)}, {v(p+k,2)}, v[252:253], {v(m,2)} op_sel:[0,1,1] op_sel_hi:[1,1,1]")
        for k in range(14): J(f"v_exp_f32 v{t+k}, v{t+k}")
        for k in range(14): J(f"v_exp_f32 v{p+k}, v{p+k}")
        J(f"v_pk_add_f32 {v(m,2)}, {v(t,2)}, {v(t+2,2)}\nv_pk_add_f32 {v(r0,2)}, {v(p,2)}, {v(p+2,2)}")
        for k in range(4, 14, 2):
            J(f"v_pk_add_f32 {v(m,2)}, {v(m,2)}, {v(t+k,2)}\nv_pk_add_f32 {v(r0,2)}, {v(r0,2)}, {v(p+k,2)}")
        J(f"v_add_f32 v{m}, v{m}, v{n}\nv_add_f32 v{n}, v{r0}, v{r1}")
    else:
        for k in range(14):
            J(f"v_fma_f32 v{t+k}, v{p+k}, v252, v{m}\nv_fma_f32 v{p+k}, v{p+k}, v253, v{n}\nv_exp_f32 v{t+k}, v{t+k}\nv_exp_f32 v{p+k}, v{p+k}")
            if k >= 2:
                a0 = f"v{t}" if k == 2 else f"v{r0}"; a1 = f"v{p}" if k == 2 else f"v{r1}"
                J(f"v_add_f32 v{r0}, {a0}, v{t+k-1}\nv_add_f32 v{r1}, {a1}, v{p+k-1}")
        J(f"v_add_f32 v{m}, v{r0}, v{t+13}\nv_add_f32 v{n}, v{r1}, v{p+13}")
    J(f"""v_permlane32_swap_b32 v{m}, v{n}
v_add_f32 v{m}, v{m}, v{n}
v_rcp_f32 v{m}, v{m}
v_mov_b32 v{n}, v{m}
v_permlane32_swap_b32 v{m}, v{n}""")
    if pk:
        for k in range(0, 14, 2):
            J(f"v_pk_mul_f32 {v(t+k,2)}, {v(t+k,2)}, {v(m,2)} op_sel_hi:[1,0]")
            J(f"v_pk_mul_f32 {v(p+k,2)}, {v(p+k,2)}, {v(m,2)} op_sel:[0,1] op_sel_hi:[1,1]")
    else:
        for k in range(14): J(f"v_mul_f32 v{t+k}, v{t+k}, v{m}\nv_mul_f32 v{p+k}, v{p+k}, v{n}")
    for k in range(7): J(f"v_cvt_pk_bf16_f32 v{o+k}, v{t+2*k}, v{t+2*k+1}")
    for k in range(7): J(f"v_cvt_pk_bf16_f32 v{o+7+k}, v{p+2*k}, v{p+2*k+1}")
    return q.items

def dmag(vaddrs, srd, sbase, sadd, mbase, madd, tag, sreg=None):
    sr = sCt if sreg is None else sreg
    ch = [mk(f"buffer_load_dwordx4 v{a}, {srd}, s{sr} offen offset:{1024*i} lds", tag=tag) for i, a in enumerate(vaddrs)]
    ch[0] = mk(f"s_add_u32 m0, s{mbase}, {madd}\ns_add_u32 s{sr}, s{sbase}, {sadd}") + ch[0]
    return ch

MF = "v_mfma_f32_32x32x16_bf16"
RINGA, NRING = 224, 8
def gemm_lds(steps, ahead=6):
    def rd(i):
        av, o1, o2 = steps[i][:3]; r = RINGA + 4 * (i % NRING)
        return mk(f"ds_read_b64_tr_b16 {a_(r,2)}, v{av} offset:{o1}\nds_read_b64_tr_b16 {a_(r+2,2)}, v{av} offset:{o2}")
    rds = [rd(i) for i in range(len(steps))]
    groups = []
    for i, st in enumerate(steps):
        r = RINGA + 4 * (i % NRING); b, acc, first, swap = st[3]
        A, B = a_(r, 4), v(b, 4)
        if swap: A, B = B, A
        g = mk(f"{MF} {v(acc,16)}, {A}, {B}, {'0' if first else v(acc,16)}")
        if i % 2 == 0 and i + 1 < len(steps):
            r2 = RINGA + 4 * ((i + 1) % NRING); g[0].extra = [('a', r2 + x) for x in range(4)]
        groups.append(g + (rds[i + ahead] if i + ahead < len(steps) else []))
    return flat(rds[:ahead]), groups

MAP1 = [f"""s_and_b32 s{sT}, s{sA}, 3
s_lshl_b32 s{sT}, s{sT}, 2
s_and_b32 s{sD}, s{sB}, 3
s_add_u32 s{sT}, s{sT}, s{sD}
s_lshr_b32 s{sP}, s{sA}, 2
s_lshl_b32 s{sH}, s{sP}, 3
s_lshr_b32 s{sD}, s{sB}, 2
s_add_u32 s{sH}, s{sH}, s{sD}
s_cmp_eq_u32 s{sD}, 7
s_cselect_b32 s{sD}, 3, s{sD}
s_lshl_b32 s{sKX}, s{sD}, 7
""",
f"""s_lshl_b32 s{sT}, s{sA}, 1
s_lshr_b32 s{sD}, s{sB}, 4
s_add_u32 s{sT}, s{sT}, s{sD}
s_mov_b32 s{sH}, s{sCt}
s_and_b32 s{sD}, s{sH}, 7
s_cmp_eq_u32 s{sD}, 7
s_cselect_b32 s{sD}, 3, s{sD}
s_lshl_b32 s{sKX}, s{sD}, 7
""",
f"""s_mov_b32 s{sT}, s{sCt}
s_lshl_b32 s{sH}, s{sA}, 1
s_lshr_b32 s{sD}, s{sB}, 4
s_add_u32 s{sH}, s{sH}, s{sD}
s_and_b32 s{sD}, s{sH}, 7
s_mul_i32 s{sD}, s{sD}, 3
s_mul_i32 s{sP}, s{sD}, 37
s_lshr_b32 s{sP}, s{sP}, 8
s_mul_i32 s{sP}, s{sP}, 7
s_sub_u32 s{sD}, s{sD}, s{sP}
s_lshl_b32 s{sKX}, s{sD}, 7
"""][opt("map1", 0)]
if DIAG: I("s_memrealtime s[78:79]")
I(f"""s_cmp_ge_u32 s2, 256
s_cbranch_scc1 L_end
s_load_dwordx2 s[8:9], s[0:1], 0
s_load_dwordx2 s[12:13], s[0:1], 8
s_load_dwordx2 s[16:17], s[0:1], 16
s_load_dwordx2 s[20:21], s[0:1], 24
s_load_dwordx2 s[24:25], s[0:1], 40
s_load_dwordx2 s[28:29], s[0:1], 48
s_load_dwordx2 s[32:33], s[0:1], 56
s_load_dwordx2 s[36:37], s[0:1], 72
s_getpc_b64 s[76:77]
v_and_b32 v1, 63, v0
v_lshrrev_b32 v2, 6, v0
s_and_b32 s{sA}, s2, 7
v_readfirstlane_b32 s{sW}, v2
s_lshr_b32 s{sB}, s2, 3
s_and_b32 s{sCt}, s{sB}, 15
v_lshlrev_b32 v3, 4, v1
v_lshl_add_u32 v3, v2, 6, v3
v_lshl_add_u32 v3, v2, 4, v3
v_add_u32 v3, s{sCt}, v3
v_lshlrev_b32 v3, 7, v3
s_and_b32 s76, s76, 0xffffff00
s_mov_b64 exec, 31
global_load_dword v236, v3, s[76:77]
s_mov_b64 exec, -1
{MAP1}
s_mov_b32 s10, 1835008
s_mov_b32 s11, 0x20000
v_lshrrev_b32 v2, 3, v1
v_mul_u32_u24 v244, 896, v2
v_lshrrev_b32 v2, 4, v1
v_and_b32 v8, 7, v1
v_xor_b32 v2, v2, v8
v_lshl_add_u32 v244, v2, 4, v244
v_xor_b32 v245, 64, v244
v_add_u32 v245, {7168-1024}, v245
v_add_u32 v246, {2*(7168-1024)}, v244
v_add_u32 v247, {2*(7168-1024)}, v245
s_lshl_b32 s{sQ}, s{sT}, 2
s_add_u32 s{sQ}, s{sQ}, s{sW}
s_mul_i32 s{sQ}, s{sQ}, {32*896}
s_lshr_b32 s{sXO}, s{sW}, 1
s_add_u32 s{sXO}, s{sXO}, s{sW}
s_mul_i32 s{sXO}, s{sXO}, {XW}
s_waitcnt lgkmcnt(0)""")
stamp("start")
def xdma(g): return flat(dmag([244, 245, 246, 247], X, sQ, f"s{sKX+g}", sXO, 4096*g, f"x{g}"))
P.add(xdma(0))
I(f"""s_mov_b32 s14, {0 if opt('abl',0)&8 else 1204224}
s_mov_b32 s15, 0x20000
v_and_b32 v8, 3, v1""")
def wtouch(mask16, dst):
    m = mask16 | (mask16 << 16)
    return mk(f"s_mov_b32 exec_lo, {hex(m)}\ns_mov_b32 exec_hi, {hex(m)}\nbuffer_load_dword v{dst}, v255, {WQKV}, 0 offen\ns_mov_b64 exec, -1")
def kxs(g): return mk(f"s_add_u32 s{sKX+g}, s{sKX+g-1}, 128\ns_cmp_ge_u32 s{sKX+g}, 896\ns_cselect_b32 s{sD}, 896, 0\ns_sub_u32 s{sKX+g}, s{sKX+g}, s{sD}")
NXE = opt("nxe", 2)
if opt("wtfirst", 1) and opt("wt0", 0): P.add(wtouch(opt("wt0", 0), 237))
for g in range(1, NXE): P.add(kxs(g) + xdma(g))
if not opt("wtfirst", 1) and opt("wt0", 0): P.add(wtouch(opt("wt0", 0), 237))
if opt("wsoff", 0): I(f"s_add_u32 s36, s36, {opt('wsoff', 0)}\ns_addc_u32 s37, s37, 0")
I(f"""s_mov_b32 s38, {WS_SIZE}
s_mov_b32 s39, 0x20000
s_mov_b32 s18, 25088
s_mov_b32 s19, 0x20000
s_mov_b32 s22, {0 if opt('abl',0)&4 else 401408}
s_mov_b32 s23, 0x20000
s_xor_b32 s{sHQ}, s{sH}, 1
v_mov_b32 v11, 0
v_lshlrev_b32 v6, 7, v1""")
I(f"buffer_load_dword v5, v11, {WS}, 0 offen sc1")
I(f"""s_lshl_b32 s{sD}, s2, 2
s_add_u32 s{sD}, s{sD}, s{sW}
s_lshl_b32 s{sD}, s{sD}, 9
s_and_b32 s{sCt}, s{sH}, 14
s_mul_i32 s{sCt}, s{sCt}, 1568
s_mul_i32 s{sP}, s{sW}, 896
s_add_u32 s{sCt}, s{sCt}, s{sP}
s_mov_b64 exec, 15
buffer_load_dword v238, v6, {WO}, s{sD} offen
s_mov_b64 exec, 127
buffer_load_dword v239, v6, {WPHI}, s{sCt} offen
s_mov_b64 exec, -1""")
for g in range(NXE, 7): P.add(kxs(g))
I(f"""s_lshl_b32 s{sT2}, s{sA}, 1
s_lshr_b32 s{sD}, s{sB}, 4
s_add_u32 s{sT2}, s{sT2}, s{sD}
s_and_b32 s{sRact}, s{sB}, 15
s_min_u32 s{sR}, s{sRact}, 13
s_mov_b32 s26, {0 if opt('abl',0)&1 else 1605632}
s_mov_b32 s27, 0x20000
s_mov_b32 s30, {0 if opt('abl',0)&2 else 1605632}
s_mov_b32 s31, 0x20000
s_mov_b32 s34, 1835008
s_mov_b32 s35, 0x20000
s_mov_b32 s64, 0
s_mov_b32 s65, -1
s_mov_b32 s{sONES}, 0x3f803f80
s_mov_b32 s{sMASK}, 0xbfffbfff
s_mov_b32 s{sHIM}, 0xffff0000
s_mov_b32 s{sSPIN}, 0
s_cmp_ge_u32 s{sR}, 7
s_cselect_b32 s{sU}, 1, 0
s_mul_i32 s{sA}, s{sU}, 7
s_sub_u32 s{sC}, s{sR}, s{sA}""")
sT3 = 67
if opt("map3", 0):
    I(f"""s_and_b32 s{sA}, s{sT2}, 12
s_and_b32 s{sD}, s{sT2}, 1
s_lshl_b32 s{sD}, s{sD}, 1
s_add_u32 s{sA}, s{sA}, s{sD}
s_add_u32 s{sT3}, s{sA}, s{sU}
s_bfe_u32 s{sA}, s{sT2}, 0x10001
s_mul_i32 s{sA}, s{sA}, 7
s_add_u32 s{sR}, s{sA}, s{sC}""")
else: I(f"s_mov_b32 s{sT3}, s{sT2}")
for g in range(7): I(f"s_mul_i32 s{sKW+g}, s{sKX+g}, {172032//128}")
I(f"""s_mul_i32 s{sWB}, s{sH}, 56
s_mul_i32 s{sD}, s{sW}, 43008
s_add_u32 s{sWB}, s{sWB}, s{sD}
s_mul_i32 s{sWQ}, s{sHQ}, 56
s_add_u32 s{sWQ}, s{sWQ}, s{sD}
s_add_u32 s{sWB}, s{sWB}, 896
s_lshl_b32 s{sWM}, s{sW}, 10
s_lshl_b32 s{sA}, s{sH}, 4
s_add_u32 s{sA}, s{sA}, s{sT}
s_mul_i32 s{sA}, s{sA}, 5120
s_add_u32 s{sA}, s{sA}, {WS_PART}
s_add_u32 s{sPST}, s{sA}, s{sWM}
s_lshl_b32 s{sD}, s{sW}, 8
s_add_u32 s{sA}, s{sA}, s{sD}
s_add_u32 s{sPCK}, s{sA}, 4096
s_lshl_b32 s{sA}, s{sT}, 2
s_add_u32 s{sA}, s{sA}, s{sW}
s_lshl_b32 s{sA}, s{sA}, 15
s_lshl_b32 s{sB}, s{sHQ}, 11
s_add_u32 s{sA}, s{sA}, s{sB}
s_add_u32 s{sOST}, s{sA}, {WS_O}
s_lshl_b32 s{sA}, s{sT2}, 2
s_lshl_b32 s{sB}, s{sU}, 1
s_add_u32 s{sA}, s{sA}, s{sB}
s_and_b32 s{sB}, s{sW}, 1
s_add_u32 s{sTILE}, s{sA}, s{sB}
s_mul_i32 s{sA}, s{sA}, {32*896}
s_lshl_b32 s{sB}, s{sC}, 7
s_add_u32 s{sA}, s{sA}, s{sB}
s_mul_i32 s{sD}, s{sW}, {16*896}
s_add_u32 s{sXRB}, s{sA}, s{sD}
s_mul_i32 s{sA}, s{sTILE}, {32*896}
s_add_u32 s{sA}, s{sA}, s{sB}
s_lshr_b32 s{sB}, s{sW}, 1
s_lshl_b32 s{sB}, s{sB}, 6
s_add_u32 s{sOUT}, s{sA}, s{sB}
s_mul_i32 s{sP}, s{sHQ}, {16*5120}
s_add_u32 s{sP}, s{sP}, {WS_PART}""")
WPK, WPQ, WPT = 192, 200, 208
vWPA, vWPB, vKVX, vIMW, vKA, vKB, vFPD, vFPC, vWO0, vWO1, vXRD0, vXRD1, vXRR, vWOR = range(128, 142)
I(f"""v_lshrrev_b32 v3, 5, v1
v_lshlrev_b32 v2, 4, v1
v_lshlrev_b32 v4, 2, v1
v_bfe_u32 v11, v1, 3, 2
v_lshl_add_u32 v11, v11, 2, v8
v_bfe_u32 v12, v1, 2, 1
v_mul_u32_u24 v12, 14, v12
v_min_u32 v13, 13, v11
v_add_u32 v13, v13, v12
v_lshlrev_b32 v13, 1, v13
v_mul_u32_u24 v14, 224, v3
v_add_u32 v{vWPA}, v13, v14
v_lshl_add_u32 v{vWPB}, v3, 20, v{vWPA}
v_add_u32 v12, v12, v11
v_cmp_gt_u32 vcc, 14, v11
v_lshrrev_b32 v7, 2, v1
v_mul_u32_u24 v7, 2688, v7
v_cndmask_b32 v12, 28, v12, vcc
v_and_b32 v13, 15, v12
v_lshlrev_b32 v13, 4, v13
v_lshrrev_b32 v12, 4, v12
v_lshl_add_u32 v13, v12, 3, v13
v_lshl_add_u32 v13, v3, 8, v13
v_add_u32 v{vKVX}, {L_KVX}, v13
v_lshlrev_b32 v11, 4, v8
v_min_u32 v11, 40, v11
v_add_u32 v7, v7, v11
v_and_b32 v9, 31, v1
v_lshlrev_b32 v240, 7, v9
v_bfe_u32 v11, v1, 1, 3
v_xor_b32 v11, v11, v3
v_lshl_add_u32 v240, v11, 4, v240
v_add_u32 v240, s{sXO}, v240
v_xor_b32 v241, 32, v240
v_xor_b32 v242, 64, v240
v_xor_b32 v243, 96, v240
v_mov_b32 v250, 0
v_mov_b32 v251, 0
s_lshl_b32 s{sA}, s{sW}, 5
v_add_u32 v10, s{sA}, v9
v_mul_u32_u24 v10, 208, v10
v_mul_u32_u24 v11, 96, v3
v_add_u32 v{vIMW}, v10, v11
v_lshrrev_b32 v10, 4, v1
v_bfe_u32 v15, v1, 2, 2
v_lshl_add_u32 v10, v10, 3, v15
v_mul_u32_u24 v10, 208, v10
v_and_b32 v11, 1, v1
v_mul_u32_u24 v11, 96, v11
v_add_u32 v10, v10, v11
v_bfe_u32 v11, v1, 1, 1
v_lshl_add_u32 v10, v11, 3, v10
v_add_u32 v{vKB}, {L_IMG}, v10
s_lshl_b32 s{sA}, s{sW}, 4
v_add_u32 v{vKA}, s{sA}, v{vKB}
v_add_u32 v{vFPD}, s{sWM}, v2
s_lshl_b32 s{sD}, s{sW}, 8
s_add_u32 s{sD}, s{sD}, 4096
v_add_u32 v{vFPC}, s{sD}, v4
v_lshrrev_b32 v12, 3, v1
v_mul_u32_u24 v14, 896, v12
v_and_b32 v13, 7, v1
v_xor_b32 v12, v12, v13
v_lshl_add_u32 v{vXRD0}, v12, 4, v14
v_add_u32 v{vXRD1}, {7168-1024}, v{vXRD0}
v_bfe_u32 v12, v1, 4, 1
v_lshlrev_b32 v11, 2, v12
v_xor_b32 v11, v11, v13
v_lshl_add_u32 v{vWO0}, v11, 4, v14
v_add_u32 v{vWO1}, {7168-1024}, v{vWO0}
s_and_b32 s{sA}, s{sW}, 1
s_lshl_b32 s{sA}, s{sA}, 12
s_add_u32 s{sA}, s{sA}, {L_XCH}
v_lshlrev_b32 v10, 7, v9
v_lshl_add_u32 v10, v3, 3, v10
v_add_u32 v10, s{sA}, v10
s_lshr_b32 s{sA}, s{sW}, 1
s_lshl_b32 s{sB}, s{sA}, 2
v_xor_b32 v13, s{sB}, v13
v_lshl_add_u32 v{vXRR}, v13, 4, v10
v_mad_u32_u24 v10, v3, 14, v15
v_lshlrev_b32 v10, 7, v10
v_bfe_u32 v13, v1, 3, 1
v_xor_b32 v13, v13, v3
v_xor_b32 v13, s{sA}, v13
v_lshl_add_u32 v10, v13, 6, v10
v_lshl_add_u32 v10, v12, 5, v10
v_lshl_add_u32 v10, v8, 3, v10
s_mul_i32 s{sA}, s{sA}, {8*28*128}
s_add_u32 s{sA}, s{sA}, {L_WO}
v_add_u32 v{vWOR}, s{sA}, v10
v_lshl_add_u32 v11, v3, 3, v15
v_lshlrev_b32 v11, 6, v11
v_lshl_add_u32 v12, v12, 2, v8
v_cmp_lt_u32 vcc, 5, v12
v_xor_b32 v13, 1, v12
s_mul_i32 s{sA}, s{sH}, 1568
s_mul_i32 s{sB}, s{sHQ}, 1568
v_cndmask_b32 v12, v12, v13, vcc
v_lshl_add_u32 v11, v12, 3, v11
v_add_u32 v13, {L_WK}, v11""")
I(f"""v_bfe_u32 v10, v1, 2, 1
v_bfe_u32 v14, v1, 4, 1
v_lshl_add_u32 v10, v14, 1, v10
v_cmp_eq_u32 vcc, v10, v3
v_and_b32 v10, 1, v1
v_lshlrev_b32 v10, 4, v10
v_mov_b32 v14, 0x3f80
v_lshlrev_b32 v10, v10, v14
v_cndmask_b32 v10, 0, v10, vcc
v_bfe_u32 v14, v1, 3, 1
v_bfe_u32 v15, v1, 1, 1
v_lshl_add_u32 v14, v14, 1, v15""")
for q in range(4): I(f"v_cmp_eq_u32 vcc, {q}, v14\nv_cndmask_b32 v15, 0, v10, vcc\nv_accvgpr_write_b32 a{220+q}, v15")
I(f"""v_lshlrev_b32 v{vL512}, 9, v1
s_lshl_b32 s{sFS}, s{sH}, 13
s_lshl_b32 s{sD}, s{sW}, 7
s_add_u32 s{sD}, s{sD}, {WS_FLG}
s_add_u32 s{sFS}, s{sFS}, s{sD}
s_lshl_b32 s{sCt}, s{sT}, 2
s_add_u32 s{sFS}, s{sFS}, s{sCt}
s_lshl_b32 s{sFP}, s{sHQ}, 13
s_add_u32 s{sFP}, s{sFP}, s{sD}
s_lshl_b32 s{sCt}, s{sT}, 9
s_add_u32 s{sFP}, s{sFP}, s{sCt}
v_and_b32 v{vPO}, 60, v4""")
stamp("setup done", "p")
def wphi(dst, tmp, so):
    q = []
    for t in range(2):
        for j in range(8):
            d = 16 * t + 8 * (j >> 2) + (j & 3)
            av = vWPB if (t == 1 and j >= 4) else vWPA
            r = (dst if j % 2 == 0 else tmp) + 4 * t + j // 2
            op = "buffer_load_short_d16" if j % 2 == 0 else "buffer_load_short_d16_hi"
            q += mk(f"{op} v{r}, v{av}, {WPHI}, s{so} offen offset:{d*56}")
    return q
def wkdma(g): return flat(dmag([7], WQKV, sWB, f"s{sKW+g}", sWM, L_WK + 4096*g, f"wk{g}"))
def wvdma(g): return flat(dmag([9], WQKV, sWB, f"s{sKW+g}", sWM, L_WV + 4096*g, f"wv{g}"))
def wqdma(g): return flat(dmag([7], WQKV, sWQ, f"s{sKW+g}", sWM, L_WQ + 4096*g, f"wq{g}"))
I("v_add_u32 v9, 896, v7")
XF = 16
NX0 = opt("nx0", 4)
if opt("wt1", 0): P.add(wtouch(opt("wt1", 0), 249))
for g in range(NXE, NX0): P.add(xdma(g))
pend = [xdma(g) for g in range(NX0, 7)]
wkl = [wkdma(g) for g in range(7)]
if opt("wt2", 0): pend[-1] = pend[-1] + wtouch(opt("wt2", 0), 248)
pend.append(wkl.pop(0) + wphi(WPK, WPT, sA))
pend.append(wkl.pop(0) + wphi(WPQ, WPT+8, sB))
while len(pend) < 7: pend.append(wkl.pop(0))
def xrd(g): return flat([mk(f"ds_read_b128 {v(XF+16*g+4*e,4)}, v{240+e} offset:{4096*g}") for e in range(4)])
P.wait("x0"); P.add(xrd(0))
for g in range(7):
    if pend: P.add(pend.pop(0))
    if g + 1 < 7: P.wait(f"x{g+1}"); P.add(xrd(g + 1))
    for i in range(16):
        r = XF + 16*g + i
        I(f"v_dot2c_f32_bf16 v250, s{sONES}, v{r}\nv_dot2c_f32_bf16 v251, v{r}, v{r}")
    if g == 0: stamp("x0 done", "p")
for x_ in pend: P.add(x_)
stamp("x stats done", "mp")
I(f"""v_permlane32_swap_b32 v250, v251
v_or_b32 v5, 1, v5
s_mov_b32 s{sA}, 0x9E3779B5
v_add_f32 v250, v250, v251
v_mul_f32 v250, {fhex(-1/448)}, v250
v_mov_b32 v251, v250
v_mul_lo_u32 v5, v5, s{sA}
s_mov_b32 s{sA}, 0x3f80
v_permlane32_swap_b32 v250, v251
s_mov_b32 s{sB}, 0x3f800000""")
fin = mk(f"""v_fma_f32 v251, -v250, v250, -v251
v_max_f32 v251, 0, v251
v_add_f32 v251, 0x3727c5ac, v251
v_rsq_f32 v251, v251
s_lshl_b32 s{sQ}, s{sC}, 7
s_mul_i32 s{sD}, s{sW}, {16*896}
v_mul_f32 v252, 0x3fb8aa3b, v251
v_mul_f32 v253, 0xbfb8aa3b, v251
s_add_u32 s{sQ}, s{sQ}, s{sD}
s_lshl_b32 s{sXO}, s{sW}, 11""")
if opt("noid", 1): fin = [mk(f"s_cmp_ge_u32 s{sRact}, 14\ns_cselect_b32 s22, 0, s22")] + fin
ACK = 144; ACV = 160; PK = 176; IMG = 208; TMP = 232
def norm(t):
    q = Prog(); tb = TMP + 8 * (t & 1)
    for i in range(4):
        r = XF + 4 * t + i
        q.I(f"v_dot2_f32_bf16 v{tb+2*i}, v{r}, s{sA}, v250\nv_dot2_f32_bf16 v{tb+2*i+1}, v{r}, s{sB}, v250")
    return q.items
def normc(t):
    tb = TMP + 8 * (t & 1)
    return flat([mk(f"v_cvt_pk_bf16_f32 v{XF+4*t+i}, v{tb+2*i}, v{tb+2*i+1}") for i in range(4)])
def l2t(srd, k, dst):
    return mk(f"""s_lshr_b32 s{sCt}, s2, 3
s_lshl_b32 s{sCt}, s{sCt}, 2
s_add_u32 s{sCt}, s{sCt}, s{sW}
s_mul_i32 s{sCt}, s{sCt}, {98*128}
s_mov_b32 exec_hi, 0x1ffff
s_add_u32 s{sCt}, s{sCt}, {k*49*128}
buffer_load_dword v{dst}, v6, {srd}, s{sCt} offen
s_mov_b32 exec_hi, -1""")
L2A, L2B = opt("l2a", -1), opt("l2b", -1)
ns = norm(0)
for t in range(1, 28): ns += norm(t) + normc(t - 1)
ns += normc(27)
NBAR = opt("nbar", 100)
wvl = [wvdma(k) for k in range(7)]
if opt("loop2", 0):
    I("s_mov_b32 s80, 0\nL_lp2:\ns_mov_b32 s101, s100\ns_memtime s[78:79]\ns_waitcnt lgkmcnt(0)\ns_mov_b32 s99, s78")
    P.add([Ins(x.text) for x in ns])
    I("s_memtime s[78:79]\ns_waitcnt lgkmcnt(0)\ns_sub_u32 s100, s78, s99\ns_add_u32 s100, s100, s88\ns_add_u32 s80, s80, 1\ns_cmp_lt_u32 s80, 2\ns_cbranch_scc1 L_lp2")
    nstamp[0] = 14
P.add(sprinkle(ns[:NBAR], wkl, 0, opt("wkstep", 30)))
I("s_barrier")
NWV0 = opt("nwv0", 3)
P.add(sprinkle(ns[NBAR:], [wvl.pop(0) for _ in range(NWV0)], opt("wv0", 60), opt("wvstep", 60)))
P.wait(*[f"wk{k}" for k in range(7)]); I("s_barrier")
stamp("wk landed", "p")
AH = 6
pro, gk = gemm_lds([(13, 1024*t, 1024*t + 256, (XF + 4*t, ACK, t == 0, False)) for t in range(28)], AH)
P.add(pro)
S = Sched(gk)
S.spread(wvl, 0, opt("wve", 28))
for k, ps in enumerate((L2A, L2B)):
    if 0 <= ps < 28: S.at(ps, l2t(W1, k, 248 + k))
S.spread(fin + flat([mk(f"v_or_b32 v{WPK+q}, v{WPK+q}, v{WPT+q}\nv_or_b32 v{WPQ+q}, v{WPQ+q}, v{WPT+8+q}") for q in range(8)]), 2, 26)
P.add(S.emit())
def phi_pre(acc, wp):
    q = Prog()
    for i in range(8): q.I(f"v_cvt_pk_bf16_f32 v{acc+i}, v{acc+2*i}, v{acc+2*i+1}")
    q.I(f"{MF} {v(PK,16)}, {v(wp,4)}, {v(acc,4)}, 0\n{MF} {v(PK,16)}, {v(wp+4,4)}, {v(acc+4,4)}, {v(PK,16)}")
    return q.items
stamp("k gemm done", "mp")
wql = [wqdma(k) for k in range(7)]
P.add(wql.pop(0))
P.add(phi_pre(ACK, WPK))
imw = flat([mk(f"ds_write_b128 v{vIMW}, {v(IMG+4*i,4)} offset:{L_IMG+16*i}") for i in range(3)]) + mk(f"ds_write_b64 v{vIMW}, {v(IMG+12,2)} offset:{L_IMG+48}")
touch = mk(f"""s_mul_i32 s{sA}, s2, {52*128}
s_mul_i32 s{sB}, s{sW}, {13*128}
s_add_u32 s{sA}, s{sA}, s{sB}
s_mov_b64 exec, 0x1fff
buffer_load_dword v255, v6, {W1}, s{sA} offen
buffer_load_dword v254, v6, {W2}, s{sA} offen
s_mov_b64 exec, -1""")
smk = sprinkle(softmax(PK, TMP, IMG, True), [wql.pop(0) for _ in range(opt("nwq0", 3))], 10, opt("wqs", 40))
P.add(smk)
P.wait(*[f"wv{k}" for k in range(7)]); I("s_barrier")
stamp("softmax k done", "p")
pro, gv = gemm_lds([(11, L_WV + 1024*t, L_WV + 1024*t + 256, (XF + 4*t, ACV, t == 0, False)) for t in range(28)], AH)
P.add(pro)
S = Sched(gv)
S.spread(imw, 2, 10)
wo_l = flat([dmag([vWO0, vWO1], WO, sQ, i*64*896, sXO, L_WO + 8192*i, "wo", sDM) for i in range(7)] + [dmag([vXRD0, vXRD1], X, sXRB, 0, sXO, L_XCH, "wo", sDM)])
S.spread(wql, 0, 14)
if L2A >= 0: touch = [x for x in touch if W1 not in x.text]
tlb = []
if opt("tlb", 0) & 1: tlb += mk(f"s_mov_b64 exec, 1\nbuffer_load_dword v248, v6, {OUT}, s{sOUT} offen\ns_mov_b64 exec, -1")
if opt("tlb", 0) & 2: tlb += mk(f"v_lshlrev_b32 v249, 20, v1\ns_mov_b64 exec, 0xffff\nbuffer_load_dword v249, v249, {WS}, 0 offen offset:4092\ns_mov_b64 exec, -1")
if tlb: S.at(opt("tlbp", 13), tlb)
if opt("touch", 1): S.at(15, touch)
for k, ps in enumerate((L2A, L2B)):
    if 200 <= ps < 228: S.at(ps - 200, l2t(W1, k, 248 + k))
S.spread([wo_l.pop(0) for _ in range(2*opt("nwo0", 2))], 17, 28)
P.add(S.emit())
for k in range(0, 16, 2): I(f"v_pk_mul_f32 {v(ACV+k,2)}, {v(ACV+k,2)}, v[250:251] op_sel:[0,1] op_sel_hi:[1,1]")
I(f"v_cndmask_b32 v{ACV+12}, v{ACV+12}, 1.0, {sHI}")
for i in range(8): I(f"v_cvt_pk_bf16_f32 v{IMG+16+i}, v{ACV+2*i}, v{ACV+2*i+1}")
for i in range(4, 6): I(f"ds_write_b128 v{vIMW}, {v(IMG+4*i,4)} offset:{L_IMG+16*i}")
P.wait("wq0", "wq1", "wq2", "wq3")
I("s_waitcnt lgkmcnt(0)\ns_barrier")
stamp("img written", "p")
KA = 144; KBv = 208; KD = 176
for k in range(4):
    for u in range(2):
        I(f"ds_read_b64_tr_b16 {v(KA+4*k+2*u,2)}, v{vKA} offset:{(32*k+4*u)*208}")
    for nu in range(2):
        for u in range(2):
            I(f"ds_read_b64_tr_b16 {v(KBv+8*k+4*nu+2*u,2)}, v{vKB} offset:{(32*k+4*u)*208+64+16*nu}")
proq, gq = gemm_lds([(11, L_WQ + 1024*t, L_WQ + 1024*t + 256, (XF + 4*t, ACV, t == 0, False)) for t in range(28)], AH)
for k in range(4):
    for nu in range(2):
        I(f"v_mfma_f32_16x16x32_bf16 {v(KD+4*nu,4)}, {v(KA+4*k,4)}, {v(KBv+8*k+4*nu,4)}, {'0' if k == 0 else v(KD+4*nu,4)}")
P.add(proq[:8])
for i in range(4): I(f"v_cvt_pk_bf16_f32 v{KD+8+i}, v{KD+2*i}, v{KD+2*i+1}")
I(f"buffer_store_dwordx4 {v(KD+8,4)}, v2, {WS}, s{sPST} offen sc1")
I(f"v_xor_b32 v10, v{KD+8}, v5")
I(f"buffer_store_dword v10, v4, {WS}, s{sPCK} offen sc1")
if GATE & 1: P.add(flag_store(16))
P.add(proq[8:])
stamp("partial stored", "mp")
sW1B, sW1M, sW2E, sW2L = 40, 41, 42, 43
set2 = mk(f"""v_lshrrev_b32 v10, 4, v1
v_mul_u32_u24 v12, 3584, v10
v_lshlrev_b32 v10, 2, v10
v_and_b32 v13, 15, v1
v_xor_b32 v10, v10, v13
v_lshl_add_u32 v12, v10, 4, v12
v_add_u32 v13, {4*3584-1024}, v12
v_add_u32 v14, {2*(4*3584-1024)}, v12
v_add_u32 v15, {3*(4*3584-1024)}, v12
s_lshl_b32 s{sW1B}, s{sR}, 8
s_mul_i32 s{sD}, s{sW}, {16*3584}
s_add_u32 s{sW1B}, s{sW1B}, s{sD}
s_lshl_b32 s{sW1M}, s{sW}, 12
s_lshr_b32 s{sA}, s{sW}, 1
s_lshl_b32 s{sA}, s{sA}, 2
s_andn2_b32 s{sB}, 1, s{sW}
s_add_u32 s{sA}, s{sA}, s{sB}
s_lshl_b32 s{sB}, s{sU}, 1
s_add_u32 s44, s{sA}, s{sB}
s_xor_b32 s45, s44, 2
s_lshl_b32 s{sD}, s{sC}, 7
s_mul_i32 s{sW2E}, s44, {32*896}
s_add_u32 s{sW2E}, s{sW2E}, s{sD}
s_mul_i32 s{sW2L}, s45, {32*896}
s_add_u32 s{sW2L}, s{sW2L}, s{sD}
""")
vW2 = [vWO0, vWO1, 128, 129]
sSCR, sBIG = 46, 47
NRL = opt("nrl", 3)
RAWS = [2, 3] + list(range(7, 7 + NRL))
def UA(j): return 16*j
def w2slot(j): return (sSCR, 4096*{0:0, 1:1, 2:0, 3:1, 4:0, 5:1, 6:2}[j], 254) if j < 7 else (sBIG, 4096*(j - 7), 252)
def w2dma(j):
    mb, mo, _ = w2slot(j)
    return dmag(vW2, W2, sW2E if j < 7 else sW2L, (j%7)*256*896, mb, mo, f"w2_{j}", sDM)
def w2raw(j):
    ch = [mk(f"buffer_load_dwordx4 {a_(UA(j)+4*q,4)}, v{vW2[q]}, {W2}, s49 offen offset:{1024*q}") for q in range(4)]
    ch[0] = mk(f"s_add_u32 s49, s{sW2E if j < 7 else sW2L}, {(j%7)*256*896}") + ch[0]
    return ch
def w2rd(j):
    _, mo, av = w2slot(j)
    if j in RAWS: out = [mk(f"ds_write_b128 v{131 if j >= 7 else 134}, {a_(UA(j)+4*q,4)} offset:{mo+1024*q}") for q in range(4)]
    else: out = [[WaitTag([f"w2_{j}"])]]
    for e in range(2):
        for mu in range(2):
            for u in range(2): out.append(mk(f"ds_read_b64_tr_b16 {a_(UA(j)+8*e+4*mu+2*u,2)}, v{av+mu} offset:{mo+2048*e+1024*u}"))
    return out
raw = w2raw(2) + w2raw(3)
if opt("noid", 1): set2 = [mk(f"s_cmp_ge_u32 s{sRact}, 14\ns_cselect_b32 s26, 0, s26")] + set2
set2 += mk(f"v_add_u32 v128, {2*(7168-1024)}, v{vWO0}\nv_add_u32 v129, {3*(7168-1024)}, v{vWO0}")
S = Sched(gq)
S.spread(wo_l, 0, opt("woe", 28))
S.spread(set2, 2, 18)
S.spread([raw.pop(0) for _ in range(opt("rawa", 0))], 20, 28)
G0 = gate("g0", vPO, vPF)
if GATE & 1: S.at(opt("g0", 14), G0.load(0))
S.at(15 - AH, [WaitTag(["wq4", "wq5", "wq6"])] + mk("s_barrier"), 1.0)
P.add(S.emit())
stamp("q gemm done", "p")
G = 16; GC = 80; SA = 96
FP = Fetch("fp", [([f"s_add_u32 s{sCt}, s{sP}, {5120*T}\nbuffer_load_dwordx4 {v(G+4*T,4)}, v{vFPD}, {WS}, s{sCt} offen sc1\nbuffer_load_dword v{GC+T}, v{vFPC}, {WS}, s{sCt} offen sc1"],
                   [G+4*T, GC+T]) for T in range(16)])
P.add(phi_pre(ACV, WPQ))
if GATE & 1: P.add(G0.check(0, 0))
I("s_barrier")
PQ = 208
P.add(sprinkle(softmax(PK, TMP, PQ, True), [FP.load(T) for T in range(16)], opt("fp0", 0), opt("fpstep", 8)))
stamp("softmax q done", "p")
w1_l = flat([dmag([12, 13, 14, 15], W1, sW1B, i*64*3584, sW1M, 16384*i, "w1", sDM) for i in range(7)])
def fpb(b):
    t = []
    for k, T in enumerate(range(4*b, 4*b+4)):
        t.append(f"v_bitop3_b32 v{10 if k == 0 else 9}, v{G+4*T}, v{GC+T}, v5 {X3}" + ("" if k == 0 else "\nv_or_b32 v10, v10, v9"))
    return "\n".join(t) + "\nv_cmp_ne_u32 vcc, 0, v10"
I("s_branch L_fp_go\nL_fp_retry:")
for b in range(4):
    I(fpb(b) + f"\ns_cbranch_vccz L_fp_k{b}\n" + "\n".join(FP.pieces[T][0][0] for T in range(4*b, 4*b+4)) + f"\nL_fp_k{b}:", unc=True)
I(GUARD, unc=True)
I("L_fp_go:")
I(fpb(0) + "\ns_cbranch_vccnz L_fp_retry")
S = Sched([mk(f"{MF} {v(SA,16)}, a[220:223], {v(G+4*T,4)}, {'0' if T == 0 else v(SA,16)}") for T in range(16)])
for b in range(1, 4): S.spread(mk(fpb(b) + "\ns_cbranch_vccnz L_fp_retry"), 4*b - 3, 4*b)
S.spread([w1_l.pop(0) for _ in range(opt("nw1a", 2))], 12, 16)
P.add(S.emit())
I(f"v_add_u32 v9, {L_KVX}, v{vFPD}")
for i in range(4): I(f"v_cvt_pk_bf16_f32 v{SA+8+i}, v{SA+2*i}, v{SA+2*i+1}")
I(f"ds_write_b128 v9, {v(SA+8,4)}\ns_waitcnt lgkmcnt(0)\ns_barrier")
stamp("kv summed", "mp")
KVA = 32; OD = 48
for q in range(7): I(f"ds_read_b64 {v(KVA+2*q,2)}, v{vKVX} offset:{512*q}")
P.add(w1_l.pop(0))
for s in range(3):
    I(f"{MF} {v(OD,16)}, {v(KVA+4*s,4)}, {v(PQ+4*s,4)}, {'0' if s == 0 else v(OD,16)}")
    if s == 1: P.add(w1_l.pop(0))
I(f"v_mfma_f32_32x32x8_bf16 {v(OD,16)}, {v(KVA+12,2)}, {v(PQ+12,2)}, {v(OD,16)}")
I(f"""s_lshl_b32 s{sP}, s{sTILE}, 15
s_lshr_b32 s{sB}, s{sW}, 1
s_lshl_b32 s{sB}, s{sB}, 14
s_add_u32 s{sP}, s{sP}, s{sB}
s_add_u32 s{sP}, s{sP}, {WS_O}
s_add_u32 s{sA}, s{sW1M}, {L_XCH}
v_add_u32 v132, s{sA}, v2
v_xor_b32 v133, 8192, v132
s_lshr_b32 s{sA}, s{sW}, 1
s_mul_i32 s{sA}, s{sA}, 7
s_lshl_b32 s{sB}, s{sT}, 4
s_add_u32 s{sA}, s{sA}, s{sB}
s_lshl_b32 s{sA}, s{sA}, 2
s_lshr_b32 s{sB}, s{sHQ}, 3
s_lshl_b32 s{sB}, s{sB}, 1
s_add_u32 s{sA}, s{sA}, s{sB}
s_and_b32 s{sB}, s{sW}, 1
s_add_u32 s{sA}, s{sA}, s{sB}
s_lshl_b32 s{sA}, s{sA}, 7
s_and_b32 s{sB}, s{sHQ}, 7
s_lshl_b32 s{sB}, s{sB}, 2
s_add_u32 s{sA}, s{sA}, s{sB}
s_add_u32 s{sFS}, s{sA}, {WS_FLG + 131072}
v_xor_b32 v9, 64, v{vWOR}
v_and_b32 v7, 31, v1
v_mul_u32_u24 v7, 896, v7
v_add_f32 v{OD+14}, 0x358637bd, v{OD+14}
v_rcp_f32 v{OD+14}, v{OD+14}
v_lshl_add_u32 v7, v3, 4, v7""")
for k in range(0, 14, 2): I(f"v_pk_mul_f32 {v(OD+k,2)}, {v(OD+k,2)}, {v(OD+14,2)} op_sel_hi:[1,0]")
for k in range(4): I(f"v_cvt_pk_bf16_f32 v{64+k}, v{OD+2*k}, v{OD+2*k+1}")
I(f"buffer_store_dwordx4 v[64:67], v2, {WS}, s{sOST} offen sc1")
for k in range(4, 7): I(f"v_cvt_pk_bf16_f32 v{64+k}, v{OD+2*k}, v{OD+2*k+1}")
I(f"""v_bitop3_b32 v71, v64, v5, s{sMASK} bitop3:0x28
v_and_b32 v6, s{sMASK}, v5
buffer_store_dwordx4 v[68:71], v2, {WS}, s{sOST} offen offset:1024 sc1""")
if GATE & 2: P.add(flag_store(7))
stamp("o stored", "mo")
I(f"""s_mul_i32 s{sA}, s{sU}, 7
s_add_u32 s{sA}, s{sA}, s{sC}
s_lshl_b32 s{sB}, s{sT2}, 4
s_add_u32 s{sA}, s{sA}, s{sB}
s_lshl_b32 s{sA}, s{sA}, 2
s_add_u32 s{sA}, s{sA}, s{sW}
s_lshl_b32 s66, s{sA}, 7
s_add_u32 s{sFP}, s66, {WS_FLG + 131072}
v_and_b32 v{vPO}, 28, v4""")
P.wait("wo")
I(f"s_cmp_ge_u32 s{sRact}, 14\ns_cbranch_scc1 L_idle\ns_barrier")
wor = []
for s in range(16):
    hh, e = s >> 1, s & 1
    for k, av in ((0, vWOR), (1, 9)):
        for u in range(2):
            wor += mk(f"ds_read_b64_tr_b16 {a_(128+8*s+4*k+2*u,2)}, v{av} offset:{(28*hh+8*e+4*u)*128}")
XR = 224
xrr = []
for i in range(4): xrr += mk((f"v_xor_b32 v10, {16*i}, v{vXRR}\n" if i else "") + f"ds_read_b64 {v(XR+2*i,2)}, v{10 if i else vXRR}")
P.add(xrr)
G1 = gate("g1", vPO, vPF)
nb_ = min(opt("nw1b", 12), len(w1_l) - 8)
wor = sprinkle(wor, [w1_l.pop(0) for _ in range(nb_)], 0, opt("w1bs", 5))
if GATE & 2: wor = sprinkle(wor, [G1.load(0)], opt("g1", 40), 1)
P.add(wor)
OB = 16
FO = Fetch("fo", [([f"s_add_u32 s{sCt}, s{sP}, {2048*hh}\nbuffer_load_dwordx4 {v(OB+8*hh,4)}, v2, {WS}, s{sCt} offen sc1\nbuffer_load_dwordx4 {v(OB+8*hh+4,4)}, v2, {WS}, s{sCt} offen offset:1024 sc1"],
                   [OB+8*hh, OB+8*hh+7]) for hh in range(8)], masked=True, nre=opt('reo', 2))
stamp("pre o fetch", "o")
AO, AT = 80, 96
pre2 = []
for i in range(8): pre2 += mk(f"v_lshlrev_b32 v{112+2*i}, 16, v{XR+i}\nv_and_b32 v{113+2*i}, s{sHIM}, v{XR+i}")
for s in range(1, 16, 2): pre2 += mk(f"v_accvgpr_write_b32 a{128+8*s+3}, 0\nv_accvgpr_write_b32 a{128+8*s+7}, 0")
if GATE & 2:
    P.add(pre2); P.add(G1.check(0, 0))
    stamp("gate1", "o")
    for hh in range(8): P.add(FO.load(hh))
else: P.add(sprinkle(pre2, [FO.load(hh) for hh in range(8)], 0, 4))
I("s_waitcnt lgkmcnt(0)\ns_barrier")
stamp("fo issued", "o")
g2 = []
for s in range(16):
    for k, acc in ((1, AT), (0, AO)):
        c = ("0" if k else v(112,16)) if s == 0 else v(acc,16)
        g2.append(mk(f"{MF} {v(acc,16)}, {a_(128+8*s+4*k,4)}, {v(OB+4*s,4)}, {c}"))
set3 = mk(f"""s_mul_i32 s{sSCR}, s{sW}, 12288
s_mul_i32 s{sBIG}, s{sW}, 28672
v_add_u32 v131, s{sBIG}, v2
s_lshl_b32 s{sB}, s{sC}, 1
s_lshr_b32 s{sD}, s{sW}, 1
s_add_u32 s{sB}, s{sB}, s{sD}
s_lshl_b32 s{sFS}, s{sB}, 2
s_lshl_b32 s{sA}, s{sT2}, 13
s_add_u32 s{sFS}, s{sFS}, s{sA}
s_and_b32 s{sA}, s{sTILE}, 3
s_lshl_b32 s{sA}, s{sA}, 7
s_add_u32 s{sFS}, s{sFS}, s{sA}
s_add_u32 s{sFS}, s{sFS}, {WS_FLG + 2*131072}
s_mul_i32 s{sA}, s{sTILE}, 14
s_add_u32 s{sB}, s{sB}, s{sA}
s_mul_i32 s{sPST}, s{sB}, 2560
s_add_u32 s{sPST}, s{sPST}, {WS_H}
s_lshr_b32 s48, s{sW}, 1
s_nop 0
v_bfe_u32 v9, v1, 2, 2
v_lshl_add_u32 v240, v3, 2, v9
v_lshlrev_b32 v254, 7, v240
v_lshlrev_b32 v240, 8, v240
v_xor_b32 v9, s{sW}, v9
v_lshl_add_u32 v240, v9, 6, v240
v_bfe_u32 v9, v1, 4, 1
v_lshlrev_b32 v9, 5, v9
v_lshl_add_u32 v9, v8, 3, v9
v_add_u32 v240, v240, v9
v_add_u32 v254, v254, v9
v_bfe_u32 v9, v1, 3, 1
v_xor_b32 v9, s48, v9
v_lshl_add_u32 v254, v9, 6, v254
s_add_u32 s{sSCR}, s{sSCR}, {L_SCR}
v_add_u32 v252, s{sBIG}, v254
v_xor_b32 v253, 64, v252
v_add_u32 v254, s{sSCR}, v254
v_add_u32 v134, s{sSCR}, v2
v_xor_b32 v255, 64, v254
v_xor_b32 v241, 64, v240
v_xor_b32 v242, 128, v240
v_xor_b32 v243, 192, v240""") + flat([mk(f"v_add_u32 v{244+m}, 57344, v{240+m}") for m in range(4)])
P.add(sprinkle(set3[:21], [w1_l.pop(0) for _ in range(opt("nw1c", 4))], 0, 5))
P.add(FO.check(0, 7))
stamp("fo0", "o")
S = Sched(g2)
for hh in range(1, 8): S.spread(FO.checkc(hh, 7), 4*hh - 3, 4*hh)
S.spread(w1_l + [raw.pop(0) for _ in range(min(len(raw), opt("rawb", 4)))], 0, 32)
S.spread(set3[21:], 0, 30)
P.add(S.emit())
stamp("p2 gemm done", "o")
for i in range(4): I(f"ds_write_b128 v132, {v(AT+4*i,4)} offset:{1024*i}")
I("v_mov_b32 v112, 0\nv_mov_b32 v113, 0\ns_waitcnt lgkmcnt(0)\ns_barrier")
for i in range(4): I(f"ds_read_b128 {v(AT+4*i,4)}, v133 offset:{1024*i}")
HR = XR
for k in range(0, 8, 2): I(f"v_pk_add_f32 {v(AO+k,2)}, {v(AO+k,2)}, {v(AT+k,2)}")
for i in range(4): I(f"v_cvt_pk_bf16_f32 v{HR+i}, v{AO+2*i}, v{AO+2*i+1}")
I(f"buffer_store_dwordx4 {v(HR,4)}, v2, {WS}, s{sPST} offen sc1")
for k in range(8, 16, 2): I(f"v_pk_add_f32 {v(AO+k,2)}, {v(AO+k,2)}, {v(AT+k,2)}")
for i in range(4, 8): I(f"v_cvt_pk_bf16_f32 v{HR+i}, v{AO+2*i}, v{AO+2*i+1}")
I(f"buffer_store_dwordx4 {v(HR+4,4)}, v2, {WS}, s{sPST} offen offset:1024 sc1")
for i in range(8): I(f"v_dot2c_f32_bf16 v112, s{sONES}, v{HR+i}\nv_dot2c_f32_bf16 v113, v{HR+i}, v{HR+i}")
I(f"""v_bitop3_b32 v10, v{HR}, v{HR+4}, v5 {X3}
v_permlane32_swap_b32 v112, v113
v_add_f32 v112, v112, v113
buffer_store_dword v112, v4, {WS}, s{sPST} offen offset:2048 sc1
v_xor_b32 v113, v10, v112
buffer_store_dword v113, v4, {WS}, s{sPST} offen offset:2304 sc1""")
def selft(sreg, nl): return mk(f"s_mov_b64 exec, {(1 << nl) - 1}\nbuffer_load_dword v135, v134, {WS}, s{sreg} offen sc1\ns_mov_b64 exec, -1")
SELF = opt("self", 0)
if SELF & 1: P.add(selft(sPST, 20))
if GATE & 4: P.add(flag_store(14))
stamp("h stored", "moh")
HB = 16; ST = 192
ACC = [144, 160, 176, 192]; AUG = 232
set4 = mk(f"""s_lshl_b32 s{sB}, s{sT3}, 2
s_add_u32 s{sB}, s{sB}, s{sW}
s_mul_i32 s{sP}, s{sB}, {14*2560}
s_add_u32 s{sP}, s{sP}, {WS_H}
s_mul_i32 s{sA}, s{sB}, 56
s_lshl_b32 s{sD}, s{sR}, 2
s_add_u32 s{sA}, s{sA}, s{sD}
s_mul_i32 s{sQ}, s{sA}, 2304
s_add_u32 s{sQ}, s{sQ}, {WS_H1}
v_lshlrev_b32 v13, 3, v1
s_lshl_b32 s{sA}, s{sW}, 9
s_add_u32 s{sA}, s{sA}, {L_AUG}
v_add_u32 v13, s{sA}, v13
v_mov_b32 v222, 0
s_lshl_b32 s{sA}, s{sT3}, 4
s_add_u32 s{sA}, s{sA}, s{sR}
s_lshl_b32 s{sA}, s{sA}, 2
s_add_u32 s{sA}, s{sA}, s{sW}
s_lshl_b32 s{sA}, s{sA}, 7
s_add_u32 s{sFP}, s{sA}, {WS_FLG + 2*131072}
v_min_u32 v{vPO}, 52, v4
s_lshr_b32 s{sA}, s{sW}, 1
s_mul_i32 s{sA}, s{sA}, 7
s_lshl_b32 s{sB}, s{sT3}, 4
s_add_u32 s{sA}, s{sA}, s{sB}
s_lshl_b32 s{sA}, s{sA}, 2
s_and_b32 s{sB}, s{sR}, 1
s_lshl_b32 s{sB}, s{sB}, 1
s_add_u32 s{sA}, s{sA}, s{sB}
s_and_b32 s{sB}, s{sW}, 1
s_add_u32 s{sA}, s{sA}, s{sB}
s_lshl_b32 s{sA}, s{sA}, 7
s_lshr_b32 s{sB}, s{sR}, 1
s_lshl_b32 s{sB}, s{sB}, 2
s_add_u32 s{sA}, s{sA}, s{sB}
s_add_u32 s{sFS}, s{sA}, {WS_FLG + 3*131072}""")
FH = Fetch("fh", [([f"s_add_u32 s{sCt}, s{sP}, {2560*p}\nbuffer_load_dwordx4 {v(HB+8*p,4)}, v2, {WS}, s{sCt} offen sc1\nbuffer_load_dwordx4 {v(HB+8*p+4,4)}, v2, {WS}, s{sCt} offen offset:1024 sc1\n"
                    f"buffer_load_dword v{ST+2*p}, v4, {WS}, s{sCt} offen offset:2048 sc1\nbuffer_load_dword v{ST+2*p+1}, v4, {WS}, s{sCt} offen offset:2304 sc1"],
                   [HB+8*p, HB+8*p+4, ST+2*p, ST+2*p+1]) for p in range(14)], nre=opt('reh', 2))
for i in range(4): I(f"v_mov_b32 v{AUG+i}, s{sONES}")
P.wait("w1"); I("s_barrier")
stamp("w1 landed", "h")
def w1a(t, k): return (240 + k + (4 if t >= 14 else 0), (t % 14) * 4096, (t % 14) * 4096 + 2048)
st3 = [w1a(t, 0) + ((AUG, ACC[2], t == 0, True),) for t in range(28)]
for t in range(28):
    for k in range(3): st3.append(w1a(t, k) + ((HB + 4*t, ACC[k], t == 0, False),))
for t in range(28): st3.append(w1a(t, 3) + ((HB + 4*t, ACC[3], t == 0, False),))
pro, g3 = gemm_lds(st3, AH)
P.add(pro)
S3 = Sched(g3)
S3.spread(set4, 0, 12)
S3.spread(raw + w2dma(0) + w2dma(1), 0, opt("c0e", 20)); raw = []
NH0 = opt("nh0", 4); H0 = opt("h0", 20)
G2 = gate("g2", vPO, vPF)
if GATE & 4:
    S3.at(opt("g2", 12), G2.load(0), 0.9)
    S3.at(27, G2.check(0, 0) + stampi("gate2", "h") + flat([FH.load(p) for p in range(NH0)]), 0.5)
else: S3.spread(flat([FH.loadc(p) for p in range(NH0)]), H0, 27)
cs = ACC[2]
csx = mk(f"""v_cvt_pk_bf16_f32 v{AUG}, v{cs}, v{cs}
v_lshlrev_b32 v{AUG+1}, 16, v{AUG}
v_sub_f32 v{AUG+1}, v{cs}, v{AUG+1}
v_cvt_pk_bf16_f32 v{AUG}, v{cs}, v{AUG+1}
v_and_b32 v{AUG+1}, 0xffff, v{AUG}
v_cndmask_b32 v{AUG}, v{AUG}, 0, {sHI}
v_cndmask_b32 v{AUG+1}, v{AUG+1}, 0, {sHI}
ds_write_b64 v13, {v(AUG,2)}""")
S3.at(27, stampi("colsum done", "h") + csx + FH.check(0, NH0 - 1) + stampi("fh0", "h"), 1.0)
B0 = 28
for p in range(14):
    b = B0 + 6*p
    if p + NH0 < 14:
        for k_, c_ in enumerate(FH.loadc(p + NH0)): S3.at(b + (0, 2, 4, 4)[k_], c_, 0.2)
    S3.at(b, mk(f"v_add_f32 v222, v222, v{ST+2*p}"), 0.0)
    if p + 1 < 14: S3.spread(FH.checkc(p + 1, min(13, p + NH0 - 1)), b + 1, b + 6)
    if p in (3, 7, 11): S3.at(b + 5, stampi(f"fh{p+1}", "h"), 1.0)
S3.at(B0 + 20, mk("s_waitcnt lgkmcnt(0)\ns_barrier") + flat([mk(f"v_xor_b32 v9, {512*k}, v13\nds_read_b64 {v(AUG+2*k,2)}, v9") for k in range(1, 4)]), 0.0)
mid = mk(f"""v_mul_f32 v220, {fhex(1/448)}, v222
v_mov_b32 v221, v220
s_nop 0
v_permlane32_swap_b32 v220, v221
v_fma_f32 v221, -v220, v220, v221
v_max_f32 v221, 0, v221
v_add_f32 v221, 0x3727c5ac, v221
v_rsq_f32 v251, v221
v_cvt_pk_bf16_f32 v222, -v220, -v220
v_lshlrev_b32 v9, 16, v222
v_sub_f32 v9, -v220, v9
v_cvt_pk_bf16_f32 v223, v9, 0
v_mul_f32 v250, v221, v251
v_mul_f32 v251, 0xbfb8aa3b, v251
v_cndmask_b32 v222, v222, 0, {sHI}
v_cndmask_b32 v223, v223, 0, {sHI}""")
S3.spread(mid, B0 + 79, B0 + 84)
def aug(k): return mk(f"v_mfma_f32_32x32x8_bf16 {v(ACC[k],16)}, {v(AUG+2*k,2)}, v[222:223], {v(ACC[k],16)}")
SLT = 132
def silu(k, pk):
    q = Prog(); a = ACC[k]; t = 208
    q.I(f"s_xor_b32 s50, s{sW}, {k}\ns_mul_i32 s50, s50, 2304\ns_add_u32 s50, s50, s{sQ}")
    for half in range(2):
        b = a + 8 * half
        if pk:
            for j in range(0, 8, 2): q.I(f"v_pk_mul_f32 {v(t+j,2)}, {v(b+j,2)}, v[250:251] op_sel:[0,1] op_sel_hi:[1,1]")
        else:
            for j in range(8): q.I(f"v_mul_f32 v{t+j}, v{b+j}, v251")
        for j in range(8): q.I(f"v_exp_f32 v{t+j}, v{t+j}")
        if pk:
            for j in range(0, 8, 2): q.I(f"v_pk_fma_f32 {v(t+j,2)}, {v(t+j,2)}, v[250:251], v[250:251] op_sel_hi:[1,0,0]")
        else:
            for j in range(8): q.I(f"v_fma_f32 v{t+j}, v{t+j}, v250, v250")
        for j in range(8): q.I(f"v_rcp_f32 v{t+j}, v{t+j}")
        if pk:
            for j in range(0, 8, 2): q.I(f"v_pk_mul_f32 {v(b+j,2)}, {v(b+j,2)}, {v(t+j,2)}")
        else:
            for j in range(8): q.I(f"v_mul_f32 v{b+j}, v{b+j}, v{t+j}")
        for j in range(4): q.I(f"v_cvt_pk_bf16_f32 v{b+j}, v{b+2*j}, v{b+2*j+1}")
        q.I(f"buffer_store_dwordx4 {v(b,4)}, v2, {WS}, s50 offen offset:{1024*half} sc1")
    q.I(f"v_bitop3_b32 v216, v5, v{a}, v{a+8} {X3}")
    q.I(f"buffer_store_dword v216, v4, {WS}, s50 offen offset:2048 sc1")
    return q.items + ([selft(50, 18)] if SELF & 2 and not pk else [])
E0 = B0 + 84
assert not raw
S3.spread(w2rd(0) + w2rd(1) + w2rd(2) + w2rd(3), B0 + 22, B0 + 58)
S3.at(B0 + 44, mk("s_barrier"), 0.0)
WD = opt("wd", 64)
S3.spread(w2dma(4) + w2dma(5) + w2dma(6), B0 + WD, E0)
B4 = 16
CKR = [240, 241, 242, 244, 245, 246, 248, 249, 217, 218, 219, 130, 243, 247]
C4 = [[a_(224,16), a_(240,16)], [v(ACC[0],16), v(ACC[1],16)]]
set5 = mk(f"""s_mul_i32 s{sA}, s{sTILE}, 56
s_xor_b32 s{sB}, s{sTILE}, 1
s_mul_i32 s{sB}, s{sB}, 56
s_add_u32 s51, s{sB}, s44
s_add_u32 s52, s{sA}, s44
s_add_u32 s53, s{sB}, s45
s_add_u32 s54, s{sA}, s45""")
for k in range(4):
    set5 += mk(f"s_mul_i32 s{51+k}, s{51+k}, 2304\ns_add_u32 s{51+k}, s{51+k}, {WS_H1}")
S3.spread(set5, B0 + 60, B0 + 78)
def piece4(n):
    st, i = n // 7, n % 7; r = B4 + 8 * (n % 14); c = CKR[n % 14]
    return ([f"s_add_u32 s{sCt}, s{51+st}, {8*2304*i}\nbuffer_load_dwordx4 {v(r,4)}, v2, {WS}, s{sCt} offen sc1\nbuffer_load_dwordx4 {v(r+4,4)}, v2, {WS}, s{sCt} offen offset:1024 sc1\n"
             f"buffer_load_dword v{c}, v4, {WS}, s{sCt} offen offset:2048 sc1"], [r, r+4, c])
F4 = Fetch("f4", [piece4(n) for n in range(28)], nre=opt("re4", 1))
ND = opt("nd", 4)
rawl = flat([w2raw(j) for j in range(7, 7 + NRL)])
nr0 = min(len(rawl), opt("nr0", 4))
S3.at(E0 - 1, stampi("p3 pass1 done", "mh") + aug(0) + aug(1) + aug(2) + sprinkle(silu(0, True), rawl[:nr0], 3, 12) + stampi("silu0 done", "e"), 1.0)
S3.spread(silu(1, False), E0, E0 + 26)
S3.spread(rawl[nr0:], E0, E0 + 14)
F4S = opt("f4s", 16)
S3.spread(flat([F4.loadc(n) for n in range(ND)]), E0 + F4S, E0 + 28)
P.add(S3.emit())
P.add(aug(3))
I("s_barrier")
stamp("p3 gemm done", "me")
g4 = []
for n in range(28):
    st, i = n // 7, n % 7; hf, par = st >> 1, st & 1
    for e in range(2):
        for mu in range(2):
            zero = hf == 0 and i == 0 and e == 0 and not (par == 1 and mu == 0)
            g4.append(mk(f"{MF} {C4[par][mu]}, {a_(UA(7*hf+i)+8*e+4*mu,4)}, {v(B4+8*(n%14)+4*e,4)}, {'0' if zero else C4[par][mu]}"))
P.add(F4.check(0, ND - 1))
S = Sched(g4)
for n in range(28):
    if n + ND < 28:
        for k_, c_ in enumerate(F4.loadc(n + ND)): S.at(4*n + (0, 2, 1)[k_], c_, 0.2)
    if n + 1 < 28: S.spread(F4.checkc(n + 1, min(27, n + ND)), 4*n + 2, 4*n + 4)
    if n in (6, 13, 20): S.at(4*n + 3, stampi(f"stage{n//7} done", "e"), 1.0)
unp = []
for i in range(8): unp += mk(f"v_lshlrev_b32 v{ACC[0]+2*i}, 16, v{HR+i}\nv_and_b32 v{ACC[0]+1+2*i}, s{sHIM}, v{HR+i}")
S.spread(silu(2, False), 0, 22)
S.spread(unp, 22, 27)
S.spread(silu(3, False), 27, 50)
S.spread(w2rd(4) + w2rd(5) + w2rd(6), 0, 14)
S.spread(flat([w2dma(j) for j in range(7 + NRL, 14)]), opt("w2a", 2), opt("w2b", 44))
for j in range(7, 14): S.spread(w2rd(j), 44 + 5*(j-7), 49 + 5*(j-7))
S.at(82, mk(f"""s_lshl_b32 s{sA}, s{sW}, 14
v_add_u32 v13, s{sA}, v2
v_xor_b32 v9, 16384, v13
v_xor_b32 v12, 32768, v13
v_xor_b32 v14, 49152, v13
s_waitcnt lgkmcnt(0)
s_barrier"""))
S.spread([mk(f"ds_write_b128 v{9 if mu == 0 else 14}, {a_(224+16*mu+4*i,4)} offset:{4096*(2*mu+1)+1024*i}") for mu in range(2) for i in range(4)], 87, 99)
S.at(100, mk("s_waitcnt lgkmcnt(0)\ns_barrier"), 0.0)
S.spread([mk(f"ds_read_b128 {v(ACC[2+mu]+4*i,4)}, v13 offset:{4096*(2*mu+1)+1024*i}") for mu in range(2) for i in range(4)], 100, 104)
S.spread([mk(f"v_add_f32 v{ACC[2]+k}, v{ACC[2]+k}, v{ACC[3]+k}") for k in range(16)], 107, 112)
P.add(S.emit())
stamp("p4 gemm done", "me")
for i in range(4): I(f"ds_write_b128 v12, {v(ACC[1]+4*i,4)} offset:{8192+1024*i}")
I("s_waitcnt lgkmcnt(0)\ns_barrier")
for i in range(4): I(f"ds_read_b128 {v(ACC[3]+4*i,4)}, v13 offset:{8192+1024*i}")
for k in range(0, 16, 2): I(f"v_pk_add_f32 {v(ACC[0]+k,2)}, {v(ACC[0]+k,2)}, {v(ACC[2]+k,2)}")
for hf in range(2):
    b = ACC[0] + 8*hf
    for k in range(0, 8, 2): I(f"v_pk_add_f32 {v(b+k,2)}, {v(b+k,2)}, {v(ACC[3]+8*hf+k,2)}")
    for i in range(4): I(f"v_cvt_pk_bf16_f32 v{96+4*hf+i}, v{b+2*i}, v{b+2*i+1}")
    I(f"v_permlane32_swap_b32 v{96+4*hf}, v{98+4*hf}\nv_permlane32_swap_b32 v{97+4*hf}, v{99+4*hf}\nbuffer_store_dwordx4 {v(96+4*hf,4)}, v7, {OUT}, s{sOUT} offen offset:{32*hf} {OPT.get('ofl', '')}")
stamp("end", "mpohez")
I(f"""s_cmp_lg_u32 s2, 0
s_cbranch_scc1 L_exit
v_mov_b32 v9, 0""")
I(f"buffer_store_dword v5, v9, {WS}, 0 offen sc1", unc=True)
I("L_exit:")
if DIAG:
    I(f"s_cmp_lg_u32 s{sW}, {opt('dw', 0)}\ns_cbranch_scc1 L_end\ns_lshl_b32 s{sA}, s2, 7\ns_add_u32 s{sA}, s{sA}, {WS_DIAG}\nv_mov_b32 v9, 0", unc=True)
    for k in range(nstamp[0]):
        I(f"s_waitcnt lgkmcnt(0)\nv_mov_b32 v10, s{sSTAMP+2*k}\nbuffer_store_dword v10, v9, {WS}, s{sA} offen offset:{4*k}", unc=True)
    if SEL == ["z"]: I(f"v_mov_b32 v10, s78\nbuffer_store_dword v10, v9, {WS}, s{sA} offen offset:120", unc=True)
    I(f"v_mov_b32 v10, s{sSPIN}\nbuffer_store_dword v10, v9, {WS}, s{sA} offen offset:124", unc=True)
I("L_end:\ns_endpgm")
I(f"""L_idle:
s_and_b32 s{sA}, s{sT2}, 1
s_lshl_b32 s{sA}, s{sA}, 1
s_add_u32 s{sA}, s{sA}, s{sRact}
s_sub_u32 s{sA}, s{sA}, 14
s_lshl_b32 s{sA}, s{sA}, 2
s_add_u32 s{sA}, s{sA}, s{sW}
s_lshl_b32 s{sA}, s{sA}, 13
v_lshlrev_b32 v9, 7, v1
s_mov_b32 s{sB}, {opt("idle", 0)}
s_cmp_eq_u32 s{sB}, 0
s_cbranch_scc1 L_exit
L_idle1:
buffer_load_dword v10, v9, {W2}, s{sA} offen
s_add_u32 s{sA}, s{sA}, {16*8192}
s_sub_u32 s{sB}, s{sB}, 1
s_cmp_lg_u32 s{sB}, 0
s_cbranch_scc1 L_idle1
s_branch L_exit""", unc=True)
P.add(TAIL.items)

PL = opt("plain", 0)
for it in P.items:
    if isinstance(it, Ins) and it.op.startswith("buffer_store") and "sc1" in it.text:
        ish1 = " s50 " in it.text or " s49 " in it.text
        ish = ("v[224:227]" in it.text or "v[228:231]" in it.text or "v112," in it.text or "v113," in it.text)
        if (ish and PL & 1) or (ish1 and PL & 2): it.text = it.text.replace(" sc1", OPT.get("pfl", ""))
if opt("nochk", 0):
    new = []; seen_end = False
    for it in P.items:
        if isinstance(it, Ins):
            if opt("nochk", 0) == 2 and not seen_end:
                if it.text.startswith("L_exit"): seen_end = True
                elif it.uncounted or it.op in ("s_cbranch_vccz", "s_branch"): continue
            if it.op == "s_cbranch_vccz" and not it.uncounted: it = Ins(it.text.replace("s_cbranch_vccz", "s_branch"))
            elif it.op == "s_cbranch_vccnz" and not it.uncounted: continue
            t = it.text
            if it.op.startswith("buffer_store") and "sc1" in t and not it.uncounted:
                kind = 8 if " s50 " in t else 4 if ("v[224" in t or "v[228" in t or "v112," in t or "v113," in t) else 2 if f" s{sOST} " in t else 1
                if opt("nost", 0) & kind: continue
            if it.op.startswith("buffer_load") and "sc1" in t and " s56 " in t and not it.uncounted:
                cnt_ld = globals().setdefault("_c", [0]); cnt_ld[0] += 1; c = cnt_ld[0]
                kind = 1 if c <= 32 else 2 if c <= 48 else 4 if c <= 104 else 8
                if opt("nold", 0) & kind: continue
        new.append(it)
    P.items = new
body, items = render(P.items)
if opt("align", 1):
    import subprocess, re as _re
    open("_al.s", "w").write('.amdgcn_target "amdgcn-amd-amdhsa--gfx950"\n.text\n' + body)
    subprocess.run(["clang", "-x", "assembler", "-target", "amdgcn-amd-amdhsa", "-mcpu=gfx950", "-c", "_al.s", "-o", "_al.o"], check=True)
    dis = subprocess.run(["llvm-objdump", "-d", "--mcpu=gfx950", "_al.o"], capture_output=True, text=True).stdout
    sizes = [4 * len(m.group(1).split()) for m in _re.finditer(r"// [0-9A-F]{12}: ((?:[0-9A-F]{8} ?)+)", dis)]
    real = [i for i in items if i.cls not in ('label', 'dir')]
    assert len(sizes) == len(real), (len(sizes), len(real))
    sz = {id(i): n for i, n in zip(real, sizes)}
    new = []; off = 0; nal = 0; MINRUN = opt("minrun", 6)
    for k, it in enumerate(items):
        if id(it) in sz and sz[id(it)] == 8 and off % 8 == 4 and not it.uncounted:
            run = 0
            for j in items[k:k + MINRUN + 4]:
                if id(j) not in sz: continue
                if sz[id(j)] != 8 or j.cls == 'mfma': break
                run += 1
            if run >= MINRUN:
                p = new[-1] if new else None
                if p is not None and p.cls == 'valu' and sz.get(id(p)) == 4 and not p.op.startswith(('v_permlane', 'v_dot2c', 'v_readfirst', 'v_accvgpr', 'v_cmp', 'v_cndmask')) and not p.op.endswith('_e64'):
                    p.text = p.text.replace(p.op, p.op + "_e64", 1)
                else: new.append(Ins("s_nop 0"))
                off += 4; nal += 1
        new.append(it); off += sz.get(id(it), 0)
    items = new
    body = '\n'.join(('' if i.cls == 'label' else '  ') + i.text for i in items) + '\n'
    print("alignment fixes:", nal, "code bytes", off)
hdr = open("cdna_kernels/" + NAME + ".s.ref").read().split("; Override launch")[0]
out = hdr + f"""; @launch grid=(256,1,1) block=(256,1,1) lds={LDS_SIZE}
.amdgcn_target "amdgcn-amd-amdhsa--gfx950"
.text
.globl {NAME}_kernel
.p2align 8
.type {NAME}_kernel,@function
{NAME}_kernel:
{body}.fill 2048, 4, 0xbf810000
.section .rodata,"a"
.p2align 6
.amdhsa_kernel {NAME}_kernel
  .amdhsa_next_free_vgpr 512
  .amdhsa_next_free_sgpr 102
  .amdhsa_accum_offset 256
  .amdhsa_group_segment_fixed_size 0
  .amdhsa_kernarg_size 80
  .amdhsa_user_sgpr_count 2
  .amdhsa_user_sgpr_kernarg_segment_ptr 1
  .amdhsa_system_sgpr_workgroup_id_x 1
.end_amdhsa_kernel
"""
open(sys.argv[1], "w").write(out)
n = sum(1 for i in items if i.cls not in ('label', 'dir'))
nu_ = sum(1 for i in items if i.cls not in ('label', 'dir') and i.uncounted)
print("instructions:", n, "(slow path", nu_, ") nops:", sum(1 for i in items if i.op == 's_nop'), "waits:", sum(1 for i in items if i.op == 's_waitcnt'), "stamps", nstamp[0])
```

```python
import sys, struct
from asmlib import *

NAME = "sequential_preLN__linear_kernel_hedgehog__dense_activation_silu__prompt"
DIAG = int(sys.argv[2]) if len(sys.argv) > 2 else 0
OPT = dict(a.split('=') for a in sys.argv[3:])
def opt(k, d): return int(OPT[k], 0) if k in OPT else d

WS_PART = 0x40000
WS_O    = 0x240000
WS_H    = 0x440000
WS_H1   = 0x680000
WS_DIAG = 0xE80000
WS_FLG  = 0xF00000
WS_SIZE = 0xF80000
XW = 28672
L_WV, L_WQ, L_WK, L_WO = 0, 28672, 57344, 86016
L_IMG = L_WK
L_KVX = 143360
L_XCH = 147456
L_SCR = 114688
L_AUG = 161792
LDS_SIZE = 163840
sW, sT, sH, sT2, sR = 3, 4, 5, 6, 7
X, WQKV, WPHI, WO, W1, W2, OUT, WS = [f"s[{i}:{i+3}]" for i in range(8, 40, 4)]
sKX, sKW = 40, 47
sHQ, sHIM = 54, 55
sRET = "s[56:57]"
sSPIN, sP, sU, sC, sMASK, sQ = 58, 59, 60, 61, 62, 63
sHI = "s[64:65]"
sLOG = "s[66:67]"
sONES, sTILE = 68, 69
sA, sB, sCt, sD = 70, 71, 72, 73
sRact, sXO = 74, 75
sWB, sWQ = 76, 77
sLAST, sFLAG, sWM, sPST, sPCK, sOST, sXRB, sOUT = 80, 81, 82, 83, 84, 85, 86, 87
sSTAMP = 88

def v(a, n=1): return f"v{a}" if n == 1 else f"v[{a}:{a+n-1}]"
def a_(a, n=1): return f"a{a}" if n == 1 else f"a[{a}:{a+n-1}]"
def fhex(x): return hex(struct.unpack('<I', struct.pack('<f', x))[0])
def flat(l): return sum(l, [])
P = Prog(); I = P.I
TAIL = Prog()
nstamp = [0]
SEL = OPT.get("st", "m").split(",")
PICK = [int(x) for x in OPT["pick"].split(",")] if "pick" in OPT else None
allst = [0]
def stampi(name, grp="m"):
    idx = allst[0]; allst[0] += 1
    if not DIAG: return []
    if PICK is not None:
        if name != "start" and idx not in PICK:
            print(f"   - {idx}: {name}"); return []
    elif name != "start" and not (set(grp) & set(SEL)): return []
    k = nstamp[0]; nstamp[0] += 1
    assert k < 7
    print(f"stamp {k}: [{idx}] {name}")
    op = "s_memtime" if DIAG == 2 else "s_memrealtime"
    return mk(f"{op} s[{sSTAMP+2*k}:{sSTAMP+2*k+1}]")
def stamp(name, grp="m"): P.add(stampi(name, grp))
X3 = "bitop3:0x96"

def chk_code(regs, masked):
    r = list(regs)
    if masked: return f"v_bitop3_b32 v10, v{r[0]}, v{r[1]}, s{sMASK} bitop3:0x28\nv_cmp_ne_u32 vcc, v10, v6"
    if len(r) == 1: return f"v_cmp_ne_u32 vcc, v{r[0]}, v5"
    if len(r) == 2: t = f"v_xor_b32 v10, v{r[0]}, v{r[1]}"
    else:
        t = f"v_bitop3_b32 v10, v{r[0]}, v{r[1]}, v{r[2]} {X3}"
        if len(r) == 4: t += f"\nv_xor_b32 v10, v10, v{r[3]}"
    return t + "\nv_cmp_ne_u32 vcc, v10, v5"

sFL, sDM = 56, 57
GUARD = f"s_add_u32 s{sSPIN}, s{sSPIN}, 1\ns_cmp_gt_u32 s{sSPIN}, 0x40000\ns_cbranch_scc1 L_end\ns_waitcnt vmcnt(0)"
class Fetch:
    def __init__(self, name, pieces, masked=False, nre=1):
        self.name, self.pieces, self.masked, self.nre = name, pieces, masked, nre
    def loadc(self, i):
        it = flat([mk(c.replace(f"s{sCt}", f"s{sFL}")) for c in self.pieces[i][0]])
        out = []; cur = []
        for x in it:
            cur.append(x)
            if x.cls == 'vmem': out.append(cur); cur = []
        return out
    def load(self, i): return flat(self.loadc(i))
    def stub(self, i, last):
        n = self.name
        wgt = {"fo": 0x100, "fh": 0x10000, "f4": 0x1000000}.get(n, 1)
        rel = (f"s_add_u32 s80, s80, {wgt}\n" if DIAG else "") + "\n".join(c for j in range(i, min(last, i + self.nre - 1) + 1) for c in self.pieces[j][0])
        if opt("ool", 1):
            TAIL.I(f"L_{n}_r{i}:\n" + rel + "\n" + GUARD + "\n" + chk_code(self.pieces[i][1], self.masked) + f"\ns_cbranch_vccnz L_{n}_r{i}\ns_branch L_{n}_ok{i}", unc=True)
            return mk(f"s_cbranch_vccnz L_{n}_r{i}\nL_{n}_ok{i}:")
        return mk(f"s_cbranch_vccz L_{n}_ok{i}\nL_{n}_r{i}:") + \
               mk(rel + "\n" + GUARD + "\n" + chk_code(self.pieces[i][1], self.masked) + f"\ns_cbranch_vccnz L_{n}_r{i}", unc=True) + mk(f"L_{n}_ok{i}:")
    def checkc(self, i, last):
        return [[x] for x in mk(chk_code(self.pieces[i][1], self.masked))] + [self.stub(i, last)]
    def check(self, i, last): return flat(self.checkc(i, last))

sFS, sFP = 80, 81
vL512, vPO, vPF = 0, 142, 143
def flag_store(nl): return mk(f"s_mov_b64 exec, {(1 << nl) - 1}\nbuffer_store_dword v5, v{vL512}, {WS}, s{sFS} offen sc1\ns_mov_b64 exec, -1")
def gate(name, vo, vf): return Fetch(name, [([f"buffer_load_dword v{vf}, v{vo}, {WS}, s{sFP} offen sc1"], [vf])])
GATE = opt("gate", 0)

def cost(it):
    if isinstance(it, WaitTag): return 4
    if it.cls in ('label', 'dir') or it.uncounted: return 0
    if it.op.startswith(TRANS) or 'permlane' in it.op: return 8
    if it.op.startswith('ds_write_b128'): return 28
    if it.cls == 'mfma': return 8
    return 4.5
class Sched:
    def __init__(self, groups):
        self.groups = groups; self.gap = [[] for _ in groups]; self.seq = 0
    def at(self, g, items, frac=0.5):
        self.seq += 1; self.gap[g].append((frac, self.seq, list(items)))
    def spread(self, chunks, a, b):
        chunks = [c if isinstance(c, list) else [c] for c in chunks]
        tot = sum(cost(i) for c in chunks for i in c) or 1; acc = 0
        for c in chunks:
            pos = a + (b - a) * acc / tot
            self.at(int(pos), c, pos - int(pos))
            acc += sum(cost(i) for i in c)
    def emit(self):
        out = []
        for g, gp in zip(self.groups, self.gap):
            out += g
            for _, _, c in sorted(gp, key=lambda x: (x[0], x[1])): out += c
        return out
def sprinkle(items, groups, start, step):
    out = []; groups = list(groups); nxt = start
    for i, it in enumerate(items):
        if groups and i == nxt: out += groups.pop(0); nxt += step
        out.append(it)
    for g in groups: out += g
    return out

def softmax(p, t, o, pk):
    q = Prog(); J = q.I
    m, n = t + 14, t + 15; r0, r1 = t + 16, t + 17
    J(f"v_max3_f32 v{m}, v{p}, v{p+1}, v{p+2}\nv_max3_f32 v{n}, -v{p}, -v{p+1}, -v{p+2}")
    for k in range(3, 13, 2):
        J(f"v_max3_f32 v{m}, v{m}, v{p+k}, v{p+k+1}\nv_max3_f32 v{n}, v{n}, -v{p+k}, -v{p+k+1}")
    J(f"""v_max_f32 v{m}, v{m}, v{p+13}
v_max_f32 v{n}, v{n}, -v{p+13}
v_permlane32_swap_b32 v{m}, v{n}
v_max_f32 v{m}, v{m}, v{n}
v_mul_f32 v{m}, v253, v{m}
v_mov_b32 v{n}, v{m}
v_permlane32_swap_b32 v{m}, v{n}""")
    if pk:
        for k in range(0, 14, 2):
            J(f"v_pk_fma_f32 {v(t+k,2)}, {v(p+k,2)}, v[252:253], {v(m,2)} op_sel_hi:[1,0,0]")
            J(f"v_pk_fma_f32 {v(p+k,2)}, {v(p+k,2)}, v[252:253], {v(m,2)} op_sel:[0,1,1] op_sel_hi:[1,1,1]")
    if pk == 2:
        for k in range(14):
            J(f"v_exp_f32 v{t+k}, v{t+k}\nv_exp_f32 v{p+k}, v{p+k}")
            if k >= 2:
                a0 = f"v{t}" if k == 2 else f"v{r0}"; a1 = f"v{p}" if k == 2 else f"v{r1}"
                J(f"v_add_f32 v{r0}, {a0}, v{t+k-1}\nv_add_f32 v{r1}, {a1}, v{p+k-1}")
        J(f"v_add_f32 v{m}, v{r0}, v{t+13}\nv_add_f32 v{n}, v{r1}, v{p+13}")
    elif pk:
        for k in range(14): J(f"v_exp_f32 v{t+k}, v{t+k}")
        for k in range(14): J(f"v_exp_f32 v{p+k}, v{p+k}")
        J(f"v_pk_add_f32 {v(m,2)}, {v(t,2)}, {v(t+2,2)}\nv_pk_add_f32 {v(r0,2)}, {v(p,2)}, {v(p+2,2)}")
        for k in range(4, 14, 2):
            J(f"v_pk_add_f32 {v(m,2)}, {v(m,2)}, {v(t+k,2)}\nv_pk_add_f32 {v(r0,2)}, {v(r0,2)}, {v(p+k,2)}")
        J(f"v_add_f32 v{m}, v{m}, v{n}\nv_add_f32 v{n}, v{r0}, v{r1}")
    else:
        for k in range(14):
            J(f"v_fma_f32 v{t+k}, v{p+k}, v252, v{m}\nv_fma_f32 v{p+k}, v{p+k}, v253, v{n}\nv_exp_f32 v{t+k}, v{t+k}\nv_exp_f32 v{p+k}, v{p+k}")
            if k >= 2:
                a0 = f"v{t}" if k == 2 else f"v{r0}"; a1 = f"v{p}" if k == 2 else f"v{r1}"
                J(f"v_add_f32 v{r0}, {a0}, v{t+k-1}\nv_add_f32 v{r1}, {a1}, v{p+k-1}")
        J(f"v_add_f32 v{m}, v{r0}, v{t+13}\nv_add_f32 v{n}, v{r1}, v{p+13}")
    J(f"""v_permlane32_swap_b32 v{m}, v{n}
v_add_f32 v{m}, v{m}, v{n}
v_rcp_f32 v{m}, v{m}
v_mov_b32 v{n}, v{m}
v_permlane32_swap_b32 v{m}, v{n}""")
    if pk == 1:
        for k in range(0, 14, 2):
            J(f"v_pk_mul_f32 {v(t+k,2)}, {v(t+k,2)}, {v(m,2)} op_sel_hi:[1,0]")
            J(f"v_pk_mul_f32 {v(p+k,2)}, {v(p+k,2)}, {v(m,2)} op_sel:[0,1] op_sel_hi:[1,1]")
    else:
        for k in range(14): J(f"v_mul_f32 v{t+k}, v{t+k}, v{m}\nv_mul_f32 v{p+k}, v{p+k}, v{n}")
    for k in range(7): J(f"v_cvt_pk_bf16_f32 v{o+k}, v{t+2*k}, v{t+2*k+1}")
    for k in range(7): J(f"v_cvt_pk_bf16_f32 v{o+7+k}, v{p+2*k}, v{p+2*k+1}")
    return q.items

def dmag(vaddrs, srd, sbase, sadd, mbase, madd, tag, sreg=None):
    sr = sCt if sreg is None else sreg
    ch = [mk(f"buffer_load_dwordx4 v{a}, {srd}, s{sr} offen offset:{1024*i} lds", tag=tag) for i, a in enumerate(vaddrs)]
    ch[0] = mk(f"s_add_u32 m0, s{mbase}, {madd}\ns_add_u32 s{sr}, s{sbase}, {sadd}") + ch[0]
    return ch

MF = "v_mfma_f32_32x32x16_bf16"
RINGA, NRING = 224, 8
def gemm_lds(steps, ahead=6):
    def rd(i):
        av, o1, o2 = steps[i][:3]; r = RINGA + 4 * (i % NRING)
        return mk(f"ds_read_b64_tr_b16 {a_(r,2)}, v{av} offset:{o1}\nds_read_b64_tr_b16 {a_(r+2,2)}, v{av} offset:{o2}")
    rds = [rd(i) for i in range(len(steps))]
    groups = []
    for i, st in enumerate(steps):
        r = RINGA + 4 * (i % NRING); b, acc, first, swap = st[3]
        A, B = a_(r, 4), v(b, 4)
        if swap: A, B = B, A
        g = mk(f"{MF} {v(acc,16)}, {A}, {B}, {'0' if first else v(acc,16)}")
        if i % 2 == 0 and i + 1 < len(steps):
            r2 = RINGA + 4 * ((i + 1) % NRING); g[0].extra = [('a', r2 + x) for x in range(4)]
        groups.append(g + (rds[i + ahead] if i + ahead < len(steps) else []))
    return flat(rds[:ahead]), groups

MAP1 = [f"""s_and_b32 s{sT}, s{sA}, 3
s_lshl_b32 s{sT}, s{sT}, 2
s_and_b32 s{sD}, s{sB}, 3
s_add_u32 s{sT}, s{sT}, s{sD}
s_lshr_b32 s{sP}, s{sA}, 2
s_lshl_b32 s{sH}, s{sP}, 3
s_lshr_b32 s{sD}, s{sB}, 2
s_add_u32 s{sH}, s{sH}, s{sD}
s_cmp_eq_u32 s{sD}, 7
s_cselect_b32 s{sD}, 3, s{sD}
s_lshl_b32 s{sKX}, s{sD}, 7
""",
f"""s_lshl_b32 s{sT}, s{sA}, 1
s_lshr_b32 s{sD}, s{sB}, 4
s_add_u32 s{sT}, s{sT}, s{sD}
s_mov_b32 s{sH}, s{sCt}
s_and_b32 s{sD}, s{sH}, 7
s_cmp_eq_u32 s{sD}, 7
s_cselect_b32 s{sD}, 3, s{sD}
s_lshl_b32 s{sKX}, s{sD}, 7
""",
f"""s_mov_b32 s{sT}, s{sCt}
s_lshl_b32 s{sH}, s{sA}, 1
s_lshr_b32 s{sD}, s{sB}, 4
s_add_u32 s{sH}, s{sH}, s{sD}
s_and_b32 s{sD}, s{sH}, 7
s_mul_i32 s{sD}, s{sD}, 3
s_mul_i32 s{sP}, s{sD}, 37
s_lshr_b32 s{sP}, s{sP}, 8
s_mul_i32 s{sP}, s{sP}, 7
s_sub_u32 s{sD}, s{sD}, s{sP}
s_lshl_b32 s{sKX}, s{sD}, 7
"""][opt("map1", 0)]
if DIAG: I("s_memrealtime s[78:79]")
I(f"""s_cmp_ge_u32 s2, 256
s_cbranch_scc1 L_end
s_load_dwordx2 s[8:9], s[0:1], 0
s_load_dwordx2 s[12:13], s[0:1], 8
s_load_dwordx2 s[16:17], s[0:1], 16
s_load_dwordx2 s[20:21], s[0:1], 24
s_load_dwordx2 s[24:25], s[0:1], 40
s_load_dwordx2 s[28:29], s[0:1], 48
s_load_dwordx2 s[32:33], s[0:1], 56
s_load_dwordx2 s[36:37], s[0:1], 72
s_getpc_b64 s[76:77]
v_and_b32 v1, 63, v0
v_lshrrev_b32 v2, 6, v0
s_and_b32 s{sA}, s2, 7
v_readfirstlane_b32 s{sW}, v2
s_lshr_b32 s{sB}, s2, 3
s_and_b32 s{sCt}, s{sB}, 15
v_lshlrev_b32 v3, 4, v1
v_lshl_add_u32 v3, v2, 6, v3
v_lshl_add_u32 v3, v2, 4, v3
v_add_u32 v3, s{sCt}, v3
v_lshlrev_b32 v3, 7, v3
s_and_b32 s76, s76, 0xffffff00
s_mov_b64 exec, 31
global_load_dword v236, v3, s[76:77]
s_mov_b64 exec, -1
{MAP1}
s_mov_b32 s10, 1835008
s_mov_b32 s11, 0x20000
v_lshrrev_b32 v2, 3, v1
v_mul_u32_u24 v244, 896, v2
v_lshrrev_b32 v2, 4, v1
v_and_b32 v8, 7, v1
v_xor_b32 v2, v2, v8
v_lshl_add_u32 v244, v2, 4, v244
v_xor_b32 v245, 64, v244
v_add_u32 v245, {7168-1024}, v245
v_add_u32 v246, {2*(7168-1024)}, v244
v_add_u32 v247, {2*(7168-1024)}, v245
s_lshl_b32 s{sQ}, s{sT}, 2
s_add_u32 s{sQ}, s{sQ}, s{sW}
s_mul_i32 s{sQ}, s{sQ}, {32*896}
s_lshr_b32 s{sXO}, s{sW}, 1
s_add_u32 s{sXO}, s{sXO}, s{sW}
s_mul_i32 s{sXO}, s{sXO}, {XW}
s_waitcnt lgkmcnt(0)""")
stamp("start")
def xdma(g): return flat(dmag([244, 245, 246, 247], X, sQ, f"s{sKX+g}", sXO, 4096*g, f"x{g}"))
P.add(xdma(0))
I(f"""s_mov_b32 s14, {0 if opt('abl',0)&8 else 1204224}
s_mov_b32 s15, 0x20000
v_and_b32 v8, 3, v1""")
def wtouch(mask16, dst):
    m = mask16 | (mask16 << 16)
    return mk(f"s_mov_b32 exec_lo, {hex(m)}\ns_mov_b32 exec_hi, {hex(m)}\nbuffer_load_dword v{dst}, v255, {WQKV}, 0 offen\ns_mov_b64 exec, -1")
def kxs(g): return mk(f"s_add_u32 s{sKX+g}, s{sKX+g-1}, 128\ns_cmp_ge_u32 s{sKX+g}, 896\ns_cselect_b32 s{sD}, 896, 0\ns_sub_u32 s{sKX+g}, s{sKX+g}, s{sD}")
NXE = opt("nxe", 2)
if opt("wtfirst", 1) and opt("wt0", 0): P.add(wtouch(opt("wt0", 0), 237))
for g in range(1, NXE): P.add(kxs(g) + xdma(g))
if not opt("wtfirst", 1) and opt("wt0", 0): P.add(wtouch(opt("wt0", 0), 237))
if opt("wsoff", 0): I(f"s_add_u32 s36, s36, {opt('wsoff', 0)}\ns_addc_u32 s37, s37, 0")
I(f"""s_mov_b32 s38, {WS_SIZE}
s_mov_b32 s39, 0x20000
s_mov_b32 s18, 25088
s_mov_b32 s19, 0x20000
s_mov_b32 s22, {0 if opt('abl',0)&4 else 401408}
s_mov_b32 s23, 0x20000
s_xor_b32 s{sHQ}, s{sH}, 1
v_mov_b32 v11, 0
v_lshlrev_b32 v6, 7, v1""")
I(f"buffer_load_dword v5, v11, {WS}, 0 offen sc1")
I(f"""s_lshl_b32 s{sD}, s2, 2
s_add_u32 s{sD}, s{sD}, s{sW}
s_lshl_b32 s{sD}, s{sD}, 9
s_and_b32 s{sCt}, s{sH}, 14
s_mul_i32 s{sCt}, s{sCt}, 1568
s_mul_i32 s{sP}, s{sW}, 896
s_add_u32 s{sCt}, s{sCt}, s{sP}
s_mov_b64 exec, 15
buffer_load_dword v238, v6, {WO}, s{sD} offen
s_mov_b64 exec, 127
buffer_load_dword v239, v6, {WPHI}, s{sCt} offen
s_mov_b64 exec, -1""")
for g in range(NXE, 7): P.add(kxs(g))
I(f"""s_lshl_b32 s{sT2}, s{sA}, 1
s_lshr_b32 s{sD}, s{sB}, 4
s_add_u32 s{sT2}, s{sT2}, s{sD}
s_and_b32 s{sRact}, s{sB}, 15
s_min_u32 s{sR}, s{sRact}, 13
s_mov_b32 s26, {0 if opt('abl',0)&1 else 1605632}
s_mov_b32 s27, 0x20000
s_mov_b32 s30, {0 if opt('abl',0)&2 else 1605632}
s_mov_b32 s31, 0x20000
s_mov_b32 s34, 1835008
s_mov_b32 s35, 0x20000
s_mov_b32 s64, 0
s_mov_b32 s65, -1
s_mov_b32 s{sONES}, 0x3f803f80
s_mov_b32 s{sMASK}, 0xbfffbfff
s_mov_b32 s{sHIM}, 0xffff0000
s_mov_b32 s{sSPIN}, 0
s_mov_b32 s80, 0
s_cmp_ge_u32 s{sR}, 7
s_cselect_b32 s{sU}, 1, 0
s_mul_i32 s{sA}, s{sU}, 7
s_sub_u32 s{sC}, s{sR}, s{sA}""")
sT3 = 67
if opt("map3", 0):
    I(f"""s_and_b32 s{sA}, s{sT2}, 12
s_and_b32 s{sD}, s{sT2}, 1
s_lshl_b32 s{sD}, s{sD}, 1
s_add_u32 s{sA}, s{sA}, s{sD}
s_add_u32 s{sT3}, s{sA}, s{sU}
s_bfe_u32 s{sA}, s{sT2}, 0x10001
s_mul_i32 s{sA}, s{sA}, 7
s_add_u32 s{sR}, s{sA}, s{sC}""")
else: I(f"s_mov_b32 s{sT3}, s{sT2}")
for g in range(7): I(f"s_mul_i32 s{sKW+g}, s{sKX+g}, {172032//128}")
I(f"""s_mul_i32 s{sWB}, s{sH}, 56
s_mul_i32 s{sD}, s{sW}, 43008
s_add_u32 s{sWB}, s{sWB}, s{sD}
s_mul_i32 s{sWQ}, s{sHQ}, 56
s_add_u32 s{sWQ}, s{sWQ}, s{sD}
s_add_u32 s{sWB}, s{sWB}, 896
s_lshl_b32 s{sWM}, s{sW}, 10
s_lshl_b32 s{sA}, s{sH}, 4
s_add_u32 s{sA}, s{sA}, s{sT}
s_mul_i32 s{sA}, s{sA}, 5120
s_add_u32 s{sA}, s{sA}, {WS_PART}
s_add_u32 s{sPST}, s{sA}, s{sWM}
s_lshl_b32 s{sD}, s{sW}, 8
s_add_u32 s{sA}, s{sA}, s{sD}
s_add_u32 s{sPCK}, s{sA}, 4096
s_lshl_b32 s{sA}, s{sT}, 2
s_add_u32 s{sA}, s{sA}, s{sW}
s_lshl_b32 s{sA}, s{sA}, 15
s_lshl_b32 s{sB}, s{sHQ}, 11
s_add_u32 s{sA}, s{sA}, s{sB}
s_add_u32 s{sOST}, s{sA}, {WS_O}
s_lshl_b32 s{sA}, s{sT2}, 2
s_lshl_b32 s{sB}, s{sU}, 1
s_add_u32 s{sA}, s{sA}, s{sB}
s_and_b32 s{sB}, s{sW}, 1
s_add_u32 s{sTILE}, s{sA}, s{sB}
s_mul_i32 s{sA}, s{sA}, {32*896}
s_lshl_b32 s{sB}, s{sC}, 7
s_add_u32 s{sA}, s{sA}, s{sB}
s_mul_i32 s{sD}, s{sW}, {16*896}
s_add_u32 s{sXRB}, s{sA}, s{sD}
s_mul_i32 s{sA}, s{sTILE}, {32*896}
s_add_u32 s{sA}, s{sA}, s{sB}
s_lshr_b32 s{sB}, s{sW}, 1
s_lshl_b32 s{sB}, s{sB}, 6
s_add_u32 s{sOUT}, s{sA}, s{sB}
s_mul_i32 s{sP}, s{sHQ}, {16*5120}
s_add_u32 s{sP}, s{sP}, {WS_PART}""")
WPK, WPQ, WPT = 192, 200, 208
vWPA, vWPB, vKVX, vIMW, vKA, vKB, vFPD, vFPC, vWO0, vWO1, vXRD0, vXRD1, vXRR, vWOR = range(128, 142)
I(f"""v_lshrrev_b32 v3, 5, v1
v_lshlrev_b32 v2, 4, v1
v_lshlrev_b32 v4, 2, v1
v_bfe_u32 v11, v1, 3, 2
v_lshl_add_u32 v11, v11, 2, v8
v_bfe_u32 v12, v1, 2, 1
v_mul_u32_u24 v12, 14, v12
v_min_u32 v13, 13, v11
v_add_u32 v13, v13, v12
v_lshlrev_b32 v13, 1, v13
v_mul_u32_u24 v14, 224, v3
v_add_u32 v{vWPA}, v13, v14
v_lshl_add_u32 v{vWPB}, v3, 20, v{vWPA}
v_add_u32 v12, v12, v11
v_cmp_gt_u32 vcc, 14, v11
v_lshrrev_b32 v7, 2, v1
v_mul_u32_u24 v7, 2688, v7
v_cndmask_b32 v12, 28, v12, vcc
v_and_b32 v13, 15, v12
v_lshlrev_b32 v13, 4, v13
v_lshrrev_b32 v12, 4, v12
v_lshl_add_u32 v13, v12, 3, v13
v_lshl_add_u32 v13, v3, 8, v13
v_add_u32 v{vKVX}, {L_KVX}, v13
v_lshlrev_b32 v11, 4, v8
v_min_u32 v11, 40, v11
v_add_u32 v7, v7, v11
v_and_b32 v9, 31, v1
v_lshlrev_b32 v240, 7, v9
v_bfe_u32 v11, v1, 1, 3
v_xor_b32 v11, v11, v3
v_lshl_add_u32 v240, v11, 4, v240
v_add_u32 v240, s{sXO}, v240
v_xor_b32 v241, 32, v240
v_xor_b32 v242, 64, v240
v_xor_b32 v243, 96, v240
v_mov_b32 v250, 0
v_mov_b32 v251, 0
s_lshl_b32 s{sA}, s{sW}, 5
v_add_u32 v10, s{sA}, v9
v_mul_u32_u24 v10, 208, v10
v_mul_u32_u24 v11, 96, v3
v_add_u32 v{vIMW}, v10, v11
v_lshrrev_b32 v10, 4, v1
v_bfe_u32 v15, v1, 2, 2
v_lshl_add_u32 v10, v10, 3, v15
v_mul_u32_u24 v10, 208, v10
v_and_b32 v11, 1, v1
v_mul_u32_u24 v11, 96, v11
v_add_u32 v10, v10, v11
v_bfe_u32 v11, v1, 1, 1
v_lshl_add_u32 v10, v11, 3, v10
v_add_u32 v{vKB}, {L_IMG}, v10
s_lshl_b32 s{sA}, s{sW}, 4
v_add_u32 v{vKA}, s{sA}, v{vKB}
v_add_u32 v{vFPD}, s{sWM}, v2
s_lshl_b32 s{sD}, s{sW}, 8
s_add_u32 s{sD}, s{sD}, 4096
v_add_u32 v{vFPC}, s{sD}, v4
v_lshrrev_b32 v12, 3, v1
v_mul_u32_u24 v14, 896, v12
v_and_b32 v13, 7, v1
v_xor_b32 v12, v12, v13
v_lshl_add_u32 v{vXRD0}, v12, 4, v14
v_add_u32 v{vXRD1}, {7168-1024}, v{vXRD0}
v_bfe_u32 v12, v1, 4, 1
v_lshlrev_b32 v11, 2, v12
v_xor_b32 v11, v11, v13
v_lshl_add_u32 v{vWO0}, v11, 4, v14
v_add_u32 v{vWO1}, {7168-1024}, v{vWO0}
s_and_b32 s{sA}, s{sW}, 1
s_lshl_b32 s{sA}, s{sA}, 12
s_add_u32 s{sA}, s{sA}, {L_XCH}
v_lshlrev_b32 v10, 7, v9
v_lshl_add_u32 v10, v3, 3, v10
v_add_u32 v10, s{sA}, v10
s_lshr_b32 s{sA}, s{sW}, 1
s_lshl_b32 s{sB}, s{sA}, 2
v_xor_b32 v13, s{sB}, v13
v_lshl_add_u32 v{vXRR}, v13, 4, v10
v_mad_u32_u24 v10, v3, 14, v15
v_lshlrev_b32 v10, 7, v10
v_bfe_u32 v13, v1, 3, 1
v_xor_b32 v13, v13, v3
v_xor_b32 v13, s{sA}, v13
v_lshl_add_u32 v10, v13, 6, v10
v_lshl_add_u32 v10, v12, 5, v10
v_lshl_add_u32 v10, v8, 3, v10
s_mul_i32 s{sA}, s{sA}, {8*28*128}
s_add_u32 s{sA}, s{sA}, {L_WO}
v_add_u32 v{vWOR}, s{sA}, v10
v_lshl_add_u32 v11, v3, 3, v15
v_lshlrev_b32 v11, 6, v11
v_lshl_add_u32 v12, v12, 2, v8
v_cmp_lt_u32 vcc, 5, v12
v_xor_b32 v13, 1, v12
s_mul_i32 s{sA}, s{sH}, 1568
s_mul_i32 s{sB}, s{sHQ}, 1568
v_cndmask_b32 v12, v12, v13, vcc
v_lshl_add_u32 v11, v12, 3, v11
v_add_u32 v13, {L_WK}, v11""")
I(f"""v_bfe_u32 v10, v1, 2, 1
v_bfe_u32 v14, v1, 4, 1
v_lshl_add_u32 v10, v14, 1, v10
v_cmp_eq_u32 vcc, v10, v3
v_and_b32 v10, 1, v1
v_lshlrev_b32 v10, 4, v10
v_mov_b32 v14, 0x3f80
v_lshlrev_b32 v10, v10, v14
v_cndmask_b32 v10, 0, v10, vcc
v_bfe_u32 v14, v1, 3, 1
v_bfe_u32 v15, v1, 1, 1
v_lshl_add_u32 v14, v14, 1, v15""")
for q in range(4): I(f"v_cmp_eq_u32 vcc, {q}, v14\nv_cndmask_b32 v15, 0, v10, vcc\nv_accvgpr_write_b32 a{220+q}, v15")
stamp("setup done", "p")
def wphi(dst, tmp, so):
    q = []
    for t in range(2):
        for j in range(8):
            d = 16 * t + 8 * (j >> 2) + (j & 3)
            av = vWPB if (t == 1 and j >= 4) else vWPA
            r = (dst if j % 2 == 0 else tmp) + 4 * t + j // 2
            op = "buffer_load_short_d16" if j % 2 == 0 else "buffer_load_short_d16_hi"
            q += mk(f"{op} v{r}, v{av}, {WPHI}, s{so} offen offset:{d*56}")
    return q
def wkdma(g): return flat(dmag([7], WQKV, sWB, f"s{sKW+g}", sWM, L_WK + 4096*g, f"wk{g}"))
def wvdma(g): return flat(dmag([9], WQKV, sWB, f"s{sKW+g}", sWM, L_WV + 4096*g, f"wv{g}"))
def wqdma(g): return flat(dmag([7], WQKV, sWQ, f"s{sKW+g}", sWM, L_WQ + 4096*g, f"wq{g}"))
I("v_add_u32 v9, 896, v7")
XF = 16
NX0 = opt("nx0", 4)
if opt("wt1", 0): P.add(wtouch(opt("wt1", 0), 249))
for g in range(NXE, NX0): P.add(xdma(g))
pend = [xdma(g) for g in range(NX0, 7)]
wkl = [wkdma(g) for g in range(7)]
if opt("wt2", 0): pend[-1] = pend[-1] + wtouch(opt("wt2", 0), 248)
pend.append(wkl.pop(0) + wphi(WPK, WPT, sA))
pend.append(wkl.pop(0) + wphi(WPQ, WPT+8, sB))
while len(pend) < 7: pend.append(wkl.pop(0))
def xrd(g): return flat([mk(f"ds_read_b128 {v(XF+16*g+4*e,4)}, v{240+e} offset:{4096*g}") for e in range(4)])
P.wait("x0"); P.add(xrd(0))
for g in range(7):
    if pend: P.add(pend.pop(0))
    if g + 1 < 7: P.wait(f"x{g+1}"); P.add(xrd(g + 1))
    for i in range(16):
        r = XF + 16*g + i
        I(f"v_dot2c_f32_bf16 v250, s{sONES}, v{r}\nv_dot2c_f32_bf16 v251, v{r}, v{r}")
    if g == 0: stamp("x0 done", "p")
for x_ in pend: P.add(x_)
stamp("x stats done", "mp")
I(f"""v_permlane32_swap_b32 v250, v251
v_or_b32 v5, 1, v5
s_mov_b32 s{sA}, 0x9E3779B5
v_add_f32 v250, v250, v251
v_mul_f32 v250, {fhex(-1/448)}, v250
v_mov_b32 v251, v250
v_mul_lo_u32 v5, v5, s{sA}
s_mov_b32 s{sA}, 0x3f80
v_permlane32_swap_b32 v250, v251
s_mov_b32 s{sB}, 0x3f800000""")
fin = mk(f"""v_fma_f32 v251, -v250, v250, -v251
v_max_f32 v251, 0, v251
v_add_f32 v251, 0x3727c5ac, v251
v_rsq_f32 v251, v251
s_lshl_b32 s{sQ}, s{sC}, 7
s_mul_i32 s{sD}, s{sW}, {16*896}
v_mul_f32 v252, 0x3fb8aa3b, v251
v_mul_f32 v253, 0xbfb8aa3b, v251
s_add_u32 s{sQ}, s{sQ}, s{sD}
s_lshl_b32 s{sXO}, s{sW}, 11""")
if opt("noid", 1): fin = [mk(f"s_cmp_ge_u32 s{sRact}, 14\ns_cselect_b32 s22, 0, s22")] + fin
ACK = 144; ACV = 160; PK = 176; IMG = 208; TMP = 232
def norm(t):
    q = Prog(); tb = TMP + 8 * (t & 1)
    for i in range(4):
        r = XF + 4 * t + i
        q.I(f"v_dot2_f32_bf16 v{tb+2*i}, v{r}, s{sA}, v250\nv_dot2_f32_bf16 v{tb+2*i+1}, v{r}, s{sB}, v250")
    return q.items
def normc(t):
    tb = TMP + 8 * (t & 1)
    return flat([mk(f"v_cvt_pk_bf16_f32 v{XF+4*t+i}, v{tb+2*i}, v{tb+2*i+1}") for i in range(4)])
def l2t(srd, k, dst):
    return mk(f"""s_lshr_b32 s{sCt}, s2, 3
s_lshl_b32 s{sCt}, s{sCt}, 2
s_add_u32 s{sCt}, s{sCt}, s{sW}
s_mul_i32 s{sCt}, s{sCt}, {98*128}
s_mov_b32 exec_hi, 0x1ffff
s_add_u32 s{sCt}, s{sCt}, {k*49*128}
buffer_load_dword v{dst}, v6, {srd}, s{sCt} offen
s_mov_b32 exec_hi, -1""")
L2A, L2B = opt("l2a", -1), opt("l2b", -1)
ns = norm(0)
for t in range(1, 28): ns += norm(t) + normc(t - 1)
ns += normc(27)
NBAR = opt("nbar", 100)
wvl = [wvdma(k) for k in range(7)]
if opt("loop2", 0):
    I("s_mov_b32 s80, 0\nL_lp2:\ns_mov_b32 s101, s100\ns_memtime s[78:79]\ns_waitcnt lgkmcnt(0)\ns_mov_b32 s99, s78")
    P.add([Ins(x.text) for x in ns])
    I("s_memtime s[78:79]\ns_waitcnt lgkmcnt(0)\ns_sub_u32 s100, s78, s99\ns_add_u32 s100, s100, s88\ns_add_u32 s80, s80, 1\ns_cmp_lt_u32 s80, 2\ns_cbranch_scc1 L_lp2")
    nstamp[0] = 14
P.add(sprinkle(ns[:NBAR], wkl, 0, opt("wkstep", 30)))
I("s_barrier")
NWV0 = opt("nwv0", 3)
P.add(sprinkle(ns[NBAR:], [wvl.pop(0) for _ in range(NWV0)], opt("wv0", 60), opt("wvstep", 60)))
P.wait(*[f"wk{k}" for k in range(7)]); I("s_barrier")
stamp("wk landed", "p")
AH = 6
pro, gk = gemm_lds([(13, 1024*t, 1024*t + 256, (XF + 4*t, ACK, t == 0, False)) for t in range(28)], AH)
P.add(pro)
S = Sched(gk)
S.spread(wvl, 0, opt("wve", 28))
for k, ps in enumerate((L2A, L2B)):
    if 0 <= ps < 28: S.at(ps, l2t(W1, k, 248 + k))
S.spread(fin + flat([mk(f"v_or_b32 v{WPK+q}, v{WPK+q}, v{WPT+q}\nv_or_b32 v{WPQ+q}, v{WPQ+q}, v{WPT+8+q}") for q in range(8)]), 2, 26)
P.add(S.emit())
def phi_pre(acc, wp):
    q = Prog()
    for i in range(8): q.I(f"v_cvt_pk_bf16_f32 v{acc+i}, v{acc+2*i}, v{acc+2*i+1}")
    q.I(f"{MF} {v(PK,16)}, {v(wp,4)}, {v(acc,4)}, 0\n{MF} {v(PK,16)}, {v(wp+4,4)}, {v(acc+4,4)}, {v(PK,16)}")
    return q.items
stamp("k gemm done", "mp")
wql = [wqdma(k) for k in range(7)]
P.add(wql.pop(0))
P.add(phi_pre(ACK, WPK))
imw = flat([mk(f"ds_write_b128 v{vIMW}, {v(IMG+4*i,4)} offset:{L_IMG+16*i}") for i in range(3)]) + mk(f"ds_write_b64 v{vIMW}, {v(IMG+12,2)} offset:{L_IMG+48}")
touch = mk(f"""s_mul_i32 s{sA}, s2, {52*128}
s_mul_i32 s{sB}, s{sW}, {13*128}
s_add_u32 s{sA}, s{sA}, s{sB}
s_mov_b64 exec, 0x1fff
buffer_load_dword v255, v6, {W1}, s{sA} offen
buffer_load_dword v254, v6, {W2}, s{sA} offen
s_mov_b64 exec, -1""")
smk = sprinkle(softmax(PK, TMP, IMG, True), [wql.pop(0) for _ in range(opt("nwq0", 3))], 10, opt("wqs", 40))
WEAVE = opt("weave", 0)
pro, gv = gemm_lds([(11, L_WV + 1024*t, L_WV + 1024*t + 256, (XF + 4*t, ACV, t == 0, False)) for t in range(28)], AH)
S = Sched(gv)
if not WEAVE:
    P.add(smk)
    P.wait(*[f"wv{k}" for k in range(7)]); I("s_barrier")
    stamp("softmax k done", "p")
    P.add(pro)
    S.spread(imw, 2, 10)
else:
    smf = softmax(PK, TMP, IMG, 2)
    n0 = next(i for i, x in enumerate(smf) if x.op == "v_exp_f32")
    P.wait(*[f"wv{k}" for k in range(4)]); I("s_barrier")
    P.add(pro)
    P.add(smf[:n0])
    stamp("softmax k done", "p")
    S.spread(smf[n0:] + imw, 0, 28)
    S.at(15 - AH, [WaitTag(["wv4", "wv5", "wv6"])] + mk("s_barrier"), 1.0)
    wql = [wqdma(k) for k in range(1, 7)]
wo_l = flat([dmag([vWO0, vWO1], WO, sQ, i*64*896, sXO, L_WO + 8192*i, "wo", sDM) for i in range(7)] + [dmag([vXRD0, vXRD1], X, sXRB, 0, sXO, L_XCH, "wo", sDM)])
S.spread(wql, 0, opt('wqe', 14))
if L2A >= 0: touch = [x for x in touch if W1 not in x.text]
tlb = []
if opt("tlb", 0) & 1: tlb += mk(f"s_mov_b64 exec, 1\nbuffer_load_dword v248, v6, {OUT}, s{sOUT} offen\ns_mov_b64 exec, -1")
if opt("tlb", 0) & 2: tlb += mk(f"v_lshlrev_b32 v249, 20, v1\ns_mov_b64 exec, 0xffff\nbuffer_load_dword v249, v249, {WS}, 0 offen offset:4092\ns_mov_b64 exec, -1")
if tlb: S.at(opt("tlbp", 13), tlb)
if opt("touch", 1): S.at(15, touch)
for k, ps in enumerate((L2A, L2B)):
    if 200 <= ps < 228: S.at(ps - 200, l2t(W1, k, 248 + k))
S.spread([wo_l.pop(0) for _ in range(2*opt("nwo0", 2))], 17, 28)
P.add(S.emit())
for k in range(0, 16, 2): I(f"v_pk_mul_f32 {v(ACV+k,2)}, {v(ACV+k,2)}, v[250:251] op_sel:[0,1] op_sel_hi:[1,1]")
I(f"v_cndmask_b32 v{ACV+12}, v{ACV+12}, 1.0, {sHI}")
for i in range(8): I(f"v_cvt_pk_bf16_f32 v{IMG+16+i}, v{ACV+2*i}, v{ACV+2*i+1}")
for i in range(4, 6): I(f"ds_write_b128 v{vIMW}, {v(IMG+4*i,4)} offset:{L_IMG+16*i}")
P.wait("wq0", "wq1", "wq2", "wq3")
I("s_waitcnt lgkmcnt(0)\ns_barrier")
stamp("img written", "p")
KA = 144; KBv = 208; KD = 176
for k in range(4):
    for u in range(2):
        I(f"ds_read_b64_tr_b16 {v(KA+4*k+2*u,2)}, v{vKA} offset:{(32*k+4*u)*208}")
    for nu in range(2):
        for u in range(2):
            I(f"ds_read_b64_tr_b16 {v(KBv+8*k+4*nu+2*u,2)}, v{vKB} offset:{(32*k+4*u)*208+64+16*nu}")
proq, gq = gemm_lds([(11, L_WQ + 1024*t, L_WQ + 1024*t + 256, (XF + 4*t, ACV, t == 0, False)) for t in range(28)], AH)
for k in range(4):
    for nu in range(2):
        I(f"v_mfma_f32_16x16x32_bf16 {v(KD+4*nu,4)}, {v(KA+4*k,4)}, {v(KBv+8*k+4*nu,4)}, {'0' if k == 0 else v(KD+4*nu,4)}")
P.add(proq[:8])
for i in range(4): I(f"v_cvt_pk_bf16_f32 v{KD+8+i}, v{KD+2*i}, v{KD+2*i+1}")
I(f"buffer_store_dwordx4 {v(KD+8,4)}, v2, {WS}, s{sPST} offen sc1")
I(f"v_xor_b32 v10, v{KD+8}, v5")
I(f"buffer_store_dword v10, v4, {WS}, s{sPCK} offen sc1")
if GATE & 1: P.add(flag_store(16))
P.add(proq[8:])
stamp("partial stored", "mp")
sW1B, sW1M, sW2E, sW2L = 40, 41, 42, 43
set2 = mk(f"""v_lshrrev_b32 v10, 4, v1
v_mul_u32_u24 v12, 3584, v10
v_lshlrev_b32 v10, 2, v10
v_and_b32 v13, 15, v1
v_xor_b32 v10, v10, v13
v_lshl_add_u32 v12, v10, 4, v12
v_add_u32 v13, {4*3584-1024}, v12
v_add_u32 v14, {2*(4*3584-1024)}, v12
v_add_u32 v15, {3*(4*3584-1024)}, v12
s_lshl_b32 s{sW1B}, s{sR}, 8
s_mul_i32 s{sD}, s{sW}, {16*3584}
s_add_u32 s{sW1B}, s{sW1B}, s{sD}
s_lshl_b32 s{sW1M}, s{sW}, 12
s_lshr_b32 s{sA}, s{sW}, 1
s_lshl_b32 s{sA}, s{sA}, 2
s_andn2_b32 s{sB}, 1, s{sW}
s_add_u32 s{sA}, s{sA}, s{sB}
s_lshl_b32 s{sB}, s{sU}, 1
s_add_u32 s44, s{sA}, s{sB}
s_xor_b32 s45, s44, 2
s_lshl_b32 s{sD}, s{sC}, 7
s_mul_i32 s{sW2E}, s44, {32*896}
s_add_u32 s{sW2E}, s{sW2E}, s{sD}
s_mul_i32 s{sW2L}, s45, {32*896}
s_add_u32 s{sW2L}, s{sW2L}, s{sD}
""")
vW2 = [vWO0, vWO1, 128, 129]
sSCR, sBIG = 46, 47
NRL = opt("nrl", 3)
RAWS = [2, 3] + list(range(7, 7 + NRL))
def UA(j): return 16*j
def w2slot(j): return (sSCR, 4096*{0:0, 1:1, 2:0, 3:1, 4:0, 5:1, 6:2}[j], 254) if j < 7 else (sBIG, 4096*(j - 7), 252)
def w2dma(j):
    mb, mo, _ = w2slot(j)
    return dmag(vW2, W2, sW2E if j < 7 else sW2L, (j%7)*256*896, mb, mo, f"w2_{j}", sDM)
def w2raw(j):
    ch = [mk(f"buffer_load_dwordx4 {a_(UA(j)+4*q,4)}, v{vW2[q]}, {W2}, s49 offen offset:{1024*q}") for q in range(4)]
    ch[0] = mk(f"s_add_u32 s49, s{sW2E if j < 7 else sW2L}, {(j%7)*256*896}") + ch[0]
    return ch
def w2rd(j):
    _, mo, av = w2slot(j)
    if j in RAWS: out = [mk(f"ds_write_b128 v{131 if j >= 7 else 134}, {a_(UA(j)+4*q,4)} offset:{mo+1024*q}") for q in range(4)]
    else: out = [[WaitTag([f"w2_{j}"])]]
    for e in range(2):
        for mu in range(2):
            for u in range(2): out.append(mk(f"ds_read_b64_tr_b16 {a_(UA(j)+8*e+4*mu+2*u,2)}, v{av+mu} offset:{mo+2048*e+1024*u}"))
    return out
raw = w2raw(2) + w2raw(3)
if opt("noid", 1): set2 = [mk(f"s_cmp_ge_u32 s{sRact}, 14\ns_cselect_b32 s26, 0, s26")] + set2
set2 += mk(f"v_add_u32 v128, {2*(7168-1024)}, v{vWO0}\nv_add_u32 v129, {3*(7168-1024)}, v{vWO0}")
S = Sched(gq)
S.spread(wo_l, 0, opt("woe", 28))
S.spread(set2, 2, 18)
S.spread([raw.pop(0) for _ in range(opt("rawa", 0))], 20, 28)
G0 = gate("g0", vPO, vPF)
if GATE & 1: S.at(opt("g0", 14), G0.load(0))
S.at(15 - AH, [WaitTag(["wq4", "wq5", "wq6"])] + mk("s_barrier"), 1.0)
P.add(S.emit())
stamp("q gemm done", "p")
G = 16; GC = 80; SA = 96
FP = Fetch("fp", [([f"s_add_u32 s{sCt}, s{sP}, {5120*T}\nbuffer_load_dwordx4 {v(G+4*T,4)}, v{vFPD}, {WS}, s{sCt} offen sc1\nbuffer_load_dword v{GC+T}, v{vFPC}, {WS}, s{sCt} offen sc1"],
                   [G+4*T, GC+T]) for T in range(16)])
P.add(phi_pre(ACV, WPQ))
if GATE & 1: P.add(G0.check(0, 0))
I("s_barrier")
PQ = 208
P.add(sprinkle(softmax(PK, TMP, PQ, True), [FP.load(T) for T in range(16)], opt("fp0", 0), opt("fpstep", 8)))
stamp("softmax q done", "p")
w1_l = flat([dmag([12, 13, 14, 15], W1, sW1B, i*64*3584, sW1M, 16384*i, "w1", sDM) for i in range(7)])
def fpb(b):
    t = []
    for k, T in enumerate(range(4*b, 4*b+4)):
        t.append(f"v_bitop3_b32 v{10 if k == 0 else 9}, v{G+4*T}, v{GC+T}, v5 {X3}" + ("" if k == 0 else "\nv_or_b32 v10, v10, v9"))
    return "\n".join(t) + "\nv_cmp_ne_u32 vcc, 0, v10"
RI = TAIL.I if opt("ool", 1) else I
if not opt("ool", 1): I("s_branch L_fp_go")
RI("L_fp_retry:" + ("\ns_add_u32 s80, s80, 1" if DIAG else ""), unc=True)
for b in range(4):
    RI(fpb(b) + f"\ns_cbranch_vccz L_fp_k{b}\n" + "\n".join(FP.pieces[T][0][0] for T in range(4*b, 4*b+4)) + f"\nL_fp_k{b}:", unc=True)
RI(GUARD, unc=True)
if opt("ool", 1): RI("s_branch L_fp_go", unc=True)
I("L_fp_go:")
I(fpb(0) + "\ns_cbranch_vccnz L_fp_retry")
S = Sched([mk(f"{MF} {v(SA,16)}, a[220:223], {v(G+4*T,4)}, {'0' if T == 0 else v(SA,16)}") for T in range(16)])
for b in range(1, 4): S.spread(mk(fpb(b) + "\ns_cbranch_vccnz L_fp_retry"), 4*b - 3, 4*b)
S.spread([w1_l.pop(0) for _ in range(opt("nw1a", 2))], 12, 16)
P.add(S.emit())
I(f"v_add_u32 v9, {L_KVX}, v{vFPD}")
for i in range(4): I(f"v_cvt_pk_bf16_f32 v{SA+8+i}, v{SA+2*i}, v{SA+2*i+1}")
I(f"ds_write_b128 v9, {v(SA+8,4)}\ns_waitcnt lgkmcnt(0)\ns_barrier")
stamp("kv summed", "mp")
KVA = 32; OD = 48
for q in range(7): I(f"ds_read_b64 {v(KVA+2*q,2)}, v{vKVX} offset:{512*q}")
P.add(w1_l.pop(0))
for s in range(3):
    I(f"{MF} {v(OD,16)}, {v(KVA+4*s,4)}, {v(PQ+4*s,4)}, {'0' if s == 0 else v(OD,16)}")
    if s == 1: P.add(w1_l.pop(0))
I(f"v_mfma_f32_32x32x8_bf16 {v(OD,16)}, {v(KVA+12,2)}, {v(PQ+12,2)}, {v(OD,16)}")
I(f"""s_lshl_b32 s{sP}, s{sTILE}, 15
s_lshr_b32 s{sB}, s{sW}, 1
s_lshl_b32 s{sB}, s{sB}, 14
s_add_u32 s{sP}, s{sP}, s{sB}
s_add_u32 s{sP}, s{sP}, {WS_O}
s_add_u32 s{sA}, s{sW1M}, {L_XCH}
v_add_u32 v132, s{sA}, v2
v_xor_b32 v133, 8192, v132
v_xor_b32 v9, 64, v{vWOR}
v_and_b32 v7, 31, v1
v_mul_u32_u24 v7, 896, v7
v_add_f32 v{OD+14}, 0x358637bd, v{OD+14}
v_rcp_f32 v{OD+14}, v{OD+14}
v_lshl_add_u32 v7, v3, 4, v7""")
for k in range(0, 14, 2): I(f"v_pk_mul_f32 {v(OD+k,2)}, {v(OD+k,2)}, {v(OD+14,2)} op_sel_hi:[1,0]")
for k in range(4): I(f"v_cvt_pk_bf16_f32 v{64+k}, v{OD+2*k}, v{OD+2*k+1}")
I(f"buffer_store_dwordx4 v[64:67], v2, {WS}, s{sOST} offen sc1")
for k in range(4, 7): I(f"v_cvt_pk_bf16_f32 v{64+k}, v{OD+2*k}, v{OD+2*k+1}")
I(f"""v_bitop3_b32 v71, v64, v5, s{sMASK} bitop3:0x28
v_and_b32 v6, s{sMASK}, v5
buffer_store_dwordx4 v[68:71], v2, {WS}, s{sOST} offen offset:1024 sc1""")
if GATE & 2: P.add(flag_store(7))
stamp("o stored", "mo")
P.wait("wo")
I(f"s_cmp_ge_u32 s{sRact}, 14\ns_cbranch_scc1 L_idle\ns_barrier")
wor = []
for s in range(16):
    hh, e = s >> 1, s & 1
    for k, av in ((0, vWOR), (1, 9)):
        for u in range(2):
            wor += mk(f"ds_read_b64_tr_b16 {a_(128+8*s+4*k+2*u,2)}, v{av} offset:{(28*hh+8*e+4*u)*128}")
XR = 224
xrr = []
for i in range(4): xrr += mk((f"v_xor_b32 v10, {16*i}, v{vXRR}\n" if i else "") + f"ds_read_b64 {v(XR+2*i,2)}, v{10 if i else vXRR}")
P.add(xrr)
G1 = gate("g1", vPO, vPF)
nb_ = min(opt("nw1b", 12), len(w1_l) - 8)
wor = sprinkle(wor, [w1_l.pop(0) for _ in range(nb_)], 0, opt("w1bs", 5))
if GATE & 2: wor = sprinkle(wor, [G1.load(0)], opt("g1", 40), 1)
P.add(wor)
OB = 16
FO = Fetch("fo", [([f"s_add_u32 s{sCt}, s{sP}, {2048*hh}\nbuffer_load_dwordx4 {v(OB+8*hh,4)}, v2, {WS}, s{sCt} offen sc1\nbuffer_load_dwordx4 {v(OB+8*hh+4,4)}, v2, {WS}, s{sCt} offen offset:1024 sc1"],
                   [OB+8*hh, OB+8*hh+7]) for hh in range(8)], masked=True, nre=opt('reo', 2))
stamp("pre o fetch", "o")
AO, AT = 80, 96
pre2 = []
for i in range(8): pre2 += mk(f"v_lshlrev_b32 v{112+2*i}, 16, v{XR+i}\nv_and_b32 v{113+2*i}, s{sHIM}, v{XR+i}")
for s in range(1, 16, 2): pre2 += mk(f"v_accvgpr_write_b32 a{128+8*s+3}, 0\nv_accvgpr_write_b32 a{128+8*s+7}, 0")
if GATE & 2:
    P.add(pre2); P.add(G1.check(0, 0))
    stamp("gate1", "o")
    for hh in range(8): P.add(FO.load(hh))
else: P.add(sprinkle(pre2, [FO.load(hh) for hh in range(8)], 0, 4))
I("s_waitcnt lgkmcnt(0)\ns_barrier")
stamp("fo issued", "o")
g2 = []
for s in range(16):
    for k, acc in ((1, AT), (0, AO)):
        c = ("0" if k else v(112,16)) if s == 0 else v(acc,16)
        g2.append(mk(f"{MF} {v(acc,16)}, {a_(128+8*s+4*k,4)}, {v(OB+4*s,4)}, {c}"))
set3 = mk(f"""s_mul_i32 s{sSCR}, s{sW}, 12288
s_mul_i32 s{sBIG}, s{sW}, 28672
v_add_u32 v131, s{sBIG}, v2
s_lshl_b32 s{sB}, s{sC}, 1
s_lshr_b32 s{sD}, s{sW}, 1
s_add_u32 s{sB}, s{sB}, s{sD}
s_mul_i32 s{sA}, s{sTILE}, 14
s_add_u32 s{sB}, s{sB}, s{sA}
s_mul_i32 s{sPST}, s{sB}, 2560
s_add_u32 s{sPST}, s{sPST}, {WS_H}
s_lshr_b32 s48, s{sW}, 1
s_nop 0
v_bfe_u32 v9, v1, 2, 2
v_lshl_add_u32 v240, v3, 2, v9
v_lshlrev_b32 v254, 7, v240
v_lshlrev_b32 v240, 8, v240
v_xor_b32 v9, s{sW}, v9
v_lshl_add_u32 v240, v9, 6, v240
v_bfe_u32 v9, v1, 4, 1
v_lshlrev_b32 v9, 5, v9
v_lshl_add_u32 v9, v8, 3, v9
v_add_u32 v240, v240, v9
v_add_u32 v254, v254, v9
v_bfe_u32 v9, v1, 3, 1
v_xor_b32 v9, s48, v9
v_lshl_add_u32 v254, v9, 6, v254
s_add_u32 s{sSCR}, s{sSCR}, {L_SCR}
v_add_u32 v252, s{sBIG}, v254
v_xor_b32 v253, 64, v252
v_add_u32 v254, s{sSCR}, v254
v_add_u32 v134, s{sSCR}, v2
v_xor_b32 v255, 64, v254
v_xor_b32 v241, 64, v240
v_xor_b32 v242, 128, v240
v_xor_b32 v243, 192, v240""") + flat([mk(f"v_add_u32 v{244+m}, 57344, v{240+m}") for m in range(4)])
P.add(sprinkle(set3[:14], [w1_l.pop(0) for _ in range(opt("nw1c", 4))], 0, 5))
P.add(FO.check(0, 7))
stamp("fo0", "o")
S = Sched(g2)
for hh in range(1, 8): S.spread(FO.checkc(hh, 7), 4*hh - 3, 4*hh)
S.spread(w1_l + [raw.pop(0) for _ in range(min(len(raw), opt("rawb", 4)))], 0, 32)
S.spread(set3[14:], 0, 30)
P.add(S.emit())
stamp("p2 gemm done", "o")
for i in range(4): I(f"ds_write_b128 v132, {v(AT+4*i,4)} offset:{1024*i}")
I("v_mov_b32 v112, 0\nv_mov_b32 v113, 0\ns_waitcnt lgkmcnt(0)\ns_barrier")
for i in range(4): I(f"ds_read_b128 {v(AT+4*i,4)}, v133 offset:{1024*i}")
HR = XR
for k in range(0, 8, 2): I(f"v_pk_add_f32 {v(AO+k,2)}, {v(AO+k,2)}, {v(AT+k,2)}")
for i in range(4): I(f"v_cvt_pk_bf16_f32 v{HR+i}, v{AO+2*i}, v{AO+2*i+1}")
I(f"buffer_store_dwordx4 {v(HR,4)}, v2, {WS}, s{sPST} offen sc1")
for k in range(8, 16, 2): I(f"v_pk_add_f32 {v(AO+k,2)}, {v(AO+k,2)}, {v(AT+k,2)}")
for i in range(4, 8): I(f"v_cvt_pk_bf16_f32 v{HR+i}, v{AO+2*i}, v{AO+2*i+1}")
I(f"buffer_store_dwordx4 {v(HR+4,4)}, v2, {WS}, s{sPST} offen offset:1024 sc1")
for i in range(8): I(f"v_dot2c_f32_bf16 v112, s{sONES}, v{HR+i}\nv_dot2c_f32_bf16 v113, v{HR+i}, v{HR+i}")
I(f"""v_bitop3_b32 v10, v{HR}, v{HR+4}, v5 {X3}
v_permlane32_swap_b32 v112, v113
v_add_f32 v112, v112, v113
buffer_store_dword v112, v4, {WS}, s{sPST} offen offset:2048 sc1
v_xor_b32 v113, v10, v112
buffer_store_dword v113, v4, {WS}, s{sPST} offen offset:2304 sc1""")
def selft(sreg, nl): return mk(f"s_mov_b64 exec, {(1 << nl) - 1}\nbuffer_load_dword v135, v134, {WS}, s{sreg} offen sc1\ns_mov_b64 exec, -1")
SELF = opt("self", 0)
if SELF & 1: P.add(selft(sPST, 20))
if GATE & 4: P.add(flag_store(14))
stamp("h stored", "moh")
HB = 16; ST = 192
ACC = [144, 160, 176, 192]; AUG = 232
set4 = mk(f"""s_lshl_b32 s{sB}, s{sT3}, 2
s_add_u32 s{sB}, s{sB}, s{sW}
s_mul_i32 s{sP}, s{sB}, {14*2560}
s_add_u32 s{sP}, s{sP}, {WS_H}
s_mul_i32 s{sA}, s{sB}, 56
s_lshl_b32 s{sD}, s{sR}, 2
s_add_u32 s{sA}, s{sA}, s{sD}
s_mul_i32 s{sQ}, s{sA}, 2304
s_add_u32 s{sQ}, s{sQ}, {WS_H1}
v_lshlrev_b32 v13, 3, v1
s_lshl_b32 s{sA}, s{sW}, 9
s_add_u32 s{sA}, s{sA}, {L_AUG}
v_add_u32 v13, s{sA}, v13
v_mov_b32 v222, 0""")
FH = Fetch("fh", [([f"s_add_u32 s{sCt}, s{sP}, {2560*p}\nbuffer_load_dwordx4 {v(HB+8*p,4)}, v2, {WS}, s{sCt} offen sc1\nbuffer_load_dwordx4 {v(HB+8*p+4,4)}, v2, {WS}, s{sCt} offen offset:1024 sc1\n"
                    f"buffer_load_dword v{ST+2*p}, v4, {WS}, s{sCt} offen offset:2048 sc1\nbuffer_load_dword v{ST+2*p+1}, v4, {WS}, s{sCt} offen offset:2304 sc1"],
                   [HB+8*p, HB+8*p+4, ST+2*p, ST+2*p+1]) for p in range(14)], nre=opt('reh', 2))
for i in range(4): I(f"v_mov_b32 v{AUG+i}, s{sONES}")
P.wait("w1"); I("s_barrier")
stamp("w1 landed", "h")
def w1a(t, k): return (240 + k + (4 if t >= 14 else 0), (t % 14) * 4096, (t % 14) * 4096 + 2048)
st3 = [w1a(t, 0) + ((AUG, ACC[2], t == 0, True),) for t in range(28)]
for t in range(28):
    for k in range(3): st3.append(w1a(t, k) + ((HB + 4*t, ACC[k], t == 0, False),))
for t in range(28): st3.append(w1a(t, 3) + ((HB + 4*t, ACC[3], t == 0, False),))
pro, g3 = gemm_lds(st3, AH)
P.add(pro)
S3 = Sched(g3)
S3.spread(set4, 0, 8)
S3.spread(raw + w2dma(0) + w2dma(1), 0, opt("c0e", 20)); raw = []
NH0 = opt("nh0", 4); H0 = opt("h0", 24)
G2 = gate("g2", vPO, vPF)
if GATE & 4:
    S3.at(opt("g2", 12), G2.load(0), 0.9)
    S3.at(27, G2.check(0, 0) + stampi("gate2", "h") + flat([FH.load(p) for p in range(NH0)]), 0.5)
else: S3.spread(flat([FH.loadc(p) for p in range(NH0)]), H0, 27)
cs = ACC[2]
csx = mk(f"""v_cvt_pk_bf16_f32 v{AUG}, v{cs}, v{cs}
v_lshlrev_b32 v{AUG+1}, 16, v{AUG}
v_sub_f32 v{AUG+1}, v{cs}, v{AUG+1}
v_cvt_pk_bf16_f32 v{AUG}, v{cs}, v{AUG+1}
v_and_b32 v{AUG+1}, 0xffff, v{AUG}
v_cndmask_b32 v{AUG}, v{AUG}, 0, {sHI}
v_cndmask_b32 v{AUG+1}, v{AUG+1}, 0, {sHI}
ds_write_b64 v13, {v(AUG,2)}""")
S3.at(27, stampi("colsum done", "h") + csx + FH.check(0, NH0 - 1) + stampi("fh0", "h"), 1.0)
B0 = 28
for p in range(14):
    b = B0 + 6*p
    if p + NH0 < 14:
        for k_, c_ in enumerate(FH.loadc(p + NH0)): S3.at(b + (0, 2, 4, 4)[k_], c_, 0.2)
    S3.at(b, mk(f"v_add_f32 v222, v222, v{ST+2*p}"), 0.0)
    if p + 1 < 14: S3.spread(FH.checkc(p + 1, min(13, p + NH0 - 1)), b + 1, b + 6)
    if p in (3, 7, 11): S3.at(b + 5, stampi(f"fh{p+1}", "h"), 1.0)
S3.at(B0 + 20, mk("s_waitcnt lgkmcnt(0)\ns_barrier") + flat([mk(f"v_xor_b32 v9, {512*k}, v13\nds_read_b64 {v(AUG+2*k,2)}, v9") for k in range(1, 4)]), 0.0)
mid = mk(f"""v_mul_f32 v220, {fhex(1/448)}, v222
v_mov_b32 v221, v220
s_nop 0
v_permlane32_swap_b32 v220, v221
v_fma_f32 v221, -v220, v220, v221
v_max_f32 v221, 0, v221
v_add_f32 v221, 0x3727c5ac, v221
v_rsq_f32 v251, v221
v_cvt_pk_bf16_f32 v222, -v220, -v220
v_lshlrev_b32 v9, 16, v222
v_sub_f32 v9, -v220, v9
v_cvt_pk_bf16_f32 v223, v9, 0
v_mul_f32 v250, v221, v251
v_mul_f32 v251, 0xbfb8aa3b, v251
v_cndmask_b32 v222, v222, 0, {sHI}
v_cndmask_b32 v223, v223, 0, {sHI}""")
S3.spread(mid, B0 + 79, B0 + 84)
def aug(k): return mk(f"v_mfma_f32_32x32x8_bf16 {v(ACC[k],16)}, {v(AUG+2*k,2)}, v[222:223], {v(ACC[k],16)}")
SLT = 132
def silu(k, pk):
    q = Prog(); a = ACC[k]; t = 208
    q.I(f"s_xor_b32 s50, s{sW}, {k}\ns_mul_i32 s50, s50, 2304\ns_add_u32 s50, s50, s{sQ}")
    for half in range(2):
        b = a + 8 * half
        if pk:
            for j in range(0, 8, 2): q.I(f"v_pk_mul_f32 {v(t+j,2)}, {v(b+j,2)}, v[250:251] op_sel:[0,1] op_sel_hi:[1,1]")
        else:
            for j in range(8): q.I(f"v_mul_f32 v{t+j}, v{b+j}, v251")
        for j in range(8): q.I(f"v_exp_f32 v{t+j}, v{t+j}")
        if pk:
            for j in range(0, 8, 2): q.I(f"v_pk_fma_f32 {v(t+j,2)}, {v(t+j,2)}, v[250:251], v[250:251] op_sel_hi:[1,0,0]")
        else:
            for j in range(8): q.I(f"v_fma_f32 v{t+j}, v{t+j}, v250, v250")
        for j in range(8): q.I(f"v_rcp_f32 v{t+j}, v{t+j}")
        if pk:
            for j in range(0, 8, 2): q.I(f"v_pk_mul_f32 {v(b+j,2)}, {v(b+j,2)}, {v(t+j,2)}")
        else:
            for j in range(8): q.I(f"v_mul_f32 v{b+j}, v{b+j}, v{t+j}")
        for j in range(4): q.I(f"v_cvt_pk_bf16_f32 v{b+j}, v{b+2*j}, v{b+2*j+1}")
        q.I(f"buffer_store_dwordx4 {v(b,4)}, v2, {WS}, s50 offen offset:{1024*half} sc1")
    q.I(f"v_bitop3_b32 v216, v5, v{a}, v{a+8} {X3}")
    q.I(f"buffer_store_dword v216, v4, {WS}, s50 offen offset:2048 sc1")
    return q.items + ([selft(50, 18)] if SELF & 2 and not pk else [])
E0 = B0 + 84
assert not raw
S3.spread(w2rd(0) + w2rd(1) + w2rd(2) + w2rd(3), B0 + 22, B0 + 58)
S3.at(B0 + 44, mk("s_barrier"), 0.0)
WD = opt("wd", 64)
S3.spread(w2dma(4) + w2dma(5) + w2dma(6), B0 + WD, E0)
B4 = 16
CKR = [240, 241, 242, 244, 245, 246, 248, 249, 217, 218, 219, 130, 243, 247]
C4 = [[a_(224,16), a_(240,16)], [v(ACC[0],16), v(ACC[1],16)]]
set5 = mk(f"""s_mul_i32 s{sA}, s{sTILE}, 56
s_xor_b32 s{sB}, s{sTILE}, 1
s_mul_i32 s{sB}, s{sB}, 56
s_add_u32 s51, s{sB}, s44
s_add_u32 s52, s{sA}, s44
s_add_u32 s53, s{sB}, s45
s_add_u32 s54, s{sA}, s45""")
for k in range(4):
    set5 += mk(f"s_mul_i32 s{51+k}, s{51+k}, 2304\ns_add_u32 s{51+k}, s{51+k}, {WS_H1}")
S3.spread(set5, B0 + 60, B0 + 78)
def piece4(n):
    st, i = n // 7, n % 7; r = B4 + 8 * (n % 14); c = CKR[n % 14]
    return ([f"s_add_u32 s{sCt}, s{51+st}, {8*2304*i}\nbuffer_load_dwordx4 {v(r,4)}, v2, {WS}, s{sCt} offen sc1\nbuffer_load_dwordx4 {v(r+4,4)}, v2, {WS}, s{sCt} offen offset:1024 sc1\n"
             f"buffer_load_dword v{c}, v4, {WS}, s{sCt} offen offset:2048 sc1"], [r, r+4, c])
F4 = Fetch("f4", [piece4(n) for n in range(28)], nre=opt("re4", 1))
ND = opt("nd", 4)
rawl = flat([w2raw(j) for j in range(7, 7 + NRL)])
nr0 = min(len(rawl), opt("nr0", 4))
S3.at(E0 - 1, stampi("p3 pass1 done", "mh") + aug(0) + aug(1) + aug(2) + sprinkle(silu(0, True), rawl[:nr0], 3, 12) + stampi("silu0 done", "e"), 1.0)
S3.spread(silu(1, False), E0, E0 + 26)
S3.spread(rawl[nr0:], E0, E0 + 14)
F4S = opt("f4s", 16)
S3.spread(flat([F4.loadc(n) for n in range(ND)]), E0 + F4S, E0 + 28)
P.add(S3.emit())
P.add(aug(3))
I("s_barrier")
stamp("p3 gemm done", "me")
g4 = []
for n in range(28):
    st, i = n // 7, n % 7; hf, par = st >> 1, st & 1
    for e in range(2):
        for mu in range(2):
            zero = hf == 0 and i == 0 and e == 0 and not (par == 1 and mu == 0)
            g4.append(mk(f"{MF} {C4[par][mu]}, {a_(UA(7*hf+i)+8*e+4*mu,4)}, {v(B4+8*(n%14)+4*e,4)}, {'0' if zero else C4[par][mu]}"))
P.add(F4.check(0, ND - 1))
S = Sched(g4)
for n in range(28):
    if n + ND < 28:
        for k_, c_ in enumerate(F4.loadc(n + ND)): S.at(4*n + (0, 2, 1)[k_], c_, 0.2)
    if n + 1 < 28: S.spread(F4.checkc(n + 1, min(27, n + ND)), 4*n + 2, 4*n + 4)
    if n in (6, 13, 20): S.at(4*n + 3, stampi(f"stage{n//7} done", "e"), 1.0)
unp = []
for i in range(8): unp += mk(f"v_lshlrev_b32 v{ACC[0]+2*i}, 16, v{HR+i}\nv_and_b32 v{ACC[0]+1+2*i}, s{sHIM}, v{HR+i}")
S.spread(silu(2, False), 0, 22)
S.spread(unp, 22, 27)
S.spread(silu(3, False), 27, 50)
S.spread(w2rd(4) + w2rd(5) + w2rd(6), 0, 14)
S.spread(flat([w2dma(j) for j in range(7 + NRL, 14)]), opt("w2a", 2), opt("w2b", 44))
for j in range(7, 14): S.spread(w2rd(j), 44 + 5*(j-7), 49 + 5*(j-7))
S.at(82, mk(f"""s_lshl_b32 s{sA}, s{sW}, 14
v_add_u32 v13, s{sA}, v2
v_xor_b32 v9, 16384, v13
v_xor_b32 v12, 32768, v13
v_xor_b32 v14, 49152, v13
s_waitcnt lgkmcnt(0)
s_barrier"""))
S.spread([mk(f"ds_write_b128 v{9 if mu == 0 else 14}, {a_(224+16*mu+4*i,4)} offset:{4096*(2*mu+1)+1024*i}") for mu in range(2) for i in range(4)], 87, 99)
S.at(100, mk("s_waitcnt lgkmcnt(0)\ns_barrier"), 0.0)
S.spread([mk(f"ds_read_b128 {v(ACC[2+mu]+4*i,4)}, v13 offset:{4096*(2*mu+1)+1024*i}") for mu in range(2) for i in range(4)], 100, 104)
S.spread([mk(f"v_add_f32 v{ACC[2]+k}, v{ACC[2]+k}, v{ACC[3]+k}") for k in range(16)], 107, 112)
P.add(S.emit())
stamp("p4 gemm done", "me")
for i in range(4): I(f"ds_write_b128 v12, {v(ACC[1]+4*i,4)} offset:{8192+1024*i}")
I("s_waitcnt lgkmcnt(0)\ns_barrier")
for i in range(4): I(f"ds_read_b128 {v(ACC[3]+4*i,4)}, v13 offset:{8192+1024*i}")
for k in range(0, 16, 2): I(f"v_pk_add_f32 {v(ACC[0]+k,2)}, {v(ACC[0]+k,2)}, {v(ACC[2]+k,2)}")
for hf in range(2):
    b = ACC[0] + 8*hf
    for k in range(0, 8, 2): I(f"v_pk_add_f32 {v(b+k,2)}, {v(b+k,2)}, {v(ACC[3]+8*hf+k,2)}")
    for i in range(4): I(f"v_cvt_pk_bf16_f32 v{96+4*hf+i}, v{b+2*i}, v{b+2*i+1}")
    I(f"v_permlane32_swap_b32 v{96+4*hf}, v{98+4*hf}\nv_permlane32_swap_b32 v{97+4*hf}, v{99+4*hf}\nbuffer_store_dwordx4 {v(96+4*hf,4)}, v7, {OUT}, s{sOUT} offen offset:{32*hf} {OPT.get('ofl', '')}")
stamp("end", "mpohez")
I(f"""s_cmp_lg_u32 s2, 0
s_cbranch_scc1 L_exit
v_mov_b32 v9, 0""")
I(f"buffer_store_dword v5, v9, {WS}, 0 offen sc1", unc=True)
I("L_exit:")
if DIAG:
    I(f"s_cmp_lg_u32 s{sW}, {opt('dw', 0)}\ns_cbranch_scc1 L_end\ns_lshl_b32 s{sA}, s2, 7\ns_add_u32 s{sA}, s{sA}, {WS_DIAG}\nv_mov_b32 v9, 0", unc=True)
    for k in range(nstamp[0]):
        I(f"s_waitcnt lgkmcnt(0)\nv_mov_b32 v10, s{sSTAMP+2*k}\nbuffer_store_dword v10, v9, {WS}, s{sA} offen offset:{4*k}", unc=True)
    if SEL == ["z"]: I(f"v_mov_b32 v10, s78\nbuffer_store_dword v10, v9, {WS}, s{sA} offen offset:120", unc=True)
    I(f"v_mov_b32 v10, s80\nbuffer_store_dword v10, v9, {WS}, s{sA} offen offset:124", unc=True)
I("L_end:\ns_endpgm")
I(f"""L_idle:
s_and_b32 s{sA}, s{sT2}, 1
s_lshl_b32 s{sA}, s{sA}, 1
s_add_u32 s{sA}, s{sA}, s{sRact}
s_sub_u32 s{sA}, s{sA}, 14
s_lshl_b32 s{sA}, s{sA}, 2
s_add_u32 s{sA}, s{sA}, s{sW}
s_lshl_b32 s{sA}, s{sA}, 13
v_lshlrev_b32 v9, 7, v1
s_mov_b32 s{sB}, {opt("idle", 0)}
s_cmp_eq_u32 s{sB}, 0
s_cbranch_scc1 L_exit
L_idle1:
buffer_load_dword v10, v9, {W2}, s{sA} offen
s_add_u32 s{sA}, s{sA}, {16*8192}
s_sub_u32 s{sB}, s{sB}, 1
s_cmp_lg_u32 s{sB}, 0
s_cbranch_scc1 L_idle1
s_branch L_exit""", unc=True)
P.add(TAIL.items)

PL = opt("plain", 0)
for it in P.items:
    if isinstance(it, Ins) and it.op.startswith("buffer_store") and "sc1" in it.text:
        ish1 = " s50 " in it.text or " s49 " in it.text
        ish = ("v[224:227]" in it.text or "v[228:231]" in it.text or "v112," in it.text or "v113," in it.text)
        if (ish and PL & 1) or (ish1 and PL & 2): it.text = it.text.replace(" sc1", OPT.get("pfl", ""))
if opt("nochk", 0):
    new = []; seen_end = False
    for it in P.items:
        if isinstance(it, Ins):
            if opt("nochk", 0) == 2 and not seen_end:
                if it.text.startswith("L_exit"): seen_end = True
                elif it.uncounted or it.op in ("s_cbranch_vccz", "s_branch"): continue
            if it.op == "s_cbranch_vccz" and not it.uncounted: it = Ins(it.text.replace("s_cbranch_vccz", "s_branch"))
            elif it.op == "s_cbranch_vccnz" and not it.uncounted: continue
            t = it.text
            if it.op.startswith("buffer_store") and "sc1" in t and not it.uncounted:
                kind = 8 if " s50 " in t else 4 if ("v[224" in t or "v[228" in t or "v112," in t or "v113," in t) else 2 if f" s{sOST} " in t else 1
                if opt("nost", 0) & kind: continue
            if it.op.startswith("buffer_load") and "sc1" in t and " s56 " in t and not it.uncounted:
                cnt_ld = globals().setdefault("_c", [0]); cnt_ld[0] += 1; c = cnt_ld[0]
                kind = 1 if c <= 32 else 2 if c <= 48 else 4 if c <= 104 else 8
                if opt("nold", 0) & kind: continue
        new.append(it)
    P.items = new
body, items = render(P.items)
if opt("align", 1):
    import subprocess, re as _re
    open("_al.s", "w").write('.amdgcn_target "amdgcn-amd-amdhsa--gfx950"\n.text\n' + body)
    subprocess.run(["clang", "-x", "assembler", "-target", "amdgcn-amd-amdhsa", "-mcpu=gfx950", "-c", "_al.s", "-o", "_al.o"], check=True)
    dis = subprocess.run(["llvm-objdump", "-d", "--mcpu=gfx950", "_al.o"], capture_output=True, text=True).stdout
    sizes = [4 * len(m.group(1).split()) for m in _re.finditer(r"// [0-9A-F]{12}: ((?:[0-9A-F]{8} ?)+)", dis)]
    real = [i for i in items if i.cls not in ('label', 'dir')]
    assert len(sizes) == len(real), (len(sizes), len(real))
    sz = {id(i): n for i, n in zip(real, sizes)}
    new = []; off = 0; nal = 0; MINRUN = opt("minrun", 6)
    for k, it in enumerate(items):
        if id(it) in sz and sz[id(it)] == 8 and off % 8 == 4 and not it.uncounted:
            run = 0
            for j in items[k:k + MINRUN + 4]:
                if id(j) not in sz: continue
                if sz[id(j)] != 8 or j.cls == 'mfma': break
                run += 1
            if run >= MINRUN:
                p = new[-1] if new else None
                if p is not None and p.cls == 'valu' and sz.get(id(p)) == 4 and not p.op.startswith(('v_permlane', 'v_dot2c', 'v_readfirst', 'v_accvgpr', 'v_cmp', 'v_cndmask')) and not p.op.endswith('_e64'):
                    p.text = p.text.replace(p.op, p.op + "_e64", 1)
                else: new.append(Ins("s_nop 0"))
                off += 4; nal += 1
        new.append(it); off += sz.get(id(it), 0)
    items = new
    body = '\n'.join(('' if i.cls == 'label' else '  ') + i.text for i in items) + '\n'
    print("alignment fixes:", nal, "code bytes", off)
hdr = open("cdna_kernels/" + NAME + ".s.ref").read().split("; Override launch")[0]
out = hdr + f"""; @launch grid=(256,1,1) block=(256,1,1) lds={LDS_SIZE}
.amdgcn_target "amdgcn-amd-amdhsa--gfx950"
.text
.globl {NAME}_kernel
.p2align 8
.type {NAME}_kernel,@function
{NAME}_kernel:
{body}.fill 2048, 4, 0xbf810000
.section .rodata,"a"
.p2align 6
.amdhsa_kernel {NAME}_kernel
  .amdhsa_next_free_vgpr 512
  .amdhsa_next_free_sgpr 102
  .amdhsa_accum_offset 256
  .amdhsa_group_segment_fixed_size 0
  .amdhsa_kernarg_size 80
  .amdhsa_user_sgpr_count 2
  .amdhsa_user_sgpr_kernarg_segment_ptr 1
  .amdhsa_system_sgpr_workgroup_id_x 1
.end_amdhsa_kernel
"""
open(sys.argv[1], "w").write(out)
n = sum(1 for i in items if i.cls not in ('label', 'dir'))
nu_ = sum(1 for i in items if i.cls not in ('label', 'dir') and i.uncounted)
print("instructions:", n, "(slow path", nu_, ") nops:", sum(1 for i in items if i.op == 's_nop'), "waits:", sum(1 for i in items if i.op == 's_waitcnt'), "stamps", nstamp[0])
```

```python
import sys, struct
from asmlib import *

NAME = "sequential_preLN__linear_kernel_hedgehog__dense_activation_silu__prompt"
DIAG = int(sys.argv[2]) if len(sys.argv) > 2 else 0
OPT = dict(a.split('=') for a in sys.argv[3:])
def opt(k, d): return int(OPT[k], 0) if k in OPT else d

WS_PART = 0x40000
WS_O    = 0x240000
WS_H    = 0x440000
WS_H1   = 0x680000
WS_DIAG = 0xE80000
WS_FLG  = 0xF00000
WS_SIZE = 0xF80000
XW = 28672
L_WV, L_WQ, L_WK, L_WO = 0, 28672, 57344, 86016
L_IMG = L_WK
L_KVX = 143360
L_XCH = 147456
L_SCR = 114688
L_AUG = 161792
LDS_SIZE = 163840
sW, sT, sH, sT2, sR = 3, 4, 5, 6, 7
X, WQKV, WPHI, WO, W1, W2, OUT, WS = [f"s[{i}:{i+3}]" for i in range(8, 40, 4)]
sKX, sKW = 40, 47
sHQ, sHIM = 54, 55
sRET = "s[56:57]"
sSPIN, sP, sU, sC, sMASK, sQ = 58, 59, 60, 61, 62, 63
sHI = "s[64:65]"
sLOG = "s[66:67]"
sONES, sTILE = 68, 69
sA, sB, sCt, sD = 70, 71, 72, 73
sRact, sXO = 74, 75
sWB, sWQ = 76, 77
sLAST, sFLAG, sWM, sPST, sPCK, sOST, sXRB, sOUT = 80, 81, 82, 83, 84, 85, 86, 87
sSTAMP = 88

def v(a, n=1): return f"v{a}" if n == 1 else f"v[{a}:{a+n-1}]"
def a_(a, n=1): return f"a{a}" if n == 1 else f"a[{a}:{a+n-1}]"
def fhex(x): return hex(struct.unpack('<I', struct.pack('<f', x))[0])
def flat(l): return sum(l, [])
P = Prog(); I = P.I
TAIL = Prog()
nstamp = [0]
SEL = OPT.get("st", "m").split(",")
PICK = [int(x) for x in OPT["pick"].split(",")] if "pick" in OPT else None
allst = [0]
def stampi(name, grp="m"):
    idx = allst[0]; allst[0] += 1
    if not DIAG: return []
    if PICK is not None:
        if name != "start" and idx not in PICK:
            print(f"   - {idx}: {name}"); return []
    elif name != "start" and not (set(grp) & set(SEL)): return []
    k = nstamp[0]; nstamp[0] += 1
    assert k < 7
    print(f"stamp {k}: [{idx}] {name}")
    op = "s_memtime" if DIAG == 2 else "s_memrealtime"
    return mk(f"{op} s[{sSTAMP+2*k}:{sSTAMP+2*k+1}]")
def stamp(name, grp="m"): P.add(stampi(name, grp))
X3 = "bitop3:0x96"

def chk_code(regs, masked):
    r = list(regs)
    if masked: return f"v_bitop3_b32 v10, v{r[0]}, v{r[1]}, s{sMASK} bitop3:0x28\nv_cmp_ne_u32 vcc, v10, v6"
    if len(r) == 1: return f"v_cmp_ne_u32 vcc, v{r[0]}, v5"
    if len(r) == 2: t = f"v_xor_b32 v10, v{r[0]}, v{r[1]}"
    else:
        t = f"v_bitop3_b32 v10, v{r[0]}, v{r[1]}, v{r[2]} {X3}"
        if len(r) == 4: t += f"\nv_xor_b32 v10, v10, v{r[3]}"
    return t + "\nv_cmp_ne_u32 vcc, v10, v5"

sFL, sDM = 56, 57
GUARD = f"s_add_u32 s{sSPIN}, s{sSPIN}, 1\ns_cmp_gt_u32 s{sSPIN}, 0x40000\ns_cbranch_scc1 L_end\ns_waitcnt vmcnt(0)"
class Fetch:
    def __init__(self, name, pieces, masked=False, nre=1):
        self.name, self.pieces, self.masked, self.nre = name, pieces, masked, nre
    def loadc(self, i):
        it = flat([mk(c.replace(f"s{sCt}", f"s{sFL}")) for c in self.pieces[i][0]])
        out = []; cur = []
        for x in it:
            cur.append(x)
            if x.cls == 'vmem': out.append(cur); cur = []
        return out
    def load(self, i): return flat(self.loadc(i))
    def stub(self, i, last):
        n = self.name
        wgt = {"fo": 0x100, "fh": 0x10000, "f4": 0x1000000}.get(n, 1)
        rel = (f"s_add_u32 s80, s80, {wgt}\n" if DIAG else "") + "\n".join(c for j in range(i, min(last, i + self.nre - 1) + 1) for c in self.pieces[j][0])
        if opt("ool", 1):
            TAIL.I(f"L_{n}_r{i}:\n" + rel + "\n" + GUARD + "\n" + chk_code(self.pieces[i][1], self.masked) + f"\ns_cbranch_vccnz L_{n}_r{i}\ns_branch L_{n}_ok{i}", unc=True)
            return mk(f"s_cbranch_vccnz L_{n}_r{i}\nL_{n}_ok{i}:")
        return mk(f"s_cbranch_vccz L_{n}_ok{i}\nL_{n}_r{i}:") + \
               mk(rel + "\n" + GUARD + "\n" + chk_code(self.pieces[i][1], self.masked) + f"\ns_cbranch_vccnz L_{n}_r{i}", unc=True) + mk(f"L_{n}_ok{i}:")
    def checkc(self, i, last):
        return [[x] for x in mk(chk_code(self.pieces[i][1], self.masked))] + [self.stub(i, last)]
    def check(self, i, last): return flat(self.checkc(i, last))

sFS, sFP = 80, 81
vL512, vPO, vPF = 0, 142, 143
def flag_store(nl): return mk(f"s_mov_b64 exec, {(1 << nl) - 1}\nbuffer_store_dword v5, v{vL512}, {WS}, s{sFS} offen sc1\ns_mov_b64 exec, -1")
def gate(name, vo, vf): return Fetch(name, [([f"buffer_load_dword v{vf}, v{vo}, {WS}, s{sFP} offen sc1"], [vf])])
GATE = opt("gate", 0)

def cost(it):
    if isinstance(it, WaitTag): return 4
    if it.cls in ('label', 'dir') or it.uncounted: return 0
    if it.op.startswith(TRANS) or 'permlane' in it.op: return 8
    if it.op.startswith('ds_write_b128'): return 28
    if it.cls == 'mfma': return 8
    return 4.5
class Sched:
    def __init__(self, groups):
        self.groups = groups; self.gap = [[] for _ in groups]; self.seq = 0
    def at(self, g, items, frac=0.5):
        self.seq += 1; self.gap[g].append((frac, self.seq, list(items)))
    def spread(self, chunks, a, b):
        chunks = [c if isinstance(c, list) else [c] for c in chunks]
        tot = sum(cost(i) for c in chunks for i in c) or 1; acc = 0
        for c in chunks:
            pos = a + (b - a) * acc / tot
            self.at(int(pos), c, pos - int(pos))
            acc += sum(cost(i) for i in c)
    def emit(self):
        out = []
        for g, gp in zip(self.groups, self.gap):
            out += g
            for _, _, c in sorted(gp, key=lambda x: (x[0], x[1])): out += c
        return out
def sprinkle(items, groups, start, step):
    out = []; groups = list(groups); nxt = start
    for i, it in enumerate(items):
        if groups and i == nxt: out += groups.pop(0); nxt += step
        out.append(it)
    for g in groups: out += g
    return out

def softmax(p, t, o, pk):
    q = Prog(); J = q.I
    m, n = t + 14, t + 15; r0, r1 = t + 16, t + 17
    J(f"v_max3_f32 v{m}, v{p}, v{p+1}, v{p+2}\nv_max3_f32 v{n}, -v{p}, -v{p+1}, -v{p+2}")
    for k in range(3, 13, 2):
        J(f"v_max3_f32 v{m}, v{m}, v{p+k}, v{p+k+1}\nv_max3_f32 v{n}, v{n}, -v{p+k}, -v{p+k+1}")
    J(f"""v_max_f32 v{m}, v{m}, v{p+13}
v_max_f32 v{n}, v{n}, -v{p+13}
v_permlane32_swap_b32 v{m}, v{n}
v_max_f32 v{m}, v{m}, v{n}
v_mul_f32 v{m}, v253, v{m}
v_mov_b32 v{n}, v{m}
v_permlane32_swap_b32 v{m}, v{n}""")
    if pk:
        for k in range(0, 14, 2):
            J(f"v_pk_fma_f32 {v(t+k,2)}, {v(p+k,2)}, v[252:253], {v(m,2)} op_sel_hi:[1,0,0]")
            J(f"v_pk_fma_f32 {v(p+k,2)}, {v(p+k,2)}, v[252:253], {v(m,2)} op_sel:[0,1,1] op_sel_hi:[1,1,1]")
    if pk == 2:
        for k in range(14):
            J(f"v_exp_f32 v{t+k}, v{t+k}\nv_exp_f32 v{p+k}, v{p+k}")
            if k >= 2:
                a0 = f"v{t}" if k == 2 else f"v{r0}"; a1 = f"v{p}" if k == 2 else f"v{r1}"
                J(f"v_add_f32 v{r0}, {a0}, v{t+k-1}\nv_add_f32 v{r1}, {a1}, v{p+k-1}")
        J(f"v_add_f32 v{m}, v{r0}, v{t+13}\nv_add_f32 v{n}, v{r1}, v{p+13}")
    elif pk:
        for k in range(14): J(f"v_exp_f32 v{t+k}, v{t+k}")
        for k in range(14): J(f"v_exp_f32 v{p+k}, v{p+k}")
        J(f"v_pk_add_f32 {v(m,2)}, {v(t,2)}, {v(t+2,2)}\nv_pk_add_f32 {v(r0,2)}, {v(p,2)}, {v(p+2,2)}")
        for k in range(4, 14, 2):
            J(f"v_pk_add_f32 {v(m,2)}, {v(m,2)}, {v(t+k,2)}\nv_pk_add_f32 {v(r0,2)}, {v(r0,2)}, {v(p+k,2)}")
        J(f"v_add_f32 v{m}, v{m}, v{n}\nv_add_f32 v{n}, v{r0}, v{r1}")
    else:
        for k in range(14):
            J(f"v_fma_f32 v{t+k}, v{p+k}, v252, v{m}\nv_fma_f32 v{p+k}, v{p+k}, v253, v{n}\nv_exp_f32 v{t+k}, v{t+k}\nv_exp_f32 v{p+k}, v{p+k}")
            if k >= 2:
                a0 = f"v{t}" if k == 2 else f"v{r0}"; a1 = f"v{p}" if k == 2 else f"v{r1}"
                J(f"v_add_f32 v{r0}, {a0}, v{t+k-1}\nv_add_f32 v{r1}, {a1}, v{p+k-1}")
        J(f"v_add_f32 v{m}, v{r0}, v{t+13}\nv_add_f32 v{n}, v{r1}, v{p+13}")
    J(f"""v_permlane32_swap_b32 v{m}, v{n}
v_add_f32 v{m}, v{m}, v{n}
v_rcp_f32 v{m}, v{m}
v_mov_b32 v{n}, v{m}
v_permlane32_swap_b32 v{m}, v{n}""")
    if pk == 1:
        for k in range(0, 14, 2):
            J(f"v_pk_mul_f32 {v(t+k,2)}, {v(t+k,2)}, {v(m,2)} op_sel_hi:[1,0]")
            J(f"v_pk_mul_f32 {v(p+k,2)}, {v(p+k,2)}, {v(m,2)} op_sel:[0,1] op_sel_hi:[1,1]")
    else:
        for k in range(14): J(f"v_mul_f32 v{t+k}, v{t+k}, v{m}\nv_mul_f32 v{p+k}, v{p+k}, v{n}")
    for k in range(7): J(f"v_cvt_pk_bf16_f32 v{o+k}, v{t+2*k}, v{t+2*k+1}")
    for k in range(7): J(f"v_cvt_pk_bf16_f32 v{o+7+k}, v{p+2*k}, v{p+2*k+1}")
    return q.items

def dmag(vaddrs, srd, sbase, sadd, mbase, madd, tag, sreg=None):
    sr = sCt if sreg is None else sreg
    ch = [mk(f"buffer_load_dwordx4 v{a}, {srd}, s{sr} offen offset:{1024*i} lds", tag=tag) for i, a in enumerate(vaddrs)]
    ch[0] = mk(f"s_add_u32 m0, s{mbase}, {madd}\ns_add_u32 s{sr}, s{sbase}, {sadd}") + ch[0]
    return ch

MF = "v_mfma_f32_32x32x16_bf16"
RINGA, NRING = 224, 8
def gemm_lds(steps, ahead=6):
    def rd(i):
        av, o1, o2 = steps[i][:3]; r = RINGA + 4 * (i % NRING)
        return mk(f"ds_read_b64_tr_b16 {a_(r,2)}, v{av} offset:{o1}\nds_read_b64_tr_b16 {a_(r+2,2)}, v{av} offset:{o2}")
    rds = [rd(i) for i in range(len(steps))]
    groups = []
    for i, st in enumerate(steps):
        r = RINGA + 4 * (i % NRING); b, acc, first, swap = st[3]
        A, B = a_(r, 4), v(b, 4)
        if swap: A, B = B, A
        g = mk(f"{MF} {v(acc,16)}, {A}, {B}, {'0' if first else v(acc,16)}")
        if i % 2 == 0 and i + 1 < len(steps):
            r2 = RINGA + 4 * ((i + 1) % NRING); g[0].extra = [('a', r2 + x) for x in range(4)]
        groups.append(g + (rds[i + ahead] if i + ahead < len(steps) else []))
    return flat(rds[:ahead]), groups

MAP1 = [f"""s_and_b32 s{sT}, s{sA}, 3
s_lshl_b32 s{sT}, s{sT}, 2
s_and_b32 s{sD}, s{sB}, 3
s_add_u32 s{sT}, s{sT}, s{sD}
s_lshr_b32 s{sP}, s{sA}, 2
s_lshl_b32 s{sH}, s{sP}, 3
s_lshr_b32 s{sD}, s{sB}, 2
s_add_u32 s{sH}, s{sH}, s{sD}
s_cmp_eq_u32 s{sD}, 7
s_cselect_b32 s{sD}, 3, s{sD}
s_lshl_b32 s{sKX}, s{sD}, 7
""",
f"""s_lshl_b32 s{sT}, s{sA}, 1
s_lshr_b32 s{sD}, s{sB}, 4
s_add_u32 s{sT}, s{sT}, s{sD}
s_mov_b32 s{sH}, s{sCt}
s_and_b32 s{sD}, s{sH}, 7
s_cmp_eq_u32 s{sD}, 7
s_cselect_b32 s{sD}, 3, s{sD}
s_lshl_b32 s{sKX}, s{sD}, 7
""",
f"""s_mov_b32 s{sT}, s{sCt}
s_lshl_b32 s{sH}, s{sA}, 1
s_lshr_b32 s{sD}, s{sB}, 4
s_add_u32 s{sH}, s{sH}, s{sD}
s_and_b32 s{sD}, s{sH}, 7
s_mul_i32 s{sD}, s{sD}, 3
s_mul_i32 s{sP}, s{sD}, 37
s_lshr_b32 s{sP}, s{sP}, 8
s_mul_i32 s{sP}, s{sP}, 7
s_sub_u32 s{sD}, s{sD}, s{sP}
s_lshl_b32 s{sKX}, s{sD}, 7
"""][opt("map1", 0)]
if DIAG: I("s_memrealtime s[78:79]")
I(f"""s_cmp_ge_u32 s2, 256
s_cbranch_scc1 L_end
s_load_dwordx2 s[8:9], s[0:1], 0
s_load_dwordx2 s[12:13], s[0:1], 8
s_load_dwordx2 s[16:17], s[0:1], 16
s_load_dwordx2 s[20:21], s[0:1], 24
s_load_dwordx2 s[24:25], s[0:1], 40
s_load_dwordx2 s[28:29], s[0:1], 48
s_load_dwordx2 s[32:33], s[0:1], 56
s_load_dwordx2 s[36:37], s[0:1], 72
s_getpc_b64 s[76:77]
v_and_b32 v1, 63, v0
v_lshrrev_b32 v2, 6, v0
s_and_b32 s{sA}, s2, 7
v_readfirstlane_b32 s{sW}, v2
s_lshr_b32 s{sB}, s2, 3
s_and_b32 s{sCt}, s{sB}, 15
v_lshlrev_b32 v3, 4, v1
v_lshl_add_u32 v3, v2, 6, v3
v_lshl_add_u32 v3, v2, 4, v3
v_add_u32 v3, s{sCt}, v3
v_lshlrev_b32 v3, 7, v3
s_and_b32 s76, s76, 0xffffff00
s_mov_b64 exec, 31
global_load_dword v236, v3, s[76:77]
s_mov_b64 exec, -1
{MAP1}
s_mov_b32 s10, 1835008
s_mov_b32 s11, 0x20000
v_lshrrev_b32 v2, 3, v1
v_mul_u32_u24 v244, 896, v2
v_lshrrev_b32 v2, 4, v1
v_and_b32 v8, 7, v1
v_xor_b32 v2, v2, v8
v_lshl_add_u32 v244, v2, 4, v244
v_xor_b32 v245, 64, v244
v_add_u32 v245, {7168-1024}, v245
v_add_u32 v246, {2*(7168-1024)}, v244
v_add_u32 v247, {2*(7168-1024)}, v245
s_lshl_b32 s{sQ}, s{sT}, 2
s_add_u32 s{sQ}, s{sQ}, s{sW}
s_mul_i32 s{sQ}, s{sQ}, {32*896}
s_lshr_b32 s{sXO}, s{sW}, 1
s_add_u32 s{sXO}, s{sXO}, s{sW}
s_mul_i32 s{sXO}, s{sXO}, {XW}
s_waitcnt lgkmcnt(0)""")
stamp("start")
def xdma(g): return flat(dmag([244, 245, 246, 247], X, sQ, f"s{sKX+g}", sXO, 4096*g, f"x{g}"))
P.add(xdma(0))
I(f"""s_mov_b32 s14, {0 if opt('abl',0)&8 else 1204224}
s_mov_b32 s15, 0x20000
v_and_b32 v8, 3, v1""")
def wtouch(mask16, dst):
    m = mask16 | (mask16 << 16)
    return mk(f"s_mov_b32 exec_lo, {hex(m)}\ns_mov_b32 exec_hi, {hex(m)}\nbuffer_load_dword v{dst}, v255, {WQKV}, 0 offen\ns_mov_b64 exec, -1")
def kxs(g): return mk(f"s_add_u32 s{sKX+g}, s{sKX+g-1}, 128\ns_cmp_ge_u32 s{sKX+g}, 896\ns_cselect_b32 s{sD}, 896, 0\ns_sub_u32 s{sKX+g}, s{sKX+g}, s{sD}")
NXE = opt("nxe", 2)
if opt("wtfirst", 1) and opt("wt0", 0): P.add(wtouch(opt("wt0", 0), 237))
for g in range(1, NXE): P.add(kxs(g) + xdma(g))
if not opt("wtfirst", 1) and opt("wt0", 0): P.add(wtouch(opt("wt0", 0), 237))
if opt("wsoff", 0): I(f"s_add_u32 s36, s36, {opt('wsoff', 0)}\ns_addc_u32 s37, s37, 0")
I(f"""s_mov_b32 s38, {WS_SIZE}
s_mov_b32 s39, 0x20000
s_mov_b32 s18, 25088
s_mov_b32 s19, 0x20000
s_mov_b32 s22, {0 if opt('abl',0)&4 else 401408}
s_mov_b32 s23, 0x20000
s_xor_b32 s{sHQ}, s{sH}, 1
v_mov_b32 v11, 0
v_lshlrev_b32 v6, 7, v1""")
I(f"buffer_load_dword v5, v11, {WS}, 0 offen sc1")
I(f"""s_lshl_b32 s{sD}, s2, 2
s_add_u32 s{sD}, s{sD}, s{sW}
s_lshl_b32 s{sD}, s{sD}, 9
s_and_b32 s{sCt}, s{sH}, 14
s_mul_i32 s{sCt}, s{sCt}, 1568
s_mul_i32 s{sP}, s{sW}, 896
s_add_u32 s{sCt}, s{sCt}, s{sP}
s_mov_b64 exec, 15
buffer_load_dword v238, v6, {WO}, s{sD} offen
s_mov_b64 exec, 127
buffer_load_dword v239, v6, {WPHI}, s{sCt} offen
s_mov_b64 exec, -1""")
for g in range(NXE, 7): P.add(kxs(g))
I(f"""s_lshl_b32 s{sT2}, s{sA}, 1
s_lshr_b32 s{sD}, s{sB}, 4
s_add_u32 s{sT2}, s{sT2}, s{sD}
s_and_b32 s{sRact}, s{sB}, 15
s_min_u32 s{sR}, s{sRact}, 13
s_mov_b32 s26, {0 if opt('abl',0)&1 else 1605632}
s_mov_b32 s27, 0x20000
s_mov_b32 s30, {0 if opt('abl',0)&2 else 1605632}
s_mov_b32 s31, 0x20000
s_mov_b32 s34, 1835008
s_mov_b32 s35, 0x20000
s_mov_b32 s64, 0
s_mov_b32 s65, -1
s_mov_b32 s{sONES}, 0x3f803f80
s_mov_b32 s{sMASK}, 0xbfffbfff
s_mov_b32 s{sHIM}, 0xffff0000
s_mov_b32 s{sSPIN}, 0
s_mov_b32 s80, 0
s_cmp_ge_u32 s{sR}, 7
s_cselect_b32 s{sU}, 1, 0
s_mul_i32 s{sA}, s{sU}, 7
s_sub_u32 s{sC}, s{sR}, s{sA}""")
sT3 = 67
if opt("map3", 0):
    I(f"""s_and_b32 s{sA}, s{sT2}, 12
s_and_b32 s{sD}, s{sT2}, 1
s_lshl_b32 s{sD}, s{sD}, 1
s_add_u32 s{sA}, s{sA}, s{sD}
s_add_u32 s{sT3}, s{sA}, s{sU}
s_bfe_u32 s{sA}, s{sT2}, 0x10001
s_mul_i32 s{sA}, s{sA}, 7
s_add_u32 s{sR}, s{sA}, s{sC}""")
else: I(f"s_mov_b32 s{sT3}, s{sT2}")
for g in range(7): I(f"s_mul_i32 s{sKW+g}, s{sKX+g}, {172032//128}")
I(f"""s_mul_i32 s{sWB}, s{sH}, 56
s_mul_i32 s{sD}, s{sW}, 43008
s_add_u32 s{sWB}, s{sWB}, s{sD}
s_mul_i32 s{sWQ}, s{sHQ}, 56
s_add_u32 s{sWQ}, s{sWQ}, s{sD}
s_add_u32 s{sWB}, s{sWB}, 896
s_lshl_b32 s{sWM}, s{sW}, 10
s_lshl_b32 s{sA}, s{sH}, 4
s_add_u32 s{sA}, s{sA}, s{sT}
s_mul_i32 s{sA}, s{sA}, 5120
s_add_u32 s{sA}, s{sA}, {WS_PART}
s_add_u32 s{sPST}, s{sA}, s{sWM}
s_lshl_b32 s{sD}, s{sW}, 8
s_add_u32 s{sA}, s{sA}, s{sD}
s_add_u32 s{sPCK}, s{sA}, 4096
s_lshl_b32 s{sA}, s{sT}, 2
s_add_u32 s{sA}, s{sA}, s{sW}
s_lshl_b32 s{sA}, s{sA}, 15
s_lshl_b32 s{sB}, s{sHQ}, 11
s_add_u32 s{sA}, s{sA}, s{sB}
s_add_u32 s{sOST}, s{sA}, {WS_O}
s_lshl_b32 s{sA}, s{sT2}, 2
s_lshl_b32 s{sB}, s{sU}, 1
s_add_u32 s{sA}, s{sA}, s{sB}
s_and_b32 s{sB}, s{sW}, 1
s_add_u32 s{sTILE}, s{sA}, s{sB}
s_mul_i32 s{sA}, s{sA}, {32*896}
s_lshl_b32 s{sB}, s{sC}, 7
s_add_u32 s{sA}, s{sA}, s{sB}
s_mul_i32 s{sD}, s{sW}, {16*896}
s_add_u32 s{sXRB}, s{sA}, s{sD}
s_mul_i32 s{sA}, s{sTILE}, {32*896}
s_add_u32 s{sA}, s{sA}, s{sB}
s_lshr_b32 s{sB}, s{sW}, 1
s_lshl_b32 s{sB}, s{sB}, 6
s_add_u32 s{sOUT}, s{sA}, s{sB}
s_mul_i32 s{sP}, s{sHQ}, {16*5120}
s_add_u32 s{sP}, s{sP}, {WS_PART}""")
WPK, WPQ, WPT = 192, 200, 208
vWPA, vWPB, vKVX, vIMW, vKA, vKB, vFPD, vFPC, vWO0, vWO1, vXRD0, vXRD1, vXRR, vWOR = range(128, 142)
I(f"""v_lshrrev_b32 v3, 5, v1
v_lshlrev_b32 v2, 4, v1
v_lshlrev_b32 v4, 2, v1
v_bfe_u32 v11, v1, 3, 2
v_lshl_add_u32 v11, v11, 2, v8
v_bfe_u32 v12, v1, 2, 1
v_mul_u32_u24 v12, 14, v12
v_min_u32 v13, 13, v11
v_add_u32 v13, v13, v12
v_lshlrev_b32 v13, 1, v13
v_mul_u32_u24 v14, 224, v3
v_add_u32 v{vWPA}, v13, v14
v_lshl_add_u32 v{vWPB}, v3, 20, v{vWPA}
v_add_u32 v12, v12, v11
v_cmp_gt_u32 vcc, 14, v11
v_lshrrev_b32 v7, 2, v1
v_mul_u32_u24 v7, 2688, v7
v_cndmask_b32 v12, 28, v12, vcc
v_and_b32 v13, 15, v12
v_lshlrev_b32 v13, 4, v13
v_lshrrev_b32 v12, 4, v12
v_lshl_add_u32 v13, v12, 3, v13
v_lshl_add_u32 v13, v3, 8, v13
v_add_u32 v{vKVX}, {L_KVX}, v13
v_lshlrev_b32 v11, 4, v8
v_min_u32 v11, 40, v11
v_add_u32 v7, v7, v11
v_and_b32 v9, 31, v1
v_lshlrev_b32 v240, 7, v9
v_bfe_u32 v11, v1, 1, 3
v_xor_b32 v11, v11, v3
v_lshl_add_u32 v240, v11, 4, v240
v_add_u32 v240, s{sXO}, v240
v_xor_b32 v241, 32, v240
v_xor_b32 v242, 64, v240
v_xor_b32 v243, 96, v240
v_mov_b32 v250, 0
v_mov_b32 v251, 0
s_lshl_b32 s{sA}, s{sW}, 5
v_add_u32 v10, s{sA}, v9
v_mul_u32_u24 v10, 208, v10
v_mul_u32_u24 v11, 96, v3
v_add_u32 v{vIMW}, v10, v11
v_lshrrev_b32 v10, 4, v1
v_bfe_u32 v15, v1, 2, 2
v_lshl_add_u32 v10, v10, 3, v15
v_mul_u32_u24 v10, 208, v10
v_and_b32 v11, 1, v1
v_mul_u32_u24 v11, 96, v11
v_add_u32 v10, v10, v11
v_bfe_u32 v11, v1, 1, 1
v_lshl_add_u32 v10, v11, 3, v10
v_add_u32 v{vKB}, {L_IMG}, v10
s_lshl_b32 s{sA}, s{sW}, 4
v_add_u32 v{vKA}, s{sA}, v{vKB}
v_add_u32 v{vFPD}, s{sWM}, v2
s_lshl_b32 s{sD}, s{sW}, 8
s_add_u32 s{sD}, s{sD}, 4096
v_add_u32 v{vFPC}, s{sD}, v4
v_lshrrev_b32 v12, 3, v1
v_mul_u32_u24 v14, 896, v12
v_and_b32 v13, 7, v1
v_xor_b32 v12, v12, v13
v_lshl_add_u32 v{vXRD0}, v12, 4, v14
v_add_u32 v{vXRD1}, {7168-1024}, v{vXRD0}
v_bfe_u32 v12, v1, 4, 1
v_lshlrev_b32 v11, 2, v12
v_xor_b32 v11, v11, v13
v_lshl_add_u32 v{vWO0}, v11, 4, v14
v_add_u32 v{vWO1}, {7168-1024}, v{vWO0}
s_and_b32 s{sA}, s{sW}, 1
s_lshl_b32 s{sA}, s{sA}, 12
s_add_u32 s{sA}, s{sA}, {L_XCH}
v_lshlrev_b32 v10, 7, v9
v_lshl_add_u32 v10, v3, 3, v10
v_add_u32 v10, s{sA}, v10
s_lshr_b32 s{sA}, s{sW}, 1
s_lshl_b32 s{sB}, s{sA}, 2
v_xor_b32 v13, s{sB}, v13
v_lshl_add_u32 v{vXRR}, v13, 4, v10
v_mad_u32_u24 v10, v3, 14, v15
v_lshlrev_b32 v10, 7, v10
v_bfe_u32 v13, v1, 3, 1
v_xor_b32 v13, v13, v3
v_xor_b32 v13, s{sA}, v13
v_lshl_add_u32 v10, v13, 6, v10
v_lshl_add_u32 v10, v12, 5, v10
v_lshl_add_u32 v10, v8, 3, v10
s_mul_i32 s{sA}, s{sA}, {8*28*128}
s_add_u32 s{sA}, s{sA}, {L_WO}
v_add_u32 v{vWOR}, s{sA}, v10
v_lshl_add_u32 v11, v3, 3, v15
v_lshlrev_b32 v11, 6, v11
v_lshl_add_u32 v12, v12, 2, v8
v_cmp_lt_u32 vcc, 5, v12
v_xor_b32 v13, 1, v12
s_mul_i32 s{sA}, s{sH}, 1568
s_mul_i32 s{sB}, s{sHQ}, 1568
v_cndmask_b32 v12, v12, v13, vcc
v_lshl_add_u32 v11, v12, 3, v11
v_add_u32 v13, {L_WK}, v11""")
I(f"""v_bfe_u32 v10, v1, 2, 1
v_bfe_u32 v14, v1, 4, 1
v_lshl_add_u32 v10, v14, 1, v10
v_cmp_eq_u32 vcc, v10, v3
v_and_b32 v10, 1, v1
v_lshlrev_b32 v10, 4, v10
v_mov_b32 v14, 0x3f80
v_lshlrev_b32 v10, v10, v14
v_cndmask_b32 v10, 0, v10, vcc
v_bfe_u32 v14, v1, 3, 1
v_bfe_u32 v15, v1, 1, 1
v_lshl_add_u32 v14, v14, 1, v15""")
for q in range(4): I(f"v_cmp_eq_u32 vcc, {q}, v14\nv_cndmask_b32 v15, 0, v10, vcc\nv_accvgpr_write_b32 a{220+q}, v15")
stamp("setup done", "p")
def wphi(dst, tmp, so):
    q = []
    for t in range(2):
        for j in range(8):
            d = 16 * t + 8 * (j >> 2) + (j & 3)
            av = vWPB if (t == 1 and j >= 4) else vWPA
            r = (dst if j % 2 == 0 else tmp) + 4 * t + j // 2
            op = "buffer_load_short_d16" if j % 2 == 0 else "buffer_load_short_d16_hi"
            q += mk(f"{op} v{r}, v{av}, {WPHI}, s{so} offen offset:{d*56}")
    return q
def wkdma(g): return flat(dmag([7], WQKV, sWB, f"s{sKW+g}", sWM, L_WK + 4096*g, f"wk{g}"))
def wvdma(g): return flat(dmag([9], WQKV, sWB, f"s{sKW+g}", sWM, L_WV + 4096*g, f"wv{g}"))
def wqdma(g): return flat(dmag([7], WQKV, sWQ, f"s{sKW+g}", sWM, L_WQ + 4096*g, f"wq{g}"))
I("v_add_u32 v9, 896, v7")
XF = 16
NX0 = opt("nx0", 4)
if opt("wt1", 0): P.add(wtouch(opt("wt1", 0), 249))
for g in range(NXE, NX0): P.add(xdma(g))
pend = [xdma(g) for g in range(NX0, 7)]
wkl = [wkdma(g) for g in range(7)]
if opt("wt2", 0): pend[-1] = pend[-1] + wtouch(opt("wt2", 0), 248)
pend.append(wkl.pop(0) + wphi(WPK, WPT, sA))
pend.append(wkl.pop(0) + wphi(WPQ, WPT+8, sB))
while len(pend) < 7: pend.append(wkl.pop(0))
def xrd(g): return flat([mk(f"ds_read_b128 {v(XF+16*g+4*e,4)}, v{240+e} offset:{4096*g}") for e in range(4)])
P.wait("x0"); P.add(xrd(0))
for g in range(7):
    if pend: P.add(pend.pop(0))
    if g + 1 < 7: P.wait(f"x{g+1}"); P.add(xrd(g + 1))
    for i in range(16):
        r = XF + 16*g + i
        I(f"v_dot2c_f32_bf16 v250, s{sONES}, v{r}\nv_dot2c_f32_bf16 v251, v{r}, v{r}")
    if g == 0: stamp("x0 done", "p")
for x_ in pend: P.add(x_)
stamp("x stats done", "mp")
I(f"""v_permlane32_swap_b32 v250, v251
v_or_b32 v5, 1, v5
s_mov_b32 s{sA}, 0x9E3779B5
v_add_f32 v250, v250, v251
v_mul_f32 v250, {fhex(-1/448)}, v250
v_mov_b32 v251, v250
v_mul_lo_u32 v5, v5, s{sA}
s_mov_b32 s{sA}, 0x3f80
v_permlane32_swap_b32 v250, v251
s_mov_b32 s{sB}, 0x3f800000""")
fin = mk(f"""v_fma_f32 v251, -v250, v250, -v251
v_max_f32 v251, 0, v251
v_add_f32 v251, 0x3727c5ac, v251
v_rsq_f32 v251, v251
s_lshl_b32 s{sQ}, s{sC}, 7
s_mul_i32 s{sD}, s{sW}, {16*896}
v_mul_f32 v252, 0x3fb8aa3b, v251
v_mul_f32 v253, 0xbfb8aa3b, v251
s_add_u32 s{sQ}, s{sQ}, s{sD}
s_lshl_b32 s{sXO}, s{sW}, 11""")
if opt("noid", 1): fin = [mk(f"s_cmp_ge_u32 s{sRact}, 14\ns_cselect_b32 s22, 0, s22")] + fin
ACK = 144; ACV = 160; PK = 176; IMG = 208; TMP = 232
def norm(t):
    q = Prog(); tb = TMP + 8 * (t & 1)
    for i in range(4):
        r = XF + 4 * t + i
        q.I(f"v_dot2_f32_bf16 v{tb+2*i}, v{r}, s{sA}, v250\nv_dot2_f32_bf16 v{tb+2*i+1}, v{r}, s{sB}, v250")
    return q.items
def normc(t):
    tb = TMP + 8 * (t & 1)
    return flat([mk(f"v_cvt_pk_bf16_f32 v{XF+4*t+i}, v{tb+2*i}, v{tb+2*i+1}") for i in range(4)])
def l2t(srd, k, dst):
    return mk(f"""s_lshr_b32 s{sCt}, s2, 3
s_lshl_b32 s{sCt}, s{sCt}, 2
s_add_u32 s{sCt}, s{sCt}, s{sW}
s_mul_i32 s{sCt}, s{sCt}, {98*128}
s_mov_b32 exec_hi, 0x1ffff
s_add_u32 s{sCt}, s{sCt}, {k*49*128}
buffer_load_dword v{dst}, v6, {srd}, s{sCt} offen
s_mov_b32 exec_hi, -1""")
L2A, L2B = opt("l2a", -1), opt("l2b", -1)
ns = norm(0)
for t in range(1, 28): ns += norm(t) + normc(t - 1)
ns += normc(27)
NBAR = opt("nbar", 100)
wvl = [wvdma(k) for k in range(7)]
if opt("loop2", 0):
    I("s_mov_b32 s80, 0\nL_lp2:\ns_mov_b32 s101, s100\ns_memtime s[78:79]\ns_waitcnt lgkmcnt(0)\ns_mov_b32 s99, s78")
    P.add([Ins(x.text) for x in ns])
    I("s_memtime s[78:79]\ns_waitcnt lgkmcnt(0)\ns_sub_u32 s100, s78, s99\ns_add_u32 s100, s100, s88\ns_add_u32 s80, s80, 1\ns_cmp_lt_u32 s80, 2\ns_cbranch_scc1 L_lp2")
    nstamp[0] = 14
P.add(sprinkle(ns[:NBAR], wkl, 0, opt("wkstep", 30)))
I("s_barrier")
NWV0 = opt("nwv0", 3)
P.add(sprinkle(ns[NBAR:], [wvl.pop(0) for _ in range(NWV0)], opt("wv0", 60), opt("wvstep", 60)))
P.wait(*[f"wk{k}" for k in range(7)]); I("s_barrier")
stamp("wk landed", "p")
AH = 6
pro, gk = gemm_lds([(13, 1024*t, 1024*t + 256, (XF + 4*t, ACK, t == 0, False)) for t in range(28)], AH)
P.add(pro)
S = Sched(gk)
S.spread(wvl, 0, opt("wve", 28))
for k, ps in enumerate((L2A, L2B)):
    if 0 <= ps < 28: S.at(ps, l2t(W1, k, 248 + k))
S.spread(fin + flat([mk(f"v_or_b32 v{WPK+q}, v{WPK+q}, v{WPT+q}\nv_or_b32 v{WPQ+q}, v{WPQ+q}, v{WPT+8+q}") for q in range(8)]), 2, 26)
P.add(S.emit())
def phi_pre(acc, wp):
    q = Prog()
    for i in range(8): q.I(f"v_cvt_pk_bf16_f32 v{acc+i}, v{acc+2*i}, v{acc+2*i+1}")
    q.I(f"{MF} {v(PK,16)}, {v(wp,4)}, {v(acc,4)}, 0\n{MF} {v(PK,16)}, {v(wp+4,4)}, {v(acc+4,4)}, {v(PK,16)}")
    return q.items
stamp("k gemm done", "mp")
wql = [wqdma(k) for k in range(7)]
P.add(wql.pop(0))
P.add(phi_pre(ACK, WPK))
imw = flat([mk(f"ds_write_b128 v{vIMW}, {v(IMG+4*i,4)} offset:{L_IMG+16*i}") for i in range(3)]) + mk(f"ds_write_b64 v{vIMW}, {v(IMG+12,2)} offset:{L_IMG+48}")
touch = mk(f"""s_mul_i32 s{sA}, s2, {52*128}
s_mul_i32 s{sB}, s{sW}, {13*128}
s_add_u32 s{sA}, s{sA}, s{sB}
s_mov_b64 exec, 0x1fff
buffer_load_dword v255, v6, {W1}, s{sA} offen
buffer_load_dword v254, v6, {W2}, s{sA} offen
s_mov_b64 exec, -1""")
smk = sprinkle(softmax(PK, TMP, IMG, True), [wql.pop(0) for _ in range(opt("nwq0", 3))], 10, opt("wqs", 40))
WEAVE = opt("weave", 0)
pro, gv = gemm_lds([(11, L_WV + 1024*t, L_WV + 1024*t + 256, (XF + 4*t, ACV, t == 0, False)) for t in range(28)], AH)
S = Sched(gv)
if not WEAVE:
    P.add(smk)
    P.wait(*[f"wv{k}" for k in range(7)]); I("s_barrier")
    stamp("softmax k done", "p")
    P.add(pro)
    S.spread(imw, 2, 10)
else:
    smf = softmax(PK, TMP, IMG, 2)
    n0 = next(i for i, x in enumerate(smf) if x.op == "v_exp_f32")
    P.wait(*[f"wv{k}" for k in range(4)]); I("s_barrier")
    P.add(pro)
    P.add(smf[:n0])
    stamp("softmax k done", "p")
    S.spread(smf[n0:] + imw, 0, 28)
    S.at(15 - AH, [WaitTag(["wv4", "wv5", "wv6"])] + mk("s_barrier"), 1.0)
    wql = [wqdma(k) for k in range(1, 7)]
wo_l = flat([dmag([vWO0, vWO1], WO, sQ, i*64*896, sXO, L_WO + 8192*i, "wo", sDM) for i in range(7)] + [dmag([vXRD0, vXRD1], X, sXRB, 0, sXO, L_XCH, "wo", sDM)])
S.spread(wql, 0, opt('wqe', 14))
if L2A >= 0: touch = [x for x in touch if W1 not in x.text]
tlb = []
if opt("tlb", 0) & 1: tlb += mk(f"s_mov_b64 exec, 1\nbuffer_load_dword v248, v6, {OUT}, s{sOUT} offen\ns_mov_b64 exec, -1")
if opt("tlb", 0) & 2: tlb += mk(f"v_lshlrev_b32 v249, 20, v1\ns_mov_b64 exec, 0xffff\nbuffer_load_dword v249, v249, {WS}, 0 offen offset:4092\ns_mov_b64 exec, -1")
if tlb: S.at(opt("tlbp", 13), tlb)
if opt("touch", 1): S.at(15, touch)
for k, ps in enumerate((L2A, L2B)):
    if 200 <= ps < 228: S.at(ps - 200, l2t(W1, k, 248 + k))
S.spread([wo_l.pop(0) for _ in range(2*opt("nwo0", 2))], 17, 28)
P.add(S.emit())
for k in range(0, 16, 2): I(f"v_pk_mul_f32 {v(ACV+k,2)}, {v(ACV+k,2)}, v[250:251] op_sel:[0,1] op_sel_hi:[1,1]")
I(f"v_cndmask_b32 v{ACV+12}, v{ACV+12}, 1.0, {sHI}")
for i in range(8): I(f"v_cvt_pk_bf16_f32 v{IMG+16+i}, v{ACV+2*i}, v{ACV+2*i+1}")
for i in range(4, 6): I(f"ds_write_b128 v{vIMW}, {v(IMG+4*i,4)} offset:{L_IMG+16*i}")
P.wait("wq0", "wq1", "wq2", "wq3")
I("s_waitcnt lgkmcnt(0)\ns_barrier")
stamp("img written", "p")
KA = 144; KBv = 208; KD = 176
for k in range(4):
    for u in range(2):
        I(f"ds_read_b64_tr_b16 {v(KA+4*k+2*u,2)}, v{vKA} offset:{(32*k+4*u)*208}")
    for nu in range(2):
        for u in range(2):
            I(f"ds_read_b64_tr_b16 {v(KBv+8*k+4*nu+2*u,2)}, v{vKB} offset:{(32*k+4*u)*208+64+16*nu}")
proq, gq = gemm_lds([(11, L_WQ + 1024*t, L_WQ + 1024*t + 256, (XF + 4*t, ACV, t == 0, False)) for t in range(28)], AH)
for k in range(4):
    for nu in range(2):
        I(f"v_mfma_f32_16x16x32_bf16 {v(KD+4*nu,4)}, {v(KA+4*k,4)}, {v(KBv+8*k+4*nu,4)}, {'0' if k == 0 else v(KD+4*nu,4)}")
P.add(proq[:8])
for i in range(4): I(f"v_cvt_pk_bf16_f32 v{KD+8+i}, v{KD+2*i}, v{KD+2*i+1}")
I(f"buffer_store_dwordx4 {v(KD+8,4)}, v2, {WS}, s{sPST} offen sc1")
I(f"v_xor_b32 v10, v{KD+8}, v5")
I(f"buffer_store_dword v10, v4, {WS}, s{sPCK} offen sc1")
if GATE & 1: P.add(flag_store(16))
P.add(proq[8:])
stamp("partial stored", "mp")
sW1B, sW1M, sW2E, sW2L = 40, 41, 42, 43
set2 = mk(f"""v_lshrrev_b32 v10, 4, v1
v_mul_u32_u24 v12, 3584, v10
v_lshlrev_b32 v10, 2, v10
v_and_b32 v13, 15, v1
v_xor_b32 v10, v10, v13
v_lshl_add_u32 v12, v10, 4, v12
v_add_u32 v13, {4*3584-1024}, v12
v_add_u32 v14, {2*(4*3584-1024)}, v12
v_add_u32 v15, {3*(4*3584-1024)}, v12
s_lshl_b32 s{sW1B}, s{sR}, 8
s_mul_i32 s{sD}, s{sW}, {16*3584}
s_add_u32 s{sW1B}, s{sW1B}, s{sD}
s_lshl_b32 s{sW1M}, s{sW}, 12
s_lshr_b32 s{sA}, s{sW}, 1
s_lshl_b32 s{sA}, s{sA}, 2
s_andn2_b32 s{sB}, 1, s{sW}
s_add_u32 s{sA}, s{sA}, s{sB}
s_lshl_b32 s{sB}, s{sU}, 1
s_add_u32 s44, s{sA}, s{sB}
s_xor_b32 s45, s44, 2
s_lshl_b32 s{sD}, s{sC}, 7
s_mul_i32 s{sW2E}, s44, {32*896}
s_add_u32 s{sW2E}, s{sW2E}, s{sD}
s_mul_i32 s{sW2L}, s45, {32*896}
s_add_u32 s{sW2L}, s{sW2L}, s{sD}
""")
vW2 = [vWO0, vWO1, 128, 129]
sSCR, sBIG = 46, 47
NRL = opt("nrl", 3)
RAWS = [2, 3] + list(range(7, 7 + NRL))
def UA(j): return 16*j
def w2slot(j): return (sSCR, 4096*{0:0, 1:1, 2:0, 3:1, 4:0, 5:1, 6:2}[j], 254) if j < 7 else (sBIG, 4096*(j - 7), 252)
def w2dma(j):
    mb, mo, _ = w2slot(j)
    return dmag(vW2, W2, sW2E if j < 7 else sW2L, (j%7)*256*896, mb, mo, f"w2_{j}", sDM)
def w2raw(j):
    ch = [mk(f"buffer_load_dwordx4 {a_(UA(j)+4*q,4)}, v{vW2[q]}, {W2}, s49 offen offset:{1024*q}") for q in range(4)]
    ch[0] = mk(f"s_add_u32 s49, s{sW2E if j < 7 else sW2L}, {(j%7)*256*896}") + ch[0]
    return ch
def w2rd(j):
    _, mo, av = w2slot(j)
    if j in RAWS: out = [mk(f"ds_write_b128 v{131 if j >= 7 else 134}, {a_(UA(j)+4*q,4)} offset:{mo+1024*q}") for q in range(4)]
    else: out = [[WaitTag([f"w2_{j}"])]]
    for e in range(2):
        for mu in range(2):
            for u in range(2): out.append(mk(f"ds_read_b64_tr_b16 {a_(UA(j)+8*e+4*mu+2*u,2)}, v{av+mu} offset:{mo+2048*e+1024*u}"))
    return out
raw = w2raw(2) + w2raw(3)
if opt("noid", 1): set2 = [mk(f"s_cmp_ge_u32 s{sRact}, 14\ns_cselect_b32 s26, 0, s26")] + set2
set2 += mk(f"v_add_u32 v128, {2*(7168-1024)}, v{vWO0}\nv_add_u32 v129, {3*(7168-1024)}, v{vWO0}")
S = Sched(gq)
S.spread(wo_l, 0, opt("woe", 28))
S.spread(set2, 2, 18)
S.spread([raw.pop(0) for _ in range(opt("rawa", 0))], 20, 28)
G0 = gate("g0", vPO, vPF)
if GATE & 1: S.at(opt("g0", 14), G0.load(0))
S.at(15 - AH, [WaitTag(["wq4", "wq5", "wq6"])] + mk("s_barrier"), 1.0)
P.add(S.emit())
stamp("q gemm done", "p")
G = 16; GC = 80; SA = 96
FP = Fetch("fp", [([f"s_add_u32 s{sCt}, s{sP}, {5120*T}\nbuffer_load_dwordx4 {v(G+4*T,4)}, v{vFPD}, {WS}, s{sCt} offen sc1\nbuffer_load_dword v{GC+T}, v{vFPC}, {WS}, s{sCt} offen sc1"],
                   [G+4*T, GC+T]) for T in range(16)])
P.add(phi_pre(ACV, WPQ))
if GATE & 1: P.add(G0.check(0, 0))
I("s_barrier")
PQ = 208
P.add(sprinkle(softmax(PK, TMP, PQ, True), [FP.load(T) for T in range(16)], opt("fp0", 0), opt("fpstep", 8)))
stamp("softmax q done", "p")
w1_l = flat([dmag([12, 13, 14, 15], W1, sW1B, i*64*3584, sW1M, 16384*i, "w1", sDM) for i in range(7)])
def fpb(b):
    t = []
    for k, T in enumerate(range(4*b, 4*b+4)):
        t.append(f"v_bitop3_b32 v{10 if k == 0 else 9}, v{G+4*T}, v{GC+T}, v5 {X3}" + ("" if k == 0 else "\nv_or_b32 v10, v10, v9"))
    return "\n".join(t) + "\nv_cmp_ne_u32 vcc, 0, v10"
RI = TAIL.I if opt("ool", 1) else I
if not opt("ool", 1): I("s_branch L_fp_go")
RI("L_fp_retry:" + ("\ns_add_u32 s80, s80, 1" if DIAG else ""), unc=True)
for b in range(4):
    RI(fpb(b) + f"\ns_cbranch_vccz L_fp_k{b}\n" + "\n".join(FP.pieces[T][0][0] for T in range(4*b, 4*b+4)) + f"\nL_fp_k{b}:", unc=True)
RI(GUARD, unc=True)
if opt("ool", 1): RI("s_branch L_fp_go", unc=True)
I("L_fp_go:")
I(fpb(0) + "\ns_cbranch_vccnz L_fp_retry")
S = Sched([mk(f"{MF} {v(SA,16)}, a[220:223], {v(G+4*T,4)}, {'0' if T == 0 else v(SA,16)}") for T in range(16)])
for b in range(1, 4): S.spread(mk(fpb(b) + "\ns_cbranch_vccnz L_fp_retry"), 4*b - 3, 4*b)
S.spread([w1_l.pop(0) for _ in range(opt("nw1a", 2))], 12, 16)
P.add(S.emit())
I(f"v_add_u32 v9, {L_KVX}, v{vFPD}")
for i in range(4): I(f"v_cvt_pk_bf16_f32 v{SA+8+i}, v{SA+2*i}, v{SA+2*i+1}")
I(f"ds_write_b128 v9, {v(SA+8,4)}\ns_waitcnt lgkmcnt(0)\ns_barrier")
stamp("kv summed", "mp")
KVA = 32; OD = 48
for q in range(7): I(f"ds_read_b64 {v(KVA+2*q,2)}, v{vKVX} offset:{512*q}")
P.add(w1_l.pop(0))
for s in range(3):
    I(f"{MF} {v(OD,16)}, {v(KVA+4*s,4)}, {v(PQ+4*s,4)}, {'0' if s == 0 else v(OD,16)}")
    if s == 1: P.add(w1_l.pop(0))
I(f"v_mfma_f32_32x32x8_bf16 {v(OD,16)}, {v(KVA+12,2)}, {v(PQ+12,2)}, {v(OD,16)}")
I(f"""s_lshl_b32 s{sP}, s{sTILE}, 15
s_lshr_b32 s{sB}, s{sW}, 1
s_lshl_b32 s{sB}, s{sB}, 14
s_add_u32 s{sP}, s{sP}, s{sB}
s_add_u32 s{sP}, s{sP}, {WS_O}
s_add_u32 s{sA}, s{sW1M}, {L_XCH}
v_add_u32 v132, s{sA}, v2
v_xor_b32 v133, 8192, v132
v_xor_b32 v9, 64, v{vWOR}
v_and_b32 v7, 31, v1
v_mul_u32_u24 v7, 896, v7
v_add_f32 v{OD+14}, 0x358637bd, v{OD+14}
v_rcp_f32 v{OD+14}, v{OD+14}
v_lshl_add_u32 v7, v3, 4, v7""")
for k in range(0, 14, 2): I(f"v_pk_mul_f32 {v(OD+k,2)}, {v(OD+k,2)}, {v(OD+14,2)} op_sel_hi:[1,0]")
for k in range(4): I(f"v_cvt_pk_bf16_f32 v{64+k}, v{OD+2*k}, v{OD+2*k+1}")
I(f"buffer_store_dwordx4 v[64:67], v2, {WS}, s{sOST} offen sc1")
for k in range(4, 7): I(f"v_cvt_pk_bf16_f32 v{64+k}, v{OD+2*k}, v{OD+2*k+1}")
I(f"""v_bitop3_b32 v71, v64, v5, s{sMASK} bitop3:0x28
v_and_b32 v6, s{sMASK}, v5
buffer_store_dwordx4 v[68:71], v2, {WS}, s{sOST} offen offset:1024 sc1""")
if GATE & 2: P.add(flag_store(7))
stamp("o stored", "mo")
P.wait("wo")
I(f"s_cmp_ge_u32 s{sRact}, 14\ns_cbranch_scc1 L_idle\ns_barrier")
wor = []
for s in range(16):
    hh, e = s >> 1, s & 1
    for k, av in ((0, vWOR), (1, 9)):
        for u in range(2):
            wor += mk(f"ds_read_b64_tr_b16 {a_(128+8*s+4*k+2*u,2)}, v{av} offset:{(28*hh+8*e+4*u)*128}")
XR = 224
xrr = []
for i in range(4): xrr += mk((f"v_xor_b32 v10, {16*i}, v{vXRR}\n" if i else "") + f"ds_read_b64 {v(XR+2*i,2)}, v{10 if i else vXRR}")
P.add(xrr)
G1 = gate("g1", vPO, vPF)
nb_ = min(opt("nw1b", 12), len(w1_l) - 8)
wor = sprinkle(wor, [w1_l.pop(0) for _ in range(nb_)], 0, opt("w1bs", 5))
if GATE & 2: wor = sprinkle(wor, [G1.load(0)], opt("g1", 40), 1)
P.add(wor)
OB = 16
FO = Fetch("fo", [([f"s_add_u32 s{sCt}, s{sP}, {2048*hh}\nbuffer_load_dwordx4 {v(OB+8*hh,4)}, v2, {WS}, s{sCt} offen sc1\nbuffer_load_dwordx4 {v(OB+8*hh+4,4)}, v2, {WS}, s{sCt} offen offset:1024 sc1"],
                   [OB+8*hh, OB+8*hh+7]) for hh in range(8)], masked=True, nre=opt('reo', 2))
stamp("pre o fetch", "o")
AO, AT = 80, 96
pre2 = []
for i in range(8): pre2 += mk(f"v_lshlrev_b32 v{112+2*i}, 16, v{XR+i}\nv_and_b32 v{113+2*i}, s{sHIM}, v{XR+i}")
for s in range(1, 16, 2): pre2 += mk(f"v_accvgpr_write_b32 a{128+8*s+3}, 0\nv_accvgpr_write_b32 a{128+8*s+7}, 0")
if GATE & 2:
    P.add(pre2); P.add(G1.check(0, 0))
    stamp("gate1", "o")
    for hh in range(8): P.add(FO.load(hh))
else: P.add(sprinkle(pre2, [FO.load(hh) for hh in range(8)], 0, 4))
I("s_waitcnt lgkmcnt(0)\ns_barrier")
stamp("fo issued", "o")
g2 = []
for s in range(16):
    for k, acc in ((1, AT), (0, AO)):
        c = ("0" if k else v(112,16)) if s == 0 else v(acc,16)
        g2.append(mk(f"{MF} {v(acc,16)}, {a_(128+8*s+4*k,4)}, {v(OB+4*s,4)}, {c}"))
set3 = mk(f"""s_mul_i32 s{sSCR}, s{sW}, 12288
s_mul_i32 s{sBIG}, s{sW}, 28672
v_add_u32 v131, s{sBIG}, v2
s_lshl_b32 s{sB}, s{sC}, 1
s_lshr_b32 s{sD}, s{sW}, 1
s_add_u32 s{sB}, s{sB}, s{sD}
s_mul_i32 s{sA}, s{sTILE}, 14
s_add_u32 s{sB}, s{sB}, s{sA}
s_mul_i32 s{sPST}, s{sB}, 2560
s_add_u32 s{sPST}, s{sPST}, {WS_H}
s_lshr_b32 s48, s{sW}, 1
s_nop 0
v_bfe_u32 v9, v1, 2, 2
v_lshl_add_u32 v240, v3, 2, v9
v_lshlrev_b32 v254, 7, v240
v_lshlrev_b32 v240, 8, v240
v_xor_b32 v9, s{sW}, v9
v_lshl_add_u32 v240, v9, 6, v240
v_bfe_u32 v9, v1, 4, 1
v_lshlrev_b32 v9, 5, v9
v_lshl_add_u32 v9, v8, 3, v9
v_add_u32 v240, v240, v9
v_add_u32 v254, v254, v9
v_bfe_u32 v9, v1, 3, 1
v_xor_b32 v9, s48, v9
v_lshl_add_u32 v254, v9, 6, v254
s_add_u32 s{sSCR}, s{sSCR}, {L_SCR}
v_add_u32 v252, s{sBIG}, v254
v_xor_b32 v253, 64, v252
v_add_u32 v254, s{sSCR}, v254
v_add_u32 v134, s{sSCR}, v2
v_xor_b32 v255, 64, v254
v_xor_b32 v241, 64, v240
v_xor_b32 v242, 128, v240
v_xor_b32 v243, 192, v240""") + flat([mk(f"v_add_u32 v{244+m}, 57344, v{240+m}") for m in range(4)])
P.add(sprinkle(set3[:14], [w1_l.pop(0) for _ in range(opt("nw1c", 4))], 0, 5))
P.add(FO.check(0, 7))
stamp("fo0", "o")
S = Sched(g2)
for hh in range(1, 8): S.spread(FO.checkc(hh, 7), 4*hh - 3, 4*hh)
S.spread(w1_l + [raw.pop(0) for _ in range(min(len(raw), opt("rawb", 4)))], 0, 32)
S.spread(set3[14:], 0, 30)
P.add(S.emit())
stamp("p2 gemm done", "o")
for i in range(4): I(f"ds_write_b128 v132, {v(AT+4*i,4)} offset:{1024*i}")
I("v_mov_b32 v112, 0\nv_mov_b32 v113, 0\ns_waitcnt lgkmcnt(0)\ns_barrier")
for i in range(4): I(f"ds_read_b128 {v(AT+4*i,4)}, v133 offset:{1024*i}")
HR = XR
for k in range(0, 8, 2): I(f"v_pk_add_f32 {v(AO+k,2)}, {v(AO+k,2)}, {v(AT+k,2)}")
for i in range(4): I(f"v_cvt_pk_bf16_f32 v{HR+i}, v{AO+2*i}, v{AO+2*i+1}")
I(f"buffer_store_dwordx4 {v(HR,4)}, v2, {WS}, s{sPST} offen sc1")
for k in range(8, 16, 2): I(f"v_pk_add_f32 {v(AO+k,2)}, {v(AO+k,2)}, {v(AT+k,2)}")
for i in range(4, 8): I(f"v_cvt_pk_bf16_f32 v{HR+i}, v{AO+2*i}, v{AO+2*i+1}")
I(f"buffer_store_dwordx4 {v(HR+4,4)}, v2, {WS}, s{sPST} offen offset:1024 sc1")
for i in range(8): I(f"v_dot2c_f32_bf16 v112, s{sONES}, v{HR+i}\nv_dot2c_f32_bf16 v113, v{HR+i}, v{HR+i}")
I(f"""v_bitop3_b32 v10, v{HR}, v{HR+4}, v5 {X3}
v_permlane32_swap_b32 v112, v113
v_add_f32 v112, v112, v113
buffer_store_dword v112, v4, {WS}, s{sPST} offen offset:2048 sc1
v_xor_b32 v113, v10, v112
buffer_store_dword v113, v4, {WS}, s{sPST} offen offset:2304 sc1""")
def selft(sreg, nl): return mk(f"s_mov_b64 exec, {(1 << nl) - 1}\nbuffer_load_dword v135, v134, {WS}, s{sreg} offen sc1\ns_mov_b64 exec, -1")
SELF = opt("self", 0)
if SELF & 1: P.add(selft(sPST, 20))
if GATE & 4: P.add(flag_store(14))
stamp("h stored", "moh")
HB = 16; ST = 192
ACC = [144, 160, 176, 192]; AUG = 232
set4 = mk(f"""s_lshl_b32 s{sB}, s{sT3}, 2
s_add_u32 s{sB}, s{sB}, s{sW}
s_mul_i32 s{sP}, s{sB}, {14*2560}
s_add_u32 s{sP}, s{sP}, {WS_H}
s_mul_i32 s{sA}, s{sB}, 56
s_lshl_b32 s{sD}, s{sR}, 2
s_add_u32 s{sA}, s{sA}, s{sD}
s_mul_i32 s{sQ}, s{sA}, 2304
s_add_u32 s{sQ}, s{sQ}, {WS_H1}
v_lshlrev_b32 v13, 3, v1
s_lshl_b32 s{sA}, s{sW}, 9
s_add_u32 s{sA}, s{sA}, {L_AUG}
v_add_u32 v13, s{sA}, v13
v_mov_b32 v222, 0""")
FH = Fetch("fh", [([f"s_add_u32 s{sCt}, s{sP}, {2560*p}\nbuffer_load_dwordx4 {v(HB+8*p,4)}, v2, {WS}, s{sCt} offen sc1\nbuffer_load_dwordx4 {v(HB+8*p+4,4)}, v2, {WS}, s{sCt} offen offset:1024 sc1\n"
                    f"buffer_load_dword v{ST+2*p}, v4, {WS}, s{sCt} offen offset:2048 sc1\nbuffer_load_dword v{ST+2*p+1}, v4, {WS}, s{sCt} offen offset:2304 sc1"],
                   [HB+8*p, HB+8*p+4, ST+2*p, ST+2*p+1]) for p in range(14)], nre=opt('reh', 2))
for i in range(4): I(f"v_mov_b32 v{AUG+i}, s{sONES}")
P.wait("w1"); I("s_barrier")
stamp("w1 landed", "h")
def w1a(t, k): return (240 + k + (4 if t >= 14 else 0), (t % 14) * 4096, (t % 14) * 4096 + 2048)
st3 = [w1a(t, 0) + ((AUG, ACC[2], t == 0, True),) for t in range(28)]
for t in range(28):
    for k in range(3): st3.append(w1a(t, k) + ((HB + 4*t, ACC[k], t == 0, False),))
for t in range(28): st3.append(w1a(t, 3) + ((HB + 4*t, ACC[3], t == 0, False),))
pro, g3 = gemm_lds(st3, AH)
P.add(pro)
S3 = Sched(g3)
S3.spread(set4, 0, 8)
S3.spread(raw + w2dma(0) + w2dma(1), 0, opt("c0e", 20)); raw = []
NH0 = opt("nh0", 4); H0 = opt("h0", 24)
G2 = gate("g2", vPO, vPF)
if GATE & 4:
    S3.at(opt("g2", 12), G2.load(0), 0.9)
    S3.at(27, G2.check(0, 0) + stampi("gate2", "h") + flat([FH.load(p) for p in range(NH0)]), 0.5)
else: S3.spread(flat([FH.loadc(p) for p in range(NH0)]), H0, 27)
cs = ACC[2]
csx = mk(f"""v_cvt_pk_bf16_f32 v{AUG}, v{cs}, v{cs}
v_lshlrev_b32 v{AUG+1}, 16, v{AUG}
v_sub_f32 v{AUG+1}, v{cs}, v{AUG+1}
v_cvt_pk_bf16_f32 v{AUG}, v{cs}, v{AUG+1}
v_and_b32 v{AUG+1}, 0xffff, v{AUG}
v_cndmask_b32 v{AUG}, v{AUG}, 0, {sHI}
v_cndmask_b32 v{AUG+1}, v{AUG+1}, 0, {sHI}
ds_write_b64 v13, {v(AUG,2)}""")
S3.at(27, stampi("colsum done", "h") + csx + FH.check(0, NH0 - 1) + stampi("fh0", "h"), 1.0)
B0 = 28
for p in range(14):
    b = B0 + 6*p
    if p + NH0 < 14:
        for k_, c_ in enumerate(FH.loadc(p + NH0)): S3.at(b + (0, 2, 4, 4)[k_], c_, 0.2)
    S3.at(b, mk(f"v_add_f32 v222, v222, v{ST+2*p}"), 0.0)
    if p + 1 < 14: S3.spread(FH.checkc(p + 1, min(13, p + NH0 - 1)), b + 1, b + 6)
    if p in (3, 7, 11): S3.at(b + 5, stampi(f"fh{p+1}", "h"), 1.0)
S3.at(B0 + 20, mk("s_waitcnt lgkmcnt(0)\ns_barrier") + flat([mk(f"v_xor_b32 v9, {512*k}, v13\nds_read_b64 {v(AUG+2*k,2)}, v9") for k in range(1, 4)]), 0.0)
mid = mk(f"""v_mul_f32 v220, {fhex(1/448)}, v222
v_mov_b32 v221, v220
s_nop 0
v_permlane32_swap_b32 v220, v221
v_fma_f32 v221, -v220, v220, v221
v_max_f32 v221, 0, v221
v_add_f32 v221, 0x3727c5ac, v221
v_rsq_f32 v251, v221
v_cvt_pk_bf16_f32 v222, -v220, -v220
v_lshlrev_b32 v9, 16, v222
v_sub_f32 v9, -v220, v9
v_cvt_pk_bf16_f32 v223, v9, 0
v_mul_f32 v250, v221, v251
v_mul_f32 v251, 0xbfb8aa3b, v251
v_cndmask_b32 v222, v222, 0, {sHI}
v_cndmask_b32 v223, v223, 0, {sHI}""")
S3.spread(mid, B0 + 79, B0 + 84)
def aug(k): return mk(f"v_mfma_f32_32x32x8_bf16 {v(ACC[k],16)}, {v(AUG+2*k,2)}, v[222:223], {v(ACC[k],16)}")
SLT = 132
def silu(k, pk):
    q = Prog(); a = ACC[k]; t = 208
    q.I(f"s_xor_b32 s50, s{sW}, {k}\ns_mul_i32 s50, s50, 2304\ns_add_u32 s50, s50, s{sQ}")
    for half in range(2):
        b = a + 8 * half
        if pk:
            for j in range(0, 8, 2): q.I(f"v_pk_mul_f32 {v(t+j,2)}, {v(b+j,2)}, v[250:251] op_sel:[0,1] op_sel_hi:[1,1]")
        else:
            for j in range(8): q.I(f"v_mul_f32 v{t+j}, v{b+j}, v251")
        for j in range(8): q.I(f"v_exp_f32 v{t+j}, v{t+j}")
        if pk:
            for j in range(0, 8, 2): q.I(f"v_pk_fma_f32 {v(t+j,2)}, {v(t+j,2)}, v[250:251], v[250:251] op_sel_hi:[1,0,0]")
        else:
            for j in range(8): q.I(f"v_fma_f32 v{t+j}, v{t+j}, v250, v250")
        for j in range(8): q.I(f"v_rcp_f32 v{t+j}, v{t+j}")
        if pk:
            for j in range(0, 8, 2): q.I(f"v_pk_mul_f32 {v(b+j,2)}, {v(b+j,2)}, {v(t+j,2)}")
        else:
            for j in range(8): q.I(f"v_mul_f32 v{b+j}, v{b+j}, v{t+j}")
        for j in range(4): q.I(f"v_cvt_pk_bf16_f32 v{b+j}, v{b+2*j}, v{b+2*j+1}")
        q.I(f"buffer_store_dwordx4 {v(b,4)}, v2, {WS}, s50 offen offset:{1024*half} sc1")
    q.I(f"v_bitop3_b32 v216, v5, v{a}, v{a+8} {X3}")
    q.I(f"buffer_store_dword v216, v4, {WS}, s50 offen offset:2048 sc1")
    return q.items + ([selft(50, 18)] if SELF & 2 and not pk else [])
E0 = B0 + 84
assert not raw
S3.spread(w2rd(0) + w2rd(1) + w2rd(2) + w2rd(3), B0 + 22, B0 + 58)
S3.at(B0 + 44, mk("s_barrier"), 0.0)
WD = opt("wd", 64)
S3.spread(w2dma(4) + w2dma(5) + w2dma(6), B0 + WD, E0)
B4 = 16
CKR = [240, 241, 242, 244, 245, 246, 248, 249, 217, 218, 219, 130, 243, 247]
C4 = [[a_(224,16), a_(240,16)], [v(ACC[0],16), v(ACC[1],16)]]
set5 = mk(f"""s_mul_i32 s{sA}, s{sTILE}, 56
s_xor_b32 s{sB}, s{sTILE}, 1
s_mul_i32 s{sB}, s{sB}, 56
s_add_u32 s51, s{sB}, s44
s_add_u32 s52, s{sA}, s44
s_add_u32 s53, s{sB}, s45
s_add_u32 s54, s{sA}, s45""")
for k in range(4):
    set5 += mk(f"s_mul_i32 s{51+k}, s{51+k}, 2304\ns_add_u32 s{51+k}, s{51+k}, {WS_H1}")
S3.spread(set5, B0 + 60, B0 + 78)
def piece4(n):
    st, i = n // 7, n % 7; r = B4 + 8 * (n % 14); c = CKR[n % 14]
    return ([f"s_add_u32 s{sCt}, s{51+st}, {8*2304*i}\nbuffer_load_dwordx4 {v(r,4)}, v2, {WS}, s{sCt} offen sc1\nbuffer_load_dwordx4 {v(r+4,4)}, v2, {WS}, s{sCt} offen offset:1024 sc1\n"
             f"buffer_load_dword v{c}, v4, {WS}, s{sCt} offen offset:2048 sc1"], [r, r+4, c])
F4 = Fetch("f4", [piece4(n) for n in range(28)], nre=opt("re4", 1))
ND = opt("nd", 4)
rawl = flat([w2raw(j) for j in range(7, 7 + NRL)])
nr0 = min(len(rawl), opt("nr0", 4))
S3.at(E0 - 1, stampi("p3 pass1 done", "mh") + aug(0) + aug(1) + aug(2) + sprinkle(silu(0, True), rawl[:nr0], 3, 12) + stampi("silu0 done", "e"), 1.0)
S3.spread(silu(1, False), E0, E0 + 26)
S3.spread(rawl[nr0:], E0, E0 + 14)
F4S = opt("f4s", 16)
S3.spread(flat([F4.loadc(n) for n in range(ND)]), E0 + F4S, E0 + 28)
P.add(S3.emit())
P.add(aug(3))
I("s_barrier")
stamp("p3 gemm done", "me")
g4 = []
for n in range(28):
    st, i = n // 7, n % 7; hf, par = st >> 1, st & 1
    for e in range(2):
        for mu in range(2):
            zero = hf == 0 and i == 0 and e == 0 and not (par == 1 and mu == 0)
            g4.append(mk(f"{MF} {C4[par][mu]}, {a_(UA(7*hf+i)+8*e+4*mu,4)}, {v(B4+8*(n%14)+4*e,4)}, {'0' if zero else C4[par][mu]}"))
P.add(F4.check(0, ND - 1))
S = Sched(g4)
for n in range(28):
    if n + ND < 28:
        for k_, c_ in enumerate(F4.loadc(n + ND)): S.at(4*n + (0, 2, 1)[k_], c_, 0.2)
    if n + 1 < 28: S.spread(F4.checkc(n + 1, min(27, n + ND)), 4*n + 2, 4*n + 4)
    if n in (6, 13, 20): S.at(4*n + 3, stampi(f"stage{n//7} done", "e"), 1.0)
unp = []
for i in range(8): unp += mk(f"v_lshlrev_b32 v{ACC[0]+2*i}, 16, v{HR+i}\nv_and_b32 v{ACC[0]+1+2*i}, s{sHIM}, v{HR+i}")
S.spread(silu(2, False), 0, 22)
S.spread(unp, 22, 27)
S.spread(silu(3, False), 27, 50)
S.spread(w2rd(4) + w2rd(5) + w2rd(6), 0, 14)
S.spread(flat([w2dma(j) for j in range(7 + NRL, 14)]), opt("w2a", 2), opt("w2b", 44))
for j in range(7, 14): S.spread(w2rd(j), 44 + 5*(j-7), 49 + 5*(j-7))
S.at(82, mk(f"""s_lshl_b32 s{sA}, s{sW}, 14
v_add_u32 v13, s{sA}, v2
v_xor_b32 v9, 16384, v13
v_xor_b32 v12, 32768, v13
v_xor_b32 v14, 49152, v13
s_waitcnt lgkmcnt(0)
s_barrier"""))
S.spread([mk(f"ds_write_b128 v{9 if mu == 0 else 14}, {a_(224+16*mu+4*i,4)} offset:{4096*(2*mu+1)+1024*i}") for mu in range(2) for i in range(4)], 87, 99)
S.at(100, mk("s_waitcnt lgkmcnt(0)\ns_barrier"), 0.0)
S.spread([mk(f"ds_read_b128 {v(ACC[2+mu]+4*i,4)}, v13 offset:{4096*(2*mu+1)+1024*i}") for mu in range(2) for i in range(4)], 100, 104)
S.spread([mk(f"v_add_f32 v{ACC[2]+k}, v{ACC[2]+k}, v{ACC[3]+k}") for k in range(16)], 107, 112)
P.add(S.emit())
stamp("p4 gemm done", "me")
for i in range(4): I(f"ds_write_b128 v12, {v(ACC[1]+4*i,4)} offset:{8192+1024*i}")
I("s_waitcnt lgkmcnt(0)\ns_barrier")
for i in range(4): I(f"ds_read_b128 {v(ACC[3]+4*i,4)}, v13 offset:{8192+1024*i}")
for k in range(0, 16, 2): I(f"v_pk_add_f32 {v(ACC[0]+k,2)}, {v(ACC[0]+k,2)}, {v(ACC[2]+k,2)}")
for hf in range(2):
    b = ACC[0] + 8*hf
    for k in range(0, 8, 2): I(f"v_pk_add_f32 {v(b+k,2)}, {v(b+k,2)}, {v(ACC[3]+8*hf+k,2)}")
    for i in range(4): I(f"v_cvt_pk_bf16_f32 v{96+4*hf+i}, v{b+2*i}, v{b+2*i+1}")
    I(f"v_permlane32_swap_b32 v{96+4*hf}, v{98+4*hf}\nv_permlane32_swap_b32 v{97+4*hf}, v{99+4*hf}\nbuffer_store_dwordx4 {v(96+4*hf,4)}, v7, {OUT}, s{sOUT} offen offset:{32*hf} {OPT.get('ofl', '')}")
stamp("end", "mpohez")
I(f"""s_cmp_lg_u32 s2, 0
s_cbranch_scc1 L_ex0
v_mov_b32 v9, 0""")
I(f"buffer_store_dword v5, v9, {WS}, 0 offen sc1", unc=True)
I("L_ex0:")
if opt("dbg", 0):
    I(f"""s_cmp_lg_u32 s{sW}, 0
s_cbranch_scc1 L_end
s_load_dwordx2 s[40:41], s[0:1], 64
s_mov_b32 s42, 256
s_mov_b32 s43, 0x20000
s_mov_b64 exec, 1
v_mov_b32 v9, 0
s_waitcnt lgkmcnt(0)""", unc=True)
    for k in range(nstamp[0]):
        I(f"s_sub_u32 s{sA}, s{sSTAMP+2*k}, s78\nv_mov_b32 v10, s{sA}\nbuffer_atomic_umax v10, v9, s[40:43], 0 offen offset:{4*k}\ns_nop 1", unc=True)
    I(f"""v_mov_b32 v10, s78
buffer_atomic_umax v10, v9, s[40:43], 0 offen offset:32
s_not_b32 s{sA}, s78
v_mov_b32 v11, s{sA}
buffer_atomic_umax v11, v9, s[40:43], 0 offen offset:36
v_mov_b32 v12, s{sSTAMP+2*(nstamp[0]-1)}
buffer_atomic_umax v12, v9, s[40:43], 0 offen offset:40
v_mov_b32 v13, s80
buffer_atomic_add v13, v9, s[40:43], 0 offen offset:44
s_branch L_end""", unc=True)
I("L_exit:")
if DIAG and not opt("dbg", 0):
    I(f"s_cmp_lg_u32 s{sW}, {opt('dw', 0)}\ns_cbranch_scc1 L_end\ns_lshl_b32 s{sA}, s2, 7\ns_add_u32 s{sA}, s{sA}, {WS_DIAG}\nv_mov_b32 v9, 0", unc=True)
    for k in range(nstamp[0]):
        I(f"s_waitcnt lgkmcnt(0)\nv_mov_b32 v10, s{sSTAMP+2*k}\nbuffer_store_dword v10, v9, {WS}, s{sA} offen offset:{4*k}", unc=True)
    if SEL == ["z"]: I(f"v_mov_b32 v10, s78\nbuffer_store_dword v10, v9, {WS}, s{sA} offen offset:120", unc=True)
    I(f"v_mov_b32 v10, s80\nbuffer_store_dword v10, v9, {WS}, s{sA} offen offset:124", unc=True)
I("L_end:\ns_endpgm")
I(f"""L_idle:
s_and_b32 s{sA}, s{sT2}, 1
s_lshl_b32 s{sA}, s{sA}, 1
s_add_u32 s{sA}, s{sA}, s{sRact}
s_sub_u32 s{sA}, s{sA}, 14
s_lshl_b32 s{sA}, s{sA}, 2
s_add_u32 s{sA}, s{sA}, s{sW}
s_lshl_b32 s{sA}, s{sA}, 13
v_lshlrev_b32 v9, 7, v1
s_mov_b32 s{sB}, {opt("idle", 0)}
s_cmp_eq_u32 s{sB}, 0
s_cbranch_scc1 L_exit
L_idle1:
buffer_load_dword v10, v9, {W2}, s{sA} offen
s_add_u32 s{sA}, s{sA}, {16*8192}
s_sub_u32 s{sB}, s{sB}, 1
s_cmp_lg_u32 s{sB}, 0
s_cbranch_scc1 L_idle1
s_branch L_exit""", unc=True)
P.add(TAIL.items)

PL = opt("plain", 0)
for it in P.items:
    if isinstance(it, Ins) and it.op.startswith("buffer_store") and "sc1" in it.text:
        ish1 = " s50 " in it.text or " s49 " in it.text
        ish = ("v[224:227]" in it.text or "v[228:231]" in it.text or "v112," in it.text or "v113," in it.text)
        if (ish and PL & 1) or (ish1 and PL & 2): it.text = it.text.replace(" sc1", OPT.get("pfl", ""))
if opt("nochk", 0):
    new = []; seen_end = False
    for it in P.items:
        if isinstance(it, Ins):
            if opt("nochk", 0) == 2 and not seen_end:
                if it.text.startswith("L_exit"): seen_end = True
                elif it.uncounted or it.op in ("s_cbranch_vccz", "s_branch"): continue
            if it.op == "s_cbranch_vccz" and not it.uncounted: it = Ins(it.text.replace("s_cbranch_vccz", "s_branch"))
            elif it.op == "s_cbranch_vccnz" and not it.uncounted: continue
            t = it.text
            if it.op.startswith("buffer_store") and "sc1" in t and not it.uncounted:
                kind = 8 if " s50 " in t else 4 if ("v[224" in t or "v[228" in t or "v112," in t or "v113," in t) else 2 if f" s{sOST} " in t else 1
                if opt("nost", 0) & kind: continue
            if it.op.startswith("buffer_load") and "sc1" in t and " s56 " in t and not it.uncounted:
                cnt_ld = globals().setdefault("_c", [0]); cnt_ld[0] += 1; c = cnt_ld[0]
                kind = 1 if c <= 32 else 2 if c <= 48 else 4 if c <= 104 else 8
                if opt("nold", 0) & kind: continue
        new.append(it)
    P.items = new
body, items = render(P.items)
if opt("align", 1):
    import subprocess, re as _re
    open("_al.s", "w").write('.amdgcn_target "amdgcn-amd-amdhsa--gfx950"\n.text\n' + body)
    subprocess.run(["clang", "-x", "assembler", "-target", "amdgcn-amd-amdhsa", "-mcpu=gfx950", "-c", "_al.s", "-o", "_al.o"], check=True)
    dis = subprocess.run(["llvm-objdump", "-d", "--mcpu=gfx950", "_al.o"], capture_output=True, text=True).stdout
    sizes = [4 * len(m.group(1).split()) for m in _re.finditer(r"// [0-9A-F]{12}: ((?:[0-9A-F]{8} ?)+)", dis)]
    real = [i for i in items if i.cls not in ('label', 'dir')]
    assert len(sizes) == len(real), (len(sizes), len(real))
    sz = {id(i): n for i, n in zip(real, sizes)}
    new = []; off = 0; nal = 0; MINRUN = opt("minrun", 6)
    for k, it in enumerate(items):
        if id(it) in sz and sz[id(it)] == 8 and off % 8 == 4 and not it.uncounted:
            run = 0
            for j in items[k:k + MINRUN + 4]:
                if id(j) not in sz: continue
                if sz[id(j)] != 8 or j.cls == 'mfma': break
                run += 1
            if run >= MINRUN:
                p = new[-1] if new else None
                if p is not None and p.cls == 'valu' and sz.get(id(p)) == 4 and not p.op.startswith(('v_permlane', 'v_dot2c', 'v_readfirst', 'v_accvgpr', 'v_cmp', 'v_cndmask')) and not p.op.endswith('_e64'):
                    p.text = p.text.replace(p.op, p.op + "_e64", 1)
                else: new.append(Ins("s_nop 0"))
                off += 4; nal += 1
        new.append(it); off += sz.get(id(it), 0)
    items = new
    body = '\n'.join(('' if i.cls == 'label' else '  ') + i.text for i in items) + '\n'
    print("alignment fixes:", nal, "code bytes", off)
hdr = open("cdna_kernels/" + NAME + ".s.ref").read().split("; Override launch")[0]
out = hdr + f"""; @launch grid=(256,1,1) block=(256,1,1) lds={LDS_SIZE}
.amdgcn_target "amdgcn-amd-amdhsa--gfx950"
.text
.globl {NAME}_kernel
.p2align 8
.type {NAME}_kernel,@function
{NAME}_kernel:
{body}.fill 2048, 4, 0xbf810000
.section .rodata,"a"
.p2align 6
.amdhsa_kernel {NAME}_kernel
  .amdhsa_next_free_vgpr 512
  .amdhsa_next_free_sgpr 102
  .amdhsa_accum_offset 256
  .amdhsa_group_segment_fixed_size 0
  .amdhsa_kernarg_size 80
  .amdhsa_user_sgpr_count 2
  .amdhsa_user_sgpr_kernarg_segment_ptr 1
  .amdhsa_system_sgpr_workgroup_id_x 1
.end_amdhsa_kernel
"""
open(sys.argv[1], "w").write(out)
n = sum(1 for i in items if i.cls not in ('label', 'dir'))
nu_ = sum(1 for i in items if i.cls not in ('label', 'dir') and i.uncounted)
print("instructions:", n, "(slow path", nu_, ") nops:", sum(1 for i in items if i.op == 's_nop'), "waits:", sum(1 for i in items if i.op == 's_waitcnt'), "stamps", nstamp[0])
```

```python
import sys, struct
from asmlib import *

NAME = "sequential_preLN__linear_kernel_hedgehog__dense_activation_silu__prompt"
DIAG = int(sys.argv[2]) if len(sys.argv) > 2 else 0
OPT = dict(a.split('=') for a in sys.argv[3:])
def opt(k, d): return int(OPT[k], 0) if k in OPT else d

WS_PART = 0x40000
WS_O    = 0x240000
WS_H    = 0x440000
WS_H1   = 0x680000
WS_DIAG = 0xE80000
WS_FLG  = 0xF00000
WS_SIZE = 0xF80000
XW = 28672
L_WV, L_WQ, L_WK, L_WO = 0, 28672, 57344, 86016
L_IMG = L_WK
L_KVX = 143360
L_XCH = 147456
L_SCR = 114688
L_AUG = 161792
LDS_SIZE = 163840
sW, sT, sH, sT2, sR = 3, 4, 5, 6, 7
X, WQKV, WPHI, WO, W1, W2, OUT, WS = [f"s[{i}:{i+3}]" for i in range(8, 40, 4)]
sKX, sKW = 40, 47
sHQ, sHIM = 54, 55
sRET = "s[56:57]"
sSPIN, sP, sU, sC, sMASK, sQ = 58, 59, 60, 61, 62, 63
sHI = "s[64:65]"
sLOG = "s[66:67]"
sONES, sTILE = 68, 69
sA, sB, sCt, sD = 70, 71, 72, 73
sRact, sXO = 74, 75
sWB, sWQ = 76, 77
sLAST, sFLAG, sWM, sPST, sPCK, sOST, sXRB, sOUT = 80, 81, 82, 83, 84, 85, 86, 87
sSTAMP = 88

def v(a, n=1): return f"v{a}" if n == 1 else f"v[{a}:{a+n-1}]"
def a_(a, n=1): return f"a{a}" if n == 1 else f"a[{a}:{a+n-1}]"
def fhex(x): return hex(struct.unpack('<I', struct.pack('<f', x))[0])
def flat(l): return sum(l, [])
P = Prog(); I = P.I
TAIL = Prog()
nstamp = [0]
SEL = OPT.get("st", "m").split(",")
PICK = [int(x) for x in OPT["pick"].split(",")] if "pick" in OPT else None
allst = [0]
def stampi(name, grp="m"):
    idx = allst[0]; allst[0] += 1
    if not DIAG: return []
    if PICK is not None:
        if name != "start" and idx not in PICK:
            print(f"   - {idx}: {name}"); return []
    elif name != "start" and not (set(grp) & set(SEL)): return []
    k = nstamp[0]; nstamp[0] += 1
    assert k < 7
    print(f"stamp {k}: [{idx}] {name}")
    op = "s_memtime" if DIAG == 2 else "s_memrealtime"
    return mk(f"{op} s[{sSTAMP+2*k}:{sSTAMP+2*k+1}]")
def stamp(name, grp="m"): P.add(stampi(name, grp))
X3 = "bitop3:0x96"

def chk_code(regs, masked):
    r = list(regs)
    if masked: return f"v_bitop3_b32 v10, v{r[0]}, v{r[1]}, s{sMASK} bitop3:0x28\nv_cmp_ne_u32 vcc, v10, v6"
    if len(r) == 1: return f"v_cmp_ne_u32 vcc, v{r[0]}, v5"
    if len(r) == 2: t = f"v_xor_b32 v10, v{r[0]}, v{r[1]}"
    else:
        t = f"v_bitop3_b32 v10, v{r[0]}, v{r[1]}, v{r[2]} {X3}"
        if len(r) == 4: t += f"\nv_xor_b32 v10, v10, v{r[3]}"
    return t + "\nv_cmp_ne_u32 vcc, v10, v5"

sFL, sDM = 56, 57
GUARD = f"s_add_u32 s{sSPIN}, s{sSPIN}, 1\ns_cmp_gt_u32 s{sSPIN}, 0x40000\ns_cbranch_scc1 L_end\ns_waitcnt vmcnt(0)"
class Fetch:
    def __init__(self, name, pieces, masked=False, nre=1):
        self.name, self.pieces, self.masked, self.nre = name, pieces, masked, nre
    def loadc(self, i):
        it = flat([mk(c.replace(f"s{sCt}", f"s{sFL}")) for c in self.pieces[i][0]])
        out = []; cur = []
        for x in it:
            cur.append(x)
            if x.cls == 'vmem': out.append(cur); cur = []
        return out
    def load(self, i): return flat(self.loadc(i))
    def stub(self, i, last):
        n = self.name
        wgt = {"fo": 0x100, "fh": 0x10000, "f4": 0x1000000}.get(n, 1)
        rel = (f"s_add_u32 s80, s80, {wgt}\n" if DIAG else "") + "\n".join(c for j in range(i, min(last, i + self.nre - 1) + 1) for c in self.pieces[j][0])
        if opt("ool", 1):
            TAIL.I(f"L_{n}_r{i}:\n" + rel + "\n" + GUARD + "\n" + chk_code(self.pieces[i][1], self.masked) + f"\ns_cbranch_vccnz L_{n}_r{i}\ns_branch L_{n}_ok{i}", unc=True)
            return mk(f"s_cbranch_vccnz L_{n}_r{i}\nL_{n}_ok{i}:")
        return mk(f"s_cbranch_vccz L_{n}_ok{i}\nL_{n}_r{i}:") + \
               mk(rel + "\n" + GUARD + "\n" + chk_code(self.pieces[i][1], self.masked) + f"\ns_cbranch_vccnz L_{n}_r{i}", unc=True) + mk(f"L_{n}_ok{i}:")
    def checkc(self, i, last):
        return [[x] for x in mk(chk_code(self.pieces[i][1], self.masked))] + [self.stub(i, last)]
    def check(self, i, last): return flat(self.checkc(i, last))

sFS, sFP = 80, 81
vL512, vPO, vPF = 0, 142, 143
def flag_store(nl): return mk(f"s_mov_b64 exec, {(1 << nl) - 1}\nbuffer_store_dword v5, v{vL512}, {WS}, s{sFS} offen sc1\ns_mov_b64 exec, -1")
def gate(name, vo, vf): return Fetch(name, [([f"buffer_load_dword v{vf}, v{vo}, {WS}, s{sFP} offen sc1"], [vf])])
GATE = opt("gate", 0)

def cost(it):
    if isinstance(it, WaitTag): return 4
    if it.cls in ('label', 'dir') or it.uncounted: return 0
    if it.op.startswith(TRANS) or 'permlane' in it.op: return 8
    if it.op.startswith('ds_write_b128'): return 28
    if it.cls == 'mfma': return 8
    return 4.5
class Sched:
    def __init__(self, groups):
        self.groups = groups; self.gap = [[] for _ in groups]; self.seq = 0
    def at(self, g, items, frac=0.5):
        self.seq += 1; self.gap[g].append((frac, self.seq, list(items)))
    def spread(self, chunks, a, b):
        chunks = [c if isinstance(c, list) else [c] for c in chunks]
        tot = sum(cost(i) for c in chunks for i in c) or 1; acc = 0
        for c in chunks:
            pos = a + (b - a) * acc / tot
            self.at(int(pos), c, pos - int(pos))
            acc += sum(cost(i) for i in c)
    def emit(self):
        out = []
        for g, gp in zip(self.groups, self.gap):
            out += g
            for _, _, c in sorted(gp, key=lambda x: (x[0], x[1])): out += c
        return out
def sprinkle(items, groups, start, step):
    out = []; groups = list(groups); nxt = start
    for i, it in enumerate(items):
        if groups and i == nxt: out += groups.pop(0); nxt += step
        out.append(it)
    for g in groups: out += g
    return out

def softmax(p, t, o, pk):
    q = Prog(); J = q.I
    m, n = t + 14, t + 15; r0, r1 = t + 16, t + 17
    J(f"v_max3_f32 v{m}, v{p}, v{p+1}, v{p+2}\nv_max3_f32 v{n}, -v{p}, -v{p+1}, -v{p+2}")
    for k in range(3, 13, 2):
        J(f"v_max3_f32 v{m}, v{m}, v{p+k}, v{p+k+1}\nv_max3_f32 v{n}, v{n}, -v{p+k}, -v{p+k+1}")
    J(f"""v_max_f32 v{m}, v{m}, v{p+13}
v_max_f32 v{n}, v{n}, -v{p+13}
v_permlane32_swap_b32 v{m}, v{n}
v_max_f32 v{m}, v{m}, v{n}
v_mul_f32 v{m}, v253, v{m}
v_mov_b32 v{n}, v{m}
v_permlane32_swap_b32 v{m}, v{n}""")
    if pk:
        for k in range(0, 14, 2):
            J(f"v_pk_fma_f32 {v(t+k,2)}, {v(p+k,2)}, v[252:253], {v(m,2)} op_sel_hi:[1,0,0]")
            J(f"v_pk_fma_f32 {v(p+k,2)}, {v(p+k,2)}, v[252:253], {v(m,2)} op_sel:[0,1,1] op_sel_hi:[1,1,1]")
    if pk == 2:
        for k in range(14):
            J(f"v_exp_f32 v{t+k}, v{t+k}\nv_exp_f32 v{p+k}, v{p+k}")
            if k >= 2:
                a0 = f"v{t}" if k == 2 else f"v{r0}"; a1 = f"v{p}" if k == 2 else f"v{r1}"
                J(f"v_add_f32 v{r0}, {a0}, v{t+k-1}\nv_add_f32 v{r1}, {a1}, v{p+k-1}")
        J(f"v_add_f32 v{m}, v{r0}, v{t+13}\nv_add_f32 v{n}, v{r1}, v{p+13}")
    elif pk:
        for k in range(14): J(f"v_exp_f32 v{t+k}, v{t+k}")
        for k in range(14): J(f"v_exp_f32 v{p+k}, v{p+k}")
        J(f"v_pk_add_f32 {v(m,2)}, {v(t,2)}, {v(t+2,2)}\nv_pk_add_f32 {v(r0,2)}, {v(p,2)}, {v(p+2,2)}")
        for k in range(4, 14, 2):
            J(f"v_pk_add_f32 {v(m,2)}, {v(m,2)}, {v(t+k,2)}\nv_pk_add_f32 {v(r0,2)}, {v(r0,2)}, {v(p+k,2)}")
        J(f"v_add_f32 v{m}, v{m}, v{n}\nv_add_f32 v{n}, v{r0}, v{r1}")
    else:
        for k in range(14):
            J(f"v_fma_f32 v{t+k}, v{p+k}, v252, v{m}\nv_fma_f32 v{p+k}, v{p+k}, v253, v{n}\nv_exp_f32 v{t+k}, v{t+k}\nv_exp_f32 v{p+k}, v{p+k}")
            if k >= 2:
                a0 = f"v{t}" if k == 2 else f"v{r0}"; a1 = f"v{p}" if k == 2 else f"v{r1}"
                J(f"v_add_f32 v{r0}, {a0}, v{t+k-1}\nv_add_f32 v{r1}, {a1}, v{p+k-1}")
        J(f"v_add_f32 v{m}, v{r0}, v{t+13}\nv_add_f32 v{n}, v{r1}, v{p+13}")
    J(f"""v_permlane32_swap_b32 v{m}, v{n}
v_add_f32 v{m}, v{m}, v{n}
v_rcp_f32 v{m}, v{m}
v_mov_b32 v{n}, v{m}
v_permlane32_swap_b32 v{m}, v{n}""")
    if pk == 1:
        for k in range(0, 14, 2):
            J(f"v_pk_mul_f32 {v(t+k,2)}, {v(t+k,2)}, {v(m,2)} op_sel_hi:[1,0]")
            J(f"v_pk_mul_f32 {v(p+k,2)}, {v(p+k,2)}, {v(m,2)} op_sel:[0,1] op_sel_hi:[1,1]")
    else:
        for k in range(14): J(f"v_mul_f32 v{t+k}, v{t+k}, v{m}\nv_mul_f32 v{p+k}, v{p+k}, v{n}")
    for k in range(7): J(f"v_cvt_pk_bf16_f32 v{o+k}, v{t+2*k}, v{t+2*k+1}")
    for k in range(7): J(f"v_cvt_pk_bf16_f32 v{o+7+k}, v{p+2*k}, v{p+2*k+1}")
    return q.items

def dmag(vaddrs, srd, sbase, sadd, mbase, madd, tag, sreg=None):
    sr = sCt if sreg is None else sreg
    ch = [mk(f"buffer_load_dwordx4 v{a}, {srd}, s{sr} offen offset:{1024*i} lds", tag=tag) for i, a in enumerate(vaddrs)]
    ch[0] = mk(f"s_add_u32 m0, s{mbase}, {madd}\ns_add_u32 s{sr}, s{sbase}, {sadd}") + ch[0]
    return ch

MF = "v_mfma_f32_32x32x16_bf16"
RINGA, NRING = 224, 8
def gemm_lds(steps, ahead=6):
    def rd(i):
        av, o1, o2 = steps[i][:3]; r = RINGA + 4 * (i % NRING)
        return mk(f"ds_read_b64_tr_b16 {a_(r,2)}, v{av} offset:{o1}\nds_read_b64_tr_b16 {a_(r+2,2)}, v{av} offset:{o2}")
    rds = [rd(i) for i in range(len(steps))]
    groups = []
    for i, st in enumerate(steps):
        r = RINGA + 4 * (i % NRING); b, acc, first, swap = st[3]
        A, B = a_(r, 4), v(b, 4)
        if swap: A, B = B, A
        g = mk(f"{MF} {v(acc,16)}, {A}, {B}, {'0' if first else v(acc,16)}")
        if i % 2 == 0 and i + 1 < len(steps):
            r2 = RINGA + 4 * ((i + 1) % NRING); g[0].extra = [('a', r2 + x) for x in range(4)]
        groups.append(g + (rds[i + ahead] if i + ahead < len(steps) else []))
    return flat(rds[:ahead]), groups

MAP1 = [f"""s_and_b32 s{sT}, s{sA}, 3
s_lshl_b32 s{sT}, s{sT}, 2
s_and_b32 s{sD}, s{sB}, 3
s_add_u32 s{sT}, s{sT}, s{sD}
s_lshr_b32 s{sP}, s{sA}, 2
s_lshl_b32 s{sH}, s{sP}, 3
s_lshr_b32 s{sD}, s{sB}, 2
s_add_u32 s{sH}, s{sH}, s{sD}
s_cmp_eq_u32 s{sD}, 7
s_cselect_b32 s{sD}, 3, s{sD}
s_lshl_b32 s{sKX}, s{sD}, 7
""",
f"""s_lshl_b32 s{sT}, s{sA}, 1
s_lshr_b32 s{sD}, s{sB}, 4
s_add_u32 s{sT}, s{sT}, s{sD}
s_mov_b32 s{sH}, s{sCt}
s_and_b32 s{sD}, s{sH}, 7
s_cmp_eq_u32 s{sD}, 7
s_cselect_b32 s{sD}, 3, s{sD}
s_lshl_b32 s{sKX}, s{sD}, 7
""",
f"""s_mov_b32 s{sT}, s{sCt}
s_lshl_b32 s{sH}, s{sA}, 1
s_lshr_b32 s{sD}, s{sB}, 4
s_add_u32 s{sH}, s{sH}, s{sD}
s_and_b32 s{sD}, s{sH}, 7
s_mul_i32 s{sD}, s{sD}, 3
s_mul_i32 s{sP}, s{sD}, 37
s_lshr_b32 s{sP}, s{sP}, 8
s_mul_i32 s{sP}, s{sP}, 7
s_sub_u32 s{sD}, s{sD}, s{sP}
s_lshl_b32 s{sKX}, s{sD}, 7
"""][opt("map1", 0)]
if DIAG: I("s_memrealtime s[78:79]")
I(f"""s_cmp_ge_u32 s2, 256
s_cbranch_scc1 L_end
s_load_dwordx2 s[8:9], s[0:1], 0
s_load_dwordx2 s[12:13], s[0:1], 8
s_load_dwordx2 s[16:17], s[0:1], 16
s_load_dwordx2 s[20:21], s[0:1], 24
s_load_dwordx2 s[24:25], s[0:1], 40
s_load_dwordx2 s[28:29], s[0:1], 48
s_load_dwordx2 s[32:33], s[0:1], 56
s_load_dwordx2 s[36:37], s[0:1], 72
s_getpc_b64 s[76:77]
v_and_b32 v1, 63, v0
v_lshrrev_b32 v2, 6, v0
s_and_b32 s{sA}, s2, 7
v_readfirstlane_b32 s{sW}, v2
s_lshr_b32 s{sB}, s2, 3
s_and_b32 s{sCt}, s{sB}, 15
v_lshlrev_b32 v3, 4, v1
v_lshl_add_u32 v3, v2, 6, v3
v_lshl_add_u32 v3, v2, 4, v3
v_add_u32 v3, s{sCt}, v3
v_lshlrev_b32 v3, 7, v3
s_and_b32 s76, s76, 0xffffff00
s_mov_b64 exec, 31
global_load_dword v236, v3, s[76:77]
s_mov_b64 exec, -1
{MAP1}
s_mov_b32 s10, 1835008
s_mov_b32 s11, 0x20000
v_lshrrev_b32 v2, 3, v1
v_mul_u32_u24 v244, 896, v2
v_lshrrev_b32 v2, 4, v1
v_and_b32 v8, 7, v1
v_xor_b32 v2, v2, v8
v_lshl_add_u32 v244, v2, 4, v244
v_xor_b32 v245, 64, v244
v_add_u32 v245, {7168-1024}, v245
v_add_u32 v246, {2*(7168-1024)}, v244
v_add_u32 v247, {2*(7168-1024)}, v245
s_lshl_b32 s{sQ}, s{sT}, 2
s_add_u32 s{sQ}, s{sQ}, s{sW}
s_mul_i32 s{sQ}, s{sQ}, {32*896}
s_lshr_b32 s{sXO}, s{sW}, 1
s_add_u32 s{sXO}, s{sXO}, s{sW}
s_mul_i32 s{sXO}, s{sXO}, {XW}
s_waitcnt lgkmcnt(0)""")
stamp("start")
def xdma(g): return flat(dmag([244, 245, 246, 247], X, sQ, f"s{sKX+g}", sXO, 4096*g, f"x{g}"))
P.add(xdma(0))
I(f"""s_mov_b32 s14, {0 if opt('abl',0)&8 else 1204224}
s_mov_b32 s15, 0x20000
v_and_b32 v8, 3, v1""")
def wtouch(mask16, dst):
    m = mask16 | (mask16 << 16)
    return mk(f"s_mov_b32 exec_lo, {hex(m)}\ns_mov_b32 exec_hi, {hex(m)}\nbuffer_load_dword v{dst}, v255, {WQKV}, 0 offen\ns_mov_b64 exec, -1")
def kxs(g): return mk(f"s_add_u32 s{sKX+g}, s{sKX+g-1}, 128\ns_cmp_ge_u32 s{sKX+g}, 896\ns_cselect_b32 s{sD}, 896, 0\ns_sub_u32 s{sKX+g}, s{sKX+g}, s{sD}")
NXE = opt("nxe", 2)
if opt("wtfirst", 1) and opt("wt0", 0): P.add(wtouch(opt("wt0", 0), 237))
for g in range(1, NXE): P.add(kxs(g) + xdma(g))
if not opt("wtfirst", 1) and opt("wt0", 0): P.add(wtouch(opt("wt0", 0), 237))
if opt("wsoff", 0): I(f"s_add_u32 s36, s36, {opt('wsoff', 0)}\ns_addc_u32 s37, s37, 0")
I(f"""s_mov_b32 s38, {WS_SIZE}
s_mov_b32 s39, 0x20000
s_mov_b32 s18, 25088
s_mov_b32 s19, 0x20000
s_mov_b32 s22, {0 if opt('abl',0)&4 else 401408}
s_mov_b32 s23, 0x20000
s_xor_b32 s{sHQ}, s{sH}, 1
v_mov_b32 v11, 0
v_lshlrev_b32 v6, 7, v1""")
I(f"buffer_load_dword v5, v11, {WS}, 0 offen sc1")
I(f"""s_lshl_b32 s{sD}, s2, 2
s_add_u32 s{sD}, s{sD}, s{sW}
s_lshl_b32 s{sD}, s{sD}, 9
s_and_b32 s{sCt}, s{sH}, 14
s_mul_i32 s{sCt}, s{sCt}, 1568
s_mul_i32 s{sP}, s{sW}, 896
s_add_u32 s{sCt}, s{sCt}, s{sP}
s_mov_b64 exec, 15
buffer_load_dword v238, v6, {WO}, s{sD} offen
s_mov_b64 exec, 127
buffer_load_dword v239, v6, {WPHI}, s{sCt} offen
s_mov_b64 exec, -1""")
for g in range(NXE, 7): P.add(kxs(g))
I(f"""s_lshl_b32 s{sT2}, s{sA}, 1
s_lshr_b32 s{sD}, s{sB}, 4
s_add_u32 s{sT2}, s{sT2}, s{sD}
s_and_b32 s{sRact}, s{sB}, 15
s_min_u32 s{sR}, s{sRact}, 13
s_mov_b32 s26, {0 if opt('abl',0)&1 else 1605632}
s_mov_b32 s27, 0x20000
s_mov_b32 s30, {0 if opt('abl',0)&2 else 1605632}
s_mov_b32 s31, 0x20000
s_mov_b32 s34, 1835008
s_mov_b32 s35, 0x20000
s_mov_b32 s64, 0
s_mov_b32 s65, -1
s_mov_b32 s{sONES}, 0x3f803f80
s_mov_b32 s{sMASK}, 0xbfffbfff
s_mov_b32 s{sHIM}, 0xffff0000
s_mov_b32 s{sSPIN}, 0
s_mov_b32 s80, 0
s_cmp_ge_u32 s{sR}, 7
s_cselect_b32 s{sU}, 1, 0
s_mul_i32 s{sA}, s{sU}, 7
s_sub_u32 s{sC}, s{sR}, s{sA}""")
sT3 = 67
if opt("map3", 0):
    I(f"""s_and_b32 s{sA}, s{sT2}, 12
s_and_b32 s{sD}, s{sT2}, 1
s_lshl_b32 s{sD}, s{sD}, 1
s_add_u32 s{sA}, s{sA}, s{sD}
s_add_u32 s{sT3}, s{sA}, s{sU}
s_bfe_u32 s{sA}, s{sT2}, 0x10001
s_mul_i32 s{sA}, s{sA}, 7
s_add_u32 s{sR}, s{sA}, s{sC}""")
else: I(f"s_mov_b32 s{sT3}, s{sT2}")
for g in range(7): I(f"s_mul_i32 s{sKW+g}, s{sKX+g}, {172032//128}")
I(f"""s_mul_i32 s{sWB}, s{sH}, 56
s_mul_i32 s{sD}, s{sW}, 43008
s_add_u32 s{sWB}, s{sWB}, s{sD}
s_mul_i32 s{sWQ}, s{sHQ}, 56
s_add_u32 s{sWQ}, s{sWQ}, s{sD}
s_add_u32 s{sWB}, s{sWB}, 896
s_lshl_b32 s{sWM}, s{sW}, 10
s_lshl_b32 s{sA}, s{sH}, 4
s_add_u32 s{sA}, s{sA}, s{sT}
s_mul_i32 s{sA}, s{sA}, 5120
s_add_u32 s{sA}, s{sA}, {WS_PART}
s_add_u32 s{sPST}, s{sA}, s{sWM}
s_lshl_b32 s{sD}, s{sW}, 8
s_add_u32 s{sA}, s{sA}, s{sD}
s_add_u32 s{sPCK}, s{sA}, 4096
s_lshl_b32 s{sA}, s{sT}, 2
s_add_u32 s{sA}, s{sA}, s{sW}
s_lshl_b32 s{sA}, s{sA}, 15
s_lshl_b32 s{sB}, s{sHQ}, 11
s_add_u32 s{sA}, s{sA}, s{sB}
s_add_u32 s{sOST}, s{sA}, {WS_O}
s_lshl_b32 s{sA}, s{sT2}, 2
s_lshl_b32 s{sB}, s{sU}, 1
s_add_u32 s{sA}, s{sA}, s{sB}
s_and_b32 s{sB}, s{sW}, 1
s_add_u32 s{sTILE}, s{sA}, s{sB}
s_mul_i32 s{sA}, s{sA}, {32*896}
s_lshl_b32 s{sB}, s{sC}, 7
s_add_u32 s{sA}, s{sA}, s{sB}
s_mul_i32 s{sD}, s{sW}, {16*896}
s_add_u32 s{sXRB}, s{sA}, s{sD}
s_mul_i32 s{sA}, s{sTILE}, {32*896}
s_add_u32 s{sA}, s{sA}, s{sB}
s_lshr_b32 s{sB}, s{sW}, 1
s_lshl_b32 s{sB}, s{sB}, 6
s_add_u32 s{sOUT}, s{sA}, s{sB}
s_mul_i32 s{sP}, s{sHQ}, {16*5120}
s_add_u32 s{sP}, s{sP}, {WS_PART}""")
WPK, WPQ, WPT = 192, 200, 208
vWPA, vWPB, vKVX, vIMW, vKA, vKB, vFPD, vFPC, vWO0, vWO1, vXRD0, vXRD1, vXRR, vWOR = range(128, 142)
I(f"""v_lshrrev_b32 v3, 5, v1
v_lshlrev_b32 v2, 4, v1
v_lshlrev_b32 v4, 2, v1
v_bfe_u32 v11, v1, 3, 2
v_lshl_add_u32 v11, v11, 2, v8
v_bfe_u32 v12, v1, 2, 1
v_mul_u32_u24 v12, 14, v12
v_min_u32 v13, 13, v11
v_add_u32 v13, v13, v12
v_lshlrev_b32 v13, 1, v13
v_mul_u32_u24 v14, 224, v3
v_add_u32 v{vWPA}, v13, v14
v_lshl_add_u32 v{vWPB}, v3, 20, v{vWPA}
v_add_u32 v12, v12, v11
v_cmp_gt_u32 vcc, 14, v11
v_lshrrev_b32 v7, 2, v1
v_mul_u32_u24 v7, 2688, v7
v_cndmask_b32 v12, 28, v12, vcc
v_and_b32 v13, 15, v12
v_lshlrev_b32 v13, 4, v13
v_lshrrev_b32 v12, 4, v12
v_lshl_add_u32 v13, v12, 3, v13
v_lshl_add_u32 v13, v3, 8, v13
v_add_u32 v{vKVX}, {L_KVX}, v13
v_lshlrev_b32 v11, 4, v8
v_min_u32 v11, 40, v11
v_add_u32 v7, v7, v11
v_and_b32 v9, 31, v1
v_lshlrev_b32 v240, 7, v9
v_bfe_u32 v11, v1, 1, 3
v_xor_b32 v11, v11, v3
v_lshl_add_u32 v240, v11, 4, v240
v_add_u32 v240, s{sXO}, v240
v_xor_b32 v241, 32, v240
v_xor_b32 v242, 64, v240
v_xor_b32 v243, 96, v240
v_mov_b32 v250, 0
v_mov_b32 v251, 0
s_lshl_b32 s{sA}, s{sW}, 5
v_add_u32 v10, s{sA}, v9
v_mul_u32_u24 v10, 208, v10
v_mul_u32_u24 v11, 96, v3
v_add_u32 v{vIMW}, v10, v11
v_lshrrev_b32 v10, 4, v1
v_bfe_u32 v15, v1, 2, 2
v_lshl_add_u32 v10, v10, 3, v15
v_mul_u32_u24 v10, 208, v10
v_and_b32 v11, 1, v1
v_mul_u32_u24 v11, 96, v11
v_add_u32 v10, v10, v11
v_bfe_u32 v11, v1, 1, 1
v_lshl_add_u32 v10, v11, 3, v10
v_add_u32 v{vKB}, {L_IMG}, v10
s_lshl_b32 s{sA}, s{sW}, 4
v_add_u32 v{vKA}, s{sA}, v{vKB}
v_add_u32 v{vFPD}, s{sWM}, v2
s_lshl_b32 s{sD}, s{sW}, 8
s_add_u32 s{sD}, s{sD}, 4096
v_add_u32 v{vFPC}, s{sD}, v4
v_lshrrev_b32 v12, 3, v1
v_mul_u32_u24 v14, 896, v12
v_and_b32 v13, 7, v1
v_xor_b32 v12, v12, v13
v_lshl_add_u32 v{vXRD0}, v12, 4, v14
v_add_u32 v{vXRD1}, {7168-1024}, v{vXRD0}
v_bfe_u32 v12, v1, 4, 1
v_lshlrev_b32 v11, 2, v12
v_xor_b32 v11, v11, v13
v_lshl_add_u32 v{vWO0}, v11, 4, v14
v_add_u32 v{vWO1}, {7168-1024}, v{vWO0}
s_and_b32 s{sA}, s{sW}, 1
s_lshl_b32 s{sA}, s{sA}, 12
s_add_u32 s{sA}, s{sA}, {L_XCH}
v_lshlrev_b32 v10, 7, v9
v_lshl_add_u32 v10, v3, 3, v10
v_add_u32 v10, s{sA}, v10
s_lshr_b32 s{sA}, s{sW}, 1
s_lshl_b32 s{sB}, s{sA}, 2
v_xor_b32 v13, s{sB}, v13
v_lshl_add_u32 v{vXRR}, v13, 4, v10
v_mad_u32_u24 v10, v3, 14, v15
v_lshlrev_b32 v10, 7, v10
v_bfe_u32 v13, v1, 3, 1
v_xor_b32 v13, v13, v3
v_xor_b32 v13, s{sA}, v13
v_lshl_add_u32 v10, v13, 6, v10
v_lshl_add_u32 v10, v12, 5, v10
v_lshl_add_u32 v10, v8, 3, v10
s_mul_i32 s{sA}, s{sA}, {8*28*128}
s_add_u32 s{sA}, s{sA}, {L_WO}
v_add_u32 v{vWOR}, s{sA}, v10
v_lshl_add_u32 v11, v3, 3, v15
v_lshlrev_b32 v11, 6, v11
v_lshl_add_u32 v12, v12, 2, v8
v_cmp_lt_u32 vcc, 5, v12
v_xor_b32 v13, 1, v12
s_mul_i32 s{sA}, s{sH}, 1568
s_mul_i32 s{sB}, s{sHQ}, 1568
v_cndmask_b32 v12, v12, v13, vcc
v_lshl_add_u32 v11, v12, 3, v11
v_add_u32 v13, {L_WK}, v11""")
I(f"""v_bfe_u32 v10, v1, 2, 1
v_bfe_u32 v14, v1, 4, 1
v_lshl_add_u32 v10, v14, 1, v10
v_cmp_eq_u32 vcc, v10, v3
v_and_b32 v10, 1, v1
v_lshlrev_b32 v10, 4, v10
v_mov_b32 v14, 0x3f80
v_lshlrev_b32 v10, v10, v14
v_cndmask_b32 v10, 0, v10, vcc
v_bfe_u32 v14, v1, 3, 1
v_bfe_u32 v15, v1, 1, 1
v_lshl_add_u32 v14, v14, 1, v15""")
for q in range(4): I(f"v_cmp_eq_u32 vcc, {q}, v14\nv_cndmask_b32 v15, 0, v10, vcc\nv_accvgpr_write_b32 a{220+q}, v15")
stamp("setup done", "p")
def wphi(dst, tmp, so):
    q = []
    for t in range(2):
        for j in range(8):
            d = 16 * t + 8 * (j >> 2) + (j & 3)
            av = vWPB if (t == 1 and j >= 4) else vWPA
            r = (dst if j % 2 == 0 else tmp) + 4 * t + j // 2
            op = "buffer_load_short_d16" if j % 2 == 0 else "buffer_load_short_d16_hi"
            q += mk(f"{op} v{r}, v{av}, {WPHI}, s{so} offen offset:{d*56}")
    return q
def wkdma(g): return flat(dmag([7], WQKV, sWB, f"s{sKW+g}", sWM, L_WK + 4096*g, f"wk{g}"))
def wvdma(g): return flat(dmag([9], WQKV, sWB, f"s{sKW+g}", sWM, L_WV + 4096*g, f"wv{g}"))
def wqdma(g): return flat(dmag([7], WQKV, sWQ, f"s{sKW+g}", sWM, L_WQ + 4096*g, f"wq{g}"))
I("v_add_u32 v9, 896, v7")
XF = 16
NX0 = opt("nx0", 4)
if opt("wt1", 0): P.add(wtouch(opt("wt1", 0), 249))
for g in range(NXE, NX0): P.add(xdma(g))
pend = [xdma(g) for g in range(NX0, 7)]
wkl = [wkdma(g) for g in range(7)]
if opt("wt2", 0): pend[-1] = pend[-1] + wtouch(opt("wt2", 0), 248)
pend.append(wkl.pop(0) + wphi(WPK, WPT, sA))
pend.append(wkl.pop(0) + wphi(WPQ, WPT+8, sB))
while len(pend) < 7: pend.append(wkl.pop(0))
def xrd(g): return flat([mk(f"ds_read_b128 {v(XF+16*g+4*e,4)}, v{240+e} offset:{4096*g}") for e in range(4)])
P.wait("x0"); P.add(xrd(0))
for g in range(7):
    if pend: P.add(pend.pop(0))
    if g + 1 < 7: P.wait(f"x{g+1}"); P.add(xrd(g + 1))
    for i in range(16):
        r = XF + 16*g + i
        I(f"v_dot2c_f32_bf16 v250, s{sONES}, v{r}\nv_dot2c_f32_bf16 v251, v{r}, v{r}")
    if g == 0: stamp("x0 done", "p")
for x_ in pend: P.add(x_)
stamp("x stats done", "mp")
I(f"""v_permlane32_swap_b32 v250, v251
v_or_b32 v5, 1, v5
s_mov_b32 s{sA}, 0x9E3779B5
v_add_f32 v250, v250, v251
v_mul_f32 v250, {fhex(-1/448)}, v250
v_mov_b32 v251, v250
v_mul_lo_u32 v5, v5, s{sA}
s_mov_b32 s{sA}, 0x3f80
v_permlane32_swap_b32 v250, v251
s_mov_b32 s{sB}, 0x3f800000""")
fin = mk(f"""v_fma_f32 v251, -v250, v250, -v251
v_max_f32 v251, 0, v251
v_add_f32 v251, 0x3727c5ac, v251
v_rsq_f32 v251, v251
s_lshl_b32 s{sQ}, s{sC}, 7
s_mul_i32 s{sD}, s{sW}, {16*896}
v_mul_f32 v252, 0x3fb8aa3b, v251
v_mul_f32 v253, 0xbfb8aa3b, v251
s_add_u32 s{sQ}, s{sQ}, s{sD}
s_lshl_b32 s{sXO}, s{sW}, 11""")
if opt("noid", 1): fin = [mk(f"s_cmp_ge_u32 s{sRact}, 14\ns_cselect_b32 s22, 0, s22")] + fin
ACK = 144; ACV = 160; PK = 176; IMG = 208; TMP = 232
def norm(t):
    q = Prog(); tb = TMP + 8 * (t & 1)
    for i in range(4):
        r = XF + 4 * t + i
        q.I(f"v_dot2_f32_bf16 v{tb+2*i}, v{r}, s{sA}, v250\nv_dot2_f32_bf16 v{tb+2*i+1}, v{r}, s{sB}, v250")
    return q.items
def normc(t):
    tb = TMP + 8 * (t & 1)
    return flat([mk(f"v_cvt_pk_bf16_f32 v{XF+4*t+i}, v{tb+2*i}, v{tb+2*i+1}") for i in range(4)])
def l2t(srd, k, dst):
    return mk(f"""s_lshr_b32 s{sCt}, s2, 3
s_lshl_b32 s{sCt}, s{sCt}, 2
s_add_u32 s{sCt}, s{sCt}, s{sW}
s_mul_i32 s{sCt}, s{sCt}, {98*128}
s_mov_b32 exec_hi, 0x1ffff
s_add_u32 s{sCt}, s{sCt}, {k*49*128}
buffer_load_dword v{dst}, v6, {srd}, s{sCt} offen
s_mov_b32 exec_hi, -1""")
L2A, L2B = opt("l2a", -1), opt("l2b", -1)
ns = norm(0)
for t in range(1, 28): ns += norm(t) + normc(t - 1)
ns += normc(27)
NBAR = opt("nbar", 100)
wvl = [wvdma(k) for k in range(7)]
if opt("loop2", 0):
    I("s_mov_b32 s80, 0\nL_lp2:\ns_mov_b32 s101, s100\ns_memtime s[78:79]\ns_waitcnt lgkmcnt(0)\ns_mov_b32 s99, s78")
    P.add([Ins(x.text) for x in ns])
    I("s_memtime s[78:79]\ns_waitcnt lgkmcnt(0)\ns_sub_u32 s100, s78, s99\ns_add_u32 s100, s100, s88\ns_add_u32 s80, s80, 1\ns_cmp_lt_u32 s80, 2\ns_cbranch_scc1 L_lp2")
    nstamp[0] = 14
P.add(sprinkle(ns[:NBAR], wkl, 0, opt("wkstep", 30)))
I("s_barrier")
NWV0 = opt("nwv0", 3)
P.add(sprinkle(ns[NBAR:], [wvl.pop(0) for _ in range(NWV0)], opt("wv0", 60), opt("wvstep", 60)))
P.wait(*[f"wk{k}" for k in range(7)]); I("s_barrier")
stamp("wk landed", "p")
AH = 6
pro, gk = gemm_lds([(13, 1024*t, 1024*t + 256, (XF + 4*t, ACK, t == 0, False)) for t in range(28)], AH)
P.add(pro)
S = Sched(gk)
S.spread(wvl, 0, opt("wve", 28))
for k, ps in enumerate((L2A, L2B)):
    if 0 <= ps < 28: S.at(ps, l2t(W1, k, 248 + k))
S.spread(fin + flat([mk(f"v_or_b32 v{WPK+q}, v{WPK+q}, v{WPT+q}\nv_or_b32 v{WPQ+q}, v{WPQ+q}, v{WPT+8+q}") for q in range(8)]), 2, 26)
P.add(S.emit())
def phi_pre(acc, wp):
    q = Prog()
    for i in range(8): q.I(f"v_cvt_pk_bf16_f32 v{acc+i}, v{acc+2*i}, v{acc+2*i+1}")
    q.I(f"{MF} {v(PK,16)}, {v(wp,4)}, {v(acc,4)}, 0\n{MF} {v(PK,16)}, {v(wp+4,4)}, {v(acc+4,4)}, {v(PK,16)}")
    return q.items
stamp("k gemm done", "mp")
wql = [wqdma(k) for k in range(7)]
P.add(wql.pop(0))
P.add(phi_pre(ACK, WPK))
imw = flat([mk(f"ds_write_b128 v{vIMW}, {v(IMG+4*i,4)} offset:{L_IMG+16*i}") for i in range(3)]) + mk(f"ds_write_b64 v{vIMW}, {v(IMG+12,2)} offset:{L_IMG+48}")
touch = mk(f"""s_mul_i32 s{sA}, s2, {52*128}
s_mul_i32 s{sB}, s{sW}, {13*128}
s_add_u32 s{sA}, s{sA}, s{sB}
s_mov_b64 exec, 0x1fff
buffer_load_dword v255, v6, {W1}, s{sA} offen
buffer_load_dword v254, v6, {W2}, s{sA} offen
s_mov_b64 exec, -1""")
smk = sprinkle(softmax(PK, TMP, IMG, True), [wql.pop(0) for _ in range(opt("nwq0", 3))], 10, opt("wqs", 40))
WEAVE = opt("weave", 0)
pro, gv = gemm_lds([(11, L_WV + 1024*t, L_WV + 1024*t + 256, (XF + 4*t, ACV, t == 0, False)) for t in range(28)], AH)
S = Sched(gv)
if not WEAVE:
    P.add(smk)
    P.wait(*[f"wv{k}" for k in range(7)]); I("s_barrier")
    stamp("softmax k done", "p")
    P.add(pro)
    S.spread(imw, 2, 10)
else:
    smf = softmax(PK, TMP, IMG, 2)
    n0 = next(i for i, x in enumerate(smf) if x.op == "v_exp_f32")
    P.wait(*[f"wv{k}" for k in range(4)]); I("s_barrier")
    P.add(pro)
    P.add(smf[:n0])
    stamp("softmax k done", "p")
    S.spread(smf[n0:] + imw, 0, 28)
    S.at(15 - AH, [WaitTag(["wv4", "wv5", "wv6"])] + mk("s_barrier"), 1.0)
    wql = [wqdma(k) for k in range(1, 7)]
wo_l = flat([dmag([vWO0, vWO1], WO, sQ, i*64*896, sXO, L_WO + 8192*i, "wo", sDM) for i in range(7)] + [dmag([vXRD0, vXRD1], X, sXRB, 0, sXO, L_XCH, "wo", sDM)])
S.spread(wql, 0, opt('wqe', 14))
if L2A >= 0: touch = [x for x in touch if W1 not in x.text]
tlb = []
if opt("tlb", 0) & 1: tlb += mk(f"s_mov_b64 exec, 1\nbuffer_load_dword v248, v6, {OUT}, s{sOUT} offen\ns_mov_b64 exec, -1")
if opt("tlb", 0) & 2: tlb += mk(f"v_lshlrev_b32 v249, 20, v1\ns_mov_b64 exec, 0xffff\nbuffer_load_dword v249, v249, {WS}, 0 offen offset:4092\ns_mov_b64 exec, -1")
if tlb: S.at(opt("tlbp", 13), tlb)
if opt("touch", 1): S.at(15, touch)
for k, ps in enumerate((L2A, L2B)):
    if 200 <= ps < 228: S.at(ps - 200, l2t(W1, k, 248 + k))
S.spread([wo_l.pop(0) for _ in range(2*opt("nwo0", 2))], 17, 28)
P.add(S.emit())
for k in range(0, 16, 2): I(f"v_pk_mul_f32 {v(ACV+k,2)}, {v(ACV+k,2)}, v[250:251] op_sel:[0,1] op_sel_hi:[1,1]")
I(f"v_cndmask_b32 v{ACV+12}, v{ACV+12}, 1.0, {sHI}")
for i in range(8): I(f"v_cvt_pk_bf16_f32 v{IMG+16+i}, v{ACV+2*i}, v{ACV+2*i+1}")
for i in range(4, 6): I(f"ds_write_b128 v{vIMW}, {v(IMG+4*i,4)} offset:{L_IMG+16*i}")
P.wait("wq0", "wq1", "wq2", "wq3")
I("s_waitcnt lgkmcnt(0)\ns_barrier")
stamp("img written", "p")
KA = 144; KBv = 208; KD = 176
for k in range(4):
    for u in range(2):
        I(f"ds_read_b64_tr_b16 {v(KA+4*k+2*u,2)}, v{vKA} offset:{(32*k+4*u)*208}")
    for nu in range(2):
        for u in range(2):
            I(f"ds_read_b64_tr_b16 {v(KBv+8*k+4*nu+2*u,2)}, v{vKB} offset:{(32*k+4*u)*208+64+16*nu}")
proq, gq = gemm_lds([(11, L_WQ + 1024*t, L_WQ + 1024*t + 256, (XF + 4*t, ACV, t == 0, False)) for t in range(28)], AH)
for k in range(4):
    for nu in range(2):
        I(f"v_mfma_f32_16x16x32_bf16 {v(KD+4*nu,4)}, {v(KA+4*k,4)}, {v(KBv+8*k+4*nu,4)}, {'0' if k == 0 else v(KD+4*nu,4)}")
P.add(proq[:8])
for i in range(4): I(f"v_cvt_pk_bf16_f32 v{KD+8+i}, v{KD+2*i}, v{KD+2*i+1}")
I(f"buffer_store_dwordx4 {v(KD+8,4)}, v2, {WS}, s{sPST} offen sc1")
I(f"v_xor_b32 v10, v{KD+8}, v5")
I(f"buffer_store_dword v10, v4, {WS}, s{sPCK} offen sc1")
if GATE & 1: P.add(flag_store(16))
P.add(proq[8:])
stamp("partial stored", "mp")
sW1B, sW1M, sW2E, sW2L = 40, 41, 42, 43
set2 = mk(f"""v_lshrrev_b32 v10, 4, v1
v_mul_u32_u24 v12, 3584, v10
v_lshlrev_b32 v10, 2, v10
v_and_b32 v13, 15, v1
v_xor_b32 v10, v10, v13
v_lshl_add_u32 v12, v10, 4, v12
v_add_u32 v13, {4*3584-1024}, v12
v_add_u32 v14, {2*(4*3584-1024)}, v12
v_add_u32 v15, {3*(4*3584-1024)}, v12
s_lshl_b32 s{sW1B}, s{sR}, 8
s_mul_i32 s{sD}, s{sW}, {16*3584}
s_add_u32 s{sW1B}, s{sW1B}, s{sD}
s_lshl_b32 s{sW1M}, s{sW}, 12
s_lshr_b32 s{sA}, s{sW}, 1
s_lshl_b32 s{sA}, s{sA}, 2
s_andn2_b32 s{sB}, 1, s{sW}
s_add_u32 s{sA}, s{sA}, s{sB}
s_lshl_b32 s{sB}, s{sU}, 1
s_add_u32 s44, s{sA}, s{sB}
s_xor_b32 s45, s44, 2
s_lshl_b32 s{sD}, s{sC}, 7
s_mul_i32 s{sW2E}, s44, {32*896}
s_add_u32 s{sW2E}, s{sW2E}, s{sD}
s_mul_i32 s{sW2L}, s45, {32*896}
s_add_u32 s{sW2L}, s{sW2L}, s{sD}
""")
vW2 = [vWO0, vWO1, 128, 129]
sSCR, sBIG = 46, 47
NRL = opt("nrl", 3)
RAWS = [2, 3] + list(range(7, 7 + NRL))
def UA(j): return 16*j
def w2slot(j): return (sSCR, 4096*{0:0, 1:1, 2:0, 3:1, 4:0, 5:1, 6:2}[j], 254) if j < 7 else (sBIG, 4096*(j - 7), 252)
def w2dma(j):
    mb, mo, _ = w2slot(j)
    return dmag(vW2, W2, sW2E if j < 7 else sW2L, (j%7)*256*896, mb, mo, f"w2_{j}", sDM)
def w2raw(j):
    ch = [mk(f"buffer_load_dwordx4 {a_(UA(j)+4*q,4)}, v{vW2[q]}, {W2}, s49 offen offset:{1024*q}") for q in range(4)]
    ch[0] = mk(f"s_add_u32 s49, s{sW2E if j < 7 else sW2L}, {(j%7)*256*896}") + ch[0]
    return ch
def w2rd(j):
    _, mo, av = w2slot(j)
    if j in RAWS: out = [mk(f"ds_write_b128 v{131 if j >= 7 else 134}, {a_(UA(j)+4*q,4)} offset:{mo+1024*q}") for q in range(4)]
    else: out = [[WaitTag([f"w2_{j}"])]]
    for e in range(2):
        for mu in range(2):
            for u in range(2): out.append(mk(f"ds_read_b64_tr_b16 {a_(UA(j)+8*e+4*mu+2*u,2)}, v{av+mu} offset:{mo+2048*e+1024*u}"))
    return out
raw = w2raw(2) + w2raw(3)
if opt("noid", 1): set2 = [mk(f"s_cmp_ge_u32 s{sRact}, 14\ns_cselect_b32 s26, 0, s26")] + set2
set2 += mk(f"v_add_u32 v128, {2*(7168-1024)}, v{vWO0}\nv_add_u32 v129, {3*(7168-1024)}, v{vWO0}")
S = Sched(gq)
S.spread(wo_l, 0, opt("woe", 28))
S.spread(set2, 2, 18)
S.spread([raw.pop(0) for _ in range(opt("rawa", 0))], 20, 28)
G0 = gate("g0", vPO, vPF)
if GATE & 1: S.at(opt("g0", 14), G0.load(0))
S.at(15 - AH, [WaitTag(["wq4", "wq5", "wq6"])] + mk("s_barrier"), 1.0)
P.add(S.emit())
stamp("q gemm done", "p")
G = 16; GC = 80; SA = 96
FP = Fetch("fp", [([f"s_add_u32 s{sCt}, s{sP}, {5120*T}\nbuffer_load_dwordx4 {v(G+4*T,4)}, v{vFPD}, {WS}, s{sCt} offen sc1\nbuffer_load_dword v{GC+T}, v{vFPC}, {WS}, s{sCt} offen sc1"],
                   [G+4*T, GC+T]) for T in range(16)])
P.add(phi_pre(ACV, WPQ))
if GATE & 1: P.add(G0.check(0, 0))
I("s_barrier")
PQ = 208
P.add(sprinkle(softmax(PK, TMP, PQ, True), [FP.load(T) for T in range(16)], opt("fp0", 0), opt("fpstep", 8)))
stamp("softmax q done", "p")
w1_l = flat([dmag([12, 13, 14, 15], W1, sW1B, i*64*3584, sW1M, 16384*i, "w1", sDM) for i in range(7)])
def fpb(b):
    t = []
    for k, T in enumerate(range(4*b, 4*b+4)):
        t.append(f"v_bitop3_b32 v{10 if k == 0 else 9}, v{G+4*T}, v{GC+T}, v5 {X3}" + ("" if k == 0 else "\nv_or_b32 v10, v10, v9"))
    return "\n".join(t) + "\nv_cmp_ne_u32 vcc, 0, v10"
RI = TAIL.I if opt("ool", 1) else I
if not opt("ool", 1): I("s_branch L_fp_go")
RI("L_fp_retry:" + ("\ns_add_u32 s80, s80, 1" if DIAG else ""), unc=True)
for b in range(4):
    RI(fpb(b) + f"\ns_cbranch_vccz L_fp_k{b}\n" + "\n".join(FP.pieces[T][0][0] for T in range(4*b, 4*b+4)) + f"\nL_fp_k{b}:", unc=True)
RI(GUARD, unc=True)
if opt("ool", 1): RI("s_branch L_fp_go", unc=True)
I("L_fp_go:")
I(fpb(0) + "\ns_cbranch_vccnz L_fp_retry")
S = Sched([mk(f"{MF} {v(SA,16)}, a[220:223], {v(G+4*T,4)}, {'0' if T == 0 else v(SA,16)}") for T in range(16)])
for b in range(1, 4): S.spread(mk(fpb(b) + "\ns_cbranch_vccnz L_fp_retry"), 4*b - 3, 4*b)
S.spread([w1_l.pop(0) for _ in range(opt("nw1a", 2))], 12, 16)
P.add(S.emit())
I(f"v_add_u32 v9, {L_KVX}, v{vFPD}")
for i in range(4): I(f"v_cvt_pk_bf16_f32 v{SA+8+i}, v{SA+2*i}, v{SA+2*i+1}")
I(f"ds_write_b128 v9, {v(SA+8,4)}\ns_waitcnt lgkmcnt(0)\ns_barrier")
stamp("kv summed", "mp")
KVA = 32; OD = 48
for q in range(7): I(f"ds_read_b64 {v(KVA+2*q,2)}, v{vKVX} offset:{512*q}")
P.add(w1_l.pop(0))
for s in range(3):
    I(f"{MF} {v(OD,16)}, {v(KVA+4*s,4)}, {v(PQ+4*s,4)}, {'0' if s == 0 else v(OD,16)}")
    if s == 1: P.add(w1_l.pop(0))
I(f"v_mfma_f32_32x32x8_bf16 {v(OD,16)}, {v(KVA+12,2)}, {v(PQ+12,2)}, {v(OD,16)}")
I(f"""s_lshl_b32 s{sP}, s{sTILE}, 15
s_lshr_b32 s{sB}, s{sW}, 1
s_lshl_b32 s{sB}, s{sB}, 14
s_add_u32 s{sP}, s{sP}, s{sB}
s_add_u32 s{sP}, s{sP}, {WS_O}
s_add_u32 s{sA}, s{sW1M}, {L_XCH}
v_add_u32 v132, s{sA}, v2
v_xor_b32 v133, 8192, v132
v_xor_b32 v9, 64, v{vWOR}
v_and_b32 v7, 31, v1
v_mul_u32_u24 v7, 896, v7
v_add_f32 v{OD+14}, 0x358637bd, v{OD+14}
v_rcp_f32 v{OD+14}, v{OD+14}
v_lshl_add_u32 v7, v3, 4, v7""")
for k in range(0, 14, 2): I(f"v_pk_mul_f32 {v(OD+k,2)}, {v(OD+k,2)}, {v(OD+14,2)} op_sel_hi:[1,0]")
for k in range(4): I(f"v_cvt_pk_bf16_f32 v{64+k}, v{OD+2*k}, v{OD+2*k+1}")
I(f"buffer_store_dwordx4 v[64:67], v2, {WS}, s{sOST} offen sc1")
for k in range(4, 7): I(f"v_cvt_pk_bf16_f32 v{64+k}, v{OD+2*k}, v{OD+2*k+1}")
I(f"""v_bitop3_b32 v71, v64, v5, s{sMASK} bitop3:0x28
v_and_b32 v6, s{sMASK}, v5
buffer_store_dwordx4 v[68:71], v2, {WS}, s{sOST} offen offset:1024 sc1""")
if GATE & 2: P.add(flag_store(7))
stamp("o stored", "mo")
P.wait("wo")
I(f"s_cmp_ge_u32 s{sRact}, 14\ns_cbranch_scc1 L_idle\ns_barrier")
wor = []
for s in range(16):
    hh, e = s >> 1, s & 1
    for k, av in ((0, vWOR), (1, 9)):
        for u in range(2):
            wor += mk(f"ds_read_b64_tr_b16 {a_(128+8*s+4*k+2*u,2)}, v{av} offset:{(28*hh+8*e+4*u)*128}")
XR = 224
xrr = []
for i in range(4): xrr += mk((f"v_xor_b32 v10, {16*i}, v{vXRR}\n" if i else "") + f"ds_read_b64 {v(XR+2*i,2)}, v{10 if i else vXRR}")
P.add(xrr)
G1 = gate("g1", vPO, vPF)
nb_ = min(opt("nw1b", 12), len(w1_l) - 8)
wor = sprinkle(wor, [w1_l.pop(0) for _ in range(nb_)], 0, opt("w1bs", 5))
if GATE & 2: wor = sprinkle(wor, [G1.load(0)], opt("g1", 40), 1)
P.add(wor)
OB = 16
FO = Fetch("fo", [([f"s_add_u32 s{sCt}, s{sP}, {2048*hh}\nbuffer_load_dwordx4 {v(OB+8*hh,4)}, v2, {WS}, s{sCt} offen sc1\nbuffer_load_dwordx4 {v(OB+8*hh+4,4)}, v2, {WS}, s{sCt} offen offset:1024 sc1"],
                   [OB+8*hh, OB+8*hh+7]) for hh in range(8)], masked=True, nre=opt('reo', 2))
stamp("pre o fetch", "o")
AO, AT = 80, 96
pre2 = []
for i in range(8): pre2 += mk(f"v_lshlrev_b32 v{112+2*i}, 16, v{XR+i}\nv_and_b32 v{113+2*i}, s{sHIM}, v{XR+i}")
for s in range(1, 16, 2): pre2 += mk(f"v_accvgpr_write_b32 a{128+8*s+3}, 0\nv_accvgpr_write_b32 a{128+8*s+7}, 0")
if GATE & 2:
    P.add(pre2); P.add(G1.check(0, 0))
    stamp("gate1", "o")
    for hh in range(8): P.add(FO.load(hh))
else: P.add(sprinkle(pre2, [FO.load(hh) for hh in range(8)], 0, 4))
I("s_waitcnt lgkmcnt(0)\ns_barrier")
stamp("fo issued", "o")
g2 = []
for s in range(16):
    for k, acc in ((1, AT), (0, AO)):
        c = ("0" if k else v(112,16)) if s == 0 else v(acc,16)
        g2.append(mk(f"{MF} {v(acc,16)}, {a_(128+8*s+4*k,4)}, {v(OB+4*s,4)}, {c}"))
set3 = mk(f"""s_mul_i32 s{sSCR}, s{sW}, 12288
s_mul_i32 s{sBIG}, s{sW}, 28672
v_add_u32 v131, s{sBIG}, v2
s_lshl_b32 s{sB}, s{sC}, 1
s_lshr_b32 s{sD}, s{sW}, 1
s_add_u32 s{sB}, s{sB}, s{sD}
s_mul_i32 s{sA}, s{sTILE}, 14
s_add_u32 s{sB}, s{sB}, s{sA}
s_mul_i32 s{sPST}, s{sB}, 2560
s_add_u32 s{sPST}, s{sPST}, {WS_H}
s_lshr_b32 s48, s{sW}, 1
s_nop 0
v_bfe_u32 v9, v1, 2, 2
v_lshl_add_u32 v240, v3, 2, v9
v_lshlrev_b32 v254, 7, v240
v_lshlrev_b32 v240, 8, v240
v_xor_b32 v9, s{sW}, v9
v_lshl_add_u32 v240, v9, 6, v240
v_bfe_u32 v9, v1, 4, 1
v_lshlrev_b32 v9, 5, v9
v_lshl_add_u32 v9, v8, 3, v9
v_add_u32 v240, v240, v9
v_add_u32 v254, v254, v9
v_bfe_u32 v9, v1, 3, 1
v_xor_b32 v9, s48, v9
v_lshl_add_u32 v254, v9, 6, v254
s_add_u32 s{sSCR}, s{sSCR}, {L_SCR}
v_add_u32 v252, s{sBIG}, v254
v_xor_b32 v253, 64, v252
v_add_u32 v254, s{sSCR}, v254
v_add_u32 v134, s{sSCR}, v2
v_xor_b32 v255, 64, v254
v_xor_b32 v241, 64, v240
v_xor_b32 v242, 128, v240
v_xor_b32 v243, 192, v240""") + flat([mk(f"v_add_u32 v{244+m}, 57344, v{240+m}") for m in range(4)])
P.add(sprinkle(set3[:14], [w1_l.pop(0) for _ in range(opt("nw1c", 4))], 0, 5))
P.add(FO.check(0, 7))
stamp("fo0", "o")
S = Sched(g2)
for hh in range(1, 8): S.spread(FO.checkc(hh, 7), 4*hh - 3, 4*hh)
S.spread(w1_l + [raw.pop(0) for _ in range(min(len(raw), opt("rawb", 4)))], 0, 32)
S.spread(set3[14:], 0, 30)
P.add(S.emit())
stamp("p2 gemm done", "o")
for i in range(4): I(f"ds_write_b128 v132, {v(AT+4*i,4)} offset:{1024*i}")
I("v_mov_b32 v112, 0\nv_mov_b32 v113, 0\ns_waitcnt lgkmcnt(0)\ns_barrier")
for i in range(4): I(f"ds_read_b128 {v(AT+4*i,4)}, v133 offset:{1024*i}")
HR = XR
for k in range(0, 8, 2): I(f"v_pk_add_f32 {v(AO+k,2)}, {v(AO+k,2)}, {v(AT+k,2)}")
for i in range(4): I(f"v_cvt_pk_bf16_f32 v{HR+i}, v{AO+2*i}, v{AO+2*i+1}")
I(f"buffer_store_dwordx4 {v(HR,4)}, v2, {WS}, s{sPST} offen sc1")
for k in range(8, 16, 2): I(f"v_pk_add_f32 {v(AO+k,2)}, {v(AO+k,2)}, {v(AT+k,2)}")
for i in range(4, 8): I(f"v_cvt_pk_bf16_f32 v{HR+i}, v{AO+2*i}, v{AO+2*i+1}")
I(f"buffer_store_dwordx4 {v(HR+4,4)}, v2, {WS}, s{sPST} offen offset:1024 sc1")
for i in range(8): I(f"v_dot2c_f32_bf16 v112, s{sONES}, v{HR+i}\nv_dot2c_f32_bf16 v113, v{HR+i}, v{HR+i}")
I(f"""v_bitop3_b32 v10, v{HR}, v{HR+4}, v5 {X3}
v_permlane32_swap_b32 v112, v113
v_add_f32 v112, v112, v113
buffer_store_dword v112, v4, {WS}, s{sPST} offen offset:2048 sc1
v_xor_b32 v113, v10, v112
buffer_store_dword v113, v4, {WS}, s{sPST} offen offset:2304 sc1""")
def selft(sreg, nl): return mk(f"s_mov_b64 exec, {(1 << nl) - 1}\nbuffer_load_dword v135, v134, {WS}, s{sreg} offen sc1\ns_mov_b64 exec, -1")
SELF = opt("self", 0)
if SELF & 1: P.add(selft(sPST, 20))
if GATE & 4: P.add(flag_store(14))
stamp("h stored", "moh")
HB = 16; ST = 192
ACC = [144, 160, 176, 192]; AUG = 232
set4 = mk(f"""s_lshl_b32 s{sB}, s{sT3}, 2
s_add_u32 s{sB}, s{sB}, s{sW}
s_mul_i32 s{sP}, s{sB}, {14*2560}
s_add_u32 s{sP}, s{sP}, {WS_H}
s_mul_i32 s{sA}, s{sB}, 56
s_lshl_b32 s{sD}, s{sR}, 2
s_add_u32 s{sA}, s{sA}, s{sD}
s_mul_i32 s{sQ}, s{sA}, 2304
s_add_u32 s{sQ}, s{sQ}, {WS_H1}
v_lshlrev_b32 v13, 3, v1
s_lshl_b32 s{sA}, s{sW}, 9
s_add_u32 s{sA}, s{sA}, {L_AUG}
v_add_u32 v13, s{sA}, v13
v_mov_b32 v222, 0""")
FH = Fetch("fh", [([f"s_add_u32 s{sCt}, s{sP}, {2560*p}\nbuffer_load_dwordx4 {v(HB+8*p,4)}, v2, {WS}, s{sCt} offen sc1\nbuffer_load_dwordx4 {v(HB+8*p+4,4)}, v2, {WS}, s{sCt} offen offset:1024 sc1\n"
                    f"buffer_load_dword v{ST+2*p}, v4, {WS}, s{sCt} offen offset:2048 sc1\nbuffer_load_dword v{ST+2*p+1}, v4, {WS}, s{sCt} offen offset:2304 sc1"],
                   [HB+8*p, HB+8*p+4, ST+2*p, ST+2*p+1]) for p in range(14)], nre=opt('reh', 2))
for i in range(4): I(f"v_mov_b32 v{AUG+i}, s{sONES}")
P.wait("w1"); I("s_barrier")
stamp("w1 landed", "h")
def w1a(t, k): return (240 + k + (4 if t >= 14 else 0), (t % 14) * 4096, (t % 14) * 4096 + 2048)
st3 = [w1a(t, 0) + ((AUG, ACC[2], t == 0, True),) for t in range(28)]
for t in range(28):
    for k in range(3): st3.append(w1a(t, k) + ((HB + 4*t, ACC[k], t == 0, False),))
for t in range(28): st3.append(w1a(t, 3) + ((HB + 4*t, ACC[3], t == 0, False),))
pro, g3 = gemm_lds(st3, AH)
P.add(pro)
S3 = Sched(g3)
S3.spread(set4, 0, 8)
S3.spread(raw + w2dma(0) + w2dma(1), 0, opt("c0e", 20)); raw = []
NH0 = opt("nh0", 4); H0 = opt("h0", 24)
G2 = gate("g2", vPO, vPF)
if GATE & 4:
    S3.at(opt("g2", 12), G2.load(0), 0.9)
    S3.at(27, G2.check(0, 0) + stampi("gate2", "h") + flat([FH.load(p) for p in range(NH0)]), 0.5)
else: S3.spread(flat([FH.loadc(p) for p in range(NH0)]), H0, 27)
cs = ACC[2]
csx = mk(f"""v_cvt_pk_bf16_f32 v{AUG}, v{cs}, v{cs}
v_lshlrev_b32 v{AUG+1}, 16, v{AUG}
v_sub_f32 v{AUG+1}, v{cs}, v{AUG+1}
v_cvt_pk_bf16_f32 v{AUG}, v{cs}, v{AUG+1}
v_and_b32 v{AUG+1}, 0xffff, v{AUG}
v_cndmask_b32 v{AUG}, v{AUG}, 0, {sHI}
v_cndmask_b32 v{AUG+1}, v{AUG+1}, 0, {sHI}
ds_write_b64 v13, {v(AUG,2)}""")
S3.at(27, stampi("colsum done", "h") + csx + FH.check(0, NH0 - 1) + stampi("fh0", "h"), 1.0)
B0 = 28
for p in range(14):
    b = B0 + 6*p
    if p + NH0 < 14:
        for k_, c_ in enumerate(FH.loadc(p + NH0)): S3.at(b + (0, 2, 4, 4)[k_], c_, 0.2)
    S3.at(b, mk(f"v_add_f32 v222, v222, v{ST+2*p}"), 0.0)
    if p + 1 < 14: S3.spread(FH.checkc(p + 1, min(13, p + NH0 - 1)), b + 1, b + 6)
    if p in (3, 7, 11): S3.at(b + 5, stampi(f"fh{p+1}", "h"), 1.0)
S3.at(B0 + 20, mk("s_waitcnt lgkmcnt(0)\ns_barrier") + flat([mk(f"v_xor_b32 v9, {512*k}, v13\nds_read_b64 {v(AUG+2*k,2)}, v9") for k in range(1, 4)]), 0.0)
mid = mk(f"""v_mul_f32 v220, {fhex(1/448)}, v222
v_mov_b32 v221, v220
s_nop 0
v_permlane32_swap_b32 v220, v221
v_fma_f32 v221, -v220, v220, v221
v_max_f32 v221, 0, v221
v_add_f32 v221, 0x3727c5ac, v221
v_rsq_f32 v251, v221
v_cvt_pk_bf16_f32 v222, -v220, -v220
v_lshlrev_b32 v9, 16, v222
v_sub_f32 v9, -v220, v9
v_cvt_pk_bf16_f32 v223, v9, 0
v_mul_f32 v250, v221, v251
v_mul_f32 v251, 0xbfb8aa3b, v251
v_cndmask_b32 v222, v222, 0, {sHI}
v_cndmask_b32 v223, v223, 0, {sHI}""")
S3.spread(mid, B0 + 79, B0 + 84)
def aug(k): return mk(f"v_mfma_f32_32x32x8_bf16 {v(ACC[k],16)}, {v(AUG+2*k,2)}, v[222:223], {v(ACC[k],16)}")
SLT = 132
def silu(k, pk):
    q = Prog(); a = ACC[k]; t = 208
    q.I(f"s_xor_b32 s50, s{sW}, {k}\ns_mul_i32 s50, s50, 2304\ns_add_u32 s50, s50, s{sQ}")
    for half in range(2):
        b = a + 8 * half
        if pk:
            for j in range(0, 8, 2): q.I(f"v_pk_mul_f32 {v(t+j,2)}, {v(b+j,2)}, v[250:251] op_sel:[0,1] op_sel_hi:[1,1]")
        else:
            for j in range(8): q.I(f"v_mul_f32 v{t+j}, v{b+j}, v251")
        for j in range(8): q.I(f"v_exp_f32 v{t+j}, v{t+j}")
        if pk:
            for j in range(0, 8, 2): q.I(f"v_pk_fma_f32 {v(t+j,2)}, {v(t+j,2)}, v[250:251], v[250:251] op_sel_hi:[1,0,0]")
        else:
            for j in range(8): q.I(f"v_fma_f32 v{t+j}, v{t+j}, v250, v250")
        for j in range(8): q.I(f"v_rcp_f32 v{t+j}, v{t+j}")
        if pk:
            for j in range(0, 8, 2): q.I(f"v_pk_mul_f32 {v(b+j,2)}, {v(b+j,2)}, {v(t+j,2)}")
        else:
            for j in range(8): q.I(f"v_mul_f32 v{b+j}, v{b+j}, v{t+j}")
        for j in range(4): q.I(f"v_cvt_pk_bf16_f32 v{b+j}, v{b+2*j}, v{b+2*j+1}")
        q.I(f"buffer_store_dwordx4 {v(b,4)}, v2, {WS}, s50 offen offset:{1024*half} sc1")
    q.I(f"v_bitop3_b32 v216, v5, v{a}, v{a+8} {X3}")
    q.I(f"buffer_store_dword v216, v4, {WS}, s50 offen offset:2048 sc1")
    return q.items + ([selft(50, 18)] if SELF & 2 and not pk else [])
E0 = B0 + 84
assert not raw
S3.spread(w2rd(0) + w2rd(1) + w2rd(2) + w2rd(3), B0 + 22, B0 + 58)
S3.at(B0 + 44, mk("s_barrier"), 0.0)
WD = opt("wd", 64)
S3.spread(w2dma(4) + w2dma(5) + w2dma(6), B0 + WD, E0)
B4 = 16
CKR = [240, 241, 242, 244, 245, 246, 248, 249, 217, 218, 219, 130, 243, 247]
C4 = [[a_(224,16), a_(240,16)], [v(ACC[0],16), v(ACC[1],16)]]
set5 = mk(f"""s_mul_i32 s{sA}, s{sTILE}, 56
s_xor_b32 s{sB}, s{sTILE}, 1
s_mul_i32 s{sB}, s{sB}, 56
s_add_u32 s51, s{sB}, s44
s_add_u32 s52, s{sA}, s44
s_add_u32 s53, s{sB}, s45
s_add_u32 s54, s{sA}, s45""")
for k in range(4):
    set5 += mk(f"s_mul_i32 s{51+k}, s{51+k}, 2304\ns_add_u32 s{51+k}, s{51+k}, {WS_H1}")
S3.spread(set5, B0 + 60, B0 + 78)
def piece4(n):
    st, i = n // 7, n % 7; r = B4 + 8 * (n % 14); c = CKR[n % 14]
    return ([f"s_add_u32 s{sCt}, s{51+st}, {8*2304*i}\nbuffer_load_dwordx4 {v(r,4)}, v2, {WS}, s{sCt} offen sc1\nbuffer_load_dwordx4 {v(r+4,4)}, v2, {WS}, s{sCt} offen offset:1024 sc1\n"
             f"buffer_load_dword v{c}, v4, {WS}, s{sCt} offen offset:2048 sc1"], [r, r+4, c])
F4 = Fetch("f4", [piece4(n) for n in range(28)], nre=opt("re4", 1))
ND = opt("nd", 4)
rawl = flat([w2raw(j) for j in range(7, 7 + NRL)])
nr0 = min(len(rawl), opt("nr0", 4))
S3.at(E0 - 1, stampi("p3 pass1 done", "mh") + aug(0) + aug(1) + aug(2) + sprinkle(silu(0, True), rawl[:nr0], 3, 12) + stampi("silu0 done", "e"), 1.0)
S3.spread(silu(1, False), E0, E0 + 26)
S3.spread(rawl[nr0:], E0, E0 + 14)
F4S = opt("f4s", 16)
S3.spread(flat([F4.loadc(n) for n in range(ND)]), E0 + F4S, E0 + 28)
P.add(S3.emit())
P.add(aug(3))
I("s_barrier")
stamp("p3 gemm done", "me")
g4 = []
for n in range(28):
    st, i = n // 7, n % 7; hf, par = st >> 1, st & 1
    for e in range(2):
        for mu in range(2):
            zero = hf == 0 and i == 0 and e == 0 and not (par == 1 and mu == 0)
            g4.append(mk(f"{MF} {C4[par][mu]}, {a_(UA(7*hf+i)+8*e+4*mu,4)}, {v(B4+8*(n%14)+4*e,4)}, {'0' if zero else C4[par][mu]}"))
P.add(F4.check(0, ND - 1))
S = Sched(g4)
for n in range(28):
    if n + ND < 28:
        for k_, c_ in enumerate(F4.loadc(n + ND)): S.at(4*n + (0, 2, 1)[k_], c_, 0.2)
    if n + 1 < 28: S.spread(F4.checkc(n + 1, min(27, n + ND)), 4*n + 2, 4*n + 4)
    if n in (6, 13, 20): S.at(4*n + 3, stampi(f"stage{n//7} done", "e"), 1.0)
unp = []
for i in range(8): unp += mk(f"v_lshlrev_b32 v{ACC[0]+2*i}, 16, v{HR+i}\nv_and_b32 v{ACC[0]+1+2*i}, s{sHIM}, v{HR+i}")
S.spread(silu(2, False), 0, 22)
S.spread(unp, 22, 27)
S.spread(silu(3, False), 27, 50)
S.spread(w2rd(4) + w2rd(5) + w2rd(6), 0, 14)
S.spread(flat([w2dma(j) for j in range(7 + NRL, 14)]), opt("w2a", 2), opt("w2b", 44))
for j in range(7, 14): S.spread(w2rd(j), 44 + 5*(j-7), 49 + 5*(j-7))
S.at(82, mk(f"""s_lshl_b32 s{sA}, s{sW}, 14
v_add_u32 v13, s{sA}, v2
v_xor_b32 v9, 16384, v13
v_xor_b32 v12, 32768, v13
v_xor_b32 v14, 49152, v13
s_waitcnt lgkmcnt(0)
s_barrier"""))
S.spread([mk(f"ds_write_b128 v{9 if mu == 0 else 14}, {a_(224+16*mu+4*i,4)} offset:{4096*(2*mu+1)+1024*i}") for mu in range(2) for i in range(4)], 87, 99)
S.at(100, mk("s_waitcnt lgkmcnt(0)\ns_barrier"), 0.0)
S.spread([mk(f"ds_read_b128 {v(ACC[2+mu]+4*i,4)}, v13 offset:{4096*(2*mu+1)+1024*i}") for mu in range(2) for i in range(4)], 100, 104)
S.spread([mk(f"v_add_f32 v{ACC[2]+k}, v{ACC[2]+k}, v{ACC[3]+k}") for k in range(16)], 107, 112)
P.add(S.emit())
stamp("p4 gemm done", "me")
for i in range(4): I(f"ds_write_b128 v12, {v(ACC[1]+4*i,4)} offset:{8192+1024*i}")
I("s_waitcnt lgkmcnt(0)\ns_barrier")
for i in range(4): I(f"ds_read_b128 {v(ACC[3]+4*i,4)}, v13 offset:{8192+1024*i}")
for k in range(0, 16, 2): I(f"v_pk_add_f32 {v(ACC[0]+k,2)}, {v(ACC[0]+k,2)}, {v(ACC[2]+k,2)}")
for hf in range(2):
    b = ACC[0] + 8*hf
    for k in range(0, 8, 2): I(f"v_pk_add_f32 {v(b+k,2)}, {v(b+k,2)}, {v(ACC[3]+8*hf+k,2)}")
    for i in range(4): I(f"v_cvt_pk_bf16_f32 v{96+4*hf+i}, v{b+2*i}, v{b+2*i+1}")
    I(f"v_permlane32_swap_b32 v{96+4*hf}, v{98+4*hf}\nv_permlane32_swap_b32 v{97+4*hf}, v{99+4*hf}\nbuffer_store_dwordx4 {v(96+4*hf,4)}, v7, {OUT}, s{sOUT} offen offset:{32*hf} {OPT.get('ofl', '')}")
stamp("end", "mpohez")
I(f"""s_cmp_lg_u32 s2, 0
s_cbranch_scc1 L_ex0
v_mov_b32 v9, 0""")
I(f"buffer_store_dword v5, v9, {WS}, 0 offen sc1", unc=True)
I("L_ex0:")
if opt("enc", 0):
    mode = opt("enc", 0)
    if mode <= 4:
        I(f"s_bfe_u32 s{sA}, s80, {hex(0x80000 | (8*(mode-1)))}\ns_min_u32 s{sA}, s{sA}, 1\ns_mul_i32 s{sA}, s{sA}, 2000", unc=True)
    else:
        I(f"s_waitcnt lgkmcnt(0)\ns_sub_u32 s{sA}, s{sSTAMP+2}, s78\ns_mul_i32 s{sA}, s{sA}, 4", unc=True)
    I(f"""s_memrealtime s[40:41]
s_waitcnt lgkmcnt(0)
L_enc:
s_memrealtime s[42:43]
s_waitcnt lgkmcnt(0)
s_sub_u32 s42, s42, s40
s_cmp_lt_u32 s42, s{sA}
s_cbranch_scc1 L_enc
s_branch L_end""", unc=True)
if opt("dbg", 0):
    I(f"""s_cmp_lg_u32 s{sW}, 0
s_cbranch_scc1 L_end
s_load_dwordx2 s[40:41], s[0:1], 64
s_mov_b32 s42, 256
s_mov_b32 s43, 0x20000
s_mov_b64 exec, 1
v_mov_b32 v9, 0
s_waitcnt lgkmcnt(0)""", unc=True)
    for k in range(nstamp[0]):
        I(f"s_sub_u32 s{sA}, s{sSTAMP+2*k}, s78\nv_mov_b32 v10, s{sA}\nbuffer_atomic_umax v10, v9, s[40:43], 0 offen offset:{4*k}\ns_nop 1", unc=True)
    I(f"""v_mov_b32 v10, s78
buffer_atomic_umax v10, v9, s[40:43], 0 offen offset:32
s_not_b32 s{sA}, s78
v_mov_b32 v11, s{sA}
buffer_atomic_umax v11, v9, s[40:43], 0 offen offset:36
v_mov_b32 v12, s{sSTAMP+2*(nstamp[0]-1)}
buffer_atomic_umax v12, v9, s[40:43], 0 offen offset:40
v_mov_b32 v13, s80
buffer_atomic_add v13, v9, s[40:43], 0 offen offset:44
s_branch L_end""", unc=True)
I("L_exit:")
if DIAG and not opt("dbg", 0):
    I(f"s_cmp_lg_u32 s{sW}, {opt('dw', 0)}\ns_cbranch_scc1 L_end\ns_lshl_b32 s{sA}, s2, 7\ns_add_u32 s{sA}, s{sA}, {WS_DIAG}\nv_mov_b32 v9, 0", unc=True)
    for k in range(nstamp[0]):
        I(f"s_waitcnt lgkmcnt(0)\nv_mov_b32 v10, s{sSTAMP+2*k}\nbuffer_store_dword v10, v9, {WS}, s{sA} offen offset:{4*k}", unc=True)
    if SEL == ["z"]: I(f"v_mov_b32 v10, s78\nbuffer_store_dword v10, v9, {WS}, s{sA} offen offset:120", unc=True)
    I(f"v_mov_b32 v10, s80\nbuffer_store_dword v10, v9, {WS}, s{sA} offen offset:124", unc=True)
I("L_end:\ns_endpgm")
I(f"""L_idle:
s_and_b32 s{sA}, s{sT2}, 1
s_lshl_b32 s{sA}, s{sA}, 1
s_add_u32 s{sA}, s{sA}, s{sRact}
s_sub_u32 s{sA}, s{sA}, 14
s_lshl_b32 s{sA}, s{sA}, 2
s_add_u32 s{sA}, s{sA}, s{sW}
s_lshl_b32 s{sA}, s{sA}, 13
v_lshlrev_b32 v9, 7, v1
s_mov_b32 s{sB}, {opt("idle", 0)}
s_cmp_eq_u32 s{sB}, 0
s_cbranch_scc1 L_exit
L_idle1:
buffer_load_dword v10, v9, {W2}, s{sA} offen
s_add_u32 s{sA}, s{sA}, {16*8192}
s_sub_u32 s{sB}, s{sB}, 1
s_cmp_lg_u32 s{sB}, 0
s_cbranch_scc1 L_idle1
s_branch L_exit""", unc=True)
P.add(TAIL.items)

PL = opt("plain", 0)
for it in P.items:
    if isinstance(it, Ins) and it.op.startswith("buffer_store") and "sc1" in it.text:
        ish1 = " s50 " in it.text or " s49 " in it.text
        ish = ("v[224:227]" in it.text or "v[228:231]" in it.text or "v112," in it.text or "v113," in it.text)
        if (ish and PL & 1) or (ish1 and PL & 2): it.text = it.text.replace(" sc1", OPT.get("pfl", ""))
if opt("nochk", 0):
    new = []; seen_end = False
    for it in P.items:
        if isinstance(it, Ins):
            if opt("nochk", 0) == 2 and not seen_end:
                if it.text.startswith("L_exit"): seen_end = True
                elif it.uncounted or it.op in ("s_cbranch_vccz", "s_branch"): continue
            if it.op == "s_cbranch_vccz" and not it.uncounted: it = Ins(it.text.replace("s_cbranch_vccz", "s_branch"))
            elif it.op == "s_cbranch_vccnz" and not it.uncounted: continue
            t = it.text
            if it.op.startswith("buffer_store") and "sc1" in t and not it.uncounted:
                kind = 8 if " s50 " in t else 4 if ("v[224" in t or "v[228" in t or "v112," in t or "v113," in t) else 2 if f" s{sOST} " in t else 1
                if opt("nost", 0) & kind: continue
            if it.op.startswith("buffer_load") and "sc1" in t and " s56 " in t and not it.uncounted:
                cnt_ld = globals().setdefault("_c", [0]); cnt_ld[0] += 1; c = cnt_ld[0]
                kind = 1 if c <= 32 else 2 if c <= 48 else 4 if c <= 104 else 8
                if opt("nold", 0) & kind: continue
        new.append(it)
    P.items = new
body, items = render(P.items)
if opt("align", 1):
    import subprocess, re as _re
    open("_al.s", "w").write('.amdgcn_target "amdgcn-amd-amdhsa--gfx950"\n.text\n' + body)
    subprocess.run(["clang", "-x", "assembler", "-target", "amdgcn-amd-amdhsa", "-mcpu=gfx950", "-c", "_al.s", "-o", "_al.o"], check=True)
    dis = subprocess.run(["llvm-objdump", "-d", "--mcpu=gfx950", "_al.o"], capture_output=True, text=True).stdout
    sizes = [4 * len(m.group(1).split()) for m in _re.finditer(r"// [0-9A-F]{12}: ((?:[0-9A-F]{8} ?)+)", dis)]
    real = [i for i in items if i.cls not in ('label', 'dir')]
    assert len(sizes) == len(real), (len(sizes), len(real))
    sz = {id(i): n for i, n in zip(real, sizes)}
    new = []; off = 0; nal = 0; MINRUN = opt("minrun", 6)
    for k, it in enumerate(items):
        if id(it) in sz and sz[id(it)] == 8 and off % 8 == 4 and not it.uncounted:
            run = 0
            for j in items[k:k + MINRUN + 4]:
                if id(j) not in sz: continue
                if sz[id(j)] != 8 or j.cls == 'mfma': break
                run += 1
            if run >= MINRUN:
                p = new[-1] if new else None
                if p is not None and p.cls == 'valu' and sz.get(id(p)) == 4 and not p.op.startswith(('v_permlane', 'v_dot2c', 'v_readfirst', 'v_accvgpr', 'v_cmp', 'v_cndmask')) and not p.op.endswith('_e64'):
                    p.text = p.text.replace(p.op, p.op + "_e64", 1)
                else: new.append(Ins("s_nop 0"))
                off += 4; nal += 1
        new.append(it); off += sz.get(id(it), 0)
    items = new
    body = '\n'.join(('' if i.cls == 'label' else '  ') + i.text for i in items) + '\n'
    print("alignment fixes:", nal, "code bytes", off)
hdr = open("cdna_kernels/" + NAME + ".s.ref").read().split("; Override launch")[0]
out = hdr + f"""; @launch grid=(256,1,1) block=(256,1,1) lds={LDS_SIZE}
.amdgcn_target "amdgcn-amd-amdhsa--gfx950"
.text
.globl {NAME}_kernel
.p2align 8
.type {NAME}_kernel,@function
{NAME}_kernel:
{body}.fill 2048, 4, 0xbf810000
.section .rodata,"a"
.p2align 6
.amdhsa_kernel {NAME}_kernel
  .amdhsa_next_free_vgpr 512
  .amdhsa_next_free_sgpr 102
  .amdhsa_accum_offset 256
  .amdhsa_group_segment_fixed_size 0
  .amdhsa_kernarg_size 80
  .amdhsa_user_sgpr_count 2
  .amdhsa_user_sgpr_kernarg_segment_ptr 1
  .amdhsa_system_sgpr_workgroup_id_x 1
.end_amdhsa_kernel
"""
open(sys.argv[1], "w").write(out)
n = sum(1 for i in items if i.cls not in ('label', 'dir'))
nu_ = sum(1 for i in items if i.cls not in ('label', 'dir') and i.uncounted)
print("instructions:", n, "(slow path", nu_, ") nops:", sum(1 for i in items if i.op == 's_nop'), "waits:", sum(1 for i in items if i.op == 's_waitcnt'), "stamps", nstamp[0])
```

```python
import sys, struct
from asmlib import *

NAME = "sequential_preLN__linear_kernel_hedgehog__dense_activation_silu__prompt"
DIAG = int(sys.argv[2]) if len(sys.argv) > 2 else 0
OPT = dict(a.split('=') for a in sys.argv[3:])
def opt(k, d): return int(OPT[k], 0) if k in OPT else d

WS_PART = 0x40000
WS_O    = 0x240000
WS_H    = 0x440000
WS_H1   = 0x680000
WS_DIAG = 0xE80000
WS_FLG  = 0xF00000
WS_SIZE = 0xF80000
XW = 28672
L_WV, L_WQ, L_WK, L_WO = 0, 28672, 57344, 86016
L_IMG = L_WK
L_KVX = 143360
L_XCH = 147456
L_SCR = 114688
L_AUG = 161792
LDS_SIZE = 163840
sW, sT, sH, sT2, sR = 3, 4, 5, 6, 7
X, WQKV, WPHI, WO, W1, W2, OUT, WS = [f"s[{i}:{i+3}]" for i in range(8, 40, 4)]
sKX, sKW = 40, 47
sHQ, sHIM = 54, 55
sRET = "s[56:57]"
sSPIN, sP, sU, sC, sMASK, sQ = 58, 59, 60, 61, 62, 63
sHI = "s[64:65]"
sLOG = "s[66:67]"
sONES, sTILE = 68, 69
sA, sB, sCt, sD = 70, 71, 72, 73
sRact, sXO = 74, 75
sWB, sWQ = 76, 77
sLAST, sFLAG, sWM, sPST, sPCK, sOST, sXRB, sOUT = 80, 81, 82, 83, 84, 85, 86, 87
sSTAMP = 88

def v(a, n=1): return f"v{a}" if n == 1 else f"v[{a}:{a+n-1}]"
def a_(a, n=1): return f"a{a}" if n == 1 else f"a[{a}:{a+n-1}]"
def fhex(x): return hex(struct.unpack('<I', struct.pack('<f', x))[0])
def flat(l): return sum(l, [])
P = Prog(); I = P.I
TAIL = Prog()
nstamp = [0]
SEL = OPT.get("st", "m").split(",")
PICK = [int(x) for x in OPT["pick"].split(",")] if "pick" in OPT else None
allst = [0]
def stampi(name, grp="m"):
    idx = allst[0]; allst[0] += 1
    if not DIAG: return []
    if PICK is not None:
        if name != "start" and idx not in PICK:
            print(f"   - {idx}: {name}"); return []
    elif name != "start" and not (set(grp) & set(SEL)): return []
    k = nstamp[0]; nstamp[0] += 1
    assert k < 7
    print(f"stamp {k}: [{idx}] {name}")
    op = "s_memtime" if DIAG == 2 else "s_memrealtime"
    return mk(f"{op} s[{sSTAMP+2*k}:{sSTAMP+2*k+1}]")
def stamp(name, grp="m"): P.add(stampi(name, grp))
X3 = "bitop3:0x96"

def chk_code(regs, masked):
    r = list(regs)
    if masked: return f"v_bitop3_b32 v10, v{r[0]}, v{r[1]}, s{sMASK} bitop3:0x28\nv_cmp_ne_u32 vcc, v10, v6"
    if len(r) == 1: return f"v_cmp_ne_u32 vcc, v{r[0]}, v5"
    if len(r) == 2: t = f"v_xor_b32 v10, v{r[0]}, v{r[1]}"
    else:
        t = f"v_bitop3_b32 v10, v{r[0]}, v{r[1]}, v{r[2]} {X3}"
        if len(r) == 4: t += f"\nv_xor_b32 v10, v10, v{r[3]}"
    return t + "\nv_cmp_ne_u32 vcc, v10, v5"

sFL, sDM = 56, 57
GUARD = f"s_add_u32 s{sSPIN}, s{sSPIN}, 1\ns_cmp_gt_u32 s{sSPIN}, 0x40000\ns_cbranch_scc1 L_end\ns_waitcnt vmcnt(0)"
class Fetch:
    def __init__(self, name, pieces, masked=False, nre=1):
        self.name, self.pieces, self.masked, self.nre = name, pieces, masked, nre
    def loadc(self, i):
        it = flat([mk(c.replace(f"s{sCt}", f"s{sFL}")) for c in self.pieces[i][0]])
        out = []; cur = []
        for x in it:
            cur.append(x)
            if x.cls == 'vmem': out.append(cur); cur = []
        return out
    def load(self, i): return flat(self.loadc(i))
    def stub(self, i, last):
        n = self.name
        wgt = {"fo": 0x100, "fh": 0x10000, "f4": 0x1000000}.get(n, 1)
        rel = (f"s_add_u32 s80, s80, {wgt}\n" if DIAG else "") + "\n".join(c for j in range(i, min(last, i + self.nre - 1) + 1) for c in self.pieces[j][0])
        if opt("ool", 7) & {"fo": 2, "fh": 4, "f4": 8}[n]:
            TAIL.I(f"L_{n}_r{i}:\n" + rel + "\n" + GUARD + "\n" + chk_code(self.pieces[i][1], self.masked) + f"\ns_cbranch_vccnz L_{n}_r{i}\ns_branch L_{n}_ok{i}", unc=True)
            return mk(f"s_cbranch_vccnz L_{n}_r{i}\nL_{n}_ok{i}:")
        return mk(f"s_cbranch_vccz L_{n}_ok{i}\nL_{n}_r{i}:") + \
               mk(rel + "\n" + GUARD + "\n" + chk_code(self.pieces[i][1], self.masked) + f"\ns_cbranch_vccnz L_{n}_r{i}", unc=True) + mk(f"L_{n}_ok{i}:")
    def checkc(self, i, last):
        return [[x] for x in mk(chk_code(self.pieces[i][1], self.masked))] + [self.stub(i, last)]
    def check(self, i, last): return flat(self.checkc(i, last))

sFS, sFP = 80, 81
vL512, vPO, vPF = 0, 142, 143
def flag_store(nl): return mk(f"s_mov_b64 exec, {(1 << nl) - 1}\nbuffer_store_dword v5, v{vL512}, {WS}, s{sFS} offen sc1\ns_mov_b64 exec, -1")
def gate(name, vo, vf): return Fetch(name, [([f"buffer_load_dword v{vf}, v{vo}, {WS}, s{sFP} offen sc1"], [vf])])
GATE = opt("gate", 0)

def cost(it):
    if isinstance(it, WaitTag): return 4
    if it.cls in ('label', 'dir') or it.uncounted: return 0
    if it.op.startswith(TRANS) or 'permlane' in it.op: return 8
    if it.op.startswith('ds_write_b128'): return 28
    if it.cls == 'mfma': return 8
    return 4.5
class Sched:
    def __init__(self, groups):
        self.groups = groups; self.gap = [[] for _ in groups]; self.seq = 0
    def at(self, g, items, frac=0.5):
        self.seq += 1; self.gap[g].append((frac, self.seq, list(items)))
    def spread(self, chunks, a, b):
        chunks = [c if isinstance(c, list) else [c] for c in chunks]
        tot = sum(cost(i) for c in chunks for i in c) or 1; acc = 0
        for c in chunks:
            pos = a + (b - a) * acc / tot
            self.at(int(pos), c, pos - int(pos))
            acc += sum(cost(i) for i in c)
    def emit(self):
        out = []
        for g, gp in zip(self.groups, self.gap):
            out += g
            for _, _, c in sorted(gp, key=lambda x: (x[0], x[1])): out += c
        return out
def sprinkle(items, groups, start, step):
    out = []; groups = list(groups); nxt = start
    for i, it in enumerate(items):
        if groups and i == nxt: out += groups.pop(0); nxt += step
        out.append(it)
    for g in groups: out += g
    return out

def softmax(p, t, o, pk):
    q = Prog(); J = q.I
    m, n = t + 14, t + 15; r0, r1 = t + 16, t + 17
    J(f"v_max3_f32 v{m}, v{p}, v{p+1}, v{p+2}\nv_max3_f32 v{n}, -v{p}, -v{p+1}, -v{p+2}")
    for k in range(3, 13, 2):
        J(f"v_max3_f32 v{m}, v{m}, v{p+k}, v{p+k+1}\nv_max3_f32 v{n}, v{n}, -v{p+k}, -v{p+k+1}")
    J(f"""v_max_f32 v{m}, v{m}, v{p+13}
v_max_f32 v{n}, v{n}, -v{p+13}
v_permlane32_swap_b32 v{m}, v{n}
v_max_f32 v{m}, v{m}, v{n}
v_mul_f32 v{m}, v253, v{m}
v_mov_b32 v{n}, v{m}
v_permlane32_swap_b32 v{m}, v{n}""")
    if pk:
        for k in range(0, 14, 2):
            J(f"v_pk_fma_f32 {v(t+k,2)}, {v(p+k,2)}, v[252:253], {v(m,2)} op_sel_hi:[1,0,0]")
            J(f"v_pk_fma_f32 {v(p+k,2)}, {v(p+k,2)}, v[252:253], {v(m,2)} op_sel:[0,1,1] op_sel_hi:[1,1,1]")
    if pk == 2:
        for k in range(14):
            J(f"v_exp_f32 v{t+k}, v{t+k}\nv_exp_f32 v{p+k}, v{p+k}")
            if k >= 2:
                a0 = f"v{t}" if k == 2 else f"v{r0}"; a1 = f"v{p}" if k == 2 else f"v{r1}"
                J(f"v_add_f32 v{r0}, {a0}, v{t+k-1}\nv_add_f32 v{r1}, {a1}, v{p+k-1}")
        J(f"v_add_f32 v{m}, v{r0}, v{t+13}\nv_add_f32 v{n}, v{r1}, v{p+13}")
    elif pk:
        for k in range(14): J(f"v_exp_f32 v{t+k}, v{t+k}")
        for k in range(14): J(f"v_exp_f32 v{p+k}, v{p+k}")
        J(f"v_pk_add_f32 {v(m,2)}, {v(t,2)}, {v(t+2,2)}\nv_pk_add_f32 {v(r0,2)}, {v(p,2)}, {v(p+2,2)}")
        for k in range(4, 14, 2):
            J(f"v_pk_add_f32 {v(m,2)}, {v(m,2)}, {v(t+k,2)}\nv_pk_add_f32 {v(r0,2)}, {v(r0,2)}, {v(p+k,2)}")
        J(f"v_add_f32 v{m}, v{m}, v{n}\nv_add_f32 v{n}, v{r0}, v{r1}")
    else:
        for k in range(14):
            J(f"v_fma_f32 v{t+k}, v{p+k}, v252, v{m}\nv_fma_f32 v{p+k}, v{p+k}, v253, v{n}\nv_exp_f32 v{t+k}, v{t+k}\nv_exp_f32 v{p+k}, v{p+k}")
            if k >= 2:
                a0 = f"v{t}" if k == 2 else f"v{r0}"; a1 = f"v{p}" if k == 2 else f"v{r1}"
                J(f"v_add_f32 v{r0}, {a0}, v{t+k-1}\nv_add_f32 v{r1}, {a1}, v{p+k-1}")
        J(f"v_add_f32 v{m}, v{r0}, v{t+13}\nv_add_f32 v{n}, v{r1}, v{p+13}")
    J(f"""v_permlane32_swap_b32 v{m}, v{n}
v_add_f32 v{m}, v{m}, v{n}
v_rcp_f32 v{m}, v{m}
v_mov_b32 v{n}, v{m}
v_permlane32_swap_b32 v{m}, v{n}""")
    if pk == 1:
        for k in range(0, 14, 2):
            J(f"v_pk_mul_f32 {v(t+k,2)}, {v(t+k,2)}, {v(m,2)} op_sel_hi:[1,0]")
            J(f"v_pk_mul_f32 {v(p+k,2)}, {v(p+k,2)}, {v(m,2)} op_sel:[0,1] op_sel_hi:[1,1]")
    else:
        for k in range(14): J(f"v_mul_f32 v{t+k}, v{t+k}, v{m}\nv_mul_f32 v{p+k}, v{p+k}, v{n}")
    for k in range(7): J(f"v_cvt_pk_bf16_f32 v{o+k}, v{t+2*k}, v{t+2*k+1}")
    for k in range(7): J(f"v_cvt_pk_bf16_f32 v{o+7+k}, v{p+2*k}, v{p+2*k+1}")
    return q.items

def dmag(vaddrs, srd, sbase, sadd, mbase, madd, tag, sreg=None):
    sr = sCt if sreg is None else sreg
    ch = [mk(f"buffer_load_dwordx4 v{a}, {srd}, s{sr} offen offset:{1024*i} lds", tag=tag) for i, a in enumerate(vaddrs)]
    ch[0] = mk(f"s_add_u32 m0, s{mbase}, {madd}\ns_add_u32 s{sr}, s{sbase}, {sadd}") + ch[0]
    return ch

MF = "v_mfma_f32_32x32x16_bf16"
RINGA, NRING = 224, 8
def gemm_lds(steps, ahead=6):
    def rd(i):
        av, o1, o2 = steps[i][:3]; r = RINGA + 4 * (i % NRING)
        return mk(f"ds_read_b64_tr_b16 {a_(r,2)}, v{av} offset:{o1}\nds_read_b64_tr_b16 {a_(r+2,2)}, v{av} offset:{o2}")
    rds = [rd(i) for i in range(len(steps))]
    groups = []
    for i, st in enumerate(steps):
        r = RINGA + 4 * (i % NRING); b, acc, first, swap = st[3]
        A, B = a_(r, 4), v(b, 4)
        if swap: A, B = B, A
        g = mk(f"{MF} {v(acc,16)}, {A}, {B}, {'0' if first else v(acc,16)}")
        if i % 2 == 0 and i + 1 < len(steps):
            r2 = RINGA + 4 * ((i + 1) % NRING); g[0].extra = [('a', r2 + x) for x in range(4)]
        groups.append(g + (rds[i + ahead] if i + ahead < len(steps) else []))
    return flat(rds[:ahead]), groups

MAP1 = [f"""s_and_b32 s{sT}, s{sA}, 3
s_lshl_b32 s{sT}, s{sT}, 2
s_and_b32 s{sD}, s{sB}, 3
s_add_u32 s{sT}, s{sT}, s{sD}
s_lshr_b32 s{sP}, s{sA}, 2
s_lshl_b32 s{sH}, s{sP}, 3
s_lshr_b32 s{sD}, s{sB}, 2
s_add_u32 s{sH}, s{sH}, s{sD}
s_cmp_eq_u32 s{sD}, 7
s_cselect_b32 s{sD}, 3, s{sD}
s_lshl_b32 s{sKX}, s{sD}, 7
""",
f"""s_lshl_b32 s{sT}, s{sA}, 1
s_lshr_b32 s{sD}, s{sB}, 4
s_add_u32 s{sT}, s{sT}, s{sD}
s_mov_b32 s{sH}, s{sCt}
s_and_b32 s{sD}, s{sH}, 7
s_cmp_eq_u32 s{sD}, 7
s_cselect_b32 s{sD}, 3, s{sD}
s_lshl_b32 s{sKX}, s{sD}, 7
""",
f"""s_mov_b32 s{sT}, s{sCt}
s_lshl_b32 s{sH}, s{sA}, 1
s_lshr_b32 s{sD}, s{sB}, 4
s_add_u32 s{sH}, s{sH}, s{sD}
s_and_b32 s{sD}, s{sH}, 7
s_mul_i32 s{sD}, s{sD}, 3
s_mul_i32 s{sP}, s{sD}, 37
s_lshr_b32 s{sP}, s{sP}, 8
s_mul_i32 s{sP}, s{sP}, 7
s_sub_u32 s{sD}, s{sD}, s{sP}
s_lshl_b32 s{sKX}, s{sD}, 7
"""][opt("map1", 0)]
if DIAG: I("s_memrealtime s[78:79]")
I(f"""s_cmp_ge_u32 s2, 256
s_cbranch_scc1 L_end
s_load_dwordx2 s[8:9], s[0:1], 0
s_load_dwordx2 s[12:13], s[0:1], 8
s_load_dwordx2 s[16:17], s[0:1], 16
s_load_dwordx2 s[20:21], s[0:1], 24
s_load_dwordx2 s[24:25], s[0:1], 40
s_load_dwordx2 s[28:29], s[0:1], 48
s_load_dwordx2 s[32:33], s[0:1], 56
s_load_dwordx2 s[36:37], s[0:1], 72
{"s_waitcnt lgkmcnt(0)" + chr(10) + "s_memrealtime s[88:89]" if opt("bare", 0) else ""}
s_getpc_b64 s[76:77]
v_and_b32 v1, 63, v0
v_lshrrev_b32 v2, 6, v0
s_and_b32 s{sA}, s2, 7
v_readfirstlane_b32 s{sW}, v2
s_lshr_b32 s{sB}, s2, 3
s_and_b32 s{sCt}, s{sB}, 15
v_lshlrev_b32 v3, 4, v1
v_lshl_add_u32 v3, v2, 6, v3
v_lshl_add_u32 v3, v2, 4, v3
v_add_u32 v3, s{sCt}, v3
v_lshlrev_b32 v3, 7, v3
s_and_b32 s76, s76, 0xffffff00
s_mov_b64 exec, 31
global_load_dword v236, v3, s[76:77]
s_mov_b64 exec, -1
{MAP1}
s_mov_b32 s10, 1835008
s_mov_b32 s11, 0x20000
v_lshrrev_b32 v2, 3, v1
v_mul_u32_u24 v244, 896, v2
v_lshrrev_b32 v2, 4, v1
v_and_b32 v8, 7, v1
v_xor_b32 v2, v2, v8
v_lshl_add_u32 v244, v2, 4, v244
v_xor_b32 v245, 64, v244
v_add_u32 v245, {7168-1024}, v245
v_add_u32 v246, {2*(7168-1024)}, v244
v_add_u32 v247, {2*(7168-1024)}, v245
s_lshl_b32 s{sQ}, s{sT}, 2
s_add_u32 s{sQ}, s{sQ}, s{sW}
s_mul_i32 s{sQ}, s{sQ}, {32*896}
s_lshr_b32 s{sXO}, s{sW}, 1
s_add_u32 s{sXO}, s{sXO}, s{sW}
s_mul_i32 s{sXO}, s{sXO}, {XW}
s_waitcnt lgkmcnt(0)""")
st0 = stampi("start")
if not opt("bare", 0): P.add(st0)
def xdma(g): return flat(dmag([244, 245, 246, 247], X, sQ, f"s{sKX+g}", sXO, 4096*g, f"x{g}"))
P.add(xdma(0))
I(f"""s_mov_b32 s14, {0 if opt('abl',0)&8 else 1204224}
s_mov_b32 s15, 0x20000
v_and_b32 v8, 3, v1""")
def wtouch(mask16, dst):
    m = mask16 | (mask16 << 16)
    return mk(f"s_mov_b32 exec_lo, {hex(m)}\ns_mov_b32 exec_hi, {hex(m)}\nbuffer_load_dword v{dst}, v255, {WQKV}, 0 offen\ns_mov_b64 exec, -1")
def kxs(g): return mk(f"s_add_u32 s{sKX+g}, s{sKX+g-1}, 128\ns_cmp_ge_u32 s{sKX+g}, 896\ns_cselect_b32 s{sD}, 896, 0\ns_sub_u32 s{sKX+g}, s{sKX+g}, s{sD}")
NXE = opt("nxe", 2)
if opt("wtfirst", 1) and opt("wt0", 0): P.add(wtouch(opt("wt0", 0), 237))
for g in range(1, NXE): P.add(kxs(g) + xdma(g))
if not opt("wtfirst", 1) and opt("wt0", 0): P.add(wtouch(opt("wt0", 0), 237))
if opt("wsoff", 0): I(f"s_add_u32 s36, s36, {opt('wsoff', 0)}\ns_addc_u32 s37, s37, 0")
I(f"""s_mov_b32 s38, {WS_SIZE}
s_mov_b32 s39, 0x20000
s_mov_b32 s18, 25088
s_mov_b32 s19, 0x20000
s_mov_b32 s22, {0 if opt('abl',0)&4 else 401408}
s_mov_b32 s23, 0x20000
s_xor_b32 s{sHQ}, s{sH}, 1
v_mov_b32 v11, 0
v_lshlrev_b32 v6, 7, v1""")
I(f"buffer_load_dword v5, v11, {WS}, 0 offen sc1")
I(f"""s_lshl_b32 s{sD}, s2, 2
s_add_u32 s{sD}, s{sD}, s{sW}
s_lshl_b32 s{sD}, s{sD}, 9
s_and_b32 s{sCt}, s{sH}, 14
s_mul_i32 s{sCt}, s{sCt}, 1568
s_mul_i32 s{sP}, s{sW}, 896
s_add_u32 s{sCt}, s{sCt}, s{sP}
s_mov_b64 exec, 15
buffer_load_dword v238, v6, {WO}, s{sD} offen
s_mov_b64 exec, 127
buffer_load_dword v239, v6, {WPHI}, s{sCt} offen
s_mov_b64 exec, -1""")
for g in range(NXE, 7): P.add(kxs(g))
I(f"""s_lshl_b32 s{sT2}, s{sA}, 1
s_lshr_b32 s{sD}, s{sB}, 4
s_add_u32 s{sT2}, s{sT2}, s{sD}
s_and_b32 s{sRact}, s{sB}, 15
s_min_u32 s{sR}, s{sRact}, 13
s_mov_b32 s26, {0 if opt('abl',0)&1 else 1605632}
s_mov_b32 s27, 0x20000
s_mov_b32 s30, {0 if opt('abl',0)&2 else 1605632}
s_mov_b32 s31, 0x20000
s_mov_b32 s34, 1835008
s_mov_b32 s35, 0x20000
s_mov_b32 s64, 0
s_mov_b32 s65, -1
s_mov_b32 s{sONES}, 0x3f803f80
s_mov_b32 s{sMASK}, 0xbfffbfff
s_mov_b32 s{sHIM}, 0xffff0000
s_mov_b32 s{sSPIN}, 0
s_mov_b32 s80, 0
s_cmp_ge_u32 s{sR}, 7
s_cselect_b32 s{sU}, 1, 0
s_mul_i32 s{sA}, s{sU}, 7
s_sub_u32 s{sC}, s{sR}, s{sA}""")
sT3 = 67
if opt("map3", 0):
    I(f"""s_and_b32 s{sA}, s{sT2}, 12
s_and_b32 s{sD}, s{sT2}, 1
s_lshl_b32 s{sD}, s{sD}, 1
s_add_u32 s{sA}, s{sA}, s{sD}
s_add_u32 s{sT3}, s{sA}, s{sU}
s_bfe_u32 s{sA}, s{sT2}, 0x10001
s_mul_i32 s{sA}, s{sA}, 7
s_add_u32 s{sR}, s{sA}, s{sC}""")
else: I(f"s_mov_b32 s{sT3}, s{sT2}")
for g in range(7): I(f"s_mul_i32 s{sKW+g}, s{sKX+g}, {172032//128}")
I(f"""s_mul_i32 s{sWB}, s{sH}, 56
s_mul_i32 s{sD}, s{sW}, 43008
s_add_u32 s{sWB}, s{sWB}, s{sD}
s_mul_i32 s{sWQ}, s{sHQ}, 56
s_add_u32 s{sWQ}, s{sWQ}, s{sD}
s_add_u32 s{sWB}, s{sWB}, 896
s_lshl_b32 s{sWM}, s{sW}, 10
s_lshl_b32 s{sA}, s{sH}, 4
s_add_u32 s{sA}, s{sA}, s{sT}
s_mul_i32 s{sA}, s{sA}, 5120
s_add_u32 s{sA}, s{sA}, {WS_PART}
s_add_u32 s{sPST}, s{sA}, s{sWM}
s_lshl_b32 s{sD}, s{sW}, 8
s_add_u32 s{sA}, s{sA}, s{sD}
s_add_u32 s{sPCK}, s{sA}, 4096
s_lshl_b32 s{sA}, s{sT}, 2
s_add_u32 s{sA}, s{sA}, s{sW}
s_lshl_b32 s{sA}, s{sA}, 15
s_lshl_b32 s{sB}, s{sHQ}, 11
s_add_u32 s{sA}, s{sA}, s{sB}
s_add_u32 s{sOST}, s{sA}, {WS_O}
s_lshl_b32 s{sA}, s{sT2}, 2
s_lshl_b32 s{sB}, s{sU}, 1
s_add_u32 s{sA}, s{sA}, s{sB}
s_and_b32 s{sB}, s{sW}, 1
s_add_u32 s{sTILE}, s{sA}, s{sB}
s_mul_i32 s{sA}, s{sA}, {32*896}
s_lshl_b32 s{sB}, s{sC}, 7
s_add_u32 s{sA}, s{sA}, s{sB}
s_mul_i32 s{sD}, s{sW}, {16*896}
s_add_u32 s{sXRB}, s{sA}, s{sD}
s_mul_i32 s{sA}, s{sTILE}, {32*896}
s_add_u32 s{sA}, s{sA}, s{sB}
s_lshr_b32 s{sB}, s{sW}, 1
s_lshl_b32 s{sB}, s{sB}, 6
s_add_u32 s{sOUT}, s{sA}, s{sB}
s_mul_i32 s{sP}, s{sHQ}, {16*5120}
s_add_u32 s{sP}, s{sP}, {WS_PART}""")
WPK, WPQ, WPT = 192, 200, 208
vWPA, vWPB, vKVX, vIMW, vKA, vKB, vFPD, vFPC, vWO0, vWO1, vXRD0, vXRD1, vXRR, vWOR = range(128, 142)
I(f"""v_lshrrev_b32 v3, 5, v1
v_lshlrev_b32 v2, 4, v1
v_lshlrev_b32 v4, 2, v1
v_bfe_u32 v11, v1, 3, 2
v_lshl_add_u32 v11, v11, 2, v8
v_bfe_u32 v12, v1, 2, 1
v_mul_u32_u24 v12, 14, v12
v_min_u32 v13, 13, v11
v_add_u32 v13, v13, v12
v_lshlrev_b32 v13, 1, v13
v_mul_u32_u24 v14, 224, v3
v_add_u32 v{vWPA}, v13, v14
v_lshl_add_u32 v{vWPB}, v3, 20, v{vWPA}
v_add_u32 v12, v12, v11
v_cmp_gt_u32 vcc, 14, v11
v_lshrrev_b32 v7, 2, v1
v_mul_u32_u24 v7, 2688, v7
v_cndmask_b32 v12, 28, v12, vcc
v_and_b32 v13, 15, v12
v_lshlrev_b32 v13, 4, v13
v_lshrrev_b32 v12, 4, v12
v_lshl_add_u32 v13, v12, 3, v13
v_lshl_add_u32 v13, v3, 8, v13
v_add_u32 v{vKVX}, {L_KVX}, v13
v_lshlrev_b32 v11, 4, v8
v_min_u32 v11, 40, v11
v_add_u32 v7, v7, v11
v_and_b32 v9, 31, v1
v_lshlrev_b32 v240, 7, v9
v_bfe_u32 v11, v1, 1, 3
v_xor_b32 v11, v11, v3
v_lshl_add_u32 v240, v11, 4, v240
v_add_u32 v240, s{sXO}, v240
v_xor_b32 v241, 32, v240
v_xor_b32 v242, 64, v240
v_xor_b32 v243, 96, v240
v_mov_b32 v250, 0
v_mov_b32 v251, 0
s_lshl_b32 s{sA}, s{sW}, 5
v_add_u32 v10, s{sA}, v9
v_mul_u32_u24 v10, 208, v10
v_mul_u32_u24 v11, 96, v3
v_add_u32 v{vIMW}, v10, v11
v_lshrrev_b32 v10, 4, v1
v_bfe_u32 v15, v1, 2, 2
v_lshl_add_u32 v10, v10, 3, v15
v_mul_u32_u24 v10, 208, v10
v_and_b32 v11, 1, v1
v_mul_u32_u24 v11, 96, v11
v_add_u32 v10, v10, v11
v_bfe_u32 v11, v1, 1, 1
v_lshl_add_u32 v10, v11, 3, v10
v_add_u32 v{vKB}, {L_IMG}, v10
s_lshl_b32 s{sA}, s{sW}, 4
v_add_u32 v{vKA}, s{sA}, v{vKB}
v_add_u32 v{vFPD}, s{sWM}, v2
s_lshl_b32 s{sD}, s{sW}, 8
s_add_u32 s{sD}, s{sD}, 4096
v_add_u32 v{vFPC}, s{sD}, v4
v_lshrrev_b32 v12, 3, v1
v_mul_u32_u24 v14, 896, v12
v_and_b32 v13, 7, v1
v_xor_b32 v12, v12, v13
v_lshl_add_u32 v{vXRD0}, v12, 4, v14
v_add_u32 v{vXRD1}, {7168-1024}, v{vXRD0}
v_bfe_u32 v12, v1, 4, 1
v_lshlrev_b32 v11, 2, v12
v_xor_b32 v11, v11, v13
v_lshl_add_u32 v{vWO0}, v11, 4, v14
v_add_u32 v{vWO1}, {7168-1024}, v{vWO0}
s_and_b32 s{sA}, s{sW}, 1
s_lshl_b32 s{sA}, s{sA}, 12
s_add_u32 s{sA}, s{sA}, {L_XCH}
v_lshlrev_b32 v10, 7, v9
v_lshl_add_u32 v10, v3, 3, v10
v_add_u32 v10, s{sA}, v10
s_lshr_b32 s{sA}, s{sW}, 1
s_lshl_b32 s{sB}, s{sA}, 2
v_xor_b32 v13, s{sB}, v13
v_lshl_add_u32 v{vXRR}, v13, 4, v10
v_mad_u32_u24 v10, v3, 14, v15
v_lshlrev_b32 v10, 7, v10
v_bfe_u32 v13, v1, 3, 1
v_xor_b32 v13, v13, v3
v_xor_b32 v13, s{sA}, v13
v_lshl_add_u32 v10, v13, 6, v10
v_lshl_add_u32 v10, v12, 5, v10
v_lshl_add_u32 v10, v8, 3, v10
s_mul_i32 s{sA}, s{sA}, {8*28*128}
s_add_u32 s{sA}, s{sA}, {L_WO}
v_add_u32 v{vWOR}, s{sA}, v10
v_lshl_add_u32 v11, v3, 3, v15
v_lshlrev_b32 v11, 6, v11
v_lshl_add_u32 v12, v12, 2, v8
v_cmp_lt_u32 vcc, 5, v12
v_xor_b32 v13, 1, v12
s_mul_i32 s{sA}, s{sH}, 1568
s_mul_i32 s{sB}, s{sHQ}, 1568
v_cndmask_b32 v12, v12, v13, vcc
v_lshl_add_u32 v11, v12, 3, v11
v_add_u32 v13, {L_WK}, v11""")
I(f"""v_bfe_u32 v10, v1, 2, 1
v_bfe_u32 v14, v1, 4, 1
v_lshl_add_u32 v10, v14, 1, v10
v_cmp_eq_u32 vcc, v10, v3
v_and_b32 v10, 1, v1
v_lshlrev_b32 v10, 4, v10
v_mov_b32 v14, 0x3f80
v_lshlrev_b32 v10, v10, v14
v_cndmask_b32 v10, 0, v10, vcc
v_bfe_u32 v14, v1, 3, 1
v_bfe_u32 v15, v1, 1, 1
v_lshl_add_u32 v14, v14, 1, v15""")
for q in range(4): I(f"v_cmp_eq_u32 vcc, {q}, v14\nv_cndmask_b32 v15, 0, v10, vcc\nv_accvgpr_write_b32 a{220+q}, v15")
stamp("setup done", "p")
def wphi(dst, tmp, so):
    q = []
    for t in range(2):
        for j in range(8):
            d = 16 * t + 8 * (j >> 2) + (j & 3)
            av = vWPB if (t == 1 and j >= 4) else vWPA
            r = (dst if j % 2 == 0 else tmp) + 4 * t + j // 2
            op = "buffer_load_short_d16" if j % 2 == 0 else "buffer_load_short_d16_hi"
            q += mk(f"{op} v{r}, v{av}, {WPHI}, s{so} offen offset:{d*56}")
    return q
def wkdma(g): return flat(dmag([7], WQKV, sWB, f"s{sKW+g}", sWM, L_WK + 4096*g, f"wk{g}"))
def wvdma(g): return flat(dmag([9], WQKV, sWB, f"s{sKW+g}", sWM, L_WV + 4096*g, f"wv{g}"))
def wqdma(g): return flat(dmag([7], WQKV, sWQ, f"s{sKW+g}", sWM, L_WQ + 4096*g, f"wq{g}"))
I("v_add_u32 v9, 896, v7")
if opt("fake", 0):
    I(f"""v_mov_b32 v7, v2
v_add_u32 v9, 24576, v2
s_mul_i32 s{sWB}, s{sH}, 73728
s_add_u32 s{sWB}, s{sWB}, s{sWM}
s_mul_i32 s{sWQ}, s{sHQ}, 73728
s_add_u32 s{sWQ}, s{sWQ}, s{sWM}
s_add_u32 s{sWQ}, s{sWQ}, 45056""")
    for g in range(7): I(f"s_lshl_b32 s{sKW+g}, s{sKX+g}, 5")
XF = 16
NX0 = opt("nx0", 4)
if opt("wt1", 0): P.add(wtouch(opt("wt1", 0), 249))
for g in range(NXE, NX0): P.add(xdma(g))
pend = [xdma(g) for g in range(NX0, 7)]
wkl = [wkdma(g) for g in range(7)]
if opt("wt2", 0): pend[-1] = pend[-1] + wtouch(opt("wt2", 0), 248)
pend.append(wkl.pop(0) + wphi(WPK, WPT, sA))
pend.append(wkl.pop(0) + wphi(WPQ, WPT+8, sB))
while len(pend) < 7: pend.append(wkl.pop(0))
def xrd(g): return flat([mk(f"ds_read_b128 {v(XF+16*g+4*e,4)}, v{240+e} offset:{4096*g}") for e in range(4)])
P.wait("x0"); P.add(xrd(0))
for g in range(7):
    if pend: P.add(pend.pop(0))
    if g + 1 < 7: P.wait(f"x{g+1}"); P.add(xrd(g + 1))
    for i in range(16):
        r = XF + 16*g + i
        I(f"v_dot2c_f32_bf16 v250, s{sONES}, v{r}\nv_dot2c_f32_bf16 v251, v{r}, v{r}")
    if g == 0: stamp("x0 done", "p")
for x_ in pend: P.add(x_)
if opt("tp", 0) == 2:
    I(f"""s_mul_i32 s{sCt}, s2, {52*128}
s_mul_i32 s{sD}, s{sW}, {13*128}
s_add_u32 s{sCt}, s{sCt}, s{sD}
s_mov_b64 exec, 0x1fff
buffer_load_dword v254, v6, {W2}, s{sCt} offen
buffer_load_dword v255, v6, {W1}, s{sCt} offen
s_mov_b64 exec, -1""")
stamp("x stats done", "mp")
I(f"""v_permlane32_swap_b32 v250, v251
v_or_b32 v5, 1, v5
s_mov_b32 s{sA}, 0x9E3779B5
v_add_f32 v250, v250, v251
v_mul_f32 v250, {fhex(-1/448)}, v250
v_mov_b32 v251, v250
v_mul_lo_u32 v5, v5, s{sA}
s_mov_b32 s{sA}, 0x3f80
v_permlane32_swap_b32 v250, v251
s_mov_b32 s{sB}, 0x3f800000""")
fin = mk(f"""v_fma_f32 v251, -v250, v250, -v251
v_max_f32 v251, 0, v251
v_add_f32 v251, 0x3727c5ac, v251
v_rsq_f32 v251, v251
s_lshl_b32 s{sQ}, s{sC}, 7
s_mul_i32 s{sD}, s{sW}, {16*896}
v_mul_f32 v252, 0x3fb8aa3b, v251
v_mul_f32 v253, 0xbfb8aa3b, v251
s_add_u32 s{sQ}, s{sQ}, s{sD}
s_lshl_b32 s{sXO}, s{sW}, 11""")
if opt("noid", 1): fin = [mk(f"s_cmp_ge_u32 s{sRact}, 14\ns_cselect_b32 s22, 0, s22")] + fin
ACK = 144; ACV = 160; PK = 176; IMG = 208; TMP = 232
def norm(t):
    q = Prog(); tb = TMP + 8 * (t & 1)
    for i in range(4):
        r = XF + 4 * t + i
        q.I(f"v_dot2_f32_bf16 v{tb+2*i}, v{r}, s{sA}, v250\nv_dot2_f32_bf16 v{tb+2*i+1}, v{r}, s{sB}, v250")
    return q.items
def normc(t):
    tb = TMP + 8 * (t & 1)
    return flat([mk(f"v_cvt_pk_bf16_f32 v{XF+4*t+i}, v{tb+2*i}, v{tb+2*i+1}") for i in range(4)])
def l2t(srd, k, dst):
    return mk(f"""s_lshr_b32 s{sCt}, s2, 3
s_lshl_b32 s{sCt}, s{sCt}, 2
s_add_u32 s{sCt}, s{sCt}, s{sW}
s_mul_i32 s{sCt}, s{sCt}, {98*128}
s_mov_b32 exec_hi, 0x1ffff
s_add_u32 s{sCt}, s{sCt}, {k*49*128}
buffer_load_dword v{dst}, v6, {srd}, s{sCt} offen
s_mov_b32 exec_hi, -1""")
L2A, L2B = opt("l2a", -1), opt("l2b", -1)
touch = mk(f"""s_mul_i32 s{sCt}, s2, {52*128}
s_mul_i32 s{sD}, s{sW}, {13*128}
s_add_u32 s{sCt}, s{sCt}, s{sD}
s_mov_b64 exec, 0x1fff
buffer_load_dword v255, v6, {W1}, s{sCt} offen
buffer_load_dword v254, v6, {W2}, s{sCt} offen
s_mov_b64 exec, -1""")
TP = opt('tp', 0)
ns = norm(0)
for t in range(1, 28): ns += norm(t) + normc(t - 1)
ns += normc(27)
NBAR = opt("nbar", 100)
wvl = [wvdma(k) for k in range(7)]
if opt("loop2", 0):
    I("s_mov_b32 s80, 0\nL_lp2:\ns_mov_b32 s101, s100\ns_memtime s[78:79]\ns_waitcnt lgkmcnt(0)\ns_mov_b32 s99, s78")
    P.add([Ins(x.text) for x in ns])
    I("s_memtime s[78:79]\ns_waitcnt lgkmcnt(0)\ns_sub_u32 s100, s78, s99\ns_add_u32 s100, s100, s88\ns_add_u32 s80, s80, 1\ns_cmp_lt_u32 s80, 2\ns_cbranch_scc1 L_lp2")
    nstamp[0] = 14
P.add(sprinkle(ns[:NBAR], wkl, 0, opt("wkstep", 30)))
if opt("touch", 1) and TP == 1: P.add(touch)
I("s_barrier")
NWV0 = opt("nwv0", 3)
P.add(sprinkle(ns[NBAR:], [wvl.pop(0) for _ in range(NWV0)], opt("wv0", 60), opt("wvstep", 60)))
P.wait(*[f"wk{k}" for k in range(7)]); I("s_barrier")
stamp("wk landed", "p")
AH = 6
sW1B, sW1M, sW2E, sW2L = 40, 41, 42, 43
set2 = mk(f"""v_lshrrev_b32 v10, 4, v1
v_mul_u32_u24 v12, 3584, v10
v_lshlrev_b32 v10, 2, v10
v_and_b32 v13, 15, v1
v_xor_b32 v10, v10, v13
v_lshl_add_u32 v12, v10, 4, v12
v_add_u32 v13, {4*3584-1024}, v12
v_add_u32 v14, {2*(4*3584-1024)}, v12
v_add_u32 v15, {3*(4*3584-1024)}, v12
s_lshl_b32 s{sW1B}, s{sR}, 8
s_mul_i32 s{sD}, s{sW}, {16*3584}
s_add_u32 s{sW1B}, s{sW1B}, s{sD}
s_lshl_b32 s{sW1M}, s{sW}, 12
s_lshr_b32 s{sA}, s{sW}, 1
s_lshl_b32 s{sA}, s{sA}, 2
s_andn2_b32 s{sB}, 1, s{sW}
s_add_u32 s{sA}, s{sA}, s{sB}
s_lshl_b32 s{sB}, s{sU}, 1
s_add_u32 s44, s{sA}, s{sB}
s_xor_b32 s45, s44, 2
s_lshl_b32 s{sD}, s{sC}, 7
s_mul_i32 s{sW2E}, s44, {32*896}
s_add_u32 s{sW2E}, s{sW2E}, s{sD}
s_mul_i32 s{sW2L}, s45, {32*896}
s_add_u32 s{sW2L}, s{sW2L}, s{sD}
""")
vW2 = [vWO0, vWO1, 128, 129]
sSCR, sBIG = 46, 47
NA = opt("na", 0)
NUR = opt("nur", 2); NT1 = min(NA, opt("nt1", 99))
_u = list(range(14))
def take(n): return [_u.pop(0) for _ in range(min(n, len(_u)))]
UAW = take(NA); UR = take(NUR); UD = take(2); UE = take(3); UL = take(opt("nrl", 3)); UP = take(99)
RAWS = UAW + UR + UL
def UA(j): return 16*j
def w2slot(j):
    if j in UE: return (sSCR, 4096*UE.index(j), 254)
    if j in UAW + UR + UD: return (sSCR, 4096*(j & 1), 254)
    return (sBIG, 4096*(UL + UP).index(j), 252)
def w2dma(j):
    mb, mo, _ = w2slot(j)
    return dmag(vW2, W2, sW2E if j < 7 else sW2L, (j%7)*256*896, mb, mo, f"w2_{j}", sDM)
def w2raw(j):
    ch = [mk(f"buffer_load_dwordx4 {a_(UA(j)+4*q,4)}, v{vW2[q]}, {W2}, s81 offen offset:{1024*q}") for q in range(4)]
    ch[0] = mk(f"s_add_u32 s81, s{sW2E if j < 7 else sW2L}, {(j%7)*256*896}") + ch[0]
    return ch
def w2rd(j):
    _, mo, av = w2slot(j)
    if j in RAWS: out = [mk(f"ds_write_b128 v{131 if j in UL else 134}, {a_(UA(j)+4*q,4)} offset:{mo+1024*q}") for q in range(4)]
    else: out = [[WaitTag([f"w2_{j}"])]]
    for e in range(2):
        for mu in range(2):
            for u in range(2): out.append(mk(f"ds_read_b64_tr_b16 {a_(UA(j)+8*e+4*mu+2*u,2)}, v{av+mu} offset:{mo+2048*e+1024*u}"))
    return out
raw = flat([w2raw(j) for j in UR])
rawA = flat([w2raw(j) for j in UAW])
if opt("noid", 1): set2 = [mk(f"s_cmp_ge_u32 s{sRact}, 14\ns_cselect_b32 s26, 0, s26")] + set2
set2 += mk(f"v_add_u32 v128, {2*(7168-1024)}, v{vWO0}\nv_add_u32 v129, {3*(7168-1024)}, v{vWO0}")
set2b = [x for x in set2 if isinstance(x, Ins) and x.cls == 'valu' and x.defs[0][1] < 128]
set2a = [x for x in set2 if x not in set2b]
pro, gk = gemm_lds([(13, 1024*t, 1024*t + 256, (XF + 4*t, ACK, t == 0, False)) for t in range(28)], AH)
P.add(pro)
S = Sched(gk)
S.spread(wvl, 0, opt("wve", 28))
EARLY = opt("early", 0)
if EARLY:
    P.add(flat([x if isinstance(x, list) else [x] for x in fin + set2a])); fin = []
    wo_l = flat([dmag([vWO0, vWO1], WO, sQ, i*64*896, sXO, L_WO + 8192*i, "wo", sDM) for i in range(7)] + [dmag([vXRD0, vXRD1], X, sXRB, 0, sXO, L_XCH, "wo", sDM)])
    if EARLY == 2:
        S.spread([wo_l[2*i] + wo_l[2*i+1] for i in range(8)], 0, 28)
    else: S.spread([rawA.pop(0) for _ in range(min(len(rawA), opt("ne1", 8)))], 0, 28)
else: fin = fin + set2a
for k, ps in enumerate((L2A, L2B)):
    if 0 <= ps < 28: S.at(ps, l2t(W1, k, 248 + k))
S.spread(fin + flat([mk(f"v_or_b32 v{WPK+q}, v{WPK+q}, v{WPT+q}\nv_or_b32 v{WPQ+q}, v{WPQ+q}, v{WPT+8+q}") for q in range(8)]), 2, 26)
P.add(S.emit())
def phi_pre(acc, wp):
    q = Prog()
    for i in range(8): q.I(f"v_cvt_pk_bf16_f32 v{acc+i}, v{acc+2*i}, v{acc+2*i+1}")
    q.I(f"{MF} {v(PK,16)}, {v(wp,4)}, {v(acc,4)}, 0\n{MF} {v(PK,16)}, {v(wp+4,4)}, {v(acc+4,4)}, {v(PK,16)}")
    return q.items
stamp("k gemm done", "mp")
wql = [wqdma(k) for k in range(7)]
P.add(wql.pop(0))
P.add(phi_pre(ACK, WPK))
imw = flat([mk(f"ds_write_b128 v{vIMW}, {v(IMG+4*i,4)} offset:{L_IMG+16*i}") for i in range(3)]) + mk(f"ds_write_b64 v{vIMW}, {v(IMG+12,2)} offset:{L_IMG+48}")
smk = sprinkle(softmax(PK, TMP, IMG, True), [wql.pop(0) for _ in range(opt("nwq0", 3))], 10, opt("wqs", 40))
if EARLY: smk = sprinkle(smk, [rawA.pop(0) for _ in range(min(len(rawA), opt("ne2", 8)))], 5, 16)
WEAVE = opt("weave", 0)
pro, gv = gemm_lds([(11, L_WV + 1024*t, L_WV + 1024*t + 256, (XF + 4*t, ACV, t == 0, False)) for t in range(28)], AH)
S = Sched(gv)
if not WEAVE:
    P.add(smk)
    P.wait(*[f"wv{k}" for k in range(7)]); I("s_barrier")
    stamp("softmax k done", "p")
    P.add(pro)
    S.spread(imw, 2, 10)
else:
    smf = softmax(PK, TMP, IMG, 2)
    n0 = next(i for i, x in enumerate(smf) if x.op == "v_exp_f32")
    P.wait(*[f"wv{k}" for k in range(4)]); I("s_barrier")
    P.add(pro)
    P.add(smf[:n0])
    stamp("softmax k done", "p")
    S.spread(smf[n0:] + imw, 0, 28)
    S.at(15 - AH, [WaitTag(["wv4", "wv5", "wv6"])] + mk("s_barrier"), 1.0)
    wql = [wqdma(k) for k in range(1, 7)]
wo_l = flat([dmag([vWO0, vWO1], WO, sQ, i*64*896, sXO, L_WO + 8192*i, "wo", sDM) for i in range(7)] + [dmag([vXRD0, vXRD1], X, sXRB, 0, sXO, L_XCH, "wo", sDM)])
if EARLY == 2: wo_l = []
S.spread(wql, 0, opt('wqe', 14))
if EARLY: S.spread([rawA.pop(0) for _ in range(min(len(rawA), opt("ne3", 8)))], 0, 22)
if L2A >= 0: touch = [x for x in touch if W1 not in x.text]
tlb = []
if opt("tlb", 0) & 1: tlb += mk(f"s_mov_b64 exec, 1\nbuffer_load_dword v248, v6, {OUT}, s{sOUT} offen\ns_mov_b64 exec, -1")
if opt("tlb", 0) & 2: tlb += mk(f"v_lshlrev_b32 v249, 20, v1\ns_mov_b64 exec, 0xffff\nbuffer_load_dword v249, v249, {WS}, 0 offen offset:4092\ns_mov_b64 exec, -1")
if tlb: S.at(opt("tlbp", 13), tlb)
if opt("touch", 1) and TP == 0: S.at(15, touch)
for k, ps in enumerate((L2A, L2B)):
    if 200 <= ps < 228: S.at(ps - 200, l2t(W1, k, 248 + k))
S.spread([wo_l.pop(0) for _ in range(2*opt("nwo0", 0))], 17, 28)
P.add(S.emit())
for k in range(0, 16, 2): I(f"v_pk_mul_f32 {v(ACV+k,2)}, {v(ACV+k,2)}, v[250:251] op_sel:[0,1] op_sel_hi:[1,1]")
I(f"v_cndmask_b32 v{ACV+12}, v{ACV+12}, 1.0, {sHI}")
for i in range(8): I(f"v_cvt_pk_bf16_f32 v{IMG+16+i}, v{ACV+2*i}, v{ACV+2*i+1}")
for i in range(4, 6): I(f"ds_write_b128 v{vIMW}, {v(IMG+4*i,4)} offset:{L_IMG+16*i}")
P.wait("wq0", "wq1", "wq2", "wq3")
I("s_waitcnt lgkmcnt(0)\ns_barrier")
stamp("img written", "p")
KA = 144; KBv = 208; KD = 176
for k in range(4):
    for u in range(2):
        I(f"ds_read_b64_tr_b16 {v(KA+4*k+2*u,2)}, v{vKA} offset:{(32*k+4*u)*208}")
    for nu in range(2):
        for u in range(2):
            I(f"ds_read_b64_tr_b16 {v(KBv+8*k+4*nu+2*u,2)}, v{vKB} offset:{(32*k+4*u)*208+64+16*nu}")
proq, gq = gemm_lds([(11, L_WQ + 1024*t, L_WQ + 1024*t + 256, (XF + 4*t, ACV, t == 0, False)) for t in range(28)], AH)
for k in range(4):
    for nu in range(2):
        I(f"v_mfma_f32_16x16x32_bf16 {v(KD+4*nu,4)}, {v(KA+4*k,4)}, {v(KBv+8*k+4*nu,4)}, {'0' if k == 0 else v(KD+4*nu,4)}")
P.add(proq[:8])
for i in range(4): I(f"v_cvt_pk_bf16_f32 v{KD+8+i}, v{KD+2*i}, v{KD+2*i+1}")
I(f"buffer_store_dwordx4 {v(KD+8,4)}, v2, {WS}, s{sPST} offen sc1")
I(f"v_xor_b32 v10, v{KD+8}, v5")
I(f"buffer_store_dword v10, v4, {WS}, s{sPCK} offen sc1")
if GATE & 1: P.add(flag_store(16))
P.add(proq[8:])
stamp("partial stored", "mp")
S = Sched(gq)
bgA = wo_l + rawA
nq = min(len(bgA), opt("nq", 16))
S.spread(bgA[:nq], 0, 28)
S.spread(set2b, 2, 18)
G0 = gate("g0", vPO, vPF)
if GATE & 1: S.at(opt("g0", 14), G0.load(0))
S.at(15 - AH, [WaitTag(["wq4", "wq5", "wq6"])] + mk("s_barrier"), 1.0)
P.add(S.emit())
stamp("q gemm done", "p")
G = 16; GC = 80; SA = 96
FP = Fetch("fp", [([f"s_add_u32 s{sCt}, s{sP}, {5120*T}\nbuffer_load_dwordx4 {v(G+4*T,4)}, v{vFPD}, {WS}, s{sCt} offen sc1\nbuffer_load_dword v{GC+T}, v{vFPC}, {WS}, s{sCt} offen sc1"],
                   [G+4*T, GC+T]) for T in range(16)])
P.add(phi_pre(ACV, WPQ))
if GATE & 1: P.add(G0.check(0, 0))
I("s_barrier")
PQ = 208
smq = softmax(PK, TMP, PQ, True); f0 = opt("fp0", 80)
P.add(sprinkle(smq[:f0], bgA[nq:], 0, opt("as", 8)))
P.add(sprinkle(smq[f0:], [FP.load(T) for T in range(16)], 0, opt("fpstep", 3)))
stamp("softmax q done", "p")
w1_l = flat([dmag([12, 13, 14, 15], W1, sW1B, i*64*3584, sW1M, 16384*i, "w1", sDM) for i in range(7)])
def fpb(b):
    t = []
    for k, T in enumerate(range(4*b, 4*b+4)):
        t.append(f"v_bitop3_b32 v{10 if k == 0 else 9}, v{G+4*T}, v{GC+T}, v5 {X3}" + ("" if k == 0 else "\nv_or_b32 v10, v10, v9"))
    return "\n".join(t) + "\nv_cmp_ne_u32 vcc, 0, v10"
RI = TAIL.I if (opt("ool", 7) & 1) else I
if not (opt("ool", 7) & 1): I("s_branch L_fp_go")
RI("L_fp_retry:" + ("\ns_add_u32 s80, s80, 1" if DIAG else ""), unc=True)
for b in range(4):
    RI(fpb(b) + f"\ns_cbranch_vccz L_fp_k{b}\n" + "\n".join(FP.pieces[T][0][0] for T in range(4*b, 4*b+4)) + f"\nL_fp_k{b}:", unc=True)
RI(GUARD, unc=True)
if (opt("ool", 7) & 1): RI("s_branch L_fp_go", unc=True)
I("L_fp_go:")
I(fpb(0) + "\ns_cbranch_vccnz L_fp_retry")
S = Sched([mk(f"{MF} {v(SA,16)}, a[220:223], {v(G+4*T,4)}, {'0' if T == 0 else v(SA,16)}") for T in range(16)])
for b in range(1, 4): S.spread(mk(fpb(b) + "\ns_cbranch_vccnz L_fp_retry"), 4*b - 3, 4*b)
S.spread([w1_l.pop(0) for _ in range(opt("nw1a", 2))], 12, 16)
P.add(S.emit())
I(f"v_add_u32 v9, {L_KVX}, v{vFPD}")
for i in range(4): I(f"v_cvt_pk_bf16_f32 v{SA+8+i}, v{SA+2*i}, v{SA+2*i+1}")
I(f"ds_write_b128 v9, {v(SA+8,4)}\ns_waitcnt lgkmcnt(0)\ns_barrier")
stamp("kv summed", "mp")
KVA = 32; OD = 48
for q in range(7): I(f"ds_read_b64 {v(KVA+2*q,2)}, v{vKVX} offset:{512*q}")
P.add(w1_l.pop(0))
for s in range(3):
    I(f"{MF} {v(OD,16)}, {v(KVA+4*s,4)}, {v(PQ+4*s,4)}, {'0' if s == 0 else v(OD,16)}")
    if s == 1: P.add(w1_l.pop(0))
I(f"v_mfma_f32_32x32x8_bf16 {v(OD,16)}, {v(KVA+12,2)}, {v(PQ+12,2)}, {v(OD,16)}")
I(f"""s_lshl_b32 s{sP}, s{sTILE}, 15
s_lshr_b32 s{sB}, s{sW}, 1
s_lshl_b32 s{sB}, s{sB}, 14
s_add_u32 s{sP}, s{sP}, s{sB}
s_add_u32 s{sP}, s{sP}, {WS_O}
s_add_u32 s{sA}, s{sW1M}, {L_XCH}
v_add_u32 v132, s{sA}, v2
v_xor_b32 v133, 8192, v132
v_xor_b32 v9, 64, v{vWOR}
v_and_b32 v7, 31, v1
v_mul_u32_u24 v7, 896, v7
v_add_f32 v{OD+14}, 0x358637bd, v{OD+14}
v_rcp_f32 v{OD+14}, v{OD+14}
v_lshl_add_u32 v7, v3, 4, v7""")
for k in range(0, 14, 2): I(f"v_pk_mul_f32 {v(OD+k,2)}, {v(OD+k,2)}, {v(OD+14,2)} op_sel_hi:[1,0]")
for k in range(4): I(f"v_cvt_pk_bf16_f32 v{64+k}, v{OD+2*k}, v{OD+2*k+1}")
I(f"buffer_store_dwordx4 v[64:67], v2, {WS}, s{sOST} offen sc1")
for k in range(4, 7): I(f"v_cvt_pk_bf16_f32 v{64+k}, v{OD+2*k}, v{OD+2*k+1}")
I(f"""v_bitop3_b32 v71, v64, v5, s{sMASK} bitop3:0x28
v_and_b32 v6, s{sMASK}, v5
buffer_store_dwordx4 v[68:71], v2, {WS}, s{sOST} offen offset:1024 sc1""")
if GATE & 2: P.add(flag_store(7))
stamp("o stored", "mo")
P.wait("wo")
I(f"s_cmp_ge_u32 s{sRact}, 14\ns_cbranch_scc1 L_idle\ns_barrier")
wor = []
for s in range(16):
    hh, e = s >> 1, s & 1
    for k, av in ((0, vWOR), (1, 9)):
        for u in range(2):
            wor += mk(f"ds_read_b64_tr_b16 {a_(128+8*s+4*k+2*u,2)}, v{av} offset:{(28*hh+8*e+4*u)*128}")
XR = 224
xrr = []
for i in range(4): xrr += mk((f"v_xor_b32 v10, {16*i}, v{vXRR}\n" if i else "") + f"ds_read_b64 {v(XR+2*i,2)}, v{10 if i else vXRR}")
P.add(xrr)
G1 = gate("g1", vPO, vPF)
nb_ = min(opt("nw1b", 12), len(w1_l) - 8)
wor = sprinkle(wor, [w1_l.pop(0) for _ in range(nb_)], 0, opt("w1bs", 5))
if GATE & 2: wor = sprinkle(wor, [G1.load(0)], opt("g1", 40), 1)
P.add(wor)
OB = 16
FO = Fetch("fo", [([f"s_add_u32 s{sCt}, s{sP}, {2048*hh}\nbuffer_load_dwordx4 {v(OB+8*hh,4)}, v2, {WS}, s{sCt} offen sc1\nbuffer_load_dwordx4 {v(OB+8*hh+4,4)}, v2, {WS}, s{sCt} offen offset:1024 sc1"],
                   [OB+8*hh, OB+8*hh+7]) for hh in range(8)], masked=True, nre=opt('reo', 2))
stamp("pre o fetch", "o")
AO, AT = 80, 96
set3 = mk(f"""s_mul_i32 s{sSCR}, s{sW}, 12288
s_mul_i32 s{sBIG}, s{sW}, 28672
v_add_u32 v131, s{sBIG}, v2
s_lshl_b32 s{sB}, s{sC}, 1
s_lshr_b32 s{sD}, s{sW}, 1
s_add_u32 s{sB}, s{sB}, s{sD}
s_mul_i32 s{sA}, s{sTILE}, 14
s_add_u32 s{sB}, s{sB}, s{sA}
s_mul_i32 s{sPST}, s{sB}, 2560
s_add_u32 s{sPST}, s{sPST}, {WS_H}
s_lshr_b32 s48, s{sW}, 1
s_nop 0
v_bfe_u32 v9, v1, 2, 2
v_lshl_add_u32 v240, v3, 2, v9
v_lshlrev_b32 v254, 7, v240
v_lshlrev_b32 v240, 8, v240
v_xor_b32 v9, s{sW}, v9
v_lshl_add_u32 v240, v9, 6, v240
v_bfe_u32 v9, v1, 4, 1
v_lshlrev_b32 v9, 5, v9
v_lshl_add_u32 v9, v8, 3, v9
v_add_u32 v240, v240, v9
v_add_u32 v254, v254, v9
v_bfe_u32 v9, v1, 3, 1
v_xor_b32 v9, s48, v9
v_lshl_add_u32 v254, v9, 6, v254
s_add_u32 s{sSCR}, s{sSCR}, {L_SCR}
v_add_u32 v252, s{sBIG}, v254
v_xor_b32 v253, 64, v252
v_add_u32 v254, s{sSCR}, v254
v_add_u32 v134, s{sSCR}, v2
v_xor_b32 v255, 64, v254
v_xor_b32 v241, 64, v240
v_xor_b32 v242, 128, v240
v_xor_b32 v243, 192, v240""") + flat([mk(f"v_add_u32 v{244+m}, 57344, v{240+m}") for m in range(4)])
pre2 = []
for i in range(8): pre2 += mk(f"v_lshlrev_b32 v{112+2*i}, 16, v{XR+i}\nv_and_b32 v{113+2*i}, s{sHIM}, v{XR+i}")
for s in range(1, 16, 2): pre2 += mk(f"v_accvgpr_write_b32 a{128+8*s+3}, 0\nv_accvgpr_write_b32 a{128+8*s+7}, 0")
if GATE & 2:
    P.add(pre2); P.add(G1.check(0, 0))
    stamp("gate1", "o")
    for hh in range(8): P.add(FO.load(hh))
else:
    P.add(pre2[16:]); P.add(set3)
    I("s_waitcnt lgkmcnt(0)\ns_barrier")
    P.add(sprinkle(flat(flat([w2rd(j) for j in UAW[:NT1]])), [w1_l.pop(0) for _ in range(min(len(w1_l), opt("nw1s", 4)))], 0, 8))
    stamp("shadow done", "o")
    P.add(sprinkle(pre2[:16], [FO.load(hh) for hh in range(8)], 0, 2))
I("s_waitcnt lgkmcnt(0)\ns_barrier")
stamp("fo issued", "o")
g2 = []
for s in range(16):
    for k, acc in ((1, AT), (0, AO)):
        c = ("0" if k else v(112,16)) if s == 0 else v(acc,16)
        g2.append(mk(f"{MF} {v(acc,16)}, {a_(128+8*s+4*k,4)}, {v(OB+4*s,4)}, {c}"))

P.add(FO.check(0, 7))
stamp("fo0", "o")
S = Sched(g2)
for hh in range(1, 8): S.spread(FO.checkc(hh, 7), 4*hh - 3, 4*hh)
S.spread(w1_l + [raw.pop(0) for _ in range(min(len(raw), opt("rawb", 4)))], 0, 32)
P.add(S.emit())
stamp("p2 gemm done", "o")
for i in range(4): I(f"ds_write_b128 v132, {v(AT+4*i,4)} offset:{1024*i}")
I("v_mov_b32 v112, 0\nv_mov_b32 v113, 0\ns_waitcnt lgkmcnt(0)\ns_barrier")
for i in range(4): I(f"ds_read_b128 {v(AT+4*i,4)}, v133 offset:{1024*i}")
HR = XR
for k in range(0, 8, 2): I(f"v_pk_add_f32 {v(AO+k,2)}, {v(AO+k,2)}, {v(AT+k,2)}")
for i in range(4): I(f"v_cvt_pk_bf16_f32 v{HR+i}, v{AO+2*i}, v{AO+2*i+1}")
I(f"buffer_store_dwordx4 {v(HR,4)}, v2, {WS}, s{sPST} offen sc1")
for k in range(8, 16, 2): I(f"v_pk_add_f32 {v(AO+k,2)}, {v(AO+k,2)}, {v(AT+k,2)}")
for i in range(4, 8): I(f"v_cvt_pk_bf16_f32 v{HR+i}, v{AO+2*i}, v{AO+2*i+1}")
I(f"buffer_store_dwordx4 {v(HR+4,4)}, v2, {WS}, s{sPST} offen offset:1024 sc1")
for i in range(8): I(f"v_dot2c_f32_bf16 v112, s{sONES}, v{HR+i}\nv_dot2c_f32_bf16 v113, v{HR+i}, v{HR+i}")
I(f"""v_bitop3_b32 v10, v{HR}, v{HR+4}, v5 {X3}
v_permlane32_swap_b32 v112, v113
v_add_f32 v112, v112, v113
buffer_store_dword v112, v4, {WS}, s{sPST} offen offset:2048 sc1
v_xor_b32 v113, v10, v112
buffer_store_dword v113, v4, {WS}, s{sPST} offen offset:2304 sc1""")
def selft(sreg, nl): return mk(f"s_mov_b64 exec, {(1 << nl) - 1}\nbuffer_load_dword v135, v134, {WS}, s{sreg} offen sc1\ns_mov_b64 exec, -1")
SELF = opt("self", 0)
if SELF & 1: P.add(selft(sPST, 20))
if GATE & 4: P.add(flag_store(14))
stamp("h stored", "moh")
HB = 16; ST = 192
ACC = [144, 160, 176, 192]; AUG = 232
set4 = mk(f"""s_lshl_b32 s{sB}, s{sT3}, 2
s_add_u32 s{sB}, s{sB}, s{sW}
s_mul_i32 s{sP}, s{sB}, {14*2560}
s_add_u32 s{sP}, s{sP}, {WS_H}
s_mul_i32 s{sA}, s{sB}, 56
s_lshl_b32 s{sD}, s{sR}, 2
s_add_u32 s{sA}, s{sA}, s{sD}
s_mul_i32 s{sQ}, s{sA}, 2304
s_add_u32 s{sQ}, s{sQ}, {WS_H1}
v_lshlrev_b32 v13, 3, v1
s_lshl_b32 s{sA}, s{sW}, 9
s_add_u32 s{sA}, s{sA}, {L_AUG}
v_add_u32 v13, s{sA}, v13
v_mov_b32 v222, 0""")
FH = Fetch("fh", [([f"s_add_u32 s{sCt}, s{sP}, {2560*p}\nbuffer_load_dwordx4 {v(HB+8*p,4)}, v2, {WS}, s{sCt} offen sc1\nbuffer_load_dwordx4 {v(HB+8*p+4,4)}, v2, {WS}, s{sCt} offen offset:1024 sc1\n"
                    f"buffer_load_dword v{ST+2*p}, v4, {WS}, s{sCt} offen offset:2048 sc1\nbuffer_load_dword v{ST+2*p+1}, v4, {WS}, s{sCt} offen offset:2304 sc1"],
                   [HB+8*p, HB+8*p+4, ST+2*p, ST+2*p+1]) for p in range(14)], nre=opt('reh', 2))
for i in range(4): I(f"v_mov_b32 v{AUG+i}, s{sONES}")
P.wait("w1"); I("s_barrier")
stamp("w1 landed", "h")
def w1a(t, k): return (240 + k + (4 if t >= 14 else 0), (t % 14) * 4096, (t % 14) * 4096 + 2048)
st3 = [w1a(t, 0) + ((AUG, ACC[2], t == 0, True),) for t in range(28)]
TWO = opt("two", 1); N1 = 2 if TWO else 3
for t in range(28):
    for k in range(N1): st3.append(w1a(t, k) + ((HB + 4*t, ACC[k], t == 0, False),))
for t in range(28):
    for k in range(N1, 4): st3.append(w1a(t, k) + ((HB + 4*t, ACC[k], t == 0, False),))
pro, g3 = gemm_lds(st3, AH)
P.add(pro)
S3 = Sched(g3)
S3.spread(set4, 0, 8)
S3.spread(raw + w2dma(UD[0]) + w2dma(UD[1]), 0, opt("c0e", 20)); raw = []
NH0 = opt("nh0", 4); H0 = opt("h0", 24)
G2 = gate("g2", vPO, vPF)
if GATE & 4:
    S3.at(opt("g2", 12), G2.load(0), 0.9)
    S3.at(27, G2.check(0, 0) + stampi("gate2", "h") + flat([FH.load(p) for p in range(NH0)]), 0.5)
else: S3.spread(flat([FH.loadc(p) for p in range(NH0)]), H0, 27)
cs = ACC[2]
csx = mk(f"""v_cvt_pk_bf16_f32 v{AUG}, v{cs}, v{cs}
v_lshlrev_b32 v{AUG+1}, 16, v{AUG}
v_sub_f32 v{AUG+1}, v{cs}, v{AUG+1}
v_cvt_pk_bf16_f32 v{AUG}, v{cs}, v{AUG+1}
v_and_b32 v{AUG+1}, 0xffff, v{AUG}
v_cndmask_b32 v{AUG}, v{AUG}, 0, {sHI}
v_cndmask_b32 v{AUG+1}, v{AUG+1}, 0, {sHI}
ds_write_b64 v13, {v(AUG,2)}""")
S3.at(27, stampi("colsum done", "h") + csx + FH.check(0, NH0 - 1) + stampi("fh0", "h"), 1.0)
B0 = 28
for p in range(14):
    b = B0 + 2*N1*p
    if p + NH0 < 14:
        for k_, c_ in enumerate(FH.loadc(p + NH0)): S3.at(b + ((0, 2, 1, 3) if TWO else (0, 2, 4, 4))[k_], c_, 0.2)
    S3.at(b, mk(f"v_add_f32 v222, v222, v{ST+2*p}"), 0.0)
    if p + 1 < 14: S3.spread(FH.checkc(p + 1, min(13, p + NH0 - 1)), b + 1, b + 2*N1)
    if p in (3, 7, 11): S3.at(b + 2*N1 - 1, stampi(f"fh{p+1}", "h"), 1.0)
S3.at(B0 + 14, mk("s_barrier") + flat([mk(f"v_xor_b32 v9, {512*k}, v13\nds_read_b64 {v(AUG+2*k,2)}, v9") for k in range(1, 4)]), 0.0)
mid = mk(f"""v_mul_f32 v220, {fhex(1/448)}, v222
v_mov_b32 v221, v220
s_nop 0
v_permlane32_swap_b32 v220, v221
v_fma_f32 v221, -v220, v220, v221
v_max_f32 v221, 0, v221
v_add_f32 v221, 0x3727c5ac, v221
v_rsq_f32 v251, v221
v_cvt_pk_bf16_f32 v222, -v220, -v220
v_lshlrev_b32 v9, 16, v222
v_sub_f32 v9, -v220, v9
v_cvt_pk_bf16_f32 v223, v9, 0
v_mul_f32 v250, v221, v251
v_mul_f32 v251, 0xbfb8aa3b, v251
v_cndmask_b32 v222, v222, 0, {sHI}
v_cndmask_b32 v223, v223, 0, {sHI}""")
S3.spread(mid, *((B0 + 53, B0 + 59) if TWO else (B0 + 79, B0 + 84)))
def aug(k): return mk(f"v_mfma_f32_32x32x8_bf16 {v(ACC[k],16)}, {v(AUG+2*k,2)}, v[222:223], {v(ACC[k],16)}")
SLT = 132
def silu(k, pk):
    q = Prog(); a = ACC[k]; t = 208
    q.I(f"s_xor_b32 s50, s{sW}, {k}\ns_mul_i32 s50, s50, 2304\ns_add_u32 s50, s50, s{sQ}")
    for half in range(2):
        b = a + 8 * half
        if pk:
            for j in range(0, 8, 2): q.I(f"v_pk_mul_f32 {v(t+j,2)}, {v(b+j,2)}, v[250:251] op_sel:[0,1] op_sel_hi:[1,1]")
        else:
            for j in range(8): q.I(f"v_mul_f32 v{t+j}, v{b+j}, v251")
        for j in range(8): q.I(f"v_exp_f32 v{t+j}, v{t+j}")
        if pk:
            for j in range(0, 8, 2): q.I(f"v_pk_fma_f32 {v(t+j,2)}, {v(t+j,2)}, v[250:251], v[250:251] op_sel_hi:[1,0,0]")
        else:
            for j in range(8): q.I(f"v_fma_f32 v{t+j}, v{t+j}, v250, v250")
        for j in range(8): q.I(f"v_rcp_f32 v{t+j}, v{t+j}")
        if pk:
            for j in range(0, 8, 2): q.I(f"v_pk_mul_f32 {v(b+j,2)}, {v(b+j,2)}, {v(t+j,2)}")
        else:
            for j in range(8): q.I(f"v_mul_f32 v{b+j}, v{b+j}, v{t+j}")
        for j in range(4): q.I(f"v_cvt_pk_bf16_f32 v{b+j}, v{b+2*j}, v{b+2*j+1}")
        q.I(f"buffer_store_dwordx4 {v(b,4)}, v2, {WS}, s50 offen offset:{1024*half} sc1")
    q.I(f"v_bitop3_b32 v216, v5, v{a}, v{a+8} {X3}")
    q.I(f"buffer_store_dword v216, v4, {WS}, s50 offen offset:2048 sc1")
    return q.items + ([selft(50, 18)] if SELF & 2 and not pk else [])
E0 = B0 + 28*N1
assert not raw
if TWO:
    S3.spread(flat([w2rd(j) for j in UD + UR + UAW[NT1:]]), B0 + 8, B0 + 42)
    S3.at(B0 + 34, mk("s_barrier"), 0.0)
    S3.spread(flat([w2dma(j) for j in UE]), B0 + 48, E0 + opt("wde", 12))
else:
    S3.spread(flat([w2rd(j) for j in UD + UR + UAW[NT1:]]), B0 + 22, B0 + 58)
    S3.at(B0 + 44, mk("s_barrier"), 0.0)
    S3.spread(flat([w2dma(j) for j in UE]), B0 + 64, E0)
B4 = 16
CKR = [240, 241, 244, 245, 248, 249, 217, 218, 219, 130, 242, 246, 243, 247]
C4 = [[a_(224,16), a_(240,16)], [v(ACC[0],16), v(ACC[1],16)]]
set5 = mk(f"""s_mul_i32 s{sA}, s{sTILE}, 56
s_xor_b32 s{sB}, s{sTILE}, 1
s_mul_i32 s{sB}, s{sB}, 56
s_add_u32 s51, s{sB}, s44
s_add_u32 s52, s{sA}, s44
s_add_u32 s53, s{sB}, s45
s_add_u32 s54, s{sA}, s45""")
for k in range(4):
    set5 += mk(f"s_mul_i32 s{51+k}, s{51+k}, 2304\ns_add_u32 s{51+k}, s{51+k}, {WS_H1}")
S3.spread(set5, B0 + 42, B0 + 52)
def piece4(n):
    st, i = n // 7, n % 7; r = B4 + 8 * (n % 14); c = CKR[n % 14]
    return ([f"s_add_u32 s{sCt}, s{51+st}, {8*2304*i}\nbuffer_load_dwordx4 {v(r,4)}, v2, {WS}, s{sCt} offen sc1\nbuffer_load_dwordx4 {v(r+4,4)}, v2, {WS}, s{sCt} offen offset:1024 sc1\n"
             f"buffer_load_dword v{c}, v4, {WS}, s{sCt} offen offset:2048 sc1"], [r, r+4, c])
F4 = Fetch("f4", [piece4(n) for n in range(28)], nre=opt("re4", 1))
ND = opt("nd", 4)
rawl = flat([w2raw(j) for j in UL])
nr0 = min(len(rawl), opt("nr0", 4))
if TWO:
    S3.at(E0 - 1, stampi("p3 pass1 done", "mh"), 1.0)
    g3[E0 + 3] = aug(0) + g3[E0 + 3]; g3[E0 + 4] = aug(1) + g3[E0 + 4]
    S3.spread(silu(0, False) + [stampi("silu0 done", "e")], E0 + 5, E0 + opt("s0e", 28))
    S3.spread(silu(1, False), E0 + opt("s0e", 28), E0 + opt("s1e", 52))
    S3.spread(rawl, E0 + opt("wde", 12), E0 + opt("rle", 36))
    DEEP = opt("deep", 0)
    if DEEP:
        rng = [(opt("a0", -18), opt("b0", 4)), (opt("a1", 6), opt("b1", 24)), (opt("a2", 26), opt("b2", 50)), (opt("a3", 50), opt("b3", 78))]
        f4pos = []
        for n in range(28):
            a, b = rng[n // 7]
            for k_, c_ in enumerate(F4.loadc(n)):
                pos = a + (b - a) * ((n % 7) + (0, 0.45, 0.9)[k_]) / 7
                lo = (4*n + 4 - 56) if n < 14 else 4*(n - 14) + 4
                pos = max(pos, lo + 0.01*k_); assert pos < 4*n - 3 or n == 0, (n, pos)
                f4pos.append((pos, c_))
        for i_ in range(1, len(f4pos)): assert f4pos[i_][0] >= f4pos[i_-1][0], i_
        import math
        for pos, c_ in f4pos:
            if pos < 0: S3.at(E0 + 56 + math.floor(pos), c_, pos - math.floor(pos))
    else: S3.spread(flat([F4.loadc(n) for n in range(ND)]), E0 + opt("f4s", 42), E0 + 56)
    P.add(S3.emit())
    P.add(aug(2) + aug(3))
else:
    S3.at(E0 - 1, stampi("p3 pass1 done", "mh") + aug(0) + aug(1) + aug(2) + sprinkle(silu(0, True), rawl[:nr0], 3, 12) + stampi("silu0 done", "e"), 1.0)
    S3.spread(silu(1, False), E0, E0 + 26)
    S3.spread(rawl[nr0:], E0, E0 + 14)
    S3.spread(flat([F4.loadc(n) for n in range(ND)]), E0 + opt("f4s", 16), E0 + 28)
    P.add(S3.emit())
    P.add(aug(3))
I("s_barrier")
stamp("p3 gemm done", "me")
g4 = []
for n in range(28):
    st, i = n // 7, n % 7; hf, par = st >> 1, st & 1
    for e in range(2):
        for mu in range(2):
            zero = hf == 0 and i == 0 and e == 0 and not (par == 1 and mu == 0)
            g4.append(mk(f"{MF} {C4[par][mu]}, {a_(UA(7*hf+i)+8*e+4*mu,4)}, {v(B4+8*(n%14)+4*e,4)}, {'0' if zero else C4[par][mu]}"))
P.add(F4.check(0, ND - 1))
S = Sched(g4)
for n in range(28):
    if n + ND < 28 and not (TWO and DEEP):
        for k_, c_ in enumerate(F4.loadc(n + ND)): S.at(4*n + (0, 2, 1)[k_], c_, 0.2)
    if n + 1 < 28: S.spread(F4.checkc(n + 1, min(27, n + ND)), 4*n + 2, 4*n + 4)
    if n in (6, 13, 20): S.at(4*n + 3, stampi(f"stage{n//7} done", "e"), 1.0)
unp = []
for i in range(8): unp += mk(f"v_lshlrev_b32 v{ACC[0]+2*i}, 16, v{HR+i}\nv_and_b32 v{ACC[0]+1+2*i}, s{sHIM}, v{HR+i}")
if TWO and DEEP:
    for pos, c_ in f4pos:
        if pos >= 0: S.at(int(pos), c_, pos - int(pos))
S2E, S3E = opt("s2e", 22), opt("s3e", 50)
S.spread(silu(2, False), 0, S2E)
S.spread(unp, 22, 27)
S.spread(silu(3, False), S2E, S3E)
S.spread(flat([w2rd(j) for j in UE if j < 7]), 0, 14)
S.spread(flat([w2dma(j) for j in UP]), opt("w2a", 2), opt("w2b", 44))
for j in [x for x in UE + UL + UP if x >= 7]: S.spread(w2rd(j), 44 + 5*(j-7), 49 + 5*(j-7))
S.at(82, mk(f"""s_lshl_b32 s{sA}, s{sW}, 14
v_add_u32 v13, s{sA}, v2
v_xor_b32 v9, 16384, v13
v_xor_b32 v12, 32768, v13
v_xor_b32 v14, 49152, v13
s_waitcnt lgkmcnt(0)
s_barrier"""))
S.spread([mk(f"ds_write_b128 v{9 if mu == 0 else 14}, {a_(224+16*mu+4*i,4)} offset:{4096*(2*mu+1)+1024*i}") for mu in range(2) for i in range(4)], 87, 99)
S.at(100, mk("s_waitcnt lgkmcnt(0)\ns_barrier"), 0.0)
S.spread([mk(f"ds_read_b128 {v(ACC[2+mu]+4*i,4)}, v13 offset:{4096*(2*mu+1)+1024*i}") for mu in range(2) for i in range(4)], 100, 104)
S.spread([mk(f"v_add_f32 v{ACC[2]+k}, v{ACC[2]+k}, v{ACC[3]+k}") for k in range(16)], 107, 112)
P.add(S.emit())
stamp("p4 gemm done", "me")
for i in range(4): I(f"ds_write_b128 v12, {v(ACC[1]+4*i,4)} offset:{8192+1024*i}")
if opt("cout", 0):
    I(f"""v_lshlrev_b32 v16, 3, v3
v_sub_u32 v16, v{vXRR}, v16
v_lshlrev_b32 v17, 4, v3
v_xor_b32 v16, v16, v17
v_xor_b32 v17, 32, v16
s_add_u32 s{sA}, s{sXO}, {L_XCH}
v_add_u32 v18, s{sA}, v2""")
I("s_waitcnt lgkmcnt(0)\ns_barrier")
for i in range(4): I(f"ds_read_b128 {v(ACC[3]+4*i,4)}, v13 offset:{8192+1024*i}")
for k in range(0, 16, 2): I(f"v_pk_add_f32 {v(ACC[0]+k,2)}, {v(ACC[0]+k,2)}, {v(ACC[2]+k,2)}")
for hf in range(2):
    b = ACC[0] + 8*hf
    for k in range(0, 8, 2): I(f"v_pk_add_f32 {v(b+k,2)}, {v(b+k,2)}, {v(ACC[3]+8*hf+k,2)}")
    for i in range(4): I(f"v_cvt_pk_bf16_f32 v{96+4*hf+i}, v{b+2*i}, v{b+2*i+1}")
    if not opt("cout", 0):
        I(f"v_permlane32_swap_b32 v{96+4*hf}, v{98+4*hf}\nv_permlane32_swap_b32 v{97+4*hf}, v{99+4*hf}\nbuffer_store_dwordx4 {v(96+4*hf,4)}, v7, {OUT}, s{sOUT} offen offset:{32*hf} {OPT.get('ofl', '')}")
    else:
        I(f"v_permlane32_swap_b32 v{96+4*hf}, v{98+4*hf}\nv_permlane32_swap_b32 v{97+4*hf}, v{99+4*hf}\nds_write_b128 v{16+hf}, {v(96+4*hf,4)}")
if opt("cout", 0):
    I("s_waitcnt lgkmcnt(0)\ns_barrier")
    for i in range(2): I(f"ds_read_b128 {v(104+4*i,4)}, v18 offset:{1024*i}")
    for i in range(2): I(f"buffer_store_dwordx4 {v(104+4*i,4)}, v{vXRD0+i}, {OUT}, s{sXRB} offen offset:{1024*i} {OPT.get('ofl', '')}")
stamp("end", "mpohez")
I(f"""s_cmp_lg_u32 s2, 0
s_cbranch_scc1 L_ex0
v_mov_b32 v9, 0""")
I(f"buffer_store_dword v5, v9, {WS}, 0 offen sc1", unc=True)
I("L_ex0:")
if opt("enc", 0):
    mode = opt("enc", 0)
    if mode <= 4:
        I(f"s_bfe_u32 s{sA}, s80, {hex(0x80000 | (8*(mode-1)))}\ns_min_u32 s{sA}, s{sA}, 1\ns_mul_i32 s{sA}, s{sA}, 2000", unc=True)
    else:
        I(f"s_waitcnt lgkmcnt(0)\ns_sub_u32 s{sA}, s{sSTAMP+2}, s78\ns_mul_i32 s{sA}, s{sA}, 4", unc=True)
    I(f"""s_memrealtime s[40:41]
s_waitcnt lgkmcnt(0)
L_enc:
s_memrealtime s[42:43]
s_waitcnt lgkmcnt(0)
s_sub_u32 s42, s42, s40
s_cmp_lt_u32 s42, s{sA}
s_cbranch_scc1 L_enc
s_branch L_end""", unc=True)
if opt("dbg", 0):
    I(f"""s_cmp_lg_u32 s{sW}, 0
s_cbranch_scc1 L_end
s_load_dwordx2 s[40:41], s[0:1], 64
s_mov_b32 s42, 256
s_mov_b32 s43, 0x20000
s_mov_b64 exec, 1
v_mov_b32 v9, 0
s_waitcnt lgkmcnt(0)""", unc=True)
    for k in range(nstamp[0]):
        I(f"s_sub_u32 s{sA}, s{sSTAMP+2*k}, s78\nv_mov_b32 v10, s{sA}\nbuffer_atomic_umax v10, v9, s[40:43], 0 offen offset:{4*k}\ns_nop 1", unc=True)
    I(f"""v_mov_b32 v10, s78
buffer_atomic_umax v10, v9, s[40:43], 0 offen offset:32
s_not_b32 s{sA}, s78
v_mov_b32 v11, s{sA}
buffer_atomic_umax v11, v9, s[40:43], 0 offen offset:36
v_mov_b32 v12, s{sSTAMP+2*(nstamp[0]-1)}
buffer_atomic_umax v12, v9, s[40:43], 0 offen offset:40
v_mov_b32 v13, s80
buffer_atomic_add v13, v9, s[40:43], 0 offen offset:44
s_branch L_end""", unc=True)
I("L_exit:")
if DIAG and not opt("dbg", 0):
    I(f"s_cmp_lg_u32 s{sW}, {opt('dw', 0)}\ns_cbranch_scc1 L_end\ns_lshl_b32 s{sA}, s2, 7\ns_add_u32 s{sA}, s{sA}, {WS_DIAG}\nv_mov_b32 v9, 0", unc=True)
    for k in range(nstamp[0]):
        I(f"s_waitcnt lgkmcnt(0)\nv_mov_b32 v10, s{sSTAMP+2*k}\nbuffer_store_dword v10, v9, {WS}, s{sA} offen offset:{4*k}", unc=True)
    if SEL == ["z"]: I(f"v_mov_b32 v10, s78\nbuffer_store_dword v10, v9, {WS}, s{sA} offen offset:120", unc=True)
    I(f"v_mov_b32 v10, s80\nbuffer_store_dword v10, v9, {WS}, s{sA} offen offset:124", unc=True)
I("L_end:\ns_endpgm")
I(f"""L_idle:
s_and_b32 s{sA}, s{sT2}, 1
s_lshl_b32 s{sA}, s{sA}, 1
s_add_u32 s{sA}, s{sA}, s{sRact}
s_sub_u32 s{sA}, s{sA}, 14
s_lshl_b32 s{sA}, s{sA}, 2
s_add_u32 s{sA}, s{sA}, s{sW}
s_lshl_b32 s{sA}, s{sA}, 13
v_lshlrev_b32 v9, 7, v1
s_lshr_b32 s{sD}, s{sT2}, 1
s_mul_i32 s{sD}, s{sD}, {8*56*2304}
s_add_u32 s{sD}, s{sD}, {WS_H1}
s_add_u32 s{sD}, s{sD}, s{sA}
s_mov_b32 s{sB}, {opt("idle2", 0)}
s_cmp_eq_u32 s{sB}, 0
s_cbranch_scc1 L_idle3
L_idle2:
buffer_load_dword v11, v9, {WS}, s{sD} offen {OPT.get("i2f", "")}
s_add_u32 s{sD}, s{sD}, {16*8192}
s_sub_u32 s{sB}, s{sB}, 1
s_cmp_lg_u32 s{sB}, 0
s_cbranch_scc1 L_idle2
L_idle3:
s_mov_b32 s{sB}, {opt("idle", 0)}
s_cmp_eq_u32 s{sB}, 0
s_cbranch_scc1 L_exit
L_idle1:
buffer_load_dword v11, v9, {W2}, s{sA} offen
s_add_u32 s{sA}, s{sA}, {16*8192}
s_sub_u32 s{sB}, s{sB}, 1
s_cmp_lg_u32 s{sB}, 0
s_cbranch_scc1 L_idle1
s_branch L_exit""", unc=True)
P.add(TAIL.items)

PL = opt("plain", 0)
for it in P.items:
    if isinstance(it, Ins) and it.op.startswith("buffer_store") and "sc1" in it.text:
        ish1 = " s50 " in it.text or " s49 " in it.text
        ish = ("v[224:227]" in it.text or "v[228:231]" in it.text or "v112," in it.text or "v113," in it.text)
        if (ish and PL & 1) or (ish1 and PL & 2): it.text = it.text.replace(" sc1", OPT.get("pfl", ""))
if opt("pld", 0):
    c = 0
    for it in P.items:
        if isinstance(it, Ins) and it.op.startswith("buffer_load") and "sc1" in it.text and " s56 " in it.text and not it.uncounted:
            c += 1
            kind = 0 if c <= 48 else 1 if c <= 104 else 2
            if opt("pld", 0) & kind: it.text = it.text.replace(" sc1", OPT.get("lfl", ""))
if opt("nochk", 0):
    new = []; seen_end = False
    for it in P.items:
        if isinstance(it, Ins):
            if opt("nochk", 0) == 2 and not seen_end:
                if it.text.startswith("L_exit"): seen_end = True
                elif it.uncounted or it.op in ("s_cbranch_vccz", "s_branch"): continue
            if it.op == "s_cbranch_vccz" and not it.uncounted: it = Ins(it.text.replace("s_cbranch_vccz", "s_branch"))
            elif it.op == "s_cbranch_vccnz" and not it.uncounted: continue
            t = it.text
            if it.op.startswith("buffer_store") and "sc1" in t and not it.uncounted:
                kind = 8 if " s50 " in t else 4 if ("v[224" in t or "v[228" in t or "v112," in t or "v113," in t) else 2 if f" s{sOST} " in t else 1
                if opt("nost", 0) & kind: continue
            if it.op.startswith("buffer_load") and "sc1" in t and " s56 " in t and not it.uncounted:
                cnt_ld = globals().setdefault("_c", [0]); cnt_ld[0] += 1; c = cnt_ld[0]
                kind = 1 if c <= 32 else 2 if c <= 48 else 4 if c <= 104 else 8
                if opt("nold", 0) & kind: continue
        new.append(it)
    P.items = new
body, items = render(P.items)
if opt("align", 1):
    import subprocess, re as _re
    open("_al.s", "w").write('.amdgcn_target "amdgcn-amd-amdhsa--gfx950"\n.text\n' + body)
    subprocess.run(["clang", "-x", "assembler", "-target", "amdgcn-amd-amdhsa", "-mcpu=gfx950", "-c", "_al.s", "-o", "_al.o"], check=True)
    dis = subprocess.run(["llvm-objdump", "-d", "--mcpu=gfx950", "_al.o"], capture_output=True, text=True).stdout
    sizes = [4 * len(m.group(1).split()) for m in _re.finditer(r"// [0-9A-F]{12}: ((?:[0-9A-F]{8} ?)+)", dis)]
    real = [i for i in items if i.cls not in ('label', 'dir')]
    assert len(sizes) == len(real), (len(sizes), len(real))
    sz = {id(i): n for i, n in zip(real, sizes)}
    new = []; off = 0; nal = 0; MINRUN = opt("minrun", 6)
    for k, it in enumerate(items):
        if id(it) in sz and sz[id(it)] == 8 and off % 8 == 4 and not it.uncounted:
            run = 0
            for j in items[k:k + MINRUN + 4]:
                if id(j) not in sz: continue
                if sz[id(j)] != 8 or j.cls == 'mfma': break
                run += 1
            if run >= MINRUN:
                p = new[-1] if new else None
                if p is not None and p.cls == 'valu' and sz.get(id(p)) == 4 and not p.op.startswith(('v_permlane', 'v_dot2c', 'v_readfirst', 'v_accvgpr', 'v_cmp', 'v_cndmask')) and not p.op.endswith('_e64'):
                    p.text = p.text.replace(p.op, p.op + "_e64", 1)
                else: new.append(Ins("s_nop 0"))
                off += 4; nal += 1
        new.append(it); off += sz.get(id(it), 0)
    items = new
    body = '\n'.join(('' if i.cls == 'label' else '  ') + i.text for i in items) + '\n'
    print("alignment fixes:", nal, "code bytes", off)
hdr = open("cdna_kernels/" + NAME + ".s.ref").read().split("; Override launch")[0]
out = hdr + f"""; @launch grid=(256,1,1) block=(256,1,1) lds={LDS_SIZE}
.amdgcn_target "amdgcn-amd-amdhsa--gfx950"
.text
.globl {NAME}_kernel
.p2align 8
.type {NAME}_kernel,@function
{NAME}_kernel:
{body}.fill 2048, 4, 0xbf810000
.section .rodata,"a"
.p2align 6
.amdhsa_kernel {NAME}_kernel
  .amdhsa_next_free_vgpr 512
  .amdhsa_next_free_sgpr 102
  .amdhsa_accum_offset 256
  .amdhsa_group_segment_fixed_size 0
  .amdhsa_kernarg_size 80
  .amdhsa_user_sgpr_count 2
  .amdhsa_user_sgpr_kernarg_segment_ptr 1
  .amdhsa_system_sgpr_workgroup_id_x 1
.end_amdhsa_kernel
"""
open(sys.argv[1], "w").write(out)
n = sum(1 for i in items if i.cls not in ('label', 'dir'))
nu_ = sum(1 for i in items if i.cls not in ('label', 'dir') and i.uncounted)
print("instructions:", n, "(slow path", nu_, ") nops:", sum(1 for i in items if i.op == 's_nop'), "waits:", sum(1 for i in items if i.op == 's_waitcnt'), "stamps", nstamp[0])
```

```python
import sys, struct
from asmlib import *

NAME = "sequential_preLN__linear_kernel_hedgehog__dense_activation_silu__prompt"
DIAG = int(sys.argv[2]) if len(sys.argv) > 2 else 0
OPT = dict(a.split('=') for a in sys.argv[3:])
def opt(k, d): return int(OPT[k], 0) if k in OPT else d

WS_PART = 0x40000
WS_O    = 0x240000
WS_H    = 0x440000
WS_H1   = 0x680000
WS_DIAG = 0xE80000
WS_FLG  = 0xF00000
WS_SIZE = 0xF80000
XW = 28672
L_WV, L_WQ, L_WK, L_WO = 0, 28672, 57344, 86016
L_IMG = L_WK
L_KVX = 143360
L_XCH = 147456
L_SCR = 114688
L_AUG = 161792
LDS_SIZE = 163840
sW, sT, sH, sT2, sR = 3, 4, 5, 6, 7
X, WQKV, WPHI, WO, W1, W2, OUT, WS = [f"s[{i}:{i+3}]" for i in range(8, 40, 4)]
sKX, sKW = 40, 47
sHQ, sHIM = 54, 55
sRET = "s[56:57]"
sSPIN, sP, sU, sC, sMASK, sQ = 58, 59, 60, 61, 62, 63
sHI = "s[64:65]"
sLOG = "s[66:67]"
sONES, sTILE = 68, 69
sA, sB, sCt, sD = 70, 71, 72, 73
sRact, sXO = 74, 75
sWB, sWQ = 76, 77
sLAST, sFLAG, sWM, sPST, sPCK, sOST, sXRB, sOUT = 80, 81, 82, 83, 84, 85, 86, 87
sSTAMP = 88

def v(a, n=1): return f"v{a}" if n == 1 else f"v[{a}:{a+n-1}]"
def a_(a, n=1): return f"a{a}" if n == 1 else f"a[{a}:{a+n-1}]"
def fhex(x): return hex(struct.unpack('<I', struct.pack('<f', x))[0])
def flat(l): return sum(l, [])
P = Prog(); I = P.I
TAIL = Prog()
nstamp = [0]
SEL = OPT.get("st", "m").split(",")
PICK = [int(x) for x in OPT["pick"].split(",")] if "pick" in OPT else None
allst = [0]
def stampi(name, grp="m"):
    idx = allst[0]; allst[0] += 1
    if not DIAG: return []
    if PICK is not None:
        if name != "start" and idx not in PICK:
            print(f"   - {idx}: {name}"); return []
    elif name != "start" and not (set(grp) & set(SEL)): return []
    k = nstamp[0]; nstamp[0] += 1
    assert k < 7
    print(f"stamp {k}: [{idx}] {name}")
    op = "s_memtime" if DIAG == 2 else "s_memrealtime"
    return mk(f"{op} s[{sSTAMP+2*k}:{sSTAMP+2*k+1}]")
def stamp(name, grp="m"): P.add(stampi(name, grp))
X3 = "bitop3:0x96"

def chk_code(regs, masked):
    r = list(regs)
    if masked: return f"v_bitop3_b32 v10, v{r[0]}, v{r[1]}, s{sMASK} bitop3:0x28\nv_cmp_ne_u32 vcc, v10, v6"
    if len(r) == 1: return f"v_cmp_ne_u32 vcc, v{r[0]}, v5"
    if len(r) == 2: t = f"v_xor_b32 v10, v{r[0]}, v{r[1]}"
    else:
        t = f"v_bitop3_b32 v10, v{r[0]}, v{r[1]}, v{r[2]} {X3}"
        if len(r) == 4: t += f"\nv_xor_b32 v10, v10, v{r[3]}"
    return t + "\nv_cmp_ne_u32 vcc, v10, v5"

sFL, sDM = 56, 57
GUARD = f"s_add_u32 s{sSPIN}, s{sSPIN}, 1\ns_cmp_gt_u32 s{sSPIN}, 0x40000\ns_cbranch_scc1 L_end\ns_waitcnt vmcnt(0)"
class Fetch:
    def __init__(self, name, pieces, masked=False, nre=1):
        self.name, self.pieces, self.masked, self.nre = name, pieces, masked, nre
    def loadc(self, i):
        it = flat([mk(c.replace(f"s{sCt}", f"s{sFL}")) for c in self.pieces[i][0]])
        out = []; cur = []
        for x in it:
            cur.append(x)
            if x.cls == 'vmem': out.append(cur); cur = []
        return out
    def load(self, i): return flat(self.loadc(i))
    def stub(self, i, last):
        n = self.name
        wgt = {"fo": 0x100, "fh": 0x10000, "f4": 0x1000000}.get(n, 1)
        rel = (f"s_add_u32 s80, s80, {wgt}\n" if DIAG else "") + "\n".join(c for j in range(i, min(last, i + self.nre - 1) + 1) for c in self.pieces[j][0])
        if opt("ool", 7) & {"fo": 2, "fh": 4, "f4": 8}[n]:
            TAIL.I(f"L_{n}_r{i}:\n" + rel + "\n" + GUARD + "\n" + chk_code(self.pieces[i][1], self.masked) + f"\ns_cbranch_vccnz L_{n}_r{i}\ns_branch L_{n}_ok{i}", unc=True)
            return mk(f"s_cbranch_vccnz L_{n}_r{i}\nL_{n}_ok{i}:")
        return mk(f"s_cbranch_vccz L_{n}_ok{i}\nL_{n}_r{i}:") + \
               mk(rel + "\n" + GUARD + "\n" + chk_code(self.pieces[i][1], self.masked) + f"\ns_cbranch_vccnz L_{n}_r{i}", unc=True) + mk(f"L_{n}_ok{i}:")
    def checkc(self, i, last):
        return [[x] for x in mk(chk_code(self.pieces[i][1], self.masked))] + [self.stub(i, last)]
    def check(self, i, last): return flat(self.checkc(i, last))

sFS, sFP = 80, 81
vL512, vPO, vPF = 0, 142, 143
def flag_store(nl): return mk(f"s_mov_b64 exec, {(1 << nl) - 1}\nbuffer_store_dword v5, v{vL512}, {WS}, s{sFS} offen sc1\ns_mov_b64 exec, -1")
def gate(name, vo, vf): return Fetch(name, [([f"buffer_load_dword v{vf}, v{vo}, {WS}, s{sFP} offen sc1"], [vf])])
GATE = opt("gate", 0)

def cost(it):
    if isinstance(it, WaitTag): return 4
    if it.cls in ('label', 'dir') or it.uncounted: return 0
    if it.op.startswith(TRANS) or 'permlane' in it.op: return 8
    if it.op.startswith('ds_write_b128'): return 28
    if it.cls == 'mfma': return 8
    return 4.5
class Sched:
    def __init__(self, groups):
        self.groups = groups; self.gap = [[] for _ in groups]; self.seq = 0
    def at(self, g, items, frac=0.5):
        self.seq += 1; self.gap[g].append((frac, self.seq, list(items)))
    def spread(self, chunks, a, b):
        chunks = [c if isinstance(c, list) else [c] for c in chunks]
        tot = sum(cost(i) for c in chunks for i in c) or 1; acc = 0
        for c in chunks:
            pos = a + (b - a) * acc / tot
            self.at(int(pos), c, pos - int(pos))
            acc += sum(cost(i) for i in c)
    def emit(self):
        out = []
        for g, gp in zip(self.groups, self.gap):
            out += g
            for _, _, c in sorted(gp, key=lambda x: (x[0], x[1])): out += c
        return out
def sprinkle(items, groups, start, step):
    out = []; groups = list(groups); nxt = start
    for i, it in enumerate(items):
        if groups and i == nxt: out += groups.pop(0); nxt += step
        out.append(it)
    for g in groups: out += g
    return out

def softmax(p, t, o, pk):
    q = Prog(); J = q.I
    m, n = t + 14, t + 15; r0, r1 = t + 16, t + 17
    J(f"v_max3_f32 v{m}, v{p}, v{p+1}, v{p+2}\nv_max3_f32 v{n}, -v{p}, -v{p+1}, -v{p+2}")
    for k in range(3, 13, 2):
        J(f"v_max3_f32 v{m}, v{m}, v{p+k}, v{p+k+1}\nv_max3_f32 v{n}, v{n}, -v{p+k}, -v{p+k+1}")
    J(f"""v_max_f32 v{m}, v{m}, v{p+13}
v_max_f32 v{n}, v{n}, -v{p+13}
v_permlane32_swap_b32 v{m}, v{n}
v_max_f32 v{m}, v{m}, v{n}
v_mul_f32 v{m}, v253, v{m}
v_mov_b32 v{n}, v{m}
v_permlane32_swap_b32 v{m}, v{n}""")
    if pk:
        for k in range(0, 14, 2):
            J(f"v_pk_fma_f32 {v(t+k,2)}, {v(p+k,2)}, v[252:253], {v(m,2)} op_sel_hi:[1,0,0]")
            J(f"v_pk_fma_f32 {v(p+k,2)}, {v(p+k,2)}, v[252:253], {v(m,2)} op_sel:[0,1,1] op_sel_hi:[1,1,1]")
    if pk == 2:
        for k in range(14):
            J(f"v_exp_f32 v{t+k}, v{t+k}\nv_exp_f32 v{p+k}, v{p+k}")
            if k >= 2:
                a0 = f"v{t}" if k == 2 else f"v{r0}"; a1 = f"v{p}" if k == 2 else f"v{r1}"
                J(f"v_add_f32 v{r0}, {a0}, v{t+k-1}\nv_add_f32 v{r1}, {a1}, v{p+k-1}")
        J(f"v_add_f32 v{m}, v{r0}, v{t+13}\nv_add_f32 v{n}, v{r1}, v{p+13}")
    elif pk:
        for k in range(14): J(f"v_exp_f32 v{t+k}, v{t+k}")
        for k in range(14): J(f"v_exp_f32 v{p+k}, v{p+k}")
        J(f"v_pk_add_f32 {v(m,2)}, {v(t,2)}, {v(t+2,2)}\nv_pk_add_f32 {v(r0,2)}, {v(p,2)}, {v(p+2,2)}")
        for k in range(4, 14, 2):
            J(f"v_pk_add_f32 {v(m,2)}, {v(m,2)}, {v(t+k,2)}\nv_pk_add_f32 {v(r0,2)}, {v(r0,2)}, {v(p+k,2)}")
        J(f"v_add_f32 v{m}, v{m}, v{n}\nv_add_f32 v{n}, v{r0}, v{r1}")
    else:
        for k in range(14):
            J(f"v_fma_f32 v{t+k}, v{p+k}, v252, v{m}\nv_fma_f32 v{p+k}, v{p+k}, v253, v{n}\nv_exp_f32 v{t+k}, v{t+k}\nv_exp_f32 v{p+k}, v{p+k}")
            if k >= 2:
                a0 = f"v{t}" if k == 2 else f"v{r0}"; a1 = f"v{p}" if k == 2 else f"v{r1}"
                J(f"v_add_f32 v{r0}, {a0}, v{t+k-1}\nv_add_f32 v{r1}, {a1}, v{p+k-1}")
        J(f"v_add_f32 v{m}, v{r0}, v{t+13}\nv_add_f32 v{n}, v{r1}, v{p+13}")
    J(f"""v_permlane32_swap_b32 v{m}, v{n}
v_add_f32 v{m}, v{m}, v{n}
v_rcp_f32 v{m}, v{m}
v_mov_b32 v{n}, v{m}
v_permlane32_swap_b32 v{m}, v{n}""")
    if pk == 1:
        for k in range(0, 14, 2):
            J(f"v_pk_mul_f32 {v(t+k,2)}, {v(t+k,2)}, {v(m,2)} op_sel_hi:[1,0]")
            J(f"v_pk_mul_f32 {v(p+k,2)}, {v(p+k,2)}, {v(m,2)} op_sel:[0,1] op_sel_hi:[1,1]")
    else:
        for k in range(14): J(f"v_mul_f32 v{t+k}, v{t+k}, v{m}\nv_mul_f32 v{p+k}, v{p+k}, v{n}")
    for k in range(7): J(f"v_cvt_pk_bf16_f32 v{o+k}, v{t+2*k}, v{t+2*k+1}")
    for k in range(7): J(f"v_cvt_pk_bf16_f32 v{o+7+k}, v{p+2*k}, v{p+2*k+1}")
    return q.items

def dmag(vaddrs, srd, sbase, sadd, mbase, madd, tag, sreg=None):
    sr = sCt if sreg is None else sreg
    ch = [mk(f"buffer_load_dwordx4 v{a}, {srd}, s{sr} offen offset:{1024*i} lds", tag=tag) for i, a in enumerate(vaddrs)]
    ch[0] = mk(f"s_add_u32 m0, s{mbase}, {madd}\ns_add_u32 s{sr}, s{sbase}, {sadd}") + ch[0]
    return ch

MF = "v_mfma_f32_32x32x16_bf16"
RINGA, NRING = 224, 8
def gemm_lds(steps, ahead=6):
    def rd(i):
        av, o1, o2 = steps[i][:3]; r = RINGA + 4 * (i % NRING)
        return mk(f"ds_read_b64_tr_b16 {a_(r,2)}, v{av} offset:{o1}\nds_read_b64_tr_b16 {a_(r+2,2)}, v{av} offset:{o2}")
    rds = [rd(i) for i in range(len(steps))]
    groups = []
    for i, st in enumerate(steps):
        r = RINGA + 4 * (i % NRING); b, acc, first, swap = st[3]
        A, B = a_(r, 4), v(b, 4)
        if swap: A, B = B, A
        g = mk(f"{MF} {v(acc,16)}, {A}, {B}, {'0' if first else v(acc,16)}")
        if i % 2 == 0 and i + 1 < len(steps):
            r2 = RINGA + 4 * ((i + 1) % NRING); g[0].extra = [('a', r2 + x) for x in range(4)]
        groups.append(g + (rds[i + ahead] if i + ahead < len(steps) else []))
    return flat(rds[:ahead]), groups

MAP1 = [f"""s_and_b32 s{sT}, s{sA}, 3
s_lshl_b32 s{sT}, s{sT}, 2
s_and_b32 s{sD}, s{sB}, 3
s_add_u32 s{sT}, s{sT}, s{sD}
s_lshr_b32 s{sP}, s{sA}, 2
s_lshl_b32 s{sH}, s{sP}, 3
s_lshr_b32 s{sD}, s{sB}, 2
s_add_u32 s{sH}, s{sH}, s{sD}
s_mul_i32 s{sP}, s{sT}, {opt("rt", 2)}
s_add_u32 s{sD}, s{sD}, s{sP}
s_mul_i32 s{sP}, s{sD}, 37
s_lshr_b32 s{sP}, s{sP}, 8
s_mul_i32 s{sP}, s{sP}, 7
s_sub_u32 s{sD}, s{sD}, s{sP}
s_lshl_b32 s{sKX}, s{sD}, 7
""",
f"""s_lshl_b32 s{sT}, s{sA}, 1
s_lshr_b32 s{sD}, s{sB}, 4
s_add_u32 s{sT}, s{sT}, s{sD}
s_mov_b32 s{sH}, s{sCt}
s_and_b32 s{sD}, s{sH}, 7
s_cmp_eq_u32 s{sD}, 7
s_cselect_b32 s{sD}, 3, s{sD}
s_lshl_b32 s{sKX}, s{sD}, 7
""",
f"""s_mov_b32 s{sT}, s{sCt}
s_lshl_b32 s{sH}, s{sA}, 1
s_lshr_b32 s{sD}, s{sB}, 4
s_add_u32 s{sH}, s{sH}, s{sD}
s_and_b32 s{sD}, s{sH}, 7
s_mul_i32 s{sD}, s{sD}, 3
s_mul_i32 s{sP}, s{sD}, 37
s_lshr_b32 s{sP}, s{sP}, 8
s_mul_i32 s{sP}, s{sP}, 7
s_sub_u32 s{sD}, s{sD}, s{sP}
s_lshl_b32 s{sKX}, s{sD}, 7
"""][opt("map1", 0)]
if DIAG: I("s_memrealtime s[78:79]")
I(f"""s_cmp_ge_u32 s2, 256
s_cbranch_scc1 L_end
s_load_dwordx2 s[8:9], s[0:1], 0
s_load_dwordx2 s[12:13], s[0:1], 8
s_load_dwordx2 s[16:17], s[0:1], 16
s_load_dwordx2 s[20:21], s[0:1], 24
s_load_dwordx2 s[24:25], s[0:1], 40
s_load_dwordx2 s[28:29], s[0:1], 48
s_load_dwordx2 s[32:33], s[0:1], 56
s_load_dwordx2 s[36:37], s[0:1], 72
{"s_waitcnt lgkmcnt(0)" + chr(10) + "s_memrealtime s[88:89]" if opt("bare", 0) else ""}
s_getpc_b64 s[76:77]
v_and_b32 v1, 63, v0
v_lshrrev_b32 v2, 6, v0
s_and_b32 s{sA}, s2, 7
v_readfirstlane_b32 s{sW}, v2
s_lshr_b32 s{sB}, s2, 3
s_and_b32 s{sCt}, s{sB}, 15
v_lshlrev_b32 v3, 4, v1
v_lshl_add_u32 v3, v2, 6, v3
v_lshl_add_u32 v3, v2, 4, v3
v_add_u32 v3, s{sCt}, v3
v_lshlrev_b32 v3, 7, v3
s_and_b32 s76, s76, 0xffffff00
s_mov_b64 exec, 31
global_load_dword v236, v3, s[76:77]
s_mov_b64 exec, -1
{MAP1}
s_mov_b32 s10, 1835008
s_mov_b32 s11, 0x20000
v_lshrrev_b32 v2, 3, v1
v_mul_u32_u24 v244, 896, v2
v_lshrrev_b32 v2, 4, v1
v_and_b32 v8, 7, v1
v_xor_b32 v2, v2, v8
v_lshl_add_u32 v244, v2, 4, v244
v_xor_b32 v245, 64, v244
v_add_u32 v245, {7168-1024}, v245
v_add_u32 v246, {2*(7168-1024)}, v244
v_add_u32 v247, {2*(7168-1024)}, v245
s_lshl_b32 s{sQ}, s{sT}, 2
s_add_u32 s{sQ}, s{sQ}, s{sW}
s_mul_i32 s{sQ}, s{sQ}, {32*896}
s_lshr_b32 s{sXO}, s{sW}, 1
s_add_u32 s{sXO}, s{sXO}, s{sW}
s_mul_i32 s{sXO}, s{sXO}, {XW}
s_waitcnt lgkmcnt(0)""")
st0 = stampi("start")
if not opt("bare", 0): P.add(st0)
def xdma(g): return flat(dmag([244, 245, 246, 247], X, sQ, f"s{sKX+g}", sXO, 4096*g, f"x{g}"))
P.add(xdma(0))
I(f"""s_mov_b32 s14, {0 if opt('abl',0)&8 else 1204224}
s_mov_b32 s15, 0x20000
v_and_b32 v8, 3, v1""")
def wtouch(mask16, dst):
    m = mask16 | (mask16 << 16)
    return mk(f"s_mov_b32 exec_lo, {hex(m)}\ns_mov_b32 exec_hi, {hex(m)}\nbuffer_load_dword v{dst}, v255, {WQKV}, 0 offen\ns_mov_b64 exec, -1")
def kxs(g): return mk(f"s_add_u32 s{sKX+g}, s{sKX+g-1}, 128\ns_cmp_ge_u32 s{sKX+g}, 896\ns_cselect_b32 s{sD}, 896, 0\ns_sub_u32 s{sKX+g}, s{sKX+g}, s{sD}")
NXE = opt("nxe", 2)
if opt("wtfirst", 1) and opt("wt0", 0): P.add(wtouch(opt("wt0", 0), 237))
for g in range(1, NXE): P.add(kxs(g) + xdma(g))
if not opt("wtfirst", 1) and opt("wt0", 0): P.add(wtouch(opt("wt0", 0), 237))
if opt("wsoff", 0): I(f"s_add_u32 s36, s36, {opt('wsoff', 0)}\ns_addc_u32 s37, s37, 0")
I(f"""s_mov_b32 s38, {WS_SIZE}
s_mov_b32 s39, 0x20000
s_mov_b32 s18, 25088
s_mov_b32 s19, 0x20000
s_mov_b32 s22, {0 if opt('abl',0)&4 else 401408}
s_mov_b32 s23, 0x20000
s_xor_b32 s{sHQ}, s{sH}, 1
v_mov_b32 v11, 0
v_lshlrev_b32 v6, 7, v1""")
I(f"buffer_load_dword v5, v11, {WS}, 0 offen sc1")
I(f"""s_lshl_b32 s{sD}, s2, 2
s_add_u32 s{sD}, s{sD}, s{sW}
s_lshl_b32 s{sD}, s{sD}, 9
s_and_b32 s{sCt}, s{sH}, 14
s_mul_i32 s{sCt}, s{sCt}, 1568
s_mul_i32 s{sP}, s{sW}, 896
s_add_u32 s{sCt}, s{sCt}, s{sP}
s_mov_b64 exec, 15
buffer_load_dword v238, v6, {WO}, s{sD} offen
s_mov_b64 exec, 127
buffer_load_dword v239, v6, {WPHI}, s{sCt} offen
s_mov_b64 exec, -1""")
for g in range(NXE, 7): P.add(kxs(g))
I(f"""s_lshl_b32 s{sT2}, s{sA}, 1
s_lshr_b32 s{sD}, s{sB}, 4
s_add_u32 s{sT2}, s{sT2}, s{sD}
s_and_b32 s{sRact}, s{sB}, 15
s_min_u32 s{sR}, s{sRact}, 13
s_mov_b32 s26, {0 if opt('abl',0)&1 else 1605632}
s_mov_b32 s27, 0x20000
s_mov_b32 s30, {0 if opt('abl',0)&2 else 1605632}
s_mov_b32 s31, 0x20000
s_mov_b32 s34, 1835008
s_mov_b32 s35, 0x20000
s_mov_b32 s64, 0
s_mov_b32 s65, -1
s_mov_b32 s{sONES}, 0x3f803f80
s_mov_b32 s{sMASK}, 0xbfffbfff
s_mov_b32 s{sHIM}, 0xffff0000
s_mov_b32 s{sSPIN}, 0
s_mov_b32 s80, 0
s_cmp_ge_u32 s{sR}, 7
s_cselect_b32 s{sU}, 1, 0
s_mul_i32 s{sA}, s{sU}, 7
s_sub_u32 s{sC}, s{sR}, s{sA}""")
sT3 = 67
if opt("map3", 0):
    I(f"""s_and_b32 s{sA}, s{sT2}, 12
s_and_b32 s{sD}, s{sT2}, 1
s_lshl_b32 s{sD}, s{sD}, 1
s_add_u32 s{sA}, s{sA}, s{sD}
s_add_u32 s{sT3}, s{sA}, s{sU}
s_bfe_u32 s{sA}, s{sT2}, 0x10001
s_mul_i32 s{sA}, s{sA}, 7
s_add_u32 s{sR}, s{sA}, s{sC}""")
else: I(f"s_mov_b32 s{sT3}, s{sT2}")
for g in range(7): I(f"s_mul_i32 s{sKW+g}, s{sKX+g}, {172032//128}")
I(f"""s_mul_i32 s{sWB}, s{sH}, 56
s_mul_i32 s{sD}, s{sW}, 43008
s_add_u32 s{sWB}, s{sWB}, s{sD}
s_mul_i32 s{sWQ}, s{sHQ}, 56
s_add_u32 s{sWQ}, s{sWQ}, s{sD}
s_add_u32 s{sWB}, s{sWB}, 896
s_lshl_b32 s{sWM}, s{sW}, 10
s_lshl_b32 s{sA}, s{sH}, 4
s_add_u32 s{sA}, s{sA}, s{sT}
s_mul_i32 s{sA}, s{sA}, 5120
s_add_u32 s{sA}, s{sA}, {WS_PART}
s_add_u32 s{sPST}, s{sA}, s{sWM}
s_lshl_b32 s{sD}, s{sW}, 8
s_add_u32 s{sA}, s{sA}, s{sD}
s_add_u32 s{sPCK}, s{sA}, 4096
s_lshl_b32 s{sA}, s{sT}, 2
s_add_u32 s{sA}, s{sA}, s{sW}
s_lshl_b32 s{sA}, s{sA}, 15
s_lshl_b32 s{sB}, s{sHQ}, 11
s_add_u32 s{sA}, s{sA}, s{sB}
s_add_u32 s{sOST}, s{sA}, {WS_O}
s_lshl_b32 s{sA}, s{sT2}, 2
s_lshl_b32 s{sB}, s{sU}, 1
s_add_u32 s{sA}, s{sA}, s{sB}
s_and_b32 s{sB}, s{sW}, 1
s_add_u32 s{sTILE}, s{sA}, s{sB}
s_mul_i32 s{sA}, s{sA}, {32*896}
s_lshl_b32 s{sB}, s{sC}, 7
s_add_u32 s{sA}, s{sA}, s{sB}
s_mul_i32 s{sD}, s{sW}, {16*896}
s_add_u32 s{sXRB}, s{sA}, s{sD}
s_mul_i32 s{sA}, s{sTILE}, {32*896}
s_add_u32 s{sA}, s{sA}, s{sB}
s_lshr_b32 s{sB}, s{sW}, 1
s_lshl_b32 s{sB}, s{sB}, 6
s_add_u32 s{sOUT}, s{sA}, s{sB}
s_mul_i32 s{sP}, s{sHQ}, {16*5120}
s_add_u32 s{sP}, s{sP}, {WS_PART}""")
WPK, WPQ, WPT = 192, 200, 208
vWPA, vWPB, vKVX, vIMW, vKA, vKB, vFPD, vFPC, vWO0, vWO1, vXRD0, vXRD1, vXRR, vWOR = range(128, 142)
I(f"""v_lshrrev_b32 v3, 5, v1
v_lshlrev_b32 v2, 4, v1
v_lshlrev_b32 v4, 2, v1
v_bfe_u32 v11, v1, 3, 2
v_lshl_add_u32 v11, v11, 2, v8
v_bfe_u32 v12, v1, 2, 1
v_mul_u32_u24 v12, 14, v12
v_min_u32 v13, 13, v11
v_add_u32 v13, v13, v12
v_lshlrev_b32 v13, 1, v13
v_mul_u32_u24 v14, 224, v3
v_add_u32 v{vWPA}, v13, v14
v_lshl_add_u32 v{vWPB}, v3, 20, v{vWPA}
v_add_u32 v12, v12, v11
v_cmp_gt_u32 vcc, 14, v11
v_lshrrev_b32 v7, 2, v1
v_mul_u32_u24 v7, 2688, v7
v_cndmask_b32 v12, 28, v12, vcc
v_and_b32 v13, 15, v12
v_lshlrev_b32 v13, 4, v13
v_lshrrev_b32 v12, 4, v12
v_lshl_add_u32 v13, v12, 3, v13
v_lshl_add_u32 v13, v3, 8, v13
v_add_u32 v{vKVX}, {L_KVX}, v13
v_lshlrev_b32 v11, 4, v8
v_min_u32 v11, 40, v11
v_add_u32 v7, v7, v11
v_and_b32 v9, 31, v1
v_lshlrev_b32 v240, 7, v9
v_bfe_u32 v11, v1, 1, 3
v_xor_b32 v11, v11, v3
v_lshl_add_u32 v240, v11, 4, v240
v_add_u32 v240, s{sXO}, v240
v_xor_b32 v241, 32, v240
v_xor_b32 v242, 64, v240
v_xor_b32 v243, 96, v240
v_mov_b32 v250, 0
v_mov_b32 v251, 0
s_lshl_b32 s{sA}, s{sW}, 5
v_add_u32 v10, s{sA}, v9
v_mul_u32_u24 v10, 208, v10
v_mul_u32_u24 v11, 96, v3
v_add_u32 v{vIMW}, v10, v11
v_lshrrev_b32 v10, 4, v1
v_bfe_u32 v15, v1, 2, 2
v_lshl_add_u32 v10, v10, 3, v15
v_mul_u32_u24 v10, 208, v10
v_and_b32 v11, 1, v1
v_mul_u32_u24 v11, 96, v11
v_add_u32 v10, v10, v11
v_bfe_u32 v11, v1, 1, 1
v_lshl_add_u32 v10, v11, 3, v10
v_add_u32 v{vKB}, {L_IMG}, v10
s_lshl_b32 s{sA}, s{sW}, 4
v_add_u32 v{vKA}, s{sA}, v{vKB}
v_add_u32 v{vFPD}, s{sWM}, v2
s_lshl_b32 s{sD}, s{sW}, 8
s_add_u32 s{sD}, s{sD}, 4096
v_add_u32 v{vFPC}, s{sD}, v4
v_lshrrev_b32 v12, 3, v1
v_mul_u32_u24 v14, 896, v12
v_and_b32 v13, 7, v1
v_xor_b32 v12, v12, v13
v_lshl_add_u32 v{vXRD0}, v12, 4, v14
v_add_u32 v{vXRD1}, {7168-1024}, v{vXRD0}
v_bfe_u32 v12, v1, 4, 1
v_lshlrev_b32 v11, 2, v12
v_xor_b32 v11, v11, v13
v_lshl_add_u32 v{vWO0}, v11, 4, v14
v_add_u32 v{vWO1}, {7168-1024}, v{vWO0}
s_and_b32 s{sA}, s{sW}, 1
s_lshl_b32 s{sA}, s{sA}, 12
s_add_u32 s{sA}, s{sA}, {L_XCH}
v_lshlrev_b32 v10, 7, v9
v_lshl_add_u32 v10, v3, 3, v10
v_add_u32 v10, s{sA}, v10
s_lshr_b32 s{sA}, s{sW}, 1
s_lshl_b32 s{sB}, s{sA}, 2
v_xor_b32 v13, s{sB}, v13
v_lshl_add_u32 v{vXRR}, v13, 4, v10
v_mad_u32_u24 v10, v3, 14, v15
v_lshlrev_b32 v10, 7, v10
v_bfe_u32 v13, v1, 3, 1
v_xor_b32 v13, v13, v3
v_xor_b32 v13, s{sA}, v13
v_lshl_add_u32 v10, v13, 6, v10
v_lshl_add_u32 v10, v12, 5, v10
v_lshl_add_u32 v10, v8, 3, v10
s_mul_i32 s{sA}, s{sA}, {8*28*128}
s_add_u32 s{sA}, s{sA}, {L_WO}
v_add_u32 v{vWOR}, s{sA}, v10
v_lshl_add_u32 v11, v3, 3, v15
v_lshlrev_b32 v11, 6, v11
v_lshl_add_u32 v12, v12, 2, v8
v_cmp_lt_u32 vcc, 5, v12
v_xor_b32 v13, 1, v12
s_mul_i32 s{sA}, s{sH}, 1568
s_mul_i32 s{sB}, s{sHQ}, 1568
v_cndmask_b32 v12, v12, v13, vcc
v_lshl_add_u32 v11, v12, 3, v11
v_add_u32 v13, {L_WK}, v11""")
I(f"""v_bfe_u32 v10, v1, 2, 1
v_bfe_u32 v14, v1, 4, 1
v_lshl_add_u32 v10, v14, 1, v10
v_cmp_eq_u32 vcc, v10, v3
v_and_b32 v10, 1, v1
v_lshlrev_b32 v10, 4, v10
v_mov_b32 v14, 0x3f80
v_lshlrev_b32 v10, v10, v14
v_cndmask_b32 v10, 0, v10, vcc
v_bfe_u32 v14, v1, 3, 1
v_bfe_u32 v15, v1, 1, 1
v_lshl_add_u32 v14, v14, 1, v15""")
for q in range(4): I(f"v_cmp_eq_u32 vcc, {q}, v14\nv_cndmask_b32 v15, 0, v10, vcc\nv_accvgpr_write_b32 a{220+q}, v15")
stamp("setup done", "p")
def wphi(dst, tmp, so):
    q = []
    for t in range(2):
        for j in range(8):
            d = 16 * t + 8 * (j >> 2) + (j & 3)
            av = vWPB if (t == 1 and j >= 4) else vWPA
            r = (dst if j % 2 == 0 else tmp) + 4 * t + j // 2
            op = "buffer_load_short_d16" if j % 2 == 0 else "buffer_load_short_d16_hi"
            q += mk(f"{op} v{r}, v{av}, {WPHI}, s{so} offen offset:{d*56}")
    return q
def wkdma(g): return flat(dmag([7], WQKV, sWB, f"s{sKW+g}", sWM, L_WK + 4096*g, f"wk{g}"))
def wvdma(g): return flat(dmag([9], WQKV, sWB, f"s{sKW+g}", sWM, L_WV + 4096*g, f"wv{g}"))
def wqdma(g): return flat(dmag([7], WQKV, sWQ, f"s{sKW+g}", sWM, L_WQ + 4096*g, f"wq{g}"))
I("v_add_u32 v9, 896, v7")
if opt("fake", 0):
    I(f"""v_mov_b32 v7, v2
v_add_u32 v9, 24576, v2
s_mul_i32 s{sWB}, s{sH}, 73728
s_add_u32 s{sWB}, s{sWB}, s{sWM}
s_mul_i32 s{sWQ}, s{sHQ}, 73728
s_add_u32 s{sWQ}, s{sWQ}, s{sWM}
s_add_u32 s{sWQ}, s{sWQ}, 45056""")
    for g in range(7): I(f"s_lshl_b32 s{sKW+g}, s{sKX+g}, 5")
XF = 16
NX0 = opt("nx0", 4)
if opt("wt1", 0): P.add(wtouch(opt("wt1", 0), 249))
for g in range(NXE, NX0): P.add(xdma(g))
pend = [xdma(g) for g in range(NX0, 7)]
wkl = [wkdma(g) for g in range(7)]
if opt("wt2", 0): pend[-1] = pend[-1] + wtouch(opt("wt2", 0), 248)
pend.append(wkl.pop(0) + wphi(WPK, WPT, sA))
pend.append(wkl.pop(0) + wphi(WPQ, WPT+8, sB))
while len(pend) < 7: pend.append(wkl.pop(0))
def xrd(g): return flat([mk(f"ds_read_b128 {v(XF+16*g+4*e,4)}, v{240+e} offset:{4096*g}") for e in range(4)])
P.wait("x0"); P.add(xrd(0))
for g in range(7):
    if pend: P.add(pend.pop(0))
    if g + 1 < 7: P.wait(f"x{g+1}"); P.add(xrd(g + 1))
    for i in range(16):
        r = XF + 16*g + i
        I(f"v_dot2c_f32_bf16 v250, s{sONES}, v{r}\nv_dot2c_f32_bf16 v251, v{r}, v{r}")
    if g == 0: stamp("x0 done", "p")
for x_ in pend: P.add(x_)
if opt("tp", 0) == 2:
    I(f"""s_mul_i32 s{sCt}, s2, {52*128}
s_mul_i32 s{sD}, s{sW}, {13*128}
s_add_u32 s{sCt}, s{sCt}, s{sD}
s_mov_b64 exec, 0x1fff
buffer_load_dword v254, v6, {W2}, s{sCt} offen
buffer_load_dword v255, v6, {W1}, s{sCt} offen
s_mov_b64 exec, -1""")
stamp("x stats done", "mp")
I(f"""v_permlane32_swap_b32 v250, v251
v_or_b32 v5, 1, v5
s_mov_b32 s{sA}, 0x9E3779B5
v_add_f32 v250, v250, v251
v_mul_f32 v250, {fhex(-1/448)}, v250
v_mov_b32 v251, v250
v_mul_lo_u32 v5, v5, s{sA}
s_mov_b32 s{sA}, 0x3f80
v_permlane32_swap_b32 v250, v251
s_mov_b32 s{sB}, 0x3f800000""")
fin = mk(f"""v_fma_f32 v251, -v250, v250, -v251
v_max_f32 v251, 0, v251
v_add_f32 v251, 0x3727c5ac, v251
v_rsq_f32 v251, v251
s_lshl_b32 s{sQ}, s{sC}, 7
s_mul_i32 s{sD}, s{sW}, {16*896}
v_mul_f32 v252, 0x3fb8aa3b, v251
v_mul_f32 v253, 0xbfb8aa3b, v251
s_add_u32 s{sQ}, s{sQ}, s{sD}
s_lshl_b32 s{sXO}, s{sW}, 11""")
if opt("noid", 1): fin = [mk(f"s_cmp_ge_u32 s{sRact}, 14\ns_cselect_b32 s22, 0, s22")] + fin
ACK = 144; ACV = 160; PK = 176; IMG = 208; TMP = 232
def norm(t):
    q = Prog(); tb = TMP + 8 * (t & 1)
    for i in range(4):
        r = XF + 4 * t + i
        q.I(f"v_dot2_f32_bf16 v{tb+2*i}, v{r}, s{sA}, v250\nv_dot2_f32_bf16 v{tb+2*i+1}, v{r}, s{sB}, v250")
    return q.items
def normc(t):
    tb = TMP + 8 * (t & 1)
    return flat([mk(f"v_cvt_pk_bf16_f32 v{XF+4*t+i}, v{tb+2*i}, v{tb+2*i+1}") for i in range(4)])
def l2t(srd, k, dst):
    return mk(f"""s_lshr_b32 s{sCt}, s2, 3
s_lshl_b32 s{sCt}, s{sCt}, 2
s_add_u32 s{sCt}, s{sCt}, s{sW}
s_mul_i32 s{sCt}, s{sCt}, {98*128}
s_mov_b32 exec_hi, 0x1ffff
s_add_u32 s{sCt}, s{sCt}, {k*49*128}
buffer_load_dword v{dst}, v6, {srd}, s{sCt} offen
s_mov_b32 exec_hi, -1""")
L2A, L2B = opt("l2a", -1), opt("l2b", -1)
touch = mk(f"""s_mul_i32 s{sCt}, s2, {52*128}
s_mul_i32 s{sD}, s{sW}, {13*128}
s_add_u32 s{sCt}, s{sCt}, s{sD}
s_mov_b64 exec, 0x1fff
buffer_load_dword v255, v6, {W1}, s{sCt} offen
buffer_load_dword v254, v6, {W2}, s{sCt} offen
s_mov_b64 exec, -1""")
TP = opt('tp', 0)
ns = norm(0)
for t in range(1, 28): ns += norm(t) + normc(t - 1)
ns += normc(27)
NBAR = opt("nbar", 100)
wvl = [wvdma(k) for k in range(7)]
if opt("loop2", 0):
    I("s_mov_b32 s80, 0\nL_lp2:\ns_mov_b32 s101, s100\ns_memtime s[78:79]\ns_waitcnt lgkmcnt(0)\ns_mov_b32 s99, s78")
    P.add([Ins(x.text) for x in ns])
    I("s_memtime s[78:79]\ns_waitcnt lgkmcnt(0)\ns_sub_u32 s100, s78, s99\ns_add_u32 s100, s100, s88\ns_add_u32 s80, s80, 1\ns_cmp_lt_u32 s80, 2\ns_cbranch_scc1 L_lp2")
    nstamp[0] = 14
P.add(sprinkle(ns[:NBAR], wkl, 0, opt("wkstep", 30)))
if opt("touch", 1) and TP == 1: P.add(touch)
I("s_barrier")
NWV0 = opt("nwv0", 3)
P.add(sprinkle(ns[NBAR:], [wvl.pop(0) for _ in range(NWV0)], opt("wv0", 60), opt("wvstep", 60)))
P.wait(*[f"wk{k}" for k in range(7)]); I("s_barrier")
stamp("wk landed", "p")
AH = 6
sW1B, sW1M, sW2E, sW2L = 40, 41, 42, 43
set2 = mk(f"""v_lshrrev_b32 v10, 4, v1
v_mul_u32_u24 v12, 3584, v10
v_lshlrev_b32 v10, 2, v10
v_and_b32 v13, 15, v1
v_xor_b32 v10, v10, v13
v_lshl_add_u32 v12, v10, 4, v12
v_add_u32 v13, {4*3584-1024}, v12
v_add_u32 v14, {2*(4*3584-1024)}, v12
v_add_u32 v15, {3*(4*3584-1024)}, v12
s_lshl_b32 s{sW1B}, s{sR}, 8
s_mul_i32 s{sD}, s{sW}, {16*3584}
s_add_u32 s{sW1B}, s{sW1B}, s{sD}
s_lshl_b32 s{sW1M}, s{sW}, 12
s_lshr_b32 s{sA}, s{sW}, 1
s_lshl_b32 s{sA}, s{sA}, 2
s_andn2_b32 s{sB}, 1, s{sW}
s_add_u32 s{sA}, s{sA}, s{sB}
s_lshl_b32 s{sB}, s{sU}, 1
s_add_u32 s44, s{sA}, s{sB}
s_xor_b32 s45, s44, 2
s_lshl_b32 s{sD}, s{sC}, 7
s_mul_i32 s{sW2E}, s44, {32*896}
s_add_u32 s{sW2E}, s{sW2E}, s{sD}
s_mul_i32 s{sW2L}, s45, {32*896}
s_add_u32 s{sW2L}, s{sW2L}, s{sD}
""")
vW2 = [vWO0, vWO1, 128, 129]
sSCR, sBIG = 46, 47
NA = opt("na", 0)
NUR = opt("nur", 2); NT1 = min(NA, opt("nt1", 99))
_u = list(range(14))
def take(n): return [_u.pop(0) for _ in range(min(n, len(_u)))]
UAW = take(NA); UR = take(NUR); UD = take(2); UE = take(3); UL = take(opt("nrl", 3)); UP = take(99)
RAWS = UAW + UR + UL
def UA(j): return 16*j
def w2slot(j):
    if j in UE: return (sSCR, 4096*UE.index(j), 254)
    if j in UAW + UR + UD: return (sSCR, 4096*(j & 1), 254)
    return (sBIG, 4096*(UL + UP).index(j), 252)
def w2dma(j):
    mb, mo, _ = w2slot(j)
    return dmag(vW2, W2, sW2E if j < 7 else sW2L, (j%7)*256*896, mb, mo, f"w2_{j}", sDM)
def w2raw(j):
    ch = [mk(f"buffer_load_dwordx4 {a_(UA(j)+4*q,4)}, v{vW2[q]}, {W2}, s81 offen offset:{1024*q}") for q in range(4)]
    ch[0] = mk(f"s_add_u32 s81, s{sW2E if j < 7 else sW2L}, {(j%7)*256*896}") + ch[0]
    return ch
def w2rd(j):
    _, mo, av = w2slot(j)
    if j in RAWS: out = [mk(f"ds_write_b128 v{131 if j in UL else 134}, {a_(UA(j)+4*q,4)} offset:{mo+1024*q}") for q in range(4)]
    else: out = [[WaitTag([f"w2_{j}"])]]
    for e in range(2):
        for mu in range(2):
            for u in range(2): out.append(mk(f"ds_read_b64_tr_b16 {a_(UA(j)+8*e+4*mu+2*u,2)}, v{av+mu} offset:{mo+2048*e+1024*u}"))
    return out
raw = flat([w2raw(j) for j in UR])
rawA = flat([w2raw(j) for j in UAW])
if opt("noid", 1): set2 = [mk(f"s_cmp_ge_u32 s{sRact}, 14\ns_cselect_b32 s26, 0, s26")] + set2
set2 += mk(f"v_add_u32 v128, {2*(7168-1024)}, v{vWO0}\nv_add_u32 v129, {3*(7168-1024)}, v{vWO0}")
set2b = [x for x in set2 if isinstance(x, Ins) and x.cls == 'valu' and x.defs[0][1] < 128]
set2a = [x for x in set2 if x not in set2b]
pro, gk = gemm_lds([(13, 1024*t, 1024*t + 256, (XF + 4*t, ACK, t == 0, False)) for t in range(28)], AH)
P.add(pro)
S = Sched(gk)
S.spread(wvl, 0, opt("wve", 28))
EARLY = opt("early", 0)
if EARLY:
    P.add(flat([x if isinstance(x, list) else [x] for x in fin + set2a])); fin = []
    wo_l = flat([dmag([vWO0, vWO1], WO, sQ, i*64*896, sXO, L_WO + 8192*i, "wo", sDM) for i in range(7)] + [dmag([vXRD0, vXRD1], X, sXRB, 0, sXO, L_XCH, "wo", sDM)])
    if EARLY == 2:
        S.spread([wo_l[2*i] + wo_l[2*i+1] for i in range(8)], 0, 28)
    else: S.spread([rawA.pop(0) for _ in range(min(len(rawA), opt("ne1", 8)))], 0, 28)
else: fin = fin + set2a
for k, ps in enumerate((L2A, L2B)):
    if 0 <= ps < 28: S.at(ps, l2t(W1, k, 248 + k))
S.spread(fin + flat([mk(f"v_or_b32 v{WPK+q}, v{WPK+q}, v{WPT+q}\nv_or_b32 v{WPQ+q}, v{WPQ+q}, v{WPT+8+q}") for q in range(8)]), 2, 26)
P.add(S.emit())
def phi_pre(acc, wp):
    q = Prog()
    for i in range(8): q.I(f"v_cvt_pk_bf16_f32 v{acc+i}, v{acc+2*i}, v{acc+2*i+1}")
    q.I(f"{MF} {v(PK,16)}, {v(wp,4)}, {v(acc,4)}, 0\n{MF} {v(PK,16)}, {v(wp+4,4)}, {v(acc+4,4)}, {v(PK,16)}")
    return q.items
stamp("k gemm done", "mp")
wql = [wqdma(k) for k in range(7)]
P.add(wql.pop(0))
P.add(phi_pre(ACK, WPK))
imw = flat([mk(f"ds_write_b128 v{vIMW}, {v(IMG+4*i,4)} offset:{L_IMG+16*i}") for i in range(3)]) + mk(f"ds_write_b64 v{vIMW}, {v(IMG+12,2)} offset:{L_IMG+48}")
smk = sprinkle(softmax(PK, TMP, IMG, True), [wql.pop(0) for _ in range(opt("nwq0", 3))], 10, opt("wqs", 40))
if EARLY: smk = sprinkle(smk, [rawA.pop(0) for _ in range(min(len(rawA), opt("ne2", 8)))], 5, 16)
WEAVE = opt("weave", 0)
pro, gv = gemm_lds([(11, L_WV + 1024*t, L_WV + 1024*t + 256, (XF + 4*t, ACV, t == 0, False)) for t in range(28)], AH)
S = Sched(gv)
if not WEAVE:
    P.add(smk)
    P.wait(*[f"wv{k}" for k in range(7)]); I("s_barrier")
    stamp("softmax k done", "p")
    P.add(pro)
    S.spread(imw, 2, 10)
else:
    smf = softmax(PK, TMP, IMG, 2)
    n0 = next(i for i, x in enumerate(smf) if x.op == "v_exp_f32")
    P.wait(*[f"wv{k}" for k in range(4)]); I("s_barrier")
    P.add(pro)
    P.add(smf[:n0])
    stamp("softmax k done", "p")
    S.spread(smf[n0:] + imw, 0, 28)
    S.at(15 - AH, [WaitTag(["wv4", "wv5", "wv6"])] + mk("s_barrier"), 1.0)
    wql = [wqdma(k) for k in range(1, 7)]
wo_l = flat([dmag([vWO0, vWO1], WO, sQ, i*64*896, sXO, L_WO + 8192*i, "wo", sDM) for i in range(7)] + [dmag([vXRD0, vXRD1], X, sXRB, 0, sXO, L_XCH, "wo", sDM)])
if EARLY == 2: wo_l = []
S.spread(wql, 0, opt('wqe', 14))
if EARLY: S.spread([rawA.pop(0) for _ in range(min(len(rawA), opt("ne3", 8)))], 0, 22)
if L2A >= 0: touch = [x for x in touch if W1 not in x.text]
tlb = []
if opt("tlb", 0) & 1: tlb += mk(f"s_mov_b64 exec, 1\nbuffer_load_dword v248, v6, {OUT}, s{sOUT} offen\ns_mov_b64 exec, -1")
if opt("tlb", 0) & 2: tlb += mk(f"v_lshlrev_b32 v249, 20, v1\ns_mov_b64 exec, 0xffff\nbuffer_load_dword v249, v249, {WS}, 0 offen offset:4092\ns_mov_b64 exec, -1")
if tlb: S.at(opt("tlbp", 13), tlb)
if opt("touch", 1) and TP == 0: S.at(15, touch)
for k, ps in enumerate((L2A, L2B)):
    if 200 <= ps < 228: S.at(ps - 200, l2t(W1, k, 248 + k))
S.spread([wo_l.pop(0) for _ in range(2*opt("nwo0", 0))], 17, 28)
P.add(S.emit())
for k in range(0, 16, 2): I(f"v_pk_mul_f32 {v(ACV+k,2)}, {v(ACV+k,2)}, v[250:251] op_sel:[0,1] op_sel_hi:[1,1]")
I(f"v_cndmask_b32 v{ACV+12}, v{ACV+12}, 1.0, {sHI}")
for i in range(8): I(f"v_cvt_pk_bf16_f32 v{IMG+16+i}, v{ACV+2*i}, v{ACV+2*i+1}")
for i in range(4, 6): I(f"ds_write_b128 v{vIMW}, {v(IMG+4*i,4)} offset:{L_IMG+16*i}")
P.wait("wq0", "wq1", "wq2", "wq3")
I("s_waitcnt lgkmcnt(0)\ns_barrier")
stamp("img written", "p")
KA = 144; KBv = 208; KD = 176
for k in range(4):
    for u in range(2):
        I(f"ds_read_b64_tr_b16 {v(KA+4*k+2*u,2)}, v{vKA} offset:{(32*k+4*u)*208}")
    for nu in range(2):
        for u in range(2):
            I(f"ds_read_b64_tr_b16 {v(KBv+8*k+4*nu+2*u,2)}, v{vKB} offset:{(32*k+4*u)*208+64+16*nu}")
proq, gq = gemm_lds([(11, L_WQ + 1024*t, L_WQ + 1024*t + 256, (XF + 4*t, ACV, t == 0, False)) for t in range(28)], AH)
for k in range(4):
    for nu in range(2):
        I(f"v_mfma_f32_16x16x32_bf16 {v(KD+4*nu,4)}, {v(KA+4*k,4)}, {v(KBv+8*k+4*nu,4)}, {'0' if k == 0 else v(KD+4*nu,4)}")
P.add(proq[:8])
for i in range(4): I(f"v_cvt_pk_bf16_f32 v{KD+8+i}, v{KD+2*i}, v{KD+2*i+1}")
I(f"buffer_store_dwordx4 {v(KD+8,4)}, v2, {WS}, s{sPST} offen sc1")
I(f"v_xor_b32 v10, v{KD+8}, v5")
I(f"buffer_store_dword v10, v4, {WS}, s{sPCK} offen sc1")
if GATE & 1: P.add(flag_store(16))
P.add(proq[8:])
stamp("partial stored", "mp")
S = Sched(gq)
bgA = wo_l + rawA
nq = min(len(bgA), opt("nq", 16))
S.spread(bgA[:nq], 0, 28)
S.spread(set2b, 2, 18)
G0 = gate("g0", vPO, vPF)
if GATE & 1: S.at(opt("g0", 14), G0.load(0))
S.at(15 - AH, [WaitTag(["wq4", "wq5", "wq6"])] + mk("s_barrier"), 1.0)
P.add(S.emit())
stamp("q gemm done", "p")
G = 16; GC = 80; SA = 96
FP = Fetch("fp", [([f"s_add_u32 s{sCt}, s{sP}, {5120*T}\nbuffer_load_dwordx4 {v(G+4*T,4)}, v{vFPD}, {WS}, s{sCt} offen sc1\nbuffer_load_dword v{GC+T}, v{vFPC}, {WS}, s{sCt} offen sc1"],
                   [G+4*T, GC+T]) for T in range(16)])
P.add(phi_pre(ACV, WPQ))
if GATE & 1: P.add(G0.check(0, 0))
I("s_barrier")
PQ = 208
smq = softmax(PK, TMP, PQ, True); f0 = opt("fp0", 80)
P.add(sprinkle(smq[:f0], bgA[nq:], 0, opt("as", 8)))
P.add(sprinkle(smq[f0:], [FP.load(T) for T in range(16)], 0, opt("fpstep", 3)))
stamp("softmax q done", "p")
w1_l = flat([dmag([12, 13, 14, 15], W1, sW1B, i*64*3584, sW1M, 16384*i, "w1", sDM) for i in range(7)])
def fpb(b):
    t = []
    for k, T in enumerate(range(4*b, 4*b+4)):
        t.append(f"v_bitop3_b32 v{10 if k == 0 else 9}, v{G+4*T}, v{GC+T}, v5 {X3}" + ("" if k == 0 else "\nv_or_b32 v10, v10, v9"))
    return "\n".join(t) + "\nv_cmp_ne_u32 vcc, 0, v10"
RI = TAIL.I if (opt("ool", 7) & 1) else I
if not (opt("ool", 7) & 1): I("s_branch L_fp_go")
RI("L_fp_retry:" + ("\ns_add_u32 s80, s80, 1" if DIAG else ""), unc=True)
for b in range(4):
    RI(fpb(b) + f"\ns_cbranch_vccz L_fp_k{b}\n" + "\n".join(FP.pieces[T][0][0] for T in range(4*b, 4*b+4)) + f"\nL_fp_k{b}:", unc=True)
RI(GUARD, unc=True)
if (opt("ool", 7) & 1): RI("s_branch L_fp_go", unc=True)
I("L_fp_go:")
I(fpb(0) + "\ns_cbranch_vccnz L_fp_retry")
S = Sched([mk(f"{MF} {v(SA,16)}, a[220:223], {v(G+4*T,4)}, {'0' if T == 0 else v(SA,16)}") for T in range(16)])
for b in range(1, 4): S.spread(mk(fpb(b) + "\ns_cbranch_vccnz L_fp_retry"), 4*b - 3, 4*b)
S.spread([w1_l.pop(0) for _ in range(opt("nw1a", 2))], 12, 16)
P.add(S.emit())
I(f"v_add_u32 v9, {L_KVX}, v{vFPD}")
for i in range(4): I(f"v_cvt_pk_bf16_f32 v{SA+8+i}, v{SA+2*i}, v{SA+2*i+1}")
I(f"ds_write_b128 v9, {v(SA+8,4)}\ns_waitcnt lgkmcnt(0)\ns_barrier")
stamp("kv summed", "mp")
KVA = 32; OD = 48
for q in range(7): I(f"ds_read_b64 {v(KVA+2*q,2)}, v{vKVX} offset:{512*q}")
P.add(w1_l.pop(0))
for s in range(3):
    I(f"{MF} {v(OD,16)}, {v(KVA+4*s,4)}, {v(PQ+4*s,4)}, {'0' if s == 0 else v(OD,16)}")
    if s == 1: P.add(w1_l.pop(0))
I(f"v_mfma_f32_32x32x8_bf16 {v(OD,16)}, {v(KVA+12,2)}, {v(PQ+12,2)}, {v(OD,16)}")
I(f"""s_lshl_b32 s{sP}, s{sTILE}, 15
s_lshr_b32 s{sB}, s{sW}, 1
s_lshl_b32 s{sB}, s{sB}, 14
s_add_u32 s{sP}, s{sP}, s{sB}
s_add_u32 s{sP}, s{sP}, {WS_O}
s_add_u32 s{sA}, s{sW1M}, {L_XCH}
v_add_u32 v132, s{sA}, v2
v_xor_b32 v133, 8192, v132
v_xor_b32 v9, 64, v{vWOR}
v_and_b32 v7, 31, v1
v_mul_u32_u24 v7, 896, v7
v_add_f32 v{OD+14}, 0x358637bd, v{OD+14}
v_rcp_f32 v{OD+14}, v{OD+14}
v_lshl_add_u32 v7, v3, 4, v7""")
for k in range(0, 14, 2): I(f"v_pk_mul_f32 {v(OD+k,2)}, {v(OD+k,2)}, {v(OD+14,2)} op_sel_hi:[1,0]")
for k in range(4): I(f"v_cvt_pk_bf16_f32 v{64+k}, v{OD+2*k}, v{OD+2*k+1}")
I(f"buffer_store_dwordx4 v[64:67], v2, {WS}, s{sOST} offen sc1")
for k in range(4, 7): I(f"v_cvt_pk_bf16_f32 v{64+k}, v{OD+2*k}, v{OD+2*k+1}")
I(f"""v_bitop3_b32 v71, v64, v5, s{sMASK} bitop3:0x28
v_and_b32 v6, s{sMASK}, v5
buffer_store_dwordx4 v[68:71], v2, {WS}, s{sOST} offen offset:1024 sc1""")
if GATE & 2: P.add(flag_store(7))
stamp("o stored", "mo")
P.wait("wo")
I(f"s_cmp_ge_u32 s{sRact}, 14\ns_cbranch_scc1 L_idle\ns_barrier")
wor = []
for s in range(16):
    hh, e = s >> 1, s & 1
    for k, av in ((0, vWOR), (1, 9)):
        for u in range(2):
            wor += mk(f"ds_read_b64_tr_b16 {a_(128+8*s+4*k+2*u,2)}, v{av} offset:{(28*hh+8*e+4*u)*128}")
XR = 224
xrr = []
for i in range(4): xrr += mk((f"v_xor_b32 v10, {16*i}, v{vXRR}\n" if i else "") + f"ds_read_b64 {v(XR+2*i,2)}, v{10 if i else vXRR}")
P.add(xrr)
G1 = gate("g1", vPO, vPF)
nb_ = min(opt("nw1b", 12), len(w1_l) - 8)
wor = sprinkle(wor, [w1_l.pop(0) for _ in range(nb_)], 0, opt("w1bs", 5))
if GATE & 2: wor = sprinkle(wor, [G1.load(0)], opt("g1", 40), 1)
P.add(wor)
OB = 16
FO = Fetch("fo", [([f"s_add_u32 s{sCt}, s{sP}, {2048*hh}\nbuffer_load_dwordx4 {v(OB+8*hh,4)}, v2, {WS}, s{sCt} offen sc1\nbuffer_load_dwordx4 {v(OB+8*hh+4,4)}, v2, {WS}, s{sCt} offen offset:1024 sc1"],
                   [OB+8*hh, OB+8*hh+7]) for hh in range(8)], masked=True, nre=opt('reo', 2))
stamp("pre o fetch", "o")
AO, AT = 80, 96
set3 = mk(f"""s_mul_i32 s{sSCR}, s{sW}, 12288
s_mul_i32 s{sBIG}, s{sW}, 28672
v_add_u32 v131, s{sBIG}, v2
s_lshl_b32 s{sB}, s{sC}, 1
s_lshr_b32 s{sD}, s{sW}, 1
s_add_u32 s{sB}, s{sB}, s{sD}
s_mul_i32 s{sA}, s{sTILE}, 14
s_add_u32 s{sB}, s{sB}, s{sA}
s_mul_i32 s{sPST}, s{sB}, 2560
s_add_u32 s{sPST}, s{sPST}, {WS_H}
s_lshr_b32 s48, s{sW}, 1
s_nop 0
v_bfe_u32 v9, v1, 2, 2
v_lshl_add_u32 v240, v3, 2, v9
v_lshlrev_b32 v254, 7, v240
v_lshlrev_b32 v240, 8, v240
v_xor_b32 v9, s{sW}, v9
v_lshl_add_u32 v240, v9, 6, v240
v_bfe_u32 v9, v1, 4, 1
v_lshlrev_b32 v9, 5, v9
v_lshl_add_u32 v9, v8, 3, v9
v_add_u32 v240, v240, v9
v_add_u32 v254, v254, v9
v_bfe_u32 v9, v1, 3, 1
v_xor_b32 v9, s48, v9
v_lshl_add_u32 v254, v9, 6, v254
s_add_u32 s{sSCR}, s{sSCR}, {L_SCR}
v_add_u32 v252, s{sBIG}, v254
v_xor_b32 v253, 64, v252
v_add_u32 v254, s{sSCR}, v254
v_add_u32 v134, s{sSCR}, v2
v_xor_b32 v255, 64, v254
v_xor_b32 v241, 64, v240
v_xor_b32 v242, 128, v240
v_xor_b32 v243, 192, v240""") + flat([mk(f"v_add_u32 v{244+m}, 57344, v{240+m}") for m in range(4)])
pre2 = []
for i in range(8): pre2 += mk(f"v_lshlrev_b32 v{112+2*i}, 16, v{XR+i}\nv_and_b32 v{113+2*i}, s{sHIM}, v{XR+i}")
for s in range(1, 16, 2): pre2 += mk(f"v_accvgpr_write_b32 a{128+8*s+3}, 0\nv_accvgpr_write_b32 a{128+8*s+7}, 0")
if GATE & 2:
    P.add(pre2); P.add(G1.check(0, 0))
    stamp("gate1", "o")
    for hh in range(8): P.add(FO.load(hh))
else:
    P.add(pre2[16:]); P.add(set3)
    I("s_waitcnt lgkmcnt(0)\ns_barrier")
    P.add(sprinkle(flat(flat([w2rd(j) for j in UAW[:NT1]])), [w1_l.pop(0) for _ in range(min(len(w1_l), opt("nw1s", 4)))], 0, 8))
    stamp("shadow done", "o")
    P.add(sprinkle(pre2[:16], [FO.load(hh) for hh in range(8)], 0, 2))
I("s_waitcnt lgkmcnt(0)\ns_barrier")
stamp("fo issued", "o")
g2 = []
for s in range(16):
    for k, acc in ((1, AT), (0, AO)):
        c = ("0" if k else v(112,16)) if s == 0 else v(acc,16)
        g2.append(mk(f"{MF} {v(acc,16)}, {a_(128+8*s+4*k,4)}, {v(OB+4*s,4)}, {c}"))

P.add(FO.check(0, 7))
stamp("fo0", "o")
S = Sched(g2)
for hh in range(1, 8): S.spread(FO.checkc(hh, 7), 4*hh - 3, 4*hh)
S.spread(w1_l + [raw.pop(0) for _ in range(min(len(raw), opt("rawb", 4)))], 0, 32)
P.add(S.emit())
stamp("p2 gemm done", "o")
for i in range(4): I(f"ds_write_b128 v132, {v(AT+4*i,4)} offset:{1024*i}")
I("v_mov_b32 v112, 0\nv_mov_b32 v113, 0\ns_waitcnt lgkmcnt(0)\ns_barrier")
for i in range(4): I(f"ds_read_b128 {v(AT+4*i,4)}, v133 offset:{1024*i}")
HR = XR
for k in range(0, 8, 2): I(f"v_pk_add_f32 {v(AO+k,2)}, {v(AO+k,2)}, {v(AT+k,2)}")
for i in range(4): I(f"v_cvt_pk_bf16_f32 v{HR+i}, v{AO+2*i}, v{AO+2*i+1}")
I(f"buffer_store_dwordx4 {v(HR,4)}, v2, {WS}, s{sPST} offen sc1")
for k in range(8, 16, 2): I(f"v_pk_add_f32 {v(AO+k,2)}, {v(AO+k,2)}, {v(AT+k,2)}")
for i in range(4, 8): I(f"v_cvt_pk_bf16_f32 v{HR+i}, v{AO+2*i}, v{AO+2*i+1}")
I(f"buffer_store_dwordx4 {v(HR+4,4)}, v2, {WS}, s{sPST} offen offset:1024 sc1")
for i in range(8): I(f"v_dot2c_f32_bf16 v112, s{sONES}, v{HR+i}\nv_dot2c_f32_bf16 v113, v{HR+i}, v{HR+i}")
I(f"""v_bitop3_b32 v10, v{HR}, v{HR+4}, v5 {X3}
v_permlane32_swap_b32 v112, v113
v_add_f32 v112, v112, v113
buffer_store_dword v112, v4, {WS}, s{sPST} offen offset:2048 sc1
v_xor_b32 v113, v10, v112
buffer_store_dword v113, v4, {WS}, s{sPST} offen offset:2304 sc1""")
def selft(sreg, nl): return mk(f"s_mov_b64 exec, {(1 << nl) - 1}\nbuffer_load_dword v135, v134, {WS}, s{sreg} offen sc1\ns_mov_b64 exec, -1")
SELF = opt("self", 0)
if SELF & 1: P.add(selft(sPST, 20))
if GATE & 4: P.add(flag_store(14))
stamp("h stored", "moh")
HB = 16; ST = 192
ACC = [144, 160, 176, 192]; AUG = 232
set4 = mk(f"""s_lshl_b32 s{sB}, s{sT3}, 2
s_add_u32 s{sB}, s{sB}, s{sW}
s_mul_i32 s{sP}, s{sB}, {14*2560}
s_add_u32 s{sP}, s{sP}, {WS_H}
s_mul_i32 s{sA}, s{sB}, 56
s_lshl_b32 s{sD}, s{sR}, 2
s_add_u32 s{sA}, s{sA}, s{sD}
s_mul_i32 s{sQ}, s{sA}, 2304
s_add_u32 s{sQ}, s{sQ}, {WS_H1}
v_lshlrev_b32 v13, 3, v1
s_lshl_b32 s{sA}, s{sW}, 9
s_add_u32 s{sA}, s{sA}, {L_AUG}
v_add_u32 v13, s{sA}, v13
v_mov_b32 v222, 0""")
FH = Fetch("fh", [([f"s_add_u32 s{sCt}, s{sP}, {2560*p}\nbuffer_load_dwordx4 {v(HB+8*p,4)}, v2, {WS}, s{sCt} offen sc1\nbuffer_load_dwordx4 {v(HB+8*p+4,4)}, v2, {WS}, s{sCt} offen offset:1024 sc1\n"
                    f"buffer_load_dword v{ST+2*p}, v4, {WS}, s{sCt} offen offset:2048 sc1\nbuffer_load_dword v{ST+2*p+1}, v4, {WS}, s{sCt} offen offset:2304 sc1"],
                   [HB+8*p, HB+8*p+4, ST+2*p, ST+2*p+1]) for p in range(14)], nre=opt('reh', 2))
for i in range(4): I(f"v_mov_b32 v{AUG+i}, s{sONES}")
P.wait("w1"); I("s_barrier")
stamp("w1 landed", "h")
def w1a(t, k): return (240 + k + (4 if t >= 14 else 0), (t % 14) * 4096, (t % 14) * 4096 + 2048)
st3 = [w1a(t, 0) + ((AUG, ACC[2], t == 0, True),) for t in range(28)]
TWO = opt("two", 1); N1 = 2 if TWO else 3
for t in range(28):
    for k in range(N1): st3.append(w1a(t, k) + ((HB + 4*t, ACC[k], t == 0, False),))
for t in range(28):
    for k in range(N1, 4): st3.append(w1a(t, k) + ((HB + 4*t, ACC[k], t == 0, False),))
pro, g3 = gemm_lds(st3, AH)
P.add(pro)
S3 = Sched(g3)
S3.spread(set4, 0, 8)
S3.spread(raw + w2dma(UD[0]) + w2dma(UD[1]), 0, opt("c0e", 20)); raw = []
NH0 = opt("nh0", 4); H0 = opt("h0", 24)
G2 = gate("g2", vPO, vPF)
if GATE & 4:
    S3.at(opt("g2", 12), G2.load(0), 0.9)
    S3.at(27, G2.check(0, 0) + stampi("gate2", "h") + flat([FH.load(p) for p in range(NH0)]), 0.5)
else: S3.spread(flat([FH.loadc(p) for p in range(NH0)]), H0, 27)
cs = ACC[2]
csx = mk(f"""v_cvt_pk_bf16_f32 v{AUG}, v{cs}, v{cs}
v_lshlrev_b32 v{AUG+1}, 16, v{AUG}
v_sub_f32 v{AUG+1}, v{cs}, v{AUG+1}
v_cvt_pk_bf16_f32 v{AUG}, v{cs}, v{AUG+1}
v_and_b32 v{AUG+1}, 0xffff, v{AUG}
v_cndmask_b32 v{AUG}, v{AUG}, 0, {sHI}
v_cndmask_b32 v{AUG+1}, v{AUG+1}, 0, {sHI}
ds_write_b64 v13, {v(AUG,2)}""")
S3.at(27, stampi("colsum done", "h") + csx + FH.check(0, NH0 - 1) + stampi("fh0", "h"), 1.0)
B0 = 28
for p in range(14):
    b = B0 + 2*N1*p
    if p + NH0 < 14:
        for k_, c_ in enumerate(FH.loadc(p + NH0)): S3.at(b + ((0, 2, 1, 3) if TWO else (0, 2, 4, 4))[k_], c_, 0.2)
    S3.at(b, mk(f"v_add_f32 v222, v222, v{ST+2*p}"), 0.0)
    if p + 1 < 14: S3.spread(FH.checkc(p + 1, min(13, p + NH0 - 1)), b + 1, b + 2*N1)
    if p in (3, 7, 11): S3.at(b + 2*N1 - 1, stampi(f"fh{p+1}", "h"), 1.0)
S3.at(B0 + 14, mk("s_barrier") + flat([mk(f"v_xor_b32 v9, {512*k}, v13\nds_read_b64 {v(AUG+2*k,2)}, v9") for k in range(1, 4)]), 0.0)
mid = mk(f"""v_mul_f32 v220, {fhex(1/448)}, v222
v_mov_b32 v221, v220
s_nop 0
v_permlane32_swap_b32 v220, v221
v_fma_f32 v221, -v220, v220, v221
v_max_f32 v221, 0, v221
v_add_f32 v221, 0x3727c5ac, v221
v_rsq_f32 v251, v221
v_cvt_pk_bf16_f32 v222, -v220, -v220
v_lshlrev_b32 v9, 16, v222
v_sub_f32 v9, -v220, v9
v_cvt_pk_bf16_f32 v223, v9, 0
v_mul_f32 v250, v221, v251
v_mul_f32 v251, 0xbfb8aa3b, v251
v_cndmask_b32 v222, v222, 0, {sHI}
v_cndmask_b32 v223, v223, 0, {sHI}""")
S3.spread(mid, *((B0 + 53, B0 + 59) if TWO else (B0 + 79, B0 + 84)))
def aug(k): return mk(f"v_mfma_f32_32x32x8_bf16 {v(ACC[k],16)}, {v(AUG+2*k,2)}, v[222:223], {v(ACC[k],16)}")
SLT = 132
def silu(k, pk):
    q = Prog(); a = ACC[k]; t = 208
    q.I(f"s_xor_b32 s50, s{sW}, {k}\ns_mul_i32 s50, s50, 2304\ns_add_u32 s50, s50, s{sQ}")
    for half in range(2):
        b = a + 8 * half
        if pk:
            for j in range(0, 8, 2): q.I(f"v_pk_mul_f32 {v(t+j,2)}, {v(b+j,2)}, v[250:251] op_sel:[0,1] op_sel_hi:[1,1]")
        else:
            for j in range(8): q.I(f"v_mul_f32 v{t+j}, v{b+j}, v251")
        for j in range(8): q.I(f"v_exp_f32 v{t+j}, v{t+j}")
        if pk:
            for j in range(0, 8, 2): q.I(f"v_pk_fma_f32 {v(t+j,2)}, {v(t+j,2)}, v[250:251], v[250:251] op_sel_hi:[1,0,0]")
        else:
            for j in range(8): q.I(f"v_fma_f32 v{t+j}, v{t+j}, v250, v250")
        for j in range(8): q.I(f"v_rcp_f32 v{t+j}, v{t+j}")
        if pk:
            for j in range(0, 8, 2): q.I(f"v_pk_mul_f32 {v(b+j,2)}, {v(b+j,2)}, {v(t+j,2)}")
        else:
            for j in range(8): q.I(f"v_mul_f32 v{b+j}, v{b+j}, v{t+j}")
        for j in range(4): q.I(f"v_cvt_pk_bf16_f32 v{b+j}, v{b+2*j}, v{b+2*j+1}")
        q.I(f"buffer_store_dwordx4 {v(b,4)}, v2, {WS}, s50 offen offset:{1024*half} sc1")
    q.I(f"v_bitop3_b32 v216, v5, v{a}, v{a+8} {X3}")
    q.I(f"buffer_store_dword v216, v4, {WS}, s50 offen offset:2048 sc1")
    return q.items + ([selft(50, 18)] if SELF & 2 and not pk else [])
E0 = B0 + 28*N1
assert not raw
if TWO:
    S3.spread(flat([w2rd(j) for j in UD + UR + UAW[NT1:]]), B0 + 8, B0 + 42)
    S3.at(B0 + 34, mk("s_barrier"), 0.0)
    S3.spread(flat([w2dma(j) for j in UE]), B0 + 48, E0 + opt("wde", 12))
else:
    S3.spread(flat([w2rd(j) for j in UD + UR + UAW[NT1:]]), B0 + 22, B0 + 58)
    S3.at(B0 + 44, mk("s_barrier"), 0.0)
    S3.spread(flat([w2dma(j) for j in UE]), B0 + 64, E0)
B4 = 16
CKR = [240, 241, 244, 245, 248, 249, 217, 218, 219, 130, 242, 246, 243, 247]
C4 = [[a_(224,16), a_(240,16)], [v(ACC[0],16), v(ACC[1],16)]]
set5 = mk(f"""s_mul_i32 s{sA}, s{sTILE}, 56
s_xor_b32 s{sB}, s{sTILE}, 1
s_mul_i32 s{sB}, s{sB}, 56
s_add_u32 s51, s{sB}, s44
s_add_u32 s52, s{sA}, s44
s_add_u32 s53, s{sB}, s45
s_add_u32 s54, s{sA}, s45""")
for k in range(4):
    set5 += mk(f"s_mul_i32 s{51+k}, s{51+k}, 2304\ns_add_u32 s{51+k}, s{51+k}, {WS_H1}")
S3.spread(set5, B0 + 42, B0 + 52)
def piece4(n):
    st, i = n // 7, n % 7; r = B4 + 8 * (n % 14); c = CKR[n % 14]
    return ([f"s_add_u32 s{sCt}, s{51+st}, {8*2304*i}\nbuffer_load_dwordx4 {v(r,4)}, v2, {WS}, s{sCt} offen sc1\nbuffer_load_dwordx4 {v(r+4,4)}, v2, {WS}, s{sCt} offen offset:1024 sc1\n"
             f"buffer_load_dword v{c}, v4, {WS}, s{sCt} offen offset:2048 sc1"], [r, r+4, c])
F4 = Fetch("f4", [piece4(n) for n in range(28)], nre=opt("re4", 1))
ND = opt("nd", 4)
rawl = flat([w2raw(j) for j in UL])
nr0 = min(len(rawl), opt("nr0", 4))
if TWO:
    S3.at(E0 - 1, stampi("p3 pass1 done", "mh"), 1.0)
    g3[E0 + 3] = aug(0) + g3[E0 + 3]; g3[E0 + 4] = aug(1) + g3[E0 + 4]
    S3.spread(silu(0, False) + [stampi("silu0 done", "e")], E0 + 5, E0 + opt("s0e", 28))
    S3.spread(silu(1, False), E0 + opt("s0e", 28), E0 + opt("s1e", 52))
    S3.spread(rawl, E0 + opt("wde", 12), E0 + opt("rle", 36))
    DEEP = opt("deep", 0)
    if DEEP:
        rng = [(opt("a0", -18), opt("b0", 4)), (opt("a1", 6), opt("b1", 24)), (opt("a2", 26), opt("b2", 50)), (opt("a3", 50), opt("b3", 78))]
        f4pos = []
        for n in range(28):
            a, b = rng[n // 7]
            for k_, c_ in enumerate(F4.loadc(n)):
                pos = a + (b - a) * ((n % 7) + (0, 0.45, 0.9)[k_]) / 7
                lo = (4*n + 4 - 56) if n < 14 else 4*(n - 14) + 4
                pos = max(pos, lo + 0.01*k_); assert pos < 4*n - 3 or n == 0, (n, pos)
                f4pos.append((pos, c_))
        for i_ in range(1, len(f4pos)): assert f4pos[i_][0] >= f4pos[i_-1][0], i_
        import math
        for pos, c_ in f4pos:
            if pos < 0: S3.at(E0 + 56 + math.floor(pos), c_, pos - math.floor(pos))
    else: S3.spread(flat([F4.loadc(n) for n in range(ND)]), E0 + opt("f4s", 42), E0 + 56)
    P.add(S3.emit())
    P.add(aug(2) + aug(3))
else:
    S3.at(E0 - 1, stampi("p3 pass1 done", "mh") + aug(0) + aug(1) + aug(2) + sprinkle(silu(0, True), rawl[:nr0], 3, 12) + stampi("silu0 done", "e"), 1.0)
    S3.spread(silu(1, False), E0, E0 + 26)
    S3.spread(rawl[nr0:], E0, E0 + 14)
    S3.spread(flat([F4.loadc(n) for n in range(ND)]), E0 + opt("f4s", 16), E0 + 28)
    P.add(S3.emit())
    P.add(aug(3))
I("s_barrier")
stamp("p3 gemm done", "me")
g4 = []
for n in range(28):
    st, i = n // 7, n % 7; hf, par = st >> 1, st & 1
    for e in range(2):
        for mu in range(2):
            zero = hf == 0 and i == 0 and e == 0 and not (par == 1 and mu == 0)
            g4.append(mk(f"{MF} {C4[par][mu]}, {a_(UA(7*hf+i)+8*e+4*mu,4)}, {v(B4+8*(n%14)+4*e,4)}, {'0' if zero else C4[par][mu]}"))
P.add(F4.check(0, ND - 1))
S = Sched(g4)
for n in range(28):
    if n + ND < 28 and not (TWO and DEEP):
        for k_, c_ in enumerate(F4.loadc(n + ND)): S.at(4*n + (0, 2, 1)[k_], c_, 0.2)
    if n + 1 < 28: S.spread(F4.checkc(n + 1, min(27, n + ND)), 4*n + 2, 4*n + 4)
    if n in (6, 13, 20): S.at(4*n + 3, stampi(f"stage{n//7} done", "e"), 1.0)
unp = []
for i in range(8): unp += mk(f"v_lshlrev_b32 v{ACC[0]+2*i}, 16, v{HR+i}\nv_and_b32 v{ACC[0]+1+2*i}, s{sHIM}, v{HR+i}")
if TWO and DEEP:
    for pos, c_ in f4pos:
        if pos >= 0: S.at(int(pos), c_, pos - int(pos))
S2E, S3E = opt("s2e", 22), opt("s3e", 50)
S.spread(silu(2, False), 0, S2E)
S.spread(unp, 22, 27)
S.spread(silu(3, False), S2E, S3E)
S.spread(flat([w2rd(j) for j in UE if j < 7]), 0, 14)
S.spread(flat([w2dma(j) for j in UP]), opt("w2a", 2), opt("w2b", 44))
for j in [x for x in UE + UL + UP if x >= 7]: S.spread(w2rd(j), 44 + 5*(j-7), 49 + 5*(j-7))
S.at(82, mk(f"""s_lshl_b32 s{sA}, s{sW}, 14
v_add_u32 v13, s{sA}, v2
v_xor_b32 v9, 16384, v13
v_xor_b32 v12, 32768, v13
v_xor_b32 v14, 49152, v13
s_waitcnt lgkmcnt(0)
s_barrier"""))
S.spread([mk(f"ds_write_b128 v{9 if mu == 0 else 14}, {a_(224+16*mu+4*i,4)} offset:{4096*(2*mu+1)+1024*i}") for mu in range(2) for i in range(4)], 87, 99)
S.at(100, mk("s_waitcnt lgkmcnt(0)\ns_barrier"), 0.0)
S.spread([mk(f"ds_read_b128 {v(ACC[2+mu]+4*i,4)}, v13 offset:{4096*(2*mu+1)+1024*i}") for mu in range(2) for i in range(4)], 100, 104)
S.spread([mk(f"v_add_f32 v{ACC[2]+k}, v{ACC[2]+k}, v{ACC[3]+k}") for k in range(16)], 107, 112)
P.add(S.emit())
stamp("p4 gemm done", "me")
for i in range(4): I(f"ds_write_b128 v12, {v(ACC[1]+4*i,4)} offset:{8192+1024*i}")
if opt("cout", 0):
    I(f"""v_lshlrev_b32 v16, 3, v3
v_sub_u32 v16, v{vXRR}, v16
v_lshlrev_b32 v17, 4, v3
v_xor_b32 v16, v16, v17
v_xor_b32 v17, 32, v16
s_add_u32 s{sA}, s{sXO}, {L_XCH}
v_add_u32 v18, s{sA}, v2""")
I("s_waitcnt lgkmcnt(0)\ns_barrier")
for i in range(4): I(f"ds_read_b128 {v(ACC[3]+4*i,4)}, v13 offset:{8192+1024*i}")
for k in range(0, 16, 2): I(f"v_pk_add_f32 {v(ACC[0]+k,2)}, {v(ACC[0]+k,2)}, {v(ACC[2]+k,2)}")
for hf in range(2):
    b = ACC[0] + 8*hf
    for k in range(0, 8, 2): I(f"v_pk_add_f32 {v(b+k,2)}, {v(b+k,2)}, {v(ACC[3]+8*hf+k,2)}")
    for i in range(4): I(f"v_cvt_pk_bf16_f32 v{96+4*hf+i}, v{b+2*i}, v{b+2*i+1}")
    if not opt("cout", 0):
        I(f"v_permlane32_swap_b32 v{96+4*hf}, v{98+4*hf}\nv_permlane32_swap_b32 v{97+4*hf}, v{99+4*hf}\nbuffer_store_dwordx4 {v(96+4*hf,4)}, v7, {OUT}, s{sOUT} offen offset:{32*hf} {OPT.get('ofl', '')}")
    else:
        I(f"v_permlane32_swap_b32 v{96+4*hf}, v{98+4*hf}\nv_permlane32_swap_b32 v{97+4*hf}, v{99+4*hf}\nds_write_b128 v{16+hf}, {v(96+4*hf,4)}")
if opt("cout", 0):
    I("s_waitcnt lgkmcnt(0)\ns_barrier")
    for i in range(2): I(f"ds_read_b128 {v(104+4*i,4)}, v18 offset:{1024*i}")
    for i in range(2): I(f"buffer_store_dwordx4 {v(104+4*i,4)}, v{vXRD0+i}, {OUT}, s{sXRB} offen offset:{1024*i} {OPT.get('ofl', '')}")
stamp("end", "mpohez")
I(f"""s_cmp_lg_u32 s2, 0
s_cbranch_scc1 L_ex0
v_mov_b32 v9, 0""")
I(f"buffer_store_dword v5, v9, {WS}, 0 offen sc1", unc=True)
I("L_ex0:")
if opt("enc", 0):
    mode = opt("enc", 0)
    if mode <= 4:
        I(f"s_bfe_u32 s{sA}, s80, {hex(0x80000 | (8*(mode-1)))}\ns_min_u32 s{sA}, s{sA}, 1\ns_mul_i32 s{sA}, s{sA}, 2000", unc=True)
    else:
        I(f"s_waitcnt lgkmcnt(0)\ns_sub_u32 s{sA}, s{sSTAMP+2}, s78\ns_mul_i32 s{sA}, s{sA}, 4", unc=True)
    I(f"""s_memrealtime s[40:41]
s_waitcnt lgkmcnt(0)
L_enc:
s_memrealtime s[42:43]
s_waitcnt lgkmcnt(0)
s_sub_u32 s42, s42, s40
s_cmp_lt_u32 s42, s{sA}
s_cbranch_scc1 L_enc
s_branch L_end""", unc=True)
if opt("dbg", 0):
    I(f"""s_cmp_lg_u32 s{sW}, 0
s_cbranch_scc1 L_end
s_load_dwordx2 s[40:41], s[0:1], 64
s_mov_b32 s42, 256
s_mov_b32 s43, 0x20000
s_mov_b64 exec, 1
v_mov_b32 v9, 0
s_waitcnt lgkmcnt(0)""", unc=True)
    for k in range(nstamp[0]):
        I(f"s_sub_u32 s{sA}, s{sSTAMP+2*k}, s78\nv_mov_b32 v10, s{sA}\nbuffer_atomic_umax v10, v9, s[40:43], 0 offen offset:{4*k}\ns_nop 1", unc=True)
    I(f"""v_mov_b32 v10, s78
buffer_atomic_umax v10, v9, s[40:43], 0 offen offset:32
s_not_b32 s{sA}, s78
v_mov_b32 v11, s{sA}
buffer_atomic_umax v11, v9, s[40:43], 0 offen offset:36
v_mov_b32 v12, s{sSTAMP+2*(nstamp[0]-1)}
buffer_atomic_umax v12, v9, s[40:43], 0 offen offset:40
v_mov_b32 v13, s80
buffer_atomic_add v13, v9, s[40:43], 0 offen offset:44
s_branch L_end""", unc=True)
I("L_exit:")
if DIAG and not opt("dbg", 0):
    I(f"s_cmp_lg_u32 s{sW}, {opt('dw', 0)}\ns_cbranch_scc1 L_end\ns_lshl_b32 s{sA}, s2, 7\ns_add_u32 s{sA}, s{sA}, {WS_DIAG}\nv_mov_b32 v9, 0", unc=True)
    for k in range(nstamp[0]):
        I(f"s_waitcnt lgkmcnt(0)\nv_mov_b32 v10, s{sSTAMP+2*k}\nbuffer_store_dword v10, v9, {WS}, s{sA} offen offset:{4*k}", unc=True)
    if SEL == ["z"]: I(f"v_mov_b32 v10, s78\nbuffer_store_dword v10, v9, {WS}, s{sA} offen offset:120", unc=True)
    I(f"v_mov_b32 v10, s80\nbuffer_store_dword v10, v9, {WS}, s{sA} offen offset:124", unc=True)
I("L_end:\ns_endpgm")
I(f"""L_idle:
s_and_b32 s{sA}, s{sT2}, 1
s_lshl_b32 s{sA}, s{sA}, 1
s_add_u32 s{sA}, s{sA}, s{sRact}
s_sub_u32 s{sA}, s{sA}, 14
s_lshl_b32 s{sA}, s{sA}, 2
s_add_u32 s{sA}, s{sA}, s{sW}
s_lshl_b32 s{sA}, s{sA}, 13
v_lshlrev_b32 v9, 7, v1
s_lshr_b32 s{sD}, s{sT2}, 1
s_mul_i32 s{sD}, s{sD}, {8*56*2304}
s_add_u32 s{sD}, s{sD}, {WS_H1}
s_add_u32 s{sD}, s{sD}, s{sA}
s_mov_b32 s{sB}, {opt("idle2", 0)}
s_cmp_eq_u32 s{sB}, 0
s_cbranch_scc1 L_idle3
L_idle2:
buffer_load_dword v11, v9, {WS}, s{sD} offen {OPT.get("i2f", "")}
s_add_u32 s{sD}, s{sD}, {16*8192}
s_sub_u32 s{sB}, s{sB}, 1
s_cmp_lg_u32 s{sB}, 0
s_cbranch_scc1 L_idle2
L_idle3:
s_mov_b32 s{sB}, {opt("idle", 0)}
s_cmp_eq_u32 s{sB}, 0
s_cbranch_scc1 L_exit
L_idle1:
buffer_load_dword v11, v9, {W2}, s{sA} offen
s_add_u32 s{sA}, s{sA}, {16*8192}
s_sub_u32 s{sB}, s{sB}, 1
s_cmp_lg_u32 s{sB}, 0
s_cbranch_scc1 L_idle1
s_branch L_exit""", unc=True)
P.add(TAIL.items)

PL = opt("plain", 0)
for it in P.items:
    if isinstance(it, Ins) and it.op.startswith("buffer_store") and "sc1" in it.text:
        ish1 = " s50 " in it.text or " s49 " in it.text
        ish = ("v[224:227]" in it.text or "v[228:231]" in it.text or "v112," in it.text or "v113," in it.text)
        if (ish and PL & 1) or (ish1 and PL & 2): it.text = it.text.replace(" sc1", OPT.get("pfl", ""))
if opt("pld", 0):
    c = 0
    for it in P.items:
        if isinstance(it, Ins) and it.op.startswith("buffer_load") and "sc1" in it.text and " s56 " in it.text and not it.uncounted:
            c += 1
            kind = 0 if c <= 48 else 1 if c <= 104 else 2
            if opt("pld", 0) & kind: it.text = it.text.replace(" sc1", OPT.get("lfl", ""))
if opt("nochk", 0):
    new = []; seen_end = False
    for it in P.items:
        if isinstance(it, Ins):
            if opt("nochk", 0) == 2 and not seen_end:
                if it.text.startswith("L_exit"): seen_end = True
                elif it.uncounted or it.op in ("s_cbranch_vccz", "s_branch"): continue
            if it.op == "s_cbranch_vccz" and not it.uncounted: it = Ins(it.text.replace("s_cbranch_vccz", "s_branch"))
            elif it.op == "s_cbranch_vccnz" and not it.uncounted: continue
            t = it.text
            if it.op.startswith("buffer_store") and "sc1" in t and not it.uncounted:
                kind = 8 if " s50 " in t else 4 if ("v[224" in t or "v[228" in t or "v112," in t or "v113," in t) else 2 if f" s{sOST} " in t else 1
                if opt("nost", 0) & kind: continue
            if it.op.startswith("buffer_load") and "sc1" in t and " s56 " in t and not it.uncounted:
                cnt_ld = globals().setdefault("_c", [0]); cnt_ld[0] += 1; c = cnt_ld[0]
                kind = 1 if c <= 32 else 2 if c <= 48 else 4 if c <= 104 else 8
                if opt("nold", 0) & kind: continue
        new.append(it)
    P.items = new
body, items = render(P.items)
if opt("align", 1):
    import subprocess, re as _re
    open("_al.s", "w").write('.amdgcn_target "amdgcn-amd-amdhsa--gfx950"\n.text\n' + body)
    subprocess.run(["clang", "-x", "assembler", "-target", "amdgcn-amd-amdhsa", "-mcpu=gfx950", "-c", "_al.s", "-o", "_al.o"], check=True)
    dis = subprocess.run(["llvm-objdump", "-d", "--mcpu=gfx950", "_al.o"], capture_output=True, text=True).stdout
    sizes = [4 * len(m.group(1).split()) for m in _re.finditer(r"// [0-9A-F]{12}: ((?:[0-9A-F]{8} ?)+)", dis)]
    real = [i for i in items if i.cls not in ('label', 'dir')]
    assert len(sizes) == len(real), (len(sizes), len(real))
    sz = {id(i): n for i, n in zip(real, sizes)}
    new = []; off = 0; nal = 0; MINRUN = opt("minrun", 6)
    for k, it in enumerate(items):
        if id(it) in sz and sz[id(it)] == 8 and off % 8 == 4 and not it.uncounted:
            run = 0
            for j in items[k:k + MINRUN + 4]:
                if id(j) not in sz: continue
                if sz[id(j)] != 8 or j.cls == 'mfma': break
                run += 1
            if run >= MINRUN:
                p = new[-1] if new else None
                if p is not None and p.cls == 'valu' and sz.get(id(p)) == 4 and not p.op.startswith(('v_permlane', 'v_dot2c', 'v_readfirst', 'v_accvgpr', 'v_cmp', 'v_cndmask')) and not p.op.endswith('_e64'):
                    p.text = p.text.replace(p.op, p.op + "_e64", 1)
                else: new.append(Ins("s_nop 0"))
                off += 4; nal += 1
        new.append(it); off += sz.get(id(it), 0)
    items = new
    body = '\n'.join(('' if i.cls == 'label' else '  ') + i.text for i in items) + '\n'
    print("alignment fixes:", nal, "code bytes", off)
hdr = open("cdna_kernels/" + NAME + ".s.ref").read().split("; Override launch")[0]
out = hdr + f"""; @launch grid=(256,1,1) block=(256,1,1) lds={LDS_SIZE}
.amdgcn_target "amdgcn-amd-amdhsa--gfx950"
.text
.globl {NAME}_kernel
.p2align 8
.type {NAME}_kernel,@function
{NAME}_kernel:
{body}.fill 2048, 4, 0xbf810000
.section .rodata,"a"
.p2align 6
.amdhsa_kernel {NAME}_kernel
  .amdhsa_next_free_vgpr 512
  .amdhsa_next_free_sgpr 102
  .amdhsa_accum_offset 256
  .amdhsa_group_segment_fixed_size 0
  .amdhsa_kernarg_size 80
  .amdhsa_user_sgpr_count 2
  .amdhsa_user_sgpr_kernarg_segment_ptr 1
  .amdhsa_system_sgpr_workgroup_id_x 1
.end_amdhsa_kernel
"""
open(sys.argv[1], "w").write(out)
n = sum(1 for i in items if i.cls not in ('label', 'dir'))
nu_ = sum(1 for i in items if i.cls not in ('label', 'dir') and i.uncounted)
print("instructions:", n, "(slow path", nu_, ") nops:", sum(1 for i in items if i.op == 's_nop'), "waits:", sum(1 for i in items if i.op == 's_waitcnt'), "stamps", nstamp[0])
```

```python
import sys, struct
from asmlib import *

NAME = "sequential_preLN__linear_kernel_hedgehog__dense_activation_silu__prompt"
DIAG = int(sys.argv[2]) if len(sys.argv) > 2 else 0
OPT = dict(a.split('=') for a in sys.argv[3:])
def opt(k, d): return int(OPT[k], 0) if k in OPT else d

WS_PART = 0x40000
WS_O    = 0x240000
WS_H    = 0x440000
WS_H1   = 0x680000
WS_DIAG = 0xE80000
WS_FLG  = 0xF00000
WS_SIZE = 0xF80000
XW = 28672
L_WV, L_WQ, L_WK, L_WO = 0, 28672, 57344, 86016
L_IMG = L_WK
L_KVX = 143360
L_XCH = 147456
L_SCR = 114688
L_AUG = 161792
LDS_SIZE = 163840
sW, sT, sH, sT2, sR = 3, 4, 5, 6, 7
X, WQKV, WPHI, WO, W1, W2, OUT, WS = [f"s[{i}:{i+3}]" for i in range(8, 40, 4)]
sKX, sKW = 40, 47
sHQ, sHIM = 54, 55
sRET = "s[56:57]"
sSPIN, sP, sU, sC, sMASK, sQ = 58, 59, 60, 61, 62, 63
sHI = "s[64:65]"
sLOG = "s[66:67]"
sONES, sTILE = 68, 69
sA, sB, sCt, sD = 70, 71, 72, 73
sRact, sXO = 74, 75
sWB, sWQ = 76, 77
sLAST, sFLAG, sWM, sPST, sPCK, sOST, sXRB, sOUT = 80, 81, 82, 83, 84, 85, 86, 87
sSTAMP = 88

def v(a, n=1): return f"v{a}" if n == 1 else f"v[{a}:{a+n-1}]"
def a_(a, n=1): return f"a{a}" if n == 1 else f"a[{a}:{a+n-1}]"
def fhex(x): return hex(struct.unpack('<I', struct.pack('<f', x))[0])
def flat(l): return sum(l, [])
P = Prog(); I = P.I
TAIL = Prog()
nstamp = [0]
SEL = OPT.get("st", "m").split(",")
PICK = [int(x) for x in OPT["pick"].split(",")] if "pick" in OPT else None
allst = [0]
def stampi(name, grp="m"):
    idx = allst[0]; allst[0] += 1
    if not DIAG: return []
    if PICK is not None:
        if name != "start" and idx not in PICK:
            print(f"   - {idx}: {name}"); return []
    elif name != "start" and not (set(grp) & set(SEL)): return []
    k = nstamp[0]; nstamp[0] += 1
    assert k < 7
    print(f"stamp {k}: [{idx}] {name}")
    op = "s_memtime" if DIAG == 2 else "s_memrealtime"
    return mk(f"{op} s[{sSTAMP+2*k}:{sSTAMP+2*k+1}]")
def stamp(name, grp="m"): P.add(stampi(name, grp))
X3 = "bitop3:0x96"

def chk_code(regs, masked):
    r = list(regs)
    if masked: return f"v_bitop3_b32 v10, v{r[0]}, v{r[1]}, s{sMASK} bitop3:0x28\nv_cmp_ne_u32 vcc, v10, v6"
    if len(r) == 1: return f"v_cmp_ne_u32 vcc, v{r[0]}, v5"
    if len(r) == 2: t = f"v_xor_b32 v10, v{r[0]}, v{r[1]}"
    else:
        t = f"v_bitop3_b32 v10, v{r[0]}, v{r[1]}, v{r[2]} {X3}"
        if len(r) == 4: t += f"\nv_xor_b32 v10, v10, v{r[3]}"
    return t + "\nv_cmp_ne_u32 vcc, v10, v5"

sFL, sDM = 56, 57
GUARD = f"s_add_u32 s{sSPIN}, s{sSPIN}, 1\ns_cmp_gt_u32 s{sSPIN}, 0x40000\ns_cbranch_scc1 L_end\ns_waitcnt vmcnt(0)"
class Fetch:
    def __init__(self, name, pieces, masked=False, nre=1):
        self.name, self.pieces, self.masked, self.nre = name, pieces, masked, nre
    def loadc(self, i):
        it = flat([mk(c.replace(f"s{sCt}", f"s{sFL}")) for c in self.pieces[i][0]])
        out = []; cur = []
        for x in it:
            cur.append(x)
            if x.cls == 'vmem': out.append(cur); cur = []
        return out
    def load(self, i): return flat(self.loadc(i))
    def stub(self, i, last):
        n = self.name
        wgt = {"fo": 0x100, "fh": 0x10000, "f4": 0x1000000}.get(n, 1)
        rel = (f"s_add_u32 s80, s80, {wgt}\n" if DIAG else "") + "\n".join(c for j in range(i, min(last, i + self.nre - 1) + 1) for c in self.pieces[j][0])
        if opt("ool", 7) & {"fo": 2, "fh": 4, "f4": 8}[n]:
            TAIL.I(f"L_{n}_r{i}:\n" + rel + "\n" + GUARD + "\n" + chk_code(self.pieces[i][1], self.masked) + f"\ns_cbranch_vccnz L_{n}_r{i}\ns_branch L_{n}_ok{i}", unc=True)
            return mk(f"s_cbranch_vccnz L_{n}_r{i}\nL_{n}_ok{i}:")
        return mk(f"s_cbranch_vccz L_{n}_ok{i}\nL_{n}_r{i}:") + \
               mk(rel + "\n" + GUARD + "\n" + chk_code(self.pieces[i][1], self.masked) + f"\ns_cbranch_vccnz L_{n}_r{i}", unc=True) + mk(f"L_{n}_ok{i}:")
    def checkc(self, i, last):
        return [[x] for x in mk(chk_code(self.pieces[i][1], self.masked))] + [self.stub(i, last)]
    def check(self, i, last): return flat(self.checkc(i, last))

sFS, sFP = 80, 81
vL512, vPO, vPF = 0, 142, 143
def flag_store(nl): return mk(f"s_mov_b64 exec, {(1 << nl) - 1}\nbuffer_store_dword v5, v{vL512}, {WS}, s{sFS} offen sc1\ns_mov_b64 exec, -1")
def gate(name, vo, vf): return Fetch(name, [([f"buffer_load_dword v{vf}, v{vo}, {WS}, s{sFP} offen sc1"], [vf])])
GATE = opt("gate", 0)

def cost(it):
    if isinstance(it, WaitTag): return 4
    if it.cls in ('label', 'dir') or it.uncounted: return 0
    if it.op.startswith(TRANS) or 'permlane' in it.op: return 8
    if it.op.startswith('ds_write_b128'): return 28
    if it.cls == 'mfma': return 8
    return 4.5
class Sched:
    def __init__(self, groups):
        self.groups = groups; self.gap = [[] for _ in groups]; self.seq = 0
    def at(self, g, items, frac=0.5):
        self.seq += 1; self.gap[g].append((frac, self.seq, list(items)))
    def spread(self, chunks, a, b):
        chunks = [c if isinstance(c, list) else [c] for c in chunks]
        tot = sum(cost(i) for c in chunks for i in c) or 1; acc = 0
        for c in chunks:
            pos = a + (b - a) * acc / tot
            self.at(int(pos), c, pos - int(pos))
            acc += sum(cost(i) for i in c)
    def emit(self):
        out = []
        for g, gp in zip(self.groups, self.gap):
            out += g
            for _, _, c in sorted(gp, key=lambda x: (x[0], x[1])): out += c
        return out
def sprinkle(items, groups, start, step):
    out = []; groups = list(groups); nxt = start
    for i, it in enumerate(items):
        if groups and i == nxt: out += groups.pop(0); nxt += step
        out.append(it)
    for g in groups: out += g
    return out

def softmax(p, t, o, pk):
    q = Prog(); J = q.I
    m, n = t + 14, t + 15; r0, r1 = t + 16, t + 17
    J(f"v_max3_f32 v{m}, v{p}, v{p+1}, v{p+2}\nv_max3_f32 v{n}, -v{p}, -v{p+1}, -v{p+2}")
    for k in range(3, 13, 2):
        J(f"v_max3_f32 v{m}, v{m}, v{p+k}, v{p+k+1}\nv_max3_f32 v{n}, v{n}, -v{p+k}, -v{p+k+1}")
    J(f"""v_max_f32 v{m}, v{m}, v{p+13}
v_max_f32 v{n}, v{n}, -v{p+13}
v_permlane32_swap_b32 v{m}, v{n}
v_max_f32 v{m}, v{m}, v{n}
v_mul_f32 v{m}, v253, v{m}
v_mov_b32 v{n}, v{m}
v_permlane32_swap_b32 v{m}, v{n}""")
    if pk:
        for k in range(0, 14, 2):
            J(f"v_pk_fma_f32 {v(t+k,2)}, {v(p+k,2)}, v[252:253], {v(m,2)} op_sel_hi:[1,0,0]")
            J(f"v_pk_fma_f32 {v(p+k,2)}, {v(p+k,2)}, v[252:253], {v(m,2)} op_sel:[0,1,1] op_sel_hi:[1,1,1]")
    if pk == 2:
        for k in range(14):
            J(f"v_exp_f32 v{t+k}, v{t+k}\nv_exp_f32 v{p+k}, v{p+k}")
            if k >= 2:
                a0 = f"v{t}" if k == 2 else f"v{r0}"; a1 = f"v{p}" if k == 2 else f"v{r1}"
                J(f"v_add_f32 v{r0}, {a0}, v{t+k-1}\nv_add_f32 v{r1}, {a1}, v{p+k-1}")
        J(f"v_add_f32 v{m}, v{r0}, v{t+13}\nv_add_f32 v{n}, v{r1}, v{p+13}")
    elif pk:
        for k in range(14): J(f"v_exp_f32 v{t+k}, v{t+k}")
        for k in range(14): J(f"v_exp_f32 v{p+k}, v{p+k}")
        J(f"v_pk_add_f32 {v(m,2)}, {v(t,2)}, {v(t+2,2)}\nv_pk_add_f32 {v(r0,2)}, {v(p,2)}, {v(p+2,2)}")
        for k in range(4, 14, 2):
            J(f"v_pk_add_f32 {v(m,2)}, {v(m,2)}, {v(t+k,2)}\nv_pk_add_f32 {v(r0,2)}, {v(r0,2)}, {v(p+k,2)}")
        J(f"v_add_f32 v{m}, v{m}, v{n}\nv_add_f32 v{n}, v{r0}, v{r1}")
    else:
        for k in range(14):
            J(f"v_fma_f32 v{t+k}, v{p+k}, v252, v{m}\nv_fma_f32 v{p+k}, v{p+k}, v253, v{n}\nv_exp_f32 v{t+k}, v{t+k}\nv_exp_f32 v{p+k}, v{p+k}")
            if k >= 2:
                a0 = f"v{t}" if k == 2 else f"v{r0}"; a1 = f"v{p}" if k == 2 else f"v{r1}"
                J(f"v_add_f32 v{r0}, {a0}, v{t+k-1}\nv_add_f32 v{r1}, {a1}, v{p+k-1}")
        J(f"v_add_f32 v{m}, v{r0}, v{t+13}\nv_add_f32 v{n}, v{r1}, v{p+13}")
    J(f"""v_permlane32_swap_b32 v{m}, v{n}
v_add_f32 v{m}, v{m}, v{n}
v_rcp_f32 v{m}, v{m}
v_mov_b32 v{n}, v{m}
v_permlane32_swap_b32 v{m}, v{n}""")
    if pk == 1:
        for k in range(0, 14, 2):
            J(f"v_pk_mul_f32 {v(t+k,2)}, {v(t+k,2)}, {v(m,2)} op_sel_hi:[1,0]")
            J(f"v_pk_mul_f32 {v(p+k,2)}, {v(p+k,2)}, {v(m,2)} op_sel:[0,1] op_sel_hi:[1,1]")
    else:
        for k in range(14): J(f"v_mul_f32 v{t+k}, v{t+k}, v{m}\nv_mul_f32 v{p+k}, v{p+k}, v{n}")
    for k in range(7): J(f"v_cvt_pk_bf16_f32 v{o+k}, v{t+2*k}, v{t+2*k+1}")
    for k in range(7): J(f"v_cvt_pk_bf16_f32 v{o+7+k}, v{p+2*k}, v{p+2*k+1}")
    return q.items

def dmag(vaddrs, srd, sbase, sadd, mbase, madd, tag, sreg=None):
    sr = sCt if sreg is None else sreg
    ch = [mk(f"buffer_load_dwordx4 v{a}, {srd}, s{sr} offen offset:{1024*i} lds", tag=tag) for i, a in enumerate(vaddrs)]
    ch[0] = mk(f"s_add_u32 m0, s{mbase}, {madd}\ns_add_u32 s{sr}, s{sbase}, {sadd}") + ch[0]
    return ch

MF = "v_mfma_f32_32x32x16_bf16"
RINGA, NRING = 224, 8
def gemm_lds(steps, ahead=6):
    def rd(i):
        av, o1, o2 = steps[i][:3]; r = RINGA + 4 * (i % NRING)
        return mk(f"ds_read_b64_tr_b16 {a_(r,2)}, v{av} offset:{o1}\nds_read_b64_tr_b16 {a_(r+2,2)}, v{av} offset:{o2}")
    rds = [rd(i) for i in range(len(steps))]
    groups = []
    for i, st in enumerate(steps):
        r = RINGA + 4 * (i % NRING); b, acc, first, swap = st[3]
        A, B = a_(r, 4), v(b, 4)
        if swap: A, B = B, A
        g = mk(f"{MF} {v(acc,16)}, {A}, {B}, {'0' if first else v(acc,16)}")
        if i % 2 == 0 and i + 1 < len(steps):
            r2 = RINGA + 4 * ((i + 1) % NRING); g[0].extra = [('a', r2 + x) for x in range(4)]
        groups.append(g + (rds[i + ahead] if i + ahead < len(steps) else []))
    return flat(rds[:ahead]), groups

FAST = opt('fast', 1)
LO = """s_load_dwordx2 s[12:13], s[0:1], 8
s_load_dwordx2 s[16:17], s[0:1], 16
s_load_dwordx2 s[20:21], s[0:1], 24
s_load_dwordx2 s[24:25], s[0:1], 40
s_load_dwordx2 s[28:29], s[0:1], 48
s_load_dwordx2 s[32:33], s[0:1], 56
s_load_dwordx2 s[36:37], s[0:1], 72
"""
CP = f"""v_lshlrev_b32 v3, 4, v1
v_lshl_add_u32 v3, v2, 6, v3
v_lshl_add_u32 v3, v2, 4, v3
v_add_u32 v3, s{sCt}, v3
v_lshlrev_b32 v3, 7, v3
s_and_b32 s76, s76, 0xffffff00
s_mov_b64 exec, 31
global_load_dword v236, v3, s[76:77]
s_mov_b64 exec, -1
"""
MAP1 = [f"""s_and_b32 s{sT}, s{sA}, 3
s_lshl_b32 s{sT}, s{sT}, 2
s_and_b32 s{sD}, s{sB}, 3
s_add_u32 s{sT}, s{sT}, s{sD}
s_lshr_b32 s{sP}, s{sA}, 2
s_lshl_b32 s{sH}, s{sP}, 3
s_lshr_b32 s{sD}, s{sB}, 2
s_add_u32 s{sH}, s{sH}, s{sD}
s_mul_i32 s{sP}, s{sT}, {opt("rt", 2)}
s_add_u32 s{sD}, s{sD}, s{sP}
s_mul_i32 s{sP}, s{sD}, 37
s_lshr_b32 s{sP}, s{sP}, 8
s_mul_i32 s{sP}, s{sP}, 7
s_sub_u32 s{sD}, s{sD}, s{sP}
s_lshl_b32 s{sKX}, s{sD}, 7
""",
f"""s_lshl_b32 s{sT}, s{sA}, 1
s_lshr_b32 s{sD}, s{sB}, 4
s_add_u32 s{sT}, s{sT}, s{sD}
s_mov_b32 s{sH}, s{sCt}
s_and_b32 s{sD}, s{sH}, 7
s_cmp_eq_u32 s{sD}, 7
s_cselect_b32 s{sD}, 3, s{sD}
s_lshl_b32 s{sKX}, s{sD}, 7
""",
f"""s_mov_b32 s{sT}, s{sCt}
s_lshl_b32 s{sH}, s{sA}, 1
s_lshr_b32 s{sD}, s{sB}, 4
s_add_u32 s{sH}, s{sH}, s{sD}
s_and_b32 s{sD}, s{sH}, 7
s_mul_i32 s{sD}, s{sD}, 3
s_mul_i32 s{sP}, s{sD}, 37
s_lshr_b32 s{sP}, s{sP}, 8
s_mul_i32 s{sP}, s{sP}, 7
s_sub_u32 s{sD}, s{sD}, s{sP}
s_lshl_b32 s{sKX}, s{sD}, 7
"""][opt("map1", 0)]
if DIAG: I("s_memrealtime s[78:79]")
I(f"""s_cmp_ge_u32 s2, 256
s_cbranch_scc1 L_end
s_load_dwordx2 s[8:9], s[0:1], 0
{LO if not FAST else ''}{"s_waitcnt lgkmcnt(0)" + chr(10) + "s_memrealtime s[88:89]" if opt("bare", 0) else ""}
s_getpc_b64 s[76:77]
v_and_b32 v1, 63, v0
v_lshrrev_b32 v2, 6, v0
s_and_b32 s{sA}, s2, 7
v_readfirstlane_b32 s{sW}, v2
s_lshr_b32 s{sB}, s2, 3
s_and_b32 s{sCt}, s{sB}, 15
{CP if FAST < 2 else ''}{MAP1}
s_mov_b32 s10, 1835008
s_mov_b32 s11, 0x20000
v_lshrrev_b32 v2, 3, v1
v_mul_u32_u24 v244, 896, v2
v_lshrrev_b32 v2, 4, v1
v_and_b32 v8, 7, v1
v_xor_b32 v2, v2, v8
v_lshl_add_u32 v244, v2, 4, v244
v_xor_b32 v245, 64, v244
v_add_u32 v245, {7168-1024}, v245
v_add_u32 v246, {2*(7168-1024)}, v244
v_add_u32 v247, {2*(7168-1024)}, v245
s_lshl_b32 s{sQ}, s{sT}, 2
s_add_u32 s{sQ}, s{sQ}, s{sW}
s_mul_i32 s{sQ}, s{sQ}, {32*896}
s_lshr_b32 s{sXO}, s{sW}, 1
s_add_u32 s{sXO}, s{sXO}, s{sW}
s_mul_i32 s{sXO}, s{sXO}, {XW}
s_waitcnt lgkmcnt(0)""")
st0 = stampi("start")
if not opt("bare", 0): P.add(st0)
def xdma(g): return flat(dmag([244, 245, 246, 247], X, sQ, f"s{sKX+g}", sXO, 4096*g, f"x{g}"))
P.add(xdma(0))
if FAST: I(LO)
if FAST == 2: I(f"v_lshrrev_b32 v2, 6, v0\ns_and_b32 s{sCt}, s{sB}, 15\n" + CP)
I(f"""s_mov_b32 s14, {0 if opt('abl',0)&8 else 1204224}
s_mov_b32 s15, 0x20000
v_and_b32 v8, 3, v1""")
def wtouch(mask16, dst):
    m = mask16 | (mask16 << 16)
    return mk(f"s_mov_b32 exec_lo, {hex(m)}\ns_mov_b32 exec_hi, {hex(m)}\nbuffer_load_dword v{dst}, v255, {WQKV}, 0 offen\ns_mov_b64 exec, -1")
def kxs(g): return mk(f"s_add_u32 s{sKX+g}, s{sKX+g-1}, 128\ns_cmp_ge_u32 s{sKX+g}, 896\ns_cselect_b32 s{sD}, 896, 0\ns_sub_u32 s{sKX+g}, s{sKX+g}, s{sD}")
NXE = opt("nxe", 2)
if opt("wtfirst", 1) and opt("wt0", 0): P.add(wtouch(opt("wt0", 0), 237))
for g in range(1, NXE): P.add(kxs(g) + xdma(g))
if not opt("wtfirst", 1) and opt("wt0", 0): P.add(wtouch(opt("wt0", 0), 237))
if FAST: I("s_waitcnt lgkmcnt(0)")
if opt("wsoff", 0): I(f"s_add_u32 s36, s36, {opt('wsoff', 0)}\ns_addc_u32 s37, s37, 0")
I(f"""s_mov_b32 s38, {WS_SIZE}
s_mov_b32 s39, 0x20000
s_mov_b32 s18, 25088
s_mov_b32 s19, 0x20000
s_mov_b32 s22, {0 if opt('abl',0)&4 else 401408}
s_mov_b32 s23, 0x20000
s_xor_b32 s{sHQ}, s{sH}, 1
v_mov_b32 v11, 0
v_lshlrev_b32 v6, 7, v1""")
TM = opt("tm", 0)
sm_ld = mk(f"""s_mov_b64 exec, 1
buffer_load_dword v5, v6, {WS}, 0 offen sc1""")
if opt("two_", 1): sm_ld += mk(f"""s_lshl_b32 s56, s2, 2
s_add_u32 s56, s56, s{sW}
s_lshl_b32 s56, s56, 9
s_mov_b64 exec, 15
buffer_load_dword v238, v6, {WO}, s56 offen""")
if opt("twp", 1): sm_ld += mk(f"""s_and_b32 s{sCt}, s{sH}, 14
s_mul_i32 s{sCt}, s{sCt}, 1568
s_mul_i32 s56, s{sW}, 896
s_add_u32 s{sCt}, s{sCt}, s56
s_mov_b64 exec, 127
buffer_load_dword v239, v6, {WPHI}, s{sCt} offen""")
sm_ld += mk("s_mov_b64 exec, -1")
if TM == 0: P.add(sm_ld)
for g in range(NXE, 7): P.add(kxs(g))
I(f"""s_lshl_b32 s{sT2}, s{sA}, 1
s_lshr_b32 s{sD}, s{sB}, 4
s_add_u32 s{sT2}, s{sT2}, s{sD}
s_and_b32 s{sRact}, s{sB}, 15
s_min_u32 s{sR}, s{sRact}, 13
s_mov_b32 s26, {0 if opt('abl',0)&1 else 1605632}
s_mov_b32 s27, 0x20000
s_mov_b32 s30, {0 if opt('abl',0)&2 else 1605632}
s_mov_b32 s31, 0x20000
s_mov_b32 s34, 1835008
s_mov_b32 s35, 0x20000
s_mov_b32 s64, 0
s_mov_b32 s65, -1
s_mov_b32 s{sONES}, 0x3f803f80
s_mov_b32 s{sMASK}, 0xbfffbfff
s_mov_b32 s{sHIM}, 0xffff0000
s_mov_b32 s{sSPIN}, 0
s_mov_b32 s80, 0
s_cmp_ge_u32 s{sR}, 7
s_cselect_b32 s{sU}, 1, 0
s_mul_i32 s{sA}, s{sU}, 7
s_sub_u32 s{sC}, s{sR}, s{sA}""")
sT3 = 67
if opt("map3", 0):
    I(f"""s_and_b32 s{sA}, s{sT2}, 12
s_and_b32 s{sD}, s{sT2}, 1
s_lshl_b32 s{sD}, s{sD}, 1
s_add_u32 s{sA}, s{sA}, s{sD}
s_add_u32 s{sT3}, s{sA}, s{sU}
s_bfe_u32 s{sA}, s{sT2}, 0x10001
s_mul_i32 s{sA}, s{sA}, 7
s_add_u32 s{sR}, s{sA}, s{sC}""")
else: I(f"s_mov_b32 s{sT3}, s{sT2}")
for g in range(7): I(f"s_mul_i32 s{sKW+g}, s{sKX+g}, {172032//128}")
I(f"""s_mul_i32 s{sWB}, s{sH}, 56
s_mul_i32 s{sD}, s{sW}, 43008
s_add_u32 s{sWB}, s{sWB}, s{sD}
s_mul_i32 s{sWQ}, s{sHQ}, 56
s_add_u32 s{sWQ}, s{sWQ}, s{sD}
s_add_u32 s{sWB}, s{sWB}, 896
s_lshl_b32 s{sWM}, s{sW}, 10
s_mul_i32 s66, s{sH}, 1568
s_mul_i32 s81, s{sHQ}, 1568""")
_m0 = len(P.items)
I(f"""s_lshl_b32 s{sA}, s{sH}, 4
s_add_u32 s{sA}, s{sA}, s{sT}
s_mul_i32 s{sA}, s{sA}, 5120
s_add_u32 s{sA}, s{sA}, {WS_PART}
s_add_u32 s{sPST}, s{sA}, s{sWM}
s_lshl_b32 s{sD}, s{sW}, 8
s_add_u32 s{sA}, s{sA}, s{sD}
s_add_u32 s{sPCK}, s{sA}, 4096
s_lshl_b32 s{sA}, s{sT}, 2
s_add_u32 s{sA}, s{sA}, s{sW}
s_lshl_b32 s{sA}, s{sA}, 15
s_lshl_b32 s{sB}, s{sHQ}, 11
s_add_u32 s{sA}, s{sA}, s{sB}
s_add_u32 s{sOST}, s{sA}, {WS_O}
s_lshl_b32 s{sA}, s{sT2}, 2
s_lshl_b32 s{sB}, s{sU}, 1
s_add_u32 s{sA}, s{sA}, s{sB}
s_and_b32 s{sB}, s{sW}, 1
s_add_u32 s{sTILE}, s{sA}, s{sB}
s_mul_i32 s{sA}, s{sA}, {32*896}
s_lshl_b32 s{sB}, s{sC}, 7
s_add_u32 s{sA}, s{sA}, s{sB}
s_mul_i32 s{sD}, s{sW}, {16*896}
s_add_u32 s{sXRB}, s{sA}, s{sD}
s_mul_i32 s{sA}, s{sTILE}, {32*896}
s_add_u32 s{sA}, s{sA}, s{sB}
s_lshr_b32 s{sB}, s{sW}, 1
s_lshl_b32 s{sB}, s{sB}, 6
s_add_u32 s{sOUT}, s{sA}, s{sB}
s_mul_i32 s{sP}, s{sHQ}, {16*5120}
s_add_u32 s{sP}, s{sP}, {WS_PART}""")
deferred = P.items[_m0:]; del P.items[_m0:]
WPK, WPQ, WPT = 192, 200, 208
vWPA, vWPB, vKVX, vIMW, vKA, vKB, vFPD, vFPC, vWO0, vWO1, vXRD0, vXRD1, vXRR, vWOR = range(128, 142)
I(f"""v_lshrrev_b32 v3, 5, v1
v_lshlrev_b32 v2, 4, v1
v_lshlrev_b32 v4, 2, v1
v_bfe_u32 v11, v1, 3, 2
v_lshl_add_u32 v11, v11, 2, v8
v_bfe_u32 v12, v1, 2, 1
v_mul_u32_u24 v12, 14, v12
v_min_u32 v13, 13, v11
v_add_u32 v13, v13, v12
v_lshlrev_b32 v13, 1, v13
v_mul_u32_u24 v14, 224, v3
v_add_u32 v{vWPA}, v13, v14
v_lshl_add_u32 v{vWPB}, v3, 20, v{vWPA}
v_add_u32 v12, v12, v11
v_cmp_gt_u32 vcc, 14, v11
v_lshrrev_b32 v7, 2, v1
v_mul_u32_u24 v7, 2688, v7
v_cndmask_b32 v12, 28, v12, vcc
v_and_b32 v13, 15, v12
v_lshlrev_b32 v13, 4, v13
v_lshrrev_b32 v12, 4, v12
v_lshl_add_u32 v13, v12, 3, v13
v_lshl_add_u32 v13, v3, 8, v13
v_add_u32 v{vKVX}, {L_KVX}, v13
v_lshlrev_b32 v11, 4, v8
v_min_u32 v11, 40, v11
v_add_u32 v7, v7, v11
v_and_b32 v9, 31, v1
v_lshlrev_b32 v240, 7, v9
v_bfe_u32 v11, v1, 1, 3
v_xor_b32 v11, v11, v3
v_lshl_add_u32 v240, v11, 4, v240
v_add_u32 v240, s{sXO}, v240
v_xor_b32 v241, 32, v240
v_xor_b32 v242, 64, v240
v_xor_b32 v243, 96, v240
v_mov_b32 v250, 0
v_mov_b32 v251, 0""")
_m0 = len(P.items)
I(f"""s_lshl_b32 s{sA}, s{sW}, 5
v_add_u32 v10, s{sA}, v9
v_mul_u32_u24 v10, 208, v10
v_mul_u32_u24 v11, 96, v3
v_add_u32 v{vIMW}, v10, v11
v_lshrrev_b32 v10, 4, v1
v_bfe_u32 v15, v1, 2, 2
v_lshl_add_u32 v10, v10, 3, v15
v_mul_u32_u24 v10, 208, v10
v_and_b32 v11, 1, v1
v_mul_u32_u24 v11, 96, v11
v_add_u32 v10, v10, v11
v_bfe_u32 v11, v1, 1, 1
v_lshl_add_u32 v10, v11, 3, v10
v_add_u32 v{vKB}, {L_IMG}, v10
s_lshl_b32 s{sA}, s{sW}, 4
v_add_u32 v{vKA}, s{sA}, v{vKB}
v_add_u32 v{vFPD}, s{sWM}, v2
s_lshl_b32 s{sD}, s{sW}, 8
s_add_u32 s{sD}, s{sD}, 4096
v_add_u32 v{vFPC}, s{sD}, v4
v_lshrrev_b32 v12, 3, v1
v_mul_u32_u24 v14, 896, v12
v_and_b32 v13, 7, v1
v_xor_b32 v12, v12, v13
v_lshl_add_u32 v{vXRD0}, v12, 4, v14
v_add_u32 v{vXRD1}, {7168-1024}, v{vXRD0}
v_bfe_u32 v12, v1, 4, 1
v_lshlrev_b32 v11, 2, v12
v_xor_b32 v11, v11, v13
v_lshl_add_u32 v{vWO0}, v11, 4, v14
v_add_u32 v{vWO1}, {7168-1024}, v{vWO0}
s_and_b32 s{sA}, s{sW}, 1
s_lshl_b32 s{sA}, s{sA}, 12
s_add_u32 s{sA}, s{sA}, {L_XCH}
v_lshlrev_b32 v10, 7, v9
v_lshl_add_u32 v10, v3, 3, v10
v_add_u32 v10, s{sA}, v10
s_lshr_b32 s{sA}, s{sW}, 1
s_lshl_b32 s{sB}, s{sA}, 2
v_xor_b32 v13, s{sB}, v13
v_lshl_add_u32 v{vXRR}, v13, 4, v10
v_mad_u32_u24 v10, v3, 14, v15
v_lshlrev_b32 v10, 7, v10
v_bfe_u32 v13, v1, 3, 1
v_xor_b32 v13, v13, v3
v_xor_b32 v13, s{sA}, v13
v_lshl_add_u32 v10, v13, 6, v10
v_lshl_add_u32 v10, v12, 5, v10
v_lshl_add_u32 v10, v8, 3, v10
s_mul_i32 s{sA}, s{sA}, {8*28*128}
s_add_u32 s{sA}, s{sA}, {L_WO}
v_add_u32 v{vWOR}, s{sA}, v10
v_lshl_add_u32 v11, v3, 3, v15
v_lshlrev_b32 v11, 6, v11
v_lshl_add_u32 v12, v12, 2, v8
v_cmp_lt_u32 vcc, 5, v12
v_xor_b32 v13, 1, v12
v_cndmask_b32 v12, v12, v13, vcc
v_lshl_add_u32 v11, v12, 3, v11
v_add_u32 v13, {L_WK}, v11""")
I(f"""v_bfe_u32 v10, v1, 2, 1
v_bfe_u32 v14, v1, 4, 1
v_lshl_add_u32 v10, v14, 1, v10
v_cmp_eq_u32 vcc, v10, v3
v_and_b32 v10, 1, v1
v_lshlrev_b32 v10, 4, v10
v_mov_b32 v14, 0x3f80
v_lshlrev_b32 v10, v10, v14
v_cndmask_b32 v10, 0, v10, vcc
v_bfe_u32 v14, v1, 3, 1
v_bfe_u32 v15, v1, 1, 1
v_lshl_add_u32 v14, v14, 1, v15""")
for q in range(4): I(f"v_cmp_eq_u32 vcc, {q}, v14\nv_cndmask_b32 v15, 0, v10, vcc\nv_accvgpr_write_b32 a{220+q}, v15")
I("v_add_u32 v9, 896, v7")
deferred += P.items[_m0:]; del P.items[_m0:]
NDEF0 = opt("ndef0", 70)
P.add(deferred[:NDEF0]); deferred = deferred[NDEF0:]
L2N = 0
if L2N:
    I(f"""s_mov_b32 s{sCt}, 0x60504020
s_cmp_ge_u32 s{sH}, 8
s_cselect_b32 s{sCt}, 0x53020100, s{sCt}
s_and_b32 s{sD}, s{sH}, 7
s_lshl_b32 s{sD}, s{sD}, 2
s_lshr_b32 s{sCt}, s{sCt}, s{sD}
s_and_b32 s{sCt}, s{sCt}, 15
s_and_b32 s{sD}, s{sT}, 3
s_mul_i32 s{sD}, s{sD}, 7
s_add_u32 s{sCt}, s{sCt}, s{sD}
s_lshl_b32 s{sCt}, s{sCt}, 2
s_add_u32 s{sCt}, s{sCt}, s{sW}
s_mul_i32 s66, s{sCt}, 14336
s_add_u32 s81, s66, 57344
s_lshl_b32 s{sD}, s{sH}, 1
s_lshr_b32 s{sD}, 0xa111444a, s{sD}
s_and_b32 s{sD}, s{sD}, 3
s_cmp_ge_u32 s{sD}, 1
s_cselect_b32 s66, s66, 0x10000000
s_cmp_ge_u32 s{sD}, 2
s_cselect_b32 s81, s81, 0x10000000
v_add_u32 v143, 7168, v6""")
def l2n(k): return mk(f"s_mov_b32 exec_hi, 0xffffff\nbuffer_load_dword v{142}, v{6 if k % 2 == 0 else 143}, {W1}, s{66 if k < 2 else 81} offen\ns_mov_b32 exec_hi, -1")
stamp("setup done", "p")
def wphi(dst, tmp, so):
    q = []
    for t in range(2):
        for j in range(8):
            d = 16 * t + 8 * (j >> 2) + (j & 3)
            av = vWPB if (t == 1 and j >= 4) else vWPA
            r = (dst if j % 2 == 0 else tmp) + 4 * t + j // 2
            op = "buffer_load_short_d16" if j % 2 == 0 else "buffer_load_short_d16_hi"
            q += mk(f"{op} v{r}, v{av}, {WPHI}, s{so} offen offset:{d*56}")
    return q
def wkdma(g): return flat(dmag([7], WQKV, sWB, f"s{sKW+g}", sWM, L_WK + 4096*g, f"wk{g}"))
def wvdma(g): return flat(dmag([9], WQKV, sWB, f"s{sKW+g}", sWM, L_WV + 4096*g, f"wv{g}"))
def wqdma(g): return flat(dmag([7], WQKV, sWQ, f"s{sKW+g}", sWM, L_WQ + 4096*g, f"wq{g}"))
if opt("fake", 0):
    I(f"""v_mov_b32 v7, v2
v_add_u32 v9, 24576, v2
s_mul_i32 s{sWB}, s{sH}, 73728
s_add_u32 s{sWB}, s{sWB}, s{sWM}
s_mul_i32 s{sWQ}, s{sHQ}, 73728
s_add_u32 s{sWQ}, s{sWQ}, s{sWM}
s_add_u32 s{sWQ}, s{sWQ}, 45056""")
    for g in range(7): I(f"s_lshl_b32 s{sKW+g}, s{sKX+g}, 5")
XF = 16
NX0 = opt("nx0", 3)
if opt("wt1", 0): P.add(wtouch(opt("wt1", 0), 249))
for g in range(NXE, NX0): P.add(xdma(g))
pend = [xdma(g) for g in range(NX0, 7)]
wkl = [wkdma(g) for g in range(7)]
if TM and TM < NX0: P.add(sm_ld)
elif TM: pend[TM - NX0] = pend[TM - NX0] + sm_ld
if opt("wt2", 0): pend[-1] = pend[-1] + wtouch(opt("wt2", 0), 248)
pend.append(wkl.pop(0) + wphi(WPK, WPT, 66))
pend.append(wkl.pop(0) + wphi(WPQ, WPT+8, 81))
while len(pend) < 7: pend.append(wkl.pop(0))
def xrd(g): return flat([mk(f"ds_read_b128 {v(XF+16*g+4*e,4)}, v{240+e} offset:{4096*g}") for e in range(4)])
P.wait("x0"); P.add(xrd(0))
for g in range(7):
    if pend: P.add(pend.pop(0))
    if g + 1 < 7: P.wait(f"x{g+1}"); P.add(xrd(g + 1))
    for i in range(16):
        r = XF + 16*g + i
        I(f"v_dot2c_f32_bf16 v250, s{sONES}, v{r}\nv_dot2c_f32_bf16 v251, v{r}, v{r}")
    nd_ = -(-len(deferred) // max(1, opt("ndi", 6) - g)) if g < opt("ndi", 6) else len(deferred)
    P.add(deferred[:nd_]); deferred = deferred[nd_:]
    if g == 0: stamp("x0 done", "p")
for x_ in pend: P.add(x_)
if opt("tp", 0) == 2:
    I(f"""s_mul_i32 s{sCt}, s2, {52*128}
s_mul_i32 s{sD}, s{sW}, {13*128}
s_add_u32 s{sCt}, s{sCt}, s{sD}
s_mov_b64 exec, 0x1fff
buffer_load_dword v254, v6, {W2}, s{sCt} offen
buffer_load_dword v255, v6, {W1}, s{sCt} offen
s_mov_b64 exec, -1""")
stamp("x stats done", "mp")
I(f"""v_permlane32_swap_b32 v250, v251
v_readfirstlane_b32 s{sA}, v5
s_nop 0
v_add_f32 v250, v250, v251
v_mul_f32 v250, {fhex(-1/448)}, v250
v_mov_b32 v251, v250
s_or_b32 s{sA}, s{sA}, 1
s_mul_i32 s{sA}, s{sA}, 0x9E3779B5
v_mov_b32 v5, s{sA}
s_mov_b32 s{sA}, 0x3f80
v_permlane32_swap_b32 v250, v251
s_mov_b32 s{sB}, 0x3f800000""")
fin = mk(f"""v_fma_f32 v251, -v250, v250, -v251
v_max_f32 v251, 0, v251
v_add_f32 v251, 0x3727c5ac, v251
v_rsq_f32 v251, v251
s_lshl_b32 s{sQ}, s{sC}, 7
s_mul_i32 s{sD}, s{sW}, {16*896}
v_mul_f32 v252, 0x3fb8aa3b, v251
v_mul_f32 v253, 0xbfb8aa3b, v251
s_add_u32 s{sQ}, s{sQ}, s{sD}
s_lshl_b32 s{sXO}, s{sW}, 11""")
if opt("noid", 1): fin = [mk(f"s_cmp_ge_u32 s{sRact}, 14\ns_cselect_b32 s22, 0, s22")] + fin
ACK = 144; ACV = 160; PK = 176; IMG = 208; TMP = 232
def norm(t):
    q = Prog(); tb = TMP + 8 * (t & 1)
    for i in range(4):
        r = XF + 4 * t + i
        q.I(f"v_dot2_f32_bf16 v{tb+2*i}, v{r}, s{sA}, v250\nv_dot2_f32_bf16 v{tb+2*i+1}, v{r}, s{sB}, v250")
    return q.items
def normc(t):
    tb = TMP + 8 * (t & 1)
    return flat([mk(f"v_cvt_pk_bf16_f32 v{XF+4*t+i}, v{tb+2*i}, v{tb+2*i+1}") for i in range(4)])
def l2t(srd, k, dst):
    return mk(f"""s_lshr_b32 s{sCt}, s2, 3
s_lshl_b32 s{sCt}, s{sCt}, 2
s_add_u32 s{sCt}, s{sCt}, s{sW}
s_mul_i32 s{sCt}, s{sCt}, {98*128}
s_mov_b32 exec_hi, 0x1ffff
s_add_u32 s{sCt}, s{sCt}, {k*49*128}
buffer_load_dword v{dst}, v6, {srd}, s{sCt} offen
s_mov_b32 exec_hi, -1""")
L2A, L2B = opt("l2a", -1), opt("l2b", -1)
touch = mk(f"""s_mul_i32 s{sCt}, s2, {52*128}
s_mul_i32 s{sD}, s{sW}, {13*128}
s_add_u32 s{sCt}, s{sCt}, s{sD}
s_mov_b64 exec, 0x1fff
buffer_load_dword v255, v6, {W1}, s{sCt} offen
buffer_load_dword v254, v6, {W2}, s{sCt} offen
s_mov_b64 exec, -1""")
TP = opt('tp', 0)
ns = norm(0)
for t in range(1, 28): ns += norm(t) + normc(t - 1)
ns += normc(27)
NBAR = opt("nbar", 100)
wvl = [wvdma(k) for k in range(7)]
if opt("loop2", 0):
    I("s_mov_b32 s80, 0\nL_lp2:\ns_mov_b32 s101, s100\ns_memtime s[78:79]\ns_waitcnt lgkmcnt(0)\ns_mov_b32 s99, s78")
    P.add([Ins(x.text) for x in ns])
    I("s_memtime s[78:79]\ns_waitcnt lgkmcnt(0)\ns_sub_u32 s100, s78, s99\ns_add_u32 s100, s100, s88\ns_add_u32 s80, s80, 1\ns_cmp_lt_u32 s80, 2\ns_cbranch_scc1 L_lp2")
    nstamp[0] = 14
P.add(sprinkle(ns[:NBAR], wkl, 0, opt("wkstep", 30)))
if opt("touch", 1) and TP == 1: P.add(touch)
I("s_barrier")
NWV0 = opt("nwv0", 4)
w0_ = [wvl.pop(0) for _ in range(NWV0)]
if L2N == 1: w0_[0] = l2n(0) + w0_[0]; w0_[-1] = w0_[-1] + l2n(2); wvl[-1] = wvl[-1] + l2n(1)
if L2N == 2: wvl[-1] = wvl[-1] + l2n(0) + l2n(2)
P.add(sprinkle(ns[NBAR:], w0_, opt("wv0", 30), opt("wvstep", 50)))
P.wait(*[f"wk{k}" for k in range(7)]); I("s_barrier")
stamp("wk landed", "p")
if opt("zy", 0): I(f"s_sleep {opt('zy', 0)}")
AH = 6
sW1B, sW1M, sW2E, sW2L = 40, 41, 42, 43
set2 = mk(f"""v_lshrrev_b32 v10, 4, v1
v_mul_u32_u24 v12, 3584, v10
v_lshlrev_b32 v10, 2, v10
v_and_b32 v13, 15, v1
v_xor_b32 v10, v10, v13
v_lshl_add_u32 v12, v10, 4, v12
v_add_u32 v13, {4*3584-1024}, v12
v_add_u32 v14, {2*(4*3584-1024)}, v12
v_add_u32 v15, {3*(4*3584-1024)}, v12
s_lshl_b32 s{sW1B}, s{sR}, 8
s_mul_i32 s{sD}, s{sW}, {16*3584}
s_add_u32 s{sW1B}, s{sW1B}, s{sD}
s_lshl_b32 s{sW1M}, s{sW}, 12
s_lshr_b32 s{sA}, s{sW}, 1
s_lshl_b32 s{sA}, s{sA}, 2
s_andn2_b32 s{sB}, 1, s{sW}
s_add_u32 s{sA}, s{sA}, s{sB}
s_lshl_b32 s{sB}, s{sU}, 1
s_add_u32 s44, s{sA}, s{sB}
s_xor_b32 s45, s44, 2
s_lshl_b32 s{sD}, s{sC}, 7
s_mul_i32 s{sW2E}, s44, {32*896}
s_add_u32 s{sW2E}, s{sW2E}, s{sD}
s_mul_i32 s{sW2L}, s45, {32*896}
s_add_u32 s{sW2L}, s{sW2L}, s{sD}
""")
vW2 = [vWO0, vWO1, 128, 129]
sSCR, sBIG = 46, 47
NA = opt("na", 0)
NUR = opt("nur", 2); NT1 = min(NA, opt("nt1", 99))
_u = list(range(14))
def take(n): return [_u.pop(0) for _ in range(min(n, len(_u)))]
UAW = take(NA); UR = take(NUR); UD = take(2); UE = take(3); UL = take(opt("nrl", 3)); UP = take(99)
RAWS = UAW + UR + UL
def UA(j): return 16*j
def w2slot(j):
    if j in UE: return (sSCR, 4096*UE.index(j), 254)
    if j in UAW + UR + UD: return (sSCR, 4096*(j & 1), 254)
    return (sBIG, 4096*(UL + UP).index(j), 252)
def w2dma(j):
    mb, mo, _ = w2slot(j)
    return dmag(vW2, W2, sW2E if j < 7 else sW2L, (j%7)*256*896, mb, mo, f"w2_{j}", sDM)
def w2raw(j):
    ch = [mk(f"buffer_load_dwordx4 {a_(UA(j)+4*q,4)}, v{vW2[q]}, {W2}, s81 offen offset:{1024*q}") for q in range(4)]
    ch[0] = mk(f"s_add_u32 s81, s{sW2E if j < 7 else sW2L}, {(j%7)*256*896}") + ch[0]
    return ch
def w2rd(j):
    _, mo, av = w2slot(j)
    if j in RAWS: out = [mk(f"ds_write_b128 v{131 if j in UL else 134}, {a_(UA(j)+4*q,4)} offset:{mo+1024*q}") for q in range(4)]
    else: out = [[WaitTag([f"w2_{j}"])]]
    for e in range(2):
        for mu in range(2):
            for u in range(2): out.append(mk(f"ds_read_b64_tr_b16 {a_(UA(j)+8*e+4*mu+2*u,2)}, v{av+mu} offset:{mo+2048*e+1024*u}"))
    return out
raw = flat([w2raw(j) for j in UR])
rawA = flat([w2raw(j) for j in UAW])
if opt("noid", 1): set2 = [mk(f"s_cmp_ge_u32 s{sRact}, 14\ns_cselect_b32 s26, 0, s26")] + set2
set2 += mk(f"v_add_u32 v128, {2*(7168-1024)}, v{vWO0}\nv_add_u32 v129, {3*(7168-1024)}, v{vWO0}")
set2b = [x for x in set2 if isinstance(x, Ins) and x.cls == 'valu' and x.defs[0][1] < 128]
set2b = [x for x in set2 if isinstance(x, list)] + set2b
set2a = [x for x in set2 if x not in set2b]
pro, gk = gemm_lds([(13, 1024*t, 1024*t + 256, (XF + 4*t, ACK, t == 0, False)) for t in range(28)], AH)
P.add(pro)
S = Sched(gk)
S.spread(wvl, 0, opt("wve", 20))
EARLY = opt("early", 0)
if EARLY:
    P.add(flat([x if isinstance(x, list) else [x] for x in fin + set2a])); fin = []
    wo_l = flat([dmag([vWO0, vWO1], WO, sQ, i*64*896, sXO, L_WO + 8192*i, "wo", sDM) for i in range(7)] + [dmag([vXRD0, vXRD1], X, sXRB, 0, sXO, L_XCH, "wo", sDM)])
    if EARLY == 2:
        S.spread([wo_l[2*i] + wo_l[2*i+1] for i in range(8)], 0, 28)
    else: S.spread([rawA.pop(0) for _ in range(min(len(rawA), opt("ne1", 8)))], 0, 28)
else: fin = fin + set2a
for k, ps in enumerate((L2A, L2B)):
    if 0 <= ps < 28: S.at(ps, l2t(W1, k, 248 + k))
S.spread(fin + flat([mk(f"v_or_b32 v{WPK+q}, v{WPK+q}, v{WPT+q}\nv_or_b32 v{WPQ+q}, v{WPQ+q}, v{WPT+8+q}") for q in range(8)]), 2, 26)
P.add(S.emit())
def phi_pre(acc, wp):
    q = Prog()
    for i in range(8): q.I(f"v_cvt_pk_bf16_f32 v{acc+i}, v{acc+2*i}, v{acc+2*i+1}")
    q.I(f"{MF} {v(PK,16)}, {v(wp,4)}, {v(acc,4)}, 0\n{MF} {v(PK,16)}, {v(wp+4,4)}, {v(acc+4,4)}, {v(PK,16)}")
    return q.items
stamp("k gemm done", "mp")
wql = [wqdma(k) for k in range(7)]
P.add(wql.pop(0))
P.add(phi_pre(ACK, WPK))
imw = flat([mk(f"ds_write_b128 v{vIMW}, {v(IMG+4*i,4)} offset:{L_IMG+16*i}") for i in range(3)]) + mk(f"ds_write_b64 v{vIMW}, {v(IMG+12,2)} offset:{L_IMG+48}")
smk = sprinkle(softmax(PK, TMP, IMG, True), [wql.pop(0) for _ in range(opt("nwq0", 3))], 10, opt("wqs", 40))
if EARLY: smk = sprinkle(smk, [rawA.pop(0) for _ in range(min(len(rawA), opt("ne2", 8)))], 5, 16)
WEAVE = opt("weave", 1)
pro, gv = gemm_lds([(11, L_WV + 1024*t, L_WV + 1024*t + 256, (XF + 4*t, ACV, t == 0, False)) for t in range(28)], AH)
S = Sched(gv)
if not WEAVE:
    P.add(smk)
    P.wait(*[f"wv{k}" for k in range(7)]); I("s_barrier")
    stamp("softmax k done", "p")
    P.add(pro)
    S.spread(imw, 2, 10)
else:
    smf = softmax(PK, TMP, IMG, 2)
    n0 = next(i for i, x in enumerate(smf) if x.op == "v_exp_f32")
    P.wait(*[f"wv{k}" for k in range(4)]); I("s_barrier")
    P.add(pro)
    P.add(smf[:n0])
    stamp("softmax k done", "p")
    S.spread(smf[n0:] + imw, 0, 28)
    S.at(15 - AH, [WaitTag(["wv4", "wv5", "wv6"])] + mk("s_barrier"), 1.0)
    wql = [wqdma(k) for k in range(1, 7)]
wo_l = flat([dmag([vWO0, vWO1], WO, sQ, i*64*896, sXO, L_WO + 8192*i, "wo", sDM) for i in range(7)] + [dmag([vXRD0, vXRD1], X, sXRB, 0, sXO, L_XCH, "wo", sDM)])
if EARLY == 2: wo_l = []
S.spread(wql, 0, opt('wqe', 14))
if EARLY: S.spread([rawA.pop(0) for _ in range(min(len(rawA), opt("ne3", 8)))], 0, 22)
if L2A >= 0 or L2N: touch = [x for x in touch if W1 not in x.text]
if L2N == 1: S.at(opt("l2p", 14), l2n(3))
if L2N == 2: S.at(opt("l2p", 14), l2n(1) + l2n(3))
tlb = []
if opt("tlb", 0) & 1: tlb += mk(f"s_mov_b64 exec, 1\nbuffer_load_dword v248, v6, {OUT}, s{sOUT} offen\ns_mov_b64 exec, -1")
if opt("tlb", 0) & 2: tlb += mk(f"v_lshlrev_b32 v249, 20, v1\ns_mov_b64 exec, 0xffff\nbuffer_load_dword v249, v249, {WS}, 0 offen offset:4092\ns_mov_b64 exec, -1")
if tlb: S.at(opt("tlbp", 13), tlb)
if opt("touch", 1) and TP == 0: S.at(15, touch)
for k, ps in enumerate((L2A, L2B)):
    if 200 <= ps < 228: S.at(ps - 200, l2t(W1, k, 248 + k))
S.spread([wo_l.pop(0) for _ in range(2*opt("nwo0", 0))], 17, 28)
P.add(S.emit())
for k in range(0, 16, 2): I(f"v_pk_mul_f32 {v(ACV+k,2)}, {v(ACV+k,2)}, v[250:251] op_sel:[0,1] op_sel_hi:[1,1]")
I(f"v_cndmask_b32 v{ACV+12}, v{ACV+12}, 1.0, {sHI}")
for i in range(8): I(f"v_cvt_pk_bf16_f32 v{IMG+16+i}, v{ACV+2*i}, v{ACV+2*i+1}")
for i in range(4, 6): I(f"ds_write_b128 v{vIMW}, {v(IMG+4*i,4)} offset:{L_IMG+16*i}")
P.wait("wq0", "wq1", "wq2", "wq3")
I("s_waitcnt lgkmcnt(0)\ns_barrier")
stamp("img written", "p")
KA = 144; KBv = 208; KD = 176
for k in range(4):
    for u in range(2):
        I(f"ds_read_b64_tr_b16 {v(KA+4*k+2*u,2)}, v{vKA} offset:{(32*k+4*u)*208}")
    for nu in range(2):
        for u in range(2):
            I(f"ds_read_b64_tr_b16 {v(KBv+8*k+4*nu+2*u,2)}, v{vKB} offset:{(32*k+4*u)*208+64+16*nu}")
proq, gq = gemm_lds([(11, L_WQ + 1024*t, L_WQ + 1024*t + 256, (XF + 4*t, ACV, t == 0, False)) for t in range(28)], AH)
for k in range(4):
    for nu in range(2):
        I(f"v_mfma_f32_16x16x32_bf16 {v(KD+4*nu,4)}, {v(KA+4*k,4)}, {v(KBv+8*k+4*nu,4)}, {'0' if k == 0 else v(KD+4*nu,4)}")
P.add(proq[:8])
for i in range(4): I(f"v_cvt_pk_bf16_f32 v{KD+8+i}, v{KD+2*i}, v{KD+2*i+1}")
I(f"buffer_store_dwordx4 {v(KD+8,4)}, v2, {WS}, s{sPST} offen sc1")
I(f"v_xor_b32 v10, v{KD+8}, v5")
I(f"buffer_store_dword v10, v4, {WS}, s{sPCK} offen sc1")
if GATE & 1: P.add(flag_store(16))
P.add(proq[8:])
stamp("partial stored", "mp")
S = Sched(gq)
bgA = wo_l + rawA
nq = min(len(bgA), opt("nq", 16))
S.spread(bgA[:nq], 0, 28)
S.spread(set2b, 2, 18)
G0 = gate("g0", vPO, vPF)
if GATE & 1: S.at(opt("g0", 14), G0.load(0))
S.at(15 - AH, [WaitTag(["wq4", "wq5", "wq6"])] + mk("s_barrier"), 1.0)
P.add(S.emit())
stamp("q gemm done", "p")
G = 16; GC = 80; SA = 96
FP = Fetch("fp", [([f"s_add_u32 s{sCt}, s{sP}, {5120*T}\nbuffer_load_dwordx4 {v(G+4*T,4)}, v{vFPD}, {WS}, s{sCt} offen sc1\nbuffer_load_dword v{GC+T}, v{vFPC}, {WS}, s{sCt} offen sc1"],
                   [G+4*T, GC+T]) for T in range(16)])
P.add(phi_pre(ACV, WPQ))
if GATE & 1: P.add(G0.check(0, 0))
I("s_barrier")
PQ = 208
smq = softmax(PK, TMP, PQ, True); f0 = opt("fp0", 80)
P.add(sprinkle(smq[:f0], bgA[nq:], 0, opt("as", 8)))
P.add(sprinkle(smq[f0:], [FP.load(T) for T in range(16)], 0, opt("fpstep", 3)))
stamp("softmax q done", "p")
w1_l = flat([dmag([12, 13, 14, 15], W1, sW1B, i*64*3584, sW1M, 16384*i, "w1", sDM) for i in range(7)])
def fpb(b):
    t = []
    for k, T in enumerate(range(4*b, 4*b+4)):
        t.append(f"v_bitop3_b32 v{10 if k == 0 else 9}, v{G+4*T}, v{GC+T}, v5 {X3}" + ("" if k == 0 else "\nv_or_b32 v10, v10, v9"))
    return "\n".join(t) + "\nv_cmp_ne_u32 vcc, 0, v10"
RI = TAIL.I if (opt("ool", 7) & 1) else I
if not (opt("ool", 7) & 1): I("s_branch L_fp_go")
RI("L_fp_retry:" + ("\ns_add_u32 s80, s80, 1" if DIAG else ""), unc=True)
for b in range(4):
    RI(fpb(b) + f"\ns_cbranch_vccz L_fp_k{b}\n" + "\n".join(FP.pieces[T][0][0] for T in range(4*b, 4*b+4)) + f"\nL_fp_k{b}:", unc=True)
RI(GUARD, unc=True)
if (opt("ool", 7) & 1): RI("s_branch L_fp_go", unc=True)
I("L_fp_go:")
I(fpb(0) + "\ns_cbranch_vccnz L_fp_retry")
S = Sched([mk(f"{MF} {v(SA,16)}, a[220:223], {v(G+4*T,4)}, {'0' if T == 0 else v(SA,16)}") for T in range(16)])
for b in range(1, 4): S.spread(mk(fpb(b) + "\ns_cbranch_vccnz L_fp_retry"), 4*b - 3, 4*b)
S.spread([w1_l.pop(0) for _ in range(opt("nw1a", 2))], 12, 16)
P.add(S.emit())
I(f"v_add_u32 v9, {L_KVX}, v{vFPD}")
for i in range(4): I(f"v_cvt_pk_bf16_f32 v{SA+8+i}, v{SA+2*i}, v{SA+2*i+1}")
I(f"ds_write_b128 v9, {v(SA+8,4)}\ns_waitcnt lgkmcnt(0)\ns_barrier")
stamp("kv summed", "mp")
KVA = 32; OD = 48
for q in range(7): I(f"ds_read_b64 {v(KVA+2*q,2)}, v{vKVX} offset:{512*q}")
P.add(w1_l.pop(0))
for s in range(3):
    I(f"{MF} {v(OD,16)}, {v(KVA+4*s,4)}, {v(PQ+4*s,4)}, {'0' if s == 0 else v(OD,16)}")
    if s == 1: P.add(w1_l.pop(0))
I(f"v_mfma_f32_32x32x8_bf16 {v(OD,16)}, {v(KVA+12,2)}, {v(PQ+12,2)}, {v(OD,16)}")
I(f"""s_lshl_b32 s{sP}, s{sTILE}, 15
s_lshr_b32 s{sB}, s{sW}, 1
s_lshl_b32 s{sB}, s{sB}, 14
s_add_u32 s{sP}, s{sP}, s{sB}
s_add_u32 s{sP}, s{sP}, {WS_O}
s_add_u32 s{sA}, s{sW1M}, {L_XCH}
v_add_u32 v132, s{sA}, v2
v_xor_b32 v133, 8192, v132
v_xor_b32 v9, 64, v{vWOR}
v_and_b32 v7, 31, v1
v_mul_u32_u24 v7, 896, v7
v_add_f32 v{OD+14}, 0x358637bd, v{OD+14}
v_rcp_f32 v{OD+14}, v{OD+14}
v_lshl_add_u32 v7, v3, 4, v7""")
for k in range(0, 14, 2): I(f"v_pk_mul_f32 {v(OD+k,2)}, {v(OD+k,2)}, {v(OD+14,2)} op_sel_hi:[1,0]")
for k in range(4): I(f"v_cvt_pk_bf16_f32 v{64+k}, v{OD+2*k}, v{OD+2*k+1}")
I(f"buffer_store_dwordx4 v[64:67], v2, {WS}, s{sOST} offen sc1")
for k in range(4, 7): I(f"v_cvt_pk_bf16_f32 v{64+k}, v{OD+2*k}, v{OD+2*k+1}")
I(f"""v_bitop3_b32 v71, v64, v5, s{sMASK} bitop3:0x28
v_and_b32 v6, s{sMASK}, v5
buffer_store_dwordx4 v[68:71], v2, {WS}, s{sOST} offen offset:1024 sc1""")
if GATE & 2: P.add(flag_store(7))
stamp("o stored", "mo")
P.wait("wo")
I(f"s_cmp_ge_u32 s{sRact}, 14\ns_cbranch_scc1 L_idle\ns_barrier")
wor = []
for s in range(16):
    hh, e = s >> 1, s & 1
    for k, av in ((0, vWOR), (1, 9)):
        for u in range(2):
            wor += mk(f"ds_read_b64_tr_b16 {a_(128+8*s+4*k+2*u,2)}, v{av} offset:{(28*hh+8*e+4*u)*128}")
XR = 224
xrr = []
for i in range(4): xrr += mk((f"v_xor_b32 v10, {16*i}, v{vXRR}\n" if i else "") + f"ds_read_b64 {v(XR+2*i,2)}, v{10 if i else vXRR}")
P.add(xrr)
G1 = gate("g1", vPO, vPF)
nb_ = min(opt("nw1b", 12), len(w1_l) - 8)
wor = sprinkle(wor, [w1_l.pop(0) for _ in range(nb_)], 0, opt("w1bs", 5))
if GATE & 2: wor = sprinkle(wor, [G1.load(0)], opt("g1", 40), 1)
P.add(wor)
OB = 16
FO = Fetch("fo", [([f"s_add_u32 s{sCt}, s{sP}, {2048*hh}\nbuffer_load_dwordx4 {v(OB+8*hh,4)}, v2, {WS}, s{sCt} offen sc1\nbuffer_load_dwordx4 {v(OB+8*hh+4,4)}, v2, {WS}, s{sCt} offen offset:1024 sc1"],
                   [OB+8*hh, OB+8*hh+7]) for hh in range(8)], masked=True, nre=opt('reo', 2))
stamp("pre o fetch", "o")
AO, AT = 80, 96
set3 = mk(f"""s_mul_i32 s{sSCR}, s{sW}, 12288
s_mul_i32 s{sBIG}, s{sW}, 28672
v_add_u32 v131, s{sBIG}, v2
s_lshl_b32 s{sB}, s{sC}, 1
s_lshr_b32 s{sD}, s{sW}, 1
s_add_u32 s{sB}, s{sB}, s{sD}
s_mul_i32 s{sA}, s{sTILE}, 14
s_add_u32 s{sB}, s{sB}, s{sA}
s_mul_i32 s{sPST}, s{sB}, 2560
s_add_u32 s{sPST}, s{sPST}, {WS_H}
s_lshr_b32 s48, s{sW}, 1
s_nop 0
v_bfe_u32 v9, v1, 2, 2
v_lshl_add_u32 v240, v3, 2, v9
v_lshlrev_b32 v254, 7, v240
v_lshlrev_b32 v240, 8, v240
v_xor_b32 v9, s{sW}, v9
v_lshl_add_u32 v240, v9, 6, v240
v_bfe_u32 v9, v1, 4, 1
v_lshlrev_b32 v9, 5, v9
v_lshl_add_u32 v9, v8, 3, v9
v_add_u32 v240, v240, v9
v_add_u32 v254, v254, v9
v_bfe_u32 v9, v1, 3, 1
v_xor_b32 v9, s48, v9
v_lshl_add_u32 v254, v9, 6, v254
s_add_u32 s{sSCR}, s{sSCR}, {L_SCR}
v_add_u32 v252, s{sBIG}, v254
v_xor_b32 v253, 64, v252
v_add_u32 v254, s{sSCR}, v254
v_add_u32 v134, s{sSCR}, v2
v_xor_b32 v255, 64, v254
v_xor_b32 v241, 64, v240
v_xor_b32 v242, 128, v240
v_xor_b32 v243, 192, v240""") + flat([mk(f"v_add_u32 v{244+m}, 57344, v{240+m}") for m in range(4)])
pre2 = []
for i in range(8): pre2 += mk(f"v_lshlrev_b32 v{112+2*i}, 16, v{XR+i}\nv_and_b32 v{113+2*i}, s{sHIM}, v{XR+i}")
for s in range(1, 16, 2): pre2 += mk(f"v_accvgpr_write_b32 a{128+8*s+3}, 0\nv_accvgpr_write_b32 a{128+8*s+7}, 0")
if GATE & 2:
    P.add(pre2); P.add(G1.check(0, 0))
    stamp("gate1", "o")
    for hh in range(8): P.add(FO.load(hh))
else:
    P.add(pre2[16:]); P.add(set3)
    I("s_waitcnt lgkmcnt(0)\ns_barrier")
    P.add(sprinkle(flat(flat([w2rd(j) for j in UAW[:NT1]])), [w1_l.pop(0) for _ in range(min(len(w1_l), opt("nw1s", 4)))], 0, 8))
    stamp("shadow done", "o")
    P.add(sprinkle(pre2[:16], [FO.load(hh) for hh in range(8)], 0, 2))
I("s_waitcnt lgkmcnt(0)\ns_barrier")
stamp("fo issued", "o")
g2 = []
for s in range(16):
    for k, acc in ((1, AT), (0, AO)):
        c = ("0" if k else v(112,16)) if s == 0 else v(acc,16)
        g2.append(mk(f"{MF} {v(acc,16)}, {a_(128+8*s+4*k,4)}, {v(OB+4*s,4)}, {c}"))

P.add(FO.check(0, 7))
stamp("fo0", "o")
S = Sched(g2)
for hh in range(1, 8): S.spread(FO.checkc(hh, 7), 4*hh - 3, 4*hh)
S.spread(w1_l + [raw.pop(0) for _ in range(min(len(raw), opt("rawb", 4)))], 0, 32)
P.add(S.emit())
stamp("p2 gemm done", "o")
for i in range(4): I(f"ds_write_b128 v132, {v(AT+4*i,4)} offset:{1024*i}")
I("v_mov_b32 v112, 0\nv_mov_b32 v113, 0\ns_waitcnt lgkmcnt(0)\ns_barrier")
for i in range(4): I(f"ds_read_b128 {v(AT+4*i,4)}, v133 offset:{1024*i}")
HR = XR
for k in range(0, 8, 2): I(f"v_pk_add_f32 {v(AO+k,2)}, {v(AO+k,2)}, {v(AT+k,2)}")
for i in range(4): I(f"v_cvt_pk_bf16_f32 v{HR+i}, v{AO+2*i}, v{AO+2*i+1}")
I(f"buffer_store_dwordx4 {v(HR,4)}, v2, {WS}, s{sPST} offen sc1")
for k in range(8, 16, 2): I(f"v_pk_add_f32 {v(AO+k,2)}, {v(AO+k,2)}, {v(AT+k,2)}")
for i in range(4, 8): I(f"v_cvt_pk_bf16_f32 v{HR+i}, v{AO+2*i}, v{AO+2*i+1}")
I(f"buffer_store_dwordx4 {v(HR+4,4)}, v2, {WS}, s{sPST} offen offset:1024 sc1")
for i in range(8): I(f"v_dot2c_f32_bf16 v112, s{sONES}, v{HR+i}\nv_dot2c_f32_bf16 v113, v{HR+i}, v{HR+i}")
I(f"""v_bitop3_b32 v10, v{HR}, v{HR+4}, v5 {X3}
v_permlane32_swap_b32 v112, v113
v_add_f32 v112, v112, v113
buffer_store_dword v112, v4, {WS}, s{sPST} offen offset:2048 sc1
v_xor_b32 v113, v10, v112
buffer_store_dword v113, v4, {WS}, s{sPST} offen offset:2304 sc1""")
def selft(sreg, nl): return mk(f"s_mov_b64 exec, {(1 << nl) - 1}\nbuffer_load_dword v135, v134, {WS}, s{sreg} offen sc1\ns_mov_b64 exec, -1")
SELF = opt("self", 0)
if SELF & 1: P.add(selft(sPST, 20))
if GATE & 4: P.add(flag_store(14))
stamp("h stored", "moh")
HB = 16; ST = 192
ACC = [144, 160, 176, 192]; AUG = 232
set4 = mk(f"""s_lshl_b32 s{sB}, s{sT3}, 2
s_add_u32 s{sB}, s{sB}, s{sW}
s_mul_i32 s{sP}, s{sB}, {14*2560}
s_add_u32 s{sP}, s{sP}, {WS_H}
s_mul_i32 s{sA}, s{sB}, 56
s_lshl_b32 s{sD}, s{sR}, 2
s_add_u32 s{sA}, s{sA}, s{sD}
s_mul_i32 s{sQ}, s{sA}, 2304
s_add_u32 s{sQ}, s{sQ}, {WS_H1}
v_lshlrev_b32 v13, 3, v1
s_lshl_b32 s{sA}, s{sW}, 9
s_add_u32 s{sA}, s{sA}, {L_AUG}
v_add_u32 v13, s{sA}, v13
v_mov_b32 v222, 0""")
FH = Fetch("fh", [([f"s_add_u32 s{sCt}, s{sP}, {2560*p}\nbuffer_load_dwordx4 {v(HB+8*p,4)}, v2, {WS}, s{sCt} offen sc1\nbuffer_load_dwordx4 {v(HB+8*p+4,4)}, v2, {WS}, s{sCt} offen offset:1024 sc1\n"
                    f"buffer_load_dword v{ST+2*p}, v4, {WS}, s{sCt} offen offset:2048 sc1\nbuffer_load_dword v{ST+2*p+1}, v4, {WS}, s{sCt} offen offset:2304 sc1"],
                   [HB+8*p, HB+8*p+4, ST+2*p, ST+2*p+1]) for p in range(14)], nre=opt('reh', 2))
for i in range(4): I(f"v_mov_b32 v{AUG+i}, s{sONES}")
P.wait("w1"); I("s_barrier")
stamp("w1 landed", "h")
if opt("zz", 0): I(f"s_sleep {opt('zz', 0)}")
def w1a(t, k): return (240 + k + (4 if t >= 14 else 0), (t % 14) * 4096, (t % 14) * 4096 + 2048)
st3 = [w1a(t, 0) + ((AUG, ACC[2], t == 0, True),) for t in range(28)]
TWO = opt("two", 1); N1 = 2 if TWO else 3
for t in range(28):
    for k in range(N1): st3.append(w1a(t, k) + ((HB + 4*t, ACC[k], t == 0, False),))
for t in range(28):
    for k in range(N1, 4): st3.append(w1a(t, k) + ((HB + 4*t, ACC[k], t == 0, False),))
pro, g3 = gemm_lds(st3, AH)
P.add(pro)
S3 = Sched(g3)
S3.spread(set4, 0, 8)
S3.spread(raw + w2dma(UD[0]) + w2dma(UD[1]), 0, opt("c0e", 20)); raw = []
NH0 = opt("nh0", 4); H0 = opt("h0", 24)
G2 = gate("g2", vPO, vPF)
if GATE & 4:
    S3.at(opt("g2", 12), G2.load(0), 0.9)
    S3.at(27, G2.check(0, 0) + stampi("gate2", "h") + flat([FH.load(p) for p in range(NH0)]), 0.5)
else: S3.spread(flat([FH.loadc(p) for p in range(NH0)]), H0, 27)
cs = ACC[2]
csx = mk(f"""v_cvt_pk_bf16_f32 v{AUG}, v{cs}, v{cs}
v_lshlrev_b32 v{AUG+1}, 16, v{AUG}
v_sub_f32 v{AUG+1}, v{cs}, v{AUG+1}
v_cvt_pk_bf16_f32 v{AUG}, v{cs}, v{AUG+1}
v_and_b32 v{AUG+1}, 0xffff, v{AUG}
v_cndmask_b32 v{AUG}, v{AUG}, 0, {sHI}
v_cndmask_b32 v{AUG+1}, v{AUG+1}, 0, {sHI}
ds_write_b64 v13, {v(AUG,2)}""")
S3.at(27, stampi("colsum done", "h") + csx + FH.check(0, NH0 - 1) + stampi("fh0", "h"), 1.0)
B0 = 28
for p in range(14):
    b = B0 + 2*N1*p
    if p + NH0 < 14:
        for k_, c_ in enumerate(FH.loadc(p + NH0)): S3.at(b + ((0, 2, 1, 3) if TWO else (0, 2, 4, 4))[k_], c_, 0.2)
    S3.at(b, mk(f"v_add_f32 v222, v222, v{ST+2*p}"), 0.0)
    if p + 1 < 14: S3.spread(FH.checkc(p + 1, min(13, p + NH0 - 1)), b + 1, b + 2*N1)
    if p in (3, 7, 11): S3.at(b + 2*N1 - 1, stampi(f"fh{p+1}", "h"), 1.0)
S3.at(B0 + 14, mk("s_barrier") + flat([mk(f"v_xor_b32 v9, {512*k}, v13\nds_read_b64 {v(AUG+2*k,2)}, v9") for k in range(1, 4)]), 0.0)
mid = mk(f"""v_mul_f32 v220, {fhex(1/448)}, v222
v_mov_b32 v221, v220
s_nop 0
v_permlane32_swap_b32 v220, v221
v_fma_f32 v221, -v220, v220, v221
v_max_f32 v221, 0, v221
v_add_f32 v221, 0x3727c5ac, v221
v_rsq_f32 v251, v221
v_cvt_pk_bf16_f32 v222, -v220, -v220
v_lshlrev_b32 v9, 16, v222
v_sub_f32 v9, -v220, v9
v_cvt_pk_bf16_f32 v223, v9, 0
v_mul_f32 v250, v221, v251
v_mul_f32 v251, 0xbfb8aa3b, v251
v_cndmask_b32 v222, v222, 0, {sHI}
v_cndmask_b32 v223, v223, 0, {sHI}""")
S3.spread(mid, *((B0 + 53, B0 + 59) if TWO else (B0 + 79, B0 + 84)))
def aug(k): return mk(f"v_mfma_f32_32x32x8_bf16 {v(ACC[k],16)}, {v(AUG+2*k,2)}, v[222:223], {v(ACC[k],16)}")
SLT = 132
def silu(k, pk):
    q = Prog(); a = ACC[k]; t = 208
    q.I(f"s_xor_b32 s50, s{sW}, {k}\ns_mul_i32 s50, s50, 2304\ns_add_u32 s50, s50, s{sQ}")
    for half in range(2):
        b = a + 8 * half
        if pk:
            for j in range(0, 8, 2): q.I(f"v_pk_mul_f32 {v(t+j,2)}, {v(b+j,2)}, v[250:251] op_sel:[0,1] op_sel_hi:[1,1]")
        else:
            for j in range(8): q.I(f"v_mul_f32 v{t+j}, v{b+j}, v251")
        for j in range(8): q.I(f"v_exp_f32 v{t+j}, v{t+j}")
        if pk:
            for j in range(0, 8, 2): q.I(f"v_pk_fma_f32 {v(t+j,2)}, {v(t+j,2)}, v[250:251], v[250:251] op_sel_hi:[1,0,0]")
        else:
            for j in range(8): q.I(f"v_fma_f32 v{t+j}, v{t+j}, v250, v250")
        for j in range(8): q.I(f"v_rcp_f32 v{t+j}, v{t+j}")
        if pk:
            for j in range(0, 8, 2): q.I(f"v_pk_mul_f32 {v(b+j,2)}, {v(b+j,2)}, {v(t+j,2)}")
        else:
            for j in range(8): q.I(f"v_mul_f32 v{b+j}, v{b+j}, v{t+j}")
        for j in range(4): q.I(f"v_cvt_pk_bf16_f32 v{b+j}, v{b+2*j}, v{b+2*j+1}")
        q.I(f"buffer_store_dwordx4 {v(b,4)}, v2, {WS}, s50 offen offset:{1024*half} sc1")
    q.I(f"v_bitop3_b32 v216, v5, v{a}, v{a+8} {X3}")
    q.I(f"buffer_store_dword v216, v4, {WS}, s50 offen offset:2048 sc1")
    return q.items + ([selft(50, 18)] if SELF & 2 and not pk else [])
E0 = B0 + 28*N1
assert not raw
if TWO:
    S3.spread(flat([w2rd(j) for j in UD + UR + UAW[NT1:]]), B0 + 8, B0 + 42)
    S3.at(B0 + 34, mk("s_barrier"), 0.0)
    S3.spread(flat([w2dma(j) for j in UE]), B0 + 48, E0 + opt("wde", 12))
else:
    S3.spread(flat([w2rd(j) for j in UD + UR + UAW[NT1:]]), B0 + 22, B0 + 58)
    S3.at(B0 + 44, mk("s_barrier"), 0.0)
    S3.spread(flat([w2dma(j) for j in UE]), B0 + 64, E0)
B4 = 16
CKR = [240, 241, 244, 245, 248, 249, 217, 218, 219, 130, 242, 246, 243, 247]
C4 = [[a_(224,16), a_(240,16)], [v(ACC[0],16), v(ACC[1],16)]]
set5 = mk(f"""s_mul_i32 s{sA}, s{sTILE}, 56
s_xor_b32 s{sB}, s{sTILE}, 1
s_mul_i32 s{sB}, s{sB}, 56
s_add_u32 s51, s{sB}, s44
s_add_u32 s52, s{sA}, s44
s_add_u32 s53, s{sB}, s45
s_add_u32 s54, s{sA}, s45""")
for k in range(4):
    set5 += mk(f"s_mul_i32 s{51+k}, s{51+k}, 2304\ns_add_u32 s{51+k}, s{51+k}, {WS_H1}")
S3.spread(set5, B0 + 42, B0 + 52)
def piece4(n):
    st, i = n // 7, n % 7; r = B4 + 8 * (n % 14); c = CKR[n % 14]
    return ([f"s_add_u32 s{sCt}, s{51+st}, {8*2304*i}\nbuffer_load_dwordx4 {v(r,4)}, v2, {WS}, s{sCt} offen sc1\nbuffer_load_dwordx4 {v(r+4,4)}, v2, {WS}, s{sCt} offen offset:1024 sc1\n"
             f"buffer_load_dword v{c}, v4, {WS}, s{sCt} offen offset:2048 sc1"], [r, r+4, c])
F4 = Fetch("f4", [piece4(n) for n in range(28)], nre=opt("re4", 3))
ND = opt("nd", 4)
rawl = flat([w2raw(j) for j in UL])
nr0 = min(len(rawl), opt("nr0", 4))
if TWO:
    S3.at(E0 - 1, stampi("p3 pass1 done", "mh"), 1.0)
    g3[E0 + 3] = aug(0) + g3[E0 + 3]; g3[E0 + 4] = aug(1) + g3[E0 + 4]
    S3.spread(silu(0, False) + [stampi("silu0 done", "e")], E0 + 5, E0 + opt("s0e", 28))
    S3.spread(silu(1, False), E0 + opt("s0e", 28), E0 + opt("s1e", 52))
    S3.spread(rawl, E0 + opt("wde", 12), E0 + opt("rle", 36))
    DEEP = opt("deep", 0)
    if DEEP:
        rng = [(opt("a0", -18), opt("b0", 4)), (opt("a1", 6), opt("b1", 24)), (opt("a2", 26), opt("b2", 50)), (opt("a3", 50), opt("b3", 78))]
        f4pos = []
        for n in range(28):
            a, b = rng[n // 7]
            for k_, c_ in enumerate(F4.loadc(n)):
                pos = a + (b - a) * ((n % 7) + (0, 0.45, 0.9)[k_]) / 7
                lo = (4*n + 4 - 56) if n < 14 else 4*(n - 14) + 4
                pos = max(pos, lo + 0.01*k_); assert pos < 4*n - 3 or n == 0, (n, pos)
                f4pos.append((pos, c_))
        for i_ in range(1, len(f4pos)): assert f4pos[i_][0] >= f4pos[i_-1][0], i_
        import math
        for pos, c_ in f4pos:
            if pos < 0: S3.at(E0 + 56 + math.floor(pos), c_, pos - math.floor(pos))
    else: S3.spread(flat([F4.loadc(n) for n in range(ND)]), E0 + opt("f4s", 42), E0 + 56)
    P.add(S3.emit())
    P.add(aug(2) + aug(3))
else:
    S3.at(E0 - 1, stampi("p3 pass1 done", "mh") + aug(0) + aug(1) + aug(2) + sprinkle(silu(0, True), rawl[:nr0], 3, 12) + stampi("silu0 done", "e"), 1.0)
    S3.spread(silu(1, False), E0, E0 + 26)
    S3.spread(rawl[nr0:], E0, E0 + 14)
    S3.spread(flat([F4.loadc(n) for n in range(ND)]), E0 + opt("f4s", 16), E0 + 28)
    P.add(S3.emit())
    P.add(aug(3))
I("s_barrier")
stamp("p3 gemm done", "me")
g4 = []
for n in range(28):
    st, i = n // 7, n % 7; hf, par = st >> 1, st & 1
    for e in range(2):
        for mu in range(2):
            zero = hf == 0 and i == 0 and e == 0 and not (par == 1 and mu == 0)
            g4.append(mk(f"{MF} {C4[par][mu]}, {a_(UA(7*hf+i)+8*e+4*mu,4)}, {v(B4+8*(n%14)+4*e,4)}, {'0' if zero else C4[par][mu]}"))
P.add(F4.check(0, ND - 1))
S = Sched(g4)
for n in range(28):
    if n + ND < 28 and not (TWO and DEEP):
        for k_, c_ in enumerate(F4.loadc(n + ND)): S.at(4*n + (0, 2, 1)[k_], c_, 0.2)
    if n + 1 < 28: S.spread(F4.checkc(n + 1, min(27, n + ND)), 4*n + 2, 4*n + 4)
    if n in (6, 13, 20): S.at(4*n + 3, stampi(f"stage{n//7} done", "e"), 1.0)
unp = []
for i in range(8): unp += mk(f"v_lshlrev_b32 v{ACC[0]+2*i}, 16, v{HR+i}\nv_and_b32 v{ACC[0]+1+2*i}, s{sHIM}, v{HR+i}")
if TWO and DEEP:
    for pos, c_ in f4pos:
        if pos >= 0: S.at(int(pos), c_, pos - int(pos))
S2E, S3E = opt("s2e", 18), opt("s3e", 44)
S.spread(silu(2, False), 0, S2E)
S.spread(unp, 22, 27)
S.spread(silu(3, False), S2E, S3E)
S.spread(flat([w2rd(j) for j in UE if j < 7]), 0, 14)
S.spread(flat([w2dma(j) for j in UP]), opt("w2a", 2), opt("w2b", 44))
for j in [x for x in UE + UL + UP if x >= 7]: S.spread(w2rd(j), 44 + 5*(j-7), 49 + 5*(j-7))
S.at(82, mk(f"""s_lshl_b32 s{sA}, s{sW}, 14
v_add_u32 v13, s{sA}, v2
v_xor_b32 v9, 16384, v13
v_xor_b32 v12, 32768, v13
v_xor_b32 v14, 49152, v13
s_waitcnt lgkmcnt(0)
s_barrier"""))
S.spread([mk(f"ds_write_b128 v{9 if mu == 0 else 14}, {a_(224+16*mu+4*i,4)} offset:{4096*(2*mu+1)+1024*i}") for mu in range(2) for i in range(4)], 87, 99)
S.at(100, mk("s_waitcnt lgkmcnt(0)\ns_barrier"), 0.0)
S.spread([mk(f"ds_read_b128 {v(ACC[2+mu]+4*i,4)}, v13 offset:{4096*(2*mu+1)+1024*i}") for mu in range(2) for i in range(4)], 100, 104)
S.spread([mk(f"v_add_f32 v{ACC[2]+k}, v{ACC[2]+k}, v{ACC[3]+k}") for k in range(16)], 107, 112)
P.add(S.emit())
stamp("p4 gemm done", "me")
for i in range(4): I(f"ds_write_b128 v12, {v(ACC[1]+4*i,4)} offset:{8192+1024*i}")
if opt("cout", 0):
    I(f"""v_lshlrev_b32 v16, 3, v3
v_sub_u32 v16, v{vXRR}, v16
v_lshlrev_b32 v17, 4, v3
v_xor_b32 v16, v16, v17
v_xor_b32 v17, 32, v16
s_add_u32 s{sA}, s{sXO}, {L_XCH}
v_add_u32 v18, s{sA}, v2""")
I("s_waitcnt lgkmcnt(0)\ns_barrier")
for i in range(4): I(f"ds_read_b128 {v(ACC[3]+4*i,4)}, v13 offset:{8192+1024*i}")
for k in range(0, 16, 2): I(f"v_pk_add_f32 {v(ACC[0]+k,2)}, {v(ACC[0]+k,2)}, {v(ACC[2]+k,2)}")
for hf in range(2):
    b = ACC[0] + 8*hf
    for k in range(0, 8, 2): I(f"v_pk_add_f32 {v(b+k,2)}, {v(b+k,2)}, {v(ACC[3]+8*hf+k,2)}")
    for i in range(4): I(f"v_cvt_pk_bf16_f32 v{96+4*hf+i}, v{b+2*i}, v{b+2*i+1}")
    if not opt("cout", 0):
        I(f"v_permlane32_swap_b32 v{96+4*hf}, v{98+4*hf}\nv_permlane32_swap_b32 v{97+4*hf}, v{99+4*hf}\nbuffer_store_dwordx4 {v(96+4*hf,4)}, v7, {OUT}, s{sOUT} offen offset:{32*hf} {OPT.get('ofl', '')}")
    else:
        I(f"v_permlane32_swap_b32 v{96+4*hf}, v{98+4*hf}\nv_permlane32_swap_b32 v{97+4*hf}, v{99+4*hf}\nds_write_b128 v{16+hf}, {v(96+4*hf,4)}")
if opt("cout", 0):
    I("s_waitcnt lgkmcnt(0)\ns_barrier")
    for i in range(2): I(f"ds_read_b128 {v(104+4*i,4)}, v18 offset:{1024*i}")
    for i in range(2): I(f"buffer_store_dwordx4 {v(104+4*i,4)}, v{vXRD0+i}, {OUT}, s{sXRB} offen offset:{1024*i} {OPT.get('ofl', '')}")
stamp("end", "mpohez")
I(f"""s_cmp_lg_u32 s2, 0
s_cbranch_scc1 L_ex0
v_mov_b32 v9, 0""")
I(f"buffer_store_dword v5, v9, {WS}, 0 offen sc1", unc=True)
I("L_ex0:")
if opt("enc", 0):
    mode = opt("enc", 0)
    if mode <= 4:
        I(f"s_bfe_u32 s{sA}, s80, {hex(0x80000 | (8*(mode-1)))}\ns_min_u32 s{sA}, s{sA}, 1\ns_mul_i32 s{sA}, s{sA}, 2000", unc=True)
    else:
        I(f"s_waitcnt lgkmcnt(0)\ns_sub_u32 s{sA}, s{sSTAMP+2}, s78\ns_mul_i32 s{sA}, s{sA}, 4", unc=True)
    I(f"""s_memrealtime s[40:41]
s_waitcnt lgkmcnt(0)
L_enc:
s_memrealtime s[42:43]
s_waitcnt lgkmcnt(0)
s_sub_u32 s42, s42, s40
s_cmp_lt_u32 s42, s{sA}
s_cbranch_scc1 L_enc
s_branch L_end""", unc=True)
if opt("dbg", 0):
    I(f"""s_cmp_lg_u32 s{sW}, 0
s_cbranch_scc1 L_end
s_load_dwordx2 s[40:41], s[0:1], 64
s_mov_b32 s42, 256
s_mov_b32 s43, 0x20000
s_mov_b64 exec, 1
v_mov_b32 v9, 0
s_waitcnt lgkmcnt(0)""", unc=True)
    for k in range(nstamp[0]):
        I(f"s_sub_u32 s{sA}, s{sSTAMP+2*k}, s78\nv_mov_b32 v10, s{sA}\nbuffer_atomic_umax v10, v9, s[40:43], 0 offen offset:{4*k}\ns_nop 1", unc=True)
    I(f"""v_mov_b32 v10, s78
buffer_atomic_umax v10, v9, s[40:43], 0 offen offset:32
s_not_b32 s{sA}, s78
v_mov_b32 v11, s{sA}
buffer_atomic_umax v11, v9, s[40:43], 0 offen offset:36
v_mov_b32 v12, s{sSTAMP+2*(nstamp[0]-1)}
buffer_atomic_umax v12, v9, s[40:43], 0 offen offset:40
v_mov_b32 v13, s80
buffer_atomic_add v13, v9, s[40:43], 0 offen offset:44
s_branch L_end""", unc=True)
I("L_exit:")
if DIAG and not opt("dbg", 0):
    I(f"s_cmp_lg_u32 s{sW}, {opt('dw', 0)}\ns_cbranch_scc1 L_end\ns_lshl_b32 s{sA}, s2, 7\ns_add_u32 s{sA}, s{sA}, {WS_DIAG}\nv_mov_b32 v9, 0", unc=True)
    for k in range(nstamp[0]):
        I(f"s_waitcnt lgkmcnt(0)\nv_mov_b32 v10, s{sSTAMP+2*k}\nbuffer_store_dword v10, v9, {WS}, s{sA} offen offset:{4*k}", unc=True)
    if SEL == ["z"]: I(f"v_mov_b32 v10, s78\nbuffer_store_dword v10, v9, {WS}, s{sA} offen offset:120", unc=True)
    I(f"v_mov_b32 v10, s80\nbuffer_store_dword v10, v9, {WS}, s{sA} offen offset:124", unc=True)
I("L_end:\ns_endpgm")
I(f"""L_idle:
s_and_b32 s{sA}, s{sT2}, 1
s_lshl_b32 s{sA}, s{sA}, 1
s_add_u32 s{sA}, s{sA}, s{sRact}
s_sub_u32 s{sA}, s{sA}, 14
s_lshl_b32 s{sA}, s{sA}, 2
s_add_u32 s{sA}, s{sA}, s{sW}
s_lshl_b32 s{sA}, s{sA}, 13
v_lshlrev_b32 v9, 7, v1
s_lshr_b32 s{sD}, s{sT2}, 1
s_mul_i32 s{sD}, s{sD}, {8*56*2304}
s_add_u32 s{sD}, s{sD}, {WS_H1}
s_add_u32 s{sD}, s{sD}, s{sA}
s_mov_b32 s{sB}, {opt("idle2", 0)}
s_cmp_eq_u32 s{sB}, 0
s_cbranch_scc1 L_idle3
L_idle2:
buffer_load_dword v11, v9, {WS}, s{sD} offen {OPT.get("i2f", "")}
s_add_u32 s{sD}, s{sD}, {16*8192}
s_sub_u32 s{sB}, s{sB}, 1
s_cmp_lg_u32 s{sB}, 0
s_cbranch_scc1 L_idle2
L_idle3:
s_mov_b32 s{sB}, {opt("idle", 0)}
s_cmp_eq_u32 s{sB}, 0
s_cbranch_scc1 L_exit
L_idle1:
buffer_load_dword v11, v9, {W2}, s{sA} offen
s_add_u32 s{sA}, s{sA}, {16*8192}
s_sub_u32 s{sB}, s{sB}, 1
s_cmp_lg_u32 s{sB}, 0
s_cbranch_scc1 L_idle1
s_branch L_exit""", unc=True)
P.add(TAIL.items)

for it in P.items:
    if isinstance(it, Ins) and it.text.startswith('buffer_load_dword v142,'): it.defs = []
PL = opt("plain", 0)
for it in P.items:
    if isinstance(it, Ins) and it.op.startswith("buffer_store") and "sc1" in it.text:
        ish1 = " s50 " in it.text or " s49 " in it.text
        ish = ("v[224:227]" in it.text or "v[228:231]" in it.text or "v112," in it.text or "v113," in it.text)
        if (ish and PL & 1) or (ish1 and PL & 2): it.text = it.text.replace(" sc1", OPT.get("pfl", ""))
if opt("pld", 0):
    c = 0
    for it in P.items:
        if isinstance(it, Ins) and it.op.startswith("buffer_load") and "sc1" in it.text and " s56 " in it.text and not it.uncounted:
            c += 1
            kind = 0 if c <= 48 else 1 if c <= 104 else 2
            if opt("pld", 0) & kind: it.text = it.text.replace(" sc1", OPT.get("lfl", ""))
if opt("nochk", 0):
    new = []; seen_end = False
    for it in P.items:
        if isinstance(it, Ins):
            if opt("nochk", 0) == 2 and not seen_end:
                if it.text.startswith("L_exit"): seen_end = True
                elif it.uncounted or it.op in ("s_cbranch_vccz", "s_branch"): continue
            if it.op == "s_cbranch_vccz" and not it.uncounted: it = Ins(it.text.replace("s_cbranch_vccz", "s_branch"))
            elif it.op == "s_cbranch_vccnz" and not it.uncounted: continue
            t = it.text
            if it.op.startswith("buffer_store") and "sc1" in t and not it.uncounted:
                kind = 8 if " s50 " in t else 4 if ("v[224" in t or "v[228" in t or "v112," in t or "v113," in t) else 2 if f" s{sOST} " in t else 1
                if opt("nost", 0) & kind: continue
            if it.op.startswith("buffer_load") and "sc1" in t and " s56 " in t and not it.uncounted:
                cnt_ld = globals().setdefault("_c", [0]); cnt_ld[0] += 1; c = cnt_ld[0]
                kind = 1 if c <= 32 else 2 if c <= 48 else 4 if c <= 104 else 8
                if opt("nold", 0) & kind: continue
        new.append(it)
    P.items = new
body, items = render(P.items)
if opt("align", 1):
    import subprocess, re as _re
    open("_al.s", "w").write('.amdgcn_target "amdgcn-amd-amdhsa--gfx950"\n.text\n' + body)
    subprocess.run(["clang", "-x", "assembler", "-target", "amdgcn-amd-amdhsa", "-mcpu=gfx950", "-c", "_al.s", "-o", "_al.o"], check=True)
    dis = subprocess.run(["llvm-objdump", "-d", "--mcpu=gfx950", "_al.o"], capture_output=True, text=True).stdout
    sizes = [4 * len(m.group(1).split()) for m in _re.finditer(r"// [0-9A-F]{12}: ((?:[0-9A-F]{8} ?)+)", dis)]
    real = [i for i in items if i.cls not in ('label', 'dir')]
    assert len(sizes) == len(real), (len(sizes), len(real))
    sz = {id(i): n for i, n in zip(real, sizes)}
    new = []; off = 0; nal = 0; MINRUN = opt("minrun", 6)
    for k, it in enumerate(items):
        if id(it) in sz and sz[id(it)] == 8 and off % 8 == 4 and not it.uncounted:
            run = 0
            for j in items[k:k + MINRUN + 4]:
                if id(j) not in sz: continue
                if sz[id(j)] != 8 or j.cls == 'mfma': break
                run += 1
            if run >= MINRUN:
                p = new[-1] if new else None
                if p is not None and p.cls == 'valu' and sz.get(id(p)) == 4 and not p.op.startswith(('v_permlane', 'v_dot2c', 'v_readfirst', 'v_accvgpr', 'v_cmp', 'v_cndmask')) and not p.op.endswith('_e64'):
                    p.text = p.text.replace(p.op, p.op + "_e64", 1)
                else: new.append(Ins("s_nop 0"))
                off += 4; nal += 1
        new.append(it); off += sz.get(id(it), 0)
    items = new
    body = '\n'.join(('' if i.cls == 'label' else '  ') + i.text for i in items) + '\n'
    print("alignment fixes:", nal, "code bytes", off)
hdr = open("cdna_kernels/" + NAME + ".s.ref").read().split("; Override launch")[0]
out = hdr + f"""; @launch grid=(256,1,1) block=(256,1,1) lds={LDS_SIZE}
.amdgcn_target "amdgcn-amd-amdhsa--gfx950"
.text
.globl {NAME}_kernel
.p2align 8
.type {NAME}_kernel,@function
{NAME}_kernel:
{body}.fill 2048, 4, 0xbf810000
.section .rodata,"a"
.p2align 6
.amdhsa_kernel {NAME}_kernel
  .amdhsa_next_free_vgpr 512
  .amdhsa_next_free_sgpr 102
  .amdhsa_accum_offset 256
  .amdhsa_group_segment_fixed_size 0
  .amdhsa_kernarg_size 80
  .amdhsa_user_sgpr_count 2
  .amdhsa_user_sgpr_kernarg_segment_ptr 1
  .amdhsa_system_sgpr_workgroup_id_x 1
.end_amdhsa_kernel
"""
open(sys.argv[1], "w").write(out)
n = sum(1 for i in items if i.cls not in ('label', 'dir'))
nu_ = sum(1 for i in items if i.cls not in ('label', 'dir') and i.uncounted)
print("instructions:", n, "(slow path", nu_, ") nops:", sum(1 for i in items if i.op == 's_nop'), "waits:", sum(1 for i in items if i.op == 's_waitcnt'), "stamps", nstamp[0])
```

```python
import sys, struct
from asmlib import *

NAME = "sequential_preLN__linear_kernel_hedgehog__dense_activation_silu__prompt"
DIAG = int(sys.argv[2]) if len(sys.argv) > 2 else 0
OPT = dict(a.split('=') for a in sys.argv[3:])
def opt(k, d): return int(OPT[k], 0) if k in OPT else d

WS_PART = 0x40000
WS_O    = 0x240000
WS_H    = 0x440000
WS_H1   = 0x680000
WS_DIAG = 0xE80000
WS_FLG  = 0xF00000
WS_SIZE = 0xF80000
XW = 28672
L_WV, L_WQ, L_WK, L_WO = 0, 28672, 57344, 86016
L_IMG = L_WK
L_KVX = 143360
L_XCH = 147456
L_SCR = 114688
L_AUG = 161792
LDS_SIZE = 163840
sW, sT, sH, sT2, sR = 3, 4, 5, 6, 7
X, WQKV, WPHI, WO, W1, W2, OUT, WS = [f"s[{i}:{i+3}]" for i in range(8, 40, 4)]
sKX, sKW = 40, 47
sHQ, sHIM = 54, 55
sRET = "s[56:57]"
sSPIN, sP, sU, sC, sMASK, sQ = 58, 59, 60, 61, 62, 63
sHI = "s[64:65]"
sLOG = "s[66:67]"
sONES, sTILE = 68, 69
sA, sB, sCt, sD = 70, 71, 72, 73
sRact, sXO = 74, 75
sWB, sWQ = 76, 77
sLAST, sFLAG, sWM, sPST, sPCK, sOST, sXRB, sOUT = 80, 81, 82, 83, 84, 85, 86, 87
sSTAMP = 88

def v(a, n=1): return f"v{a}" if n == 1 else f"v[{a}:{a+n-1}]"
def a_(a, n=1): return f"a{a}" if n == 1 else f"a[{a}:{a+n-1}]"
def fhex(x): return hex(struct.unpack('<I', struct.pack('<f', x))[0])
def flat(l): return sum(l, [])
P = Prog(); I = P.I
TAIL = Prog()
nstamp = [0]
SEL = OPT.get("st", "m").split(",")
PICK = [int(x) for x in OPT["pick"].split(",")] if "pick" in OPT else None
allst = [0]
def stampi(name, grp="m"):
    idx = allst[0]; allst[0] += 1
    if not DIAG: return []
    if PICK is not None:
        if name != "start" and idx not in PICK:
            print(f"   - {idx}: {name}"); return []
    elif name != "start" and not (set(grp) & set(SEL)): return []
    k = nstamp[0]; nstamp[0] += 1
    assert k < 7
    print(f"stamp {k}: [{idx}] {name}")
    op = "s_memtime" if DIAG == 2 else "s_memrealtime"
    return mk(f"{op} s[{sSTAMP+2*k}:{sSTAMP+2*k+1}]")
def stamp(name, grp="m"): P.add(stampi(name, grp))
X3 = "bitop3:0x96"

def chk_code(regs, masked):
    r = list(regs)
    if masked: return f"v_bitop3_b32 v10, v{r[0]}, v{r[1]}, s{sMASK} bitop3:0x28\nv_cmp_ne_u32 vcc, v10, v6"
    if len(r) == 1: return f"v_cmp_ne_u32 vcc, v{r[0]}, v5"
    if len(r) == 2: t = f"v_xor_b32 v10, v{r[0]}, v{r[1]}"
    else:
        t = f"v_bitop3_b32 v10, v{r[0]}, v{r[1]}, v{r[2]} {X3}"
        if len(r) == 4: t += f"\nv_xor_b32 v10, v10, v{r[3]}"
    return t + "\nv_cmp_ne_u32 vcc, v10, v5"

sFL, sDM = 56, 57
GUARD = f"s_add_u32 s{sSPIN}, s{sSPIN}, 1\ns_cmp_gt_u32 s{sSPIN}, 0x40000\ns_cbranch_scc1 L_end\ns_waitcnt vmcnt(0)"
class Fetch:
    def __init__(self, name, pieces, masked=False, nre=1):
        self.name, self.pieces, self.masked, self.nre = name, pieces, masked, nre
    def loadc(self, i):
        it = flat([mk(c.replace(f"s{sCt}", f"s{sFL}")) for c in self.pieces[i][0]])
        out = []; cur = []
        for x in it:
            cur.append(x)
            if x.cls == 'vmem': out.append(cur); cur = []
        return out
    def load(self, i): return flat(self.loadc(i))
    def stub(self, i, last):
        n = self.name
        wgt = {"fo": 0x100, "fh": 0x10000, "f4": 0x1000000}.get(n, 1)
        rel = (f"s_add_u32 s80, s80, {wgt}\n" if DIAG else "") + "\n".join(c for j in range(i, min(last, i + self.nre - 1) + 1) for c in self.pieces[j][0])
        if opt("ool", 7) & {"fo": 2, "fh": 4, "f4": 8}[n]:
            TAIL.I(f"L_{n}_r{i}:\n" + rel + "\n" + GUARD + "\n" + chk_code(self.pieces[i][1], self.masked) + f"\ns_cbranch_vccnz L_{n}_r{i}\ns_branch L_{n}_ok{i}", unc=True)
            return mk(f"s_cbranch_vccnz L_{n}_r{i}\nL_{n}_ok{i}:")
        return mk(f"s_cbranch_vccz L_{n}_ok{i}\nL_{n}_r{i}:") + \
               mk(rel + "\n" + GUARD + "\n" + chk_code(self.pieces[i][1], self.masked) + f"\ns_cbranch_vccnz L_{n}_r{i}", unc=True) + mk(f"L_{n}_ok{i}:")
    def checkc(self, i, last):
        return [[x] for x in mk(chk_code(self.pieces[i][1], self.masked))] + [self.stub(i, last)]
    def check(self, i, last): return flat(self.checkc(i, last))

sFS, sFP = 80, 81
vL512, vPO, vPF = 0, 142, 143
def flag_store(nl): return mk(f"s_mov_b64 exec, {(1 << nl) - 1}\nbuffer_store_dword v5, v{vL512}, {WS}, s{sFS} offen sc1\ns_mov_b64 exec, -1")
def gate(name, vo, vf): return Fetch(name, [([f"buffer_load_dword v{vf}, v{vo}, {WS}, s{sFP} offen sc1"], [vf])])
GATE = opt("gate", 0)

def cost(it):
    if isinstance(it, WaitTag): return 4
    if it.cls in ('label', 'dir') or it.uncounted: return 0
    if it.op.startswith(TRANS) or 'permlane' in it.op: return 8
    if it.op.startswith('ds_write_b128'): return 28
    if it.cls == 'mfma': return 8
    return 4.5
class Sched:
    def __init__(self, groups):
        self.groups = groups; self.gap = [[] for _ in groups]; self.seq = 0
    def at(self, g, items, frac=0.5):
        self.seq += 1; self.gap[g].append((frac, self.seq, list(items)))
    def spread(self, chunks, a, b):
        chunks = [c if isinstance(c, list) else [c] for c in chunks]
        tot = sum(cost(i) for c in chunks for i in c) or 1; acc = 0
        for c in chunks:
            pos = a + (b - a) * acc / tot
            self.at(int(pos), c, pos - int(pos))
            acc += sum(cost(i) for i in c)
    def emit(self):
        out = []
        for g, gp in zip(self.groups, self.gap):
            out += g
            for _, _, c in sorted(gp, key=lambda x: (x[0], x[1])): out += c
        return out
def sprinkle(items, groups, start, step):
    out = []; groups = list(groups); nxt = start
    for i, it in enumerate(items):
        if groups and i == nxt: out += groups.pop(0); nxt += step
        out.append(it)
    for g in groups: out += g
    return out

def softmax(p, t, o, pk):
    q = Prog(); J = q.I
    m, n = t + 14, t + 15; r0, r1 = t + 16, t + 17
    J(f"v_max3_f32 v{m}, v{p}, v{p+1}, v{p+2}\nv_max3_f32 v{n}, -v{p}, -v{p+1}, -v{p+2}")
    for k in range(3, 13, 2):
        J(f"v_max3_f32 v{m}, v{m}, v{p+k}, v{p+k+1}\nv_max3_f32 v{n}, v{n}, -v{p+k}, -v{p+k+1}")
    J(f"""v_max_f32 v{m}, v{m}, v{p+13}
v_max_f32 v{n}, v{n}, -v{p+13}
v_permlane32_swap_b32 v{m}, v{n}
v_max_f32 v{m}, v{m}, v{n}
v_mul_f32 v{m}, v253, v{m}
v_mov_b32 v{n}, v{m}
v_permlane32_swap_b32 v{m}, v{n}""")
    if pk:
        for k in range(0, 14, 2):
            J(f"v_pk_fma_f32 {v(t+k,2)}, {v(p+k,2)}, v[252:253], {v(m,2)} op_sel_hi:[1,0,0]")
            J(f"v_pk_fma_f32 {v(p+k,2)}, {v(p+k,2)}, v[252:253], {v(m,2)} op_sel:[0,1,1] op_sel_hi:[1,1,1]")
    if pk == 2:
        for k in range(14):
            J(f"v_exp_f32 v{t+k}, v{t+k}\nv_exp_f32 v{p+k}, v{p+k}")
            if k >= 2:
                a0 = f"v{t}" if k == 2 else f"v{r0}"; a1 = f"v{p}" if k == 2 else f"v{r1}"
                J(f"v_add_f32 v{r0}, {a0}, v{t+k-1}\nv_add_f32 v{r1}, {a1}, v{p+k-1}")
        J(f"v_add_f32 v{m}, v{r0}, v{t+13}\nv_add_f32 v{n}, v{r1}, v{p+13}")
    elif pk:
        for k in range(14): J(f"v_exp_f32 v{t+k}, v{t+k}")
        for k in range(14): J(f"v_exp_f32 v{p+k}, v{p+k}")
        J(f"v_pk_add_f32 {v(m,2)}, {v(t,2)}, {v(t+2,2)}\nv_pk_add_f32 {v(r0,2)}, {v(p,2)}, {v(p+2,2)}")
        for k in range(4, 14, 2):
            J(f"v_pk_add_f32 {v(m,2)}, {v(m,2)}, {v(t+k,2)}\nv_pk_add_f32 {v(r0,2)}, {v(r0,2)}, {v(p+k,2)}")
        J(f"v_add_f32 v{m}, v{m}, v{n}\nv_add_f32 v{n}, v{r0}, v{r1}")
    else:
        for k in range(14):
            J(f"v_fma_f32 v{t+k}, v{p+k}, v252, v{m}\nv_fma_f32 v{p+k}, v{p+k}, v253, v{n}\nv_exp_f32 v{t+k}, v{t+k}\nv_exp_f32 v{p+k}, v{p+k}")
            if k >= 2:
                a0 = f"v{t}" if k == 2 else f"v{r0}"; a1 = f"v{p}" if k == 2 else f"v{r1}"
                J(f"v_add_f32 v{r0}, {a0}, v{t+k-1}\nv_add_f32 v{r1}, {a1}, v{p+k-1}")
        J(f"v_add_f32 v{m}, v{r0}, v{t+13}\nv_add_f32 v{n}, v{r1}, v{p+13}")
    J(f"""v_permlane32_swap_b32 v{m}, v{n}
v_add_f32 v{m}, v{m}, v{n}
v_rcp_f32 v{m}, v{m}
v_mov_b32 v{n}, v{m}
v_permlane32_swap_b32 v{m}, v{n}""")
    if pk == 1:
        for k in range(0, 14, 2):
            J(f"v_pk_mul_f32 {v(t+k,2)}, {v(t+k,2)}, {v(m,2)} op_sel_hi:[1,0]")
            J(f"v_pk_mul_f32 {v(p+k,2)}, {v(p+k,2)}, {v(m,2)} op_sel:[0,1] op_sel_hi:[1,1]")
    else:
        for k in range(14): J(f"v_mul_f32 v{t+k}, v{t+k}, v{m}\nv_mul_f32 v{p+k}, v{p+k}, v{n}")
    for k in range(7): J(f"v_cvt_pk_bf16_f32 v{o+k}, v{t+2*k}, v{t+2*k+1}")
    for k in range(7): J(f"v_cvt_pk_bf16_f32 v{o+7+k}, v{p+2*k}, v{p+2*k+1}")
    return q.items

def dmag(vaddrs, srd, sbase, sadd, mbase, madd, tag, sreg=None):
    sr = sCt if sreg is None else sreg
    ch = [mk(f"buffer_load_dwordx4 v{a}, {srd}, s{sr} offen offset:{1024*i} lds", tag=tag) for i, a in enumerate(vaddrs)]
    ch[0] = mk(f"s_add_u32 m0, s{mbase}, {madd}\ns_add_u32 s{sr}, s{sbase}, {sadd}") + ch[0]
    return ch

MF = "v_mfma_f32_32x32x16_bf16"
RINGA, NRING = 224, 8
def gemm_lds(steps, ahead=6):
    def rd(i):
        av, o1, o2 = steps[i][:3]; r = RINGA + 4 * (i % NRING)
        return mk(f"ds_read_b64_tr_b16 {a_(r,2)}, v{av} offset:{o1}\nds_read_b64_tr_b16 {a_(r+2,2)}, v{av} offset:{o2}")
    rds = [rd(i) for i in range(len(steps))]
    groups = []
    for i, st in enumerate(steps):
        r = RINGA + 4 * (i % NRING); b, acc, first, swap = st[3]
        A, B = a_(r, 4), v(b, 4)
        if swap: A, B = B, A
        g = mk(f"{MF} {v(acc,16)}, {A}, {B}, {'0' if first else v(acc,16)}")
        if i % 2 == 0 and i + 1 < len(steps):
            r2 = RINGA + 4 * ((i + 1) % NRING); g[0].extra = [('a', r2 + x) for x in range(4)]
        groups.append(g + (rds[i + ahead] if i + ahead < len(steps) else []))
    return flat(rds[:ahead]), groups

FAST = opt('fast', 1)
LO = """s_load_dwordx2 s[12:13], s[0:1], 8
s_load_dwordx2 s[16:17], s[0:1], 16
s_load_dwordx2 s[20:21], s[0:1], 24
s_load_dwordx2 s[24:25], s[0:1], 40
s_load_dwordx2 s[28:29], s[0:1], 48
s_load_dwordx2 s[32:33], s[0:1], 56
s_load_dwordx2 s[36:37], s[0:1], 72
"""
CP = f"""v_lshlrev_b32 v3, 4, v1
v_lshl_add_u32 v3, v2, 6, v3
v_lshl_add_u32 v3, v2, 4, v3
v_add_u32 v3, s{sCt}, v3
v_lshlrev_b32 v3, 7, v3
s_and_b32 s76, s76, 0xffffff00
s_mov_b64 exec, 31
global_load_dword v236, v3, s[76:77]
s_mov_b64 exec, -1
"""
MAP1 = [f"""s_and_b32 s{sT}, s{sA}, 3
s_lshl_b32 s{sT}, s{sT}, 2
s_and_b32 s{sD}, s{sB}, 3
s_add_u32 s{sT}, s{sT}, s{sD}
s_lshr_b32 s{sP}, s{sA}, 2
s_lshl_b32 s{sH}, s{sP}, 3
s_lshr_b32 s{sD}, s{sB}, 2
s_add_u32 s{sH}, s{sH}, s{sD}
s_mul_i32 s{sP}, s{sT}, {opt("rt", 2)}
s_add_u32 s{sD}, s{sD}, s{sP}
s_mul_i32 s{sP}, s{sD}, 37
s_lshr_b32 s{sP}, s{sP}, 8
s_mul_i32 s{sP}, s{sP}, 7
s_sub_u32 s{sD}, s{sD}, s{sP}
s_lshl_b32 s{sKX}, s{sD}, 7
""",
f"""s_lshl_b32 s{sT}, s{sA}, 1
s_lshr_b32 s{sD}, s{sB}, 4
s_add_u32 s{sT}, s{sT}, s{sD}
s_mov_b32 s{sH}, s{sCt}
s_and_b32 s{sD}, s{sH}, 7
s_cmp_eq_u32 s{sD}, 7
s_cselect_b32 s{sD}, 3, s{sD}
s_lshl_b32 s{sKX}, s{sD}, 7
""",
f"""s_mov_b32 s{sT}, s{sCt}
s_lshl_b32 s{sH}, s{sA}, 1
s_lshr_b32 s{sD}, s{sB}, 4
s_add_u32 s{sH}, s{sH}, s{sD}
s_and_b32 s{sD}, s{sH}, 7
s_mul_i32 s{sD}, s{sD}, 3
s_mul_i32 s{sP}, s{sD}, 37
s_lshr_b32 s{sP}, s{sP}, 8
s_mul_i32 s{sP}, s{sP}, 7
s_sub_u32 s{sD}, s{sD}, s{sP}
s_lshl_b32 s{sKX}, s{sD}, 7
"""][opt("map1", 0)]
if DIAG: I("s_memrealtime s[78:79]")
I(f"""s_cmp_ge_u32 s2, 256
s_cbranch_scc1 L_end
s_load_dwordx2 s[8:9], s[0:1], 0
{LO if not FAST else ''}{"s_waitcnt lgkmcnt(0)" + chr(10) + "s_memrealtime s[88:89]" if opt("bare", 0) else ""}
s_getpc_b64 s[76:77]
v_and_b32 v1, 63, v0
v_lshrrev_b32 v2, 6, v0
s_and_b32 s{sA}, s2, 7
v_readfirstlane_b32 s{sW}, v2
s_lshr_b32 s{sB}, s2, 3
s_and_b32 s{sCt}, s{sB}, 15
{CP if FAST < 2 else ''}{MAP1}
s_mov_b32 s10, 1835008
s_mov_b32 s11, 0x20000
v_lshrrev_b32 v2, 3, v1
v_mul_u32_u24 v244, 896, v2
v_lshrrev_b32 v2, 4, v1
v_and_b32 v8, 7, v1
v_xor_b32 v2, v2, v8
v_lshl_add_u32 v244, v2, 4, v244
v_xor_b32 v245, 64, v244
v_add_u32 v245, {7168-1024}, v245
v_add_u32 v246, {2*(7168-1024)}, v244
v_add_u32 v247, {2*(7168-1024)}, v245
s_lshl_b32 s{sQ}, s{sT}, 2
s_add_u32 s{sQ}, s{sQ}, s{sW}
s_mul_i32 s{sQ}, s{sQ}, {32*896}
s_lshr_b32 s{sXO}, s{sW}, 1
s_add_u32 s{sXO}, s{sXO}, s{sW}
s_mul_i32 s{sXO}, s{sXO}, {XW}
s_waitcnt lgkmcnt(0)""")
st0 = stampi("start")
if not opt("bare", 0): P.add(st0)
def xdma(g): return flat(dmag([244, 245, 246, 247], X, sQ, f"s{sKX+g}", sXO, 4096*g, f"x{g}"))
P.add(xdma(0))
if FAST: I(LO)
if FAST == 2: I(f"v_lshrrev_b32 v2, 6, v0\ns_and_b32 s{sCt}, s{sB}, 15\n" + CP)
I(f"""s_mov_b32 s14, {0 if opt('abl',0)&8 else 1204224}
s_mov_b32 s15, 0x20000
v_and_b32 v8, 3, v1""")
def wtouch(mask16, dst):
    m = mask16 | (mask16 << 16)
    return mk(f"s_mov_b32 exec_lo, {hex(m)}\ns_mov_b32 exec_hi, {hex(m)}\nbuffer_load_dword v{dst}, v255, {WQKV}, 0 offen\ns_mov_b64 exec, -1")
def kxs(g): return mk(f"s_add_u32 s{sKX+g}, s{sKX+g-1}, 128\ns_cmp_ge_u32 s{sKX+g}, 896\ns_cselect_b32 s{sD}, 896, 0\ns_sub_u32 s{sKX+g}, s{sKX+g}, s{sD}")
NXE = opt("nxe", 2)
if opt("wtfirst", 1) and opt("wt0", 0): P.add(wtouch(opt("wt0", 0), 237))
for g in range(1, NXE): P.add(kxs(g) + xdma(g))
if not opt("wtfirst", 1) and opt("wt0", 0): P.add(wtouch(opt("wt0", 0), 237))
if FAST: I("s_waitcnt lgkmcnt(0)")
if opt("wsoff", 0): I(f"s_add_u32 s36, s36, {opt('wsoff', 0)}\ns_addc_u32 s37, s37, 0")
I(f"""s_mov_b32 s38, {WS_SIZE}
s_mov_b32 s39, 0x20000
s_mov_b32 s18, 25088
s_mov_b32 s19, 0x20000
s_mov_b32 s22, {0 if opt('abl',0)&4 else 401408}
s_mov_b32 s23, 0x20000
s_xor_b32 s{sHQ}, s{sH}, 1
v_mov_b32 v11, 0
v_lshlrev_b32 v6, 7, v1""")
TM = opt("tm", 0)
sm_ld = mk(f"""s_mov_b64 exec, 1
buffer_load_dword v5, v6, {WS}, 0 offen sc1""")
if opt("two_", 1): sm_ld += mk(f"""s_lshl_b32 s56, s2, 2
s_add_u32 s56, s56, s{sW}
s_lshl_b32 s56, s56, 9
s_mov_b64 exec, 15
buffer_load_dword v238, v6, {WO}, s56 offen""")
if opt("twp", 1): sm_ld += mk(f"""s_and_b32 s{sCt}, s{sH}, 14
s_mul_i32 s{sCt}, s{sCt}, 1568
s_mul_i32 s56, s{sW}, 896
s_add_u32 s{sCt}, s{sCt}, s56
s_mov_b64 exec, 127
buffer_load_dword v239, v6, {WPHI}, s{sCt} offen""")
sm_ld += mk("s_mov_b64 exec, -1")
if TM == 0: P.add(sm_ld)
for g in range(NXE, 7): P.add(kxs(g))
I(f"""s_lshl_b32 s{sT2}, s{sA}, 1
s_lshr_b32 s{sD}, s{sB}, 4
s_add_u32 s{sT2}, s{sT2}, s{sD}
s_and_b32 s{sRact}, s{sB}, 15
s_min_u32 s{sR}, s{sRact}, 13
s_mov_b32 s26, {0 if opt('abl',0)&1 else 1605632}
s_mov_b32 s27, 0x20000
s_mov_b32 s30, {0 if opt('abl',0)&2 else 1605632}
s_mov_b32 s31, 0x20000
s_mov_b32 s34, 1835008
s_mov_b32 s35, 0x20000
s_mov_b32 s64, 0
s_mov_b32 s65, -1
s_mov_b32 s{sONES}, 0x3f803f80
s_mov_b32 s{sMASK}, 0xbfffbfff
s_mov_b32 s{sHIM}, 0xffff0000
s_mov_b32 s{sSPIN}, 0
s_mov_b32 s80, 0
s_cmp_ge_u32 s{sR}, 7
s_cselect_b32 s{sU}, 1, 0
s_mul_i32 s{sA}, s{sU}, 7
s_sub_u32 s{sC}, s{sR}, s{sA}""")
sT3 = 67
if opt("map3", 0):
    I(f"""s_and_b32 s{sA}, s{sT2}, 12
s_and_b32 s{sD}, s{sT2}, 1
s_lshl_b32 s{sD}, s{sD}, 1
s_add_u32 s{sA}, s{sA}, s{sD}
s_add_u32 s{sT3}, s{sA}, s{sU}
s_bfe_u32 s{sA}, s{sT2}, 0x10001
s_mul_i32 s{sA}, s{sA}, 7
s_add_u32 s{sR}, s{sA}, s{sC}""")
else: I(f"s_mov_b32 s{sT3}, s{sT2}")
for g in range(7): I(f"s_mul_i32 s{sKW+g}, s{sKX+g}, {172032//128}")
I(f"""s_mul_i32 s{sWB}, s{sH}, 56
s_mul_i32 s{sD}, s{sW}, 43008
s_add_u32 s{sWB}, s{sWB}, s{sD}
s_mul_i32 s{sWQ}, s{sHQ}, 56
s_add_u32 s{sWQ}, s{sWQ}, s{sD}
s_add_u32 s{sWB}, s{sWB}, 896
s_lshl_b32 s{sWM}, s{sW}, 10
s_mul_i32 s66, s{sH}, 1568
s_mul_i32 s81, s{sHQ}, 1568""")
_m0 = len(P.items)
I(f"""s_lshl_b32 s{sA}, s{sH}, 4
s_add_u32 s{sA}, s{sA}, s{sT}
s_mul_i32 s{sA}, s{sA}, 5120
s_add_u32 s{sA}, s{sA}, {WS_PART}
s_add_u32 s{sPST}, s{sA}, s{sWM}
s_lshl_b32 s{sD}, s{sW}, 8
s_add_u32 s{sA}, s{sA}, s{sD}
s_add_u32 s{sPCK}, s{sA}, 4096
s_lshl_b32 s{sA}, s{sT}, 2
s_add_u32 s{sA}, s{sA}, s{sW}
s_lshl_b32 s{sA}, s{sA}, 15
s_lshl_b32 s{sB}, s{sHQ}, 11
s_add_u32 s{sA}, s{sA}, s{sB}
s_add_u32 s{sOST}, s{sA}, {WS_O}
s_lshl_b32 s{sA}, s{sT2}, 2
s_lshl_b32 s{sB}, s{sU}, 1
s_add_u32 s{sA}, s{sA}, s{sB}
s_and_b32 s{sB}, s{sW}, 1
s_add_u32 s{sTILE}, s{sA}, s{sB}
s_mul_i32 s{sA}, s{sA}, {32*896}
s_lshl_b32 s{sB}, s{sC}, 7
s_add_u32 s{sA}, s{sA}, s{sB}
s_mul_i32 s{sD}, s{sW}, {16*896}
s_add_u32 s{sXRB}, s{sA}, s{sD}
s_mul_i32 s{sA}, s{sTILE}, {32*896}
s_add_u32 s{sA}, s{sA}, s{sB}
s_lshr_b32 s{sB}, s{sW}, 1
s_lshl_b32 s{sB}, s{sB}, 6
s_add_u32 s{sOUT}, s{sA}, s{sB}
s_mul_i32 s{sP}, s{sHQ}, {16*5120}
s_add_u32 s{sP}, s{sP}, {WS_PART}""")
deferred = P.items[_m0:]; del P.items[_m0:]
WPK, WPQ, WPT = 192, 200, 208
vWPA, vWPB, vKVX, vIMW, vKA, vKB, vFPD, vFPC, vWO0, vWO1, vXRD0, vXRD1, vXRR, vWOR = range(128, 142)
I(f"""v_lshrrev_b32 v3, 5, v1
v_lshlrev_b32 v2, 4, v1
v_lshlrev_b32 v4, 2, v1
v_bfe_u32 v11, v1, 3, 2
v_lshl_add_u32 v11, v11, 2, v8
v_bfe_u32 v12, v1, 2, 1
v_mul_u32_u24 v12, 14, v12
v_min_u32 v13, 13, v11
v_add_u32 v13, v13, v12
v_lshlrev_b32 v13, 1, v13
v_mul_u32_u24 v14, 224, v3
v_add_u32 v{vWPA}, v13, v14
v_lshl_add_u32 v{vWPB}, v3, 20, v{vWPA}
v_add_u32 v12, v12, v11
v_cmp_gt_u32 vcc, 14, v11
v_lshrrev_b32 v7, 2, v1
v_mul_u32_u24 v7, 2688, v7
v_cndmask_b32 v12, 28, v12, vcc
v_and_b32 v13, 15, v12
v_lshlrev_b32 v13, 4, v13
v_lshrrev_b32 v12, 4, v12
v_lshl_add_u32 v13, v12, 3, v13
v_lshl_add_u32 v13, v3, 8, v13
v_add_u32 v{vKVX}, {L_KVX}, v13
v_lshlrev_b32 v11, 4, v8
v_min_u32 v11, 40, v11
v_add_u32 v7, v7, v11
v_and_b32 v9, 31, v1
v_lshlrev_b32 v240, 7, v9
v_bfe_u32 v11, v1, 1, 3
v_xor_b32 v11, v11, v3
v_lshl_add_u32 v240, v11, 4, v240
v_add_u32 v240, s{sXO}, v240
v_xor_b32 v241, 32, v240
v_xor_b32 v242, 64, v240
v_xor_b32 v243, 96, v240
v_mov_b32 v250, 0
v_mov_b32 v251, 0""")
_m0 = len(P.items)
I(f"""s_lshl_b32 s{sA}, s{sW}, 5
v_add_u32 v10, s{sA}, v9
v_mul_u32_u24 v10, 208, v10
v_mul_u32_u24 v11, 96, v3
v_add_u32 v{vIMW}, v10, v11
v_lshrrev_b32 v10, 4, v1
v_bfe_u32 v15, v1, 2, 2
v_lshl_add_u32 v10, v10, 3, v15
v_mul_u32_u24 v10, 208, v10
v_and_b32 v11, 1, v1
v_mul_u32_u24 v11, 96, v11
v_add_u32 v10, v10, v11
v_bfe_u32 v11, v1, 1, 1
v_lshl_add_u32 v10, v11, 3, v10
v_add_u32 v{vKB}, {L_IMG}, v10
s_lshl_b32 s{sA}, s{sW}, 4
v_add_u32 v{vKA}, s{sA}, v{vKB}
v_add_u32 v{vFPD}, s{sWM}, v2
s_lshl_b32 s{sD}, s{sW}, 8
s_add_u32 s{sD}, s{sD}, 4096
v_add_u32 v{vFPC}, s{sD}, v4
v_lshrrev_b32 v12, 3, v1
v_mul_u32_u24 v14, 896, v12
v_and_b32 v13, 7, v1
v_xor_b32 v12, v12, v13
v_lshl_add_u32 v{vXRD0}, v12, 4, v14
v_add_u32 v{vXRD1}, {7168-1024}, v{vXRD0}
v_bfe_u32 v12, v1, 4, 1
v_lshlrev_b32 v11, 2, v12
v_xor_b32 v11, v11, v13
v_lshl_add_u32 v{vWO0}, v11, 4, v14
v_add_u32 v{vWO1}, {7168-1024}, v{vWO0}
s_and_b32 s{sA}, s{sW}, 1
s_lshl_b32 s{sA}, s{sA}, 12
s_add_u32 s{sA}, s{sA}, {L_XCH}
v_lshlrev_b32 v10, 7, v9
v_lshl_add_u32 v10, v3, 3, v10
v_add_u32 v10, s{sA}, v10
s_lshr_b32 s{sA}, s{sW}, 1
s_lshl_b32 s{sB}, s{sA}, 2
v_xor_b32 v13, s{sB}, v13
v_lshl_add_u32 v{vXRR}, v13, 4, v10
v_mad_u32_u24 v10, v3, 14, v15
v_lshlrev_b32 v10, 7, v10
v_bfe_u32 v13, v1, 3, 1
v_xor_b32 v13, v13, v3
v_xor_b32 v13, s{sA}, v13
v_lshl_add_u32 v10, v13, 6, v10
v_lshl_add_u32 v10, v12, 5, v10
v_lshl_add_u32 v10, v8, 3, v10
s_mul_i32 s{sA}, s{sA}, {8*28*128}
s_add_u32 s{sA}, s{sA}, {L_WO}
v_add_u32 v{vWOR}, s{sA}, v10
v_lshl_add_u32 v11, v3, 3, v15
v_lshlrev_b32 v11, 6, v11
v_lshl_add_u32 v12, v12, 2, v8
v_cmp_lt_u32 vcc, 5, v12
v_xor_b32 v13, 1, v12
v_cndmask_b32 v12, v12, v13, vcc
v_lshl_add_u32 v11, v12, 3, v11
v_add_u32 v13, {L_WK}, v11""")
I(f"""v_bfe_u32 v10, v1, 2, 1
v_bfe_u32 v14, v1, 4, 1
v_lshl_add_u32 v10, v14, 1, v10
v_cmp_eq_u32 vcc, v10, v3
v_and_b32 v10, 1, v1
v_lshlrev_b32 v10, 4, v10
v_mov_b32 v14, 0x3f80
v_lshlrev_b32 v10, v10, v14
v_cndmask_b32 v10, 0, v10, vcc
v_bfe_u32 v14, v1, 3, 1
v_bfe_u32 v15, v1, 1, 1
v_lshl_add_u32 v14, v14, 1, v15""")
for q in range(4): I(f"v_cmp_eq_u32 vcc, {q}, v14\nv_cndmask_b32 v15, 0, v10, vcc\nv_accvgpr_write_b32 a{220+q}, v15")
I("v_add_u32 v9, 896, v7")
deferred += P.items[_m0:]; del P.items[_m0:]
NDEF0 = opt("ndef0", 70)
P.add(deferred[:NDEF0]); deferred = deferred[NDEF0:]
L2N = 0
if L2N:
    I(f"""s_mov_b32 s{sCt}, 0x60504020
s_cmp_ge_u32 s{sH}, 8
s_cselect_b32 s{sCt}, 0x53020100, s{sCt}
s_and_b32 s{sD}, s{sH}, 7
s_lshl_b32 s{sD}, s{sD}, 2
s_lshr_b32 s{sCt}, s{sCt}, s{sD}
s_and_b32 s{sCt}, s{sCt}, 15
s_and_b32 s{sD}, s{sT}, 3
s_mul_i32 s{sD}, s{sD}, 7
s_add_u32 s{sCt}, s{sCt}, s{sD}
s_lshl_b32 s{sCt}, s{sCt}, 2
s_add_u32 s{sCt}, s{sCt}, s{sW}
s_mul_i32 s66, s{sCt}, 14336
s_add_u32 s81, s66, 57344
s_lshl_b32 s{sD}, s{sH}, 1
s_lshr_b32 s{sD}, 0xa111444a, s{sD}
s_and_b32 s{sD}, s{sD}, 3
s_cmp_ge_u32 s{sD}, 1
s_cselect_b32 s66, s66, 0x10000000
s_cmp_ge_u32 s{sD}, 2
s_cselect_b32 s81, s81, 0x10000000
v_add_u32 v143, 7168, v6""")
def l2n(k): return mk(f"s_mov_b32 exec_hi, 0xffffff\nbuffer_load_dword v{142}, v{6 if k % 2 == 0 else 143}, {W1}, s{66 if k < 2 else 81} offen\ns_mov_b32 exec_hi, -1")
stamp("setup done", "p")
def wphi(dst, tmp, so):
    q = []
    for t in range(2):
        for j in range(8):
            d = 16 * t + 8 * (j >> 2) + (j & 3)
            av = vWPB if (t == 1 and j >= 4) else vWPA
            r = (dst if j % 2 == 0 else tmp) + 4 * t + j // 2
            op = "buffer_load_short_d16" if j % 2 == 0 else "buffer_load_short_d16_hi"
            q += mk(f"{op} v{r}, v{av}, {WPHI}, s{so} offen offset:{d*56}")
    return q
def wkdma(g): return flat(dmag([7], WQKV, sWB, f"s{sKW+g}", sWM, L_WK + 4096*g, f"wk{g}"))
def wvdma(g): return flat(dmag([9], WQKV, sWB, f"s{sKW+g}", sWM, L_WV + 4096*g, f"wv{g}"))
def wqdma(g): return flat(dmag([7], WQKV, sWQ, f"s{sKW+g}", sWM, L_WQ + 4096*g, f"wq{g}"))
if opt("fake", 0):
    I(f"""v_mov_b32 v7, v2
v_add_u32 v9, 24576, v2
s_mul_i32 s{sWB}, s{sH}, 73728
s_add_u32 s{sWB}, s{sWB}, s{sWM}
s_mul_i32 s{sWQ}, s{sHQ}, 73728
s_add_u32 s{sWQ}, s{sWQ}, s{sWM}
s_add_u32 s{sWQ}, s{sWQ}, 45056""")
    for g in range(7): I(f"s_lshl_b32 s{sKW+g}, s{sKX+g}, 5")
XF = 16
NX0 = opt("nx0", 3)
if opt("wt1", 0): P.add(wtouch(opt("wt1", 0), 249))
for g in range(NXE, NX0): P.add(xdma(g))
pend = [xdma(g) for g in range(NX0, 7)]
wkl = [wkdma(g) for g in range(7)]
if TM and TM < NX0: P.add(sm_ld)
elif TM: pend[TM - NX0] = pend[TM - NX0] + sm_ld
if opt("wt2", 0): pend[-1] = pend[-1] + wtouch(opt("wt2", 0), 248)
pend.append(wkl.pop(0) + wphi(WPK, WPT, 66))
pend.append(wkl.pop(0) + wphi(WPQ, WPT+8, 81))
while len(pend) < 7: pend.append(wkl.pop(0))
def xrd(g): return flat([mk(f"ds_read_b128 {v(XF+16*g+4*e,4)}, v{240+e} offset:{4096*g}") for e in range(4)])
P.wait("x0"); P.add(xrd(0))
for g in range(7):
    if pend: P.add(pend.pop(0))
    if g + 1 < 7: P.wait(f"x{g+1}"); P.add(xrd(g + 1))
    for i in range(16):
        r = XF + 16*g + i
        I(f"v_dot2c_f32_bf16 v250, s{sONES}, v{r}\nv_dot2c_f32_bf16 v251, v{r}, v{r}")
    nd_ = -(-len(deferred) // max(1, opt("ndi", 6) - g)) if g < opt("ndi", 6) else len(deferred)
    P.add(deferred[:nd_]); deferred = deferred[nd_:]
    if g == 0: stamp("x0 done", "p")
for x_ in pend: P.add(x_)
if opt("tp", 0) == 2:
    I(f"""s_mul_i32 s{sCt}, s2, {52*128}
s_mul_i32 s{sD}, s{sW}, {13*128}
s_add_u32 s{sCt}, s{sCt}, s{sD}
s_mov_b64 exec, 0x1fff
buffer_load_dword v254, v6, {W2}, s{sCt} offen
buffer_load_dword v255, v6, {W1}, s{sCt} offen
s_mov_b64 exec, -1""")
stamp("x stats done", "mp")
I(f"""v_permlane32_swap_b32 v250, v251
v_readfirstlane_b32 s{sA}, v5
s_nop 0
v_add_f32 v250, v250, v251
v_mul_f32 v250, {fhex(-1/448)}, v250
v_mov_b32 v251, v250
s_or_b32 s{sA}, s{sA}, 1
s_mul_i32 s{sA}, s{sA}, 0x9E3779B5
v_mov_b32 v5, s{sA}
s_mov_b32 s{sA}, 0x3f80
v_permlane32_swap_b32 v250, v251
s_mov_b32 s{sB}, 0x3f800000""")
fin = mk(f"""v_fma_f32 v251, -v250, v250, -v251
v_max_f32 v251, 0, v251
v_add_f32 v251, 0x3727c5ac, v251
v_rsq_f32 v251, v251
s_lshl_b32 s{sQ}, s{sC}, 7
s_mul_i32 s{sD}, s{sW}, {16*896}
v_mul_f32 v252, 0x3fb8aa3b, v251
v_mul_f32 v253, 0xbfb8aa3b, v251
s_add_u32 s{sQ}, s{sQ}, s{sD}
s_lshl_b32 s{sXO}, s{sW}, 11""")
if opt("noid", 1): fin = [mk(f"s_cmp_ge_u32 s{sRact}, 14\ns_cselect_b32 s22, 0, s22")] + fin
ACK = 144; ACV = 160; PK = 176; IMG = 208; TMP = 232
def norm(t):
    q = Prog(); tb = TMP + 8 * (t & 1)
    for i in range(4):
        r = XF + 4 * t + i
        q.I(f"v_dot2_f32_bf16 v{tb+2*i}, v{r}, s{sA}, v250\nv_dot2_f32_bf16 v{tb+2*i+1}, v{r}, s{sB}, v250")
    return q.items
def normc(t):
    tb = TMP + 8 * (t & 1)
    return flat([mk(f"v_cvt_pk_bf16_f32 v{XF+4*t+i}, v{tb+2*i}, v{tb+2*i+1}") for i in range(4)])
def l2t(srd, k, dst):
    return mk(f"""s_lshr_b32 s{sCt}, s2, 3
s_lshl_b32 s{sCt}, s{sCt}, 2
s_add_u32 s{sCt}, s{sCt}, s{sW}
s_mul_i32 s{sCt}, s{sCt}, {98*128}
s_mov_b32 exec_hi, 0x1ffff
s_add_u32 s{sCt}, s{sCt}, {k*49*128}
buffer_load_dword v{dst}, v6, {srd}, s{sCt} offen
s_mov_b32 exec_hi, -1""")
L2A, L2B = opt("l2a", -1), opt("l2b", -1)
touch = mk(f"""s_mul_i32 s{sCt}, s2, {52*128}
s_mul_i32 s56, s{sW}, {13*128}
s_add_u32 s{sCt}, s{sCt}, s56
s_mov_b64 exec, 0x1fff
buffer_load_dword v255, v6, {W1}, s{sCt} offen
buffer_load_dword v254, v6, {W2}, s{sCt} offen
s_mov_b64 exec, -1""")
TP = opt('tp', 0)
ns = norm(0)
for t in range(1, 28): ns += norm(t) + normc(t - 1)
ns += normc(27)
NBAR = opt("nbar", 100)
wvl = [wvdma(k) for k in range(7)]
if opt("loop2", 0):
    I("s_mov_b32 s80, 0\nL_lp2:\ns_mov_b32 s101, s100\ns_memtime s[78:79]\ns_waitcnt lgkmcnt(0)\ns_mov_b32 s99, s78")
    P.add([Ins(x.text) for x in ns])
    I("s_memtime s[78:79]\ns_waitcnt lgkmcnt(0)\ns_sub_u32 s100, s78, s99\ns_add_u32 s100, s100, s88\ns_add_u32 s80, s80, 1\ns_cmp_lt_u32 s80, 2\ns_cbranch_scc1 L_lp2")
    nstamp[0] = 14
P.add(sprinkle(ns[:NBAR], wkl, 0, opt("wkstep", 30)))
if opt("touch", 1) and TP == 1: P.add(touch)
I("s_barrier")
NWV0 = opt("nwv0", 4)
w0_ = [wvl.pop(0) for _ in range(NWV0)]
if L2N == 1: w0_[0] = l2n(0) + w0_[0]; w0_[-1] = w0_[-1] + l2n(2); wvl[-1] = wvl[-1] + l2n(1)
if L2N == 2: wvl[-1] = wvl[-1] + l2n(0) + l2n(2)
P.add(sprinkle(ns[NBAR:], w0_, opt("wv0", 30), opt("wvstep", 50)))
P.wait(*[f"wk{k}" for k in range(7)]); I("s_barrier")
stamp("wk landed", "p")
if opt("zy", 0): I(f"s_sleep {opt('zy', 0)}")
AH = 6
sW1B, sW1M, sW2E, sW2L = 40, 41, 42, 43
set2 = mk(f"""v_lshrrev_b32 v10, 4, v1
v_mul_u32_u24 v12, 3584, v10
v_lshlrev_b32 v10, 2, v10
v_and_b32 v13, 15, v1
v_xor_b32 v10, v10, v13
v_lshl_add_u32 v12, v10, 4, v12
v_add_u32 v13, {4*3584-1024}, v12
v_add_u32 v14, {2*(4*3584-1024)}, v12
v_add_u32 v15, {3*(4*3584-1024)}, v12
s_lshl_b32 s{sW1B}, s{sR}, 8
s_mul_i32 s{sD}, s{sW}, {16*3584}
s_add_u32 s{sW1B}, s{sW1B}, s{sD}
s_lshl_b32 s{sW1M}, s{sW}, 12
s_lshr_b32 s{sA}, s{sW}, 1
s_lshl_b32 s{sA}, s{sA}, 2
s_andn2_b32 s{sB}, 1, s{sW}
s_add_u32 s{sA}, s{sA}, s{sB}
s_lshl_b32 s{sB}, s{sU}, 1
s_add_u32 s44, s{sA}, s{sB}
s_xor_b32 s45, s44, 2
s_lshl_b32 s{sD}, s{sC}, 7
s_mul_i32 s{sW2E}, s44, {32*896}
s_add_u32 s{sW2E}, s{sW2E}, s{sD}
s_mul_i32 s{sW2L}, s45, {32*896}
s_add_u32 s{sW2L}, s{sW2L}, s{sD}
""")
vW2 = [vWO0, vWO1, 128, 129]
sSCR, sBIG = 46, 47
NA = opt("na", 0)
NUR = opt("nur", 2); NT1 = min(NA, opt("nt1", 99))
_u = list(range(14))
def take(n): return [_u.pop(0) for _ in range(min(n, len(_u)))]
UAW = take(NA); UR = take(NUR); UD = take(2); UE = take(3); UL = take(opt("nrl", 3)); UP = take(99)
RAWS = UAW + UR + UL
def UA(j): return 16*j
def w2slot(j):
    if j in UE: return (sSCR, 4096*UE.index(j), 254)
    if j in UAW + UR + UD: return (sSCR, 4096*(j & 1), 254)
    return (sBIG, 4096*(UL + UP).index(j), 252)
def w2dma(j):
    mb, mo, _ = w2slot(j)
    return dmag(vW2, W2, sW2E if j < 7 else sW2L, (j%7)*256*896, mb, mo, f"w2_{j}", sDM)
def w2raw(j):
    ch = [mk(f"buffer_load_dwordx4 {a_(UA(j)+4*q,4)}, v{vW2[q]}, {W2}, s81 offen offset:{1024*q}") for q in range(4)]
    ch[0] = mk(f"s_add_u32 s81, s{sW2E if j < 7 else sW2L}, {(j%7)*256*896}") + ch[0]
    return ch
def w2rd(j):
    _, mo, av = w2slot(j)
    if j in RAWS: out = [mk(f"ds_write_b128 v{131 if j in UL else 134}, {a_(UA(j)+4*q,4)} offset:{mo+1024*q}") for q in range(4)]
    else: out = [[WaitTag([f"w2_{j}"])]]
    for e in range(2):
        for mu in range(2):
            for u in range(2): out.append(mk(f"ds_read_b64_tr_b16 {a_(UA(j)+8*e+4*mu+2*u,2)}, v{av+mu} offset:{mo+2048*e+1024*u}"))
    return out
raw = flat([w2raw(j) for j in UR])
rawA = flat([w2raw(j) for j in UAW])
if opt("noid", 1): set2 = [mk(f"s_cmp_ge_u32 s{sRact}, 14\ns_cselect_b32 s26, 0, s26")] + set2
set2 += mk(f"v_add_u32 v128, {2*(7168-1024)}, v{vWO0}\nv_add_u32 v129, {3*(7168-1024)}, v{vWO0}")
set2b = [x for x in set2 if isinstance(x, Ins) and x.cls == 'valu' and x.defs[0][1] < 128]
set2b = [x for x in set2 if isinstance(x, list)] + set2b
set2a = [x for x in set2 if x not in set2b]
pro, gk = gemm_lds([(13, 1024*t, 1024*t + 256, (XF + 4*t, ACK, t == 0, False)) for t in range(28)], AH)
P.add(pro)
S = Sched(gk)
S.spread(wvl, 0, opt("wve", 20))
EARLY = opt("early", 0)
if EARLY:
    P.add(flat([x if isinstance(x, list) else [x] for x in fin + set2a])); fin = []
    wo_l = flat([dmag([vWO0, vWO1], WO, sQ, i*64*896, sXO, L_WO + 8192*i, "wo", sDM) for i in range(7)] + [dmag([vXRD0, vXRD1], X, sXRB, 0, sXO, L_XCH, "wo", sDM)])
    if EARLY == 2:
        S.spread([wo_l[2*i] + wo_l[2*i+1] for i in range(8)], 0, 28)
    else: S.spread([rawA.pop(0) for _ in range(min(len(rawA), opt("ne1", 8)))], 0, 28)
else: fin = fin + set2a
if TP == 3: S.at(opt("tpos", 22), touch)
for k, ps in enumerate((L2A, L2B)):
    if 0 <= ps < 28: S.at(ps, l2t(W1, k, 248 + k))
S.spread(fin + flat([mk(f"v_or_b32 v{WPK+q}, v{WPK+q}, v{WPT+q}\nv_or_b32 v{WPQ+q}, v{WPQ+q}, v{WPT+8+q}") for q in range(8)]), 2, 26)
P.add(S.emit())
def phi_pre(acc, wp):
    q = Prog()
    for i in range(8): q.I(f"v_cvt_pk_bf16_f32 v{acc+i}, v{acc+2*i}, v{acc+2*i+1}")
    q.I(f"{MF} {v(PK,16)}, {v(wp,4)}, {v(acc,4)}, 0\n{MF} {v(PK,16)}, {v(wp+4,4)}, {v(acc+4,4)}, {v(PK,16)}")
    return q.items
stamp("k gemm done", "mp")
wql = [wqdma(k) for k in range(7)]
P.add(wql.pop(0))
P.add(phi_pre(ACK, WPK))
imw = flat([mk(f"ds_write_b128 v{vIMW}, {v(IMG+4*i,4)} offset:{L_IMG+16*i}") for i in range(3)]) + mk(f"ds_write_b64 v{vIMW}, {v(IMG+12,2)} offset:{L_IMG+48}")
smk = sprinkle(softmax(PK, TMP, IMG, True), [wql.pop(0) for _ in range(opt("nwq0", 3))], 10, opt("wqs", 40))
if EARLY: smk = sprinkle(smk, [rawA.pop(0) for _ in range(min(len(rawA), opt("ne2", 8)))], 5, 16)
WEAVE = opt("weave", 1)
pro, gv = gemm_lds([(11, L_WV + 1024*t, L_WV + 1024*t + 256, (XF + 4*t, ACV, t == 0, False)) for t in range(28)], AH)
S = Sched(gv)
if not WEAVE:
    P.add(smk)
    P.wait(*[f"wv{k}" for k in range(7)]); I("s_barrier")
    stamp("softmax k done", "p")
    P.add(pro)
    S.spread(imw, 2, 10)
else:
    smf = softmax(PK, TMP, IMG, 2)
    n0 = next(i for i, x in enumerate(smf) if x.op == "v_exp_f32")
    P.wait(*[f"wv{k}" for k in range(4)]); I("s_barrier")
    P.add(pro)
    P.add(smf[:n0])
    stamp("softmax k done", "p")
    S.spread(smf[n0:] + imw, 0, 28)
    S.at(15 - AH, [WaitTag(["wv4", "wv5", "wv6"])] + mk("s_barrier"), 1.0)
    wql = [wqdma(k) for k in range(1, 7)]
wo_l = flat([dmag([vWO0, vWO1], WO, sQ, i*64*896, sXO, L_WO + 8192*i, "wo", sDM) for i in range(7)] + [dmag([vXRD0, vXRD1], X, sXRB, 0, sXO, L_XCH, "wo", sDM)])
if EARLY == 2: wo_l = []
S.spread(wql, 0, opt('wqe', 14))
if EARLY: S.spread([rawA.pop(0) for _ in range(min(len(rawA), opt("ne3", 8)))], 0, 22)
if L2A >= 0 or L2N: touch = [x for x in touch if W1 not in x.text]
if L2N == 1: S.at(opt("l2p", 14), l2n(3))
if L2N == 2: S.at(opt("l2p", 14), l2n(1) + l2n(3))
tlb = []
if opt("tlb", 0) & 1: tlb += mk(f"s_mov_b64 exec, 1\nbuffer_load_dword v248, v6, {OUT}, s{sOUT} offen\ns_mov_b64 exec, -1")
if opt("tlb", 0) & 2: tlb += mk(f"v_lshlrev_b32 v249, 20, v1\ns_mov_b64 exec, 0xffff\nbuffer_load_dword v249, v249, {WS}, 0 offen offset:4092\ns_mov_b64 exec, -1")
if tlb: S.at(opt("tlbp", 13), tlb)
if opt("touch", 1) and TP == 0: S.at(opt("tpos", 15), touch)
for k, ps in enumerate((L2A, L2B)):
    if 200 <= ps < 228: S.at(ps - 200, l2t(W1, k, 248 + k))
S.spread([wo_l.pop(0) for _ in range(2*opt("nwo0", 0))], opt("wos", 17), opt("woe2", 28))
P.add(S.emit())
for k in range(0, 16, 2): I(f"v_pk_mul_f32 {v(ACV+k,2)}, {v(ACV+k,2)}, v[250:251] op_sel:[0,1] op_sel_hi:[1,1]")
I(f"v_cndmask_b32 v{ACV+12}, v{ACV+12}, 1.0, {sHI}")
for i in range(8): I(f"v_cvt_pk_bf16_f32 v{IMG+16+i}, v{ACV+2*i}, v{ACV+2*i+1}")
for i in range(4, 6): I(f"ds_write_b128 v{vIMW}, {v(IMG+4*i,4)} offset:{L_IMG+16*i}")
P.wait("wq0", "wq1", "wq2", "wq3")
I("s_waitcnt lgkmcnt(0)\ns_barrier")
stamp("img written", "p")
KA = 144; KBv = 208; KD = 176
for k in range(4):
    for u in range(2):
        I(f"ds_read_b64_tr_b16 {v(KA+4*k+2*u,2)}, v{vKA} offset:{(32*k+4*u)*208}")
    for nu in range(2):
        for u in range(2):
            I(f"ds_read_b64_tr_b16 {v(KBv+8*k+4*nu+2*u,2)}, v{vKB} offset:{(32*k+4*u)*208+64+16*nu}")
proq, gq = gemm_lds([(11, L_WQ + 1024*t, L_WQ + 1024*t + 256, (XF + 4*t, ACV, t == 0, False)) for t in range(28)], AH)
for k in range(4):
    for nu in range(2):
        I(f"v_mfma_f32_16x16x32_bf16 {v(KD+4*nu,4)}, {v(KA+4*k,4)}, {v(KBv+8*k+4*nu,4)}, {'0' if k == 0 else v(KD+4*nu,4)}")
P.add(proq[:8])
for i in range(4): I(f"v_cvt_pk_bf16_f32 v{KD+8+i}, v{KD+2*i}, v{KD+2*i+1}")
I(f"buffer_store_dwordx4 {v(KD+8,4)}, v2, {WS}, s{sPST} offen sc1")
I(f"v_xor_b32 v10, v{KD+8}, v5")
I(f"buffer_store_dword v10, v4, {WS}, s{sPCK} offen sc1")
if GATE & 1: P.add(flag_store(16))
P.add(proq[8:])
stamp("partial stored", "mp")
S = Sched(gq)
bgA = wo_l + rawA
nq = min(len(bgA), opt("nq", 16))
S.spread(bgA[:nq], 0, 28)
S.spread(set2b, 2, 18)
G0 = gate("g0", vPO, vPF)
if GATE & 1: S.at(opt("g0", 14), G0.load(0))
S.at(15 - AH, [WaitTag(["wq4", "wq5", "wq6"])] + mk("s_barrier"), 1.0)
P.add(S.emit())
stamp("q gemm done", "p")
G = 16; GC = 80; SA = 96
FP = Fetch("fp", [([f"s_add_u32 s{sCt}, s{sP}, {5120*T}\nbuffer_load_dwordx4 {v(G+4*T,4)}, v{vFPD}, {WS}, s{sCt} offen sc1\nbuffer_load_dword v{GC+T}, v{vFPC}, {WS}, s{sCt} offen sc1"],
                   [G+4*T, GC+T]) for T in range(16)])
P.add(phi_pre(ACV, WPQ))
if GATE & 1: P.add(G0.check(0, 0))
I("s_barrier")
PQ = 208
smq = softmax(PK, TMP, PQ, True); f0 = opt("fp0", 80)
P.add(sprinkle(smq[:f0], bgA[nq:], 0, opt("as", 8)))
P.add(sprinkle(smq[f0:], [FP.load(T) for T in range(16)], 0, opt("fpstep", 3)))
stamp("softmax q done", "p")
w1_l = flat([dmag([12, 13, 14, 15], W1, sW1B, i*64*3584, sW1M, 16384*i, "w1", sDM) for i in range(7)])
def fpb(b):
    t = []
    for k, T in enumerate(range(4*b, 4*b+4)):
        t.append(f"v_bitop3_b32 v{10 if k == 0 else 9}, v{G+4*T}, v{GC+T}, v5 {X3}" + ("" if k == 0 else "\nv_or_b32 v10, v10, v9"))
    return "\n".join(t) + "\nv_cmp_ne_u32 vcc, 0, v10"
RI = TAIL.I if (opt("ool", 7) & 1) else I
if not (opt("ool", 7) & 1): I("s_branch L_fp_go")
RI("L_fp_retry:" + ("\ns_add_u32 s80, s80, 1" if DIAG else ""), unc=True)
for b in range(4):
    RI(fpb(b) + f"\ns_cbranch_vccz L_fp_k{b}\n" + "\n".join(FP.pieces[T][0][0] for T in range(4*b, 4*b+4)) + f"\nL_fp_k{b}:", unc=True)
RI(GUARD, unc=True)
if (opt("ool", 7) & 1): RI("s_branch L_fp_go", unc=True)
I("L_fp_go:")
I(fpb(0) + "\ns_cbranch_vccnz L_fp_retry")
S = Sched([mk(f"{MF} {v(SA,16)}, a[220:223], {v(G+4*T,4)}, {'0' if T == 0 else v(SA,16)}") for T in range(16)])
for b in range(1, 4): S.spread(mk(fpb(b) + "\ns_cbranch_vccnz L_fp_retry"), 4*b - 3, 4*b)
S.spread([w1_l.pop(0) for _ in range(opt("nw1a", 2))], 12, 16)
P.add(S.emit())
I(f"v_add_u32 v9, {L_KVX}, v{vFPD}")
for i in range(4): I(f"v_cvt_pk_bf16_f32 v{SA+8+i}, v{SA+2*i}, v{SA+2*i+1}")
I(f"ds_write_b128 v9, {v(SA+8,4)}\ns_waitcnt lgkmcnt(0)\ns_barrier")
stamp("kv summed", "mp")
KVA = 32; OD = 48
for q in range(7): I(f"ds_read_b64 {v(KVA+2*q,2)}, v{vKVX} offset:{512*q}")
P.add(w1_l.pop(0))
for s in range(3):
    I(f"{MF} {v(OD,16)}, {v(KVA+4*s,4)}, {v(PQ+4*s,4)}, {'0' if s == 0 else v(OD,16)}")
    if s == 1: P.add(w1_l.pop(0))
I(f"v_mfma_f32_32x32x8_bf16 {v(OD,16)}, {v(KVA+12,2)}, {v(PQ+12,2)}, {v(OD,16)}")
I(f"""s_lshl_b32 s{sP}, s{sTILE}, 15
s_lshr_b32 s{sB}, s{sW}, 1
s_lshl_b32 s{sB}, s{sB}, 14
s_add_u32 s{sP}, s{sP}, s{sB}
s_add_u32 s{sP}, s{sP}, {WS_O}
s_add_u32 s{sA}, s{sW1M}, {L_XCH}
v_add_u32 v132, s{sA}, v2
v_xor_b32 v133, 8192, v132
v_xor_b32 v9, 64, v{vWOR}
v_and_b32 v7, 31, v1
v_mul_u32_u24 v7, 896, v7
v_add_f32 v{OD+14}, 0x358637bd, v{OD+14}
v_rcp_f32 v{OD+14}, v{OD+14}
v_lshl_add_u32 v7, v3, 4, v7""")
for k in range(0, 14, 2): I(f"v_pk_mul_f32 {v(OD+k,2)}, {v(OD+k,2)}, {v(OD+14,2)} op_sel_hi:[1,0]")
for k in range(4): I(f"v_cvt_pk_bf16_f32 v{64+k}, v{OD+2*k}, v{OD+2*k+1}")
I(f"buffer_store_dwordx4 v[64:67], v2, {WS}, s{sOST} offen sc1")
for k in range(4, 7): I(f"v_cvt_pk_bf16_f32 v{64+k}, v{OD+2*k}, v{OD+2*k+1}")
I(f"""v_bitop3_b32 v71, v64, v5, s{sMASK} bitop3:0x28
v_and_b32 v6, s{sMASK}, v5
buffer_store_dwordx4 v[68:71], v2, {WS}, s{sOST} offen offset:1024 sc1""")
if GATE & 2: P.add(flag_store(7))
stamp("o stored", "mo")
P.wait("wo")
I(f"s_cmp_ge_u32 s{sRact}, 14\ns_cbranch_scc1 L_idle\ns_barrier")
wor = []
for s in range(16):
    hh, e = s >> 1, s & 1
    for k, av in ((0, vWOR), (1, 9)):
        for u in range(2):
            wor += mk(f"ds_read_b64_tr_b16 {a_(128+8*s+4*k+2*u,2)}, v{av} offset:{(28*hh+8*e+4*u)*128}")
XR = 224
xrr = []
for i in range(4): xrr += mk((f"v_xor_b32 v10, {16*i}, v{vXRR}\n" if i else "") + f"ds_read_b64 {v(XR+2*i,2)}, v{10 if i else vXRR}")
P.add(xrr)
G1 = gate("g1", vPO, vPF)
nb_ = min(opt("nw1b", 12), len(w1_l) - 8)
wor = sprinkle(wor, [w1_l.pop(0) for _ in range(nb_)], 0, opt("w1bs", 5))
if GATE & 2: wor = sprinkle(wor, [G1.load(0)], opt("g1", 40), 1)
P.add(wor)
OB = 16
FO = Fetch("fo", [([f"s_add_u32 s{sCt}, s{sP}, {2048*hh}\nbuffer_load_dwordx4 {v(OB+8*hh,4)}, v2, {WS}, s{sCt} offen sc1\nbuffer_load_dwordx4 {v(OB+8*hh+4,4)}, v2, {WS}, s{sCt} offen offset:1024 sc1"],
                   [OB+8*hh, OB+8*hh+7]) for hh in range(8)], masked=True, nre=opt('reo', 2))
stamp("pre o fetch", "o")
AO, AT = 80, 96
set3 = mk(f"""s_mul_i32 s{sSCR}, s{sW}, 12288
s_mul_i32 s{sBIG}, s{sW}, 28672
v_add_u32 v131, s{sBIG}, v2
s_lshl_b32 s{sB}, s{sC}, 1
s_lshr_b32 s{sD}, s{sW}, 1
s_add_u32 s{sB}, s{sB}, s{sD}
s_mul_i32 s{sA}, s{sTILE}, 14
s_add_u32 s{sB}, s{sB}, s{sA}
s_mul_i32 s{sPST}, s{sB}, 2560
s_add_u32 s{sPST}, s{sPST}, {WS_H}
s_lshr_b32 s48, s{sW}, 1
s_nop 0
v_bfe_u32 v9, v1, 2, 2
v_lshl_add_u32 v240, v3, 2, v9
v_lshlrev_b32 v254, 7, v240
v_lshlrev_b32 v240, 8, v240
v_xor_b32 v9, s{sW}, v9
v_lshl_add_u32 v240, v9, 6, v240
v_bfe_u32 v9, v1, 4, 1
v_lshlrev_b32 v9, 5, v9
v_lshl_add_u32 v9, v8, 3, v9
v_add_u32 v240, v240, v9
v_add_u32 v254, v254, v9
v_bfe_u32 v9, v1, 3, 1
v_xor_b32 v9, s48, v9
v_lshl_add_u32 v254, v9, 6, v254
s_add_u32 s{sSCR}, s{sSCR}, {L_SCR}
v_add_u32 v252, s{sBIG}, v254
v_xor_b32 v253, 64, v252
v_add_u32 v254, s{sSCR}, v254
v_add_u32 v134, s{sSCR}, v2
v_xor_b32 v255, 64, v254
v_xor_b32 v241, 64, v240
v_xor_b32 v242, 128, v240
v_xor_b32 v243, 192, v240""") + flat([mk(f"v_add_u32 v{244+m}, 57344, v{240+m}") for m in range(4)])
pre2 = []
for i in range(8): pre2 += mk(f"v_lshlrev_b32 v{112+2*i}, 16, v{XR+i}\nv_and_b32 v{113+2*i}, s{sHIM}, v{XR+i}")
for s in range(1, 16, 2): pre2 += mk(f"v_accvgpr_write_b32 a{128+8*s+3}, 0\nv_accvgpr_write_b32 a{128+8*s+7}, 0")
if GATE & 2:
    P.add(pre2); P.add(G1.check(0, 0))
    stamp("gate1", "o")
    for hh in range(8): P.add(FO.load(hh))
else:
    P.add(pre2[16:]); P.add(set3)
    I("s_waitcnt lgkmcnt(0)\ns_barrier")
    P.add(sprinkle(flat(flat([w2rd(j) for j in UAW[:NT1]])), [w1_l.pop(0) for _ in range(min(len(w1_l), opt("nw1s", 4)))], 0, 8))
    stamp("shadow done", "o")
    P.add(sprinkle(pre2[:16], [FO.load(hh) for hh in range(8)], 0, 2))
I("s_waitcnt lgkmcnt(0)\ns_barrier")
stamp("fo issued", "o")
g2 = []
for s in range(16):
    for k, acc in ((1, AT), (0, AO)):
        c = ("0" if k else v(112,16)) if s == 0 else v(acc,16)
        g2.append(mk(f"{MF} {v(acc,16)}, {a_(128+8*s+4*k,4)}, {v(OB+4*s,4)}, {c}"))

P.add(FO.check(0, 7))
stamp("fo0", "o")
S = Sched(g2)
for hh in range(1, 8): S.spread(FO.checkc(hh, 7), 4*hh - 3, 4*hh)
S.spread(w1_l + [raw.pop(0) for _ in range(min(len(raw), opt("rawb", 4)))], 0, 32)
P.add(S.emit())
stamp("p2 gemm done", "o")
for i in range(4): I(f"ds_write_b128 v132, {v(AT+4*i,4)} offset:{1024*i}")
I("v_mov_b32 v112, 0\nv_mov_b32 v113, 0\ns_waitcnt lgkmcnt(0)\ns_barrier")
for i in range(4): I(f"ds_read_b128 {v(AT+4*i,4)}, v133 offset:{1024*i}")
HR = XR
for k in range(0, 8, 2): I(f"v_pk_add_f32 {v(AO+k,2)}, {v(AO+k,2)}, {v(AT+k,2)}")
for i in range(4): I(f"v_cvt_pk_bf16_f32 v{HR+i}, v{AO+2*i}, v{AO+2*i+1}")
I(f"buffer_store_dwordx4 {v(HR,4)}, v2, {WS}, s{sPST} offen sc1")
for k in range(8, 16, 2): I(f"v_pk_add_f32 {v(AO+k,2)}, {v(AO+k,2)}, {v(AT+k,2)}")
for i in range(4, 8): I(f"v_cvt_pk_bf16_f32 v{HR+i}, v{AO+2*i}, v{AO+2*i+1}")
I(f"buffer_store_dwordx4 {v(HR+4,4)}, v2, {WS}, s{sPST} offen offset:1024 sc1")
for i in range(8): I(f"v_dot2c_f32_bf16 v112, s{sONES}, v{HR+i}\nv_dot2c_f32_bf16 v113, v{HR+i}, v{HR+i}")
I(f"""v_bitop3_b32 v10, v{HR}, v{HR+4}, v5 {X3}
v_permlane32_swap_b32 v112, v113
v_add_f32 v112, v112, v113
buffer_store_dword v112, v4, {WS}, s{sPST} offen offset:2048 sc1
v_xor_b32 v113, v10, v112
buffer_store_dword v113, v4, {WS}, s{sPST} offen offset:2304 sc1""")
def selft(sreg, nl): return mk(f"s_mov_b64 exec, {(1 << nl) - 1}\nbuffer_load_dword v135, v134, {WS}, s{sreg} offen sc1\ns_mov_b64 exec, -1")
SELF = opt("self", 0)
if SELF & 1: P.add(selft(sPST, 20))
if GATE & 4: P.add(flag_store(14))
stamp("h stored", "moh")
HB = 16; ST = 192
ACC = [144, 160, 176, 192]; AUG = 232
set4 = mk(f"""s_lshl_b32 s{sB}, s{sT3}, 2
s_add_u32 s{sB}, s{sB}, s{sW}
s_mul_i32 s{sP}, s{sB}, {14*2560}
s_add_u32 s{sP}, s{sP}, {WS_H}
s_mul_i32 s{sA}, s{sB}, 56
s_lshl_b32 s{sD}, s{sR}, 2
s_add_u32 s{sA}, s{sA}, s{sD}
s_mul_i32 s{sQ}, s{sA}, 2304
s_add_u32 s{sQ}, s{sQ}, {WS_H1}
v_lshlrev_b32 v13, 3, v1
s_lshl_b32 s{sA}, s{sW}, 9
s_add_u32 s{sA}, s{sA}, {L_AUG}
v_add_u32 v13, s{sA}, v13
v_mov_b32 v222, 0""")
FH = Fetch("fh", [([f"s_add_u32 s{sCt}, s{sP}, {2560*p}\nbuffer_load_dwordx4 {v(HB+8*p,4)}, v2, {WS}, s{sCt} offen sc1\nbuffer_load_dwordx4 {v(HB+8*p+4,4)}, v2, {WS}, s{sCt} offen offset:1024 sc1\n"
                    f"buffer_load_dword v{ST+2*p}, v4, {WS}, s{sCt} offen offset:2048 sc1\nbuffer_load_dword v{ST+2*p+1}, v4, {WS}, s{sCt} offen offset:2304 sc1"],
                   [HB+8*p, HB+8*p+4, ST+2*p, ST+2*p+1]) for p in range(14)], nre=opt('reh', 2))
for i in range(4): I(f"v_mov_b32 v{AUG+i}, s{sONES}")
P.wait("w1"); I("s_barrier")
stamp("w1 landed", "h")
if opt("zz", 0): I(f"s_sleep {opt('zz', 0)}")
def w1a(t, k): return (240 + k + (4 if t >= 14 else 0), (t % 14) * 4096, (t % 14) * 4096 + 2048)
st3 = [w1a(t, 0) + ((AUG, ACC[2], t == 0, True),) for t in range(28)]
TWO = opt("two", 1); N1 = 2 if TWO else 3
for t in range(28):
    for k in range(N1): st3.append(w1a(t, k) + ((HB + 4*t, ACC[k], t == 0, False),))
for t in range(28):
    for k in range(N1, 4): st3.append(w1a(t, k) + ((HB + 4*t, ACC[k], t == 0, False),))
pro, g3 = gemm_lds(st3, AH)
P.add(pro)
S3 = Sched(g3)
S3.spread(set4, 0, 8)
S3.spread(raw + w2dma(UD[0]) + w2dma(UD[1]), 0, opt("c0e", 20)); raw = []
NH0 = opt("nh0", 4); H0 = opt("h0", 24)
G2 = gate("g2", vPO, vPF)
if GATE & 4:
    S3.at(opt("g2", 12), G2.load(0), 0.9)
    S3.at(27, G2.check(0, 0) + stampi("gate2", "h") + flat([FH.load(p) for p in range(NH0)]), 0.5)
else: S3.spread(flat([FH.loadc(p) for p in range(NH0)]), H0, 27)
cs = ACC[2]
csx = mk(f"""v_cvt_pk_bf16_f32 v{AUG}, v{cs}, v{cs}
v_lshlrev_b32 v{AUG+1}, 16, v{AUG}
v_sub_f32 v{AUG+1}, v{cs}, v{AUG+1}
v_cvt_pk_bf16_f32 v{AUG}, v{cs}, v{AUG+1}
v_and_b32 v{AUG+1}, 0xffff, v{AUG}
v_cndmask_b32 v{AUG}, v{AUG}, 0, {sHI}
v_cndmask_b32 v{AUG+1}, v{AUG+1}, 0, {sHI}
ds_write_b64 v13, {v(AUG,2)}""")
S3.at(27, stampi("colsum done", "h") + csx + FH.check(0, NH0 - 1) + stampi("fh0", "h"), 1.0)
B0 = 28
for p in range(14):
    b = B0 + 2*N1*p
    if p + NH0 < 14:
        for k_, c_ in enumerate(FH.loadc(p + NH0)): S3.at(b + ((0, 2, 1, 3) if TWO else (0, 2, 4, 4))[k_], c_, 0.2)
    S3.at(b, mk(f"v_add_f32 v222, v222, v{ST+2*p}"), 0.0)
    if p + 1 < 14: S3.spread(FH.checkc(p + 1, min(13, p + NH0 - 1)), b + 1, b + 2*N1)
    if p in (3, 7, 11): S3.at(b + 2*N1 - 1, stampi(f"fh{p+1}", "h"), 1.0)
S3.at(B0 + 14, mk("s_barrier") + flat([mk(f"v_xor_b32 v9, {512*k}, v13\nds_read_b64 {v(AUG+2*k,2)}, v9") for k in range(1, 4)]), 0.0)
mid = mk(f"""v_mul_f32 v220, {fhex(1/448)}, v222
v_mov_b32 v221, v220
s_nop 0
v_permlane32_swap_b32 v220, v221
v_fma_f32 v221, -v220, v220, v221
v_max_f32 v221, 0, v221
v_add_f32 v221, 0x3727c5ac, v221
v_rsq_f32 v251, v221
v_cvt_pk_bf16_f32 v222, -v220, -v220
v_lshlrev_b32 v9, 16, v222
v_sub_f32 v9, -v220, v9
v_cvt_pk_bf16_f32 v223, v9, 0
v_mul_f32 v250, v221, v251
v_mul_f32 v251, 0xbfb8aa3b, v251
v_cndmask_b32 v222, v222, 0, {sHI}
v_cndmask_b32 v223, v223, 0, {sHI}""")
S3.spread(mid, *((B0 + 53, B0 + 59) if TWO else (B0 + 79, B0 + 84)))
def aug(k): return mk(f"v_mfma_f32_32x32x8_bf16 {v(ACC[k],16)}, {v(AUG+2*k,2)}, v[222:223], {v(ACC[k],16)}")
SLT = 132
def silu(k, pk):
    q = Prog(); a = ACC[k]; t = 208
    q.I(f"s_xor_b32 s50, s{sW}, {k}\ns_mul_i32 s50, s50, 2304\ns_add_u32 s50, s50, s{sQ}")
    for half in range(2):
        b = a + 8 * half
        if pk:
            for j in range(0, 8, 2): q.I(f"v_pk_mul_f32 {v(t+j,2)}, {v(b+j,2)}, v[250:251] op_sel:[0,1] op_sel_hi:[1,1]")
        else:
            for j in range(8): q.I(f"v_mul_f32 v{t+j}, v{b+j}, v251")
        for j in range(8): q.I(f"v_exp_f32 v{t+j}, v{t+j}")
        if pk:
            for j in range(0, 8, 2): q.I(f"v_pk_fma_f32 {v(t+j,2)}, {v(t+j,2)}, v[250:251], v[250:251] op_sel_hi:[1,0,0]")
        else:
            for j in range(8): q.I(f"v_fma_f32 v{t+j}, v{t+j}, v250, v250")
        for j in range(8): q.I(f"v_rcp_f32 v{t+j}, v{t+j}")
        if pk:
            for j in range(0, 8, 2): q.I(f"v_pk_mul_f32 {v(b+j,2)}, {v(b+j,2)}, {v(t+j,2)}")
        else:
            for j in range(8): q.I(f"v_mul_f32 v{b+j}, v{b+j}, v{t+j}")
        for j in range(4): q.I(f"v_cvt_pk_bf16_f32 v{b+j}, v{b+2*j}, v{b+2*j+1}")
        q.I(f"buffer_store_dwordx4 {v(b,4)}, v2, {WS}, s50 offen offset:{1024*half} sc1")
    q.I(f"v_bitop3_b32 v216, v5, v{a}, v{a+8} {X3}")
    q.I(f"buffer_store_dword v216, v4, {WS}, s50 offen offset:2048 sc1")
    return q.items + ([selft(50, 18)] if SELF & 2 and not pk else [])
E0 = B0 + 28*N1
assert not raw
if TWO:
    S3.spread(flat([w2rd(j) for j in UD + UR + UAW[NT1:]]), B0 + 8, B0 + 42)
    S3.at(B0 + 34, mk("s_barrier"), 0.0)
    S3.spread(flat([w2dma(j) for j in UE]), B0 + 48, E0 + opt("wde", 12))
else:
    S3.spread(flat([w2rd(j) for j in UD + UR + UAW[NT1:]]), B0 + 22, B0 + 58)
    S3.at(B0 + 44, mk("s_barrier"), 0.0)
    S3.spread(flat([w2dma(j) for j in UE]), B0 + 64, E0)
B4 = 16
CKR = [240, 241, 244, 245, 248, 249, 217, 218, 219, 130, 242, 246, 243, 247]
C4 = [[a_(224,16), a_(240,16)], [v(ACC[0],16), v(ACC[1],16)]]
set5 = mk(f"""s_mul_i32 s{sA}, s{sTILE}, 56
s_xor_b32 s{sB}, s{sTILE}, 1
s_mul_i32 s{sB}, s{sB}, 56
s_add_u32 s51, s{sB}, s44
s_add_u32 s52, s{sA}, s44
s_add_u32 s53, s{sB}, s45
s_add_u32 s54, s{sA}, s45""")
for k in range(4):
    set5 += mk(f"s_mul_i32 s{51+k}, s{51+k}, 2304\ns_add_u32 s{51+k}, s{51+k}, {WS_H1}")
S3.spread(set5, B0 + 42, B0 + 52)
def piece4(n):
    st, i = n // 7, n % 7; r = B4 + 8 * (n % 14); c = CKR[n % 14]
    return ([f"s_add_u32 s{sCt}, s{51+st}, {8*2304*i}\nbuffer_load_dwordx4 {v(r,4)}, v2, {WS}, s{sCt} offen sc1\nbuffer_load_dwordx4 {v(r+4,4)}, v2, {WS}, s{sCt} offen offset:1024 sc1\n"
             f"buffer_load_dword v{c}, v4, {WS}, s{sCt} offen offset:2048 sc1"], [r, r+4, c])
F4 = Fetch("f4", [piece4(n) for n in range(28)], nre=opt("re4", 3))
ND = opt("nd", 4)
rawl = flat([w2raw(j) for j in UL])
nr0 = min(len(rawl), opt("nr0", 4))
if TWO:
    S3.at(E0 - 1, stampi("p3 pass1 done", "mh"), 1.0)
    g3[E0 + 3] = aug(0) + g3[E0 + 3]; g3[E0 + 4] = aug(1) + g3[E0 + 4]
    S3.spread(silu(0, False) + [stampi("silu0 done", "e")], E0 + 5, E0 + opt("s0e", 21))
    S3.spread(silu(1, False), E0 + opt("s0e", 21), E0 + opt("s1e", 44))
    S3.spread(rawl, E0 + opt("wde", 12), E0 + opt("rle", 36))
    DEEP = opt("deep", 0)
    if DEEP:
        rng = [(opt("a0", -18), opt("b0", 4)), (opt("a1", 6), opt("b1", 24)), (opt("a2", 26), opt("b2", 50)), (opt("a3", 50), opt("b3", 78))]
        f4pos = []
        for n in range(28):
            a, b = rng[n // 7]
            for k_, c_ in enumerate(F4.loadc(n)):
                pos = a + (b - a) * ((n % 7) + (0, 0.45, 0.9)[k_]) / 7
                lo = (4*n + 4 - 56) if n < 14 else 4*(n - 14) + 4
                pos = max(pos, lo + 0.01*k_); assert pos < 4*n - 3 or n == 0, (n, pos)
                f4pos.append((pos, c_))
        for i_ in range(1, len(f4pos)): assert f4pos[i_][0] >= f4pos[i_-1][0], i_
        import math
        for pos, c_ in f4pos:
            if pos < 0: S3.at(E0 + 56 + math.floor(pos), c_, pos - math.floor(pos))
    else: S3.spread(flat([F4.loadc(n) for n in range(ND)]), E0 + opt("f4s", 52), E0 + 56)
    P.add(S3.emit())
    P.add(aug(2) + aug(3))
else:
    S3.at(E0 - 1, stampi("p3 pass1 done", "mh") + aug(0) + aug(1) + aug(2) + sprinkle(silu(0, True), rawl[:nr0], 3, 12) + stampi("silu0 done", "e"), 1.0)
    S3.spread(silu(1, False), E0, E0 + 26)
    S3.spread(rawl[nr0:], E0, E0 + 14)
    S3.spread(flat([F4.loadc(n) for n in range(ND)]), E0 + opt("f4s", 16), E0 + 28)
    P.add(S3.emit())
    P.add(aug(3))
I("s_barrier")
stamp("p3 gemm done", "me")
g4 = []
for n in range(28):
    st, i = n // 7, n % 7; hf, par = st >> 1, st & 1
    for e in range(2):
        for mu in range(2):
            zero = hf == 0 and i == 0 and e == 0 and not (par == 1 and mu == 0)
            g4.append(mk(f"{MF} {C4[par][mu]}, {a_(UA(7*hf+i)+8*e+4*mu,4)}, {v(B4+8*(n%14)+4*e,4)}, {'0' if zero else C4[par][mu]}"))
P.add(F4.check(0, ND - 1))
S = Sched(g4)
for n in range(28):
    if n + ND < 28 and not (TWO and DEEP):
        for k_, c_ in enumerate(F4.loadc(n + ND)): S.at(4*n + (0, 2, 1)[k_], c_, 0.2)
    if n + 1 < 28: S.spread(F4.checkc(n + 1, min(27, n + ND)), 4*n + 2, 4*n + 4)
    if n in (6, 13, 20): S.at(4*n + 3, stampi(f"stage{n//7} done", "e"), 1.0)
unp = []
for i in range(8): unp += mk(f"v_lshlrev_b32 v{ACC[0]+2*i}, 16, v{HR+i}\nv_and_b32 v{ACC[0]+1+2*i}, s{sHIM}, v{HR+i}")
if TWO and DEEP:
    for pos, c_ in f4pos:
        if pos >= 0: S.at(int(pos), c_, pos - int(pos))
S2E, S3E = opt("s2e", 18), opt("s3e", 44)
S.spread(silu(2, False), 0, S2E)
S.spread(unp, 22, 27)
S.spread(silu(3, False), S2E, S3E)
S.spread(flat([w2rd(j) for j in UE if j < 7]), 0, 14)
S.spread(flat([w2dma(j) for j in UP]), opt("w2a", 2), opt("w2b", 44))
for j in [x for x in UE + UL + UP if x >= 7]: S.spread(w2rd(j), 44 + 5*(j-7), 49 + 5*(j-7))
S.at(82, mk(f"""s_lshl_b32 s{sA}, s{sW}, 14
v_add_u32 v13, s{sA}, v2
v_xor_b32 v9, 16384, v13
v_xor_b32 v12, 32768, v13
v_xor_b32 v14, 49152, v13
s_waitcnt lgkmcnt(0)
s_barrier"""))
S.spread([mk(f"ds_write_b128 v{9 if mu == 0 else 14}, {a_(224+16*mu+4*i,4)} offset:{4096*(2*mu+1)+1024*i}") for mu in range(2) for i in range(4)], 87, 99)
S.at(100, mk("s_waitcnt lgkmcnt(0)\ns_barrier"), 0.0)
S.spread([mk(f"ds_read_b128 {v(ACC[2+mu]+4*i,4)}, v13 offset:{4096*(2*mu+1)+1024*i}") for mu in range(2) for i in range(4)], 100, 104)
S.spread([mk(f"v_add_f32 v{ACC[2]+k}, v{ACC[2]+k}, v{ACC[3]+k}") for k in range(16)], 107, 112)
P.add(S.emit())
stamp("p4 gemm done", "me")
for i in range(4): I(f"ds_write_b128 v12, {v(ACC[1]+4*i,4)} offset:{8192+1024*i}")
if opt("cout", 0):
    I(f"""v_lshlrev_b32 v16, 3, v3
v_sub_u32 v16, v{vXRR}, v16
v_lshlrev_b32 v17, 4, v3
v_xor_b32 v16, v16, v17
v_xor_b32 v17, 32, v16
s_add_u32 s{sA}, s{sXO}, {L_XCH}
v_add_u32 v18, s{sA}, v2""")
I("s_waitcnt lgkmcnt(0)\ns_barrier")
for i in range(4): I(f"ds_read_b128 {v(ACC[3]+4*i,4)}, v13 offset:{8192+1024*i}")
for k in range(0, 16, 2): I(f"v_pk_add_f32 {v(ACC[0]+k,2)}, {v(ACC[0]+k,2)}, {v(ACC[2]+k,2)}")
for hf in range(2):
    b = ACC[0] + 8*hf
    for k in range(0, 8, 2): I(f"v_pk_add_f32 {v(b+k,2)}, {v(b+k,2)}, {v(ACC[3]+8*hf+k,2)}")
    for i in range(4): I(f"v_cvt_pk_bf16_f32 v{96+4*hf+i}, v{b+2*i}, v{b+2*i+1}")
    if not opt("cout", 0):
        I(f"v_permlane32_swap_b32 v{96+4*hf}, v{98+4*hf}\nv_permlane32_swap_b32 v{97+4*hf}, v{99+4*hf}\nbuffer_store_dwordx4 {v(96+4*hf,4)}, v7, {OUT}, s{sOUT} offen offset:{32*hf} {OPT.get('ofl', '')}")
    else:
        I(f"v_permlane32_swap_b32 v{96+4*hf}, v{98+4*hf}\nv_permlane32_swap_b32 v{97+4*hf}, v{99+4*hf}\nds_write_b128 v{16+hf}, {v(96+4*hf,4)}")
if opt("cout", 0):
    I("s_waitcnt lgkmcnt(0)\ns_barrier")
    for i in range(2): I(f"ds_read_b128 {v(104+4*i,4)}, v18 offset:{1024*i}")
    for i in range(2): I(f"buffer_store_dwordx4 {v(104+4*i,4)}, v{vXRD0+i}, {OUT}, s{sXRB} offen offset:{1024*i} {OPT.get('ofl', '')}")
stamp("end", "mpohez")
I(f"""s_cmp_lg_u32 s2, 0
s_cbranch_scc1 L_ex0
v_mov_b32 v9, 0""")
I(f"buffer_store_dword v5, v9, {WS}, 0 offen sc1", unc=True)
I("L_ex0:")
if opt("enc", 0):
    mode = opt("enc", 0)
    if mode <= 4:
        I(f"s_bfe_u32 s{sA}, s80, {hex(0x80000 | (8*(mode-1)))}\ns_min_u32 s{sA}, s{sA}, 1\ns_mul_i32 s{sA}, s{sA}, 2000", unc=True)
    else:
        I(f"s_waitcnt lgkmcnt(0)\ns_sub_u32 s{sA}, s{sSTAMP+2}, s78\ns_mul_i32 s{sA}, s{sA}, 4", unc=True)
    I(f"""s_memrealtime s[40:41]
s_waitcnt lgkmcnt(0)
L_enc:
s_memrealtime s[42:43]
s_waitcnt lgkmcnt(0)
s_sub_u32 s42, s42, s40
s_cmp_lt_u32 s42, s{sA}
s_cbranch_scc1 L_enc
s_branch L_end""", unc=True)
if opt("dbg", 0):
    I(f"""s_cmp_lg_u32 s{sW}, 0
s_cbranch_scc1 L_end
s_load_dwordx2 s[40:41], s[0:1], 64
s_mov_b32 s42, 256
s_mov_b32 s43, 0x20000
s_mov_b64 exec, 1
v_mov_b32 v9, 0
s_waitcnt lgkmcnt(0)""", unc=True)
    for k in range(nstamp[0]):
        I(f"s_sub_u32 s{sA}, s{sSTAMP+2*k}, s78\nv_mov_b32 v10, s{sA}\nbuffer_atomic_umax v10, v9, s[40:43], 0 offen offset:{4*k}\ns_nop 1", unc=True)
    I(f"""v_mov_b32 v10, s78
buffer_atomic_umax v10, v9, s[40:43], 0 offen offset:32
s_not_b32 s{sA}, s78
v_mov_b32 v11, s{sA}
buffer_atomic_umax v11, v9, s[40:43], 0 offen offset:36
v_mov_b32 v12, s{sSTAMP+2*(nstamp[0]-1)}
buffer_atomic_umax v12, v9, s[40:43], 0 offen offset:40
v_mov_b32 v13, s80
buffer_atomic_add v13, v9, s[40:43], 0 offen offset:44
s_branch L_end""", unc=True)
I("L_exit:")
if DIAG and not opt("dbg", 0):
    I(f"s_cmp_lg_u32 s{sW}, {opt('dw', 0)}\ns_cbranch_scc1 L_end\ns_lshl_b32 s{sA}, s2, 7\ns_add_u32 s{sA}, s{sA}, {WS_DIAG}\nv_mov_b32 v9, 0", unc=True)
    for k in range(nstamp[0]):
        I(f"s_waitcnt lgkmcnt(0)\nv_mov_b32 v10, s{sSTAMP+2*k}\nbuffer_store_dword v10, v9, {WS}, s{sA} offen offset:{4*k}", unc=True)
    if SEL == ["z"]: I(f"v_mov_b32 v10, s78\nbuffer_store_dword v10, v9, {WS}, s{sA} offen offset:120", unc=True)
    I(f"v_mov_b32 v10, s80\nbuffer_store_dword v10, v9, {WS}, s{sA} offen offset:124", unc=True)
I("L_end:\ns_endpgm")
I(f"""L_idle:
s_and_b32 s{sA}, s{sT2}, 1
s_lshl_b32 s{sA}, s{sA}, 1
s_add_u32 s{sA}, s{sA}, s{sRact}
s_sub_u32 s{sA}, s{sA}, 14
s_lshl_b32 s{sA}, s{sA}, 2
s_add_u32 s{sA}, s{sA}, s{sW}
s_lshl_b32 s{sA}, s{sA}, 13
v_lshlrev_b32 v9, 7, v1
s_lshr_b32 s{sD}, s{sT2}, 1
s_mul_i32 s{sD}, s{sD}, {8*56*2304}
s_add_u32 s{sD}, s{sD}, {WS_H1}
s_add_u32 s{sD}, s{sD}, s{sA}
s_mov_b32 s{sB}, {opt("idle2", 0)}
s_cmp_eq_u32 s{sB}, 0
s_cbranch_scc1 L_idle3
L_idle2:
buffer_load_dword v11, v9, {WS}, s{sD} offen {OPT.get("i2f", "")}
s_add_u32 s{sD}, s{sD}, {16*8192}
s_sub_u32 s{sB}, s{sB}, 1
s_cmp_lg_u32 s{sB}, 0
s_cbranch_scc1 L_idle2
L_idle3:
s_mov_b32 s{sB}, {opt("idle", 0)}
s_cmp_eq_u32 s{sB}, 0
s_cbranch_scc1 L_exit
L_idle1:
buffer_load_dword v11, v9, {W2}, s{sA} offen
s_add_u32 s{sA}, s{sA}, {16*8192}
s_sub_u32 s{sB}, s{sB}, 1
s_cmp_lg_u32 s{sB}, 0
s_cbranch_scc1 L_idle1
s_branch L_exit""", unc=True)
P.add(TAIL.items)

for it in P.items:
    if isinstance(it, Ins) and it.text.startswith('buffer_load_dword v142,'): it.defs = []
PL = opt("plain", 0)
for it in P.items:
    if isinstance(it, Ins) and it.op.startswith("buffer_store") and "sc1" in it.text:
        ish1 = " s50 " in it.text or " s49 " in it.text
        ish = ("v[224:227]" in it.text or "v[228:231]" in it.text or "v112," in it.text or "v113," in it.text)
        if (ish and PL & 1) or (ish1 and PL & 2): it.text = it.text.replace(" sc1", OPT.get("pfl", ""))
if opt("pld", 0):
    c = 0
    for it in P.items:
        if isinstance(it, Ins) and it.op.startswith("buffer_load") and "sc1" in it.text and " s56 " in it.text and not it.uncounted:
            c += 1
            kind = 0 if c <= 48 else 1 if c <= 104 else 2
            if opt("pld", 0) & kind: it.text = it.text.replace(" sc1", OPT.get("lfl", ""))
if opt("nochk", 0):
    new = []; seen_end = False
    for it in P.items:
        if isinstance(it, Ins):
            if opt("nochk", 0) == 2 and not seen_end:
                if it.text.startswith("L_exit"): seen_end = True
                elif it.uncounted or it.op in ("s_cbranch_vccz", "s_branch"): continue
            if it.op == "s_cbranch_vccz" and not it.uncounted: it = Ins(it.text.replace("s_cbranch_vccz", "s_branch"))
            elif it.op == "s_cbranch_vccnz" and not it.uncounted: continue
            t = it.text
            if it.op.startswith("buffer_store") and "sc1" in t and not it.uncounted:
                kind = 8 if " s50 " in t else 4 if ("v[224" in t or "v[228" in t or "v112," in t or "v113," in t) else 2 if f" s{sOST} " in t else 1
                if opt("nost", 0) & kind: continue
            if it.op.startswith("buffer_load") and "sc1" in t and " s56 " in t and not it.uncounted:
                cnt_ld = globals().setdefault("_c", [0]); cnt_ld[0] += 1; c = cnt_ld[0]
                kind = 1 if c <= 32 else 2 if c <= 48 else 4 if c <= 104 else 8
                if opt("nold", 0) & kind: continue
        new.append(it)
    P.items = new
body, items = render(P.items)
if opt("align", 1):
    import subprocess, re as _re
    open("_al.s", "w").write('.amdgcn_target "amdgcn-amd-amdhsa--gfx950"\n.text\n' + body)
    subprocess.run(["clang", "-x", "assembler", "-target", "amdgcn-amd-amdhsa", "-mcpu=gfx950", "-c", "_al.s", "-o", "_al.o"], check=True)
    dis = subprocess.run(["llvm-objdump", "-d", "--mcpu=gfx950", "_al.o"], capture_output=True, text=True).stdout
    sizes = [4 * len(m.group(1).split()) for m in _re.finditer(r"// [0-9A-F]{12}: ((?:[0-9A-F]{8} ?)+)", dis)]
    real = [i for i in items if i.cls not in ('label', 'dir')]
    assert len(sizes) == len(real), (len(sizes), len(real))
    sz = {id(i): n for i, n in zip(real, sizes)}
    new = []; off = 0; nal = 0; MINRUN = opt("minrun", 6)
    for k, it in enumerate(items):
        if id(it) in sz and sz[id(it)] == 8 and off % 8 == 4 and not it.uncounted:
            run = 0
            for j in items[k:k + MINRUN + 4]:
                if id(j) not in sz: continue
                if sz[id(j)] != 8 or j.cls == 'mfma': break
                run += 1
            if run >= MINRUN:
                p = new[-1] if new else None
                if p is not None and p.cls == 'valu' and sz.get(id(p)) == 4 and not p.op.startswith(('v_permlane', 'v_dot2c', 'v_readfirst', 'v_accvgpr', 'v_cmp', 'v_cndmask')) and not p.op.endswith('_e64'):
                    p.text = p.text.replace(p.op, p.op + "_e64", 1)
                else: new.append(Ins("s_nop 0"))
                off += 4; nal += 1
        new.append(it); off += sz.get(id(it), 0)
    items = new
    body = '\n'.join(('' if i.cls == 'label' else '  ') + i.text for i in items) + '\n'
    print("alignment fixes:", nal, "code bytes", off)
hdr = open("cdna_kernels/" + NAME + ".s.ref").read().split("; Override launch")[0]
out = hdr + f"""; @launch grid=(256,1,1) block=(256,1,1) lds={LDS_SIZE}
.amdgcn_target "amdgcn-amd-amdhsa--gfx950"
.text
.globl {NAME}_kernel
.p2align 8
.type {NAME}_kernel,@function
{NAME}_kernel:
{body}.fill 2048, 4, 0xbf810000
.section .rodata,"a"
.p2align 6
.amdhsa_kernel {NAME}_kernel
  .amdhsa_next_free_vgpr 512
  .amdhsa_next_free_sgpr 102
  .amdhsa_accum_offset 256
  .amdhsa_group_segment_fixed_size 0
  .amdhsa_kernarg_size 80
  .amdhsa_user_sgpr_count 2
  .amdhsa_user_sgpr_kernarg_segment_ptr 1
  .amdhsa_system_sgpr_workgroup_id_x 1
.end_amdhsa_kernel
"""
open(sys.argv[1], "w").write(out)
n = sum(1 for i in items if i.cls not in ('label', 'dir'))
nu_ = sum(1 for i in items if i.cls not in ('label', 'dir') and i.uncounted)
print("instructions:", n, "(slow path", nu_, ") nops:", sum(1 for i in items if i.op == 's_nop'), "waits:", sum(1 for i in items if i.op == 's_waitcnt'), "stamps", nstamp[0])
```

```python
import sys, struct
from asmlib import *

NAME = "sequential_preLN__linear_kernel_hedgehog__dense_activation_silu__prompt"
DIAG = int(sys.argv[2]) if len(sys.argv) > 2 else 0
OPT = dict(a.split('=') for a in sys.argv[3:])
def opt(k, d): return int(OPT[k], 0) if k in OPT else d

WS_PART = 0x40000
WS_O    = 0x240000
WS_H    = 0x440000
WS_H1   = 0x680000
WS_DIAG = 0xE80000
WS_FLG  = 0xF00000
WS_SIZE = 0xF80000
XW = 28672
L_WV, L_WQ, L_WK, L_WO = 0, 28672, 57344, 86016
L_IMG = L_WK
L_KVX = 143360
L_XCH = 147456
L_SCR = 114688
L_AUG = 161792
LDS_SIZE = 163840
sW, sT, sH, sT2, sR = 3, 4, 5, 6, 7
X, WQKV, WPHI, WO, W1, W2, OUT, WS = [f"s[{i}:{i+3}]" for i in range(8, 40, 4)]
sKX, sKW = 40, 47
sHQ, sHIM = 54, 55
sRET = "s[56:57]"
sSPIN, sP, sU, sC, sMASK, sQ = 58, 59, 60, 61, 62, 63
sHI = "s[64:65]"
sLOG = "s[66:67]"
sONES, sTILE = 68, 69
sA, sB, sCt, sD = 70, 71, 72, 73
sRact, sXO = 74, 75
sWB, sWQ = 76, 77
sLAST, sFLAG, sWM, sPST, sPCK, sOST, sXRB, sOUT = 80, 81, 82, 83, 84, 85, 86, 87
sSTAMP = 88

def v(a, n=1): return f"v{a}" if n == 1 else f"v[{a}:{a+n-1}]"
def a_(a, n=1): return f"a{a}" if n == 1 else f"a[{a}:{a+n-1}]"
def fhex(x): return hex(struct.unpack('<I', struct.pack('<f', x))[0])
def flat(l): return sum(l, [])
P = Prog(); I = P.I
TAIL = Prog()
nstamp = [0]
SEL = OPT.get("st", "m").split(",")
PICK = [int(x) for x in OPT["pick"].split(",")] if "pick" in OPT else None
allst = [0]
def stampi(name, grp="m"):
    idx = allst[0]; allst[0] += 1
    if not DIAG: return []
    if PICK is not None:
        if name != "start" and idx not in PICK:
            print(f"   - {idx}: {name}"); return []
    elif name != "start" and not (set(grp) & set(SEL)): return []
    k = nstamp[0]; nstamp[0] += 1
    assert k < 7
    print(f"stamp {k}: [{idx}] {name}")
    op = "s_memtime" if DIAG == 2 else "s_memrealtime"
    return mk(f"{op} s[{sSTAMP+2*k}:{sSTAMP+2*k+1}]")
def stamp(name, grp="m"): P.add(stampi(name, grp))
X3 = "bitop3:0x96"

def chk_code(regs, masked):
    r = list(regs)
    if masked: return f"v_bitop3_b32 v10, v{r[0]}, v{r[1]}, s{sMASK} bitop3:0x28\nv_cmp_ne_u32 vcc, v10, v6"
    if len(r) == 1: return f"v_cmp_ne_u32 vcc, v{r[0]}, v5"
    if len(r) == 2: t = f"v_xor_b32 v10, v{r[0]}, v{r[1]}"
    else:
        t = f"v_bitop3_b32 v10, v{r[0]}, v{r[1]}, v{r[2]} {X3}"
        if len(r) == 4: t += f"\nv_xor_b32 v10, v10, v{r[3]}"
    return t + "\nv_cmp_ne_u16 vcc, v10, v5"

sFL, sDM = 56, 57
GUARD = f"s_add_u32 s{sSPIN}, s{sSPIN}, 1\ns_cmp_gt_u32 s{sSPIN}, 0x40000\ns_cbranch_scc1 L_end\ns_waitcnt vmcnt(0)"
class Fetch:
    def __init__(self, name, pieces, masked=False, nre=1):
        self.name, self.pieces, self.masked, self.nre = name, pieces, masked, nre
    def loadc(self, i):
        it = flat([mk(c.replace(f"s{sCt}", f"s{sFL}")) for c in self.pieces[i][0]])
        out = []; cur = []
        for x in it:
            cur.append(x)
            if x.cls == 'vmem': out.append(cur); cur = []
        return out
    def load(self, i): return flat(self.loadc(i))
    def stub(self, i, last):
        n = self.name
        wgt = {"fo": 0x100, "fh": 0x10000, "f4": 0x1000000}.get(n, 1)
        rel = (f"s_add_u32 s80, s80, {wgt}\n" if DIAG else "") + "\n".join(c for j in range(i, min(last, i + self.nre - 1) + 1) for c in self.pieces[j][0])
        if opt("ool", 7) & {"fo": 2, "fh": 4, "f4": 8}[n]:
            TAIL.I(f"L_{n}_r{i}:\n" + rel + "\n" + GUARD + "\n" + chk_code(self.pieces[i][1], self.masked) + f"\ns_cbranch_vccnz L_{n}_r{i}\ns_branch L_{n}_ok{i}", unc=True)
            return mk(f"s_cbranch_vccnz L_{n}_r{i}\nL_{n}_ok{i}:")
        return mk(f"s_cbranch_vccz L_{n}_ok{i}\nL_{n}_r{i}:") + \
               mk(rel + "\n" + GUARD + "\n" + chk_code(self.pieces[i][1], self.masked) + f"\ns_cbranch_vccnz L_{n}_r{i}", unc=True) + mk(f"L_{n}_ok{i}:")
    def checkc(self, i, last):
        return [[x] for x in mk(chk_code(self.pieces[i][1], self.masked))] + [self.stub(i, last)]
    def check(self, i, last): return flat(self.checkc(i, last))

sFS, sFP = 80, 81
vL512, vPO, vPF = 0, 142, 143
def flag_store(nl): return mk(f"s_mov_b64 exec, {(1 << nl) - 1}\nbuffer_store_dword v5, v{vL512}, {WS}, s{sFS} offen sc1\ns_mov_b64 exec, -1")
def gate(name, vo, vf): return Fetch(name, [([f"buffer_load_dword v{vf}, v{vo}, {WS}, s{sFP} offen sc1"], [vf])])
GATE = opt("gate", 0)

def cost(it):
    if isinstance(it, WaitTag): return 4
    if it.cls in ('label', 'dir') or it.uncounted: return 0
    if it.op.startswith(TRANS) or 'permlane' in it.op: return 8
    if it.op.startswith('ds_write_b128'): return 28
    if it.cls == 'mfma': return 8
    return 4.5
class Sched:
    def __init__(self, groups):
        self.groups = groups; self.gap = [[] for _ in groups]; self.seq = 0
    def at(self, g, items, frac=0.5):
        self.seq += 1; self.gap[g].append((frac, self.seq, list(items)))
    def spread(self, chunks, a, b):
        chunks = [c if isinstance(c, list) else [c] for c in chunks]
        tot = sum(cost(i) for c in chunks for i in c) or 1; acc = 0
        for c in chunks:
            pos = a + (b - a) * acc / tot
            self.at(int(pos), c, pos - int(pos))
            acc += sum(cost(i) for i in c)
    def emit(self):
        out = []
        for g, gp in zip(self.groups, self.gap):
            out += g
            for _, _, c in sorted(gp, key=lambda x: (x[0], x[1])): out += c
        return out
def sprinkle(items, groups, start, step):
    out = []; groups = list(groups); nxt = start
    for i, it in enumerate(items):
        if groups and i == nxt: out += groups.pop(0); nxt += step
        out.append(it)
    for g in groups: out += g
    return out

def softmax(p, t, o, pk):
    q = Prog(); J = q.I
    m, n = t + 14, t + 15; r0, r1 = t + 16, t + 17
    J(f"v_max3_f32 v{m}, v{p}, v{p+1}, v{p+2}\nv_max3_f32 v{n}, -v{p}, -v{p+1}, -v{p+2}")
    for k in range(3, 13, 2):
        J(f"v_max3_f32 v{m}, v{m}, v{p+k}, v{p+k+1}\nv_max3_f32 v{n}, v{n}, -v{p+k}, -v{p+k+1}")
    J(f"""v_max_f32 v{m}, v{m}, v{p+13}
v_max_f32 v{n}, v{n}, -v{p+13}
v_permlane32_swap_b32 v{m}, v{n}
v_max_f32 v{m}, v{m}, v{n}
v_mul_f32 v{m}, v253, v{m}
v_mov_b32 v{n}, v{m}
v_permlane32_swap_b32 v{m}, v{n}""")
    if pk:
        for k in range(0, 14, 2):
            J(f"v_pk_fma_f32 {v(t+k,2)}, {v(p+k,2)}, v[252:253], {v(m,2)} op_sel_hi:[1,0,0]")
            J(f"v_pk_fma_f32 {v(p+k,2)}, {v(p+k,2)}, v[252:253], {v(m,2)} op_sel:[0,1,1] op_sel_hi:[1,1,1]")
    if pk == 2:
        for k in range(14):
            J(f"v_exp_f32 v{t+k}, v{t+k}\nv_exp_f32 v{p+k}, v{p+k}")
            if k >= 2:
                a0 = f"v{t}" if k == 2 else f"v{r0}"; a1 = f"v{p}" if k == 2 else f"v{r1}"
                J(f"v_add_f32 v{r0}, {a0}, v{t+k-1}\nv_add_f32 v{r1}, {a1}, v{p+k-1}")
        J(f"v_add_f32 v{m}, v{r0}, v{t+13}\nv_add_f32 v{n}, v{r1}, v{p+13}")
    elif pk:
        for k in range(14): J(f"v_exp_f32 v{t+k}, v{t+k}")
        for k in range(14): J(f"v_exp_f32 v{p+k}, v{p+k}")
        J(f"v_pk_add_f32 {v(m,2)}, {v(t,2)}, {v(t+2,2)}\nv_pk_add_f32 {v(r0,2)}, {v(p,2)}, {v(p+2,2)}")
        for k in range(4, 14, 2):
            J(f"v_pk_add_f32 {v(m,2)}, {v(m,2)}, {v(t+k,2)}\nv_pk_add_f32 {v(r0,2)}, {v(r0,2)}, {v(p+k,2)}")
        J(f"v_add_f32 v{m}, v{m}, v{n}\nv_add_f32 v{n}, v{r0}, v{r1}")
    else:
        for k in range(14):
            J(f"v_fma_f32 v{t+k}, v{p+k}, v252, v{m}\nv_fma_f32 v{p+k}, v{p+k}, v253, v{n}\nv_exp_f32 v{t+k}, v{t+k}\nv_exp_f32 v{p+k}, v{p+k}")
            if k >= 2:
                a0 = f"v{t}" if k == 2 else f"v{r0}"; a1 = f"v{p}" if k == 2 else f"v{r1}"
                J(f"v_add_f32 v{r0}, {a0}, v{t+k-1}\nv_add_f32 v{r1}, {a1}, v{p+k-1}")
        J(f"v_add_f32 v{m}, v{r0}, v{t+13}\nv_add_f32 v{n}, v{r1}, v{p+13}")
    J(f"""v_permlane32_swap_b32 v{m}, v{n}
v_add_f32 v{m}, v{m}, v{n}
v_rcp_f32 v{m}, v{m}
v_mov_b32 v{n}, v{m}
v_permlane32_swap_b32 v{m}, v{n}""")
    if pk == 1:
        for k in range(0, 14, 2):
            J(f"v_pk_mul_f32 {v(t+k,2)}, {v(t+k,2)}, {v(m,2)} op_sel_hi:[1,0]")
            J(f"v_pk_mul_f32 {v(p+k,2)}, {v(p+k,2)}, {v(m,2)} op_sel:[0,1] op_sel_hi:[1,1]")
    else:
        for k in range(14): J(f"v_mul_f32 v{t+k}, v{t+k}, v{m}\nv_mul_f32 v{p+k}, v{p+k}, v{n}")
    for k in range(7): J(f"v_cvt_pk_bf16_f32 v{o+k}, v{t+2*k}, v{t+2*k+1}")
    for k in range(7): J(f"v_cvt_pk_bf16_f32 v{o+7+k}, v{p+2*k}, v{p+2*k+1}")
    return q.items

def dmag(vaddrs, srd, sbase, sadd, mbase, madd, tag, sreg=None):
    sr = sCt if sreg is None else sreg
    ch = [mk(f"buffer_load_dwordx4 v{a}, {srd}, s{sr} offen offset:{1024*i} lds", tag=tag) for i, a in enumerate(vaddrs)]
    ch[0] = mk(f"s_add_u32 m0, s{mbase}, {madd}\ns_add_u32 s{sr}, s{sbase}, {sadd}") + ch[0]
    return ch

MF = "v_mfma_f32_32x32x16_bf16"
RINGA, NRING = 224, 8
def gemm_lds(steps, ahead=6):
    def rd(i):
        av, o1, o2 = steps[i][:3]; r = RINGA + 4 * (i % NRING)
        return mk(f"ds_read_b64_tr_b16 {a_(r,2)}, v{av} offset:{o1}\nds_read_b64_tr_b16 {a_(r+2,2)}, v{av} offset:{o2}")
    rds = [rd(i) for i in range(len(steps))]
    groups = []
    for i, st in enumerate(steps):
        r = RINGA + 4 * (i % NRING); b, acc, first, swap = st[3]
        A, B = a_(r, 4), v(b, 4)
        if swap: A, B = B, A
        g = mk(f"{MF} {v(acc,16)}, {A}, {B}, {'0' if first else v(acc,16)}")
        if i % 2 == 0 and i + 1 < len(steps):
            r2 = RINGA + 4 * ((i + 1) % NRING); g[0].extra = [('a', r2 + x) for x in range(4)]
        groups.append(g + (rds[i + ahead] if i + ahead < len(steps) else []))
    return flat(rds[:ahead]), groups

FAST = opt('fast', 1)
LO = """s_load_dwordx2 s[12:13], s[0:1], 8
s_load_dwordx2 s[16:17], s[0:1], 16
s_load_dwordx2 s[20:21], s[0:1], 24
s_load_dwordx2 s[24:25], s[0:1], 40
s_load_dwordx2 s[28:29], s[0:1], 48
s_load_dwordx2 s[32:33], s[0:1], 56
s_load_dwordx2 s[36:37], s[0:1], 72
"""
CP = f"""v_lshlrev_b32 v3, 4, v1
v_lshl_add_u32 v3, v2, 6, v3
v_lshl_add_u32 v3, v2, 4, v3
v_add_u32 v3, s{sCt}, v3
v_lshlrev_b32 v3, 7, v3
s_and_b32 s76, s76, 0xffffff00
s_mov_b64 exec, 31
global_load_dword v236, v3, s[76:77]
s_mov_b64 exec, -1
"""
MAP1 = [f"""s_and_b32 s{sT}, s{sA}, 3
s_lshl_b32 s{sT}, s{sT}, 2
s_and_b32 s{sD}, s{sB}, 3
s_add_u32 s{sT}, s{sT}, s{sD}
s_lshr_b32 s{sP}, s{sA}, 2
s_lshl_b32 s{sH}, s{sP}, 3
s_lshr_b32 s{sD}, s{sB}, 2
s_add_u32 s{sH}, s{sH}, s{sD}
s_mul_i32 s{sP}, s{sT}, {opt("rt", 2)}
s_add_u32 s{sD}, s{sD}, s{sP}
s_mul_i32 s{sP}, s{sD}, 37
s_lshr_b32 s{sP}, s{sP}, 8
s_mul_i32 s{sP}, s{sP}, 7
s_sub_u32 s{sD}, s{sD}, s{sP}
s_lshl_b32 s{sKX}, s{sD}, 7
""",
f"""s_lshl_b32 s{sT}, s{sA}, 1
s_lshr_b32 s{sD}, s{sB}, 4
s_add_u32 s{sT}, s{sT}, s{sD}
s_mov_b32 s{sH}, s{sCt}
s_and_b32 s{sD}, s{sH}, 7
s_cmp_eq_u32 s{sD}, 7
s_cselect_b32 s{sD}, 3, s{sD}
s_lshl_b32 s{sKX}, s{sD}, 7
""",
f"""s_mov_b32 s{sT}, s{sCt}
s_lshl_b32 s{sH}, s{sA}, 1
s_lshr_b32 s{sD}, s{sB}, 4
s_add_u32 s{sH}, s{sH}, s{sD}
s_and_b32 s{sD}, s{sH}, 7
s_mul_i32 s{sD}, s{sD}, 3
s_mul_i32 s{sP}, s{sD}, 37
s_lshr_b32 s{sP}, s{sP}, 8
s_mul_i32 s{sP}, s{sP}, 7
s_sub_u32 s{sD}, s{sD}, s{sP}
s_lshl_b32 s{sKX}, s{sD}, 7
"""][opt("map1", 0)]
if DIAG: I("s_memrealtime s[78:79]")
I(f"""s_cmp_ge_u32 s2, 256
s_cbranch_scc1 L_end
s_load_dwordx2 s[8:9], s[0:1], 0
{LO if not FAST else ''}{"s_waitcnt lgkmcnt(0)" + chr(10) + "s_memrealtime s[88:89]" if opt("bare", 0) else ""}
s_getpc_b64 s[76:77]
v_and_b32 v1, 63, v0
v_lshrrev_b32 v2, 6, v0
s_and_b32 s{sA}, s2, 7
v_readfirstlane_b32 s{sW}, v2
s_lshr_b32 s{sB}, s2, 3
s_and_b32 s{sCt}, s{sB}, 15
{CP if FAST < 2 else ''}{MAP1}
s_mov_b32 s10, 1835008
s_mov_b32 s11, 0x20000
v_lshrrev_b32 v2, 3, v1
v_mul_u32_u24 v244, 896, v2
v_lshrrev_b32 v2, 4, v1
v_and_b32 v8, 7, v1
v_xor_b32 v2, v2, v8
v_lshl_add_u32 v244, v2, 4, v244
v_xor_b32 v245, 64, v244
v_add_u32 v245, {7168-1024}, v245
v_add_u32 v246, {2*(7168-1024)}, v244
v_add_u32 v247, {2*(7168-1024)}, v245
s_lshl_b32 s{sQ}, s{sT}, 2
s_add_u32 s{sQ}, s{sQ}, s{sW}
s_mul_i32 s{sQ}, s{sQ}, {32*896}
s_lshr_b32 s{sXO}, s{sW}, 1
s_add_u32 s{sXO}, s{sXO}, s{sW}
s_mul_i32 s{sXO}, s{sXO}, {XW}
s_waitcnt lgkmcnt(0)""")
st0 = stampi("start")
if not opt("bare", 0): P.add(st0)
def xdma(g): return flat(dmag([244, 245, 246, 247], X, sQ, f"s{sKX+g}", sXO, 4096*g, f"x{g}"))
P.add(xdma(0))
if FAST: I(LO)
if FAST == 2: I(f"v_lshrrev_b32 v2, 6, v0\ns_and_b32 s{sCt}, s{sB}, 15\n" + CP)
I(f"""s_mov_b32 s14, {0 if opt('abl',0)&8 else 1204224}
s_mov_b32 s15, 0x20000
v_and_b32 v8, 3, v1""")
def wtouch(mask16, dst):
    m = mask16 | (mask16 << 16)
    return mk(f"s_mov_b32 exec_lo, {hex(m)}\ns_mov_b32 exec_hi, {hex(m)}\nbuffer_load_dword v{dst}, v255, {WQKV}, 0 offen\ns_mov_b64 exec, -1")
def kxs(g): return mk(f"s_add_u32 s{sKX+g}, s{sKX+g-1}, 128\ns_cmp_ge_u32 s{sKX+g}, 896\ns_cselect_b32 s{sD}, 896, 0\ns_sub_u32 s{sKX+g}, s{sKX+g}, s{sD}")
NXE = opt("nxe", 2)
if opt("wtfirst", 1) and opt("wt0", 0): P.add(wtouch(opt("wt0", 0), 237))
for g in range(1, NXE): P.add(kxs(g) + xdma(g))
if not opt("wtfirst", 1) and opt("wt0", 0): P.add(wtouch(opt("wt0", 0), 237))
if FAST: I("s_waitcnt lgkmcnt(0)")
if opt("wsoff", 0): I(f"s_add_u32 s36, s36, {opt('wsoff', 0)}\ns_addc_u32 s37, s37, 0")
I(f"""s_mov_b32 s38, {WS_SIZE}
s_mov_b32 s39, 0x20000
s_mov_b32 s18, 25088
s_mov_b32 s19, 0x20000
s_mov_b32 s22, {0 if opt('abl',0)&4 else 401408}
s_mov_b32 s23, 0x20000
s_xor_b32 s{sHQ}, s{sH}, 1
v_mov_b32 v11, 0
v_lshlrev_b32 v6, 7, v1""")
TM = opt("tm", 0)
sm_ld = mk(f"""s_mov_b64 exec, 1
buffer_load_dword v5, v6, {WS}, 0 offen sc1""")
if opt("two_", 1): sm_ld += mk(f"""s_lshl_b32 s56, s2, 2
s_add_u32 s56, s56, s{sW}
s_lshl_b32 s56, s56, 9
s_mov_b64 exec, 15
buffer_load_dword v238, v6, {WO}, s56 offen""")
if opt("twp", 1): sm_ld += mk(f"""s_and_b32 s{sCt}, s{sH}, 14
s_mul_i32 s{sCt}, s{sCt}, 1568
s_mul_i32 s56, s{sW}, 896
s_add_u32 s{sCt}, s{sCt}, s56
s_mov_b64 exec, 127
buffer_load_dword v239, v6, {WPHI}, s{sCt} offen""")
sm_ld += mk("s_mov_b64 exec, -1")
if TM == 0: P.add(sm_ld)
for g in range(NXE, 7): P.add(kxs(g))
I(f"""s_lshl_b32 s{sT2}, s{sA}, 1
s_lshr_b32 s{sD}, s{sB}, 4
s_add_u32 s{sT2}, s{sT2}, s{sD}
s_and_b32 s{sRact}, s{sB}, 15
s_min_u32 s{sR}, s{sRact}, 13
s_mov_b32 s26, {0 if opt('abl',0)&1 else 1605632}
s_mov_b32 s27, 0x20000
s_mov_b32 s30, {0 if opt('abl',0)&2 else 1605632}
s_mov_b32 s31, 0x20000
s_mov_b32 s34, 1835008
s_mov_b32 s35, 0x20000
s_mov_b32 s64, 0
s_mov_b32 s65, -1
s_mov_b32 s{sONES}, 0x3f803f80
s_mov_b32 s{sMASK}, 0xbfffbfff
s_mov_b32 s{sHIM}, 0xffff0000
s_mov_b32 s{sSPIN}, 0
s_mov_b32 s80, 0
s_cmp_ge_u32 s{sR}, 7
s_cselect_b32 s{sU}, 1, 0
s_mul_i32 s{sA}, s{sU}, 7
s_sub_u32 s{sC}, s{sR}, s{sA}""")
sT3 = 67
if opt("map3", 1):
    I(f"""s_and_b32 s{sA}, s{sT2}, 12
s_and_b32 s{sD}, s{sT2}, 1
s_lshl_b32 s{sD}, s{sD}, 1
s_add_u32 s{sA}, s{sA}, s{sD}
s_add_u32 s{sT3}, s{sA}, s{sU}
s_bfe_u32 s{sA}, s{sT2}, 0x10001
s_mul_i32 s{sA}, s{sA}, 7
s_add_u32 s{sR}, s{sA}, s{sC}""")
else: I(f"s_mov_b32 s{sT3}, s{sT2}")
for g in range(7): I(f"s_mul_i32 s{sKW+g}, s{sKX+g}, {172032//128}")
I(f"""s_mul_i32 s{sWB}, s{sH}, 56
s_mul_i32 s{sD}, s{sW}, 43008
s_add_u32 s{sWB}, s{sWB}, s{sD}
s_mul_i32 s{sWQ}, s{sHQ}, 56
s_add_u32 s{sWQ}, s{sWQ}, s{sD}
s_add_u32 s{sWB}, s{sWB}, 896
s_lshl_b32 s{sWM}, s{sW}, 10
s_mul_i32 s66, s{sH}, 1568
s_mul_i32 s81, s{sHQ}, 1568""")
_m0 = len(P.items)
I(f"""s_lshl_b32 s{sA}, s{sH}, 4
s_add_u32 s{sA}, s{sA}, s{sT}
s_mul_i32 s{sA}, s{sA}, 4608
s_add_u32 s{sA}, s{sA}, {WS_PART}
s_add_u32 s{sPST}, s{sA}, s{sWM}
s_lshl_b32 s{sD}, s{sW}, 7
s_add_u32 s{sA}, s{sA}, s{sD}
s_add_u32 s{sPCK}, s{sA}, 4096
s_lshl_b32 s{sA}, s{sT}, 2
s_add_u32 s{sA}, s{sA}, s{sW}
s_lshl_b32 s{sA}, s{sA}, 15
s_lshl_b32 s{sB}, s{sHQ}, 11
s_add_u32 s{sA}, s{sA}, s{sB}
s_add_u32 s{sOST}, s{sA}, {WS_O}
s_lshl_b32 s{sA}, s{sT2}, 2
s_lshl_b32 s{sB}, s{sU}, 1
s_add_u32 s{sA}, s{sA}, s{sB}
s_and_b32 s{sB}, s{sW}, 1
s_add_u32 s{sTILE}, s{sA}, s{sB}
s_mul_i32 s{sA}, s{sA}, {32*896}
s_lshl_b32 s{sB}, s{sC}, 7
s_add_u32 s{sA}, s{sA}, s{sB}
s_mul_i32 s{sD}, s{sW}, {16*896}
s_add_u32 s{sXRB}, s{sA}, s{sD}
s_mul_i32 s{sA}, s{sTILE}, {32*896}
s_add_u32 s{sA}, s{sA}, s{sB}
s_lshr_b32 s{sB}, s{sW}, 1
s_lshl_b32 s{sB}, s{sB}, 6
s_add_u32 s{sOUT}, s{sA}, s{sB}
s_mul_i32 s{sP}, s{sHQ}, {16*4608}
s_add_u32 s{sP}, s{sP}, {WS_PART}""")
deferred = P.items[_m0:]; del P.items[_m0:]
WPK, WPQ, WPT = 192, 200, 208
vWPA, vWPB, vKVX, vIMW, vKA, vKB, vFPD, vFPC, vWO0, vWO1, vXRD0, vXRD1, vXRR, vWOR = range(128, 142)
I(f"""v_lshrrev_b32 v3, 5, v1
v_lshlrev_b32 v2, 4, v1
v_lshlrev_b32 v4, 2, v1
v_bfe_u32 v11, v1, 3, 2
v_lshl_add_u32 v11, v11, 2, v8
v_bfe_u32 v12, v1, 2, 1
v_mul_u32_u24 v12, 14, v12
v_min_u32 v13, 13, v11
v_add_u32 v13, v13, v12
v_lshlrev_b32 v13, 1, v13
v_mul_u32_u24 v14, 224, v3
v_add_u32 v{vWPA}, v13, v14
v_lshl_add_u32 v{vWPB}, v3, 20, v{vWPA}
v_add_u32 v12, v12, v11
v_cmp_gt_u32 vcc, 14, v11
v_lshrrev_b32 v7, 2, v1
v_mul_u32_u24 v7, 2688, v7
v_cndmask_b32 v12, 28, v12, vcc
v_and_b32 v13, 15, v12
v_lshlrev_b32 v13, 4, v13
v_lshrrev_b32 v12, 4, v12
v_lshl_add_u32 v13, v12, 3, v13
v_lshl_add_u32 v13, v3, 8, v13
v_add_u32 v{vKVX}, {L_KVX}, v13
v_lshlrev_b32 v11, 4, v8
v_min_u32 v11, 40, v11
v_add_u32 v7, v7, v11
v_and_b32 v9, 31, v1
v_lshlrev_b32 v240, 7, v9
v_bfe_u32 v11, v1, 1, 3
v_xor_b32 v11, v11, v3
v_lshl_add_u32 v240, v11, 4, v240
v_add_u32 v240, s{sXO}, v240
v_xor_b32 v241, 32, v240
v_xor_b32 v242, 64, v240
v_xor_b32 v243, 96, v240
v_mov_b32 v250, 0
v_mov_b32 v251, 0""")
_m0 = len(P.items)
I(f"""s_lshl_b32 s{sA}, s{sW}, 5
v_add_u32 v10, s{sA}, v9
v_mul_u32_u24 v10, 208, v10
v_mul_u32_u24 v11, 96, v3
v_add_u32 v{vIMW}, v10, v11
v_lshrrev_b32 v10, 4, v1
v_bfe_u32 v15, v1, 2, 2
v_lshl_add_u32 v10, v10, 3, v15
v_mul_u32_u24 v10, 208, v10
v_and_b32 v11, 1, v1
v_mul_u32_u24 v11, 96, v11
v_add_u32 v10, v10, v11
v_bfe_u32 v11, v1, 1, 1
v_lshl_add_u32 v10, v11, 3, v10
v_add_u32 v{vKB}, {L_IMG}, v10
s_lshl_b32 s{sA}, s{sW}, 4
v_add_u32 v{vKA}, s{sA}, v{vKB}
v_add_u32 v{vFPD}, s{sWM}, v2
s_lshl_b32 s{sD}, s{sW}, 7
s_add_u32 s{sD}, s{sD}, 4096
v_lshlrev_b32 v0, 1, v1
v_add_u32 v{vFPC}, s{sD}, v0
v_lshrrev_b32 v12, 3, v1
v_mul_u32_u24 v14, 896, v12
v_and_b32 v13, 7, v1
v_xor_b32 v12, v12, v13
v_lshl_add_u32 v{vXRD0}, v12, 4, v14
v_add_u32 v{vXRD1}, {7168-1024}, v{vXRD0}
v_bfe_u32 v12, v1, 4, 1
v_lshlrev_b32 v11, 2, v12
v_xor_b32 v11, v11, v13
v_lshl_add_u32 v{vWO0}, v11, 4, v14
v_add_u32 v{vWO1}, {7168-1024}, v{vWO0}
s_and_b32 s{sA}, s{sW}, 1
s_lshl_b32 s{sA}, s{sA}, 12
s_add_u32 s{sA}, s{sA}, {L_XCH}
v_lshlrev_b32 v10, 7, v9
v_lshl_add_u32 v10, v3, 3, v10
v_add_u32 v10, s{sA}, v10
s_lshr_b32 s{sA}, s{sW}, 1
s_lshl_b32 s{sB}, s{sA}, 2
v_xor_b32 v13, s{sB}, v13
v_lshl_add_u32 v{vXRR}, v13, 4, v10
v_mad_u32_u24 v10, v3, 14, v15
v_lshlrev_b32 v10, 7, v10
v_bfe_u32 v13, v1, 3, 1
v_xor_b32 v13, v13, v3
v_xor_b32 v13, s{sA}, v13
v_lshl_add_u32 v10, v13, 6, v10
v_lshl_add_u32 v10, v12, 5, v10
v_lshl_add_u32 v10, v8, 3, v10
s_mul_i32 s{sA}, s{sA}, {8*28*128}
s_add_u32 s{sA}, s{sA}, {L_WO}
v_add_u32 v{vWOR}, s{sA}, v10
v_lshl_add_u32 v11, v3, 3, v15
v_lshlrev_b32 v11, 6, v11
v_lshl_add_u32 v12, v12, 2, v8
v_cmp_lt_u32 vcc, 5, v12
v_xor_b32 v13, 1, v12
v_cndmask_b32 v12, v12, v13, vcc
v_lshl_add_u32 v11, v12, 3, v11
v_add_u32 v13, {L_WK}, v11""")
I(f"""v_bfe_u32 v10, v1, 2, 1
v_bfe_u32 v14, v1, 4, 1
v_lshl_add_u32 v10, v14, 1, v10
v_cmp_eq_u32 vcc, v10, v3
v_and_b32 v10, 1, v1
v_lshlrev_b32 v10, 4, v10
v_mov_b32 v14, 0x3f80
v_lshlrev_b32 v10, v10, v14
v_cndmask_b32 v10, 0, v10, vcc
v_bfe_u32 v14, v1, 3, 1
v_bfe_u32 v15, v1, 1, 1
v_lshl_add_u32 v14, v14, 1, v15""")
for q in range(4): I(f"v_cmp_eq_u32 vcc, {q}, v14\nv_cndmask_b32 v15, 0, v10, vcc\nv_accvgpr_write_b32 a{220+q}, v15")
I("v_add_u32 v9, 896, v7")
deferred += P.items[_m0:]; del P.items[_m0:]
NDEF0 = opt("ndef0", 70)
P.add(deferred[:NDEF0]); deferred = deferred[NDEF0:]
L2N = 0
if L2N:
    I(f"""s_mov_b32 s{sCt}, 0x60504020
s_cmp_ge_u32 s{sH}, 8
s_cselect_b32 s{sCt}, 0x53020100, s{sCt}
s_and_b32 s{sD}, s{sH}, 7
s_lshl_b32 s{sD}, s{sD}, 2
s_lshr_b32 s{sCt}, s{sCt}, s{sD}
s_and_b32 s{sCt}, s{sCt}, 15
s_and_b32 s{sD}, s{sT}, 3
s_mul_i32 s{sD}, s{sD}, 7
s_add_u32 s{sCt}, s{sCt}, s{sD}
s_lshl_b32 s{sCt}, s{sCt}, 2
s_add_u32 s{sCt}, s{sCt}, s{sW}
s_mul_i32 s66, s{sCt}, 14336
s_add_u32 s81, s66, 57344
s_lshl_b32 s{sD}, s{sH}, 1
s_lshr_b32 s{sD}, 0xa111444a, s{sD}
s_and_b32 s{sD}, s{sD}, 3
s_cmp_ge_u32 s{sD}, 1
s_cselect_b32 s66, s66, 0x10000000
s_cmp_ge_u32 s{sD}, 2
s_cselect_b32 s81, s81, 0x10000000
v_add_u32 v143, 7168, v6""")
def l2n(k): return mk(f"s_mov_b32 exec_hi, 0xffffff\nbuffer_load_dword v{142}, v{6 if k % 2 == 0 else 143}, {W1}, s{66 if k < 2 else 81} offen\ns_mov_b32 exec_hi, -1")
stamp("setup done", "p")
def wphi(dst, tmp, so):
    q = []
    for t in range(2):
        for j in range(8):
            d = 16 * t + 8 * (j >> 2) + (j & 3)
            av = vWPB if (t == 1 and j >= 4) else vWPA
            r = (dst if j % 2 == 0 else tmp) + 4 * t + j // 2
            op = "buffer_load_short_d16" if j % 2 == 0 else "buffer_load_short_d16_hi"
            q += mk(f"{op} v{r}, v{av}, {WPHI}, s{so} offen offset:{d*56}")
    return q
def wkdma(g): return flat(dmag([7], WQKV, sWB, f"s{sKW+g}", sWM, L_WK + 4096*g, f"wk{g}"))
def wvdma(g): return flat(dmag([9], WQKV, sWB, f"s{sKW+g}", sWM, L_WV + 4096*g, f"wv{g}"))
def wqdma(g): return flat(dmag([7], WQKV, sWQ, f"s{sKW+g}", sWM, L_WQ + 4096*g, f"wq{g}"))
if opt("fake", 0):
    I(f"""v_mov_b32 v7, v2
v_add_u32 v9, 24576, v2
s_mul_i32 s{sWB}, s{sH}, 73728
s_add_u32 s{sWB}, s{sWB}, s{sWM}
s_mul_i32 s{sWQ}, s{sHQ}, 73728
s_add_u32 s{sWQ}, s{sWQ}, s{sWM}
s_add_u32 s{sWQ}, s{sWQ}, 45056""")
    for g in range(7): I(f"s_lshl_b32 s{sKW+g}, s{sKX+g}, 5")
XF = 16
NX0 = opt("nx0", 3)
if opt("wt1", 0): P.add(wtouch(opt("wt1", 0), 249))
for g in range(NXE, NX0): P.add(xdma(g))
pend = [xdma(g) for g in range(NX0, 7)]
wkl = [wkdma(g) for g in range(7)]
if TM and TM < NX0: P.add(sm_ld)
elif TM: pend[TM - NX0] = pend[TM - NX0] + sm_ld
if opt("wt2", 0): pend[-1] = pend[-1] + wtouch(opt("wt2", 0), 248)
pend.append(wkl.pop(0) + wphi(WPK, WPT, 66))
pend.append(wkl.pop(0) + wphi(WPQ, WPT+8, 81))
while len(pend) < 7: pend.append(wkl.pop(0))
def xrd(g): return flat([mk(f"ds_read_b128 {v(XF+16*g+4*e,4)}, v{240+e} offset:{4096*g}") for e in range(4)])
P.wait("x0"); P.add(xrd(0))
for g in range(7):
    if pend: P.add(pend.pop(0))
    if g + 1 < 7: P.wait(f"x{g+1}"); P.add(xrd(g + 1))
    for i in range(16):
        r = XF + 16*g + i
        I(f"v_dot2c_f32_bf16 v250, s{sONES}, v{r}\nv_dot2c_f32_bf16 v251, v{r}, v{r}")
    nd_ = -(-len(deferred) // max(1, opt("ndi", 6) - g)) if g < opt("ndi", 6) else len(deferred)
    P.add(deferred[:nd_]); deferred = deferred[nd_:]
    if g == 0: stamp("x0 done", "p")
for x_ in pend: P.add(x_)
if opt("tp", 0) == 2:
    I(f"""s_mul_i32 s{sCt}, s2, {52*128}
s_mul_i32 s{sD}, s{sW}, {13*128}
s_add_u32 s{sCt}, s{sCt}, s{sD}
s_mov_b64 exec, 0x1fff
buffer_load_dword v254, v6, {W2}, s{sCt} offen
buffer_load_dword v255, v6, {W1}, s{sCt} offen
s_mov_b64 exec, -1""")
stamp("x stats done", "mp")
I(f"""v_permlane32_swap_b32 v250, v251
v_readfirstlane_b32 s{sA}, v5
s_nop 0
v_add_f32 v250, v250, v251
v_mul_f32 v250, {fhex(-1/448)}, v250
v_mov_b32 v251, v250
s_or_b32 s{sA}, s{sA}, 1
s_mul_i32 s{sA}, s{sA}, 0x9E3779B5
v_mov_b32 v5, s{sA}
s_mov_b32 s{sA}, 0x3f80
v_permlane32_swap_b32 v250, v251
s_mov_b32 s{sB}, 0x3f800000""")
fin = mk(f"""v_fma_f32 v251, -v250, v250, -v251
v_max_f32 v251, 0, v251
v_add_f32 v251, 0x3727c5ac, v251
v_rsq_f32 v251, v251
s_lshl_b32 s{sQ}, s{sC}, 7
s_mul_i32 s{sD}, s{sW}, {16*896}
v_mul_f32 v252, 0x3fb8aa3b, v251
v_mul_f32 v253, 0xbfb8aa3b, v251
s_add_u32 s{sQ}, s{sQ}, s{sD}
s_lshl_b32 s{sXO}, s{sW}, 11""")
if opt("noid", 1): fin = [mk(f"s_cmp_ge_u32 s{sRact}, 14\ns_cselect_b32 s22, 0, s22")] + fin
ACK = 144; ACV = 160; PK = 176; IMG = 208; TMP = 232
def norm(t):
    q = Prog(); tb = TMP + 8 * (t & 1)
    for i in range(4):
        r = XF + 4 * t + i
        q.I(f"v_dot2_f32_bf16 v{tb+2*i}, v{r}, s{sA}, v250\nv_dot2_f32_bf16 v{tb+2*i+1}, v{r}, s{sB}, v250")
    return q.items
def normc(t):
    tb = TMP + 8 * (t & 1)
    return flat([mk(f"v_cvt_pk_bf16_f32 v{XF+4*t+i}, v{tb+2*i}, v{tb+2*i+1}") for i in range(4)])
def l2t(srd, k, dst):
    return mk(f"""s_lshr_b32 s{sCt}, s2, 3
s_lshl_b32 s{sCt}, s{sCt}, 2
s_add_u32 s{sCt}, s{sCt}, s{sW}
s_mul_i32 s{sCt}, s{sCt}, {98*128}
s_mov_b32 exec_hi, 0x1ffff
s_add_u32 s{sCt}, s{sCt}, {k*49*128}
buffer_load_dword v{dst}, v6, {srd}, s{sCt} offen
s_mov_b32 exec_hi, -1""")
L2A, L2B = opt("l2a", -1), opt("l2b", -1)
touch = mk(f"""s_mul_i32 s{sCt}, s2, {52*128}
s_mul_i32 s56, s{sW}, {13*128}
s_add_u32 s{sCt}, s{sCt}, s56
s_mov_b64 exec, 0x1fff
buffer_load_dword v255, v6, {W1}, s{sCt} offen
buffer_load_dword v254, v6, {W2}, s{sCt} offen
s_mov_b64 exec, -1""")
TP = opt('tp', 0)
ns = norm(0)
for t in range(1, 28): ns += norm(t) + normc(t - 1)
ns += normc(27)
NBAR = opt("nbar", 100)
wvl = [wvdma(k) for k in range(7)]
if opt("loop2", 0):
    I("s_mov_b32 s80, 0\nL_lp2:\ns_mov_b32 s101, s100\ns_memtime s[78:79]\ns_waitcnt lgkmcnt(0)\ns_mov_b32 s99, s78")
    P.add([Ins(x.text) for x in ns])
    I("s_memtime s[78:79]\ns_waitcnt lgkmcnt(0)\ns_sub_u32 s100, s78, s99\ns_add_u32 s100, s100, s88\ns_add_u32 s80, s80, 1\ns_cmp_lt_u32 s80, 2\ns_cbranch_scc1 L_lp2")
    nstamp[0] = 14
P.add(sprinkle(ns[:NBAR], wkl, 0, opt("wkstep", 30)))
if opt("touch", 1) and TP == 1: P.add(touch)
I("s_barrier")
NWV0 = opt("nwv0", 4)
w0_ = [wvl.pop(0) for _ in range(NWV0)]
if L2N == 1: w0_[0] = l2n(0) + w0_[0]; w0_[-1] = w0_[-1] + l2n(2); wvl[-1] = wvl[-1] + l2n(1)
if L2N == 2: wvl[-1] = wvl[-1] + l2n(0) + l2n(2)
P.add(sprinkle(ns[NBAR:], w0_, opt("wv0", 30), opt("wvstep", 50)))
P.wait(*[f"wk{k}" for k in range(7)]); I("s_barrier")
stamp("wk landed", "p")
if opt("zy", 0): I(f"s_sleep {opt('zy', 0)}")
AH = 6
sW1B, sW1M, sW2E, sW2L = 40, 41, 42, 43
set2 = mk(f"""v_lshrrev_b32 v10, 4, v1
v_mul_u32_u24 v12, 3584, v10
v_lshlrev_b32 v10, 2, v10
v_and_b32 v13, 15, v1
v_xor_b32 v10, v10, v13
v_lshl_add_u32 v12, v10, 4, v12
v_add_u32 v13, {4*3584-1024}, v12
v_add_u32 v14, {2*(4*3584-1024)}, v12
v_add_u32 v15, {3*(4*3584-1024)}, v12
s_lshl_b32 s{sW1B}, s{sR}, 8
s_mul_i32 s{sD}, s{sW}, {16*3584}
s_add_u32 s{sW1B}, s{sW1B}, s{sD}
s_lshl_b32 s{sW1M}, s{sW}, 12
s_lshr_b32 s{sA}, s{sW}, 1
s_lshl_b32 s{sA}, s{sA}, 2
s_andn2_b32 s{sB}, 1, s{sW}
s_add_u32 s{sA}, s{sA}, s{sB}
s_lshl_b32 s{sB}, s{sU}, 1
s_add_u32 s44, s{sA}, s{sB}
s_xor_b32 s45, s44, 2
s_lshl_b32 s{sD}, s{sC}, 7
s_mul_i32 s{sW2E}, s44, {32*896}
s_add_u32 s{sW2E}, s{sW2E}, s{sD}
s_mul_i32 s{sW2L}, s45, {32*896}
s_add_u32 s{sW2L}, s{sW2L}, s{sD}
""")
vW2 = [vWO0, vWO1, 128, 129]
sSCR, sBIG = 46, 47
NA = opt("na", 0)
NUR = opt("nur", 2); NT1 = min(NA, opt("nt1", 99))
_u = list(range(14))
def take(n): return [_u.pop(0) for _ in range(min(n, len(_u)))]
UAW = take(NA); UR = take(NUR); UD = take(2); UE = take(3); UL = take(opt("nrl", 3)); UP = take(99)
RAWS = UAW + UR + UL
def UA(j): return 16*j
def w2slot(j):
    if j in UE: return (sSCR, 4096*UE.index(j), 254)
    if j in UAW + UR + UD: return (sSCR, 4096*(j & 1), 254)
    return (sBIG, 4096*(UL + UP).index(j), 252)
def w2dma(j):
    mb, mo, _ = w2slot(j)
    return dmag(vW2, W2, sW2E if j < 7 else sW2L, (j%7)*256*896, mb, mo, f"w2_{j}", sDM)
def w2raw(j):
    ch = [mk(f"buffer_load_dwordx4 {a_(UA(j)+4*q,4)}, v{vW2[q]}, {W2}, s81 offen offset:{1024*q}") for q in range(4)]
    ch[0] = mk(f"s_add_u32 s81, s{sW2E if j < 7 else sW2L}, {(j%7)*256*896}") + ch[0]
    return ch
def w2rd(j):
    _, mo, av = w2slot(j)
    if j in RAWS: out = [mk(f"ds_write_b128 v{131 if j in UL else 134}, {a_(UA(j)+4*q,4)} offset:{mo+1024*q}") for q in range(4)]
    else: out = [[WaitTag([f"w2_{j}"])]]
    for e in range(2):
        for mu in range(2):
            for u in range(2): out.append(mk(f"ds_read_b64_tr_b16 {a_(UA(j)+8*e+4*mu+2*u,2)}, v{av+mu} offset:{mo+2048*e+1024*u}"))
    return out
raw = flat([w2raw(j) for j in UR])
rawA = flat([w2raw(j) for j in UAW])
if opt("noid", 1): set2 = [mk(f"s_cmp_ge_u32 s{sRact}, 14\ns_cselect_b32 s26, 0, s26")] + set2
set2 += mk(f"v_add_u32 v128, {2*(7168-1024)}, v{vWO0}\nv_add_u32 v129, {3*(7168-1024)}, v{vWO0}")
set2b = [x for x in set2 if isinstance(x, Ins) and x.cls == 'valu' and x.defs[0][1] < 128]
if opt("trim", 1):
    set2 = [mk(f"""s_cmp_eq_u32 s{sW}, 3
s_cselect_b64 vcc, {sHI}, 0
v_mov_b32 v143, 0x10000000
v_add_u32 v133, s{sWM}, v2
v_cndmask_b32 v142, v5, 0, vcc
v_cndmask_b32 v{vFPD}, v{vFPD}, v143, vcc
v_cndmask_b32 v{vFPC}, v{vFPC}, v143, vcc""")] + set2
set2b = [x for x in set2 if isinstance(x, list)] + set2b
set2a = [x for x in set2 if x not in set2b]
pro, gk = gemm_lds([(13, 1024*t, 1024*t + 256, (XF + 4*t, ACK, t == 0, False)) for t in range(28)], AH)
P.add(pro)
S = Sched(gk)
S.spread(wvl, 0, opt("wve", 20))
EARLY = opt("early", 0)
if EARLY:
    P.add(flat([x if isinstance(x, list) else [x] for x in fin + set2a])); fin = []
    wo_l = flat([dmag([vWO0, vWO1], WO, sQ, i*64*896, sXO, L_WO + 8192*i, "wo", sDM) for i in range(7)] + [dmag([vXRD0, vXRD1], X, sXRB, 0, sXO, L_XCH, "wo", sDM)])
    if EARLY == 2:
        S.spread([wo_l[2*i] + wo_l[2*i+1] for i in range(8)], 0, 28)
    else: S.spread([rawA.pop(0) for _ in range(min(len(rawA), opt("ne1", 8)))], 0, 28)
else: fin = fin + set2a
if TP == 3: S.at(opt("tpos", 22), touch)
for k, ps in enumerate((L2A, L2B)):
    if 0 <= ps < 28: S.at(ps, l2t(W1, k, 248 + k))
S.spread(fin + flat([mk(f"v_or_b32 v{WPK+q}, v{WPK+q}, v{WPT+q}\nv_or_b32 v{WPQ+q}, v{WPQ+q}, v{WPT+8+q}") for q in range(8)]), 2, 26)
P.add(S.emit())
def phi_pre(acc, wp):
    q = Prog()
    for i in range(8): q.I(f"v_cvt_pk_bf16_f32 v{acc+i}, v{acc+2*i}, v{acc+2*i+1}")
    q.I(f"{MF} {v(PK,16)}, {v(wp,4)}, {v(acc,4)}, 0\n{MF} {v(PK,16)}, {v(wp+4,4)}, {v(acc+4,4)}, {v(PK,16)}")
    return q.items
stamp("k gemm done", "mp")
wql = [wqdma(k) for k in range(7)]
P.add(wql.pop(0))
P.add(phi_pre(ACK, WPK))
imw = flat([mk(f"ds_write_b128 v{vIMW}, {v(IMG+4*i,4)} offset:{L_IMG+16*i}") for i in range(3)]) + mk(f"ds_write_b64 v{vIMW}, {v(IMG+12,2)} offset:{L_IMG+48}")
smk = sprinkle(softmax(PK, TMP, IMG, True), [wql.pop(0) for _ in range(opt("nwq0", 3))], 10, opt("wqs", 40))
if EARLY: smk = sprinkle(smk, [rawA.pop(0) for _ in range(min(len(rawA), opt("ne2", 8)))], 5, 16)
WEAVE = opt("weave", 1)
pro, gv = gemm_lds([(11, L_WV + 1024*t, L_WV + 1024*t + 256, (XF + 4*t, ACV, t == 0, False)) for t in range(28)], AH)
S = Sched(gv)
if not WEAVE:
    P.add(smk)
    P.wait(*[f"wv{k}" for k in range(7)]); I("s_barrier")
    stamp("softmax k done", "p")
    P.add(pro)
    S.spread(imw, 2, 10)
else:
    smf = softmax(PK, TMP, IMG, 2)
    n0 = next(i for i, x in enumerate(smf) if x.op == "v_exp_f32")
    P.wait(*[f"wv{k}" for k in range(4)]); I("s_barrier")
    P.add(pro)
    P.add(smf[:n0])
    stamp("softmax k done", "p")
    S.spread(smf[n0:] + imw, 0, 28)
    S.at(15 - AH, [WaitTag(["wv4", "wv5", "wv6"])] + mk("s_barrier"), 1.0)
    wql = [wqdma(k) for k in range(1, 7)]
wo_l = flat([dmag([vWO0, vWO1], WO, sQ, i*64*896, sXO, L_WO + 8192*i, "wo", sDM) for i in range(7)] + [dmag([vXRD0, vXRD1], X, sXRB, 0, sXO, L_XCH, "wo", sDM)])
if EARLY == 2: wo_l = []
S.spread(wql, 0, opt('wqe', 14))
if EARLY: S.spread([rawA.pop(0) for _ in range(min(len(rawA), opt("ne3", 8)))], 0, 22)
if L2A >= 0 or L2N: touch = [x for x in touch if W1 not in x.text]
if L2N == 1: S.at(opt("l2p", 14), l2n(3))
if L2N == 2: S.at(opt("l2p", 14), l2n(1) + l2n(3))
tlb = []
if opt("tlb", 0) & 1: tlb += mk(f"s_mov_b64 exec, 1\nbuffer_load_dword v248, v6, {OUT}, s{sOUT} offen\ns_mov_b64 exec, -1")
if opt("tlb", 0) & 2: tlb += mk(f"v_lshlrev_b32 v249, 20, v1\ns_mov_b64 exec, 0xffff\nbuffer_load_dword v249, v249, {WS}, 0 offen offset:4092\ns_mov_b64 exec, -1")
if tlb: S.at(opt("tlbp", 13), tlb)
if opt("touch", 1) and TP == 0: S.at(opt("tpos", 15), touch)
for k, ps in enumerate((L2A, L2B)):
    if 200 <= ps < 228: S.at(ps - 200, l2t(W1, k, 248 + k))
S.spread([wo_l.pop(0) for _ in range(2*opt("nwo0", 0))], opt("wos", 17), opt("woe2", 28))
P.add(S.emit())
for k in range(0, 16, 2): I(f"v_pk_mul_f32 {v(ACV+k,2)}, {v(ACV+k,2)}, v[250:251] op_sel:[0,1] op_sel_hi:[1,1]")
I(f"v_cndmask_b32 v{ACV+12}, v{ACV+12}, 1.0, {sHI}")
for i in range(8): I(f"v_cvt_pk_bf16_f32 v{IMG+16+i}, v{ACV+2*i}, v{ACV+2*i+1}")
for i in range(4, 6): I(f"ds_write_b128 v{vIMW}, {v(IMG+4*i,4)} offset:{L_IMG+16*i}")
P.wait("wq0", "wq1", "wq2", "wq3")
I("s_waitcnt lgkmcnt(0)\ns_barrier")
stamp("img written", "p")
KA = 144; KBv = 208; KD = 176
for k in range(4):
    for u in range(2):
        I(f"ds_read_b64_tr_b16 {v(KA+4*k+2*u,2)}, v{vKA} offset:{(32*k+4*u)*208}")
    for nu in range(2):
        for u in range(2):
            I(f"ds_read_b64_tr_b16 {v(KBv+8*k+4*nu+2*u,2)}, v{vKB} offset:{(32*k+4*u)*208+64+16*nu}")
proq, gq = gemm_lds([(11, L_WQ + 1024*t, L_WQ + 1024*t + 256, (XF + 4*t, ACV, t == 0, False)) for t in range(28)], AH)
for k in range(4):
    for nu in range(2):
        I(f"v_mfma_f32_16x16x32_bf16 {v(KD+4*nu,4)}, {v(KA+4*k,4)}, {v(KBv+8*k+4*nu,4)}, {'0' if k == 0 else v(KD+4*nu,4)}")
P.add(proq[:8])
for i in range(4): I(f"v_cvt_pk_bf16_f32 v{KD+8+i}, v{KD+2*i}, v{KD+2*i+1}")
I(f"buffer_store_dwordx4 {v(KD+8,4)}, v2, {WS}, s{sPST} offen sc1")
I(f"v_xor_b32 v10, v{KD+8}, v5")
I(f"buffer_store_short v10, v0, {WS}, s{sPCK} offen sc1")
if GATE & 1: P.add(flag_store(16))
P.add(proq[8:])
stamp("partial stored", "mp")
S = Sched(gq)
bgA = wo_l + rawA
nq = min(len(bgA), opt("nq", 16))
S.spread(bgA[:nq], 0, 28)
S.spread(set2b, 2, 18)
G0 = gate("g0", vPO, vPF)
if GATE & 1: S.at(opt("g0", 14), G0.load(0))
S.at(15 - AH, [WaitTag(["wq4", "wq5", "wq6"])] + mk("s_barrier"), 1.0)
P.add(S.emit())
stamp("q gemm done", "p")
G = 16; GC = 80; SA = 96
FP = Fetch("fp", [([f"s_add_u32 s{sCt}, s{sP}, {4608*T}\nbuffer_load_dwordx4 {v(G+4*T,4)}, v{vFPD}, {WS}, s{sCt} offen sc1\nbuffer_load_ushort v{GC+T}, v{vFPC}, {WS}, s{sCt} offen sc1"],
                   [G+4*T, GC+T]) for T in range(16)])
P.add(phi_pre(ACV, WPQ))
if GATE & 1: P.add(G0.check(0, 0))
I("s_barrier")
PQ = 208
smq = softmax(PK, TMP, PQ, True); f0 = opt("fp0", 80)
P.add(sprinkle(smq[:f0], bgA[nq:], 0, opt("as", 8)))
P.add(sprinkle(smq[f0:], [FP.load(T) for T in range(16)], 0, opt("fpstep", 3)))
stamp("softmax q done", "p")
w1_l = flat([dmag([12, 13, 14, 15], W1, sW1B, i*64*3584, sW1M, 16384*i, "w1", sDM) for i in range(7)])
def fpb(b):
    t = []
    for k, T in enumerate(range(4*b, 4*b+4)):
        t.append(f"v_bitop3_b32 v{10 if k == 0 else 9}, v{G+4*T}, v{GC+T}, v{142 if opt('trim', 1) else 5} {X3}" + ("" if k == 0 else "\nv_or_b32 v10, v10, v9"))
    return "\n".join(t) + "\nv_cmp_ne_u16 vcc, 0, v10"
RI = TAIL.I if (opt("ool", 7) & 1) else I
if not (opt("ool", 7) & 1): I("s_branch L_fp_go")
RI("L_fp_retry:" + ("\ns_add_u32 s80, s80, 1" if DIAG else ""), unc=True)
for b in range(4):
    RI(fpb(b) + f"\ns_cbranch_vccz L_fp_k{b}\n" + "\n".join(FP.pieces[T][0][0] for T in range(4*b, 4*b+4)) + f"\nL_fp_k{b}:", unc=True)
RI(GUARD, unc=True)
if (opt("ool", 7) & 1): RI("s_branch L_fp_go", unc=True)
I("L_fp_go:")
I(fpb(0) + "\ns_cbranch_vccnz L_fp_retry")
S = Sched([mk(f"{MF} {v(SA,16)}, a[220:223], {v(G+4*T,4)}, {'0' if T == 0 else v(SA,16)}") for T in range(16)])
for b in range(1, 4): S.spread(mk(fpb(b) + "\ns_cbranch_vccnz L_fp_retry"), 4*b - 3, 4*b)
S.spread([w1_l.pop(0) for _ in range(opt("nw1a", 2))], 12, 16)
P.add(S.emit())
I(f"v_add_u32 v9, {L_KVX}, v{133 if opt('trim', 1) else vFPD}")
for i in range(4): I(f"v_cvt_pk_bf16_f32 v{SA+8+i}, v{SA+2*i}, v{SA+2*i+1}")
I(f"ds_write_b128 v9, {v(SA+8,4)}\ns_waitcnt lgkmcnt(0)\ns_barrier")
stamp("kv summed", "mp")
KVA = 32; OD = 48
for q in range(7): I(f"ds_read_b64 {v(KVA+2*q,2)}, v{vKVX} offset:{512*q}")
P.add(w1_l.pop(0))
for s in range(3):
    I(f"{MF} {v(OD,16)}, {v(KVA+4*s,4)}, {v(PQ+4*s,4)}, {'0' if s == 0 else v(OD,16)}")
    if s == 1: P.add(w1_l.pop(0))
I(f"v_mfma_f32_32x32x8_bf16 {v(OD,16)}, {v(KVA+12,2)}, {v(PQ+12,2)}, {v(OD,16)}")
I(f"""s_lshl_b32 s{sP}, s{sTILE}, 15
s_lshr_b32 s{sB}, s{sW}, 1
s_lshl_b32 s{sB}, s{sB}, 14
s_add_u32 s{sP}, s{sP}, s{sB}
s_add_u32 s{sP}, s{sP}, {WS_O}
s_add_u32 s{sA}, s{sW1M}, {L_XCH}
v_add_u32 v132, s{sA}, v2
v_xor_b32 v133, 8192, v132
v_xor_b32 v9, 64, v{vWOR}
v_and_b32 v7, 31, v1
v_mul_u32_u24 v7, 896, v7
v_add_f32 v{OD+14}, 0x358637bd, v{OD+14}
v_rcp_f32 v{OD+14}, v{OD+14}
v_lshl_add_u32 v7, v3, 4, v7""")
for k in range(0, 14, 2): I(f"v_pk_mul_f32 {v(OD+k,2)}, {v(OD+k,2)}, {v(OD+14,2)} op_sel_hi:[1,0]")
for k in range(4): I(f"v_cvt_pk_bf16_f32 v{64+k}, v{OD+2*k}, v{OD+2*k+1}")
I(f"buffer_store_dwordx4 v[64:67], v2, {WS}, s{sOST} offen sc1")
for k in range(4, 7): I(f"v_cvt_pk_bf16_f32 v{64+k}, v{OD+2*k}, v{OD+2*k+1}")
I(f"""v_bitop3_b32 v71, v64, v5, s{sMASK} bitop3:0x28
v_and_b32 v6, s{sMASK}, v5
buffer_store_dwordx4 v[68:71], v2, {WS}, s{sOST} offen offset:1024 sc1""")
if GATE & 2: P.add(flag_store(7))
stamp("o stored", "mo")
P.wait("wo")
I(f"s_cmp_ge_u32 s{sRact}, 14\ns_cbranch_scc1 L_idle\ns_barrier")
wor = []
for s in range(16):
    hh, e = s >> 1, s & 1
    for k, av in ((0, vWOR), (1, 9)):
        for u in range(2):
            wor += mk(f"ds_read_b64_tr_b16 {a_(128+8*s+4*k+2*u,2)}, v{av} offset:{(28*hh+8*e+4*u)*128}")
XR = 224
xrr = []
for i in range(4): xrr += mk((f"v_xor_b32 v10, {16*i}, v{vXRR}\n" if i else "") + f"ds_read_b64 {v(XR+2*i,2)}, v{10 if i else vXRR}")
P.add(xrr)
G1 = gate("g1", vPO, vPF)
nb_ = min(opt("nw1b", 12), len(w1_l) - 8)
wor = sprinkle(wor, [w1_l.pop(0) for _ in range(nb_)], 0, opt("w1bs", 5))
if GATE & 2: wor = sprinkle(wor, [G1.load(0)], opt("g1", 40), 1)
P.add(wor)
OB = 16
FO = Fetch("fo", [([f"s_add_u32 s{sCt}, s{sP}, {2048*hh}\nbuffer_load_dwordx4 {v(OB+8*hh,4)}, v2, {WS}, s{sCt} offen sc1\nbuffer_load_dwordx4 {v(OB+8*hh+4,4)}, v2, {WS}, s{sCt} offen offset:1024 sc1"],
                   [OB+8*hh, OB+8*hh+7]) for hh in range(8)], masked=True, nre=opt('reo', 2))
stamp("pre o fetch", "o")
AO, AT = 80, 96
set3 = mk(f"""s_mul_i32 s{sSCR}, s{sW}, 12288
s_mul_i32 s{sBIG}, s{sW}, 28672
v_add_u32 v131, s{sBIG}, v2
s_lshl_b32 s{sB}, s{sC}, 1
s_lshr_b32 s{sD}, s{sW}, 1
s_add_u32 s{sB}, s{sB}, s{sD}
s_mul_i32 s{sA}, s{sTILE}, 14
s_add_u32 s{sB}, s{sB}, s{sA}
s_mul_i32 s{sPST}, s{sB}, 2432
s_add_u32 s{sPST}, s{sPST}, {WS_H}
s_lshr_b32 s48, s{sW}, 1
s_nop 0
v_bfe_u32 v9, v1, 2, 2
v_lshl_add_u32 v240, v3, 2, v9
v_lshlrev_b32 v254, 7, v240
v_lshlrev_b32 v240, 8, v240
v_xor_b32 v9, s{sW}, v9
v_lshl_add_u32 v240, v9, 6, v240
v_bfe_u32 v9, v1, 4, 1
v_lshlrev_b32 v9, 5, v9
v_lshl_add_u32 v9, v8, 3, v9
v_add_u32 v240, v240, v9
v_add_u32 v254, v254, v9
v_bfe_u32 v9, v1, 3, 1
v_xor_b32 v9, s48, v9
v_lshl_add_u32 v254, v9, 6, v254
s_add_u32 s{sSCR}, s{sSCR}, {L_SCR}
v_add_u32 v252, s{sBIG}, v254
v_xor_b32 v253, 64, v252
v_add_u32 v254, s{sSCR}, v254
v_add_u32 v134, s{sSCR}, v2
v_xor_b32 v255, 64, v254
v_xor_b32 v241, 64, v240
v_xor_b32 v242, 128, v240
v_xor_b32 v243, 192, v240""") + flat([mk(f"v_add_u32 v{244+m}, 57344, v{240+m}") for m in range(4)])
pre2 = []
for i in range(8): pre2 += mk(f"v_lshlrev_b32 v{112+2*i}, 16, v{XR+i}\nv_and_b32 v{113+2*i}, s{sHIM}, v{XR+i}")
for s in range(1, 16, 2): pre2 += mk(f"v_accvgpr_write_b32 a{128+8*s+3}, 0\nv_accvgpr_write_b32 a{128+8*s+7}, 0")
if GATE & 2:
    P.add(pre2); P.add(G1.check(0, 0))
    stamp("gate1", "o")
    for hh in range(8): P.add(FO.load(hh))
else:
    P.add(pre2[16:]); P.add(set3)
    I("s_waitcnt lgkmcnt(0)\ns_barrier")
    P.add(sprinkle(flat(flat([w2rd(j) for j in UAW[:NT1]])), [w1_l.pop(0) for _ in range(min(len(w1_l), opt("nw1s", 4)))], 0, 8))
    stamp("shadow done", "o")
    P.add(sprinkle(pre2[:16], [FO.load(hh) for hh in range(8)], 0, 2))
I("s_waitcnt lgkmcnt(0)\ns_barrier")
stamp("fo issued", "o")
g2 = []
for s in range(16):
    for k, acc in ((1, AT), (0, AO)):
        c = ("0" if k else v(112,16)) if s == 0 else v(acc,16)
        g2.append(mk(f"{MF} {v(acc,16)}, {a_(128+8*s+4*k,4)}, {v(OB+4*s,4)}, {c}"))

P.add(FO.check(0, 7))
stamp("fo0", "o")
S = Sched(g2)
for hh in range(1, 8): S.spread(FO.checkc(hh, 7), 4*hh - 3, 4*hh)
S.spread(w1_l + [raw.pop(0) for _ in range(min(len(raw), opt("rawb", 4)))], 0, 32)
P.add(S.emit())
stamp("p2 gemm done", "o")
for i in range(4): I(f"ds_write_b128 v132, {v(AT+4*i,4)} offset:{1024*i}")
I("v_mov_b32 v112, 0\nv_mov_b32 v113, 0\ns_waitcnt lgkmcnt(0)\ns_barrier")
for i in range(4): I(f"ds_read_b128 {v(AT+4*i,4)}, v133 offset:{1024*i}")
HR = XR
for k in range(0, 8, 2): I(f"v_pk_add_f32 {v(AO+k,2)}, {v(AO+k,2)}, {v(AT+k,2)}")
for i in range(4): I(f"v_cvt_pk_bf16_f32 v{HR+i}, v{AO+2*i}, v{AO+2*i+1}")
I(f"buffer_store_dwordx4 {v(HR,4)}, v2, {WS}, s{sPST} offen sc1")
for k in range(8, 16, 2): I(f"v_pk_add_f32 {v(AO+k,2)}, {v(AO+k,2)}, {v(AT+k,2)}")
for i in range(4, 8): I(f"v_cvt_pk_bf16_f32 v{HR+i}, v{AO+2*i}, v{AO+2*i+1}")
I(f"buffer_store_dwordx4 {v(HR+4,4)}, v2, {WS}, s{sPST} offen offset:1024 sc1")
for i in range(8): I(f"v_dot2c_f32_bf16 v112, s{sONES}, v{HR+i}\nv_dot2c_f32_bf16 v113, v{HR+i}, v{HR+i}")
I(f"""v_bitop3_b32 v10, v{HR}, v{HR+4}, v5 {X3}
v_permlane32_swap_b32 v112, v113
v_add_f32 v112, v112, v113
buffer_store_dword v112, v4, {WS}, s{sPST} offen offset:2048 sc1
v_xor_b32 v113, v10, v112
buffer_store_short v113, v0, {WS}, s{sPST} offen offset:2304 sc1""")
def selft(sreg, nl): return mk(f"s_mov_b64 exec, {(1 << nl) - 1}\nbuffer_load_dword v135, v134, {WS}, s{sreg} offen sc1\ns_mov_b64 exec, -1")
SELF = opt("self", 0)
if SELF & 1: P.add(selft(sPST, 20))
if GATE & 4: P.add(flag_store(14))
stamp("h stored", "moh")
HB = 16; ST = 192
ACC = [144, 160, 176, 192]; AUG = 232
set4 = mk(f"""s_lshl_b32 s{sB}, s{sT3}, 2
s_add_u32 s{sB}, s{sB}, s{sW}
s_mul_i32 s{sP}, s{sB}, {14*2432}
s_add_u32 s{sP}, s{sP}, {WS_H}
s_mul_i32 s{sA}, s{sB}, 56
s_lshl_b32 s{sD}, s{sR}, 2
s_add_u32 s{sA}, s{sA}, s{sD}
s_mul_i32 s{sQ}, s{sA}, 2176
s_add_u32 s{sQ}, s{sQ}, {WS_H1}
v_lshlrev_b32 v13, 3, v1
s_lshl_b32 s{sA}, s{sW}, 9
s_add_u32 s{sA}, s{sA}, {L_AUG}
v_add_u32 v13, s{sA}, v13
v_mov_b32 v222, 0""")
FH = Fetch("fh", [([f"s_add_u32 s{sCt}, s{sP}, {2432*p}\nbuffer_load_dwordx4 {v(HB+8*p,4)}, v2, {WS}, s{sCt} offen sc1\nbuffer_load_dwordx4 {v(HB+8*p+4,4)}, v2, {WS}, s{sCt} offen offset:1024 sc1\n"
                    f"buffer_load_dword v{ST+2*p}, v4, {WS}, s{sCt} offen offset:2048 sc1\nbuffer_load_ushort v{ST+2*p+1}, v0, {WS}, s{sCt} offen offset:2304 sc1"],
                   [HB+8*p, HB+8*p+4, ST+2*p, ST+2*p+1]) for p in range(14)], nre=opt('reh', 2))
for i in range(4): I(f"v_mov_b32 v{AUG+i}, s{sONES}")
P.wait("w1"); I("s_barrier")
stamp("w1 landed", "h")
if opt("zz", 0): I(f"s_sleep {opt('zz', 0)}")
def w1a(t, k): return (240 + k + (4 if t >= 14 else 0), (t % 14) * 4096, (t % 14) * 4096 + 2048)
st3 = [w1a(t, 0) + ((AUG, ACC[2], t == 0, True),) for t in range(28)]
TWO = opt("two", 1); N1 = 2 if TWO else 3
for t in range(28):
    for k in range(N1): st3.append(w1a(t, k) + ((HB + 4*t, ACC[k], t == 0, False),))
for t in range(28):
    for k in range(N1, 4): st3.append(w1a(t, k) + ((HB + 4*t, ACC[k], t == 0, False),))
pro, g3 = gemm_lds(st3, AH)
P.add(pro)
S3 = Sched(g3)
S3.spread(set4, 0, 8)
S3.spread(raw + w2dma(UD[0]) + w2dma(UD[1]), 0, opt("c0e", 20)); raw = []
NH0 = opt("nh0", 4); H0 = opt("h0", 26)
G2 = gate("g2", vPO, vPF)
if GATE & 4:
    S3.at(opt("g2", 12), G2.load(0), 0.9)
    S3.at(27, G2.check(0, 0) + stampi("gate2", "h") + flat([FH.load(p) for p in range(NH0)]), 0.5)
else: S3.spread(flat([FH.loadc(p) for p in range(NH0)]), H0, 27)
cs = ACC[2]
csx = mk(f"""v_cvt_pk_bf16_f32 v{AUG}, v{cs}, v{cs}
v_lshlrev_b32 v{AUG+1}, 16, v{AUG}
v_sub_f32 v{AUG+1}, v{cs}, v{AUG+1}
v_cvt_pk_bf16_f32 v{AUG}, v{cs}, v{AUG+1}
v_and_b32 v{AUG+1}, 0xffff, v{AUG}
v_cndmask_b32 v{AUG}, v{AUG}, 0, {sHI}
v_cndmask_b32 v{AUG+1}, v{AUG+1}, 0, {sHI}
ds_write_b64 v13, {v(AUG,2)}""")
S3.at(27, stampi("colsum done", "h") + csx + FH.check(0, NH0 - 1) + stampi("fh0", "h"), 1.0)
B0 = 28
for p in range(14):
    b = B0 + 2*N1*p
    if p + NH0 < 14:
        for k_, c_ in enumerate(FH.loadc(p + NH0)): S3.at(b + ((0, 2, 1, 3) if TWO else (0, 2, 4, 4))[k_], c_, 0.2)
    S3.at(b, mk(f"v_add_f32 v222, v222, v{ST+2*p}"), 0.0)
    if p + 1 < 14: S3.spread(FH.checkc(p + 1, min(13, p + NH0 - 1)), b + 1, b + 2*N1)
    if p in (3, 7, 11): S3.at(b + 2*N1 - 1, stampi(f"fh{p+1}", "h"), 1.0)
S3.at(B0 + 14, mk("s_barrier") + flat([mk(f"v_xor_b32 v9, {512*k}, v13\nds_read_b64 {v(AUG+2*k,2)}, v9") for k in range(1, 4)]), 0.0)
mid = mk(f"""v_mul_f32 v220, {fhex(1/448)}, v222
v_mov_b32 v221, v220
s_nop 0
v_permlane32_swap_b32 v220, v221
v_fma_f32 v221, -v220, v220, v221
v_max_f32 v221, 0, v221
v_add_f32 v221, 0x3727c5ac, v221
v_rsq_f32 v251, v221
v_cvt_pk_bf16_f32 v222, -v220, -v220
v_lshlrev_b32 v9, 16, v222
v_sub_f32 v9, -v220, v9
v_cvt_pk_bf16_f32 v223, v9, 0
v_mul_f32 v250, v221, v251
v_mul_f32 v251, 0xbfb8aa3b, v251
v_cndmask_b32 v222, v222, 0, {sHI}
v_cndmask_b32 v223, v223, 0, {sHI}""")
S3.spread(mid, *((B0 + 53, B0 + 59) if TWO else (B0 + 79, B0 + 84)))
def aug(k): return mk(f"v_mfma_f32_32x32x8_bf16 {v(ACC[k],16)}, {v(AUG+2*k,2)}, v[222:223], {v(ACC[k],16)}")
SLT = 132
def silu(k, pk):
    q = Prog(); a = ACC[k]; t = 208
    q.I(f"s_xor_b32 s50, s{sW}, {k}\ns_mul_i32 s50, s50, 2176\ns_add_u32 s50, s50, s{sQ}")
    for half in range(2):
        b = a + 8 * half
        if pk:
            for j in range(0, 8, 2): q.I(f"v_pk_mul_f32 {v(t+j,2)}, {v(b+j,2)}, v[250:251] op_sel:[0,1] op_sel_hi:[1,1]")
        else:
            for j in range(8): q.I(f"v_mul_f32 v{t+j}, v{b+j}, v251")
        for j in range(8): q.I(f"v_exp_f32 v{t+j}, v{t+j}")
        if pk:
            for j in range(0, 8, 2): q.I(f"v_pk_fma_f32 {v(t+j,2)}, {v(t+j,2)}, v[250:251], v[250:251] op_sel_hi:[1,0,0]")
        else:
            for j in range(8): q.I(f"v_fma_f32 v{t+j}, v{t+j}, v250, v250")
        for j in range(8): q.I(f"v_rcp_f32 v{t+j}, v{t+j}")
        if pk:
            for j in range(0, 8, 2): q.I(f"v_pk_mul_f32 {v(b+j,2)}, {v(b+j,2)}, {v(t+j,2)}")
        else:
            for j in range(8): q.I(f"v_mul_f32 v{b+j}, v{b+j}, v{t+j}")
        for j in range(4): q.I(f"v_cvt_pk_bf16_f32 v{b+j}, v{b+2*j}, v{b+2*j+1}")
        q.I(f"buffer_store_dwordx4 {v(b,4)}, v2, {WS}, s50 offen offset:{1024*half} sc1")
    q.I(f"v_bitop3_b32 v216, v5, v{a}, v{a+8} {X3}")
    q.I(f"buffer_store_short v216, v0, {WS}, s50 offen offset:2048 sc1")
    return q.items + ([selft(50, 18)] if SELF & 2 and not pk else [])
E0 = B0 + 28*N1
assert not raw
if TWO:
    S3.spread(flat([w2rd(j) for j in UD + UR + UAW[NT1:]]), B0 + 8, B0 + 42)
    S3.at(B0 + 34, mk("s_barrier"), 0.0)
    S3.spread(flat([w2dma(j) for j in UE]), B0 + 48, E0 + opt("wde", 12))
else:
    S3.spread(flat([w2rd(j) for j in UD + UR + UAW[NT1:]]), B0 + 22, B0 + 58)
    S3.at(B0 + 44, mk("s_barrier"), 0.0)
    S3.spread(flat([w2dma(j) for j in UE]), B0 + 64, E0)
B4 = 16
CKR = [240, 241, 244, 245, 248, 249, 217, 218, 219, 130, 242, 246, 243, 247]
C4 = [[a_(224,16), a_(240,16)], [v(ACC[0],16), v(ACC[1],16)]]
set5 = mk(f"""s_mul_i32 s{sA}, s{sTILE}, 56
s_xor_b32 s{sB}, s{sTILE}, 1
s_mul_i32 s{sB}, s{sB}, 56
s_add_u32 s51, s{sB}, s44
s_add_u32 s52, s{sA}, s44
s_add_u32 s53, s{sB}, s45
s_add_u32 s54, s{sA}, s45""")
for k in range(4):
    set5 += mk(f"s_mul_i32 s{51+k}, s{51+k}, 2176\ns_add_u32 s{51+k}, s{51+k}, {WS_H1}")
S3.spread(set5, B0 + 42, B0 + 52)
def piece4(n):
    st, i = n // 7, n % 7; r = B4 + 8 * (n % 14); c = CKR[n % 14]
    return ([f"s_add_u32 s{sCt}, s{51+st}, {8*2176*i}\nbuffer_load_dwordx4 {v(r,4)}, v2, {WS}, s{sCt} offen sc1\nbuffer_load_dwordx4 {v(r+4,4)}, v2, {WS}, s{sCt} offen offset:1024 sc1\n"
             f"buffer_load_ushort v{c}, v0, {WS}, s{sCt} offen offset:2048 sc1"], [r, r+4, c])
F4 = Fetch("f4", [piece4(n) for n in range(28)], nre=opt("re4", 3))
ND = opt("nd", 5)
rawl = flat([w2raw(j) for j in UL])
nr0 = min(len(rawl), opt("nr0", 4))
if TWO:
    S3.at(E0 - 1, stampi("p3 pass1 done", "mh"), 1.0)
    g3[E0 + 3] = aug(0) + g3[E0 + 3]; g3[E0 + 4] = aug(1) + g3[E0 + 4]
    S3.spread(silu(0, False) + [stampi("silu0 done", "e")], E0 + 5, E0 + opt("s0e", 21))
    S3.spread(silu(1, False), E0 + opt("s0e", 21), E0 + opt("s1e", 44))
    S3.spread(rawl, E0 + opt("wde", 12), E0 + opt("rle", 36))
    DEEP = opt("deep", 0)
    if DEEP:
        rng = [(opt("a0", -18), opt("b0", 4)), (opt("a1", 6), opt("b1", 24)), (opt("a2", 26), opt("b2", 50)), (opt("a3", 50), opt("b3", 78))]
        f4pos = []
        for n in range(28):
            a, b = rng[n // 7]
            for k_, c_ in enumerate(F4.loadc(n)):
                pos = a + (b - a) * ((n % 7) + (0, 0.45, 0.9)[k_]) / 7
                lo = (4*n + 4 - 56) if n < 14 else 4*(n - 14) + 4
                pos = max(pos, lo + 0.01*k_); assert pos < 4*n - 3 or n == 0, (n, pos)
                f4pos.append((pos, c_))
        for i_ in range(1, len(f4pos)): assert f4pos[i_][0] >= f4pos[i_-1][0], i_
        import math
        for pos, c_ in f4pos:
            if pos < 0: S3.at(E0 + 56 + math.floor(pos), c_, pos - math.floor(pos))
    else: S3.spread(flat([F4.loadc(n) for n in range(ND)]), E0 + opt("f4s", 52), E0 + 56)
    P.add(S3.emit())
    P.add(aug(2) + aug(3))
else:
    S3.at(E0 - 1, stampi("p3 pass1 done", "mh") + aug(0) + aug(1) + aug(2) + sprinkle(silu(0, True), rawl[:nr0], 3, 12) + stampi("silu0 done", "e"), 1.0)
    S3.spread(silu(1, False), E0, E0 + 26)
    S3.spread(rawl[nr0:], E0, E0 + 14)
    S3.spread(flat([F4.loadc(n) for n in range(ND)]), E0 + opt("f4s", 16), E0 + 28)
    P.add(S3.emit())
    P.add(aug(3))
I("s_barrier")
stamp("p3 gemm done", "me")
g4 = []
for n in range(28):
    st, i = n // 7, n % 7; hf, par = st >> 1, st & 1
    for e in range(2):
        for mu in range(2):
            zero = hf == 0 and i == 0 and e == 0 and not (par == 1 and mu == 0)
            g4.append(mk(f"{MF} {C4[par][mu]}, {a_(UA(7*hf+i)+8*e+4*mu,4)}, {v(B4+8*(n%14)+4*e,4)}, {'0' if zero else C4[par][mu]}"))
P.add(F4.check(0, ND - 1))
S = Sched(g4)
for n in range(28):
    if n + ND < 28 and not (TWO and DEEP):
        for k_, c_ in enumerate(F4.loadc(n + ND)): S.at(4*n + (0, 2, 1)[k_], c_, 0.2)
    if n + 1 < 28: S.spread(F4.checkc(n + 1, min(27, n + ND)), 4*n + 2, 4*n + 4)
    if n in (6, 13, 20): S.at(4*n + 3, stampi(f"stage{n//7} done", "e"), 1.0)
unp = []
for i in range(8): unp += mk(f"v_lshlrev_b32 v{ACC[0]+2*i}, 16, v{HR+i}\nv_and_b32 v{ACC[0]+1+2*i}, s{sHIM}, v{HR+i}")
if TWO and DEEP:
    for pos, c_ in f4pos:
        if pos >= 0: S.at(int(pos), c_, pos - int(pos))
S2E, S3E = opt("s2e", 18), opt("s3e", 44)
S.spread(silu(2, False), 0, S2E)
S.spread(unp, 22, 27)
S.spread(silu(3, False), S2E, S3E)
S.spread(flat([w2rd(j) for j in UE if j < 7]), 0, 14)
S.spread(flat([w2dma(j) for j in UP]), opt("w2a", 2), opt("w2b", 44))
for j in [x for x in UE + UL + UP if x >= 7]: S.spread(w2rd(j), 44 + 5*(j-7), 49 + 5*(j-7))
S.at(82, mk(f"""s_lshl_b32 s{sA}, s{sW}, 14
v_add_u32 v13, s{sA}, v2
v_xor_b32 v9, 16384, v13
v_xor_b32 v12, 32768, v13
v_xor_b32 v14, 49152, v13
s_waitcnt lgkmcnt(0)
s_barrier"""))
S.spread([mk(f"ds_write_b128 v{9 if mu == 0 else 14}, {a_(224+16*mu+4*i,4)} offset:{4096*(2*mu+1)+1024*i}") for mu in range(2) for i in range(4)], 87, 99)
S.at(100, mk("s_waitcnt lgkmcnt(0)\ns_barrier"), 0.0)
S.spread([mk(f"ds_read_b128 {v(ACC[2+mu]+4*i,4)}, v13 offset:{4096*(2*mu+1)+1024*i}") for mu in range(2) for i in range(4)], 100, 104)
S.spread([mk(f"v_add_f32 v{ACC[2]+k}, v{ACC[2]+k}, v{ACC[3]+k}") for k in range(16)], 107, 112)
P.add(S.emit())
stamp("p4 gemm done", "me")
for i in range(4): I(f"ds_write_b128 v12, {v(ACC[1]+4*i,4)} offset:{8192+1024*i}")
if opt("cout", 0):
    I(f"""v_lshlrev_b32 v16, 3, v3
v_sub_u32 v16, v{vXRR}, v16
v_lshlrev_b32 v17, 4, v3
v_xor_b32 v16, v16, v17
v_xor_b32 v17, 32, v16
s_add_u32 s{sA}, s{sXO}, {L_XCH}
v_add_u32 v18, s{sA}, v2""")
I("s_waitcnt lgkmcnt(0)\ns_barrier")
for i in range(4): I(f"ds_read_b128 {v(ACC[3]+4*i,4)}, v13 offset:{8192+1024*i}")
for k in range(0, 16, 2): I(f"v_pk_add_f32 {v(ACC[0]+k,2)}, {v(ACC[0]+k,2)}, {v(ACC[2]+k,2)}")
for hf in range(2):
    b = ACC[0] + 8*hf
    for k in range(0, 8, 2): I(f"v_pk_add_f32 {v(b+k,2)}, {v(b+k,2)}, {v(ACC[3]+8*hf+k,2)}")
    for i in range(4): I(f"v_cvt_pk_bf16_f32 v{96+4*hf+i}, v{b+2*i}, v{b+2*i+1}")
    if not opt("cout", 0):
        I(f"v_permlane32_swap_b32 v{96+4*hf}, v{98+4*hf}\nv_permlane32_swap_b32 v{97+4*hf}, v{99+4*hf}\nbuffer_store_dwordx4 {v(96+4*hf,4)}, v7, {OUT}, s{sOUT} offen offset:{32*hf} {OPT.get('ofl', '')}")
    else:
        I(f"v_permlane32_swap_b32 v{96+4*hf}, v{98+4*hf}\nv_permlane32_swap_b32 v{97+4*hf}, v{99+4*hf}\nds_write_b128 v{16+hf}, {v(96+4*hf,4)}")
if opt("cout", 0):
    I("s_waitcnt lgkmcnt(0)\ns_barrier")
    for i in range(2): I(f"ds_read_b128 {v(104+4*i,4)}, v18 offset:{1024*i}")
    for i in range(2): I(f"buffer_store_dwordx4 {v(104+4*i,4)}, v{vXRD0+i}, {OUT}, s{sXRB} offen offset:{1024*i} {OPT.get('ofl', '')}")
stamp("end", "mpohez")
I(f"""s_cmp_lg_u32 s2, 0
s_cbranch_scc1 L_ex0
v_mov_b32 v9, 0""")
I(f"buffer_store_dword v5, v9, {WS}, 0 offen sc1", unc=True)
I("L_ex0:")
if opt("enc", 0):
    mode = opt("enc", 0)
    if mode <= 4:
        I(f"s_bfe_u32 s{sA}, s80, {hex(0x80000 | (8*(mode-1)))}\ns_min_u32 s{sA}, s{sA}, 1\ns_mul_i32 s{sA}, s{sA}, 2000", unc=True)
    else:
        I(f"s_waitcnt lgkmcnt(0)\ns_sub_u32 s{sA}, s{sSTAMP+2}, s78\ns_mul_i32 s{sA}, s{sA}, 4", unc=True)
    I(f"""s_memrealtime s[40:41]
s_waitcnt lgkmcnt(0)
L_enc:
s_memrealtime s[42:43]
s_waitcnt lgkmcnt(0)
s_sub_u32 s42, s42, s40
s_cmp_lt_u32 s42, s{sA}
s_cbranch_scc1 L_enc
s_branch L_end""", unc=True)
if opt("dbg", 0):
    I(f"""s_cmp_lg_u32 s{sW}, 0
s_cbranch_scc1 L_end
s_load_dwordx2 s[40:41], s[0:1], 64
s_mov_b32 s42, 256
s_mov_b32 s43, 0x20000
s_mov_b64 exec, 1
v_mov_b32 v9, 0
s_waitcnt lgkmcnt(0)""", unc=True)
    for k in range(nstamp[0]):
        I(f"s_sub_u32 s{sA}, s{sSTAMP+2*k}, s78\nv_mov_b32 v10, s{sA}\nbuffer_atomic_umax v10, v9, s[40:43], 0 offen offset:{4*k}\ns_nop 1", unc=True)
    I(f"""v_mov_b32 v10, s78
buffer_atomic_umax v10, v9, s[40:43], 0 offen offset:32
s_not_b32 s{sA}, s78
v_mov_b32 v11, s{sA}
buffer_atomic_umax v11, v9, s[40:43], 0 offen offset:36
v_mov_b32 v12, s{sSTAMP+2*(nstamp[0]-1)}
buffer_atomic_umax v12, v9, s[40:43], 0 offen offset:40
v_mov_b32 v13, s80
buffer_atomic_add v13, v9, s[40:43], 0 offen offset:44
s_branch L_end""", unc=True)
I("L_exit:")
if DIAG and not opt("dbg", 0):
    I(f"s_cmp_lg_u32 s{sW}, {opt('dw', 0)}\ns_cbranch_scc1 L_end\ns_lshl_b32 s{sA}, s2, 7\ns_add_u32 s{sA}, s{sA}, {WS_DIAG}\nv_mov_b32 v9, 0", unc=True)
    for k in range(nstamp[0]):
        I(f"s_waitcnt lgkmcnt(0)\nv_mov_b32 v10, s{sSTAMP+2*k}\nbuffer_store_dword v10, v9, {WS}, s{sA} offen offset:{4*k}", unc=True)
    if SEL == ["z"]: I(f"v_mov_b32 v10, s78\nbuffer_store_dword v10, v9, {WS}, s{sA} offen offset:120", unc=True)
    I(f"v_mov_b32 v10, s80\nbuffer_store_dword v10, v9, {WS}, s{sA} offen offset:124", unc=True)
I("L_end:\ns_endpgm")
I(f"""L_idle:
s_and_b32 s{sA}, s{sT2}, 1
s_lshl_b32 s{sA}, s{sA}, 1
s_add_u32 s{sA}, s{sA}, s{sRact}
s_sub_u32 s{sA}, s{sA}, 14
s_lshl_b32 s{sA}, s{sA}, 2
s_add_u32 s{sA}, s{sA}, s{sW}
s_lshl_b32 s{sA}, s{sA}, 13
v_lshlrev_b32 v9, 7, v1
s_lshr_b32 s{sD}, s{sT2}, 1
s_mul_i32 s{sD}, s{sD}, {8*56*2176}
s_add_u32 s{sD}, s{sD}, {WS_H1}
s_add_u32 s{sD}, s{sD}, s{sA}
s_mov_b32 s{sB}, {opt("idle2", 0)}
s_cmp_eq_u32 s{sB}, 0
s_cbranch_scc1 L_idle3
L_idle2:
buffer_load_dword v11, v9, {WS}, s{sD} offen {OPT.get("i2f", "")}
s_add_u32 s{sD}, s{sD}, {16*8192}
s_sub_u32 s{sB}, s{sB}, 1
s_cmp_lg_u32 s{sB}, 0
s_cbranch_scc1 L_idle2
L_idle3:
s_mov_b32 s{sB}, {opt("idle", 0)}
s_cmp_eq_u32 s{sB}, 0
s_cbranch_scc1 L_exit
L_idle1:
buffer_load_dword v11, v9, {W2}, s{sA} offen
s_add_u32 s{sA}, s{sA}, {16*8192}
s_sub_u32 s{sB}, s{sB}, 1
s_cmp_lg_u32 s{sB}, 0
s_cbranch_scc1 L_idle1
s_branch L_exit""", unc=True)
P.add(TAIL.items)

for it in P.items:
    if isinstance(it, Ins) and it.text.startswith('buffer_load_dword v142,'): it.defs = []
PL = opt("plain", 0)
for it in P.items:
    if isinstance(it, Ins) and it.op.startswith("buffer_store") and "sc1" in it.text:
        ish1 = " s50 " in it.text or " s49 " in it.text
        ish = ("v[224:227]" in it.text or "v[228:231]" in it.text or "v112," in it.text or "v113," in it.text)
        if (ish and PL & 1) or (ish1 and PL & 2): it.text = it.text.replace(" sc1", OPT.get("pfl", ""))
if opt("pld", 0):
    c = 0
    for it in P.items:
        if isinstance(it, Ins) and it.op.startswith("buffer_load") and "sc1" in it.text and " s56 " in it.text and not it.uncounted:
            c += 1
            kind = 0 if c <= 48 else 1 if c <= 104 else 2
            if opt("pld", 0) & kind: it.text = it.text.replace(" sc1", OPT.get("lfl", ""))
if opt("nochk", 0):
    new = []; seen_end = False
    for it in P.items:
        if isinstance(it, Ins):
            if opt("nochk", 0) == 2 and not seen_end:
                if it.text.startswith("L_exit"): seen_end = True
                elif it.uncounted or it.op in ("s_cbranch_vccz", "s_branch"): continue
            if it.op == "s_cbranch_vccz" and not it.uncounted: it = Ins(it.text.replace("s_cbranch_vccz", "s_branch"))
            elif it.op == "s_cbranch_vccnz" and not it.uncounted: continue
            t = it.text
            if it.op.startswith("buffer_store") and "sc1" in t and not it.uncounted:
                kind = 8 if " s50 " in t else 4 if ("v[224" in t or "v[228" in t or "v112," in t or "v113," in t) else 2 if f" s{sOST} " in t else 1
                if opt("nost", 0) & kind: continue
            if it.op.startswith("buffer_load") and "sc1" in t and " s56 " in t and not it.uncounted:
                cnt_ld = globals().setdefault("_c", [0]); cnt_ld[0] += 1; c = cnt_ld[0]
                kind = 1 if c <= 32 else 2 if c <= 48 else 4 if c <= 104 else 8
                if opt("nold", 0) & kind: continue
        new.append(it)
    P.items = new
body, items = render(P.items)
if opt("align", 1):
    import subprocess, re as _re
    open("_al.s", "w").write('.amdgcn_target "amdgcn-amd-amdhsa--gfx950"\n.text\n' + body)
    subprocess.run(["clang", "-x", "assembler", "-target", "amdgcn-amd-amdhsa", "-mcpu=gfx950", "-c", "_al.s", "-o", "_al.o"], check=True)
    dis = subprocess.run(["llvm-objdump", "-d", "--mcpu=gfx950", "_al.o"], capture_output=True, text=True).stdout
    sizes = [4 * len(m.group(1).split()) for m in _re.finditer(r"// [0-9A-F]{12}: ((?:[0-9A-F]{8} ?)+)", dis)]
    real = [i for i in items if i.cls not in ('label', 'dir')]
    assert len(sizes) == len(real), (len(sizes), len(real))
    sz = {id(i): n for i, n in zip(real, sizes)}
    new = []; off = 0; nal = 0; MINRUN = opt("minrun", 6)
    for k, it in enumerate(items):
        if id(it) in sz and sz[id(it)] == 8 and off % 8 == 4 and not it.uncounted:
            run = 0
            for j in items[k:k + MINRUN + 4]:
                if id(j) not in sz: continue
                if sz[id(j)] != 8 or j.cls == 'mfma': break
                run += 1
            if run >= MINRUN:
                p = new[-1] if new else None
                if p is not None and p.cls == 'valu' and sz.get(id(p)) == 4 and not p.op.startswith(('v_permlane', 'v_dot2c', 'v_readfirst', 'v_accvgpr', 'v_cmp', 'v_cndmask')) and not p.op.endswith('_e64'):
                    p.text = p.text.replace(p.op, p.op + "_e64", 1)
                else: new.append(Ins("s_nop 0"))
                off += 4; nal += 1
        new.append(it); off += sz.get(id(it), 0)
    items = new
    body = '\n'.join(('' if i.cls == 'label' else '  ') + i.text for i in items) + '\n'
    print("alignment fixes:", nal, "code bytes", off)
hdr = open("cdna_kernels/" + NAME + ".s.ref").read().split("; Override launch")[0]
out = hdr + f"""; @launch grid=(256,1,1) block=(256,1,1) lds={LDS_SIZE}
.amdgcn_target "amdgcn-amd-amdhsa--gfx950"
.text
.globl {NAME}_kernel
.p2align 8
.type {NAME}_kernel,@function
{NAME}_kernel:
{body}.fill 2048, 4, 0xbf810000
.section .rodata,"a"
.p2align 6
.amdhsa_kernel {NAME}_kernel
  .amdhsa_next_free_vgpr 512
  .amdhsa_next_free_sgpr 102
  .amdhsa_accum_offset 256
  .amdhsa_group_segment_fixed_size 0
  .amdhsa_kernarg_size 80
  .amdhsa_user_sgpr_count 2
  .amdhsa_user_sgpr_kernarg_segment_ptr 1
  .amdhsa_system_sgpr_workgroup_id_x 1
.end_amdhsa_kernel
"""
open(sys.argv[1], "w").write(out)
n = sum(1 for i in items if i.cls not in ('label', 'dir'))
nu_ = sum(1 for i in items if i.cls not in ('label', 'dir') and i.uncounted)
print("instructions:", n, "(slow path", nu_, ") nops:", sum(1 for i in items if i.op == 's_nop'), "waits:", sum(1 for i in items if i.op == 's_waitcnt'), "stamps", nstamp[0])
```

```python
import sys, struct
from asmlib import *

NAME = "sequential_preLN__linear_kernel_hedgehog__dense_activation_silu__prompt"
DIAG = int(sys.argv[2]) if len(sys.argv) > 2 else 0
OPT = dict(a.split('=') for a in sys.argv[3:])
def opt(k, d): return int(OPT[k], 0) if k in OPT else d

WS_PART = 0x40000
WS_O    = 0x240000
WS_H    = 0x440000
WS_H1   = 0x680000
WS_DIAG = 0xE80000
WS_FLG  = 0xF00000
WS_SIZE = 0xF80000
XW = 28672
L_WV, L_WQ, L_WK, L_WO = 0, 28672, 57344, 86016
L_IMG = L_WK
L_KVX = 143360
L_XCH = 147456
L_SCR = 114688
L_AUG = 161792
LDS_SIZE = 163840
sW, sT, sH, sT2, sR = 3, 4, 5, 6, 7
X, WQKV, WPHI, WO, W1, W2, OUT, WS = [f"s[{i}:{i+3}]" for i in range(8, 40, 4)]
sKX, sKW = 40, 47
sHQ, sHIM = 54, 55
sRET = "s[56:57]"
sSPIN, sP, sU, sC, sMASK, sQ = 58, 59, 60, 61, 62, 63
sHI = "s[64:65]"
sLOG = "s[66:67]"
sONES, sTILE = 68, 69
sA, sB, sCt, sD = 70, 71, 72, 73
sRact, sXO = 74, 75
sWB, sWQ = 76, 77
sLAST, sFLAG, sWM, sPST, sPCK, sOST, sXRB, sOUT = 80, 81, 82, 83, 84, 85, 86, 87
sSTAMP = 88

def v(a, n=1): return f"v{a}" if n == 1 else f"v[{a}:{a+n-1}]"
def a_(a, n=1): return f"a{a}" if n == 1 else f"a[{a}:{a+n-1}]"
def fhex(x): return hex(struct.unpack('<I', struct.pack('<f', x))[0])
def flat(l): return sum(l, [])
P = Prog(); I = P.I
TAIL = Prog()
nstamp = [0]
SEL = OPT.get("st", "m").split(",")
PICK = [int(x) for x in OPT["pick"].split(",")] if "pick" in OPT else None
allst = [0]
def stampi(name, grp="m"):
    idx = allst[0]; allst[0] += 1
    if not DIAG: return []
    if PICK is not None:
        if name != "start" and idx not in PICK:
            print(f"   - {idx}: {name}"); return []
    elif name != "start" and not (set(grp) & set(SEL)): return []
    k = nstamp[0]; nstamp[0] += 1
    assert k < 7
    print(f"stamp {k}: [{idx}] {name}")
    op = "s_memtime" if DIAG == 2 else "s_memrealtime"
    return mk(f"{op} s[{sSTAMP+2*k}:{sSTAMP+2*k+1}]")
def stamp(name, grp="m"): P.add(stampi(name, grp))
X3 = "bitop3:0x96"

def chk_code(regs, masked):
    r = list(regs)
    if masked: return f"v_bitop3_b32 v10, v{r[0]}, v{r[1]}, s{sMASK} bitop3:0x28\nv_cmp_ne_u32 vcc, v10, v6"
    if len(r) == 1: return f"v_cmp_ne_u32 vcc, v{r[0]}, v5"
    if len(r) == 2: t = f"v_xor_b32 v10, v{r[0]}, v{r[1]}"
    else:
        t = f"v_bitop3_b32 v10, v{r[0]}, v{r[1]}, v{r[2]} {X3}"
        if len(r) == 4: t += f"\nv_xor_b32 v10, v10, v{r[3]}"
    return t + "\nv_cmp_ne_u16 vcc, v10, v5"

sFL, sDM = 56, 57
GUARD = f"s_add_u32 s{sSPIN}, s{sSPIN}, 1\ns_cmp_gt_u32 s{sSPIN}, 0x40000\ns_cbranch_scc1 L_end\ns_waitcnt vmcnt(0)"
class Fetch:
    def __init__(self, name, pieces, masked=False, nre=1):
        self.name, self.pieces, self.masked, self.nre = name, pieces, masked, nre
    def loadc(self, i):
        it = flat([mk(c.replace(f"s{sCt}", f"s{sFL}")) for c in self.pieces[i][0]])
        out = []; cur = []
        for x in it:
            cur.append(x)
            if x.cls == 'vmem': out.append(cur); cur = []
        return out
    def load(self, i): return flat(self.loadc(i))
    def stub(self, i, last):
        n = self.name
        wgt = {"fo": 0x100, "fh": 0x10000, "f4": 0x1000000}.get(n, 1)
        rel = (f"s_add_u32 s80, s80, {wgt}\n" if DIAG else "") + "\n".join(c for j in range(i, min(last, i + self.nre - 1) + 1) for c in self.pieces[j][0])
        if opt("ool", 7) & {"fo": 2, "fh": 4, "f4": 8}[n]:
            TAIL.I(f"L_{n}_r{i}:\n" + rel + "\n" + GUARD + "\n" + chk_code(self.pieces[i][1], self.masked) + f"\ns_cbranch_vccnz L_{n}_r{i}\ns_branch L_{n}_ok{i}", unc=True)
            return mk(f"s_cbranch_vccnz L_{n}_r{i}\nL_{n}_ok{i}:")
        return mk(f"s_cbranch_vccz L_{n}_ok{i}\nL_{n}_r{i}:") + \
               mk(rel + "\n" + GUARD + "\n" + chk_code(self.pieces[i][1], self.masked) + f"\ns_cbranch_vccnz L_{n}_r{i}", unc=True) + mk(f"L_{n}_ok{i}:")
    def checkc(self, i, last):
        return [[x] for x in mk(chk_code(self.pieces[i][1], self.masked))] + [self.stub(i, last)]
    def check(self, i, last): return flat(self.checkc(i, last))

sFS, sFP = 80, 81
vL512, vPO, vPF = 0, 142, 143
def flag_store(nl): return mk(f"s_mov_b64 exec, {(1 << nl) - 1}\nbuffer_store_dword v5, v{vL512}, {WS}, s{sFS} offen sc1\ns_mov_b64 exec, -1")
def gate(name, vo, vf): return Fetch(name, [([f"buffer_load_dword v{vf}, v{vo}, {WS}, s{sFP} offen sc1"], [vf])])
GATE = opt("gate", 0)

def cost(it):
    if isinstance(it, WaitTag): return 4
    if it.cls in ('label', 'dir') or it.uncounted: return 0
    if it.op.startswith(TRANS) or 'permlane' in it.op: return 8
    if it.op.startswith('ds_write_b128'): return 28
    if it.cls == 'mfma': return 8
    return 4.5
class Sched:
    def __init__(self, groups):
        self.groups = groups; self.gap = [[] for _ in groups]; self.seq = 0
    def at(self, g, items, frac=0.5):
        self.seq += 1; self.gap[g].append((frac, self.seq, list(items)))
    def spread(self, chunks, a, b):
        chunks = [c if isinstance(c, list) else [c] for c in chunks]
        tot = sum(cost(i) for c in chunks for i in c) or 1; acc = 0
        for c in chunks:
            pos = a + (b - a) * acc / tot
            self.at(int(pos), c, pos - int(pos))
            acc += sum(cost(i) for i in c)
    def emit(self):
        out = []
        for g, gp in zip(self.groups, self.gap):
            out += g
            for _, _, c in sorted(gp, key=lambda x: (x[0], x[1])): out += c
        return out
def sprinkle(items, groups, start, step):
    out = []; groups = list(groups); nxt = start
    for i, it in enumerate(items):
        if groups and i == nxt: out += groups.pop(0); nxt += step
        out.append(it)
    for g in groups: out += g
    return out

def softmax(p, t, o, pk):
    q = Prog(); J = q.I
    m, n = t + 14, t + 15; r0, r1 = t + 16, t + 17
    J(f"v_max3_f32 v{m}, v{p}, v{p+1}, v{p+2}\nv_max3_f32 v{n}, -v{p}, -v{p+1}, -v{p+2}")
    for k in range(3, 13, 2):
        J(f"v_max3_f32 v{m}, v{m}, v{p+k}, v{p+k+1}\nv_max3_f32 v{n}, v{n}, -v{p+k}, -v{p+k+1}")
    J(f"""v_max_f32 v{m}, v{m}, v{p+13}
v_max_f32 v{n}, v{n}, -v{p+13}
v_permlane32_swap_b32 v{m}, v{n}
v_max_f32 v{m}, v{m}, v{n}
v_mul_f32 v{m}, v253, v{m}
v_mov_b32 v{n}, v{m}
v_permlane32_swap_b32 v{m}, v{n}""")
    if pk:
        for k in range(0, 14, 2):
            J(f"v_pk_fma_f32 {v(t+k,2)}, {v(p+k,2)}, v[252:253], {v(m,2)} op_sel_hi:[1,0,0]")
            J(f"v_pk_fma_f32 {v(p+k,2)}, {v(p+k,2)}, v[252:253], {v(m,2)} op_sel:[0,1,1] op_sel_hi:[1,1,1]")
    if pk == 2:
        for k in range(14):
            J(f"v_exp_f32 v{t+k}, v{t+k}\nv_exp_f32 v{p+k}, v{p+k}")
            if k >= 2:
                a0 = f"v{t}" if k == 2 else f"v{r0}"; a1 = f"v{p}" if k == 2 else f"v{r1}"
                J(f"v_add_f32 v{r0}, {a0}, v{t+k-1}\nv_add_f32 v{r1}, {a1}, v{p+k-1}")
        J(f"v_add_f32 v{m}, v{r0}, v{t+13}\nv_add_f32 v{n}, v{r1}, v{p+13}")
    elif pk:
        for k in range(14): J(f"v_exp_f32 v{t+k}, v{t+k}")
        for k in range(14): J(f"v_exp_f32 v{p+k}, v{p+k}")
        J(f"v_pk_add_f32 {v(m,2)}, {v(t,2)}, {v(t+2,2)}\nv_pk_add_f32 {v(r0,2)}, {v(p,2)}, {v(p+2,2)}")
        for k in range(4, 14, 2):
            J(f"v_pk_add_f32 {v(m,2)}, {v(m,2)}, {v(t+k,2)}\nv_pk_add_f32 {v(r0,2)}, {v(r0,2)}, {v(p+k,2)}")
        J(f"v_add_f32 v{m}, v{m}, v{n}\nv_add_f32 v{n}, v{r0}, v{r1}")
    else:
        for k in range(14):
            J(f"v_fma_f32 v{t+k}, v{p+k}, v252, v{m}\nv_fma_f32 v{p+k}, v{p+k}, v253, v{n}\nv_exp_f32 v{t+k}, v{t+k}\nv_exp_f32 v{p+k}, v{p+k}")
            if k >= 2:
                a0 = f"v{t}" if k == 2 else f"v{r0}"; a1 = f"v{p}" if k == 2 else f"v{r1}"
                J(f"v_add_f32 v{r0}, {a0}, v{t+k-1}\nv_add_f32 v{r1}, {a1}, v{p+k-1}")
        J(f"v_add_f32 v{m}, v{r0}, v{t+13}\nv_add_f32 v{n}, v{r1}, v{p+13}")
    J(f"""v_permlane32_swap_b32 v{m}, v{n}
v_add_f32 v{m}, v{m}, v{n}
v_rcp_f32 v{m}, v{m}
v_mov_b32 v{n}, v{m}
v_permlane32_swap_b32 v{m}, v{n}""")
    if pk == 1:
        for k in range(0, 14, 2):
            J(f"v_pk_mul_f32 {v(t+k,2)}, {v(t+k,2)}, {v(m,2)} op_sel_hi:[1,0]")
            J(f"v_pk_mul_f32 {v(p+k,2)}, {v(p+k,2)}, {v(m,2)} op_sel:[0,1] op_sel_hi:[1,1]")
    else:
        for k in range(14): J(f"v_mul_f32 v{t+k}, v{t+k}, v{m}\nv_mul_f32 v{p+k}, v{p+k}, v{n}")
    for k in range(7): J(f"v_cvt_pk_bf16_f32 v{o+k}, v{t+2*k}, v{t+2*k+1}")
    for k in range(7): J(f"v_cvt_pk_bf16_f32 v{o+7+k}, v{p+2*k}, v{p+2*k+1}")
    return q.items

def dmag(vaddrs, srd, sbase, sadd, mbase, madd, tag, sreg=None):
    sr = sCt if sreg is None else sreg
    ch = [mk(f"buffer_load_dwordx4 v{a}, {srd}, s{sr} offen offset:{1024*i} lds", tag=tag) for i, a in enumerate(vaddrs)]
    ch[0] = mk(f"s_add_u32 m0, s{mbase}, {madd}\ns_add_u32 s{sr}, s{sbase}, {sadd}") + ch[0]
    return ch

MF = "v_mfma_f32_32x32x16_bf16"
RINGA, NRING = 224, 8
def gemm_lds(steps, ahead=6):
    def rd(i):
        av, o1, o2 = steps[i][:3]; r = RINGA + 4 * (i % NRING)
        return mk(f"ds_read_b64_tr_b16 {a_(r,2)}, v{av} offset:{o1}\nds_read_b64_tr_b16 {a_(r+2,2)}, v{av} offset:{o2}")
    rds = [rd(i) for i in range(len(steps))]
    groups = []
    for i, st in enumerate(steps):
        r = RINGA + 4 * (i % NRING); b, acc, first, swap = st[3]
        A, B = a_(r, 4), v(b, 4)
        if swap: A, B = B, A
        g = mk(f"{MF} {v(acc,16)}, {A}, {B}, {'0' if first else v(acc,16)}")
        if i % 2 == 0 and i + 1 < len(steps):
            r2 = RINGA + 4 * ((i + 1) % NRING); g[0].extra = [('a', r2 + x) for x in range(4)]
        groups.append(g + (rds[i + ahead] if i + ahead < len(steps) else []))
    return flat(rds[:ahead]), groups

FAST = opt('fast', 1)
LO = """s_load_dwordx2 s[12:13], s[0:1], 8
s_load_dwordx2 s[16:17], s[0:1], 16
s_load_dwordx2 s[20:21], s[0:1], 24
s_load_dwordx2 s[24:25], s[0:1], 40
s_load_dwordx2 s[28:29], s[0:1], 48
s_load_dwordx2 s[32:33], s[0:1], 56
s_load_dwordx2 s[36:37], s[0:1], 72
"""
CP = f"""v_lshlrev_b32 v3, 4, v1
v_lshl_add_u32 v3, v2, 6, v3
v_lshl_add_u32 v3, v2, 4, v3
v_add_u32 v3, s{sCt}, v3
v_lshlrev_b32 v3, 7, v3
s_and_b32 s76, s76, 0xffffff00
s_mov_b64 exec, 31
global_load_dword v236, v3, s[76:77]
s_mov_b64 exec, -1
"""
MAP1 = [f"""{"s_lshr_b32 s4, s70, 1" if opt("pair", 1) else "s_and_b32 s4, s70, 3"}
s_lshl_b32 s{sT}, s{sT}, 2
s_and_b32 s{sD}, s{sB}, 3
s_add_u32 s{sT}, s{sT}, s{sD}
{"s_and_b32 s59, s70, 1" if opt("pair", 1) else "s_lshr_b32 s59, s70, 2"}
s_lshl_b32 s{sH}, s{sP}, 3
s_lshr_b32 s{sD}, s{sB}, 2
s_add_u32 s{sH}, s{sH}, s{sD}
s_mul_i32 s{sP}, s{sT}, {opt("rt", 2)}
s_add_u32 s{sD}, s{sD}, s{sP}
s_mul_i32 s{sP}, s{sD}, 37
s_lshr_b32 s{sP}, s{sP}, 8
s_mul_i32 s{sP}, s{sP}, 7
s_sub_u32 s{sD}, s{sD}, s{sP}
s_lshl_b32 s{sKX}, s{sD}, 7
""",
f"""s_lshl_b32 s{sT}, s{sA}, 1
s_lshr_b32 s{sD}, s{sB}, 4
s_add_u32 s{sT}, s{sT}, s{sD}
s_mov_b32 s{sH}, s{sCt}
s_and_b32 s{sD}, s{sH}, 7
s_cmp_eq_u32 s{sD}, 7
s_cselect_b32 s{sD}, 3, s{sD}
s_lshl_b32 s{sKX}, s{sD}, 7
""",
f"""s_mov_b32 s{sT}, s{sCt}
s_lshl_b32 s{sH}, s{sA}, 1
s_lshr_b32 s{sD}, s{sB}, 4
s_add_u32 s{sH}, s{sH}, s{sD}
s_and_b32 s{sD}, s{sH}, 7
s_mul_i32 s{sD}, s{sD}, 3
s_mul_i32 s{sP}, s{sD}, 37
s_lshr_b32 s{sP}, s{sP}, 8
s_mul_i32 s{sP}, s{sP}, 7
s_sub_u32 s{sD}, s{sD}, s{sP}
s_lshl_b32 s{sKX}, s{sD}, 7
"""][opt("map1", 0)]
if DIAG: I("s_memrealtime s[78:79]")
I(f"""s_cmp_ge_u32 s2, 256
s_cbranch_scc1 L_end
s_load_dwordx2 s[8:9], s[0:1], 0
{LO if not FAST else ''}{"s_waitcnt lgkmcnt(0)" + chr(10) + "s_memrealtime s[88:89]" if opt("bare", 0) else ""}
s_getpc_b64 s[76:77]
v_and_b32 v1, 63, v0
v_lshrrev_b32 v2, 6, v0
s_and_b32 s{sA}, s2, 7
v_readfirstlane_b32 s{sW}, v2
s_lshr_b32 s{sB}, s2, 3
s_and_b32 s{sCt}, s{sB}, 15
{CP if FAST < 2 else ''}{MAP1}
s_mov_b32 s10, 1835008
s_mov_b32 s11, 0x20000
v_lshrrev_b32 v2, 3, v1
v_mul_u32_u24 v244, 896, v2
v_lshrrev_b32 v2, 4, v1
v_and_b32 v8, 7, v1
v_xor_b32 v2, v2, v8
v_lshl_add_u32 v244, v2, 4, v244
v_xor_b32 v245, 64, v244
v_add_u32 v245, {7168-1024}, v245
v_add_u32 v246, {2*(7168-1024)}, v244
v_add_u32 v247, {2*(7168-1024)}, v245
s_lshl_b32 s{sQ}, s{sT}, 2
s_add_u32 s{sQ}, s{sQ}, s{sW}
s_mul_i32 s{sQ}, s{sQ}, {32*896}
s_lshr_b32 s{sXO}, s{sW}, 1
s_add_u32 s{sXO}, s{sXO}, s{sW}
s_mul_i32 s{sXO}, s{sXO}, {XW}
s_waitcnt lgkmcnt(0)""")
st0 = stampi("start")
if not opt("bare", 0): P.add(st0)
def xdma(g): return flat(dmag([244, 245, 246, 247], X, sQ, f"s{sKX+g}", sXO, 4096*g, f"x{g}"))
P.add(xdma(0))
if FAST: I(LO)
if FAST == 2: I(f"v_lshrrev_b32 v2, 6, v0\ns_and_b32 s{sCt}, s{sB}, 15\n" + CP)
I(f"""s_mov_b32 s14, {0 if opt('abl',0)&8 else 1204224}
s_mov_b32 s15, 0x20000
v_and_b32 v8, 3, v1""")
def wtouch(mask16, dst):
    m = mask16 | (mask16 << 16)
    return mk(f"s_mov_b32 exec_lo, {hex(m)}\ns_mov_b32 exec_hi, {hex(m)}\nbuffer_load_dword v{dst}, v255, {WQKV}, 0 offen\ns_mov_b64 exec, -1")
def kxs(g): return mk(f"s_add_u32 s{sKX+g}, s{sKX+g-1}, 128\ns_cmp_ge_u32 s{sKX+g}, 896\ns_cselect_b32 s{sD}, 896, 0\ns_sub_u32 s{sKX+g}, s{sKX+g}, s{sD}")
NXE = opt("nxe", 2)
if opt("wtfirst", 1) and opt("wt0", 0): P.add(wtouch(opt("wt0", 0), 237))
for g in range(1, NXE): P.add(kxs(g) + xdma(g))
if not opt("wtfirst", 1) and opt("wt0", 0): P.add(wtouch(opt("wt0", 0), 237))
if FAST: I("s_waitcnt lgkmcnt(0)")
if opt("wsoff", 0): I(f"s_add_u32 s36, s36, {opt('wsoff', 0)}\ns_addc_u32 s37, s37, 0")
I(f"""s_mov_b32 s38, {WS_SIZE}
s_mov_b32 s39, 0x20000
s_mov_b32 s18, 25088
s_mov_b32 s19, 0x20000
s_mov_b32 s22, {0 if opt('abl',0)&4 else 401408}
s_mov_b32 s23, 0x20000
s_xor_b32 s{sHQ}, s{sH}, 1
v_mov_b32 v11, 0
v_lshlrev_b32 v6, 7, v1""")
TM = opt("tm", 0)
sm_ld = mk(f"""s_mov_b64 exec, 1
buffer_load_dword v5, v6, {WS}, 0 offen sc1""")
if opt("two_", 1): sm_ld += mk(f"""s_lshl_b32 s56, s2, 2
s_add_u32 s56, s56, s{sW}
s_lshl_b32 s56, s56, 9
s_mov_b64 exec, 15
buffer_load_dword v238, v6, {WO}, s56 offen""")
if opt("twp", 1): sm_ld += mk(f"""s_and_b32 s{sCt}, s{sH}, 14
s_mul_i32 s{sCt}, s{sCt}, 1568
s_mul_i32 s56, s{sW}, 896
s_add_u32 s{sCt}, s{sCt}, s56
s_mov_b64 exec, 127
buffer_load_dword v239, v6, {WPHI}, s{sCt} offen""")
sm_ld += mk("s_mov_b64 exec, -1")
if TM == 0: P.add(sm_ld)
for g in range(NXE, 7): P.add(kxs(g))
I(f"""s_lshl_b32 s{sT2}, s{sA}, 1
s_lshr_b32 s{sD}, s{sB}, 4
s_add_u32 s{sT2}, s{sT2}, s{sD}
s_and_b32 s{sRact}, s{sB}, 15
s_min_u32 s{sR}, s{sRact}, 13
s_mov_b32 s26, {0 if opt('abl',0)&1 else 1605632}
s_mov_b32 s27, 0x20000
s_mov_b32 s30, {0 if opt('abl',0)&2 else 1605632}
s_mov_b32 s31, 0x20000
s_mov_b32 s34, 1835008
s_mov_b32 s35, 0x20000
s_mov_b32 s64, 0
s_mov_b32 s65, -1
s_mov_b32 s{sONES}, 0x3f803f80
s_mov_b32 s{sMASK}, 0xbfffbfff
s_mov_b32 s{sHIM}, 0xffff0000
s_mov_b32 s{sSPIN}, 0
s_mov_b32 s80, 0
s_cmp_ge_u32 s{sR}, 7
s_cselect_b32 s{sU}, 1, 0
s_mul_i32 s{sA}, s{sU}, 7
s_sub_u32 s{sC}, s{sR}, s{sA}""")
sT3 = 67
if opt("map3", 1):
    I(f"""s_and_b32 s{sA}, s{sT2}, 12
s_and_b32 s{sD}, s{sT2}, 1
s_lshl_b32 s{sD}, s{sD}, 1
s_add_u32 s{sA}, s{sA}, s{sD}
s_add_u32 s{sT3}, s{sA}, s{sU}
s_bfe_u32 s{sA}, s{sT2}, 0x10001
s_mul_i32 s{sA}, s{sA}, 7
s_add_u32 s{sR}, s{sA}, s{sC}""")
else: I(f"s_mov_b32 s{sT3}, s{sT2}")
for g in range(7): I(f"s_mul_i32 s{sKW+g}, s{sKX+g}, {172032//128}")
I(f"""s_mul_i32 s{sWB}, s{sH}, 56
s_mul_i32 s{sD}, s{sW}, 43008
s_add_u32 s{sWB}, s{sWB}, s{sD}
s_mul_i32 s{sWQ}, s{sHQ}, 56
s_add_u32 s{sWQ}, s{sWQ}, s{sD}
s_add_u32 s{sWB}, s{sWB}, 896
s_lshl_b32 s{sWM}, s{sW}, 10
s_mul_i32 s66, s{sH}, 1568
s_mul_i32 s81, s{sHQ}, 1568""")
_m0 = len(P.items)
I(f"""s_lshl_b32 s{sA}, s{sH}, 4
s_add_u32 s{sA}, s{sA}, s{sT}
s_mul_i32 s{sA}, s{sA}, 4608
s_add_u32 s{sA}, s{sA}, {WS_PART}
s_add_u32 s{sPST}, s{sA}, s{sWM}
s_lshl_b32 s{sD}, s{sW}, 7
s_add_u32 s{sA}, s{sA}, s{sD}
s_add_u32 s{sPCK}, s{sA}, 4096
s_lshl_b32 s{sA}, s{sT}, 2
s_add_u32 s{sA}, s{sA}, s{sW}
s_lshl_b32 s{sA}, s{sA}, 15
s_lshl_b32 s{sB}, s{sHQ}, 11
s_add_u32 s{sA}, s{sA}, s{sB}
s_add_u32 s{sOST}, s{sA}, {WS_O}
s_lshl_b32 s{sA}, s{sT2}, 2
s_lshl_b32 s{sB}, s{sU}, 1
s_add_u32 s{sA}, s{sA}, s{sB}
s_and_b32 s{sB}, s{sW}, 1
s_add_u32 s{sTILE}, s{sA}, s{sB}
s_mul_i32 s{sA}, s{sA}, {32*896}
s_lshl_b32 s{sB}, s{sC}, 7
s_add_u32 s{sA}, s{sA}, s{sB}
s_mul_i32 s{sD}, s{sW}, {16*896}
s_add_u32 s{sXRB}, s{sA}, s{sD}
s_mul_i32 s{sA}, s{sTILE}, {32*896}
s_add_u32 s{sA}, s{sA}, s{sB}
s_lshr_b32 s{sB}, s{sW}, 1
s_lshl_b32 s{sB}, s{sB}, 6
s_add_u32 s{sOUT}, s{sA}, s{sB}
s_mul_i32 s{sP}, s{sHQ}, {16*4608}
s_add_u32 s{sP}, s{sP}, {WS_PART}""")
deferred = P.items[_m0:]; del P.items[_m0:]
WPK, WPQ, WPT = 192, 200, 208
vWPA, vWPB, vKVX, vIMW, vKA, vKB, vFPD, vFPC, vWO0, vWO1, vXRD0, vXRD1, vXRR, vWOR = range(128, 142)
I(f"""v_lshrrev_b32 v3, 5, v1
v_lshlrev_b32 v2, 4, v1
v_lshlrev_b32 v4, 2, v1
v_bfe_u32 v11, v1, 3, 2
v_lshl_add_u32 v11, v11, 2, v8
v_bfe_u32 v12, v1, 2, 1
v_mul_u32_u24 v12, 14, v12
v_min_u32 v13, 13, v11
v_add_u32 v13, v13, v12
v_lshlrev_b32 v13, 1, v13
v_mul_u32_u24 v14, 224, v3
v_add_u32 v{vWPA}, v13, v14
v_lshl_add_u32 v{vWPB}, v3, 20, v{vWPA}
v_add_u32 v12, v12, v11
v_cmp_gt_u32 vcc, 14, v11
v_lshrrev_b32 v7, 2, v1
v_mul_u32_u24 v7, 2688, v7
v_cndmask_b32 v12, 28, v12, vcc
v_and_b32 v13, 15, v12
v_lshlrev_b32 v13, 4, v13
v_lshrrev_b32 v12, 4, v12
v_lshl_add_u32 v13, v12, 3, v13
v_lshl_add_u32 v13, v3, 8, v13
v_add_u32 v{vKVX}, {L_KVX}, v13
v_lshlrev_b32 v11, 4, v8
v_min_u32 v11, 40, v11
v_add_u32 v7, v7, v11
v_and_b32 v9, 31, v1
v_lshlrev_b32 v240, 7, v9
v_bfe_u32 v11, v1, 1, 3
v_xor_b32 v11, v11, v3
v_lshl_add_u32 v240, v11, 4, v240
v_add_u32 v240, s{sXO}, v240
v_xor_b32 v241, 32, v240
v_xor_b32 v242, 64, v240
v_xor_b32 v243, 96, v240
v_mov_b32 v250, 0
v_mov_b32 v251, 0""")
_m0 = len(P.items)
I(f"""s_lshl_b32 s{sA}, s{sW}, 5
v_add_u32 v10, s{sA}, v9
v_mul_u32_u24 v10, 208, v10
v_mul_u32_u24 v11, 96, v3
v_add_u32 v{vIMW}, v10, v11
v_lshrrev_b32 v10, 4, v1
v_bfe_u32 v15, v1, 2, 2
v_lshl_add_u32 v10, v10, 3, v15
v_mul_u32_u24 v10, 208, v10
v_and_b32 v11, 1, v1
v_mul_u32_u24 v11, 96, v11
v_add_u32 v10, v10, v11
v_bfe_u32 v11, v1, 1, 1
v_lshl_add_u32 v10, v11, 3, v10
v_add_u32 v{vKB}, {L_IMG}, v10
s_lshl_b32 s{sA}, s{sW}, 4
v_add_u32 v{vKA}, s{sA}, v{vKB}
v_add_u32 v{vFPD}, s{sWM}, v2
s_lshl_b32 s{sD}, s{sW}, 7
s_add_u32 s{sD}, s{sD}, 4096
v_lshlrev_b32 v0, 1, v1
v_add_u32 v{vFPC}, s{sD}, v0
v_lshrrev_b32 v12, 3, v1
v_mul_u32_u24 v14, 896, v12
v_and_b32 v13, 7, v1
v_xor_b32 v12, v12, v13
v_lshl_add_u32 v{vXRD0}, v12, 4, v14
v_add_u32 v{vXRD1}, {7168-1024}, v{vXRD0}
v_bfe_u32 v12, v1, 4, 1
v_lshlrev_b32 v11, 2, v12
v_xor_b32 v11, v11, v13
v_lshl_add_u32 v{vWO0}, v11, 4, v14
v_add_u32 v{vWO1}, {7168-1024}, v{vWO0}
s_and_b32 s{sA}, s{sW}, 1
s_lshl_b32 s{sA}, s{sA}, 12
s_add_u32 s{sA}, s{sA}, {L_XCH}
v_lshlrev_b32 v10, 7, v9
v_lshl_add_u32 v10, v3, 3, v10
v_add_u32 v10, s{sA}, v10
s_lshr_b32 s{sA}, s{sW}, 1
s_lshl_b32 s{sB}, s{sA}, 2
v_xor_b32 v13, s{sB}, v13
v_lshl_add_u32 v{vXRR}, v13, 4, v10
v_mad_u32_u24 v10, v3, 14, v15
v_lshlrev_b32 v10, 7, v10
v_bfe_u32 v13, v1, 3, 1
v_xor_b32 v13, v13, v3
v_xor_b32 v13, s{sA}, v13
v_lshl_add_u32 v10, v13, 6, v10
v_lshl_add_u32 v10, v12, 5, v10
v_lshl_add_u32 v10, v8, 3, v10
s_mul_i32 s{sA}, s{sA}, {8*28*128}
s_add_u32 s{sA}, s{sA}, {L_WO}
v_add_u32 v{vWOR}, s{sA}, v10
v_lshl_add_u32 v11, v3, 3, v15
v_lshlrev_b32 v11, 6, v11
v_lshl_add_u32 v12, v12, 2, v8
v_cmp_lt_u32 vcc, 5, v12
v_xor_b32 v13, 1, v12
v_cndmask_b32 v12, v12, v13, vcc
v_lshl_add_u32 v11, v12, 3, v11
v_add_u32 v13, {L_WK}, v11""")
I(f"""v_bfe_u32 v10, v1, 2, 1
v_bfe_u32 v14, v1, 4, 1
v_lshl_add_u32 v10, v14, 1, v10
v_cmp_eq_u32 vcc, v10, v3
v_and_b32 v10, 1, v1
v_lshlrev_b32 v10, 4, v10
v_mov_b32 v14, 0x3f80
v_lshlrev_b32 v10, v10, v14
v_cndmask_b32 v10, 0, v10, vcc
v_bfe_u32 v14, v1, 3, 1
v_bfe_u32 v15, v1, 1, 1
v_lshl_add_u32 v14, v14, 1, v15""")
for q in range(4): I(f"v_cmp_eq_u32 vcc, {q}, v14\nv_cndmask_b32 v15, 0, v10, vcc\nv_accvgpr_write_b32 a{220+q}, v15")
I("v_add_u32 v9, 896, v7")
deferred += P.items[_m0:]; del P.items[_m0:]
NDEF0 = opt("ndef0", 70)
P.add(deferred[:NDEF0]); deferred = deferred[NDEF0:]
L2N = 0
if L2N:
    I(f"""s_mov_b32 s{sCt}, 0x60504020
s_cmp_ge_u32 s{sH}, 8
s_cselect_b32 s{sCt}, 0x53020100, s{sCt}
s_and_b32 s{sD}, s{sH}, 7
s_lshl_b32 s{sD}, s{sD}, 2
s_lshr_b32 s{sCt}, s{sCt}, s{sD}
s_and_b32 s{sCt}, s{sCt}, 15
s_and_b32 s{sD}, s{sT}, 3
s_mul_i32 s{sD}, s{sD}, 7
s_add_u32 s{sCt}, s{sCt}, s{sD}
s_lshl_b32 s{sCt}, s{sCt}, 2
s_add_u32 s{sCt}, s{sCt}, s{sW}
s_mul_i32 s66, s{sCt}, 14336
s_add_u32 s81, s66, 57344
s_lshl_b32 s{sD}, s{sH}, 1
s_lshr_b32 s{sD}, 0xa111444a, s{sD}
s_and_b32 s{sD}, s{sD}, 3
s_cmp_ge_u32 s{sD}, 1
s_cselect_b32 s66, s66, 0x10000000
s_cmp_ge_u32 s{sD}, 2
s_cselect_b32 s81, s81, 0x10000000
v_add_u32 v143, 7168, v6""")
def l2n(k): return mk(f"s_mov_b32 exec_hi, 0xffffff\nbuffer_load_dword v{142}, v{6 if k % 2 == 0 else 143}, {W1}, s{66 if k < 2 else 81} offen\ns_mov_b32 exec_hi, -1")
stamp("setup done", "p")
def wphi(dst, tmp, so):
    q = []
    for t in range(2):
        for j in range(8):
            d = 16 * t + 8 * (j >> 2) + (j & 3)
            av = vWPB if (t == 1 and j >= 4) else vWPA
            r = (dst if j % 2 == 0 else tmp) + 4 * t + j // 2
            op = "buffer_load_short_d16" if j % 2 == 0 else "buffer_load_short_d16_hi"
            q += mk(f"{op} v{r}, v{av}, {WPHI}, s{so} offen offset:{d*56}")
    return q
def wkdma(g): return flat(dmag([7], WQKV, sWB, f"s{sKW+g}", sWM, L_WK + 4096*g, f"wk{g}"))
def wvdma(g): return flat(dmag([9], WQKV, sWB, f"s{sKW+g}", sWM, L_WV + 4096*g, f"wv{g}"))
def wqdma(g): return flat(dmag([7], WQKV, sWQ, f"s{sKW+g}", sWM, L_WQ + 4096*g, f"wq{g}"))
if opt("fake", 0):
    I(f"""v_mov_b32 v7, v2
v_add_u32 v9, 24576, v2
s_mul_i32 s{sWB}, s{sH}, 73728
s_add_u32 s{sWB}, s{sWB}, s{sWM}
s_mul_i32 s{sWQ}, s{sHQ}, 73728
s_add_u32 s{sWQ}, s{sWQ}, s{sWM}
s_add_u32 s{sWQ}, s{sWQ}, 45056""")
    for g in range(7): I(f"s_lshl_b32 s{sKW+g}, s{sKX+g}, 5")
XF = 16
NX0 = opt("nx0", 3)
if opt("wt1", 0): P.add(wtouch(opt("wt1", 0), 249))
for g in range(NXE, NX0): P.add(xdma(g))
pend = [xdma(g) for g in range(NX0, 7)]
wkl = [wkdma(g) for g in range(7)]
if TM and TM < NX0: P.add(sm_ld)
elif TM: pend[TM - NX0] = pend[TM - NX0] + sm_ld
if opt("wt2", 0): pend[-1] = pend[-1] + wtouch(opt("wt2", 0), 248)
pend.append(wkl.pop(0) + wphi(WPK, WPT, 66))
pend.append(wkl.pop(0) + wphi(WPQ, WPT+8, 81))
while len(pend) < 7: pend.append(wkl.pop(0))
def xrd(g): return flat([mk(f"ds_read_b128 {v(XF+16*g+4*e,4)}, v{240+e} offset:{4096*g}") for e in range(4)])
P.wait("x0"); P.add(xrd(0))
for g in range(7):
    if pend: P.add(pend.pop(0))
    if g + 1 < 7: P.wait(f"x{g+1}"); P.add(xrd(g + 1))
    for i in range(16):
        r = XF + 16*g + i
        I(f"v_dot2c_f32_bf16 v250, s{sONES}, v{r}\nv_dot2c_f32_bf16 v251, v{r}, v{r}")
    nd_ = -(-len(deferred) // max(1, opt("ndi", 6) - g)) if g < opt("ndi", 6) else len(deferred)
    P.add(deferred[:nd_]); deferred = deferred[nd_:]
    if g == 0: stamp("x0 done", "p")
for x_ in pend: P.add(x_)
if opt("tp", 0) == 2:
    I(f"""s_mul_i32 s{sCt}, s2, {52*128}
s_mul_i32 s{sD}, s{sW}, {13*128}
s_add_u32 s{sCt}, s{sCt}, s{sD}
s_mov_b64 exec, 0x1fff
buffer_load_dword v254, v6, {W2}, s{sCt} offen
buffer_load_dword v255, v6, {W1}, s{sCt} offen
s_mov_b64 exec, -1""")
stamp("x stats done", "mp")
I(f"""v_permlane32_swap_b32 v250, v251
v_readfirstlane_b32 s{sA}, v5
s_nop 0
v_add_f32 v250, v250, v251
v_mul_f32 v250, {fhex(-1/448)}, v250
v_mov_b32 v251, v250
s_or_b32 s{sA}, s{sA}, 1
s_mul_i32 s{sA}, s{sA}, 0x9E3779B5
v_mov_b32 v5, s{sA}
s_mov_b32 s{sA}, 0x3f80
v_permlane32_swap_b32 v250, v251
s_mov_b32 s{sB}, 0x3f800000""")
fin = mk(f"""v_fma_f32 v251, -v250, v250, -v251
v_max_f32 v251, 0, v251
v_add_f32 v251, 0x3727c5ac, v251
v_rsq_f32 v251, v251
s_lshl_b32 s{sQ}, s{sC}, 7
s_mul_i32 s{sD}, s{sW}, {16*896}
v_mul_f32 v252, 0x3fb8aa3b, v251
v_mul_f32 v253, 0xbfb8aa3b, v251
s_add_u32 s{sQ}, s{sQ}, s{sD}
s_lshl_b32 s{sXO}, s{sW}, 11""")
if opt("noid", 1): fin = [mk(f"s_cmp_ge_u32 s{sRact}, 14\ns_cselect_b32 s22, 0, s22")] + fin
ACK = 144; ACV = 160; PK = 176; IMG = 208; TMP = 232
def norm(t):
    q = Prog(); tb = TMP + 8 * (t & 1)
    for i in range(4):
        r = XF + 4 * t + i
        q.I(f"v_dot2_f32_bf16 v{tb+2*i}, v{r}, s{sA}, v250\nv_dot2_f32_bf16 v{tb+2*i+1}, v{r}, s{sB}, v250")
    return q.items
def normc(t):
    tb = TMP + 8 * (t & 1)
    return flat([mk(f"v_cvt_pk_bf16_f32 v{XF+4*t+i}, v{tb+2*i}, v{tb+2*i+1}") for i in range(4)])
def l2t(srd, k, dst):
    return mk(f"""s_lshr_b32 s{sCt}, s2, 3
s_lshl_b32 s{sCt}, s{sCt}, 2
s_add_u32 s{sCt}, s{sCt}, s{sW}
s_mul_i32 s{sCt}, s{sCt}, {98*128}
s_mov_b32 exec_hi, 0x1ffff
s_add_u32 s{sCt}, s{sCt}, {k*49*128}
buffer_load_dword v{dst}, v6, {srd}, s{sCt} offen
s_mov_b32 exec_hi, -1""")
L2A, L2B = opt("l2a", -1), opt("l2b", -1)
touch = mk(f"""s_mul_i32 s{sCt}, s2, {52*128}
s_mul_i32 s56, s{sW}, {13*128}
s_add_u32 s{sCt}, s{sCt}, s56
s_mov_b64 exec, 0x1fff
buffer_load_dword v255, v6, {W1}, s{sCt} offen
buffer_load_dword v254, v6, {W2}, s{sCt} offen
s_mov_b64 exec, -1""")
TP = opt('tp', 0)
ns = norm(0)
for t in range(1, 28): ns += norm(t) + normc(t - 1)
ns += normc(27)
NBAR = opt("nbar", 100)
wvl = [wvdma(k) for k in range(7)]
if opt("loop2", 0):
    I("s_mov_b32 s80, 0\nL_lp2:\ns_mov_b32 s101, s100\ns_memtime s[78:79]\ns_waitcnt lgkmcnt(0)\ns_mov_b32 s99, s78")
    P.add([Ins(x.text) for x in ns])
    I("s_memtime s[78:79]\ns_waitcnt lgkmcnt(0)\ns_sub_u32 s100, s78, s99\ns_add_u32 s100, s100, s88\ns_add_u32 s80, s80, 1\ns_cmp_lt_u32 s80, 2\ns_cbranch_scc1 L_lp2")
    nstamp[0] = 14
P.add(sprinkle(ns[:NBAR], wkl, 0, opt("wkstep", 30)))
if opt("touch", 1) and TP == 1: P.add(touch)
I("s_barrier")
NWV0 = opt("nwv0", 4)
w0_ = [wvl.pop(0) for _ in range(NWV0)]
if L2N == 1: w0_[0] = l2n(0) + w0_[0]; w0_[-1] = w0_[-1] + l2n(2); wvl[-1] = wvl[-1] + l2n(1)
if L2N == 2: wvl[-1] = wvl[-1] + l2n(0) + l2n(2)
P.add(sprinkle(ns[NBAR:], w0_, opt("wv0", 30), opt("wvstep", 50)))
P.wait(*[f"wk{k}" for k in range(7)]); I("s_barrier")
stamp("wk landed", "p")
if opt("zy", 0): I(f"s_sleep {opt('zy', 0)}")
AH = 6
sW1B, sW1M, sW2E, sW2L = 40, 41, 42, 43
set2 = mk(f"""v_lshrrev_b32 v10, 4, v1
v_mul_u32_u24 v12, 3584, v10
v_lshlrev_b32 v10, 2, v10
v_and_b32 v13, 15, v1
v_xor_b32 v10, v10, v13
v_lshl_add_u32 v12, v10, 4, v12
v_add_u32 v13, {4*3584-1024}, v12
v_add_u32 v14, {2*(4*3584-1024)}, v12
v_add_u32 v15, {3*(4*3584-1024)}, v12
s_lshl_b32 s{sW1B}, s{sR}, 8
s_mul_i32 s{sD}, s{sW}, {16*3584}
s_add_u32 s{sW1B}, s{sW1B}, s{sD}
s_lshl_b32 s{sW1M}, s{sW}, 12
s_lshr_b32 s{sA}, s{sW}, 1
s_lshl_b32 s{sA}, s{sA}, 2
s_andn2_b32 s{sB}, 1, s{sW}
s_add_u32 s{sA}, s{sA}, s{sB}
s_lshl_b32 s{sB}, s{sU}, 1
s_add_u32 s44, s{sA}, s{sB}
s_xor_b32 s45, s44, 2
s_lshl_b32 s{sD}, s{sC}, 7
s_mul_i32 s{sW2E}, s44, {32*896}
s_add_u32 s{sW2E}, s{sW2E}, s{sD}
s_mul_i32 s{sW2L}, s45, {32*896}
s_add_u32 s{sW2L}, s{sW2L}, s{sD}
""")
vW2 = [vWO0, vWO1, 128, 129]
sSCR, sBIG = 46, 47
NA = opt("na", 0)
NUR = opt("nur", 2); NT1 = min(NA, opt("nt1", 99))
_u = list(range(14))
def take(n): return [_u.pop(0) for _ in range(min(n, len(_u)))]
UAW = take(NA); UR = take(NUR); UD = take(2); UE = take(3); UL = take(opt("nrl", 3)); UP = take(99)
RAWS = UAW + UR + UL
def UA(j): return 16*j
def w2slot(j):
    if j in UE: return (sSCR, 4096*UE.index(j), 254)
    if j in UAW + UR + UD: return (sSCR, 4096*(j & 1), 254)
    return (sBIG, 4096*(UL + UP).index(j), 252)
def w2dma(j):
    mb, mo, _ = w2slot(j)
    return dmag(vW2, W2, sW2E if j < 7 else sW2L, (j%7)*256*896, mb, mo, f"w2_{j}", sDM)
def w2raw(j):
    ch = [mk(f"buffer_load_dwordx4 {a_(UA(j)+4*q,4)}, v{vW2[q]}, {W2}, s81 offen offset:{1024*q}") for q in range(4)]
    ch[0] = mk(f"s_add_u32 s81, s{sW2E if j < 7 else sW2L}, {(j%7)*256*896}") + ch[0]
    return ch
def w2rd(j):
    _, mo, av = w2slot(j)
    if j in RAWS: out = [mk(f"ds_write_b128 v{131 if j in UL else 134}, {a_(UA(j)+4*q,4)} offset:{mo+1024*q}") for q in range(4)]
    else: out = [[WaitTag([f"w2_{j}"])]]
    for e in range(2):
        for mu in range(2):
            for u in range(2): out.append(mk(f"ds_read_b64_tr_b16 {a_(UA(j)+8*e+4*mu+2*u,2)}, v{av+mu} offset:{mo+2048*e+1024*u}"))
    return out
raw = flat([w2raw(j) for j in UR])
rawA = flat([w2raw(j) for j in UAW])
if opt("noid", 1): set2 = [mk(f"s_cmp_ge_u32 s{sRact}, 14\ns_cselect_b32 s26, 0, s26")] + set2
set2 += mk(f"v_add_u32 v128, {2*(7168-1024)}, v{vWO0}\nv_add_u32 v129, {3*(7168-1024)}, v{vWO0}")
set2b = [x for x in set2 if isinstance(x, Ins) and x.cls == 'valu' and x.defs[0][1] < 128]
if opt("trim", 1):
    set2 = [mk(f"""s_cmp_eq_u32 s{sW}, 3
s_cselect_b64 vcc, {sHI}, 0
v_mov_b32 v143, 0x10000000
v_add_u32 v133, s{sWM}, v2
v_cndmask_b32 v142, v5, 0, vcc
v_cndmask_b32 v{vFPD}, v{vFPD}, v143, vcc
v_cndmask_b32 v{vFPC}, v{vFPC}, v143, vcc""")] + set2
set2b = [x for x in set2 if isinstance(x, list)] + set2b
set2a = [x for x in set2 if x not in set2b]
pro, gk = gemm_lds([(13, 1024*t, 1024*t + 256, (XF + 4*t, ACK, t == 0, False)) for t in range(28)], AH)
P.add(pro)
S = Sched(gk)
S.spread(wvl, 0, opt("wve", 20))
EARLY = opt("early", 0)
if EARLY:
    P.add(flat([x if isinstance(x, list) else [x] for x in fin + set2a])); fin = []
    wo_l = flat([dmag([vWO0, vWO1], WO, sQ, i*64*896, sXO, L_WO + 8192*i, "wo", sDM) for i in range(7)] + [dmag([vXRD0, vXRD1], X, sXRB, 0, sXO, L_XCH, "wo", sDM)])
    if EARLY == 2:
        S.spread([wo_l[2*i] + wo_l[2*i+1] for i in range(8)], 0, 28)
    else: S.spread([rawA.pop(0) for _ in range(min(len(rawA), opt("ne1", 8)))], 0, 28)
else: fin = fin + set2a
if TP == 3: S.at(opt("tpos", 22), touch)
for k, ps in enumerate((L2A, L2B)):
    if 0 <= ps < 28: S.at(ps, l2t(W1, k, 248 + k))
S.spread(fin + flat([mk(f"v_or_b32 v{WPK+q}, v{WPK+q}, v{WPT+q}\nv_or_b32 v{WPQ+q}, v{WPQ+q}, v{WPT+8+q}") for q in range(8)]), 2, 26)
P.add(S.emit())
def phi_pre(acc, wp):
    q = Prog()
    for i in range(8): q.I(f"v_cvt_pk_bf16_f32 v{acc+i}, v{acc+2*i}, v{acc+2*i+1}")
    q.I(f"{MF} {v(PK,16)}, {v(wp,4)}, {v(acc,4)}, 0\n{MF} {v(PK,16)}, {v(wp+4,4)}, {v(acc+4,4)}, {v(PK,16)}")
    return q.items
stamp("k gemm done", "mp")
wql = [wqdma(k) for k in range(7)]
P.add(wql.pop(0))
P.add(phi_pre(ACK, WPK))
imw = flat([mk(f"ds_write_b128 v{vIMW}, {v(IMG+4*i,4)} offset:{L_IMG+16*i}") for i in range(3)]) + mk(f"ds_write_b64 v{vIMW}, {v(IMG+12,2)} offset:{L_IMG+48}")
smk = sprinkle(softmax(PK, TMP, IMG, True), [wql.pop(0) for _ in range(opt("nwq0", 3))], 10, opt("wqs", 40))
if EARLY: smk = sprinkle(smk, [rawA.pop(0) for _ in range(min(len(rawA), opt("ne2", 8)))], 5, 16)
WEAVE = opt("weave", 1)
pro, gv = gemm_lds([(11, L_WV + 1024*t, L_WV + 1024*t + 256, (XF + 4*t, ACV, t == 0, False)) for t in range(28)], AH)
S = Sched(gv)
if not WEAVE:
    P.add(smk)
    P.wait(*[f"wv{k}" for k in range(7)]); I("s_barrier")
    stamp("softmax k done", "p")
    P.add(pro)
    S.spread(imw, 2, 10)
else:
    smf = softmax(PK, TMP, IMG, 2)
    n0 = next(i for i, x in enumerate(smf) if x.op == "v_exp_f32")
    P.wait(*[f"wv{k}" for k in range(4)]); I("s_barrier")
    P.add(pro)
    P.add(smf[:n0])
    stamp("softmax k done", "p")
    S.spread(smf[n0:] + imw, 0, 28)
    S.at(15 - AH, [WaitTag(["wv4", "wv5", "wv6"])] + mk("s_barrier"), 1.0)
    wql = [wqdma(k) for k in range(1, 7)]
wo_l = flat([dmag([vWO0, vWO1], WO, sQ, i*64*896, sXO, L_WO + 8192*i, "wo", sDM) for i in range(7)] + [dmag([vXRD0, vXRD1], X, sXRB, 0, sXO, L_XCH, "wo", sDM)])
if EARLY == 2: wo_l = []
S.spread(wql, 0, opt('wqe', 14))
if EARLY: S.spread([rawA.pop(0) for _ in range(min(len(rawA), opt("ne3", 8)))], 0, 22)
if L2A >= 0 or L2N: touch = [x for x in touch if W1 not in x.text]
if L2N == 1: S.at(opt("l2p", 14), l2n(3))
if L2N == 2: S.at(opt("l2p", 14), l2n(1) + l2n(3))
tlb = []
if opt("tlb", 0) & 1: tlb += mk(f"s_mov_b64 exec, 1\nbuffer_load_dword v248, v6, {OUT}, s{sOUT} offen\ns_mov_b64 exec, -1")
if opt("tlb", 0) & 2: tlb += mk(f"v_lshlrev_b32 v249, 20, v1\ns_mov_b64 exec, 0xffff\nbuffer_load_dword v249, v249, {WS}, 0 offen offset:4092\ns_mov_b64 exec, -1")
if tlb: S.at(opt("tlbp", 13), tlb)
if opt("touch", 1) and TP == 0: S.at(opt("tpos", 15), touch)
for k, ps in enumerate((L2A, L2B)):
    if 200 <= ps < 228: S.at(ps - 200, l2t(W1, k, 248 + k))
S.spread([wo_l.pop(0) for _ in range(2*opt("nwo0", 0))], opt("wos", 17), opt("woe2", 28))
P.add(S.emit())
for k in range(0, 16, 2): I(f"v_pk_mul_f32 {v(ACV+k,2)}, {v(ACV+k,2)}, v[250:251] op_sel:[0,1] op_sel_hi:[1,1]")
I(f"v_cndmask_b32 v{ACV+12}, v{ACV+12}, 1.0, {sHI}")
for i in range(8): I(f"v_cvt_pk_bf16_f32 v{IMG+16+i}, v{ACV+2*i}, v{ACV+2*i+1}")
for i in range(4, 6): I(f"ds_write_b128 v{vIMW}, {v(IMG+4*i,4)} offset:{L_IMG+16*i}")
P.wait("wq0", "wq1", "wq2", "wq3")
I("s_waitcnt lgkmcnt(0)\ns_barrier")
stamp("img written", "p")
KA = 144; KBv = 208; KD = 176
for k in range(4):
    for u in range(2):
        I(f"ds_read_b64_tr_b16 {v(KA+4*k+2*u,2)}, v{vKA} offset:{(32*k+4*u)*208}")
    for nu in range(2):
        for u in range(2):
            I(f"ds_read_b64_tr_b16 {v(KBv+8*k+4*nu+2*u,2)}, v{vKB} offset:{(32*k+4*u)*208+64+16*nu}")
proq, gq = gemm_lds([(11, L_WQ + 1024*t, L_WQ + 1024*t + 256, (XF + 4*t, ACV, t == 0, False)) for t in range(28)], AH)
for k in range(4):
    for nu in range(2):
        I(f"v_mfma_f32_16x16x32_bf16 {v(KD+4*nu,4)}, {v(KA+4*k,4)}, {v(KBv+8*k+4*nu,4)}, {'0' if k == 0 else v(KD+4*nu,4)}")
P.add(proq[:8])
for i in range(4): I(f"v_cvt_pk_bf16_f32 v{KD+8+i}, v{KD+2*i}, v{KD+2*i+1}")
I(f"buffer_store_dwordx4 {v(KD+8,4)}, v2, {WS}, s{sPST} offen sc1")
I(f"v_xor_b32 v10, v{KD+8}, v5")
I(f"buffer_store_short v10, v0, {WS}, s{sPCK} offen sc1")
if GATE & 1: P.add(flag_store(16))
P.add(proq[8:])
stamp("partial stored", "mp")
S = Sched(gq)
bgA = wo_l + rawA
nq = min(len(bgA), opt("nq", 16))
S.spread(bgA[:nq], 0, 28)
S.spread(set2b, 2, 18)
G0 = gate("g0", vPO, vPF)
if GATE & 1: S.at(opt("g0", 14), G0.load(0))
S.at(15 - AH, [WaitTag(["wq4", "wq5", "wq6"])] + mk("s_barrier"), 1.0)
P.add(S.emit())
stamp("q gemm done", "p")
G = 16; GC = 80; SA = 96
FP = Fetch("fp", [([f"s_add_u32 s{sCt}, s{sP}, {4608*T}\nbuffer_load_dwordx4 {v(G+4*T,4)}, v{vFPD}, {WS}, s{sCt} offen sc1\nbuffer_load_ushort v{GC+T}, v{vFPC}, {WS}, s{sCt} offen sc1"],
                   [G+4*T, GC+T]) for T in range(16)])
P.add(phi_pre(ACV, WPQ))
if GATE & 1: P.add(G0.check(0, 0))
I("s_barrier")
PQ = 208
smq = softmax(PK, TMP, PQ, True); f0 = opt("fp0", 80)
P.add(sprinkle(smq[:f0], bgA[nq:], 0, opt("as", 8)))
P.add(sprinkle(smq[f0:], [FP.load(T) for T in range(16)], 0, opt("fpstep", 3)))
stamp("softmax q done", "p")
w1_l = flat([dmag([12, 13, 14, 15], W1, sW1B, i*64*3584, sW1M, 16384*i, "w1", sDM) for i in range(7)])
def fpb(b):
    t = []
    for k, T in enumerate(range(4*b, 4*b+4)):
        t.append(f"v_bitop3_b32 v{10 if k == 0 else 9}, v{G+4*T}, v{GC+T}, v{142 if opt('trim', 1) else 5} {X3}" + ("" if k == 0 else "\nv_or_b32 v10, v10, v9"))
    return "\n".join(t) + "\nv_cmp_ne_u16 vcc, 0, v10"
RI = TAIL.I if (opt("ool", 7) & 1) else I
if not (opt("ool", 7) & 1): I("s_branch L_fp_go")
RI("L_fp_retry:" + ("\ns_add_u32 s80, s80, 1" if DIAG else ""), unc=True)
for b in range(4):
    RI(fpb(b) + f"\ns_cbranch_vccz L_fp_k{b}\n" + "\n".join(FP.pieces[T][0][0] for T in range(4*b, 4*b+4)) + f"\nL_fp_k{b}:", unc=True)
RI(GUARD, unc=True)
if (opt("ool", 7) & 1): RI("s_branch L_fp_go", unc=True)
I("L_fp_go:")
I(fpb(0) + "\ns_cbranch_vccnz L_fp_retry")
S = Sched([mk(f"{MF} {v(SA,16)}, a[220:223], {v(G+4*T,4)}, {'0' if T == 0 else v(SA,16)}") for T in range(16)])
for b in range(1, 4): S.spread(mk(fpb(b) + "\ns_cbranch_vccnz L_fp_retry"), 4*b - 3, 4*b)
S.spread([w1_l.pop(0) for _ in range(opt("nw1a", 2))], 12, 16)
P.add(S.emit())
I(f"v_add_u32 v9, {L_KVX}, v{133 if opt('trim', 1) else vFPD}")
for i in range(4): I(f"v_cvt_pk_bf16_f32 v{SA+8+i}, v{SA+2*i}, v{SA+2*i+1}")
I(f"ds_write_b128 v9, {v(SA+8,4)}\ns_waitcnt lgkmcnt(0)\ns_barrier")
stamp("kv summed", "mp")
KVA = 32; OD = 48
for q in range(7): I(f"ds_read_b64 {v(KVA+2*q,2)}, v{vKVX} offset:{512*q}")
P.add(w1_l.pop(0))
for s in range(3):
    I(f"{MF} {v(OD,16)}, {v(KVA+4*s,4)}, {v(PQ+4*s,4)}, {'0' if s == 0 else v(OD,16)}")
    if s == 1: P.add(w1_l.pop(0))
I(f"v_mfma_f32_32x32x8_bf16 {v(OD,16)}, {v(KVA+12,2)}, {v(PQ+12,2)}, {v(OD,16)}")
I(f"""s_lshl_b32 s{sP}, s{sTILE}, 15
s_lshr_b32 s{sB}, s{sW}, 1
s_lshl_b32 s{sB}, s{sB}, 14
s_add_u32 s{sP}, s{sP}, s{sB}
s_add_u32 s{sP}, s{sP}, {WS_O}
s_add_u32 s{sA}, s{sW1M}, {L_XCH}
v_add_u32 v132, s{sA}, v2
v_xor_b32 v133, 8192, v132
v_xor_b32 v9, 64, v{vWOR}
v_and_b32 v7, 31, v1
v_mul_u32_u24 v7, 896, v7
v_add_f32 v{OD+14}, 0x358637bd, v{OD+14}
v_rcp_f32 v{OD+14}, v{OD+14}
v_lshl_add_u32 v7, v3, 4, v7""")
for k in range(0, 14, 2): I(f"v_pk_mul_f32 {v(OD+k,2)}, {v(OD+k,2)}, {v(OD+14,2)} op_sel_hi:[1,0]")
for k in range(4): I(f"v_cvt_pk_bf16_f32 v{64+k}, v{OD+2*k}, v{OD+2*k+1}")
I(f"buffer_store_dwordx4 v[64:67], v2, {WS}, s{sOST} offen sc1")
for k in range(4, 7): I(f"v_cvt_pk_bf16_f32 v{64+k}, v{OD+2*k}, v{OD+2*k+1}")
I(f"""v_bitop3_b32 v71, v64, v5, s{sMASK} bitop3:0x28
v_and_b32 v6, s{sMASK}, v5
buffer_store_dwordx4 v[68:71], v2, {WS}, s{sOST} offen offset:1024 sc1""")
if GATE & 2: P.add(flag_store(7))
stamp("o stored", "mo")
P.wait("wo")
I(f"s_cmp_ge_u32 s{sRact}, 14\ns_cbranch_scc1 L_idle\ns_barrier")
wor = []
for s in range(16):
    hh, e = s >> 1, s & 1
    for k, av in ((0, vWOR), (1, 9)):
        for u in range(2):
            wor += mk(f"ds_read_b64_tr_b16 {a_(128+8*s+4*k+2*u,2)}, v{av} offset:{(28*hh+8*e+4*u)*128}")
XR = 224
xrr = []
for i in range(4): xrr += mk((f"v_xor_b32 v10, {16*i}, v{vXRR}\n" if i else "") + f"ds_read_b64 {v(XR+2*i,2)}, v{10 if i else vXRR}")
P.add(xrr)
G1 = gate("g1", vPO, vPF)
nb_ = min(opt("nw1b", 16), len(w1_l) - 8)
wor = sprinkle(wor, [w1_l.pop(0) for _ in range(nb_)], 0, opt("w1bs", 4))
if GATE & 2: wor = sprinkle(wor, [G1.load(0)], opt("g1", 40), 1)
P.add(wor)
OB = 16
FO = Fetch("fo", [([f"s_add_u32 s{sCt}, s{sP}, {2048*hh}\nbuffer_load_dwordx4 {v(OB+8*hh,4)}, v2, {WS}, s{sCt} offen sc1\nbuffer_load_dwordx4 {v(OB+8*hh+4,4)}, v2, {WS}, s{sCt} offen offset:1024 sc1"],
                   [OB+8*hh, OB+8*hh+7]) for hh in range(8)], masked=True, nre=opt('reo', 2))
stamp("pre o fetch", "o")
AO, AT = 80, 96
set3 = mk(f"""s_mul_i32 s{sSCR}, s{sW}, 12288
s_mul_i32 s{sBIG}, s{sW}, 28672
v_add_u32 v131, s{sBIG}, v2
s_lshl_b32 s{sB}, s{sC}, 1
s_lshr_b32 s{sD}, s{sW}, 1
s_add_u32 s{sB}, s{sB}, s{sD}
s_mul_i32 s{sA}, s{sTILE}, 14
s_add_u32 s{sB}, s{sB}, s{sA}
s_mul_i32 s{sPST}, s{sB}, 2432
s_add_u32 s{sPST}, s{sPST}, {WS_H}
s_lshr_b32 s48, s{sW}, 1
s_nop 0
v_bfe_u32 v9, v1, 2, 2
v_lshl_add_u32 v240, v3, 2, v9
v_lshlrev_b32 v254, 7, v240
v_lshlrev_b32 v240, 8, v240
v_xor_b32 v9, s{sW}, v9
v_lshl_add_u32 v240, v9, 6, v240
v_bfe_u32 v9, v1, 4, 1
v_lshlrev_b32 v9, 5, v9
v_lshl_add_u32 v9, v8, 3, v9
v_add_u32 v240, v240, v9
v_add_u32 v254, v254, v9
v_bfe_u32 v9, v1, 3, 1
v_xor_b32 v9, s48, v9
v_lshl_add_u32 v254, v9, 6, v254
s_add_u32 s{sSCR}, s{sSCR}, {L_SCR}
v_add_u32 v252, s{sBIG}, v254
v_xor_b32 v253, 64, v252
v_add_u32 v254, s{sSCR}, v254
v_add_u32 v134, s{sSCR}, v2
v_xor_b32 v255, 64, v254
v_xor_b32 v241, 64, v240
v_xor_b32 v242, 128, v240
v_xor_b32 v243, 192, v240""") + flat([mk(f"v_add_u32 v{244+m}, 57344, v{240+m}") for m in range(4)])
pre2 = []
for i in range(8): pre2 += mk(f"v_lshlrev_b32 v{112+2*i}, 16, v{XR+i}\nv_and_b32 v{113+2*i}, s{sHIM}, v{XR+i}")
for s in range(1, 16, 2): pre2 += mk(f"v_accvgpr_write_b32 a{128+8*s+3}, 0\nv_accvgpr_write_b32 a{128+8*s+7}, 0")
if GATE & 2:
    P.add(pre2); P.add(G1.check(0, 0))
    stamp("gate1", "o")
    for hh in range(8): P.add(FO.load(hh))
else:
    P.add(pre2[16:]); P.add(set3)
    I("s_waitcnt lgkmcnt(0)\ns_barrier")
    P.add(sprinkle(flat(flat([w2rd(j) for j in UAW[:NT1]])), [w1_l.pop(0) for _ in range(min(len(w1_l), opt("nw1s", 4)))], 0, 8))
    stamp("shadow done", "o")
    P.add(sprinkle(pre2[:16], [FO.load(hh) for hh in range(8)], 0, 2))
I("s_waitcnt lgkmcnt(0)\ns_barrier")
stamp("fo issued", "o")
g2 = []
for s in range(16):
    for k, acc in ((1, AT), (0, AO)):
        c = ("0" if k else v(112,16)) if s == 0 else v(acc,16)
        g2.append(mk(f"{MF} {v(acc,16)}, {a_(128+8*s+4*k,4)}, {v(OB+4*s,4)}, {c}"))

P.add(FO.check(0, 7))
stamp("fo0", "o")
S = Sched(g2)
for hh in range(1, 8): S.spread(FO.checkc(hh, 7), 4*hh - 3, 4*hh)
S.spread(w1_l + [raw.pop(0) for _ in range(min(len(raw), opt("rawb", 8)))], 0, 32)
P.add(S.emit())
stamp("p2 gemm done", "o")
for i in range(4): I(f"ds_write_b128 v132, {v(AT+4*i,4)} offset:{1024*i}")
I("v_mov_b32 v112, 0\nv_mov_b32 v113, 0\ns_waitcnt lgkmcnt(0)\ns_barrier")
for i in range(4): I(f"ds_read_b128 {v(AT+4*i,4)}, v133 offset:{1024*i}")
HR = XR
for k in range(0, 8, 2): I(f"v_pk_add_f32 {v(AO+k,2)}, {v(AO+k,2)}, {v(AT+k,2)}")
for i in range(4): I(f"v_cvt_pk_bf16_f32 v{HR+i}, v{AO+2*i}, v{AO+2*i+1}")
I(f"buffer_store_dwordx4 {v(HR,4)}, v2, {WS}, s{sPST} offen sc1")
for k in range(8, 16, 2): I(f"v_pk_add_f32 {v(AO+k,2)}, {v(AO+k,2)}, {v(AT+k,2)}")
for i in range(4, 8): I(f"v_cvt_pk_bf16_f32 v{HR+i}, v{AO+2*i}, v{AO+2*i+1}")
I(f"buffer_store_dwordx4 {v(HR+4,4)}, v2, {WS}, s{sPST} offen offset:1024 sc1")
for i in range(8): I(f"v_dot2c_f32_bf16 v112, s{sONES}, v{HR+i}\nv_dot2c_f32_bf16 v113, v{HR+i}, v{HR+i}")
I(f"""v_bitop3_b32 v10, v{HR}, v{HR+4}, v5 {X3}
v_permlane32_swap_b32 v112, v113
v_add_f32 v112, v112, v113
buffer_store_dword v112, v4, {WS}, s{sPST} offen offset:2048 sc1
v_xor_b32 v113, v10, v112
buffer_store_short v113, v0, {WS}, s{sPST} offen offset:2304 sc1""")
def selft(sreg, nl): return mk(f"s_mov_b64 exec, {(1 << nl) - 1}\nbuffer_load_dword v135, v134, {WS}, s{sreg} offen sc1\ns_mov_b64 exec, -1")
SELF = opt("self", 0)
if SELF & 1: P.add(selft(sPST, 20))
if GATE & 4: P.add(flag_store(14))
stamp("h stored", "moh")
HB = 16; ST = 192
ACC = [144, 160, 176, 192]; AUG = 232
set4 = mk(f"""s_lshl_b32 s{sB}, s{sT3}, 2
s_add_u32 s{sB}, s{sB}, s{sW}
s_mul_i32 s{sP}, s{sB}, {14*2432}
s_add_u32 s{sP}, s{sP}, {WS_H}
s_mul_i32 s{sA}, s{sB}, 56
s_lshl_b32 s{sD}, s{sR}, 2
s_add_u32 s{sA}, s{sA}, s{sD}
s_mul_i32 s{sQ}, s{sA}, 2176
s_add_u32 s{sQ}, s{sQ}, {WS_H1}
v_lshlrev_b32 v13, 3, v1
s_lshl_b32 s{sA}, s{sW}, 9
s_add_u32 s{sA}, s{sA}, {L_AUG}
v_add_u32 v13, s{sA}, v13
v_mov_b32 v222, 0""")
FH = Fetch("fh", [([f"s_add_u32 s{sCt}, s{sP}, {2432*p}\nbuffer_load_dwordx4 {v(HB+8*p,4)}, v2, {WS}, s{sCt} offen sc1\nbuffer_load_dwordx4 {v(HB+8*p+4,4)}, v2, {WS}, s{sCt} offen offset:1024 sc1\n"
                    f"buffer_load_dword v{ST+2*p}, v4, {WS}, s{sCt} offen offset:2048 sc1\nbuffer_load_ushort v{ST+2*p+1}, v0, {WS}, s{sCt} offen offset:2304 sc1"],
                   [HB+8*p, HB+8*p+4, ST+2*p, ST+2*p+1]) for p in range(14)], nre=opt('reh', 2))
for i in range(4): I(f"v_mov_b32 v{AUG+i}, s{sONES}")
P.wait("w1"); I("s_barrier")
stamp("w1 landed", "h")
if opt("zz", 0): I(f"s_sleep {opt('zz', 0)}")
def w1a(t, k): return (240 + k + (4 if t >= 14 else 0), (t % 14) * 4096, (t % 14) * 4096 + 2048)
st3 = [w1a(t, 0) + ((AUG, ACC[2], t == 0, True),) for t in range(28)]
TWO = opt("two", 1); N1 = 2 if TWO else 3
for t in range(28):
    for k in range(N1): st3.append(w1a(t, k) + ((HB + 4*t, ACC[k], t == 0, False),))
for t in range(28):
    for k in range(N1, 4): st3.append(w1a(t, k) + ((HB + 4*t, ACC[k], t == 0, False),))
pro, g3 = gemm_lds(st3, AH)
P.add(pro)
S3 = Sched(g3)
S3.spread(set4, 0, 8)
S3.spread(raw + w2dma(UD[0]) + w2dma(UD[1]), 0, opt("c0e", 20)); raw = []
NH0 = opt("nh0", 4); H0 = opt("h0", 26)
G2 = gate("g2", vPO, vPF)
if GATE & 4:
    S3.at(opt("g2", 12), G2.load(0), 0.9)
    S3.at(27, G2.check(0, 0) + stampi("gate2", "h") + flat([FH.load(p) for p in range(NH0)]), 0.5)
else: S3.spread(flat([FH.loadc(p) for p in range(NH0)]), H0, 27)
cs = ACC[2]
csx = mk(f"""v_cvt_pk_bf16_f32 v{AUG}, v{cs}, v{cs}
v_lshlrev_b32 v{AUG+1}, 16, v{AUG}
v_sub_f32 v{AUG+1}, v{cs}, v{AUG+1}
v_cvt_pk_bf16_f32 v{AUG}, v{cs}, v{AUG+1}
v_and_b32 v{AUG+1}, 0xffff, v{AUG}
v_cndmask_b32 v{AUG}, v{AUG}, 0, {sHI}
v_cndmask_b32 v{AUG+1}, v{AUG+1}, 0, {sHI}
ds_write_b64 v13, {v(AUG,2)}""")
S3.at(27, stampi("colsum done", "h") + csx + FH.check(0, NH0 - 1) + stampi("fh0", "h"), 1.0)
B0 = 28
for p in range(14):
    b = B0 + 2*N1*p
    if p + NH0 < 14:
        for k_, c_ in enumerate(FH.loadc(p + NH0)): S3.at(b + ((0, 2, 1, 3) if TWO else (0, 2, 4, 4))[k_], c_, 0.2)
    S3.at(b, mk(f"v_add_f32 v222, v222, v{ST+2*p}"), 0.0)
    if p + 1 < 14: S3.spread(FH.checkc(p + 1, min(13, p + NH0 - 1)), b + 1, b + 2*N1)
    if p in (3, 7, 11): S3.at(b + 2*N1 - 1, stampi(f"fh{p+1}", "h"), 1.0)
S3.at(B0 + 14, mk("s_barrier") + flat([mk(f"v_xor_b32 v9, {512*k}, v13\nds_read_b64 {v(AUG+2*k,2)}, v9") for k in range(1, 4)]), 0.0)
mid = mk(f"""v_mul_f32 v220, {fhex(1/448)}, v222
v_mov_b32 v221, v220
s_nop 0
v_permlane32_swap_b32 v220, v221
v_fma_f32 v221, -v220, v220, v221
v_max_f32 v221, 0, v221
v_add_f32 v221, 0x3727c5ac, v221
v_rsq_f32 v251, v221
v_cvt_pk_bf16_f32 v222, -v220, -v220
v_lshlrev_b32 v9, 16, v222
v_sub_f32 v9, -v220, v9
v_cvt_pk_bf16_f32 v223, v9, 0
v_mul_f32 v250, v221, v251
v_mul_f32 v251, 0xbfb8aa3b, v251
v_cndmask_b32 v222, v222, 0, {sHI}
v_cndmask_b32 v223, v223, 0, {sHI}""")
S3.spread(mid, *((B0 + 53, B0 + 59) if TWO else (B0 + 79, B0 + 84)))
def aug(k): return mk(f"v_mfma_f32_32x32x8_bf16 {v(ACC[k],16)}, {v(AUG+2*k,2)}, v[222:223], {v(ACC[k],16)}")
SLT = 132
def silu(k, pk):
    q = Prog(); a = ACC[k]; t = 208
    q.I(f"s_xor_b32 s50, s{sW}, {k}\ns_mul_i32 s50, s50, 2176\ns_add_u32 s50, s50, s{sQ}")
    for half in range(2):
        b = a + 8 * half
        if pk:
            for j in range(0, 8, 2): q.I(f"v_pk_mul_f32 {v(t+j,2)}, {v(b+j,2)}, v[250:251] op_sel:[0,1] op_sel_hi:[1,1]")
        else:
            for j in range(8): q.I(f"v_mul_f32 v{t+j}, v{b+j}, v251")
        for j in range(8): q.I(f"v_exp_f32 v{t+j}, v{t+j}")
        if pk:
            for j in range(0, 8, 2): q.I(f"v_pk_fma_f32 {v(t+j,2)}, {v(t+j,2)}, v[250:251], v[250:251] op_sel_hi:[1,0,0]")
        else:
            for j in range(8): q.I(f"v_fma_f32 v{t+j}, v{t+j}, v250, v250")
        for j in range(8): q.I(f"v_rcp_f32 v{t+j}, v{t+j}")
        if pk:
            for j in range(0, 8, 2): q.I(f"v_pk_mul_f32 {v(b+j,2)}, {v(b+j,2)}, {v(t+j,2)}")
        else:
            for j in range(8): q.I(f"v_mul_f32 v{b+j}, v{b+j}, v{t+j}")
        for j in range(4): q.I(f"v_cvt_pk_bf16_f32 v{b+j}, v{b+2*j}, v{b+2*j+1}")
        q.I(f"buffer_store_dwordx4 {v(b,4)}, v2, {WS}, s50 offen offset:{1024*half} sc1")
    q.I(f"v_bitop3_b32 v216, v5, v{a}, v{a+8} {X3}")
    q.I(f"buffer_store_short v216, v0, {WS}, s50 offen offset:2048 sc1")
    return q.items + ([selft(50, 18)] if SELF & 2 and not pk else [])
E0 = B0 + 28*N1
assert not raw
if TWO:
    S3.spread(flat([w2rd(j) for j in UD + UR + UAW[NT1:]]), B0 + 8, B0 + 42)
    S3.at(B0 + 34, mk("s_barrier"), 0.0)
    S3.spread(flat([w2dma(j) for j in UE]), B0 + 48, E0 + opt("wde", 12))
else:
    S3.spread(flat([w2rd(j) for j in UD + UR + UAW[NT1:]]), B0 + 22, B0 + 58)
    S3.at(B0 + 44, mk("s_barrier"), 0.0)
    S3.spread(flat([w2dma(j) for j in UE]), B0 + 64, E0)
B4 = 16
CKR = [240, 241, 244, 245, 248, 249, 217, 218, 219, 130, 242, 246, 243, 247]
C4 = [[a_(224,16), a_(240,16)], [v(ACC[0],16), v(ACC[1],16)]]
set5 = mk(f"""s_mul_i32 s{sA}, s{sTILE}, 56
s_xor_b32 s{sB}, s{sTILE}, 1
s_mul_i32 s{sB}, s{sB}, 56
s_add_u32 s51, s{sB}, s44
s_add_u32 s52, s{sA}, s44
s_add_u32 s53, s{sB}, s45
s_add_u32 s54, s{sA}, s45""")
for k in range(4):
    set5 += mk(f"s_mul_i32 s{51+k}, s{51+k}, 2176\ns_add_u32 s{51+k}, s{51+k}, {WS_H1}")
S3.spread(set5, B0 + 42, B0 + 52)
def piece4(n):
    st, i = n // 7, n % 7; r = B4 + 8 * (n % 14); c = CKR[n % 14]
    return ([f"s_add_u32 s{sCt}, s{51+st}, {8*2176*i}\nbuffer_load_dwordx4 {v(r,4)}, v2, {WS}, s{sCt} offen sc1\nbuffer_load_dwordx4 {v(r+4,4)}, v2, {WS}, s{sCt} offen offset:1024 sc1\n"
             f"buffer_load_ushort v{c}, v0, {WS}, s{sCt} offen offset:2048 sc1"], [r, r+4, c])
F4 = Fetch("f4", [piece4(n) for n in range(28)], nre=opt("re4", 3))
ND = opt("nd", 5)
rawl = flat([w2raw(j) for j in UL])
nr0 = min(len(rawl), opt("nr0", 4))
if TWO:
    S3.at(E0 - 1, stampi("p3 pass1 done", "mh"), 1.0)
    g3[E0 + 3] = aug(0) + g3[E0 + 3]; g3[E0 + 4] = aug(1) + g3[E0 + 4]
    S3.spread(silu(0, False) + [stampi("silu0 done", "e")], E0 + 5, E0 + opt("s0e", 21))
    S3.spread(silu(1, False), E0 + opt("s0e", 21), E0 + opt("s1e", 44))
    S3.spread(rawl, E0 + opt("wde", 12), E0 + opt("rle", 36))
    DEEP = opt("deep", 0)
    if DEEP:
        rng = [(opt("a0", -18), opt("b0", 4)), (opt("a1", 6), opt("b1", 24)), (opt("a2", 26), opt("b2", 50)), (opt("a3", 50), opt("b3", 78))]
        f4pos = []
        for n in range(28):
            a, b = rng[n // 7]
            for k_, c_ in enumerate(F4.loadc(n)):
                pos = a + (b - a) * ((n % 7) + (0, 0.45, 0.9)[k_]) / 7
                lo = (4*n + 4 - 56) if n < 14 else 4*(n - 14) + 4
                pos = max(pos, lo + 0.01*k_); assert pos < 4*n - 3 or n == 0, (n, pos)
                f4pos.append((pos, c_))
        for i_ in range(1, len(f4pos)): assert f4pos[i_][0] >= f4pos[i_-1][0], i_
        import math
        for pos, c_ in f4pos:
            if pos < 0: S3.at(E0 + 56 + math.floor(pos), c_, pos - math.floor(pos))
    else: S3.spread(flat([F4.loadc(n) for n in range(ND)]), E0 + opt("f4s", 52), E0 + 56)
    P.add(S3.emit())
    P.add(aug(2) + aug(3))
else:
    S3.at(E0 - 1, stampi("p3 pass1 done", "mh") + aug(0) + aug(1) + aug(2) + sprinkle(silu(0, True), rawl[:nr0], 3, 12) + stampi("silu0 done", "e"), 1.0)
    S3.spread(silu(1, False), E0, E0 + 26)
    S3.spread(rawl[nr0:], E0, E0 + 14)
    S3.spread(flat([F4.loadc(n) for n in range(ND)]), E0 + opt("f4s", 16), E0 + 28)
    P.add(S3.emit())
    P.add(aug(3))
I("s_barrier")
stamp("p3 gemm done", "me")
g4 = []
for n in range(28):
    st, i = n // 7, n % 7; hf, par = st >> 1, st & 1
    for e in range(2):
        for mu in range(2):
            zero = hf == 0 and i == 0 and e == 0 and not (par == 1 and mu == 0)
            g4.append(mk(f"{MF} {C4[par][mu]}, {a_(UA(7*hf+i)+8*e+4*mu,4)}, {v(B4+8*(n%14)+4*e,4)}, {'0' if zero else C4[par][mu]}"))
P.add(F4.check(0, ND - 1))
S = Sched(g4)
for n in range(28):
    if n + ND < 28 and not (TWO and DEEP):
        for k_, c_ in enumerate(F4.loadc(n + ND)): S.at(4*n + (0, 2, 1)[k_], c_, 0.2)
    if n + 1 < 28: S.spread(F4.checkc(n + 1, min(27, n + ND)), 4*n + 2, 4*n + 4)
    if n in (6, 13, 20): S.at(4*n + 3, stampi(f"stage{n//7} done", "e"), 1.0)
unp = []
for i in range(8): unp += mk(f"v_lshlrev_b32 v{ACC[0]+2*i}, 16, v{HR+i}\nv_and_b32 v{ACC[0]+1+2*i}, s{sHIM}, v{HR+i}")
if TWO and DEEP:
    for pos, c_ in f4pos:
        if pos >= 0: S.at(int(pos), c_, pos - int(pos))
S2E, S3E = opt("s2e", 16), opt("s3e", 40)
S.spread(silu(2, False), 0, S2E)
S.spread(unp, 22, 27)
S.spread(silu(3, False), S2E, S3E)
S.spread(flat([w2rd(j) for j in UE if j < 7]), 0, 14)
S.spread(flat([w2dma(j) for j in UP]), opt("w2a", 2), opt("w2b", 44))
for j in [x for x in UE + UL + UP if x >= 7]: S.spread(w2rd(j), 44 + 5*(j-7), 49 + 5*(j-7))
S.at(82, mk(f"""s_lshl_b32 s{sA}, s{sW}, 14
v_add_u32 v13, s{sA}, v2
v_xor_b32 v9, 16384, v13
v_xor_b32 v12, 32768, v13
v_xor_b32 v14, 49152, v13
s_waitcnt lgkmcnt(0)
s_barrier"""))
S.spread([mk(f"ds_write_b128 v{9 if mu == 0 else 14}, {a_(224+16*mu+4*i,4)} offset:{4096*(2*mu+1)+1024*i}") for mu in range(2) for i in range(4)], 87, 99)
S.at(100, mk("s_waitcnt lgkmcnt(0)\ns_barrier"), 0.0)
S.spread([mk(f"ds_read_b128 {v(ACC[2+mu]+4*i,4)}, v13 offset:{4096*(2*mu+1)+1024*i}") for mu in range(2) for i in range(4)], 100, 104)
S.spread([mk(f"v_add_f32 v{ACC[2]+k}, v{ACC[2]+k}, v{ACC[3]+k}") for k in range(16)], 107, 112)
P.add(S.emit())
stamp("p4 gemm done", "me")
for i in range(4): I(f"ds_write_b128 v12, {v(ACC[1]+4*i,4)} offset:{8192+1024*i}")
if opt("cout", 0):
    I(f"""v_lshlrev_b32 v16, 3, v3
v_sub_u32 v16, v{vXRR}, v16
v_lshlrev_b32 v17, 4, v3
v_xor_b32 v16, v16, v17
v_xor_b32 v17, 32, v16
s_add_u32 s{sA}, s{sXO}, {L_XCH}
v_add_u32 v18, s{sA}, v2""")
I("s_waitcnt lgkmcnt(0)\ns_barrier")
for i in range(4): I(f"ds_read_b128 {v(ACC[3]+4*i,4)}, v13 offset:{8192+1024*i}")
for k in range(0, 16, 2): I(f"v_pk_add_f32 {v(ACC[0]+k,2)}, {v(ACC[0]+k,2)}, {v(ACC[2]+k,2)}")
for hf in range(2):
    b = ACC[0] + 8*hf
    for k in range(0, 8, 2): I(f"v_pk_add_f32 {v(b+k,2)}, {v(b+k,2)}, {v(ACC[3]+8*hf+k,2)}")
    for i in range(4): I(f"v_cvt_pk_bf16_f32 v{96+4*hf+i}, v{b+2*i}, v{b+2*i+1}")
    if not opt("cout", 0):
        I(f"v_permlane32_swap_b32 v{96+4*hf}, v{98+4*hf}\nv_permlane32_swap_b32 v{97+4*hf}, v{99+4*hf}\nbuffer_store_dwordx4 {v(96+4*hf,4)}, v7, {OUT}, s{sOUT} offen offset:{32*hf} {OPT.get('ofl', '')}")
    else:
        I(f"v_permlane32_swap_b32 v{96+4*hf}, v{98+4*hf}\nv_permlane32_swap_b32 v{97+4*hf}, v{99+4*hf}\nds_write_b128 v{16+hf}, {v(96+4*hf,4)}")
if opt("cout", 0):
    I("s_waitcnt lgkmcnt(0)\ns_barrier")
    for i in range(2): I(f"ds_read_b128 {v(104+4*i,4)}, v18 offset:{1024*i}")
    for i in range(2): I(f"buffer_store_dwordx4 {v(104+4*i,4)}, v{vXRD0+i}, {OUT}, s{sXRB} offen offset:{1024*i} {OPT.get('ofl', '')}")
stamp("end", "mpohez")
I(f"""s_cmp_lg_u32 s2, 0
s_cbranch_scc1 L_ex0
v_mov_b32 v9, 0""")
I(f"buffer_store_dword v5, v9, {WS}, 0 offen sc1", unc=True)
I("L_ex0:")
if opt("enc", 0):
    mode = opt("enc", 0)
    if mode <= 4:
        I(f"s_bfe_u32 s{sA}, s80, {hex(0x80000 | (8*(mode-1)))}\ns_min_u32 s{sA}, s{sA}, 1\ns_mul_i32 s{sA}, s{sA}, 2000", unc=True)
    else:
        I(f"s_waitcnt lgkmcnt(0)\ns_sub_u32 s{sA}, s{sSTAMP+2}, s78\ns_mul_i32 s{sA}, s{sA}, 4", unc=True)
    I(f"""s_memrealtime s[40:41]
s_waitcnt lgkmcnt(0)
L_enc:
s_memrealtime s[42:43]
s_waitcnt lgkmcnt(0)
s_sub_u32 s42, s42, s40
s_cmp_lt_u32 s42, s{sA}
s_cbranch_scc1 L_enc
s_branch L_end""", unc=True)
if opt("dbg", 0):
    I(f"""s_cmp_lg_u32 s{sW}, 0
s_cbranch_scc1 L_end
s_load_dwordx2 s[40:41], s[0:1], 64
s_mov_b32 s42, 256
s_mov_b32 s43, 0x20000
s_mov_b64 exec, 1
v_mov_b32 v9, 0
s_waitcnt lgkmcnt(0)""", unc=True)
    for k in range(nstamp[0]):
        I(f"s_sub_u32 s{sA}, s{sSTAMP+2*k}, s78\nv_mov_b32 v10, s{sA}\nbuffer_atomic_umax v10, v9, s[40:43], 0 offen offset:{4*k}\ns_nop 1", unc=True)
    I(f"""v_mov_b32 v10, s78
buffer_atomic_umax v10, v9, s[40:43], 0 offen offset:32
s_not_b32 s{sA}, s78
v_mov_b32 v11, s{sA}
buffer_atomic_umax v11, v9, s[40:43], 0 offen offset:36
v_mov_b32 v12, s{sSTAMP+2*(nstamp[0]-1)}
buffer_atomic_umax v12, v9, s[40:43], 0 offen offset:40
v_mov_b32 v13, s80
buffer_atomic_add v13, v9, s[40:43], 0 offen offset:44
s_branch L_end""", unc=True)
I("L_exit:")
if DIAG and not opt("dbg", 0):
    I(f"s_cmp_lg_u32 s{sW}, {opt('dw', 0)}\ns_cbranch_scc1 L_end\ns_lshl_b32 s{sA}, s2, 7\ns_add_u32 s{sA}, s{sA}, {WS_DIAG}\nv_mov_b32 v9, 0", unc=True)
    for k in range(nstamp[0]):
        I(f"s_waitcnt lgkmcnt(0)\nv_mov_b32 v10, s{sSTAMP+2*k}\nbuffer_store_dword v10, v9, {WS}, s{sA} offen offset:{4*k}", unc=True)
    if SEL == ["z"]: I(f"v_mov_b32 v10, s78\nbuffer_store_dword v10, v9, {WS}, s{sA} offen offset:120", unc=True)
    I(f"v_mov_b32 v10, s80\nbuffer_store_dword v10, v9, {WS}, s{sA} offen offset:124", unc=True)
I("L_end:\ns_endpgm")
I(f"""L_idle:
s_and_b32 s{sA}, s{sT2}, 1
s_lshl_b32 s{sA}, s{sA}, 1
s_add_u32 s{sA}, s{sA}, s{sRact}
s_sub_u32 s{sA}, s{sA}, 14
s_lshl_b32 s{sA}, s{sA}, 2
s_add_u32 s{sA}, s{sA}, s{sW}
s_lshl_b32 s{sA}, s{sA}, 13
v_lshlrev_b32 v9, 7, v1
s_lshr_b32 s{sD}, s{sT2}, 1
s_mul_i32 s{sD}, s{sD}, {8*56*2176}
s_add_u32 s{sD}, s{sD}, {WS_H1}
s_add_u32 s{sD}, s{sD}, s{sA}
s_mov_b32 s{sB}, {opt("idle2", 0)}
s_cmp_eq_u32 s{sB}, 0
s_cbranch_scc1 L_idle3
L_idle2:
buffer_load_dword v11, v9, {WS}, s{sD} offen {OPT.get("i2f", "")}
s_add_u32 s{sD}, s{sD}, {16*8192}
s_sub_u32 s{sB}, s{sB}, 1
s_cmp_lg_u32 s{sB}, 0
s_cbranch_scc1 L_idle2
L_idle3:
s_mov_b32 s{sB}, {opt("idle", 0)}
s_cmp_eq_u32 s{sB}, 0
s_cbranch_scc1 L_exit
L_idle1:
buffer_load_dword v11, v9, {W2}, s{sA} offen
s_add_u32 s{sA}, s{sA}, {16*8192}
s_sub_u32 s{sB}, s{sB}, 1
s_cmp_lg_u32 s{sB}, 0
s_cbranch_scc1 L_idle1
s_branch L_exit""", unc=True)
P.add(TAIL.items)

for it in P.items:
    if isinstance(it, Ins) and it.text.startswith('buffer_load_dword v142,'): it.defs = []
PL = opt("plain", 0)
for it in P.items:
    if isinstance(it, Ins) and it.op.startswith("buffer_store") and "sc1" in it.text:
        ish1 = " s50 " in it.text or " s49 " in it.text
        ish = ("v[224:227]" in it.text or "v[228:231]" in it.text or "v112," in it.text or "v113," in it.text)
        if (ish and PL & 1) or (ish1 and PL & 2): it.text = it.text.replace(" sc1", OPT.get("pfl", ""))
if opt("pld", 0):
    c = 0
    for it in P.items:
        if isinstance(it, Ins) and it.op.startswith("buffer_load") and "sc1" in it.text and " s56 " in it.text and not it.uncounted:
            c += 1
            kind = 0 if c <= 48 else 1 if c <= 104 else 2
            if opt("pld", 0) & kind: it.text = it.text.replace(" sc1", OPT.get("lfl", ""))
if opt("nochk", 0):
    new = []; seen_end = False
    for it in P.items:
        if isinstance(it, Ins):
            if opt("nochk", 0) == 2 and not seen_end:
                if it.text.startswith("L_exit"): seen_end = True
                elif it.uncounted or it.op in ("s_cbranch_vccz", "s_branch"): continue
            if it.op == "s_cbranch_vccz" and not it.uncounted: it = Ins(it.text.replace("s_cbranch_vccz", "s_branch"))
            elif it.op == "s_cbranch_vccnz" and not it.uncounted: continue
            t = it.text
            if it.op.startswith("buffer_store") and "sc1" in t and not it.uncounted:
                kind = 8 if " s50 " in t else 4 if ("v[224" in t or "v[228" in t or "v112," in t or "v113," in t) else 2 if f" s{sOST} " in t else 1
                if opt("nost", 0) & kind: continue
            if it.op.startswith("buffer_load") and "sc1" in t and " s56 " in t and not it.uncounted:
                cnt_ld = globals().setdefault("_c", [0]); cnt_ld[0] += 1; c = cnt_ld[0]
                kind = 1 if c <= 32 else 2 if c <= 48 else 4 if c <= 104 else 8
                if opt("nold", 0) & kind: continue
        new.append(it)
    P.items = new
body, items = render(P.items)
if opt("align", 1):
    import subprocess, re as _re
    open("_al.s", "w").write('.amdgcn_target "amdgcn-amd-amdhsa--gfx950"\n.text\n' + body)
    subprocess.run(["clang", "-x", "assembler", "-target", "amdgcn-amd-amdhsa", "-mcpu=gfx950", "-c", "_al.s", "-o", "_al.o"], check=True)
    dis = subprocess.run(["llvm-objdump", "-d", "--mcpu=gfx950", "_al.o"], capture_output=True, text=True).stdout
    sizes = [4 * len(m.group(1).split()) for m in _re.finditer(r"// [0-9A-F]{12}: ((?:[0-9A-F]{8} ?)+)", dis)]
    real = [i for i in items if i.cls not in ('label', 'dir')]
    assert len(sizes) == len(real), (len(sizes), len(real))
    sz = {id(i): n for i, n in zip(real, sizes)}
    new = []; off = 0; nal = 0; MINRUN = opt("minrun", 6)
    for k, it in enumerate(items):
        if id(it) in sz and sz[id(it)] == 8 and off % 8 == 4 and not it.uncounted:
            run = 0
            for j in items[k:k + MINRUN + 4]:
                if id(j) not in sz: continue
                if sz[id(j)] != 8 or j.cls == 'mfma': break
                run += 1
            if run >= MINRUN:
                p = new[-1] if new else None
                if p is not None and p.cls == 'valu' and sz.get(id(p)) == 4 and not p.op.startswith(('v_permlane', 'v_dot2c', 'v_readfirst', 'v_accvgpr', 'v_cmp', 'v_cndmask')) and not p.op.endswith('_e64'):
                    p.text = p.text.replace(p.op, p.op + "_e64", 1)
                else: new.append(Ins("s_nop 0"))
                off += 4; nal += 1
        new.append(it); off += sz.get(id(it), 0)
    items = new
    body = '\n'.join(('' if i.cls == 'label' else '  ') + i.text for i in items) + '\n'
    print("alignment fixes:", nal, "code bytes", off)
hdr = open("cdna_kernels/" + NAME + ".s.ref").read().split("; Override launch")[0]
out = hdr + f"""; @launch grid=(256,1,1) block=(256,1,1) lds={LDS_SIZE}
.amdgcn_target "amdgcn-amd-amdhsa--gfx950"
.text
.globl {NAME}_kernel
.p2align 8
.type {NAME}_kernel,@function
{NAME}_kernel:
{body}.fill 2048, 4, 0xbf810000
.section .rodata,"a"
.p2align 6
.amdhsa_kernel {NAME}_kernel
  .amdhsa_next_free_vgpr 512
  .amdhsa_next_free_sgpr 102
  .amdhsa_accum_offset 256
  .amdhsa_group_segment_fixed_size 0
  .amdhsa_kernarg_size 80
  .amdhsa_user_sgpr_count 2
  .amdhsa_user_sgpr_kernarg_segment_ptr 1
  .amdhsa_system_sgpr_workgroup_id_x 1
.end_amdhsa_kernel
"""
open(sys.argv[1], "w").write(out)
n = sum(1 for i in items if i.cls not in ('label', 'dir'))
nu_ = sum(1 for i in items if i.cls not in ('label', 'dir') and i.uncounted)
print("instructions:", n, "(slow path", nu_, ") nops:", sum(1 for i in items if i.op == 's_nop'), "waits:", sum(1 for i in items if i.op == 's_waitcnt'), "stamps", nstamp[0])
```

```python
import sys, struct
from asmlib import *

NAME = "sequential_preLN__linear_kernel_hedgehog__dense_activation_silu__prompt"
DIAG = int(sys.argv[2]) if len(sys.argv) > 2 else 0
OPT = dict(a.split('=') for a in sys.argv[3:])
def opt(k, d): return int(OPT[k], 0) if k in OPT else d

WS_PART = 0x40000
WS_O    = 0x240000
WS_H    = 0x440000
WS_H1   = 0x680000
WS_DIAG = 0xE80000
WS_FLG  = 0xF00000
WS_SIZE = 0xF80000
XW = 28672
L_WV, L_WQ, L_WK, L_WO = 0, 28672, 57344, 86016
L_IMG = L_WK
L_KVX = 143360
L_XCH = 147456
L_SCR = 114688
L_AUG = 161792
LDS_SIZE = 163840
sW, sT, sH, sT2, sR = 3, 4, 5, 6, 7
X, WQKV, WPHI, WO, W1, W2, OUT, WS = [f"s[{i}:{i+3}]" for i in range(8, 40, 4)]
sKX, sKW = 40, 47
sHQ, sHIM = 54, 55
sRET = "s[56:57]"
sSPIN, sP, sU, sC, sMASK, sQ = 58, 59, 60, 61, 62, 63
sHI = "s[64:65]"
sLOG = "s[66:67]"
sONES, sTILE = 68, 69
sA, sB, sCt, sD = 70, 71, 72, 73
sRact, sXO = 74, 75
sWB, sWQ = 76, 77
sLAST, sFLAG, sWM, sPST, sPCK, sOST, sXRB, sOUT = 80, 81, 82, 83, 84, 85, 86, 87
sSTAMP = 88

def v(a, n=1): return f"v{a}" if n == 1 else f"v[{a}:{a+n-1}]"
def a_(a, n=1): return f"a{a}" if n == 1 else f"a[{a}:{a+n-1}]"
def fhex(x): return hex(struct.unpack('<I', struct.pack('<f', x))[0])
def flat(l): return sum(l, [])
P = Prog(); I = P.I
TAIL = Prog()
nstamp = [0]
SEL = OPT.get("st", "m").split(",")
PICK = [int(x) for x in OPT["pick"].split(",")] if "pick" in OPT else None
allst = [0]
def stampi(name, grp="m"):
    idx = allst[0]; allst[0] += 1
    if opt("jit", 0) and idx in (3, 7, 9, 11, 13, 17, 19, 21, 25, 26, 27, 28, 29):
        return mk(f"""s_memtime s[88:89]
s_waitcnt lgkmcnt(0)
s_mul_i32 s88, s88, 0x9E3779B1
s_lshr_b32 s88, s88, {opt("jit", 0)}
L_jit{idx}:
s_sleep 8
s_sub_u32 s88, s88, 1
s_cmp_gt_i32 s88, 0
s_cbranch_scc1 L_jit{idx}""")
    if not DIAG: return []
    if PICK is not None:
        if name != "start" and idx not in PICK:
            print(f"   - {idx}: {name}"); return []
    elif name != "start" and not (set(grp) & set(SEL)): return []
    k = nstamp[0]; nstamp[0] += 1
    assert k < 7
    print(f"stamp {k}: [{idx}] {name}")
    op = "s_memtime" if DIAG == 2 else "s_memrealtime"
    return mk(f"{op} s[{sSTAMP+2*k}:{sSTAMP+2*k+1}]")
def stamp(name, grp="m"): P.add(stampi(name, grp))
X3 = "bitop3:0x96"

def chk_code(regs, masked):
    r = list(regs)
    if masked: return f"v_bitop3_b32 v10, v{r[0]}, v{r[1]}, s{sMASK} bitop3:0x28\nv_cmp_ne_u32 vcc, v10, v6"
    if len(r) == 1: return f"v_cmp_ne_u32 vcc, v{r[0]}, v5"
    if len(r) == 2: t = f"v_xor_b32 v10, v{r[0]}, v{r[1]}"
    else:
        t = f"v_bitop3_b32 v10, v{r[0]}, v{r[1]}, v{r[2]} {X3}"
        if len(r) == 4: t += f"\nv_xor_b32 v10, v10, v{r[3]}"
    return t + "\nv_cmp_ne_u16 vcc, v10, v5"

sFL, sDM = 56, 57
GUARD = f"s_add_u32 s{sSPIN}, s{sSPIN}, 1\ns_cmp_gt_u32 s{sSPIN}, 0x40000\ns_cbranch_scc1 L_end\ns_waitcnt vmcnt(0)"
class Fetch:
    def __init__(self, name, pieces, masked=False, nre=1):
        self.name, self.pieces, self.masked, self.nre = name, pieces, masked, nre
    def loadc(self, i):
        it = flat([mk(c.replace(f"s{sCt}", f"s{sFL}")) for c in self.pieces[i][0]])
        out = []; cur = []
        for x in it:
            cur.append(x)
            if x.cls == 'vmem': out.append(cur); cur = []
        return out
    def load(self, i): return flat(self.loadc(i))
    def stub(self, i, last):
        n = self.name
        wgt = {"fo": 0x100, "fh": 0x10000, "f4": 0x1000000}.get(n, 1)
        rel = (f"s_add_u32 s80, s80, {wgt}\n" if DIAG else "") + "\n".join(c for j in range(i, min(last, i + self.nre - 1) + 1) for c in self.pieces[j][0])
        if opt("ool", 15) & {"fo": 2, "fh": 4, "f4": 8}[n]:
            TAIL.I(f"L_{n}_r{i}:\n" + rel + "\n" + GUARD + "\n" + chk_code(self.pieces[i][1], self.masked) + f"\ns_cbranch_vccnz L_{n}_r{i}\ns_branch L_{n}_ok{i}", unc=True)
            return mk(f"s_cbranch_vccnz L_{n}_r{i}\nL_{n}_ok{i}:")
        return mk(f"s_cbranch_vccz L_{n}_ok{i}\nL_{n}_r{i}:") + \
               mk(rel + "\n" + GUARD + "\n" + chk_code(self.pieces[i][1], self.masked) + f"\ns_cbranch_vccnz L_{n}_r{i}", unc=True) + mk(f"L_{n}_ok{i}:")
    def checkc(self, i, last):
        return [[x] for x in mk(chk_code(self.pieces[i][1], self.masked))] + [self.stub(i, last)]
    def check(self, i, last): return flat(self.checkc(i, last))

sFS, sFP = 80, 81
vL512, vPO, vPF = 0, 142, 143
def flag_store(nl): return mk(f"s_mov_b64 exec, {(1 << nl) - 1}\nbuffer_store_dword v5, v{vL512}, {WS}, s{sFS} offen sc1\ns_mov_b64 exec, -1")
def gate(name, vo, vf): return Fetch(name, [([f"buffer_load_dword v{vf}, v{vo}, {WS}, s{sFP} offen sc1"], [vf])])
GATE = opt("gate", 0)

def cost(it):
    if isinstance(it, WaitTag): return 4
    if it.cls in ('label', 'dir') or it.uncounted: return 0
    if it.op.startswith(TRANS) or 'permlane' in it.op: return 8
    if it.op.startswith('ds_write_b128'): return 28
    if it.cls == 'mfma': return 8
    return 4.5
class Sched:
    def __init__(self, groups):
        self.groups = groups; self.gap = [[] for _ in groups]; self.seq = 0
    def at(self, g, items, frac=0.5):
        self.seq += 1; self.gap[g].append((frac, self.seq, list(items)))
    def spread(self, chunks, a, b):
        chunks = [c if isinstance(c, list) else [c] for c in chunks]
        tot = sum(cost(i) for c in chunks for i in c) or 1; acc = 0
        for c in chunks:
            pos = a + (b - a) * acc / tot
            self.at(int(pos), c, pos - int(pos))
            acc += sum(cost(i) for i in c)
    def emit(self):
        out = []
        for g, gp in zip(self.groups, self.gap):
            out += g
            for _, _, c in sorted(gp, key=lambda x: (x[0], x[1])): out += c
        return out
def sprinkle(items, groups, start, step):
    out = []; groups = list(groups); nxt = start
    for i, it in enumerate(items):
        if groups and i == nxt: out += groups.pop(0); nxt += step
        out.append(it)
    for g in groups: out += g
    return out

def softmax(p, t, o, pk):
    q = Prog(); J = q.I
    m, n = t + 14, t + 15; r0, r1 = t + 16, t + 17
    J(f"v_max3_f32 v{m}, v{p}, v{p+1}, v{p+2}\nv_max3_f32 v{n}, -v{p}, -v{p+1}, -v{p+2}")
    for k in range(3, 13, 2):
        J(f"v_max3_f32 v{m}, v{m}, v{p+k}, v{p+k+1}\nv_max3_f32 v{n}, v{n}, -v{p+k}, -v{p+k+1}")
    J(f"""v_max_f32 v{m}, v{m}, v{p+13}
v_max_f32 v{n}, v{n}, -v{p+13}
v_permlane32_swap_b32 v{m}, v{n}
v_max_f32 v{m}, v{m}, v{n}
v_mul_f32 v{m}, v253, v{m}
v_mov_b32 v{n}, v{m}
v_permlane32_swap_b32 v{m}, v{n}""")
    if pk:
        for k in range(0, 14, 2):
            J(f"v_pk_fma_f32 {v(t+k,2)}, {v(p+k,2)}, v[252:253], {v(m,2)} op_sel_hi:[1,0,0]")
            J(f"v_pk_fma_f32 {v(p+k,2)}, {v(p+k,2)}, v[252:253], {v(m,2)} op_sel:[0,1,1] op_sel_hi:[1,1,1]")
    if pk == 2:
        for k in range(14):
            J(f"v_exp_f32 v{t+k}, v{t+k}\nv_exp_f32 v{p+k}, v{p+k}")
            if k >= 2:
                a0 = f"v{t}" if k == 2 else f"v{r0}"; a1 = f"v{p}" if k == 2 else f"v{r1}"
                J(f"v_add_f32 v{r0}, {a0}, v{t+k-1}\nv_add_f32 v{r1}, {a1}, v{p+k-1}")
        J(f"v_add_f32 v{m}, v{r0}, v{t+13}\nv_add_f32 v{n}, v{r1}, v{p+13}")
    elif pk:
        for k in range(14): J(f"v_exp_f32 v{t+k}, v{t+k}")
        for k in range(14): J(f"v_exp_f32 v{p+k}, v{p+k}")
        J(f"v_pk_add_f32 {v(m,2)}, {v(t,2)}, {v(t+2,2)}\nv_pk_add_f32 {v(r0,2)}, {v(p,2)}, {v(p+2,2)}")
        for k in range(4, 14, 2):
            J(f"v_pk_add_f32 {v(m,2)}, {v(m,2)}, {v(t+k,2)}\nv_pk_add_f32 {v(r0,2)}, {v(r0,2)}, {v(p+k,2)}")
        J(f"v_add_f32 v{m}, v{m}, v{n}\nv_add_f32 v{n}, v{r0}, v{r1}")
    else:
        for k in range(14):
            J(f"v_fma_f32 v{t+k}, v{p+k}, v252, v{m}\nv_fma_f32 v{p+k}, v{p+k}, v253, v{n}\nv_exp_f32 v{t+k}, v{t+k}\nv_exp_f32 v{p+k}, v{p+k}")
            if k >= 2:
                a0 = f"v{t}" if k == 2 else f"v{r0}"; a1 = f"v{p}" if k == 2 else f"v{r1}"
                J(f"v_add_f32 v{r0}, {a0}, v{t+k-1}\nv_add_f32 v{r1}, {a1}, v{p+k-1}")
        J(f"v_add_f32 v{m}, v{r0}, v{t+13}\nv_add_f32 v{n}, v{r1}, v{p+13}")
    J(f"""v_permlane32_swap_b32 v{m}, v{n}
v_add_f32 v{m}, v{m}, v{n}
v_rcp_f32 v{m}, v{m}
v_mov_b32 v{n}, v{m}
v_permlane32_swap_b32 v{m}, v{n}""")
    if pk == 1:
        for k in range(0, 14, 2):
            J(f"v_pk_mul_f32 {v(t+k,2)}, {v(t+k,2)}, {v(m,2)} op_sel_hi:[1,0]")
            J(f"v_pk_mul_f32 {v(p+k,2)}, {v(p+k,2)}, {v(m,2)} op_sel:[0,1] op_sel_hi:[1,1]")
    else:
        for k in range(14): J(f"v_mul_f32 v{t+k}, v{t+k}, v{m}\nv_mul_f32 v{p+k}, v{p+k}, v{n}")
    for k in range(7): J(f"v_cvt_pk_bf16_f32 v{o+k}, v{t+2*k}, v{t+2*k+1}")
    for k in range(7): J(f"v_cvt_pk_bf16_f32 v{o+7+k}, v{p+2*k}, v{p+2*k+1}")
    return q.items

def dmag(vaddrs, srd, sbase, sadd, mbase, madd, tag, sreg=None):
    sr = sCt if sreg is None else sreg
    ch = [mk(f"buffer_load_dwordx4 v{a}, {srd}, s{sr} offen offset:{1024*i} lds", tag=tag) for i, a in enumerate(vaddrs)]
    ch[0] = mk(f"s_add_u32 m0, s{mbase}, {madd}\ns_add_u32 s{sr}, s{sbase}, {sadd}") + ch[0]
    return ch

MF = "v_mfma_f32_32x32x16_bf16"
RINGA, NRING = 224, 8
def gemm_lds(steps, ahead=6):
    def rd(i):
        av, o1, o2 = steps[i][:3]; r = RINGA + 4 * (i % NRING)
        return mk(f"ds_read_b64_tr_b16 {a_(r,2)}, v{av} offset:{o1}\nds_read_b64_tr_b16 {a_(r+2,2)}, v{av} offset:{o2}")
    rds = [rd(i) for i in range(len(steps))]
    groups = []
    for i, st in enumerate(steps):
        r = RINGA + 4 * (i % NRING); b, acc, first, swap = st[3]
        A, B = a_(r, 4), v(b, 4)
        if swap: A, B = B, A
        g = mk(f"{MF} {v(acc,16)}, {A}, {B}, {'0' if first else v(acc,16)}")
        if i % 2 == 0 and i + 1 < len(steps):
            r2 = RINGA + 4 * ((i + 1) % NRING); g[0].extra = [('a', r2 + x) for x in range(4)]
        groups.append(g + (rds[i + ahead] if i + ahead < len(steps) else []))
    return flat(rds[:ahead]), groups

FAST = opt('fast', 1)
LO = """s_load_dwordx2 s[12:13], s[0:1], 8
s_load_dwordx2 s[16:17], s[0:1], 16
s_load_dwordx2 s[20:21], s[0:1], 24
s_load_dwordx2 s[24:25], s[0:1], 40
s_load_dwordx2 s[28:29], s[0:1], 48
s_load_dwordx2 s[32:33], s[0:1], 56
s_load_dwordx2 s[36:37], s[0:1], 72
"""
CP = f"""v_lshlrev_b32 v3, 4, v1
v_lshl_add_u32 v3, v2, 6, v3
v_lshl_add_u32 v3, v2, 4, v3
v_add_u32 v3, s{sCt}, v3
v_lshlrev_b32 v3, 7, v3
s_and_b32 s76, s76, 0xffffff00
s_mov_b64 exec, 31
global_load_dword v236, v3, s[76:77]
s_mov_b64 exec, -1
"""
MAP1 = [f"""{"s_lshr_b32 s4, s70, 1" if opt("pair", 1) else "s_and_b32 s4, s70, 3"}
s_lshl_b32 s{sT}, s{sT}, 2
s_and_b32 s{sD}, s{sB}, 3
s_add_u32 s{sT}, s{sT}, s{sD}
{"s_and_b32 s59, s70, 1" if opt("pair", 1) else "s_lshr_b32 s59, s70, 2"}
s_lshl_b32 s{sH}, s{sP}, 3
s_lshr_b32 s{sD}, s{sB}, 2
s_add_u32 s{sH}, s{sH}, s{sD}
s_mul_i32 s{sP}, s{sT}, {opt("rt", 2)}
s_add_u32 s{sD}, s{sD}, s{sP}
s_mul_i32 s{sP}, s{sD}, 37
s_lshr_b32 s{sP}, s{sP}, 8
s_mul_i32 s{sP}, s{sP}, 7
s_sub_u32 s{sD}, s{sD}, s{sP}
s_lshl_b32 s{sKX}, s{sD}, 7
""",
f"""s_lshl_b32 s{sT}, s{sA}, 1
s_lshr_b32 s{sD}, s{sB}, 4
s_add_u32 s{sT}, s{sT}, s{sD}
s_mov_b32 s{sH}, s{sCt}
s_and_b32 s{sD}, s{sH}, 7
s_cmp_eq_u32 s{sD}, 7
s_cselect_b32 s{sD}, 3, s{sD}
s_lshl_b32 s{sKX}, s{sD}, 7
""",
f"""s_mov_b32 s{sT}, s{sCt}
s_lshl_b32 s{sH}, s{sA}, 1
s_lshr_b32 s{sD}, s{sB}, 4
s_add_u32 s{sH}, s{sH}, s{sD}
s_and_b32 s{sD}, s{sH}, 7
s_mul_i32 s{sD}, s{sD}, 3
s_mul_i32 s{sP}, s{sD}, 37
s_lshr_b32 s{sP}, s{sP}, 8
s_mul_i32 s{sP}, s{sP}, 7
s_sub_u32 s{sD}, s{sD}, s{sP}
s_lshl_b32 s{sKX}, s{sD}, 7
"""][opt("map1", 0)]
if DIAG: I("s_memrealtime s[78:79]")
I(f"""s_cmp_ge_u32 s2, 256
s_cbranch_scc1 L_end
s_load_dwordx2 s[8:9], s[0:1], 0
{LO if not FAST else ''}{"s_waitcnt lgkmcnt(0)" + chr(10) + "s_memrealtime s[88:89]" if opt("bare", 0) else ""}
s_getpc_b64 s[76:77]
v_and_b32 v1, 63, v0
v_lshrrev_b32 v2, 6, v0
s_and_b32 s{sA}, s2, 7
v_readfirstlane_b32 s{sW}, v2
s_lshr_b32 s{sB}, s2, 3
s_and_b32 s{sCt}, s{sB}, 15
{CP if FAST < 2 else ''}{MAP1}
s_mov_b32 s10, 1835008
s_mov_b32 s11, 0x20000
v_lshrrev_b32 v2, 3, v1
v_mul_u32_u24 v244, 896, v2
v_lshrrev_b32 v2, 4, v1
v_and_b32 v8, 7, v1
v_xor_b32 v2, v2, v8
v_lshl_add_u32 v244, v2, 4, v244
v_xor_b32 v245, 64, v244
v_add_u32 v245, {7168-1024}, v245
v_add_u32 v246, {2*(7168-1024)}, v244
v_add_u32 v247, {2*(7168-1024)}, v245
s_lshl_b32 s{sQ}, s{sT}, 2
s_add_u32 s{sQ}, s{sQ}, s{sW}
s_mul_i32 s{sQ}, s{sQ}, {32*896}
s_lshr_b32 s{sXO}, s{sW}, 1
s_add_u32 s{sXO}, s{sXO}, s{sW}
s_mul_i32 s{sXO}, s{sXO}, {XW}
s_waitcnt lgkmcnt(0)""")
st0 = stampi("start")
if not opt("bare", 0): P.add(st0)
def xdma(g): return flat(dmag([244, 245, 246, 247], X, sQ, f"s{sKX+g}", sXO, 4096*g, f"x{g}"))
P.add(xdma(0))
if FAST: I(LO)
if FAST == 2: I(f"v_lshrrev_b32 v2, 6, v0\ns_and_b32 s{sCt}, s{sB}, 15\n" + CP)
I(f"""s_mov_b32 s14, {0 if opt('abl',0)&8 else 1204224}
s_mov_b32 s15, 0x20000
v_and_b32 v8, 3, v1""")
def wtouch(mask16, dst):
    m = mask16 | (mask16 << 16)
    return mk(f"s_mov_b32 exec_lo, {hex(m)}\ns_mov_b32 exec_hi, {hex(m)}\nbuffer_load_dword v{dst}, v255, {WQKV}, 0 offen\ns_mov_b64 exec, -1")
def kxs(g): return mk(f"s_add_u32 s{sKX+g}, s{sKX+g-1}, 128\ns_cmp_ge_u32 s{sKX+g}, 896\ns_cselect_b32 s{sD}, 896, 0\ns_sub_u32 s{sKX+g}, s{sKX+g}, s{sD}")
NXE = opt("nxe", 2)
if opt("wtfirst", 1) and opt("wt0", 0): P.add(wtouch(opt("wt0", 0), 237))
for g in range(1, NXE): P.add(kxs(g) + xdma(g))
if not opt("wtfirst", 1) and opt("wt0", 0): P.add(wtouch(opt("wt0", 0), 237))
if FAST: I("s_waitcnt lgkmcnt(0)")
if opt("wsoff", 0): I(f"s_add_u32 s36, s36, {opt('wsoff', 0)}\ns_addc_u32 s37, s37, 0")
I(f"""s_mov_b32 s38, {WS_SIZE}
s_mov_b32 s39, 0x20000
s_mov_b32 s18, 25088
s_mov_b32 s19, 0x20000
s_mov_b32 s22, {0 if opt('abl',0)&4 else 401408}
s_mov_b32 s23, 0x20000
s_xor_b32 s{sHQ}, s{sH}, 1
v_mov_b32 v11, 0
v_lshlrev_b32 v6, 7, v1""")
TM = opt("tm", 0)
sm_ld = mk(f"""s_mov_b64 exec, 1
buffer_load_dword v5, v6, {WS}, 0 offen sc1""")
if opt("two_", 1): sm_ld += mk(f"""s_lshl_b32 s56, s2, 2
s_add_u32 s56, s56, s{sW}
s_lshl_b32 s56, s56, 9
s_mov_b64 exec, 15
buffer_load_dword v238, v6, {WO}, s56 offen""")
if opt("twp", 0): sm_ld += mk(f"""s_and_b32 s{sCt}, s{sH}, 14
s_mul_i32 s{sCt}, s{sCt}, 1568
s_mul_i32 s56, s{sW}, 896
s_add_u32 s{sCt}, s{sCt}, s56
s_mov_b64 exec, 127
buffer_load_dword v239, v6, {WPHI}, s{sCt} offen""")
sm_ld += mk("s_mov_b64 exec, -1")
if TM == 0: P.add(sm_ld)
for g in range(NXE, 7): P.add(kxs(g))
I(f"""s_lshl_b32 s{sT2}, s{sA}, 1
s_lshr_b32 s{sD}, s{sB}, 4
s_add_u32 s{sT2}, s{sT2}, s{sD}
s_and_b32 s{sRact}, s{sB}, 15
s_min_u32 s{sR}, s{sRact}, 13
s_mov_b32 s26, {0 if opt('abl',0)&1 else 1605632}
s_mov_b32 s27, 0x20000
s_mov_b32 s30, {0 if opt('abl',0)&2 else 1605632}
s_mov_b32 s31, 0x20000
s_mov_b32 s34, 1835008
s_mov_b32 s35, 0x20000
s_mov_b32 s64, 0
s_mov_b32 s65, -1
s_mov_b32 s{sONES}, 0x3f803f80
s_mov_b32 s{sMASK}, 0xbfffbfff
s_mov_b32 s{sHIM}, 0xffff0000
s_mov_b32 s{sSPIN}, 0
s_mov_b32 s80, 0
s_cmp_ge_u32 s{sR}, 7
s_cselect_b32 s{sU}, 1, 0
s_mul_i32 s{sA}, s{sU}, 7
s_sub_u32 s{sC}, s{sR}, s{sA}""")
sT3 = 67
if opt("map3", 1):
    I(f"""s_and_b32 s{sA}, s{sT2}, 12
s_and_b32 s{sD}, s{sT2}, 1
s_lshl_b32 s{sD}, s{sD}, 1
s_add_u32 s{sA}, s{sA}, s{sD}
s_add_u32 s{sT3}, s{sA}, s{sU}
s_bfe_u32 s{sA}, s{sT2}, 0x10001
s_mul_i32 s{sA}, s{sA}, 7
s_add_u32 s{sR}, s{sA}, s{sC}""")
else: I(f"s_mov_b32 s{sT3}, s{sT2}")
for g in range(7): I(f"s_mul_i32 s{sKW+g}, s{sKX+g}, {172032//128}")
I(f"""s_mul_i32 s{sWB}, s{sH}, 56
s_mul_i32 s{sD}, s{sW}, 43008
s_add_u32 s{sWB}, s{sWB}, s{sD}
s_mul_i32 s{sWQ}, s{sHQ}, 56
s_add_u32 s{sWQ}, s{sWQ}, s{sD}
s_add_u32 s{sWB}, s{sWB}, 896
s_lshl_b32 s{sWM}, s{sW}, 10
s_mul_i32 s66, s{sH}, 1568
s_mul_i32 s81, s{sHQ}, 1568""")
_m0 = len(P.items)
I(f"""s_lshl_b32 s{sA}, s{sH}, 4
s_add_u32 s{sA}, s{sA}, s{sT}
s_mul_i32 s{sA}, s{sA}, 4608
s_add_u32 s{sA}, s{sA}, {WS_PART}
s_add_u32 s{sPST}, s{sA}, s{sWM}
s_lshl_b32 s{sD}, s{sW}, 7
s_add_u32 s{sA}, s{sA}, s{sD}
s_add_u32 s{sPCK}, s{sA}, 4096
s_lshl_b32 s{sA}, s{sT}, 2
s_add_u32 s{sA}, s{sA}, s{sW}
s_lshl_b32 s{sA}, s{sA}, 15
s_lshl_b32 s{sB}, s{sHQ}, 11
s_add_u32 s{sA}, s{sA}, s{sB}
s_add_u32 s{sOST}, s{sA}, {WS_O}
s_lshl_b32 s{sA}, s{sT2}, 2
s_lshl_b32 s{sB}, s{sU}, 1
s_add_u32 s{sA}, s{sA}, s{sB}
s_and_b32 s{sB}, s{sW}, 1
s_add_u32 s{sTILE}, s{sA}, s{sB}
s_mul_i32 s{sA}, s{sA}, {32*896}
s_lshl_b32 s{sB}, s{sC}, 7
s_add_u32 s{sA}, s{sA}, s{sB}
s_mul_i32 s{sD}, s{sW}, {16*896}
s_add_u32 s{sXRB}, s{sA}, s{sD}
s_mul_i32 s{sA}, s{sTILE}, {32*896}
s_add_u32 s{sA}, s{sA}, s{sB}
s_lshr_b32 s{sB}, s{sW}, 1
s_lshl_b32 s{sB}, s{sB}, 6
s_add_u32 s{sOUT}, s{sA}, s{sB}
s_mul_i32 s{sP}, s{sHQ}, {16*4608}
s_add_u32 s{sP}, s{sP}, {WS_PART}""")
deferred = P.items[_m0:]; del P.items[_m0:]
WPK, WPQ, WPT = 192, 200, 208
vWPA, vWPB, vKVX, vIMW, vKA, vKB, vFPD, vFPC, vWO0, vWO1, vXRD0, vXRD1, vXRR, vWOR = range(128, 142)
I(f"""v_lshrrev_b32 v3, 5, v1
v_lshlrev_b32 v2, 4, v1
v_lshlrev_b32 v4, 2, v1
v_bfe_u32 v11, v1, 3, 2
v_lshl_add_u32 v11, v11, 2, v8
v_bfe_u32 v12, v1, 2, 1
v_mul_u32_u24 v12, 14, v12
v_min_u32 v13, 13, v11
v_add_u32 v13, v13, v12
v_lshlrev_b32 v13, 1, v13
v_mul_u32_u24 v14, 224, v3
v_add_u32 v{vWPA}, v13, v14
v_lshl_add_u32 v{vWPB}, v3, 20, v{vWPA}
v_add_u32 v12, v12, v11
v_cmp_gt_u32 vcc, 14, v11
v_lshrrev_b32 v7, 2, v1
v_mul_u32_u24 v7, 2688, v7
v_cndmask_b32 v12, 28, v12, vcc
v_and_b32 v13, 15, v12
v_lshlrev_b32 v13, 4, v13
v_lshrrev_b32 v12, 4, v12
v_lshl_add_u32 v13, v12, 3, v13
v_lshl_add_u32 v13, v3, 8, v13
v_add_u32 v{vKVX}, {L_KVX}, v13
v_lshlrev_b32 v11, 4, v8
v_min_u32 v11, 40, v11
v_add_u32 v7, v7, v11
v_and_b32 v9, 31, v1
v_lshlrev_b32 v240, 7, v9
v_bfe_u32 v11, v1, 1, 3
v_xor_b32 v11, v11, v3
v_lshl_add_u32 v240, v11, 4, v240
v_add_u32 v240, s{sXO}, v240
v_xor_b32 v241, 32, v240
v_xor_b32 v242, 64, v240
v_xor_b32 v243, 96, v240
v_mov_b32 v250, 0
v_mov_b32 v251, 0""")
_m0 = len(P.items)
I(f"""s_lshl_b32 s{sA}, s{sW}, 5
v_add_u32 v10, s{sA}, v9
v_mul_u32_u24 v10, 208, v10
v_mul_u32_u24 v11, 96, v3
v_add_u32 v{vIMW}, v10, v11
v_lshrrev_b32 v10, 4, v1
v_bfe_u32 v15, v1, 2, 2
v_lshl_add_u32 v10, v10, 3, v15
v_mul_u32_u24 v10, 208, v10
v_and_b32 v11, 1, v1
v_mul_u32_u24 v11, 96, v11
v_add_u32 v10, v10, v11
v_bfe_u32 v11, v1, 1, 1
v_lshl_add_u32 v10, v11, 3, v10
v_add_u32 v{vKB}, {L_IMG}, v10
s_lshl_b32 s{sA}, s{sW}, 4
v_add_u32 v{vKA}, s{sA}, v{vKB}
v_add_u32 v{vFPD}, s{sWM}, v2
s_lshl_b32 s{sD}, s{sW}, 7
s_add_u32 s{sD}, s{sD}, 4096
v_lshlrev_b32 v0, 1, v1
v_add_u32 v{vFPC}, s{sD}, v0
v_lshrrev_b32 v12, 3, v1
v_mul_u32_u24 v14, 896, v12
v_and_b32 v13, 7, v1
v_xor_b32 v12, v12, v13
v_lshl_add_u32 v{vXRD0}, v12, 4, v14
v_add_u32 v{vXRD1}, {7168-1024}, v{vXRD0}
v_bfe_u32 v12, v1, 4, 1
v_lshlrev_b32 v11, 2, v12
v_xor_b32 v11, v11, v13
v_lshl_add_u32 v{vWO0}, v11, 4, v14
v_add_u32 v{vWO1}, {7168-1024}, v{vWO0}
s_and_b32 s{sA}, s{sW}, 1
s_lshl_b32 s{sA}, s{sA}, 12
s_add_u32 s{sA}, s{sA}, {L_XCH}
v_lshlrev_b32 v10, 7, v9
v_lshl_add_u32 v10, v3, 3, v10
v_add_u32 v10, s{sA}, v10
s_lshr_b32 s{sA}, s{sW}, 1
s_lshl_b32 s{sB}, s{sA}, 2
v_xor_b32 v13, s{sB}, v13
v_lshl_add_u32 v{vXRR}, v13, 4, v10
v_mad_u32_u24 v10, v3, 14, v15
v_lshlrev_b32 v10, 7, v10
v_bfe_u32 v13, v1, 3, 1
v_xor_b32 v13, v13, v3
v_xor_b32 v13, s{sA}, v13
v_lshl_add_u32 v10, v13, 6, v10
v_lshl_add_u32 v10, v12, 5, v10
v_lshl_add_u32 v10, v8, 3, v10
s_mul_i32 s{sA}, s{sA}, {8*28*128}
s_add_u32 s{sA}, s{sA}, {L_WO}
v_add_u32 v{vWOR}, s{sA}, v10
v_lshl_add_u32 v11, v3, 3, v15
v_lshlrev_b32 v11, 6, v11
v_lshl_add_u32 v12, v12, 2, v8
v_cmp_lt_u32 vcc, 5, v12
v_xor_b32 v13, 1, v12
v_cndmask_b32 v12, v12, v13, vcc
v_lshl_add_u32 v11, v12, 3, v11
v_add_u32 v13, {L_WK}, v11""")
I(f"""v_bfe_u32 v10, v1, 2, 1
v_bfe_u32 v14, v1, 4, 1
v_lshl_add_u32 v10, v14, 1, v10
v_cmp_eq_u32 vcc, v10, v3
v_and_b32 v10, 1, v1
v_lshlrev_b32 v10, 4, v10
v_mov_b32 v14, 0x3f80
v_lshlrev_b32 v10, v10, v14
v_cndmask_b32 v10, 0, v10, vcc
v_bfe_u32 v14, v1, 3, 1
v_bfe_u32 v15, v1, 1, 1
v_lshl_add_u32 v14, v14, 1, v15""")
for q in range(4): I(f"v_cmp_eq_u32 vcc, {q}, v14\nv_cndmask_b32 v15, 0, v10, vcc\nv_accvgpr_write_b32 a{220+q}, v15")
I("v_add_u32 v9, 896, v7")
deferred += P.items[_m0:]; del P.items[_m0:]
NDEF0 = opt("ndef0", 70)
P.add(deferred[:NDEF0]); deferred = deferred[NDEF0:]
L2N = 0
if L2N:
    I(f"""s_mov_b32 s{sCt}, 0x60504020
s_cmp_ge_u32 s{sH}, 8
s_cselect_b32 s{sCt}, 0x53020100, s{sCt}
s_and_b32 s{sD}, s{sH}, 7
s_lshl_b32 s{sD}, s{sD}, 2
s_lshr_b32 s{sCt}, s{sCt}, s{sD}
s_and_b32 s{sCt}, s{sCt}, 15
s_and_b32 s{sD}, s{sT}, 3
s_mul_i32 s{sD}, s{sD}, 7
s_add_u32 s{sCt}, s{sCt}, s{sD}
s_lshl_b32 s{sCt}, s{sCt}, 2
s_add_u32 s{sCt}, s{sCt}, s{sW}
s_mul_i32 s66, s{sCt}, 14336
s_add_u32 s81, s66, 57344
s_lshl_b32 s{sD}, s{sH}, 1
s_lshr_b32 s{sD}, 0xa111444a, s{sD}
s_and_b32 s{sD}, s{sD}, 3
s_cmp_ge_u32 s{sD}, 1
s_cselect_b32 s66, s66, 0x10000000
s_cmp_ge_u32 s{sD}, 2
s_cselect_b32 s81, s81, 0x10000000
v_add_u32 v143, 7168, v6""")
def l2n(k): return mk(f"s_mov_b32 exec_hi, 0xffffff\nbuffer_load_dword v{142}, v{6 if k % 2 == 0 else 143}, {W1}, s{66 if k < 2 else 81} offen\ns_mov_b32 exec_hi, -1")
stamp("setup done", "p")
def wphi(dst, tmp, so):
    q = []
    for t in range(2):
        for j in range(8):
            d = 16 * t + 8 * (j >> 2) + (j & 3)
            av = vWPB if (t == 1 and j >= 4) else vWPA
            r = (dst if j % 2 == 0 else tmp) + 4 * t + j // 2
            op = "buffer_load_short_d16" if j % 2 == 0 else "buffer_load_short_d16_hi"
            q += mk(f"{op} v{r}, v{av}, {WPHI}, s{so} offen offset:{d*56}")
    return q
def wkdma(g): return flat(dmag([7], WQKV, sWB, f"s{sKW+g}", sWM, L_WK + 4096*g, f"wk{g}"))
def wvdma(g): return flat(dmag([9], WQKV, sWB, f"s{sKW+g}", sWM, L_WV + 4096*g, f"wv{g}"))
def wqdma(g): return flat(dmag([7], WQKV, sWQ, f"s{sKW+g}", sWM, L_WQ + 4096*g, f"wq{g}"))
if opt("fake", 0):
    I(f"""v_mov_b32 v7, v2
v_add_u32 v9, 24576, v2
s_mul_i32 s{sWB}, s{sH}, 73728
s_add_u32 s{sWB}, s{sWB}, s{sWM}
s_mul_i32 s{sWQ}, s{sHQ}, 73728
s_add_u32 s{sWQ}, s{sWQ}, s{sWM}
s_add_u32 s{sWQ}, s{sWQ}, 45056""")
    for g in range(7): I(f"s_lshl_b32 s{sKW+g}, s{sKX+g}, 5")
XF = 16
NX0 = opt("nx0", 3)
if opt("wt1", 0): P.add(wtouch(opt("wt1", 0), 249))
WPP = opt("wpp", 1)
if WPP == 1: P.add(wphi(WPK, WPT, 66) + wphi(WPQ, WPT+8, 81))
for g in range(NXE, NX0): P.add(xdma(g))
if WPP == 2: P.add(wphi(WPK, WPT, 66) + wphi(WPQ, WPT+8, 81))
pend = [xdma(g) for g in range(NX0, 7)]
wkl = [wkdma(g) for g in range(7)]
if TM and TM < NX0: P.add(sm_ld)
elif TM: pend[TM - NX0] = pend[TM - NX0] + sm_ld
if opt("wt2", 0): pend[-1] = pend[-1] + wtouch(opt("wt2", 0), 248)
pend.append(wkl.pop(0) + (wphi(WPK, WPT, 66) if not WPP else []))
pend.append(wkl.pop(0) + (wphi(WPQ, WPT+8, 81) if not WPP else []))
while len(pend) < 7: pend.append(wkl.pop(0))
def xrd(g): return flat([mk(f"ds_read_b128 {v(XF+16*g+4*e,4)}, v{240+e} offset:{4096*g}") for e in range(4)])
P.wait("x0"); P.add(xrd(0))
for g in range(7):
    if pend: P.add(pend.pop(0))
    if g + 1 < 7: P.wait(f"x{g+1}"); P.add(xrd(g + 1))
    for i in range(16):
        r = XF + 16*g + i
        I(f"v_dot2c_f32_bf16 v250, s{sONES}, v{r}\nv_dot2c_f32_bf16 v251, v{r}, v{r}")
    nd_ = -(-len(deferred) // max(1, opt("ndi", 6) - g)) if g < opt("ndi", 6) else len(deferred)
    P.add(deferred[:nd_]); deferred = deferred[nd_:]
    if g == 0: stamp("x0 done", "p")
for x_ in pend: P.add(x_)
if opt("tp", 0) == 2:
    I(f"""s_mul_i32 s{sCt}, s2, {52*128}
s_mul_i32 s{sD}, s{sW}, {13*128}
s_add_u32 s{sCt}, s{sCt}, s{sD}
s_mov_b64 exec, 0x1fff
buffer_load_dword v254, v6, {W2}, s{sCt} offen
buffer_load_dword v255, v6, {W1}, s{sCt} offen
s_mov_b64 exec, -1""")
stamp("x stats done", "mp")
I(f"""v_permlane32_swap_b32 v250, v251
v_readfirstlane_b32 s{sA}, v5
s_nop 0
v_add_f32 v250, v250, v251
v_mul_f32 v250, {fhex(-1/448)}, v250
v_mov_b32 v251, v250
s_or_b32 s{sA}, s{sA}, 1
s_mul_i32 s{sA}, s{sA}, 0x9E3779B5
v_mov_b32 v5, s{sA}
s_mov_b32 s{sA}, 0x3f80
v_permlane32_swap_b32 v250, v251
s_mov_b32 s{sB}, 0x3f800000""")
fin = mk(f"""v_fma_f32 v251, -v250, v250, -v251
v_max_f32 v251, 0, v251
v_add_f32 v251, 0x3727c5ac, v251
v_rsq_f32 v251, v251
s_lshl_b32 s{sQ}, s{sC}, 7
s_mul_i32 s{sD}, s{sW}, {16*896}
v_mul_f32 v252, 0x3fb8aa3b, v251
v_mul_f32 v253, 0xbfb8aa3b, v251
s_add_u32 s{sQ}, s{sQ}, s{sD}
s_lshl_b32 s{sXO}, s{sW}, 11""")
if opt("noid", 1): fin = [mk(f"s_cmp_ge_u32 s{sRact}, 14\ns_cselect_b32 s22, 0, s22")] + fin
ACK = 144; ACV = 160; PK = 176; IMG = 208; TMP = 232
def norm(t):
    q = Prog(); tb = TMP + 8 * (t & 1)
    for i in range(4):
        r = XF + 4 * t + i
        q.I(f"v_dot2_f32_bf16 v{tb+2*i}, v{r}, s{sA}, v250\nv_dot2_f32_bf16 v{tb+2*i+1}, v{r}, s{sB}, v250")
    return q.items
def normc(t):
    tb = TMP + 8 * (t & 1)
    return flat([mk(f"v_cvt_pk_bf16_f32 v{XF+4*t+i}, v{tb+2*i}, v{tb+2*i+1}") for i in range(4)])
def l2t(srd, k, dst):
    return mk(f"""s_lshr_b32 s{sCt}, s2, 3
s_lshl_b32 s{sCt}, s{sCt}, 2
s_add_u32 s{sCt}, s{sCt}, s{sW}
s_mul_i32 s{sCt}, s{sCt}, {98*128}
s_mov_b32 exec_hi, 0x1ffff
s_add_u32 s{sCt}, s{sCt}, {k*49*128}
buffer_load_dword v{dst}, v6, {srd}, s{sCt} offen
s_mov_b32 exec_hi, -1""")
L2A, L2B = opt("l2a", -1), opt("l2b", -1)
touch = mk(f"""s_mul_i32 s{sCt}, s2, {52*128}
s_mul_i32 s56, s{sW}, {13*128}
s_add_u32 s{sCt}, s{sCt}, s56
s_mov_b64 exec, 0x1fff
buffer_load_dword v255, v6, {W1}, s{sCt} offen
buffer_load_dword v254, v6, {W2}, s{sCt} offen
s_mov_b64 exec, -1""")
TP = opt('tp', 0)
ns = norm(0)
for t in range(1, 28): ns += norm(t) + normc(t - 1)
ns += normc(27)
NBAR = opt("nbar", 100)
wvl = [wvdma(k) for k in range(7)]
if opt("loop2", 0):
    I("s_mov_b32 s80, 0\nL_lp2:\ns_mov_b32 s101, s100\ns_memtime s[78:79]\ns_waitcnt lgkmcnt(0)\ns_mov_b32 s99, s78")
    P.add([Ins(x.text) for x in ns])
    I("s_memtime s[78:79]\ns_waitcnt lgkmcnt(0)\ns_sub_u32 s100, s78, s99\ns_add_u32 s100, s100, s88\ns_add_u32 s80, s80, 1\ns_cmp_lt_u32 s80, 2\ns_cbranch_scc1 L_lp2")
    nstamp[0] = 14
P.add(sprinkle(ns[:NBAR], wkl, 0, opt("wkstep", 30)))
if opt("touch", 1) and TP == 1: P.add(touch)
I("s_barrier")
NWV0 = opt("nwv0", 4)
w0_ = [wvl.pop(0) for _ in range(NWV0)]
if L2N == 1: w0_[0] = l2n(0) + w0_[0]; w0_[-1] = w0_[-1] + l2n(2); wvl[-1] = wvl[-1] + l2n(1)
if L2N == 2: wvl[-1] = wvl[-1] + l2n(0) + l2n(2)
P.add(sprinkle(ns[NBAR:], w0_, opt("wv0", 30), opt("wvstep", 50)))
P.wait(*[f"wk{k}" for k in range(7)]); I("s_barrier")
stamp("wk landed", "p")
if opt("zy", 0): I(f"s_sleep {opt('zy', 0)}")
AH = 6
sW1B, sW1M, sW2E, sW2L = 40, 41, 42, 43
set2 = mk(f"""v_lshrrev_b32 v10, 4, v1
v_mul_u32_u24 v12, 3584, v10
v_lshlrev_b32 v10, 2, v10
v_and_b32 v13, 15, v1
v_xor_b32 v10, v10, v13
v_lshl_add_u32 v12, v10, 4, v12
v_add_u32 v13, {4*3584-1024}, v12
v_add_u32 v14, {2*(4*3584-1024)}, v12
v_add_u32 v15, {3*(4*3584-1024)}, v12
s_lshl_b32 s{sW1B}, s{sR}, 8
s_mul_i32 s{sD}, s{sW}, {16*3584}
s_add_u32 s{sW1B}, s{sW1B}, s{sD}
s_lshl_b32 s{sW1M}, s{sW}, 12
s_lshr_b32 s{sA}, s{sW}, 1
s_lshl_b32 s{sA}, s{sA}, 2
s_andn2_b32 s{sB}, 1, s{sW}
s_add_u32 s{sA}, s{sA}, s{sB}
s_lshl_b32 s{sB}, s{sU}, 1
s_add_u32 s44, s{sA}, s{sB}
s_xor_b32 s45, s44, 2
s_lshl_b32 s{sD}, s{sC}, 7
s_mul_i32 s{sW2E}, s44, {32*896}
s_add_u32 s{sW2E}, s{sW2E}, s{sD}
s_mul_i32 s{sW2L}, s45, {32*896}
s_add_u32 s{sW2L}, s{sW2L}, s{sD}
""")
vW2 = [vWO0, vWO1, 128, 129]
sSCR, sBIG = 46, 47
NA = opt("na", 0)
NUR = opt("nur", 2); NT1 = min(NA, opt("nt1", 99))
_u = list(range(14))
def take(n): return [_u.pop(0) for _ in range(min(n, len(_u)))]
UAW = take(NA); UR = take(NUR); UD = take(2); UE = take(3); UL = take(opt("nrl", 3)); UP = take(99)
RAWS = UAW + UR + UL
def UA(j): return 16*j
def w2slot(j):
    if j in UE: return (sSCR, 4096*UE.index(j), 254)
    if j in UAW + UR + UD: return (sSCR, 4096*(j & 1), 254)
    return (sBIG, 4096*(UL + UP).index(j), 252)
def w2dma(j):
    mb, mo, _ = w2slot(j)
    return dmag(vW2, W2, sW2E if j < 7 else sW2L, (j%7)*256*896, mb, mo, f"w2_{j}", sDM)
def w2raw(j):
    ch = [mk(f"buffer_load_dwordx4 {a_(UA(j)+4*q,4)}, v{vW2[q]}, {W2}, s81 offen offset:{1024*q}") for q in range(4)]
    ch[0] = mk(f"s_add_u32 s81, s{sW2E if j < 7 else sW2L}, {(j%7)*256*896}") + ch[0]
    return ch
def w2rd(j):
    _, mo, av = w2slot(j)
    if j in RAWS: out = [mk(f"ds_write_b128 v{131 if j in UL else 134}, {a_(UA(j)+4*q,4)} offset:{mo+1024*q}") for q in range(4)]
    else: out = [[WaitTag([f"w2_{j}"])]]
    for e in range(2):
        for mu in range(2):
            for u in range(2): out.append(mk(f"ds_read_b64_tr_b16 {a_(UA(j)+8*e+4*mu+2*u,2)}, v{av+mu} offset:{mo+2048*e+1024*u}"))
    return out
raw = flat([w2raw(j) for j in UR])
rawA = flat([w2raw(j) for j in UAW])
if opt("noid", 1): set2 = [mk(f"s_cmp_ge_u32 s{sRact}, 14\ns_cselect_b32 s26, 0, s26")] + set2
set2 += mk(f"v_add_u32 v128, {2*(7168-1024)}, v{vWO0}\nv_add_u32 v129, {3*(7168-1024)}, v{vWO0}")
set2b = [x for x in set2 if isinstance(x, Ins) and x.cls == 'valu' and x.defs[0][1] < 128]
if opt("trim", 1):
    set2 = [mk(f"""s_cmp_eq_u32 s{sW}, 3
s_cselect_b64 vcc, {sHI}, 0
v_mov_b32 v143, 0x10000000
v_add_u32 v133, s{sWM}, v2
v_cndmask_b32 v142, v5, 0, vcc
v_cndmask_b32 v{vFPD}, v{vFPD}, v143, vcc
v_cndmask_b32 v{vFPC}, v{vFPC}, v143, vcc""")] + set2
set2b = [x for x in set2 if isinstance(x, list)] + set2b
set2a = [x for x in set2 if x not in set2b]
pro, gk = gemm_lds([(13, 1024*t, 1024*t + 256, (XF + 4*t, ACK, t == 0, False)) for t in range(28)], AH)
P.add(pro)
S = Sched(gk)
S.spread(wvl, 0, opt("wve", 20))
NQK = opt("nqk", 0)
S.spread([wqdma(k) for k in range(NQK)], opt("wve", 20), 28)
EARLY = opt("early", 0)
if EARLY:
    P.add(flat([x if isinstance(x, list) else [x] for x in fin + set2a])); fin = []
    wo_l = flat([dmag([vWO0, vWO1], WO, sQ, i*64*896, sXO, L_WO + 8192*i, "wo", sDM) for i in range(7)] + [dmag([vXRD0, vXRD1], X, sXRB, 0, sXO, L_XCH, "wo", sDM)])
    if EARLY == 2:
        S.spread([wo_l[2*i] + wo_l[2*i+1] for i in range(8)], 0, 28)
    else: S.spread([rawA.pop(0) for _ in range(min(len(rawA), opt("ne1", 8)))], 0, 28)
else: fin = fin + set2a
if TP == 3: S.at(opt("tpos", 22), touch)
for k, ps in enumerate((L2A, L2B)):
    if 0 <= ps < 28: S.at(ps, l2t(W1, k, 248 + k))
S.spread(fin + flat([mk(f"v_or_b32 v{WPK+q}, v{WPK+q}, v{WPT+q}\nv_or_b32 v{WPQ+q}, v{WPQ+q}, v{WPT+8+q}") for q in range(8)]), 2, 26)
P.add(S.emit())
def phi_pre(acc, wp):
    q = Prog()
    for i in range(8): q.I(f"v_cvt_pk_bf16_f32 v{acc+i}, v{acc+2*i}, v{acc+2*i+1}")
    q.I(f"{MF} {v(PK,16)}, {v(wp,4)}, {v(acc,4)}, 0\n{MF} {v(PK,16)}, {v(wp+4,4)}, {v(acc+4,4)}, {v(PK,16)}")
    return q.items
stamp("k gemm done", "mp")
wql = [wqdma(k) for k in range(NQK, 7)]
P.add(wql.pop(0))
P.add(phi_pre(ACK, WPK))
imw = flat([mk(f"ds_write_b128 v{vIMW}, {v(IMG+4*i,4)} offset:{L_IMG+16*i}") for i in range(3)]) + mk(f"ds_write_b64 v{vIMW}, {v(IMG+12,2)} offset:{L_IMG+48}")
smk = sprinkle(softmax(PK, TMP, IMG, True), [wql.pop(0) for _ in range(min(len(wql), opt("nwq0", 3)))], 10, opt("wqs", 40))
if EARLY: smk = sprinkle(smk, [rawA.pop(0) for _ in range(min(len(rawA), opt("ne2", 8)))], 5, 16)
WEAVE = opt("weave", 1)
pro, gv = gemm_lds([(11, L_WV + 1024*t, L_WV + 1024*t + 256, (XF + 4*t, ACV, t == 0, False)) for t in range(28)], AH)
S = Sched(gv)
if not WEAVE:
    P.add(smk)
    P.wait(*[f"wv{k}" for k in range(7)]); I("s_barrier")
    stamp("softmax k done", "p")
    P.add(pro)
    S.spread(imw, 2, 10)
else:
    smf = softmax(PK, TMP, IMG, 2)
    n0 = next(i for i, x in enumerate(smf) if x.op == "v_exp_f32")
    P.wait(*[f"wv{k}" for k in range(4)]); I("s_barrier")
    P.add(pro)
    P.add(smf[:n0])
    stamp("softmax k done", "p")
    S.spread(smf[n0:] + imw, 0, 28)
    S.at(15 - AH, [WaitTag(["wv4", "wv5", "wv6"])] + mk("s_barrier"), 1.0)
    wql = [wqdma(k) for k in range(NQK + 1, 7)]
wo_l = flat([dmag([vWO0, vWO1], WO, sQ, i*64*896, sXO, L_WO + 8192*i, "wo", sDM) for i in range(7)] + [dmag([vXRD0, vXRD1], X, sXRB, 0, sXO, L_XCH, "wo", sDM)])
if EARLY == 2: wo_l = []
S.spread(wql, 0, opt('wqe', 14))
if EARLY: S.spread([rawA.pop(0) for _ in range(min(len(rawA), opt("ne3", 8)))], 0, 22)
if L2A >= 0 or L2N: touch = [x for x in touch if W1 not in x.text]
if L2N == 1: S.at(opt("l2p", 14), l2n(3))
if L2N == 2: S.at(opt("l2p", 14), l2n(1) + l2n(3))
tlb = []
if opt("tlb", 0) & 1: tlb += mk(f"s_mov_b64 exec, 1\nbuffer_load_dword v248, v6, {OUT}, s{sOUT} offen\ns_mov_b64 exec, -1")
if opt("tlb", 0) & 2: tlb += mk(f"v_lshlrev_b32 v249, 20, v1\ns_mov_b64 exec, 0xffff\nbuffer_load_dword v249, v249, {WS}, 0 offen offset:4092\ns_mov_b64 exec, -1")
if tlb: S.at(opt("tlbp", 13), tlb)
if opt("touch", 1) and TP == 0: S.at(opt("tpos", 15), touch)
for k, ps in enumerate((L2A, L2B)):
    if 200 <= ps < 228: S.at(ps - 200, l2t(W1, k, 248 + k))
S.spread([wo_l.pop(0) for _ in range(2*opt("nwo0", 0))], opt("wos", 17), opt("woe2", 28))
P.add(S.emit())
for k in range(0, 16, 2): I(f"v_pk_mul_f32 {v(ACV+k,2)}, {v(ACV+k,2)}, v[250:251] op_sel:[0,1] op_sel_hi:[1,1]")
I(f"v_cndmask_b32 v{ACV+12}, v{ACV+12}, 1.0, {sHI}")
for i in range(8): I(f"v_cvt_pk_bf16_f32 v{IMG+16+i}, v{ACV+2*i}, v{ACV+2*i+1}")
for i in range(4, 6): I(f"ds_write_b128 v{vIMW}, {v(IMG+4*i,4)} offset:{L_IMG+16*i}")
P.wait("wq0", "wq1", "wq2", "wq3")
I("s_waitcnt lgkmcnt(0)\ns_barrier")
stamp("img written", "p")
KA = 144; KBv = 208; KD = 176
for k in range(4):
    for u in range(2):
        I(f"ds_read_b64_tr_b16 {v(KA+4*k+2*u,2)}, v{vKA} offset:{(32*k+4*u)*208}")
    for nu in range(2):
        for u in range(2):
            I(f"ds_read_b64_tr_b16 {v(KBv+8*k+4*nu+2*u,2)}, v{vKB} offset:{(32*k+4*u)*208+64+16*nu}")
proq, gq = gemm_lds([(11, L_WQ + 1024*t, L_WQ + 1024*t + 256, (XF + 4*t, ACV, t == 0, False)) for t in range(28)], AH)
for k in range(4):
    for nu in range(2):
        I(f"v_mfma_f32_16x16x32_bf16 {v(KD+4*nu,4)}, {v(KA+4*k,4)}, {v(KBv+8*k+4*nu,4)}, {'0' if k == 0 else v(KD+4*nu,4)}")
P.add(proq[:8])
for i in range(4): I(f"v_cvt_pk_bf16_f32 v{KD+8+i}, v{KD+2*i}, v{KD+2*i+1}")
I(f"buffer_store_dwordx4 {v(KD+8,4)}, v2, {WS}, s{sPST} offen sc1")
I(f"v_xor_b32 v10, v{KD+8}, v5")
I(f"buffer_store_short v10, v0, {WS}, s{sPCK} offen sc1")
if GATE & 1: P.add(flag_store(16))
P.add(proq[8:])
stamp("partial stored", "mp")
S = Sched(gq)
bgA = wo_l + rawA
nq = min(len(bgA), opt("nq", 16))
S.spread(bgA[:nq], 0, 28)
S.spread(set2b, 2, 18)
G0 = gate("g0", vPO, vPF)
if GATE & 1: S.at(opt("g0", 14), G0.load(0))
S.at(15 - AH, [WaitTag(["wq4", "wq5", "wq6"])] + mk("s_barrier"), 1.0)
P.add(S.emit())
stamp("q gemm done", "p")
G = 16; GC = 80; SA = 96
FP = Fetch("fp", [([f"s_add_u32 s{sCt}, s{sP}, {4608*T}\nbuffer_load_dwordx4 {v(G+4*T,4)}, v{vFPD}, {WS}, s{sCt} offen sc1\nbuffer_load_ushort v{GC+T}, v{vFPC}, {WS}, s{sCt} offen sc1"],
                   [G+4*T, GC+T]) for T in range(16)])
P.add(phi_pre(ACV, WPQ))
if GATE & 1: P.add(G0.check(0, 0))
I("s_barrier")
PQ = 208
smq = softmax(PK, TMP, PQ, True); f0 = opt("fp0", 80)
P.add(sprinkle(smq[:f0], bgA[nq:], 0, opt("as", 8)))
P.add(sprinkle(smq[f0:], [FP.load(T) for T in range(16)], 0, opt("fpstep", 3)))
stamp("softmax q done", "p")
w1_l = flat([dmag([12, 13, 14, 15], W1, sW1B, i*64*3584, sW1M, 16384*i, "w1", sDM) for i in range(7)])
def fpb(b):
    t = []
    for k, T in enumerate(range(4*b, 4*b+4)):
        t.append(f"v_bitop3_b32 v{10 if k == 0 else 9}, v{G+4*T}, v{GC+T}, v{142 if opt('trim', 1) else 5} {X3}" + ("" if k == 0 else "\nv_or_b32 v10, v10, v9"))
    return "\n".join(t) + "\nv_cmp_ne_u16 vcc, 0, v10"
RI = TAIL.I if (opt("ool", 15) & 1) else I
if not (opt("ool", 15) & 1): I("s_branch L_fp_go")
RI("L_fp_retry:" + ("\ns_add_u32 s80, s80, 1" if DIAG else ""), unc=True)
for b in range(4):
    RI(fpb(b) + f"\ns_cbranch_vccz L_fp_k{b}\n" + "\n".join(FP.pieces[T][0][0] for T in range(4*b, 4*b+4)) + f"\nL_fp_k{b}:", unc=True)
RI(GUARD, unc=True)
if (opt("ool", 15) & 1): RI("s_branch L_fp_go", unc=True)
I("L_fp_go:")
I(fpb(0) + "\ns_cbranch_vccnz L_fp_retry")
S = Sched([mk(f"{MF} {v(SA,16)}, a[220:223], {v(G+4*T,4)}, {'0' if T == 0 else v(SA,16)}") for T in range(16)])
for b in range(1, 4): S.spread(mk(fpb(b) + "\ns_cbranch_vccnz L_fp_retry"), 4*b - 3, 4*b)
S.spread([w1_l.pop(0) for _ in range(opt("nw1a", 2))], 12, 16)
P.add(S.emit())
I(f"v_add_u32 v9, {L_KVX}, v{133 if opt('trim', 1) else vFPD}")
for i in range(4): I(f"v_cvt_pk_bf16_f32 v{SA+8+i}, v{SA+2*i}, v{SA+2*i+1}")
I(f"ds_write_b128 v9, {v(SA+8,4)}\ns_waitcnt lgkmcnt(0)\ns_barrier")
stamp("kv summed", "mp")
KVA = 32; OD = 48
for q in range(7): I(f"ds_read_b64 {v(KVA+2*q,2)}, v{vKVX} offset:{512*q}")
P.add(w1_l.pop(0))
for s in range(3):
    I(f"{MF} {v(OD,16)}, {v(KVA+4*s,4)}, {v(PQ+4*s,4)}, {'0' if s == 0 else v(OD,16)}")
    if s == 1: P.add(w1_l.pop(0))
I(f"v_mfma_f32_32x32x8_bf16 {v(OD,16)}, {v(KVA+12,2)}, {v(PQ+12,2)}, {v(OD,16)}")
I(f"""s_lshl_b32 s{sP}, s{sTILE}, 15
s_lshr_b32 s{sB}, s{sW}, 1
s_lshl_b32 s{sB}, s{sB}, 14
s_add_u32 s{sP}, s{sP}, s{sB}
s_add_u32 s{sP}, s{sP}, {WS_O}
s_add_u32 s{sA}, s{sW1M}, {L_XCH}
v_add_u32 v132, s{sA}, v2
v_xor_b32 v133, 8192, v132
v_xor_b32 v9, 64, v{vWOR}
v_and_b32 v7, 31, v1
v_mul_u32_u24 v7, 896, v7
v_add_f32 v{OD+14}, 0x358637bd, v{OD+14}
v_rcp_f32 v{OD+14}, v{OD+14}
v_lshl_add_u32 v7, v3, 4, v7""")
for k in range(0, 14, 2): I(f"v_pk_mul_f32 {v(OD+k,2)}, {v(OD+k,2)}, {v(OD+14,2)} op_sel_hi:[1,0]")
for k in range(4): I(f"v_cvt_pk_bf16_f32 v{64+k}, v{OD+2*k}, v{OD+2*k+1}")
I(f"buffer_store_dwordx4 v[64:67], v2, {WS}, s{sOST} offen sc1")
for k in range(4, 7): I(f"v_cvt_pk_bf16_f32 v{64+k}, v{OD+2*k}, v{OD+2*k+1}")
I(f"""v_bitop3_b32 v71, v64, v5, s{sMASK} bitop3:0x28
v_and_b32 v6, s{sMASK}, v5
buffer_store_dwordx4 v[68:71], v2, {WS}, s{sOST} offen offset:1024 sc1""")
if GATE & 2: P.add(flag_store(7))
stamp("o stored", "mo")
P.wait("wo")
I(f"s_cmp_ge_u32 s{sRact}, 14\ns_cbranch_scc1 L_idle\ns_barrier")
wor = []
for s in range(16):
    hh, e = s >> 1, s & 1
    for k, av in ((0, vWOR), (1, 9)):
        for u in range(2):
            wor += mk(f"ds_read_b64_tr_b16 {a_(128+8*s+4*k+2*u,2)}, v{av} offset:{(28*hh+8*e+4*u)*128}")
XR = 224
xrr = []
for i in range(4): xrr += mk((f"v_xor_b32 v10, {16*i}, v{vXRR}\n" if i else "") + f"ds_read_b64 {v(XR+2*i,2)}, v{10 if i else vXRR}")
P.add(xrr)
G1 = gate("g1", vPO, vPF)
nb_ = min(opt("nw1b", 16), len(w1_l) - 8)
wor = sprinkle(wor, [w1_l.pop(0) for _ in range(nb_)], 0, opt("w1bs", 4))
if GATE & 2: wor = sprinkle(wor, [G1.load(0)], opt("g1", 40), 1)
P.add(wor)
OB = 16
FO = Fetch("fo", [([f"s_add_u32 s{sCt}, s{sP}, {2048*hh}\nbuffer_load_dwordx4 {v(OB+8*hh,4)}, v2, {WS}, s{sCt} offen sc1\nbuffer_load_dwordx4 {v(OB+8*hh+4,4)}, v2, {WS}, s{sCt} offen offset:1024 sc1"],
                   [OB+8*hh, OB+8*hh+7]) for hh in range(8)], masked=True, nre=opt('reo', 2))
stamp("pre o fetch", "o")
AO, AT = 80, 96
set3 = mk(f"""s_mul_i32 s{sSCR}, s{sW}, 12288
s_mul_i32 s{sBIG}, s{sW}, 28672
v_add_u32 v131, s{sBIG}, v2
s_lshl_b32 s{sB}, s{sC}, 1
s_lshr_b32 s{sD}, s{sW}, 1
s_add_u32 s{sB}, s{sB}, s{sD}
s_mul_i32 s{sA}, s{sTILE}, 14
s_add_u32 s{sB}, s{sB}, s{sA}
s_mul_i32 s{sPST}, s{sB}, 2432
s_add_u32 s{sPST}, s{sPST}, {WS_H}
s_lshr_b32 s48, s{sW}, 1
s_nop 0
v_bfe_u32 v9, v1, 2, 2
v_lshl_add_u32 v240, v3, 2, v9
v_lshlrev_b32 v254, 7, v240
v_lshlrev_b32 v240, 8, v240
v_xor_b32 v9, s{sW}, v9
v_lshl_add_u32 v240, v9, 6, v240
v_bfe_u32 v9, v1, 4, 1
v_lshlrev_b32 v9, 5, v9
v_lshl_add_u32 v9, v8, 3, v9
v_add_u32 v240, v240, v9
v_add_u32 v254, v254, v9
v_bfe_u32 v9, v1, 3, 1
v_xor_b32 v9, s48, v9
v_lshl_add_u32 v254, v9, 6, v254
s_add_u32 s{sSCR}, s{sSCR}, {L_SCR}
v_add_u32 v252, s{sBIG}, v254
v_xor_b32 v253, 64, v252
v_add_u32 v254, s{sSCR}, v254
v_add_u32 v134, s{sSCR}, v2
v_xor_b32 v255, 64, v254
v_xor_b32 v241, 64, v240
v_xor_b32 v242, 128, v240
v_xor_b32 v243, 192, v240""") + flat([mk(f"v_add_u32 v{244+m}, 57344, v{240+m}") for m in range(4)])
pre2 = []
for i in range(8): pre2 += mk(f"v_lshlrev_b32 v{112+2*i}, 16, v{XR+i}\nv_and_b32 v{113+2*i}, s{sHIM}, v{XR+i}")
for s in range(1, 16, 2): pre2 += mk(f"v_accvgpr_write_b32 a{128+8*s+3}, 0\nv_accvgpr_write_b32 a{128+8*s+7}, 0")
if GATE & 2:
    P.add(pre2); P.add(G1.check(0, 0))
    stamp("gate1", "o")
    for hh in range(8): P.add(FO.load(hh))
else:
    P.add(pre2[16:]); P.add(set3)
    I("s_waitcnt lgkmcnt(0)\ns_barrier")
    P.add(sprinkle(flat(flat([w2rd(j) for j in UAW[:NT1]])), [w1_l.pop(0) for _ in range(min(len(w1_l), opt("nw1s", 4)))], 0, 8))
    stamp("shadow done", "o")
    P.add(sprinkle(pre2[:16], [FO.load(hh) for hh in range(8)], 0, 2))
I("s_waitcnt lgkmcnt(0)\ns_barrier")
stamp("fo issued", "o")
g2 = []
for s in range(16):
    for k, acc in ((1, AT), (0, AO)):
        c = ("0" if k else v(112,16)) if s == 0 else v(acc,16)
        g2.append(mk(f"{MF} {v(acc,16)}, {a_(128+8*s+4*k,4)}, {v(OB+4*s,4)}, {c}"))

P.add(FO.check(0, 7))
stamp("fo0", "o")
S = Sched(g2)
for hh in range(1, 8): S.spread(FO.checkc(hh, 7), 4*hh - 3, 4*hh)
S.spread(w1_l + [raw.pop(0) for _ in range(min(len(raw), opt("rawb", 8)))], 0, 32)
P.add(S.emit())
stamp("p2 gemm done", "o")
for i in range(4): I(f"ds_write_b128 v132, {v(AT+4*i,4)} offset:{1024*i}")
I("v_mov_b32 v112, 0\nv_mov_b32 v113, 0\ns_waitcnt lgkmcnt(0)\ns_barrier")
for i in range(4): I(f"ds_read_b128 {v(AT+4*i,4)}, v133 offset:{1024*i}")
HR = XR
for k in range(0, 8, 2): I(f"v_pk_add_f32 {v(AO+k,2)}, {v(AO+k,2)}, {v(AT+k,2)}")
for i in range(4): I(f"v_cvt_pk_bf16_f32 v{HR+i}, v{AO+2*i}, v{AO+2*i+1}")
I(f"buffer_store_dwordx4 {v(HR,4)}, v2, {WS}, s{sPST} offen sc1")
for k in range(8, 16, 2): I(f"v_pk_add_f32 {v(AO+k,2)}, {v(AO+k,2)}, {v(AT+k,2)}")
for i in range(4, 8): I(f"v_cvt_pk_bf16_f32 v{HR+i}, v{AO+2*i}, v{AO+2*i+1}")
I(f"buffer_store_dwordx4 {v(HR+4,4)}, v2, {WS}, s{sPST} offen offset:1024 sc1")
for i in range(8): I(f"v_dot2c_f32_bf16 v112, s{sONES}, v{HR+i}\nv_dot2c_f32_bf16 v113, v{HR+i}, v{HR+i}")
I(f"""v_bitop3_b32 v10, v{HR}, v{HR+4}, v5 {X3}
v_permlane32_swap_b32 v112, v113
v_add_f32 v112, v112, v113
buffer_store_dword v112, v4, {WS}, s{sPST} offen offset:2048 sc1
v_xor_b32 v113, v10, v112
buffer_store_short v113, v0, {WS}, s{sPST} offen offset:2304 sc1""")
def selft(sreg, nl): return mk(f"s_mov_b64 exec, {(1 << nl) - 1}\nbuffer_load_dword v135, v134, {WS}, s{sreg} offen sc1\ns_mov_b64 exec, -1")
SELF = opt("self", 0)
if SELF & 1: P.add(selft(sPST, 20))
if GATE & 4: P.add(flag_store(14))
stamp("h stored", "moh")
HB = 16; ST = 192
ACC = [144, 160, 176, 192]; AUG = 232
set4 = mk(f"""s_lshl_b32 s{sB}, s{sT3}, 2
s_add_u32 s{sB}, s{sB}, s{sW}
s_mul_i32 s{sP}, s{sB}, {14*2432}
s_add_u32 s{sP}, s{sP}, {WS_H}
s_mul_i32 s{sA}, s{sB}, 56
s_lshl_b32 s{sD}, s{sR}, 2
s_add_u32 s{sA}, s{sA}, s{sD}
s_mul_i32 s{sQ}, s{sA}, 2176
s_add_u32 s{sQ}, s{sQ}, {WS_H1}
v_lshlrev_b32 v13, 3, v1
s_lshl_b32 s{sA}, s{sW}, 9
s_add_u32 s{sA}, s{sA}, {L_AUG}
v_add_u32 v13, s{sA}, v13
v_mov_b32 v222, 0""")
FH = Fetch("fh", [([f"s_add_u32 s{sCt}, s{sP}, {2432*p}\nbuffer_load_dwordx4 {v(HB+8*p,4)}, v2, {WS}, s{sCt} offen sc1\nbuffer_load_dwordx4 {v(HB+8*p+4,4)}, v2, {WS}, s{sCt} offen offset:1024 sc1\n"
                    f"buffer_load_dword v{ST+2*p}, v4, {WS}, s{sCt} offen offset:2048 sc1\nbuffer_load_ushort v{ST+2*p+1}, v0, {WS}, s{sCt} offen offset:2304 sc1"],
                   [HB+8*p, HB+8*p+4, ST+2*p, ST+2*p+1]) for p in range(14)], nre=opt('reh', 2))
for i in range(4): I(f"v_mov_b32 v{AUG+i}, s{sONES}")
P.wait("w1"); I("s_barrier")
stamp("w1 landed", "h")
if opt("zz", 0): I(f"s_sleep {opt('zz', 0)}")
def w1a(t, k): return (240 + k + (4 if t >= 14 else 0), (t % 14) * 4096, (t % 14) * 4096 + 2048)
st3 = [w1a(t, 0) + ((AUG, ACC[2], t == 0, True),) for t in range(28)]
TWO = opt("two", 1); N1 = 2 if TWO else 3
for t in range(28):
    for k in range(N1): st3.append(w1a(t, k) + ((HB + 4*t, ACC[k], t == 0, False),))
for t in range(28):
    for k in range(N1, 4): st3.append(w1a(t, k) + ((HB + 4*t, ACC[k], t == 0, False),))
pro, g3 = gemm_lds(st3, AH)
P.add(pro)
S3 = Sched(g3)
S3.spread(set4, 0, 8)
S3.spread(raw + w2dma(UD[0]) + w2dma(UD[1]), 0, opt("c0e", 20)); raw = []
NH0 = opt("nh0", 4); H0 = opt("h0", 26)
G2 = gate("g2", vPO, vPF)
if GATE & 4:
    S3.at(opt("g2", 12), G2.load(0), 0.9)
    S3.at(27, G2.check(0, 0) + stampi("gate2", "h") + flat([FH.load(p) for p in range(NH0)]), 0.5)
else: S3.spread(flat([FH.loadc(p) for p in range(NH0)]), H0, 27)
cs = ACC[2]
csx = mk(f"""v_cvt_pk_bf16_f32 v{AUG}, v{cs}, v{cs}
v_lshlrev_b32 v{AUG+1}, 16, v{AUG}
v_sub_f32 v{AUG+1}, v{cs}, v{AUG+1}
v_cvt_pk_bf16_f32 v{AUG}, v{cs}, v{AUG+1}
v_and_b32 v{AUG+1}, 0xffff, v{AUG}
v_cndmask_b32 v{AUG}, v{AUG}, 0, {sHI}
v_cndmask_b32 v{AUG+1}, v{AUG+1}, 0, {sHI}
ds_write_b64 v13, {v(AUG,2)}""")
S3.at(27, stampi("colsum done", "h") + csx + FH.check(0, NH0 - 1) + stampi("fh0", "h"), 1.0)
B0 = 28
for p in range(14):
    b = B0 + 2*N1*p
    if p + NH0 < 14:
        for k_, c_ in enumerate(FH.loadc(p + NH0)): S3.at(b + ((0, 2, 1, 3) if TWO else (0, 2, 4, 4))[k_], c_, 0.2)
    S3.at(b, mk(f"v_add_f32 v222, v222, v{ST+2*p}"), 0.0)
    if p + 1 < 14: S3.spread(FH.checkc(p + 1, min(13, p + NH0 - 1)), b + 1, b + 2*N1)
    if p in (3, 7, 11): S3.at(b + 2*N1 - 1, stampi(f"fh{p+1}", "h"), 1.0)
S3.at(B0 + 14, mk("s_barrier") + flat([mk(f"v_xor_b32 v9, {512*k}, v13\nds_read_b64 {v(AUG+2*k,2)}, v9") for k in range(1, 4)]), 0.0)
mid = mk(f"""v_mul_f32 v220, {fhex(1/448)}, v222
v_mov_b32 v221, v220
s_nop 0
v_permlane32_swap_b32 v220, v221
v_fma_f32 v221, -v220, v220, v221
v_max_f32 v221, 0, v221
v_add_f32 v221, 0x3727c5ac, v221
v_rsq_f32 v251, v221
v_cvt_pk_bf16_f32 v222, -v220, -v220
v_lshlrev_b32 v9, 16, v222
v_sub_f32 v9, -v220, v9
v_cvt_pk_bf16_f32 v223, v9, 0
v_mul_f32 v250, v221, v251
v_mul_f32 v251, 0xbfb8aa3b, v251
v_cndmask_b32 v222, v222, 0, {sHI}
v_cndmask_b32 v223, v223, 0, {sHI}""")
S3.spread(mid, *((B0 + 53, B0 + 59) if TWO else (B0 + 79, B0 + 84)))
def aug(k): return mk(f"v_mfma_f32_32x32x8_bf16 {v(ACC[k],16)}, {v(AUG+2*k,2)}, v[222:223], {v(ACC[k],16)}")
SLT = 132
def silu(k, pk):
    q = Prog(); a = ACC[k]; t = 208
    q.I(f"s_xor_b32 s50, s{sW}, {k}\ns_mul_i32 s50, s50, 2176\ns_add_u32 s50, s50, s{sQ}")
    for half in range(2):
        b = a + 8 * half
        if pk:
            for j in range(0, 8, 2): q.I(f"v_pk_mul_f32 {v(t+j,2)}, {v(b+j,2)}, v[250:251] op_sel:[0,1] op_sel_hi:[1,1]")
        else:
            for j in range(8): q.I(f"v_mul_f32 v{t+j}, v{b+j}, v251")
        for j in range(8): q.I(f"v_exp_f32 v{t+j}, v{t+j}")
        if pk:
            for j in range(0, 8, 2): q.I(f"v_pk_fma_f32 {v(t+j,2)}, {v(t+j,2)}, v[250:251], v[250:251] op_sel_hi:[1,0,0]")
        else:
            for j in range(8): q.I(f"v_fma_f32 v{t+j}, v{t+j}, v250, v250")
        for j in range(8): q.I(f"v_rcp_f32 v{t+j}, v{t+j}")
        if pk:
            for j in range(0, 8, 2): q.I(f"v_pk_mul_f32 {v(b+j,2)}, {v(b+j,2)}, {v(t+j,2)}")
        else:
            for j in range(8): q.I(f"v_mul_f32 v{b+j}, v{b+j}, v{t+j}")
        for j in range(4): q.I(f"v_cvt_pk_bf16_f32 v{b+j}, v{b+2*j}, v{b+2*j+1}")
        q.I(f"buffer_store_dwordx4 {v(b,4)}, v2, {WS}, s50 offen offset:{1024*half} sc1")
    q.I(f"v_bitop3_b32 v216, v5, v{a}, v{a+8} {X3}")
    q.I(f"buffer_store_short v216, v0, {WS}, s50 offen offset:2048 sc1")
    return q.items + ([selft(50, 18)] if SELF & 2 and not pk else [])
E0 = B0 + 28*N1
assert not raw
if TWO:
    S3.spread(flat([w2rd(j) for j in UD + UR + UAW[NT1:]]), B0 + 8, B0 + 42)
    S3.at(B0 + 34, mk("s_barrier"), 0.0)
    S3.spread(flat([w2dma(j) for j in UE]), B0 + 48, E0 + opt("wde", 12))
else:
    S3.spread(flat([w2rd(j) for j in UD + UR + UAW[NT1:]]), B0 + 22, B0 + 58)
    S3.at(B0 + 44, mk("s_barrier"), 0.0)
    S3.spread(flat([w2dma(j) for j in UE]), B0 + 64, E0)
B4 = 16
CKR = [240, 241, 244, 245, 248, 249, 217, 218, 219, 130, 242, 246, 243, 247]
C4 = [[a_(224,16), a_(240,16)], [v(ACC[0],16), v(ACC[1],16)]]
set5 = mk(f"""s_mul_i32 s{sA}, s{sTILE}, 56
s_xor_b32 s{sB}, s{sTILE}, 1
s_mul_i32 s{sB}, s{sB}, 56
s_add_u32 s51, s{sB}, s44
s_add_u32 s52, s{sA}, s44
s_add_u32 s53, s{sB}, s45
s_add_u32 s54, s{sA}, s45""")
for k in range(4):
    set5 += mk(f"s_mul_i32 s{51+k}, s{51+k}, 2176\ns_add_u32 s{51+k}, s{51+k}, {WS_H1}")
S3.spread(set5, B0 + 42, B0 + 52)
def piece4(n):
    st, i = n // 7, n % 7; r = B4 + 8 * (n % 14); c = CKR[n % 14]
    return ([f"s_add_u32 s{sCt}, s{51+st}, {8*2176*i}\nbuffer_load_dwordx4 {v(r,4)}, v2, {WS}, s{sCt} offen sc1\nbuffer_load_dwordx4 {v(r+4,4)}, v2, {WS}, s{sCt} offen offset:1024 sc1\n"
             f"buffer_load_ushort v{c}, v0, {WS}, s{sCt} offen offset:2048 sc1"], [r, r+4, c])
F4 = Fetch("f4", [piece4(n) for n in range(28)], nre=opt("re4", 3))
ND = opt("nd", 5)
rawl = flat([w2raw(j) for j in UL])
nr0 = min(len(rawl), opt("nr0", 4))
if TWO:
    S3.at(E0 - 1, stampi("p3 pass1 done", "mh"), 1.0)
    g3[E0 + 3] = aug(0) + g3[E0 + 3]; g3[E0 + 4] = aug(1) + g3[E0 + 4]
    S3.spread(silu(0, False) + [stampi("silu0 done", "e")], E0 + 5, E0 + opt("s0e", 21))
    S3.spread(silu(1, False), E0 + opt("s0e", 21), E0 + opt("s1e", 44))
    S3.spread(rawl, E0 + opt("wde", 12), E0 + opt("rle", 36))
    DEEP = opt("deep", 0)
    if DEEP:
        rng = [(opt("a0", -18), opt("b0", 4)), (opt("a1", 6), opt("b1", 24)), (opt("a2", 26), opt("b2", 50)), (opt("a3", 50), opt("b3", 78))]
        f4pos = []
        for n in range(28):
            a, b = rng[n // 7]
            for k_, c_ in enumerate(F4.loadc(n)):
                pos = a + (b - a) * ((n % 7) + (0, 0.45, 0.9)[k_]) / 7
                lo = (4*n + 4 - 56) if n < 14 else 4*(n - 14) + 4
                pos = max(pos, lo + 0.01*k_); assert pos < 4*n - 3 or n == 0, (n, pos)
                f4pos.append((pos, c_))
        for i_ in range(1, len(f4pos)): assert f4pos[i_][0] >= f4pos[i_-1][0], i_
        import math
        for pos, c_ in f4pos:
            if pos < 0: S3.at(E0 + 56 + math.floor(pos), c_, pos - math.floor(pos))
    else: S3.spread(flat([F4.loadc(n) for n in range(ND)]), E0 + opt("f4s", 52), E0 + 56)
    P.add(S3.emit())
    P.add(aug(2) + aug(3))
else:
    S3.at(E0 - 1, stampi("p3 pass1 done", "mh") + aug(0) + aug(1) + aug(2) + sprinkle(silu(0, True), rawl[:nr0], 3, 12) + stampi("silu0 done", "e"), 1.0)
    S3.spread(silu(1, False), E0, E0 + 26)
    S3.spread(rawl[nr0:], E0, E0 + 14)
    S3.spread(flat([F4.loadc(n) for n in range(ND)]), E0 + opt("f4s", 16), E0 + 28)
    P.add(S3.emit())
    P.add(aug(3))
I("s_barrier")
stamp("p3 gemm done", "me")
g4 = []
for n in range(28):
    st, i = n // 7, n % 7; hf, par = st >> 1, st & 1
    for e in range(2):
        for mu in range(2):
            zero = hf == 0 and i == 0 and e == 0 and not (par == 1 and mu == 0)
            g4.append(mk(f"{MF} {C4[par][mu]}, {a_(UA(7*hf+i)+8*e+4*mu,4)}, {v(B4+8*(n%14)+4*e,4)}, {'0' if zero else C4[par][mu]}"))
P.add(F4.check(0, ND - 1))
S = Sched(g4)
for n in range(28):
    if n + ND < 28 and not (TWO and DEEP):
        for k_, c_ in enumerate(F4.loadc(n + ND)): S.at(4*n + (0, 2, 1)[k_], c_, 0.2)
    if n + 1 < 28: S.spread(F4.checkc(n + 1, min(27, n + ND)), 4*n + 2, 4*n + 4)
    if n in (6, 13, 20): S.at(4*n + 3, stampi(f"stage{n//7} done", "e"), 1.0)
unp = []
for i in range(8): unp += mk(f"v_lshlrev_b32 v{ACC[0]+2*i}, 16, v{HR+i}\nv_and_b32 v{ACC[0]+1+2*i}, s{sHIM}, v{HR+i}")
if TWO and DEEP:
    for pos, c_ in f4pos:
        if pos >= 0: S.at(int(pos), c_, pos - int(pos))
S2E, S3E = opt("s2e", 16), opt("s3e", 40)
S.spread(silu(2, False), 0, S2E)
S.spread(unp, 22, 27)
S.spread(silu(3, False), S2E, S3E)
S.spread(flat([w2rd(j) for j in UE if j < 7]), 0, 14)
S.spread(flat([w2dma(j) for j in UP]), opt("w2a", 2), opt("w2b", 44))
for j in [x for x in UE + UL + UP if x >= 7]: S.spread(w2rd(j), 44 + 5*(j-7), 49 + 5*(j-7))
S.at(82, mk(f"""s_lshl_b32 s{sA}, s{sW}, 14
v_add_u32 v13, s{sA}, v2
v_xor_b32 v9, 16384, v13
v_xor_b32 v12, 32768, v13
v_xor_b32 v14, 49152, v13
s_waitcnt lgkmcnt(0)
s_barrier"""))
S.spread([mk(f"ds_write_b128 v{9 if mu == 0 else 14}, {a_(224+16*mu+4*i,4)} offset:{4096*(2*mu+1)+1024*i}") for mu in range(2) for i in range(4)], 87, 99)
S.at(100, mk("s_waitcnt lgkmcnt(0)\ns_barrier"), 0.0)
S.spread([mk(f"ds_read_b128 {v(ACC[2+mu]+4*i,4)}, v13 offset:{4096*(2*mu+1)+1024*i}") for mu in range(2) for i in range(4)], 100, 104)
S.spread([mk(f"v_add_f32 v{ACC[2]+k}, v{ACC[2]+k}, v{ACC[3]+k}") for k in range(16)], 107, 112)
P.add(S.emit())
stamp("p4 gemm done", "me")
for i in range(4): I(f"ds_write_b128 v12, {v(ACC[1]+4*i,4)} offset:{8192+1024*i}")
if opt("cout", 0):
    I(f"""v_lshlrev_b32 v16, 3, v3
v_sub_u32 v16, v{vXRR}, v16
v_lshlrev_b32 v17, 4, v3
v_xor_b32 v16, v16, v17
v_xor_b32 v17, 32, v16
s_add_u32 s{sA}, s{sXO}, {L_XCH}
v_add_u32 v18, s{sA}, v2""")
I("s_waitcnt lgkmcnt(0)\ns_barrier")
for i in range(4): I(f"ds_read_b128 {v(ACC[3]+4*i,4)}, v13 offset:{8192+1024*i}")
for k in range(0, 16, 2): I(f"v_pk_add_f32 {v(ACC[0]+k,2)}, {v(ACC[0]+k,2)}, {v(ACC[2]+k,2)}")
for hf in range(2):
    b = ACC[0] + 8*hf
    for k in range(0, 8, 2): I(f"v_pk_add_f32 {v(b+k,2)}, {v(b+k,2)}, {v(ACC[3]+8*hf+k,2)}")
    for i in range(4): I(f"v_cvt_pk_bf16_f32 v{96+4*hf+i}, v{b+2*i}, v{b+2*i+1}")
    if not opt("cout", 0):
        I(f"v_permlane32_swap_b32 v{96+4*hf}, v{98+4*hf}\nv_permlane32_swap_b32 v{97+4*hf}, v{99+4*hf}\nbuffer_store_dwordx4 {v(96+4*hf,4)}, v7, {OUT}, s{sOUT} offen offset:{32*hf} {OPT.get('ofl', '')}")
    else:
        I(f"v_permlane32_swap_b32 v{96+4*hf}, v{98+4*hf}\nv_permlane32_swap_b32 v{97+4*hf}, v{99+4*hf}\nds_write_b128 v{16+hf}, {v(96+4*hf,4)}")
if opt("cout", 0):
    I("s_waitcnt lgkmcnt(0)\ns_barrier")
    for i in range(2): I(f"ds_read_b128 {v(104+4*i,4)}, v18 offset:{1024*i}")
    for i in range(2): I(f"buffer_store_dwordx4 {v(104+4*i,4)}, v{vXRD0+i}, {OUT}, s{sXRB} offen offset:{1024*i} {OPT.get('ofl', '')}")
stamp("end", "mpohez")
I(f"""s_cmp_lg_u32 s2, 0
s_cbranch_scc1 L_ex0
v_mov_b32 v9, 0""")
I(f"buffer_store_dword v5, v9, {WS}, 0 offen sc1", unc=True)
I("L_ex0:")
if opt("enc", 0):
    mode = opt("enc", 0)
    if mode <= 4:
        I(f"s_bfe_u32 s{sA}, s80, {hex(0x80000 | (8*(mode-1)))}\ns_min_u32 s{sA}, s{sA}, 1\ns_mul_i32 s{sA}, s{sA}, 2000", unc=True)
    else:
        I(f"s_waitcnt lgkmcnt(0)\ns_sub_u32 s{sA}, s{sSTAMP+2}, s78\ns_mul_i32 s{sA}, s{sA}, 4", unc=True)
    I(f"""s_memrealtime s[40:41]
s_waitcnt lgkmcnt(0)
L_enc:
s_memrealtime s[42:43]
s_waitcnt lgkmcnt(0)
s_sub_u32 s42, s42, s40
s_cmp_lt_u32 s42, s{sA}
s_cbranch_scc1 L_enc
s_branch L_end""", unc=True)
if opt("dbg", 0):
    I(f"""s_cmp_lg_u32 s{sW}, 0
s_cbranch_scc1 L_end
s_load_dwordx2 s[40:41], s[0:1], 64
s_mov_b32 s42, 256
s_mov_b32 s43, 0x20000
s_mov_b64 exec, 1
v_mov_b32 v9, 0
s_waitcnt lgkmcnt(0)""", unc=True)
    for k in range(nstamp[0]):
        I(f"s_sub_u32 s{sA}, s{sSTAMP+2*k}, s78\nv_mov_b32 v10, s{sA}\nbuffer_atomic_umax v10, v9, s[40:43], 0 offen offset:{4*k}\ns_nop 1", unc=True)
    I(f"""v_mov_b32 v10, s78
buffer_atomic_umax v10, v9, s[40:43], 0 offen offset:32
s_not_b32 s{sA}, s78
v_mov_b32 v11, s{sA}
buffer_atomic_umax v11, v9, s[40:43], 0 offen offset:36
v_mov_b32 v12, s{sSTAMP+2*(nstamp[0]-1)}
buffer_atomic_umax v12, v9, s[40:43], 0 offen offset:40
v_mov_b32 v13, s80
buffer_atomic_add v13, v9, s[40:43], 0 offen offset:44
s_branch L_end""", unc=True)
I("L_exit:")
if DIAG and not opt("dbg", 0):
    I(f"s_cmp_lg_u32 s{sW}, {opt('dw', 0)}\ns_cbranch_scc1 L_end\ns_lshl_b32 s{sA}, s2, 7\ns_add_u32 s{sA}, s{sA}, {WS_DIAG}\nv_mov_b32 v9, 0", unc=True)
    for k in range(nstamp[0]):
        I(f"s_waitcnt lgkmcnt(0)\nv_mov_b32 v10, s{sSTAMP+2*k}\nbuffer_store_dword v10, v9, {WS}, s{sA} offen offset:{4*k}", unc=True)
    if SEL == ["z"]: I(f"v_mov_b32 v10, s78\nbuffer_store_dword v10, v9, {WS}, s{sA} offen offset:120", unc=True)
    I(f"v_mov_b32 v10, s80\nbuffer_store_dword v10, v9, {WS}, s{sA} offen offset:124", unc=True)
I("L_end:\ns_endpgm")
I(f"""L_idle:
s_and_b32 s{sA}, s{sT2}, 1
s_lshl_b32 s{sA}, s{sA}, 1
s_add_u32 s{sA}, s{sA}, s{sRact}
s_sub_u32 s{sA}, s{sA}, 14
s_lshl_b32 s{sA}, s{sA}, 2
s_add_u32 s{sA}, s{sA}, s{sW}
s_lshl_b32 s{sA}, s{sA}, 13
v_lshlrev_b32 v9, 7, v1
s_lshr_b32 s{sD}, s{sT2}, 1
s_mul_i32 s{sD}, s{sD}, {8*56*2176}
s_add_u32 s{sD}, s{sD}, {WS_H1}
s_add_u32 s{sD}, s{sD}, s{sA}
s_mov_b32 s{sB}, {opt("idle2", 0)}
s_cmp_eq_u32 s{sB}, 0
s_cbranch_scc1 L_idle3
L_idle2:
buffer_load_dword v11, v9, {WS}, s{sD} offen {OPT.get("i2f", "")}
s_add_u32 s{sD}, s{sD}, {16*8192}
s_sub_u32 s{sB}, s{sB}, 1
s_cmp_lg_u32 s{sB}, 0
s_cbranch_scc1 L_idle2
L_idle3:
s_mov_b32 s{sB}, {opt("idle", 0)}
s_cmp_eq_u32 s{sB}, 0
s_cbranch_scc1 L_exit
L_idle1:
buffer_load_dword v11, v9, {W2}, s{sA} offen
s_add_u32 s{sA}, s{sA}, {16*8192}
s_sub_u32 s{sB}, s{sB}, 1
s_cmp_lg_u32 s{sB}, 0
s_cbranch_scc1 L_idle1
s_branch L_exit""", unc=True)
P.add(TAIL.items)

for it in P.items:
    if isinstance(it, Ins) and it.text.startswith('buffer_load_dword v142,'): it.defs = []
PL = opt("plain", 0)
for it in P.items:
    if isinstance(it, Ins) and it.op.startswith("buffer_store") and "sc1" in it.text:
        ish1 = " s50 " in it.text or " s49 " in it.text
        ish = ("v[224:227]" in it.text or "v[228:231]" in it.text or "v112," in it.text or "v113," in it.text)
        if (ish and PL & 1) or (ish1 and PL & 2): it.text = it.text.replace(" sc1", OPT.get("pfl", ""))
if opt("pld", 0):
    c = 0
    for it in P.items:
        if isinstance(it, Ins) and it.op.startswith("buffer_load") and "sc1" in it.text and " s56 " in it.text and not it.uncounted:
            c += 1
            kind = 0 if c <= 48 else 1 if c <= 104 else 2
            if opt("pld", 0) & kind: it.text = it.text.replace(" sc1", OPT.get("lfl", ""))
if opt("nochk", 0):
    new = []; seen_end = False
    for it in P.items:
        if isinstance(it, Ins):
            if opt("nochk", 0) == 2 and not seen_end:
                if it.text.startswith("L_exit"): seen_end = True
                elif it.uncounted or it.op in ("s_cbranch_vccz", "s_branch"): continue
            if it.op == "s_cbranch_vccz" and not it.uncounted: it = Ins(it.text.replace("s_cbranch_vccz", "s_branch"))
            elif it.op == "s_cbranch_vccnz" and not it.uncounted: continue
            t = it.text
            if it.op.startswith("buffer_store") and "sc1" in t and not it.uncounted:
                kind = 8 if " s50 " in t else 4 if ("v[224" in t or "v[228" in t or "v112," in t or "v113," in t) else 2 if f" s{sOST} " in t else 1
                if opt("nost", 0) & kind: continue
            if it.op.startswith("buffer_load") and "sc1" in t and " s56 " in t and not it.uncounted:
                cnt_ld = globals().setdefault("_c", [0]); cnt_ld[0] += 1; c = cnt_ld[0]
                kind = 1 if c <= 32 else 2 if c <= 48 else 4 if c <= 104 else 8
                if opt("nold", 0) & kind: continue
        new.append(it)
    P.items = new
body, items = render(P.items)
if opt("align", 1):
    import subprocess, re as _re
    open("_al.s", "w").write('.amdgcn_target "amdgcn-amd-amdhsa--gfx950"\n.text\n' + body)
    subprocess.run(["clang", "-x", "assembler", "-target", "amdgcn-amd-amdhsa", "-mcpu=gfx950", "-c", "_al.s", "-o", "_al.o"], check=True)
    dis = subprocess.run(["llvm-objdump", "-d", "--mcpu=gfx950", "_al.o"], capture_output=True, text=True).stdout
    sizes = [4 * len(m.group(1).split()) for m in _re.finditer(r"// [0-9A-F]{12}: ((?:[0-9A-F]{8} ?)+)", dis)]
    real = [i for i in items if i.cls not in ('label', 'dir')]
    assert len(sizes) == len(real), (len(sizes), len(real))
    sz = {id(i): n for i, n in zip(real, sizes)}
    new = []; off = 0; nal = 0; MINRUN = opt("minrun", 6)
    for k, it in enumerate(items):
        if id(it) in sz and sz[id(it)] == 8 and off % 8 == 4 and not it.uncounted:
            run = 0
            for j in items[k:k + MINRUN + 4]:
                if id(j) not in sz: continue
                if sz[id(j)] != 8 or j.cls == 'mfma': break
                run += 1
            if run >= MINRUN:
                p = new[-1] if new else None
                if p is not None and p.cls == 'valu' and sz.get(id(p)) == 4 and not p.op.startswith(('v_permlane', 'v_dot2c', 'v_readfirst', 'v_accvgpr', 'v_cmp', 'v_cndmask')) and not p.op.endswith('_e64'):
                    p.text = p.text.replace(p.op, p.op + "_e64", 1)
                else: new.append(Ins("s_nop 0"))
                off += 4; nal += 1
        new.append(it); off += sz.get(id(it), 0)
    items = new
    body = '\n'.join(('' if i.cls == 'label' else '  ') + i.text for i in items) + '\n'
    print("alignment fixes:", nal, "code bytes", off)
hdr = open("cdna_kernels/" + NAME + ".s.ref").read().split("; Override launch")[0]
out = hdr + f"""; @launch grid=(256,1,1) block=(256,1,1) lds={LDS_SIZE}
.amdgcn_target "amdgcn-amd-amdhsa--gfx950"
.text
.globl {NAME}_kernel
.p2align 8
.type {NAME}_kernel,@function
{NAME}_kernel:
{body}.fill 2048, 4, 0xbf810000
.section .rodata,"a"
.p2align 6
.amdhsa_kernel {NAME}_kernel
  .amdhsa_next_free_vgpr 512
  .amdhsa_next_free_sgpr 102
  .amdhsa_accum_offset 256
  .amdhsa_group_segment_fixed_size 0
  .amdhsa_kernarg_size 80
  .amdhsa_user_sgpr_count 2
  .amdhsa_user_sgpr_kernarg_segment_ptr 1
  .amdhsa_system_sgpr_workgroup_id_x 1
.end_amdhsa_kernel
"""
open(sys.argv[1], "w").write(out)
n = sum(1 for i in items if i.cls not in ('label', 'dir'))
nu_ = sum(1 for i in items if i.cls not in ('label', 'dir') and i.uncounted)
print("instructions:", n, "(slow path", nu_, ") nops:", sum(1 for i in items if i.op == 's_nop'), "waits:", sum(1 for i in items if i.op == 's_waitcnt'), "stamps", nstamp[0])
```

```python
import sys, struct
from asmlib import *

NAME = "sequential_preLN__linear_kernel_hedgehog__dense_activation_silu__prompt"
DIAG = int(sys.argv[2]) if len(sys.argv) > 2 else 0
OPT = dict(a.split('=') for a in sys.argv[3:])
def opt(k, d): return int(OPT[k], 0) if k in OPT else d

WS_PART = 0x40000
WS_O    = 0x240000
WS_H    = 0x440000
WS_H1   = 0x680000
WS_DIAG = 0xE80000
WS_FLG  = 0xF00000
WS_SIZE = 0xF80000
XW = 28672
L_WV, L_WQ, L_WK, L_WO = 0, 28672, 57344, 86016
L_IMG = L_WK
L_KVX = 143360
L_XCH = 147456
L_SCR = 114688
L_AUG = 161792
LDS_SIZE = 163840
sW, sT, sH, sT2, sR = 3, 4, 5, 6, 7
X, WQKV, WPHI, WO, W1, W2, OUT, WS = [f"s[{i}:{i+3}]" for i in range(8, 40, 4)]
sKX, sKW = 40, 47
sHQ, sHIM = 54, 55
sRET = "s[56:57]"
sSPIN, sP, sU, sC, sMASK, sQ = 58, 59, 60, 61, 62, 63
sHI = "s[64:65]"
sLOG = "s[66:67]"
sONES, sTILE = 68, 69
sA, sB, sCt, sD = 70, 71, 72, 73
sRact, sXO = 74, 75
sWB, sWQ = 76, 77
sLAST, sFLAG, sWM, sPST, sPCK, sOST, sXRB, sOUT = 80, 81, 82, 83, 84, 85, 86, 87
sSTAMP = 88

def v(a, n=1): return f"v{a}" if n == 1 else f"v[{a}:{a+n-1}]"
def a_(a, n=1): return f"a{a}" if n == 1 else f"a[{a}:{a+n-1}]"
def fhex(x): return hex(struct.unpack('<I', struct.pack('<f', x))[0])
def flat(l): return sum(l, [])
P = Prog(); I = P.I
TAIL = Prog()
nstamp = [0]
SEL = OPT.get("st", "m").split(",")
PICK = [int(x) for x in OPT["pick"].split(",")] if "pick" in OPT else None
allst = [0]
def stampi(name, grp="m"):
    idx = allst[0]; allst[0] += 1
    if opt("jit", 0) and idx in (3, 7, 9, 11, 13, 17, 19, 21, 25, 26, 27, 28, 29):
        return mk(f"""s_memtime s[88:89]
s_waitcnt lgkmcnt(0)
s_mul_i32 s88, s88, 0x9E3779B1
s_lshr_b32 s88, s88, {opt("jit", 0)}
L_jit{idx}:
s_sleep 8
s_sub_u32 s88, s88, 1
s_cmp_gt_i32 s88, 0
s_cbranch_scc1 L_jit{idx}""")
    if not DIAG: return []
    if PICK is not None:
        if name != "start" and idx not in PICK:
            print(f"   - {idx}: {name}"); return []
    elif name != "start" and not (set(grp) & set(SEL)): return []
    k = nstamp[0]; nstamp[0] += 1
    assert k < 7
    print(f"stamp {k}: [{idx}] {name}")
    op = "s_memtime" if DIAG == 2 else "s_memrealtime"
    return mk(f"{op} s[{sSTAMP+2*k}:{sSTAMP+2*k+1}]")
def stamp(name, grp="m"): P.add(stampi(name, grp))
X3 = "bitop3:0x96"

def chk_code(regs, masked):
    r = list(regs)
    if masked: return f"v_bitop3_b32 v10, v{r[0]}, v{r[1]}, s{sMASK} bitop3:0x28\nv_cmp_ne_u32 vcc, v10, v6"
    if len(r) == 1: return f"v_cmp_ne_u32 vcc, v{r[0]}, v5"
    if len(r) == 2: t = f"v_xor_b32 v10, v{r[0]}, v{r[1]}"
    else:
        t = f"v_bitop3_b32 v10, v{r[0]}, v{r[1]}, v{r[2]} {X3}"
        if len(r) == 4: t += f"\nv_xor_b32 v10, v10, v{r[3]}"
    return t + "\nv_cmp_ne_u16 vcc, v10, v5"

sFL, sDM = 56, 57
GUARD = f"s_add_u32 s{sSPIN}, s{sSPIN}, 1\ns_cmp_gt_u32 s{sSPIN}, 0x40000\ns_cbranch_scc1 L_end\ns_waitcnt vmcnt(0)"
class Fetch:
    def __init__(self, name, pieces, masked=False, nre=1):
        self.name, self.pieces, self.masked, self.nre = name, pieces, masked, nre
    def loadc(self, i):
        it = flat([mk(c.replace(f"s{sCt}", f"s{sFL}")) for c in self.pieces[i][0]])
        out = []; cur = []
        for x in it:
            cur.append(x)
            if x.cls == 'vmem': out.append(cur); cur = []
        return out
    def load(self, i): return flat(self.loadc(i))
    def stub(self, i, last):
        n = self.name
        wgt = {"fo": 0x100, "fh": 0x10000, "f4": 0x1000000}.get(n, 1)
        rel = (f"s_add_u32 s80, s80, {wgt}\n" if DIAG else "") + "\n".join(c for j in range(i, min(last, i + self.nre - 1) + 1) for c in self.pieces[j][0])
        if opt("ool", 15) & {"fo": 2, "fh": 4, "f4": 8}[n]:
            TAIL.I(f"L_{n}_r{i}:\n" + rel + "\n" + GUARD + "\n" + chk_code(self.pieces[i][1], self.masked) + f"\ns_cbranch_vccnz L_{n}_r{i}\ns_branch L_{n}_ok{i}", unc=True)
            return mk(f"s_cbranch_vccnz L_{n}_r{i}\nL_{n}_ok{i}:")
        return mk(f"s_cbranch_vccz L_{n}_ok{i}\nL_{n}_r{i}:") + \
               mk(rel + "\n" + GUARD + "\n" + chk_code(self.pieces[i][1], self.masked) + f"\ns_cbranch_vccnz L_{n}_r{i}", unc=True) + mk(f"L_{n}_ok{i}:")
    def checkc(self, i, last):
        return [[x] for x in mk(chk_code(self.pieces[i][1], self.masked))] + [self.stub(i, last)]
    def check(self, i, last): return flat(self.checkc(i, last))

sFS, sFP = 80, 81
vL512, vPO, vPF = 0, 142, 143
def flag_store(nl): return mk(f"s_mov_b64 exec, {(1 << nl) - 1}\nbuffer_store_dword v5, v{vL512}, {WS}, s{sFS} offen sc1\ns_mov_b64 exec, -1")
def gate(name, vo, vf): return Fetch(name, [([f"buffer_load_dword v{vf}, v{vo}, {WS}, s{sFP} offen sc1"], [vf])])
GATE = opt("gate", 0)

def cost(it):
    if isinstance(it, WaitTag): return 4
    if it.cls in ('label', 'dir') or it.uncounted: return 0
    if it.op.startswith(TRANS) or 'permlane' in it.op: return 8
    if it.op.startswith('ds_write_b128'): return 28
    if it.cls == 'mfma': return 8
    return 4.5
class Sched:
    def __init__(self, groups):
        self.groups = groups; self.gap = [[] for _ in groups]; self.seq = 0
    def at(self, g, items, frac=0.5):
        self.seq += 1; self.gap[g].append((frac, self.seq, list(items)))
    def spread(self, chunks, a, b):
        chunks = [c if isinstance(c, list) else [c] for c in chunks]
        tot = sum(cost(i) for c in chunks for i in c) or 1; acc = 0
        for c in chunks:
            pos = a + (b - a) * acc / tot
            self.at(int(pos), c, pos - int(pos))
            acc += sum(cost(i) for i in c)
    def emit(self):
        out = []
        for g, gp in zip(self.groups, self.gap):
            out += g
            for _, _, c in sorted(gp, key=lambda x: (x[0], x[1])): out += c
        return out
def sprinkle(items, groups, start, step):
    out = []; groups = list(groups); nxt = start
    for i, it in enumerate(items):
        if groups and i == nxt: out += groups.pop(0); nxt += step
        out.append(it)
    for g in groups: out += g
    return out

def softmax(p, t, o, pk):
    q = Prog(); J = q.I
    m, n = t + 14, t + 15; r0, r1 = t + 16, t + 17
    J(f"v_max3_f32 v{m}, v{p}, v{p+1}, v{p+2}\nv_max3_f32 v{n}, -v{p}, -v{p+1}, -v{p+2}")
    for k in range(3, 13, 2):
        J(f"v_max3_f32 v{m}, v{m}, v{p+k}, v{p+k+1}\nv_max3_f32 v{n}, v{n}, -v{p+k}, -v{p+k+1}")
    J(f"""v_max_f32 v{m}, v{m}, v{p+13}
v_max_f32 v{n}, v{n}, -v{p+13}
v_permlane32_swap_b32 v{m}, v{n}
v_max_f32 v{m}, v{m}, v{n}
v_mul_f32 v{m}, v253, v{m}
v_mov_b32 v{n}, v{m}
v_permlane32_swap_b32 v{m}, v{n}""")
    if pk:
        for k in range(0, 14, 2):
            J(f"v_pk_fma_f32 {v(t+k,2)}, {v(p+k,2)}, v[252:253], {v(m,2)} op_sel_hi:[1,0,0]")
            J(f"v_pk_fma_f32 {v(p+k,2)}, {v(p+k,2)}, v[252:253], {v(m,2)} op_sel:[0,1,1] op_sel_hi:[1,1,1]")
    if pk == 2:
        for k in range(14):
            J(f"v_exp_f32 v{t+k}, v{t+k}\nv_exp_f32 v{p+k}, v{p+k}")
            if k >= 2:
                a0 = f"v{t}" if k == 2 else f"v{r0}"; a1 = f"v{p}" if k == 2 else f"v{r1}"
                J(f"v_add_f32 v{r0}, {a0}, v{t+k-1}\nv_add_f32 v{r1}, {a1}, v{p+k-1}")
        J(f"v_add_f32 v{m}, v{r0}, v{t+13}\nv_add_f32 v{n}, v{r1}, v{p+13}")
    elif pk:
        for k in range(14): J(f"v_exp_f32 v{t+k}, v{t+k}")
        for k in range(14): J(f"v_exp_f32 v{p+k}, v{p+k}")
        J(f"v_pk_add_f32 {v(m,2)}, {v(t,2)}, {v(t+2,2)}\nv_pk_add_f32 {v(r0,2)}, {v(p,2)}, {v(p+2,2)}")
        for k in range(4, 14, 2):
            J(f"v_pk_add_f32 {v(m,2)}, {v(m,2)}, {v(t+k,2)}\nv_pk_add_f32 {v(r0,2)}, {v(r0,2)}, {v(p+k,2)}")
        J(f"v_add_f32 v{m}, v{m}, v{n}\nv_add_f32 v{n}, v{r0}, v{r1}")
    else:
        for k in range(14):
            J(f"v_fma_f32 v{t+k}, v{p+k}, v252, v{m}\nv_fma_f32 v{p+k}, v{p+k}, v253, v{n}\nv_exp_f32 v{t+k}, v{t+k}\nv_exp_f32 v{p+k}, v{p+k}")
            if k >= 2:
                a0 = f"v{t}" if k == 2 else f"v{r0}"; a1 = f"v{p}" if k == 2 else f"v{r1}"
                J(f"v_add_f32 v{r0}, {a0}, v{t+k-1}\nv_add_f32 v{r1}, {a1}, v{p+k-1}")
        J(f"v_add_f32 v{m}, v{r0}, v{t+13}\nv_add_f32 v{n}, v{r1}, v{p+13}")
    J(f"""v_permlane32_swap_b32 v{m}, v{n}
v_add_f32 v{m}, v{m}, v{n}
v_rcp_f32 v{m}, v{m}
v_mov_b32 v{n}, v{m}
v_permlane32_swap_b32 v{m}, v{n}""")
    if pk == 1:
        for k in range(0, 14, 2):
            J(f"v_pk_mul_f32 {v(t+k,2)}, {v(t+k,2)}, {v(m,2)} op_sel_hi:[1,0]")
            J(f"v_pk_mul_f32 {v(p+k,2)}, {v(p+k,2)}, {v(m,2)} op_sel:[0,1] op_sel_hi:[1,1]")
    else:
        for k in range(14): J(f"v_mul_f32 v{t+k}, v{t+k}, v{m}\nv_mul_f32 v{p+k}, v{p+k}, v{n}")
    for k in range(7): J(f"v_cvt_pk_bf16_f32 v{o+k}, v{t+2*k}, v{t+2*k+1}")
    for k in range(7): J(f"v_cvt_pk_bf16_f32 v{o+7+k}, v{p+2*k}, v{p+2*k+1}")
    return q.items

def dmag(vaddrs, srd, sbase, sadd, mbase, madd, tag, sreg=None):
    sr = sCt if sreg is None else sreg
    ch = [mk(f"buffer_load_dwordx4 v{a}, {srd}, s{sr} offen offset:{1024*i} lds", tag=tag) for i, a in enumerate(vaddrs)]
    ch[0] = mk(f"s_add_u32 m0, s{mbase}, {madd}\ns_add_u32 s{sr}, s{sbase}, {sadd}") + ch[0]
    return ch

MF = "v_mfma_f32_32x32x16_bf16"
RINGA, NRING = 224, 8
def gemm_lds(steps, ahead=6):
    def rd(i):
        av, o1, o2 = steps[i][:3]; r = RINGA + 4 * (i % NRING)
        return mk(f"ds_read_b64_tr_b16 {a_(r,2)}, v{av} offset:{o1}\nds_read_b64_tr_b16 {a_(r+2,2)}, v{av} offset:{o2}")
    rds = [rd(i) for i in range(len(steps))]
    groups = []
    for i, st in enumerate(steps):
        r = RINGA + 4 * (i % NRING); b, acc, first, swap = st[3]
        A, B = a_(r, 4), v(b, 4)
        if swap: A, B = B, A
        g = mk(f"{MF} {v(acc,16)}, {A}, {B}, {'0' if first else v(acc,16)}")
        if i % 2 == 0 and i + 1 < len(steps):
            r2 = RINGA + 4 * ((i + 1) % NRING); g[0].extra = [('a', r2 + x) for x in range(4)]
        groups.append(g + (rds[i + ahead] if i + ahead < len(steps) else []))
    return flat(rds[:ahead]), groups

FAST = opt('fast', 1)
LO = """s_load_dwordx2 s[12:13], s[0:1], 8
s_load_dwordx2 s[16:17], s[0:1], 16
s_load_dwordx2 s[20:21], s[0:1], 24
s_load_dwordx2 s[24:25], s[0:1], 40
s_load_dwordx2 s[28:29], s[0:1], 48
s_load_dwordx2 s[32:33], s[0:1], 56
s_load_dwordx2 s[36:37], s[0:1], 72
"""
CP = f"""v_lshlrev_b32 v3, 4, v1
v_lshl_add_u32 v3, v2, 6, v3
v_lshl_add_u32 v3, v2, 4, v3
v_add_u32 v3, s{sCt}, v3
v_lshlrev_b32 v3, 7, v3
s_and_b32 s76, s76, 0xffffff00
s_mov_b64 exec, 31
global_load_dword v236, v3, s[76:77]
s_mov_b64 exec, -1
"""
MAP1 = [f"""{"s_lshr_b32 s4, s70, 1" if opt("pair", 1) else "s_and_b32 s4, s70, 3"}
s_lshl_b32 s{sT}, s{sT}, 2
s_and_b32 s{sD}, s{sB}, 3
s_add_u32 s{sT}, s{sT}, s{sD}
{"s_and_b32 s59, s70, 1" if opt("pair", 1) else "s_lshr_b32 s59, s70, 2"}
s_lshl_b32 s{sH}, s{sP}, 3
s_lshr_b32 s{sD}, s{sB}, 2
s_add_u32 s{sH}, s{sH}, s{sD}
s_mul_i32 s{sP}, s{sT}, {opt("rt", 2)}
s_add_u32 s{sD}, s{sD}, s{sP}
s_mul_i32 s{sP}, s{sD}, 37
s_lshr_b32 s{sP}, s{sP}, 8
s_mul_i32 s{sP}, s{sP}, 7
s_sub_u32 s{sD}, s{sD}, s{sP}
s_lshl_b32 s{sKX}, s{sD}, 7
""",
f"""s_lshl_b32 s{sT}, s{sA}, 1
s_lshr_b32 s{sD}, s{sB}, 4
s_add_u32 s{sT}, s{sT}, s{sD}
s_mov_b32 s{sH}, s{sCt}
s_and_b32 s{sD}, s{sH}, 7
s_cmp_eq_u32 s{sD}, 7
s_cselect_b32 s{sD}, 3, s{sD}
s_lshl_b32 s{sKX}, s{sD}, 7
""",
f"""s_mov_b32 s{sT}, s{sCt}
s_lshl_b32 s{sH}, s{sA}, 1
s_lshr_b32 s{sD}, s{sB}, 4
s_add_u32 s{sH}, s{sH}, s{sD}
s_and_b32 s{sD}, s{sH}, 7
s_mul_i32 s{sD}, s{sD}, 3
s_mul_i32 s{sP}, s{sD}, 37
s_lshr_b32 s{sP}, s{sP}, 8
s_mul_i32 s{sP}, s{sP}, 7
s_sub_u32 s{sD}, s{sD}, s{sP}
s_lshl_b32 s{sKX}, s{sD}, 7
"""][opt("map1", 0)]
if DIAG: I("s_memrealtime s[78:79]")
I(f"""s_cmp_ge_u32 s2, 256
s_cbranch_scc1 L_end
s_load_dwordx2 s[8:9], s[0:1], 0
{LO if not FAST else ''}{"s_waitcnt lgkmcnt(0)" + chr(10) + "s_memrealtime s[88:89]" if opt("bare", 0) else ""}
s_getpc_b64 s[76:77]
v_and_b32 v1, 63, v0
v_lshrrev_b32 v2, 6, v0
s_and_b32 s{sA}, s2, 7
v_readfirstlane_b32 s{sW}, v2
s_lshr_b32 s{sB}, s2, 3
s_and_b32 s{sCt}, s{sB}, 15
{CP if FAST < 2 else ''}{MAP1}
s_mov_b32 s10, 1835008
s_mov_b32 s11, 0x20000
v_lshrrev_b32 v2, 3, v1
v_mul_u32_u24 v244, 896, v2
v_lshrrev_b32 v2, 4, v1
v_and_b32 v8, 7, v1
v_xor_b32 v2, v2, v8
v_lshl_add_u32 v244, v2, 4, v244
v_xor_b32 v245, 64, v244
v_add_u32 v245, {7168-1024}, v245
v_add_u32 v246, {2*(7168-1024)}, v244
v_add_u32 v247, {2*(7168-1024)}, v245
s_lshl_b32 s{sQ}, s{sT}, 2
s_add_u32 s{sQ}, s{sQ}, s{sW}
s_mul_i32 s{sQ}, s{sQ}, {32*896}
s_lshr_b32 s{sXO}, s{sW}, 1
s_add_u32 s{sXO}, s{sXO}, s{sW}
s_mul_i32 s{sXO}, s{sXO}, {XW}
s_waitcnt lgkmcnt(0)""")
st0 = stampi("start")
if not opt("bare", 0): P.add(st0)
def xdma(g): return flat(dmag([244, 245, 246, 247], X, sQ, f"s{sKX+g}", sXO, 4096*g, f"x{g}"))
P.add(xdma(0))
if FAST: I(LO)
if FAST == 2: I(f"v_lshrrev_b32 v2, 6, v0\ns_and_b32 s{sCt}, s{sB}, 15\n" + CP)
I(f"""s_mov_b32 s14, {0 if opt('abl',0)&8 else 1204224}
s_mov_b32 s15, 0x20000
v_and_b32 v8, 3, v1""")
def wtouch(mask16, dst):
    m = mask16 | (mask16 << 16)
    return mk(f"s_mov_b32 exec_lo, {hex(m)}\ns_mov_b32 exec_hi, {hex(m)}\nbuffer_load_dword v{dst}, v255, {WQKV}, 0 offen\ns_mov_b64 exec, -1")
def kxs(g): return mk(f"s_add_u32 s{sKX+g}, s{sKX+g-1}, 128\ns_cmp_ge_u32 s{sKX+g}, 896\ns_cselect_b32 s{sD}, 896, 0\ns_sub_u32 s{sKX+g}, s{sKX+g}, s{sD}")
NXE = opt("nxe", 2)
if opt("wtfirst", 1) and opt("wt0", 0): P.add(wtouch(opt("wt0", 0), 237))
for g in range(1, NXE): P.add(kxs(g) + xdma(g))
if not opt("wtfirst", 1) and opt("wt0", 0): P.add(wtouch(opt("wt0", 0), 237))
if FAST: I("s_waitcnt lgkmcnt(0)")
if opt("wsoff", 0): I(f"s_add_u32 s36, s36, {opt('wsoff', 0)}\ns_addc_u32 s37, s37, 0")
I(f"""s_mov_b32 s38, {WS_SIZE}
s_mov_b32 s39, 0x20000
s_mov_b32 s18, 25088
s_mov_b32 s19, 0x20000
s_mov_b32 s22, {0 if opt('abl',0)&4 else 401408}
s_mov_b32 s23, 0x20000
s_xor_b32 s{sHQ}, s{sH}, 1
v_mov_b32 v11, 0
v_lshlrev_b32 v6, 7, v1""")
TM = opt("tm", 0)
sm_ld = mk(f"""s_mov_b64 exec, 1
buffer_load_dword v5, v6, {WS}, 0 offen sc1""")
if opt("two_", 1): sm_ld += mk(f"""s_lshl_b32 s56, s2, 2
s_add_u32 s56, s56, s{sW}
s_lshl_b32 s56, s56, 9
s_mov_b64 exec, 15
buffer_load_dword v238, v6, {WO}, s56 offen""")
if opt("twp", 0): sm_ld += mk(f"""s_and_b32 s{sCt}, s{sH}, 14
s_mul_i32 s{sCt}, s{sCt}, 1568
s_mul_i32 s56, s{sW}, 896
s_add_u32 s{sCt}, s{sCt}, s56
s_mov_b64 exec, 127
buffer_load_dword v239, v6, {WPHI}, s{sCt} offen""")
sm_ld += mk("s_mov_b64 exec, -1")
if TM == 0: P.add(sm_ld)
for g in range(NXE, 7): P.add(kxs(g))
I(f"""s_lshl_b32 s{sT2}, s{sA}, 1
s_lshr_b32 s{sD}, s{sB}, 4
s_add_u32 s{sT2}, s{sT2}, s{sD}
s_and_b32 s{sRact}, s{sB}, 15
s_min_u32 s{sR}, s{sRact}, 13
s_mov_b32 s26, {0 if opt('abl',0)&1 else 1605632}
s_mov_b32 s27, 0x20000
s_mov_b32 s30, {0 if opt('abl',0)&2 else 1605632}
s_mov_b32 s31, 0x20000
s_mov_b32 s34, 1835008
s_mov_b32 s35, 0x20000
s_mov_b32 s64, 0
s_mov_b32 s65, -1
s_mov_b32 s{sONES}, 0x3f803f80
s_mov_b32 s{sMASK}, 0xbfffbfff
s_mov_b32 s{sHIM}, 0xffff0000
s_mov_b32 s{sSPIN}, 0
s_mov_b32 s80, 0
s_cmp_ge_u32 s{sR}, 7
s_cselect_b32 s{sU}, 1, 0
s_mul_i32 s{sA}, s{sU}, 7
s_sub_u32 s{sC}, s{sR}, s{sA}""")
sT3 = 67
if opt("map3", 1):
    I(f"""s_and_b32 s{sA}, s{sT2}, 12
s_and_b32 s{sD}, s{sT2}, 1
s_lshl_b32 s{sD}, s{sD}, 1
s_add_u32 s{sA}, s{sA}, s{sD}
s_add_u32 s{sT3}, s{sA}, s{sU}
s_bfe_u32 s{sA}, s{sT2}, 0x10001
s_mul_i32 s{sA}, s{sA}, 7
s_add_u32 s{sR}, s{sA}, s{sC}""")
else: I(f"s_mov_b32 s{sT3}, s{sT2}")
for g in range(7): I(f"s_mul_i32 s{sKW+g}, s{sKX+g}, {172032//128}")
I(f"""s_mul_i32 s{sWB}, s{sH}, 56
s_mul_i32 s{sD}, s{sW}, 43008
s_add_u32 s{sWB}, s{sWB}, s{sD}
s_mul_i32 s{sWQ}, s{sHQ}, 56
s_add_u32 s{sWQ}, s{sWQ}, s{sD}
s_add_u32 s{sWB}, s{sWB}, 896
s_lshl_b32 s{sWM}, s{sW}, 10
s_mul_i32 s66, s{sH}, 1568
s_mul_i32 s81, s{sHQ}, 1568""")
_m0 = len(P.items)
I(f"""s_lshl_b32 s{sA}, s{sH}, 4
s_add_u32 s{sA}, s{sA}, s{sT}
s_mul_i32 s{sA}, s{sA}, 4608
s_add_u32 s{sA}, s{sA}, {WS_PART}
s_add_u32 s{sPST}, s{sA}, s{sWM}
s_lshl_b32 s{sD}, s{sW}, 7
s_add_u32 s{sA}, s{sA}, s{sD}
s_add_u32 s{sPCK}, s{sA}, 4096
s_lshl_b32 s{sA}, s{sT}, 2
s_add_u32 s{sA}, s{sA}, s{sW}
s_lshl_b32 s{sA}, s{sA}, 15
s_lshl_b32 s{sB}, s{sHQ}, 11
s_add_u32 s{sA}, s{sA}, s{sB}
s_add_u32 s{sOST}, s{sA}, {WS_O}
s_lshl_b32 s{sA}, s{sT2}, 2
s_lshl_b32 s{sB}, s{sU}, 1
s_add_u32 s{sA}, s{sA}, s{sB}
s_and_b32 s{sB}, s{sW}, 1
s_add_u32 s{sTILE}, s{sA}, s{sB}
s_mul_i32 s{sA}, s{sA}, {32*896}
s_lshl_b32 s{sB}, s{sC}, 7
s_add_u32 s{sA}, s{sA}, s{sB}
s_mul_i32 s{sD}, s{sW}, {16*896}
s_add_u32 s{sXRB}, s{sA}, s{sD}
s_mul_i32 s{sA}, s{sTILE}, {32*896}
s_add_u32 s{sA}, s{sA}, s{sB}
s_lshr_b32 s{sB}, s{sW}, 1
s_lshl_b32 s{sB}, s{sB}, 6
s_add_u32 s{sOUT}, s{sA}, s{sB}
s_mul_i32 s{sP}, s{sHQ}, {16*4608}
s_add_u32 s{sP}, s{sP}, {WS_PART}""")
deferred = P.items[_m0:]; del P.items[_m0:]
WPK, WPQ, WPT = 192, 200, 208
vWPA, vWPB, vKVX, vIMW, vKA, vKB, vFPD, vFPC, vWO0, vWO1, vXRD0, vXRD1, vXRR, vWOR = range(128, 142)
I(f"""v_lshrrev_b32 v3, 5, v1
v_lshlrev_b32 v2, 4, v1
v_lshlrev_b32 v4, 2, v1
v_bfe_u32 v11, v1, 3, 2
v_lshl_add_u32 v11, v11, 2, v8
v_bfe_u32 v12, v1, 2, 1
v_mul_u32_u24 v12, 14, v12
v_min_u32 v13, 13, v11
v_add_u32 v13, v13, v12
v_lshlrev_b32 v13, 1, v13
v_mul_u32_u24 v14, 224, v3
v_add_u32 v{vWPA}, v13, v14
v_lshl_add_u32 v{vWPB}, v3, 20, v{vWPA}
v_add_u32 v12, v12, v11
v_cmp_gt_u32 vcc, 14, v11
v_lshrrev_b32 v7, 2, v1
v_mul_u32_u24 v7, 2688, v7
v_cndmask_b32 v12, 28, v12, vcc
v_and_b32 v13, 15, v12
v_lshlrev_b32 v13, 4, v13
v_lshrrev_b32 v12, 4, v12
v_lshl_add_u32 v13, v12, 3, v13
v_lshl_add_u32 v13, v3, 8, v13
v_add_u32 v{vKVX}, {L_KVX}, v13
v_lshlrev_b32 v11, 4, v8
v_min_u32 v11, 40, v11
v_add_u32 v7, v7, v11
v_and_b32 v9, 31, v1
v_lshlrev_b32 v240, 7, v9
v_bfe_u32 v11, v1, 1, 3
v_xor_b32 v11, v11, v3
v_lshl_add_u32 v240, v11, 4, v240
v_add_u32 v240, s{sXO}, v240
v_xor_b32 v241, 32, v240
v_xor_b32 v242, 64, v240
v_xor_b32 v243, 96, v240
v_mov_b32 v250, 0
v_mov_b32 v251, 0""")
_m0 = len(P.items)
I(f"""s_lshl_b32 s{sA}, s{sW}, 5
v_add_u32 v10, s{sA}, v9
v_mul_u32_u24 v10, 208, v10
v_mul_u32_u24 v11, 96, v3
v_add_u32 v{vIMW}, v10, v11
v_lshrrev_b32 v10, 4, v1
v_bfe_u32 v15, v1, 2, 2
v_lshl_add_u32 v10, v10, 3, v15
v_mul_u32_u24 v10, 208, v10
v_and_b32 v11, 1, v1
v_mul_u32_u24 v11, 96, v11
v_add_u32 v10, v10, v11
v_bfe_u32 v11, v1, 1, 1
v_lshl_add_u32 v10, v11, 3, v10
v_add_u32 v{vKB}, {L_IMG}, v10
s_lshl_b32 s{sA}, s{sW}, 4
v_add_u32 v{vKA}, s{sA}, v{vKB}
v_add_u32 v{vFPD}, s{sWM}, v2
s_lshl_b32 s{sD}, s{sW}, 7
s_add_u32 s{sD}, s{sD}, 4096
v_lshlrev_b32 v0, 1, v1
v_add_u32 v{vFPC}, s{sD}, v0
v_lshrrev_b32 v12, 3, v1
v_mul_u32_u24 v14, 896, v12
v_and_b32 v13, 7, v1
v_xor_b32 v12, v12, v13
v_lshl_add_u32 v{vXRD0}, v12, 4, v14
v_add_u32 v{vXRD1}, {7168-1024}, v{vXRD0}
v_bfe_u32 v12, v1, 4, 1
v_lshlrev_b32 v11, 2, v12
v_xor_b32 v11, v11, v13
v_lshl_add_u32 v{vWO0}, v11, 4, v14
v_add_u32 v{vWO1}, {7168-1024}, v{vWO0}
s_and_b32 s{sA}, s{sW}, 1
s_lshl_b32 s{sA}, s{sA}, 12
s_add_u32 s{sA}, s{sA}, {L_XCH}
v_lshlrev_b32 v10, 7, v9
v_lshl_add_u32 v10, v3, 3, v10
v_add_u32 v10, s{sA}, v10
s_lshr_b32 s{sA}, s{sW}, 1
s_lshl_b32 s{sB}, s{sA}, 2
v_xor_b32 v13, s{sB}, v13
v_lshl_add_u32 v{vXRR}, v13, 4, v10
v_mad_u32_u24 v10, v3, 14, v15
v_lshlrev_b32 v10, 7, v10
v_bfe_u32 v13, v1, 3, 1
v_xor_b32 v13, v13, v3
v_xor_b32 v13, s{sA}, v13
v_lshl_add_u32 v10, v13, 6, v10
v_lshl_add_u32 v10, v12, 5, v10
v_lshl_add_u32 v10, v8, 3, v10
s_mul_i32 s{sA}, s{sA}, {8*28*128}
s_add_u32 s{sA}, s{sA}, {L_WO}
v_add_u32 v{vWOR}, s{sA}, v10
v_lshl_add_u32 v11, v3, 3, v15
v_lshlrev_b32 v11, 6, v11
v_lshl_add_u32 v12, v12, 2, v8
v_cmp_lt_u32 vcc, 5, v12
v_xor_b32 v13, 1, v12
v_cndmask_b32 v12, v12, v13, vcc
v_lshl_add_u32 v11, v12, 3, v11
v_add_u32 v13, {L_WK}, v11""")
I(f"""v_bfe_u32 v10, v1, 2, 1
v_bfe_u32 v14, v1, 4, 1
v_lshl_add_u32 v10, v14, 1, v10
v_cmp_eq_u32 vcc, v10, v3
v_and_b32 v10, 1, v1
v_lshlrev_b32 v10, 4, v10
v_mov_b32 v14, 0x3f80
v_lshlrev_b32 v10, v10, v14
v_cndmask_b32 v10, 0, v10, vcc
v_bfe_u32 v14, v1, 3, 1
v_bfe_u32 v15, v1, 1, 1
v_lshl_add_u32 v14, v14, 1, v15""")
for q in range(4): I(f"v_cmp_eq_u32 vcc, {q}, v14\nv_cndmask_b32 v15, 0, v10, vcc\nv_accvgpr_write_b32 a{220+q}, v15")
I("v_add_u32 v9, 896, v7")
deferred += P.items[_m0:]; del P.items[_m0:]
NDEF0 = opt("ndef0", 70)
P.add(deferred[:NDEF0]); deferred = deferred[NDEF0:]
L2N = 0
if L2N:
    I(f"""s_mov_b32 s{sCt}, 0x60504020
s_cmp_ge_u32 s{sH}, 8
s_cselect_b32 s{sCt}, 0x53020100, s{sCt}
s_and_b32 s{sD}, s{sH}, 7
s_lshl_b32 s{sD}, s{sD}, 2
s_lshr_b32 s{sCt}, s{sCt}, s{sD}
s_and_b32 s{sCt}, s{sCt}, 15
s_and_b32 s{sD}, s{sT}, 3
s_mul_i32 s{sD}, s{sD}, 7
s_add_u32 s{sCt}, s{sCt}, s{sD}
s_lshl_b32 s{sCt}, s{sCt}, 2
s_add_u32 s{sCt}, s{sCt}, s{sW}
s_mul_i32 s66, s{sCt}, 14336
s_add_u32 s81, s66, 57344
s_lshl_b32 s{sD}, s{sH}, 1
s_lshr_b32 s{sD}, 0xa111444a, s{sD}
s_and_b32 s{sD}, s{sD}, 3
s_cmp_ge_u32 s{sD}, 1
s_cselect_b32 s66, s66, 0x10000000
s_cmp_ge_u32 s{sD}, 2
s_cselect_b32 s81, s81, 0x10000000
v_add_u32 v143, 7168, v6""")
def l2n(k): return mk(f"s_mov_b32 exec_hi, 0xffffff\nbuffer_load_dword v{142}, v{6 if k % 2 == 0 else 143}, {W1}, s{66 if k < 2 else 81} offen\ns_mov_b32 exec_hi, -1")
stamp("setup done", "p")
def wphi(dst, tmp, so):
    q = []
    for t in range(2):
        for j in range(8):
            d = 16 * t + 8 * (j >> 2) + (j & 3)
            av = vWPB if (t == 1 and j >= 4) else vWPA
            r = (dst if j % 2 == 0 else tmp) + 4 * t + j // 2
            op = "buffer_load_short_d16" if j % 2 == 0 else "buffer_load_short_d16_hi"
            q += mk(f"{op} v{r}, v{av}, {WPHI}, s{so} offen offset:{d*56}")
    return q
def wkdma(g): return flat(dmag([7], WQKV, sWB, f"s{sKW+g}", sWM, L_WK + 4096*g, f"wk{g}"))
def wvdma(g): return flat(dmag([9], WQKV, sWB, f"s{sKW+g}", sWM, L_WV + 4096*g, f"wv{g}"))
def wqdma(g): return flat(dmag([7], WQKV, sWQ, f"s{sKW+g}", sWM, L_WQ + 4096*g, f"wq{g}"))
if opt("fake", 0):
    I(f"""v_mov_b32 v7, v2
v_add_u32 v9, 24576, v2
s_mul_i32 s{sWB}, s{sH}, 73728
s_add_u32 s{sWB}, s{sWB}, s{sWM}
s_mul_i32 s{sWQ}, s{sHQ}, 73728
s_add_u32 s{sWQ}, s{sWQ}, s{sWM}
s_add_u32 s{sWQ}, s{sWQ}, 45056""")
    for g in range(7): I(f"s_lshl_b32 s{sKW+g}, s{sKX+g}, 5")
XF = 16
NX0 = opt("nx0", 3)
if opt("wt1", 0): P.add(wtouch(opt("wt1", 0), 249))
WPP = opt("wpp", 1)
if WPP == 1: P.add(wphi(WPK, WPT, 66) + wphi(WPQ, WPT+8, 81))
for g in range(NXE, NX0): P.add(xdma(g))
if WPP == 2: P.add(wphi(WPK, WPT, 66) + wphi(WPQ, WPT+8, 81))
pend = [xdma(g) for g in range(NX0, 7)]
wkl = [wkdma(g) for g in range(7)]
if TM and TM < NX0: P.add(sm_ld)
elif TM: pend[TM - NX0] = pend[TM - NX0] + sm_ld
if opt("wt2", 0): pend[-1] = pend[-1] + wtouch(opt("wt2", 0), 248)
pend.append(wkl.pop(0) + (wphi(WPK, WPT, 66) if not WPP else []))
pend.append(wkl.pop(0) + (wphi(WPQ, WPT+8, 81) if not WPP else []))
while len(pend) < 7: pend.append(wkl.pop(0))
def xrd(g): return flat([mk(f"ds_read_b128 {v(XF+16*g+4*e,4)}, v{240+e} offset:{4096*g}") for e in range(4)])
P.wait("x0"); P.add(xrd(0))
for g in range(7):
    if pend: P.add(pend.pop(0))
    if g + 1 < 7: P.wait(f"x{g+1}"); P.add(xrd(g + 1))
    for i in range(16):
        r = XF + 16*g + i
        I(f"v_dot2c_f32_bf16 v250, s{sONES}, v{r}\nv_dot2c_f32_bf16 v251, v{r}, v{r}")
    nd_ = -(-len(deferred) // max(1, opt("ndi", 6) - g)) if g < opt("ndi", 6) else len(deferred)
    P.add(deferred[:nd_]); deferred = deferred[nd_:]
    if g == 0: stamp("x0 done", "p")
for x_ in pend: P.add(x_)
if opt("tp", 0) == 2:
    I(f"""s_mul_i32 s{sCt}, s2, {52*128}
s_mul_i32 s{sD}, s{sW}, {13*128}
s_add_u32 s{sCt}, s{sCt}, s{sD}
s_mov_b64 exec, 0x1fff
buffer_load_dword v254, v6, {W2}, s{sCt} offen
buffer_load_dword v255, v6, {W1}, s{sCt} offen
s_mov_b64 exec, -1""")
stamp("x stats done", "mp")
I(f"""v_permlane32_swap_b32 v250, v251
v_readfirstlane_b32 s{sA}, v5
s_nop 0
v_add_f32 v250, v250, v251
v_mul_f32 v250, {fhex(-1/448)}, v250
v_mov_b32 v251, v250
s_or_b32 s{sA}, s{sA}, 1
s_mul_i32 s{sA}, s{sA}, 0x9E3779B5
v_mov_b32 v5, s{sA}
s_mov_b32 s{sA}, 0x3f80
v_permlane32_swap_b32 v250, v251
s_mov_b32 s{sB}, 0x3f800000""")
fin = mk(f"""v_fma_f32 v251, -v250, v250, -v251
v_max_f32 v251, 0, v251
v_add_f32 v251, 0x3727c5ac, v251
v_rsq_f32 v251, v251
s_lshl_b32 s{sQ}, s{sC}, 7
s_mul_i32 s{sD}, s{sW}, {16*896}
v_mul_f32 v252, 0x3fb8aa3b, v251
v_mul_f32 v253, 0xbfb8aa3b, v251
s_add_u32 s{sQ}, s{sQ}, s{sD}
s_lshl_b32 s{sXO}, s{sW}, 11""")
if opt("noid", 1): fin = [mk(f"s_cmp_ge_u32 s{sRact}, 14\ns_cselect_b32 s22, 0, s22")] + fin
ACK = 144; ACV = 160; PK = 176; IMG = 208; TMP = 232
def norm(t):
    q = Prog(); tb = TMP + 8 * (t & 1)
    for i in range(4):
        r = XF + 4 * t + i
        q.I(f"v_dot2_f32_bf16 v{tb+2*i}, v{r}, s{sA}, v250\nv_dot2_f32_bf16 v{tb+2*i+1}, v{r}, s{sB}, v250")
    return q.items
def normc(t):
    tb = TMP + 8 * (t & 1)
    return flat([mk(f"v_cvt_pk_bf16_f32 v{XF+4*t+i}, v{tb+2*i}, v{tb+2*i+1}") for i in range(4)])
def l2t(srd, k, dst):
    return mk(f"""s_lshr_b32 s{sCt}, s2, 3
s_lshl_b32 s{sCt}, s{sCt}, 2
s_add_u32 s{sCt}, s{sCt}, s{sW}
s_mul_i32 s{sCt}, s{sCt}, {98*128}
s_mov_b32 exec_hi, 0x1ffff
s_add_u32 s{sCt}, s{sCt}, {k*49*128}
buffer_load_dword v{dst}, v6, {srd}, s{sCt} offen
s_mov_b32 exec_hi, -1""")
L2A, L2B = opt("l2a", -1), opt("l2b", -1)
touch = mk(f"""s_mul_i32 s{sCt}, s2, {52*128}
s_mul_i32 s56, s{sW}, {13*128}
s_add_u32 s{sCt}, s{sCt}, s56
s_mov_b64 exec, 0x1fff
buffer_load_dword v255, v6, {W1}, s{sCt} offen
buffer_load_dword v254, v6, {W2}, s{sCt} offen
s_mov_b64 exec, -1""")
TP = opt('tp', 0)
ns = norm(0)
for t in range(1, 28): ns += norm(t) + normc(t - 1)
ns += normc(27)
NBAR = opt("nbar", 100)
wvl = [wvdma(k) for k in range(7)]
if opt("loop2", 0):
    I("s_mov_b32 s80, 0\nL_lp2:\ns_mov_b32 s101, s100\ns_memtime s[78:79]\ns_waitcnt lgkmcnt(0)\ns_mov_b32 s99, s78")
    P.add([Ins(x.text) for x in ns])
    I("s_memtime s[78:79]\ns_waitcnt lgkmcnt(0)\ns_sub_u32 s100, s78, s99\ns_add_u32 s100, s100, s88\ns_add_u32 s80, s80, 1\ns_cmp_lt_u32 s80, 2\ns_cbranch_scc1 L_lp2")
    nstamp[0] = 14
P.add(sprinkle(ns[:NBAR], wkl, 0, opt("wkstep", 30)))
if opt("touch", 1) and TP == 1: P.add(touch)
I("s_barrier")
NWV0 = opt("nwv0", 4)
w0_ = [wvl.pop(0) for _ in range(NWV0)]
if L2N == 1: w0_[0] = l2n(0) + w0_[0]; w0_[-1] = w0_[-1] + l2n(2); wvl[-1] = wvl[-1] + l2n(1)
if L2N == 2: wvl[-1] = wvl[-1] + l2n(0) + l2n(2)
P.add(sprinkle(ns[NBAR:], w0_, opt("wv0", 30), opt("wvstep", 50)))
P.wait(*[f"wk{k}" for k in range(7)]); I("s_barrier")
stamp("wk landed", "p")
if opt("zy", 0): I(f"s_sleep {opt('zy', 0)}")
AH = 6
sW1B, sW1M, sW2E, sW2L = 40, 41, 42, 43
set2 = mk(f"""v_lshrrev_b32 v10, 4, v1
v_mul_u32_u24 v12, 3584, v10
v_lshlrev_b32 v10, 2, v10
v_and_b32 v13, 15, v1
v_xor_b32 v10, v10, v13
v_lshl_add_u32 v12, v10, 4, v12
v_add_u32 v13, {4*3584-1024}, v12
v_add_u32 v14, {2*(4*3584-1024)}, v12
v_add_u32 v15, {3*(4*3584-1024)}, v12
s_lshl_b32 s{sW1B}, s{sR}, 8
s_mul_i32 s{sD}, s{sW}, {16*3584}
s_add_u32 s{sW1B}, s{sW1B}, s{sD}
s_lshl_b32 s{sW1M}, s{sW}, 12
s_lshr_b32 s{sA}, s{sW}, 1
s_lshl_b32 s{sA}, s{sA}, 2
s_andn2_b32 s{sB}, 1, s{sW}
s_add_u32 s{sA}, s{sA}, s{sB}
s_lshl_b32 s{sB}, s{sU}, 1
s_add_u32 s44, s{sA}, s{sB}
s_xor_b32 s45, s44, 2
s_lshl_b32 s{sD}, s{sC}, 7
s_mul_i32 s{sW2E}, s44, {32*896}
s_add_u32 s{sW2E}, s{sW2E}, s{sD}
s_mul_i32 s{sW2L}, s45, {32*896}
s_add_u32 s{sW2L}, s{sW2L}, s{sD}
""")
vW2 = [vWO0, vWO1, 128, 129]
sSCR, sBIG = 46, 47
NA = opt("na", 0)
NUR = opt("nur", 2); NT1 = min(NA, opt("nt1", 99))
_u = list(range(14))
def take(n): return [_u.pop(0) for _ in range(min(n, len(_u)))]
UAW = take(NA); UR = take(NUR); UD = take(2); UE = take(3); UL = take(opt("nrl", 3)); UP = take(99)
RAWS = UAW + UR + UL
def UA(j): return 16*j
def w2slot(j):
    if j in UE: return (sSCR, 4096*UE.index(j), 254)
    if j in UAW + UR + UD: return (sSCR, 4096*(j & 1), 254)
    return (sBIG, 4096*(UL + UP).index(j), 252)
def w2dma(j):
    mb, mo, _ = w2slot(j)
    return dmag(vW2, W2, sW2E if j < 7 else sW2L, (j%7)*256*896, mb, mo, f"w2_{j}", sDM)
def w2raw(j):
    ch = [mk(f"buffer_load_dwordx4 {a_(UA(j)+4*q,4)}, v{vW2[q]}, {W2}, s81 offen offset:{1024*q}") for q in range(4)]
    ch[0] = mk(f"s_add_u32 s81, s{sW2E if j < 7 else sW2L}, {(j%7)*256*896}") + ch[0]
    return ch
def w2rd(j):
    _, mo, av = w2slot(j)
    if j in RAWS: out = [mk(f"ds_write_b128 v{131 if j in UL else 134}, {a_(UA(j)+4*q,4)} offset:{mo+1024*q}") for q in range(4)]
    else: out = [[WaitTag([f"w2_{j}"])]]
    for e in range(2):
        for mu in range(2):
            for u in range(2): out.append(mk(f"ds_read_b64_tr_b16 {a_(UA(j)+8*e+4*mu+2*u,2)}, v{av+mu} offset:{mo+2048*e+1024*u}"))
    return out
raw = flat([w2raw(j) for j in UR])
rawA = flat([w2raw(j) for j in UAW])
if opt("noid", 1): set2 = [mk(f"s_cmp_ge_u32 s{sRact}, 14\ns_cselect_b32 s26, 0, s26")] + set2
set2 += mk(f"v_add_u32 v128, {2*(7168-1024)}, v{vWO0}\nv_add_u32 v129, {3*(7168-1024)}, v{vWO0}")
set2b = [x for x in set2 if isinstance(x, Ins) and x.cls == 'valu' and x.defs[0][1] < 128]
if opt("trim", 1):
    set2 = [mk(f"""s_cmp_eq_u32 s{sW}, 3
s_cselect_b64 vcc, {sHI}, 0
v_mov_b32 v143, 0x10000000
v_add_u32 v133, s{sWM}, v2
v_cndmask_b32 v142, v5, 0, vcc
v_cndmask_b32 v{vFPD}, v{vFPD}, v143, vcc
v_cndmask_b32 v{vFPC}, v{vFPC}, v143, vcc""")] + set2
set2b = [x for x in set2 if isinstance(x, list)] + set2b
set2a = [x for x in set2 if x not in set2b]
pro, gk = gemm_lds([(13, 1024*t, 1024*t + 256, (XF + 4*t, ACK, t == 0, False)) for t in range(28)], AH)
P.add(pro)
S = Sched(gk)
S.spread(wvl, 0, opt("wve", 16))
NQK = opt("nqk", 2)
S.spread([wqdma(k) for k in range(NQK)], opt("wve", 16), 28)
EARLY = opt("early", 0)
if EARLY:
    P.add(flat([x if isinstance(x, list) else [x] for x in fin + set2a])); fin = []
    wo_l = flat([dmag([vWO0, vWO1], WO, sQ, i*64*896, sXO, L_WO + 8192*i, "wo", sDM) for i in range(7)] + [dmag([vXRD0, vXRD1], X, sXRB, 0, sXO, L_XCH, "wo", sDM)])
    if EARLY == 2:
        S.spread([wo_l[2*i] + wo_l[2*i+1] for i in range(8)], 0, 28)
    else: S.spread([rawA.pop(0) for _ in range(min(len(rawA), opt("ne1", 8)))], 0, 28)
else: fin = fin + set2a
if TP == 3: S.at(opt("tpos", 22), touch)
for k, ps in enumerate((L2A, L2B)):
    if 0 <= ps < 28: S.at(ps, l2t(W1, k, 248 + k))
S.spread(fin + flat([mk(f"v_or_b32 v{WPK+q}, v{WPK+q}, v{WPT+q}\nv_or_b32 v{WPQ+q}, v{WPQ+q}, v{WPT+8+q}") for q in range(8)]), 2, 26)
P.add(S.emit())
def phi_pre(acc, wp):
    q = Prog()
    for i in range(8): q.I(f"v_cvt_pk_bf16_f32 v{acc+i}, v{acc+2*i}, v{acc+2*i+1}")
    q.I(f"{MF} {v(PK,16)}, {v(wp,4)}, {v(acc,4)}, 0\n{MF} {v(PK,16)}, {v(wp+4,4)}, {v(acc+4,4)}, {v(PK,16)}")
    return q.items
stamp("k gemm done", "mp")
wql = [wqdma(k) for k in range(NQK, 7)]
P.add(wql.pop(0))
P.add(phi_pre(ACK, WPK))
imw = flat([mk(f"ds_write_b128 v{vIMW}, {v(IMG+4*i,4)} offset:{L_IMG+16*i}") for i in range(3)]) + mk(f"ds_write_b64 v{vIMW}, {v(IMG+12,2)} offset:{L_IMG+48}")
smk = sprinkle(softmax(PK, TMP, IMG, True), [wql.pop(0) for _ in range(min(len(wql), opt("nwq0", 3)))], 10, opt("wqs", 40))
if EARLY: smk = sprinkle(smk, [rawA.pop(0) for _ in range(min(len(rawA), opt("ne2", 8)))], 5, 16)
WEAVE = opt("weave", 1)
pro, gv = gemm_lds([(11, L_WV + 1024*t, L_WV + 1024*t + 256, (XF + 4*t, ACV, t == 0, False)) for t in range(28)], AH)
S = Sched(gv)
if not WEAVE:
    P.add(smk)
    P.wait(*[f"wv{k}" for k in range(7)]); I("s_barrier")
    stamp("softmax k done", "p")
    P.add(pro)
    S.spread(imw, 2, 10)
else:
    smf = softmax(PK, TMP, IMG, 2)
    n0 = next(i for i, x in enumerate(smf) if x.op == "v_exp_f32")
    P.wait(*[f"wv{k}" for k in range(4)]); I("s_barrier")
    P.add(pro)
    P.add(smf[:n0])
    stamp("softmax k done", "p")
    S.spread(smf[n0:] + imw, 0, 28)
    S.at(15 - AH, [WaitTag(["wv4", "wv5", "wv6"])] + mk("s_barrier"), 1.0)
    wql = [wqdma(k) for k in range(NQK + 1, 7)]
wo_l = flat([dmag([vWO0, vWO1], WO, sQ, i*64*896, sXO, L_WO + 8192*i, "wo", sDM) for i in range(7)] + [dmag([vXRD0, vXRD1], X, sXRB, 0, sXO, L_XCH, "wo", sDM)])
if EARLY == 2: wo_l = []
S.spread(wql, 0, opt('wqe', 10))
if EARLY: S.spread([rawA.pop(0) for _ in range(min(len(rawA), opt("ne3", 8)))], 0, 22)
if L2A >= 0 or L2N: touch = [x for x in touch if W1 not in x.text]
if L2N == 1: S.at(opt("l2p", 14), l2n(3))
if L2N == 2: S.at(opt("l2p", 14), l2n(1) + l2n(3))
tlb = []
if opt("tlb", 0) & 1: tlb += mk(f"s_mov_b64 exec, 1\nbuffer_load_dword v248, v6, {OUT}, s{sOUT} offen\ns_mov_b64 exec, -1")
if opt("tlb", 0) & 2: tlb += mk(f"v_lshlrev_b32 v249, 20, v1\ns_mov_b64 exec, 0xffff\nbuffer_load_dword v249, v249, {WS}, 0 offen offset:4092\ns_mov_b64 exec, -1")
if tlb: S.at(opt("tlbp", 13), tlb)
if opt("touch", 1) and TP == 0: S.at(opt("tpos", 11), touch)
for k, ps in enumerate((L2A, L2B)):
    if 200 <= ps < 228: S.at(ps - 200, l2t(W1, k, 248 + k))
S.spread([wo_l.pop(0) for _ in range(2*opt("nwo0", 0))], opt("wos", 17), opt("woe2", 28))
P.add(S.emit())
for k in range(0, 16, 2): I(f"v_pk_mul_f32 {v(ACV+k,2)}, {v(ACV+k,2)}, v[250:251] op_sel:[0,1] op_sel_hi:[1,1]")
I(f"v_cndmask_b32 v{ACV+12}, v{ACV+12}, 1.0, {sHI}")
for i in range(8): I(f"v_cvt_pk_bf16_f32 v{IMG+16+i}, v{ACV+2*i}, v{ACV+2*i+1}")
for i in range(4, 6): I(f"ds_write_b128 v{vIMW}, {v(IMG+4*i,4)} offset:{L_IMG+16*i}")
P.wait("wq0", "wq1", "wq2", "wq3")
I("s_waitcnt lgkmcnt(0)\ns_barrier")
stamp("img written", "p")
KA = 144; KBv = 208; KD = 176
for k in range(4):
    for u in range(2):
        I(f"ds_read_b64_tr_b16 {v(KA+4*k+2*u,2)}, v{vKA} offset:{(32*k+4*u)*208}")
    for nu in range(2):
        for u in range(2):
            I(f"ds_read_b64_tr_b16 {v(KBv+8*k+4*nu+2*u,2)}, v{vKB} offset:{(32*k+4*u)*208+64+16*nu}")
proq, gq = gemm_lds([(11, L_WQ + 1024*t, L_WQ + 1024*t + 256, (XF + 4*t, ACV, t == 0, False)) for t in range(28)], AH)
for k in range(4):
    for nu in range(2):
        I(f"v_mfma_f32_16x16x32_bf16 {v(KD+4*nu,4)}, {v(KA+4*k,4)}, {v(KBv+8*k+4*nu,4)}, {'0' if k == 0 else v(KD+4*nu,4)}")
P.add(proq[:8])
for i in range(4): I(f"v_cvt_pk_bf16_f32 v{KD+8+i}, v{KD+2*i}, v{KD+2*i+1}")
I(f"buffer_store_dwordx4 {v(KD+8,4)}, v2, {WS}, s{sPST} offen sc1")
I(f"v_xor_b32 v10, v{KD+8}, v5")
I(f"buffer_store_short v10, v0, {WS}, s{sPCK} offen sc1")
if GATE & 1: P.add(flag_store(16))
P.add(proq[8:])
stamp("partial stored", "mp")
S = Sched(gq)
bgA = wo_l + rawA
nq = min(len(bgA), opt("nq", 16))
S.spread(bgA[:nq], 0, 28)
S.spread(set2b, 2, 18)
G0 = gate("g0", vPO, vPF)
if GATE & 1: S.at(opt("g0", 14), G0.load(0))
S.at(15 - AH, [WaitTag(["wq4", "wq5", "wq6"])] + mk("s_barrier"), 1.0)
P.add(S.emit())
stamp("q gemm done", "p")
G = 16; GC = 80; SA = 96
FP = Fetch("fp", [([f"s_add_u32 s{sCt}, s{sP}, {4608*T}\nbuffer_load_dwordx4 {v(G+4*T,4)}, v{vFPD}, {WS}, s{sCt} offen sc1\nbuffer_load_ushort v{GC+T}, v{vFPC}, {WS}, s{sCt} offen sc1"],
                   [G+4*T, GC+T]) for T in range(16)])
P.add(phi_pre(ACV, WPQ))
if GATE & 1: P.add(G0.check(0, 0))
I("s_barrier")
PQ = 208
smq = softmax(PK, TMP, PQ, True); f0 = opt("fp0", 80)
P.add(sprinkle(smq[:f0], bgA[nq:], 0, opt("as", 8)))
P.add(sprinkle(smq[f0:], [FP.load(T) for T in range(16)], 0, opt("fpstep", 3)))
stamp("softmax q done", "p")
w1_l = flat([dmag([12, 13, 14, 15], W1, sW1B, i*64*3584, sW1M, 16384*i, "w1", sDM) for i in range(7)])
def fpb(b):
    t = []
    for k, T in enumerate(range(4*b, 4*b+4)):
        t.append(f"v_bitop3_b32 v{10 if k == 0 else 9}, v{G+4*T}, v{GC+T}, v{142 if opt('trim', 1) else 5} {X3}" + ("" if k == 0 else "\nv_or_b32 v10, v10, v9"))
    return "\n".join(t) + "\nv_cmp_ne_u16 vcc, 0, v10"
RI = TAIL.I if (opt("ool", 15) & 1) else I
if not (opt("ool", 15) & 1): I("s_branch L_fp_go")
RI("L_fp_retry:" + ("\ns_add_u32 s80, s80, 1" if DIAG else ""), unc=True)
for b in range(4):
    RI(fpb(b) + f"\ns_cbranch_vccz L_fp_k{b}\n" + "\n".join(FP.pieces[T][0][0] for T in range(4*b, 4*b+4)) + f"\nL_fp_k{b}:", unc=True)
RI(GUARD, unc=True)
if (opt("ool", 15) & 1): RI("s_branch L_fp_go", unc=True)
I("L_fp_go:")
I(fpb(0) + "\ns_cbranch_vccnz L_fp_retry")
S = Sched([mk(f"{MF} {v(SA,16)}, a[220:223], {v(G+4*T,4)}, {'0' if T == 0 else v(SA,16)}") for T in range(16)])
for b in range(1, 4): S.spread(mk(fpb(b) + "\ns_cbranch_vccnz L_fp_retry"), 4*b - 3, 4*b)
S.spread([w1_l.pop(0) for _ in range(opt("nw1a", 2))], 12, 16)
P.add(S.emit())
I(f"v_add_u32 v9, {L_KVX}, v{133 if opt('trim', 1) else vFPD}")
for i in range(4): I(f"v_cvt_pk_bf16_f32 v{SA+8+i}, v{SA+2*i}, v{SA+2*i+1}")
I(f"ds_write_b128 v9, {v(SA+8,4)}\ns_waitcnt lgkmcnt(0)\ns_barrier")
stamp("kv summed", "mp")
KVA = 32; OD = 48
for q in range(7): I(f"ds_read_b64 {v(KVA+2*q,2)}, v{vKVX} offset:{512*q}")
P.add(w1_l.pop(0))
for s in range(3):
    I(f"{MF} {v(OD,16)}, {v(KVA+4*s,4)}, {v(PQ+4*s,4)}, {'0' if s == 0 else v(OD,16)}")
    if s == 1: P.add(w1_l.pop(0))
I(f"v_mfma_f32_32x32x8_bf16 {v(OD,16)}, {v(KVA+12,2)}, {v(PQ+12,2)}, {v(OD,16)}")
I(f"""s_lshl_b32 s{sP}, s{sTILE}, 15
s_lshr_b32 s{sB}, s{sW}, 1
s_lshl_b32 s{sB}, s{sB}, 14
s_add_u32 s{sP}, s{sP}, s{sB}
s_add_u32 s{sP}, s{sP}, {WS_O}
s_add_u32 s{sA}, s{sW1M}, {L_XCH}
v_add_u32 v132, s{sA}, v2
v_xor_b32 v133, 8192, v132
v_xor_b32 v9, 64, v{vWOR}
v_and_b32 v7, 31, v1
v_mul_u32_u24 v7, 896, v7
v_add_f32 v{OD+14}, 0x358637bd, v{OD+14}
v_rcp_f32 v{OD+14}, v{OD+14}
v_lshl_add_u32 v7, v3, 4, v7""")
for k in range(0, 14, 2): I(f"v_pk_mul_f32 {v(OD+k,2)}, {v(OD+k,2)}, {v(OD+14,2)} op_sel_hi:[1,0]")
for k in range(4): I(f"v_cvt_pk_bf16_f32 v{64+k}, v{OD+2*k}, v{OD+2*k+1}")
I(f"buffer_store_dwordx4 v[64:67], v2, {WS}, s{sOST} offen sc1")
for k in range(4, 7): I(f"v_cvt_pk_bf16_f32 v{64+k}, v{OD+2*k}, v{OD+2*k+1}")
I(f"""v_bitop3_b32 v71, v64, v5, s{sMASK} bitop3:0x28
v_and_b32 v6, s{sMASK}, v5
buffer_store_dwordx4 v[68:71], v2, {WS}, s{sOST} offen offset:1024 sc1""")
if GATE & 2: P.add(flag_store(7))
stamp("o stored", "mo")
P.wait("wo")
I(f"s_cmp_ge_u32 s{sRact}, 14\ns_cbranch_scc1 L_idle\ns_barrier")
wor = []
for s in range(16):
    hh, e = s >> 1, s & 1
    for k, av in ((0, vWOR), (1, 9)):
        for u in range(2):
            wor += mk(f"ds_read_b64_tr_b16 {a_(128+8*s+4*k+2*u,2)}, v{av} offset:{(28*hh+8*e+4*u)*128}")
XR = 224
xrr = []
for i in range(4): xrr += mk((f"v_xor_b32 v10, {16*i}, v{vXRR}\n" if i else "") + f"ds_read_b64 {v(XR+2*i,2)}, v{10 if i else vXRR}")
P.add(xrr)
G1 = gate("g1", vPO, vPF)
nb_ = min(opt("nw1b", 16), len(w1_l) - 8)
wor = sprinkle(wor, [w1_l.pop(0) for _ in range(nb_)], 0, opt("w1bs", 4))
if GATE & 2: wor = sprinkle(wor, [G1.load(0)], opt("g1", 40), 1)
P.add(wor)
OB = 16
FO = Fetch("fo", [([f"s_add_u32 s{sCt}, s{sP}, {2048*hh}\nbuffer_load_dwordx4 {v(OB+8*hh,4)}, v2, {WS}, s{sCt} offen sc1\nbuffer_load_dwordx4 {v(OB+8*hh+4,4)}, v2, {WS}, s{sCt} offen offset:1024 sc1"],
                   [OB+8*hh, OB+8*hh+7]) for hh in range(8)], masked=True, nre=opt('reo', 2))
stamp("pre o fetch", "o")
AO, AT = 80, 96
set3 = mk(f"""s_mul_i32 s{sSCR}, s{sW}, 12288
s_mul_i32 s{sBIG}, s{sW}, 28672
v_add_u32 v131, s{sBIG}, v2
s_lshl_b32 s{sB}, s{sC}, 1
s_lshr_b32 s{sD}, s{sW}, 1
s_add_u32 s{sB}, s{sB}, s{sD}
s_mul_i32 s{sA}, s{sTILE}, 14
s_add_u32 s{sB}, s{sB}, s{sA}
s_mul_i32 s{sPST}, s{sB}, 2432
s_add_u32 s{sPST}, s{sPST}, {WS_H}
s_lshr_b32 s48, s{sW}, 1
s_nop 0
v_bfe_u32 v9, v1, 2, 2
v_lshl_add_u32 v240, v3, 2, v9
v_lshlrev_b32 v254, 7, v240
v_lshlrev_b32 v240, 8, v240
v_xor_b32 v9, s{sW}, v9
v_lshl_add_u32 v240, v9, 6, v240
v_bfe_u32 v9, v1, 4, 1
v_lshlrev_b32 v9, 5, v9
v_lshl_add_u32 v9, v8, 3, v9
v_add_u32 v240, v240, v9
v_add_u32 v254, v254, v9
v_bfe_u32 v9, v1, 3, 1
v_xor_b32 v9, s48, v9
v_lshl_add_u32 v254, v9, 6, v254
s_add_u32 s{sSCR}, s{sSCR}, {L_SCR}
v_add_u32 v252, s{sBIG}, v254
v_xor_b32 v253, 64, v252
v_add_u32 v254, s{sSCR}, v254
v_add_u32 v134, s{sSCR}, v2
v_xor_b32 v255, 64, v254
v_xor_b32 v241, 64, v240
v_xor_b32 v242, 128, v240
v_xor_b32 v243, 192, v240""") + flat([mk(f"v_add_u32 v{244+m}, 57344, v{240+m}") for m in range(4)])
pre2 = []
for i in range(8): pre2 += mk(f"v_lshlrev_b32 v{112+2*i}, 16, v{XR+i}\nv_and_b32 v{113+2*i}, s{sHIM}, v{XR+i}")
for s in range(1, 16, 2): pre2 += mk(f"v_accvgpr_write_b32 a{128+8*s+3}, 0\nv_accvgpr_write_b32 a{128+8*s+7}, 0")
if GATE & 2:
    P.add(pre2); P.add(G1.check(0, 0))
    stamp("gate1", "o")
    for hh in range(8): P.add(FO.load(hh))
else:
    P.add(pre2[16:]); P.add(set3)
    I("s_waitcnt lgkmcnt(0)\ns_barrier")
    P.add(sprinkle(flat(flat([w2rd(j) for j in UAW[:NT1]])), [w1_l.pop(0) for _ in range(min(len(w1_l), opt("nw1s", 4)))], 0, 8))
    stamp("shadow done", "o")
    P.add(sprinkle(pre2[:16], [FO.load(hh) for hh in range(8)], 0, 2))
I("s_waitcnt lgkmcnt(0)\ns_barrier")
stamp("fo issued", "o")
g2 = []
for s in range(16):
    for k, acc in ((1, AT), (0, AO)):
        c = ("0" if k else v(112,16)) if s == 0 else v(acc,16)
        g2.append(mk(f"{MF} {v(acc,16)}, {a_(128+8*s+4*k,4)}, {v(OB+4*s,4)}, {c}"))

P.add(FO.check(0, 7))
stamp("fo0", "o")
S = Sched(g2)
for hh in range(1, 8): S.spread(FO.checkc(hh, 7), 4*hh - 3, 4*hh)
S.spread(w1_l + [raw.pop(0) for _ in range(min(len(raw), opt("rawb", 8)))], 0, 32)
P.add(S.emit())
stamp("p2 gemm done", "o")
for i in range(4): I(f"ds_write_b128 v132, {v(AT+4*i,4)} offset:{1024*i}")
I("v_mov_b32 v112, 0\nv_mov_b32 v113, 0\ns_waitcnt lgkmcnt(0)\ns_barrier")
for i in range(4): I(f"ds_read_b128 {v(AT+4*i,4)}, v133 offset:{1024*i}")
HR = XR
for k in range(0, 8, 2): I(f"v_pk_add_f32 {v(AO+k,2)}, {v(AO+k,2)}, {v(AT+k,2)}")
for i in range(4): I(f"v_cvt_pk_bf16_f32 v{HR+i}, v{AO+2*i}, v{AO+2*i+1}")
I(f"buffer_store_dwordx4 {v(HR,4)}, v2, {WS}, s{sPST} offen sc1")
for k in range(8, 16, 2): I(f"v_pk_add_f32 {v(AO+k,2)}, {v(AO+k,2)}, {v(AT+k,2)}")
for i in range(4, 8): I(f"v_cvt_pk_bf16_f32 v{HR+i}, v{AO+2*i}, v{AO+2*i+1}")
I(f"buffer_store_dwordx4 {v(HR+4,4)}, v2, {WS}, s{sPST} offen offset:1024 sc1")
for i in range(8): I(f"v_dot2c_f32_bf16 v112, s{sONES}, v{HR+i}\nv_dot2c_f32_bf16 v113, v{HR+i}, v{HR+i}")
I(f"""v_bitop3_b32 v10, v{HR}, v{HR+4}, v5 {X3}
v_permlane32_swap_b32 v112, v113
v_add_f32 v112, v112, v113
buffer_store_dword v112, v4, {WS}, s{sPST} offen offset:2048 sc1
v_xor_b32 v113, v10, v112
buffer_store_short v113, v0, {WS}, s{sPST} offen offset:2304 sc1""")
def selft(sreg, nl): return mk(f"s_mov_b64 exec, {(1 << nl) - 1}\nbuffer_load_dword v135, v134, {WS}, s{sreg} offen sc1\ns_mov_b64 exec, -1")
SELF = opt("self", 0)
if SELF & 1: P.add(selft(sPST, 20))
if GATE & 4: P.add(flag_store(14))
stamp("h stored", "moh")
HB = 16; ST = 192
ACC = [144, 160, 176, 192]; AUG = 232
set4 = mk(f"""s_lshl_b32 s{sB}, s{sT3}, 2
s_add_u32 s{sB}, s{sB}, s{sW}
s_mul_i32 s{sP}, s{sB}, {14*2432}
s_add_u32 s{sP}, s{sP}, {WS_H}
s_mul_i32 s{sA}, s{sB}, 56
s_lshl_b32 s{sD}, s{sR}, 2
s_add_u32 s{sA}, s{sA}, s{sD}
s_mul_i32 s{sQ}, s{sA}, 2176
s_add_u32 s{sQ}, s{sQ}, {WS_H1}
v_lshlrev_b32 v13, 3, v1
s_lshl_b32 s{sA}, s{sW}, 9
s_add_u32 s{sA}, s{sA}, {L_AUG}
v_add_u32 v13, s{sA}, v13
v_mov_b32 v222, 0""")
FH = Fetch("fh", [([f"s_add_u32 s{sCt}, s{sP}, {2432*p}\nbuffer_load_dwordx4 {v(HB+8*p,4)}, v2, {WS}, s{sCt} offen sc1\nbuffer_load_dwordx4 {v(HB+8*p+4,4)}, v2, {WS}, s{sCt} offen offset:1024 sc1\n"
                    f"buffer_load_dword v{ST+2*p}, v4, {WS}, s{sCt} offen offset:2048 sc1\nbuffer_load_ushort v{ST+2*p+1}, v0, {WS}, s{sCt} offen offset:2304 sc1"],
                   [HB+8*p, HB+8*p+4, ST+2*p, ST+2*p+1]) for p in range(14)], nre=opt('reh', 2))
for i in range(4): I(f"v_mov_b32 v{AUG+i}, s{sONES}")
P.wait("w1"); I("s_barrier")
stamp("w1 landed", "h")
if opt("zz", 0): I(f"s_sleep {opt('zz', 0)}")
def w1a(t, k): return (240 + k + (4 if t >= 14 else 0), (t % 14) * 4096, (t % 14) * 4096 + 2048)
st3 = [w1a(t, 0) + ((AUG, ACC[2], t == 0, True),) for t in range(28)]
TWO = opt("two", 1); N1 = 2 if TWO else 3
for t in range(28):
    for k in range(N1): st3.append(w1a(t, k) + ((HB + 4*t, ACC[k], t == 0, False),))
for t in range(28):
    for k in range(N1, 4): st3.append(w1a(t, k) + ((HB + 4*t, ACC[k], t == 0, False),))
pro, g3 = gemm_lds(st3, AH)
P.add(pro)
S3 = Sched(g3)
S3.spread(set4, 0, 8)
S3.spread(raw + w2dma(UD[0]) + w2dma(UD[1]), 0, opt("c0e", 20)); raw = []
NH0 = opt("nh0", 4); H0 = opt("h0", 26)
G2 = gate("g2", vPO, vPF)
if GATE & 4:
    S3.at(opt("g2", 12), G2.load(0), 0.9)
    S3.at(27, G2.check(0, 0) + stampi("gate2", "h") + flat([FH.load(p) for p in range(NH0)]), 0.5)
else: S3.spread(flat([FH.loadc(p) for p in range(NH0)]), H0, 27)
cs = ACC[2]
csx = mk(f"""v_cvt_pk_bf16_f32 v{AUG}, v{cs}, v{cs}
v_lshlrev_b32 v{AUG+1}, 16, v{AUG}
v_sub_f32 v{AUG+1}, v{cs}, v{AUG+1}
v_cvt_pk_bf16_f32 v{AUG}, v{cs}, v{AUG+1}
v_and_b32 v{AUG+1}, 0xffff, v{AUG}
v_cndmask_b32 v{AUG}, v{AUG}, 0, {sHI}
v_cndmask_b32 v{AUG+1}, v{AUG+1}, 0, {sHI}
ds_write_b64 v13, {v(AUG,2)}""")
S3.at(27, stampi("colsum done", "h") + csx + FH.check(0, NH0 - 1) + stampi("fh0", "h"), 1.0)
B0 = 28
for p in range(14):
    b = B0 + 2*N1*p
    if p + NH0 < 14:
        for k_, c_ in enumerate(FH.loadc(p + NH0)): S3.at(b + ((0, 2, 1, 3) if TWO else (0, 2, 4, 4))[k_], c_, 0.2)
    S3.at(b, mk(f"v_add_f32 v222, v222, v{ST+2*p}"), 0.0)
    if p + 1 < 14: S3.spread(FH.checkc(p + 1, min(13, p + NH0 - 1)), b + 1, b + 2*N1)
    if p in (3, 7, 11): S3.at(b + 2*N1 - 1, stampi(f"fh{p+1}", "h"), 1.0)
S3.at(B0 + 14, mk("s_barrier") + flat([mk(f"v_xor_b32 v9, {512*k}, v13\nds_read_b64 {v(AUG+2*k,2)}, v9") for k in range(1, 4)]), 0.0)
mid = mk(f"""v_mul_f32 v220, {fhex(1/448)}, v222
v_mov_b32 v221, v220
s_nop 0
v_permlane32_swap_b32 v220, v221
v_fma_f32 v221, -v220, v220, v221
v_max_f32 v221, 0, v221
v_add_f32 v221, 0x3727c5ac, v221
v_rsq_f32 v251, v221
v_cvt_pk_bf16_f32 v222, -v220, -v220
v_lshlrev_b32 v9, 16, v222
v_sub_f32 v9, -v220, v9
v_cvt_pk_bf16_f32 v223, v9, 0
v_mul_f32 v250, v221, v251
v_mul_f32 v251, 0xbfb8aa3b, v251
v_cndmask_b32 v222, v222, 0, {sHI}
v_cndmask_b32 v223, v223, 0, {sHI}""")
S3.spread(mid, *((B0 + 53, B0 + 59) if TWO else (B0 + 79, B0 + 84)))
def aug(k): return mk(f"v_mfma_f32_32x32x8_bf16 {v(ACC[k],16)}, {v(AUG+2*k,2)}, v[222:223], {v(ACC[k],16)}")
SLT = 132
def silu(k, pk):
    q = Prog(); a = ACC[k]; t = 208
    q.I(f"s_xor_b32 s50, s{sW}, {k}\ns_mul_i32 s50, s50, 2176\ns_add_u32 s50, s50, s{sQ}")
    for half in range(2):
        b = a + 8 * half
        if pk:
            for j in range(0, 8, 2): q.I(f"v_pk_mul_f32 {v(t+j,2)}, {v(b+j,2)}, v[250:251] op_sel:[0,1] op_sel_hi:[1,1]")
        else:
            for j in range(8): q.I(f"v_mul_f32 v{t+j}, v{b+j}, v251")
        for j in range(8): q.I(f"v_exp_f32 v{t+j}, v{t+j}")
        if pk:
            for j in range(0, 8, 2): q.I(f"v_pk_fma_f32 {v(t+j,2)}, {v(t+j,2)}, v[250:251], v[250:251] op_sel_hi:[1,0,0]")
        else:
            for j in range(8): q.I(f"v_fma_f32 v{t+j}, v{t+j}, v250, v250")
        for j in range(8): q.I(f"v_rcp_f32 v{t+j}, v{t+j}")
        if pk:
            for j in range(0, 8, 2): q.I(f"v_pk_mul_f32 {v(b+j,2)}, {v(b+j,2)}, {v(t+j,2)}")
        else:
            for j in range(8): q.I(f"v_mul_f32 v{b+j}, v{b+j}, v{t+j}")
        for j in range(4): q.I(f"v_cvt_pk_bf16_f32 v{b+j}, v{b+2*j}, v{b+2*j+1}")
        q.I(f"buffer_store_dwordx4 {v(b,4)}, v2, {WS}, s50 offen offset:{1024*half} sc1")
    q.I(f"v_bitop3_b32 v216, v5, v{a}, v{a+8} {X3}")
    q.I(f"buffer_store_short v216, v0, {WS}, s50 offen offset:2048 sc1")
    return q.items + ([selft(50, 18)] if SELF & 2 and not pk else [])
E0 = B0 + 28*N1
assert not raw
if TWO:
    S3.spread(flat([w2rd(j) for j in UD + UR + UAW[NT1:]]), B0 + 8, B0 + 42)
    S3.at(B0 + 34, mk("s_barrier"), 0.0)
    S3.spread(flat([w2dma(j) for j in UE]), B0 + 48, E0 + opt("wde", 12))
else:
    S3.spread(flat([w2rd(j) for j in UD + UR + UAW[NT1:]]), B0 + 22, B0 + 58)
    S3.at(B0 + 44, mk("s_barrier"), 0.0)
    S3.spread(flat([w2dma(j) for j in UE]), B0 + 64, E0)
B4 = 16
CKR = [240, 241, 244, 245, 248, 249, 217, 218, 219, 130, 242, 246, 243, 247]
C4 = [[a_(224,16), a_(240,16)], [v(ACC[0],16), v(ACC[1],16)]]
set5 = mk(f"""s_mul_i32 s{sA}, s{sTILE}, 56
s_xor_b32 s{sB}, s{sTILE}, 1
s_mul_i32 s{sB}, s{sB}, 56
s_add_u32 s51, s{sB}, s44
s_add_u32 s52, s{sA}, s44
s_add_u32 s53, s{sB}, s45
s_add_u32 s54, s{sA}, s45""")
for k in range(4):
    set5 += mk(f"s_mul_i32 s{51+k}, s{51+k}, 2176\ns_add_u32 s{51+k}, s{51+k}, {WS_H1}")
S3.spread(set5, B0 + 42, B0 + 52)
def piece4(n):
    st, i = n // 7, n % 7; r = B4 + 8 * (n % 14); c = CKR[n % 14]
    return ([f"s_add_u32 s{sCt}, s{51+st}, {8*2176*i}\nbuffer_load_dwordx4 {v(r,4)}, v2, {WS}, s{sCt} offen sc1\nbuffer_load_dwordx4 {v(r+4,4)}, v2, {WS}, s{sCt} offen offset:1024 sc1\n"
             f"buffer_load_ushort v{c}, v0, {WS}, s{sCt} offen offset:2048 sc1"], [r, r+4, c])
F4 = Fetch("f4", [piece4(n) for n in range(28)], nre=opt("re4", 3))
ND = opt("nd", 5)
rawl = flat([w2raw(j) for j in UL])
nr0 = min(len(rawl), opt("nr0", 4))
if TWO:
    S3.at(E0 - 1, stampi("p3 pass1 done", "mh"), 1.0)
    g3[E0 + 3] = aug(0) + g3[E0 + 3]; g3[E0 + 4] = aug(1) + g3[E0 + 4]
    S3.spread(silu(0, False) + [stampi("silu0 done", "e")], E0 + 5, E0 + opt("s0e", 21))
    S3.spread(silu(1, False), E0 + opt("s0e", 21), E0 + opt("s1e", 44))
    S3.spread(rawl, E0 + opt("wde", 12), E0 + opt("rle", 36))
    DEEP = opt("deep", 0)
    if DEEP:
        rng = [(opt("a0", -18), opt("b0", 4)), (opt("a1", 6), opt("b1", 24)), (opt("a2", 26), opt("b2", 50)), (opt("a3", 50), opt("b3", 78))]
        f4pos = []
        for n in range(28):
            a, b = rng[n // 7]
            for k_, c_ in enumerate(F4.loadc(n)):
                pos = a + (b - a) * ((n % 7) + (0, 0.45, 0.9)[k_]) / 7
                lo = (4*n + 4 - 56) if n < 14 else 4*(n - 14) + 4
                pos = max(pos, lo + 0.01*k_); assert pos < 4*n - 3 or n == 0, (n, pos)
                f4pos.append((pos, c_))
        for i_ in range(1, len(f4pos)): assert f4pos[i_][0] >= f4pos[i_-1][0], i_
        import math
        for pos, c_ in f4pos:
            if pos < 0: S3.at(E0 + 56 + math.floor(pos), c_, pos - math.floor(pos))
    else: S3.spread(flat([F4.loadc(n) for n in range(ND)]), E0 + opt("f4s", 52), E0 + 56)
    P.add(S3.emit())
    P.add(aug(2) + aug(3))
else:
    S3.at(E0 - 1, stampi("p3 pass1 done", "mh") + aug(0) + aug(1) + aug(2) + sprinkle(silu(0, True), rawl[:nr0], 3, 12) + stampi("silu0 done", "e"), 1.0)
    S3.spread(silu(1, False), E0, E0 + 26)
    S3.spread(rawl[nr0:], E0, E0 + 14)
    S3.spread(flat([F4.loadc(n) for n in range(ND)]), E0 + opt("f4s", 16), E0 + 28)
    P.add(S3.emit())
    P.add(aug(3))
I("s_barrier")
stamp("p3 gemm done", "me")
g4 = []
for n in range(28):
    st, i = n // 7, n % 7; hf, par = st >> 1, st & 1
    for e in range(2):
        for mu in range(2):
            zero = hf == 0 and i == 0 and e == 0 and not (par == 1 and mu == 0)
            g4.append(mk(f"{MF} {C4[par][mu]}, {a_(UA(7*hf+i)+8*e+4*mu,4)}, {v(B4+8*(n%14)+4*e,4)}, {'0' if zero else C4[par][mu]}"))
P.add(F4.check(0, ND - 1))
S = Sched(g4)
for n in range(28):
    if n + ND < 28 and not (TWO and DEEP):
        for k_, c_ in enumerate(F4.loadc(n + ND)): S.at(4*n + (0, 2, 1)[k_], c_, 0.2)
    if n + 1 < 28: S.spread(F4.checkc(n + 1, min(27, n + ND)), 4*n + 2, 4*n + 4)
    if n in (6, 13, 20): S.at(4*n + 3, stampi(f"stage{n//7} done", "e"), 1.0)
unp = []
for i in range(8): unp += mk(f"v_lshlrev_b32 v{ACC[0]+2*i}, 16, v{HR+i}\nv_and_b32 v{ACC[0]+1+2*i}, s{sHIM}, v{HR+i}")
if TWO and DEEP:
    for pos, c_ in f4pos:
        if pos >= 0: S.at(int(pos), c_, pos - int(pos))
S2E, S3E = opt("s2e", 16), opt("s3e", 40)
S.spread(silu(2, False), 0, S2E)
S.spread(unp, 22, 27)
S.spread(silu(3, False), S2E, S3E)
S.spread(flat([w2rd(j) for j in UE if j < 7]), 0, 14)
S.spread(flat([w2dma(j) for j in UP]), opt("w2a", 2), opt("w2b", 44))
for j in [x for x in UE + UL + UP if x >= 7]: S.spread(w2rd(j), 44 + 5*(j-7), 49 + 5*(j-7))
S.at(82, mk(f"""s_lshl_b32 s{sA}, s{sW}, 14
v_add_u32 v13, s{sA}, v2
v_xor_b32 v9, 16384, v13
v_xor_b32 v12, 32768, v13
v_xor_b32 v14, 49152, v13
s_waitcnt lgkmcnt(0)
s_barrier"""))
S.spread([mk(f"ds_write_b128 v{9 if mu == 0 else 14}, {a_(224+16*mu+4*i,4)} offset:{4096*(2*mu+1)+1024*i}") for mu in range(2) for i in range(4)], 87, 99)
S.at(100, mk("s_waitcnt lgkmcnt(0)\ns_barrier"), 0.0)
S.spread([mk(f"ds_read_b128 {v(ACC[2+mu]+4*i,4)}, v13 offset:{4096*(2*mu+1)+1024*i}") for mu in range(2) for i in range(4)], 100, 104)
S.spread([mk(f"v_add_f32 v{ACC[2]+k}, v{ACC[2]+k}, v{ACC[3]+k}") for k in range(16)], 107, 112)
P.add(S.emit())
stamp("p4 gemm done", "me")
for i in range(4): I(f"ds_write_b128 v12, {v(ACC[1]+4*i,4)} offset:{8192+1024*i}")
if opt("cout", 0):
    I(f"""v_lshlrev_b32 v16, 3, v3
v_sub_u32 v16, v{vXRR}, v16
v_lshlrev_b32 v17, 4, v3
v_xor_b32 v16, v16, v17
v_xor_b32 v17, 32, v16
s_add_u32 s{sA}, s{sXO}, {L_XCH}
v_add_u32 v18, s{sA}, v2""")
I("s_waitcnt lgkmcnt(0)\ns_barrier")
for i in range(4): I(f"ds_read_b128 {v(ACC[3]+4*i,4)}, v13 offset:{8192+1024*i}")
for k in range(0, 16, 2): I(f"v_pk_add_f32 {v(ACC[0]+k,2)}, {v(ACC[0]+k,2)}, {v(ACC[2]+k,2)}")
for hf in range(2):
    b = ACC[0] + 8*hf
    for k in range(0, 8, 2): I(f"v_pk_add_f32 {v(b+k,2)}, {v(b+k,2)}, {v(ACC[3]+8*hf+k,2)}")
    for i in range(4): I(f"v_cvt_pk_bf16_f32 v{96+4*hf+i}, v{b+2*i}, v{b+2*i+1}")
    if not opt("cout", 0):
        I(f"v_permlane32_swap_b32 v{96+4*hf}, v{98+4*hf}\nv_permlane32_swap_b32 v{97+4*hf}, v{99+4*hf}\nbuffer_store_dwordx4 {v(96+4*hf,4)}, v7, {OUT}, s{sOUT} offen offset:{32*hf} {OPT.get('ofl', '')}")
    else:
        I(f"v_permlane32_swap_b32 v{96+4*hf}, v{98+4*hf}\nv_permlane32_swap_b32 v{97+4*hf}, v{99+4*hf}\nds_write_b128 v{16+hf}, {v(96+4*hf,4)}")
if opt("cout", 0):
    I("s_waitcnt lgkmcnt(0)\ns_barrier")
    for i in range(2): I(f"ds_read_b128 {v(104+4*i,4)}, v18 offset:{1024*i}")
    for i in range(2): I(f"buffer_store_dwordx4 {v(104+4*i,4)}, v{vXRD0+i}, {OUT}, s{sXRB} offen offset:{1024*i} {OPT.get('ofl', '')}")
stamp("end", "mpohez")
I(f"""s_cmp_lg_u32 s2, 0
s_cbranch_scc1 L_ex0
v_mov_b32 v9, 0""")
I(f"buffer_store_dword v5, v9, {WS}, 0 offen sc1", unc=True)
I("L_ex0:")
if opt("enc", 0):
    mode = opt("enc", 0)
    if mode <= 4:
        I(f"s_bfe_u32 s{sA}, s80, {hex(0x80000 | (8*(mode-1)))}\ns_min_u32 s{sA}, s{sA}, 1\ns_mul_i32 s{sA}, s{sA}, 2000", unc=True)
    else:
        I(f"s_waitcnt lgkmcnt(0)\ns_sub_u32 s{sA}, s{sSTAMP+2}, s78\ns_mul_i32 s{sA}, s{sA}, 4", unc=True)
    I(f"""s_memrealtime s[40:41]
s_waitcnt lgkmcnt(0)
L_enc:
s_memrealtime s[42:43]
s_waitcnt lgkmcnt(0)
s_sub_u32 s42, s42, s40
s_cmp_lt_u32 s42, s{sA}
s_cbranch_scc1 L_enc
s_branch L_end""", unc=True)
if opt("dbg", 0):
    I(f"""s_cmp_lg_u32 s{sW}, 0
s_cbranch_scc1 L_end
s_load_dwordx2 s[40:41], s[0:1], 64
s_mov_b32 s42, 256
s_mov_b32 s43, 0x20000
s_mov_b64 exec, 1
v_mov_b32 v9, 0
s_waitcnt lgkmcnt(0)""", unc=True)
    for k in range(nstamp[0]):
        I(f"s_sub_u32 s{sA}, s{sSTAMP+2*k}, s78\nv_mov_b32 v10, s{sA}\nbuffer_atomic_umax v10, v9, s[40:43], 0 offen offset:{4*k}\ns_nop 1", unc=True)
    I(f"""v_mov_b32 v10, s78
buffer_atomic_umax v10, v9, s[40:43], 0 offen offset:32
s_not_b32 s{sA}, s78
v_mov_b32 v11, s{sA}
buffer_atomic_umax v11, v9, s[40:43], 0 offen offset:36
v_mov_b32 v12, s{sSTAMP+2*(nstamp[0]-1)}
buffer_atomic_umax v12, v9, s[40:43], 0 offen offset:40
v_mov_b32 v13, s80
buffer_atomic_add v13, v9, s[40:43], 0 offen offset:44
s_branch L_end""", unc=True)
I("L_exit:")
if DIAG and not opt("dbg", 0):
    I(f"s_cmp_lg_u32 s{sW}, {opt('dw', 0)}\ns_cbranch_scc1 L_end\ns_lshl_b32 s{sA}, s2, 7\ns_add_u32 s{sA}, s{sA}, {WS_DIAG}\nv_mov_b32 v9, 0", unc=True)
    for k in range(nstamp[0]):
        I(f"s_waitcnt lgkmcnt(0)\nv_mov_b32 v10, s{sSTAMP+2*k}\nbuffer_store_dword v10, v9, {WS}, s{sA} offen offset:{4*k}", unc=True)
    if SEL == ["z"]: I(f"v_mov_b32 v10, s78\nbuffer_store_dword v10, v9, {WS}, s{sA} offen offset:120", unc=True)
    I(f"v_mov_b32 v10, s80\nbuffer_store_dword v10, v9, {WS}, s{sA} offen offset:124", unc=True)
I("L_end:\ns_endpgm")
I(f"""L_idle:
s_and_b32 s{sA}, s{sT2}, 1
s_lshl_b32 s{sA}, s{sA}, 1
s_add_u32 s{sA}, s{sA}, s{sRact}
s_sub_u32 s{sA}, s{sA}, 14
s_lshl_b32 s{sA}, s{sA}, 2
s_add_u32 s{sA}, s{sA}, s{sW}
s_lshl_b32 s{sA}, s{sA}, 13
v_lshlrev_b32 v9, 7, v1
s_lshr_b32 s{sD}, s{sT2}, 1
s_mul_i32 s{sD}, s{sD}, {8*56*2176}
s_add_u32 s{sD}, s{sD}, {WS_H1}
s_add_u32 s{sD}, s{sD}, s{sA}
s_mov_b32 s{sB}, {opt("idle2", 0)}
s_cmp_eq_u32 s{sB}, 0
s_cbranch_scc1 L_idle3
L_idle2:
buffer_load_dword v11, v9, {WS}, s{sD} offen {OPT.get("i2f", "")}
s_add_u32 s{sD}, s{sD}, {16*8192}
s_sub_u32 s{sB}, s{sB}, 1
s_cmp_lg_u32 s{sB}, 0
s_cbranch_scc1 L_idle2
L_idle3:
s_mov_b32 s{sB}, {opt("idle", 0)}
s_cmp_eq_u32 s{sB}, 0
s_cbranch_scc1 L_exit
L_idle1:
buffer_load_dword v11, v9, {W2}, s{sA} offen
s_add_u32 s{sA}, s{sA}, {16*8192}
s_sub_u32 s{sB}, s{sB}, 1
s_cmp_lg_u32 s{sB}, 0
s_cbranch_scc1 L_idle1
s_branch L_exit""", unc=True)
P.add(TAIL.items)

for it in P.items:
    if isinstance(it, Ins) and it.text.startswith('buffer_load_dword v142,'): it.defs = []
for it in P.items:
    if isinstance(it, Ins) and it.op == "buffer_load_dwordx4":
        for bit, srd in ((1, W1), (2, W2), (4, WO), (8, WQKV), (16, X)):
            if opt("wf", 0) & bit and srd in it.text:
                fl = OPT.get("wfl", "nt")
                it.text = it.text.replace(" lds", f" {fl} lds") if it.text.endswith(" lds") else it.text + " " + fl
PL = opt("plain", 0)
for it in P.items:
    if isinstance(it, Ins) and it.op.startswith("buffer_store") and "sc1" in it.text:
        ish1 = " s50 " in it.text or " s49 " in it.text
        ish = ("v[224:227]" in it.text or "v[228:231]" in it.text or "v112," in it.text or "v113," in it.text)
        if (ish and PL & 1) or (ish1 and PL & 2): it.text = it.text.replace(" sc1", OPT.get("pfl", ""))
if opt("pld", 0):
    c = 0
    for it in P.items:
        if isinstance(it, Ins) and it.op.startswith("buffer_load") and "sc1" in it.text and " s56 " in it.text and not it.uncounted:
            c += 1
            kind = 0 if c <= 48 else 1 if c <= 104 else 2
            if opt("pld", 0) & kind: it.text = it.text.replace(" sc1", OPT.get("lfl", ""))
if opt("nochk", 0):
    new = []; seen_end = False
    for it in P.items:
        if isinstance(it, Ins):
            if opt("nochk", 0) == 2 and not seen_end:
                if it.text.startswith("L_exit"): seen_end = True
                elif it.uncounted or it.op in ("s_cbranch_vccz", "s_branch"): continue
            if it.op == "s_cbranch_vccz" and not it.uncounted: it = Ins(it.text.replace("s_cbranch_vccz", "s_branch"))
            elif it.op == "s_cbranch_vccnz" and not it.uncounted: continue
            t = it.text
            if it.op.startswith("buffer_store") and "sc1" in t and not it.uncounted:
                kind = 8 if " s50 " in t else 4 if ("v[224" in t or "v[228" in t or "v112," in t or "v113," in t) else 2 if f" s{sOST} " in t else 1
                if opt("nost", 0) & kind: continue
            if it.op.startswith("buffer_load") and "sc1" in t and " s56 " in t and not it.uncounted:
                cnt_ld = globals().setdefault("_c", [0]); cnt_ld[0] += 1; c = cnt_ld[0]
                kind = 1 if c <= 32 else 2 if c <= 48 else 4 if c <= 104 else 8
                if opt("nold", 0) & kind: continue
        new.append(it)
    P.items = new
body, items = render(P.items)
if opt("align", 1):
    import subprocess, re as _re
    open("_al.s", "w").write('.amdgcn_target "amdgcn-amd-amdhsa--gfx950"\n.text\n' + body)
    subprocess.run(["clang", "-x", "assembler", "-target", "amdgcn-amd-amdhsa", "-mcpu=gfx950", "-c", "_al.s", "-o", "_al.o"], check=True)
    dis = subprocess.run(["llvm-objdump", "-d", "--mcpu=gfx950", "_al.o"], capture_output=True, text=True).stdout
    sizes = [4 * len(m.group(1).split()) for m in _re.finditer(r"// [0-9A-F]{12}: ((?:[0-9A-F]{8} ?)+)", dis)]
    real = [i for i in items if i.cls not in ('label', 'dir')]
    assert len(sizes) == len(real), (len(sizes), len(real))
    sz = {id(i): n for i, n in zip(real, sizes)}
    new = []; off = 0; nal = 0; MINRUN = opt("minrun", 6)
    for k, it in enumerate(items):
        if id(it) in sz and sz[id(it)] == 8 and off % 8 == 4 and not it.uncounted:
            run = 0
            for j in items[k:k + MINRUN + 4]:
                if id(j) not in sz: continue
                if sz[id(j)] != 8 or j.cls == 'mfma': break
                run += 1
            if run >= MINRUN:
                p = new[-1] if new else None
                if p is not None and p.cls == 'valu' and sz.get(id(p)) == 4 and not p.op.startswith(('v_permlane', 'v_dot2c', 'v_readfirst', 'v_accvgpr', 'v_cmp', 'v_cndmask')) and not p.op.endswith('_e64'):
                    p.text = p.text.replace(p.op, p.op + "_e64", 1)
                else: new.append(Ins("s_nop 0"))
                off += 4; nal += 1
        new.append(it); off += sz.get(id(it), 0)
    items = new
    body = '\n'.join(('' if i.cls == 'label' else '  ') + i.text for i in items) + '\n'
    print("alignment fixes:", nal, "code bytes", off)
hdr = open("cdna_kernels/" + NAME + ".s.ref").read().split("; Override launch")[0]
out = hdr + f"""; @launch grid=(256,1,1) block=(256,1,1) lds={LDS_SIZE}
.amdgcn_target "amdgcn-amd-amdhsa--gfx950"
.text
.globl {NAME}_kernel
.p2align 8
.type {NAME}_kernel,@function
{NAME}_kernel:
{body}.fill 2048, 4, 0xbf810000
.section .rodata,"a"
.p2align 6
.amdhsa_kernel {NAME}_kernel
  .amdhsa_next_free_vgpr 512
  .amdhsa_next_free_sgpr 102
  .amdhsa_accum_offset 256
  .amdhsa_group_segment_fixed_size 0
  .amdhsa_kernarg_size 80
  .amdhsa_user_sgpr_count 2
  .amdhsa_user_sgpr_kernarg_segment_ptr 1
  .amdhsa_system_sgpr_workgroup_id_x 1
.end_amdhsa_kernel
"""
open(sys.argv[1], "w").write(out)
n = sum(1 for i in items if i.cls not in ('label', 'dir'))
nu_ = sum(1 for i in items if i.cls not in ('label', 'dir') and i.uncounted)
print("instructions:", n, "(slow path", nu_, ") nops:", sum(1 for i in items if i.op == 's_nop'), "waits:", sum(1 for i in items if i.op == 's_waitcnt'), "stamps", nstamp[0])
```

```python
import sys, struct
from asmlib import *

NAME = "sequential_preLN__linear_kernel_hedgehog__dense_activation_silu__prompt"
DIAG = int(sys.argv[2]) if len(sys.argv) > 2 else 0
OPT = dict(a.split('=') for a in sys.argv[3:])
def opt(k, d): return int(OPT[k], 0) if k in OPT else d

WS_PART = 0x40000
WS_O    = 0x240000
WS_H    = 0x440000
WS_H1   = 0x680000
WS_DIAG = 0xE80000
WS_FLG  = 0xF00000
WS_SIZE = 0xF80000
XW = 28672
L_WV, L_WQ, L_WK, L_WO = 0, 28672, 57344, 86016
L_IMG = L_WK
L_KVX = 143360
L_XCH = 147456
L_SCR = 114688
L_AUG = 161792
LDS_SIZE = 163840
sW, sT, sH, sT2, sR = 3, 4, 5, 6, 7
X, WQKV, WPHI, WO, W1, W2, OUT, WS = [f"s[{i}:{i+3}]" for i in range(8, 40, 4)]
sKX, sKW = 40, 47
sHQ, sHIM = 54, 55
sRET = "s[56:57]"
sSPIN, sP, sU, sC, sMASK, sQ = 58, 59, 60, 61, 62, 63
sHI = "s[64:65]"
sLOG = "s[66:67]"
sONES, sTILE = 68, 69
sA, sB, sCt, sD = 70, 71, 72, 73
sRact, sXO = 74, 75
sWB, sWQ = 76, 77
sLAST, sFLAG, sWM, sPST, sPCK, sOST, sXRB, sOUT = 80, 81, 82, 83, 84, 85, 86, 87
sSTAMP = 88

def v(a, n=1): return f"v{a}" if n == 1 else f"v[{a}:{a+n-1}]"
def a_(a, n=1): return f"a{a}" if n == 1 else f"a[{a}:{a+n-1}]"
def fhex(x): return hex(struct.unpack('<I', struct.pack('<f', x))[0])
def flat(l): return sum(l, [])
P = Prog(); I = P.I
TAIL = Prog()
nstamp = [0]
SEL = OPT.get("st", "m").split(",")
PICK = [int(x) for x in OPT["pick"].split(",")] if "pick" in OPT else None
allst = [0]
def stampi(name, grp="m"):
    idx = allst[0]; allst[0] += 1
    if opt("jit", 0) and idx in (3, 7, 9, 11, 13, 17, 19, 21, 25, 26, 27, 28, 29):
        return mk(f"""s_memtime s[88:89]
s_waitcnt lgkmcnt(0)
s_mul_i32 s88, s88, 0x9E3779B1
s_lshr_b32 s88, s88, {opt("jit", 0)}
L_jit{idx}:
s_sleep 8
s_sub_u32 s88, s88, 1
s_cmp_gt_i32 s88, 0
s_cbranch_scc1 L_jit{idx}""")
    if not DIAG: return []
    if PICK is not None:
        if name != "start" and idx not in PICK:
            print(f"   - {idx}: {name}"); return []
    elif name != "start" and not (set(grp) & set(SEL)): return []
    k = nstamp[0]; nstamp[0] += 1
    assert k < 7
    print(f"stamp {k}: [{idx}] {name}")
    op = "s_memtime" if DIAG == 2 else "s_memrealtime"
    return mk(f"{op} s[{sSTAMP+2*k}:{sSTAMP+2*k+1}]")
def stamp(name, grp="m"): P.add(stampi(name, grp))
X3 = "bitop3:0x96"

def chk_code(regs, masked):
    r = list(regs)
    if masked: return f"v_bitop3_b32 v10, v{r[0]}, v{r[1]}, s{sMASK} bitop3:0x28\nv_cmp_ne_u32 vcc, v10, v6"
    if len(r) == 1: return f"v_cmp_ne_u32 vcc, v{r[0]}, v5"
    if len(r) == 2: t = f"v_xor_b32 v10, v{r[0]}, v{r[1]}"
    else:
        t = f"v_bitop3_b32 v10, v{r[0]}, v{r[1]}, v{r[2]} {X3}"
        if len(r) == 4: t += f"\nv_xor_b32 v10, v10, v{r[3]}"
    return t + "\nv_cmp_ne_u16 vcc, v10, v5"

sFL, sDM = 56, 57
GUARD = f"s_add_u32 s{sSPIN}, s{sSPIN}, 1\ns_cmp_gt_u32 s{sSPIN}, 0x40000\ns_cbranch_scc1 L_end\ns_waitcnt vmcnt(0)"
class Fetch:
    def __init__(self, name, pieces, masked=False, nre=1):
        self.name, self.pieces, self.masked, self.nre = name, pieces, masked, nre
    def loadc(self, i):
        it = flat([mk(c.replace(f"s{sCt}", f"s{sFL}")) for c in self.pieces[i][0]])
        out = []; cur = []
        for x in it:
            cur.append(x)
            if x.cls == 'vmem': out.append(cur); cur = []
        return out
    def load(self, i): return flat(self.loadc(i))
    def stub(self, i, last):
        n = self.name
        wgt = {"fo": 0x100, "fh": 0x10000, "f4": 0x1000000}.get(n, 1)
        rel = (f"s_add_u32 s80, s80, {wgt}\n" if DIAG else "") + "\n".join(c for j in range(i, min(last, i + self.nre - 1) + 1) for c in self.pieces[j][0])
        if opt("ool", 15) & {"fo": 2, "fh": 4, "f4": 8}[n]:
            TAIL.I(f"L_{n}_r{i}:\n" + rel + "\n" + GUARD + "\n" + chk_code(self.pieces[i][1], self.masked) + f"\ns_cbranch_vccnz L_{n}_r{i}\ns_branch L_{n}_ok{i}", unc=True)
            return mk(f"s_cbranch_vccnz L_{n}_r{i}\nL_{n}_ok{i}:")
        return mk(f"s_cbranch_vccz L_{n}_ok{i}\nL_{n}_r{i}:") + \
               mk(rel + "\n" + GUARD + "\n" + chk_code(self.pieces[i][1], self.masked) + f"\ns_cbranch_vccnz L_{n}_r{i}", unc=True) + mk(f"L_{n}_ok{i}:")
    def checkc(self, i, last):
        return [[x] for x in mk(chk_code(self.pieces[i][1], self.masked))] + [self.stub(i, last)]
    def check(self, i, last): return flat(self.checkc(i, last))

sFS, sFP = 80, 81
vL512, vPO, vPF = 0, 142, 143
def flag_store(nl): return mk(f"s_mov_b64 exec, {(1 << nl) - 1}\nbuffer_store_dword v5, v{vL512}, {WS}, s{sFS} offen sc1\ns_mov_b64 exec, -1")
def gate(name, vo, vf): return Fetch(name, [([f"buffer_load_dword v{vf}, v{vo}, {WS}, s{sFP} offen sc1"], [vf])])
GATE = opt("gate", 0)

def cost(it):
    if isinstance(it, WaitTag): return 4
    if it.cls in ('label', 'dir') or it.uncounted: return 0
    if it.op.startswith(TRANS) or 'permlane' in it.op: return 8
    if it.op.startswith('ds_write_b128'): return 28
    if it.cls == 'mfma': return 8
    return 4.5
class Sched:
    def __init__(self, groups):
        self.groups = groups; self.gap = [[] for _ in groups]; self.seq = 0
    def at(self, g, items, frac=0.5):
        self.seq += 1; self.gap[g].append((frac, self.seq, list(items)))
    def spread(self, chunks, a, b):
        chunks = [c if isinstance(c, list) else [c] for c in chunks]
        tot = sum(cost(i) for c in chunks for i in c) or 1; acc = 0
        for c in chunks:
            pos = a + (b - a) * acc / tot
            self.at(int(pos), c, pos - int(pos))
            acc += sum(cost(i) for i in c)
    def emit(self):
        out = []
        for g, gp in zip(self.groups, self.gap):
            out += g
            for _, _, c in sorted(gp, key=lambda x: (x[0], x[1])): out += c
        return out
def sprinkle(items, groups, start, step):
    out = []; groups = list(groups); nxt = start
    for i, it in enumerate(items):
        if groups and i == nxt: out += groups.pop(0); nxt += step
        out.append(it)
    for g in groups: out += g
    return out

def softmax(p, t, o, pk):
    q = Prog(); J = q.I
    m, n = t + 14, t + 15; r0, r1 = t + 16, t + 17
    J(f"v_max3_f32 v{m}, v{p}, v{p+1}, v{p+2}\nv_max3_f32 v{n}, -v{p}, -v{p+1}, -v{p+2}")
    for k in range(3, 13, 2):
        J(f"v_max3_f32 v{m}, v{m}, v{p+k}, v{p+k+1}\nv_max3_f32 v{n}, v{n}, -v{p+k}, -v{p+k+1}")
    J(f"""v_max_f32 v{m}, v{m}, v{p+13}
v_max_f32 v{n}, v{n}, -v{p+13}
v_permlane32_swap_b32 v{m}, v{n}
v_max_f32 v{m}, v{m}, v{n}
v_mul_f32 v{m}, v253, v{m}
v_mov_b32 v{n}, v{m}
v_permlane32_swap_b32 v{m}, v{n}""")
    if pk:
        for k in range(0, 14, 2):
            J(f"v_pk_fma_f32 {v(t+k,2)}, {v(p+k,2)}, v[252:253], {v(m,2)} op_sel_hi:[1,0,0]")
            J(f"v_pk_fma_f32 {v(p+k,2)}, {v(p+k,2)}, v[252:253], {v(m,2)} op_sel:[0,1,1] op_sel_hi:[1,1,1]")
    if pk == 2:
        for k in range(14):
            J(f"v_exp_f32 v{t+k}, v{t+k}\nv_exp_f32 v{p+k}, v{p+k}")
            if k >= 2:
                a0 = f"v{t}" if k == 2 else f"v{r0}"; a1 = f"v{p}" if k == 2 else f"v{r1}"
                J(f"v_add_f32 v{r0}, {a0}, v{t+k-1}\nv_add_f32 v{r1}, {a1}, v{p+k-1}")
        J(f"v_add_f32 v{m}, v{r0}, v{t+13}\nv_add_f32 v{n}, v{r1}, v{p+13}")
    elif pk:
        for k in range(14): J(f"v_exp_f32 v{t+k}, v{t+k}")
        for k in range(14): J(f"v_exp_f32 v{p+k}, v{p+k}")
        J(f"v_pk_add_f32 {v(m,2)}, {v(t,2)}, {v(t+2,2)}\nv_pk_add_f32 {v(r0,2)}, {v(p,2)}, {v(p+2,2)}")
        for k in range(4, 14, 2):
            J(f"v_pk_add_f32 {v(m,2)}, {v(m,2)}, {v(t+k,2)}\nv_pk_add_f32 {v(r0,2)}, {v(r0,2)}, {v(p+k,2)}")
        J(f"v_add_f32 v{m}, v{m}, v{n}\nv_add_f32 v{n}, v{r0}, v{r1}")
    else:
        for k in range(14):
            J(f"v_fma_f32 v{t+k}, v{p+k}, v252, v{m}\nv_fma_f32 v{p+k}, v{p+k}, v253, v{n}\nv_exp_f32 v{t+k}, v{t+k}\nv_exp_f32 v{p+k}, v{p+k}")
            if k >= 2:
                a0 = f"v{t}" if k == 2 else f"v{r0}"; a1 = f"v{p}" if k == 2 else f"v{r1}"
                J(f"v_add_f32 v{r0}, {a0}, v{t+k-1}\nv_add_f32 v{r1}, {a1}, v{p+k-1}")
        J(f"v_add_f32 v{m}, v{r0}, v{t+13}\nv_add_f32 v{n}, v{r1}, v{p+13}")
    J(f"""v_permlane32_swap_b32 v{m}, v{n}
v_add_f32 v{m}, v{m}, v{n}
v_rcp_f32 v{m}, v{m}
v_mov_b32 v{n}, v{m}
v_permlane32_swap_b32 v{m}, v{n}""")
    if pk == 1:
        for k in range(0, 14, 2):
            J(f"v_pk_mul_f32 {v(t+k,2)}, {v(t+k,2)}, {v(m,2)} op_sel_hi:[1,0]")
            J(f"v_pk_mul_f32 {v(p+k,2)}, {v(p+k,2)}, {v(m,2)} op_sel:[0,1] op_sel_hi:[1,1]")
    else:
        for k in range(14): J(f"v_mul_f32 v{t+k}, v{t+k}, v{m}\nv_mul_f32 v{p+k}, v{p+k}, v{n}")
    for k in range(7): J(f"v_cvt_pk_bf16_f32 v{o+k}, v{t+2*k}, v{t+2*k+1}")
    for k in range(7): J(f"v_cvt_pk_bf16_f32 v{o+7+k}, v{p+2*k}, v{p+2*k+1}")
    return q.items

def dmag(vaddrs, srd, sbase, sadd, mbase, madd, tag, sreg=None):
    sr = sCt if sreg is None else sreg
    ch = [mk(f"buffer_load_dwordx4 v{a}, {srd}, s{sr} offen offset:{1024*i} lds", tag=tag) for i, a in enumerate(vaddrs)]
    ch[0] = mk(f"s_add_u32 m0, s{mbase}, {madd}\ns_add_u32 s{sr}, s{sbase}, {sadd}") + ch[0]
    return ch

MF = "v_mfma_f32_32x32x16_bf16"
RINGA, NRING = 224, 8
def gemm_lds(steps, ahead=6):
    def rd(i):
        av, o1, o2 = steps[i][:3]; r = RINGA + 4 * (i % NRING)
        return mk(f"ds_read_b64_tr_b16 {a_(r,2)}, v{av} offset:{o1}\nds_read_b64_tr_b16 {a_(r+2,2)}, v{av} offset:{o2}")
    rds = [rd(i) for i in range(len(steps))]
    groups = []
    for i, st in enumerate(steps):
        r = RINGA + 4 * (i % NRING); b, acc, first, swap = st[3]
        A, B = a_(r, 4), v(b, 4)
        if swap: A, B = B, A
        g = mk(f"{MF} {v(acc,16)}, {A}, {B}, {'0' if first else v(acc,16)}")
        if i % 2 == 0 and i + 1 < len(steps):
            r2 = RINGA + 4 * ((i + 1) % NRING); g[0].extra = [('a', r2 + x) for x in range(4)]
        groups.append(g + (rds[i + ahead] if i + ahead < len(steps) else []))
    return flat(rds[:ahead]), groups

FAST = opt('fast', 1)
LO = """s_load_dwordx2 s[12:13], s[0:1], 8
s_load_dwordx2 s[16:17], s[0:1], 16
s_load_dwordx2 s[20:21], s[0:1], 24
s_load_dwordx2 s[24:25], s[0:1], 40
s_load_dwordx2 s[28:29], s[0:1], 48
s_load_dwordx2 s[32:33], s[0:1], 56
s_load_dwordx2 s[36:37], s[0:1], 72
"""
CP = f"""v_lshlrev_b32 v3, 4, v1
v_lshl_add_u32 v3, v2, 6, v3
v_lshl_add_u32 v3, v2, 4, v3
v_add_u32 v3, s{sCt}, v3
v_lshlrev_b32 v3, 7, v3
s_and_b32 s76, s76, 0xffffff00
s_mov_b64 exec, 31
global_load_dword v236, v3, s[76:77]
s_mov_b64 exec, -1
"""
MAP1 = [f"""{"s_lshr_b32 s4, s70, 1" if opt("pair", 1) else "s_and_b32 s4, s70, 3"}
s_lshl_b32 s{sT}, s{sT}, 2
s_and_b32 s{sD}, s{sB}, 3
s_add_u32 s{sT}, s{sT}, s{sD}
{"s_and_b32 s59, s70, 1" if opt("pair", 1) else "s_lshr_b32 s59, s70, 2"}
s_lshl_b32 s{sH}, s{sP}, 3
s_lshr_b32 s{sD}, s{sB}, 2
s_add_u32 s{sH}, s{sH}, s{sD}
s_mul_i32 s{sP}, s{sT}, {opt("rt", 2)}
s_add_u32 s{sD}, s{sD}, s{sP}
s_mul_i32 s{sP}, s{sD}, 37
s_lshr_b32 s{sP}, s{sP}, 8
s_mul_i32 s{sP}, s{sP}, 7
s_sub_u32 s{sD}, s{sD}, s{sP}
s_lshl_b32 s{sKX}, s{sD}, 7
""",
f"""s_lshl_b32 s{sT}, s{sA}, 1
s_lshr_b32 s{sD}, s{sB}, 4
s_add_u32 s{sT}, s{sT}, s{sD}
s_mov_b32 s{sH}, s{sCt}
s_and_b32 s{sD}, s{sH}, 7
s_cmp_eq_u32 s{sD}, 7
s_cselect_b32 s{sD}, 3, s{sD}
s_lshl_b32 s{sKX}, s{sD}, 7
""",
f"""s_mov_b32 s{sT}, s{sCt}
s_lshl_b32 s{sH}, s{sA}, 1
s_lshr_b32 s{sD}, s{sB}, 4
s_add_u32 s{sH}, s{sH}, s{sD}
s_and_b32 s{sD}, s{sH}, 7
s_mul_i32 s{sD}, s{sD}, 3
s_mul_i32 s{sP}, s{sD}, 37
s_lshr_b32 s{sP}, s{sP}, 8
s_mul_i32 s{sP}, s{sP}, 7
s_sub_u32 s{sD}, s{sD}, s{sP}
s_lshl_b32 s{sKX}, s{sD}, 7
"""][opt("map1", 0)]
if DIAG: I("s_memrealtime s[78:79]")
I(f"""s_cmp_ge_u32 s2, 256
s_cbranch_scc1 L_end
s_load_dwordx2 s[8:9], s[0:1], 0
{LO if not FAST else ''}{"s_waitcnt lgkmcnt(0)" + chr(10) + "s_memrealtime s[88:89]" if opt("bare", 0) else ""}
s_getpc_b64 s[76:77]
v_and_b32 v1, 63, v0
v_lshrrev_b32 v2, 6, v0
s_and_b32 s{sA}, s2, 7
v_readfirstlane_b32 s{sW}, v2
s_lshr_b32 s{sB}, s2, 3
s_and_b32 s{sCt}, s{sB}, 15
{CP if FAST < 2 else ''}{MAP1}
s_mov_b32 s10, 1835008
s_mov_b32 s11, 0x20000
v_lshrrev_b32 v2, 3, v1
v_mul_u32_u24 v244, 896, v2
v_lshrrev_b32 v2, 4, v1
v_and_b32 v8, 7, v1
v_xor_b32 v2, v2, v8
v_lshl_add_u32 v244, v2, 4, v244
v_xor_b32 v245, 64, v244
v_add_u32 v245, {7168-1024}, v245
v_add_u32 v246, {2*(7168-1024)}, v244
v_add_u32 v247, {2*(7168-1024)}, v245
s_lshl_b32 s{sQ}, s{sT}, 2
s_add_u32 s{sQ}, s{sQ}, s{sW}
s_mul_i32 s{sQ}, s{sQ}, {32*896}
s_lshr_b32 s{sXO}, s{sW}, 1
s_add_u32 s{sXO}, s{sXO}, s{sW}
s_mul_i32 s{sXO}, s{sXO}, {XW}
s_waitcnt lgkmcnt(0)""")
st0 = stampi("start")
if not opt("bare", 0): P.add(st0)
def xdma(g): return flat(dmag([244, 245, 246, 247], X, sQ, f"s{sKX+g}", sXO, 4096*g, f"x{g}"))
P.add(xdma(0))
if FAST: I(LO)
if FAST == 2: I(f"v_lshrrev_b32 v2, 6, v0\ns_and_b32 s{sCt}, s{sB}, 15\n" + CP)
I(f"""s_mov_b32 s14, {0 if opt('abl',0)&8 else 1204224}
s_mov_b32 s15, 0x20000
v_and_b32 v8, 3, v1""")
def wtouch(mask16, dst):
    m = mask16 | (mask16 << 16)
    return mk(f"s_mov_b32 exec_lo, {hex(m)}\ns_mov_b32 exec_hi, {hex(m)}\nbuffer_load_dword v{dst}, v255, {WQKV}, 0 offen\ns_mov_b64 exec, -1")
def kxs(g): return mk(f"s_add_u32 s{sKX+g}, s{sKX+g-1}, 128\ns_cmp_ge_u32 s{sKX+g}, 896\ns_cselect_b32 s{sD}, 896, 0\ns_sub_u32 s{sKX+g}, s{sKX+g}, s{sD}")
NXE = opt("nxe", 2)
if opt("wtfirst", 1) and opt("wt0", 0): P.add(wtouch(opt("wt0", 0), 237))
for g in range(1, NXE): P.add(kxs(g) + xdma(g))
if not opt("wtfirst", 1) and opt("wt0", 0): P.add(wtouch(opt("wt0", 0), 237))
if FAST: I("s_waitcnt lgkmcnt(0)")
if opt("wsoff", 0): I(f"s_add_u32 s36, s36, {opt('wsoff', 0)}\ns_addc_u32 s37, s37, 0")
I(f"""s_mov_b32 s38, {WS_SIZE}
s_mov_b32 s39, 0x20000
s_mov_b32 s18, 25088
s_mov_b32 s19, 0x20000
s_mov_b32 s22, {0 if opt('abl',0)&4 else 401408}
s_mov_b32 s23, 0x20000
s_xor_b32 s{sHQ}, s{sH}, 1
v_mov_b32 v11, 0
v_lshlrev_b32 v6, 7, v1""")
TM = opt("tm", 0)
sm_ld = mk(f"""s_mov_b64 exec, 1
buffer_load_dword v5, v6, {WS}, 0 offen sc1""")
if opt("two_", 1): sm_ld += mk(f"""s_lshl_b32 s56, s2, 2
s_add_u32 s56, s56, s{sW}
s_lshl_b32 s56, s56, 9
s_mov_b64 exec, 15
buffer_load_dword v238, v6, {WO}, s56 offen""")
if opt("twp", 0): sm_ld += mk(f"""s_and_b32 s{sCt}, s{sH}, 14
s_mul_i32 s{sCt}, s{sCt}, 1568
s_mul_i32 s56, s{sW}, 896
s_add_u32 s{sCt}, s{sCt}, s56
s_mov_b64 exec, 127
buffer_load_dword v239, v6, {WPHI}, s{sCt} offen""")
sm_ld += mk("s_mov_b64 exec, -1")
if TM == 0: P.add(sm_ld)
for g in range(NXE, 7): P.add(kxs(g))
I(f"""s_lshl_b32 s{sT2}, s{sA}, 1
s_lshr_b32 s{sD}, s{sB}, 4
s_add_u32 s{sT2}, s{sT2}, s{sD}
s_and_b32 s{sRact}, s{sB}, 15
s_min_u32 s{sR}, s{sRact}, 13
s_mov_b32 s26, {0 if opt('abl',0)&1 else 1605632}
s_mov_b32 s27, 0x20000
s_mov_b32 s30, {0 if opt('abl',0)&2 else 1605632}
s_mov_b32 s31, 0x20000
s_mov_b32 s34, 1835008
s_mov_b32 s35, 0x20000
s_mov_b32 s64, 0
s_mov_b32 s65, -1
s_mov_b32 s{sONES}, 0x3f803f80
s_mov_b32 s{sMASK}, 0xbfffbfff
s_mov_b32 s{sHIM}, 0xffff0000
s_mov_b32 s{sSPIN}, 0
s_mov_b32 s80, 0
s_cmp_ge_u32 s{sR}, 7
s_cselect_b32 s{sU}, 1, 0
s_mul_i32 s{sA}, s{sU}, 7
s_sub_u32 s{sC}, s{sR}, s{sA}""")
sT3 = 67
if opt("map3", 1):
    I(f"""s_and_b32 s{sA}, s{sT2}, 12
s_and_b32 s{sD}, s{sT2}, 1
s_lshl_b32 s{sD}, s{sD}, 1
s_add_u32 s{sA}, s{sA}, s{sD}
s_add_u32 s{sT3}, s{sA}, s{sU}
s_bfe_u32 s{sA}, s{sT2}, 0x10001
s_mul_i32 s{sA}, s{sA}, 7
s_add_u32 s{sR}, s{sA}, s{sC}""")
else: I(f"s_mov_b32 s{sT3}, s{sT2}")
for g in range(7): I(f"s_mul_i32 s{sKW+g}, s{sKX+g}, {172032//128}")
I(f"""s_mul_i32 s{sWB}, s{sH}, 56
s_mul_i32 s{sD}, s{sW}, 43008
s_add_u32 s{sWB}, s{sWB}, s{sD}
s_mul_i32 s{sWQ}, s{sHQ}, 56
s_add_u32 s{sWQ}, s{sWQ}, s{sD}
s_add_u32 s{sWB}, s{sWB}, 896
s_lshl_b32 s{sWM}, s{sW}, 10
s_mul_i32 s66, s{sH}, 1568
s_mul_i32 s81, s{sHQ}, 1568""")
_m0 = len(P.items)
I(f"""s_lshl_b32 s{sA}, s{sH}, 4
s_add_u32 s{sA}, s{sA}, s{sT}
s_mul_i32 s{sA}, s{sA}, 4608
s_add_u32 s{sA}, s{sA}, {WS_PART}
s_add_u32 s{sPST}, s{sA}, s{sWM}
s_lshl_b32 s{sD}, s{sW}, 7
s_add_u32 s{sA}, s{sA}, s{sD}
s_add_u32 s{sPCK}, s{sA}, 4096
s_lshl_b32 s{sA}, s{sT}, 2
s_add_u32 s{sA}, s{sA}, s{sW}
s_lshl_b32 s{sA}, s{sA}, 15
s_lshl_b32 s{sB}, s{sHQ}, 11
s_add_u32 s{sA}, s{sA}, s{sB}
s_add_u32 s{sOST}, s{sA}, {WS_O}
s_lshl_b32 s{sA}, s{sT2}, 2
s_lshl_b32 s{sB}, s{sU}, 1
s_add_u32 s{sA}, s{sA}, s{sB}
s_and_b32 s{sB}, s{sW}, 1
s_add_u32 s{sTILE}, s{sA}, s{sB}
s_mul_i32 s{sA}, s{sA}, {32*896}
s_lshl_b32 s{sB}, s{sC}, 7
s_add_u32 s{sA}, s{sA}, s{sB}
s_mul_i32 s{sD}, s{sW}, {16*896}
s_add_u32 s{sXRB}, s{sA}, s{sD}
s_mul_i32 s{sA}, s{sTILE}, {32*896}
s_add_u32 s{sA}, s{sA}, s{sB}
s_lshr_b32 s{sB}, s{sW}, 1
s_lshl_b32 s{sB}, s{sB}, 6
s_add_u32 s{sOUT}, s{sA}, s{sB}
s_mul_i32 s{sP}, s{sHQ}, {16*4608}
s_add_u32 s{sP}, s{sP}, {WS_PART}""")
deferred = P.items[_m0:]; del P.items[_m0:]
WPK, WPQ, WPT = 192, 200, 208
vWPA, vWPB, vKVX, vIMW, vKA, vKB, vFPD, vFPC, vWO0, vWO1, vXRD0, vXRD1, vXRR, vWOR = range(128, 142)
I(f"""v_lshrrev_b32 v3, 5, v1
v_lshlrev_b32 v2, 4, v1
v_lshlrev_b32 v4, 2, v1
v_bfe_u32 v11, v1, 3, 2
v_lshl_add_u32 v11, v11, 2, v8
v_bfe_u32 v12, v1, 2, 1
v_mul_u32_u24 v12, 14, v12
v_min_u32 v13, 13, v11
v_add_u32 v13, v13, v12
v_lshlrev_b32 v13, 1, v13
v_mul_u32_u24 v14, 224, v3
v_add_u32 v{vWPA}, v13, v14
v_lshl_add_u32 v{vWPB}, v3, 20, v{vWPA}
v_add_u32 v12, v12, v11
v_cmp_gt_u32 vcc, 14, v11
v_lshrrev_b32 v7, 2, v1
v_mul_u32_u24 v7, 2688, v7
v_cndmask_b32 v12, 28, v12, vcc
v_and_b32 v13, 15, v12
v_lshlrev_b32 v13, 4, v13
v_lshrrev_b32 v12, 4, v12
v_lshl_add_u32 v13, v12, 3, v13
v_lshl_add_u32 v13, v3, 8, v13
v_add_u32 v{vKVX}, {L_KVX}, v13
v_lshlrev_b32 v11, 4, v8
v_min_u32 v11, 40, v11
v_add_u32 v7, v7, v11
v_and_b32 v9, 31, v1
v_lshlrev_b32 v240, 7, v9
v_bfe_u32 v11, v1, 1, 3
v_xor_b32 v11, v11, v3
v_lshl_add_u32 v240, v11, 4, v240
v_add_u32 v240, s{sXO}, v240
v_xor_b32 v241, 32, v240
v_xor_b32 v242, 64, v240
v_xor_b32 v243, 96, v240
v_mov_b32 v250, 0
v_mov_b32 v251, 0""")
_m0 = len(P.items)
I(f"""s_lshl_b32 s{sA}, s{sW}, 5
v_add_u32 v10, s{sA}, v9
v_mul_u32_u24 v10, 208, v10
v_mul_u32_u24 v11, 96, v3
v_add_u32 v{vIMW}, v10, v11
v_lshrrev_b32 v10, 4, v1
v_bfe_u32 v15, v1, 2, 2
v_lshl_add_u32 v10, v10, 3, v15
v_mul_u32_u24 v10, 208, v10
v_and_b32 v11, 1, v1
v_mul_u32_u24 v11, 96, v11
v_add_u32 v10, v10, v11
v_bfe_u32 v11, v1, 1, 1
v_lshl_add_u32 v10, v11, 3, v10
v_add_u32 v{vKB}, {L_IMG}, v10
s_lshl_b32 s{sA}, s{sW}, 4
v_add_u32 v{vKA}, s{sA}, v{vKB}
v_add_u32 v{vFPD}, s{sWM}, v2
s_lshl_b32 s{sD}, s{sW}, 7
s_add_u32 s{sD}, s{sD}, 4096
v_lshlrev_b32 v0, 1, v1
v_add_u32 v{vFPC}, s{sD}, v0
v_lshrrev_b32 v12, 3, v1
v_mul_u32_u24 v14, 896, v12
v_and_b32 v13, 7, v1
v_xor_b32 v12, v12, v13
v_lshl_add_u32 v{vXRD0}, v12, 4, v14
v_add_u32 v{vXRD1}, {7168-1024}, v{vXRD0}
v_bfe_u32 v12, v1, 4, 1
v_lshlrev_b32 v11, 2, v12
v_xor_b32 v11, v11, v13
v_lshl_add_u32 v{vWO0}, v11, 4, v14
v_add_u32 v{vWO1}, {7168-1024}, v{vWO0}
s_and_b32 s{sA}, s{sW}, 1
s_lshl_b32 s{sA}, s{sA}, 12
s_add_u32 s{sA}, s{sA}, {L_XCH}
v_lshlrev_b32 v10, 7, v9
v_lshl_add_u32 v10, v3, 3, v10
v_add_u32 v10, s{sA}, v10
s_lshr_b32 s{sA}, s{sW}, 1
s_lshl_b32 s{sB}, s{sA}, 2
v_xor_b32 v13, s{sB}, v13
v_lshl_add_u32 v{vXRR}, v13, 4, v10
v_mad_u32_u24 v10, v3, 14, v15
v_lshlrev_b32 v10, 7, v10
v_bfe_u32 v13, v1, 3, 1
v_xor_b32 v13, v13, v3
v_xor_b32 v13, s{sA}, v13
v_lshl_add_u32 v10, v13, 6, v10
v_lshl_add_u32 v10, v12, 5, v10
v_lshl_add_u32 v10, v8, 3, v10
s_mul_i32 s{sA}, s{sA}, {8*28*128}
s_add_u32 s{sA}, s{sA}, {L_WO}
v_add_u32 v{vWOR}, s{sA}, v10
v_lshl_add_u32 v11, v3, 3, v15
v_lshlrev_b32 v11, 6, v11
v_lshl_add_u32 v12, v12, 2, v8
v_cmp_lt_u32 vcc, 5, v12
v_xor_b32 v13, 1, v12
v_cndmask_b32 v12, v12, v13, vcc
v_lshl_add_u32 v11, v12, 3, v11
v_add_u32 v13, {L_WK}, v11""")
I(f"""v_bfe_u32 v10, v1, 2, 1
v_bfe_u32 v14, v1, 4, 1
v_lshl_add_u32 v10, v14, 1, v10
v_cmp_eq_u32 vcc, v10, v3
v_and_b32 v10, 1, v1
v_lshlrev_b32 v10, 4, v10
v_mov_b32 v14, 0x3f80
v_lshlrev_b32 v10, v10, v14
v_cndmask_b32 v10, 0, v10, vcc
v_bfe_u32 v14, v1, 3, 1
v_bfe_u32 v15, v1, 1, 1
v_lshl_add_u32 v14, v14, 1, v15""")
for q in range(4): I(f"v_cmp_eq_u32 vcc, {q}, v14\nv_cndmask_b32 v15, 0, v10, vcc\nv_accvgpr_write_b32 a{220+q}, v15")
I("v_add_u32 v9, 896, v7")
deferred += P.items[_m0:]; del P.items[_m0:]
NDEF0 = opt("ndef0", 70)
P.add(deferred[:NDEF0]); deferred = deferred[NDEF0:]
L2N = 0
if L2N:
    I(f"""s_mov_b32 s{sCt}, 0x60504020
s_cmp_ge_u32 s{sH}, 8
s_cselect_b32 s{sCt}, 0x53020100, s{sCt}
s_and_b32 s{sD}, s{sH}, 7
s_lshl_b32 s{sD}, s{sD}, 2
s_lshr_b32 s{sCt}, s{sCt}, s{sD}
s_and_b32 s{sCt}, s{sCt}, 15
s_and_b32 s{sD}, s{sT}, 3
s_mul_i32 s{sD}, s{sD}, 7
s_add_u32 s{sCt}, s{sCt}, s{sD}
s_lshl_b32 s{sCt}, s{sCt}, 2
s_add_u32 s{sCt}, s{sCt}, s{sW}
s_mul_i32 s66, s{sCt}, 14336
s_add_u32 s81, s66, 57344
s_lshl_b32 s{sD}, s{sH}, 1
s_lshr_b32 s{sD}, 0xa111444a, s{sD}
s_and_b32 s{sD}, s{sD}, 3
s_cmp_ge_u32 s{sD}, 1
s_cselect_b32 s66, s66, 0x10000000
s_cmp_ge_u32 s{sD}, 2
s_cselect_b32 s81, s81, 0x10000000
v_add_u32 v143, 7168, v6""")
def l2n(k): return mk(f"s_mov_b32 exec_hi, 0xffffff\nbuffer_load_dword v{142}, v{6 if k % 2 == 0 else 143}, {W1}, s{66 if k < 2 else 81} offen\ns_mov_b32 exec_hi, -1")
stamp("setup done", "p")
def wphi(dst, tmp, so):
    q = []
    for t in range(2):
        for j in range(8):
            d = 16 * t + 8 * (j >> 2) + (j & 3)
            av = vWPB if (t == 1 and j >= 4) else vWPA
            r = (dst if j % 2 == 0 else tmp) + 4 * t + j // 2
            op = "buffer_load_short_d16" if j % 2 == 0 else "buffer_load_short_d16_hi"
            q += mk(f"{op} v{r}, v{av}, {WPHI}, s{so} offen offset:{d*56}")
    return q
def wkdma(g): return flat(dmag([7], WQKV, sWB, f"s{sKW+g}", sWM, L_WK + 4096*g, f"wk{g}"))
def wvdma(g): return flat(dmag([9], WQKV, sWB, f"s{sKW+g}", sWM, L_WV + 4096*g, f"wv{g}"))
def wqdma(g): return flat(dmag([7], WQKV, sWQ, f"s{sKW+g}", sWM, L_WQ + 4096*g, f"wq{g}"))
if opt("fake", 0):
    I(f"""v_mov_b32 v7, v2
v_add_u32 v9, 24576, v2
s_mul_i32 s{sWB}, s{sH}, 73728
s_add_u32 s{sWB}, s{sWB}, s{sWM}
s_mul_i32 s{sWQ}, s{sHQ}, 73728
s_add_u32 s{sWQ}, s{sWQ}, s{sWM}
s_add_u32 s{sWQ}, s{sWQ}, 45056""")
    for g in range(7): I(f"s_lshl_b32 s{sKW+g}, s{sKX+g}, 5")
XF = 16
NX0 = opt("nx0", 3)
if opt("wt1", 0): P.add(wtouch(opt("wt1", 0), 249))
WPP = opt("wpp", 1)
if WPP == 1: P.add(wphi(WPK, WPT, 66) + wphi(WPQ, WPT+8, 81))
for g in range(NXE, NX0): P.add(xdma(g))
if WPP == 2: P.add(wphi(WPK, WPT, 66) + wphi(WPQ, WPT+8, 81))
pend = [xdma(g) for g in range(NX0, 7)]
wkl = [wkdma(g) for g in range(7)]
if TM and TM < NX0: P.add(sm_ld)
elif TM: pend[TM - NX0] = pend[TM - NX0] + sm_ld
if opt("wt2", 0): pend[-1] = pend[-1] + wtouch(opt("wt2", 0), 248)
pend.append(wkl.pop(0) + (wphi(WPK, WPT, 66) if not WPP else []))
pend.append(wkl.pop(0) + (wphi(WPQ, WPT+8, 81) if not WPP else []))
while len(pend) < 7: pend.append(wkl.pop(0))
def xrd(g): return flat([mk(f"ds_read_b128 {v(XF+16*g+4*e,4)}, v{240+e} offset:{4096*g}") for e in range(4)])
P.wait("x0"); P.add(xrd(0))
for g in range(7):
    if pend: P.add(pend.pop(0))
    if g + 1 < 7: P.wait(f"x{g+1}"); P.add(xrd(g + 1))
    for i in range(16):
        r = XF + 16*g + i
        I(f"v_dot2c_f32_bf16 v250, s{sONES}, v{r}\nv_dot2c_f32_bf16 v251, v{r}, v{r}")
    nd_ = -(-len(deferred) // max(1, opt("ndi", 6) - g)) if g < opt("ndi", 6) else len(deferred)
    P.add(deferred[:nd_]); deferred = deferred[nd_:]
    if g == 0: stamp("x0 done", "p")
for x_ in pend: P.add(x_)
if opt("tp", 0) == 2:
    I(f"""s_mul_i32 s{sCt}, s2, {52*128}
s_mul_i32 s{sD}, s{sW}, {13*128}
s_add_u32 s{sCt}, s{sCt}, s{sD}
s_mov_b64 exec, 0x1fff
buffer_load_dword v254, v6, {W2}, s{sCt} offen
buffer_load_dword v255, v6, {W1}, s{sCt} offen
s_mov_b64 exec, -1""")
stamp("x stats done", "mp")
I(f"""v_permlane32_swap_b32 v250, v251
v_readfirstlane_b32 s{sA}, v5
s_nop 0
v_add_f32 v250, v250, v251
v_mul_f32 v250, {fhex(-1/448)}, v250
v_mov_b32 v251, v250
s_or_b32 s{sA}, s{sA}, 1
s_mul_i32 s{sA}, s{sA}, 0x9E3779B5
v_mov_b32 v5, s{sA}
s_mov_b32 s{sA}, 0x3f80
v_permlane32_swap_b32 v250, v251
s_mov_b32 s{sB}, 0x3f800000""")
fin = mk(f"""v_fma_f32 v251, -v250, v250, -v251
v_max_f32 v251, 0, v251
v_add_f32 v251, 0x3727c5ac, v251
v_rsq_f32 v251, v251
s_lshl_b32 s{sQ}, s{sC}, 7
s_mul_i32 s{sD}, s{sW}, {16*896}
v_mul_f32 v252, 0x3fb8aa3b, v251
v_mul_f32 v253, 0xbfb8aa3b, v251
s_add_u32 s{sQ}, s{sQ}, s{sD}
s_lshl_b32 s{sXO}, s{sW}, 11""")
if opt("noid", 1): fin = [mk(f"s_cmp_ge_u32 s{sRact}, 14\ns_cselect_b32 s22, 0, s22")] + fin
ACK = 144; ACV = 160; PK = 176; IMG = 208; TMP = 232
def norm(t):
    q = Prog(); tb = TMP + 8 * (t & 1)
    for i in range(4):
        r = XF + 4 * t + i
        q.I(f"v_dot2_f32_bf16 v{tb+2*i}, v{r}, s{sA}, v250\nv_dot2_f32_bf16 v{tb+2*i+1}, v{r}, s{sB}, v250")
    return q.items
def normc(t):
    tb = TMP + 8 * (t & 1)
    return flat([mk(f"v_cvt_pk_bf16_f32 v{XF+4*t+i}, v{tb+2*i}, v{tb+2*i+1}") for i in range(4)])
def l2t(srd, k, dst):
    return mk(f"""s_lshr_b32 s{sCt}, s2, 3
s_lshl_b32 s{sCt}, s{sCt}, 2
s_add_u32 s{sCt}, s{sCt}, s{sW}
s_mul_i32 s{sCt}, s{sCt}, {98*128}
s_mov_b32 exec_hi, 0x1ffff
s_add_u32 s{sCt}, s{sCt}, {k*49*128}
buffer_load_dword v{dst}, v6, {srd}, s{sCt} offen
s_mov_b32 exec_hi, -1""")
L2A, L2B = opt("l2a", -1), opt("l2b", -1)
touch = mk(f"""s_mul_i32 s{sCt}, s2, {52*128}
s_mul_i32 s56, s{sW}, {13*128}
s_add_u32 s{sCt}, s{sCt}, s56
s_mov_b64 exec, 0x1fff
buffer_load_dword v255, v6, {W1}, s{sCt} offen
buffer_load_dword v254, v6, {W2}, s{sCt} offen
s_mov_b64 exec, -1""")
TP = opt('tp', 0)
ns = norm(0)
for t in range(1, 28): ns += norm(t) + normc(t - 1)
ns += normc(27)
NBAR = opt("nbar", 100)
wvl = [wvdma(k) for k in range(7)]
if opt("loop2", 0):
    I("s_mov_b32 s80, 0\nL_lp2:\ns_mov_b32 s101, s100\ns_memtime s[78:79]\ns_waitcnt lgkmcnt(0)\ns_mov_b32 s99, s78")
    P.add([Ins(x.text) for x in ns])
    I("s_memtime s[78:79]\ns_waitcnt lgkmcnt(0)\ns_sub_u32 s100, s78, s99\ns_add_u32 s100, s100, s88\ns_add_u32 s80, s80, 1\ns_cmp_lt_u32 s80, 2\ns_cbranch_scc1 L_lp2")
    nstamp[0] = 14
P.add(sprinkle(ns[:NBAR], wkl, 0, opt("wkstep", 30)))
if opt("touch", 1) and TP == 1: P.add(touch)
I("s_barrier")
NWV0 = opt("nwv0", 4)
w0_ = [wvl.pop(0) for _ in range(NWV0)]
if L2N == 1: w0_[0] = l2n(0) + w0_[0]; w0_[-1] = w0_[-1] + l2n(2); wvl[-1] = wvl[-1] + l2n(1)
if L2N == 2: wvl[-1] = wvl[-1] + l2n(0) + l2n(2)
P.add(sprinkle(ns[NBAR:], w0_, opt("wv0", 30), opt("wvstep", 50)))
P.wait(*[f"wk{k}" for k in range(7)]); I("s_barrier")
stamp("wk landed", "p")
if opt("zy", 0): I(f"s_sleep {opt('zy', 0)}")
AH = 6
sW1B, sW1M, sW2E, sW2L = 40, 41, 42, 43
set2 = mk(f"""v_lshrrev_b32 v10, 4, v1
v_mul_u32_u24 v12, 3584, v10
v_lshlrev_b32 v10, 2, v10
v_and_b32 v13, 15, v1
v_xor_b32 v10, v10, v13
v_lshl_add_u32 v12, v10, 4, v12
v_add_u32 v13, {4*3584-1024}, v12
v_add_u32 v14, {2*(4*3584-1024)}, v12
v_add_u32 v15, {3*(4*3584-1024)}, v12
s_lshl_b32 s{sW1B}, s{sR}, 8
s_mul_i32 s{sD}, s{sW}, {16*3584}
s_add_u32 s{sW1B}, s{sW1B}, s{sD}
s_lshl_b32 s{sW1M}, s{sW}, 12
s_lshr_b32 s{sA}, s{sW}, 1
s_lshl_b32 s{sA}, s{sA}, 2
s_andn2_b32 s{sB}, 1, s{sW}
s_add_u32 s{sA}, s{sA}, s{sB}
s_lshl_b32 s{sB}, s{sU}, 1
s_add_u32 s44, s{sA}, s{sB}
s_xor_b32 s45, s44, 2
s_lshl_b32 s{sD}, s{sC}, 7
s_mul_i32 s{sW2E}, s44, {32*896}
s_add_u32 s{sW2E}, s{sW2E}, s{sD}
s_mul_i32 s{sW2L}, s45, {32*896}
s_add_u32 s{sW2L}, s{sW2L}, s{sD}
""")
vW2 = [vWO0, vWO1, 128, 129]
sSCR, sBIG = 46, 47
NA = opt("na", 0)
NUR = opt("nur", 2); NT1 = min(NA, opt("nt1", 99))
_u = list(range(14))
def take(n): return [_u.pop(0) for _ in range(min(n, len(_u)))]
UAW = take(NA); UR = take(NUR); UD = take(2); UE = take(3); UL = take(opt("nrl", 3)); UP = take(99)
RAWS = UAW + UR + UL
def UA(j): return 16*j
def w2slot(j):
    if j in UE: return (sSCR, 4096*UE.index(j), 254)
    if j in UAW + UR + UD: return (sSCR, 4096*(j & 1), 254)
    return (sBIG, 4096*(UL + UP).index(j), 252)
def w2dma(j):
    mb, mo, _ = w2slot(j)
    return dmag(vW2, W2, sW2E if j < 7 else sW2L, (j%7)*256*896, mb, mo, f"w2_{j}", sDM)
def w2raw(j):
    ch = [mk(f"buffer_load_dwordx4 {a_(UA(j)+4*q,4)}, v{vW2[q]}, {W2}, s81 offen offset:{1024*q}") for q in range(4)]
    ch[0] = mk(f"s_add_u32 s81, s{sW2E if j < 7 else sW2L}, {(j%7)*256*896}") + ch[0]
    return ch
def w2rd(j):
    _, mo, av = w2slot(j)
    if j in RAWS: out = [mk(f"ds_write_b128 v{131 if j in UL else 134}, {a_(UA(j)+4*q,4)} offset:{mo+1024*q}") for q in range(4)]
    else: out = [[WaitTag([f"w2_{j}"])]]
    for e in range(2):
        for mu in range(2):
            for u in range(2): out.append(mk(f"ds_read_b64_tr_b16 {a_(UA(j)+8*e+4*mu+2*u,2)}, v{av+mu} offset:{mo+2048*e+1024*u}"))
    return out
raw = flat([w2raw(j) for j in UR])
rawA = flat([w2raw(j) for j in UAW])
if opt("noid", 1): set2 = [mk(f"s_cmp_ge_u32 s{sRact}, 14\ns_cselect_b32 s26, 0, s26")] + set2
set2 += mk(f"v_add_u32 v128, {2*(7168-1024)}, v{vWO0}\nv_add_u32 v129, {3*(7168-1024)}, v{vWO0}")
set2b = [x for x in set2 if isinstance(x, Ins) and x.cls == 'valu' and x.defs[0][1] < 128]
if opt("trim", 1):
    set2 = [mk(f"""s_cmp_eq_u32 s{sW}, 3
s_cselect_b64 vcc, {sHI}, 0
v_mov_b32 v143, 0x10000000
v_add_u32 v133, s{sWM}, v2
v_cndmask_b32 v142, v5, 0, vcc
v_cndmask_b32 v{vFPD}, v{vFPD}, v143, vcc
v_cndmask_b32 v{vFPC}, v{vFPC}, v143, vcc""")] + set2
set2b = [x for x in set2 if isinstance(x, list)] + set2b
set2a = [x for x in set2 if x not in set2b]
pro, gk = gemm_lds([(13, 1024*t, 1024*t + 256, (XF + 4*t, ACK, t == 0, False)) for t in range(28)], AH)
P.add(pro)
S = Sched(gk)
S.spread(wvl, 0, opt("wve", 16))
NQK = opt("nqk", 2)
S.spread([wqdma(k) for k in range(NQK)], opt("wve", 16), 28)
EARLY = opt("early", 0)
if EARLY:
    P.add(flat([x if isinstance(x, list) else [x] for x in fin + set2a])); fin = []
    wo_l = flat([dmag([vWO0, vWO1], WO, sQ, i*64*896, sXO, L_WO + 8192*i, "wo", sDM) for i in range(7)] + [dmag([vXRD0, vXRD1], X, sXRB, 0, sXO, L_XCH, "wo", sDM)])
    if EARLY == 2:
        S.spread([wo_l[2*i] + wo_l[2*i+1] for i in range(8)], 0, 28)
    else: S.spread([rawA.pop(0) for _ in range(min(len(rawA), opt("ne1", 8)))], 0, 28)
else: fin = fin + set2a
if TP == 3: S.at(opt("tpos", 22), touch)
for k, ps in enumerate((L2A, L2B)):
    if 0 <= ps < 28: S.at(ps, l2t(W1, k, 248 + k))
S.spread(fin + flat([mk(f"v_or_b32 v{WPK+q}, v{WPK+q}, v{WPT+q}\nv_or_b32 v{WPQ+q}, v{WPQ+q}, v{WPT+8+q}") for q in range(8)]), 2, 26)
P.add(S.emit())
def phi_pre(acc, wp):
    q = Prog()
    for i in range(8): q.I(f"v_cvt_pk_bf16_f32 v{acc+i}, v{acc+2*i}, v{acc+2*i+1}")
    q.I(f"{MF} {v(PK,16)}, {v(wp,4)}, {v(acc,4)}, 0\n{MF} {v(PK,16)}, {v(wp+4,4)}, {v(acc+4,4)}, {v(PK,16)}")
    return q.items
stamp("k gemm done", "mp")
wql = [wqdma(k) for k in range(NQK, 7)]
P.add(wql.pop(0))
P.add(phi_pre(ACK, WPK))
imw = flat([mk(f"ds_write_b128 v{vIMW}, {v(IMG+4*i,4)} offset:{L_IMG+16*i}") for i in range(3)]) + mk(f"ds_write_b64 v{vIMW}, {v(IMG+12,2)} offset:{L_IMG+48}")
smk = sprinkle(softmax(PK, TMP, IMG, True), [wql.pop(0) for _ in range(min(len(wql), opt("nwq0", 3)))], 10, opt("wqs", 40))
if EARLY: smk = sprinkle(smk, [rawA.pop(0) for _ in range(min(len(rawA), opt("ne2", 8)))], 5, 16)
WEAVE = opt("weave", 1)
pro, gv = gemm_lds([(11, L_WV + 1024*t, L_WV + 1024*t + 256, (XF + 4*t, ACV, t == 0, False)) for t in range(28)], AH)
S = Sched(gv)
if not WEAVE:
    P.add(smk)
    P.wait(*[f"wv{k}" for k in range(7)]); I("s_barrier")
    stamp("softmax k done", "p")
    P.add(pro)
    S.spread(imw, 2, 10)
else:
    smf = softmax(PK, TMP, IMG, 2)
    n0 = next(i for i, x in enumerate(smf) if x.op == "v_exp_f32")
    P.wait(*[f"wv{k}" for k in range(4)]); I("s_barrier")
    P.add(pro)
    P.add(smf[:n0])
    stamp("softmax k done", "p")
    S.spread(smf[n0:] + imw, 0, 28)
    S.at(15 - AH, [WaitTag(["wv4", "wv5", "wv6"])] + mk("s_barrier"), 1.0)
    wql = [wqdma(k) for k in range(NQK + 1, 7)]
wo_l = flat([dmag([vWO0, vWO1], WO, sQ, i*64*896, sXO, L_WO + 8192*i, "wo", sDM) for i in range(7)] + [dmag([vXRD0, vXRD1], X, sXRB, 0, sXO, L_XCH, "wo", sDM)])
if EARLY == 2: wo_l = []
S.spread(wql, 0, opt('wqe', 10))
if EARLY: S.spread([rawA.pop(0) for _ in range(min(len(rawA), opt("ne3", 8)))], 0, 22)
if L2A >= 0 or L2N: touch = [x for x in touch if W1 not in x.text]
if L2N == 1: S.at(opt("l2p", 14), l2n(3))
if L2N == 2: S.at(opt("l2p", 14), l2n(1) + l2n(3))
tlb = []
if opt("tlb", 0) & 1: tlb += mk(f"s_mov_b64 exec, 1\nbuffer_load_dword v248, v6, {OUT}, s{sOUT} offen\ns_mov_b64 exec, -1")
if opt("tlb", 0) & 2: tlb += mk(f"v_lshlrev_b32 v249, 20, v1\ns_mov_b64 exec, 0xffff\nbuffer_load_dword v249, v249, {WS}, 0 offen offset:4092\ns_mov_b64 exec, -1")
if tlb: S.at(opt("tlbp", 13), tlb)
if opt("touch", 1) and TP == 0: S.at(opt("tpos", 11), touch)
for k, ps in enumerate((L2A, L2B)):
    if 200 <= ps < 228: S.at(ps - 200, l2t(W1, k, 248 + k))
S.spread([wo_l.pop(0) for _ in range(2*opt("nwo0", 0))], opt("wos", 17), opt("woe2", 28))
P.add(S.emit())
for k in range(0, 16, 2): I(f"v_pk_mul_f32 {v(ACV+k,2)}, {v(ACV+k,2)}, v[250:251] op_sel:[0,1] op_sel_hi:[1,1]")
I(f"v_cndmask_b32 v{ACV+12}, v{ACV+12}, 1.0, {sHI}")
for i in range(8): I(f"v_cvt_pk_bf16_f32 v{IMG+16+i}, v{ACV+2*i}, v{ACV+2*i+1}")
for i in range(4, 6): I(f"ds_write_b128 v{vIMW}, {v(IMG+4*i,4)} offset:{L_IMG+16*i}")
P.wait("wq0", "wq1", "wq2", "wq3")
I("s_waitcnt lgkmcnt(0)\ns_barrier")
stamp("img written", "p")
KA = 144; KBv = 208; KD = 176
for k in range(4):
    for u in range(2):
        I(f"ds_read_b64_tr_b16 {v(KA+4*k+2*u,2)}, v{vKA} offset:{(32*k+4*u)*208}")
    for nu in range(2):
        for u in range(2):
            I(f"ds_read_b64_tr_b16 {v(KBv+8*k+4*nu+2*u,2)}, v{vKB} offset:{(32*k+4*u)*208+64+16*nu}")
proq, gq = gemm_lds([(11, L_WQ + 1024*t, L_WQ + 1024*t + 256, (XF + 4*t, ACV, t == 0, False)) for t in range(28)], AH)
for k in range(4):
    for nu in range(2):
        I(f"v_mfma_f32_16x16x32_bf16 {v(KD+4*nu,4)}, {v(KA+4*k,4)}, {v(KBv+8*k+4*nu,4)}, {'0' if k == 0 else v(KD+4*nu,4)}")
P.add(proq[:8])
for i in range(4): I(f"v_cvt_pk_bf16_f32 v{KD+8+i}, v{KD+2*i}, v{KD+2*i+1}")
I(f"buffer_store_dwordx4 {v(KD+8,4)}, v2, {WS}, s{sPST} offen sc1")
I(f"v_xor_b32 v10, v{KD+8}, v5")
I(f"buffer_store_short v10, v0, {WS}, s{sPCK} offen sc1")
if GATE & 1: P.add(flag_store(16))
P.add(proq[8:])
stamp("partial stored", "mp")
S = Sched(gq)
bgA = wo_l + rawA
nq = min(len(bgA), opt("nq", 16))
S.spread(bgA[:nq], 0, 28)
S.spread(set2b, 2, 18)
G0 = gate("g0", vPO, vPF)
if GATE & 1: S.at(opt("g0", 14), G0.load(0))
S.at(15 - AH, [WaitTag(["wq4", "wq5", "wq6"])] + mk("s_barrier"), 1.0)
P.add(S.emit())
stamp("q gemm done", "p")
G = 16; GC = 80; SA = 96
FP = Fetch("fp", [([f"s_add_u32 s{sCt}, s{sP}, {4608*T}\nbuffer_load_dwordx4 {v(G+4*T,4)}, v{vFPD}, {WS}, s{sCt} offen sc1\nbuffer_load_ushort v{GC+T}, v{vFPC}, {WS}, s{sCt} offen sc1"],
                   [G+4*T, GC+T]) for T in range(16)])
P.add(phi_pre(ACV, WPQ))
if GATE & 1: P.add(G0.check(0, 0))
I("s_barrier")
PQ = 208
smq = softmax(PK, TMP, PQ, True); f0 = opt("fp0", 80)
P.add(sprinkle(smq[:f0], bgA[nq:], 0, opt("as", 8)))
P.add(sprinkle(smq[f0:], [FP.load(T) for T in range(16)], 0, opt("fpstep", 3)))
stamp("softmax q done", "p")
w1_l = flat([dmag([12, 13, 14, 15], W1, sW1B, i*64*3584, sW1M, 16384*i, "w1", sDM) for i in range(7)])
def fpb(b):
    t = []
    for k, T in enumerate(range(4*b, 4*b+4)):
        t.append(f"v_bitop3_b32 v{10 if k == 0 else 9}, v{G+4*T}, v{GC+T}, v{142 if opt('trim', 1) else 5} {X3}" + ("" if k == 0 else "\nv_or_b32 v10, v10, v9"))
    return "\n".join(t) + "\nv_cmp_ne_u16 vcc, 0, v10"
RI = TAIL.I if (opt("ool", 15) & 1) else I
if not (opt("ool", 15) & 1): I("s_branch L_fp_go")
RI("L_fp_retry:" + ("\ns_add_u32 s80, s80, 1" if DIAG else ""), unc=True)
for b in range(4):
    RI(fpb(b) + f"\ns_cbranch_vccz L_fp_k{b}\n" + "\n".join(FP.pieces[T][0][0] for T in range(4*b, 4*b+4)) + f"\nL_fp_k{b}:", unc=True)
RI(GUARD, unc=True)
if (opt("ool", 15) & 1): RI("s_branch L_fp_go", unc=True)
I("L_fp_go:")
I(fpb(0) + "\ns_cbranch_vccnz L_fp_retry")
S = Sched([mk(f"{MF} {v(SA,16)}, a[220:223], {v(G+4*T,4)}, {'0' if T == 0 else v(SA,16)}") for T in range(16)])
for b in range(1, 4): S.spread(mk(fpb(b) + "\ns_cbranch_vccnz L_fp_retry"), 4*b - 3, 4*b)
S.spread([w1_l.pop(0) for _ in range(opt("nw1a", 2))], 12, 16)
P.add(S.emit())
I(f"v_add_u32 v9, {L_KVX}, v{133 if opt('trim', 1) else vFPD}")
for i in range(4): I(f"v_cvt_pk_bf16_f32 v{SA+8+i}, v{SA+2*i}, v{SA+2*i+1}")
I(f"ds_write_b128 v9, {v(SA+8,4)}\ns_waitcnt lgkmcnt(0)\ns_barrier")
stamp("kv summed", "mp")
KVA = 32; OD = 48
for q in range(7): I(f"ds_read_b64 {v(KVA+2*q,2)}, v{vKVX} offset:{512*q}")
P.add(w1_l.pop(0))
for s in range(3):
    I(f"{MF} {v(OD,16)}, {v(KVA+4*s,4)}, {v(PQ+4*s,4)}, {'0' if s == 0 else v(OD,16)}")
    if s == 1: P.add(w1_l.pop(0))
I(f"v_mfma_f32_32x32x8_bf16 {v(OD,16)}, {v(KVA+12,2)}, {v(PQ+12,2)}, {v(OD,16)}")
I(f"""s_lshl_b32 s{sP}, s{sTILE}, 15
s_lshr_b32 s{sB}, s{sW}, 1
s_lshl_b32 s{sB}, s{sB}, 14
s_add_u32 s{sP}, s{sP}, s{sB}
s_add_u32 s{sP}, s{sP}, {WS_O}
s_add_u32 s{sA}, s{sW1M}, {L_XCH}
v_add_u32 v132, s{sA}, v2
v_xor_b32 v133, 8192, v132
v_xor_b32 v9, 64, v{vWOR}
v_and_b32 v7, 31, v1
v_mul_u32_u24 v7, 896, v7
v_add_f32 v{OD+14}, 0x358637bd, v{OD+14}
v_rcp_f32 v{OD+14}, v{OD+14}
v_lshl_add_u32 v7, v3, 4, v7""")
for k in range(0, 14, 2): I(f"v_pk_mul_f32 {v(OD+k,2)}, {v(OD+k,2)}, {v(OD+14,2)} op_sel_hi:[1,0]")
for k in range(4): I(f"v_cvt_pk_bf16_f32 v{64+k}, v{OD+2*k}, v{OD+2*k+1}")
I(f"buffer_store_dwordx4 v[64:67], v2, {WS}, s{sOST} offen sc1")
for k in range(4, 7): I(f"v_cvt_pk_bf16_f32 v{64+k}, v{OD+2*k}, v{OD+2*k+1}")
I(f"""v_bitop3_b32 v71, v64, v5, s{sMASK} bitop3:0x28
v_and_b32 v6, s{sMASK}, v5
buffer_store_dwordx4 v[68:71], v2, {WS}, s{sOST} offen offset:1024 sc1""")
if GATE & 2: P.add(flag_store(7))
stamp("o stored", "mo")
P.wait("wo")
I(f"s_cmp_ge_u32 s{sRact}, 14\ns_cbranch_scc1 L_idle\ns_barrier")
wor = []
for s in range(16):
    hh, e = s >> 1, s & 1
    for k, av in ((0, vWOR), (1, 9)):
        for u in range(2):
            wor += mk(f"ds_read_b64_tr_b16 {a_(128+8*s+4*k+2*u,2)}, v{av} offset:{(28*hh+8*e+4*u)*128}")
XR = 224
xrr = []
for i in range(4): xrr += mk((f"v_xor_b32 v10, {16*i}, v{vXRR}\n" if i else "") + f"ds_read_b64 {v(XR+2*i,2)}, v{10 if i else vXRR}")
P.add(xrr)
G1 = gate("g1", vPO, vPF)
nb_ = min(opt("nw1b", 16), len(w1_l) - 8)
wor = sprinkle(wor, [w1_l.pop(0) for _ in range(nb_)], 0, opt("w1bs", 4))
if GATE & 2: wor = sprinkle(wor, [G1.load(0)], opt("g1", 40), 1)
P.add(wor)
OB = 16
FO = Fetch("fo", [([f"s_add_u32 s{sCt}, s{sP}, {2048*hh}\nbuffer_load_dwordx4 {v(OB+8*hh,4)}, v2, {WS}, s{sCt} offen sc1\nbuffer_load_dwordx4 {v(OB+8*hh+4,4)}, v2, {WS}, s{sCt} offen offset:1024 sc1"],
                   [OB+8*hh, OB+8*hh+7]) for hh in range(8)], masked=True, nre=opt('reo', 2))
stamp("pre o fetch", "o")
AO, AT = 80, 96
set3 = mk(f"""s_mul_i32 s{sSCR}, s{sW}, 12288
s_mul_i32 s{sBIG}, s{sW}, 28672
v_add_u32 v131, s{sBIG}, v2
s_lshl_b32 s{sB}, s{sC}, 1
s_lshr_b32 s{sD}, s{sW}, 1
s_add_u32 s{sB}, s{sB}, s{sD}
s_mul_i32 s{sA}, s{sTILE}, 14
s_add_u32 s{sB}, s{sB}, s{sA}
s_mul_i32 s{sPST}, s{sB}, 2432
s_add_u32 s{sPST}, s{sPST}, {WS_H}
s_lshr_b32 s48, s{sW}, 1
s_nop 0
v_bfe_u32 v9, v1, 2, 2
v_lshl_add_u32 v240, v3, 2, v9
v_lshlrev_b32 v254, 7, v240
v_lshlrev_b32 v240, 8, v240
v_xor_b32 v9, s{sW}, v9
v_lshl_add_u32 v240, v9, 6, v240
v_bfe_u32 v9, v1, 4, 1
v_lshlrev_b32 v9, 5, v9
v_lshl_add_u32 v9, v8, 3, v9
v_add_u32 v240, v240, v9
v_add_u32 v254, v254, v9
v_bfe_u32 v9, v1, 3, 1
v_xor_b32 v9, s48, v9
v_lshl_add_u32 v254, v9, 6, v254
s_add_u32 s{sSCR}, s{sSCR}, {L_SCR}
v_add_u32 v252, s{sBIG}, v254
v_xor_b32 v253, 64, v252
v_add_u32 v254, s{sSCR}, v254
v_add_u32 v134, s{sSCR}, v2
v_xor_b32 v255, 64, v254
v_xor_b32 v241, 64, v240
v_xor_b32 v242, 128, v240
v_xor_b32 v243, 192, v240""") + flat([mk(f"v_add_u32 v{244+m}, 57344, v{240+m}") for m in range(4)])
pre2 = []
for i in range(8): pre2 += mk(f"v_lshlrev_b32 v{112+2*i}, 16, v{XR+i}\nv_and_b32 v{113+2*i}, s{sHIM}, v{XR+i}")
for s in range(1, 16, 2): pre2 += mk(f"v_accvgpr_write_b32 a{128+8*s+3}, 0\nv_accvgpr_write_b32 a{128+8*s+7}, 0")
if GATE & 2:
    P.add(pre2); P.add(G1.check(0, 0))
    stamp("gate1", "o")
    for hh in range(8): P.add(FO.load(hh))
else:
    P.add(pre2[16:]); P.add(set3)
    I("s_waitcnt lgkmcnt(0)\ns_barrier")
    P.add(sprinkle(flat(flat([w2rd(j) for j in UAW[:NT1]])), [w1_l.pop(0) for _ in range(min(len(w1_l), opt("nw1s", 4)))], 0, 8))
    stamp("shadow done", "o")
    P.add(sprinkle(pre2[:16], [FO.load(hh) for hh in range(8)], 0, 2))
I("s_waitcnt lgkmcnt(0)\ns_barrier")
stamp("fo issued", "o")
g2 = []
for s in range(16):
    for k, acc in ((1, AT), (0, AO)):
        c = ("0" if k else v(112,16)) if s == 0 else v(acc,16)
        g2.append(mk(f"{MF} {v(acc,16)}, {a_(128+8*s+4*k,4)}, {v(OB+4*s,4)}, {c}"))

P.add(FO.check(0, 7))
stamp("fo0", "o")
S = Sched(g2)
for hh in range(1, 8): S.spread(FO.checkc(hh, 7), 4*hh - 3, 4*hh)
S.spread(w1_l + [raw.pop(0) for _ in range(min(len(raw), opt("rawb", 8)))], 0, 32)
P.add(S.emit())
stamp("p2 gemm done", "o")
for i in range(4): I(f"ds_write_b128 v132, {v(AT+4*i,4)} offset:{1024*i}")
I("v_mov_b32 v112, 0\nv_mov_b32 v113, 0\ns_waitcnt lgkmcnt(0)\ns_barrier")
for i in range(4): I(f"ds_read_b128 {v(AT+4*i,4)}, v133 offset:{1024*i}")
HR = XR
for k in range(0, 8, 2): I(f"v_pk_add_f32 {v(AO+k,2)}, {v(AO+k,2)}, {v(AT+k,2)}")
for i in range(4): I(f"v_cvt_pk_bf16_f32 v{HR+i}, v{AO+2*i}, v{AO+2*i+1}")
I(f"buffer_store_dwordx4 {v(HR,4)}, v2, {WS}, s{sPST} offen sc1")
for k in range(8, 16, 2): I(f"v_pk_add_f32 {v(AO+k,2)}, {v(AO+k,2)}, {v(AT+k,2)}")
for i in range(4, 8): I(f"v_cvt_pk_bf16_f32 v{HR+i}, v{AO+2*i}, v{AO+2*i+1}")
I(f"buffer_store_dwordx4 {v(HR+4,4)}, v2, {WS}, s{sPST} offen offset:1024 sc1")
for i in range(8): I(f"v_dot2c_f32_bf16 v112, s{sONES}, v{HR+i}\nv_dot2c_f32_bf16 v113, v{HR+i}, v{HR+i}")
I(f"""v_bitop3_b32 v10, v{HR}, v{HR+4}, v5 {X3}
v_permlane32_swap_b32 v112, v113
v_add_f32 v112, v112, v113
buffer_store_dword v112, v4, {WS}, s{sPST} offen offset:2048 sc1
v_xor_b32 v113, v10, v112
buffer_store_short v113, v0, {WS}, s{sPST} offen offset:2304 sc1""")
def selft(sreg, nl): return mk(f"s_mov_b64 exec, {(1 << nl) - 1}\nbuffer_load_dword v135, v134, {WS}, s{sreg} offen sc1\ns_mov_b64 exec, -1")
SELF = opt("self", 0)
if SELF & 1: P.add(selft(sPST, 20))
if GATE & 4: P.add(flag_store(14))
stamp("h stored", "moh")
HB = 16; ST = 192
ACC = [144, 160, 176, 192]; AUG = 232
set4 = mk(f"""s_lshl_b32 s{sB}, s{sT3}, 2
s_add_u32 s{sB}, s{sB}, s{sW}
s_mul_i32 s{sP}, s{sB}, {14*2432}
s_add_u32 s{sP}, s{sP}, {WS_H}
s_mul_i32 s{sA}, s{sB}, 56
s_lshl_b32 s{sD}, s{sR}, 2
s_add_u32 s{sA}, s{sA}, s{sD}
s_mul_i32 s{sQ}, s{sA}, 2176
s_add_u32 s{sQ}, s{sQ}, {WS_H1}
v_lshlrev_b32 v13, 3, v1
s_lshl_b32 s{sA}, s{sW}, 9
s_add_u32 s{sA}, s{sA}, {L_AUG}
v_add_u32 v13, s{sA}, v13
v_mov_b32 v222, 0""")
FH = Fetch("fh", [([f"s_add_u32 s{sCt}, s{sP}, {2432*p}\nbuffer_load_dwordx4 {v(HB+8*p,4)}, v2, {WS}, s{sCt} offen sc1\nbuffer_load_dwordx4 {v(HB+8*p+4,4)}, v2, {WS}, s{sCt} offen offset:1024 sc1\n"
                    f"buffer_load_dword v{ST+2*p}, v4, {WS}, s{sCt} offen offset:2048 sc1\nbuffer_load_ushort v{ST+2*p+1}, v0, {WS}, s{sCt} offen offset:2304 sc1"],
                   [HB+8*p, HB+8*p+4, ST+2*p, ST+2*p+1]) for p in range(14)], nre=opt('reh', 2))
for i in range(4): I(f"v_mov_b32 v{AUG+i}, s{sONES}")
P.wait("w1"); I("s_barrier")
stamp("w1 landed", "h")
if opt("zz", 0): I(f"s_sleep {opt('zz', 0)}")
def w1a(t, k): return (240 + k + (4 if t >= 14 else 0), (t % 14) * 4096, (t % 14) * 4096 + 2048)
st3 = [w1a(t, 0) + ((AUG, ACC[2], t == 0, True),) for t in range(28)]
TWO = opt("two", 1); N1 = 2 if TWO else 3
for t in range(28):
    for k in range(N1): st3.append(w1a(t, k) + ((HB + 4*t, ACC[k], t == 0, False),))
for t in range(28):
    for k in range(N1, 4): st3.append(w1a(t, k) + ((HB + 4*t, ACC[k], t == 0, False),))
pro, g3 = gemm_lds(st3, AH)
P.add(pro)
S3 = Sched(g3)
S3.spread(set4, 0, 8)
S3.spread(raw + w2dma(UD[0]) + w2dma(UD[1]), 0, opt("c0e", 20)); raw = []
NH0 = opt("nh0", 4); H0 = opt("h0", 26)
G2 = gate("g2", vPO, vPF)
if GATE & 4:
    S3.at(opt("g2", 12), G2.load(0), 0.9)
    S3.at(27, G2.check(0, 0) + stampi("gate2", "h") + flat([FH.load(p) for p in range(NH0)]), 0.5)
else: S3.spread(flat([FH.loadc(p) for p in range(NH0)]), H0, 27)
cs = ACC[2]
csx = mk(f"""v_cvt_pk_bf16_f32 v{AUG}, v{cs}, v{cs}
v_lshlrev_b32 v{AUG+1}, 16, v{AUG}
v_sub_f32 v{AUG+1}, v{cs}, v{AUG+1}
v_cvt_pk_bf16_f32 v{AUG}, v{cs}, v{AUG+1}
v_and_b32 v{AUG+1}, 0xffff, v{AUG}
v_cndmask_b32 v{AUG}, v{AUG}, 0, {sHI}
v_cndmask_b32 v{AUG+1}, v{AUG+1}, 0, {sHI}
ds_write_b64 v13, {v(AUG,2)}""")
S3.at(27, stampi("colsum done", "h") + csx + FH.check(0, NH0 - 1) + stampi("fh0", "h"), 1.0)
B0 = 28
for p in range(14):
    b = B0 + 2*N1*p
    if p + NH0 < 14:
        for k_, c_ in enumerate(FH.loadc(p + NH0)): S3.at(b + ((0, 2, 1, 3) if TWO else (0, 2, 4, 4))[k_], c_, 0.2)
    S3.at(b, mk(f"v_add_f32 v222, v222, v{ST+2*p}"), 0.0)
    if p + 1 < 14: S3.spread(FH.checkc(p + 1, min(13, p + NH0 - 1)), b + 1, b + 2*N1)
    if p in (3, 7, 11): S3.at(b + 2*N1 - 1, stampi(f"fh{p+1}", "h"), 1.0)
S3.at(B0 + 14, mk("s_barrier") + flat([mk(f"v_xor_b32 v9, {512*k}, v13\nds_read_b64 {v(AUG+2*k,2)}, v9") for k in range(1, 4)]), 0.0)
mid = mk(f"""v_mul_f32 v220, {fhex(1/448)}, v222
v_mov_b32 v221, v220
s_nop 0
v_permlane32_swap_b32 v220, v221
v_fma_f32 v221, -v220, v220, v221
v_max_f32 v221, 0, v221
v_add_f32 v221, 0x3727c5ac, v221
v_rsq_f32 v251, v221
v_cvt_pk_bf16_f32 v222, -v220, -v220
v_lshlrev_b32 v9, 16, v222
v_sub_f32 v9, -v220, v9
v_cvt_pk_bf16_f32 v223, v9, 0
v_mul_f32 v250, v221, v251
v_mul_f32 v251, 0xbfb8aa3b, v251
v_cndmask_b32 v222, v222, 0, {sHI}
v_cndmask_b32 v223, v223, 0, {sHI}""")
S3.spread(mid, *((B0 + 53, B0 + 59) if TWO else (B0 + 79, B0 + 84)))
def aug(k): return mk(f"v_mfma_f32_32x32x8_bf16 {v(ACC[k],16)}, {v(AUG+2*k,2)}, v[222:223], {v(ACC[k],16)}")
SLT = 132
def silu(k, pk):
    q = Prog(); a = ACC[k]; t = 208
    q.I(f"s_xor_b32 s50, s{sW}, {k}\ns_mul_i32 s50, s50, 2176\ns_add_u32 s50, s50, s{sQ}")
    for half in range(2):
        b = a + 8 * half
        if pk:
            for j in range(0, 8, 2): q.I(f"v_pk_mul_f32 {v(t+j,2)}, {v(b+j,2)}, v[250:251] op_sel:[0,1] op_sel_hi:[1,1]")
        else:
            for j in range(8): q.I(f"v_mul_f32 v{t+j}, v{b+j}, v251")
        for j in range(8): q.I(f"v_exp_f32 v{t+j}, v{t+j}")
        if pk:
            for j in range(0, 8, 2): q.I(f"v_pk_fma_f32 {v(t+j,2)}, {v(t+j,2)}, v[250:251], v[250:251] op_sel_hi:[1,0,0]")
        else:
            for j in range(8): q.I(f"v_fma_f32 v{t+j}, v{t+j}, v250, v250")
        for j in range(8): q.I(f"v_rcp_f32 v{t+j}, v{t+j}")
        if pk:
            for j in range(0, 8, 2): q.I(f"v_pk_mul_f32 {v(b+j,2)}, {v(b+j,2)}, {v(t+j,2)}")
        else:
            for j in range(8): q.I(f"v_mul_f32 v{b+j}, v{b+j}, v{t+j}")
        for j in range(4): q.I(f"v_cvt_pk_bf16_f32 v{b+j}, v{b+2*j}, v{b+2*j+1}")
        q.I(f"buffer_store_dwordx4 {v(b,4)}, v2, {WS}, s50 offen offset:{1024*half} sc1")
    q.I(f"v_bitop3_b32 v216, v5, v{a}, v{a+8} {X3}")
    q.I(f"buffer_store_short v216, v0, {WS}, s50 offen offset:2048 sc1")
    return q.items + ([selft(50, 18)] if SELF & 2 and not pk else [])
E0 = B0 + 28*N1
assert not raw
if TWO:
    S3.spread(flat([w2rd(j) for j in UD + UR + UAW[NT1:]]), B0 + 8, B0 + 42)
    S3.at(B0 + 34, mk("s_barrier"), 0.0)
    S3.spread(flat([w2dma(j) for j in UE]), B0 + 48, E0 + opt("wde", 12))
else:
    S3.spread(flat([w2rd(j) for j in UD + UR + UAW[NT1:]]), B0 + 22, B0 + 58)
    S3.at(B0 + 44, mk("s_barrier"), 0.0)
    S3.spread(flat([w2dma(j) for j in UE]), B0 + 64, E0)
B4 = 16
CKR = [240, 241, 244, 245, 248, 249, 217, 218, 219, 130, 242, 246, 243, 247]
C4 = [[a_(224,16), a_(240,16)], [v(ACC[0],16), v(ACC[1],16)]]
set5 = mk(f"""s_mul_i32 s{sA}, s{sTILE}, 56
s_xor_b32 s{sB}, s{sTILE}, 1
s_mul_i32 s{sB}, s{sB}, 56
s_add_u32 s51, s{sB}, s44
s_add_u32 s52, s{sA}, s44
s_add_u32 s53, s{sB}, s45
s_add_u32 s54, s{sA}, s45""")
for k in range(4):
    set5 += mk(f"s_mul_i32 s{51+k}, s{51+k}, 2176\ns_add_u32 s{51+k}, s{51+k}, {WS_H1}")
S3.spread(set5, B0 + 42, B0 + 52)
def piece4(n):
    st, i = n // 7, n % 7; r = B4 + 8 * (n % 14); c = CKR[n % 14]
    return ([f"s_add_u32 s{sCt}, s{51+st}, {8*2176*i}\nbuffer_load_dwordx4 {v(r,4)}, v2, {WS}, s{sCt} offen sc1\nbuffer_load_dwordx4 {v(r+4,4)}, v2, {WS}, s{sCt} offen offset:1024 sc1\n"
             f"buffer_load_ushort v{c}, v0, {WS}, s{sCt} offen offset:2048 sc1"], [r, r+4, c])
F4 = Fetch("f4", [piece4(n) for n in range(28)], nre=opt("re4", 3))
ND = opt("nd", 5)
rawl = flat([w2raw(j) for j in UL])
nr0 = min(len(rawl), opt("nr0", 4))
if TWO:
    S3.at(E0 - 1, stampi("p3 pass1 done", "mh"), 1.0)
    g3[E0 + 3] = aug(0) + g3[E0 + 3]; g3[E0 + 4] = aug(1) + g3[E0 + 4]
    S3.spread(silu(0, False) + [stampi("silu0 done", "e")], E0 + 5, E0 + opt("s0e", 21))
    S3.spread(silu(1, False), E0 + opt("s0e", 21), E0 + opt("s1e", 44))
    S3.spread(rawl, E0 + opt("wde", 12), E0 + opt("rle", 36))
    DEEP = opt("deep", 0)
    if DEEP:
        rng = [(opt("a0", -18), opt("b0", 4)), (opt("a1", 6), opt("b1", 24)), (opt("a2", 26), opt("b2", 50)), (opt("a3", 50), opt("b3", 78))]
        f4pos = []
        for n in range(28):
            a, b = rng[n // 7]
            for k_, c_ in enumerate(F4.loadc(n)):
                pos = a + (b - a) * ((n % 7) + (0, 0.45, 0.9)[k_]) / 7
                lo = (4*n + 4 - 56) if n < 14 else 4*(n - 14) + 4
                pos = max(pos, lo + 0.01*k_); assert pos < 4*n - 3 or n == 0, (n, pos)
                f4pos.append((pos, c_))
        for i_ in range(1, len(f4pos)): assert f4pos[i_][0] >= f4pos[i_-1][0], i_
        import math
        for pos, c_ in f4pos:
            if pos < 0: S3.at(E0 + 56 + math.floor(pos), c_, pos - math.floor(pos))
    else: S3.spread(flat([F4.loadc(n) for n in range(ND)]), E0 + opt("f4s", 52), E0 + 56)
    P.add(S3.emit())
    P.add(aug(2) + aug(3))
else:
    S3.at(E0 - 1, stampi("p3 pass1 done", "mh") + aug(0) + aug(1) + aug(2) + sprinkle(silu(0, True), rawl[:nr0], 3, 12) + stampi("silu0 done", "e"), 1.0)
    S3.spread(silu(1, False), E0, E0 + 26)
    S3.spread(rawl[nr0:], E0, E0 + 14)
    S3.spread(flat([F4.loadc(n) for n in range(ND)]), E0 + opt("f4s", 16), E0 + 28)
    P.add(S3.emit())
    P.add(aug(3))
I("s_barrier")
stamp("p3 gemm done", "me")
g4 = []
for n in range(28):
    st, i = n // 7, n % 7; hf, par = st >> 1, st & 1
    for e in range(2):
        for mu in range(2):
            zero = hf == 0 and i == 0 and e == 0 and not (par == 1 and mu == 0)
            g4.append(mk(f"{MF} {C4[par][mu]}, {a_(UA(7*hf+i)+8*e+4*mu,4)}, {v(B4+8*(n%14)+4*e,4)}, {'0' if zero else C4[par][mu]}"))
P.add(F4.check(0, ND - 1))
S = Sched(g4)
for n in range(28):
    if n + ND < 28 and not (TWO and DEEP):
        for k_, c_ in enumerate(F4.loadc(n + ND)): S.at(4*n + (0, 2, 1)[k_], c_, 0.2)
    if n + 1 < 28: S.spread(F4.checkc(n + 1, min(27, n + ND)), 4*n + 2, 4*n + 4)
    if n in (6, 13, 20): S.at(4*n + 3, stampi(f"stage{n//7} done", "e"), 1.0)
unp = []
for i in range(8): unp += mk(f"v_lshlrev_b32 v{ACC[0]+2*i}, 16, v{HR+i}\nv_and_b32 v{ACC[0]+1+2*i}, s{sHIM}, v{HR+i}")
if TWO and DEEP:
    for pos, c_ in f4pos:
        if pos >= 0: S.at(int(pos), c_, pos - int(pos))
S2E, S3E = opt("s2e", 16), opt("s3e", 40)
S.spread(silu(2, False), 0, S2E)
S.spread(unp, 22, 27)
S.spread(silu(3, False), S2E, S3E)
S.spread(flat([w2rd(j) for j in UE if j < 7]), 0, 14)
S.spread(flat([w2dma(j) for j in UP]), opt("w2a", 2), opt("w2b", 44))
for j in [x for x in UE + UL + UP if x >= 7]: S.spread(w2rd(j), 44 + 5*(j-7), 49 + 5*(j-7))
S.at(82, mk(f"""s_lshl_b32 s{sA}, s{sW}, 14
v_add_u32 v13, s{sA}, v2
v_xor_b32 v9, 16384, v13
v_xor_b32 v12, 32768, v13
v_xor_b32 v14, 49152, v13
s_waitcnt lgkmcnt(0)
s_barrier"""))
S.spread([mk(f"ds_write_b128 v{9 if mu == 0 else 14}, {a_(224+16*mu+4*i,4)} offset:{4096*(2*mu+1)+1024*i}") for mu in range(2) for i in range(4)], 87, 99)
S.at(100, mk("s_waitcnt lgkmcnt(0)\ns_barrier"), 0.0)
S.spread([mk(f"ds_read_b128 {v(ACC[2+mu]+4*i,4)}, v13 offset:{4096*(2*mu+1)+1024*i}") for mu in range(2) for i in range(4)], 100, 104)
S.spread([mk(f"v_add_f32 v{ACC[2]+k}, v{ACC[2]+k}, v{ACC[3]+k}") for k in range(16)], 107, 112)
P.add(S.emit())
stamp("p4 gemm done", "me")
for i in range(4): I(f"ds_write_b128 v12, {v(ACC[1]+4*i,4)} offset:{8192+1024*i}")
if opt("cout", 0):
    I(f"""v_lshlrev_b32 v16, 3, v3
v_sub_u32 v16, v{vXRR}, v16
v_lshlrev_b32 v17, 4, v3
v_xor_b32 v16, v16, v17
v_xor_b32 v17, 32, v16
s_add_u32 s{sA}, s{sXO}, {L_XCH}
v_add_u32 v18, s{sA}, v2""")
I("s_waitcnt lgkmcnt(0)\ns_barrier")
for i in range(4): I(f"ds_read_b128 {v(ACC[3]+4*i,4)}, v13 offset:{8192+1024*i}")
for k in range(0, 16, 2): I(f"v_pk_add_f32 {v(ACC[0]+k,2)}, {v(ACC[0]+k,2)}, {v(ACC[2]+k,2)}")
for hf in range(2):
    b = ACC[0] + 8*hf
    for k in range(0, 8, 2): I(f"v_pk_add_f32 {v(b+k,2)}, {v(b+k,2)}, {v(ACC[3]+8*hf+k,2)}")
    for i in range(4): I(f"v_cvt_pk_bf16_f32 v{96+4*hf+i}, v{b+2*i}, v{b+2*i+1}")
    if not opt("cout", 0):
        I(f"v_permlane32_swap_b32 v{96+4*hf}, v{98+4*hf}\nv_permlane32_swap_b32 v{97+4*hf}, v{99+4*hf}\nbuffer_store_dwordx4 {v(96+4*hf,4)}, v7, {OUT}, s{sOUT} offen offset:{32*hf} {OPT.get('ofl', '')}")
    else:
        I(f"v_permlane32_swap_b32 v{96+4*hf}, v{98+4*hf}\nv_permlane32_swap_b32 v{97+4*hf}, v{99+4*hf}\nds_write_b128 v{16+hf}, {v(96+4*hf,4)}")
if opt("cout", 0):
    I("s_waitcnt lgkmcnt(0)\ns_barrier")
    for i in range(2): I(f"ds_read_b128 {v(104+4*i,4)}, v18 offset:{1024*i}")
    for i in range(2): I(f"buffer_store_dwordx4 {v(104+4*i,4)}, v{vXRD0+i}, {OUT}, s{sXRB} offen offset:{1024*i} {OPT.get('ofl', '')}")
stamp("end", "mpohez")
I(f"""s_cmp_lg_u32 s2, 0
s_cbranch_scc1 L_ex0
v_mov_b32 v9, 0""")
I(f"buffer_store_dword v5, v9, {WS}, 0 offen sc1", unc=True)
I("L_ex0:")
if opt("enc", 0):
    mode = opt("enc", 0)
    if mode <= 4:
        I(f"s_bfe_u32 s{sA}, s80, {hex(0x80000 | (8*(mode-1)))}\ns_min_u32 s{sA}, s{sA}, 1\ns_mul_i32 s{sA}, s{sA}, 2000", unc=True)
    else:
        I(f"s_waitcnt lgkmcnt(0)\ns_sub_u32 s{sA}, s{sSTAMP+2}, s78\ns_mul_i32 s{sA}, s{sA}, 4", unc=True)
    I(f"""s_memrealtime s[40:41]
s_waitcnt lgkmcnt(0)
L_enc:
s_memrealtime s[42:43]
s_waitcnt lgkmcnt(0)
s_sub_u32 s42, s42, s40
s_cmp_lt_u32 s42, s{sA}
s_cbranch_scc1 L_enc
s_branch L_end""", unc=True)
if opt("dbg", 0):
    I(f"""s_cmp_lg_u32 s{sW}, 0
s_cbranch_scc1 L_end
s_load_dwordx2 s[40:41], s[0:1], 64
s_mov_b32 s42, 256
s_mov_b32 s43, 0x20000
s_mov_b64 exec, 1
v_mov_b32 v9, 0
s_waitcnt lgkmcnt(0)""", unc=True)
    for k in range(nstamp[0]):
        I(f"s_sub_u32 s{sA}, s{sSTAMP+2*k}, s78\nv_mov_b32 v10, s{sA}\nbuffer_atomic_umax v10, v9, s[40:43], 0 offen offset:{4*k}\ns_nop 1", unc=True)
    I(f"""v_mov_b32 v10, s78
buffer_atomic_umax v10, v9, s[40:43], 0 offen offset:32
s_not_b32 s{sA}, s78
v_mov_b32 v11, s{sA}
buffer_atomic_umax v11, v9, s[40:43], 0 offen offset:36
v_mov_b32 v12, s{sSTAMP+2*(nstamp[0]-1)}
buffer_atomic_umax v12, v9, s[40:43], 0 offen offset:40
v_mov_b32 v13, s80
buffer_atomic_add v13, v9, s[40:43], 0 offen offset:44
s_branch L_end""", unc=True)
I("L_exit:")
if DIAG and not opt("dbg", 0):
    I(f"s_cmp_lg_u32 s{sW}, {opt('dw', 0)}\ns_cbranch_scc1 L_end\ns_lshl_b32 s{sA}, s2, 7\ns_add_u32 s{sA}, s{sA}, {WS_DIAG}\nv_mov_b32 v9, 0", unc=True)
    for k in range(nstamp[0]):
        I(f"s_waitcnt lgkmcnt(0)\nv_mov_b32 v10, s{sSTAMP+2*k}\nbuffer_store_dword v10, v9, {WS}, s{sA} offen offset:{4*k}", unc=True)
    if SEL == ["z"]: I(f"v_mov_b32 v10, s78\nbuffer_store_dword v10, v9, {WS}, s{sA} offen offset:120", unc=True)
    I(f"v_mov_b32 v10, s80\nbuffer_store_dword v10, v9, {WS}, s{sA} offen offset:124", unc=True)
I("L_end:\ns_endpgm")
I(f"""L_idle:
s_and_b32 s{sA}, s{sT2}, 1
s_lshl_b32 s{sA}, s{sA}, 1
s_add_u32 s{sA}, s{sA}, s{sRact}
s_sub_u32 s{sA}, s{sA}, 14
s_lshl_b32 s{sA}, s{sA}, 2
s_add_u32 s{sA}, s{sA}, s{sW}
s_lshl_b32 s{sA}, s{sA}, 13
v_lshlrev_b32 v9, 7, v1
s_lshr_b32 s{sD}, s{sT2}, 1
s_mul_i32 s{sD}, s{sD}, {8*56*2176}
s_add_u32 s{sD}, s{sD}, {WS_H1}
s_add_u32 s{sD}, s{sD}, s{sA}
s_mov_b32 s{sB}, {opt("idle2", 0)}
s_cmp_eq_u32 s{sB}, 0
s_cbranch_scc1 L_idle3
L_idle2:
buffer_load_dword v11, v9, {WS}, s{sD} offen {OPT.get("i2f", "")}
s_add_u32 s{sD}, s{sD}, {16*8192}
s_sub_u32 s{sB}, s{sB}, 1
s_cmp_lg_u32 s{sB}, 0
s_cbranch_scc1 L_idle2
L_idle3:
s_mov_b32 s{sB}, {opt("idle", 0)}
s_cmp_eq_u32 s{sB}, 0
s_cbranch_scc1 L_exit
L_idle1:
buffer_load_dword v11, v9, {W2}, s{sA} offen
s_add_u32 s{sA}, s{sA}, {16*8192}
s_sub_u32 s{sB}, s{sB}, 1
s_cmp_lg_u32 s{sB}, 0
s_cbranch_scc1 L_idle1
s_branch L_exit""", unc=True)
P.add(TAIL.items)

for it in P.items:
    if isinstance(it, Ins) and it.text.startswith('buffer_load_dword v142,'): it.defs = []
PL = opt("plain", 0)
for it in P.items:
    if isinstance(it, Ins) and it.op.startswith("buffer_store") and "sc1" in it.text:
        ish1 = " s50 " in it.text or " s49 " in it.text
        ish = ("v[224:227]" in it.text or "v[228:231]" in it.text or "v112," in it.text or "v113," in it.text)
        if (ish and PL & 1) or (ish1 and PL & 2): it.text = it.text.replace(" sc1", OPT.get("pfl", ""))
if opt("pld", 0):
    c = 0
    for it in P.items:
        if isinstance(it, Ins) and it.op.startswith("buffer_load") and "sc1" in it.text and " s56 " in it.text and not it.uncounted:
            c += 1
            kind = 0 if c <= 48 else 1 if c <= 104 else 2
            if opt("pld", 0) & kind: it.text = it.text.replace(" sc1", OPT.get("lfl", ""))
if opt("nochk", 0):
    new = []; seen_end = False
    for it in P.items:
        if isinstance(it, Ins):
            if opt("nochk", 0) == 2 and not seen_end:
                if it.text.startswith("L_exit"): seen_end = True
                elif it.uncounted or it.op in ("s_cbranch_vccz", "s_branch"): continue
            if it.op == "s_cbranch_vccz" and not it.uncounted: it = Ins(it.text.replace("s_cbranch_vccz", "s_branch"))
            elif it.op == "s_cbranch_vccnz" and not it.uncounted: continue
            t = it.text
            if it.op.startswith("buffer_store") and "sc1" in t and not it.uncounted:
                kind = 8 if " s50 " in t else 4 if ("v[224" in t or "v[228" in t or "v112," in t or "v113," in t) else 2 if f" s{sOST} " in t else 1
                if opt("nost", 0) & kind: continue
            if it.op.startswith("buffer_load") and "sc1" in t and " s56 " in t and not it.uncounted:
                cnt_ld = globals().setdefault("_c", [0]); cnt_ld[0] += 1; c = cnt_ld[0]
                kind = 1 if c <= 32 else 2 if c <= 48 else 4 if c <= 104 else 8
                if opt("nold", 0) & kind: continue
        new.append(it)
    P.items = new
body, items = render(P.items)
if opt("align", 1):
    import subprocess, re as _re
    open("_al.s", "w").write('.amdgcn_target "amdgcn-amd-amdhsa--gfx950"\n.text\n' + body)
    subprocess.run(["clang", "-x", "assembler", "-target", "amdgcn-amd-amdhsa", "-mcpu=gfx950", "-c", "_al.s", "-o", "_al.o"], check=True)
    dis = subprocess.run(["llvm-objdump", "-d", "--mcpu=gfx950", "_al.o"], capture_output=True, text=True).stdout
    sizes = [4 * len(m.group(1).split()) for m in _re.finditer(r"// [0-9A-F]{12}: ((?:[0-9A-F]{8} ?)+)", dis)]
    real = [i for i in items if i.cls not in ('label', 'dir')]
    assert len(sizes) == len(real), (len(sizes), len(real))
    sz = {id(i): n for i, n in zip(real, sizes)}
    new = []; off = 0; nal = 0; MINRUN = opt("minrun", 6)
    for k, it in enumerate(items):
        if id(it) in sz and sz[id(it)] == 8 and off % 8 == 4 and not it.uncounted:
            run = 0
            for j in items[k:k + MINRUN + 4]:
                if id(j) not in sz: continue
                if sz[id(j)] != 8 or j.cls == 'mfma': break
                run += 1
            if run >= MINRUN:
                p = new[-1] if new else None
                if p is not None and p.cls == 'valu' and sz.get(id(p)) == 4 and not p.op.startswith(('v_permlane', 'v_dot2c', 'v_readfirst', 'v_accvgpr', 'v_cmp', 'v_cndmask')) and not p.op.endswith('_e64'):
                    p.text = p.text.replace(p.op, p.op + "_e64", 1)
                else: new.append(Ins("s_nop 0"))
                off += 4; nal += 1
        new.append(it); off += sz.get(id(it), 0)
    items = new
    body = '\n'.join(('' if i.cls == 'label' else '  ') + i.text for i in items) + '\n'
    print("alignment fixes:", nal, "code bytes", off)
hdr = open("cdna_kernels/" + NAME + ".s.ref").read().split("; Override launch")[0]
out = hdr + f"""; @launch grid=(256,1,1) block=(256,1,1) lds={LDS_SIZE}
.amdgcn_target "amdgcn-amd-amdhsa--gfx950"
.text
.globl {NAME}_kernel
.p2align 8
.type {NAME}_kernel,@function
{NAME}_kernel:
{body}.fill 2048, 4, 0xbf810000
.section .rodata,"a"
.p2align 6
.amdhsa_kernel {NAME}_kernel
  .amdhsa_next_free_vgpr 512
  .amdhsa_next_free_sgpr 102
  .amdhsa_accum_offset 256
  .amdhsa_group_segment_fixed_size 0
  .amdhsa_kernarg_size 80
  .amdhsa_user_sgpr_count 2
  .amdhsa_user_sgpr_kernarg_segment_ptr 1
  .amdhsa_system_sgpr_workgroup_id_x 1
.end_amdhsa_kernel
"""
open(sys.argv[1], "w").write(out)
n = sum(1 for i in items if i.cls not in ('label', 'dir'))
nu_ = sum(1 for i in items if i.cls not in ('label', 'dir') and i.uncounted)
print("instructions:", n, "(slow path", nu_, ") nops:", sum(1 for i in items if i.op == 's_nop'), "waits:", sum(1 for i in items if i.op == 's_waitcnt'), "stamps", nstamp[0])
```

```python
import sys, struct
from asmlib import *

NAME = "sequential_preLN__linear_kernel_hedgehog__dense_activation_silu__prompt"
DIAG = int(sys.argv[2]) if len(sys.argv) > 2 else 0
OPT = dict(a.split('=') for a in sys.argv[3:])
def opt(k, d): return int(OPT[k], 0) if k in OPT else d

WS_PART = 0x40000
WS_O    = 0x240000
WS_H    = 0x440000
WS_H1   = 0x680000
WS_DIAG = 0xE80000
WS_FLG  = 0xF00000
WS_SIZE = 0xF80000
XW = 28672
L_WV, L_WQ, L_WK, L_WO = 0, 28672, 57344, 86016
L_IMG = L_WK
L_KVX = 143360
L_XCH = 147456
L_SCR = 114688
L_AUG = 161792
LDS_SIZE = 163840
sW, sT, sH, sT2, sR = 3, 4, 5, 6, 7
X, WQKV, WPHI, WO, W1, W2, OUT, WS = [f"s[{i}:{i+3}]" for i in range(8, 40, 4)]
sKX, sKW = 40, 47
sHQ, sHIM = 54, 55
sRET = "s[56:57]"
sSPIN, sP, sU, sC, sMASK, sQ = 58, 59, 60, 61, 62, 63
sHI = "s[64:65]"
sLOG = "s[66:67]"
sONES, sTILE = 68, 69
sA, sB, sCt, sD = 70, 71, 72, 73
sRact, sXO = 74, 75
sWB, sWQ = 76, 77
sLAST, sFLAG, sWM, sPST, sPCK, sOST, sXRB, sOUT = 80, 81, 82, 83, 84, 85, 86, 87
sSTAMP = 88

def v(a, n=1): return f"v{a}" if n == 1 else f"v[{a}:{a+n-1}]"
def a_(a, n=1): return f"a{a}" if n == 1 else f"a[{a}:{a+n-1}]"
def fhex(x): return hex(struct.unpack('<I', struct.pack('<f', x))[0])
def flat(l): return sum(l, [])
P = Prog(); I = P.I
TAIL = Prog()
nstamp = [0]
SEL = OPT.get("st", "m").split(",")
PICK = [int(x) for x in OPT["pick"].split(",")] if "pick" in OPT else None
allst = [0]
def stampi(name, grp="m"):
    idx = allst[0]; allst[0] += 1
    if opt("jit", 0) and idx in (3, 7, 9, 11, 13, 17, 19, 21, 25, 26, 27, 28, 29):
        return mk(f"""s_memtime s[88:89]
s_waitcnt lgkmcnt(0)
s_mul_i32 s88, s88, 0x9E3779B1
s_lshr_b32 s88, s88, {opt("jit", 0)}
L_jit{idx}:
s_sleep 8
s_sub_u32 s88, s88, 1
s_cmp_gt_i32 s88, 0
s_cbranch_scc1 L_jit{idx}""")
    if not DIAG: return []
    if PICK is not None:
        if name != "start" and idx not in PICK:
            print(f"   - {idx}: {name}"); return []
    elif name != "start" and not (set(grp) & set(SEL)): return []
    k = nstamp[0]; nstamp[0] += 1
    assert k < 7
    print(f"stamp {k}: [{idx}] {name}")
    op = "s_memtime" if DIAG == 2 else "s_memrealtime"
    return mk(f"{op} s[{sSTAMP+2*k}:{sSTAMP+2*k+1}]")
def stamp(name, grp="m"): P.add(stampi(name, grp))
X3 = "bitop3:0x96"

def chk_code(regs, masked):
    r = list(regs)
    if masked: return f"v_bitop3_b32 v10, v{r[0]}, v{r[1]}, s{sMASK} bitop3:0x28\nv_cmp_ne_u32 vcc, v10, v6"
    if len(r) == 1: return f"v_cmp_ne_u32 vcc, v{r[0]}, v5"
    if len(r) == 2: t = f"v_xor_b32 v10, v{r[0]}, v{r[1]}"
    else:
        t = f"v_bitop3_b32 v10, v{r[0]}, v{r[1]}, v{r[2]} {X3}"
        if len(r) == 4: t += f"\nv_xor_b32 v10, v10, v{r[3]}"
    return t + "\nv_cmp_ne_u16 vcc, v10, v5"

sFL, sDM = 56, 57
GUARD = f"s_add_u32 s{sSPIN}, s{sSPIN}, 1\ns_cmp_gt_u32 s{sSPIN}, 0x40000\ns_cbranch_scc1 L_end\ns_waitcnt vmcnt(0)"
class Fetch:
    def __init__(self, name, pieces, masked=False, nre=1):
        self.name, self.pieces, self.masked, self.nre = name, pieces, masked, nre
    def loadc(self, i):
        it = flat([mk(c.replace(f"s{sCt}", f"s{sFL}")) for c in self.pieces[i][0]])
        out = []; cur = []
        for x in it:
            cur.append(x)
            if x.cls == 'vmem': out.append(cur); cur = []
        return out
    def load(self, i): return flat(self.loadc(i))
    def stub(self, i, last):
        n = self.name
        wgt = {"fo": 0x100, "fh": 0x10000, "f4": 0x1000000}.get(n, 1)
        rel = (f"s_add_u32 s80, s80, {wgt}\n" if DIAG else "") + "\n".join(c for j in range(i, min(last, i + self.nre - 1) + 1) for c in self.pieces[j][0])
        if opt("ool", 15) & {"fo": 2, "fh": 4, "f4": 8}[n]:
            TAIL.I(f"L_{n}_r{i}:\n" + rel + "\n" + GUARD + "\n" + chk_code(self.pieces[i][1], self.masked) + f"\ns_cbranch_vccnz L_{n}_r{i}\ns_branch L_{n}_ok{i}", unc=True)
            return mk(f"s_cbranch_vccnz L_{n}_r{i}\nL_{n}_ok{i}:")
        return mk(f"s_cbranch_vccz L_{n}_ok{i}\nL_{n}_r{i}:") + \
               mk(rel + "\n" + GUARD + "\n" + chk_code(self.pieces[i][1], self.masked) + f"\ns_cbranch_vccnz L_{n}_r{i}", unc=True) + mk(f"L_{n}_ok{i}:")
    def checkc(self, i, last):
        return [[x] for x in mk(chk_code(self.pieces[i][1], self.masked))] + [self.stub(i, last)]
    def check(self, i, last): return flat(self.checkc(i, last))

sFS, sFP = 80, 81
vL512, vPO, vPF = 0, 142, 143
def flag_store(nl): return mk(f"s_mov_b64 exec, {(1 << nl) - 1}\nbuffer_store_dword v5, v{vL512}, {WS}, s{sFS} offen sc1\ns_mov_b64 exec, -1")
def gate(name, vo, vf): return Fetch(name, [([f"buffer_load_dword v{vf}, v{vo}, {WS}, s{sFP} offen sc1"], [vf])])
GATE = opt("gate", 0)

def cost(it):
    if isinstance(it, WaitTag): return 4
    if it.cls in ('label', 'dir') or it.uncounted: return 0
    if it.op.startswith(TRANS) or 'permlane' in it.op: return 8
    if it.op.startswith('ds_write_b128'): return 28
    if it.cls == 'mfma': return 8
    return 4.5
class Sched:
    def __init__(self, groups):
        self.groups = groups; self.gap = [[] for _ in groups]; self.seq = 0
    def at(self, g, items, frac=0.5):
        self.seq += 1; self.gap[g].append((frac, self.seq, list(items)))
    def spread(self, chunks, a, b):
        chunks = [c if isinstance(c, list) else [c] for c in chunks]
        tot = sum(cost(i) for c in chunks for i in c) or 1; acc = 0
        for c in chunks:
            pos = a + (b - a) * acc / tot
            self.at(int(pos), c, pos - int(pos))
            acc += sum(cost(i) for i in c)
    def emit(self):
        out = []
        for g, gp in zip(self.groups, self.gap):
            out += g
            for _, _, c in sorted(gp, key=lambda x: (x[0], x[1])): out += c
        return out
def sprinkle(items, groups, start, step):
    out = []; groups = list(groups); nxt = start
    for i, it in enumerate(items):
        if groups and i == nxt: out += groups.pop(0); nxt += step
        out.append(it)
    for g in groups: out += g
    return out

def softmax(p, t, o, pk):
    q = Prog(); J = q.I
    m, n = t + 14, t + 15; r0, r1 = t + 16, t + 17
    J(f"v_max3_f32 v{m}, v{p}, v{p+1}, v{p+2}\nv_max3_f32 v{n}, -v{p}, -v{p+1}, -v{p+2}")
    for k in range(3, 13, 2):
        J(f"v_max3_f32 v{m}, v{m}, v{p+k}, v{p+k+1}\nv_max3_f32 v{n}, v{n}, -v{p+k}, -v{p+k+1}")
    J(f"""v_max_f32 v{m}, v{m}, v{p+13}
v_max_f32 v{n}, v{n}, -v{p+13}
v_permlane32_swap_b32 v{m}, v{n}
v_max_f32 v{m}, v{m}, v{n}
v_mul_f32 v{m}, v253, v{m}
v_mov_b32 v{n}, v{m}
v_permlane32_swap_b32 v{m}, v{n}""")
    if pk:
        for k in range(0, 14, 2):
            J(f"v_pk_fma_f32 {v(t+k,2)}, {v(p+k,2)}, v[252:253], {v(m,2)} op_sel_hi:[1,0,0]")
            J(f"v_pk_fma_f32 {v(p+k,2)}, {v(p+k,2)}, v[252:253], {v(m,2)} op_sel:[0,1,1] op_sel_hi:[1,1,1]")
    if pk == 2:
        for k in range(14):
            J(f"v_exp_f32 v{t+k}, v{t+k}\nv_exp_f32 v{p+k}, v{p+k}")
            if k >= 2:
                a0 = f"v{t}" if k == 2 else f"v{r0}"; a1 = f"v{p}" if k == 2 else f"v{r1}"
                J(f"v_add_f32 v{r0}, {a0}, v{t+k-1}\nv_add_f32 v{r1}, {a1}, v{p+k-1}")
        J(f"v_add_f32 v{m}, v{r0}, v{t+13}\nv_add_f32 v{n}, v{r1}, v{p+13}")
    elif pk:
        for k in range(14): J(f"v_exp_f32 v{t+k}, v{t+k}")
        for k in range(14): J(f"v_exp_f32 v{p+k}, v{p+k}")
        J(f"v_pk_add_f32 {v(m,2)}, {v(t,2)}, {v(t+2,2)}\nv_pk_add_f32 {v(r0,2)}, {v(p,2)}, {v(p+2,2)}")
        for k in range(4, 14, 2):
            J(f"v_pk_add_f32 {v(m,2)}, {v(m,2)}, {v(t+k,2)}\nv_pk_add_f32 {v(r0,2)}, {v(r0,2)}, {v(p+k,2)}")
        J(f"v_add_f32 v{m}, v{m}, v{n}\nv_add_f32 v{n}, v{r0}, v{r1}")
    else:
        for k in range(14):
            J(f"v_fma_f32 v{t+k}, v{p+k}, v252, v{m}\nv_fma_f32 v{p+k}, v{p+k}, v253, v{n}\nv_exp_f32 v{t+k}, v{t+k}\nv_exp_f32 v{p+k}, v{p+k}")
            if k >= 2:
                a0 = f"v{t}" if k == 2 else f"v{r0}"; a1 = f"v{p}" if k == 2 else f"v{r1}"
                J(f"v_add_f32 v{r0}, {a0}, v{t+k-1}\nv_add_f32 v{r1}, {a1}, v{p+k-1}")
        J(f"v_add_f32 v{m}, v{r0}, v{t+13}\nv_add_f32 v{n}, v{r1}, v{p+13}")
    J(f"""v_permlane32_swap_b32 v{m}, v{n}
v_add_f32 v{m}, v{m}, v{n}
v_rcp_f32 v{m}, v{m}
v_mov_b32 v{n}, v{m}
v_permlane32_swap_b32 v{m}, v{n}""")
    if pk == 1:
        for k in range(0, 14, 2):
            J(f"v_pk_mul_f32 {v(t+k,2)}, {v(t+k,2)}, {v(m,2)} op_sel_hi:[1,0]")
            J(f"v_pk_mul_f32 {v(p+k,2)}, {v(p+k,2)}, {v(m,2)} op_sel:[0,1] op_sel_hi:[1,1]")
    else:
        for k in range(14): J(f"v_mul_f32 v{t+k}, v{t+k}, v{m}\nv_mul_f32 v{p+k}, v{p+k}, v{n}")
    for k in range(7): J(f"v_cvt_pk_bf16_f32 v{o+k}, v{t+2*k}, v{t+2*k+1}")
    for k in range(7): J(f"v_cvt_pk_bf16_f32 v{o+7+k}, v{p+2*k}, v{p+2*k+1}")
    return q.items

def dmag(vaddrs, srd, sbase, sadd, mbase, madd, tag, sreg=None):
    sr = sCt if sreg is None else sreg
    ch = [mk(f"buffer_load_dwordx4 v{a}, {srd}, s{sr} offen offset:{1024*i} lds", tag=tag) for i, a in enumerate(vaddrs)]
    ch[0] = mk(f"s_add_u32 m0, s{mbase}, {madd}\ns_add_u32 s{sr}, s{sbase}, {sadd}") + ch[0]
    return ch

MF = "v_mfma_f32_32x32x16_bf16"
RINGA, NRING = 224, 8
def gemm_lds(steps, ahead=6):
    def rd(i):
        av, o1, o2 = steps[i][:3]; r = RINGA + 4 * (i % NRING)
        return mk(f"ds_read_b64_tr_b16 {a_(r,2)}, v{av} offset:{o1}\nds_read_b64_tr_b16 {a_(r+2,2)}, v{av} offset:{o2}")
    rds = [rd(i) for i in range(len(steps))]
    groups = []
    for i, st in enumerate(steps):
        r = RINGA + 4 * (i % NRING); b, acc, first, swap = st[3]
        A, B = a_(r, 4), v(b, 4)
        if swap: A, B = B, A
        g = mk(f"{MF} {v(acc,16)}, {A}, {B}, {'0' if first else v(acc,16)}")
        if i % 2 == 0 and i + 1 < len(steps):
            r2 = RINGA + 4 * ((i + 1) % NRING); g[0].extra = [('a', r2 + x) for x in range(4)]
        groups.append(g + (rds[i + ahead] if i + ahead < len(steps) else []))
    return flat(rds[:ahead]), groups

FAST = opt('fast', 1)
LO = """s_load_dwordx2 s[12:13], s[0:1], 8
s_load_dwordx2 s[16:17], s[0:1], 16
s_load_dwordx2 s[20:21], s[0:1], 24
s_load_dwordx2 s[24:25], s[0:1], 40
s_load_dwordx2 s[28:29], s[0:1], 48
s_load_dwordx2 s[32:33], s[0:1], 56
s_load_dwordx2 s[36:37], s[0:1], 72
"""
CP = f"""v_lshlrev_b32 v3, 4, v1
v_lshl_add_u32 v3, v2, 6, v3
v_lshl_add_u32 v3, v2, 4, v3
v_add_u32 v3, s{sCt}, v3
v_lshlrev_b32 v3, 7, v3
s_and_b32 s76, s76, 0xffffff00
s_mov_b64 exec, 31
global_load_dword v236, v3, s[76:77]
s_mov_b64 exec, -1
"""
MAP1 = [f"""{"s_lshr_b32 s4, s70, 1" if opt("pair", 1) else "s_and_b32 s4, s70, 3"}
s_lshl_b32 s{sT}, s{sT}, 2
s_and_b32 s{sD}, s{sB}, 3
s_add_u32 s{sT}, s{sT}, s{sD}
{"s_and_b32 s59, s70, 1" if opt("pair", 1) else "s_lshr_b32 s59, s70, 2"}
s_lshl_b32 s{sH}, s{sP}, 3
s_lshr_b32 s{sD}, s{sB}, 2
s_add_u32 s{sH}, s{sH}, s{sD}
s_mul_i32 s{sP}, s{sT}, {opt("rt", 2)}
s_add_u32 s{sD}, s{sD}, s{sP}
s_mul_i32 s{sP}, s{sD}, 37
s_lshr_b32 s{sP}, s{sP}, 8
s_mul_i32 s{sP}, s{sP}, 7
s_sub_u32 s{sD}, s{sD}, s{sP}
s_lshl_b32 s{sKX}, s{sD}, 7
""",
f"""s_lshl_b32 s{sT}, s{sA}, 1
s_lshr_b32 s{sD}, s{sB}, 4
s_add_u32 s{sT}, s{sT}, s{sD}
s_mov_b32 s{sH}, s{sCt}
s_and_b32 s{sD}, s{sH}, 7
s_cmp_eq_u32 s{sD}, 7
s_cselect_b32 s{sD}, 3, s{sD}
s_lshl_b32 s{sKX}, s{sD}, 7
""",
f"""s_mov_b32 s{sT}, s{sCt}
s_lshl_b32 s{sH}, s{sA}, 1
s_lshr_b32 s{sD}, s{sB}, 4
s_add_u32 s{sH}, s{sH}, s{sD}
s_and_b32 s{sD}, s{sH}, 7
s_mul_i32 s{sD}, s{sD}, 3
s_mul_i32 s{sP}, s{sD}, 37
s_lshr_b32 s{sP}, s{sP}, 8
s_mul_i32 s{sP}, s{sP}, 7
s_sub_u32 s{sD}, s{sD}, s{sP}
s_lshl_b32 s{sKX}, s{sD}, 7
"""][opt("map1", 0)]
if DIAG: I("s_memrealtime s[78:79]")
I(f"""s_cmp_ge_u32 s2, 256
s_cbranch_scc1 L_end
s_load_dwordx2 s[8:9], s[0:1], 0
{LO if not FAST else ''}{"s_waitcnt lgkmcnt(0)" + chr(10) + "s_memrealtime s[88:89]" if opt("bare", 0) else ""}
s_getpc_b64 s[76:77]
v_and_b32 v1, 63, v0
v_lshrrev_b32 v2, 6, v0
s_and_b32 s{sA}, s2, 7
v_readfirstlane_b32 s{sW}, v2
s_lshr_b32 s{sB}, s2, 3
s_and_b32 s{sCt}, s{sB}, 15
{CP if FAST < 2 else ''}{MAP1}
s_mov_b32 s10, 1835008
s_mov_b32 s11, 0x20000
v_lshrrev_b32 v2, 3, v1
v_mul_u32_u24 v244, 896, v2
v_lshrrev_b32 v2, 4, v1
v_and_b32 v8, 7, v1
v_xor_b32 v2, v2, v8
v_lshl_add_u32 v244, v2, 4, v244
v_xor_b32 v245, 64, v244
v_add_u32 v245, {7168-1024}, v245
v_add_u32 v246, {2*(7168-1024)}, v244
v_add_u32 v247, {2*(7168-1024)}, v245
s_lshl_b32 s{sQ}, s{sT}, 2
s_add_u32 s{sQ}, s{sQ}, s{sW}
s_mul_i32 s{sQ}, s{sQ}, {32*896}
s_lshr_b32 s{sXO}, s{sW}, 1
s_add_u32 s{sXO}, s{sXO}, s{sW}
s_mul_i32 s{sXO}, s{sXO}, {XW}
s_waitcnt lgkmcnt(0)""")
st0 = stampi("start")
if not opt("bare", 0): P.add(st0)
def xdma(g): return flat(dmag([244, 245, 246, 247], X, sQ, f"s{sKX+g}", sXO, 4096*g, f"x{g}"))
P.add(xdma(0))
if FAST: I(LO)
if FAST == 2: I(f"v_lshrrev_b32 v2, 6, v0\ns_and_b32 s{sCt}, s{sB}, 15\n" + CP)
I(f"""s_mov_b32 s14, {0 if opt('abl',0)&8 else 1204224}
s_mov_b32 s15, 0x20000
v_and_b32 v8, 3, v1""")
def wtouch(mask16, dst):
    m = mask16 | (mask16 << 16)
    return mk(f"s_mov_b32 exec_lo, {hex(m)}\ns_mov_b32 exec_hi, {hex(m)}\nbuffer_load_dword v{dst}, v255, {WQKV}, 0 offen\ns_mov_b64 exec, -1")
def kxs(g): return mk(f"s_add_u32 s{sKX+g}, s{sKX+g-1}, 128\ns_cmp_ge_u32 s{sKX+g}, 896\ns_cselect_b32 s{sD}, 896, 0\ns_sub_u32 s{sKX+g}, s{sKX+g}, s{sD}")
NXE = opt("nxe", 2)
if opt("wtfirst", 1) and opt("wt0", 0): P.add(wtouch(opt("wt0", 0), 237))
for g in range(1, NXE): P.add(kxs(g) + xdma(g))
if not opt("wtfirst", 1) and opt("wt0", 0): P.add(wtouch(opt("wt0", 0), 237))
if FAST: I("s_waitcnt lgkmcnt(0)")
if opt("wsoff", 0): I(f"s_add_u32 s36, s36, {opt('wsoff', 0)}\ns_addc_u32 s37, s37, 0")
I(f"""s_mov_b32 s38, {WS_SIZE}
s_mov_b32 s39, 0x20000
s_mov_b32 s18, 25088
s_mov_b32 s19, 0x20000
s_mov_b32 s22, {0 if opt('abl',0)&4 else 401408}
s_mov_b32 s23, 0x20000
s_xor_b32 s{sHQ}, s{sH}, 1
v_mov_b32 v11, 0
v_lshlrev_b32 v6, 7, v1""")
TM = opt("tm", 0)
sm_ld = mk(f"""s_mov_b64 exec, 1
buffer_load_dword v5, v6, {WS}, 0 offen sc1""")
if opt("two_", 1): sm_ld += mk(f"""s_lshl_b32 s56, s2, 2
s_add_u32 s56, s56, s{sW}
s_lshl_b32 s56, s56, 9
s_mov_b64 exec, 15
buffer_load_dword v238, v6, {WO}, s56 offen""")
if opt("twp", 0): sm_ld += mk(f"""s_and_b32 s{sCt}, s{sH}, 14
s_mul_i32 s{sCt}, s{sCt}, 1568
s_mul_i32 s56, s{sW}, 896
s_add_u32 s{sCt}, s{sCt}, s56
s_mov_b64 exec, 127
buffer_load_dword v239, v6, {WPHI}, s{sCt} offen""")
sm_ld += mk("s_mov_b64 exec, -1")
if TM == 0: P.add(sm_ld)
for g in range(NXE, 7): P.add(kxs(g))
I(f"""s_lshl_b32 s{sT2}, s{sA}, 1
s_lshr_b32 s{sD}, s{sB}, 4
s_add_u32 s{sT2}, s{sT2}, s{sD}
s_and_b32 s{sRact}, s{sB}, 15
s_min_u32 s{sR}, s{sRact}, 13
s_mov_b32 s26, {0 if opt('abl',0)&1 else 1605632}
s_mov_b32 s27, 0x20000
s_mov_b32 s30, {0 if opt('abl',0)&2 else 1605632}
s_mov_b32 s31, 0x20000
s_mov_b32 s34, 1835008
s_mov_b32 s35, 0x20000
s_mov_b32 s64, 0
s_mov_b32 s65, -1
s_mov_b32 s{sONES}, 0x3f803f80
s_mov_b32 s{sMASK}, 0xbfffbfff
s_mov_b32 s{sHIM}, 0xffff0000
s_mov_b32 s{sSPIN}, 0
s_mov_b32 s80, 0
s_cmp_ge_u32 s{sR}, 7
s_cselect_b32 s{sU}, 1, 0
s_mul_i32 s{sA}, s{sU}, 7
s_sub_u32 s{sC}, s{sR}, s{sA}""")
sT3 = 67
if opt("map3", 1):
    I(f"""s_and_b32 s{sA}, s{sT2}, 12
s_and_b32 s{sD}, s{sT2}, 1
s_lshl_b32 s{sD}, s{sD}, 1
s_add_u32 s{sA}, s{sA}, s{sD}
s_add_u32 s{sT3}, s{sA}, s{sU}
s_bfe_u32 s{sA}, s{sT2}, 0x10001
s_mul_i32 s{sA}, s{sA}, 7
s_add_u32 s{sR}, s{sA}, s{sC}""")
else: I(f"s_mov_b32 s{sT3}, s{sT2}")
for g in range(7): I(f"s_mul_i32 s{sKW+g}, s{sKX+g}, {172032//128}")
I(f"""s_mul_i32 s{sWB}, s{sH}, 56
s_mul_i32 s{sD}, s{sW}, 43008
s_add_u32 s{sWB}, s{sWB}, s{sD}
s_mul_i32 s{sWQ}, s{sHQ}, 56
s_add_u32 s{sWQ}, s{sWQ}, s{sD}
s_add_u32 s{sWB}, s{sWB}, 896
s_lshl_b32 s{sWM}, s{sW}, 10
s_mul_i32 s66, s{sH}, 1568
s_mul_i32 s81, s{sHQ}, 1568""")
_m0 = len(P.items)
I(f"""s_lshl_b32 s{sA}, s{sH}, 4
s_add_u32 s{sA}, s{sA}, s{sT}
s_mul_i32 s{sA}, s{sA}, 4608
s_add_u32 s{sA}, s{sA}, {WS_PART}
s_add_u32 s{sPST}, s{sA}, s{sWM}
s_lshl_b32 s{sD}, s{sW}, 7
s_add_u32 s{sA}, s{sA}, s{sD}
s_add_u32 s{sPCK}, s{sA}, 4096
s_lshl_b32 s{sA}, s{sT}, 2
s_add_u32 s{sA}, s{sA}, s{sW}
s_lshl_b32 s{sA}, s{sA}, 15
s_lshl_b32 s{sB}, s{sHQ}, 11
s_add_u32 s{sA}, s{sA}, s{sB}
s_add_u32 s{sOST}, s{sA}, {WS_O}
s_lshl_b32 s{sA}, s{sT2}, 2
s_lshl_b32 s{sB}, s{sU}, 1
s_add_u32 s{sA}, s{sA}, s{sB}
s_and_b32 s{sB}, s{sW}, 1
s_add_u32 s{sTILE}, s{sA}, s{sB}
s_mul_i32 s{sA}, s{sA}, {32*896}
s_lshl_b32 s{sB}, s{sC}, 7
s_add_u32 s{sA}, s{sA}, s{sB}
s_mul_i32 s{sD}, s{sW}, {16*896}
s_add_u32 s{sXRB}, s{sA}, s{sD}
s_mul_i32 s{sA}, s{sTILE}, {32*896}
s_add_u32 s{sA}, s{sA}, s{sB}
s_lshr_b32 s{sB}, s{sW}, 1
s_lshl_b32 s{sB}, s{sB}, 6
s_add_u32 s{sOUT}, s{sA}, s{sB}
s_mul_i32 s{sP}, s{sHQ}, {16*4608}
s_add_u32 s{sP}, s{sP}, {WS_PART}""")
deferred = P.items[_m0:]; del P.items[_m0:]
WPK, WPQ, WPT = 192, 200, 208
vWPA, vWPB, vKVX, vIMW, vKA, vKB, vFPD, vFPC, vWO0, vWO1, vXRD0, vXRD1, vXRR, vWOR = range(128, 142)
I(f"""v_lshrrev_b32 v3, 5, v1
v_lshlrev_b32 v2, 4, v1
v_lshlrev_b32 v4, 2, v1
v_bfe_u32 v11, v1, 3, 2
v_lshl_add_u32 v11, v11, 2, v8
v_bfe_u32 v12, v1, 2, 1
v_mul_u32_u24 v12, 14, v12
v_min_u32 v13, 13, v11
v_add_u32 v13, v13, v12
v_lshlrev_b32 v13, 1, v13
v_mul_u32_u24 v14, 224, v3
v_add_u32 v{vWPA}, v13, v14
v_lshl_add_u32 v{vWPB}, v3, 20, v{vWPA}
v_add_u32 v12, v12, v11
v_cmp_gt_u32 vcc, 14, v11
v_lshrrev_b32 v7, 2, v1
v_mul_u32_u24 v7, 2688, v7
v_cndmask_b32 v12, 28, v12, vcc
v_and_b32 v13, 15, v12
v_lshlrev_b32 v13, 4, v13
v_lshrrev_b32 v12, 4, v12
v_lshl_add_u32 v13, v12, 3, v13
v_lshl_add_u32 v13, v3, 8, v13
v_add_u32 v{vKVX}, {L_KVX}, v13
v_lshlrev_b32 v11, 4, v8
v_min_u32 v11, 40, v11
v_add_u32 v7, v7, v11
v_and_b32 v9, 31, v1
v_lshlrev_b32 v240, 7, v9
v_bfe_u32 v11, v1, 1, 3
v_xor_b32 v11, v11, v3
v_lshl_add_u32 v240, v11, 4, v240
v_add_u32 v240, s{sXO}, v240
v_xor_b32 v241, 32, v240
v_xor_b32 v242, 64, v240
v_xor_b32 v243, 96, v240
v_mov_b32 v250, 0
v_mov_b32 v251, 0""")
_m0 = len(P.items)
I(f"""s_lshl_b32 s{sA}, s{sW}, 5
v_add_u32 v10, s{sA}, v9
v_mul_u32_u24 v10, 208, v10
v_mul_u32_u24 v11, 96, v3
v_add_u32 v{vIMW}, v10, v11
v_lshrrev_b32 v10, 4, v1
v_bfe_u32 v15, v1, 2, 2
v_lshl_add_u32 v10, v10, 3, v15
v_mul_u32_u24 v10, 208, v10
v_and_b32 v11, 1, v1
v_mul_u32_u24 v11, 96, v11
v_add_u32 v10, v10, v11
v_bfe_u32 v11, v1, 1, 1
v_lshl_add_u32 v10, v11, 3, v10
v_add_u32 v{vKB}, {L_IMG}, v10
s_lshl_b32 s{sA}, s{sW}, 4
v_add_u32 v{vKA}, s{sA}, v{vKB}
v_add_u32 v{vFPD}, s{sWM}, v2
s_lshl_b32 s{sD}, s{sW}, 7
s_add_u32 s{sD}, s{sD}, 4096
v_lshlrev_b32 v0, 1, v1
v_add_u32 v{vFPC}, s{sD}, v0
v_lshrrev_b32 v12, 3, v1
v_mul_u32_u24 v14, 896, v12
v_and_b32 v13, 7, v1
v_xor_b32 v12, v12, v13
v_lshl_add_u32 v{vXRD0}, v12, 4, v14
v_add_u32 v{vXRD1}, {7168-1024}, v{vXRD0}
v_bfe_u32 v12, v1, 4, 1
v_lshlrev_b32 v11, 2, v12
v_xor_b32 v11, v11, v13
v_lshl_add_u32 v{vWO0}, v11, 4, v14
v_add_u32 v{vWO1}, {7168-1024}, v{vWO0}
s_and_b32 s{sA}, s{sW}, 1
s_lshl_b32 s{sA}, s{sA}, 12
s_add_u32 s{sA}, s{sA}, {L_XCH}
v_lshlrev_b32 v10, 7, v9
v_lshl_add_u32 v10, v3, 3, v10
v_add_u32 v10, s{sA}, v10
s_lshr_b32 s{sA}, s{sW}, 1
s_lshl_b32 s{sB}, s{sA}, 2
v_xor_b32 v13, s{sB}, v13
v_lshl_add_u32 v{vXRR}, v13, 4, v10
v_mad_u32_u24 v10, v3, 14, v15
v_lshlrev_b32 v10, 7, v10
v_bfe_u32 v13, v1, 3, 1
v_xor_b32 v13, v13, v3
v_xor_b32 v13, s{sA}, v13
v_lshl_add_u32 v10, v13, 6, v10
v_lshl_add_u32 v10, v12, 5, v10
v_lshl_add_u32 v10, v8, 3, v10
s_mul_i32 s{sA}, s{sA}, {8*28*128}
s_add_u32 s{sA}, s{sA}, {L_WO}
v_add_u32 v{vWOR}, s{sA}, v10
v_lshl_add_u32 v11, v3, 3, v15
v_lshlrev_b32 v11, 6, v11
v_lshl_add_u32 v12, v12, 2, v8
v_cmp_lt_u32 vcc, 5, v12
v_xor_b32 v13, 1, v12
v_cndmask_b32 v12, v12, v13, vcc
v_lshl_add_u32 v11, v12, 3, v11
v_add_u32 v13, {L_WK}, v11""")
I(f"""v_bfe_u32 v10, v1, 2, 1
v_bfe_u32 v14, v1, 4, 1
v_lshl_add_u32 v10, v14, 1, v10
v_cmp_eq_u32 vcc, v10, v3
v_and_b32 v10, 1, v1
v_lshlrev_b32 v10, 4, v10
v_mov_b32 v14, 0x3f80
v_lshlrev_b32 v10, v10, v14
v_cndmask_b32 v10, 0, v10, vcc
v_bfe_u32 v14, v1, 3, 1
v_bfe_u32 v15, v1, 1, 1
v_lshl_add_u32 v14, v14, 1, v15""")
for q in range(4): I(f"v_cmp_eq_u32 vcc, {q}, v14\nv_cndmask_b32 v15, 0, v10, vcc\nv_accvgpr_write_b32 a{220+q}, v15")
I("v_add_u32 v9, 896, v7")
deferred += P.items[_m0:]; del P.items[_m0:]
NDEF0 = opt("ndef0", 20)
P.add(deferred[:NDEF0]); deferred = deferred[NDEF0:]
L2N = 0
if L2N:
    I(f"""s_mov_b32 s{sCt}, 0x60504020
s_cmp_ge_u32 s{sH}, 8
s_cselect_b32 s{sCt}, 0x53020100, s{sCt}
s_and_b32 s{sD}, s{sH}, 7
s_lshl_b32 s{sD}, s{sD}, 2
s_lshr_b32 s{sCt}, s{sCt}, s{sD}
s_and_b32 s{sCt}, s{sCt}, 15
s_and_b32 s{sD}, s{sT}, 3
s_mul_i32 s{sD}, s{sD}, 7
s_add_u32 s{sCt}, s{sCt}, s{sD}
s_lshl_b32 s{sCt}, s{sCt}, 2
s_add_u32 s{sCt}, s{sCt}, s{sW}
s_mul_i32 s66, s{sCt}, 14336
s_add_u32 s81, s66, 57344
s_lshl_b32 s{sD}, s{sH}, 1
s_lshr_b32 s{sD}, 0xa111444a, s{sD}
s_and_b32 s{sD}, s{sD}, 3
s_cmp_ge_u32 s{sD}, 1
s_cselect_b32 s66, s66, 0x10000000
s_cmp_ge_u32 s{sD}, 2
s_cselect_b32 s81, s81, 0x10000000
v_add_u32 v143, 7168, v6""")
def l2n(k): return mk(f"s_mov_b32 exec_hi, 0xffffff\nbuffer_load_dword v{142}, v{6 if k % 2 == 0 else 143}, {W1}, s{66 if k < 2 else 81} offen\ns_mov_b32 exec_hi, -1")
stamp("setup done", "p")
def wphi(dst, tmp, so):
    q = []
    for t in range(2):
        for j in range(8):
            d = 16 * t + 8 * (j >> 2) + (j & 3)
            av = vWPB if (t == 1 and j >= 4) else vWPA
            r = (dst if j % 2 == 0 else tmp) + 4 * t + j // 2
            op = "buffer_load_short_d16" if j % 2 == 0 else "buffer_load_short_d16_hi"
            q += mk(f"{op} v{r}, v{av}, {WPHI}, s{so} offen offset:{d*56}")
    return q
def wkdma(g): return flat(dmag([7], WQKV, sWB, f"s{sKW+g}", sWM, L_WK + 4096*g, f"wk{g}"))
def wvdma(g): return flat(dmag([9], WQKV, sWB, f"s{sKW+g}", sWM, L_WV + 4096*g, f"wv{g}"))
def wqdma(g): return flat(dmag([7], WQKV, sWQ, f"s{sKW+g}", sWM, L_WQ + 4096*g, f"wq{g}"))
if opt("fake", 0):
    I(f"""v_mov_b32 v7, v2
v_add_u32 v9, 24576, v2
s_mul_i32 s{sWB}, s{sH}, 73728
s_add_u32 s{sWB}, s{sWB}, s{sWM}
s_mul_i32 s{sWQ}, s{sHQ}, 73728
s_add_u32 s{sWQ}, s{sWQ}, s{sWM}
s_add_u32 s{sWQ}, s{sWQ}, 45056""")
    for g in range(7): I(f"s_lshl_b32 s{sKW+g}, s{sKX+g}, 5")
XF = 16
NX0 = opt("nx0", 3)
if opt("wt1", 0): P.add(wtouch(opt("wt1", 0), 249))
WPP = opt("wpp", 1)
if WPP == 1: P.add(wphi(WPK, WPT, 66) + wphi(WPQ, WPT+8, 81))
for g in range(NXE, NX0): P.add(xdma(g))
if WPP == 2: P.add(wphi(WPK, WPT, 66) + wphi(WPQ, WPT+8, 81))
pend = [xdma(g) for g in range(NX0, 7)]
wkl = [wkdma(g) for g in range(7)]
if TM and TM < NX0: P.add(sm_ld)
elif TM: pend[TM - NX0] = pend[TM - NX0] + sm_ld
if opt("wt2", 0): pend[-1] = pend[-1] + wtouch(opt("wt2", 0), 248)
pend.append(wkl.pop(0) + (wphi(WPK, WPT, 66) if not WPP else []))
pend.append(wkl.pop(0) + (wphi(WPQ, WPT+8, 81) if not WPP else []))
while len(pend) < 7: pend.append(wkl.pop(0))
def xrd(g): return flat([mk(f"ds_read_b128 {v(XF+16*g+4*e,4)}, v{240+e} offset:{4096*g}") for e in range(4)])
P.wait("x0"); P.add(xrd(0))
for g in range(7):
    if pend: P.add(pend.pop(0))
    if g + 1 < 7: P.wait(f"x{g+1}"); P.add(xrd(g + 1))
    for i in range(16):
        r = XF + 16*g + i
        I(f"v_dot2c_f32_bf16 v250, s{sONES}, v{r}\nv_dot2c_f32_bf16 v251, v{r}, v{r}")
    nd_ = -(-len(deferred) // max(1, opt("ndi", 6) - g)) if g < opt("ndi", 6) else len(deferred)
    P.add(deferred[:nd_]); deferred = deferred[nd_:]
    if g == 0: stamp("x0 done", "p")
for x_ in pend: P.add(x_)
if opt("tp", 0) == 2:
    I(f"""s_mul_i32 s{sCt}, s2, {52*128}
s_mul_i32 s{sD}, s{sW}, {13*128}
s_add_u32 s{sCt}, s{sCt}, s{sD}
s_mov_b64 exec, 0x1fff
buffer_load_dword v254, v6, {W2}, s{sCt} offen
buffer_load_dword v255, v6, {W1}, s{sCt} offen
s_mov_b64 exec, -1""")
stamp("x stats done", "mp")
I(f"""v_permlane32_swap_b32 v250, v251
v_readfirstlane_b32 s{sA}, v5
s_nop 0
v_add_f32 v250, v250, v251
v_mul_f32 v250, {fhex(-1/448)}, v250
v_mov_b32 v251, v250
s_or_b32 s{sA}, s{sA}, 1
s_mul_i32 s{sA}, s{sA}, 0x9E3779B5
v_mov_b32 v5, s{sA}
s_mov_b32 s{sA}, 0x3f80
v_permlane32_swap_b32 v250, v251
s_mov_b32 s{sB}, 0x3f800000""")
fin = mk(f"""v_fma_f32 v251, -v250, v250, -v251
v_max_f32 v251, 0, v251
v_add_f32 v251, 0x3727c5ac, v251
v_rsq_f32 v251, v251
s_lshl_b32 s{sQ}, s{sC}, 7
s_mul_i32 s{sD}, s{sW}, {16*896}
v_mul_f32 v252, 0x3fb8aa3b, v251
v_mul_f32 v253, 0xbfb8aa3b, v251
s_add_u32 s{sQ}, s{sQ}, s{sD}
s_lshl_b32 s{sXO}, s{sW}, 11""")
if opt("noid", 1): fin = [mk(f"s_cmp_ge_u32 s{sRact}, 14\ns_cselect_b32 s22, 0, s22")] + fin
ACK = 144; ACV = 160; PK = 176; IMG = 208; TMP = 232
def norm(t):
    q = Prog(); tb = TMP + 8 * (t & 1)
    for i in range(4):
        r = XF + 4 * t + i
        q.I(f"v_dot2_f32_bf16 v{tb+2*i}, v{r}, s{sA}, v250\nv_dot2_f32_bf16 v{tb+2*i+1}, v{r}, s{sB}, v250")
    return q.items
def normc(t):
    tb = TMP + 8 * (t & 1)
    return flat([mk(f"v_cvt_pk_bf16_f32 v{XF+4*t+i}, v{tb+2*i}, v{tb+2*i+1}") for i in range(4)])
def l2t(srd, k, dst):
    return mk(f"""s_lshr_b32 s{sCt}, s2, 3
s_lshl_b32 s{sCt}, s{sCt}, 2
s_add_u32 s{sCt}, s{sCt}, s{sW}
s_mul_i32 s{sCt}, s{sCt}, {98*128}
s_mov_b32 exec_hi, 0x1ffff
s_add_u32 s{sCt}, s{sCt}, {k*49*128}
buffer_load_dword v{dst}, v6, {srd}, s{sCt} offen
s_mov_b32 exec_hi, -1""")
L2A, L2B = opt("l2a", -1), opt("l2b", -1)
touch = mk(f"""s_mul_i32 s{sCt}, s2, {52*128}
s_mul_i32 s56, s{sW}, {13*128}
s_add_u32 s{sCt}, s{sCt}, s56
s_mov_b64 exec, 0x1fff
buffer_load_dword v255, v6, {W1}, s{sCt} offen
buffer_load_dword v254, v6, {W2}, s{sCt} offen
s_mov_b64 exec, -1""")
TP = opt('tp', 0)
ns = norm(0)
for t in range(1, 28): ns += norm(t) + normc(t - 1)
ns += normc(27)
NBAR = opt("nbar", 100)
wvl = [wvdma(k) for k in range(7)]
if opt("loop2", 0):
    I("s_mov_b32 s80, 0\nL_lp2:\ns_mov_b32 s101, s100\ns_memtime s[78:79]\ns_waitcnt lgkmcnt(0)\ns_mov_b32 s99, s78")
    P.add([Ins(x.text) for x in ns])
    I("s_memtime s[78:79]\ns_waitcnt lgkmcnt(0)\ns_sub_u32 s100, s78, s99\ns_add_u32 s100, s100, s88\ns_add_u32 s80, s80, 1\ns_cmp_lt_u32 s80, 2\ns_cbranch_scc1 L_lp2")
    nstamp[0] = 14
P.add(sprinkle(ns[:NBAR], wkl, 0, opt("wkstep", 30)))
if opt("touch", 1) and TP == 1: P.add(touch)
I("s_barrier")
NWV0 = opt("nwv0", 4)
w0_ = [wvl.pop(0) for _ in range(NWV0)]
if L2N == 1: w0_[0] = l2n(0) + w0_[0]; w0_[-1] = w0_[-1] + l2n(2); wvl[-1] = wvl[-1] + l2n(1)
if L2N == 2: wvl[-1] = wvl[-1] + l2n(0) + l2n(2)
P.add(sprinkle(ns[NBAR:], w0_, opt("wv0", 30), opt("wvstep", 50)))
P.wait(*[f"wk{k}" for k in range(7)]); I("s_barrier")
stamp("wk landed", "p")
if opt("zy", 0): I(f"s_sleep {opt('zy', 0)}")
AH = 6
sW1B, sW1M, sW2E, sW2L = 40, 41, 42, 43
set2 = mk(f"""v_lshrrev_b32 v10, 4, v1
v_mul_u32_u24 v12, 3584, v10
v_lshlrev_b32 v10, 2, v10
v_and_b32 v13, 15, v1
v_xor_b32 v10, v10, v13
v_lshl_add_u32 v12, v10, 4, v12
v_add_u32 v13, {4*3584-1024}, v12
v_add_u32 v14, {2*(4*3584-1024)}, v12
v_add_u32 v15, {3*(4*3584-1024)}, v12
s_lshl_b32 s{sW1B}, s{sR}, 8
s_mul_i32 s{sD}, s{sW}, {16*3584}
s_add_u32 s{sW1B}, s{sW1B}, s{sD}
s_lshl_b32 s{sW1M}, s{sW}, 12
s_lshr_b32 s{sA}, s{sW}, 1
s_lshl_b32 s{sA}, s{sA}, 2
s_andn2_b32 s{sB}, 1, s{sW}
s_add_u32 s{sA}, s{sA}, s{sB}
s_lshl_b32 s{sB}, s{sU}, 1
s_add_u32 s44, s{sA}, s{sB}
s_xor_b32 s45, s44, 2
s_lshl_b32 s{sD}, s{sC}, 7
s_mul_i32 s{sW2E}, s44, {32*896}
s_add_u32 s{sW2E}, s{sW2E}, s{sD}
s_mul_i32 s{sW2L}, s45, {32*896}
s_add_u32 s{sW2L}, s{sW2L}, s{sD}
""")
vW2 = [vWO0, vWO1, 128, 129]
sSCR, sBIG = 46, 47
NA = opt("na", 0)
NUR = opt("nur", 2); NT1 = min(NA, opt("nt1", 99))
_u = list(range(14))
def take(n): return [_u.pop(0) for _ in range(min(n, len(_u)))]
UAW = take(NA); UR = take(NUR); UD = take(opt("nud", 2)); UE = take(3); UL = take(opt("nrl", 3)); UP = take(99)
assert all(j >= 7 for j in UL + UP) and all(j >= 4 for j in UE)
RAWS = UAW + UR + UL
def UA(j): return 16*j
def w2slot(j):
    if j in UE: return (sSCR, 4096*UE.index(j), 254)
    if j in UAW + UR + UD: return (sSCR, 4096*(j & 1), 254)
    return (sBIG, 4096*(UL + UP).index(j), 252)
def w2dma(j):
    mb, mo, _ = w2slot(j)
    return dmag(vW2, W2, sW2E if j < 7 else sW2L, (j%7)*256*896, mb, mo, f"w2_{j}", sDM)
def w2raw(j):
    ch = [mk(f"buffer_load_dwordx4 {a_(UA(j)+4*q,4)}, v{vW2[q]}, {W2}, s81 offen offset:{1024*q}") for q in range(4)]
    ch[0] = mk(f"s_add_u32 s81, s{sW2E if j < 7 else sW2L}, {(j%7)*256*896}") + ch[0]
    return ch
def w2rd(j):
    _, mo, av = w2slot(j)
    if j in RAWS: out = [mk(f"ds_write_b128 v{131 if j in UL else 134}, {a_(UA(j)+4*q,4)} offset:{mo+1024*q}") for q in range(4)]
    else: out = [[WaitTag([f"w2_{j}"])]]
    for e in range(2):
        for mu in range(2):
            for u in range(2): out.append(mk(f"ds_read_b64_tr_b16 {a_(UA(j)+8*e+4*mu+2*u,2)}, v{av+mu} offset:{mo+2048*e+1024*u}"))
    return out
raw = flat([w2raw(j) for j in UR])
rawA = flat([w2raw(j) for j in UAW])
if opt("noid", 1): set2 = [mk(f"s_cmp_ge_u32 s{sRact}, 14\ns_cselect_b32 s26, 0, s26")] + set2
set2 += mk(f"v_add_u32 v128, {2*(7168-1024)}, v{vWO0}\nv_add_u32 v129, {3*(7168-1024)}, v{vWO0}")
set2b = [x for x in set2 if isinstance(x, Ins) and x.cls == 'valu' and x.defs[0][1] < 128]
if opt("trim", 1):
    set2 = [mk(f"""s_cmp_eq_u32 s{sW}, 3
s_cselect_b64 vcc, {sHI}, 0
v_mov_b32 v143, 0x10000000
v_add_u32 v133, s{sWM}, v2
v_cndmask_b32 v142, v5, 0, vcc
v_cndmask_b32 v{vFPD}, v{vFPD}, v143, vcc
v_cndmask_b32 v{vFPC}, v{vFPC}, v143, vcc""")] + set2
set2b = [x for x in set2 if isinstance(x, list)] + set2b
set2a = [x for x in set2 if x not in set2b]
pro, gk = gemm_lds([(13, 1024*t, 1024*t + 256, (XF + 4*t, ACK, t == 0, False)) for t in range(28)], AH)
P.add(pro)
S = Sched(gk)
S.spread(wvl, 0, opt("wve", 16))
NQK = opt("nqk", 2)
S.spread([wqdma(k) for k in range(NQK)], opt("wve", 16), 28)
EARLY = opt("early", 0)
if EARLY:
    P.add(flat([x if isinstance(x, list) else [x] for x in fin + set2a])); fin = []
    wo_l = flat([dmag([vWO0, vWO1], WO, sQ, i*64*896, sXO, L_WO + 8192*i, "wo", sDM) for i in range(7)] + [dmag([vXRD0, vXRD1], X, sXRB, 0, sXO, L_XCH, "wo", sDM)])
    if EARLY == 2:
        S.spread([wo_l[2*i] + wo_l[2*i+1] for i in range(8)], 0, 28)
    else: S.spread([rawA.pop(0) for _ in range(min(len(rawA), opt("ne1", 8)))], 0, 28)
else: fin = fin + set2a
if TP == 3: S.at(opt("tpos", 22), touch)
for k, ps in enumerate((L2A, L2B)):
    if 0 <= ps < 28: S.at(ps, l2t(W1, k, 248 + k))
S.spread(fin + flat([mk(f"v_or_b32 v{WPK+q}, v{WPK+q}, v{WPT+q}\nv_or_b32 v{WPQ+q}, v{WPQ+q}, v{WPT+8+q}") for q in range(8)]), 2, 26)
P.add(S.emit())
def phi_pre(acc, wp):
    q = Prog()
    for i in range(8): q.I(f"v_cvt_pk_bf16_f32 v{acc+i}, v{acc+2*i}, v{acc+2*i+1}")
    q.I(f"{MF} {v(PK,16)}, {v(wp,4)}, {v(acc,4)}, 0\n{MF} {v(PK,16)}, {v(wp+4,4)}, {v(acc+4,4)}, {v(PK,16)}")
    return q.items
stamp("k gemm done", "mp")
wql = [wqdma(k) for k in range(NQK, 7)]
P.add(wql.pop(0))
P.add(phi_pre(ACK, WPK))
imw = flat([mk(f"ds_write_b128 v{vIMW}, {v(IMG+4*i,4)} offset:{L_IMG+16*i}") for i in range(3)]) + mk(f"ds_write_b64 v{vIMW}, {v(IMG+12,2)} offset:{L_IMG+48}")
smk = sprinkle(softmax(PK, TMP, IMG, True), [wql.pop(0) for _ in range(min(len(wql), opt("nwq0", 3)))], 10, opt("wqs", 40))
if EARLY: smk = sprinkle(smk, [rawA.pop(0) for _ in range(min(len(rawA), opt("ne2", 8)))], 5, 16)
WEAVE = opt("weave", 1)
pro, gv = gemm_lds([(11, L_WV + 1024*t, L_WV + 1024*t + 256, (XF + 4*t, ACV, t == 0, False)) for t in range(28)], AH)
S = Sched(gv)
if not WEAVE:
    P.add(smk)
    P.wait(*[f"wv{k}" for k in range(7)]); I("s_barrier")
    stamp("softmax k done", "p")
    P.add(pro)
    S.spread(imw, 2, 10)
else:
    smf = softmax(PK, TMP, IMG, 2)
    n0 = next(i for i, x in enumerate(smf) if x.op == "v_exp_f32")
    P.wait(*[f"wv{k}" for k in range(4)]); I("s_barrier")
    P.add(pro)
    P.add(smf[:n0])
    stamp("softmax k done", "p")
    S.spread(smf[n0:] + imw, 0, 28)
    S.at(15 - AH, [WaitTag(["wv4", "wv5", "wv6"])] + mk("s_barrier"), 1.0)
    wql = [wqdma(k) for k in range(NQK + 1, 7)]
wo_l = flat([dmag([vWO0, vWO1], WO, sQ, i*64*896, sXO, L_WO + 8192*i, "wo", sDM) for i in range(7)] + [dmag([vXRD0, vXRD1], X, sXRB, 0, sXO, L_XCH, "wo", sDM)])
if EARLY == 2: wo_l = []
S.spread(wql, 0, opt('wqe', 10))
if EARLY: S.spread([rawA.pop(0) for _ in range(min(len(rawA), opt("ne3", 8)))], 0, 22)
if L2A >= 0 or L2N: touch = [x for x in touch if W1 not in x.text]
if L2N == 1: S.at(opt("l2p", 14), l2n(3))
if L2N == 2: S.at(opt("l2p", 14), l2n(1) + l2n(3))
tlb = []
if opt("tlb", 0) & 1: tlb += mk(f"s_mov_b64 exec, 1\nbuffer_load_dword v248, v6, {OUT}, s{sOUT} offen\ns_mov_b64 exec, -1")
if opt("tlb", 0) & 2: tlb += mk(f"v_lshlrev_b32 v249, 20, v1\ns_mov_b64 exec, 0xffff\nbuffer_load_dword v249, v249, {WS}, 0 offen offset:4092\ns_mov_b64 exec, -1")
if tlb: S.at(opt("tlbp", 13), tlb)
if opt("touch", 1) and TP == 0: S.at(opt("tpos", 11), touch)
for k, ps in enumerate((L2A, L2B)):
    if 200 <= ps < 228: S.at(ps - 200, l2t(W1, k, 248 + k))
S.spread([wo_l.pop(0) for _ in range(2*opt("nwo0", 0))], opt("wos", 17), opt("woe2", 28))
P.add(S.emit())
for k in range(0, 16, 2): I(f"v_pk_mul_f32 {v(ACV+k,2)}, {v(ACV+k,2)}, v[250:251] op_sel:[0,1] op_sel_hi:[1,1]")
I(f"v_cndmask_b32 v{ACV+12}, v{ACV+12}, 1.0, {sHI}")
for i in range(8): I(f"v_cvt_pk_bf16_f32 v{IMG+16+i}, v{ACV+2*i}, v{ACV+2*i+1}")
for i in range(4, 6): I(f"ds_write_b128 v{vIMW}, {v(IMG+4*i,4)} offset:{L_IMG+16*i}")
P.wait("wq0", "wq1", "wq2", "wq3")
I("s_waitcnt lgkmcnt(0)\ns_barrier")
stamp("img written", "p")
KA = 144; KBv = 208; KD = 176
for k in range(4):
    for u in range(2):
        I(f"ds_read_b64_tr_b16 {v(KA+4*k+2*u,2)}, v{vKA} offset:{(32*k+4*u)*208}")
    for nu in range(2):
        for u in range(2):
            I(f"ds_read_b64_tr_b16 {v(KBv+8*k+4*nu+2*u,2)}, v{vKB} offset:{(32*k+4*u)*208+64+16*nu}")
proq, gq = gemm_lds([(11, L_WQ + 1024*t, L_WQ + 1024*t + 256, (XF + 4*t, ACV, t == 0, False)) for t in range(28)], AH)
for k in range(4):
    for nu in range(2):
        I(f"v_mfma_f32_16x16x32_bf16 {v(KD+4*nu,4)}, {v(KA+4*k,4)}, {v(KBv+8*k+4*nu,4)}, {'0' if k == 0 else v(KD+4*nu,4)}")
P.add(proq[:8])
for i in range(4): I(f"v_cvt_pk_bf16_f32 v{KD+8+i}, v{KD+2*i}, v{KD+2*i+1}")
I(f"buffer_store_dwordx4 {v(KD+8,4)}, v2, {WS}, s{sPST} offen sc1")
I(f"v_xor_b32 v10, v{KD+8}, v5")
I(f"buffer_store_short v10, v0, {WS}, s{sPCK} offen sc1")
if GATE & 1: P.add(flag_store(16))
P.add(proq[8:])
stamp("partial stored", "mp")
S = Sched(gq)
bgA = wo_l + rawA
nq = min(len(bgA), opt("nq", 16))
S.spread(bgA[:nq], 0, 28)
S.spread(set2b, 2, 18)
G0 = gate("g0", vPO, vPF)
if GATE & 1: S.at(opt("g0", 14), G0.load(0))
S.at(15 - AH, [WaitTag(["wq4", "wq5", "wq6"])] + mk("s_barrier"), 1.0)
P.add(S.emit())
stamp("q gemm done", "p")
G = 16; GC = 80; SA = 96
FP = Fetch("fp", [([f"s_add_u32 s{sCt}, s{sP}, {4608*T}\nbuffer_load_dwordx4 {v(G+4*T,4)}, v{vFPD}, {WS}, s{sCt} offen sc1\nbuffer_load_ushort v{GC+T}, v{vFPC}, {WS}, s{sCt} offen sc1"],
                   [G+4*T, GC+T]) for T in range(16)])
P.add(phi_pre(ACV, WPQ))
if GATE & 1: P.add(G0.check(0, 0))
I("s_barrier")
PQ = 208
smq = softmax(PK, TMP, PQ, True); f0 = opt("fp0", 80)
P.add(sprinkle(smq[:f0], bgA[nq:], 0, opt("as", 8)))
P.add(sprinkle(smq[f0:], [FP.load(T) for T in range(16)], 0, opt("fpstep", 3)))
stamp("softmax q done", "p")
w1_l = flat([dmag([12, 13, 14, 15], W1, sW1B, i*64*3584, sW1M, 16384*i, "w1", sDM) for i in range(7)])
def fpb(b):
    t = []
    for k, T in enumerate(range(4*b, 4*b+4)):
        t.append(f"v_bitop3_b32 v{10 if k == 0 else 9}, v{G+4*T}, v{GC+T}, v{142 if opt('trim', 1) else 5} {X3}" + ("" if k == 0 else "\nv_or_b32 v10, v10, v9"))
    return "\n".join(t) + "\nv_cmp_ne_u16 vcc, 0, v10"
RI = TAIL.I if (opt("ool", 15) & 1) else I
if not (opt("ool", 15) & 1): I("s_branch L_fp_go")
RI("L_fp_retry:" + ("\ns_add_u32 s80, s80, 1" if DIAG else ""), unc=True)
for b in range(4):
    RI(fpb(b) + f"\ns_cbranch_vccz L_fp_k{b}\n" + "\n".join(FP.pieces[T][0][0] for T in range(4*b, 4*b+4)) + f"\nL_fp_k{b}:", unc=True)
RI(GUARD, unc=True)
if (opt("ool", 15) & 1): RI("s_branch L_fp_go", unc=True)
I("L_fp_go:")
I(fpb(0) + "\ns_cbranch_vccnz L_fp_retry")
S = Sched([mk(f"{MF} {v(SA,16)}, a[220:223], {v(G+4*T,4)}, {'0' if T == 0 else v(SA,16)}") for T in range(16)])
for b in range(1, 4): S.spread(mk(fpb(b) + "\ns_cbranch_vccnz L_fp_retry"), 4*b - 3, 4*b)
S.spread([w1_l.pop(0) for _ in range(opt("nw1a", 2))], 12, 16)
P.add(S.emit())
I(f"v_add_u32 v9, {L_KVX}, v{133 if opt('trim', 1) else vFPD}")
for i in range(4): I(f"v_cvt_pk_bf16_f32 v{SA+8+i}, v{SA+2*i}, v{SA+2*i+1}")
I(f"ds_write_b128 v9, {v(SA+8,4)}\ns_waitcnt lgkmcnt(0)\ns_barrier")
stamp("kv summed", "mp")
KVA = 32; OD = 48
for q in range(7): I(f"ds_read_b64 {v(KVA+2*q,2)}, v{vKVX} offset:{512*q}")
P.add(w1_l.pop(0))
for s in range(3):
    I(f"{MF} {v(OD,16)}, {v(KVA+4*s,4)}, {v(PQ+4*s,4)}, {'0' if s == 0 else v(OD,16)}")
    if s == 1: P.add(w1_l.pop(0))
I(f"v_mfma_f32_32x32x8_bf16 {v(OD,16)}, {v(KVA+12,2)}, {v(PQ+12,2)}, {v(OD,16)}")
I(f"""s_lshl_b32 s{sP}, s{sTILE}, 15
s_lshr_b32 s{sB}, s{sW}, 1
s_lshl_b32 s{sB}, s{sB}, 14
s_add_u32 s{sP}, s{sP}, s{sB}
s_add_u32 s{sP}, s{sP}, {WS_O}
s_add_u32 s{sA}, s{sW1M}, {L_XCH}
v_add_u32 v132, s{sA}, v2
v_xor_b32 v133, 8192, v132
v_xor_b32 v9, 64, v{vWOR}
v_and_b32 v7, 31, v1
v_mul_u32_u24 v7, 896, v7
v_add_f32 v{OD+14}, 0x358637bd, v{OD+14}
v_rcp_f32 v{OD+14}, v{OD+14}
v_lshl_add_u32 v7, v3, 4, v7""")
for k in range(0, 14, 2): I(f"v_pk_mul_f32 {v(OD+k,2)}, {v(OD+k,2)}, {v(OD+14,2)} op_sel_hi:[1,0]")
for k in range(4): I(f"v_cvt_pk_bf16_f32 v{64+k}, v{OD+2*k}, v{OD+2*k+1}")
I(f"buffer_store_dwordx4 v[64:67], v2, {WS}, s{sOST} offen sc1")
for k in range(4, 7): I(f"v_cvt_pk_bf16_f32 v{64+k}, v{OD+2*k}, v{OD+2*k+1}")
I(f"""v_bitop3_b32 v71, v64, v5, s{sMASK} bitop3:0x28
v_and_b32 v6, s{sMASK}, v5
buffer_store_dwordx4 v[68:71], v2, {WS}, s{sOST} offen offset:1024 sc1""")
if GATE & 2: P.add(flag_store(7))
stamp("o stored", "mo")
P.wait("wo")
I(f"s_cmp_ge_u32 s{sRact}, 14\ns_cbranch_scc1 L_idle\ns_barrier")
wor = []
for s in range(16):
    hh, e = s >> 1, s & 1
    for k, av in ((0, vWOR), (1, 9)):
        for u in range(2):
            wor += mk(f"ds_read_b64_tr_b16 {a_(128+8*s+4*k+2*u,2)}, v{av} offset:{(28*hh+8*e+4*u)*128}")
XR = 224
xrr = []
for i in range(4): xrr += mk((f"v_xor_b32 v10, {16*i}, v{vXRR}\n" if i else "") + f"ds_read_b64 {v(XR+2*i,2)}, v{10 if i else vXRR}")
P.add(xrr)
G1 = gate("g1", vPO, vPF)
nb_ = min(opt("nw1b", 16), len(w1_l) - 8)
wor = sprinkle(wor, [w1_l.pop(0) for _ in range(nb_)], 0, opt("w1bs", 4))
if GATE & 2: wor = sprinkle(wor, [G1.load(0)], opt("g1", 40), 1)
P.add(wor)
OB = 16
FO = Fetch("fo", [([f"s_add_u32 s{sCt}, s{sP}, {2048*hh}\nbuffer_load_dwordx4 {v(OB+8*hh,4)}, v2, {WS}, s{sCt} offen sc1\nbuffer_load_dwordx4 {v(OB+8*hh+4,4)}, v2, {WS}, s{sCt} offen offset:1024 sc1"],
                   [OB+8*hh, OB+8*hh+7]) for hh in range(8)], masked=True, nre=opt('reo', 2))
stamp("pre o fetch", "o")
AO, AT = 80, 96
set3 = mk(f"""s_mul_i32 s{sSCR}, s{sW}, 12288
s_mul_i32 s{sBIG}, s{sW}, 28672
v_add_u32 v131, s{sBIG}, v2
s_lshl_b32 s{sB}, s{sC}, 1
s_lshr_b32 s{sD}, s{sW}, 1
s_add_u32 s{sB}, s{sB}, s{sD}
s_mul_i32 s{sA}, s{sTILE}, 14
s_add_u32 s{sB}, s{sB}, s{sA}
s_mul_i32 s{sPST}, s{sB}, 2432
s_add_u32 s{sPST}, s{sPST}, {WS_H}
s_lshr_b32 s48, s{sW}, 1
s_nop 0
v_bfe_u32 v9, v1, 2, 2
v_lshl_add_u32 v240, v3, 2, v9
v_lshlrev_b32 v254, 7, v240
v_lshlrev_b32 v240, 8, v240
v_xor_b32 v9, s{sW}, v9
v_lshl_add_u32 v240, v9, 6, v240
v_bfe_u32 v9, v1, 4, 1
v_lshlrev_b32 v9, 5, v9
v_lshl_add_u32 v9, v8, 3, v9
v_add_u32 v240, v240, v9
v_add_u32 v254, v254, v9
v_bfe_u32 v9, v1, 3, 1
v_xor_b32 v9, s48, v9
v_lshl_add_u32 v254, v9, 6, v254
s_add_u32 s{sSCR}, s{sSCR}, {L_SCR}
v_add_u32 v252, s{sBIG}, v254
v_xor_b32 v253, 64, v252
v_add_u32 v254, s{sSCR}, v254
v_add_u32 v134, s{sSCR}, v2
v_xor_b32 v255, 64, v254
v_xor_b32 v241, 64, v240
v_xor_b32 v242, 128, v240
v_xor_b32 v243, 192, v240""") + flat([mk(f"v_add_u32 v{244+m}, 57344, v{240+m}") for m in range(4)])
pre2 = []
for i in range(8): pre2 += mk(f"v_lshlrev_b32 v{112+2*i}, 16, v{XR+i}\nv_and_b32 v{113+2*i}, s{sHIM}, v{XR+i}")
for s in range(1, 16, 2): pre2 += mk(f"v_accvgpr_write_b32 a{128+8*s+3}, 0\nv_accvgpr_write_b32 a{128+8*s+7}, 0")
if GATE & 2:
    P.add(pre2); P.add(G1.check(0, 0))
    stamp("gate1", "o")
    for hh in range(8): P.add(FO.load(hh))
else:
    P.add(pre2[16:]); P.add(set3)
    I("s_waitcnt lgkmcnt(0)\ns_barrier")
    P.add(sprinkle(flat(flat([w2rd(j) for j in UAW[:NT1]])), [w1_l.pop(0) for _ in range(min(len(w1_l), opt("nw1s", 4)))], 0, 8))
    stamp("shadow done", "o")
    P.add(sprinkle(pre2[:16], [FO.load(hh) for hh in range(8)], 0, 2))
I("s_waitcnt lgkmcnt(0)\ns_barrier")
stamp("fo issued", "o")
g2 = []
for s in range(16):
    for k, acc in ((1, AT), (0, AO)):
        c = ("0" if k else v(112,16)) if s == 0 else v(acc,16)
        g2.append(mk(f"{MF} {v(acc,16)}, {a_(128+8*s+4*k,4)}, {v(OB+4*s,4)}, {c}"))

P.add(FO.check(0, 7))
stamp("fo0", "o")
S = Sched(g2)
for hh in range(1, 8): S.spread(FO.checkc(hh, 7), 4*hh - 3, 4*hh)
S.spread(w1_l + [raw.pop(0) for _ in range(min(len(raw), opt("rawb", 8)))], 0, 32)
P.add(S.emit())
stamp("p2 gemm done", "o")
for i in range(4): I(f"ds_write_b128 v132, {v(AT+4*i,4)} offset:{1024*i}")
I("v_mov_b32 v112, 0\nv_mov_b32 v113, 0\ns_waitcnt lgkmcnt(0)\ns_barrier")
for i in range(4): I(f"ds_read_b128 {v(AT+4*i,4)}, v133 offset:{1024*i}")
HR = XR
for k in range(0, 8, 2): I(f"v_pk_add_f32 {v(AO+k,2)}, {v(AO+k,2)}, {v(AT+k,2)}")
for i in range(4): I(f"v_cvt_pk_bf16_f32 v{HR+i}, v{AO+2*i}, v{AO+2*i+1}")
I(f"buffer_store_dwordx4 {v(HR,4)}, v2, {WS}, s{sPST} offen sc1")
for k in range(8, 16, 2): I(f"v_pk_add_f32 {v(AO+k,2)}, {v(AO+k,2)}, {v(AT+k,2)}")
for i in range(4, 8): I(f"v_cvt_pk_bf16_f32 v{HR+i}, v{AO+2*i}, v{AO+2*i+1}")
I(f"buffer_store_dwordx4 {v(HR+4,4)}, v2, {WS}, s{sPST} offen offset:1024 sc1")
for i in range(8): I(f"v_dot2c_f32_bf16 v112, s{sONES}, v{HR+i}\nv_dot2c_f32_bf16 v113, v{HR+i}, v{HR+i}")
I(f"""v_bitop3_b32 v10, v{HR}, v{HR+4}, v5 {X3}
v_permlane32_swap_b32 v112, v113
v_add_f32 v112, v112, v113
buffer_store_dword v112, v4, {WS}, s{sPST} offen offset:2048 sc1
v_xor_b32 v113, v10, v112
buffer_store_short v113, v0, {WS}, s{sPST} offen offset:2304 sc1""")
def selft(sreg, nl): return mk(f"s_mov_b64 exec, {(1 << nl) - 1}\nbuffer_load_dword v135, v134, {WS}, s{sreg} offen sc1\ns_mov_b64 exec, -1")
SELF = opt("self", 0)
if SELF & 1: P.add(selft(sPST, 20))
if GATE & 4: P.add(flag_store(14))
stamp("h stored", "moh")
HB = 16; ST = 192
ACC = [144, 160, 176, 192]; AUG = 232
set4 = mk(f"""s_lshl_b32 s{sB}, s{sT3}, 2
s_add_u32 s{sB}, s{sB}, s{sW}
s_mul_i32 s{sP}, s{sB}, {14*2432}
s_add_u32 s{sP}, s{sP}, {WS_H}
s_mul_i32 s{sA}, s{sB}, 56
s_lshl_b32 s{sD}, s{sR}, 2
s_add_u32 s{sA}, s{sA}, s{sD}
s_mul_i32 s{sQ}, s{sA}, 2176
s_add_u32 s{sQ}, s{sQ}, {WS_H1}
v_lshlrev_b32 v13, 3, v1
s_lshl_b32 s{sA}, s{sW}, 9
s_add_u32 s{sA}, s{sA}, {L_AUG}
v_add_u32 v13, s{sA}, v13
v_mov_b32 v222, 0""")
FH = Fetch("fh", [([f"s_add_u32 s{sCt}, s{sP}, {2432*p}\nbuffer_load_dwordx4 {v(HB+8*p,4)}, v2, {WS}, s{sCt} offen sc1\nbuffer_load_dwordx4 {v(HB+8*p+4,4)}, v2, {WS}, s{sCt} offen offset:1024 sc1\n"
                    f"buffer_load_dword v{ST+2*p}, v4, {WS}, s{sCt} offen offset:2048 sc1\nbuffer_load_ushort v{ST+2*p+1}, v0, {WS}, s{sCt} offen offset:2304 sc1"],
                   [HB+8*p, HB+8*p+4, ST+2*p, ST+2*p+1]) for p in range(14)], nre=opt('reh', 2))
for i in range(4): I(f"v_mov_b32 v{AUG+i}, s{sONES}")
P.wait("w1"); I("s_barrier")
stamp("w1 landed", "h")
if opt("zz", 0): I(f"s_sleep {opt('zz', 0)}")
def w1a(t, k): return (240 + k + (4 if t >= 14 else 0), (t % 14) * 4096, (t % 14) * 4096 + 2048)
st3 = [w1a(t, 0) + ((AUG, ACC[2], t == 0, True),) for t in range(28)]
TWO = opt("two", 0); N1 = 2 if TWO else 3
for t in range(28):
    for k in range(N1): st3.append(w1a(t, k) + ((HB + 4*t, ACC[k], t == 0, False),))
for t in range(28):
    for k in range(N1, 4): st3.append(w1a(t, k) + ((HB + 4*t, ACC[k], t == 0, False),))
pro, g3 = gemm_lds(st3, AH)
P.add(pro)
S3 = Sched(g3)
S3.spread(set4, 0, 8)
S3.spread(raw + flat([w2dma(j) for j in UD]), opt("c0s", 0), opt("c0e", 10)); raw = []
NH0 = opt("nh0", 4); H0 = opt("h0", 26)
G2 = gate("g2", vPO, vPF)
if GATE & 4:
    S3.at(opt("g2", 12), G2.load(0), 0.9)
    S3.at(27, G2.check(0, 0) + stampi("gate2", "h") + flat([FH.load(p) for p in range(NH0)]), 0.5)
else: S3.spread(flat([FH.loadc(p) for p in range(NH0)]), H0, 27)
cs = ACC[2]
csx = mk(f"""v_cvt_pk_bf16_f32 v{AUG}, v{cs}, v{cs}
v_lshlrev_b32 v{AUG+1}, 16, v{AUG}
v_sub_f32 v{AUG+1}, v{cs}, v{AUG+1}
v_cvt_pk_bf16_f32 v{AUG}, v{cs}, v{AUG+1}
v_and_b32 v{AUG+1}, 0xffff, v{AUG}
v_cndmask_b32 v{AUG}, v{AUG}, 0, {sHI}
v_cndmask_b32 v{AUG+1}, v{AUG+1}, 0, {sHI}
ds_write_b64 v13, {v(AUG,2)}""")
S3.at(27, stampi("colsum done", "h") + csx + FH.check(0, NH0 - 1) + stampi("fh0", "h"), 1.0)
B0 = 28
for p in range(14):
    b = B0 + 2*N1*p
    if p + NH0 < 14:
        for k_, c_ in enumerate(FH.loadc(p + NH0)): S3.at(b + ((0, 2, 1, 3) if TWO else (0, 2, 4, 4))[k_], c_, 0.2)
    S3.at(b, mk(f"v_add_f32 v222, v222, v{ST+2*p}"), 0.0)
    if p + 1 < 14: S3.spread(FH.checkc(p + 1, min(13, p + NH0 - 1)), b + 1, b + 2*N1)
    if p in (3, 7, 11): S3.at(b + 2*N1 - 1, stampi(f"fh{p+1}", "h"), 1.0)
S3.at(B0 + 14, mk("s_barrier") + flat([mk(f"v_xor_b32 v9, {512*k}, v13\nds_read_b64 {v(AUG+2*k,2)}, v9") for k in range(1, 4)]), 0.0)
mid = mk(f"""v_mul_f32 v220, {fhex(1/448)}, v222
v_mov_b32 v221, v220
s_nop 0
v_permlane32_swap_b32 v220, v221
v_fma_f32 v221, -v220, v220, v221
v_max_f32 v221, 0, v221
v_add_f32 v221, 0x3727c5ac, v221
v_rsq_f32 v251, v221
v_cvt_pk_bf16_f32 v222, -v220, -v220
v_lshlrev_b32 v9, 16, v222
v_sub_f32 v9, -v220, v9
v_cvt_pk_bf16_f32 v223, v9, 0
v_mul_f32 v250, v221, v251
v_mul_f32 v251, 0xbfb8aa3b, v251
v_cndmask_b32 v222, v222, 0, {sHI}
v_cndmask_b32 v223, v223, 0, {sHI}""")
S3.spread(mid, *((B0 + 53, B0 + 59) if TWO else (B0 + 79, B0 + 84)))
def aug(k): return mk(f"v_mfma_f32_32x32x8_bf16 {v(ACC[k],16)}, {v(AUG+2*k,2)}, v[222:223], {v(ACC[k],16)}")
SLT = 132
def silu(k, pk):
    q = Prog(); a = ACC[k]; t = 208
    q.I(f"s_xor_b32 s50, s{sW}, {k}\ns_mul_i32 s50, s50, 2176\ns_add_u32 s50, s50, s{sQ}")
    for half in range(2):
        b = a + 8 * half
        if pk:
            for j in range(0, 8, 2): q.I(f"v_pk_mul_f32 {v(t+j,2)}, {v(b+j,2)}, v[250:251] op_sel:[0,1] op_sel_hi:[1,1]")
        else:
            for j in range(8): q.I(f"v_mul_f32 v{t+j}, v{b+j}, v251")
        for j in range(8): q.I(f"v_exp_f32 v{t+j}, v{t+j}")
        if pk:
            for j in range(0, 8, 2): q.I(f"v_pk_fma_f32 {v(t+j,2)}, {v(t+j,2)}, v[250:251], v[250:251] op_sel_hi:[1,0,0]")
        else:
            for j in range(8): q.I(f"v_fma_f32 v{t+j}, v{t+j}, v250, v250")
        for j in range(8): q.I(f"v_rcp_f32 v{t+j}, v{t+j}")
        if pk:
            for j in range(0, 8, 2): q.I(f"v_pk_mul_f32 {v(b+j,2)}, {v(b+j,2)}, {v(t+j,2)}")
        else:
            for j in range(8): q.I(f"v_mul_f32 v{b+j}, v{b+j}, v{t+j}")
        for j in range(4): q.I(f"v_cvt_pk_bf16_f32 v{b+j}, v{b+2*j}, v{b+2*j+1}")
        q.I(f"buffer_store_dwordx4 {v(b,4)}, v2, {WS}, s50 offen offset:{1024*half} sc1")
    q.I(f"v_bitop3_b32 v216, v5, v{a}, v{a+8} {X3}")
    q.I(f"buffer_store_short v216, v0, {WS}, s50 offen offset:2048 sc1")
    return q.items + ([selft(50, 18)] if SELF & 2 and not pk else [])
E0 = B0 + 28*N1
assert not raw
if TWO:
    S3.spread(flat([w2rd(j) for j in UD + UR + UAW[NT1:]]), B0 + 8, B0 + 42)
    S3.at(B0 + 34, mk("s_barrier"), 0.0)
    S3.spread(flat([w2dma(j) for j in UE]), B0 + 48, E0 + opt("wde", 12))
else:
    S3.spread(flat([w2rd(j) for j in UD + UR + UAW[NT1:]]), B0 + 22, B0 + 58)
    S3.at(B0 + 44, mk("s_barrier"), 0.0)
    S3.spread(flat([w2dma(j) for j in UE]), B0 + opt('twd', 64), E0)
B4 = 16
CKR = [240, 241, 244, 245, 248, 249, 217, 218, 219, 130, 242, 246, 243, 247]
C4 = [[a_(224,16), a_(240,16)], [v(ACC[0],16), v(ACC[1],16)]]
set5 = mk(f"""s_mul_i32 s{sA}, s{sTILE}, 56
s_xor_b32 s{sB}, s{sTILE}, 1
s_mul_i32 s{sB}, s{sB}, 56
s_add_u32 s51, s{sB}, s44
s_add_u32 s52, s{sA}, s44
s_add_u32 s53, s{sB}, s45
s_add_u32 s54, s{sA}, s45""")
for k in range(4):
    set5 += mk(f"s_mul_i32 s{51+k}, s{51+k}, 2176\ns_add_u32 s{51+k}, s{51+k}, {WS_H1}")
S3.spread(set5, B0 + 42, B0 + 52)
def piece4(n):
    st, i = n // 7, n % 7; r = B4 + 8 * (n % 14); c = CKR[n % 14]
    return ([f"s_add_u32 s{sCt}, s{51+st}, {8*2176*i}\nbuffer_load_dwordx4 {v(r,4)}, v2, {WS}, s{sCt} offen sc1\nbuffer_load_dwordx4 {v(r+4,4)}, v2, {WS}, s{sCt} offen offset:1024 sc1\n"
             f"buffer_load_ushort v{c}, v0, {WS}, s{sCt} offen offset:2048 sc1"], [r, r+4, c])
F4 = Fetch("f4", [piece4(n) for n in range(28)], nre=opt("re4", 3))
ND = opt("nd", 5)
N0 = ND if TWO else opt("n0", 4)
rawl = flat([w2raw(j) for j in UL])
nr0 = min(len(rawl), opt("nr0", 4))
if TWO:
    S3.at(E0 - 1, stampi("p3 pass1 done", "mh"), 1.0)
    g3[E0 + 3] = aug(0) + g3[E0 + 3]; g3[E0 + 4] = aug(1) + g3[E0 + 4]
    S3.spread(silu(0, False) + [stampi("silu0 done", "e")], E0 + 5, E0 + opt("s0e", 21))
    S3.spread(silu(1, False), E0 + opt("s0e", 21), E0 + opt("s1e", 44))
    S3.spread(rawl, E0 + opt("wde", 12), E0 + opt("rle", 36))
    DEEP = opt("deep", 0)
    if DEEP:
        rng = [(opt("a0", -18), opt("b0", 4)), (opt("a1", 6), opt("b1", 24)), (opt("a2", 26), opt("b2", 50)), (opt("a3", 50), opt("b3", 78))]
        f4pos = []
        for n in range(28):
            a, b = rng[n // 7]
            for k_, c_ in enumerate(F4.loadc(n)):
                pos = a + (b - a) * ((n % 7) + (0, 0.45, 0.9)[k_]) / 7
                lo = (4*n + 4 - 56) if n < 14 else 4*(n - 14) + 4
                pos = max(pos, lo + 0.01*k_); assert pos < 4*n - 3 or n == 0, (n, pos)
                f4pos.append((pos, c_))
        for i_ in range(1, len(f4pos)): assert f4pos[i_][0] >= f4pos[i_-1][0], i_
        import math
        for pos, c_ in f4pos:
            if pos < 0: S3.at(E0 + 56 + math.floor(pos), c_, pos - math.floor(pos))
    else: S3.spread(flat([F4.loadc(n) for n in range(ND)]), E0 + opt("f4s", 52), E0 + 56)
    P.add(S3.emit())
    P.add(aug(2) + aug(3))
else:
    S3.at(E0 - 1, stampi("p3 pass1 done", "mh") + aug(0) + aug(1) + aug(2) + sprinkle(silu(0, True), rawl[:nr0], 3, 12) + stampi("silu0 done", "e"), 1.0)
    S3.spread(silu(1, False) + (silu(2, False) if opt("s2p", 1) else []), E0, E0 + opt("t1e", 26))
    S3.spread(rawl[nr0:], E0, E0 + opt("tre", 14))
    S3.spread(flat([F4.loadc(n) for n in range(N0)]), E0 + opt("f4t", 24), E0 + 28)
    P.add(S3.emit())
    P.add(aug(3))
I("s_barrier")
stamp("p3 gemm done", "me")
g4 = []
for n in range(28):
    st, i = n // 7, n % 7; hf, par = st >> 1, st & 1
    for e in range(2):
        for mu in range(2):
            zero = hf == 0 and i == 0 and e == 0 and not (par == 1 and mu == 0)
            g4.append(mk(f"{MF} {C4[par][mu]}, {a_(UA(7*hf+i)+8*e+4*mu,4)}, {v(B4+8*(n%14)+4*e,4)}, {'0' if zero else C4[par][mu]}"))
P.add(F4.check(0, N0 - 1))
S = Sched(g4)
nxt = N0
for n in range(28):
    prev = nxt
    if nxt < 28 and not (TWO and DEEP):
        if nxt < n + ND and nxt + 1 < 28:
            for k_, c_ in enumerate(F4.loadc(nxt) + F4.loadc(nxt + 1)): S.at(4*n + (0, 1, 1, 2, 3, 3)[k_], c_, 0.2 + 0.01*k_)
            nxt += 2
        else:
            for k_, c_ in enumerate(F4.loadc(nxt)): S.at(4*n + (0, 2, 1)[k_], c_, 0.2)
            nxt += 1
    if n + 1 < 28: S.spread(F4.checkc(n + 1, max(n + 1, prev - 1)), 4*n + 2, 4*n + 4)
    if n in (6, 13, 20): S.at(4*n + 3, stampi(f"stage{n//7} done", "e"), 1.0)
unp = []
for i in range(8): unp += mk(f"v_lshlrev_b32 v{ACC[0]+2*i}, 16, v{HR+i}\nv_and_b32 v{ACC[0]+1+2*i}, s{sHIM}, v{HR+i}")
if TWO and DEEP:
    for pos, c_ in f4pos:
        if pos >= 0: S.at(int(pos), c_, pos - int(pos))
S2E, S3E = opt("s2e", 16), opt("s3e", 22)
if opt("s2p", 1) and not TWO: S2E = 1
else: S.spread(silu(2, False), 0, S2E)
S.spread(unp, 22, 27)
S.spread(silu(3, False), S2E, S3E)
S.spread(flat([w2rd(j) for j in UE if j < 7]), 0, 14)
S.spread(flat([w2dma(j) for j in UP]), opt("w2a", 2), opt("w2b", 44))
for j in [x for x in UE + UL + UP if x >= 7]: S.spread(w2rd(j), 44 + 5*(j-7), 49 + 5*(j-7))
S.at(82, mk(f"""s_lshl_b32 s{sA}, s{sW}, 14
v_add_u32 v13, s{sA}, v2
v_xor_b32 v9, 16384, v13
v_xor_b32 v12, 32768, v13
v_xor_b32 v14, 49152, v13
s_waitcnt lgkmcnt(0)
s_barrier"""))
S.spread([mk(f"ds_write_b128 v{9 if mu == 0 else 14}, {a_(224+16*mu+4*i,4)} offset:{4096*(2*mu+1)+1024*i}") for mu in range(2) for i in range(4)], 87, 99)
S.at(100, mk("s_waitcnt lgkmcnt(0)\ns_barrier"), 0.0)
S.spread([mk(f"ds_read_b128 {v(ACC[2+mu]+4*i,4)}, v13 offset:{4096*(2*mu+1)+1024*i}") for mu in range(2) for i in range(4)], 100, 104)
S.spread([mk(f"v_add_f32 v{ACC[2]+k}, v{ACC[2]+k}, v{ACC[3]+k}") for k in range(16)], 107, 112)
P.add(S.emit())
stamp("p4 gemm done", "me")
for i in range(4): I(f"ds_write_b128 v12, {v(ACC[1]+4*i,4)} offset:{8192+1024*i}")
if opt("cout", 0):
    I(f"""v_lshlrev_b32 v16, 3, v3
v_sub_u32 v16, v{vXRR}, v16
v_lshlrev_b32 v17, 4, v3
v_xor_b32 v16, v16, v17
v_xor_b32 v17, 32, v16
s_add_u32 s{sA}, s{sXO}, {L_XCH}
v_add_u32 v18, s{sA}, v2""")
I("s_waitcnt lgkmcnt(0)\ns_barrier")
for i in range(4): I(f"ds_read_b128 {v(ACC[3]+4*i,4)}, v13 offset:{8192+1024*i}")
for k in range(0, 16, 2): I(f"v_pk_add_f32 {v(ACC[0]+k,2)}, {v(ACC[0]+k,2)}, {v(ACC[2]+k,2)}")
for hf in range(2):
    b = ACC[0] + 8*hf
    for k in range(0, 8, 2): I(f"v_pk_add_f32 {v(b+k,2)}, {v(b+k,2)}, {v(ACC[3]+8*hf+k,2)}")
    for i in range(4): I(f"v_cvt_pk_bf16_f32 v{96+4*hf+i}, v{b+2*i}, v{b+2*i+1}")
    if not opt("cout", 0):
        I(f"v_permlane32_swap_b32 v{96+4*hf}, v{98+4*hf}\nv_permlane32_swap_b32 v{97+4*hf}, v{99+4*hf}\nbuffer_store_dwordx4 {v(96+4*hf,4)}, v7, {OUT}, s{sOUT} offen offset:{32*hf} {OPT.get('ofl', '')}")
    else:
        I(f"v_permlane32_swap_b32 v{96+4*hf}, v{98+4*hf}\nv_permlane32_swap_b32 v{97+4*hf}, v{99+4*hf}\nds_write_b128 v{16+hf}, {v(96+4*hf,4)}")
if opt("cout", 0):
    I("s_waitcnt lgkmcnt(0)\ns_barrier")
    for i in range(2): I(f"ds_read_b128 {v(104+4*i,4)}, v18 offset:{1024*i}")
    for i in range(2): I(f"buffer_store_dwordx4 {v(104+4*i,4)}, v{vXRD0+i}, {OUT}, s{sXRB} offen offset:{1024*i} {OPT.get('ofl', '')}")
stamp("end", "mpohez")
I(f"""s_cmp_lg_u32 s2, 0
s_cbranch_scc1 L_ex0
v_mov_b32 v9, 0""")
I(f"buffer_store_dword v5, v9, {WS}, 0 offen sc1", unc=True)
I("L_ex0:")
if opt("enc", 0):
    mode = opt("enc", 0)
    if mode <= 4:
        I(f"s_bfe_u32 s{sA}, s80, {hex(0x80000 | (8*(mode-1)))}\ns_min_u32 s{sA}, s{sA}, 1\ns_mul_i32 s{sA}, s{sA}, 2000", unc=True)
    else:
        I(f"s_waitcnt lgkmcnt(0)\ns_sub_u32 s{sA}, s{sSTAMP+2}, s78\ns_mul_i32 s{sA}, s{sA}, 4", unc=True)
    I(f"""s_memrealtime s[40:41]
s_waitcnt lgkmcnt(0)
L_enc:
s_memrealtime s[42:43]
s_waitcnt lgkmcnt(0)
s_sub_u32 s42, s42, s40
s_cmp_lt_u32 s42, s{sA}
s_cbranch_scc1 L_enc
s_branch L_end""", unc=True)
if opt("dbg", 0):
    I(f"""s_cmp_lg_u32 s{sW}, 0
s_cbranch_scc1 L_end
s_load_dwordx2 s[40:41], s[0:1], 64
s_mov_b32 s42, 256
s_mov_b32 s43, 0x20000
s_mov_b64 exec, 1
v_mov_b32 v9, 0
s_waitcnt lgkmcnt(0)""", unc=True)
    for k in range(nstamp[0]):
        I(f"s_sub_u32 s{sA}, s{sSTAMP+2*k}, s78\nv_mov_b32 v10, s{sA}\nbuffer_atomic_umax v10, v9, s[40:43], 0 offen offset:{4*k}\ns_nop 1", unc=True)
    I(f"""v_mov_b32 v10, s78
buffer_atomic_umax v10, v9, s[40:43], 0 offen offset:32
s_not_b32 s{sA}, s78
v_mov_b32 v11, s{sA}
buffer_atomic_umax v11, v9, s[40:43], 0 offen offset:36
v_mov_b32 v12, s{sSTAMP+2*(nstamp[0]-1)}
buffer_atomic_umax v12, v9, s[40:43], 0 offen offset:40
v_mov_b32 v13, s80
buffer_atomic_add v13, v9, s[40:43], 0 offen offset:44
s_branch L_end""", unc=True)
I("L_exit:")
if DIAG and not opt("dbg", 0):
    I(f"s_cmp_lg_u32 s{sW}, {opt('dw', 0)}\ns_cbranch_scc1 L_end\ns_lshl_b32 s{sA}, s2, 7\ns_add_u32 s{sA}, s{sA}, {WS_DIAG}\nv_mov_b32 v9, 0", unc=True)
    for k in range(nstamp[0]):
        I(f"s_waitcnt lgkmcnt(0)\nv_mov_b32 v10, s{sSTAMP+2*k}\nbuffer_store_dword v10, v9, {WS}, s{sA} offen offset:{4*k}", unc=True)
    if SEL == ["z"]: I(f"v_mov_b32 v10, s78\nbuffer_store_dword v10, v9, {WS}, s{sA} offen offset:120", unc=True)
    I(f"v_mov_b32 v10, s80\nbuffer_store_dword v10, v9, {WS}, s{sA} offen offset:124", unc=True)
I("L_end:\ns_endpgm")
I(f"""L_idle:
s_and_b32 s{sA}, s{sT2}, 1
s_lshl_b32 s{sA}, s{sA}, 1
s_add_u32 s{sA}, s{sA}, s{sRact}
s_sub_u32 s{sA}, s{sA}, 14
s_lshl_b32 s{sA}, s{sA}, 2
s_add_u32 s{sA}, s{sA}, s{sW}
s_lshl_b32 s{sA}, s{sA}, 13
v_lshlrev_b32 v9, 7, v1
s_lshr_b32 s{sD}, s{sT2}, 1
s_mul_i32 s{sD}, s{sD}, {8*56*2176}
s_add_u32 s{sD}, s{sD}, {WS_H1}
s_add_u32 s{sD}, s{sD}, s{sA}
s_mov_b32 s{sB}, {opt("idle2", 0)}
s_cmp_eq_u32 s{sB}, 0
s_cbranch_scc1 L_idle3
L_idle2:
buffer_load_dword v11, v9, {WS}, s{sD} offen {OPT.get("i2f", "")}
s_add_u32 s{sD}, s{sD}, {16*8192}
s_sub_u32 s{sB}, s{sB}, 1
s_cmp_lg_u32 s{sB}, 0
s_cbranch_scc1 L_idle2
L_idle3:
s_mov_b32 s{sB}, {opt("idle", 0)}
s_cmp_eq_u32 s{sB}, 0
s_cbranch_scc1 L_exit
L_idle1:
buffer_load_dword v11, v9, {W2}, s{sA} offen
s_add_u32 s{sA}, s{sA}, {16*8192}
s_sub_u32 s{sB}, s{sB}, 1
s_cmp_lg_u32 s{sB}, 0
s_cbranch_scc1 L_idle1
s_branch L_exit""", unc=True)
P.add(TAIL.items)

for it in P.items:
    if isinstance(it, Ins) and it.text.startswith('buffer_load_dword v142,'): it.defs = []
for it in P.items:
    if isinstance(it, Ins) and it.op == "buffer_load_dwordx4":
        for bit, srd in ((1, W1), (2, W2), (4, WO), (8, WQKV), (16, X)):
            if opt("wf", 0) & bit and srd in it.text:
                fl = OPT.get("wfl", "nt")
                it.text = it.text.replace(" lds", f" {fl} lds") if it.text.endswith(" lds") else it.text + " " + fl
PL = opt("plain", 0)
for it in P.items:
    if isinstance(it, Ins) and it.op.startswith("buffer_store") and "sc1" in it.text:
        ish1 = " s50 " in it.text or " s49 " in it.text
        ish = ("v[224:227]" in it.text or "v[228:231]" in it.text or "v112," in it.text or "v113," in it.text)
        if (ish and PL & 1) or (ish1 and PL & 2): it.text = it.text.replace(" sc1", OPT.get("pfl", ""))
if opt("pld", 0):
    c = 0
    for it in P.items:
        if isinstance(it, Ins) and it.op.startswith("buffer_load") and "sc1" in it.text and " s56 " in it.text and not it.uncounted:
            c += 1
            kind = 0 if c <= 48 else 1 if c <= 104 else 2
            if opt("pld", 0) & kind: it.text = it.text.replace(" sc1", OPT.get("lfl", ""))
if opt("nochk", 0):
    new = []; seen_end = False
    for it in P.items:
        if isinstance(it, Ins):
            if opt("nochk", 0) == 2 and not seen_end:
                if it.text.startswith("L_exit"): seen_end = True
                elif it.uncounted or it.op in ("s_cbranch_vccz", "s_branch"): continue
            if it.op == "s_cbranch_vccz" and not it.uncounted: it = Ins(it.text.replace("s_cbranch_vccz", "s_branch"))
            elif it.op == "s_cbranch_vccnz" and not it.uncounted: continue
            t = it.text
            if it.op.startswith("buffer_store") and "sc1" in t and not it.uncounted:
                kind = 8 if " s50 " in t else 4 if ("v[224" in t or "v[228" in t or "v112," in t or "v113," in t) else 2 if f" s{sOST} " in t else 1
                if opt("nost", 0) & kind: continue
            if it.op.startswith("buffer_load") and "sc1" in t and " s56 " in t and not it.uncounted:
                cnt_ld = globals().setdefault("_c", [0]); cnt_ld[0] += 1; c = cnt_ld[0]
                kind = 1 if c <= 32 else 2 if c <= 48 else 4 if c <= 104 else 8
                if opt("nold", 0) & kind: continue
        new.append(it)
    P.items = new
body, items = render(P.items)
if opt("align", 1):
    import subprocess, re as _re
    open("_al.s", "w").write('.amdgcn_target "amdgcn-amd-amdhsa--gfx950"\n.text\n' + body)
    subprocess.run(["clang", "-x", "assembler", "-target", "amdgcn-amd-amdhsa", "-mcpu=gfx950", "-c", "_al.s", "-o", "_al.o"], check=True)
    dis = subprocess.run(["llvm-objdump", "-d", "--mcpu=gfx950", "_al.o"], capture_output=True, text=True).stdout
    sizes = [4 * len(m.group(1).split()) for m in _re.finditer(r"// [0-9A-F]{12}: ((?:[0-9A-F]{8} ?)+)", dis)]
    real = [i for i in items if i.cls not in ('label', 'dir')]
    assert len(sizes) == len(real), (len(sizes), len(real))
    sz = {id(i): n for i, n in zip(real, sizes)}
    new = []; off = 0; nal = 0; MINRUN = opt("minrun", 6)
    for k, it in enumerate(items):
        if id(it) in sz and sz[id(it)] == 8 and off % 8 == 4 and not it.uncounted:
            run = 0
            for j in items[k:k + MINRUN + 4]:
                if id(j) not in sz: continue
                if sz[id(j)] != 8 or j.cls == 'mfma': break
                run += 1
            if run >= MINRUN:
                p = new[-1] if new else None
                if p is not None and p.cls == 'valu' and sz.get(id(p)) == 4 and not p.op.startswith(('v_permlane', 'v_dot2c', 'v_readfirst', 'v_accvgpr', 'v_cmp', 'v_cndmask')) and not p.op.endswith('_e64'):
                    p.text = p.text.replace(p.op, p.op + "_e64", 1)
                else: new.append(Ins("s_nop 0"))
                off += 4; nal += 1
        new.append(it); off += sz.get(id(it), 0)
    items = new
    body = '\n'.join(('' if i.cls == 'label' else '  ') + i.text for i in items) + '\n'
    print("alignment fixes:", nal, "code bytes", off)
hdr = open("cdna_kernels/" + NAME + ".s.ref").read().split("; Override launch")[0]
out = hdr + f"""; @launch grid=(256,1,1) block=(256,1,1) lds={LDS_SIZE}
.amdgcn_target "amdgcn-amd-amdhsa--gfx950"
.text
.globl {NAME}_kernel
.p2align 8
.type {NAME}_kernel,@function
{NAME}_kernel:
{body}.fill 2048, 4, 0xbf810000
.section .rodata,"a"
.p2align 6
.amdhsa_kernel {NAME}_kernel
  .amdhsa_next_free_vgpr 512
  .amdhsa_next_free_sgpr 102
  .amdhsa_accum_offset 256
  .amdhsa_group_segment_fixed_size 0
  .amdhsa_kernarg_size 80
  .amdhsa_user_sgpr_count 2
  .amdhsa_user_sgpr_kernarg_segment_ptr 1
  .amdhsa_system_sgpr_workgroup_id_x 1
.end_amdhsa_kernel
"""
open(sys.argv[1], "w").write(out)
n = sum(1 for i in items if i.cls not in ('label', 'dir'))
nu_ = sum(1 for i in items if i.cls not in ('label', 'dir') and i.uncounted)
print("instructions:", n, "(slow path", nu_, ") nops:", sum(1 for i in items if i.op == 's_nop'), "waits:", sum(1 for i in items if i.op == 's_waitcnt'), "stamps", nstamp[0])
```

```python
import sys, struct
from asmlib import *

NAME = "sequential_preLN__linear_kernel_hedgehog__dense_activation_silu__prompt"
DIAG = int(sys.argv[2]) if len(sys.argv) > 2 else 0
OPT = dict(a.split('=') for a in sys.argv[3:])
def opt(k, d): return int(OPT[k], 0) if k in OPT else d

WS_PART = 0x40000
WS_O    = 0x240000
WS_H    = 0x440000
WS_H1   = 0x680000
WS_DIAG = 0xE80000
WS_FLG  = 0xF00000
WS_SIZE = 0xF80000
XW = 28672
L_WV, L_WQ, L_WK, L_WO = 0, 28672, 57344, 86016
L_IMG = L_WK
L_KVX = 143360
L_XCH = 147456
L_SCR = 114688
L_AUG = 161792
LDS_SIZE = 163840
sW, sT, sH, sT2, sR = 3, 4, 5, 6, 7
X, WQKV, WPHI, WO, W1, W2, OUT, WS = [f"s[{i}:{i+3}]" for i in range(8, 40, 4)]
sKX, sKW = 40, 47
sHQ, sHIM = 54, 55
sRET = "s[56:57]"
sSPIN, sP, sU, sC, sMASK, sQ = 58, 59, 60, 61, 62, 63
sHI = "s[64:65]"
sLOG = "s[66:67]"
sONES, sTILE = 68, 69
sA, sB, sCt, sD = 70, 71, 72, 73
sRact, sXO = 74, 75
sWB, sWQ = 76, 77
sLAST, sFLAG, sWM, sPST, sPCK, sOST, sXRB, sOUT = 80, 81, 82, 83, 84, 85, 86, 87
sSTAMP = 88

def v(a, n=1): return f"v{a}" if n == 1 else f"v[{a}:{a+n-1}]"
def a_(a, n=1): return f"a{a}" if n == 1 else f"a[{a}:{a+n-1}]"
def fhex(x): return hex(struct.unpack('<I', struct.pack('<f', x))[0])
def flat(l): return sum(l, [])
P = Prog(); I = P.I
TAIL = Prog()
nstamp = [0]
SEL = OPT.get("st", "m").split(",")
PICK = [int(x) for x in OPT["pick"].split(",")] if "pick" in OPT else None
allst = [0]
def stampi(name, grp="m"):
    idx = allst[0]; allst[0] += 1
    if opt("jit", 0) and idx in (3, 7, 9, 11, 13, 17, 19, 21, 25, 26, 27, 28, 29):
        return mk(f"""s_memtime s[88:89]
s_waitcnt lgkmcnt(0)
s_mul_i32 s88, s88, 0x9E3779B1
s_lshr_b32 s88, s88, {opt("jit", 0)}
L_jit{idx}:
s_sleep 8
s_sub_u32 s88, s88, 1
s_cmp_gt_i32 s88, 0
s_cbranch_scc1 L_jit{idx}""")
    if not DIAG: return []
    if PICK is not None:
        if name != "start" and idx not in PICK:
            print(f"   - {idx}: {name}"); return []
    elif name != "start" and not (set(grp) & set(SEL)): return []
    k = nstamp[0]; nstamp[0] += 1
    assert k < 7
    print(f"stamp {k}: [{idx}] {name}")
    op = "s_memtime" if DIAG == 2 else "s_memrealtime"
    return mk(f"{op} s[{sSTAMP+2*k}:{sSTAMP+2*k+1}]")
def stamp(name, grp="m"): P.add(stampi(name, grp))
X3 = "bitop3:0x96"

def chk_code(regs, masked):
    r = list(regs)
    if masked: return f"v_bitop3_b32 v10, v{r[0]}, v{r[1]}, s{sMASK} bitop3:0x28\nv_cmp_ne_u32 vcc, v10, v6"
    if len(r) == 1: return f"v_cmp_ne_u32 vcc, v{r[0]}, v5"
    if len(r) == 2: t = f"v_xor_b32 v10, v{r[0]}, v{r[1]}"
    else:
        t = f"v_bitop3_b32 v10, v{r[0]}, v{r[1]}, v{r[2]} {X3}"
        if len(r) == 4: t += f"\nv_xor_b32 v10, v10, v{r[3]}"
    return t + "\nv_cmp_ne_u16 vcc, v10, v5"

sFL, sDM = 56, 57
GUARD = f"s_add_u32 s{sSPIN}, s{sSPIN}, 1\ns_cmp_gt_u32 s{sSPIN}, 0x40000\ns_cbranch_scc1 L_end\ns_waitcnt vmcnt(0)"
class Fetch:
    def __init__(self, name, pieces, masked=False, nre=1):
        self.name, self.pieces, self.masked, self.nre = name, pieces, masked, nre
    def loadc(self, i):
        it = flat([mk(c.replace(f"s{sCt}", f"s{sFL}")) for c in self.pieces[i][0]])
        out = []; cur = []
        for x in it:
            cur.append(x)
            if x.cls == 'vmem': out.append(cur); cur = []
        return out
    def load(self, i): return flat(self.loadc(i))
    def stub(self, i, last):
        n = self.name
        wgt = {"fo": 0x100, "fh": 0x10000, "f4": 0x1000000}.get(n, 1)
        rel = (f"s_add_u32 s80, s80, {wgt}\n" if DIAG else "") + "\n".join(c for j in range(i, min(last, i + self.nre - 1) + 1) for c in self.pieces[j][0])
        if opt("ool", 15) & {"fo": 2, "fh": 4, "f4": 8}[n]:
            TAIL.I(f"L_{n}_r{i}:\n" + rel + "\n" + GUARD + "\n" + chk_code(self.pieces[i][1], self.masked) + f"\ns_cbranch_vccnz L_{n}_r{i}\ns_branch L_{n}_ok{i}", unc=True)
            return mk(f"s_cbranch_vccnz L_{n}_r{i}\nL_{n}_ok{i}:")
        return mk(f"s_cbranch_vccz L_{n}_ok{i}\nL_{n}_r{i}:") + \
               mk(rel + "\n" + GUARD + "\n" + chk_code(self.pieces[i][1], self.masked) + f"\ns_cbranch_vccnz L_{n}_r{i}", unc=True) + mk(f"L_{n}_ok{i}:")
    def checkc(self, i, last):
        return [[x] for x in mk(chk_code(self.pieces[i][1], self.masked))] + [self.stub(i, last)]
    def check(self, i, last): return flat(self.checkc(i, last))

sFS, sFP = 80, 81
vL512, vPO, vPF = 0, 142, 143
def flag_store(nl): return mk(f"s_mov_b64 exec, {(1 << nl) - 1}\nbuffer_store_dword v5, v{vL512}, {WS}, s{sFS} offen sc1\ns_mov_b64 exec, -1")
def gate(name, vo, vf): return Fetch(name, [([f"buffer_load_dword v{vf}, v{vo}, {WS}, s{sFP} offen sc1"], [vf])])
GATE = opt("gate", 0)

def cost(it):
    if isinstance(it, WaitTag): return 4
    if it.cls in ('label', 'dir') or it.uncounted: return 0
    if it.op.startswith(TRANS) or 'permlane' in it.op: return 8
    if it.op.startswith('ds_write_b128'): return 28
    if it.cls == 'mfma': return 8
    return 4.5
class Sched:
    def __init__(self, groups):
        self.groups = groups; self.gap = [[] for _ in groups]; self.seq = 0
    def at(self, g, items, frac=0.5):
        self.seq += 1; self.gap[g].append((frac, self.seq, list(items)))
    def spread(self, chunks, a, b):
        chunks = [c if isinstance(c, list) else [c] for c in chunks]
        tot = sum(cost(i) for c in chunks for i in c) or 1; acc = 0
        for c in chunks:
            pos = a + (b - a) * acc / tot
            self.at(int(pos), c, pos - int(pos))
            acc += sum(cost(i) for i in c)
    def emit(self):
        out = []
        for g, gp in zip(self.groups, self.gap):
            out += g
            for _, _, c in sorted(gp, key=lambda x: (x[0], x[1])): out += c
        return out
def sprinkle(items, groups, start, step):
    out = []; groups = list(groups); nxt = start
    for i, it in enumerate(items):
        if groups and i == nxt: out += groups.pop(0); nxt += step
        out.append(it)
    for g in groups: out += g
    return out

def softmax(p, t, o, pk):
    q = Prog(); J = q.I
    m, n = t + 14, t + 15; r0, r1 = t + 16, t + 17
    J(f"v_max3_f32 v{m}, v{p}, v{p+1}, v{p+2}\nv_max3_f32 v{n}, -v{p}, -v{p+1}, -v{p+2}")
    for k in range(3, 13, 2):
        J(f"v_max3_f32 v{m}, v{m}, v{p+k}, v{p+k+1}\nv_max3_f32 v{n}, v{n}, -v{p+k}, -v{p+k+1}")
    J(f"""v_max_f32 v{m}, v{m}, v{p+13}
v_max_f32 v{n}, v{n}, -v{p+13}
v_permlane32_swap_b32 v{m}, v{n}
v_max_f32 v{m}, v{m}, v{n}
v_mul_f32 v{m}, v253, v{m}
v_mov_b32 v{n}, v{m}
v_permlane32_swap_b32 v{m}, v{n}""")
    if pk:
        for k in range(0, 14, 2):
            J(f"v_pk_fma_f32 {v(t+k,2)}, {v(p+k,2)}, v[252:253], {v(m,2)} op_sel_hi:[1,0,0]")
            J(f"v_pk_fma_f32 {v(p+k,2)}, {v(p+k,2)}, v[252:253], {v(m,2)} op_sel:[0,1,1] op_sel_hi:[1,1,1]")
    if pk == 2:
        for k in range(14):
            J(f"v_exp_f32 v{t+k}, v{t+k}\nv_exp_f32 v{p+k}, v{p+k}")
            if k >= 2:
                a0 = f"v{t}" if k == 2 else f"v{r0}"; a1 = f"v{p}" if k == 2 else f"v{r1}"
                J(f"v_add_f32 v{r0}, {a0}, v{t+k-1}\nv_add_f32 v{r1}, {a1}, v{p+k-1}")
        J(f"v_add_f32 v{m}, v{r0}, v{t+13}\nv_add_f32 v{n}, v{r1}, v{p+13}")
    elif pk:
        for k in range(14): J(f"v_exp_f32 v{t+k}, v{t+k}")
        for k in range(14): J(f"v_exp_f32 v{p+k}, v{p+k}")
        J(f"v_pk_add_f32 {v(m,2)}, {v(t,2)}, {v(t+2,2)}\nv_pk_add_f32 {v(r0,2)}, {v(p,2)}, {v(p+2,2)}")
        for k in range(4, 14, 2):
            J(f"v_pk_add_f32 {v(m,2)}, {v(m,2)}, {v(t+k,2)}\nv_pk_add_f32 {v(r0,2)}, {v(r0,2)}, {v(p+k,2)}")
        J(f"v_add_f32 v{m}, v{m}, v{n}\nv_add_f32 v{n}, v{r0}, v{r1}")
    else:
        for k in range(14):
            J(f"v_fma_f32 v{t+k}, v{p+k}, v252, v{m}\nv_fma_f32 v{p+k}, v{p+k}, v253, v{n}\nv_exp_f32 v{t+k}, v{t+k}\nv_exp_f32 v{p+k}, v{p+k}")
            if k >= 2:
                a0 = f"v{t}" if k == 2 else f"v{r0}"; a1 = f"v{p}" if k == 2 else f"v{r1}"
                J(f"v_add_f32 v{r0}, {a0}, v{t+k-1}\nv_add_f32 v{r1}, {a1}, v{p+k-1}")
        J(f"v_add_f32 v{m}, v{r0}, v{t+13}\nv_add_f32 v{n}, v{r1}, v{p+13}")
    J(f"""v_permlane32_swap_b32 v{m}, v{n}
v_add_f32 v{m}, v{m}, v{n}
v_rcp_f32 v{m}, v{m}
v_mov_b32 v{n}, v{m}
v_permlane32_swap_b32 v{m}, v{n}""")
    if pk == 1:
        for k in range(0, 14, 2):
            J(f"v_pk_mul_f32 {v(t+k,2)}, {v(t+k,2)}, {v(m,2)} op_sel_hi:[1,0]")
            J(f"v_pk_mul_f32 {v(p+k,2)}, {v(p+k,2)}, {v(m,2)} op_sel:[0,1] op_sel_hi:[1,1]")
    else:
        for k in range(14): J(f"v_mul_f32 v{t+k}, v{t+k}, v{m}\nv_mul_f32 v{p+k}, v{p+k}, v{n}")
    for k in range(7): J(f"v_cvt_pk_bf16_f32 v{o+k}, v{t+2*k}, v{t+2*k+1}")
    for k in range(7): J(f"v_cvt_pk_bf16_f32 v{o+7+k}, v{p+2*k}, v{p+2*k+1}")
    return q.items

def dmag(vaddrs, srd, sbase, sadd, mbase, madd, tag, sreg=None):
    sr = sCt if sreg is None else sreg
    ch = [mk(f"buffer_load_dwordx4 v{a}, {srd}, s{sr} offen offset:{1024*i} lds", tag=tag) for i, a in enumerate(vaddrs)]
    ch[0] = mk(f"s_add_u32 m0, s{mbase}, {madd}\ns_add_u32 s{sr}, s{sbase}, {sadd}") + ch[0]
    return ch

MF = "v_mfma_f32_32x32x16_bf16"
RINGA, NRING = 224, 8
def gemm_lds(steps, ahead=6):
    def rd(i):
        av, o1, o2 = steps[i][:3]; r = RINGA + 4 * (i % NRING)
        return mk(f"ds_read_b64_tr_b16 {a_(r,2)}, v{av} offset:{o1}\nds_read_b64_tr_b16 {a_(r+2,2)}, v{av} offset:{o2}")
    rds = [rd(i) for i in range(len(steps))]
    groups = []
    for i, st in enumerate(steps):
        r = RINGA + 4 * (i % NRING); b, acc, first, swap = st[3]
        A, B = a_(r, 4), v(b, 4)
        if swap: A, B = B, A
        g = mk(f"{MF} {v(acc,16)}, {A}, {B}, {'0' if first else v(acc,16)}")
        if i % 2 == 0 and i + 1 < len(steps):
            r2 = RINGA + 4 * ((i + 1) % NRING); g[0].extra = [('a', r2 + x) for x in range(4)]
        groups.append(g + (rds[i + ahead] if i + ahead < len(steps) else []))
    return flat(rds[:ahead]), groups

FAST = opt('fast', 1)
LO = """s_load_dwordx2 s[12:13], s[0:1], 8
s_load_dwordx2 s[16:17], s[0:1], 16
s_load_dwordx2 s[20:21], s[0:1], 24
s_load_dwordx2 s[24:25], s[0:1], 40
s_load_dwordx2 s[28:29], s[0:1], 48
s_load_dwordx2 s[32:33], s[0:1], 56
s_load_dwordx2 s[36:37], s[0:1], 72
"""
CP = f"""v_lshlrev_b32 v3, 4, v1
v_lshl_add_u32 v3, v2, 6, v3
v_lshl_add_u32 v3, v2, 4, v3
v_add_u32 v3, s{sCt}, v3
v_lshlrev_b32 v3, 7, v3
s_and_b32 s76, s76, 0xffffff00
s_mov_b64 exec, 31
global_load_dword v236, v3, s[76:77]
s_mov_b64 exec, -1
"""
MAP1 = [f"""{"s_lshr_b32 s4, s70, 1" if opt("pair", 1) else "s_and_b32 s4, s70, 3"}
s_lshl_b32 s{sT}, s{sT}, 2
s_and_b32 s{sD}, s{sB}, 3
s_add_u32 s{sT}, s{sT}, s{sD}
{"s_and_b32 s59, s70, 1" if opt("pair", 1) else "s_lshr_b32 s59, s70, 2"}
s_lshl_b32 s{sH}, s{sP}, 3
s_lshr_b32 s{sD}, s{sB}, 2
s_add_u32 s{sH}, s{sH}, s{sD}
s_mul_i32 s{sP}, s{sT}, {opt("rt", 2)}
s_add_u32 s{sD}, s{sD}, s{sP}
s_mul_i32 s{sP}, s{sD}, 37
s_lshr_b32 s{sP}, s{sP}, 8
s_mul_i32 s{sP}, s{sP}, 7
s_sub_u32 s{sD}, s{sD}, s{sP}
s_lshl_b32 s{sKX}, s{sD}, 7
""",
f"""s_lshl_b32 s{sT}, s{sA}, 1
s_lshr_b32 s{sD}, s{sB}, 4
s_add_u32 s{sT}, s{sT}, s{sD}
s_mov_b32 s{sH}, s{sCt}
s_and_b32 s{sD}, s{sH}, 7
s_cmp_eq_u32 s{sD}, 7
s_cselect_b32 s{sD}, 3, s{sD}
s_lshl_b32 s{sKX}, s{sD}, 7
""",
f"""s_mov_b32 s{sT}, s{sCt}
s_lshl_b32 s{sH}, s{sA}, 1
s_lshr_b32 s{sD}, s{sB}, 4
s_add_u32 s{sH}, s{sH}, s{sD}
s_and_b32 s{sD}, s{sH}, 7
s_mul_i32 s{sD}, s{sD}, 3
s_mul_i32 s{sP}, s{sD}, 37
s_lshr_b32 s{sP}, s{sP}, 8
s_mul_i32 s{sP}, s{sP}, 7
s_sub_u32 s{sD}, s{sD}, s{sP}
s_lshl_b32 s{sKX}, s{sD}, 7
"""][opt("map1", 0)]
if DIAG: I("s_memrealtime s[78:79]")
I(f"""s_cmp_ge_u32 s2, 256
s_cbranch_scc1 L_end
s_load_dwordx2 s[8:9], s[0:1], 0
{LO if not FAST else ''}{"s_waitcnt lgkmcnt(0)" + chr(10) + "s_memrealtime s[88:89]" if opt("bare", 0) else ""}
s_getpc_b64 s[76:77]
v_and_b32 v1, 63, v0
v_lshrrev_b32 v2, 6, v0
s_and_b32 s{sA}, s2, 7
v_readfirstlane_b32 s{sW}, v2
s_lshr_b32 s{sB}, s2, 3
s_and_b32 s{sCt}, s{sB}, 15
{CP if FAST < 2 else ''}{MAP1}
s_mov_b32 s10, 1835008
s_mov_b32 s11, 0x20000
v_lshrrev_b32 v2, 3, v1
v_mul_u32_u24 v244, 896, v2
v_lshrrev_b32 v2, 4, v1
v_and_b32 v8, 7, v1
v_xor_b32 v2, v2, v8
v_lshl_add_u32 v244, v2, 4, v244
v_xor_b32 v245, 64, v244
v_add_u32 v245, {7168-1024}, v245
v_add_u32 v246, {2*(7168-1024)}, v244
v_add_u32 v247, {2*(7168-1024)}, v245
s_lshl_b32 s{sQ}, s{sT}, 2
s_add_u32 s{sQ}, s{sQ}, s{sW}
s_mul_i32 s{sQ}, s{sQ}, {32*896}
s_lshr_b32 s{sXO}, s{sW}, 1
s_add_u32 s{sXO}, s{sXO}, s{sW}
s_mul_i32 s{sXO}, s{sXO}, {XW}
s_waitcnt lgkmcnt(0)""")
st0 = stampi("start")
if not opt("bare", 0): P.add(st0)
def xdma(g): return flat(dmag([244, 245, 246, 247], X, sQ, f"s{sKX+g}", sXO, 4096*g, f"x{g}"))
P.add(xdma(0))
if FAST: I(LO)
if FAST == 2: I(f"v_lshrrev_b32 v2, 6, v0\ns_and_b32 s{sCt}, s{sB}, 15\n" + CP)
I(f"""s_mov_b32 s14, {0 if opt('abl',0)&8 else 1204224}
s_mov_b32 s15, 0x20000
v_and_b32 v8, 3, v1""")
def wtouch(mask16, dst):
    m = mask16 | (mask16 << 16)
    return mk(f"s_mov_b32 exec_lo, {hex(m)}\ns_mov_b32 exec_hi, {hex(m)}\nbuffer_load_dword v{dst}, v255, {WQKV}, 0 offen\ns_mov_b64 exec, -1")
def kxs(g): return mk(f"s_add_u32 s{sKX+g}, s{sKX+g-1}, 128\ns_cmp_ge_u32 s{sKX+g}, 896\ns_cselect_b32 s{sD}, 896, 0\ns_sub_u32 s{sKX+g}, s{sKX+g}, s{sD}")
NXE = opt("nxe", 2)
if opt("wtfirst", 1) and opt("wt0", 0): P.add(wtouch(opt("wt0", 0), 237))
for g in range(1, NXE): P.add(kxs(g) + xdma(g))
if not opt("wtfirst", 1) and opt("wt0", 0): P.add(wtouch(opt("wt0", 0), 237))
if FAST: I("s_waitcnt lgkmcnt(0)")
if opt("wsoff", 0): I(f"s_add_u32 s36, s36, {opt('wsoff', 0)}\ns_addc_u32 s37, s37, 0")
I(f"""s_mov_b32 s38, {WS_SIZE}
s_mov_b32 s39, 0x20000
s_mov_b32 s18, 25088
s_mov_b32 s19, 0x20000
s_mov_b32 s22, {0 if opt('abl',0)&4 else 401408}
s_mov_b32 s23, 0x20000
s_xor_b32 s{sHQ}, s{sH}, 1
v_mov_b32 v11, 0
v_lshlrev_b32 v6, 7, v1""")
TM = opt("tm", 0)
sm_ld = mk(f"""s_mov_b64 exec, 1
buffer_load_dword v5, v6, {WS}, 0 offen sc1""")
if opt("two_", 1): sm_ld += mk(f"""s_lshl_b32 s56, s2, 2
s_add_u32 s56, s56, s{sW}
s_lshl_b32 s56, s56, 9
s_mov_b64 exec, 15
buffer_load_dword v238, v6, {WO}, s56 offen""")
if opt("twp", 0): sm_ld += mk(f"""s_and_b32 s{sCt}, s{sH}, 14
s_mul_i32 s{sCt}, s{sCt}, 1568
s_mul_i32 s56, s{sW}, 896
s_add_u32 s{sCt}, s{sCt}, s56
s_mov_b64 exec, 127
buffer_load_dword v239, v6, {WPHI}, s{sCt} offen""")
sm_ld += mk("s_mov_b64 exec, -1")
if TM == 0: P.add(sm_ld)
for g in range(NXE, 7): P.add(kxs(g))
MORE = opt("more", 0)
I(f"s_mov_b32 s{sONES}, 0x3f803f80\ns_mul_i32 s66, s{sH}, 1568\ns_mul_i32 s81, s{sHQ}, 1568")
_m1 = len(P.items)
I(f"""s_lshl_b32 s{sT2}, s{sA}, 1
s_lshr_b32 s{sD}, s{sB}, 4
s_add_u32 s{sT2}, s{sT2}, s{sD}
s_and_b32 s{sRact}, s{sB}, 15
s_min_u32 s{sR}, s{sRact}, 13
s_mov_b32 s26, {0 if opt('abl',0)&1 else 1605632}
s_mov_b32 s27, 0x20000
s_mov_b32 s30, {0 if opt('abl',0)&2 else 1605632}
s_mov_b32 s31, 0x20000
s_mov_b32 s34, 1835008
s_mov_b32 s35, 0x20000
s_mov_b32 s64, 0
s_mov_b32 s65, -1
s_mov_b32 s{sMASK}, 0xbfffbfff
s_mov_b32 s{sHIM}, 0xffff0000
s_mov_b32 s{sSPIN}, 0
s_mov_b32 s80, 0
s_cmp_ge_u32 s{sR}, 7
s_cselect_b32 s{sU}, 1, 0
s_mul_i32 s{sA}, s{sU}, 7
s_sub_u32 s{sC}, s{sR}, s{sA}""")
sT3 = 67
if opt("map3", 1):
    I(f"""s_and_b32 s{sA}, s{sT2}, 12
s_and_b32 s{sD}, s{sT2}, 1
s_lshl_b32 s{sD}, s{sD}, 1
s_add_u32 s{sA}, s{sA}, s{sD}
s_add_u32 s{sT3}, s{sA}, s{sU}
s_bfe_u32 s{sA}, s{sT2}, 0x10001
s_mul_i32 s{sA}, s{sA}, 7
s_add_u32 s{sR}, s{sA}, s{sC}""")
else: I(f"s_mov_b32 s{sT3}, s{sT2}")
for g in range(7): I(f"s_mul_i32 s{sKW+g}, s{sKX+g}, {172032//128}")
I(f"""s_mul_i32 s{sWB}, s{sH}, 56
s_mul_i32 s{sD}, s{sW}, 43008
s_add_u32 s{sWB}, s{sWB}, s{sD}
s_mul_i32 s{sWQ}, s{sHQ}, 56
s_add_u32 s{sWQ}, s{sWQ}, s{sD}
s_add_u32 s{sWB}, s{sWB}, 896
s_lshl_b32 s{sWM}, s{sW}, 10""")
_m0 = _m1 if MORE else len(P.items)
I(f"""s_lshl_b32 s{sA}, s{sH}, 4
s_add_u32 s{sA}, s{sA}, s{sT}
s_mul_i32 s{sA}, s{sA}, 4608
s_add_u32 s{sA}, s{sA}, {WS_PART}
s_add_u32 s{sPST}, s{sA}, s{sWM}
s_lshl_b32 s{sD}, s{sW}, 7
s_add_u32 s{sA}, s{sA}, s{sD}
s_add_u32 s{sPCK}, s{sA}, 4096
s_lshl_b32 s{sA}, s{sT}, 2
s_add_u32 s{sA}, s{sA}, s{sW}
s_lshl_b32 s{sA}, s{sA}, 15
s_lshl_b32 s{sB}, s{sHQ}, 11
s_add_u32 s{sA}, s{sA}, s{sB}
s_add_u32 s{sOST}, s{sA}, {WS_O}
s_lshl_b32 s{sA}, s{sT2}, 2
s_lshl_b32 s{sB}, s{sU}, 1
s_add_u32 s{sA}, s{sA}, s{sB}
s_and_b32 s{sB}, s{sW}, 1
s_add_u32 s{sTILE}, s{sA}, s{sB}
s_mul_i32 s{sA}, s{sA}, {32*896}
s_lshl_b32 s{sB}, s{sC}, 7
s_add_u32 s{sA}, s{sA}, s{sB}
s_mul_i32 s{sD}, s{sW}, {16*896}
s_add_u32 s{sXRB}, s{sA}, s{sD}
s_mul_i32 s{sA}, s{sTILE}, {32*896}
s_add_u32 s{sA}, s{sA}, s{sB}
s_lshr_b32 s{sB}, s{sW}, 1
s_lshl_b32 s{sB}, s{sB}, 6
s_add_u32 s{sOUT}, s{sA}, s{sB}
s_mul_i32 s{sP}, s{sHQ}, {16*4608}
s_add_u32 s{sP}, s{sP}, {WS_PART}""")
deferred = P.items[_m0:]; del P.items[_m0:]
WPK, WPQ, WPT = 192, 200, 208
vWPA, vWPB, vKVX, vIMW, vKA, vKB, vFPD, vFPC, vWO0, vWO1, vXRD0, vXRD1, vXRR, vWOR = range(128, 142)
I(f"""v_lshrrev_b32 v3, 5, v1
v_bfe_u32 v11, v1, 3, 2
v_lshl_add_u32 v11, v11, 2, v8
v_bfe_u32 v12, v1, 2, 1
v_mul_u32_u24 v12, 14, v12
v_min_u32 v13, 13, v11
v_add_u32 v13, v13, v12
v_lshlrev_b32 v13, 1, v13
v_mul_u32_u24 v14, 224, v3
v_add_u32 v{vWPA}, v13, v14
v_lshl_add_u32 v{vWPB}, v3, 20, v{vWPA}
v_and_b32 v9, 31, v1
v_lshlrev_b32 v240, 7, v9
v_bfe_u32 v10, v1, 1, 3
v_xor_b32 v10, v10, v3
v_lshl_add_u32 v240, v10, 4, v240
v_add_u32 v240, s{sXO}, v240
v_xor_b32 v241, 32, v240
v_xor_b32 v242, 64, v240
v_xor_b32 v243, 96, v240
v_mov_b32 v250, 0
v_mov_b32 v251, 0""")
_m2 = len(P.items)
I(f"""v_lshlrev_b32 v2, 4, v1
v_lshlrev_b32 v4, 2, v1
v_add_u32 v12, v12, v11
v_cmp_gt_u32 vcc, 14, v11
v_lshrrev_b32 v7, 2, v1
v_mul_u32_u24 v7, 2688, v7
v_cndmask_b32 v12, 28, v12, vcc
v_and_b32 v13, 15, v12
v_lshlrev_b32 v13, 4, v13
v_lshrrev_b32 v12, 4, v12
v_lshl_add_u32 v13, v12, 3, v13
v_lshl_add_u32 v13, v3, 8, v13
v_add_u32 v{vKVX}, {L_KVX}, v13
v_lshlrev_b32 v11, 4, v8
v_min_u32 v11, 40, v11
v_add_u32 v7, v7, v11""")
_m0 = _m2 if MORE else len(P.items)
I(f"""s_lshl_b32 s{sA}, s{sW}, 5
v_add_u32 v10, s{sA}, v9
v_mul_u32_u24 v10, 208, v10
v_mul_u32_u24 v11, 96, v3
v_add_u32 v{vIMW}, v10, v11
v_lshrrev_b32 v10, 4, v1
v_bfe_u32 v15, v1, 2, 2
v_lshl_add_u32 v10, v10, 3, v15
v_mul_u32_u24 v10, 208, v10
v_and_b32 v11, 1, v1
v_mul_u32_u24 v11, 96, v11
v_add_u32 v10, v10, v11
v_bfe_u32 v11, v1, 1, 1
v_lshl_add_u32 v10, v11, 3, v10
v_add_u32 v{vKB}, {L_IMG}, v10
s_lshl_b32 s{sA}, s{sW}, 4
v_add_u32 v{vKA}, s{sA}, v{vKB}
v_add_u32 v{vFPD}, s{sWM}, v2
s_lshl_b32 s{sD}, s{sW}, 7
s_add_u32 s{sD}, s{sD}, 4096
v_lshlrev_b32 v0, 1, v1
v_add_u32 v{vFPC}, s{sD}, v0
v_lshrrev_b32 v12, 3, v1
v_mul_u32_u24 v14, 896, v12
v_and_b32 v13, 7, v1
v_xor_b32 v12, v12, v13
v_lshl_add_u32 v{vXRD0}, v12, 4, v14
v_add_u32 v{vXRD1}, {7168-1024}, v{vXRD0}
v_bfe_u32 v12, v1, 4, 1
v_lshlrev_b32 v11, 2, v12
v_xor_b32 v11, v11, v13
v_lshl_add_u32 v{vWO0}, v11, 4, v14
v_add_u32 v{vWO1}, {7168-1024}, v{vWO0}
s_and_b32 s{sA}, s{sW}, 1
s_lshl_b32 s{sA}, s{sA}, 12
s_add_u32 s{sA}, s{sA}, {L_XCH}
v_lshlrev_b32 v10, 7, v9
v_lshl_add_u32 v10, v3, 3, v10
v_add_u32 v10, s{sA}, v10
s_lshr_b32 s{sA}, s{sW}, 1
s_lshl_b32 s{sB}, s{sA}, 2
v_xor_b32 v13, s{sB}, v13
v_lshl_add_u32 v{vXRR}, v13, 4, v10
v_mad_u32_u24 v10, v3, 14, v15
v_lshlrev_b32 v10, 7, v10
v_bfe_u32 v13, v1, 3, 1
v_xor_b32 v13, v13, v3
v_xor_b32 v13, s{sA}, v13
v_lshl_add_u32 v10, v13, 6, v10
v_lshl_add_u32 v10, v12, 5, v10
v_lshl_add_u32 v10, v8, 3, v10
s_mul_i32 s{sA}, s{sA}, {8*28*128}
s_add_u32 s{sA}, s{sA}, {L_WO}
v_add_u32 v{vWOR}, s{sA}, v10
v_lshl_add_u32 v11, v3, 3, v15
v_lshlrev_b32 v11, 6, v11
v_lshl_add_u32 v12, v12, 2, v8
v_cmp_lt_u32 vcc, 5, v12
v_xor_b32 v13, 1, v12
v_cndmask_b32 v12, v12, v13, vcc
v_lshl_add_u32 v11, v12, 3, v11
v_add_u32 v13, {L_WK}, v11""")
I(f"""v_bfe_u32 v10, v1, 2, 1
v_bfe_u32 v14, v1, 4, 1
v_lshl_add_u32 v10, v14, 1, v10
v_cmp_eq_u32 vcc, v10, v3
v_and_b32 v10, 1, v1
v_lshlrev_b32 v10, 4, v10
v_mov_b32 v14, 0x3f80
v_lshlrev_b32 v10, v10, v14
v_cndmask_b32 v10, 0, v10, vcc
v_bfe_u32 v14, v1, 3, 1
v_bfe_u32 v15, v1, 1, 1
v_lshl_add_u32 v14, v14, 1, v15""")
for q in range(4): I(f"v_cmp_eq_u32 vcc, {q}, v14\nv_cndmask_b32 v15, 0, v10, vcc\nv_accvgpr_write_b32 a{220+q}, v15")
I("v_add_u32 v9, 896, v7")
deferred += P.items[_m0:]; del P.items[_m0:]
NDEF0 = opt("ndef0", 0)
P.add(deferred[:NDEF0]); deferred = deferred[NDEF0:]
L2N = 0
if L2N:
    I(f"""s_mov_b32 s{sCt}, 0x60504020
s_cmp_ge_u32 s{sH}, 8
s_cselect_b32 s{sCt}, 0x53020100, s{sCt}
s_and_b32 s{sD}, s{sH}, 7
s_lshl_b32 s{sD}, s{sD}, 2
s_lshr_b32 s{sCt}, s{sCt}, s{sD}
s_and_b32 s{sCt}, s{sCt}, 15
s_and_b32 s{sD}, s{sT}, 3
s_mul_i32 s{sD}, s{sD}, 7
s_add_u32 s{sCt}, s{sCt}, s{sD}
s_lshl_b32 s{sCt}, s{sCt}, 2
s_add_u32 s{sCt}, s{sCt}, s{sW}
s_mul_i32 s66, s{sCt}, 14336
s_add_u32 s81, s66, 57344
s_lshl_b32 s{sD}, s{sH}, 1
s_lshr_b32 s{sD}, 0xa111444a, s{sD}
s_and_b32 s{sD}, s{sD}, 3
s_cmp_ge_u32 s{sD}, 1
s_cselect_b32 s66, s66, 0x10000000
s_cmp_ge_u32 s{sD}, 2
s_cselect_b32 s81, s81, 0x10000000
v_add_u32 v143, 7168, v6""")
def l2n(k): return mk(f"s_mov_b32 exec_hi, 0xffffff\nbuffer_load_dword v{142}, v{6 if k % 2 == 0 else 143}, {W1}, s{66 if k < 2 else 81} offen\ns_mov_b32 exec_hi, -1")
stamp("setup done", "p")
def wphi(dst, tmp, so):
    q = []
    for t in range(2):
        for j in range(8):
            d = 16 * t + 8 * (j >> 2) + (j & 3)
            av = vWPB if (t == 1 and j >= 4) else vWPA
            r = (dst if j % 2 == 0 else tmp) + 4 * t + j // 2
            op = "buffer_load_short_d16" if j % 2 == 0 else "buffer_load_short_d16_hi"
            q += mk(f"{op} v{r}, v{av}, {WPHI}, s{so} offen offset:{d*56}")
    return q
def wkdma(g): return flat(dmag([7], WQKV, sWB, f"s{sKW+g}", sWM, L_WK + 4096*g, f"wk{g}"))
def wvdma(g): return flat(dmag([9], WQKV, sWB, f"s{sKW+g}", sWM, L_WV + 4096*g, f"wv{g}"))
def wqdma(g): return flat(dmag([7], WQKV, sWQ, f"s{sKW+g}", sWM, L_WQ + 4096*g, f"wq{g}"))
if opt("fake", 0):
    I(f"""v_mov_b32 v7, v2
v_add_u32 v9, 24576, v2
s_mul_i32 s{sWB}, s{sH}, 73728
s_add_u32 s{sWB}, s{sWB}, s{sWM}
s_mul_i32 s{sWQ}, s{sHQ}, 73728
s_add_u32 s{sWQ}, s{sWQ}, s{sWM}
s_add_u32 s{sWQ}, s{sWQ}, 45056""")
    for g in range(7): I(f"s_lshl_b32 s{sKW+g}, s{sKX+g}, 5")
XF = 16
NX0 = opt("nx0", 3)
if opt("wt1", 0): P.add(wtouch(opt("wt1", 0), 249))
WPP = opt("wpp", 1)
if WPP == 1: P.add(wphi(WPK, WPT, 66) + wphi(WPQ, WPT+8, 81))
for g in range(NXE, NX0): P.add(xdma(g))
if WPP == 2: P.add(wphi(WPK, WPT, 66) + wphi(WPQ, WPT+8, 81))
pend = [xdma(g) for g in range(NX0, 7)]
wkl = [wkdma(g) for g in range(7)]
if TM and TM < NX0: P.add(sm_ld)
elif TM: pend[TM - NX0] = pend[TM - NX0] + sm_ld
if opt("wt2", 0): pend[-1] = pend[-1] + wtouch(opt("wt2", 0), 248)
pend.append(wkl.pop(0) + (wphi(WPK, WPT, 66) if not WPP else []))
pend.append(wkl.pop(0) + (wphi(WPQ, WPT+8, 81) if not WPP else []))
while len(pend) < 7: pend.append(wkl.pop(0))
def xrd(g): return flat([mk(f"ds_read_b128 {v(XF+16*g+4*e,4)}, v{240+e} offset:{4096*g}") for e in range(4)])
_n = opt("ndefx", 0)
while 0 < _n < len(deferred) and deferred[_n-1].op.startswith("s_cmp"): _n += 1
P.add(deferred[:_n]); deferred = deferred[_n:]
P.wait("x0"); P.add(xrd(0))
for g in range(7):
    if pend: P.add(pend.pop(0))
    if g + 1 < 7: P.wait(f"x{g+1}"); P.add(xrd(g + 1))
    for i in range(16):
        r = XF + 16*g + i
        I(f"v_dot2c_f32_bf16 v250, s{sONES}, v{r}\nv_dot2c_f32_bf16 v251, v{r}, v{r}")
    nd_ = -(-len(deferred) // max(1, opt("ndi", 4) - g)) if g < opt("ndi", 4) else len(deferred)
    while 0 < nd_ < len(deferred) and deferred[nd_-1].op.startswith("s_cmp"): nd_ += 1
    P.add(deferred[:nd_]); deferred = deferred[nd_:]
    if g == 0: stamp("x0 done", "p")
for x_ in pend: P.add(x_)
if opt("tp", 0) == 2:
    I(f"""s_mul_i32 s{sCt}, s2, {52*128}
s_mul_i32 s{sD}, s{sW}, {13*128}
s_add_u32 s{sCt}, s{sCt}, s{sD}
s_mov_b64 exec, 0x1fff
buffer_load_dword v254, v6, {W2}, s{sCt} offen
buffer_load_dword v255, v6, {W1}, s{sCt} offen
s_mov_b64 exec, -1""")
stamp("x stats done", "mp")
I(f"""v_permlane32_swap_b32 v250, v251
v_readfirstlane_b32 s{sA}, v5
s_nop 0
v_add_f32 v250, v250, v251
v_mul_f32 v250, {fhex(-1/448)}, v250
v_mov_b32 v251, v250
s_or_b32 s{sA}, s{sA}, 1
s_mul_i32 s{sA}, s{sA}, 0x9E3779B5
v_mov_b32 v5, s{sA}
s_mov_b32 s{sA}, 0x3f80
v_permlane32_swap_b32 v250, v251
s_mov_b32 s{sB}, 0x3f800000""")
fin = mk(f"""v_fma_f32 v251, -v250, v250, -v251
v_max_f32 v251, 0, v251
v_add_f32 v251, 0x3727c5ac, v251
v_rsq_f32 v251, v251
s_lshl_b32 s{sQ}, s{sC}, 7
s_mul_i32 s{sD}, s{sW}, {16*896}
v_mul_f32 v252, 0x3fb8aa3b, v251
v_mul_f32 v253, 0xbfb8aa3b, v251
s_add_u32 s{sQ}, s{sQ}, s{sD}
s_lshl_b32 s{sXO}, s{sW}, 11""")
if opt("noid", 1): fin = [mk(f"s_cmp_ge_u32 s{sRact}, 14\ns_cselect_b32 s22, 0, s22")] + fin
ACK = 144; ACV = 160; PK = 176; IMG = 208; TMP = 232
def norm(t):
    q = Prog(); tb = TMP + 8 * (t & 1)
    for i in range(4):
        r = XF + 4 * t + i
        q.I(f"v_dot2_f32_bf16 v{tb+2*i}, v{r}, s{sA}, v250\nv_dot2_f32_bf16 v{tb+2*i+1}, v{r}, s{sB}, v250")
    return q.items
def normc(t):
    tb = TMP + 8 * (t & 1)
    return flat([mk(f"v_cvt_pk_bf16_f32 v{XF+4*t+i}, v{tb+2*i}, v{tb+2*i+1}") for i in range(4)])
def l2t(srd, k, dst):
    return mk(f"""s_lshr_b32 s{sCt}, s2, 3
s_lshl_b32 s{sCt}, s{sCt}, 2
s_add_u32 s{sCt}, s{sCt}, s{sW}
s_mul_i32 s{sCt}, s{sCt}, {98*128}
s_mov_b32 exec_hi, 0x1ffff
s_add_u32 s{sCt}, s{sCt}, {k*49*128}
buffer_load_dword v{dst}, v6, {srd}, s{sCt} offen
s_mov_b32 exec_hi, -1""")
L2A, L2B = opt("l2a", -1), opt("l2b", -1)
touch = mk(f"""s_mul_i32 s{sCt}, s2, {52*128}
s_mul_i32 s56, s{sW}, {13*128}
s_add_u32 s{sCt}, s{sCt}, s56
s_mov_b64 exec, 0x1fff
buffer_load_dword v255, v6, {W1}, s{sCt} offen
buffer_load_dword v254, v6, {W2}, s{sCt} offen
s_mov_b64 exec, -1""")
TP = opt('tp', 0)
ns = norm(0)
for t in range(1, 28): ns += norm(t) + normc(t - 1)
ns += normc(27)
NBAR = opt("nbar", 100)
wvl = [wvdma(k) for k in range(7)]
if opt("loop2", 0):
    I("s_mov_b32 s80, 0\nL_lp2:\ns_mov_b32 s101, s100\ns_memtime s[78:79]\ns_waitcnt lgkmcnt(0)\ns_mov_b32 s99, s78")
    P.add([Ins(x.text) for x in ns])
    I("s_memtime s[78:79]\ns_waitcnt lgkmcnt(0)\ns_sub_u32 s100, s78, s99\ns_add_u32 s100, s100, s88\ns_add_u32 s80, s80, 1\ns_cmp_lt_u32 s80, 2\ns_cbranch_scc1 L_lp2")
    nstamp[0] = 14
P.add(sprinkle(ns[:NBAR], wkl, 0, opt("wkstep", 30)))
if opt("touch", 1) and TP == 1: P.add(touch)
I("s_barrier")
NWV0 = opt("nwv0", 4)
w0_ = [wvl.pop(0) for _ in range(NWV0)]
if L2N == 1: w0_[0] = l2n(0) + w0_[0]; w0_[-1] = w0_[-1] + l2n(2); wvl[-1] = wvl[-1] + l2n(1)
if L2N == 2: wvl[-1] = wvl[-1] + l2n(0) + l2n(2)
P.add(sprinkle(ns[NBAR:], w0_, opt("wv0", 30), opt("wvstep", 50)))
P.wait(*[f"wk{k}" for k in range(7)]); I("s_barrier")
stamp("wk landed", "p")
if opt("zy", 0): I(f"s_sleep {opt('zy', 0)}")
AH = 6
sW1B, sW1M, sW2E, sW2L = 40, 41, 42, 43
set2 = mk(f"""v_lshrrev_b32 v10, 4, v1
v_mul_u32_u24 v12, 3584, v10
v_lshlrev_b32 v10, 2, v10
v_and_b32 v13, 15, v1
v_xor_b32 v10, v10, v13
v_lshl_add_u32 v12, v10, 4, v12
v_add_u32 v13, {4*3584-1024}, v12
v_add_u32 v14, {2*(4*3584-1024)}, v12
v_add_u32 v15, {3*(4*3584-1024)}, v12
s_lshl_b32 s{sW1B}, s{sR}, 8
s_mul_i32 s{sD}, s{sW}, {16*3584}
s_add_u32 s{sW1B}, s{sW1B}, s{sD}
s_lshl_b32 s{sW1M}, s{sW}, 12
s_lshr_b32 s{sA}, s{sW}, 1
s_lshl_b32 s{sA}, s{sA}, 2
s_andn2_b32 s{sB}, 1, s{sW}
s_add_u32 s{sA}, s{sA}, s{sB}
s_lshl_b32 s{sB}, s{sU}, 1
s_add_u32 s44, s{sA}, s{sB}
s_xor_b32 s45, s44, 2
s_lshl_b32 s{sD}, s{sC}, 7
s_mul_i32 s{sW2E}, s44, {32*896}
s_add_u32 s{sW2E}, s{sW2E}, s{sD}
s_mul_i32 s{sW2L}, s45, {32*896}
s_add_u32 s{sW2L}, s{sW2L}, s{sD}
""")
vW2 = [vWO0, vWO1, 128, 129]
sSCR, sBIG = 46, 47
NA = opt("na", 0)
NUR = opt("nur", 2); NT1 = min(NA, opt("nt1", 99))
_u = list(range(14))
def take(n): return [_u.pop(0) for _ in range(min(n, len(_u)))]
UAW = take(NA); UR = take(NUR); UD = take(opt("nud", 2)); UE = take(3); UL = take(opt("nrl", 3)); UP = take(99)
assert all(j >= 7 for j in UL + UP) and all(j >= 4 for j in UE)
RAWS = UAW + UR + UL
def UA(j): return 16*j
def w2slot(j):
    if j in UE: return (sSCR, 4096*UE.index(j), 254)
    if j in UAW + UR + UD: return (sSCR, 4096*(j & 1), 254)
    return (sBIG, 4096*(UL + UP).index(j), 252)
def w2dma(j):
    mb, mo, _ = w2slot(j)
    return dmag(vW2, W2, sW2E if j < 7 else sW2L, (j%7)*256*896, mb, mo, f"w2_{j}", sDM)
def w2raw(j):
    ch = [mk(f"buffer_load_dwordx4 {a_(UA(j)+4*q,4)}, v{vW2[q]}, {W2}, s81 offen offset:{1024*q}") for q in range(4)]
    ch[0] = mk(f"s_add_u32 s81, s{sW2E if j < 7 else sW2L}, {(j%7)*256*896}") + ch[0]
    return ch
def w2rd(j):
    _, mo, av = w2slot(j)
    if j in RAWS: out = [mk(f"ds_write_b128 v{131 if j in UL else 134}, {a_(UA(j)+4*q,4)} offset:{mo+1024*q}") for q in range(4)]
    else: out = [[WaitTag([f"w2_{j}"])]]
    for e in range(2):
        for mu in range(2):
            for u in range(2): out.append(mk(f"ds_read_b64_tr_b16 {a_(UA(j)+8*e+4*mu+2*u,2)}, v{av+mu} offset:{mo+2048*e+1024*u}"))
    return out
raw = flat([w2raw(j) for j in UR])
rawA = flat([w2raw(j) for j in UAW])
if opt("noid", 1): set2 = [mk(f"s_cmp_ge_u32 s{sRact}, 14\ns_cselect_b32 s26, 0, s26")] + set2
set2 += mk(f"v_add_u32 v128, {2*(7168-1024)}, v{vWO0}\nv_add_u32 v129, {3*(7168-1024)}, v{vWO0}")
set2b = [x for x in set2 if isinstance(x, Ins) and x.cls == 'valu' and x.defs[0][1] < 128]
if opt("trim", 1):
    set2 = [mk(f"""s_cmp_eq_u32 s{sW}, 3
s_cselect_b64 vcc, {sHI}, 0
v_mov_b32 v143, 0x10000000
v_add_u32 v133, s{sWM}, v2
v_cndmask_b32 v142, v5, 0, vcc
v_cndmask_b32 v{vFPD}, v{vFPD}, v143, vcc
v_cndmask_b32 v{vFPC}, v{vFPC}, v143, vcc""")] + set2
set2b = [x for x in set2 if isinstance(x, list)] + set2b
set2a = [x for x in set2 if x not in set2b]
pro, gk = gemm_lds([(13, 1024*t, 1024*t + 256, (XF + 4*t, ACK, t == 0, False)) for t in range(28)], AH)
P.add(pro)
S = Sched(gk)
S.spread(wvl, 0, opt("wve", 16))
NQK = opt("nqk", 2)
S.spread([wqdma(k) for k in range(NQK)], opt("wve", 16), 28)
EARLY = opt("early", 0)
if EARLY:
    P.add(flat([x if isinstance(x, list) else [x] for x in fin + set2a])); fin = []
    wo_l = flat([dmag([vWO0, vWO1], WO, sQ, i*64*896, sXO, L_WO + 8192*i, "wo", sDM) for i in range(7)] + [dmag([vXRD0, vXRD1], X, sXRB, 0, sXO, L_XCH, "wo", sDM)])
    if EARLY == 2:
        S.spread([wo_l[2*i] + wo_l[2*i+1] for i in range(8)], 0, 28)
    else: S.spread([rawA.pop(0) for _ in range(min(len(rawA), opt("ne1", 8)))], 0, 28)
else: fin = fin + set2a
if TP == 3: S.at(opt("tpos", 22), touch)
for k, ps in enumerate((L2A, L2B)):
    if 0 <= ps < 28: S.at(ps, l2t(W1, k, 248 + k))
S.spread(fin + flat([mk(f"v_or_b32 v{WPK+q}, v{WPK+q}, v{WPT+q}\nv_or_b32 v{WPQ+q}, v{WPQ+q}, v{WPT+8+q}") for q in range(8)]), 2, 26)
P.add(S.emit())
def phi_pre(acc, wp):
    q = Prog()
    for i in range(8): q.I(f"v_cvt_pk_bf16_f32 v{acc+i}, v{acc+2*i}, v{acc+2*i+1}")
    q.I(f"{MF} {v(PK,16)}, {v(wp,4)}, {v(acc,4)}, 0\n{MF} {v(PK,16)}, {v(wp+4,4)}, {v(acc+4,4)}, {v(PK,16)}")
    return q.items
stamp("k gemm done", "mp")
wql = [wqdma(k) for k in range(NQK, 7)]
P.add(wql.pop(0))
P.add(phi_pre(ACK, WPK))
imw = flat([mk(f"ds_write_b128 v{vIMW}, {v(IMG+4*i,4)} offset:{L_IMG+16*i}") for i in range(3)]) + mk(f"ds_write_b64 v{vIMW}, {v(IMG+12,2)} offset:{L_IMG+48}")
smk = sprinkle(softmax(PK, TMP, IMG, True), [wql.pop(0) for _ in range(min(len(wql), opt("nwq0", 3)))], 10, opt("wqs", 40))
if EARLY: smk = sprinkle(smk, [rawA.pop(0) for _ in range(min(len(rawA), opt("ne2", 8)))], 5, 16)
WEAVE = opt("weave", 1)
pro, gv = gemm_lds([(11, L_WV + 1024*t, L_WV + 1024*t + 256, (XF + 4*t, ACV, t == 0, False)) for t in range(28)], AH)
S = Sched(gv)
if not WEAVE:
    P.add(smk)
    P.wait(*[f"wv{k}" for k in range(7)]); I("s_barrier")
    stamp("softmax k done", "p")
    P.add(pro)
    S.spread(imw, 2, 10)
else:
    smf = softmax(PK, TMP, IMG, 2)
    n0 = next(i for i, x in enumerate(smf) if x.op == "v_exp_f32")
    P.wait(*[f"wv{k}" for k in range(4)]); I("s_barrier")
    P.add(pro)
    P.add(smf[:n0])
    stamp("softmax k done", "p")
    S.spread(smf[n0:] + imw, 0, 28)
    S.at(15 - AH, [WaitTag(["wv4", "wv5", "wv6"])] + mk("s_barrier"), 1.0)
    wql = [wqdma(k) for k in range(NQK + 1, 7)]
wo_l = flat([dmag([vWO0, vWO1], WO, sQ, i*64*896, sXO, L_WO + 8192*i, "wo", sDM) for i in range(7)] + [dmag([vXRD0, vXRD1], X, sXRB, 0, sXO, L_XCH, "wo", sDM)])
if EARLY == 2: wo_l = []
S.spread(wql, 0, opt('wqe', 10))
if EARLY: S.spread([rawA.pop(0) for _ in range(min(len(rawA), opt("ne3", 8)))], 0, 22)
if L2A >= 0 or L2N: touch = [x for x in touch if W1 not in x.text]
if L2N == 1: S.at(opt("l2p", 14), l2n(3))
if L2N == 2: S.at(opt("l2p", 14), l2n(1) + l2n(3))
tlb = []
if opt("tlb", 0) & 1: tlb += mk(f"s_mov_b64 exec, 1\nbuffer_load_dword v248, v6, {OUT}, s{sOUT} offen\ns_mov_b64 exec, -1")
if opt("tlb", 0) & 2: tlb += mk(f"v_lshlrev_b32 v249, 20, v1\ns_mov_b64 exec, 0xffff\nbuffer_load_dword v249, v249, {WS}, 0 offen offset:4092\ns_mov_b64 exec, -1")
if tlb: S.at(opt("tlbp", 13), tlb)
if opt("touch", 1) and TP == 0: S.at(opt("tpos", 11), touch)
for k, ps in enumerate((L2A, L2B)):
    if 200 <= ps < 228: S.at(ps - 200, l2t(W1, k, 248 + k))
S.spread([wo_l.pop(0) for _ in range(2*opt("nwo0", 0))], opt("wos", 17), opt("woe2", 28))
P.add(S.emit())
for k in range(0, 16, 2): I(f"v_pk_mul_f32 {v(ACV+k,2)}, {v(ACV+k,2)}, v[250:251] op_sel:[0,1] op_sel_hi:[1,1]")
I(f"v_cndmask_b32 v{ACV+12}, v{ACV+12}, 1.0, {sHI}")
for i in range(8): I(f"v_cvt_pk_bf16_f32 v{IMG+16+i}, v{ACV+2*i}, v{ACV+2*i+1}")
for i in range(4, 6): I(f"ds_write_b128 v{vIMW}, {v(IMG+4*i,4)} offset:{L_IMG+16*i}")
P.wait("wq0", "wq1", "wq2", "wq3")
I("s_waitcnt lgkmcnt(0)\ns_barrier")
stamp("img written", "p")
KA = 144; KBv = 208; KD = 176
for k in range(4):
    for u in range(2):
        I(f"ds_read_b64_tr_b16 {v(KA+4*k+2*u,2)}, v{vKA} offset:{(32*k+4*u)*208}")
    for nu in range(2):
        for u in range(2):
            I(f"ds_read_b64_tr_b16 {v(KBv+8*k+4*nu+2*u,2)}, v{vKB} offset:{(32*k+4*u)*208+64+16*nu}")
proq, gq = gemm_lds([(11, L_WQ + 1024*t, L_WQ + 1024*t + 256, (XF + 4*t, ACV, t == 0, False)) for t in range(28)], AH)
for k in range(4):
    for nu in range(2):
        I(f"v_mfma_f32_16x16x32_bf16 {v(KD+4*nu,4)}, {v(KA+4*k,4)}, {v(KBv+8*k+4*nu,4)}, {'0' if k == 0 else v(KD+4*nu,4)}")
P.add(proq[:8])
for i in range(4): I(f"v_cvt_pk_bf16_f32 v{KD+8+i}, v{KD+2*i}, v{KD+2*i+1}")
I(f"buffer_store_dwordx4 {v(KD+8,4)}, v2, {WS}, s{sPST} offen sc1")
I(f"v_xor_b32 v10, v{KD+8}, v5")
I(f"buffer_store_short v10, v0, {WS}, s{sPCK} offen sc1")
if GATE & 1: P.add(flag_store(16))
P.add(proq[8:])
stamp("partial stored", "mp")
S = Sched(gq)
bgA = wo_l + rawA
nq = min(len(bgA), opt("nq", 16))
S.spread(bgA[:nq], 0, 28)
S.spread(set2b, 2, 18)
G0 = gate("g0", vPO, vPF)
if GATE & 1: S.at(opt("g0", 14), G0.load(0))
S.at(15 - AH, [WaitTag(["wq4", "wq5", "wq6"])] + mk("s_barrier"), 1.0)
P.add(S.emit())
stamp("q gemm done", "p")
G = 16; GC = 80; SA = 96
FP = Fetch("fp", [([f"s_add_u32 s{sCt}, s{sP}, {4608*T}\nbuffer_load_dwordx4 {v(G+4*T,4)}, v{vFPD}, {WS}, s{sCt} offen sc1\nbuffer_load_ushort v{GC+T}, v{vFPC}, {WS}, s{sCt} offen sc1"],
                   [G+4*T, GC+T]) for T in range(16)])
P.add(phi_pre(ACV, WPQ))
if GATE & 1: P.add(G0.check(0, 0))
I("s_barrier")
PQ = 208
smq = softmax(PK, TMP, PQ, True); f0 = opt("fp0", 60)
P.add(sprinkle(smq[:f0], bgA[nq:], 0, opt("as", 8)))
P.add(sprinkle(smq[f0:], [FP.load(T) for T in range(16)], 0, opt("fpstep", 4)))
stamp("softmax q done", "p")
w1_l = flat([dmag([12, 13, 14, 15], W1, sW1B, i*64*3584, sW1M, 16384*i, "w1", sDM) for i in range(7)])
def fpb(b):
    t = []
    for k, T in enumerate(range(4*b, 4*b+4)):
        t.append(f"v_bitop3_b32 v{10 if k == 0 else 9}, v{G+4*T}, v{GC+T}, v{142 if opt('trim', 1) else 5} {X3}" + ("" if k == 0 else "\nv_or_b32 v10, v10, v9"))
    return "\n".join(t) + "\nv_cmp_ne_u16 vcc, 0, v10"
RI = TAIL.I if (opt("ool", 15) & 1) else I
if not (opt("ool", 15) & 1): I("s_branch L_fp_go")
RI("L_fp_retry:" + ("\ns_add_u32 s80, s80, 1" if DIAG else ""), unc=True)
for b in range(4):
    RI(fpb(b) + f"\ns_cbranch_vccz L_fp_k{b}\n" + "\n".join(FP.pieces[T][0][0] for T in range(4*b, 4*b+4)) + f"\nL_fp_k{b}:", unc=True)
RI(GUARD, unc=True)
if (opt("ool", 15) & 1): RI("s_branch L_fp_go", unc=True)
I("L_fp_go:")
I(fpb(0) + "\ns_cbranch_vccnz L_fp_retry")
S = Sched([mk(f"{MF} {v(SA,16)}, a[220:223], {v(G+4*T,4)}, {'0' if T == 0 else v(SA,16)}") for T in range(16)])
for b in range(1, 4): S.spread(mk(fpb(b) + "\ns_cbranch_vccnz L_fp_retry"), 4*b - 3, 4*b)
S.spread([w1_l.pop(0) for _ in range(opt("nw1a", 2))], 12, 16)
P.add(S.emit())
I(f"v_add_u32 v9, {L_KVX}, v{133 if opt('trim', 1) else vFPD}")
for i in range(4): I(f"v_cvt_pk_bf16_f32 v{SA+8+i}, v{SA+2*i}, v{SA+2*i+1}")
I(f"ds_write_b128 v9, {v(SA+8,4)}\ns_waitcnt lgkmcnt(0)\ns_barrier")
stamp("kv summed", "mp")
KVA = 32; OD = 48
for q in range(7): I(f"ds_read_b64 {v(KVA+2*q,2)}, v{vKVX} offset:{512*q}")
P.add(w1_l.pop(0))
for s in range(3):
    I(f"{MF} {v(OD,16)}, {v(KVA+4*s,4)}, {v(PQ+4*s,4)}, {'0' if s == 0 else v(OD,16)}")
    if s == 1: P.add(w1_l.pop(0))
I(f"v_mfma_f32_32x32x8_bf16 {v(OD,16)}, {v(KVA+12,2)}, {v(PQ+12,2)}, {v(OD,16)}")
I(f"""s_lshl_b32 s{sP}, s{sTILE}, 15
s_lshr_b32 s{sB}, s{sW}, 1
s_lshl_b32 s{sB}, s{sB}, 14
s_add_u32 s{sP}, s{sP}, s{sB}
s_add_u32 s{sP}, s{sP}, {WS_O}
s_add_u32 s{sA}, s{sW1M}, {L_XCH}
v_add_u32 v132, s{sA}, v2
v_xor_b32 v133, 8192, v132
v_xor_b32 v9, 64, v{vWOR}
v_and_b32 v7, 31, v1
v_mul_u32_u24 v7, 896, v7
v_add_f32 v{OD+14}, 0x358637bd, v{OD+14}
v_rcp_f32 v{OD+14}, v{OD+14}
v_lshl_add_u32 v7, v3, 4, v7""")
for k in range(0, 14, 2): I(f"v_pk_mul_f32 {v(OD+k,2)}, {v(OD+k,2)}, {v(OD+14,2)} op_sel_hi:[1,0]")
for k in range(4): I(f"v_cvt_pk_bf16_f32 v{64+k}, v{OD+2*k}, v{OD+2*k+1}")
I(f"buffer_store_dwordx4 v[64:67], v2, {WS}, s{sOST} offen sc1")
for k in range(4, 7): I(f"v_cvt_pk_bf16_f32 v{64+k}, v{OD+2*k}, v{OD+2*k+1}")
I(f"""v_bitop3_b32 v71, v64, v5, s{sMASK} bitop3:0x28
v_and_b32 v6, s{sMASK}, v5
buffer_store_dwordx4 v[68:71], v2, {WS}, s{sOST} offen offset:1024 sc1""")
if GATE & 2: P.add(flag_store(7))
stamp("o stored", "mo")
P.wait("wo")
I(f"s_cmp_ge_u32 s{sRact}, 14\ns_cbranch_scc1 L_idle\ns_barrier")
wor = []
for s in range(16):
    hh, e = s >> 1, s & 1
    for k, av in ((0, vWOR), (1, 9)):
        for u in range(2):
            wor += mk(f"ds_read_b64_tr_b16 {a_(128+8*s+4*k+2*u,2)}, v{av} offset:{(28*hh+8*e+4*u)*128}")
XR = 224
xrr = []
for i in range(4): xrr += mk((f"v_xor_b32 v10, {16*i}, v{vXRR}\n" if i else "") + f"ds_read_b64 {v(XR+2*i,2)}, v{10 if i else vXRR}")
P.add(xrr)
G1 = gate("g1", vPO, vPF)
nb_ = min(opt("nw1b", 16), len(w1_l) - 8)
wor = sprinkle(wor, [w1_l.pop(0) for _ in range(nb_)], 0, opt("w1bs", 4))
if GATE & 2: wor = sprinkle(wor, [G1.load(0)], opt("g1", 40), 1)
P.add(wor)
OB = 16
FO = Fetch("fo", [([f"s_add_u32 s{sCt}, s{sP}, {2048*hh}\nbuffer_load_dwordx4 {v(OB+8*hh,4)}, v2, {WS}, s{sCt} offen sc1\nbuffer_load_dwordx4 {v(OB+8*hh+4,4)}, v2, {WS}, s{sCt} offen offset:1024 sc1"],
                   [OB+8*hh, OB+8*hh+7]) for hh in range(8)], masked=True, nre=opt('reo', 2))
stamp("pre o fetch", "o")
AO, AT = 80, 96
set3 = mk(f"""s_mul_i32 s{sSCR}, s{sW}, 12288
s_mul_i32 s{sBIG}, s{sW}, 28672
v_add_u32 v131, s{sBIG}, v2
s_lshl_b32 s{sB}, s{sC}, 1
s_lshr_b32 s{sD}, s{sW}, 1
s_add_u32 s{sB}, s{sB}, s{sD}
s_mul_i32 s{sA}, s{sTILE}, 14
s_add_u32 s{sB}, s{sB}, s{sA}
s_mul_i32 s{sPST}, s{sB}, 2432
s_add_u32 s{sPST}, s{sPST}, {WS_H}
s_lshr_b32 s48, s{sW}, 1
s_nop 0
v_bfe_u32 v9, v1, 2, 2
v_lshl_add_u32 v240, v3, 2, v9
v_lshlrev_b32 v254, 7, v240
v_lshlrev_b32 v240, 8, v240
v_xor_b32 v9, s{sW}, v9
v_lshl_add_u32 v240, v9, 6, v240
v_bfe_u32 v9, v1, 4, 1
v_lshlrev_b32 v9, 5, v9
v_lshl_add_u32 v9, v8, 3, v9
v_add_u32 v240, v240, v9
v_add_u32 v254, v254, v9
v_bfe_u32 v9, v1, 3, 1
v_xor_b32 v9, s48, v9
v_lshl_add_u32 v254, v9, 6, v254
s_add_u32 s{sSCR}, s{sSCR}, {L_SCR}
v_add_u32 v252, s{sBIG}, v254
v_xor_b32 v253, 64, v252
v_add_u32 v254, s{sSCR}, v254
v_add_u32 v134, s{sSCR}, v2
v_xor_b32 v255, 64, v254
v_xor_b32 v241, 64, v240
v_xor_b32 v242, 128, v240
v_xor_b32 v243, 192, v240""") + flat([mk(f"v_add_u32 v{244+m}, 57344, v{240+m}") for m in range(4)])
pre2 = []
for i in range(8): pre2 += mk(f"v_lshlrev_b32 v{112+2*i}, 16, v{XR+i}\nv_and_b32 v{113+2*i}, s{sHIM}, v{XR+i}")
for s in range(1, 16, 2): pre2 += mk(f"v_accvgpr_write_b32 a{128+8*s+3}, 0\nv_accvgpr_write_b32 a{128+8*s+7}, 0")
if GATE & 2:
    P.add(pre2); P.add(G1.check(0, 0))
    stamp("gate1", "o")
    for hh in range(8): P.add(FO.load(hh))
else:
    P.add(pre2[16:]); P.add(set3)
    I("s_waitcnt lgkmcnt(0)\ns_barrier")
    P.add(sprinkle(flat(flat([w2rd(j) for j in UAW[:NT1]])), [w1_l.pop(0) for _ in range(min(len(w1_l), opt("nw1s", 4)))], 0, 8))
    stamp("shadow done", "o")
    P.add(sprinkle(pre2[:16], [FO.load(hh) for hh in range(8)], 0, 2))
I("s_waitcnt lgkmcnt(0)\ns_barrier")
stamp("fo issued", "o")
g2 = []
for s in range(16):
    for k, acc in ((1, AT), (0, AO)):
        c = ("0" if k else v(112,16)) if s == 0 else v(acc,16)
        g2.append(mk(f"{MF} {v(acc,16)}, {a_(128+8*s+4*k,4)}, {v(OB+4*s,4)}, {c}"))

P.add(FO.check(0, 7))
stamp("fo0", "o")
S = Sched(g2)
for hh in range(1, 8): S.spread(FO.checkc(hh, 7), 4*hh - 3, 4*hh)
S.spread(w1_l + [raw.pop(0) for _ in range(min(len(raw), opt("rawb", 8)))], 0, 32)
P.add(S.emit())
stamp("p2 gemm done", "o")
for i in range(4): I(f"ds_write_b128 v132, {v(AT+4*i,4)} offset:{1024*i}")
I("v_mov_b32 v112, 0\nv_mov_b32 v113, 0\ns_waitcnt lgkmcnt(0)\ns_barrier")
for i in range(4): I(f"ds_read_b128 {v(AT+4*i,4)}, v133 offset:{1024*i}")
HR = XR
for k in range(0, 8, 2): I(f"v_pk_add_f32 {v(AO+k,2)}, {v(AO+k,2)}, {v(AT+k,2)}")
for i in range(4): I(f"v_cvt_pk_bf16_f32 v{HR+i}, v{AO+2*i}, v{AO+2*i+1}")
I(f"buffer_store_dwordx4 {v(HR,4)}, v2, {WS}, s{sPST} offen sc1")
for k in range(8, 16, 2): I(f"v_pk_add_f32 {v(AO+k,2)}, {v(AO+k,2)}, {v(AT+k,2)}")
for i in range(4, 8): I(f"v_cvt_pk_bf16_f32 v{HR+i}, v{AO+2*i}, v{AO+2*i+1}")
I(f"buffer_store_dwordx4 {v(HR+4,4)}, v2, {WS}, s{sPST} offen offset:1024 sc1")
for i in range(8): I(f"v_dot2c_f32_bf16 v112, s{sONES}, v{HR+i}\nv_dot2c_f32_bf16 v113, v{HR+i}, v{HR+i}")
I(f"""v_bitop3_b32 v10, v{HR}, v{HR+4}, v5 {X3}
v_permlane32_swap_b32 v112, v113
v_add_f32 v112, v112, v113
buffer_store_dword v112, v4, {WS}, s{sPST} offen offset:2048 sc1
v_xor_b32 v113, v10, v112
buffer_store_short v113, v0, {WS}, s{sPST} offen offset:2304 sc1""")
def selft(sreg, nl): return mk(f"s_mov_b64 exec, {(1 << nl) - 1}\nbuffer_load_dword v135, v134, {WS}, s{sreg} offen sc1\ns_mov_b64 exec, -1")
SELF = opt("self", 0)
if SELF & 1: P.add(selft(sPST, 20))
if GATE & 4: P.add(flag_store(14))
stamp("h stored", "moh")
HB = 16; ST = 192
ACC = [144, 160, 176, 192]; AUG = 232
set4 = mk(f"""s_lshl_b32 s{sB}, s{sT3}, 2
s_add_u32 s{sB}, s{sB}, s{sW}
s_mul_i32 s{sP}, s{sB}, {14*2432}
s_add_u32 s{sP}, s{sP}, {WS_H}
s_mul_i32 s{sA}, s{sB}, 56
s_lshl_b32 s{sD}, s{sR}, 2
s_add_u32 s{sA}, s{sA}, s{sD}
s_mul_i32 s{sQ}, s{sA}, 2176
s_add_u32 s{sQ}, s{sQ}, {WS_H1}
v_lshlrev_b32 v13, 3, v1
s_lshl_b32 s{sA}, s{sW}, 9
s_add_u32 s{sA}, s{sA}, {L_AUG}
v_add_u32 v13, s{sA}, v13
v_mov_b32 v222, 0""")
FH = Fetch("fh", [([f"s_add_u32 s{sCt}, s{sP}, {2432*p}\nbuffer_load_dwordx4 {v(HB+8*p,4)}, v2, {WS}, s{sCt} offen sc1\nbuffer_load_dwordx4 {v(HB+8*p+4,4)}, v2, {WS}, s{sCt} offen offset:1024 sc1\n"
                    f"buffer_load_dword v{ST+2*p}, v4, {WS}, s{sCt} offen offset:2048 sc1\nbuffer_load_ushort v{ST+2*p+1}, v0, {WS}, s{sCt} offen offset:2304 sc1"],
                   [HB+8*p, HB+8*p+4, ST+2*p, ST+2*p+1]) for p in range(14)], nre=opt('reh', 2))
for i in range(4): I(f"v_mov_b32 v{AUG+i}, s{sONES}")
P.wait("w1"); I("s_barrier")
stamp("w1 landed", "h")
if opt("zz", 0): I(f"s_sleep {opt('zz', 0)}")
def w1a(t, k): return (240 + k + (4 if t >= 14 else 0), (t % 14) * 4096, (t % 14) * 4096 + 2048)
st3 = [w1a(t, 0) + ((AUG, ACC[2], t == 0, True),) for t in range(28)]
TWO = opt("two", 0); N1 = 2 if TWO else 3
for t in range(28):
    for k in range(N1): st3.append(w1a(t, k) + ((HB + 4*t, ACC[k], t == 0, False),))
for t in range(28):
    for k in range(N1, 4): st3.append(w1a(t, k) + ((HB + 4*t, ACC[k], t == 0, False),))
pro, g3 = gemm_lds(st3, AH)
P.add(pro)
S3 = Sched(g3)
S3.spread(set4, 0, 8)
S3.spread(raw + flat([w2dma(j) for j in UD]), opt("c0s", 0), opt("c0e", 10)); raw = []
NH0 = opt("nh0", 4); H0 = opt("h0", 26)
G2 = gate("g2", vPO, vPF)
if GATE & 4:
    S3.at(opt("g2", 12), G2.load(0), 0.9)
    S3.at(27, G2.check(0, 0) + stampi("gate2", "h") + flat([FH.load(p) for p in range(NH0)]), 0.5)
else: S3.spread(flat([FH.loadc(p) for p in range(NH0)]), H0, 27)
cs = ACC[2]
csx = mk(f"""v_cvt_pk_bf16_f32 v{AUG}, v{cs}, v{cs}
v_lshlrev_b32 v{AUG+1}, 16, v{AUG}
v_sub_f32 v{AUG+1}, v{cs}, v{AUG+1}
v_cvt_pk_bf16_f32 v{AUG}, v{cs}, v{AUG+1}
v_and_b32 v{AUG+1}, 0xffff, v{AUG}
v_cndmask_b32 v{AUG}, v{AUG}, 0, {sHI}
v_cndmask_b32 v{AUG+1}, v{AUG+1}, 0, {sHI}
ds_write_b64 v13, {v(AUG,2)}""")
S3.at(27, stampi("colsum done", "h") + csx + FH.check(0, NH0 - 1) + stampi("fh0", "h"), 1.0)
B0 = 28
for p in range(14):
    b = B0 + 2*N1*p
    if p + NH0 < 14:
        for k_, c_ in enumerate(FH.loadc(p + NH0)): S3.at(b + ((0, 2, 1, 3) if TWO else (0, 2, 4, 4))[k_], c_, 0.2)
    S3.at(b, mk(f"v_add_f32 v222, v222, v{ST+2*p}"), 0.0)
    if p + 1 < 14: S3.spread(FH.checkc(p + 1, min(13, p + NH0 - 1)), b + 1, b + 2*N1)
    if p in (3, 7, 11): S3.at(b + 2*N1 - 1, stampi(f"fh{p+1}", "h"), 1.0)
S3.at(B0 + 14, mk("s_barrier") + flat([mk(f"v_xor_b32 v9, {512*k}, v13\nds_read_b64 {v(AUG+2*k,2)}, v9") for k in range(1, 4)]), 0.0)
mid = mk(f"""v_mul_f32 v220, {fhex(1/448)}, v222
v_mov_b32 v221, v220
s_nop 0
v_permlane32_swap_b32 v220, v221
v_fma_f32 v221, -v220, v220, v221
v_max_f32 v221, 0, v221
v_add_f32 v221, 0x3727c5ac, v221
v_rsq_f32 v251, v221
v_cvt_pk_bf16_f32 v222, -v220, -v220
v_lshlrev_b32 v9, 16, v222
v_sub_f32 v9, -v220, v9
v_cvt_pk_bf16_f32 v223, v9, 0
v_mul_f32 v250, v221, v251
v_mul_f32 v251, 0xbfb8aa3b, v251
v_cndmask_b32 v222, v222, 0, {sHI}
v_cndmask_b32 v223, v223, 0, {sHI}""")
S3.spread(mid, *((B0 + 53, B0 + 59) if TWO else (B0 + 79, B0 + 84)))
def aug(k): return mk(f"v_mfma_f32_32x32x8_bf16 {v(ACC[k],16)}, {v(AUG+2*k,2)}, v[222:223], {v(ACC[k],16)}")
SLT = 132
def silu(k, pk):
    q = Prog(); a = ACC[k]; t = 208
    q.I(f"s_xor_b32 s50, s{sW}, {k}\ns_mul_i32 s50, s50, 2176\ns_add_u32 s50, s50, s{sQ}")
    for half in range(2):
        b = a + 8 * half
        if pk:
            for j in range(0, 8, 2): q.I(f"v_pk_mul_f32 {v(t+j,2)}, {v(b+j,2)}, v[250:251] op_sel:[0,1] op_sel_hi:[1,1]")
        else:
            for j in range(8): q.I(f"v_mul_f32 v{t+j}, v{b+j}, v251")
        for j in range(8): q.I(f"v_exp_f32 v{t+j}, v{t+j}")
        if pk:
            for j in range(0, 8, 2): q.I(f"v_pk_fma_f32 {v(t+j,2)}, {v(t+j,2)}, v[250:251], v[250:251] op_sel_hi:[1,0,0]")
        else:
            for j in range(8): q.I(f"v_fma_f32 v{t+j}, v{t+j}, v250, v250")
        for j in range(8): q.I(f"v_rcp_f32 v{t+j}, v{t+j}")
        if pk:
            for j in range(0, 8, 2): q.I(f"v_pk_mul_f32 {v(b+j,2)}, {v(b+j,2)}, {v(t+j,2)}")
        else:
            for j in range(8): q.I(f"v_mul_f32 v{b+j}, v{b+j}, v{t+j}")
        for j in range(4): q.I(f"v_cvt_pk_bf16_f32 v{b+j}, v{b+2*j}, v{b+2*j+1}")
        q.I(f"buffer_store_dwordx4 {v(b,4)}, v2, {WS}, s50 offen offset:{1024*half} sc1")
    q.I(f"v_bitop3_b32 v216, v5, v{a}, v{a+8} {X3}")
    q.I(f"buffer_store_short v216, v0, {WS}, s50 offen offset:2048 sc1")
    return q.items + ([selft(50, 18)] if SELF & 2 and not pk else [])
E0 = B0 + 28*N1
assert not raw
if TWO:
    S3.spread(flat([w2rd(j) for j in UD + UR + UAW[NT1:]]), B0 + 8, B0 + 42)
    S3.at(B0 + 34, mk("s_barrier"), 0.0)
    S3.spread(flat([w2dma(j) for j in UE]), B0 + 48, E0 + opt("wde", 12))
else:
    S3.spread(flat([w2rd(j) for j in UD + UR + UAW[NT1:]]), B0 + 22, B0 + 58)
    S3.at(B0 + 44, mk("s_barrier"), 0.0)
    S3.spread(flat([w2dma(j) for j in UE]), B0 + opt('twd', 64), E0)
B4 = 16
CKR = [240, 241, 244, 245, 248, 249, 217, 218, 219, 130, 242, 246, 243, 247]
C4 = [[a_(224,16), a_(240,16)], [v(ACC[0],16), v(ACC[1],16)]]
set5 = mk(f"""s_mul_i32 s{sA}, s{sTILE}, 56
s_xor_b32 s{sB}, s{sTILE}, 1
s_mul_i32 s{sB}, s{sB}, 56
s_add_u32 s51, s{sB}, s44
s_add_u32 s52, s{sA}, s44
s_add_u32 s53, s{sB}, s45
s_add_u32 s54, s{sA}, s45""")
for k in range(4):
    set5 += mk(f"s_mul_i32 s{51+k}, s{51+k}, 2176\ns_add_u32 s{51+k}, s{51+k}, {WS_H1}")
S3.spread(set5, B0 + 42, B0 + 52)
def piece4(n):
    st, i = n // 7, n % 7; r = B4 + 8 * (n % 14); c = CKR[n % 14]
    return ([f"s_add_u32 s{sCt}, s{51+st}, {8*2176*i}\nbuffer_load_dwordx4 {v(r,4)}, v2, {WS}, s{sCt} offen sc1\nbuffer_load_dwordx4 {v(r+4,4)}, v2, {WS}, s{sCt} offen offset:1024 sc1\n"
             f"buffer_load_ushort v{c}, v0, {WS}, s{sCt} offen offset:2048 sc1"], [r, r+4, c])
F4 = Fetch("f4", [piece4(n) for n in range(28)], nre=opt("re4", 3))
ND = opt("nd", 5)
N0 = ND if TWO else opt("n0", 4)
rawl = flat([w2raw(j) for j in UL])
nr0 = min(len(rawl), opt("nr0", 4))
if TWO:
    S3.at(E0 - 1, stampi("p3 pass1 done", "mh"), 1.0)
    g3[E0 + 3] = aug(0) + g3[E0 + 3]; g3[E0 + 4] = aug(1) + g3[E0 + 4]
    S3.spread(silu(0, False) + [stampi("silu0 done", "e")], E0 + 5, E0 + opt("s0e", 21))
    S3.spread(silu(1, False), E0 + opt("s0e", 21), E0 + opt("s1e", 44))
    S3.spread(rawl, E0 + opt("wde", 12), E0 + opt("rle", 36))
    DEEP = opt("deep", 0)
    if DEEP:
        rng = [(opt("a0", -18), opt("b0", 4)), (opt("a1", 6), opt("b1", 24)), (opt("a2", 26), opt("b2", 50)), (opt("a3", 50), opt("b3", 78))]
        f4pos = []
        for n in range(28):
            a, b = rng[n // 7]
            for k_, c_ in enumerate(F4.loadc(n)):
                pos = a + (b - a) * ((n % 7) + (0, 0.45, 0.9)[k_]) / 7
                lo = (4*n + 4 - 56) if n < 14 else 4*(n - 14) + 4
                pos = max(pos, lo + 0.01*k_); assert pos < 4*n - 3 or n == 0, (n, pos)
                f4pos.append((pos, c_))
        for i_ in range(1, len(f4pos)): assert f4pos[i_][0] >= f4pos[i_-1][0], i_
        import math
        for pos, c_ in f4pos:
            if pos < 0: S3.at(E0 + 56 + math.floor(pos), c_, pos - math.floor(pos))
    else: S3.spread(flat([F4.loadc(n) for n in range(ND)]), E0 + opt("f4s", 52), E0 + 56)
    P.add(S3.emit())
    P.add(aug(2) + aug(3))
else:
    S3.at(E0 - 1, stampi("p3 pass1 done", "mh") + aug(0) + aug(1) + aug(2) + sprinkle(silu(0, True), rawl[:nr0], 3, 12) + stampi("silu0 done", "e"), 1.0)
    S3.spread(silu(1, False) + (silu(2, False) if opt("s2p", 1) else []), E0, E0 + opt("t1e", 26))
    S3.spread(rawl[nr0:], E0, E0 + opt("tre", 14))
    S3.spread(flat([F4.loadc(n) for n in range(N0)]), E0 + opt("f4t", 24), E0 + 28)
    P.add(S3.emit())
    P.add(aug(3))
I("s_barrier")
stamp("p3 gemm done", "me")
g4 = []
for n in range(28):
    st, i = n // 7, n % 7; hf, par = st >> 1, st & 1
    for e in range(2):
        for mu in range(2):
            zero = hf == 0 and i == 0 and e == 0 and not (par == 1 and mu == 0)
            g4.append(mk(f"{MF} {C4[par][mu]}, {a_(UA(7*hf+i)+8*e+4*mu,4)}, {v(B4+8*(n%14)+4*e,4)}, {'0' if zero else C4[par][mu]}"))
P.add(F4.check(0, N0 - 1))
S = Sched(g4)
nxt = N0
for n in range(28):
    prev = nxt
    if nxt < 28 and not (TWO and DEEP):
        if nxt < n + ND and nxt + 1 < 28:
            for k_, c_ in enumerate(F4.loadc(nxt) + F4.loadc(nxt + 1)): S.at(4*n + (0, 1, 1, 2, 3, 3)[k_], c_, 0.2 + 0.01*k_)
            nxt += 2
        else:
            for k_, c_ in enumerate(F4.loadc(nxt)): S.at(4*n + (0, 2, 1)[k_], c_, 0.2)
            nxt += 1
    if n + 1 < 28: S.spread(F4.checkc(n + 1, max(n + 1, prev - 1)), 4*n + 2, 4*n + 4)
    if n in (6, 13, 20): S.at(4*n + 3, stampi(f"stage{n//7} done", "e"), 1.0)
unp = []
for i in range(8): unp += mk(f"v_lshlrev_b32 v{ACC[0]+2*i}, 16, v{HR+i}\nv_and_b32 v{ACC[0]+1+2*i}, s{sHIM}, v{HR+i}")
if TWO and DEEP:
    for pos, c_ in f4pos:
        if pos >= 0: S.at(int(pos), c_, pos - int(pos))
S2E, S3E = opt("s2e", 16), opt("s3e", 22)
if opt("s2p", 1) and not TWO: S2E = 1
else: S.spread(silu(2, False), 0, S2E)
S.spread(unp, 22, 27)
S.spread(silu(3, False), S2E, S3E)
S.spread(flat([w2rd(j) for j in UE if j < 7]), 0, 14)
S.spread(flat([w2dma(j) for j in UP]), opt("w2a", 2), opt("w2b", 44))
for j in [x for x in UE + UL + UP if x >= 7]: S.spread(w2rd(j), 44 + 5*(j-7), 49 + 5*(j-7))
S.at(82, mk(f"""s_lshl_b32 s{sA}, s{sW}, 14
v_add_u32 v13, s{sA}, v2
v_xor_b32 v9, 16384, v13
v_xor_b32 v12, 32768, v13
v_xor_b32 v14, 49152, v13
s_waitcnt lgkmcnt(0)
s_barrier"""))
S.spread([mk(f"ds_write_b128 v{9 if mu == 0 else 14}, {a_(224+16*mu+4*i,4)} offset:{4096*(2*mu+1)+1024*i}") for mu in range(2) for i in range(4)], 87, 99)
S.at(100, mk("s_waitcnt lgkmcnt(0)\ns_barrier"), 0.0)
S.spread([mk(f"ds_read_b128 {v(ACC[2+mu]+4*i,4)}, v13 offset:{4096*(2*mu+1)+1024*i}") for mu in range(2) for i in range(4)], 100, 104)
S.spread([mk(f"v_add_f32 v{ACC[2]+k}, v{ACC[2]+k}, v{ACC[3]+k}") for k in range(16)], 107, 112)
P.add(S.emit())
stamp("p4 gemm done", "me")
for i in range(4): I(f"ds_write_b128 v12, {v(ACC[1]+4*i,4)} offset:{8192+1024*i}")
if opt("cout", 0):
    I(f"""v_lshlrev_b32 v16, 3, v3
v_sub_u32 v16, v{vXRR}, v16
v_lshlrev_b32 v17, 4, v3
v_xor_b32 v16, v16, v17
v_xor_b32 v17, 32, v16
s_add_u32 s{sA}, s{sXO}, {L_XCH}
v_add_u32 v18, s{sA}, v2""")
I("s_waitcnt lgkmcnt(0)\ns_barrier")
for i in range(4): I(f"ds_read_b128 {v(ACC[3]+4*i,4)}, v13 offset:{8192+1024*i}")
for k in range(0, 16, 2): I(f"v_pk_add_f32 {v(ACC[0]+k,2)}, {v(ACC[0]+k,2)}, {v(ACC[2]+k,2)}")
for hf in range(2):
    b = ACC[0] + 8*hf
    for k in range(0, 8, 2): I(f"v_pk_add_f32 {v(b+k,2)}, {v(b+k,2)}, {v(ACC[3]+8*hf+k,2)}")
    for i in range(4): I(f"v_cvt_pk_bf16_f32 v{96+4*hf+i}, v{b+2*i}, v{b+2*i+1}")
    if not opt("cout", 0):
        I(f"v_permlane32_swap_b32 v{96+4*hf}, v{98+4*hf}\nv_permlane32_swap_b32 v{97+4*hf}, v{99+4*hf}\nbuffer_store_dwordx4 {v(96+4*hf,4)}, v7, {OUT}, s{sOUT} offen offset:{32*hf} {OPT.get('ofl', '')}")
    else:
        I(f"v_permlane32_swap_b32 v{96+4*hf}, v{98+4*hf}\nv_permlane32_swap_b32 v{97+4*hf}, v{99+4*hf}\nds_write_b128 v{16+hf}, {v(96+4*hf,4)}")
if opt("cout", 0):
    I("s_waitcnt lgkmcnt(0)\ns_barrier")
    for i in range(2): I(f"ds_read_b128 {v(104+4*i,4)}, v18 offset:{1024*i}")
    for i in range(2): I(f"buffer_store_dwordx4 {v(104+4*i,4)}, v{vXRD0+i}, {OUT}, s{sXRB} offen offset:{1024*i} {OPT.get('ofl', '')}")
stamp("end", "mpohez")
I(f"""s_cmp_lg_u32 s2, 0
s_cbranch_scc1 L_ex0
v_mov_b32 v9, 0""")
I(f"buffer_store_dword v5, v9, {WS}, 0 offen sc1", unc=True)
I("L_ex0:")
if opt("enc", 0):
    mode = opt("enc", 0)
    if mode <= 4:
        I(f"s_bfe_u32 s{sA}, s80, {hex(0x80000 | (8*(mode-1)))}\ns_min_u32 s{sA}, s{sA}, 1\ns_mul_i32 s{sA}, s{sA}, 2000", unc=True)
    else:
        I(f"s_waitcnt lgkmcnt(0)\ns_sub_u32 s{sA}, s{sSTAMP+2}, s78\ns_mul_i32 s{sA}, s{sA}, 4", unc=True)
    I(f"""s_memrealtime s[40:41]
s_waitcnt lgkmcnt(0)
L_enc:
s_memrealtime s[42:43]
s_waitcnt lgkmcnt(0)
s_sub_u32 s42, s42, s40
s_cmp_lt_u32 s42, s{sA}
s_cbranch_scc1 L_enc
s_branch L_end""", unc=True)
if opt("dbg", 0):
    I(f"""s_cmp_lg_u32 s{sW}, 0
s_cbranch_scc1 L_end
s_load_dwordx2 s[40:41], s[0:1], 64
s_mov_b32 s42, 256
s_mov_b32 s43, 0x20000
s_mov_b64 exec, 1
v_mov_b32 v9, 0
s_waitcnt lgkmcnt(0)""", unc=True)
    for k in range(nstamp[0]):
        I(f"s_sub_u32 s{sA}, s{sSTAMP+2*k}, s78\nv_mov_b32 v10, s{sA}\nbuffer_atomic_umax v10, v9, s[40:43], 0 offen offset:{4*k}\ns_nop 1", unc=True)
    I(f"""v_mov_b32 v10, s78
buffer_atomic_umax v10, v9, s[40:43], 0 offen offset:32
s_not_b32 s{sA}, s78
v_mov_b32 v11, s{sA}
buffer_atomic_umax v11, v9, s[40:43], 0 offen offset:36
v_mov_b32 v12, s{sSTAMP+2*(nstamp[0]-1)}
buffer_atomic_umax v12, v9, s[40:43], 0 offen offset:40
v_mov_b32 v13, s80
buffer_atomic_add v13, v9, s[40:43], 0 offen offset:44
s_branch L_end""", unc=True)
I("L_exit:")
if DIAG and not opt("dbg", 0):
    I(f"s_cmp_lg_u32 s{sW}, {opt('dw', 0)}\ns_cbranch_scc1 L_end\ns_lshl_b32 s{sA}, s2, 7\ns_add_u32 s{sA}, s{sA}, {WS_DIAG}\nv_mov_b32 v9, 0", unc=True)
    for k in range(nstamp[0]):
        I(f"s_waitcnt lgkmcnt(0)\nv_mov_b32 v10, s{sSTAMP+2*k}\nbuffer_store_dword v10, v9, {WS}, s{sA} offen offset:{4*k}", unc=True)
    if SEL == ["z"]: I(f"v_mov_b32 v10, s78\nbuffer_store_dword v10, v9, {WS}, s{sA} offen offset:120", unc=True)
    I(f"v_mov_b32 v10, s80\nbuffer_store_dword v10, v9, {WS}, s{sA} offen offset:124", unc=True)
I("L_end:\ns_endpgm")
I(f"""L_idle:
s_and_b32 s{sA}, s{sT2}, 1
s_lshl_b32 s{sA}, s{sA}, 1
s_add_u32 s{sA}, s{sA}, s{sRact}
s_sub_u32 s{sA}, s{sA}, 14
s_lshl_b32 s{sA}, s{sA}, 2
s_add_u32 s{sA}, s{sA}, s{sW}
s_lshl_b32 s{sA}, s{sA}, 13
v_lshlrev_b32 v9, 7, v1
s_lshr_b32 s{sD}, s{sT2}, 1
s_mul_i32 s{sD}, s{sD}, {8*56*2176}
s_add_u32 s{sD}, s{sD}, {WS_H1}
s_add_u32 s{sD}, s{sD}, s{sA}
s_mov_b32 s{sB}, {opt("idle2", 0)}
s_cmp_eq_u32 s{sB}, 0
s_cbranch_scc1 L_idle3
L_idle2:
buffer_load_dword v11, v9, {WS}, s{sD} offen {OPT.get("i2f", "")}
s_add_u32 s{sD}, s{sD}, {16*8192}
s_sub_u32 s{sB}, s{sB}, 1
s_cmp_lg_u32 s{sB}, 0
s_cbranch_scc1 L_idle2
L_idle3:
s_mov_b32 s{sB}, {opt("idle", 0)}
s_cmp_eq_u32 s{sB}, 0
s_cbranch_scc1 L_exit
L_idle1:
buffer_load_dword v11, v9, {W2}, s{sA} offen
s_add_u32 s{sA}, s{sA}, {16*8192}
s_sub_u32 s{sB}, s{sB}, 1
s_cmp_lg_u32 s{sB}, 0
s_cbranch_scc1 L_idle1
s_branch L_exit""", unc=True)
P.add(TAIL.items)

for it in P.items:
    if isinstance(it, Ins) and it.text.startswith('buffer_load_dword v142,'): it.defs = []
for it in P.items:
    if isinstance(it, Ins) and it.op == "buffer_load_dwordx4":
        for bit, srd in ((1, W1), (2, W2), (4, WO), (8, WQKV), (16, X)):
            if opt("wf", 0) & bit and srd in it.text:
                fl = OPT.get("wfl", "nt")
                it.text = it.text.replace(" lds", f" {fl} lds") if it.text.endswith(" lds") else it.text + " " + fl
PL = opt("plain", 0)
for it in P.items:
    if isinstance(it, Ins) and it.op.startswith("buffer_store") and "sc1" in it.text:
        ish1 = " s50 " in it.text or " s49 " in it.text
        ish = ("v[224:227]" in it.text or "v[228:231]" in it.text or "v112," in it.text or "v113," in it.text)
        if (ish and PL & 1) or (ish1 and PL & 2): it.text = it.text.replace(" sc1", OPT.get("pfl", ""))
if opt("pld", 0):
    c = 0
    for it in P.items:
        if isinstance(it, Ins) and it.op.startswith("buffer_load") and "sc1" in it.text and " s56 " in it.text and not it.uncounted:
            c += 1
            kind = 0 if c <= 48 else 1 if c <= 104 else 2
            if opt("pld", 0) & kind: it.text = it.text.replace(" sc1", OPT.get("lfl", ""))
if opt("nochk", 0):
    new = []; seen_end = False
    for it in P.items:
        if isinstance(it, Ins):
            if opt("nochk", 0) == 2 and not seen_end:
                if it.text.startswith("L_exit"): seen_end = True
                elif it.uncounted or it.op in ("s_cbranch_vccz", "s_branch"): continue
            if it.op == "s_cbranch_vccz" and not it.uncounted: it = Ins(it.text.replace("s_cbranch_vccz", "s_branch"))
            elif it.op == "s_cbranch_vccnz" and not it.uncounted: continue
            t = it.text
            if it.op.startswith("buffer_store") and "sc1" in t and not it.uncounted:
                kind = 8 if " s50 " in t else 4 if ("v[224" in t or "v[228" in t or "v112," in t or "v113," in t) else 2 if f" s{sOST} " in t else 1
                if opt("nost", 0) & kind: continue
            if it.op.startswith("buffer_load") and "sc1" in t and " s56 " in t and not it.uncounted:
                cnt_ld = globals().setdefault("_c", [0]); cnt_ld[0] += 1; c = cnt_ld[0]
                kind = 1 if c <= 32 else 2 if c <= 48 else 4 if c <= 104 else 8
                if opt("nold", 0) & kind: continue
        new.append(it)
    P.items = new
body, items = render(P.items)
if opt("align", 1):
    import subprocess, re as _re
    open("_al.s", "w").write('.amdgcn_target "amdgcn-amd-amdhsa--gfx950"\n.text\n' + body)
    subprocess.run(["clang", "-x", "assembler", "-target", "amdgcn-amd-amdhsa", "-mcpu=gfx950", "-c", "_al.s", "-o", "_al.o"], check=True)
    dis = subprocess.run(["llvm-objdump", "-d", "--mcpu=gfx950", "_al.o"], capture_output=True, text=True).stdout
    sizes = [4 * len(m.group(1).split()) for m in _re.finditer(r"// [0-9A-F]{12}: ((?:[0-9A-F]{8} ?)+)", dis)]
    real = [i for i in items if i.cls not in ('label', 'dir')]
    assert len(sizes) == len(real), (len(sizes), len(real))
    sz = {id(i): n for i, n in zip(real, sizes)}
    new = []; off = 0; nal = 0; MINRUN = opt("minrun", 6)
    for k, it in enumerate(items):
        if id(it) in sz and sz[id(it)] == 8 and off % 8 == 4 and not it.uncounted:
            run = 0
            for j in items[k:k + MINRUN + 4]:
                if id(j) not in sz: continue
                if sz[id(j)] != 8 or j.cls == 'mfma': break
                run += 1
            if run >= MINRUN:
                p = new[-1] if new else None
                if p is not None and p.cls == 'valu' and sz.get(id(p)) == 4 and not p.op.startswith(('v_permlane', 'v_dot2c', 'v_readfirst', 'v_accvgpr', 'v_cmp', 'v_cndmask')) and not p.op.endswith('_e64'):
                    p.text = p.text.replace(p.op, p.op + "_e64", 1)
                else: new.append(Ins("s_nop 0"))
                off += 4; nal += 1
        new.append(it); off += sz.get(id(it), 0)
    items = new
    body = '\n'.join(('' if i.cls == 'label' else '  ') + i.text for i in items) + '\n'
    print("alignment fixes:", nal, "code bytes", off)
hdr = open("cdna_kernels/" + NAME + ".s.ref").read().split("; Override launch")[0]
out = hdr + f"""; @launch grid=(256,1,1) block=(256,1,1) lds={LDS_SIZE}
.amdgcn_target "amdgcn-amd-amdhsa--gfx950"
.text
.globl {NAME}_kernel
.p2align 8
.type {NAME}_kernel,@function
{NAME}_kernel:
{body}.fill 2048, 4, 0xbf810000
.section .rodata,"a"
.p2align 6
.amdhsa_kernel {NAME}_kernel
  .amdhsa_next_free_vgpr 512
  .amdhsa_next_free_sgpr 102
  .amdhsa_accum_offset 256
  .amdhsa_group_segment_fixed_size 0
  .amdhsa_kernarg_size 80
  .amdhsa_user_sgpr_count 2
  .amdhsa_user_sgpr_kernarg_segment_ptr 1
  .amdhsa_system_sgpr_workgroup_id_x 1
.end_amdhsa_kernel
"""
open(sys.argv[1], "w").write(out)
n = sum(1 for i in items if i.cls not in ('label', 'dir'))
nu_ = sum(1 for i in items if i.cls not in ('label', 'dir') and i.uncounted)
print("instructions:", n, "(slow path", nu_, ") nops:", sum(1 for i in items if i.op == 's_nop'), "waits:", sum(1 for i in items if i.op == 's_waitcnt'), "stamps", nstamp[0])
```

```python
import sys, struct
from asmlib import *

NAME = "sequential_preLN__linear_kernel_hedgehog__dense_activation_silu__prompt"
DIAG = int(sys.argv[2]) if len(sys.argv) > 2 else 0
OPT = dict(a.split('=') for a in sys.argv[3:])
def opt(k, d): return int(OPT[k], 0) if k in OPT else d

WS_PART = 0x40000
WS_O    = 0x240000
WS_H    = 0x440000
WS_H1   = 0x680000
WS_DIAG = 0xE80000
WS_FLG  = 0xF00000
WS_SIZE = 0xF80000
XW = 28672
L_WV, L_WQ, L_WK, L_WO = 0, 28672, 57344, 86016
L_IMG = L_WK
L_KVX = 143360
L_XCH = 147456
L_SCR = 114688
L_AUG = 161792
LDS_SIZE = 163840
sW, sT, sH, sT2, sR = 3, 4, 5, 6, 7
X, WQKV, WPHI, WO, W1, W2, OUT, WS = [f"s[{i}:{i+3}]" for i in range(8, 40, 4)]
sKX, sKW = 40, 47
sHQ, sHIM = 54, 55
sRET = "s[56:57]"
sSPIN, sP, sU, sC, sMASK, sQ = 58, 59, 60, 61, 62, 63
sHI = "s[64:65]"
sLOG = "s[66:67]"
sONES, sTILE = 68, 69
sA, sB, sCt, sD = 70, 71, 72, 73
sRact, sXO = 74, 75
sWB, sWQ = 76, 77
sLAST, sFLAG, sWM, sPST, sPCK, sOST, sXRB, sOUT = 80, 81, 82, 83, 84, 85, 86, 87
sSTAMP = 88

def v(a, n=1): return f"v{a}" if n == 1 else f"v[{a}:{a+n-1}]"
def a_(a, n=1): return f"a{a}" if n == 1 else f"a[{a}:{a+n-1}]"
def fhex(x): return hex(struct.unpack('<I', struct.pack('<f', x))[0])
def flat(l): return sum(l, [])
P = Prog(); I = P.I
TAIL = Prog()
nstamp = [0]
SEL = OPT.get("st", "m").split(",")
PICK = [int(x) for x in OPT["pick"].split(",")] if "pick" in OPT else None
allst = [0]
def stampi(name, grp="m"):
    idx = allst[0]; allst[0] += 1
    if opt("jit", 0) and idx in (3, 7, 9, 11, 13, 17, 19, 21, 25, 26, 27, 28, 29):
        return mk(f"""s_memtime s[88:89]
s_waitcnt lgkmcnt(0)
s_mul_i32 s88, s88, 0x9E3779B1
s_lshr_b32 s88, s88, {opt("jit", 0)}
L_jit{idx}:
s_sleep 8
s_sub_u32 s88, s88, 1
s_cmp_gt_i32 s88, 0
s_cbranch_scc1 L_jit{idx}""")
    if not DIAG: return []
    if PICK is not None:
        if name != "start" and idx not in PICK:
            print(f"   - {idx}: {name}"); return []
    elif name != "start" and not (set(grp) & set(SEL)): return []
    k = nstamp[0]; nstamp[0] += 1
    assert k < 7
    print(f"stamp {k}: [{idx}] {name}")
    op = "s_memtime" if DIAG == 2 else "s_memrealtime"
    return mk(f"{op} s[{sSTAMP+2*k}:{sSTAMP+2*k+1}]")
def stamp(name, grp="m"): P.add(stampi(name, grp))
X3 = "bitop3:0x96"

def chk_code(regs, masked):
    r = list(regs)
    if masked: return f"v_bitop3_b32 v10, v{r[0]}, v{r[1]}, s{sMASK} bitop3:0x28\nv_cmp_ne_u32 vcc, v10, v6"
    if len(r) == 1: return f"v_cmp_ne_u32 vcc, v{r[0]}, v5"
    if len(r) == 2: t = f"v_xor_b32 v10, v{r[0]}, v{r[1]}"
    else:
        t = f"v_bitop3_b32 v10, v{r[0]}, v{r[1]}, v{r[2]} {X3}"
        if len(r) == 4: t += f"\nv_xor_b32 v10, v10, v{r[3]}"
    return t + "\nv_cmp_ne_u16 vcc, v10, v5"

sFL, sDM = 56, 57
GUARD = f"s_add_u32 s{sSPIN}, s{sSPIN}, 1\ns_cmp_gt_u32 s{sSPIN}, 0x40000\ns_cbranch_scc1 L_end\ns_waitcnt vmcnt(0)"
class Fetch:
    def __init__(self, name, pieces, masked=False, nre=1):
        self.name, self.pieces, self.masked, self.nre = name, pieces, masked, nre
    def loadc(self, i):
        it = flat([mk(c.replace(f"s{sCt}", f"s{sFL}")) for c in self.pieces[i][0]])
        out = []; cur = []
        for x in it:
            cur.append(x)
            if x.cls == 'vmem': out.append(cur); cur = []
        return out
    def load(self, i): return flat(self.loadc(i))
    def stub(self, i, last):
        n = self.name
        wgt = {"fo": 0x100, "fh": 0x10000, "f4": 0x1000000}.get(n, 1)
        rel = (f"s_add_u32 s80, s80, {wgt}\n" if DIAG else "") + "\n".join(c for j in range(i, min(last, i + self.nre - 1) + 1) for c in self.pieces[j][0])
        if opt("ool", 15) & {"fo": 2, "fh": 4, "f4": 8}[n]:
            TAIL.I(f"L_{n}_r{i}:\n" + rel + "\n" + GUARD + "\n" + chk_code(self.pieces[i][1], self.masked) + f"\ns_cbranch_vccnz L_{n}_r{i}\ns_branch L_{n}_ok{i}", unc=True)
            return mk(f"s_cbranch_vccnz L_{n}_r{i}\nL_{n}_ok{i}:")
        return mk(f"s_cbranch_vccz L_{n}_ok{i}\nL_{n}_r{i}:") + \
               mk(rel + "\n" + GUARD + "\n" + chk_code(self.pieces[i][1], self.masked) + f"\ns_cbranch_vccnz L_{n}_r{i}", unc=True) + mk(f"L_{n}_ok{i}:")
    def checkc(self, i, last):
        return [[x] for x in mk(chk_code(self.pieces[i][1], self.masked))] + [self.stub(i, last)]
    def check(self, i, last): return flat(self.checkc(i, last))

sFS, sFP = 80, 81
vL512, vPO, vPF = 0, 142, 143
def flag_store(nl): return mk(f"s_mov_b64 exec, {(1 << nl) - 1}\nbuffer_store_dword v5, v{vL512}, {WS}, s{sFS} offen sc1\ns_mov_b64 exec, -1")
def gate(name, vo, vf): return Fetch(name, [([f"buffer_load_dword v{vf}, v{vo}, {WS}, s{sFP} offen sc1"], [vf])])
GATE = opt("gate", 0)

def cost(it):
    if isinstance(it, WaitTag): return 4
    if it.cls in ('label', 'dir') or it.uncounted: return 0
    if it.op.startswith(TRANS) or 'permlane' in it.op: return 8
    if it.op.startswith('ds_write_b128'): return 28
    if it.cls == 'mfma': return 8
    return 4.5
class Sched:
    def __init__(self, groups):
        self.groups = groups; self.gap = [[] for _ in groups]; self.seq = 0
    def at(self, g, items, frac=0.5):
        self.seq += 1; self.gap[g].append((frac, self.seq, list(items)))
    def spread(self, chunks, a, b):
        chunks = [c if isinstance(c, list) else [c] for c in chunks]
        tot = sum(cost(i) for c in chunks for i in c) or 1; acc = 0
        for c in chunks:
            pos = a + (b - a) * acc / tot
            self.at(int(pos), c, pos - int(pos))
            acc += sum(cost(i) for i in c)
    def emit(self):
        out = []
        for g, gp in zip(self.groups, self.gap):
            out += g
            for _, _, c in sorted(gp, key=lambda x: (x[0], x[1])): out += c
        return out
def sprinkle(items, groups, start, step):
    out = []; groups = list(groups); nxt = start
    for i, it in enumerate(items):
        if groups and i == nxt: out += groups.pop(0); nxt += step
        out.append(it)
    for g in groups: out += g
    return out

def softmax(p, t, o, pk):
    q = Prog(); J = q.I
    m, n = t + 14, t + 15; r0, r1 = t + 16, t + 17
    J(f"v_max3_f32 v{m}, v{p}, v{p+1}, v{p+2}\nv_max3_f32 v{n}, -v{p}, -v{p+1}, -v{p+2}")
    for k in range(3, 13, 2):
        J(f"v_max3_f32 v{m}, v{m}, v{p+k}, v{p+k+1}\nv_max3_f32 v{n}, v{n}, -v{p+k}, -v{p+k+1}")
    J(f"""v_max_f32 v{m}, v{m}, v{p+13}
v_max_f32 v{n}, v{n}, -v{p+13}
v_permlane32_swap_b32 v{m}, v{n}
v_max_f32 v{m}, v{m}, v{n}
v_mul_f32 v{m}, v253, v{m}
v_mov_b32 v{n}, v{m}
v_permlane32_swap_b32 v{m}, v{n}""")
    if pk:
        for k in range(0, 14, 2):
            J(f"v_pk_fma_f32 {v(t+k,2)}, {v(p+k,2)}, v[252:253], {v(m,2)} op_sel_hi:[1,0,0]")
            J(f"v_pk_fma_f32 {v(p+k,2)}, {v(p+k,2)}, v[252:253], {v(m,2)} op_sel:[0,1,1] op_sel_hi:[1,1,1]")
    if pk == 2:
        for k in range(14):
            J(f"v_exp_f32 v{t+k}, v{t+k}\nv_exp_f32 v{p+k}, v{p+k}")
            if k >= 2:
                a0 = f"v{t}" if k == 2 else f"v{r0}"; a1 = f"v{p}" if k == 2 else f"v{r1}"
                J(f"v_add_f32 v{r0}, {a0}, v{t+k-1}\nv_add_f32 v{r1}, {a1}, v{p+k-1}")
        J(f"v_add_f32 v{m}, v{r0}, v{t+13}\nv_add_f32 v{n}, v{r1}, v{p+13}")
    elif pk:
        for k in range(14): J(f"v_exp_f32 v{t+k}, v{t+k}")
        for k in range(14): J(f"v_exp_f32 v{p+k}, v{p+k}")
        J(f"v_pk_add_f32 {v(m,2)}, {v(t,2)}, {v(t+2,2)}\nv_pk_add_f32 {v(r0,2)}, {v(p,2)}, {v(p+2,2)}")
        for k in range(4, 14, 2):
            J(f"v_pk_add_f32 {v(m,2)}, {v(m,2)}, {v(t+k,2)}\nv_pk_add_f32 {v(r0,2)}, {v(r0,2)}, {v(p+k,2)}")
        J(f"v_add_f32 v{m}, v{m}, v{n}\nv_add_f32 v{n}, v{r0}, v{r1}")
    else:
        for k in range(14):
            J(f"v_fma_f32 v{t+k}, v{p+k}, v252, v{m}\nv_fma_f32 v{p+k}, v{p+k}, v253, v{n}\nv_exp_f32 v{t+k}, v{t+k}\nv_exp_f32 v{p+k}, v{p+k}")
            if k >= 2:
                a0 = f"v{t}" if k == 2 else f"v{r0}"; a1 = f"v{p}" if k == 2 else f"v{r1}"
                J(f"v_add_f32 v{r0}, {a0}, v{t+k-1}\nv_add_f32 v{r1}, {a1}, v{p+k-1}")
        J(f"v_add_f32 v{m}, v{r0}, v{t+13}\nv_add_f32 v{n}, v{r1}, v{p+13}")
    J(f"""v_permlane32_swap_b32 v{m}, v{n}
v_add_f32 v{m}, v{m}, v{n}
v_rcp_f32 v{m}, v{m}
v_mov_b32 v{n}, v{m}
v_permlane32_swap_b32 v{m}, v{n}""")
    if pk == 1:
        for k in range(0, 14, 2):
            J(f"v_pk_mul_f32 {v(t+k,2)}, {v(t+k,2)}, {v(m,2)} op_sel_hi:[1,0]")
            J(f"v_pk_mul_f32 {v(p+k,2)}, {v(p+k,2)}, {v(m,2)} op_sel:[0,1] op_sel_hi:[1,1]")
    else:
        for k in range(14): J(f"v_mul_f32 v{t+k}, v{t+k}, v{m}\nv_mul_f32 v{p+k}, v{p+k}, v{n}")
    for k in range(7): J(f"v_cvt_pk_bf16_f32 v{o+k}, v{t+2*k}, v{t+2*k+1}")
    for k in range(7): J(f"v_cvt_pk_bf16_f32 v{o+7+k}, v{p+2*k}, v{p+2*k+1}")
    return q.items

def dmag(vaddrs, srd, sbase, sadd, mbase, madd, tag, sreg=None):
    sr = sCt if sreg is None else sreg
    ch = [mk(f"buffer_load_dwordx4 v{a}, {srd}, s{sr} offen offset:{1024*i} lds", tag=tag) for i, a in enumerate(vaddrs)]
    ch[0] = mk(f"s_add_u32 m0, s{mbase}, {madd}\ns_add_u32 s{sr}, s{sbase}, {sadd}") + ch[0]
    return ch

MF = "v_mfma_f32_32x32x16_bf16"
RINGA, NRING = 224, 8
def gemm_lds(steps, ahead=6):
    def rd(i):
        av, o1, o2 = steps[i][:3]; r = RINGA + 4 * (i % NRING)
        return mk(f"ds_read_b64_tr_b16 {a_(r,2)}, v{av} offset:{o1}\nds_read_b64_tr_b16 {a_(r+2,2)}, v{av} offset:{o2}")
    rds = [rd(i) for i in range(len(steps))]
    groups = []
    for i, st in enumerate(steps):
        r = RINGA + 4 * (i % NRING); b, acc, first, swap = st[3]
        A, B = a_(r, 4), v(b, 4)
        if swap: A, B = B, A
        g = mk(f"{MF} {v(acc,16)}, {A}, {B}, {'0' if first else v(acc,16)}")
        if i % 2 == 0 and i + 1 < len(steps):
            r2 = RINGA + 4 * ((i + 1) % NRING); g[0].extra = [('a', r2 + x) for x in range(4)]
        groups.append(g + (rds[i + ahead] if i + ahead < len(steps) else []))
    return flat(rds[:ahead]), groups

FAST = opt('fast', 1)
LO = """s_load_dwordx2 s[12:13], s[0:1], 8
s_load_dwordx2 s[16:17], s[0:1], 16
s_load_dwordx2 s[20:21], s[0:1], 24
s_load_dwordx2 s[24:25], s[0:1], 40
s_load_dwordx2 s[28:29], s[0:1], 48
s_load_dwordx2 s[32:33], s[0:1], 56
s_load_dwordx2 s[36:37], s[0:1], 72
"""
CP = f"""v_lshlrev_b32 v3, 4, v1
v_lshl_add_u32 v3, v2, 6, v3
v_lshl_add_u32 v3, v2, 4, v3
v_add_u32 v3, s{sCt}, v3
v_lshlrev_b32 v3, 7, v3
s_and_b32 s76, s76, 0xffffff00
s_mov_b64 exec, 31
global_load_dword v236, v3, s[76:77]
s_mov_b64 exec, -1
"""
MAP1 = [f"""{"s_lshr_b32 s4, s70, 1" if opt("pair", 1) else "s_and_b32 s4, s70, 3"}
s_lshl_b32 s{sT}, s{sT}, 2
s_and_b32 s{sD}, s{sB}, 3
s_add_u32 s{sT}, s{sT}, s{sD}
{"s_and_b32 s59, s70, 1" if opt("pair", 1) else "s_lshr_b32 s59, s70, 2"}
s_lshl_b32 s{sH}, s{sP}, 3
s_lshr_b32 s{sD}, s{sB}, 2
s_add_u32 s{sH}, s{sH}, s{sD}
s_mul_i32 s{sP}, s{sT}, {opt("rt", 2)}
s_add_u32 s{sD}, s{sD}, s{sP}
s_mul_i32 s{sP}, s{sD}, 37
s_lshr_b32 s{sP}, s{sP}, 8
s_mul_i32 s{sP}, s{sP}, 7
s_sub_u32 s{sD}, s{sD}, s{sP}
s_lshl_b32 s{sKX}, s{sD}, 7
""",
f"""s_lshl_b32 s{sT}, s{sA}, 1
s_lshr_b32 s{sD}, s{sB}, 4
s_add_u32 s{sT}, s{sT}, s{sD}
s_mov_b32 s{sH}, s{sCt}
s_and_b32 s{sD}, s{sH}, 7
s_cmp_eq_u32 s{sD}, 7
s_cselect_b32 s{sD}, 3, s{sD}
s_lshl_b32 s{sKX}, s{sD}, 7
""",
f"""s_mov_b32 s{sT}, s{sCt}
s_lshl_b32 s{sH}, s{sA}, 1
s_lshr_b32 s{sD}, s{sB}, 4
s_add_u32 s{sH}, s{sH}, s{sD}
s_and_b32 s{sD}, s{sH}, 7
s_mul_i32 s{sD}, s{sD}, 3
s_mul_i32 s{sP}, s{sD}, 37
s_lshr_b32 s{sP}, s{sP}, 8
s_mul_i32 s{sP}, s{sP}, 7
s_sub_u32 s{sD}, s{sD}, s{sP}
s_lshl_b32 s{sKX}, s{sD}, 7
"""][opt("map1", 0)]
if DIAG: I("s_memrealtime s[78:79]")
I(f"""s_cmp_ge_u32 s2, 256
s_cbranch_scc1 L_end
s_load_dwordx2 s[8:9], s[0:1], 0
{LO if not FAST else ''}{"s_waitcnt lgkmcnt(0)" + chr(10) + "s_memrealtime s[88:89]" if opt("bare", 0) else ""}
s_getpc_b64 s[76:77]
v_and_b32 v1, 63, v0
v_lshrrev_b32 v2, 6, v0
s_and_b32 s{sA}, s2, 7
v_readfirstlane_b32 s{sW}, v2
s_lshr_b32 s{sB}, s2, 3
s_and_b32 s{sCt}, s{sB}, 15
{CP if FAST < 2 else ''}{MAP1}
s_mov_b32 s10, 1835008
s_mov_b32 s11, 0x20000
v_lshrrev_b32 v2, 3, v1
v_mul_u32_u24 v244, 896, v2
v_lshrrev_b32 v2, 4, v1
v_and_b32 v8, 7, v1
v_xor_b32 v2, v2, v8
v_lshl_add_u32 v244, v2, 4, v244
v_xor_b32 v245, 64, v244
v_add_u32 v245, {7168-1024}, v245
v_add_u32 v246, {2*(7168-1024)}, v244
v_add_u32 v247, {2*(7168-1024)}, v245
s_lshl_b32 s{sQ}, s{sT}, 2
s_add_u32 s{sQ}, s{sQ}, s{sW}
s_mul_i32 s{sQ}, s{sQ}, {32*896}
s_lshr_b32 s{sXO}, s{sW}, 1
s_add_u32 s{sXO}, s{sXO}, s{sW}
s_mul_i32 s{sXO}, s{sXO}, {XW}
s_waitcnt lgkmcnt(0)""")
st0 = stampi("start")
if not opt("bare", 0): P.add(st0)
def xdma(g): return flat(dmag([244, 245, 246, 247], X, sQ, f"s{sKX+g}", sXO, 4096*g, f"x{g}"))
P.add(xdma(0))
if FAST: I(LO)
if FAST == 2: I(f"v_lshrrev_b32 v2, 6, v0\ns_and_b32 s{sCt}, s{sB}, 15\n" + CP)
I(f"""s_mov_b32 s14, {0 if opt('abl',0)&8 else 1204224}
s_mov_b32 s15, 0x20000
v_and_b32 v8, 3, v1""")
def wtouch(mask16, dst):
    m = mask16 | (mask16 << 16)
    return mk(f"s_mov_b32 exec_lo, {hex(m)}\ns_mov_b32 exec_hi, {hex(m)}\nbuffer_load_dword v{dst}, v255, {WQKV}, 0 offen\ns_mov_b64 exec, -1")
def kxs(g): return mk(f"s_add_u32 s{sKX+g}, s{sKX+g-1}, 128\ns_cmp_ge_u32 s{sKX+g}, 896\ns_cselect_b32 s{sD}, 896, 0\ns_sub_u32 s{sKX+g}, s{sKX+g}, s{sD}")
NXE = opt("nxe", 2)
if opt("wtfirst", 1) and opt("wt0", 0): P.add(wtouch(opt("wt0", 0), 237))
for g in range(1, NXE): P.add(kxs(g) + xdma(g))
if not opt("wtfirst", 1) and opt("wt0", 0): P.add(wtouch(opt("wt0", 0), 237))
if FAST: I("s_waitcnt lgkmcnt(0)")
if opt("wsoff", 0): I(f"s_add_u32 s36, s36, {opt('wsoff', 0)}\ns_addc_u32 s37, s37, 0")
I(f"""s_mov_b32 s38, {WS_SIZE}
s_mov_b32 s39, 0x20000
s_mov_b32 s18, 25088
s_mov_b32 s19, 0x20000
s_mov_b32 s22, {0 if opt('abl',0)&4 else 401408}
s_mov_b32 s23, 0x20000
s_xor_b32 s{sHQ}, s{sH}, 1
v_mov_b32 v11, 0
v_lshlrev_b32 v6, 7, v1""")
TM = opt("tm", 0)
sm_ld = mk(f"""s_mov_b64 exec, 1
buffer_load_dword v5, v6, {WS}, 0 offen sc1""")
if opt("two_", 1): sm_ld += mk(f"""s_lshl_b32 s56, s2, 2
s_add_u32 s56, s56, s{sW}
s_lshl_b32 s56, s56, 9
s_mov_b64 exec, 15
buffer_load_dword v238, v6, {WO}, s56 offen""")
if opt("twp", 0): sm_ld += mk(f"""s_and_b32 s{sCt}, s{sH}, 14
s_mul_i32 s{sCt}, s{sCt}, 1568
s_mul_i32 s56, s{sW}, 896
s_add_u32 s{sCt}, s{sCt}, s56
s_mov_b64 exec, 127
buffer_load_dword v239, v6, {WPHI}, s{sCt} offen""")
sm_ld += mk("s_mov_b64 exec, -1")
if TM == 0: P.add(sm_ld)
for g in range(NXE, 7): P.add(kxs(g))
MORE = opt("more", 0)
I(f"s_mov_b32 s{sONES}, 0x3f803f80\ns_mul_i32 s66, s{sH}, 1568\ns_mul_i32 s81, s{sHQ}, 1568")
_m1 = len(P.items)
I(f"""s_lshl_b32 s{sT2}, s{sA}, 1
s_lshr_b32 s{sD}, s{sB}, 4
s_add_u32 s{sT2}, s{sT2}, s{sD}
s_and_b32 s{sRact}, s{sB}, 15
s_min_u32 s{sR}, s{sRact}, 13
s_mov_b32 s26, {0 if opt('abl',0)&1 else 1605632}
s_mov_b32 s27, 0x20000
s_mov_b32 s30, {0 if opt('abl',0)&2 else 1605632}
s_mov_b32 s31, 0x20000
s_mov_b32 s34, 1835008
s_mov_b32 s35, 0x20000
s_mov_b32 s64, 0
s_mov_b32 s65, -1
s_mov_b32 s{sMASK}, 0xbfffbfff
s_mov_b32 s{sHIM}, 0xffff0000
s_mov_b32 s{sSPIN}, 0
s_mov_b32 s80, 0
s_cmp_ge_u32 s{sR}, 7
s_cselect_b32 s{sU}, 1, 0
s_mul_i32 s{sA}, s{sU}, 7
s_sub_u32 s{sC}, s{sR}, s{sA}""")
sT3 = 67
if opt("map3", 1):
    I(f"""s_and_b32 s{sA}, s{sT2}, 12
s_and_b32 s{sD}, s{sT2}, 1
s_lshl_b32 s{sD}, s{sD}, 1
s_add_u32 s{sA}, s{sA}, s{sD}
s_add_u32 s{sT3}, s{sA}, s{sU}
s_bfe_u32 s{sA}, s{sT2}, 0x10001
s_mul_i32 s{sA}, s{sA}, 7
s_add_u32 s{sR}, s{sA}, s{sC}""")
else: I(f"s_mov_b32 s{sT3}, s{sT2}")
for g in range(7): I(f"s_mul_i32 s{sKW+g}, s{sKX+g}, {172032//128}")
I(f"""s_mul_i32 s{sWB}, s{sH}, 56
s_mul_i32 s{sD}, s{sW}, 43008
s_add_u32 s{sWB}, s{sWB}, s{sD}
s_mul_i32 s{sWQ}, s{sHQ}, 56
s_add_u32 s{sWQ}, s{sWQ}, s{sD}
s_add_u32 s{sWB}, s{sWB}, 896
s_lshl_b32 s{sWM}, s{sW}, 10""")
_m0 = _m1 if MORE else len(P.items)
I(f"""s_lshl_b32 s{sA}, s{sH}, 4
s_add_u32 s{sA}, s{sA}, s{sT}
s_mul_i32 s{sA}, s{sA}, 4608
s_add_u32 s{sA}, s{sA}, {WS_PART}
s_add_u32 s{sPST}, s{sA}, s{sWM}
s_lshl_b32 s{sD}, s{sW}, 7
s_add_u32 s{sA}, s{sA}, s{sD}
s_add_u32 s{sPCK}, s{sA}, 4096
s_lshl_b32 s{sA}, s{sT}, 2
s_add_u32 s{sA}, s{sA}, s{sW}
s_lshl_b32 s{sA}, s{sA}, 15
s_lshl_b32 s{sB}, s{sHQ}, 11
s_add_u32 s{sA}, s{sA}, s{sB}
s_add_u32 s{sOST}, s{sA}, {WS_O}
s_lshl_b32 s{sA}, s{sT2}, 2
s_lshl_b32 s{sB}, s{sU}, 1
s_add_u32 s{sA}, s{sA}, s{sB}
s_and_b32 s{sB}, s{sW}, 1
s_add_u32 s{sTILE}, s{sA}, s{sB}
s_mul_i32 s{sA}, s{sA}, {32*896}
s_lshl_b32 s{sB}, s{sC}, 7
s_add_u32 s{sA}, s{sA}, s{sB}
s_mul_i32 s{sD}, s{sW}, {16*896}
s_add_u32 s{sXRB}, s{sA}, s{sD}
s_mul_i32 s{sA}, s{sTILE}, {32*896}
s_add_u32 s{sA}, s{sA}, s{sB}
s_lshr_b32 s{sB}, s{sW}, 1
s_lshl_b32 s{sB}, s{sB}, 6
s_add_u32 s{sOUT}, s{sA}, s{sB}
s_mul_i32 s{sP}, s{sHQ}, {16*4608}
s_add_u32 s{sP}, s{sP}, {WS_PART}""")
deferred = P.items[_m0:]; del P.items[_m0:]
WPK, WPQ, WPT = 192, 200, 208
vWPA, vWPB, vKVX, vIMW, vKA, vKB, vFPD, vFPC, vWO0, vWO1, vXRD0, vXRD1, vXRR, vWOR = range(128, 142)
I(f"""v_lshrrev_b32 v3, 5, v1
v_bfe_u32 v11, v1, 3, 2
v_lshl_add_u32 v11, v11, 2, v8
v_bfe_u32 v12, v1, 2, 1
v_mul_u32_u24 v12, 14, v12
v_min_u32 v13, 13, v11
v_add_u32 v13, v13, v12
v_lshlrev_b32 v13, 1, v13
v_mul_u32_u24 v14, 224, v3
v_add_u32 v{vWPA}, v13, v14
v_lshl_add_u32 v{vWPB}, v3, 20, v{vWPA}
v_and_b32 v9, 31, v1
v_lshlrev_b32 v240, 7, v9
v_bfe_u32 v10, v1, 1, 3
v_xor_b32 v10, v10, v3
v_lshl_add_u32 v240, v10, 4, v240
v_add_u32 v240, s{sXO}, v240
v_xor_b32 v241, 32, v240
v_xor_b32 v242, 64, v240
v_xor_b32 v243, 96, v240
v_mov_b32 v250, 0
v_mov_b32 v251, 0""")
_m2 = len(P.items)
I(f"""v_lshlrev_b32 v2, 4, v1
v_lshlrev_b32 v4, 2, v1
v_add_u32 v12, v12, v11
v_cmp_gt_u32 vcc, 14, v11
v_lshrrev_b32 v7, 2, v1
v_mul_u32_u24 v7, 2688, v7
v_cndmask_b32 v12, 28, v12, vcc
v_and_b32 v13, 15, v12
v_lshlrev_b32 v13, 4, v13
v_lshrrev_b32 v12, 4, v12
v_lshl_add_u32 v13, v12, 3, v13
v_lshl_add_u32 v13, v3, 8, v13
v_add_u32 v{vKVX}, {L_KVX}, v13
v_lshlrev_b32 v11, 4, v8
v_min_u32 v11, 40, v11
v_add_u32 v7, v7, v11""")
_m0 = _m2 if MORE else len(P.items)
I(f"""s_lshl_b32 s{sA}, s{sW}, 5
v_add_u32 v10, s{sA}, v9
v_mul_u32_u24 v10, 208, v10
v_mul_u32_u24 v11, 96, v3
v_add_u32 v{vIMW}, v10, v11
v_lshrrev_b32 v10, 4, v1
v_bfe_u32 v15, v1, 2, 2
v_lshl_add_u32 v10, v10, 3, v15
v_mul_u32_u24 v10, 208, v10
v_and_b32 v11, 1, v1
v_mul_u32_u24 v11, 96, v11
v_add_u32 v10, v10, v11
v_bfe_u32 v11, v1, 1, 1
v_lshl_add_u32 v10, v11, 3, v10
v_add_u32 v{vKB}, {L_IMG}, v10
s_lshl_b32 s{sA}, s{sW}, 4
v_add_u32 v{vKA}, s{sA}, v{vKB}
v_add_u32 v{vFPD}, s{sWM}, v2
s_lshl_b32 s{sD}, s{sW}, 7
s_add_u32 s{sD}, s{sD}, 4096
v_lshlrev_b32 v0, 1, v1
v_add_u32 v{vFPC}, s{sD}, v0
v_lshrrev_b32 v12, 3, v1
v_mul_u32_u24 v14, 896, v12
v_and_b32 v13, 7, v1
v_xor_b32 v12, v12, v13
v_lshl_add_u32 v{vXRD0}, v12, 4, v14
v_add_u32 v{vXRD1}, {7168-1024}, v{vXRD0}
v_bfe_u32 v12, v1, 4, 1
v_lshlrev_b32 v11, 2, v12
v_xor_b32 v11, v11, v13
v_lshl_add_u32 v{vWO0}, v11, 4, v14
v_add_u32 v{vWO1}, {7168-1024}, v{vWO0}
s_and_b32 s{sA}, s{sW}, 1
s_lshl_b32 s{sA}, s{sA}, 12
s_add_u32 s{sA}, s{sA}, {L_XCH}
v_lshlrev_b32 v10, 7, v9
v_lshl_add_u32 v10, v3, 3, v10
v_add_u32 v10, s{sA}, v10
s_lshr_b32 s{sA}, s{sW}, 1
s_lshl_b32 s{sB}, s{sA}, 2
v_xor_b32 v13, s{sB}, v13
v_lshl_add_u32 v{vXRR}, v13, 4, v10
v_mad_u32_u24 v10, v3, 14, v15
v_lshlrev_b32 v10, 7, v10
v_bfe_u32 v13, v1, 3, 1
v_xor_b32 v13, v13, v3
v_xor_b32 v13, s{sA}, v13
v_lshl_add_u32 v10, v13, 6, v10
v_lshl_add_u32 v10, v12, 5, v10
v_lshl_add_u32 v10, v8, 3, v10
s_mul_i32 s{sA}, s{sA}, {8*28*128}
s_add_u32 s{sA}, s{sA}, {L_WO}
v_add_u32 v{vWOR}, s{sA}, v10
v_lshl_add_u32 v11, v3, 3, v15
v_lshlrev_b32 v11, 6, v11
v_lshl_add_u32 v12, v12, 2, v8
v_cmp_lt_u32 vcc, 5, v12
v_xor_b32 v13, 1, v12
v_cndmask_b32 v12, v12, v13, vcc
v_lshl_add_u32 v11, v12, 3, v11
v_add_u32 v13, {L_WK}, v11""")
I(f"""v_bfe_u32 v10, v1, 2, 1
v_bfe_u32 v14, v1, 4, 1
v_lshl_add_u32 v10, v14, 1, v10
v_cmp_eq_u32 vcc, v10, v3
v_and_b32 v10, 1, v1
v_lshlrev_b32 v10, 4, v10
v_mov_b32 v14, 0x3f80
v_lshlrev_b32 v10, v10, v14
v_cndmask_b32 v10, 0, v10, vcc
v_bfe_u32 v14, v1, 3, 1
v_bfe_u32 v15, v1, 1, 1
v_lshl_add_u32 v14, v14, 1, v15""")
for q in range(4): I(f"v_cmp_eq_u32 vcc, {q}, v14\nv_cndmask_b32 v15, 0, v10, vcc\nv_accvgpr_write_b32 a{220+q}, v15")
I("v_add_u32 v9, 896, v7")
deferred += P.items[_m0:]; del P.items[_m0:]
NDEF0 = opt("ndef0", 0)
P.add(deferred[:NDEF0]); deferred = deferred[NDEF0:]
L2N = 0
if L2N:
    I(f"""s_mov_b32 s{sCt}, 0x60504020
s_cmp_ge_u32 s{sH}, 8
s_cselect_b32 s{sCt}, 0x53020100, s{sCt}
s_and_b32 s{sD}, s{sH}, 7
s_lshl_b32 s{sD}, s{sD}, 2
s_lshr_b32 s{sCt}, s{sCt}, s{sD}
s_and_b32 s{sCt}, s{sCt}, 15
s_and_b32 s{sD}, s{sT}, 3
s_mul_i32 s{sD}, s{sD}, 7
s_add_u32 s{sCt}, s{sCt}, s{sD}
s_lshl_b32 s{sCt}, s{sCt}, 2
s_add_u32 s{sCt}, s{sCt}, s{sW}
s_mul_i32 s66, s{sCt}, 14336
s_add_u32 s81, s66, 57344
s_lshl_b32 s{sD}, s{sH}, 1
s_lshr_b32 s{sD}, 0xa111444a, s{sD}
s_and_b32 s{sD}, s{sD}, 3
s_cmp_ge_u32 s{sD}, 1
s_cselect_b32 s66, s66, 0x10000000
s_cmp_ge_u32 s{sD}, 2
s_cselect_b32 s81, s81, 0x10000000
v_add_u32 v143, 7168, v6""")
def l2n(k): return mk(f"s_mov_b32 exec_hi, 0xffffff\nbuffer_load_dword v{142}, v{6 if k % 2 == 0 else 143}, {W1}, s{66 if k < 2 else 81} offen\ns_mov_b32 exec_hi, -1")
stamp("setup done", "p")
def wphi(dst, tmp, so):
    q = []
    for t in range(2):
        for j in range(8):
            d = 16 * t + 8 * (j >> 2) + (j & 3)
            av = vWPB if (t == 1 and j >= 4) else vWPA
            r = (dst if j % 2 == 0 else tmp) + 4 * t + j // 2
            op = "buffer_load_short_d16" if j % 2 == 0 else "buffer_load_short_d16_hi"
            q += mk(f"{op} v{r}, v{av}, {WPHI}, s{so} offen offset:{d*56}")
    return q
def wkdma(g): return flat(dmag([7], WQKV, sWB, f"s{sKW+g}", sWM, L_WK + 4096*g, f"wk{g}"))
def wvdma(g): return flat(dmag([9], WQKV, sWB, f"s{sKW+g}", sWM, L_WV + 4096*g, f"wv{g}"))
def wqdma(g): return flat(dmag([7], WQKV, sWQ, f"s{sKW+g}", sWM, L_WQ + 4096*g, f"wq{g}"))
if opt("fake", 0):
    I(f"""v_mov_b32 v7, v2
v_add_u32 v9, 24576, v2
s_mul_i32 s{sWB}, s{sH}, 73728
s_add_u32 s{sWB}, s{sWB}, s{sWM}
s_mul_i32 s{sWQ}, s{sHQ}, 73728
s_add_u32 s{sWQ}, s{sWQ}, s{sWM}
s_add_u32 s{sWQ}, s{sWQ}, 45056""")
    for g in range(7): I(f"s_lshl_b32 s{sKW+g}, s{sKX+g}, 5")
XF = 16
NX0 = opt("nx0", 3)
if opt("wt1", 0): P.add(wtouch(opt("wt1", 0), 249))
WPP = opt("wpp", 1)
if WPP == 1: P.add(wphi(WPK, WPT, 66) + wphi(WPQ, WPT+8, 81))
for g in range(NXE, NX0): P.add(xdma(g))
if WPP == 2: P.add(wphi(WPK, WPT, 66) + wphi(WPQ, WPT+8, 81))
pend = [xdma(g) for g in range(NX0, 7)]
wkl = [wkdma(g) for g in range(7)]
if TM and TM < NX0: P.add(sm_ld)
elif TM: pend[TM - NX0] = pend[TM - NX0] + sm_ld
if opt("wt2", 0): pend[-1] = pend[-1] + wtouch(opt("wt2", 0), 248)
pend.append(wkl.pop(0) + (wphi(WPK, WPT, 66) if not WPP else []))
pend.append(wkl.pop(0) + (wphi(WPQ, WPT+8, 81) if not WPP else []))
while len(pend) < 7: pend.append(wkl.pop(0))
def xrd(g): return flat([mk(f"ds_read_b128 {v(XF+16*g+4*e,4)}, v{240+e} offset:{4096*g}") for e in range(4)])
_n = opt("ndefx", 0)
while 0 < _n < len(deferred) and deferred[_n-1].op.startswith("s_cmp"): _n += 1
P.add(deferred[:_n]); deferred = deferred[_n:]
P.wait("x0"); P.add(xrd(0))
for g in range(7):
    if pend: P.add(pend.pop(0))
    if g + 1 < 7: P.wait(f"x{g+1}"); P.add(xrd(g + 1))
    for i in range(16):
        r = XF + 16*g + i
        I(f"v_dot2c_f32_bf16 v250, s{sONES}, v{r}\nv_dot2c_f32_bf16 v251, v{r}, v{r}")
    nd_ = -(-len(deferred) // max(1, opt("ndi", 4) - g)) if g < opt("ndi", 4) else len(deferred)
    while 0 < nd_ < len(deferred) and deferred[nd_-1].op.startswith("s_cmp"): nd_ += 1
    P.add(deferred[:nd_]); deferred = deferred[nd_:]
    if g == 0: stamp("x0 done", "p")
for x_ in pend: P.add(x_)
if opt("tp", 0) == 2:
    I(f"""s_mul_i32 s{sCt}, s2, {52*128}
s_mul_i32 s{sD}, s{sW}, {13*128}
s_add_u32 s{sCt}, s{sCt}, s{sD}
s_mov_b64 exec, 0x1fff
buffer_load_dword v254, v6, {W2}, s{sCt} offen
buffer_load_dword v255, v6, {W1}, s{sCt} offen
s_mov_b64 exec, -1""")
stamp("x stats done", "mp")
I(f"""v_permlane32_swap_b32 v250, v251
v_readfirstlane_b32 s{sA}, v5
s_nop 0
v_add_f32 v250, v250, v251
v_mul_f32 v250, {fhex(-1/448)}, v250
v_mov_b32 v251, v250
s_or_b32 s{sA}, s{sA}, 1
s_mul_i32 s{sA}, s{sA}, 0x9E3779B5
v_mov_b32 v5, s{sA}
s_mov_b32 s{sA}, 0x3f80
v_permlane32_swap_b32 v250, v251
s_mov_b32 s{sB}, 0x3f800000""")
fin = mk(f"""v_fma_f32 v251, -v250, v250, -v251
v_max_f32 v251, 0, v251
v_add_f32 v251, 0x3727c5ac, v251
v_rsq_f32 v251, v251
s_lshl_b32 s{sQ}, s{sC}, 7
s_mul_i32 s{sD}, s{sW}, {16*896}
v_mul_f32 v252, 0x3fb8aa3b, v251
v_mul_f32 v253, 0xbfb8aa3b, v251
s_add_u32 s{sQ}, s{sQ}, s{sD}
s_lshl_b32 s{sXO}, s{sW}, 11""")
if opt("noid", 1): fin = [mk(f"s_cmp_ge_u32 s{sRact}, 14\ns_cselect_b32 s22, 0, s22")] + fin
ACK = 144; ACV = 160; PK = 176; IMG = 208; TMP = 232
def norm(t):
    q = Prog(); tb = TMP + 8 * (t & 1)
    for i in range(4):
        r = XF + 4 * t + i
        q.I(f"v_dot2_f32_bf16 v{tb+2*i}, v{r}, s{sA}, v250\nv_dot2_f32_bf16 v{tb+2*i+1}, v{r}, s{sB}, v250")
    return q.items
def normc(t):
    tb = TMP + 8 * (t & 1)
    return flat([mk(f"v_cvt_pk_bf16_f32 v{XF+4*t+i}, v{tb+2*i}, v{tb+2*i+1}") for i in range(4)])
def l2t(srd, k, dst):
    return mk(f"""s_lshr_b32 s{sCt}, s2, 3
s_lshl_b32 s{sCt}, s{sCt}, 2
s_add_u32 s{sCt}, s{sCt}, s{sW}
s_mul_i32 s{sCt}, s{sCt}, {98*128}
s_mov_b32 exec_hi, 0x1ffff
s_add_u32 s{sCt}, s{sCt}, {k*49*128}
buffer_load_dword v{dst}, v6, {srd}, s{sCt} offen
s_mov_b32 exec_hi, -1""")
L2A, L2B = opt("l2a", -1), opt("l2b", -1)
touch = mk(f"""s_mul_i32 s{sCt}, s2, {52*128}
s_mul_i32 s56, s{sW}, {13*128}
s_add_u32 s{sCt}, s{sCt}, s56
s_mov_b64 exec, 0x1fff
buffer_load_dword v255, v6, {W1}, s{sCt} offen
buffer_load_dword v254, v6, {W2}, s{sCt} offen
s_mov_b64 exec, -1""")
TP = opt('tp', 0)
ns = norm(0)
for t in range(1, 28): ns += norm(t) + normc(t - 1)
ns += normc(27)
NBAR = opt("nbar", 100)
wvl = [wvdma(k) for k in range(7)]
if opt("loop2", 0):
    I("s_mov_b32 s80, 0\nL_lp2:\ns_mov_b32 s101, s100\ns_memtime s[78:79]\ns_waitcnt lgkmcnt(0)\ns_mov_b32 s99, s78")
    P.add([Ins(x.text) for x in ns])
    I("s_memtime s[78:79]\ns_waitcnt lgkmcnt(0)\ns_sub_u32 s100, s78, s99\ns_add_u32 s100, s100, s88\ns_add_u32 s80, s80, 1\ns_cmp_lt_u32 s80, 2\ns_cbranch_scc1 L_lp2")
    nstamp[0] = 14
P.add(sprinkle(ns[:NBAR], wkl, 0, opt("wkstep", 30)))
if opt("touch", 1) and TP == 1: P.add(touch)
I("s_barrier")
NWV0 = opt("nwv0", 4)
w0_ = [wvl.pop(0) for _ in range(NWV0)]
if L2N == 1: w0_[0] = l2n(0) + w0_[0]; w0_[-1] = w0_[-1] + l2n(2); wvl[-1] = wvl[-1] + l2n(1)
if L2N == 2: wvl[-1] = wvl[-1] + l2n(0) + l2n(2)
P.add(sprinkle(ns[NBAR:], w0_, opt("wv0", 30), opt("wvstep", 50)))
P.wait(*[f"wk{k}" for k in range(7)]); I("s_barrier")
stamp("wk landed", "p")
if opt("zy", 0): I(f"s_sleep {opt('zy', 0)}")
AH = 6
sW1B, sW1M, sW2E, sW2L = 40, 41, 42, 43
set2 = mk(f"""v_lshrrev_b32 v10, 4, v1
v_mul_u32_u24 v12, 3584, v10
v_lshlrev_b32 v10, 2, v10
v_and_b32 v13, 15, v1
v_xor_b32 v10, v10, v13
v_lshl_add_u32 v12, v10, 4, v12
v_add_u32 v13, {4*3584-1024}, v12
v_add_u32 v14, {2*(4*3584-1024)}, v12
v_add_u32 v15, {3*(4*3584-1024)}, v12
s_lshl_b32 s{sW1B}, s{sR}, 8
s_mul_i32 s{sD}, s{sW}, {16*3584}
s_add_u32 s{sW1B}, s{sW1B}, s{sD}
s_lshl_b32 s{sW1M}, s{sW}, 12
s_lshr_b32 s{sA}, s{sW}, 1
s_lshl_b32 s{sA}, s{sA}, 2
s_andn2_b32 s{sB}, 1, s{sW}
s_add_u32 s{sA}, s{sA}, s{sB}
s_lshl_b32 s{sB}, s{sU}, 1
s_add_u32 s44, s{sA}, s{sB}
s_xor_b32 s45, s44, 2
s_lshl_b32 s{sD}, s{sC}, 7
s_mul_i32 s{sW2E}, s44, {32*896}
s_add_u32 s{sW2E}, s{sW2E}, s{sD}
s_mul_i32 s{sW2L}, s45, {32*896}
s_add_u32 s{sW2L}, s{sW2L}, s{sD}
""")
vW2 = [vWO0, vWO1, 128, 129]
sSCR, sBIG = 46, 47
NA = opt("na", 0)
NUR = opt("nur", 2); NT1 = min(NA, opt("nt1", 99))
_u = list(range(14))
def take(n): return [_u.pop(0) for _ in range(min(n, len(_u)))]
UAW = take(NA); UR = take(NUR); UD = take(opt("nud", 2)); UE = take(3); UL = take(opt("nrl", 3)); UP = take(99)
assert all(j >= 7 for j in UL + UP) and all(j >= 4 for j in UE)
RAWS = UAW + UR + UL
def UA(j): return 16*j
def w2slot(j):
    if j in UE: return (sSCR, 4096*UE.index(j), 254)
    if j in UAW + UR + UD: return (sSCR, 4096*(j & 1), 254)
    return (sBIG, 4096*(UL + UP).index(j), 252)
def w2dma(j):
    mb, mo, _ = w2slot(j)
    return dmag(vW2, W2, sW2E if j < 7 else sW2L, (j%7)*256*896, mb, mo, f"w2_{j}", sDM)
def w2raw(j):
    ch = [mk(f"buffer_load_dwordx4 {a_(UA(j)+4*q,4)}, v{vW2[q]}, {W2}, s81 offen offset:{1024*q}") for q in range(4)]
    ch[0] = mk(f"s_add_u32 s81, s{sW2E if j < 7 else sW2L}, {(j%7)*256*896}") + ch[0]
    return ch
def w2rd(j):
    _, mo, av = w2slot(j)
    if j in RAWS: out = [mk(f"ds_write_b128 v{131 if j in UL else 134}, {a_(UA(j)+4*q,4)} offset:{mo+1024*q}") for q in range(4)]
    else: out = [[WaitTag([f"w2_{j}"])]]
    for e in range(2):
        for mu in range(2):
            for u in range(2): out.append(mk(f"ds_read_b64_tr_b16 {a_(UA(j)+8*e+4*mu+2*u,2)}, v{av+mu} offset:{mo+2048*e+1024*u}"))
    return out
raw = flat([w2raw(j) for j in UR])
rawA = flat([w2raw(j) for j in UAW])
if opt("noid", 1): set2 = [mk(f"s_cmp_ge_u32 s{sRact}, 14\ns_cselect_b32 s26, 0, s26")] + set2
set2 += mk(f"v_add_u32 v128, {2*(7168-1024)}, v{vWO0}\nv_add_u32 v129, {3*(7168-1024)}, v{vWO0}")
set2b = [x for x in set2 if isinstance(x, Ins) and x.cls == 'valu' and x.defs[0][1] < 128]
if opt("trim", 1):
    set2 = [mk(f"""s_cmp_eq_u32 s{sW}, 3
s_cselect_b64 vcc, {sHI}, 0
v_mov_b32 v143, 0x10000000
v_add_u32 v133, s{sWM}, v2
v_cndmask_b32 v142, v5, 0, vcc
v_cndmask_b32 v{vFPD}, v{vFPD}, v143, vcc
v_cndmask_b32 v{vFPC}, v{vFPC}, v143, vcc""")] + set2
set2b = [x for x in set2 if isinstance(x, list)] + set2b
set2a = [x for x in set2 if x not in set2b]
pro, gk = gemm_lds([(13, 1024*t, 1024*t + 256, (XF + 4*t, ACK, t == 0, False)) for t in range(28)], AH)
P.add(pro)
S = Sched(gk)
S.spread(wvl, 0, opt("wve", 16))
NQK = opt("nqk", 2)
S.spread([wqdma(k) for k in range(NQK)], opt("wve", 16), 28)
EARLY = opt("early", 0)
if EARLY:
    P.add(flat([x if isinstance(x, list) else [x] for x in fin + set2a])); fin = []
    wo_l = flat([dmag([vWO0, vWO1], WO, sQ, i*64*896, sXO, L_WO + 8192*i, "wo", sDM) for i in range(7)] + [dmag([vXRD0, vXRD1], X, sXRB, 0, sXO, L_XCH, "wo", sDM)])
    if EARLY == 2:
        S.spread([wo_l[2*i] + wo_l[2*i+1] for i in range(8)], 0, 28)
    else: S.spread([rawA.pop(0) for _ in range(min(len(rawA), opt("ne1", 8)))], 0, 28)
else: fin = fin + set2a
if TP == 3: S.at(opt("tpos", 22), touch)
for k, ps in enumerate((L2A, L2B)):
    if 0 <= ps < 28: S.at(ps, l2t(W1, k, 248 + k))
S.spread(fin + flat([mk(f"v_or_b32 v{WPK+q}, v{WPK+q}, v{WPT+q}\nv_or_b32 v{WPQ+q}, v{WPQ+q}, v{WPT+8+q}") for q in range(8)]), 2, 26)
P.add(S.emit())
def phi_pre(acc, wp):
    q = Prog()
    for i in range(8): q.I(f"v_cvt_pk_bf16_f32 v{acc+i}, v{acc+2*i}, v{acc+2*i+1}")
    q.I(f"{MF} {v(PK,16)}, {v(wp,4)}, {v(acc,4)}, 0\n{MF} {v(PK,16)}, {v(wp+4,4)}, {v(acc+4,4)}, {v(PK,16)}")
    return q.items
stamp("k gemm done", "mp")
wql = [wqdma(k) for k in range(NQK, 7)]
P.add(wql.pop(0))
P.add(phi_pre(ACK, WPK))
imw = flat([mk(f"ds_write_b128 v{vIMW}, {v(IMG+4*i,4)} offset:{L_IMG+16*i}") for i in range(3)]) + mk(f"ds_write_b64 v{vIMW}, {v(IMG+12,2)} offset:{L_IMG+48}")
smk = sprinkle(softmax(PK, TMP, IMG, True), [wql.pop(0) for _ in range(min(len(wql), opt("nwq0", 3)))], 10, opt("wqs", 40))
if EARLY: smk = sprinkle(smk, [rawA.pop(0) for _ in range(min(len(rawA), opt("ne2", 8)))], 5, 16)
WEAVE = opt("weave", 1)
pro, gv = gemm_lds([(11, L_WV + 1024*t, L_WV + 1024*t + 256, (XF + 4*t, ACV, t == 0, False)) for t in range(28)], AH)
S = Sched(gv)
if not WEAVE:
    P.add(smk)
    P.wait(*[f"wv{k}" for k in range(7)]); I("s_barrier")
    stamp("softmax k done", "p")
    P.add(pro)
    S.spread(imw, 2, 10)
else:
    smf = softmax(PK, TMP, IMG, 2)
    n0 = next(i for i, x in enumerate(smf) if x.op == "v_exp_f32")
    P.wait(*[f"wv{k}" for k in range(4)]); I("s_barrier")
    P.add(pro)
    P.add(smf[:n0])
    stamp("softmax k done", "p")
    S.spread(smf[n0:] + imw, 0, 28)
    S.at(15 - AH, [WaitTag(["wv4", "wv5", "wv6"])] + mk("s_barrier"), 1.0)
    wql = [wqdma(k) for k in range(NQK + 1, 7)]
wo_l = flat([dmag([vWO0, vWO1], WO, sQ, i*64*896, sXO, L_WO + 8192*i, "wo", sDM) for i in range(7)] + [dmag([vXRD0, vXRD1], X, sXRB, 0, sXO, L_XCH, "wo", sDM)])
if EARLY == 2: wo_l = []
S.spread(wql, 0, opt('wqe', 10))
if EARLY: S.spread([rawA.pop(0) for _ in range(min(len(rawA), opt("ne3", 8)))], 0, 22)
if L2A >= 0 or L2N: touch = [x for x in touch if W1 not in x.text]
if L2N == 1: S.at(opt("l2p", 14), l2n(3))
if L2N == 2: S.at(opt("l2p", 14), l2n(1) + l2n(3))
tlb = []
if opt("tlb", 0) & 1: tlb += mk(f"s_mov_b64 exec, 1\nbuffer_load_dword v248, v6, {OUT}, s{sOUT} offen\ns_mov_b64 exec, -1")
if opt("tlb", 0) & 2: tlb += mk(f"v_lshlrev_b32 v249, 20, v1\ns_mov_b64 exec, 0xffff\nbuffer_load_dword v249, v249, {WS}, 0 offen offset:4092\ns_mov_b64 exec, -1")
if tlb: S.at(opt("tlbp", 13), tlb)
if opt("touch", 1) and TP == 0: S.at(opt("tpos", 11), touch)
for k, ps in enumerate((L2A, L2B)):
    if 200 <= ps < 228: S.at(ps - 200, l2t(W1, k, 248 + k))
S.spread([wo_l.pop(0) for _ in range(2*opt("nwo0", 0))], opt("wos", 17), opt("woe2", 28))
P.add(S.emit())
for k in range(0, 16, 2): I(f"v_pk_mul_f32 {v(ACV+k,2)}, {v(ACV+k,2)}, v[250:251] op_sel:[0,1] op_sel_hi:[1,1]")
I(f"v_cndmask_b32 v{ACV+12}, v{ACV+12}, 1.0, {sHI}")
for i in range(8): I(f"v_cvt_pk_bf16_f32 v{IMG+16+i}, v{ACV+2*i}, v{ACV+2*i+1}")
for i in range(4, 6): I(f"ds_write_b128 v{vIMW}, {v(IMG+4*i,4)} offset:{L_IMG+16*i}")
P.wait("wq0", "wq1", "wq2", "wq3")
I("s_waitcnt lgkmcnt(0)\ns_barrier")
stamp("img written", "p")
KA = 144; KBv = 208; KD = 176
for k in range(4):
    for u in range(2):
        I(f"ds_read_b64_tr_b16 {v(KA+4*k+2*u,2)}, v{vKA} offset:{(32*k+4*u)*208}")
    for nu in range(2):
        for u in range(2):
            I(f"ds_read_b64_tr_b16 {v(KBv+8*k+4*nu+2*u,2)}, v{vKB} offset:{(32*k+4*u)*208+64+16*nu}")
proq, gq = gemm_lds([(11, L_WQ + 1024*t, L_WQ + 1024*t + 256, (XF + 4*t, ACV, t == 0, False)) for t in range(28)], AH)
for k in range(4):
    for nu in range(2):
        I(f"v_mfma_f32_16x16x32_bf16 {v(KD+4*nu,4)}, {v(KA+4*k,4)}, {v(KBv+8*k+4*nu,4)}, {'0' if k == 0 else v(KD+4*nu,4)}")
P.add(proq[:8])
for i in range(4): I(f"v_cvt_pk_bf16_f32 v{KD+8+i}, v{KD+2*i}, v{KD+2*i+1}")
I(f"buffer_store_dwordx4 {v(KD+8,4)}, v2, {WS}, s{sPST} offen sc1")
I(f"v_xor_b32 v10, v{KD+8}, v5")
I(f"buffer_store_short v10, v0, {WS}, s{sPCK} offen sc1")
if GATE & 1: P.add(flag_store(16))
P.add(proq[8:])
stamp("partial stored", "mp")
S = Sched(gq)
ROTP = opt("rotp", 1)
if ROTP:
    rp = []
    for b in range(4): rp += mk(f"s_lshr_b32 s{50+b}, s{sT}, 2\ns_add_u32 s{50+b}, s{50+b}, {b}\ns_and_b32 s{50+b}, s{50+b}, 3\ns_mul_i32 s{50+b}, s{50+b}, {4*4608}\ns_add_u32 s{50+b}, s{50+b}, s{sP}")
    S.spread(rp, 4, 20)
bgA = wo_l + rawA
nq = min(len(bgA), opt("nq", 16))
S.spread(bgA[:nq], 0, 28)
S.spread(set2b, 2, 18)
G0 = gate("g0", vPO, vPF)
if GATE & 1: S.at(opt("g0", 14), G0.load(0))
S.at(15 - AH, [WaitTag(["wq4", "wq5", "wq6"])] + mk("s_barrier"), 1.0)
P.add(S.emit())
stamp("q gemm done", "p")
G = 16; GC = 80; SA = 96
FP = Fetch("fp", [([f"s_add_u32 s{sCt}, s{50 + (T >> 2) if ROTP else sP}, {4608*(T & 3 if ROTP else T)}\nbuffer_load_dwordx4 {v(G+4*T,4)}, v{vFPD}, {WS}, s{sCt} offen sc1\nbuffer_load_ushort v{GC+T}, v{vFPC}, {WS}, s{sCt} offen sc1"],
                   [G+4*T, GC+T]) for T in range(16)])
NFE = opt("nfe", 0)
for T in range(NFE): P.add(FP.load(T))
P.add(phi_pre(ACV, WPQ))
I("s_barrier")
PQ = 208
smq = softmax(PK, TMP, PQ, True); f0 = opt("fp0", 60)
P.add(sprinkle(smq[:f0], bgA[nq:], 0, opt("as", 8)))
P.add(sprinkle(smq[f0:], [FP.load(T) for T in range(NFE, 16)], 0, opt("fpstep", 4)))
stamp("softmax q done", "p")
w1_l = flat([dmag([12, 13, 14, 15], W1, sW1B, i*64*3584, sW1M, 16384*i, "w1", sDM) for i in range(7)])
def fpb(b):
    t = []
    for k, T in enumerate(range(4*b, 4*b+4)):
        t.append(f"v_bitop3_b32 v{10 if k == 0 else 9}, v{G+4*T}, v{GC+T}, v{142 if opt('trim', 1) else 5} {X3}" + ("" if k == 0 else "\nv_or_b32 v10, v10, v9"))
    return "\n".join(t) + "\nv_cmp_ne_u16 vcc, 0, v10"
RI = TAIL.I if (opt("ool", 15) & 1) else I
if not (opt("ool", 15) & 1): I("s_branch L_fp_go")
RI("L_fp_retry:" + ("\ns_add_u32 s80, s80, 1" if DIAG else ""), unc=True)
for b in range(4):
    RI(fpb(b) + f"\ns_cbranch_vccz L_fp_k{b}\n" + "\n".join(FP.pieces[T][0][0] for T in range(4*b, 4*b+4)) + f"\nL_fp_k{b}:", unc=True)
RI(GUARD, unc=True)
if (opt("ool", 15) & 1): RI("s_branch L_fp_go", unc=True)
I("L_fp_go:")
I(fpb(0) + "\ns_cbranch_vccnz L_fp_retry")
S = Sched([mk(f"{MF} {v(SA,16)}, a[220:223], {v(G+4*T,4)}, {'0' if T == 0 else v(SA,16)}") for T in range(16)])
for b in range(1, 4): S.spread(mk(fpb(b) + "\ns_cbranch_vccnz L_fp_retry"), 4*b - 3, 4*b)
S.spread([w1_l.pop(0) for _ in range(opt("nw1a", 2))], 12, 16)
P.add(S.emit())
I(f"v_add_u32 v9, {L_KVX}, v{133 if opt('trim', 1) else vFPD}")
for i in range(4): I(f"v_cvt_pk_bf16_f32 v{SA+8+i}, v{SA+2*i}, v{SA+2*i+1}")
I(f"ds_write_b128 v9, {v(SA+8,4)}\ns_waitcnt lgkmcnt(0)\ns_barrier")
stamp("kv summed", "mp")
KVA = 32; OD = 48
for q in range(7): I(f"ds_read_b64 {v(KVA+2*q,2)}, v{vKVX} offset:{512*q}")
P.add(w1_l.pop(0))
for s in range(3):
    I(f"{MF} {v(OD,16)}, {v(KVA+4*s,4)}, {v(PQ+4*s,4)}, {'0' if s == 0 else v(OD,16)}")
    if s == 1: P.add(w1_l.pop(0))
I(f"v_mfma_f32_32x32x8_bf16 {v(OD,16)}, {v(KVA+12,2)}, {v(PQ+12,2)}, {v(OD,16)}")
I(f"""s_lshl_b32 s{sP}, s{sTILE}, 15
s_lshr_b32 s{sB}, s{sW}, 1
s_lshl_b32 s{sB}, s{sB}, 14
s_add_u32 s{sP}, s{sP}, s{sB}
s_add_u32 s{sP}, s{sP}, {WS_O}
s_add_u32 s{sA}, s{sW1M}, {L_XCH}
v_add_u32 v132, s{sA}, v2
v_xor_b32 v133, 8192, v132
v_xor_b32 v9, 64, v{vWOR}
v_and_b32 v7, 31, v1
v_mul_u32_u24 v7, 896, v7
v_add_f32 v{OD+14}, 0x358637bd, v{OD+14}
v_rcp_f32 v{OD+14}, v{OD+14}
v_lshl_add_u32 v7, v3, 4, v7""")
for k in range(0, 14, 2): I(f"v_pk_mul_f32 {v(OD+k,2)}, {v(OD+k,2)}, {v(OD+14,2)} op_sel_hi:[1,0]")
for k in range(4): I(f"v_cvt_pk_bf16_f32 v{64+k}, v{OD+2*k}, v{OD+2*k+1}")
I(f"buffer_store_dwordx4 v[64:67], v2, {WS}, s{sOST} offen sc1")
for k in range(4, 7): I(f"v_cvt_pk_bf16_f32 v{64+k}, v{OD+2*k}, v{OD+2*k+1}")
I(f"""v_bitop3_b32 v71, v64, v5, s{sMASK} bitop3:0x28
v_and_b32 v6, s{sMASK}, v5
buffer_store_dwordx4 v[68:71], v2, {WS}, s{sOST} offen offset:1024 sc1""")
if GATE & 2: P.add(flag_store(7))
stamp("o stored", "mo")
P.wait("wo")
I(f"s_cmp_ge_u32 s{sRact}, 14\ns_cbranch_scc1 L_idle\ns_barrier")
wor = []
for s in range(16):
    hh, e = s >> 1, s & 1
    for k, av in ((0, vWOR), (1, 9)):
        for u in range(2):
            wor += mk(f"ds_read_b64_tr_b16 {a_(128+8*s+4*k+2*u,2)}, v{av} offset:{(28*hh+8*e+4*u)*128}")
XR = 224
xrr = []
for i in range(4): xrr += mk((f"v_xor_b32 v10, {16*i}, v{vXRR}\n" if i else "") + f"ds_read_b64 {v(XR+2*i,2)}, v{10 if i else vXRR}")
P.add(xrr)
G1 = gate("g1", vPO, vPF)
nb_ = min(opt("nw1b", 16), len(w1_l) - 8)
wor = sprinkle(wor, [w1_l.pop(0) for _ in range(nb_)], 0, opt("w1bs", 4))
if GATE & 2: wor = sprinkle(wor, [G1.load(0)], opt("g1", 40), 1)
P.add(wor)
OB = 16
FO = Fetch("fo", [([f"s_add_u32 s{sCt}, s{sP}, {2048*hh}\nbuffer_load_dwordx4 {v(OB+8*hh,4)}, v2, {WS}, s{sCt} offen sc1\nbuffer_load_dwordx4 {v(OB+8*hh+4,4)}, v2, {WS}, s{sCt} offen offset:1024 sc1"],
                   [OB+8*hh, OB+8*hh+7]) for hh in range(8)], masked=True, nre=opt('reo', 2))
stamp("pre o fetch", "o")
AO, AT = 80, 96
set3 = mk(f"""s_mul_i32 s{sSCR}, s{sW}, 12288
s_mul_i32 s{sBIG}, s{sW}, 28672
v_add_u32 v131, s{sBIG}, v2
s_lshl_b32 s{sB}, s{sC}, 1
s_lshr_b32 s{sD}, s{sW}, 1
s_add_u32 s{sB}, s{sB}, s{sD}
s_mul_i32 s{sA}, s{sTILE}, 14
s_add_u32 s{sB}, s{sB}, s{sA}
s_mul_i32 s{sPST}, s{sB}, 2432
s_add_u32 s{sPST}, s{sPST}, {WS_H}
s_lshr_b32 s48, s{sW}, 1
s_nop 0
v_bfe_u32 v9, v1, 2, 2
v_lshl_add_u32 v240, v3, 2, v9
v_lshlrev_b32 v254, 7, v240
v_lshlrev_b32 v240, 8, v240
v_xor_b32 v9, s{sW}, v9
v_lshl_add_u32 v240, v9, 6, v240
v_bfe_u32 v9, v1, 4, 1
v_lshlrev_b32 v9, 5, v9
v_lshl_add_u32 v9, v8, 3, v9
v_add_u32 v240, v240, v9
v_add_u32 v254, v254, v9
v_bfe_u32 v9, v1, 3, 1
v_xor_b32 v9, s48, v9
v_lshl_add_u32 v254, v9, 6, v254
s_add_u32 s{sSCR}, s{sSCR}, {L_SCR}
v_add_u32 v252, s{sBIG}, v254
v_xor_b32 v253, 64, v252
v_add_u32 v254, s{sSCR}, v254
v_add_u32 v134, s{sSCR}, v2
v_xor_b32 v255, 64, v254
v_xor_b32 v241, 64, v240
v_xor_b32 v242, 128, v240
v_xor_b32 v243, 192, v240""") + flat([mk(f"v_add_u32 v{244+m}, 57344, v{240+m}") for m in range(4)])
pre2 = []
for i in range(8): pre2 += mk(f"v_lshlrev_b32 v{112+2*i}, 16, v{XR+i}\nv_and_b32 v{113+2*i}, s{sHIM}, v{XR+i}")
for s in range(1, 16, 2): pre2 += mk(f"v_accvgpr_write_b32 a{128+8*s+3}, 0\nv_accvgpr_write_b32 a{128+8*s+7}, 0")
if GATE & 2:
    P.add(pre2); P.add(G1.check(0, 0))
    stamp("gate1", "o")
    for hh in range(8): P.add(FO.load(hh))
else:
    P.add(pre2[16:]); P.add(set3)
    I("s_waitcnt lgkmcnt(0)\ns_barrier")
    P.add(sprinkle(flat(flat([w2rd(j) for j in UAW[:NT1]])), [w1_l.pop(0) for _ in range(min(len(w1_l), opt("nw1s", 4)))], 0, 8))
    stamp("shadow done", "o")
    P.add(sprinkle(pre2[:16], [FO.load(hh) for hh in range(8)], 0, 2))
I("s_waitcnt lgkmcnt(0)\ns_barrier")
stamp("fo issued", "o")
g2 = []
for s in range(16):
    for k, acc in ((1, AT), (0, AO)):
        c = ("0" if k else v(112,16)) if s == 0 else v(acc,16)
        g2.append(mk(f"{MF} {v(acc,16)}, {a_(128+8*s+4*k,4)}, {v(OB+4*s,4)}, {c}"))

P.add(FO.check(0, 7))
stamp("fo0", "o")
S = Sched(g2)
for hh in range(1, 8): S.spread(FO.checkc(hh, 7), 4*hh - 3, 4*hh)
S.spread(w1_l + [raw.pop(0) for _ in range(min(len(raw), opt("rawb", 8)))], 0, 32)
P.add(S.emit())
stamp("p2 gemm done", "o")
for i in range(4): I(f"ds_write_b128 v132, {v(AT+4*i,4)} offset:{1024*i}")
I("v_mov_b32 v112, 0\nv_mov_b32 v113, 0\ns_waitcnt lgkmcnt(0)\ns_barrier")
for i in range(4): I(f"ds_read_b128 {v(AT+4*i,4)}, v133 offset:{1024*i}")
HR = XR
for k in range(0, 8, 2): I(f"v_pk_add_f32 {v(AO+k,2)}, {v(AO+k,2)}, {v(AT+k,2)}")
for i in range(4): I(f"v_cvt_pk_bf16_f32 v{HR+i}, v{AO+2*i}, v{AO+2*i+1}")
I(f"buffer_store_dwordx4 {v(HR,4)}, v2, {WS}, s{sPST} offen sc1")
for k in range(8, 16, 2): I(f"v_pk_add_f32 {v(AO+k,2)}, {v(AO+k,2)}, {v(AT+k,2)}")
for i in range(4, 8): I(f"v_cvt_pk_bf16_f32 v{HR+i}, v{AO+2*i}, v{AO+2*i+1}")
I(f"buffer_store_dwordx4 {v(HR+4,4)}, v2, {WS}, s{sPST} offen offset:1024 sc1")
for i in range(8): I(f"v_dot2c_f32_bf16 v112, s{sONES}, v{HR+i}\nv_dot2c_f32_bf16 v113, v{HR+i}, v{HR+i}")
I(f"""v_bitop3_b32 v10, v{HR}, v{HR+4}, v5 {X3}
v_permlane32_swap_b32 v112, v113
v_add_f32 v112, v112, v113
buffer_store_dword v112, v4, {WS}, s{sPST} offen offset:2048 sc1
v_xor_b32 v113, v10, v112
buffer_store_short v113, v0, {WS}, s{sPST} offen offset:2304 sc1""")
def selft(sreg, nl): return mk(f"s_mov_b64 exec, {(1 << nl) - 1}\nbuffer_load_dword v135, v134, {WS}, s{sreg} offen sc1\ns_mov_b64 exec, -1")
SELF = opt("self", 0)
if SELF & 1: P.add(selft(sPST, 20))
if GATE & 4: P.add(flag_store(14))
stamp("h stored", "moh")
HB = 16; ST = 192
ACC = [144, 160, 176, 192]; AUG = 232
set4 = mk(f"""s_lshl_b32 s{sB}, s{sT3}, 2
s_add_u32 s{sB}, s{sB}, s{sW}
s_mul_i32 s{sP}, s{sB}, {14*2432}
s_add_u32 s{sP}, s{sP}, {WS_H}
s_mul_i32 s{sA}, s{sB}, 56
s_lshl_b32 s{sD}, s{sR}, 2
s_add_u32 s{sA}, s{sA}, s{sD}
s_mul_i32 s{sQ}, s{sA}, 2176
s_add_u32 s{sQ}, s{sQ}, {WS_H1}
v_lshlrev_b32 v13, 3, v1
s_lshl_b32 s{sA}, s{sW}, 9
s_add_u32 s{sA}, s{sA}, {L_AUG}
v_add_u32 v13, s{sA}, v13
v_mov_b32 v222, 0""")
FH = Fetch("fh", [([f"s_add_u32 s{sCt}, s{sP}, {2432*p}\nbuffer_load_dwordx4 {v(HB+8*p,4)}, v2, {WS}, s{sCt} offen sc1\nbuffer_load_dwordx4 {v(HB+8*p+4,4)}, v2, {WS}, s{sCt} offen offset:1024 sc1\n"
                    f"buffer_load_dword v{ST+2*p}, v4, {WS}, s{sCt} offen offset:2048 sc1\nbuffer_load_ushort v{ST+2*p+1}, v0, {WS}, s{sCt} offen offset:2304 sc1"],
                   [HB+8*p, HB+8*p+4, ST+2*p, ST+2*p+1]) for p in range(14)], nre=opt('reh', 2))
for i in range(4): I(f"v_mov_b32 v{AUG+i}, s{sONES}")
P.wait("w1"); I("s_barrier")
stamp("w1 landed", "h")
if opt("zz", 0): I(f"s_sleep {opt('zz', 0)}")
def w1a(t, k): return (240 + k + (4 if t >= 14 else 0), (t % 14) * 4096, (t % 14) * 4096 + 2048)
st3 = [w1a(t, 0) + ((AUG, ACC[2], t == 0, True),) for t in range(28)]
TWO = opt("two", 0); N1 = 2 if TWO else 3
for t in range(28):
    for k in range(N1): st3.append(w1a(t, k) + ((HB + 4*t, ACC[k], t == 0, False),))
for t in range(28):
    for k in range(N1, 4): st3.append(w1a(t, k) + ((HB + 4*t, ACC[k], t == 0, False),))
pro, g3 = gemm_lds(st3, AH)
P.add(pro)
S3 = Sched(g3)
S3.spread(set4, 0, 8)
S3.spread(raw + flat([w2dma(j) for j in UD]), opt("c0s", 0), opt("c0e", 10)); raw = []
NH0 = opt("nh0", 4); H0 = opt("h0", 26)
G2 = gate("g2", vPO, vPF)
if GATE & 4:
    S3.at(opt("g2", 12), G2.load(0), 0.9)
    S3.at(27, G2.check(0, 0) + stampi("gate2", "h") + flat([FH.load(p) for p in range(NH0)]), 0.5)
else: S3.spread(flat([FH.loadc(p) for p in range(NH0)]), H0, 27)
cs = ACC[2]
csx = mk(f"""v_cvt_pk_bf16_f32 v{AUG}, v{cs}, v{cs}
v_lshlrev_b32 v{AUG+1}, 16, v{AUG}
v_sub_f32 v{AUG+1}, v{cs}, v{AUG+1}
v_cvt_pk_bf16_f32 v{AUG}, v{cs}, v{AUG+1}
v_and_b32 v{AUG+1}, 0xffff, v{AUG}
v_cndmask_b32 v{AUG}, v{AUG}, 0, {sHI}
v_cndmask_b32 v{AUG+1}, v{AUG+1}, 0, {sHI}
ds_write_b64 v13, {v(AUG,2)}""")
S3.at(27, stampi("colsum done", "h") + csx + FH.check(0, NH0 - 1) + stampi("fh0", "h"), 1.0)
B0 = 28
for p in range(14):
    b = B0 + 2*N1*p
    if p + NH0 < 14:
        for k_, c_ in enumerate(FH.loadc(p + NH0)): S3.at(b + ((0, 2, 1, 3) if TWO else (0, 2, 4, 4))[k_], c_, 0.2)
    S3.at(b, mk(f"v_add_f32 v222, v222, v{ST+2*p}"), 0.0)
    if p + 1 < 14: S3.spread(FH.checkc(p + 1, min(13, p + NH0 - 1)), b + 1, b + 2*N1)
    if p in (3, 7, 11): S3.at(b + 2*N1 - 1, stampi(f"fh{p+1}", "h"), 1.0)
S3.at(B0 + 14, mk("s_barrier") + flat([mk(f"v_xor_b32 v9, {512*k}, v13\nds_read_b64 {v(AUG+2*k,2)}, v9") for k in range(1, 4)]), 0.0)
mid = mk(f"""v_mul_f32 v220, {fhex(1/448)}, v222
v_mov_b32 v221, v220
s_nop 0
v_permlane32_swap_b32 v220, v221
v_fma_f32 v221, -v220, v220, v221
v_max_f32 v221, 0, v221
v_add_f32 v221, 0x3727c5ac, v221
v_rsq_f32 v251, v221
v_cvt_pk_bf16_f32 v222, -v220, -v220
v_lshlrev_b32 v9, 16, v222
v_sub_f32 v9, -v220, v9
v_cvt_pk_bf16_f32 v223, v9, 0
v_mul_f32 v250, v221, v251
v_mul_f32 v251, 0xbfb8aa3b, v251
v_cndmask_b32 v222, v222, 0, {sHI}
v_cndmask_b32 v223, v223, 0, {sHI}""")
S3.spread(mid, *((B0 + 53, B0 + 59) if TWO else (B0 + 79, B0 + 84)))
def aug(k): return mk(f"v_mfma_f32_32x32x8_bf16 {v(ACC[k],16)}, {v(AUG+2*k,2)}, v[222:223], {v(ACC[k],16)}")
SLT = 132
def silu(k, pk):
    q = Prog(); a = ACC[k]; t = 208
    q.I(f"s_xor_b32 s50, s{sW}, {k}\ns_mul_i32 s50, s50, 2176\ns_add_u32 s50, s50, s{sQ}")
    for half in range(2):
        b = a + 8 * half
        if pk:
            for j in range(0, 8, 2): q.I(f"v_pk_mul_f32 {v(t+j,2)}, {v(b+j,2)}, v[250:251] op_sel:[0,1] op_sel_hi:[1,1]")
        else:
            for j in range(8): q.I(f"v_mul_f32 v{t+j}, v{b+j}, v251")
        for j in range(8): q.I(f"v_exp_f32 v{t+j}, v{t+j}")
        if pk:
            for j in range(0, 8, 2): q.I(f"v_pk_fma_f32 {v(t+j,2)}, {v(t+j,2)}, v[250:251], v[250:251] op_sel_hi:[1,0,0]")
        else:
            for j in range(8): q.I(f"v_fma_f32 v{t+j}, v{t+j}, v250, v250")
        for j in range(8): q.I(f"v_rcp_f32 v{t+j}, v{t+j}")
        if pk:
            for j in range(0, 8, 2): q.I(f"v_pk_mul_f32 {v(b+j,2)}, {v(b+j,2)}, {v(t+j,2)}")
        else:
            for j in range(8): q.I(f"v_mul_f32 v{b+j}, v{b+j}, v{t+j}")
        for j in range(4): q.I(f"v_cvt_pk_bf16_f32 v{b+j}, v{b+2*j}, v{b+2*j+1}")
        q.I(f"buffer_store_dwordx4 {v(b,4)}, v2, {WS}, s50 offen offset:{1024*half} sc1")
    q.I(f"v_bitop3_b32 v216, v5, v{a}, v{a+8} {X3}")
    q.I(f"buffer_store_short v216, v0, {WS}, s50 offen offset:2048 sc1")
    return q.items + ([selft(50, 18)] if SELF & 2 and not pk else [])
E0 = B0 + 28*N1
assert not raw
if TWO:
    S3.spread(flat([w2rd(j) for j in UD + UR + UAW[NT1:]]), B0 + 8, B0 + 42)
    S3.at(B0 + 34, mk("s_barrier"), 0.0)
    S3.spread(flat([w2dma(j) for j in UE]), B0 + 48, E0 + opt("wde", 12))
else:
    S3.spread(flat([w2rd(j) for j in UD + UR + UAW[NT1:]]), B0 + 22, B0 + 58)
    S3.at(B0 + 44, mk("s_barrier"), 0.0)
    S3.spread(flat([w2dma(j) for j in UE]), B0 + opt('twd', 64), E0)
B4 = 16
CKR = [240, 241, 244, 245, 248, 249, 217, 218, 219, 130, 242, 246, 243, 247]
C4 = [[a_(224,16), a_(240,16)], [v(ACC[0],16), v(ACC[1],16)]]
set5 = mk(f"""s_mul_i32 s{sA}, s{sTILE}, 56
s_xor_b32 s{sB}, s{sTILE}, 1
s_mul_i32 s{sB}, s{sB}, 56
s_add_u32 s51, s{sB}, s44
s_add_u32 s52, s{sA}, s44
s_add_u32 s53, s{sB}, s45
s_add_u32 s54, s{sA}, s45""")
for k in range(4):
    set5 += mk(f"s_mul_i32 s{51+k}, s{51+k}, 2176\ns_add_u32 s{51+k}, s{51+k}, {WS_H1}")
S3.spread(set5, B0 + 42, B0 + 52)
def piece4(n):
    st, i = n // 7, n % 7; r = B4 + 8 * (n % 14); c = CKR[n % 14]
    return ([f"s_add_u32 s{sCt}, s{51+st}, {8*2176*i}\nbuffer_load_dwordx4 {v(r,4)}, v2, {WS}, s{sCt} offen sc1\nbuffer_load_dwordx4 {v(r+4,4)}, v2, {WS}, s{sCt} offen offset:1024 sc1\n"
             f"buffer_load_ushort v{c}, v0, {WS}, s{sCt} offen offset:2048 sc1"], [r, r+4, c])
F4 = Fetch("f4", [piece4(n) for n in range(28)], nre=opt("re4", 3))
ND = opt("nd", 5)
N0 = ND if TWO else opt("n0", 4)
rawl = flat([w2raw(j) for j in UL])
nr0 = min(len(rawl), opt("nr0", 4))
if TWO:
    S3.at(E0 - 1, stampi("p3 pass1 done", "mh"), 1.0)
    g3[E0 + 3] = aug(0) + g3[E0 + 3]; g3[E0 + 4] = aug(1) + g3[E0 + 4]
    S3.spread(silu(0, False) + [stampi("silu0 done", "e")], E0 + 5, E0 + opt("s0e", 21))
    S3.spread(silu(1, False), E0 + opt("s0e", 21), E0 + opt("s1e", 44))
    S3.spread(rawl, E0 + opt("wde", 12), E0 + opt("rle", 36))
    DEEP = opt("deep", 0)
    if DEEP:
        rng = [(opt("a0", -18), opt("b0", 4)), (opt("a1", 6), opt("b1", 24)), (opt("a2", 26), opt("b2", 50)), (opt("a3", 50), opt("b3", 78))]
        f4pos = []
        for n in range(28):
            a, b = rng[n // 7]
            for k_, c_ in enumerate(F4.loadc(n)):
                pos = a + (b - a) * ((n % 7) + (0, 0.45, 0.9)[k_]) / 7
                lo = (4*n + 4 - 56) if n < 14 else 4*(n - 14) + 4
                pos = max(pos, lo + 0.01*k_); assert pos < 4*n - 3 or n == 0, (n, pos)
                f4pos.append((pos, c_))
        for i_ in range(1, len(f4pos)): assert f4pos[i_][0] >= f4pos[i_-1][0], i_
        import math
        for pos, c_ in f4pos:
            if pos < 0: S3.at(E0 + 56 + math.floor(pos), c_, pos - math.floor(pos))
    else: S3.spread(flat([F4.loadc(n) for n in range(ND)]), E0 + opt("f4s", 52), E0 + 56)
    P.add(S3.emit())
    P.add(aug(2) + aug(3))
else:
    S3.at(E0 - 1, stampi("p3 pass1 done", "mh") + aug(0) + aug(1) + aug(2) + sprinkle(silu(0, True), rawl[:nr0], 3, 12) + stampi("silu0 done", "e"), 1.0)
    S3.spread(silu(1, False) + (silu(2, False) if opt("s2p", 1) else []), E0, E0 + opt("t1e", 26))
    S3.spread(rawl[nr0:], E0, E0 + opt("tre", 14))
    S3.spread(flat([F4.loadc(n) for n in range(N0)]), E0 + opt("f4t", 24), E0 + 28)
    P.add(S3.emit())
    P.add(aug(3))
I("s_barrier")
stamp("p3 gemm done", "me")
g4 = []
for n in range(28):
    st, i = n // 7, n % 7; hf, par = st >> 1, st & 1
    for e in range(2):
        for mu in range(2):
            zero = hf == 0 and i == 0 and e == 0 and not (par == 1 and mu == 0)
            g4.append(mk(f"{MF} {C4[par][mu]}, {a_(UA(7*hf+i)+8*e+4*mu,4)}, {v(B4+8*(n%14)+4*e,4)}, {'0' if zero else C4[par][mu]}"))
P.add(F4.check(0, N0 - 1))
S = Sched(g4)
nxt = N0
for n in range(28):
    prev = nxt
    if nxt < 28 and not (TWO and DEEP):
        if nxt < n + ND and nxt + 1 < 28:
            for k_, c_ in enumerate(F4.loadc(nxt) + F4.loadc(nxt + 1)): S.at(4*n + (0, 1, 1, 2, 3, 3)[k_], c_, 0.2 + 0.01*k_)
            nxt += 2
        else:
            for k_, c_ in enumerate(F4.loadc(nxt)): S.at(4*n + (0, 2, 1)[k_], c_, 0.2)
            nxt += 1
    if n + 1 < 28: S.spread(F4.checkc(n + 1, max(n + 1, prev - 1)), 4*n + 2, 4*n + 4)
    if n in (6, 13, 20): S.at(4*n + 3, stampi(f"stage{n//7} done", "e"), 1.0)
unp = []
for i in range(8): unp += mk(f"v_lshlrev_b32 v{ACC[0]+2*i}, 16, v{HR+i}\nv_and_b32 v{ACC[0]+1+2*i}, s{sHIM}, v{HR+i}")
if TWO and DEEP:
    for pos, c_ in f4pos:
        if pos >= 0: S.at(int(pos), c_, pos - int(pos))
S2E, S3E = opt("s2e", 16), opt("s3e", 22)
if opt("s2p", 1) and not TWO: S2E = 1
else: S.spread(silu(2, False), 0, S2E)
S.spread(unp, 22, 27)
S.spread(silu(3, False), S2E, S3E)
S.spread(flat([w2rd(j) for j in UE if j < 7]), 0, 14)
S.spread(flat([w2dma(j) for j in UP]), opt("w2a", 2), opt("w2b", 44))
for j in [x for x in UE + UL + UP if x >= 7]: S.spread(w2rd(j), 44 + 5*(j-7), 49 + 5*(j-7))
S.at(82, mk(f"""s_lshl_b32 s{sA}, s{sW}, 14
v_add_u32 v13, s{sA}, v2
v_xor_b32 v9, 16384, v13
v_xor_b32 v12, 32768, v13
v_xor_b32 v14, 49152, v13
s_waitcnt lgkmcnt(0)
s_barrier"""))
S.spread([mk(f"ds_write_b128 v{9 if mu == 0 else 14}, {a_(224+16*mu+4*i,4)} offset:{4096*(2*mu+1)+1024*i}") for mu in range(2) for i in range(4)], 87, 99)
S.at(100, mk("s_waitcnt lgkmcnt(0)\ns_barrier"), 0.0)
S.spread([mk(f"ds_read_b128 {v(ACC[2+mu]+4*i,4)}, v13 offset:{4096*(2*mu+1)+1024*i}") for mu in range(2) for i in range(4)], 100, 104)
S.spread([mk(f"v_add_f32 v{ACC[2]+k}, v{ACC[2]+k}, v{ACC[3]+k}") for k in range(16)], 107, 112)
P.add(S.emit())
stamp("p4 gemm done", "me")
for i in range(4): I(f"ds_write_b128 v12, {v(ACC[1]+4*i,4)} offset:{8192+1024*i}")
if opt("cout", 0):
    I(f"""v_lshlrev_b32 v16, 3, v3
v_sub_u32 v16, v{vXRR}, v16
v_lshlrev_b32 v17, 4, v3
v_xor_b32 v16, v16, v17
v_xor_b32 v17, 32, v16
s_add_u32 s{sA}, s{sXO}, {L_XCH}
v_add_u32 v18, s{sA}, v2""")
I("s_waitcnt lgkmcnt(0)\ns_barrier")
for i in range(4): I(f"ds_read_b128 {v(ACC[3]+4*i,4)}, v13 offset:{8192+1024*i}")
for k in range(0, 16, 2): I(f"v_pk_add_f32 {v(ACC[0]+k,2)}, {v(ACC[0]+k,2)}, {v(ACC[2]+k,2)}")
for hf in range(2):
    b = ACC[0] + 8*hf
    for k in range(0, 8, 2): I(f"v_pk_add_f32 {v(b+k,2)}, {v(b+k,2)}, {v(ACC[3]+8*hf+k,2)}")
    for i in range(4): I(f"v_cvt_pk_bf16_f32 v{96+4*hf+i}, v{b+2*i}, v{b+2*i+1}")
    if not opt("cout", 0):
        I(f"v_permlane32_swap_b32 v{96+4*hf}, v{98+4*hf}\nv_permlane32_swap_b32 v{97+4*hf}, v{99+4*hf}\nbuffer_store_dwordx4 {v(96+4*hf,4)}, v7, {OUT}, s{sOUT} offen offset:{32*hf} {OPT.get('ofl', '')}")
    else:
        I(f"v_permlane32_swap_b32 v{96+4*hf}, v{98+4*hf}\nv_permlane32_swap_b32 v{97+4*hf}, v{99+4*hf}\nds_write_b128 v{16+hf}, {v(96+4*hf,4)}")
if opt("cout", 0):
    I("s_waitcnt lgkmcnt(0)\ns_barrier")
    for i in range(2): I(f"ds_read_b128 {v(104+4*i,4)}, v18 offset:{1024*i}")
    for i in range(2): I(f"buffer_store_dwordx4 {v(104+4*i,4)}, v{vXRD0+i}, {OUT}, s{sXRB} offen offset:{1024*i} {OPT.get('ofl', '')}")
stamp("end", "mpohez")
I(f"""s_cmp_lg_u32 s2, 0
s_cbranch_scc1 L_ex0
v_mov_b32 v9, 0""")
I(f"buffer_store_dword v5, v9, {WS}, 0 offen sc1", unc=True)
I("L_ex0:")
if opt("enc", 0):
    mode = opt("enc", 0)
    if mode <= 4:
        I(f"s_bfe_u32 s{sA}, s80, {hex(0x80000 | (8*(mode-1)))}\ns_min_u32 s{sA}, s{sA}, 1\ns_mul_i32 s{sA}, s{sA}, 2000", unc=True)
    else:
        I(f"s_waitcnt lgkmcnt(0)\ns_sub_u32 s{sA}, s{sSTAMP+2}, s78\ns_mul_i32 s{sA}, s{sA}, 4", unc=True)
    I(f"""s_memrealtime s[40:41]
s_waitcnt lgkmcnt(0)
L_enc:
s_memrealtime s[42:43]
s_waitcnt lgkmcnt(0)
s_sub_u32 s42, s42, s40
s_cmp_lt_u32 s42, s{sA}
s_cbranch_scc1 L_enc
s_branch L_end""", unc=True)
if opt("dbg", 0):
    I(f"""s_cmp_lg_u32 s{sW}, 0
s_cbranch_scc1 L_end
s_load_dwordx2 s[40:41], s[0:1], 64
s_mov_b32 s42, 256
s_mov_b32 s43, 0x20000
s_mov_b64 exec, 1
v_mov_b32 v9, 0
s_waitcnt lgkmcnt(0)""", unc=True)
    for k in range(nstamp[0]):
        I(f"s_sub_u32 s{sA}, s{sSTAMP+2*k}, s78\nv_mov_b32 v10, s{sA}\nbuffer_atomic_umax v10, v9, s[40:43], 0 offen offset:{4*k}\ns_nop 1", unc=True)
    I(f"""v_mov_b32 v10, s78
buffer_atomic_umax v10, v9, s[40:43], 0 offen offset:32
s_not_b32 s{sA}, s78
v_mov_b32 v11, s{sA}
buffer_atomic_umax v11, v9, s[40:43], 0 offen offset:36
v_mov_b32 v12, s{sSTAMP+2*(nstamp[0]-1)}
buffer_atomic_umax v12, v9, s[40:43], 0 offen offset:40
v_mov_b32 v13, s80
buffer_atomic_add v13, v9, s[40:43], 0 offen offset:44
s_branch L_end""", unc=True)
I("L_exit:")
if DIAG and not opt("dbg", 0):
    I(f"s_cmp_lg_u32 s{sW}, {opt('dw', 0)}\ns_cbranch_scc1 L_end\ns_lshl_b32 s{sA}, s2, 7\ns_add_u32 s{sA}, s{sA}, {WS_DIAG}\nv_mov_b32 v9, 0", unc=True)
    for k in range(nstamp[0]):
        I(f"s_waitcnt lgkmcnt(0)\nv_mov_b32 v10, s{sSTAMP+2*k}\nbuffer_store_dword v10, v9, {WS}, s{sA} offen offset:{4*k}", unc=True)
    if SEL == ["z"]: I(f"v_mov_b32 v10, s78\nbuffer_store_dword v10, v9, {WS}, s{sA} offen offset:120", unc=True)
    I(f"v_mov_b32 v10, s80\nbuffer_store_dword v10, v9, {WS}, s{sA} offen offset:124", unc=True)
I("L_end:\ns_endpgm")
I(f"""L_idle:
s_and_b32 s{sA}, s{sT2}, 1
s_lshl_b32 s{sA}, s{sA}, 1
s_add_u32 s{sA}, s{sA}, s{sRact}
s_sub_u32 s{sA}, s{sA}, 14
s_lshl_b32 s{sA}, s{sA}, 2
s_add_u32 s{sA}, s{sA}, s{sW}
s_lshl_b32 s{sA}, s{sA}, 13
v_lshlrev_b32 v9, 7, v1
s_lshr_b32 s{sD}, s{sT2}, 1
s_mul_i32 s{sD}, s{sD}, {8*56*2176}
s_add_u32 s{sD}, s{sD}, {WS_H1}
s_add_u32 s{sD}, s{sD}, s{sA}
s_mov_b32 s{sB}, {opt("idle2", 0)}
s_cmp_eq_u32 s{sB}, 0
s_cbranch_scc1 L_idle3
L_idle2:
buffer_load_dword v11, v9, {WS}, s{sD} offen {OPT.get("i2f", "")}
s_add_u32 s{sD}, s{sD}, {16*8192}
s_sub_u32 s{sB}, s{sB}, 1
s_cmp_lg_u32 s{sB}, 0
s_cbranch_scc1 L_idle2
L_idle3:
s_mov_b32 s{sB}, {opt("idle", 0)}
s_cmp_eq_u32 s{sB}, 0
s_cbranch_scc1 L_exit
L_idle1:
buffer_load_dword v11, v9, {W2}, s{sA} offen
s_add_u32 s{sA}, s{sA}, {16*8192}
s_sub_u32 s{sB}, s{sB}, 1
s_cmp_lg_u32 s{sB}, 0
s_cbranch_scc1 L_idle1
s_branch L_exit""", unc=True)
P.add(TAIL.items)

for it in P.items:
    if isinstance(it, Ins) and it.text.startswith('buffer_load_dword v142,'): it.defs = []
for it in P.items:
    if isinstance(it, Ins) and it.op == "buffer_load_dwordx4":
        for bit, srd in ((1, W1), (2, W2), (4, WO), (8, WQKV), (16, X)):
            if opt("wf", 0) & bit and srd in it.text:
                fl = OPT.get("wfl", "nt")
                it.text = it.text.replace(" lds", f" {fl} lds") if it.text.endswith(" lds") else it.text + " " + fl
PL = opt("plain", 0)
for it in P.items:
    if isinstance(it, Ins) and it.op.startswith("buffer_store") and "sc1" in it.text:
        ish1 = " s50 " in it.text or " s49 " in it.text
        ish = ("v[224:227]" in it.text or "v[228:231]" in it.text or "v112," in it.text or "v113," in it.text)
        if (ish and PL & 1) or (ish1 and PL & 2): it.text = it.text.replace(" sc1", OPT.get("pfl", ""))
if opt("pld", 0):
    c = 0
    for it in P.items:
        if isinstance(it, Ins) and it.op.startswith("buffer_load") and "sc1" in it.text and " s56 " in it.text and not it.uncounted:
            c += 1
            kind = 0 if c <= 48 else 1 if c <= 104 else 2
            if opt("pld", 0) & kind: it.text = it.text.replace(" sc1", OPT.get("lfl", ""))
if opt("nochk", 0):
    new = []; seen_end = False
    for it in P.items:
        if isinstance(it, Ins):
            if opt("nochk", 0) == 2 and not seen_end:
                if it.text.startswith("L_exit"): seen_end = True
                elif it.uncounted or it.op in ("s_cbranch_vccz", "s_branch"): continue
            if it.op == "s_cbranch_vccz" and not it.uncounted: it = Ins(it.text.replace("s_cbranch_vccz", "s_branch"))
            elif it.op == "s_cbranch_vccnz" and not it.uncounted: continue
            t = it.text
            if it.op.startswith("buffer_store") and "sc1" in t and not it.uncounted:
                kind = 8 if " s50 " in t else 4 if ("v[224" in t or "v[228" in t or "v112," in t or "v113," in t) else 2 if f" s{sOST} " in t else 1
                if opt("nost", 0) & kind: continue
            if it.op.startswith("buffer_load") and "sc1" in t and " s56 " in t and not it.uncounted:
                cnt_ld = globals().setdefault("_c", [0]); cnt_ld[0] += 1; c = cnt_ld[0]
                kind = 1 if c <= 32 else 2 if c <= 48 else 4 if c <= 104 else 8
                if opt("nold", 0) & kind: continue
        new.append(it)
    P.items = new
body, items = render(P.items)
if opt("align", 1):
    import subprocess, re as _re
    open("_al.s", "w").write('.amdgcn_target "amdgcn-amd-amdhsa--gfx950"\n.text\n' + body)
    subprocess.run(["clang", "-x", "assembler", "-target", "amdgcn-amd-amdhsa", "-mcpu=gfx950", "-c", "_al.s", "-o", "_al.o"], check=True)
    dis = subprocess.run(["llvm-objdump", "-d", "--mcpu=gfx950", "_al.o"], capture_output=True, text=True).stdout
    sizes = [4 * len(m.group(1).split()) for m in _re.finditer(r"// [0-9A-F]{12}: ((?:[0-9A-F]{8} ?)+)", dis)]
    real = [i for i in items if i.cls not in ('label', 'dir')]
    assert len(sizes) == len(real), (len(sizes), len(real))
    sz = {id(i): n for i, n in zip(real, sizes)}
    new = []; off = 0; nal = 0; MINRUN = opt("minrun", 6)
    for k, it in enumerate(items):
        if id(it) in sz and sz[id(it)] == 8 and off % 8 == 4 and not it.uncounted:
            run = 0
            for j in items[k:k + MINRUN + 4]:
                if id(j) not in sz: continue
                if sz[id(j)] != 8 or j.cls == 'mfma': break
                run += 1
            if run >= MINRUN:
                p = new[-1] if new else None
                if p is not None and p.cls == 'valu' and sz.get(id(p)) == 4 and not p.op.startswith(('v_permlane', 'v_dot2c', 'v_readfirst', 'v_accvgpr', 'v_cmp', 'v_cndmask')) and not p.op.endswith('_e64'):
                    p.text = p.text.replace(p.op, p.op + "_e64", 1)
                else: new.append(Ins("s_nop 0"))
                off += 4; nal += 1
        new.append(it); off += sz.get(id(it), 0)
    items = new
    body = '\n'.join(('' if i.cls == 'label' else '  ') + i.text for i in items) + '\n'
    print("alignment fixes:", nal, "code bytes", off)
hdr = open("cdna_kernels/" + NAME + ".s.ref").read().split("; Override launch")[0]
out = hdr + f"""; @launch grid=(256,1,1) block=(256,1,1) lds={LDS_SIZE}
.amdgcn_target "amdgcn-amd-amdhsa--gfx950"
.text
.globl {NAME}_kernel
.p2align 8
.type {NAME}_kernel,@function
{NAME}_kernel:
{body}.fill 2048, 4, 0xbf810000
.section .rodata,"a"
.p2align 6
.amdhsa_kernel {NAME}_kernel
  .amdhsa_next_free_vgpr 512
  .amdhsa_next_free_sgpr 102
  .amdhsa_accum_offset 256
  .amdhsa_group_segment_fixed_size 0
  .amdhsa_kernarg_size 80
  .amdhsa_user_sgpr_count 2
  .amdhsa_user_sgpr_kernarg_segment_ptr 1
  .amdhsa_system_sgpr_workgroup_id_x 1
.end_amdhsa_kernel
"""
open(sys.argv[1], "w").write(out)
n = sum(1 for i in items if i.cls not in ('label', 'dir'))
nu_ = sum(1 for i in items if i.cls not in ('label', 'dir') and i.uncounted)
print("instructions:", n, "(slow path", nu_, ") nops:", sum(1 for i in items if i.op == 's_nop'), "waits:", sum(1 for i in items if i.op == 's_waitcnt'), "stamps", nstamp[0])
```

```python
import sys, struct
from asmlib import *

NAME = "sequential_preLN__linear_kernel_hedgehog__dense_activation_silu__prompt"
DIAG = int(sys.argv[2]) if len(sys.argv) > 2 else 0
OPT = dict(a.split('=') for a in sys.argv[3:])
def opt(k, d): return int(OPT[k], 0) if k in OPT else d

WS_PART = 0x40000
WS_O    = 0x240000
WS_H    = 0x440000
WS_H1   = 0x680000
WS_DIAG = 0xE80000
WS_FLG  = 0xF00000
WS_SIZE = 0xF80000
XW = 28672
L_WV, L_WQ, L_WK, L_WO = 0, 28672, 57344, 86016
L_IMG = L_WK
L_KVX = 143360
L_XCH = 147456
L_SCR = 114688
L_AUG = 161792
LDS_SIZE = 163840
sW, sT, sH, sT2, sR = 3, 4, 5, 6, 7
X, WQKV, WPHI, WO, W1, W2, OUT, WS = [f"s[{i}:{i+3}]" for i in range(8, 40, 4)]
sKX, sKW = 40, 47
sHQ, sHIM = 54, 55
sRET = "s[56:57]"
sSPIN, sP, sU, sC, sMASK, sQ = 58, 59, 60, 61, 62, 63
sHI = "s[64:65]"
sLOG = "s[66:67]"
sONES, sTILE = 68, 69
sA, sB, sCt, sD = 70, 71, 72, 73
sRact, sXO = 74, 75
sWB, sWQ = 76, 77
sLAST, sFLAG, sWM, sPST, sPCK, sOST, sXRB, sOUT = 80, 81, 82, 83, 84, 85, 86, 87
sSTAMP = 88

def v(a, n=1): return f"v{a}" if n == 1 else f"v[{a}:{a+n-1}]"
def a_(a, n=1): return f"a{a}" if n == 1 else f"a[{a}:{a+n-1}]"
def fhex(x): return hex(struct.unpack('<I', struct.pack('<f', x))[0])
def flat(l): return sum(l, [])
P = Prog(); I = P.I
TAIL = Prog()
nstamp = [0]
SEL = OPT.get("st", "m").split(",")
PICK = [int(x) for x in OPT["pick"].split(",")] if "pick" in OPT else None
allst = [0]
def stampi(name, grp="m"):
    idx = allst[0]; allst[0] += 1
    if opt("jit", 0) and idx in (3, 7, 9, 11, 13, 17, 19, 21, 25, 26, 27, 28, 29):
        return mk(f"""s_memtime s[88:89]
s_waitcnt lgkmcnt(0)
s_mul_i32 s88, s88, 0x9E3779B1
s_lshr_b32 s88, s88, {opt("jit", 0)}
L_jit{idx}:
s_sleep 8
s_sub_u32 s88, s88, 1
s_cmp_gt_i32 s88, 0
s_cbranch_scc1 L_jit{idx}""")
    if not DIAG: return []
    if PICK is not None:
        if name != "start" and idx not in PICK:
            print(f"   - {idx}: {name}"); return []
    elif name != "start" and not (set(grp) & set(SEL)): return []
    k = nstamp[0]; nstamp[0] += 1
    assert k < 7
    print(f"stamp {k}: [{idx}] {name}")
    op = "s_memtime" if DIAG == 2 else "s_memrealtime"
    return mk(f"{op} s[{sSTAMP+2*k}:{sSTAMP+2*k+1}]")
def stamp(name, grp="m"): P.add(stampi(name, grp))
X3 = "bitop3:0x96"

def chk_code(regs, masked):
    r = list(regs)
    if masked: return f"v_bitop3_b32 v10, v{r[0]}, v{r[1]}, s{sMASK} bitop3:0x28\nv_cmp_ne_u32 vcc, v10, v6"
    if len(r) == 1: return f"v_cmp_ne_u32 vcc, v{r[0]}, v5"
    if len(r) == 2: t = f"v_xor_b32 v10, v{r[0]}, v{r[1]}"
    else:
        t = f"v_bitop3_b32 v10, v{r[0]}, v{r[1]}, v{r[2]} {X3}"
        if len(r) == 4: t += f"\nv_xor_b32 v10, v10, v{r[3]}"
    return t + "\nv_cmp_ne_u16 vcc, v10, v5"

sFL, sDM = 56, 57
GUARD = f"s_add_u32 s{sSPIN}, s{sSPIN}, 1\ns_cmp_gt_u32 s{sSPIN}, 0x40000\ns_cbranch_scc1 L_end\ns_waitcnt vmcnt(0)"
class Fetch:
    def __init__(self, name, pieces, masked=False, nre=1):
        self.name, self.pieces, self.masked, self.nre = name, pieces, masked, nre
    def loadc(self, i):
        it = flat([mk(c.replace(f"s{sCt}", f"s{sFL}")) for c in self.pieces[i][0]])
        out = []; cur = []
        for x in it:
            cur.append(x)
            if x.cls == 'vmem': out.append(cur); cur = []
        return out
    def load(self, i): return flat(self.loadc(i))
    def stub(self, i, last):
        n = self.name
        wgt = {"fo": 0x100, "fh": 0x10000, "f4": 0x1000000}.get(n, 1)
        rel = (f"s_add_u32 s80, s80, {wgt}\n" if DIAG else "") + "\n".join(c for j in range(i, min(last, i + self.nre - 1) + 1) for c in self.pieces[j][0])
        if opt("ool", 15) & {"fo": 2, "fh": 4, "f4": 8}[n]:
            TAIL.I(f"L_{n}_r{i}:\n" + rel + "\n" + GUARD + "\n" + chk_code(self.pieces[i][1], self.masked) + f"\ns_cbranch_vccnz L_{n}_r{i}\ns_branch L_{n}_ok{i}", unc=True)
            return mk(f"s_cbranch_vccnz L_{n}_r{i}\nL_{n}_ok{i}:")
        return mk(f"s_cbranch_vccz L_{n}_ok{i}\nL_{n}_r{i}:") + \
               mk(rel + "\n" + GUARD + "\n" + chk_code(self.pieces[i][1], self.masked) + f"\ns_cbranch_vccnz L_{n}_r{i}", unc=True) + mk(f"L_{n}_ok{i}:")
    def checkc(self, i, last):
        return [[x] for x in mk(chk_code(self.pieces[i][1], self.masked))] + [self.stub(i, last)]
    def check(self, i, last): return flat(self.checkc(i, last))

sFS, sFP = 80, 81
vL512, vPO, vPF = 0, 142, 143
def flag_store(nl): return mk(f"s_mov_b64 exec, {(1 << nl) - 1}\nbuffer_store_dword v5, v{vL512}, {WS}, s{sFS} offen sc1\ns_mov_b64 exec, -1")
def gate(name, vo, vf): return Fetch(name, [([f"buffer_load_dword v{vf}, v{vo}, {WS}, s{sFP} offen sc1"], [vf])])
GATE = opt("gate", 0)

def cost(it):
    if isinstance(it, WaitTag): return 4
    if it.cls in ('label', 'dir') or it.uncounted: return 0
    if it.op.startswith(TRANS) or 'permlane' in it.op: return 8
    if it.op.startswith('ds_write_b128'): return 28
    if it.cls == 'mfma': return 8
    return 4.5
class Sched:
    def __init__(self, groups):
        self.groups = groups; self.gap = [[] for _ in groups]; self.seq = 0
    def at(self, g, items, frac=0.5):
        self.seq += 1; self.gap[g].append((frac, self.seq, list(items)))
    def spread(self, chunks, a, b):
        chunks = [c if isinstance(c, list) else [c] for c in chunks]
        tot = sum(cost(i) for c in chunks for i in c) or 1; acc = 0
        for c in chunks:
            pos = a + (b - a) * acc / tot
            self.at(int(pos), c, pos - int(pos))
            acc += sum(cost(i) for i in c)
    def emit(self):
        out = []
        for g, gp in zip(self.groups, self.gap):
            out += g
            for _, _, c in sorted(gp, key=lambda x: (x[0], x[1])): out += c
        return out
def sprinkle(items, groups, start, step):
    out = []; groups = list(groups); nxt = start
    for i, it in enumerate(items):
        if groups and i == nxt: out += groups.pop(0); nxt += step
        out.append(it)
    for g in groups: out += g
    return out

def softmax(p, t, o, pk):
    q = Prog(); J = q.I
    m, n = t + 14, t + 15; r0, r1 = t + 16, t + 17
    J(f"v_max3_f32 v{m}, v{p}, v{p+1}, v{p+2}\nv_max3_f32 v{n}, -v{p}, -v{p+1}, -v{p+2}")
    for k in range(3, 13, 2):
        J(f"v_max3_f32 v{m}, v{m}, v{p+k}, v{p+k+1}\nv_max3_f32 v{n}, v{n}, -v{p+k}, -v{p+k+1}")
    J(f"""v_max_f32 v{m}, v{m}, v{p+13}
v_max_f32 v{n}, v{n}, -v{p+13}
v_permlane32_swap_b32 v{m}, v{n}
v_max_f32 v{m}, v{m}, v{n}
v_mul_f32 v{m}, v253, v{m}
v_mov_b32 v{n}, v{m}
v_permlane32_swap_b32 v{m}, v{n}""")
    if pk:
        for k in range(0, 14, 2):
            J(f"v_pk_fma_f32 {v(t+k,2)}, {v(p+k,2)}, v[252:253], {v(m,2)} op_sel_hi:[1,0,0]")
            J(f"v_pk_fma_f32 {v(p+k,2)}, {v(p+k,2)}, v[252:253], {v(m,2)} op_sel:[0,1,1] op_sel_hi:[1,1,1]")
    if pk == 2:
        for k in range(14):
            J(f"v_exp_f32 v{t+k}, v{t+k}\nv_exp_f32 v{p+k}, v{p+k}")
            if k >= 2:
                a0 = f"v{t}" if k == 2 else f"v{r0}"; a1 = f"v{p}" if k == 2 else f"v{r1}"
                J(f"v_add_f32 v{r0}, {a0}, v{t+k-1}\nv_add_f32 v{r1}, {a1}, v{p+k-1}")
        J(f"v_add_f32 v{m}, v{r0}, v{t+13}\nv_add_f32 v{n}, v{r1}, v{p+13}")
    elif pk:
        for k in range(14): J(f"v_exp_f32 v{t+k}, v{t+k}")
        for k in range(14): J(f"v_exp_f32 v{p+k}, v{p+k}")
        J(f"v_pk_add_f32 {v(m,2)}, {v(t,2)}, {v(t+2,2)}\nv_pk_add_f32 {v(r0,2)}, {v(p,2)}, {v(p+2,2)}")
        for k in range(4, 14, 2):
            J(f"v_pk_add_f32 {v(m,2)}, {v(m,2)}, {v(t+k,2)}\nv_pk_add_f32 {v(r0,2)}, {v(r0,2)}, {v(p+k,2)}")
        J(f"v_add_f32 v{m}, v{m}, v{n}\nv_add_f32 v{n}, v{r0}, v{r1}")
    else:
        for k in range(14):
            J(f"v_fma_f32 v{t+k}, v{p+k}, v252, v{m}\nv_fma_f32 v{p+k}, v{p+k}, v253, v{n}\nv_exp_f32 v{t+k}, v{t+k}\nv_exp_f32 v{p+k}, v{p+k}")
            if k >= 2:
                a0 = f"v{t}" if k == 2 else f"v{r0}"; a1 = f"v{p}" if k == 2 else f"v{r1}"
                J(f"v_add_f32 v{r0}, {a0}, v{t+k-1}\nv_add_f32 v{r1}, {a1}, v{p+k-1}")
        J(f"v_add_f32 v{m}, v{r0}, v{t+13}\nv_add_f32 v{n}, v{r1}, v{p+13}")
    J(f"""v_permlane32_swap_b32 v{m}, v{n}
v_add_f32 v{m}, v{m}, v{n}
v_rcp_f32 v{m}, v{m}
v_mov_b32 v{n}, v{m}
v_permlane32_swap_b32 v{m}, v{n}""")
    if pk == 1:
        for k in range(0, 14, 2):
            J(f"v_pk_mul_f32 {v(t+k,2)}, {v(t+k,2)}, {v(m,2)} op_sel_hi:[1,0]")
            J(f"v_pk_mul_f32 {v(p+k,2)}, {v(p+k,2)}, {v(m,2)} op_sel:[0,1] op_sel_hi:[1,1]")
    else:
        for k in range(14): J(f"v_mul_f32 v{t+k}, v{t+k}, v{m}\nv_mul_f32 v{p+k}, v{p+k}, v{n}")
    for k in range(7): J(f"v_cvt_pk_bf16_f32 v{o+k}, v{t+2*k}, v{t+2*k+1}")
    for k in range(7): J(f"v_cvt_pk_bf16_f32 v{o+7+k}, v{p+2*k}, v{p+2*k+1}")
    return q.items

def dmag(vaddrs, srd, sbase, sadd, mbase, madd, tag, sreg=None):
    sr = sCt if sreg is None else sreg
    ch = [mk(f"buffer_load_dwordx4 v{a}, {srd}, s{sr} offen offset:{1024*i} lds", tag=tag) for i, a in enumerate(vaddrs)]
    ch[0] = mk(f"s_add_u32 m0, s{mbase}, {madd}\ns_add_u32 s{sr}, s{sbase}, {sadd}") + ch[0]
    return ch

MF = "v_mfma_f32_32x32x16_bf16"
RINGA, NRING = 224, 8
def gemm_lds(steps, ahead=6):
    def rd(i):
        av, o1, o2 = steps[i][:3]; r = RINGA + 4 * (i % NRING)
        return mk(f"ds_read_b64_tr_b16 {a_(r,2)}, v{av} offset:{o1}\nds_read_b64_tr_b16 {a_(r+2,2)}, v{av} offset:{o2}")
    rds = [rd(i) for i in range(len(steps))]
    groups = []
    for i, st in enumerate(steps):
        r = RINGA + 4 * (i % NRING); b, acc, first, swap = st[3]
        A, B = a_(r, 4), v(b, 4)
        if swap: A, B = B, A
        g = mk(f"{MF} {v(acc,16)}, {A}, {B}, {'0' if first else v(acc,16)}")
        if i % 2 == 0 and i + 1 < len(steps):
            r2 = RINGA + 4 * ((i + 1) % NRING); g[0].extra = [('a', r2 + x) for x in range(4)]
        groups.append(g + (rds[i + ahead] if i + ahead < len(steps) else []))
    return flat(rds[:ahead]), groups

FAST = opt('fast', 1)
LO = """s_load_dwordx2 s[12:13], s[0:1], 8
s_load_dwordx2 s[16:17], s[0:1], 16
s_load_dwordx2 s[20:21], s[0:1], 24
s_load_dwordx2 s[24:25], s[0:1], 40
s_load_dwordx2 s[28:29], s[0:1], 48
s_load_dwordx2 s[32:33], s[0:1], 56
s_load_dwordx2 s[36:37], s[0:1], 72
"""
CP = f"""v_lshlrev_b32 v3, 4, v1
v_lshl_add_u32 v3, v2, 6, v3
v_lshl_add_u32 v3, v2, 4, v3
v_add_u32 v3, s{sCt}, v3
v_lshlrev_b32 v3, 7, v3
s_and_b32 s76, s76, 0xffffff00
s_mov_b64 exec, 31
global_load_dword v236, v3, s[76:77]
s_mov_b64 exec, -1
"""
MAP1 = [f"""{"s_lshr_b32 s4, s70, 1" if opt("pair", 1) else "s_and_b32 s4, s70, 3"}
s_lshl_b32 s{sT}, s{sT}, 2
s_and_b32 s{sD}, s{sB}, 3
s_add_u32 s{sT}, s{sT}, s{sD}
{"s_and_b32 s59, s70, 1" if opt("pair", 1) else "s_lshr_b32 s59, s70, 2"}
s_lshl_b32 s{sH}, s{sP}, 3
s_lshr_b32 s{sD}, s{sB}, 2
s_add_u32 s{sH}, s{sH}, s{sD}
s_mul_i32 s{sP}, s{sT}, {opt("rt", 2)}
s_add_u32 s{sD}, s{sD}, s{sP}
s_mul_i32 s{sP}, s{sD}, 37
s_lshr_b32 s{sP}, s{sP}, 8
s_mul_i32 s{sP}, s{sP}, 7
s_sub_u32 s{sD}, s{sD}, s{sP}
s_lshl_b32 s{sKX}, s{sD}, 7
""",
f"""s_lshl_b32 s{sT}, s{sA}, 1
s_lshr_b32 s{sD}, s{sB}, 4
s_add_u32 s{sT}, s{sT}, s{sD}
s_mov_b32 s{sH}, s{sCt}
s_and_b32 s{sD}, s{sH}, 7
s_cmp_eq_u32 s{sD}, 7
s_cselect_b32 s{sD}, 3, s{sD}
s_lshl_b32 s{sKX}, s{sD}, 7
""",
f"""s_mov_b32 s{sT}, s{sCt}
s_lshl_b32 s{sH}, s{sA}, 1
s_lshr_b32 s{sD}, s{sB}, 4
s_add_u32 s{sH}, s{sH}, s{sD}
s_and_b32 s{sD}, s{sH}, 7
s_mul_i32 s{sD}, s{sD}, 3
s_mul_i32 s{sP}, s{sD}, 37
s_lshr_b32 s{sP}, s{sP}, 8
s_mul_i32 s{sP}, s{sP}, 7
s_sub_u32 s{sD}, s{sD}, s{sP}
s_lshl_b32 s{sKX}, s{sD}, 7
"""][opt("map1", 0)]
if DIAG: I("s_memrealtime s[78:79]")
I(f"""s_cmp_ge_u32 s2, 256
s_cbranch_scc1 L_end
s_load_dwordx2 s[8:9], s[0:1], 0
{LO if not FAST else ''}{"s_waitcnt lgkmcnt(0)" + chr(10) + "s_memrealtime s[88:89]" if opt("bare", 0) else ""}
s_getpc_b64 s[76:77]
v_and_b32 v1, 63, v0
v_lshrrev_b32 v2, 6, v0
s_and_b32 s{sA}, s2, 7
v_readfirstlane_b32 s{sW}, v2
s_lshr_b32 s{sB}, s2, 3
s_and_b32 s{sCt}, s{sB}, 15
{CP if FAST < 2 else ''}{MAP1}
s_mov_b32 s10, 1835008
s_mov_b32 s11, 0x20000
v_lshrrev_b32 v2, 3, v1
v_mul_u32_u24 v244, 896, v2
v_lshrrev_b32 v2, 4, v1
v_and_b32 v8, 7, v1
v_xor_b32 v2, v2, v8
v_lshl_add_u32 v244, v2, 4, v244
v_xor_b32 v245, 64, v244
v_add_u32 v245, {7168-1024}, v245
v_add_u32 v246, {2*(7168-1024)}, v244
v_add_u32 v247, {2*(7168-1024)}, v245
s_lshl_b32 s{sQ}, s{sT}, 2
s_add_u32 s{sQ}, s{sQ}, s{sW}
s_mul_i32 s{sQ}, s{sQ}, {32*896}
s_lshr_b32 s{sXO}, s{sW}, 1
s_add_u32 s{sXO}, s{sXO}, s{sW}
s_mul_i32 s{sXO}, s{sXO}, {XW}
s_waitcnt lgkmcnt(0)""")
st0 = stampi("start")
if not opt("bare", 0): P.add(st0)
def xdma(g): return flat(dmag([244, 245, 246, 247], X, sQ, f"s{sKX+g}", sXO, 4096*g, f"x{g}"))
P.add(xdma(0))
if FAST: I(LO)
if FAST == 2: I(f"v_lshrrev_b32 v2, 6, v0\ns_and_b32 s{sCt}, s{sB}, 15\n" + CP)
I(f"""s_mov_b32 s14, {0 if opt('abl',0)&8 else 1204224}
s_mov_b32 s15, 0x20000
v_and_b32 v8, 3, v1""")
def wtouch(mask16, dst):
    m = mask16 | (mask16 << 16)
    return mk(f"s_mov_b32 exec_lo, {hex(m)}\ns_mov_b32 exec_hi, {hex(m)}\nbuffer_load_dword v{dst}, v255, {WQKV}, 0 offen\ns_mov_b64 exec, -1")
def kxs(g): return mk(f"s_add_u32 s{sKX+g}, s{sKX+g-1}, 128\ns_cmp_ge_u32 s{sKX+g}, 896\ns_cselect_b32 s{sD}, 896, 0\ns_sub_u32 s{sKX+g}, s{sKX+g}, s{sD}")
NXE = opt("nxe", 2)
if opt("wtfirst", 1) and opt("wt0", 0): P.add(wtouch(opt("wt0", 0), 237))
for g in range(1, NXE): P.add(kxs(g) + xdma(g))
if not opt("wtfirst", 1) and opt("wt0", 0): P.add(wtouch(opt("wt0", 0), 237))
if FAST: I("s_waitcnt lgkmcnt(0)")
if opt("wsoff", 0): I(f"s_add_u32 s36, s36, {opt('wsoff', 0)}\ns_addc_u32 s37, s37, 0")
I(f"""s_mov_b32 s38, {WS_SIZE}
s_mov_b32 s39, 0x20000
s_mov_b32 s18, 25088
s_mov_b32 s19, 0x20000
s_mov_b32 s22, {0 if opt('abl',0)&4 else 401408}
s_mov_b32 s23, 0x20000
s_xor_b32 s{sHQ}, s{sH}, 1
v_mov_b32 v11, 0
v_lshlrev_b32 v6, 7, v1""")
TM = opt("tm", 0)
sm_ld = mk(f"""s_mov_b64 exec, 1
buffer_load_dword v5, v6, {WS}, 0 offen sc1""")
if opt("two_", 1): sm_ld += mk(f"""s_lshl_b32 s56, s2, 2
s_add_u32 s56, s56, s{sW}
s_lshl_b32 s56, s56, 9
s_mov_b64 exec, 15
buffer_load_dword v238, v6, {WO}, s56 offen""")
if opt("twp", 0): sm_ld += mk(f"""s_and_b32 s{sCt}, s{sH}, 14
s_mul_i32 s{sCt}, s{sCt}, 1568
s_mul_i32 s56, s{sW}, 896
s_add_u32 s{sCt}, s{sCt}, s56
s_mov_b64 exec, 127
buffer_load_dword v239, v6, {WPHI}, s{sCt} offen""")
sm_ld += mk("s_mov_b64 exec, -1")
if TM == 0: P.add(sm_ld)
for g in range(NXE, 7): P.add(kxs(g))
MORE = opt("more", 0)
I(f"s_mov_b32 s{sONES}, 0x3f803f80\ns_mul_i32 s66, s{sH}, 1568\ns_mul_i32 s81, s{sHQ}, 1568")
_m1 = len(P.items)
I(f"""s_lshl_b32 s{sT2}, s{sA}, 1
s_lshr_b32 s{sD}, s{sB}, 4
s_add_u32 s{sT2}, s{sT2}, s{sD}
s_and_b32 s{sRact}, s{sB}, 15
s_min_u32 s{sR}, s{sRact}, 13
s_mov_b32 s26, {0 if opt('abl',0)&1 else 1605632}
s_mov_b32 s27, 0x20000
s_mov_b32 s30, {0 if opt('abl',0)&2 else 1605632}
s_mov_b32 s31, 0x20000
s_mov_b32 s34, 1835008
s_mov_b32 s35, 0x20000
s_mov_b32 s64, 0
s_mov_b32 s65, -1
s_mov_b32 s{sMASK}, 0xbfffbfff
s_mov_b32 s{sHIM}, 0xffff0000
s_mov_b32 s{sSPIN}, 0
s_mov_b32 s80, 0
s_cmp_ge_u32 s{sR}, 7
s_cselect_b32 s{sU}, 1, 0
s_mul_i32 s{sA}, s{sU}, 7
s_sub_u32 s{sC}, s{sR}, s{sA}""")
sT3 = 67
if opt("map3", 1):
    I(f"""s_and_b32 s{sA}, s{sT2}, 12
s_and_b32 s{sD}, s{sT2}, 1
s_lshl_b32 s{sD}, s{sD}, 1
s_add_u32 s{sA}, s{sA}, s{sD}
s_add_u32 s{sT3}, s{sA}, s{sU}
s_bfe_u32 s{sA}, s{sT2}, 0x10001
s_mul_i32 s{sA}, s{sA}, 7
s_add_u32 s{sR}, s{sA}, s{sC}""")
else: I(f"s_mov_b32 s{sT3}, s{sT2}")
for g in range(7): I(f"s_mul_i32 s{sKW+g}, s{sKX+g}, {172032//128}")
I(f"""s_mul_i32 s{sWB}, s{sH}, 56
s_mul_i32 s{sD}, s{sW}, 43008
s_add_u32 s{sWB}, s{sWB}, s{sD}
s_mul_i32 s{sWQ}, s{sHQ}, 56
s_add_u32 s{sWQ}, s{sWQ}, s{sD}
s_add_u32 s{sWB}, s{sWB}, 896
s_lshl_b32 s{sWM}, s{sW}, 10""")
_m0 = _m1 if MORE else len(P.items)
I(f"""s_lshl_b32 s{sA}, s{sH}, 4
s_add_u32 s{sA}, s{sA}, s{sT}
s_mul_i32 s{sA}, s{sA}, 4608
s_add_u32 s{sA}, s{sA}, {WS_PART}
s_add_u32 s{sPST}, s{sA}, s{sWM}
s_lshl_b32 s{sD}, s{sW}, 7
s_add_u32 s{sA}, s{sA}, s{sD}
s_add_u32 s{sPCK}, s{sA}, 4096
s_lshl_b32 s{sA}, s{sT}, 2
s_add_u32 s{sA}, s{sA}, s{sW}
s_lshl_b32 s{sA}, s{sA}, 15
s_lshl_b32 s{sB}, s{sHQ}, 11
s_add_u32 s{sA}, s{sA}, s{sB}
s_add_u32 s{sOST}, s{sA}, {WS_O}
s_lshl_b32 s{sA}, s{sT2}, 2
s_lshl_b32 s{sB}, s{sU}, 1
s_add_u32 s{sA}, s{sA}, s{sB}
s_and_b32 s{sB}, s{sW}, 1
s_add_u32 s{sTILE}, s{sA}, s{sB}
s_mul_i32 s{sA}, s{sA}, {32*896}
s_lshl_b32 s{sB}, s{sC}, 7
s_add_u32 s{sA}, s{sA}, s{sB}
s_mul_i32 s{sD}, s{sW}, {16*896}
s_add_u32 s{sXRB}, s{sA}, s{sD}
s_mul_i32 s{sA}, s{sTILE}, {32*896}
s_add_u32 s{sA}, s{sA}, s{sB}
s_lshr_b32 s{sB}, s{sW}, 1
s_lshl_b32 s{sB}, s{sB}, 6
s_add_u32 s{sOUT}, s{sA}, s{sB}
s_mul_i32 s{sP}, s{sHQ}, {16*4608}
s_add_u32 s{sP}, s{sP}, {WS_PART}""")
deferred = P.items[_m0:]; del P.items[_m0:]
WPK, WPQ, WPT = 192, 200, 208
vWPA, vWPB, vKVX, vIMW, vKA, vKB, vFPD, vFPC, vWO0, vWO1, vXRD0, vXRD1, vXRR, vWOR = range(128, 142)
I(f"""v_lshrrev_b32 v3, 5, v1
v_bfe_u32 v11, v1, 3, 2
v_lshl_add_u32 v11, v11, 2, v8
v_bfe_u32 v12, v1, 2, 1
v_mul_u32_u24 v12, 14, v12
v_min_u32 v13, 13, v11
v_add_u32 v13, v13, v12
v_lshlrev_b32 v13, 1, v13
v_mul_u32_u24 v14, 224, v3
v_add_u32 v{vWPA}, v13, v14
v_lshl_add_u32 v{vWPB}, v3, 20, v{vWPA}
v_and_b32 v9, 31, v1
v_lshlrev_b32 v240, 7, v9
v_bfe_u32 v10, v1, 1, 3
v_xor_b32 v10, v10, v3
v_lshl_add_u32 v240, v10, 4, v240
v_add_u32 v240, s{sXO}, v240
v_xor_b32 v241, 32, v240
v_xor_b32 v242, 64, v240
v_xor_b32 v243, 96, v240
v_mov_b32 v250, 0
v_mov_b32 v251, 0""")
_m2 = len(P.items)
I(f"""v_lshlrev_b32 v2, 4, v1
v_lshlrev_b32 v4, 2, v1
v_add_u32 v12, v12, v11
v_cmp_gt_u32 vcc, 14, v11
v_lshrrev_b32 v7, 2, v1
v_mul_u32_u24 v7, 2688, v7
v_cndmask_b32 v12, 28, v12, vcc
v_and_b32 v13, 15, v12
v_lshlrev_b32 v13, 4, v13
v_lshrrev_b32 v12, 4, v12
v_lshl_add_u32 v13, v12, 3, v13
v_lshl_add_u32 v13, v3, 8, v13
v_add_u32 v{vKVX}, {L_KVX}, v13
v_lshlrev_b32 v11, 4, v8
v_min_u32 v11, 40, v11
v_add_u32 v7, v7, v11""")
_m0 = _m2 if MORE else len(P.items)
I(f"""s_lshl_b32 s{sA}, s{sW}, 5
v_add_u32 v10, s{sA}, v9
v_mul_u32_u24 v10, 208, v10
v_mul_u32_u24 v11, 96, v3
v_add_u32 v{vIMW}, v10, v11
v_lshrrev_b32 v10, 4, v1
v_bfe_u32 v15, v1, 2, 2
v_lshl_add_u32 v10, v10, 3, v15
v_mul_u32_u24 v10, 208, v10
v_and_b32 v11, 1, v1
v_mul_u32_u24 v11, 96, v11
v_add_u32 v10, v10, v11
v_bfe_u32 v11, v1, 1, 1
v_lshl_add_u32 v10, v11, 3, v10
v_add_u32 v{vKB}, {L_IMG}, v10
s_lshl_b32 s{sA}, s{sW}, 4
v_add_u32 v{vKA}, s{sA}, v{vKB}
v_add_u32 v{vFPD}, s{sWM}, v2
s_lshl_b32 s{sD}, s{sW}, 7
s_add_u32 s{sD}, s{sD}, 4096
v_lshlrev_b32 v0, 1, v1
v_add_u32 v{vFPC}, s{sD}, v0
v_lshrrev_b32 v12, 3, v1
v_mul_u32_u24 v14, 896, v12
v_and_b32 v13, 7, v1
v_xor_b32 v12, v12, v13
v_lshl_add_u32 v{vXRD0}, v12, 4, v14
v_add_u32 v{vXRD1}, {7168-1024}, v{vXRD0}
v_bfe_u32 v12, v1, 4, 1
v_lshlrev_b32 v11, 2, v12
v_xor_b32 v11, v11, v13
v_lshl_add_u32 v{vWO0}, v11, 4, v14
v_add_u32 v{vWO1}, {7168-1024}, v{vWO0}
s_and_b32 s{sA}, s{sW}, 1
s_lshl_b32 s{sA}, s{sA}, 12
s_add_u32 s{sA}, s{sA}, {L_XCH}
v_lshlrev_b32 v10, 7, v9
v_lshl_add_u32 v10, v3, 3, v10
v_add_u32 v10, s{sA}, v10
s_lshr_b32 s{sA}, s{sW}, 1
s_lshl_b32 s{sB}, s{sA}, 2
v_xor_b32 v13, s{sB}, v13
v_lshl_add_u32 v{vXRR}, v13, 4, v10
v_mad_u32_u24 v10, v3, 14, v15
v_lshlrev_b32 v10, 7, v10
v_bfe_u32 v13, v1, 3, 1
v_xor_b32 v13, v13, v3
v_xor_b32 v13, s{sA}, v13
v_lshl_add_u32 v10, v13, 6, v10
v_lshl_add_u32 v10, v12, 5, v10
v_lshl_add_u32 v10, v8, 3, v10
s_mul_i32 s{sA}, s{sA}, {8*28*128}
s_add_u32 s{sA}, s{sA}, {L_WO}
v_add_u32 v{vWOR}, s{sA}, v10
v_lshl_add_u32 v11, v3, 3, v15
v_lshlrev_b32 v11, 6, v11
v_lshl_add_u32 v12, v12, 2, v8
v_cmp_lt_u32 vcc, 5, v12
v_xor_b32 v13, 1, v12
v_cndmask_b32 v12, v12, v13, vcc
v_lshl_add_u32 v11, v12, 3, v11
v_add_u32 v13, {L_WK}, v11""")
I(f"""v_bfe_u32 v10, v1, 2, 1
v_bfe_u32 v14, v1, 4, 1
v_lshl_add_u32 v10, v14, 1, v10
v_cmp_eq_u32 vcc, v10, v3
v_and_b32 v10, 1, v1
v_lshlrev_b32 v10, 4, v10
v_mov_b32 v14, 0x3f80
v_lshlrev_b32 v10, v10, v14
v_cndmask_b32 v10, 0, v10, vcc
v_bfe_u32 v14, v1, 3, 1
v_bfe_u32 v15, v1, 1, 1
v_lshl_add_u32 v14, v14, 1, v15""")
for q in range(4): I(f"v_cmp_eq_u32 vcc, {q}, v14\nv_cndmask_b32 v15, 0, v10, vcc\nv_accvgpr_write_b32 a{220+q}, v15")
I("v_add_u32 v9, 896, v7")
deferred += P.items[_m0:]; del P.items[_m0:]
NDEF0 = opt("ndef0", 0)
P.add(deferred[:NDEF0]); deferred = deferred[NDEF0:]
L2N = 0
if L2N:
    I(f"""s_mov_b32 s{sCt}, 0x60504020
s_cmp_ge_u32 s{sH}, 8
s_cselect_b32 s{sCt}, 0x53020100, s{sCt}
s_and_b32 s{sD}, s{sH}, 7
s_lshl_b32 s{sD}, s{sD}, 2
s_lshr_b32 s{sCt}, s{sCt}, s{sD}
s_and_b32 s{sCt}, s{sCt}, 15
s_and_b32 s{sD}, s{sT}, 3
s_mul_i32 s{sD}, s{sD}, 7
s_add_u32 s{sCt}, s{sCt}, s{sD}
s_lshl_b32 s{sCt}, s{sCt}, 2
s_add_u32 s{sCt}, s{sCt}, s{sW}
s_mul_i32 s66, s{sCt}, 14336
s_add_u32 s81, s66, 57344
s_lshl_b32 s{sD}, s{sH}, 1
s_lshr_b32 s{sD}, 0xa111444a, s{sD}
s_and_b32 s{sD}, s{sD}, 3
s_cmp_ge_u32 s{sD}, 1
s_cselect_b32 s66, s66, 0x10000000
s_cmp_ge_u32 s{sD}, 2
s_cselect_b32 s81, s81, 0x10000000
v_add_u32 v143, 7168, v6""")
def l2n(k): return mk(f"s_mov_b32 exec_hi, 0xffffff\nbuffer_load_dword v{142}, v{6 if k % 2 == 0 else 143}, {W1}, s{66 if k < 2 else 81} offen\ns_mov_b32 exec_hi, -1")
stamp("setup done", "p")
def wphi(dst, tmp, so):
    q = []
    for t in range(2):
        for j in range(8):
            d = 16 * t + 8 * (j >> 2) + (j & 3)
            av = vWPB if (t == 1 and j >= 4) else vWPA
            r = (dst if j % 2 == 0 else tmp) + 4 * t + j // 2
            op = "buffer_load_short_d16" if j % 2 == 0 else "buffer_load_short_d16_hi"
            q += mk(f"{op} v{r}, v{av}, {WPHI}, s{so} offen offset:{d*56}")
    return q
def wkdma(g): return flat(dmag([7], WQKV, sWB, f"s{sKW+g}", sWM, L_WK + 4096*g, f"wk{g}"))
def wvdma(g): return flat(dmag([9], WQKV, sWB, f"s{sKW+g}", sWM, L_WV + 4096*g, f"wv{g}"))
def wqdma(g): return flat(dmag([7], WQKV, sWQ, f"s{sKW+g}", sWM, L_WQ + 4096*g, f"wq{g}"))
if opt("fake", 0):
    I(f"""v_mov_b32 v7, v2
v_add_u32 v9, 24576, v2
s_mul_i32 s{sWB}, s{sH}, 73728
s_add_u32 s{sWB}, s{sWB}, s{sWM}
s_mul_i32 s{sWQ}, s{sHQ}, 73728
s_add_u32 s{sWQ}, s{sWQ}, s{sWM}
s_add_u32 s{sWQ}, s{sWQ}, 45056""")
    for g in range(7): I(f"s_lshl_b32 s{sKW+g}, s{sKX+g}, 5")
XF = 16
NX0 = opt("nx0", 3)
if opt("wt1", 0): P.add(wtouch(opt("wt1", 0), 249))
WPP = opt("wpp", 1)
if WPP == 1: P.add(wphi(WPK, WPT, 66) + wphi(WPQ, WPT+8, 81))
for g in range(NXE, NX0): P.add(xdma(g))
if WPP == 2: P.add(wphi(WPK, WPT, 66) + wphi(WPQ, WPT+8, 81))
pend = [xdma(g) for g in range(NX0, 7)]
wkl = [wkdma(g) for g in range(7)]
if TM and TM < NX0: P.add(sm_ld)
elif TM: pend[TM - NX0] = pend[TM - NX0] + sm_ld
if opt("wt2", 0): pend[-1] = pend[-1] + wtouch(opt("wt2", 0), 248)
pend.append(wkl.pop(0) + (wphi(WPK, WPT, 66) if not WPP else []))
pend.append(wkl.pop(0) + (wphi(WPQ, WPT+8, 81) if not WPP else []))
while len(pend) < 7: pend.append(wkl.pop(0))
def xrd(g): return flat([mk(f"ds_read_b128 {v(XF+16*g+4*e,4)}, v{240+e} offset:{4096*g}") for e in range(4)])
_n = opt("ndefx", 0)
while 0 < _n < len(deferred) and deferred[_n-1].op.startswith("s_cmp"): _n += 1
P.add(deferred[:_n]); deferred = deferred[_n:]
P.wait("x0"); P.add(xrd(0))
for g in range(7):
    if pend: P.add(pend.pop(0))
    if g + 1 < 7: P.wait(f"x{g+1}"); P.add(xrd(g + 1))
    for i in range(16):
        r = XF + 16*g + i
        I(f"v_dot2c_f32_bf16 v250, s{sONES}, v{r}\nv_dot2c_f32_bf16 v251, v{r}, v{r}")
    nd_ = -(-len(deferred) // max(1, opt("ndi", 4) - g)) if g < opt("ndi", 4) else len(deferred)
    while 0 < nd_ < len(deferred) and deferred[nd_-1].op.startswith("s_cmp"): nd_ += 1
    P.add(deferred[:nd_]); deferred = deferred[nd_:]
    if g == 0: stamp("x0 done", "p")
for x_ in pend: P.add(x_)
if opt("tp", 0) == 2:
    I(f"""s_mul_i32 s{sCt}, s2, {52*128}
s_mul_i32 s{sD}, s{sW}, {13*128}
s_add_u32 s{sCt}, s{sCt}, s{sD}
s_mov_b64 exec, 0x1fff
buffer_load_dword v254, v6, {W2}, s{sCt} offen
buffer_load_dword v255, v6, {W1}, s{sCt} offen
s_mov_b64 exec, -1""")
stamp("x stats done", "mp")
I(f"""v_permlane32_swap_b32 v250, v251
v_readfirstlane_b32 s{sA}, v5
s_nop 0
v_add_f32 v250, v250, v251
v_mul_f32 v250, {fhex(-1/448)}, v250
v_mov_b32 v251, v250
s_or_b32 s{sA}, s{sA}, 1
s_mul_i32 s{sA}, s{sA}, 0x9E3779B5
v_mov_b32 v5, s{sA}
s_mov_b32 s{sA}, 0x3f80
v_permlane32_swap_b32 v250, v251
s_mov_b32 s{sB}, 0x3f800000""")
fin = mk(f"""v_fma_f32 v251, -v250, v250, -v251
v_max_f32 v251, 0, v251
v_add_f32 v251, 0x3727c5ac, v251
v_rsq_f32 v251, v251
s_lshl_b32 s{sQ}, s{sC}, 7
s_mul_i32 s{sD}, s{sW}, {16*896}
v_mul_f32 v252, 0x3fb8aa3b, v251
v_mul_f32 v253, 0xbfb8aa3b, v251
s_add_u32 s{sQ}, s{sQ}, s{sD}
s_lshl_b32 s{sXO}, s{sW}, 11""")
if opt("noid", 1): fin = [mk(f"s_cmp_ge_u32 s{sRact}, 14\ns_cselect_b32 s22, 0, s22")] + fin
ACK = 144; ACV = 160; PK = 176; IMG = 208; TMP = 232
def norm(t):
    q = Prog(); tb = TMP + 8 * (t & 1)
    for i in range(4):
        r = XF + 4 * t + i
        q.I(f"v_dot2_f32_bf16 v{tb+2*i}, v{r}, s{sA}, v250\nv_dot2_f32_bf16 v{tb+2*i+1}, v{r}, s{sB}, v250")
    return q.items
def normc(t):
    tb = TMP + 8 * (t & 1)
    return flat([mk(f"v_cvt_pk_bf16_f32 v{XF+4*t+i}, v{tb+2*i}, v{tb+2*i+1}") for i in range(4)])
def l2t(srd, k, dst):
    return mk(f"""s_lshr_b32 s{sCt}, s2, 3
s_lshl_b32 s{sCt}, s{sCt}, 2
s_add_u32 s{sCt}, s{sCt}, s{sW}
s_mul_i32 s{sCt}, s{sCt}, {98*128}
s_mov_b32 exec_hi, 0x1ffff
s_add_u32 s{sCt}, s{sCt}, {k*49*128}
buffer_load_dword v{dst}, v6, {srd}, s{sCt} offen
s_mov_b32 exec_hi, -1""")
L2A, L2B = opt("l2a", -1), opt("l2b", -1)
touch = mk(f"""s_mul_i32 s{sCt}, s2, {52*128}
s_mul_i32 s56, s{sW}, {13*128}
s_add_u32 s{sCt}, s{sCt}, s56
s_mov_b64 exec, 0x1fff
buffer_load_dword v255, v6, {W1}, s{sCt} offen
buffer_load_dword v254, v6, {W2}, s{sCt} offen
s_mov_b64 exec, -1""")
TP = opt('tp', 0)
ns = norm(0)
for t in range(1, 28): ns += norm(t) + normc(t - 1)
ns += normc(27)
NBAR = opt("nbar", 100)
wvl = [wvdma(k) for k in range(7)]
if opt("loop2", 0):
    I("s_mov_b32 s80, 0\nL_lp2:\ns_mov_b32 s101, s100\ns_memtime s[78:79]\ns_waitcnt lgkmcnt(0)\ns_mov_b32 s99, s78")
    P.add([Ins(x.text) for x in ns])
    I("s_memtime s[78:79]\ns_waitcnt lgkmcnt(0)\ns_sub_u32 s100, s78, s99\ns_add_u32 s100, s100, s88\ns_add_u32 s80, s80, 1\ns_cmp_lt_u32 s80, 2\ns_cbranch_scc1 L_lp2")
    nstamp[0] = 14
P.add(sprinkle(ns[:NBAR], wkl, 0, opt("wkstep", 30)))
if opt("touch", 1) and TP == 1: P.add(touch)
I("s_barrier")
NWV0 = opt("nwv0", 4)
w0_ = [wvl.pop(0) for _ in range(NWV0)]
if L2N == 1: w0_[0] = l2n(0) + w0_[0]; w0_[-1] = w0_[-1] + l2n(2); wvl[-1] = wvl[-1] + l2n(1)
if L2N == 2: wvl[-1] = wvl[-1] + l2n(0) + l2n(2)
P.add(sprinkle(ns[NBAR:], w0_, opt("wv0", 30), opt("wvstep", 50)))
P.wait(*[f"wk{k}" for k in range(7)]); I("s_barrier")
stamp("wk landed", "p")
if opt("zy", 0): I(f"s_sleep {opt('zy', 0)}")
AH = 6
sW1B, sW1M, sW2E, sW2L = 40, 41, 42, 43
set2 = mk(f"""v_lshrrev_b32 v10, 4, v1
v_mul_u32_u24 v12, 3584, v10
v_lshlrev_b32 v10, 2, v10
v_and_b32 v13, 15, v1
v_xor_b32 v10, v10, v13
v_lshl_add_u32 v12, v10, 4, v12
v_add_u32 v13, {4*3584-1024}, v12
v_add_u32 v14, {2*(4*3584-1024)}, v12
v_add_u32 v15, {3*(4*3584-1024)}, v12
s_lshl_b32 s{sW1B}, s{sR}, 8
s_mul_i32 s{sD}, s{sW}, {16*3584}
s_add_u32 s{sW1B}, s{sW1B}, s{sD}
s_lshl_b32 s{sW1M}, s{sW}, 12
s_lshr_b32 s{sA}, s{sW}, 1
s_lshl_b32 s{sA}, s{sA}, 2
s_andn2_b32 s{sB}, 1, s{sW}
s_add_u32 s{sA}, s{sA}, s{sB}
s_lshl_b32 s{sB}, s{sU}, 1
s_add_u32 s44, s{sA}, s{sB}
s_xor_b32 s45, s44, 2
s_lshl_b32 s{sD}, s{sC}, 7
s_mul_i32 s{sW2E}, s44, {32*896}
s_add_u32 s{sW2E}, s{sW2E}, s{sD}
s_mul_i32 s{sW2L}, s45, {32*896}
s_add_u32 s{sW2L}, s{sW2L}, s{sD}
""")
vW2 = [vWO0, vWO1, 128, 129]
sSCR, sBIG = 46, 47
NA = opt("na", 0)
NUR = opt("nur", 2); NT1 = min(NA, opt("nt1", 99))
_u = list(range(14))
def take(n): return [_u.pop(0) for _ in range(min(n, len(_u)))]
UAW = take(NA); UR = take(NUR); UD = take(opt("nud", 2)); UE = take(3); UL = take(opt("nrl", 4)); UP = take(99)
assert all(j >= 7 for j in UL + UP) and all(j >= 4 for j in UE)
RAWS = UAW + UR + UL
def UA(j): return 16*j
def w2slot(j):
    if j in UE: return (sSCR, 4096*UE.index(j), 254)
    if j in UAW + UR + UD: return (sSCR, 4096*(j & 1), 254)
    return (sBIG, 4096*(UL + UP).index(j), 252)
def w2dma(j):
    mb, mo, _ = w2slot(j)
    return dmag(vW2, W2, sW2E if j < 7 else sW2L, (j%7)*256*896, mb, mo, f"w2_{j}", sDM)
def w2raw(j):
    ch = [mk(f"buffer_load_dwordx4 {a_(UA(j)+4*q,4)}, v{vW2[q]}, {W2}, s81 offen offset:{1024*q}") for q in range(4)]
    ch[0] = mk(f"s_add_u32 s81, s{sW2E if j < 7 else sW2L}, {(j%7)*256*896}") + ch[0]
    return ch
def w2rd(j):
    _, mo, av = w2slot(j)
    if j in RAWS: out = [mk(f"ds_write_b128 v{131 if j in UL else 134}, {a_(UA(j)+4*q,4)} offset:{mo+1024*q}") for q in range(4)]
    else: out = [[WaitTag([f"w2_{j}"])]]
    for e in range(2):
        for mu in range(2):
            for u in range(2): out.append(mk(f"ds_read_b64_tr_b16 {a_(UA(j)+8*e+4*mu+2*u,2)}, v{av+mu} offset:{mo+2048*e+1024*u}"))
    return out
raw = flat([w2raw(j) for j in UR])
rawA = flat([w2raw(j) for j in UAW])
if opt("noid", 1): set2 = [mk(f"s_cmp_ge_u32 s{sRact}, 14\ns_cselect_b32 s26, 0, s26")] + set2
set2 += mk(f"v_add_u32 v128, {2*(7168-1024)}, v{vWO0}\nv_add_u32 v129, {3*(7168-1024)}, v{vWO0}")
set2b = [x for x in set2 if isinstance(x, Ins) and x.cls == 'valu' and x.defs[0][1] < 128]
if opt("trim", 1):
    set2 = [mk(f"""s_cmp_eq_u32 s{sW}, 3
s_cselect_b64 vcc, {sHI}, 0
v_mov_b32 v143, 0x10000000
v_add_u32 v133, s{sWM}, v2
v_cndmask_b32 v142, v5, 0, vcc
v_cndmask_b32 v{vFPD}, v{vFPD}, v143, vcc
v_cndmask_b32 v{vFPC}, v{vFPC}, v143, vcc""")] + set2
set2b = [x for x in set2 if isinstance(x, list)] + set2b
set2a = [x for x in set2 if x not in set2b]
pro, gk = gemm_lds([(13, 1024*t, 1024*t + 256, (XF + 4*t, ACK, t == 0, False)) for t in range(28)], AH)
P.add(pro)
S = Sched(gk)
S.spread(wvl, 0, opt("wve", 16))
NQK = opt("nqk", 2)
S.spread([wqdma(k) for k in range(NQK)], opt("wve", 16), 28)
EARLY = opt("early", 0)
if EARLY:
    P.add(flat([x if isinstance(x, list) else [x] for x in fin + set2a])); fin = []
    wo_l = flat([dmag([vWO0, vWO1], WO, sQ, i*64*896, sXO, L_WO + 8192*i, "wo", sDM) for i in range(7)] + [dmag([vXRD0, vXRD1], X, sXRB, 0, sXO, L_XCH, "wo", sDM)])
    if EARLY == 2:
        S.spread([wo_l[2*i] + wo_l[2*i+1] for i in range(8)], 0, 28)
    else: S.spread([rawA.pop(0) for _ in range(min(len(rawA), opt("ne1", 8)))], 0, 28)
else: fin = fin + set2a
if TP == 3: S.at(opt("tpos", 22), touch)
for k, ps in enumerate((L2A, L2B)):
    if 0 <= ps < 28: S.at(ps, l2t(W1, k, 248 + k))
S.spread(fin + flat([mk(f"v_or_b32 v{WPK+q}, v{WPK+q}, v{WPT+q}\nv_or_b32 v{WPQ+q}, v{WPQ+q}, v{WPT+8+q}") for q in range(8)]), 2, 26)
P.add(S.emit())
def phi_pre(acc, wp):
    q = Prog()
    for i in range(8): q.I(f"v_cvt_pk_bf16_f32 v{acc+i}, v{acc+2*i}, v{acc+2*i+1}")
    q.I(f"{MF} {v(PK,16)}, {v(wp,4)}, {v(acc,4)}, 0\n{MF} {v(PK,16)}, {v(wp+4,4)}, {v(acc+4,4)}, {v(PK,16)}")
    return q.items
stamp("k gemm done", "mp")
wql = [wqdma(k) for k in range(NQK, 7)]
P.add(wql.pop(0))
P.add(phi_pre(ACK, WPK))
imw = flat([mk(f"ds_write_b128 v{vIMW}, {v(IMG+4*i,4)} offset:{L_IMG+16*i}") for i in range(3)]) + mk(f"ds_write_b64 v{vIMW}, {v(IMG+12,2)} offset:{L_IMG+48}")
smk = sprinkle(softmax(PK, TMP, IMG, True), [wql.pop(0) for _ in range(min(len(wql), opt("nwq0", 3)))], 10, opt("wqs", 40))
if EARLY: smk = sprinkle(smk, [rawA.pop(0) for _ in range(min(len(rawA), opt("ne2", 8)))], 5, 16)
WEAVE = opt("weave", 1)
pro, gv = gemm_lds([(11, L_WV + 1024*t, L_WV + 1024*t + 256, (XF + 4*t, ACV, t == 0, False)) for t in range(28)], AH)
S = Sched(gv)
if not WEAVE:
    P.add(smk)
    P.wait(*[f"wv{k}" for k in range(7)]); I("s_barrier")
    stamp("softmax k done", "p")
    P.add(pro)
    S.spread(imw, 2, 10)
else:
    smf = softmax(PK, TMP, IMG, 2)
    n0 = next(i for i, x in enumerate(smf) if x.op == "v_exp_f32")
    P.wait(*[f"wv{k}" for k in range(4)]); I("s_barrier")
    P.add(pro)
    P.add(smf[:n0])
    stamp("softmax k done", "p")
    S.spread(smf[n0:] + imw, 0, 28)
    S.at(15 - AH, [WaitTag(["wv4", "wv5", "wv6"])] + mk("s_barrier"), 1.0)
    wql = [wqdma(k) for k in range(NQK + 1, 7)]
wo_l = flat([dmag([vWO0, vWO1], WO, sQ, i*64*896, sXO, L_WO + 8192*i, "wo", sDM) for i in range(7)] + [dmag([vXRD0, vXRD1], X, sXRB, 0, sXO, L_XCH, "wo", sDM)])
if EARLY == 2: wo_l = []
S.spread(wql, 0, opt('wqe', 10))
if EARLY: S.spread([rawA.pop(0) for _ in range(min(len(rawA), opt("ne3", 8)))], 0, 22)
if L2A >= 0 or L2N: touch = [x for x in touch if W1 not in x.text]
if L2N == 1: S.at(opt("l2p", 14), l2n(3))
if L2N == 2: S.at(opt("l2p", 14), l2n(1) + l2n(3))
tlb = []
if opt("tlb", 0) & 1: tlb += mk(f"s_mov_b64 exec, 1\nbuffer_load_dword v248, v6, {OUT}, s{sOUT} offen\ns_mov_b64 exec, -1")
if opt("tlb", 0) & 2: tlb += mk(f"v_lshlrev_b32 v249, 20, v1\ns_mov_b64 exec, 0xffff\nbuffer_load_dword v249, v249, {WS}, 0 offen offset:4092\ns_mov_b64 exec, -1")
if tlb: S.at(opt("tlbp", 13), tlb)
if opt("touch", 1) and TP == 0: S.at(opt("tpos", 11), touch)
for k, ps in enumerate((L2A, L2B)):
    if 200 <= ps < 228: S.at(ps - 200, l2t(W1, k, 248 + k))
S.spread([wo_l.pop(0) for _ in range(2*opt("nwo0", 0))], opt("wos", 17), opt("woe2", 28))
P.add(S.emit())
for k in range(0, 16, 2): I(f"v_pk_mul_f32 {v(ACV+k,2)}, {v(ACV+k,2)}, v[250:251] op_sel:[0,1] op_sel_hi:[1,1]")
I(f"v_cndmask_b32 v{ACV+12}, v{ACV+12}, 1.0, {sHI}")
for i in range(8): I(f"v_cvt_pk_bf16_f32 v{IMG+16+i}, v{ACV+2*i}, v{ACV+2*i+1}")
for i in range(4, 6): I(f"ds_write_b128 v{vIMW}, {v(IMG+4*i,4)} offset:{L_IMG+16*i}")
P.wait("wq0", "wq1", "wq2", "wq3")
I("s_waitcnt lgkmcnt(0)\ns_barrier")
stamp("img written", "p")
KA = 144; KBv = 208; KD = 176
for k in range(4):
    for u in range(2):
        I(f"ds_read_b64_tr_b16 {v(KA+4*k+2*u,2)}, v{vKA} offset:{(32*k+4*u)*208}")
    for nu in range(2):
        for u in range(2):
            I(f"ds_read_b64_tr_b16 {v(KBv+8*k+4*nu+2*u,2)}, v{vKB} offset:{(32*k+4*u)*208+64+16*nu}")
proq, gq = gemm_lds([(11, L_WQ + 1024*t, L_WQ + 1024*t + 256, (XF + 4*t, ACV, t == 0, False)) for t in range(28)], AH)
for k in range(4):
    for nu in range(2):
        I(f"v_mfma_f32_16x16x32_bf16 {v(KD+4*nu,4)}, {v(KA+4*k,4)}, {v(KBv+8*k+4*nu,4)}, {'0' if k == 0 else v(KD+4*nu,4)}")
P.add(proq[:8])
for i in range(4): I(f"v_cvt_pk_bf16_f32 v{KD+8+i}, v{KD+2*i}, v{KD+2*i+1}")
I(f"buffer_store_dwordx4 {v(KD+8,4)}, v2, {WS}, s{sPST} offen sc1")
I(f"v_xor_b32 v10, v{KD+8}, v5")
I(f"buffer_store_short v10, v0, {WS}, s{sPCK} offen sc1")
if GATE & 1: P.add(flag_store(16))
P.add(proq[8:])
stamp("partial stored", "mp")
S = Sched(gq)
ROTP = opt("rotp", 1)
if ROTP:
    rp = []
    for b in range(4): rp += mk(f"s_lshr_b32 s{50+b}, s{sT}, 2\ns_add_u32 s{50+b}, s{50+b}, {b}\ns_and_b32 s{50+b}, s{50+b}, 3\ns_mul_i32 s{50+b}, s{50+b}, {4*4608}\ns_add_u32 s{50+b}, s{50+b}, s{sP}")
    S.spread(rp, 4, 20)
bgA = wo_l + rawA
nq = min(len(bgA), opt("nq", 16))
S.spread(bgA[:nq], 0, 28)
S.spread(set2b, 2, 18)
G0 = gate("g0", vPO, vPF)
if GATE & 1: S.at(opt("g0", 14), G0.load(0))
S.at(15 - AH, [WaitTag(["wq4", "wq5", "wq6"])] + mk("s_barrier"), 1.0)
P.add(S.emit())
stamp("q gemm done", "p")
G = 16; GC = 80; SA = 96
FP = Fetch("fp", [([f"s_add_u32 s{sCt}, s{50 + (T >> 2) if ROTP else sP}, {4608*(T & 3 if ROTP else T)}\nbuffer_load_dwordx4 {v(G+4*T,4)}, v{vFPD}, {WS}, s{sCt} offen sc1\nbuffer_load_ushort v{GC+T}, v{vFPC}, {WS}, s{sCt} offen sc1"],
                   [G+4*T, GC+T]) for T in range(16)])
NFE = opt("nfe", 4)
for T in range(NFE): P.add(FP.load(T))
P.add(phi_pre(ACV, WPQ))
I("s_barrier")
PQ = 208
smq = softmax(PK, TMP, PQ, True); f0 = opt("fp0", 30)
P.add(sprinkle(smq[:f0], bgA[nq:], 0, opt("as", 8)))
P.add(sprinkle(smq[f0:], [FP.load(T) for T in range(NFE, 16)], 0, opt("fpstep", 6)))
stamp("softmax q done", "p")
w1_l = flat([dmag([12, 13, 14, 15], W1, sW1B, i*64*3584, sW1M, 16384*i, "w1", sDM) for i in range(7)])
def fpb(b):
    t = []
    for k, T in enumerate(range(4*b, 4*b+4)):
        t.append(f"v_bitop3_b32 v{10 if k == 0 else 9}, v{G+4*T}, v{GC+T}, v{142 if opt('trim', 1) else 5} {X3}" + ("" if k == 0 else "\nv_or_b32 v10, v10, v9"))
    return "\n".join(t) + "\nv_cmp_ne_u16 vcc, 0, v10"
RI = TAIL.I if (opt("ool", 15) & 1) else I
if not (opt("ool", 15) & 1): I("s_branch L_fp_go")
RI("L_fp_retry:" + ("\ns_add_u32 s80, s80, 1" if DIAG else ""), unc=True)
for b in range(4):
    RI(fpb(b) + f"\ns_cbranch_vccz L_fp_k{b}\n" + "\n".join(FP.pieces[T][0][0] for T in range(4*b, 4*b+4)) + f"\nL_fp_k{b}:", unc=True)
RI(GUARD, unc=True)
if (opt("ool", 15) & 1): RI("s_branch L_fp_go", unc=True)
I("L_fp_go:")
I(fpb(0) + "\ns_cbranch_vccnz L_fp_retry")
S = Sched([mk(f"{MF} {v(SA,16)}, a[220:223], {v(G+4*T,4)}, {'0' if T == 0 else v(SA,16)}") for T in range(16)])
for b in range(1, 4): S.spread(mk(fpb(b) + "\ns_cbranch_vccnz L_fp_retry"), 4*b - 3, 4*b)
S.spread([w1_l.pop(0) for _ in range(opt("nw1a", 8))], opt("w1as", 2), 16)
P.add(S.emit())
I(f"v_add_u32 v9, {L_KVX}, v{133 if opt('trim', 1) else vFPD}")
for i in range(4): I(f"v_cvt_pk_bf16_f32 v{SA+8+i}, v{SA+2*i}, v{SA+2*i+1}")
I(f"ds_write_b128 v9, {v(SA+8,4)}\ns_waitcnt lgkmcnt(0)\ns_barrier")
stamp("kv summed", "mp")
KVA = 32; OD = 48
for q in range(7): I(f"ds_read_b64 {v(KVA+2*q,2)}, v{vKVX} offset:{512*q}")
P.add(w1_l.pop(0))
for s in range(3):
    I(f"{MF} {v(OD,16)}, {v(KVA+4*s,4)}, {v(PQ+4*s,4)}, {'0' if s == 0 else v(OD,16)}")
    if s == 1: P.add(w1_l.pop(0))
I(f"v_mfma_f32_32x32x8_bf16 {v(OD,16)}, {v(KVA+12,2)}, {v(PQ+12,2)}, {v(OD,16)}")
I(f"""s_lshl_b32 s{sP}, s{sTILE}, 15
s_lshr_b32 s{sB}, s{sW}, 1
s_lshl_b32 s{sB}, s{sB}, 14
s_add_u32 s{sP}, s{sP}, s{sB}
s_add_u32 s{sP}, s{sP}, {WS_O}
s_add_u32 s{sA}, s{sW1M}, {L_XCH}
v_add_u32 v132, s{sA}, v2
v_xor_b32 v133, 8192, v132
v_xor_b32 v9, 64, v{vWOR}
v_and_b32 v7, 31, v1
v_mul_u32_u24 v7, 896, v7
v_add_f32 v{OD+14}, 0x358637bd, v{OD+14}
v_rcp_f32 v{OD+14}, v{OD+14}
v_lshl_add_u32 v7, v3, 4, v7""")
for k in range(0, 14, 2): I(f"v_pk_mul_f32 {v(OD+k,2)}, {v(OD+k,2)}, {v(OD+14,2)} op_sel_hi:[1,0]")
for k in range(4): I(f"v_cvt_pk_bf16_f32 v{64+k}, v{OD+2*k}, v{OD+2*k+1}")
I(f"buffer_store_dwordx4 v[64:67], v2, {WS}, s{sOST} offen sc1")
for k in range(4, 7): I(f"v_cvt_pk_bf16_f32 v{64+k}, v{OD+2*k}, v{OD+2*k+1}")
I(f"""v_bitop3_b32 v71, v64, v5, s{sMASK} bitop3:0x28
v_and_b32 v6, s{sMASK}, v5
buffer_store_dwordx4 v[68:71], v2, {WS}, s{sOST} offen offset:1024 sc1""")
if GATE & 2: P.add(flag_store(7))
stamp("o stored", "mo")
P.wait("wo")
I(f"s_cmp_ge_u32 s{sRact}, 14\ns_cbranch_scc1 L_idle\ns_barrier")
wor = []
for s in range(16):
    hh, e = s >> 1, s & 1
    for k, av in ((0, vWOR), (1, 9)):
        for u in range(2):
            wor += mk(f"ds_read_b64_tr_b16 {a_(128+8*s+4*k+2*u,2)}, v{av} offset:{(28*hh+8*e+4*u)*128}")
XR = 224
xrr = []
for i in range(4): xrr += mk((f"v_xor_b32 v10, {16*i}, v{vXRR}\n" if i else "") + f"ds_read_b64 {v(XR+2*i,2)}, v{10 if i else vXRR}")
P.add(xrr)
G1 = gate("g1", vPO, vPF)
nb_ = min(opt("nw1b", 16), len(w1_l) - 8)
wor = sprinkle(wor, [w1_l.pop(0) for _ in range(nb_)], 0, opt("w1bs", 4))
if GATE & 2: wor = sprinkle(wor, [G1.load(0)], opt("g1", 40), 1)
P.add(wor)
OB = 16
FO = Fetch("fo", [([f"s_add_u32 s{sCt}, s{sP}, {2048*hh}\nbuffer_load_dwordx4 {v(OB+8*hh,4)}, v2, {WS}, s{sCt} offen sc1\nbuffer_load_dwordx4 {v(OB+8*hh+4,4)}, v2, {WS}, s{sCt} offen offset:1024 sc1"],
                   [OB+8*hh, OB+8*hh+7]) for hh in range(8)], masked=True, nre=opt('reo', 2))
stamp("pre o fetch", "o")
AO, AT = 80, 96
set3 = mk(f"""s_mul_i32 s{sSCR}, s{sW}, 12288
s_mul_i32 s{sBIG}, s{sW}, 28672
v_add_u32 v131, s{sBIG}, v2
s_lshl_b32 s{sB}, s{sC}, 1
s_lshr_b32 s{sD}, s{sW}, 1
s_add_u32 s{sB}, s{sB}, s{sD}
s_mul_i32 s{sA}, s{sTILE}, 14
s_add_u32 s{sB}, s{sB}, s{sA}
s_mul_i32 s{sPST}, s{sB}, 2432
s_add_u32 s{sPST}, s{sPST}, {WS_H}
s_lshr_b32 s48, s{sW}, 1
s_nop 0
v_bfe_u32 v9, v1, 2, 2
v_lshl_add_u32 v240, v3, 2, v9
v_lshlrev_b32 v254, 7, v240
v_lshlrev_b32 v240, 8, v240
v_xor_b32 v9, s{sW}, v9
v_lshl_add_u32 v240, v9, 6, v240
v_bfe_u32 v9, v1, 4, 1
v_lshlrev_b32 v9, 5, v9
v_lshl_add_u32 v9, v8, 3, v9
v_add_u32 v240, v240, v9
v_add_u32 v254, v254, v9
v_bfe_u32 v9, v1, 3, 1
v_xor_b32 v9, s48, v9
v_lshl_add_u32 v254, v9, 6, v254
s_add_u32 s{sSCR}, s{sSCR}, {L_SCR}
v_add_u32 v252, s{sBIG}, v254
v_xor_b32 v253, 64, v252
v_add_u32 v254, s{sSCR}, v254
v_add_u32 v134, s{sSCR}, v2
v_xor_b32 v255, 64, v254
v_xor_b32 v241, 64, v240
v_xor_b32 v242, 128, v240
v_xor_b32 v243, 192, v240""") + flat([mk(f"v_add_u32 v{244+m}, 57344, v{240+m}") for m in range(4)])
pre2 = []
for i in range(8): pre2 += mk(f"v_lshlrev_b32 v{112+2*i}, 16, v{XR+i}\nv_and_b32 v{113+2*i}, s{sHIM}, v{XR+i}")
for s in range(1, 16, 2): pre2 += mk(f"v_accvgpr_write_b32 a{128+8*s+3}, 0\nv_accvgpr_write_b32 a{128+8*s+7}, 0")
if GATE & 2:
    P.add(pre2); P.add(G1.check(0, 0))
    stamp("gate1", "o")
    for hh in range(8): P.add(FO.load(hh))
else:
    P.add(pre2[16:]); P.add(set3)
    I("s_waitcnt lgkmcnt(0)\ns_barrier")
    P.add(sprinkle(flat(flat([w2rd(j) for j in UAW[:NT1]])), [w1_l.pop(0) for _ in range(min(len(w1_l), opt("nw1s", 4)))], 0, 8))
    stamp("shadow done", "o")
    P.add(sprinkle(pre2[:16], [FO.load(hh) for hh in range(8)], 0, 2))
I("s_waitcnt lgkmcnt(0)\ns_barrier")
stamp("fo issued", "o")
g2 = []
for s in range(16):
    for k, acc in ((1, AT), (0, AO)):
        c = ("0" if k else v(112,16)) if s == 0 else v(acc,16)
        g2.append(mk(f"{MF} {v(acc,16)}, {a_(128+8*s+4*k,4)}, {v(OB+4*s,4)}, {c}"))

P.add(FO.check(0, 7))
stamp("fo0", "o")
S = Sched(g2)
for hh in range(1, 8): S.spread(FO.checkc(hh, 7), 4*hh - 3, 4*hh)
S.spread(w1_l + [raw.pop(0) for _ in range(min(len(raw), opt("rawb", 8)))], 0, 32)
P.add(S.emit())
stamp("p2 gemm done", "o")
for i in range(4): I(f"ds_write_b128 v132, {v(AT+4*i,4)} offset:{1024*i}")
I("v_mov_b32 v112, 0\nv_mov_b32 v113, 0\ns_waitcnt lgkmcnt(0)\ns_barrier")
for i in range(4): I(f"ds_read_b128 {v(AT+4*i,4)}, v133 offset:{1024*i}")
HR = XR
for k in range(0, 8, 2): I(f"v_pk_add_f32 {v(AO+k,2)}, {v(AO+k,2)}, {v(AT+k,2)}")
for i in range(4): I(f"v_cvt_pk_bf16_f32 v{HR+i}, v{AO+2*i}, v{AO+2*i+1}")
I(f"buffer_store_dwordx4 {v(HR,4)}, v2, {WS}, s{sPST} offen sc1")
for k in range(8, 16, 2): I(f"v_pk_add_f32 {v(AO+k,2)}, {v(AO+k,2)}, {v(AT+k,2)}")
for i in range(4, 8): I(f"v_cvt_pk_bf16_f32 v{HR+i}, v{AO+2*i}, v{AO+2*i+1}")
I(f"buffer_store_dwordx4 {v(HR+4,4)}, v2, {WS}, s{sPST} offen offset:1024 sc1")
for i in range(8): I(f"v_dot2c_f32_bf16 v112, s{sONES}, v{HR+i}\nv_dot2c_f32_bf16 v113, v{HR+i}, v{HR+i}")
I(f"""v_bitop3_b32 v10, v{HR}, v{HR+4}, v5 {X3}
v_permlane32_swap_b32 v112, v113
v_add_f32 v112, v112, v113
buffer_store_dword v112, v4, {WS}, s{sPST} offen offset:2048 sc1
v_xor_b32 v113, v10, v112
buffer_store_short v113, v0, {WS}, s{sPST} offen offset:2304 sc1""")
def selft(sreg, nl): return mk(f"s_mov_b64 exec, {(1 << nl) - 1}\nbuffer_load_dword v135, v134, {WS}, s{sreg} offen sc1\ns_mov_b64 exec, -1")
SELF = opt("self", 0)
if SELF & 1: P.add(selft(sPST, 20))
if GATE & 4: P.add(flag_store(14))
stamp("h stored", "moh")
HB = 16; ST = 192
ACC = [144, 160, 176, 192]; AUG = 232
set4 = mk(f"""s_lshl_b32 s{sB}, s{sT3}, 2
s_add_u32 s{sB}, s{sB}, s{sW}
s_mul_i32 s{sP}, s{sB}, {14*2432}
s_add_u32 s{sP}, s{sP}, {WS_H}
s_mul_i32 s{sA}, s{sB}, 56
s_lshl_b32 s{sD}, s{sR}, 2
s_add_u32 s{sA}, s{sA}, s{sD}
s_mul_i32 s{sQ}, s{sA}, 2176
s_add_u32 s{sQ}, s{sQ}, {WS_H1}
v_lshlrev_b32 v13, 3, v1
s_lshl_b32 s{sA}, s{sW}, 9
s_add_u32 s{sA}, s{sA}, {L_AUG}
v_add_u32 v13, s{sA}, v13
v_mov_b32 v222, 0""")
FH = Fetch("fh", [([f"s_add_u32 s{sCt}, s{sP}, {2432*p}\nbuffer_load_dwordx4 {v(HB+8*p,4)}, v2, {WS}, s{sCt} offen sc1\nbuffer_load_dwordx4 {v(HB+8*p+4,4)}, v2, {WS}, s{sCt} offen offset:1024 sc1\n"
                    f"buffer_load_dword v{ST+2*p}, v4, {WS}, s{sCt} offen offset:2048 sc1\nbuffer_load_ushort v{ST+2*p+1}, v0, {WS}, s{sCt} offen offset:2304 sc1"],
                   [HB+8*p, HB+8*p+4, ST+2*p, ST+2*p+1]) for p in range(14)], nre=opt('reh', 2))
for i in range(4): I(f"v_mov_b32 v{AUG+i}, s{sONES}")
P.wait("w1"); I("s_barrier")
stamp("w1 landed", "h")
if opt("zz", 0): I(f"s_sleep {opt('zz', 0)}")
def w1a(t, k): return (240 + k + (4 if t >= 14 else 0), (t % 14) * 4096, (t % 14) * 4096 + 2048)
st3 = [w1a(t, 0) + ((AUG, ACC[2], t == 0, True),) for t in range(28)]
TWO = opt("two", 0); N1 = 2 if TWO else 3
for t in range(28):
    for k in range(N1): st3.append(w1a(t, k) + ((HB + 4*t, ACC[k], t == 0, False),))
for t in range(28):
    for k in range(N1, 4): st3.append(w1a(t, k) + ((HB + 4*t, ACC[k], t == 0, False),))
pro, g3 = gemm_lds(st3, AH)
P.add(pro)
S3 = Sched(g3)
S3.spread(set4, 0, 8)
S3.spread(raw + flat([w2dma(j) for j in UD]), opt("c0s", 0), opt("c0e", 10)); raw = []
NH0 = opt("nh0", 4); H0 = opt("h0", 26)
G2 = gate("g2", vPO, vPF)
if GATE & 4:
    S3.at(opt("g2", 12), G2.load(0), 0.9)
    S3.at(27, G2.check(0, 0) + stampi("gate2", "h") + flat([FH.load(p) for p in range(NH0)]), 0.5)
else: S3.spread(flat([FH.loadc(p) for p in range(NH0)]), H0, 27)
cs = ACC[2]
csx = mk(f"""v_cvt_pk_bf16_f32 v{AUG}, v{cs}, v{cs}
v_lshlrev_b32 v{AUG+1}, 16, v{AUG}
v_sub_f32 v{AUG+1}, v{cs}, v{AUG+1}
v_cvt_pk_bf16_f32 v{AUG}, v{cs}, v{AUG+1}
v_and_b32 v{AUG+1}, 0xffff, v{AUG}
v_cndmask_b32 v{AUG}, v{AUG}, 0, {sHI}
v_cndmask_b32 v{AUG+1}, v{AUG+1}, 0, {sHI}
ds_write_b64 v13, {v(AUG,2)}""")
S3.at(27, stampi("colsum done", "h") + csx + FH.check(0, NH0 - 1) + stampi("fh0", "h"), 1.0)
B0 = 28
for p in range(14):
    b = B0 + 2*N1*p
    if p + NH0 < 14:
        for k_, c_ in enumerate(FH.loadc(p + NH0)): S3.at(b + ((0, 2, 1, 3) if TWO else (0, 2, 4, 4))[k_], c_, 0.2)
    S3.at(b, mk(f"v_add_f32 v222, v222, v{ST+2*p}"), 0.0)
    if p + 1 < 14: S3.spread(FH.checkc(p + 1, min(13, p + NH0 - 1)), b + 1, b + 2*N1)
    if p in (3, 7, 11): S3.at(b + 2*N1 - 1, stampi(f"fh{p+1}", "h"), 1.0)
S3.at(B0 + 14, mk("s_barrier") + flat([mk(f"v_xor_b32 v9, {512*k}, v13\nds_read_b64 {v(AUG+2*k,2)}, v9") for k in range(1, 4)]), 0.0)
mid = mk(f"""v_mul_f32 v220, {fhex(1/448)}, v222
v_mov_b32 v221, v220
s_nop 0
v_permlane32_swap_b32 v220, v221
v_fma_f32 v221, -v220, v220, v221
v_max_f32 v221, 0, v221
v_add_f32 v221, 0x3727c5ac, v221
v_rsq_f32 v251, v221
v_cvt_pk_bf16_f32 v222, -v220, -v220
v_lshlrev_b32 v9, 16, v222
v_sub_f32 v9, -v220, v9
v_cvt_pk_bf16_f32 v223, v9, 0
v_mul_f32 v250, v221, v251
v_mul_f32 v251, 0xbfb8aa3b, v251
v_cndmask_b32 v222, v222, 0, {sHI}
v_cndmask_b32 v223, v223, 0, {sHI}""")
S3.spread(mid, *((B0 + 53, B0 + 59) if TWO else (B0 + 79, B0 + 84)))
def aug(k): return mk(f"v_mfma_f32_32x32x8_bf16 {v(ACC[k],16)}, {v(AUG+2*k,2)}, v[222:223], {v(ACC[k],16)}")
SLT = 132
def silu(k, pk):
    q = Prog(); a = ACC[k]; t = 208
    q.I(f"s_xor_b32 s50, s{sW}, {k}\ns_mul_i32 s50, s50, 2176\ns_add_u32 s50, s50, s{sQ}")
    for half in range(2):
        b = a + 8 * half
        if pk:
            for j in range(0, 8, 2): q.I(f"v_pk_mul_f32 {v(t+j,2)}, {v(b+j,2)}, v[250:251] op_sel:[0,1] op_sel_hi:[1,1]")
        else:
            for j in range(8): q.I(f"v_mul_f32 v{t+j}, v{b+j}, v251")
        for j in range(8): q.I(f"v_exp_f32 v{t+j}, v{t+j}")
        if pk:
            for j in range(0, 8, 2): q.I(f"v_pk_fma_f32 {v(t+j,2)}, {v(t+j,2)}, v[250:251], v[250:251] op_sel_hi:[1,0,0]")
        else:
            for j in range(8): q.I(f"v_fma_f32 v{t+j}, v{t+j}, v250, v250")
        for j in range(8): q.I(f"v_rcp_f32 v{t+j}, v{t+j}")
        if pk:
            for j in range(0, 8, 2): q.I(f"v_pk_mul_f32 {v(b+j,2)}, {v(b+j,2)}, {v(t+j,2)}")
        else:
            for j in range(8): q.I(f"v_mul_f32 v{b+j}, v{b+j}, v{t+j}")
        for j in range(4): q.I(f"v_cvt_pk_bf16_f32 v{b+j}, v{b+2*j}, v{b+2*j+1}")
        q.I(f"buffer_store_dwordx4 {v(b,4)}, v2, {WS}, s50 offen offset:{1024*half} sc1")
    q.I(f"v_bitop3_b32 v216, v5, v{a}, v{a+8} {X3}")
    q.I(f"buffer_store_short v216, v0, {WS}, s50 offen offset:2048 sc1")
    return q.items + ([selft(50, 18)] if SELF & 2 and not pk else [])
E0 = B0 + 28*N1
assert not raw
if TWO:
    S3.spread(flat([w2rd(j) for j in UD + UR + UAW[NT1:]]), B0 + 8, B0 + 42)
    S3.at(B0 + 34, mk("s_barrier"), 0.0)
    S3.spread(flat([w2dma(j) for j in UE]), B0 + 48, E0 + opt("wde", 12))
else:
    S3.spread(flat([w2rd(j) for j in UD + UR + UAW[NT1:]]), B0 + 22, B0 + 58)
    S3.at(B0 + 44, mk("s_barrier"), 0.0)
    S3.spread(flat([w2dma(j) for j in UE]), B0 + opt('twd', 64), E0)
B4 = 16
CKR = [240, 241, 244, 245, 248, 249, 217, 218, 219, 130, 242, 246, 243, 247]
C4 = [[a_(224,16), a_(240,16)], [v(ACC[0],16), v(ACC[1],16)]]
set5 = mk(f"""s_mul_i32 s{sA}, s{sTILE}, 56
s_xor_b32 s{sB}, s{sTILE}, 1
s_mul_i32 s{sB}, s{sB}, 56
s_add_u32 s51, s{sB}, s44
s_add_u32 s52, s{sA}, s44
s_add_u32 s53, s{sB}, s45
s_add_u32 s54, s{sA}, s45""")
for k in range(4):
    set5 += mk(f"s_mul_i32 s{51+k}, s{51+k}, 2176\ns_add_u32 s{51+k}, s{51+k}, {WS_H1}")
S3.spread(set5, B0 + 42, B0 + 52)
def piece4(n):
    st, i = n // 7, n % 7; r = B4 + 8 * (n % 14); c = CKR[n % 14]
    return ([f"s_add_u32 s{sCt}, s{51+st}, {8*2176*i}\nbuffer_load_dwordx4 {v(r,4)}, v2, {WS}, s{sCt} offen sc1\nbuffer_load_dwordx4 {v(r+4,4)}, v2, {WS}, s{sCt} offen offset:1024 sc1\n"
             f"buffer_load_ushort v{c}, v0, {WS}, s{sCt} offen offset:2048 sc1"], [r, r+4, c])
F4 = Fetch("f4", [piece4(n) for n in range(28)], nre=opt("re4", 3))
ND = opt("nd", 5)
N0 = ND if TWO else opt("n0", 4)
rawl = flat([w2raw(j) for j in UL])
nr0 = min(len(rawl), opt("nr0", 4))
if TWO:
    S3.at(E0 - 1, stampi("p3 pass1 done", "mh"), 1.0)
    g3[E0 + 3] = aug(0) + g3[E0 + 3]; g3[E0 + 4] = aug(1) + g3[E0 + 4]
    S3.spread(silu(0, False) + [stampi("silu0 done", "e")], E0 + 5, E0 + opt("s0e", 21))
    S3.spread(silu(1, False), E0 + opt("s0e", 21), E0 + opt("s1e", 44))
    S3.spread(rawl, E0 + opt("wde", 12), E0 + opt("rle", 36))
    DEEP = opt("deep", 0)
    if DEEP:
        rng = [(opt("a0", -18), opt("b0", 4)), (opt("a1", 6), opt("b1", 24)), (opt("a2", 26), opt("b2", 50)), (opt("a3", 50), opt("b3", 78))]
        f4pos = []
        for n in range(28):
            a, b = rng[n // 7]
            for k_, c_ in enumerate(F4.loadc(n)):
                pos = a + (b - a) * ((n % 7) + (0, 0.45, 0.9)[k_]) / 7
                lo = (4*n + 4 - 56) if n < 14 else 4*(n - 14) + 4
                pos = max(pos, lo + 0.01*k_); assert pos < 4*n - 3 or n == 0, (n, pos)
                f4pos.append((pos, c_))
        for i_ in range(1, len(f4pos)): assert f4pos[i_][0] >= f4pos[i_-1][0], i_
        import math
        for pos, c_ in f4pos:
            if pos < 0: S3.at(E0 + 56 + math.floor(pos), c_, pos - math.floor(pos))
    else: S3.spread(flat([F4.loadc(n) for n in range(ND)]), E0 + opt("f4s", 52), E0 + 56)
    P.add(S3.emit())
    P.add(aug(2) + aug(3))
else:
    S3.at(E0 - 1, stampi("p3 pass1 done", "mh") + aug(0) + aug(1) + aug(2) + sprinkle(silu(0, True), rawl[:nr0], 3, 12) + stampi("silu0 done", "e"), 1.0)
    S3.spread(silu(1, False) + (silu(2, False) if opt("s2p", 1) else []), E0, E0 + opt("t1e", 26))
    S3.spread(rawl[nr0:], E0, E0 + opt("tre", 20))
    S3.spread(flat([F4.loadc(n) for n in range(N0)]), E0 + opt("f4t", 20), E0 + 28)
    P.add(S3.emit())
    P.add(aug(3))
I("s_barrier")
stamp("p3 gemm done", "me")
g4 = []
for n in range(28):
    st, i = n // 7, n % 7; hf, par = st >> 1, st & 1
    for e in range(2):
        for mu in range(2):
            zero = hf == 0 and i == 0 and e == 0 and not (par == 1 and mu == 0)
            g4.append(mk(f"{MF} {C4[par][mu]}, {a_(UA(7*hf+i)+8*e+4*mu,4)}, {v(B4+8*(n%14)+4*e,4)}, {'0' if zero else C4[par][mu]}"))
P.add(F4.check(0, N0 - 1))
S = Sched(g4)
nxt = N0
for n in range(28):
    prev = nxt
    if nxt < 28 and not (TWO and DEEP):
        if nxt < n + ND and nxt + 1 < 28:
            for k_, c_ in enumerate(F4.loadc(nxt) + F4.loadc(nxt + 1)): S.at(4*n + (0, 1, 1, 2, 3, 3)[k_], c_, 0.2 + 0.01*k_)
            nxt += 2
        else:
            for k_, c_ in enumerate(F4.loadc(nxt)): S.at(4*n + (0, 2, 1)[k_], c_, 0.2)
            nxt += 1
    if n + 1 < 28: S.spread(F4.checkc(n + 1, max(n + 1, prev - 1)), 4*n + 2, 4*n + 4)
    if n in (6, 13, 20): S.at(4*n + 3, stampi(f"stage{n//7} done", "e"), 1.0)
unp = []
for i in range(8): unp += mk(f"v_lshlrev_b32 v{ACC[0]+2*i}, 16, v{HR+i}\nv_and_b32 v{ACC[0]+1+2*i}, s{sHIM}, v{HR+i}")
if TWO and DEEP:
    for pos, c_ in f4pos:
        if pos >= 0: S.at(int(pos), c_, pos - int(pos))
S2E, S3E = opt("s2e", 16), opt("s3e", 22)
if opt("s2p", 1) and not TWO: S2E = 1
else: S.spread(silu(2, False), 0, S2E)
S.spread(unp, 22, 27)
S.spread(silu(3, False), S2E, S3E)
S.spread(flat([w2rd(j) for j in UE if j < 7]), 0, 14)
S.spread(flat([w2dma(j) for j in UP]), opt("w2a", 20), opt("w2b", 46))
for j in [x for x in UE + UL + UP if x >= 7]: S.spread(w2rd(j), 44 + 5*(j-7), 49 + 5*(j-7))
S.at(82, mk(f"""s_lshl_b32 s{sA}, s{sW}, 14
v_add_u32 v13, s{sA}, v2
v_xor_b32 v9, 16384, v13
v_xor_b32 v12, 32768, v13
v_xor_b32 v14, 49152, v13
s_waitcnt lgkmcnt(0)
s_barrier"""))
S.spread([mk(f"ds_write_b128 v{9 if mu == 0 else 14}, {a_(224+16*mu+4*i,4)} offset:{4096*(2*mu+1)+1024*i}") for mu in range(2) for i in range(4)], 87, 99)
S.at(100, mk("s_waitcnt lgkmcnt(0)\ns_barrier"), 0.0)
S.spread([mk(f"ds_read_b128 {v(ACC[2+mu]+4*i,4)}, v13 offset:{4096*(2*mu+1)+1024*i}") for mu in range(2) for i in range(4)], 100, 104)
S.spread([mk(f"v_add_f32 v{ACC[2]+k}, v{ACC[2]+k}, v{ACC[3]+k}") for k in range(16)], 107, 112)
P.add(S.emit())
stamp("p4 gemm done", "me")
for i in range(4): I(f"ds_write_b128 v12, {v(ACC[1]+4*i,4)} offset:{8192+1024*i}")
if opt("cout", 0):
    I(f"""v_lshlrev_b32 v16, 3, v3
v_sub_u32 v16, v{vXRR}, v16
v_lshlrev_b32 v17, 4, v3
v_xor_b32 v16, v16, v17
v_xor_b32 v17, 32, v16
s_add_u32 s{sA}, s{sXO}, {L_XCH}
v_add_u32 v18, s{sA}, v2""")
I("s_waitcnt lgkmcnt(0)\ns_barrier")
for i in range(4): I(f"ds_read_b128 {v(ACC[3]+4*i,4)}, v13 offset:{8192+1024*i}")
for k in range(0, 16, 2): I(f"v_pk_add_f32 {v(ACC[0]+k,2)}, {v(ACC[0]+k,2)}, {v(ACC[2]+k,2)}")
for hf in range(2):
    b = ACC[0] + 8*hf
    for k in range(0, 8, 2): I(f"v_pk_add_f32 {v(b+k,2)}, {v(b+k,2)}, {v(ACC[3]+8*hf+k,2)}")
    for i in range(4): I(f"v_cvt_pk_bf16_f32 v{96+4*hf+i}, v{b+2*i}, v{b+2*i+1}")
    if not opt("cout", 0):
        I(f"v_permlane32_swap_b32 v{96+4*hf}, v{98+4*hf}\nv_permlane32_swap_b32 v{97+4*hf}, v{99+4*hf}\nbuffer_store_dwordx4 {v(96+4*hf,4)}, v7, {OUT}, s{sOUT} offen offset:{32*hf} {OPT.get('ofl', '')}")
    else:
        I(f"v_permlane32_swap_b32 v{96+4*hf}, v{98+4*hf}\nv_permlane32_swap_b32 v{97+4*hf}, v{99+4*hf}\nds_write_b128 v{16+hf}, {v(96+4*hf,4)}")
if opt("cout", 0):
    I("s_waitcnt lgkmcnt(0)\ns_barrier")
    for i in range(2): I(f"ds_read_b128 {v(104+4*i,4)}, v18 offset:{1024*i}")
    for i in range(2): I(f"buffer_store_dwordx4 {v(104+4*i,4)}, v{vXRD0+i}, {OUT}, s{sXRB} offen offset:{1024*i} {OPT.get('ofl', '')}")
stamp("end", "mpohez")
I(f"""s_cmp_lg_u32 s2, 0
s_cbranch_scc1 L_ex0
v_mov_b32 v9, 0""")
I(f"buffer_store_dword v5, v9, {WS}, 0 offen sc1", unc=True)
I("L_ex0:")
if opt("enc", 0):
    mode = opt("enc", 0)
    if mode <= 4:
        I(f"s_bfe_u32 s{sA}, s80, {hex(0x80000 | (8*(mode-1)))}\ns_min_u32 s{sA}, s{sA}, 1\ns_mul_i32 s{sA}, s{sA}, 2000", unc=True)
    else:
        I(f"s_waitcnt lgkmcnt(0)\ns_sub_u32 s{sA}, s{sSTAMP+2}, s78\ns_mul_i32 s{sA}, s{sA}, 4", unc=True)
    I(f"""s_memrealtime s[40:41]
s_waitcnt lgkmcnt(0)
L_enc:
s_memrealtime s[42:43]
s_waitcnt lgkmcnt(0)
s_sub_u32 s42, s42, s40
s_cmp_lt_u32 s42, s{sA}
s_cbranch_scc1 L_enc
s_branch L_end""", unc=True)
if opt("dbg", 0):
    I(f"""s_cmp_lg_u32 s{sW}, 0
s_cbranch_scc1 L_end
s_load_dwordx2 s[40:41], s[0:1], 64
s_mov_b32 s42, 256
s_mov_b32 s43, 0x20000
s_mov_b64 exec, 1
v_mov_b32 v9, 0
s_waitcnt lgkmcnt(0)""", unc=True)
    for k in range(nstamp[0]):
        I(f"s_sub_u32 s{sA}, s{sSTAMP+2*k}, s78\nv_mov_b32 v10, s{sA}\nbuffer_atomic_umax v10, v9, s[40:43], 0 offen offset:{4*k}\ns_nop 1", unc=True)
    I(f"""v_mov_b32 v10, s78
buffer_atomic_umax v10, v9, s[40:43], 0 offen offset:32
s_not_b32 s{sA}, s78
v_mov_b32 v11, s{sA}
buffer_atomic_umax v11, v9, s[40:43], 0 offen offset:36
v_mov_b32 v12, s{sSTAMP+2*(nstamp[0]-1)}
buffer_atomic_umax v12, v9, s[40:43], 0 offen offset:40
v_mov_b32 v13, s80
buffer_atomic_add v13, v9, s[40:43], 0 offen offset:44
s_branch L_end""", unc=True)
I("L_exit:")
if DIAG and not opt("dbg", 0):
    I(f"s_cmp_lg_u32 s{sW}, {opt('dw', 0)}\ns_cbranch_scc1 L_end\ns_lshl_b32 s{sA}, s2, 7\ns_add_u32 s{sA}, s{sA}, {WS_DIAG}\nv_mov_b32 v9, 0", unc=True)
    for k in range(nstamp[0]):
        I(f"s_waitcnt lgkmcnt(0)\nv_mov_b32 v10, s{sSTAMP+2*k}\nbuffer_store_dword v10, v9, {WS}, s{sA} offen offset:{4*k}", unc=True)
    if SEL == ["z"]: I(f"v_mov_b32 v10, s78\nbuffer_store_dword v10, v9, {WS}, s{sA} offen offset:120", unc=True)
    I(f"v_mov_b32 v10, s80\nbuffer_store_dword v10, v9, {WS}, s{sA} offen offset:124", unc=True)
I("L_end:\ns_endpgm")
I(f"""L_idle:
s_and_b32 s{sA}, s{sT2}, 1
s_lshl_b32 s{sA}, s{sA}, 1
s_add_u32 s{sA}, s{sA}, s{sRact}
s_sub_u32 s{sA}, s{sA}, 14
s_lshl_b32 s{sA}, s{sA}, 2
s_add_u32 s{sA}, s{sA}, s{sW}
s_lshl_b32 s{sA}, s{sA}, 13
v_lshlrev_b32 v9, 7, v1
s_lshr_b32 s{sD}, s{sT2}, 1
s_mul_i32 s{sD}, s{sD}, {8*56*2176}
s_add_u32 s{sD}, s{sD}, {WS_H1}
s_add_u32 s{sD}, s{sD}, s{sA}
s_mov_b32 s{sB}, {opt("idle2", 0)}
s_cmp_eq_u32 s{sB}, 0
s_cbranch_scc1 L_idle3
L_idle2:
buffer_load_dword v11, v9, {WS}, s{sD} offen {OPT.get("i2f", "")}
s_add_u32 s{sD}, s{sD}, {16*8192}
s_sub_u32 s{sB}, s{sB}, 1
s_cmp_lg_u32 s{sB}, 0
s_cbranch_scc1 L_idle2
L_idle3:
s_mov_b32 s{sB}, {opt("idle", 0)}
s_cmp_eq_u32 s{sB}, 0
s_cbranch_scc1 L_exit
L_idle1:
buffer_load_dword v11, v9, {W2}, s{sA} offen
s_add_u32 s{sA}, s{sA}, {16*8192}
s_sub_u32 s{sB}, s{sB}, 1
s_cmp_lg_u32 s{sB}, 0
s_cbranch_scc1 L_idle1
s_branch L_exit""", unc=True)
P.add(TAIL.items)

for it in P.items:
    if isinstance(it, Ins) and it.text.startswith('buffer_load_dword v142,'): it.defs = []
for it in P.items:
    if isinstance(it, Ins) and it.op == "buffer_load_dwordx4":
        for bit, srd in ((1, W1), (2, W2), (4, WO), (8, WQKV), (16, X)):
            if opt("wf", 0) & bit and srd in it.text:
                fl = OPT.get("wfl", "nt")
                it.text = it.text.replace(" lds", f" {fl} lds") if it.text.endswith(" lds") else it.text + " " + fl
PL = opt("plain", 0)
for it in P.items:
    if isinstance(it, Ins) and it.op.startswith("buffer_store") and "sc1" in it.text:
        ish1 = " s50 " in it.text or " s49 " in it.text
        ish = ("v[224:227]" in it.text or "v[228:231]" in it.text or "v112," in it.text or "v113," in it.text)
        if (ish and PL & 1) or (ish1 and PL & 2): it.text = it.text.replace(" sc1", OPT.get("pfl", ""))
if opt("pld", 0):
    c = 0
    for it in P.items:
        if isinstance(it, Ins) and it.op.startswith("buffer_load") and "sc1" in it.text and " s56 " in it.text and not it.uncounted:
            c += 1
            kind = 0 if c <= 48 else 1 if c <= 104 else 2
            if opt("pld", 0) & kind: it.text = it.text.replace(" sc1", OPT.get("lfl", ""))
if opt("nochk", 0):
    new = []; seen_end = False
    for it in P.items:
        if isinstance(it, Ins):
            if opt("nochk", 0) == 2 and not seen_end:
                if it.text.startswith("L_exit"): seen_end = True
                elif it.uncounted or it.op in ("s_cbranch_vccz", "s_branch"): continue
            if it.op == "s_cbranch_vccz" and not it.uncounted: it = Ins(it.text.replace("s_cbranch_vccz", "s_branch"))
            elif it.op == "s_cbranch_vccnz" and not it.uncounted: continue
            t = it.text
            if it.op.startswith("buffer_store") and "sc1" in t and not it.uncounted:
                kind = 8 if " s50 " in t else 4 if ("v[224" in t or "v[228" in t or "v112," in t or "v113," in t) else 2 if f" s{sOST} " in t else 1
                if opt("nost", 0) & kind: continue
            if it.op.startswith("buffer_load") and "sc1" in t and " s56 " in t and not it.uncounted:
                cnt_ld = globals().setdefault("_c", [0]); cnt_ld[0] += 1; c = cnt_ld[0]
                kind = 1 if c <= 32 else 2 if c <= 48 else 4 if c <= 104 else 8
                if opt("nold", 0) & kind: continue
        new.append(it)
    P.items = new
body, items = render(P.items)
if opt("align", 1):
    import subprocess, re as _re
    open("_al.s", "w").write('.amdgcn_target "amdgcn-amd-amdhsa--gfx950"\n.text\n' + body)
    subprocess.run(["clang", "-x", "assembler", "-target", "amdgcn-amd-amdhsa", "-mcpu=gfx950", "-c", "_al.s", "-o", "_al.o"], check=True)
    dis = subprocess.run(["llvm-objdump", "-d", "--mcpu=gfx950", "_al.o"], capture_output=True, text=True).stdout
    sizes = [4 * len(m.group(1).split()) for m in _re.finditer(r"// [0-9A-F]{12}: ((?:[0-9A-F]{8} ?)+)", dis)]
    real = [i for i in items if i.cls not in ('label', 'dir')]
    assert len(sizes) == len(real), (len(sizes), len(real))
    sz = {id(i): n for i, n in zip(real, sizes)}
    new = []; off = 0; nal = 0; MINRUN = opt("minrun", 6)
    for k, it in enumerate(items):
        if id(it) in sz and sz[id(it)] == 8 and off % 8 == 4 and not it.uncounted:
            run = 0
            for j in items[k:k + MINRUN + 4]:
                if id(j) not in sz: continue
                if sz[id(j)] != 8 or j.cls == 'mfma': break
                run += 1
            if run >= MINRUN:
                p = new[-1] if new else None
                if p is not None and p.cls == 'valu' and sz.get(id(p)) == 4 and not p.op.startswith(('v_permlane', 'v_dot2c', 'v_readfirst', 'v_accvgpr', 'v_cmp', 'v_cndmask')) and not p.op.endswith('_e64'):
                    p.text = p.text.replace(p.op, p.op + "_e64", 1)
                else: new.append(Ins("s_nop 0"))
                off += 4; nal += 1
        new.append(it); off += sz.get(id(it), 0)
    items = new
    body = '\n'.join(('' if i.cls == 'label' else '  ') + i.text for i in items) + '\n'
    print("alignment fixes:", nal, "code bytes", off)
hdr = open("cdna_kernels/" + NAME + ".s.ref").read().split("; Override launch")[0]
out = hdr + f"""; @launch grid=(256,1,1) block=(256,1,1) lds={LDS_SIZE}
.amdgcn_target "amdgcn-amd-amdhsa--gfx950"
.text
.globl {NAME}_kernel
.p2align 8
.type {NAME}_kernel,@function
{NAME}_kernel:
{body}.fill 2048, 4, 0xbf810000
.section .rodata,"a"
.p2align 6
.amdhsa_kernel {NAME}_kernel
  .amdhsa_next_free_vgpr 512
  .amdhsa_next_free_sgpr 102
  .amdhsa_accum_offset 256
  .amdhsa_group_segment_fixed_size 0
  .amdhsa_kernarg_size 80
  .amdhsa_user_sgpr_count 2
  .amdhsa_user_sgpr_kernarg_segment_ptr 1
  .amdhsa_system_sgpr_workgroup_id_x 1
.end_amdhsa_kernel
"""
open(sys.argv[1], "w").write(out)
n = sum(1 for i in items if i.cls not in ('label', 'dir'))
nu_ = sum(1 for i in items if i.cls not in ('label', 'dir') and i.uncounted)
print("instructions:", n, "(slow path", nu_, ") nops:", sum(1 for i in items if i.op == 's_nop'), "waits:", sum(1 for i in items if i.op == 's_waitcnt'), "stamps", nstamp[0])
```

```python
import sys, struct
from asmlib import *

NAME = "sequential_preLN__linear_kernel_hedgehog__dense_activation_silu__prompt"
DIAG = int(sys.argv[2]) if len(sys.argv) > 2 else 0
OPT = dict(a.split('=') for a in sys.argv[3:])
def opt(k, d): return int(OPT[k], 0) if k in OPT else d

WS_PART = 0x40000
WS_O    = 0x240000
WS_H    = 0x440000
WS_H1   = 0x680000
WS_DIAG = 0xE80000
WS_FLG  = 0xF00000
WS_SIZE = 0xF80000
XW = 28672
L_WV, L_WQ, L_WK, L_WO = 0, 28672, 57344, 86016
L_IMG = L_WK
L_KVX = 143360
L_XCH = 147456
L_SCR = 114688
L_AUG = 161792
LDS_SIZE = 163840
sW, sT, sH, sT2, sR = 3, 4, 5, 6, 7
X, WQKV, WPHI, WO, W1, W2, OUT, WS = [f"s[{i}:{i+3}]" for i in range(8, 40, 4)]
sKX, sKW = 40, 47
sHQ, sHIM = 54, 55
sRET = "s[56:57]"
sSPIN, sP, sU, sC, sMASK, sQ = 58, 59, 60, 61, 62, 63
sHI = "s[64:65]"
sLOG = "s[66:67]"
sONES, sTILE = 68, 69
sA, sB, sCt, sD = 70, 71, 72, 73
sRact, sXO = 74, 75
sWB, sWQ = 76, 77
sLAST, sFLAG, sWM, sPST, sPCK, sOST, sXRB, sOUT = 80, 81, 82, 83, 84, 85, 86, 87
sSTAMP = 88

def v(a, n=1): return f"v{a}" if n == 1 else f"v[{a}:{a+n-1}]"
def a_(a, n=1): return f"a{a}" if n == 1 else f"a[{a}:{a+n-1}]"
def fhex(x): return hex(struct.unpack('<I', struct.pack('<f', x))[0])
def flat(l): return sum(l, [])
P = Prog(); I = P.I
TAIL = Prog()
nstamp = [0]
SEL = OPT.get("st", "m").split(",")
PICK = [int(x) for x in OPT["pick"].split(",")] if "pick" in OPT else None
allst = [0]
def stampi(name, grp="m"):
    idx = allst[0]; allst[0] += 1
    if opt("jit", 0) and idx in (3, 7, 9, 11, 13, 17, 19, 21, 25, 26, 27, 28, 29):
        return mk(f"""s_memtime s[88:89]
s_waitcnt lgkmcnt(0)
s_mul_i32 s88, s88, 0x9E3779B1
s_lshr_b32 s88, s88, {opt("jit", 0)}
L_jit{idx}:
s_sleep 8
s_sub_u32 s88, s88, 1
s_cmp_gt_i32 s88, 0
s_cbranch_scc1 L_jit{idx}""")
    if not DIAG: return []
    if PICK is not None:
        if name != "start" and idx not in PICK:
            print(f"   - {idx}: {name}"); return []
    elif name != "start" and not (set(grp) & set(SEL)): return []
    k = nstamp[0]; nstamp[0] += 1
    assert k < 7
    print(f"stamp {k}: [{idx}] {name}")
    op = "s_memtime" if DIAG == 2 else "s_memrealtime"
    return mk(f"{op} s[{sSTAMP+2*k}:{sSTAMP+2*k+1}]")
def stamp(name, grp="m"): P.add(stampi(name, grp))
X3 = "bitop3:0x96"

def chk_code(regs, masked):
    r = list(regs)
    if masked: return f"v_bitop3_b32 v10, v{r[0]}, v{r[1]}, s{sMASK} bitop3:0x28\nv_cmp_ne_u32 vcc, v10, v6"
    if len(r) == 1: return f"v_cmp_ne_u32 vcc, v{r[0]}, v5"
    if len(r) == 2: t = f"v_xor_b32 v10, v{r[0]}, v{r[1]}"
    else:
        t = f"v_bitop3_b32 v10, v{r[0]}, v{r[1]}, v{r[2]} {X3}"
        if len(r) == 4: t += f"\nv_xor_b32 v10, v10, v{r[3]}"
    return t + "\nv_cmp_ne_u16 vcc, v10, v5"

sFL, sDM = 56, 57
GUARD = f"s_add_u32 s{sSPIN}, s{sSPIN}, 1\ns_cmp_gt_u32 s{sSPIN}, 0x40000\ns_cbranch_scc1 L_end\ns_waitcnt vmcnt(0)"
class Fetch:
    def __init__(self, name, pieces, masked=False, nre=1):
        self.name, self.pieces, self.masked, self.nre = name, pieces, masked, nre
    def loadc(self, i):
        it = flat([mk(c.replace(f"s{sCt}", f"s{sFL}")) for c in self.pieces[i][0]])
        out = []; cur = []
        for x in it:
            cur.append(x)
            if x.cls == 'vmem': out.append(cur); cur = []
        return out
    def load(self, i): return flat(self.loadc(i))
    def stub(self, i, last):
        n = self.name
        wgt = {"fo": 0x100, "fh": 0x10000, "f4": 0x1000000}.get(n, 1)
        rel = (f"s_add_u32 s80, s80, {wgt}\n" if DIAG else "") + "\n".join(c for j in range(i, min(last, i + self.nre - 1) + 1) for c in self.pieces[j][0])
        if opt("ool", 15) & {"fo": 2, "fh": 4, "f4": 8}[n]:
            TAIL.I(f"L_{n}_r{i}:\n" + rel + "\n" + GUARD + "\n" + chk_code(self.pieces[i][1], self.masked) + f"\ns_cbranch_vccnz L_{n}_r{i}\ns_branch L_{n}_ok{i}", unc=True)
            return mk(f"s_cbranch_vccnz L_{n}_r{i}\nL_{n}_ok{i}:")
        return mk(f"s_cbranch_vccz L_{n}_ok{i}\nL_{n}_r{i}:") + \
               mk(rel + "\n" + GUARD + "\n" + chk_code(self.pieces[i][1], self.masked) + f"\ns_cbranch_vccnz L_{n}_r{i}", unc=True) + mk(f"L_{n}_ok{i}:")
    def checkc(self, i, last):
        return [[x] for x in mk(chk_code(self.pieces[i][1], self.masked))] + [self.stub(i, last)]
    def check(self, i, last): return flat(self.checkc(i, last))

sFS, sFP = 80, 81
vL512, vPO, vPF = 0, 142, 143
def flag_store(nl): return mk(f"s_mov_b64 exec, {(1 << nl) - 1}\nbuffer_store_dword v5, v{vL512}, {WS}, s{sFS} offen sc1\ns_mov_b64 exec, -1")
def gate(name, vo, vf): return Fetch(name, [([f"buffer_load_dword v{vf}, v{vo}, {WS}, s{sFP} offen sc1"], [vf])])
GATE = opt("gate", 0)

def cost(it):
    if isinstance(it, WaitTag): return 4
    if it.cls in ('label', 'dir') or it.uncounted: return 0
    if it.op.startswith(TRANS) or 'permlane' in it.op: return 8
    if it.op.startswith('ds_write_b128'): return 28
    if it.cls == 'mfma': return 8
    return 4.5
class Sched:
    def __init__(self, groups):
        self.groups = groups; self.gap = [[] for _ in groups]; self.seq = 0
    def at(self, g, items, frac=0.5):
        self.seq += 1; self.gap[g].append((frac, self.seq, list(items)))
    def spread(self, chunks, a, b):
        chunks = [c if isinstance(c, list) else [c] for c in chunks]
        tot = sum(cost(i) for c in chunks for i in c) or 1; acc = 0
        for c in chunks:
            pos = a + (b - a) * acc / tot
            self.at(int(pos), c, pos - int(pos))
            acc += sum(cost(i) for i in c)
    def emit(self):
        out = []
        for g, gp in zip(self.groups, self.gap):
            out += g
            for _, _, c in sorted(gp, key=lambda x: (x[0], x[1])): out += c
        return out
def sprinkle(items, groups, start, step):
    out = []; groups = list(groups); nxt = start
    for i, it in enumerate(items):
        if groups and i == nxt: out += groups.pop(0); nxt += step
        out.append(it)
    for g in groups: out += g
    return out

def softmax(p, t, o, pk):
    q = Prog(); J = q.I
    m, n = t + 14, t + 15; r0, r1 = t + 16, t + 17
    J(f"v_max3_f32 v{m}, v{p}, v{p+1}, v{p+2}\nv_max3_f32 v{n}, -v{p}, -v{p+1}, -v{p+2}")
    for k in range(3, 13, 2):
        J(f"v_max3_f32 v{m}, v{m}, v{p+k}, v{p+k+1}\nv_max3_f32 v{n}, v{n}, -v{p+k}, -v{p+k+1}")
    J(f"""v_max_f32 v{m}, v{m}, v{p+13}
v_max_f32 v{n}, v{n}, -v{p+13}
v_permlane32_swap_b32 v{m}, v{n}
v_max_f32 v{m}, v{m}, v{n}
v_mul_f32 v{m}, v253, v{m}
v_mov_b32 v{n}, v{m}
v_permlane32_swap_b32 v{m}, v{n}""")
    if pk:
        for k in range(0, 14, 2):
            J(f"v_pk_fma_f32 {v(t+k,2)}, {v(p+k,2)}, v[252:253], {v(m,2)} op_sel_hi:[1,0,0]")
            J(f"v_pk_fma_f32 {v(p+k,2)}, {v(p+k,2)}, v[252:253], {v(m,2)} op_sel:[0,1,1] op_sel_hi:[1,1,1]")
    if pk == 2:
        for k in range(14):
            J(f"v_exp_f32 v{t+k}, v{t+k}\nv_exp_f32 v{p+k}, v{p+k}")
            if k >= 2:
                a0 = f"v{t}" if k == 2 else f"v{r0}"; a1 = f"v{p}" if k == 2 else f"v{r1}"
                J(f"v_add_f32 v{r0}, {a0}, v{t+k-1}\nv_add_f32 v{r1}, {a1}, v{p+k-1}")
        J(f"v_add_f32 v{m}, v{r0}, v{t+13}\nv_add_f32 v{n}, v{r1}, v{p+13}")
    elif pk:
        for k in range(14): J(f"v_exp_f32 v{t+k}, v{t+k}")
        for k in range(14): J(f"v_exp_f32 v{p+k}, v{p+k}")
        J(f"v_pk_add_f32 {v(m,2)}, {v(t,2)}, {v(t+2,2)}\nv_pk_add_f32 {v(r0,2)}, {v(p,2)}, {v(p+2,2)}")
        for k in range(4, 14, 2):
            J(f"v_pk_add_f32 {v(m,2)}, {v(m,2)}, {v(t+k,2)}\nv_pk_add_f32 {v(r0,2)}, {v(r0,2)}, {v(p+k,2)}")
        J(f"v_add_f32 v{m}, v{m}, v{n}\nv_add_f32 v{n}, v{r0}, v{r1}")
    else:
        for k in range(14):
            J(f"v_fma_f32 v{t+k}, v{p+k}, v252, v{m}\nv_fma_f32 v{p+k}, v{p+k}, v253, v{n}\nv_exp_f32 v{t+k}, v{t+k}\nv_exp_f32 v{p+k}, v{p+k}")
            if k >= 2:
                a0 = f"v{t}" if k == 2 else f"v{r0}"; a1 = f"v{p}" if k == 2 else f"v{r1}"
                J(f"v_add_f32 v{r0}, {a0}, v{t+k-1}\nv_add_f32 v{r1}, {a1}, v{p+k-1}")
        J(f"v_add_f32 v{m}, v{r0}, v{t+13}\nv_add_f32 v{n}, v{r1}, v{p+13}")
    J(f"""v_permlane32_swap_b32 v{m}, v{n}
v_add_f32 v{m}, v{m}, v{n}
v_rcp_f32 v{m}, v{m}
v_mov_b32 v{n}, v{m}
v_permlane32_swap_b32 v{m}, v{n}""")
    if pk == 1:
        for k in range(0, 14, 2):
            J(f"v_pk_mul_f32 {v(t+k,2)}, {v(t+k,2)}, {v(m,2)} op_sel_hi:[1,0]")
            J(f"v_pk_mul_f32 {v(p+k,2)}, {v(p+k,2)}, {v(m,2)} op_sel:[0,1] op_sel_hi:[1,1]")
    else:
        for k in range(14): J(f"v_mul_f32 v{t+k}, v{t+k}, v{m}\nv_mul_f32 v{p+k}, v{p+k}, v{n}")
    for k in range(7): J(f"v_cvt_pk_bf16_f32 v{o+k}, v{t+2*k}, v{t+2*k+1}")
    for k in range(7): J(f"v_cvt_pk_bf16_f32 v{o+7+k}, v{p+2*k}, v{p+2*k+1}")
    return q.items

def dmag(vaddrs, srd, sbase, sadd, mbase, madd, tag, sreg=None):
    sr = sCt if sreg is None else sreg
    ch = [mk(f"buffer_load_dwordx4 v{a}, {srd}, s{sr} offen offset:{1024*i} lds", tag=tag) for i, a in enumerate(vaddrs)]
    ch[0] = mk(f"s_add_u32 m0, s{mbase}, {madd}\ns_add_u32 s{sr}, s{sbase}, {sadd}") + ch[0]
    return ch

MF = "v_mfma_f32_32x32x16_bf16"
RINGA, NRING = 224, 8
def gemm_lds(steps, ahead=6):
    def rd(i):
        av, o1, o2 = steps[i][:3]; r = RINGA + 4 * (i % NRING)
        return mk(f"ds_read_b64_tr_b16 {a_(r,2)}, v{av} offset:{o1}\nds_read_b64_tr_b16 {a_(r+2,2)}, v{av} offset:{o2}")
    rds = [rd(i) for i in range(len(steps))]
    groups = []
    for i, st in enumerate(steps):
        r = RINGA + 4 * (i % NRING); b, acc, first, swap = st[3]
        A, B = a_(r, 4), v(b, 4)
        if swap: A, B = B, A
        g = mk(f"{MF} {v(acc,16)}, {A}, {B}, {'0' if first else v(acc,16)}")
        if i % 2 == 0 and i + 1 < len(steps):
            r2 = RINGA + 4 * ((i + 1) % NRING); g[0].extra = [('a', r2 + x) for x in range(4)]
        groups.append(g + (rds[i + ahead] if i + ahead < len(steps) else []))
    return flat(rds[:ahead]), groups

FAST = opt('fast', 1)
LO = """s_load_dwordx2 s[12:13], s[0:1], 8
s_load_dwordx2 s[16:17], s[0:1], 16
s_load_dwordx2 s[20:21], s[0:1], 24
s_load_dwordx2 s[24:25], s[0:1], 40
s_load_dwordx2 s[28:29], s[0:1], 48
s_load_dwordx2 s[32:33], s[0:1], 56
s_load_dwordx2 s[36:37], s[0:1], 72
"""
CP = f"""v_lshlrev_b32 v3, 4, v1
v_lshl_add_u32 v3, v2, 6, v3
v_lshl_add_u32 v3, v2, 4, v3
v_add_u32 v3, s{sCt}, v3
v_lshlrev_b32 v3, 7, v3
s_and_b32 s76, s76, 0xffffff00
s_mov_b64 exec, 31
global_load_dword v236, v3, s[76:77]
s_mov_b64 exec, -1
"""
MAP1 = [f"""{"s_lshr_b32 s4, s70, 1" if opt("pair", 1) else "s_and_b32 s4, s70, 3"}
s_lshl_b32 s{sT}, s{sT}, 2
s_and_b32 s{sD}, s{sB}, 3
s_add_u32 s{sT}, s{sT}, s{sD}
{"s_and_b32 s59, s70, 1" if opt("pair", 1) else "s_lshr_b32 s59, s70, 2"}
s_lshl_b32 s{sH}, s{sP}, 3
s_lshr_b32 s{sD}, s{sB}, 2
s_add_u32 s{sH}, s{sH}, s{sD}
s_mul_i32 s{sP}, s{sT}, {opt("rt", 2)}
s_add_u32 s{sD}, s{sD}, s{sP}
s_mul_i32 s{sP}, s{sD}, 37
s_lshr_b32 s{sP}, s{sP}, 8
s_mul_i32 s{sP}, s{sP}, 7
s_sub_u32 s{sD}, s{sD}, s{sP}
s_lshl_b32 s{sKX}, s{sD}, 7
""",
f"""s_lshl_b32 s{sT}, s{sA}, 1
s_lshr_b32 s{sD}, s{sB}, 4
s_add_u32 s{sT}, s{sT}, s{sD}
s_mov_b32 s{sH}, s{sCt}
s_and_b32 s{sD}, s{sH}, 7
s_cmp_eq_u32 s{sD}, 7
s_cselect_b32 s{sD}, 3, s{sD}
s_lshl_b32 s{sKX}, s{sD}, 7
""",
f"""s_mov_b32 s{sT}, s{sCt}
s_lshl_b32 s{sH}, s{sA}, 1
s_lshr_b32 s{sD}, s{sB}, 4
s_add_u32 s{sH}, s{sH}, s{sD}
s_and_b32 s{sD}, s{sH}, 7
s_mul_i32 s{sD}, s{sD}, 3
s_mul_i32 s{sP}, s{sD}, 37
s_lshr_b32 s{sP}, s{sP}, 8
s_mul_i32 s{sP}, s{sP}, 7
s_sub_u32 s{sD}, s{sD}, s{sP}
s_lshl_b32 s{sKX}, s{sD}, 7
"""][opt("map1", 0)]
if DIAG: I("s_memrealtime s[78:79]")
I(f"""s_cmp_ge_u32 s2, 256
s_cbranch_scc1 L_end
s_load_dwordx2 s[8:9], s[0:1], 0
{LO if not FAST else ''}{"s_waitcnt lgkmcnt(0)" + chr(10) + "s_memrealtime s[88:89]" if opt("bare", 0) else ""}
s_getpc_b64 s[76:77]
v_and_b32 v1, 63, v0
v_lshrrev_b32 v2, 6, v0
s_and_b32 s{sA}, s2, 7
v_readfirstlane_b32 s{sW}, v2
s_lshr_b32 s{sB}, s2, 3
s_and_b32 s{sCt}, s{sB}, 15
{CP if FAST < 2 else ''}{MAP1}
s_mov_b32 s10, 1835008
s_mov_b32 s11, 0x20000
v_lshrrev_b32 v2, 3, v1
v_mul_u32_u24 v244, 896, v2
v_lshrrev_b32 v2, 4, v1
v_and_b32 v8, 7, v1
v_xor_b32 v2, v2, v8
v_lshl_add_u32 v244, v2, 4, v244
v_xor_b32 v245, 64, v244
v_add_u32 v245, {7168-1024}, v245
v_add_u32 v246, {2*(7168-1024)}, v244
v_add_u32 v247, {2*(7168-1024)}, v245
s_lshl_b32 s{sQ}, s{sT}, 2
s_add_u32 s{sQ}, s{sQ}, s{sW}
s_mul_i32 s{sQ}, s{sQ}, {32*896}
s_lshr_b32 s{sXO}, s{sW}, 1
s_add_u32 s{sXO}, s{sXO}, s{sW}
s_mul_i32 s{sXO}, s{sXO}, {XW}
s_waitcnt lgkmcnt(0)""")
st0 = stampi("start")
if not opt("bare", 0): P.add(st0)
def xdma(g): return flat(dmag([244, 245, 246, 247], X, sQ, f"s{sKX+g}", sXO, 4096*g, f"x{g}"))
P.add(xdma(0))
if FAST: I(LO)
if FAST == 2: I(f"v_lshrrev_b32 v2, 6, v0\ns_and_b32 s{sCt}, s{sB}, 15\n" + CP)
I(f"""s_mov_b32 s14, {0 if opt('abl',0)&8 else 1204224}
s_mov_b32 s15, 0x20000
v_and_b32 v8, 3, v1""")
def wtouch(mask16, dst):
    m = mask16 | (mask16 << 16)
    return mk(f"s_mov_b32 exec_lo, {hex(m)}\ns_mov_b32 exec_hi, {hex(m)}\nbuffer_load_dword v{dst}, v255, {WQKV}, 0 offen\ns_mov_b64 exec, -1")
def kxs(g): return mk(f"s_add_u32 s{sKX+g}, s{sKX+g-1}, 128\ns_cmp_ge_u32 s{sKX+g}, 896\ns_cselect_b32 s{sD}, 896, 0\ns_sub_u32 s{sKX+g}, s{sKX+g}, s{sD}")
NXE = opt("nxe", 2)
if opt("wtfirst", 1) and opt("wt0", 0): P.add(wtouch(opt("wt0", 0), 237))
for g in range(1, NXE): P.add(kxs(g) + xdma(g))
if not opt("wtfirst", 1) and opt("wt0", 0): P.add(wtouch(opt("wt0", 0), 237))
if FAST: I("s_waitcnt lgkmcnt(0)")
if opt("wsoff", 0): I(f"s_add_u32 s36, s36, {opt('wsoff', 0)}\ns_addc_u32 s37, s37, 0")
I(f"""s_mov_b32 s38, {WS_SIZE}
s_mov_b32 s39, 0x20000
s_mov_b32 s18, 25088
s_mov_b32 s19, 0x20000
s_mov_b32 s22, {0 if opt('abl',0)&4 else 401408}
s_mov_b32 s23, 0x20000
s_xor_b32 s{sHQ}, s{sH}, 1
v_mov_b32 v11, 0
v_lshlrev_b32 v6, 7, v1""")
TM = opt("tm", 0)
sm_ld = mk(f"""s_mov_b64 exec, 1
buffer_load_dword v5, v6, {WS}, 0 offen sc1""")
if opt("two_", 1): sm_ld += mk(f"""s_lshl_b32 s56, s2, 2
s_add_u32 s56, s56, s{sW}
s_lshl_b32 s56, s56, 9
s_mov_b64 exec, 15
buffer_load_dword v238, v6, {WO}, s56 offen""")
if opt("twp", 0): sm_ld += mk(f"""s_and_b32 s{sCt}, s{sH}, 14
s_mul_i32 s{sCt}, s{sCt}, 1568
s_mul_i32 s56, s{sW}, 896
s_add_u32 s{sCt}, s{sCt}, s56
s_mov_b64 exec, 127
buffer_load_dword v239, v6, {WPHI}, s{sCt} offen""")
sm_ld += mk("s_mov_b64 exec, -1")
if TM == 0: P.add(sm_ld)
for g in range(NXE, 7): P.add(kxs(g))
MORE = opt("more", 0)
I(f"s_mov_b32 s{sONES}, 0x3f803f80\ns_mul_i32 s66, s{sH}, 1568\ns_mul_i32 s81, s{sHQ}, 1568")
_m1 = len(P.items)
I(f"""s_lshl_b32 s{sT2}, s{sA}, 1
s_lshr_b32 s{sD}, s{sB}, 4
s_add_u32 s{sT2}, s{sT2}, s{sD}
s_and_b32 s{sRact}, s{sB}, 15
s_min_u32 s{sR}, s{sRact}, 13
s_mov_b32 s26, {0 if opt('abl',0)&1 else 1605632}
s_mov_b32 s27, 0x20000
s_mov_b32 s30, {0 if opt('abl',0)&2 else 1605632}
s_mov_b32 s31, 0x20000
s_mov_b32 s34, 1835008
s_mov_b32 s35, 0x20000
s_mov_b32 s64, 0
s_mov_b32 s65, -1
s_mov_b32 s{sMASK}, 0xbfffbfff
s_mov_b32 s{sHIM}, 0xffff0000
s_mov_b32 s{sSPIN}, 0
s_mov_b32 s80, 0
s_cmp_ge_u32 s{sR}, 7
s_cselect_b32 s{sU}, 1, 0
s_mul_i32 s{sA}, s{sU}, 7
s_sub_u32 s{sC}, s{sR}, s{sA}""")
sT3 = 67
if opt("map3", 1):
    I(f"""s_and_b32 s{sA}, s{sT2}, 12
s_and_b32 s{sD}, s{sT2}, 1
s_lshl_b32 s{sD}, s{sD}, 1
s_add_u32 s{sA}, s{sA}, s{sD}
s_add_u32 s{sT3}, s{sA}, s{sU}
s_bfe_u32 s{sA}, s{sT2}, 0x10001
s_mul_i32 s{sA}, s{sA}, 7
s_add_u32 s{sR}, s{sA}, s{sC}""")
else: I(f"s_mov_b32 s{sT3}, s{sT2}")
for g in range(7): I(f"s_mul_i32 s{sKW+g}, s{sKX+g}, {172032//128}")
I(f"""s_mul_i32 s{sWB}, s{sH}, 56
s_mul_i32 s{sD}, s{sW}, 43008
s_add_u32 s{sWB}, s{sWB}, s{sD}
s_mul_i32 s{sWQ}, s{sHQ}, 56
s_add_u32 s{sWQ}, s{sWQ}, s{sD}
s_add_u32 s{sWB}, s{sWB}, 896
s_lshl_b32 s{sWM}, s{sW}, 10""")
_m0 = _m1 if MORE else len(P.items)
I(f"""s_lshl_b32 s{sA}, s{sH}, 4
s_add_u32 s{sA}, s{sA}, s{sT}
s_mul_i32 s{sA}, s{sA}, 4608
s_add_u32 s{sA}, s{sA}, {WS_PART}
s_add_u32 s{sPST}, s{sA}, s{sWM}
s_lshl_b32 s{sD}, s{sW}, 7
s_add_u32 s{sA}, s{sA}, s{sD}
s_add_u32 s{sPCK}, s{sA}, 4096
s_lshl_b32 s{sA}, s{sT}, 2
s_add_u32 s{sA}, s{sA}, s{sW}
s_lshl_b32 s{sA}, s{sA}, 15
s_lshl_b32 s{sB}, s{sHQ}, 11
s_add_u32 s{sA}, s{sA}, s{sB}
s_add_u32 s{sOST}, s{sA}, {WS_O}
s_lshl_b32 s{sA}, s{sT2}, 2
s_lshl_b32 s{sB}, s{sU}, 1
s_add_u32 s{sA}, s{sA}, s{sB}
s_and_b32 s{sB}, s{sW}, 1
s_add_u32 s{sTILE}, s{sA}, s{sB}
s_mul_i32 s{sA}, s{sA}, {32*896}
s_lshl_b32 s{sB}, s{sC}, 7
s_add_u32 s{sA}, s{sA}, s{sB}
s_mul_i32 s{sD}, s{sW}, {16*896}
s_add_u32 s{sXRB}, s{sA}, s{sD}
s_mul_i32 s{sA}, s{sTILE}, {32*896}
s_add_u32 s{sA}, s{sA}, s{sB}
s_lshr_b32 s{sB}, s{sW}, 1
s_lshl_b32 s{sB}, s{sB}, 6
s_add_u32 s{sOUT}, s{sA}, s{sB}
s_mul_i32 s{sP}, s{sHQ}, {16*4608}
s_add_u32 s{sP}, s{sP}, {WS_PART}""")
deferred = P.items[_m0:]; del P.items[_m0:]
WPK, WPQ, WPT = 192, 200, 208
vWPA, vWPB, vKVX, vIMW, vKA, vKB, vFPD, vFPC, vWO0, vWO1, vXRD0, vXRD1, vXRR, vWOR = range(128, 142)
I(f"""v_lshrrev_b32 v3, 5, v1
v_bfe_u32 v11, v1, 3, 2
v_lshl_add_u32 v11, v11, 2, v8
v_bfe_u32 v12, v1, 2, 1
v_mul_u32_u24 v12, 14, v12
v_min_u32 v13, 13, v11
v_add_u32 v13, v13, v12
v_lshlrev_b32 v13, 1, v13
v_mul_u32_u24 v14, 224, v3
v_add_u32 v{vWPA}, v13, v14
v_lshl_add_u32 v{vWPB}, v3, 20, v{vWPA}
v_and_b32 v9, 31, v1
v_lshlrev_b32 v240, 7, v9
v_bfe_u32 v10, v1, 1, 3
v_xor_b32 v10, v10, v3
v_lshl_add_u32 v240, v10, 4, v240
v_add_u32 v240, s{sXO}, v240
v_xor_b32 v241, 32, v240
v_xor_b32 v242, 64, v240
v_xor_b32 v243, 96, v240
v_mov_b32 v250, 0
v_mov_b32 v251, 0""")
_m2 = len(P.items)
I(f"""v_lshlrev_b32 v2, 4, v1
v_lshlrev_b32 v4, 2, v1
v_add_u32 v12, v12, v11
v_cmp_gt_u32 vcc, 14, v11
v_lshrrev_b32 v7, 2, v1
v_mul_u32_u24 v7, 2688, v7
v_cndmask_b32 v12, 28, v12, vcc
v_and_b32 v13, 15, v12
v_lshlrev_b32 v13, 4, v13
v_lshrrev_b32 v12, 4, v12
v_lshl_add_u32 v13, v12, 3, v13
v_lshl_add_u32 v13, v3, 8, v13
v_add_u32 v{vKVX}, {L_KVX}, v13
v_lshlrev_b32 v11, 4, v8
v_min_u32 v11, 40, v11
v_add_u32 v7, v7, v11""")
_m0 = _m2 if MORE else len(P.items)
I(f"""s_lshl_b32 s{sA}, s{sW}, 5
v_add_u32 v10, s{sA}, v9
v_mul_u32_u24 v10, 208, v10
v_mul_u32_u24 v11, 96, v3
v_add_u32 v{vIMW}, v10, v11
v_lshrrev_b32 v10, 4, v1
v_bfe_u32 v15, v1, 2, 2
v_lshl_add_u32 v10, v10, 3, v15
v_mul_u32_u24 v10, 208, v10
v_and_b32 v11, 1, v1
v_mul_u32_u24 v11, 96, v11
v_add_u32 v10, v10, v11
v_bfe_u32 v11, v1, 1, 1
v_lshl_add_u32 v10, v11, 3, v10
v_add_u32 v{vKB}, {L_IMG}, v10
s_lshl_b32 s{sA}, s{sW}, 4
v_add_u32 v{vKA}, s{sA}, v{vKB}
v_add_u32 v{vFPD}, s{sWM}, v2
s_lshl_b32 s{sD}, s{sW}, 7
s_add_u32 s{sD}, s{sD}, 4096
v_lshlrev_b32 v0, 1, v1
v_add_u32 v{vFPC}, s{sD}, v0
v_lshrrev_b32 v12, 3, v1
v_mul_u32_u24 v14, 896, v12
v_and_b32 v13, 7, v1
v_xor_b32 v12, v12, v13
v_lshl_add_u32 v{vXRD0}, v12, 4, v14
v_add_u32 v{vXRD1}, {7168-1024}, v{vXRD0}
v_bfe_u32 v12, v1, 4, 1
v_lshlrev_b32 v11, 2, v12
v_xor_b32 v11, v11, v13
v_lshl_add_u32 v{vWO0}, v11, 4, v14
v_add_u32 v{vWO1}, {7168-1024}, v{vWO0}
s_and_b32 s{sA}, s{sW}, 1
s_lshl_b32 s{sA}, s{sA}, 12
s_add_u32 s{sA}, s{sA}, {L_XCH}
v_lshlrev_b32 v10, 7, v9
v_lshl_add_u32 v10, v3, 3, v10
v_add_u32 v10, s{sA}, v10
s_lshr_b32 s{sA}, s{sW}, 1
s_lshl_b32 s{sB}, s{sA}, 2
v_xor_b32 v13, s{sB}, v13
v_lshl_add_u32 v{vXRR}, v13, 4, v10
v_mad_u32_u24 v10, v3, 14, v15
v_lshlrev_b32 v10, 7, v10
v_bfe_u32 v13, v1, 3, 1
v_xor_b32 v13, v13, v3
v_xor_b32 v13, s{sA}, v13
v_lshl_add_u32 v10, v13, 6, v10
v_lshl_add_u32 v10, v12, 5, v10
v_lshl_add_u32 v10, v8, 3, v10
s_mul_i32 s{sA}, s{sA}, {4*28*128}
s_add_u32 s{sA}, s{sA}, {L_WO}
v_add_u32 v{vWOR}, s{sA}, v10
v_lshl_add_u32 v11, v3, 3, v15
v_lshlrev_b32 v11, 6, v11
v_lshl_add_u32 v12, v12, 2, v8
v_cmp_lt_u32 vcc, 5, v12
v_xor_b32 v13, 1, v12
v_cndmask_b32 v12, v12, v13, vcc
v_lshl_add_u32 v11, v12, 3, v11
v_add_u32 v13, {L_WK}, v11""")
I(f"""v_bfe_u32 v10, v1, 2, 1
v_bfe_u32 v14, v1, 4, 1
v_lshl_add_u32 v10, v14, 1, v10
v_cmp_eq_u32 vcc, v10, v3
v_and_b32 v10, 1, v1
v_lshlrev_b32 v10, 4, v10
v_mov_b32 v14, 0x3f80
v_lshlrev_b32 v10, v10, v14
v_cndmask_b32 v10, 0, v10, vcc
v_bfe_u32 v14, v1, 3, 1
v_bfe_u32 v15, v1, 1, 1
v_lshl_add_u32 v14, v14, 1, v15""")
for q in range(4): I(f"v_cmp_eq_u32 vcc, {q}, v14\nv_cndmask_b32 v15, 0, v10, vcc\nv_accvgpr_write_b32 a{220+q}, v15")
I("v_add_u32 v9, 896, v7")
deferred += P.items[_m0:]; del P.items[_m0:]
NDEF0 = opt("ndef0", 0)
P.add(deferred[:NDEF0]); deferred = deferred[NDEF0:]
L2N = 0
if L2N:
    I(f"""s_mov_b32 s{sCt}, 0x60504020
s_cmp_ge_u32 s{sH}, 8
s_cselect_b32 s{sCt}, 0x53020100, s{sCt}
s_and_b32 s{sD}, s{sH}, 7
s_lshl_b32 s{sD}, s{sD}, 2
s_lshr_b32 s{sCt}, s{sCt}, s{sD}
s_and_b32 s{sCt}, s{sCt}, 15
s_and_b32 s{sD}, s{sT}, 3
s_mul_i32 s{sD}, s{sD}, 7
s_add_u32 s{sCt}, s{sCt}, s{sD}
s_lshl_b32 s{sCt}, s{sCt}, 2
s_add_u32 s{sCt}, s{sCt}, s{sW}
s_mul_i32 s66, s{sCt}, 14336
s_add_u32 s81, s66, 57344
s_lshl_b32 s{sD}, s{sH}, 1
s_lshr_b32 s{sD}, 0xa111444a, s{sD}
s_and_b32 s{sD}, s{sD}, 3
s_cmp_ge_u32 s{sD}, 1
s_cselect_b32 s66, s66, 0x10000000
s_cmp_ge_u32 s{sD}, 2
s_cselect_b32 s81, s81, 0x10000000
v_add_u32 v143, 7168, v6""")
def l2n(k): return mk(f"s_mov_b32 exec_hi, 0xffffff\nbuffer_load_dword v{142}, v{6 if k % 2 == 0 else 143}, {W1}, s{66 if k < 2 else 81} offen\ns_mov_b32 exec_hi, -1")
stamp("setup done", "p")
def wphi(dst, tmp, so):
    q = []
    for t in range(2):
        for j in range(8):
            d = 16 * t + 8 * (j >> 2) + (j & 3)
            av = vWPB if (t == 1 and j >= 4) else vWPA
            r = (dst if j % 2 == 0 else tmp) + 4 * t + j // 2
            op = "buffer_load_short_d16" if j % 2 == 0 else "buffer_load_short_d16_hi"
            q += mk(f"{op} v{r}, v{av}, {WPHI}, s{so} offen offset:{d*56}")
    return q
def wkdma(g): return flat(dmag([7], WQKV, sWB, f"s{sKW+g}", sWM, L_WK + 4096*g, f"wk{g}"))
def wvdma(g): return flat(dmag([9], WQKV, sWB, f"s{sKW+g}", sWM, L_WV + 4096*g, f"wv{g}"))
def wqdma(g): return flat(dmag([7], WQKV, sWQ, f"s{sKW+g}", sWM, L_WQ + 4096*g, f"wq{g}"))
if opt("fake", 0):
    I(f"""v_mov_b32 v7, v2
v_add_u32 v9, 24576, v2
s_mul_i32 s{sWB}, s{sH}, 73728
s_add_u32 s{sWB}, s{sWB}, s{sWM}
s_mul_i32 s{sWQ}, s{sHQ}, 73728
s_add_u32 s{sWQ}, s{sWQ}, s{sWM}
s_add_u32 s{sWQ}, s{sWQ}, 45056""")
    for g in range(7): I(f"s_lshl_b32 s{sKW+g}, s{sKX+g}, 5")
XF = 16
NX0 = opt("nx0", 3)
if opt("wt1", 0): P.add(wtouch(opt("wt1", 0), 249))
WPP = opt("wpp", 1)
if WPP == 1: P.add(wphi(WPK, WPT, 66) + wphi(WPQ, WPT+8, 81))
for g in range(NXE, NX0): P.add(xdma(g))
if WPP == 2: P.add(wphi(WPK, WPT, 66) + wphi(WPQ, WPT+8, 81))
pend = [xdma(g) for g in range(NX0, 7)]
wkl = [wkdma(g) for g in range(7)]
if TM and TM < NX0: P.add(sm_ld)
elif TM: pend[TM - NX0] = pend[TM - NX0] + sm_ld
if opt("wt2", 0): pend[-1] = pend[-1] + wtouch(opt("wt2", 0), 248)
pend.append(wkl.pop(0) + (wphi(WPK, WPT, 66) if not WPP else []))
pend.append(wkl.pop(0) + (wphi(WPQ, WPT+8, 81) if not WPP else []))
while len(pend) < 7: pend.append(wkl.pop(0))
def xrd(g): return flat([mk(f"ds_read_b128 {v(XF+16*g+4*e,4)}, v{240+e} offset:{4096*g}") for e in range(4)])
_n = opt("ndefx", 0)
while 0 < _n < len(deferred) and deferred[_n-1].op.startswith("s_cmp"): _n += 1
P.add(deferred[:_n]); deferred = deferred[_n:]
P.wait("x0"); P.add(xrd(0))
for g in range(7):
    if pend: P.add(pend.pop(0))
    if g + 1 < 7: P.wait(f"x{g+1}"); P.add(xrd(g + 1))
    for i in range(16):
        r = XF + 16*g + i
        I(f"v_dot2c_f32_bf16 v250, s{sONES}, v{r}\nv_dot2c_f32_bf16 v251, v{r}, v{r}")
    nd_ = -(-len(deferred) // max(1, opt("ndi", 4) - g)) if g < opt("ndi", 4) else len(deferred)
    while 0 < nd_ < len(deferred) and deferred[nd_-1].op.startswith("s_cmp"): nd_ += 1
    P.add(deferred[:nd_]); deferred = deferred[nd_:]
    if g == 0: stamp("x0 done", "p")
for x_ in pend: P.add(x_)
if opt("tp", 0) == 2:
    I(f"""s_mul_i32 s{sCt}, s2, {52*128}
s_mul_i32 s{sD}, s{sW}, {13*128}
s_add_u32 s{sCt}, s{sCt}, s{sD}
s_mov_b64 exec, 0x1fff
buffer_load_dword v254, v6, {W2}, s{sCt} offen
buffer_load_dword v255, v6, {W1}, s{sCt} offen
s_mov_b64 exec, -1""")
stamp("x stats done", "mp")
I(f"""v_permlane32_swap_b32 v250, v251
v_readfirstlane_b32 s{sA}, v5
s_nop 0
v_add_f32 v250, v250, v251
v_mul_f32 v250, {fhex(-1/448)}, v250
v_mov_b32 v251, v250
s_or_b32 s{sA}, s{sA}, 1
s_mul_i32 s{sA}, s{sA}, 0x9E3779B5
v_mov_b32 v5, s{sA}
s_mov_b32 s{sA}, 0x3f80
v_permlane32_swap_b32 v250, v251
s_mov_b32 s{sB}, 0x3f800000""")
fin = mk(f"""v_fma_f32 v251, -v250, v250, -v251
v_max_f32 v251, 0, v251
v_add_f32 v251, 0x3727c5ac, v251
v_rsq_f32 v251, v251
s_lshl_b32 s{sQ}, s{sC}, 7
s_mul_i32 s{sD}, s{sW}, {16*896}
v_mul_f32 v252, 0x3fb8aa3b, v251
v_mul_f32 v253, 0xbfb8aa3b, v251
s_add_u32 s{sQ}, s{sQ}, s{sD}
s_lshl_b32 s{sXO}, s{sW}, 11""")
if opt("noid", 1): fin = [mk(f"s_cmp_ge_u32 s{sRact}, 14\ns_cselect_b32 s22, 0, s22")] + fin
ACK = 144; ACV = 160; PK = 176; IMG = 208; TMP = 232
def norm(t):
    q = Prog(); tb = TMP + 8 * (t & 1)
    for i in range(4):
        r = XF + 4 * t + i
        q.I(f"v_dot2_f32_bf16 v{tb+2*i}, v{r}, s{sA}, v250\nv_dot2_f32_bf16 v{tb+2*i+1}, v{r}, s{sB}, v250")
    return q.items
def normc(t):
    tb = TMP + 8 * (t & 1)
    return flat([mk(f"v_cvt_pk_bf16_f32 v{XF+4*t+i}, v{tb+2*i}, v{tb+2*i+1}") for i in range(4)])
def l2t(srd, k, dst):
    return mk(f"""s_lshr_b32 s{sCt}, s2, 3
s_lshl_b32 s{sCt}, s{sCt}, 2
s_add_u32 s{sCt}, s{sCt}, s{sW}
s_mul_i32 s{sCt}, s{sCt}, {98*128}
s_mov_b32 exec_hi, 0x1ffff
s_add_u32 s{sCt}, s{sCt}, {k*49*128}
buffer_load_dword v{dst}, v6, {srd}, s{sCt} offen
s_mov_b32 exec_hi, -1""")
L2A, L2B = opt("l2a", -1), opt("l2b", -1)
touch = mk(f"""s_mul_i32 s{sCt}, s2, {52*128}
s_mul_i32 s56, s{sW}, {13*128}
s_add_u32 s{sCt}, s{sCt}, s56
s_mov_b64 exec, 0x1fff
buffer_load_dword v255, v6, {W1}, s{sCt} offen
buffer_load_dword v254, v6, {W2}, s{sCt} offen
s_mov_b64 exec, -1""")
TP = opt('tp', 0)
ns = norm(0)
for t in range(1, 28): ns += norm(t) + normc(t - 1)
ns += normc(27)
NBAR = opt("nbar", 100)
wvl = [wvdma(k) for k in range(7)]
if opt("loop2", 0):
    I("s_mov_b32 s80, 0\nL_lp2:\ns_mov_b32 s101, s100\ns_memtime s[78:79]\ns_waitcnt lgkmcnt(0)\ns_mov_b32 s99, s78")
    P.add([Ins(x.text) for x in ns])
    I("s_memtime s[78:79]\ns_waitcnt lgkmcnt(0)\ns_sub_u32 s100, s78, s99\ns_add_u32 s100, s100, s88\ns_add_u32 s80, s80, 1\ns_cmp_lt_u32 s80, 2\ns_cbranch_scc1 L_lp2")
    nstamp[0] = 14
P.add(sprinkle(ns[:NBAR], wkl, 0, opt("wkstep", 30)))
if opt("touch", 1) and TP == 1: P.add(touch)
I("s_barrier")
NWV0 = opt("nwv0", 4)
w0_ = [wvl.pop(0) for _ in range(NWV0)]
if L2N == 1: w0_[0] = l2n(0) + w0_[0]; w0_[-1] = w0_[-1] + l2n(2); wvl[-1] = wvl[-1] + l2n(1)
if L2N == 2: wvl[-1] = wvl[-1] + l2n(0) + l2n(2)
P.add(sprinkle(ns[NBAR:], w0_, opt("wv0", 30), opt("wvstep", 50)))
P.wait(*[f"wk{k}" for k in range(7)]); I("s_barrier")
stamp("wk landed", "p")
if opt("zy", 0): I(f"s_sleep {opt('zy', 0)}")
AH = 6
sW1B, sW1M, sW2E, sW2L = 40, 41, 42, 43
set2 = mk(f"""v_lshrrev_b32 v10, 4, v1
v_mul_u32_u24 v12, 3584, v10
v_lshlrev_b32 v10, 2, v10
v_and_b32 v13, 15, v1
v_xor_b32 v10, v10, v13
v_lshl_add_u32 v12, v10, 4, v12
v_add_u32 v13, {4*3584-1024}, v12
v_add_u32 v14, {2*(4*3584-1024)}, v12
v_add_u32 v15, {3*(4*3584-1024)}, v12
s_lshl_b32 s{sW1B}, s{sR}, 8
s_mul_i32 s{sD}, s{sW}, {16*3584}
s_add_u32 s{sW1B}, s{sW1B}, s{sD}
s_lshl_b32 s{sW1M}, s{sW}, 12
s_lshr_b32 s{sA}, s{sW}, 1
s_lshl_b32 s{sA}, s{sA}, 2
s_andn2_b32 s{sB}, 1, s{sW}
s_add_u32 s{sA}, s{sA}, s{sB}
s_lshl_b32 s{sB}, s{sU}, 1
s_add_u32 s44, s{sA}, s{sB}
s_xor_b32 s45, s44, 2
s_lshl_b32 s{sD}, s{sC}, 7
s_mul_i32 s{sW2E}, s44, {32*896}
s_add_u32 s{sW2E}, s{sW2E}, s{sD}
s_mul_i32 s{sW2L}, s45, {32*896}
s_add_u32 s{sW2L}, s{sW2L}, s{sD}
""")
vW2 = [vWO0, vWO1, 128, 129]
sSCR, sBIG = 46, 47
NA = opt("na", 0)
NUR = opt("nur", 2); NT1 = min(NA, opt("nt1", 99))
_u = list(range(14))
def take(n): return [_u.pop(0) for _ in range(min(n, len(_u)))]
UAW = take(NA); UR = take(NUR); UD = take(opt("nud", 2)); UE = take(3); UL = take(opt("nrl", 4)); UP = take(99)
assert all(j >= 7 for j in UL + UP) and all(j >= 4 for j in UE)
RAWS = UAW + UR + UL
def UA(j): return 16*j
def w2slot(j):
    if j in UE: return (sSCR, 4096*UE.index(j), 254)
    if j in UAW + UR + UD: return (sSCR, 4096*(j & 1), 254)
    return (sBIG, 4096*(UL + UP).index(j), 252)
def w2dma(j):
    mb, mo, _ = w2slot(j)
    return dmag(vW2, W2, sW2E if j < 7 else sW2L, (j%7)*256*896, mb, mo, f"w2_{j}", sDM)
def w2raw(j):
    ch = [mk(f"buffer_load_dwordx4 {a_(UA(j)+4*q,4)}, v{vW2[q]}, {W2}, s81 offen offset:{1024*q}") for q in range(4)]
    ch[0] = mk(f"s_add_u32 s81, s{sW2E if j < 7 else sW2L}, {(j%7)*256*896}") + ch[0]
    return ch
def w2rd(j):
    _, mo, av = w2slot(j)
    if j in RAWS: out = [mk(f"ds_write_b128 v{131 if j in UL else 134}, {a_(UA(j)+4*q,4)} offset:{mo+1024*q}") for q in range(4)]
    else: out = [[WaitTag([f"w2_{j}"])]]
    for e in range(2):
        for mu in range(2):
            for u in range(2): out.append(mk(f"ds_read_b64_tr_b16 {a_(UA(j)+8*e+4*mu+2*u,2)}, v{av+mu} offset:{mo+2048*e+1024*u}"))
    return out
raw = flat([w2raw(j) for j in UR])
rawA = flat([w2raw(j) for j in UAW])
if opt("noid", 1): set2 = [mk(f"s_cmp_ge_u32 s{sRact}, 14\ns_cselect_b32 s26, 0, s26")] + set2
set2 += mk(f"v_add_u32 v128, {2*(7168-1024)}, v{vWO0}\nv_add_u32 v129, {3*(7168-1024)}, v{vWO0}")
set2b = [x for x in set2 if isinstance(x, Ins) and x.cls == 'valu' and x.defs[0][1] < 128]
if opt("trim", 1):
    set2 = [mk(f"""s_cmp_eq_u32 s{sW}, 3
s_cselect_b64 vcc, {sHI}, 0
v_mov_b32 v143, 0x10000000
v_add_u32 v133, s{sWM}, v2
v_cndmask_b32 v142, v5, 0, vcc
v_cndmask_b32 v{vFPD}, v{vFPD}, v143, vcc
v_cndmask_b32 v{vFPC}, v{vFPC}, v143, vcc""")] + set2
set2b = [x for x in set2 if isinstance(x, list)] + set2b
set2a = [x for x in set2 if x not in set2b]
pro, gk = gemm_lds([(13, 1024*t, 1024*t + 256, (XF + 4*t, ACK, t == 0, False)) for t in range(28)], AH)
P.add(pro)
S = Sched(gk)
S.spread(wvl, 0, opt("wve", 16))
NQK = opt("nqk", 2)
S.spread([wqdma(k) for k in range(NQK)], opt("wve", 16), 28)
EARLY = opt("early", 0)
if EARLY:
    P.add(flat([x if isinstance(x, list) else [x] for x in fin + set2a])); fin = []
    wo_l = flat([dmag([vWO0, vWO1], WO, sQ, i*64*896, sXO, L_WO + 8192*i, "wo", sDM) for i in range(7)] + [dmag([vXRD0, vXRD1], X, sXRB, 0, sXO, L_XCH, "wo", sDM)])
    if EARLY == 2:
        S.spread([wo_l[2*i] + wo_l[2*i+1] for i in range(8)], 0, 28)
    else: S.spread([rawA.pop(0) for _ in range(min(len(rawA), opt("ne1", 8)))], 0, 28)
else: fin = fin + set2a
if TP == 3: S.at(opt("tpos", 22), touch)
for k, ps in enumerate((L2A, L2B)):
    if 0 <= ps < 28: S.at(ps, l2t(W1, k, 248 + k))
S.spread(fin + flat([mk(f"v_or_b32 v{WPK+q}, v{WPK+q}, v{WPT+q}\nv_or_b32 v{WPQ+q}, v{WPQ+q}, v{WPT+8+q}") for q in range(8)]), 2, 26)
P.add(S.emit())
def phi_pre(acc, wp):
    q = Prog()
    for i in range(8): q.I(f"v_cvt_pk_bf16_f32 v{acc+i}, v{acc+2*i}, v{acc+2*i+1}")
    q.I(f"{MF} {v(PK,16)}, {v(wp,4)}, {v(acc,4)}, 0\n{MF} {v(PK,16)}, {v(wp+4,4)}, {v(acc+4,4)}, {v(PK,16)}")
    return q.items
stamp("k gemm done", "mp")
wql = [wqdma(k) for k in range(NQK, 7)]
P.add(wql.pop(0))
P.add(phi_pre(ACK, WPK))
imw = flat([mk(f"ds_write_b128 v{vIMW}, {v(IMG+4*i,4)} offset:{L_IMG+16*i}") for i in range(3)]) + mk(f"ds_write_b64 v{vIMW}, {v(IMG+12,2)} offset:{L_IMG+48}")
smk = sprinkle(softmax(PK, TMP, IMG, True), [wql.pop(0) for _ in range(min(len(wql), opt("nwq0", 3)))], 10, opt("wqs", 40))
if EARLY: smk = sprinkle(smk, [rawA.pop(0) for _ in range(min(len(rawA), opt("ne2", 8)))], 5, 16)
WEAVE = opt("weave", 1)
pro, gv = gemm_lds([(11, L_WV + 1024*t, L_WV + 1024*t + 256, (XF + 4*t, ACV, t == 0, False)) for t in range(28)], AH)
S = Sched(gv)
if not WEAVE:
    P.add(smk)
    P.wait(*[f"wv{k}" for k in range(7)]); I("s_barrier")
    stamp("softmax k done", "p")
    P.add(pro)
    S.spread(imw, 2, 10)
else:
    smf = softmax(PK, TMP, IMG, 2)
    n0 = next(i for i, x in enumerate(smf) if x.op == "v_exp_f32")
    P.wait(*[f"wv{k}" for k in range(4)]); I("s_barrier")
    P.add(pro)
    P.add(smf[:n0])
    stamp("softmax k done", "p")
    S.spread(smf[n0:] + imw, 0, 28)
    S.at(15 - AH, [WaitTag(["wv4", "wv5", "wv6"])] + mk("s_barrier"), 1.0)
    wql = [wqdma(k) for k in range(NQK + 1, 7)]
wo_l = flat([dmag([vWO0, vWO1], WO, sQ, i*64*896, sXO, L_WO + 8192*i, "wo", sDM) for i in range(7)] + [dmag([vXRD0, vXRD1], X, sXRB, 0, sXO, L_XCH, "wo", sDM)])
if EARLY == 2: wo_l = []
S.spread(wql, 0, opt('wqe', 10))
if EARLY: S.spread([rawA.pop(0) for _ in range(min(len(rawA), opt("ne3", 8)))], 0, 22)
if L2A >= 0 or L2N: touch = [x for x in touch if W1 not in x.text]
if L2N == 1: S.at(opt("l2p", 14), l2n(3))
if L2N == 2: S.at(opt("l2p", 14), l2n(1) + l2n(3))
tlb = []
if opt("tlb", 0) & 1: tlb += mk(f"s_mov_b64 exec, 1\nbuffer_load_dword v248, v6, {OUT}, s{sOUT} offen\ns_mov_b64 exec, -1")
if opt("tlb", 0) & 2: tlb += mk(f"v_lshlrev_b32 v249, 20, v1\ns_mov_b64 exec, 0xffff\nbuffer_load_dword v249, v249, {WS}, 0 offen offset:4092\ns_mov_b64 exec, -1")
if tlb: S.at(opt("tlbp", 13), tlb)
if opt("touch", 1) and TP == 0: S.at(opt("tpos", 11), touch)
for k, ps in enumerate((L2A, L2B)):
    if 200 <= ps < 228: S.at(ps - 200, l2t(W1, k, 248 + k))
S.spread([wo_l.pop(0) for _ in range(2*opt("nwo0", 0))], opt("wos", 17), opt("woe2", 28))
P.add(S.emit())
for k in range(0, 16, 2): I(f"v_pk_mul_f32 {v(ACV+k,2)}, {v(ACV+k,2)}, v[250:251] op_sel:[0,1] op_sel_hi:[1,1]")
I(f"v_cndmask_b32 v{ACV+12}, v{ACV+12}, 1.0, {sHI}")
for i in range(8): I(f"v_cvt_pk_bf16_f32 v{IMG+16+i}, v{ACV+2*i}, v{ACV+2*i+1}")
for i in range(4, 6): I(f"ds_write_b128 v{vIMW}, {v(IMG+4*i,4)} offset:{L_IMG+16*i}")
P.wait("wq0", "wq1", "wq2", "wq3")
I("s_waitcnt lgkmcnt(0)\ns_barrier")
stamp("img written", "p")
KA = 144; KBv = 208; KD = 176
for k in range(4):
    for u in range(2):
        I(f"ds_read_b64_tr_b16 {v(KA+4*k+2*u,2)}, v{vKA} offset:{(32*k+4*u)*208}")
    for nu in range(2):
        for u in range(2):
            I(f"ds_read_b64_tr_b16 {v(KBv+8*k+4*nu+2*u,2)}, v{vKB} offset:{(32*k+4*u)*208+64+16*nu}")
proq, gq = gemm_lds([(11, L_WQ + 1024*t, L_WQ + 1024*t + 256, (XF + 4*t, ACV, t == 0, False)) for t in range(28)], AH)
for k in range(4):
    for nu in range(2):
        I(f"v_mfma_f32_16x16x32_bf16 {v(KD+4*nu,4)}, {v(KA+4*k,4)}, {v(KBv+8*k+4*nu,4)}, {'0' if k == 0 else v(KD+4*nu,4)}")
P.add(proq[:8])
for i in range(4): I(f"v_cvt_pk_bf16_f32 v{KD+8+i}, v{KD+2*i}, v{KD+2*i+1}")
I(f"buffer_store_dwordx4 {v(KD+8,4)}, v2, {WS}, s{sPST} offen sc1")
I(f"v_xor_b32 v10, v{KD+8}, v5")
I(f"buffer_store_short v10, v0, {WS}, s{sPCK} offen sc1")
if GATE & 1: P.add(flag_store(16))
P.add(proq[8:])
stamp("partial stored", "mp")
S = Sched(gq)
ROTP = opt("rotp", 1)
if ROTP:
    rp = []
    for b in range(4): rp += mk(f"s_lshr_b32 s{50+b}, s{sT}, 2\ns_add_u32 s{50+b}, s{50+b}, {b}\ns_and_b32 s{50+b}, s{50+b}, 3\ns_mul_i32 s{50+b}, s{50+b}, {4*4608}\ns_add_u32 s{50+b}, s{50+b}, s{sP}")
    S.spread(rp, 4, 20)
bgA = wo_l + rawA
nq = min(len(bgA), opt("nq", 16))
S.spread(bgA[:nq], 0, 28)
S.spread(set2b, 2, 18)
G0 = gate("g0", vPO, vPF)
if GATE & 1: S.at(opt("g0", 14), G0.load(0))
S.at(15 - AH, [WaitTag(["wq4", "wq5", "wq6"])] + mk("s_barrier"), 1.0)
P.add(S.emit())
stamp("q gemm done", "p")
G = 16; GC = 80; SA = 96
FP = Fetch("fp", [([f"s_add_u32 s{sCt}, s{50 + (T >> 2) if ROTP else sP}, {4608*(T & 3 if ROTP else T)}\nbuffer_load_dwordx4 {v(G+4*T,4)}, v{vFPD}, {WS}, s{sCt} offen sc1\nbuffer_load_ushort v{GC+T}, v{vFPC}, {WS}, s{sCt} offen sc1"],
                   [G+4*T, GC+T]) for T in range(16)])
NFE = opt("nfe", 4)
for T in range(NFE): P.add(FP.load(T))
P.add(phi_pre(ACV, WPQ))
I("s_barrier")
PQ = 208
smq = softmax(PK, TMP, PQ, True); f0 = opt("fp0", 30)
P.add(sprinkle(smq[:f0], bgA[nq:], 0, opt("as", 8)))
P.add(sprinkle(smq[f0:], [FP.load(T) for T in range(NFE, 16)], 0, opt("fpstep", 6)))
stamp("softmax q done", "p")
w1_l = flat([dmag([12, 13, 14, 15], W1, sW1B, i*64*3584, sW1M, 16384*i, "w1", sDM) for i in range(7)])
def fpb(b):
    t = []
    for k, T in enumerate(range(4*b, 4*b+4)):
        t.append(f"v_bitop3_b32 v{10 if k == 0 else 9}, v{G+4*T}, v{GC+T}, v{142 if opt('trim', 1) else 5} {X3}" + ("" if k == 0 else "\nv_or_b32 v10, v10, v9"))
    return "\n".join(t) + "\nv_cmp_ne_u16 vcc, 0, v10"
RI = TAIL.I if (opt("ool", 15) & 1) else I
if not (opt("ool", 15) & 1): I("s_branch L_fp_go")
RI("L_fp_retry:" + ("\ns_add_u32 s80, s80, 1" if DIAG else ""), unc=True)
for b in range(4):
    RI(fpb(b) + f"\ns_cbranch_vccz L_fp_k{b}\n" + "\n".join(FP.pieces[T][0][0] for T in range(4*b, 4*b+4)) + f"\nL_fp_k{b}:", unc=True)
RI(GUARD, unc=True)
if (opt("ool", 15) & 1): RI("s_branch L_fp_go", unc=True)
I("L_fp_go:")
I(fpb(0) + "\ns_cbranch_vccnz L_fp_retry")
S = Sched([mk(f"{MF} {v(SA,16)}, a[220:223], {v(G+4*T,4)}, {'0' if T == 0 else v(SA,16)}") for T in range(16)])
for b in range(1, 4): S.spread(mk(fpb(b) + "\ns_cbranch_vccnz L_fp_retry"), 4*b - 3, 4*b)
S.spread([w1_l.pop(0) for _ in range(opt("nw1a", 8))], opt("w1as", 2), 16)
P.add(S.emit())
I(f"v_add_u32 v9, {L_KVX}, v{133 if opt('trim', 1) else vFPD}")
for i in range(4): I(f"v_cvt_pk_bf16_f32 v{SA+8+i}, v{SA+2*i}, v{SA+2*i+1}")
I(f"ds_write_b128 v9, {v(SA+8,4)}\ns_waitcnt lgkmcnt(0)\ns_barrier")
stamp("kv summed", "mp")
KVA = 32; OD = 48
for q in range(7): I(f"ds_read_b64 {v(KVA+2*q,2)}, v{vKVX} offset:{512*q}")
P.add(w1_l.pop(0))
for s in range(3):
    I(f"{MF} {v(OD,16)}, {v(KVA+4*s,4)}, {v(PQ+4*s,4)}, {'0' if s == 0 else v(OD,16)}")
    if s == 1: P.add(w1_l.pop(0))
I(f"v_mfma_f32_32x32x8_bf16 {v(OD,16)}, {v(KVA+12,2)}, {v(PQ+12,2)}, {v(OD,16)}")
I(f"""s_lshl_b32 s{sP}, s{sTILE}, 15
s_lshr_b32 s{sB}, s{sW}, 1
s_lshl_b32 s{sB}, s{sB}, 13
s_add_u32 s{sP}, s{sP}, s{sB}
s_and_b32 s{sA}, s{sH}, 8
s_lshl_b32 s{sB}, s{sA}, 11
s_add_u32 s{sP}, s{sP}, s{sB}
s_add_u32 s{sP}, s{sP}, {WS_O}
s_xor_b32 s50, s{sP}, 16384
s_mul_i32 s{sB}, s{sA}, 3584
v_add_u32 v142, s{sB}, v{vWOR}
s_sub_u32 s{sB}, 28672, s{sB}
v_add_u32 v143, s{sB}, v{vWOR}
v_and_b32 v7, 31, v1
v_mul_u32_u24 v7, 896, v7
v_add_f32 v{OD+14}, 0x358637bd, v{OD+14}
v_rcp_f32 v{OD+14}, v{OD+14}
v_lshl_add_u32 v7, v3, 4, v7""")
for k in range(0, 14, 2): I(f"v_pk_mul_f32 {v(OD+k,2)}, {v(OD+k,2)}, {v(OD+14,2)} op_sel_hi:[1,0]")
for k in range(4): I(f"v_cvt_pk_bf16_f32 v{64+k}, v{OD+2*k}, v{OD+2*k+1}")
I(f"buffer_store_dwordx4 v[64:67], v2, {WS}, s{sOST} offen sc1")
for k in range(4, 7): I(f"v_cvt_pk_bf16_f32 v{64+k}, v{OD+2*k}, v{OD+2*k+1}")
I(f"""v_bitop3_b32 v71, v64, v5, s{sMASK} bitop3:0x28
v_and_b32 v6, s{sMASK}, v5
buffer_store_dwordx4 v[68:71], v2, {WS}, s{sOST} offen offset:1024 sc1""")
if GATE & 2: P.add(flag_store(7))
stamp("o stored", "mo")
P.wait("wo")
I(f"s_cmp_ge_u32 s{sRact}, 14\ns_cbranch_scc1 L_idle\ns_barrier")
wor = []
for s in range(16):
    hh, e = s >> 1, s & 1
    for k, av in (((0, 142), (1, 9)) if hh < 4 else ((0, 143), (1, vWOR))):
        for u in range(2):
            wor += mk(f"ds_read_b64_tr_b16 {a_(128+8*s+4*k+2*u,2)}, v{av} offset:{(28*(hh&3)+8*e+4*u)*128}")
XR = 224
xrr = []
for i in range(4): xrr += mk((f"v_xor_b32 v10, {16*i}, v{vXRR}\n" if i else "") + f"ds_read_b64 {v(XR+2*i,2)}, v{10 if i else vXRR}")
I(f"s_add_u32 s{sA}, s{sW1M}, {L_XCH}\nv_add_u32 v132, s{sA}, v2\nv_xor_b32 v133, 8192, v132\nv_xor_b32 v9, 64, v142\nv_xor_b32 v{vWOR}, 64, v143")
P.add(xrr)
G1 = gate("g1", vPO, vPF)
nb_ = min(opt("nw1b", 16), len(w1_l) - 8)
wor = sprinkle(wor, [w1_l.pop(0) for _ in range(nb_)], 0, opt("w1bs", 4))
OB = 16
FO = Fetch("fo", [([f"s_add_u32 s{sCt}, s{sP if hh < 4 else 50}, {2048*(hh&3)}\nbuffer_load_dwordx4 {v(OB+8*hh,4)}, v2, {WS}, s{sCt} offen sc1\nbuffer_load_dwordx4 {v(OB+8*hh+4,4)}, v2, {WS}, s{sCt} offen offset:1024 sc1"],
                   [OB+8*hh, OB+8*hh+7]) for hh in range(8)], masked=True, nre=opt('reo', 2))
NOE = opt("noe", 4)
FEP = opt("fep", 999)
P.add(sprinkle(wor, flat([FO.loadc(hh) for hh in range(NOE)]), FEP, 3))
stamp("pre o fetch", "o")
AO, AT = 80, 96
set3 = mk(f"""s_mul_i32 s{sSCR}, s{sW}, 12288
s_mul_i32 s{sBIG}, s{sW}, 28672
v_add_u32 v131, s{sBIG}, v2
s_lshl_b32 s{sB}, s{sC}, 1
s_lshr_b32 s{sD}, s{sW}, 1
s_add_u32 s{sB}, s{sB}, s{sD}
s_mul_i32 s{sA}, s{sTILE}, 14
s_add_u32 s{sB}, s{sB}, s{sA}
s_mul_i32 s{sPST}, s{sB}, 2432
s_add_u32 s{sPST}, s{sPST}, {WS_H}
s_lshr_b32 s48, s{sW}, 1
s_nop 0
v_bfe_u32 v9, v1, 2, 2
v_lshl_add_u32 v240, v3, 2, v9
v_lshlrev_b32 v254, 7, v240
v_lshlrev_b32 v240, 8, v240
v_xor_b32 v9, s{sW}, v9
v_lshl_add_u32 v240, v9, 6, v240
v_bfe_u32 v9, v1, 4, 1
v_lshlrev_b32 v9, 5, v9
v_lshl_add_u32 v9, v8, 3, v9
v_add_u32 v240, v240, v9
v_add_u32 v254, v254, v9
v_bfe_u32 v9, v1, 3, 1
v_xor_b32 v9, s48, v9
v_lshl_add_u32 v254, v9, 6, v254
s_add_u32 s{sSCR}, s{sSCR}, {L_SCR}
v_add_u32 v252, s{sBIG}, v254
v_xor_b32 v253, 64, v252
v_add_u32 v254, s{sSCR}, v254
v_add_u32 v134, s{sSCR}, v2
v_xor_b32 v255, 64, v254
v_xor_b32 v241, 64, v240
v_xor_b32 v242, 128, v240
v_xor_b32 v243, 192, v240""") + flat([mk(f"v_add_u32 v{244+m}, 57344, v{240+m}") for m in range(4)])
pre2 = []
for i in range(8): pre2 += mk(f"v_lshlrev_b32 v{112+2*i}, 16, v{XR+i}\nv_and_b32 v{113+2*i}, s{sHIM}, v{XR+i}")
for s in range(1, 16, 2): pre2 += mk(f"v_accvgpr_write_b32 a{128+8*s+3}, 0\nv_accvgpr_write_b32 a{128+8*s+7}, 0")
if GATE & 2:
    P.add(pre2); P.add(G1.check(0, 0))
    stamp("gate1", "o")
    for hh in range(8): P.add(FO.load(hh))
else:
    P.add(pre2[16:]); P.add(set3)
    I("s_waitcnt lgkmcnt(0)\ns_barrier")
    P.add(sprinkle(flat(flat([w2rd(j) for j in UAW[:NT1]])), [w1_l.pop(0) for _ in range(min(len(w1_l), opt("nw1s", 4)))], 0, 8))
    stamp("shadow done", "o")
    LG = opt("lg", -1)
    P.add(sprinkle(pre2[:16], [FO.load(hh) for hh in range(NOE, 8)] if LG < 0 else [], 0, 2))
if NA: I("s_waitcnt lgkmcnt(0)\ns_barrier")
stamp("fo issued", "o")
g2 = []
for s in range(16):
    for k, acc in ((1, AT), (0, AO)):
        c = ("0" if k else v(112,16)) if s == 0 else v(acc,16)
        g2.append(mk(f"{MF} {v(acc,16)}, {a_(128+8*s+4*k,4)}, {v(OB+4*s,4)}, {c}"))

P.add(FO.check(0, 3))
stamp("fo0", "o")
S = Sched(g2)
for hh in range(1, 8): S.spread(FO.checkc(hh, 3 if hh < 4 else 7), 4*hh - 3, 4*hh)
if LG >= 0: S.spread(flat([FO.loadc(hh) for hh in range(NOE, 8)]), LG, LG + 6)
S.spread(w1_l + [raw.pop(0) for _ in range(min(len(raw), opt("rawb", 8)))], LG + 6 if LG >= 0 else 0, 32)
P.add(S.emit())
stamp("p2 gemm done", "o")
for i in range(4): I(f"ds_write_b128 v132, {v(AT+4*i,4)} offset:{1024*i}")
I("v_mov_b32 v112, 0\nv_mov_b32 v113, 0\ns_waitcnt lgkmcnt(0)\ns_barrier")
for i in range(4): I(f"ds_read_b128 {v(AT+4*i,4)}, v133 offset:{1024*i}")
HR = XR
for k in range(0, 8, 2): I(f"v_pk_add_f32 {v(AO+k,2)}, {v(AO+k,2)}, {v(AT+k,2)}")
for i in range(4): I(f"v_cvt_pk_bf16_f32 v{HR+i}, v{AO+2*i}, v{AO+2*i+1}")
I(f"buffer_store_dwordx4 {v(HR,4)}, v2, {WS}, s{sPST} offen sc1")
for k in range(8, 16, 2): I(f"v_pk_add_f32 {v(AO+k,2)}, {v(AO+k,2)}, {v(AT+k,2)}")
for i in range(4, 8): I(f"v_cvt_pk_bf16_f32 v{HR+i}, v{AO+2*i}, v{AO+2*i+1}")
I(f"buffer_store_dwordx4 {v(HR+4,4)}, v2, {WS}, s{sPST} offen offset:1024 sc1")
for i in range(8): I(f"v_dot2c_f32_bf16 v112, s{sONES}, v{HR+i}\nv_dot2c_f32_bf16 v113, v{HR+i}, v{HR+i}")
I(f"""v_bitop3_b32 v10, v{HR}, v{HR+4}, v5 {X3}
v_permlane32_swap_b32 v112, v113
v_add_f32 v112, v112, v113
buffer_store_dword v112, v4, {WS}, s{sPST} offen offset:2048 sc1
v_xor_b32 v113, v10, v112
buffer_store_short v113, v0, {WS}, s{sPST} offen offset:2304 sc1""")
def selft(sreg, nl): return mk(f"s_mov_b64 exec, {(1 << nl) - 1}\nbuffer_load_dword v135, v134, {WS}, s{sreg} offen sc1\ns_mov_b64 exec, -1")
SELF = opt("self", 0)
if SELF & 1: P.add(selft(sPST, 20))
if GATE & 4: P.add(flag_store(14))
stamp("h stored", "moh")
HB = 16; ST = 192
ACC = [144, 160, 176, 192]; AUG = 232
set4 = mk(f"""s_lshl_b32 s{sB}, s{sT3}, 2
s_add_u32 s{sB}, s{sB}, s{sW}
s_mul_i32 s{sP}, s{sB}, {14*2432}
s_add_u32 s{sP}, s{sP}, {WS_H}
s_mul_i32 s{sA}, s{sB}, 56
s_lshl_b32 s{sD}, s{sR}, 2
s_add_u32 s{sA}, s{sA}, s{sD}
s_mul_i32 s{sQ}, s{sA}, 2176
s_add_u32 s{sQ}, s{sQ}, {WS_H1}
v_lshlrev_b32 v13, 3, v1
s_lshl_b32 s{sA}, s{sW}, 9
s_add_u32 s{sA}, s{sA}, {L_AUG}
v_add_u32 v13, s{sA}, v13
v_mov_b32 v222, 0""")
FH = Fetch("fh", [([f"s_add_u32 s{sCt}, s{sP}, {2432*p}\nbuffer_load_dwordx4 {v(HB+8*p,4)}, v2, {WS}, s{sCt} offen sc1\nbuffer_load_dwordx4 {v(HB+8*p+4,4)}, v2, {WS}, s{sCt} offen offset:1024 sc1\n"
                    f"buffer_load_dword v{ST+2*p}, v4, {WS}, s{sCt} offen offset:2048 sc1\nbuffer_load_ushort v{ST+2*p+1}, v0, {WS}, s{sCt} offen offset:2304 sc1"],
                   [HB+8*p, HB+8*p+4, ST+2*p, ST+2*p+1]) for p in range(14)], nre=opt('reh', 2))
for i in range(4): I(f"v_mov_b32 v{AUG+i}, s{sONES}")
P.wait("w1"); I("s_barrier")
stamp("w1 landed", "h")
if opt("zz", 0): I(f"s_sleep {opt('zz', 0)}")
def w1a(t, k): return (240 + k + (4 if t >= 14 else 0), (t % 14) * 4096, (t % 14) * 4096 + 2048)
st3 = [w1a(t, 0) + ((AUG, ACC[2], t == 0, True),) for t in range(28)]
TWO = opt("two", 0); N1 = 2 if TWO else 3
for t in range(28):
    for k in range(N1): st3.append(w1a(t, k) + ((HB + 4*t, ACC[k], t == 0, False),))
for t in range(28):
    for k in range(N1, 4): st3.append(w1a(t, k) + ((HB + 4*t, ACC[k], t == 0, False),))
pro, g3 = gemm_lds(st3, AH)
P.add(pro)
S3 = Sched(g3)
S3.spread(set4, 0, 8)
S3.spread(raw + flat([w2dma(j) for j in UD]), opt("c0s", 0), opt("c0e", 10)); raw = []
NH0 = opt("nh0", 4); H0 = opt("h0", 26)
G2 = gate("g2", vPO, vPF)
if GATE & 4:
    S3.at(opt("g2", 12), G2.load(0), 0.9)
    S3.at(27, G2.check(0, 0) + stampi("gate2", "h") + flat([FH.load(p) for p in range(NH0)]), 0.5)
else: S3.spread(flat([FH.loadc(p) for p in range(NH0)]), H0, 27)
cs = ACC[2]
csx = mk(f"""v_cvt_pk_bf16_f32 v{AUG}, v{cs}, v{cs}
v_lshlrev_b32 v{AUG+1}, 16, v{AUG}
v_sub_f32 v{AUG+1}, v{cs}, v{AUG+1}
v_cvt_pk_bf16_f32 v{AUG}, v{cs}, v{AUG+1}
v_and_b32 v{AUG+1}, 0xffff, v{AUG}
v_cndmask_b32 v{AUG}, v{AUG}, 0, {sHI}
v_cndmask_b32 v{AUG+1}, v{AUG+1}, 0, {sHI}
ds_write_b64 v13, {v(AUG,2)}""")
S3.at(27, stampi("colsum done", "h") + csx + FH.check(0, NH0 - 1) + stampi("fh0", "h"), 1.0)
B0 = 28
for p in range(14):
    b = B0 + 2*N1*p
    if p + NH0 < 14:
        for k_, c_ in enumerate(FH.loadc(p + NH0)): S3.at(b + ((0, 2, 1, 3) if TWO else (0, 2, 4, 4))[k_], c_, 0.2)
    S3.at(b, mk(f"v_add_f32 v222, v222, v{ST+2*p}"), 0.0)
    if p + 1 < 14: S3.spread(FH.checkc(p + 1, min(13, p + NH0 - 1)), b + 1, b + 2*N1)
    if p in (3, 7, 11): S3.at(b + 2*N1 - 1, stampi(f"fh{p+1}", "h"), 1.0)
S3.at(B0 + 14, mk("s_barrier") + flat([mk(f"v_xor_b32 v9, {512*k}, v13\nds_read_b64 {v(AUG+2*k,2)}, v9") for k in range(1, 4)]), 0.0)
mid = mk(f"""v_mul_f32 v220, {fhex(1/448)}, v222
v_mov_b32 v221, v220
s_nop 0
v_permlane32_swap_b32 v220, v221
v_fma_f32 v221, -v220, v220, v221
v_max_f32 v221, 0, v221
v_add_f32 v221, 0x3727c5ac, v221
v_rsq_f32 v251, v221
v_cvt_pk_bf16_f32 v222, -v220, -v220
v_lshlrev_b32 v9, 16, v222
v_sub_f32 v9, -v220, v9
v_cvt_pk_bf16_f32 v223, v9, 0
v_mul_f32 v250, v221, v251
v_mul_f32 v251, 0xbfb8aa3b, v251
v_cndmask_b32 v222, v222, 0, {sHI}
v_cndmask_b32 v223, v223, 0, {sHI}""")
S3.spread(mid, *((B0 + 53, B0 + 59) if TWO else (B0 + 79, B0 + 84)))
def aug(k): return mk(f"v_mfma_f32_32x32x8_bf16 {v(ACC[k],16)}, {v(AUG+2*k,2)}, v[222:223], {v(ACC[k],16)}")
SLT = 132
def silu(k, pk):
    q = Prog(); a = ACC[k]; t = 208
    q.I(f"s_xor_b32 s50, s{sW}, {k}\ns_mul_i32 s50, s50, 2176\ns_add_u32 s50, s50, s{sQ}")
    for half in range(2):
        b = a + 8 * half
        if pk:
            for j in range(0, 8, 2): q.I(f"v_pk_mul_f32 {v(t+j,2)}, {v(b+j,2)}, v[250:251] op_sel:[0,1] op_sel_hi:[1,1]")
        else:
            for j in range(8): q.I(f"v_mul_f32 v{t+j}, v{b+j}, v251")
        for j in range(8): q.I(f"v_exp_f32 v{t+j}, v{t+j}")
        if pk:
            for j in range(0, 8, 2): q.I(f"v_pk_fma_f32 {v(t+j,2)}, {v(t+j,2)}, v[250:251], v[250:251] op_sel_hi:[1,0,0]")
        else:
            for j in range(8): q.I(f"v_fma_f32 v{t+j}, v{t+j}, v250, v250")
        for j in range(8): q.I(f"v_rcp_f32 v{t+j}, v{t+j}")
        if pk:
            for j in range(0, 8, 2): q.I(f"v_pk_mul_f32 {v(b+j,2)}, {v(b+j,2)}, {v(t+j,2)}")
        else:
            for j in range(8): q.I(f"v_mul_f32 v{b+j}, v{b+j}, v{t+j}")
        for j in range(4): q.I(f"v_cvt_pk_bf16_f32 v{b+j}, v{b+2*j}, v{b+2*j+1}")
        q.I(f"buffer_store_dwordx4 {v(b,4)}, v2, {WS}, s50 offen offset:{1024*half} sc1")
    q.I(f"v_bitop3_b32 v216, v5, v{a}, v{a+8} {X3}")
    q.I(f"buffer_store_short v216, v0, {WS}, s50 offen offset:2048 sc1")
    return q.items + ([selft(50, 18)] if SELF & 2 and not pk else [])
E0 = B0 + 28*N1
assert not raw
if TWO:
    S3.spread(flat([w2rd(j) for j in UD + UR + UAW[NT1:]]), B0 + 8, B0 + 42)
    S3.at(B0 + 34, mk("s_barrier"), 0.0)
    S3.spread(flat([w2dma(j) for j in UE]), B0 + 48, E0 + opt("wde", 12))
else:
    S3.spread(flat([w2rd(j) for j in UD + UR + UAW[NT1:]]), B0 + 22, B0 + 58)
    S3.at(B0 + 44, mk("s_barrier"), 0.0)
    S3.spread(flat([w2dma(j) for j in UE]), B0 + opt('twd', 64), E0)
B4 = 16
CKR = [240, 241, 244, 245, 248, 249, 217, 218, 219, 130, 242, 246, 243, 247]
C4 = [[a_(224,16), a_(240,16)], [v(ACC[0],16), v(ACC[1],16)]]
set5 = mk(f"""s_mul_i32 s{sA}, s{sTILE}, 56
s_xor_b32 s{sB}, s{sTILE}, 1
s_mul_i32 s{sB}, s{sB}, 56
s_add_u32 s51, s{sB}, s44
s_add_u32 s52, s{sA}, s44
s_add_u32 s53, s{sB}, s45
s_add_u32 s54, s{sA}, s45""")
for k in range(4):
    set5 += mk(f"s_mul_i32 s{51+k}, s{51+k}, 2176\ns_add_u32 s{51+k}, s{51+k}, {WS_H1}")
S3.spread(set5, B0 + 42, B0 + 52)
def piece4(n):
    st, i = n // 7, n % 7; r = B4 + 8 * (n % 14); c = CKR[n % 14]
    return ([f"s_add_u32 s{sCt}, s{51+st}, {8*2176*i}\nbuffer_load_dwordx4 {v(r,4)}, v2, {WS}, s{sCt} offen sc1\nbuffer_load_dwordx4 {v(r+4,4)}, v2, {WS}, s{sCt} offen offset:1024 sc1\n"
             f"buffer_load_ushort v{c}, v0, {WS}, s{sCt} offen offset:2048 sc1"], [r, r+4, c])
F4 = Fetch("f4", [piece4(n) for n in range(28)], nre=opt("re4", 3))
ND = opt("nd", 5)
N0 = ND if TWO else opt("n0", 4)
rawl = flat([w2raw(j) for j in UL])
nr0 = min(len(rawl), opt("nr0", 4))
if TWO:
    S3.at(E0 - 1, stampi("p3 pass1 done", "mh"), 1.0)
    g3[E0 + 3] = aug(0) + g3[E0 + 3]; g3[E0 + 4] = aug(1) + g3[E0 + 4]
    S3.spread(silu(0, False) + [stampi("silu0 done", "e")], E0 + 5, E0 + opt("s0e", 21))
    S3.spread(silu(1, False), E0 + opt("s0e", 21), E0 + opt("s1e", 44))
    S3.spread(rawl, E0 + opt("wde", 12), E0 + opt("rle", 36))
    DEEP = opt("deep", 0)
    if DEEP:
        rng = [(opt("a0", -18), opt("b0", 4)), (opt("a1", 6), opt("b1", 24)), (opt("a2", 26), opt("b2", 50)), (opt("a3", 50), opt("b3", 78))]
        f4pos = []
        for n in range(28):
            a, b = rng[n // 7]
            for k_, c_ in enumerate(F4.loadc(n)):
                pos = a + (b - a) * ((n % 7) + (0, 0.45, 0.9)[k_]) / 7
                lo = (4*n + 4 - 56) if n < 14 else 4*(n - 14) + 4
                pos = max(pos, lo + 0.01*k_); assert pos < 4*n - 3 or n == 0, (n, pos)
                f4pos.append((pos, c_))
        for i_ in range(1, len(f4pos)): assert f4pos[i_][0] >= f4pos[i_-1][0], i_
        import math
        for pos, c_ in f4pos:
            if pos < 0: S3.at(E0 + 56 + math.floor(pos), c_, pos - math.floor(pos))
    else: S3.spread(flat([F4.loadc(n) for n in range(ND)]), E0 + opt("f4s", 52), E0 + 56)
    P.add(S3.emit())
    P.add(aug(2) + aug(3))
else:
    S3.at(E0 - 1, stampi("p3 pass1 done", "mh") + aug(0) + aug(1) + aug(2) + sprinkle(silu(0, True), rawl[:nr0], 3, 12) + stampi("silu0 done", "e"), 1.0)
    S3.spread(silu(1, False) + (silu(2, False) if opt("s2p", 1) else []), E0, E0 + opt("t1e", 26))
    S3.spread(rawl[nr0:], E0, E0 + opt("tre", 20))
    S3.spread(flat([F4.loadc(n) for n in range(N0)]), E0 + opt("f4t", 20), E0 + 28)
    P.add(S3.emit())
    P.add(aug(3))
I("s_barrier")
stamp("p3 gemm done", "me")
g4 = []
for n in range(28):
    st, i = n // 7, n % 7; hf, par = st >> 1, st & 1
    for e in range(2):
        for mu in range(2):
            zero = hf == 0 and i == 0 and e == 0 and not (par == 1 and mu == 0)
            g4.append(mk(f"{MF} {C4[par][mu]}, {a_(UA(7*hf+i)+8*e+4*mu,4)}, {v(B4+8*(n%14)+4*e,4)}, {'0' if zero else C4[par][mu]}"))
P.add(F4.check(0, N0 - 1))
S = Sched(g4)
nxt = N0
for n in range(28):
    prev = nxt
    if nxt < 28 and not (TWO and DEEP):
        if nxt < n + ND and nxt + 1 < 28:
            for k_, c_ in enumerate(F4.loadc(nxt) + F4.loadc(nxt + 1)): S.at(4*n + (0, 1, 1, 2, 3, 3)[k_], c_, 0.2 + 0.01*k_)
            nxt += 2
        else:
            for k_, c_ in enumerate(F4.loadc(nxt)): S.at(4*n + (0, 2, 1)[k_], c_, 0.2)
            nxt += 1
    if n + 1 < 28: S.spread(F4.checkc(n + 1, max(n + 1, prev - 1)), 4*n + 2, 4*n + 4)
    if n in (6, 13, 20): S.at(4*n + 3, stampi(f"stage{n//7} done", "e"), 1.0)
unp = []
for i in range(8): unp += mk(f"v_lshlrev_b32 v{ACC[0]+2*i}, 16, v{HR+i}\nv_and_b32 v{ACC[0]+1+2*i}, s{sHIM}, v{HR+i}")
if TWO and DEEP:
    for pos, c_ in f4pos:
        if pos >= 0: S.at(int(pos), c_, pos - int(pos))
S2E, S3E = opt("s2e", 16), opt("s3e", 22)
if opt("s2p", 1) and not TWO: S2E = 1
else: S.spread(silu(2, False), 0, S2E)
S.spread(unp, 22, 27)
S.spread(silu(3, False), S2E, S3E)
S.spread(flat([w2rd(j) for j in UE if j < 7]), 0, 14)
S.spread(flat([w2dma(j) for j in UP]), opt("w2a", 20), opt("w2b", 46))
for j in [x for x in UE + UL + UP if x >= 7]: S.spread(w2rd(j), 44 + 5*(j-7), 49 + 5*(j-7))
S.at(82, mk(f"""s_lshl_b32 s{sA}, s{sW}, 14
v_add_u32 v13, s{sA}, v2
v_xor_b32 v9, 16384, v13
v_xor_b32 v12, 32768, v13
v_xor_b32 v14, 49152, v13
s_waitcnt lgkmcnt(0)
s_barrier"""))
S.spread([mk(f"ds_write_b128 v{9 if mu == 0 else 14}, {a_(224+16*mu+4*i,4)} offset:{4096*(2*mu+1)+1024*i}") for mu in range(2) for i in range(4)], 87, 99)
S.at(100, mk("s_waitcnt lgkmcnt(0)\ns_barrier"), 0.0)
S.spread([mk(f"ds_read_b128 {v(ACC[2+mu]+4*i,4)}, v13 offset:{4096*(2*mu+1)+1024*i}") for mu in range(2) for i in range(4)], 100, 104)
S.spread([mk(f"v_add_f32 v{ACC[2]+k}, v{ACC[2]+k}, v{ACC[3]+k}") for k in range(16)], 107, 112)
P.add(S.emit())
stamp("p4 gemm done", "me")
for i in range(4): I(f"ds_write_b128 v12, {v(ACC[1]+4*i,4)} offset:{8192+1024*i}")
if opt("cout", 0):
    I(f"""v_lshlrev_b32 v16, 3, v3
v_sub_u32 v16, v{vXRR}, v16
v_lshlrev_b32 v17, 4, v3
v_xor_b32 v16, v16, v17
v_xor_b32 v17, 32, v16
s_add_u32 s{sA}, s{sXO}, {L_XCH}
v_add_u32 v18, s{sA}, v2""")
I("s_waitcnt lgkmcnt(0)\ns_barrier")
for i in range(4): I(f"ds_read_b128 {v(ACC[3]+4*i,4)}, v13 offset:{8192+1024*i}")
for k in range(0, 16, 2): I(f"v_pk_add_f32 {v(ACC[0]+k,2)}, {v(ACC[0]+k,2)}, {v(ACC[2]+k,2)}")
for hf in range(2):
    b = ACC[0] + 8*hf
    for k in range(0, 8, 2): I(f"v_pk_add_f32 {v(b+k,2)}, {v(b+k,2)}, {v(ACC[3]+8*hf+k,2)}")
    for i in range(4): I(f"v_cvt_pk_bf16_f32 v{96+4*hf+i}, v{b+2*i}, v{b+2*i+1}")
    if not opt("cout", 0):
        I(f"v_permlane32_swap_b32 v{96+4*hf}, v{98+4*hf}\nv_permlane32_swap_b32 v{97+4*hf}, v{99+4*hf}\nbuffer_store_dwordx4 {v(96+4*hf,4)}, v7, {OUT}, s{sOUT} offen offset:{32*hf} {OPT.get('ofl', '')}")
    else:
        I(f"v_permlane32_swap_b32 v{96+4*hf}, v{98+4*hf}\nv_permlane32_swap_b32 v{97+4*hf}, v{99+4*hf}\nds_write_b128 v{16+hf}, {v(96+4*hf,4)}")
if opt("cout", 0):
    I("s_waitcnt lgkmcnt(0)\ns_barrier")
    for i in range(2): I(f"ds_read_b128 {v(104+4*i,4)}, v18 offset:{1024*i}")
    for i in range(2): I(f"buffer_store_dwordx4 {v(104+4*i,4)}, v{vXRD0+i}, {OUT}, s{sXRB} offen offset:{1024*i} {OPT.get('ofl', '')}")
stamp("end", "mpohez")
I(f"""s_cmp_lg_u32 s2, 0
s_cbranch_scc1 L_ex0
v_mov_b32 v9, 0""")
I(f"buffer_store_dword v5, v9, {WS}, 0 offen sc1", unc=True)
I("L_ex0:")
if opt("enc", 0):
    mode = opt("enc", 0)
    if mode <= 4:
        I(f"s_bfe_u32 s{sA}, s80, {hex(0x80000 | (8*(mode-1)))}\ns_min_u32 s{sA}, s{sA}, 1\ns_mul_i32 s{sA}, s{sA}, 2000", unc=True)
    else:
        I(f"s_waitcnt lgkmcnt(0)\ns_sub_u32 s{sA}, s{sSTAMP+2}, s78\ns_mul_i32 s{sA}, s{sA}, 4", unc=True)
    I(f"""s_memrealtime s[40:41]
s_waitcnt lgkmcnt(0)
L_enc:
s_memrealtime s[42:43]
s_waitcnt lgkmcnt(0)
s_sub_u32 s42, s42, s40
s_cmp_lt_u32 s42, s{sA}
s_cbranch_scc1 L_enc
s_branch L_end""", unc=True)
if opt("dbg", 0):
    I(f"""s_cmp_lg_u32 s{sW}, 0
s_cbranch_scc1 L_end
s_load_dwordx2 s[40:41], s[0:1], 64
s_mov_b32 s42, 256
s_mov_b32 s43, 0x20000
s_mov_b64 exec, 1
v_mov_b32 v9, 0
s_waitcnt lgkmcnt(0)""", unc=True)
    for k in range(nstamp[0]):
        I(f"s_sub_u32 s{sA}, s{sSTAMP+2*k}, s78\nv_mov_b32 v10, s{sA}\nbuffer_atomic_umax v10, v9, s[40:43], 0 offen offset:{4*k}\ns_nop 1", unc=True)
    I(f"""v_mov_b32 v10, s78
buffer_atomic_umax v10, v9, s[40:43], 0 offen offset:32
s_not_b32 s{sA}, s78
v_mov_b32 v11, s{sA}
buffer_atomic_umax v11, v9, s[40:43], 0 offen offset:36
v_mov_b32 v12, s{sSTAMP+2*(nstamp[0]-1)}
buffer_atomic_umax v12, v9, s[40:43], 0 offen offset:40
v_mov_b32 v13, s80
buffer_atomic_add v13, v9, s[40:43], 0 offen offset:44
s_branch L_end""", unc=True)
I("L_exit:")
if DIAG and not opt("dbg", 0):
    I(f"s_cmp_lg_u32 s{sW}, {opt('dw', 0)}\ns_cbranch_scc1 L_end\ns_lshl_b32 s{sA}, s2, 7\ns_add_u32 s{sA}, s{sA}, {WS_DIAG}\nv_mov_b32 v9, 0", unc=True)
    for k in range(nstamp[0]):
        I(f"s_waitcnt lgkmcnt(0)\nv_mov_b32 v10, s{sSTAMP+2*k}\nbuffer_store_dword v10, v9, {WS}, s{sA} offen offset:{4*k}", unc=True)
    if SEL == ["z"]: I(f"v_mov_b32 v10, s78\nbuffer_store_dword v10, v9, {WS}, s{sA} offen offset:120", unc=True)
    I(f"v_mov_b32 v10, s80\nbuffer_store_dword v10, v9, {WS}, s{sA} offen offset:124", unc=True)
I("L_end:\ns_endpgm")
I(f"""L_idle:
s_and_b32 s{sA}, s{sT2}, 1
s_lshl_b32 s{sA}, s{sA}, 1
s_add_u32 s{sA}, s{sA}, s{sRact}
s_sub_u32 s{sA}, s{sA}, 14
s_lshl_b32 s{sA}, s{sA}, 2
s_add_u32 s{sA}, s{sA}, s{sW}
s_lshl_b32 s{sA}, s{sA}, 13
v_lshlrev_b32 v9, 7, v1
s_lshr_b32 s{sD}, s{sT2}, 1
s_mul_i32 s{sD}, s{sD}, {8*56*2176}
s_add_u32 s{sD}, s{sD}, {WS_H1}
s_add_u32 s{sD}, s{sD}, s{sA}
s_mov_b32 s{sB}, {opt("idle2", 0)}
s_cmp_eq_u32 s{sB}, 0
s_cbranch_scc1 L_idle3
L_idle2:
buffer_load_dword v11, v9, {WS}, s{sD} offen {OPT.get("i2f", "")}
s_add_u32 s{sD}, s{sD}, {16*8192}
s_sub_u32 s{sB}, s{sB}, 1
s_cmp_lg_u32 s{sB}, 0
s_cbranch_scc1 L_idle2
L_idle3:
s_mov_b32 s{sB}, {opt("idle", 0)}
s_cmp_eq_u32 s{sB}, 0
s_cbranch_scc1 L_exit
L_idle1:
buffer_load_dword v11, v9, {W2}, s{sA} offen
s_add_u32 s{sA}, s{sA}, {16*8192}
s_sub_u32 s{sB}, s{sB}, 1
s_cmp_lg_u32 s{sB}, 0
s_cbranch_scc1 L_idle1
s_branch L_exit""", unc=True)
P.add(TAIL.items)

for it in P.items:
    if isinstance(it, Ins) and it.text.startswith('buffer_load_dword v142,'): it.defs = []
for it in P.items:
    if isinstance(it, Ins) and it.op == "buffer_load_dwordx4":
        for bit, srd in ((1, W1), (2, W2), (4, WO), (8, WQKV), (16, X)):
            if opt("wf", 0) & bit and srd in it.text:
                fl = OPT.get("wfl", "nt")
                it.text = it.text.replace(" lds", f" {fl} lds") if it.text.endswith(" lds") else it.text + " " + fl
PL = opt("plain", 0)
for it in P.items:
    if isinstance(it, Ins) and it.op.startswith("buffer_store") and "sc1" in it.text:
        ish1 = " s50 " in it.text or " s49 " in it.text
        ish = ("v[224:227]" in it.text or "v[228:231]" in it.text or "v112," in it.text or "v113," in it.text)
        if (ish and PL & 1) or (ish1 and PL & 2): it.text = it.text.replace(" sc1", OPT.get("pfl", ""))
if opt("pld", 0):
    c = 0
    for it in P.items:
        if isinstance(it, Ins) and it.op.startswith("buffer_load") and "sc1" in it.text and " s56 " in it.text and not it.uncounted:
            c += 1
            kind = 0 if c <= 48 else 1 if c <= 104 else 2
            if opt("pld", 0) & kind: it.text = it.text.replace(" sc1", OPT.get("lfl", ""))
if opt("nochk", 0):
    new = []; seen_end = False
    for it in P.items:
        if isinstance(it, Ins):
            if opt("nochk", 0) == 2 and not seen_end:
                if it.text.startswith("L_exit"): seen_end = True
                elif it.uncounted or it.op in ("s_cbranch_vccz", "s_branch"): continue
            if it.op == "s_cbranch_vccz" and not it.uncounted: it = Ins(it.text.replace("s_cbranch_vccz", "s_branch"))
            elif it.op == "s_cbranch_vccnz" and not it.uncounted: continue
            t = it.text
            if it.op.startswith("buffer_store") and "sc1" in t and not it.uncounted:
                kind = 8 if " s50 " in t else 4 if ("v[224" in t or "v[228" in t or "v112," in t or "v113," in t) else 2 if f" s{sOST} " in t else 1
                if opt("nost", 0) & kind: continue
            if it.op.startswith("buffer_load") and "sc1" in t and " s56 " in t and not it.uncounted:
                cnt_ld = globals().setdefault("_c", [0]); cnt_ld[0] += 1; c = cnt_ld[0]
                kind = 1 if c <= 32 else 2 if c <= 48 else 4 if c <= 104 else 8
                if opt("nold", 0) & kind: continue
        new.append(it)
    P.items = new
body, items = render(P.items)
if opt("align", 1):
    import subprocess, re as _re
    open("_al.s", "w").write('.amdgcn_target "amdgcn-amd-amdhsa--gfx950"\n.text\n' + body)
    subprocess.run(["clang", "-x", "assembler", "-target", "amdgcn-amd-amdhsa", "-mcpu=gfx950", "-c", "_al.s", "-o", "_al.o"], check=True)
    dis = subprocess.run(["llvm-objdump", "-d", "--mcpu=gfx950", "_al.o"], capture_output=True, text=True).stdout
    sizes = [4 * len(m.group(1).split()) for m in _re.finditer(r"// [0-9A-F]{12}: ((?:[0-9A-F]{8} ?)+)", dis)]
    real = [i for i in items if i.cls not in ('label', 'dir')]
    assert len(sizes) == len(real), (len(sizes), len(real))
    sz = {id(i): n for i, n in zip(real, sizes)}
    new = []; off = 0; nal = 0; MINRUN = opt("minrun", 6)
    for k, it in enumerate(items):
        if id(it) in sz and sz[id(it)] == 8 and off % 8 == 4 and not it.uncounted:
            run = 0
            for j in items[k:k + MINRUN + 4]:
                if id(j) not in sz: continue
                if sz[id(j)] != 8 or j.cls == 'mfma': break
                run += 1
            if run >= MINRUN:
                p = new[-1] if new else None
                if p is not None and p.cls == 'valu' and sz.get(id(p)) == 4 and not p.op.startswith(('v_permlane', 'v_dot2c', 'v_readfirst', 'v_accvgpr', 'v_cmp', 'v_cndmask')) and not p.op.endswith('_e64'):
                    p.text = p.text.replace(p.op, p.op + "_e64", 1)
                else: new.append(Ins("s_nop 0"))
                off += 4; nal += 1
        new.append(it); off += sz.get(id(it), 0)
    items = new
    body = '\n'.join(('' if i.cls == 'label' else '  ') + i.text for i in items) + '\n'
    print("alignment fixes:", nal, "code bytes", off)
hdr = open("cdna_kernels/" + NAME + ".s.ref").read().split("; Override launch")[0]
out = hdr + f"""; @launch grid=(256,1,1) block=(256,1,1) lds={LDS_SIZE}
.amdgcn_target "amdgcn-amd-amdhsa--gfx950"
.text
.globl {NAME}_kernel
.p2align 8
.type {NAME}_kernel,@function
{NAME}_kernel:
{body}.fill 2048, 4, 0xbf810000
.section .rodata,"a"
.p2align 6
.amdhsa_kernel {NAME}_kernel
  .amdhsa_next_free_vgpr 512
  .amdhsa_next_free_sgpr 102
  .amdhsa_accum_offset 256
  .amdhsa_group_segment_fixed_size 0
  .amdhsa_kernarg_size 80
  .amdhsa_user_sgpr_count 2
  .amdhsa_user_sgpr_kernarg_segment_ptr 1
  .amdhsa_system_sgpr_workgroup_id_x 1
.end_amdhsa_kernel
"""
open(sys.argv[1], "w").write(out)
n = sum(1 for i in items if i.cls not in ('label', 'dir'))
nu_ = sum(1 for i in items if i.cls not in ('label', 'dir') and i.uncounted)
print("instructions:", n, "(slow path", nu_, ") nops:", sum(1 for i in items if i.op == 's_nop'), "waits:", sum(1 for i in items if i.op == 's_waitcnt'), "stamps", nstamp[0])
```

```python
import sys, struct
from asmlib import *

NAME = "sequential_preLN__linear_kernel_hedgehog__dense_activation_silu__prompt"
DIAG = int(sys.argv[2]) if len(sys.argv) > 2 else 0
OPT = dict(a.split('=') for a in sys.argv[3:])
def opt(k, d): return int(OPT[k], 0) if k in OPT else d

WS_PART = 0x40000
WS_O    = 0x240000
WS_H    = 0x440000
WS_H1   = 0x680000
WS_DIAG = 0xE80000
WS_FLG  = 0xF00000
WS_SIZE = 0xF80000
XW = 28672
L_WV, L_WQ, L_WK, L_WO = 0, 28672, 57344, 86016
L_IMG = L_WK
L_KVX = 143360
L_XCH = 147456
L_SCR = 114688
L_AUG = 161792
LDS_SIZE = 163840
sW, sT, sH, sT2, sR = 3, 4, 5, 6, 7
X, WQKV, WPHI, WO, W1, W2, OUT, WS = [f"s[{i}:{i+3}]" for i in range(8, 40, 4)]
sKX, sKW = 40, 47
sHQ, sHIM = 54, 55
sRET = "s[56:57]"
sSPIN, sP, sU, sC, sMASK, sQ = 58, 59, 60, 61, 62, 63
sHI = "s[64:65]"
sLOG = "s[66:67]"
sONES, sTILE = 68, 69
sA, sB, sCt, sD = 70, 71, 72, 73
sRact, sXO = 74, 75
sWB, sWQ = 76, 77
sLAST, sFLAG, sWM, sPST, sPCK, sOST, sXRB, sOUT = 80, 81, 82, 83, 84, 85, 86, 87
sSTAMP = 88

def v(a, n=1): return f"v{a}" if n == 1 else f"v[{a}:{a+n-1}]"
def a_(a, n=1): return f"a{a}" if n == 1 else f"a[{a}:{a+n-1}]"
def fhex(x): return hex(struct.unpack('<I', struct.pack('<f', x))[0])
def flat(l): return sum(l, [])
P = Prog(); I = P.I
TAIL = Prog()
nstamp = [0]
SEL = OPT.get("st", "m").split(",")
PICK = [int(x) for x in OPT["pick"].split(",")] if "pick" in OPT else None
allst = [0]
def stampi(name, grp="m"):
    idx = allst[0]; allst[0] += 1
    if opt("jit", 0) and idx in (3, 7, 9, 11, 13, 17, 19, 21, 25, 26, 27, 28, 29):
        return mk(f"""s_memtime s[88:89]
s_waitcnt lgkmcnt(0)
s_mul_i32 s88, s88, 0x9E3779B1
s_lshr_b32 s88, s88, {opt("jit", 0)}
L_jit{idx}:
s_sleep 8
s_sub_u32 s88, s88, 1
s_cmp_gt_i32 s88, 0
s_cbranch_scc1 L_jit{idx}""")
    if not DIAG: return []
    if PICK is not None:
        if name != "start" and idx not in PICK:
            print(f"   - {idx}: {name}"); return []
    elif name != "start" and not (set(grp) & set(SEL)): return []
    k = nstamp[0]; nstamp[0] += 1
    assert k < 7
    print(f"stamp {k}: [{idx}] {name}")
    op = "s_memtime" if DIAG == 2 else "s_memrealtime"
    return mk(f"{op} s[{sSTAMP+2*k}:{sSTAMP+2*k+1}]")
def stamp(name, grp="m"): P.add(stampi(name, grp))
X3 = "bitop3:0x96"

def chk_code(regs, masked):
    r = list(regs)
    if masked: return f"v_bitop3_b32 v10, v{r[0]}, v{r[1]}, s{sMASK} bitop3:0x28\nv_cmp_ne_u32 vcc, v10, v6"
    if len(r) == 1: return f"v_cmp_ne_u32 vcc, v{r[0]}, v5"
    if len(r) == 2: t = f"v_xor_b32 v10, v{r[0]}, v{r[1]}"
    else:
        t = f"v_bitop3_b32 v10, v{r[0]}, v{r[1]}, v{r[2]} {X3}"
        if len(r) == 4: t += f"\nv_xor_b32 v10, v10, v{r[3]}"
    return t + "\nv_cmp_ne_u16 vcc, v10, v5"

sFL, sDM = 56, 57
GUARD = f"s_add_u32 s{sSPIN}, s{sSPIN}, 1\ns_cmp_gt_u32 s{sSPIN}, 0x40000\ns_cbranch_scc1 L_end\ns_waitcnt vmcnt(0)"
class Fetch:
    def __init__(self, name, pieces, masked=False, nre=1):
        self.name, self.pieces, self.masked, self.nre = name, pieces, masked, nre
    def loadc(self, i):
        it = flat([mk(c.replace(f"s{sCt}", f"s{sFL}")) for c in self.pieces[i][0]])
        out = []; cur = []
        for x in it:
            cur.append(x)
            if x.cls == 'vmem': out.append(cur); cur = []
        return out
    def load(self, i): return flat(self.loadc(i))
    def stub(self, i, last):
        n = self.name
        wgt = {"fo": 0x100, "fh": 0x10000, "f4": 0x1000000}.get(n, 1)
        rel = (f"s_add_u32 s80, s80, {wgt}\n" if DIAG else "") + "\n".join(c for j in range(i, min(last, i + self.nre - 1) + 1) for c in self.pieces[j][0])
        if opt("ool", 15) & {"fo": 2, "fh": 4, "f4": 8}[n]:
            TAIL.I(f"L_{n}_r{i}:\n" + rel + "\n" + GUARD + "\n" + chk_code(self.pieces[i][1], self.masked) + f"\ns_cbranch_vccnz L_{n}_r{i}\ns_branch L_{n}_ok{i}", unc=True)
            return mk(f"s_cbranch_vccnz L_{n}_r{i}\nL_{n}_ok{i}:")
        return mk(f"s_cbranch_vccz L_{n}_ok{i}\nL_{n}_r{i}:") + \
               mk(rel + "\n" + GUARD + "\n" + chk_code(self.pieces[i][1], self.masked) + f"\ns_cbranch_vccnz L_{n}_r{i}", unc=True) + mk(f"L_{n}_ok{i}:")
    def checkc(self, i, last):
        return [[x] for x in mk(chk_code(self.pieces[i][1], self.masked))] + [self.stub(i, last)]
    def check(self, i, last): return flat(self.checkc(i, last))

sFS, sFP = 80, 81
vL512, vPO, vPF = 0, 142, 143
def flag_store(nl): return mk(f"s_mov_b64 exec, {(1 << nl) - 1}\nbuffer_store_dword v5, v{vL512}, {WS}, s{sFS} offen sc1\ns_mov_b64 exec, -1")
def gate(name, vo, vf): return Fetch(name, [([f"buffer_load_dword v{vf}, v{vo}, {WS}, s{sFP} offen sc1"], [vf])])
GATE = opt("gate", 0)

def cost(it):
    if isinstance(it, WaitTag): return 4
    if it.cls in ('label', 'dir') or it.uncounted: return 0
    if it.op.startswith(TRANS) or 'permlane' in it.op: return 8
    if it.op.startswith('ds_write_b128'): return 28
    if it.cls == 'mfma': return 8
    return 4.5
class Sched:
    def __init__(self, groups):
        self.groups = groups; self.gap = [[] for _ in groups]; self.seq = 0
    def at(self, g, items, frac=0.5):
        self.seq += 1; self.gap[g].append((frac, self.seq, list(items)))
    def spread(self, chunks, a, b):
        chunks = [c if isinstance(c, list) else [c] for c in chunks]
        tot = sum(cost(i) for c in chunks for i in c) or 1; acc = 0
        for c in chunks:
            pos = a + (b - a) * acc / tot
            self.at(int(pos), c, pos - int(pos))
            acc += sum(cost(i) for i in c)
    def emit(self):
        out = []
        for g, gp in zip(self.groups, self.gap):
            out += g
            for _, _, c in sorted(gp, key=lambda x: (x[0], x[1])): out += c
        return out
def sprinkle(items, groups, start, step):
    out = []; groups = list(groups); nxt = start
    for i, it in enumerate(items):
        if groups and i == nxt: out += groups.pop(0); nxt += step
        out.append(it)
    for g in groups: out += g
    return out

def softmax(p, t, o, pk):
    q = Prog(); J = q.I
    m, n = t + 14, t + 15; r0, r1 = t + 16, t + 17
    J(f"v_max3_f32 v{m}, v{p}, v{p+1}, v{p+2}\nv_max3_f32 v{n}, -v{p}, -v{p+1}, -v{p+2}")
    for k in range(3, 13, 2):
        J(f"v_max3_f32 v{m}, v{m}, v{p+k}, v{p+k+1}\nv_max3_f32 v{n}, v{n}, -v{p+k}, -v{p+k+1}")
    J(f"""v_max_f32 v{m}, v{m}, v{p+13}
v_max_f32 v{n}, v{n}, -v{p+13}
v_permlane32_swap_b32 v{m}, v{n}
v_max_f32 v{m}, v{m}, v{n}
v_mul_f32 v{m}, v253, v{m}
v_mov_b32 v{n}, v{m}
v_permlane32_swap_b32 v{m}, v{n}""")
    if pk:
        for k in range(0, 14, 2):
            J(f"v_pk_fma_f32 {v(t+k,2)}, {v(p+k,2)}, v[252:253], {v(m,2)} op_sel_hi:[1,0,0]")
            J(f"v_pk_fma_f32 {v(p+k,2)}, {v(p+k,2)}, v[252:253], {v(m,2)} op_sel:[0,1,1] op_sel_hi:[1,1,1]")
    if pk == 2:
        for k in range(14):
            J(f"v_exp_f32 v{t+k}, v{t+k}\nv_exp_f32 v{p+k}, v{p+k}")
            if k >= 2:
                a0 = f"v{t}" if k == 2 else f"v{r0}"; a1 = f"v{p}" if k == 2 else f"v{r1}"
                J(f"v_add_f32 v{r0}, {a0}, v{t+k-1}\nv_add_f32 v{r1}, {a1}, v{p+k-1}")
        J(f"v_add_f32 v{m}, v{r0}, v{t+13}\nv_add_f32 v{n}, v{r1}, v{p+13}")
    elif pk:
        for k in range(14): J(f"v_exp_f32 v{t+k}, v{t+k}")
        for k in range(14): J(f"v_exp_f32 v{p+k}, v{p+k}")
        J(f"v_pk_add_f32 {v(m,2)}, {v(t,2)}, {v(t+2,2)}\nv_pk_add_f32 {v(r0,2)}, {v(p,2)}, {v(p+2,2)}")
        for k in range(4, 14, 2):
            J(f"v_pk_add_f32 {v(m,2)}, {v(m,2)}, {v(t+k,2)}\nv_pk_add_f32 {v(r0,2)}, {v(r0,2)}, {v(p+k,2)}")
        J(f"v_add_f32 v{m}, v{m}, v{n}\nv_add_f32 v{n}, v{r0}, v{r1}")
    else:
        for k in range(14):
            J(f"v_fma_f32 v{t+k}, v{p+k}, v252, v{m}\nv_fma_f32 v{p+k}, v{p+k}, v253, v{n}\nv_exp_f32 v{t+k}, v{t+k}\nv_exp_f32 v{p+k}, v{p+k}")
            if k >= 2:
                a0 = f"v{t}" if k == 2 else f"v{r0}"; a1 = f"v{p}" if k == 2 else f"v{r1}"
                J(f"v_add_f32 v{r0}, {a0}, v{t+k-1}\nv_add_f32 v{r1}, {a1}, v{p+k-1}")
        J(f"v_add_f32 v{m}, v{r0}, v{t+13}\nv_add_f32 v{n}, v{r1}, v{p+13}")
    J(f"""v_permlane32_swap_b32 v{m}, v{n}
v_add_f32 v{m}, v{m}, v{n}
v_rcp_f32 v{m}, v{m}
v_mov_b32 v{n}, v{m}
v_permlane32_swap_b32 v{m}, v{n}""")
    if pk == 1:
        for k in range(0, 14, 2):
            J(f"v_pk_mul_f32 {v(t+k,2)}, {v(t+k,2)}, {v(m,2)} op_sel_hi:[1,0]")
            J(f"v_pk_mul_f32 {v(p+k,2)}, {v(p+k,2)}, {v(m,2)} op_sel:[0,1] op_sel_hi:[1,1]")
    else:
        for k in range(14): J(f"v_mul_f32 v{t+k}, v{t+k}, v{m}\nv_mul_f32 v{p+k}, v{p+k}, v{n}")
    for k in range(7): J(f"v_cvt_pk_bf16_f32 v{o+k}, v{t+2*k}, v{t+2*k+1}")
    for k in range(7): J(f"v_cvt_pk_bf16_f32 v{o+7+k}, v{p+2*k}, v{p+2*k+1}")
    return q.items

def dmag(vaddrs, srd, sbase, sadd, mbase, madd, tag, sreg=None):
    sr = sCt if sreg is None else sreg
    ch = [mk(f"buffer_load_dwordx4 v{a}, {srd}, s{sr} offen offset:{1024*i} lds", tag=tag) for i, a in enumerate(vaddrs)]
    ch[0] = mk(f"s_add_u32 m0, s{mbase}, {madd}\ns_add_u32 s{sr}, s{sbase}, {sadd}") + ch[0]
    return ch

MF = "v_mfma_f32_32x32x16_bf16"
RINGA, NRING = 224, 8
def gemm_lds(steps, ahead=6):
    def rd(i):
        av, o1, o2 = steps[i][:3]; r = RINGA + 4 * (i % NRING)
        return mk(f"ds_read_b64_tr_b16 {a_(r,2)}, v{av} offset:{o1}\nds_read_b64_tr_b16 {a_(r+2,2)}, v{av} offset:{o2}")
    rds = [rd(i) for i in range(len(steps))]
    groups = []
    for i, st in enumerate(steps):
        r = RINGA + 4 * (i % NRING); b, acc, first, swap = st[3]
        A, B = a_(r, 4), v(b, 4)
        if swap: A, B = B, A
        g = mk(f"{MF} {v(acc,16)}, {A}, {B}, {'0' if first else v(acc,16)}")
        if i % 2 == 0 and i + 1 < len(steps):
            r2 = RINGA + 4 * ((i + 1) % NRING); g[0].extra = [('a', r2 + x) for x in range(4)]
        groups.append(g + (rds[i + ahead] if i + ahead < len(steps) else []))
    return flat(rds[:ahead]), groups

FAST = opt('fast', 1)
LO = """s_load_dwordx2 s[12:13], s[0:1], 8
s_load_dwordx2 s[16:17], s[0:1], 16
s_load_dwordx2 s[20:21], s[0:1], 24
s_load_dwordx2 s[24:25], s[0:1], 40
s_load_dwordx2 s[28:29], s[0:1], 48
s_load_dwordx2 s[32:33], s[0:1], 56
s_load_dwordx2 s[36:37], s[0:1], 72
"""
CP = f"""v_lshlrev_b32 v3, 4, v1
v_lshl_add_u32 v3, v2, 6, v3
v_lshl_add_u32 v3, v2, 4, v3
v_add_u32 v3, s{sCt}, v3
v_lshlrev_b32 v3, 7, v3
s_and_b32 s76, s76, 0xffffff00
s_mov_b64 exec, 31
global_load_dword v236, v3, s[76:77]
s_mov_b64 exec, -1
"""
MAP1 = [f"""{"s_lshr_b32 s4, s70, 1" if opt("pair", 1) else "s_and_b32 s4, s70, 3"}
s_lshl_b32 s{sT}, s{sT}, 2
s_and_b32 s{sD}, s{sB}, 3
s_add_u32 s{sT}, s{sT}, s{sD}
{"s_and_b32 s59, s70, 1" if opt("pair", 1) else "s_lshr_b32 s59, s70, 2"}
s_lshl_b32 s{sH}, s{sP}, 3
s_lshr_b32 s{sD}, s{sB}, 2
s_add_u32 s{sH}, s{sH}, s{sD}
s_mul_i32 s{sP}, s{sT}, {opt("rt", 2)}
s_add_u32 s{sD}, s{sD}, s{sP}
s_mul_i32 s{sP}, s{sD}, 37
s_lshr_b32 s{sP}, s{sP}, 8
s_mul_i32 s{sP}, s{sP}, 7
s_sub_u32 s{sD}, s{sD}, s{sP}
s_lshl_b32 s{sKX}, s{sD}, 7
""",
f"""s_lshl_b32 s{sT}, s{sA}, 1
s_lshr_b32 s{sD}, s{sB}, 4
s_add_u32 s{sT}, s{sT}, s{sD}
s_mov_b32 s{sH}, s{sCt}
s_and_b32 s{sD}, s{sH}, 7
s_cmp_eq_u32 s{sD}, 7
s_cselect_b32 s{sD}, 3, s{sD}
s_lshl_b32 s{sKX}, s{sD}, 7
""",
f"""s_mov_b32 s{sT}, s{sCt}
s_lshl_b32 s{sH}, s{sA}, 1
s_lshr_b32 s{sD}, s{sB}, 4
s_add_u32 s{sH}, s{sH}, s{sD}
s_and_b32 s{sD}, s{sH}, 7
s_mul_i32 s{sD}, s{sD}, 3
s_mul_i32 s{sP}, s{sD}, 37
s_lshr_b32 s{sP}, s{sP}, 8
s_mul_i32 s{sP}, s{sP}, 7
s_sub_u32 s{sD}, s{sD}, s{sP}
s_lshl_b32 s{sKX}, s{sD}, 7
"""][opt("map1", 0)]
if DIAG: I("s_memrealtime s[78:79]")
I(f"""s_cmp_ge_u32 s2, 256
s_cbranch_scc1 L_end
s_load_dwordx2 s[8:9], s[0:1], 0
{LO if not FAST else ''}{"s_waitcnt lgkmcnt(0)" + chr(10) + "s_memrealtime s[88:89]" if opt("bare", 0) else ""}
s_getpc_b64 s[76:77]
v_and_b32 v1, 63, v0
v_lshrrev_b32 v2, 6, v0
s_and_b32 s{sA}, s2, 7
v_readfirstlane_b32 s{sW}, v2
s_lshr_b32 s{sB}, s2, 3
s_and_b32 s{sCt}, s{sB}, 15
{CP if FAST < 2 else ''}{MAP1}
s_mov_b32 s10, 1835008
s_mov_b32 s11, 0x20000
v_lshrrev_b32 v2, 3, v1
v_mul_u32_u24 v244, 896, v2
v_lshrrev_b32 v2, 4, v1
v_and_b32 v8, 7, v1
v_xor_b32 v2, v2, v8
v_lshl_add_u32 v244, v2, 4, v244
v_xor_b32 v245, 64, v244
v_add_u32 v245, {7168-1024}, v245
v_add_u32 v246, {2*(7168-1024)}, v244
v_add_u32 v247, {2*(7168-1024)}, v245
s_lshl_b32 s{sQ}, s{sT}, 2
s_add_u32 s{sQ}, s{sQ}, s{sW}
s_mul_i32 s{sQ}, s{sQ}, {32*896}
s_lshr_b32 s{sXO}, s{sW}, 1
s_add_u32 s{sXO}, s{sXO}, s{sW}
s_mul_i32 s{sXO}, s{sXO}, {XW}
s_waitcnt lgkmcnt(0)""")
st0 = stampi("start")
if not opt("bare", 0): P.add(st0)
def xdma(g): return flat(dmag([244, 245, 246, 247], X, sQ, f"s{sKX+g}", sXO, 4096*g, f"x{g}"))
P.add(xdma(0))
if FAST: I(LO)
if FAST == 2: I(f"v_lshrrev_b32 v2, 6, v0\ns_and_b32 s{sCt}, s{sB}, 15\n" + CP)
I(f"""s_mov_b32 s14, {0 if opt('abl',0)&8 else 1204224}
s_mov_b32 s15, 0x20000
v_and_b32 v8, 3, v1""")
def wtouch(mask16, dst):
    m = mask16 | (mask16 << 16)
    return mk(f"s_mov_b32 exec_lo, {hex(m)}\ns_mov_b32 exec_hi, {hex(m)}\nbuffer_load_dword v{dst}, v255, {WQKV}, 0 offen\ns_mov_b64 exec, -1")
def kxs(g): return mk(f"s_add_u32 s{sKX+g}, s{sKX+g-1}, 128\ns_cmp_ge_u32 s{sKX+g}, 896\ns_cselect_b32 s{sD}, 896, 0\ns_sub_u32 s{sKX+g}, s{sKX+g}, s{sD}")
NXE = opt("nxe", 2)
if opt("wtfirst", 1) and opt("wt0", 0): P.add(wtouch(opt("wt0", 0), 237))
for g in range(1, NXE): P.add(kxs(g) + xdma(g))
if not opt("wtfirst", 1) and opt("wt0", 0): P.add(wtouch(opt("wt0", 0), 237))
if FAST: I("s_waitcnt lgkmcnt(0)")
if opt("wsoff", 0): I(f"s_add_u32 s36, s36, {opt('wsoff', 0)}\ns_addc_u32 s37, s37, 0")
I(f"""s_mov_b32 s38, {WS_SIZE}
s_mov_b32 s39, 0x20000
s_mov_b32 s18, 25088
s_mov_b32 s19, 0x20000
s_mov_b32 s22, {0 if opt('abl',0)&4 else 401408}
s_mov_b32 s23, 0x20000
s_xor_b32 s{sHQ}, s{sH}, 1
v_mov_b32 v11, 0
v_lshlrev_b32 v6, 7, v1""")
TM = opt("tm", 0)
sm_ld = mk(f"""s_mov_b64 exec, 1
buffer_load_dword v5, v6, {WS}, 0 offen sc1""")
if opt("two_", 1): sm_ld += mk(f"""s_lshl_b32 s56, s2, 2
s_add_u32 s56, s56, s{sW}
s_lshl_b32 s56, s56, 9
s_mov_b64 exec, 15
buffer_load_dword v238, v6, {WO}, s56 offen""")
if opt("twp", 0): sm_ld += mk(f"""s_and_b32 s{sCt}, s{sH}, 14
s_mul_i32 s{sCt}, s{sCt}, 1568
s_mul_i32 s56, s{sW}, 896
s_add_u32 s{sCt}, s{sCt}, s56
s_mov_b64 exec, 127
buffer_load_dword v239, v6, {WPHI}, s{sCt} offen""")
sm_ld += mk("s_mov_b64 exec, -1")
if TM == 0: P.add(sm_ld)
for g in range(NXE, 7): P.add(kxs(g))
MORE = opt("more", 0)
I(f"s_mov_b32 s{sONES}, 0x3f803f80\ns_mul_i32 s66, s{sH}, 1568\ns_mul_i32 s81, s{sHQ}, 1568")
_m1 = len(P.items)
I(f"""s_lshl_b32 s{sT2}, s{sA}, 1
s_lshr_b32 s{sD}, s{sB}, 4
s_add_u32 s{sT2}, s{sT2}, s{sD}
s_and_b32 s{sRact}, s{sB}, 15
s_min_u32 s{sR}, s{sRact}, 13
s_mov_b32 s26, {0 if opt('abl',0)&1 else 1605632}
s_mov_b32 s27, 0x20000
s_mov_b32 s30, {0 if opt('abl',0)&2 else 1605632}
s_mov_b32 s31, 0x20000
s_mov_b32 s34, 1835008
s_mov_b32 s35, 0x20000
s_mov_b32 s64, 0
s_mov_b32 s65, -1
s_mov_b32 s{sMASK}, 0xbfffbfff
s_mov_b32 s{sHIM}, 0xffff0000
s_mov_b32 s{sSPIN}, 0
s_mov_b32 s80, 0
s_cmp_ge_u32 s{sR}, 7
s_cselect_b32 s{sU}, 1, 0
s_mul_i32 s{sA}, s{sU}, 7
s_sub_u32 s{sC}, s{sR}, s{sA}""")
sT3 = 67
if opt("map3", 1):
    I(f"""s_and_b32 s{sA}, s{sT2}, 12
s_and_b32 s{sD}, s{sT2}, 1
s_lshl_b32 s{sD}, s{sD}, 1
s_add_u32 s{sA}, s{sA}, s{sD}
s_add_u32 s{sT3}, s{sA}, s{sU}
s_bfe_u32 s{sA}, s{sT2}, 0x10001
s_mul_i32 s{sA}, s{sA}, 7
s_add_u32 s{sR}, s{sA}, s{sC}""")
else: I(f"s_mov_b32 s{sT3}, s{sT2}")
for g in range(7): I(f"s_mul_i32 s{sKW+g}, s{sKX+g}, {172032//128}")
I(f"""s_mul_i32 s{sWB}, s{sH}, 56
s_mul_i32 s{sD}, s{sW}, 43008
s_add_u32 s{sWB}, s{sWB}, s{sD}
s_mul_i32 s{sWQ}, s{sHQ}, 56
s_add_u32 s{sWQ}, s{sWQ}, s{sD}
s_add_u32 s{sWB}, s{sWB}, 896
s_lshl_b32 s{sWM}, s{sW}, 10""")
_m0 = _m1 if MORE else len(P.items)
I(f"""s_lshl_b32 s{sA}, s{sH}, 4
s_add_u32 s{sA}, s{sA}, s{sT}
s_mul_i32 s{sA}, s{sA}, 4608
s_add_u32 s{sA}, s{sA}, {WS_PART}
s_add_u32 s{sPST}, s{sA}, s{sWM}
s_lshl_b32 s{sD}, s{sW}, 7
s_add_u32 s{sA}, s{sA}, s{sD}
s_add_u32 s{sPCK}, s{sA}, 4096
s_lshl_b32 s{sA}, s{sT}, 2
s_add_u32 s{sA}, s{sA}, s{sW}
s_lshl_b32 s{sA}, s{sA}, 15
s_lshl_b32 s{sB}, s{sHQ}, 11
s_add_u32 s{sA}, s{sA}, s{sB}
s_add_u32 s{sOST}, s{sA}, {WS_O}
s_lshl_b32 s{sA}, s{sT2}, 2
s_lshl_b32 s{sB}, s{sU}, 1
s_add_u32 s{sA}, s{sA}, s{sB}
s_and_b32 s{sB}, s{sW}, 1
s_add_u32 s{sTILE}, s{sA}, s{sB}
s_mul_i32 s{sA}, s{sA}, {32*896}
s_lshl_b32 s{sB}, s{sC}, 7
s_add_u32 s{sA}, s{sA}, s{sB}
s_mul_i32 s{sD}, s{sW}, {16*896}
s_add_u32 s{sXRB}, s{sA}, s{sD}
s_mul_i32 s{sA}, s{sTILE}, {32*896}
s_add_u32 s{sA}, s{sA}, s{sB}
s_lshr_b32 s{sB}, s{sW}, 1
s_lshl_b32 s{sB}, s{sB}, 6
s_add_u32 s{sOUT}, s{sA}, s{sB}
s_mul_i32 s{sP}, s{sHQ}, {16*4608}
s_add_u32 s{sP}, s{sP}, {WS_PART}""")
deferred = P.items[_m0:]; del P.items[_m0:]
WPK, WPQ, WPT = 192, 200, 208
vWPA, vWPB, vKVX, vIMW, vKA, vKB, vFPD, vFPC, vWO0, vWO1, vXRD0, vXRD1, vXRR, vWOR = range(128, 142)
I(f"""v_lshrrev_b32 v3, 5, v1
v_bfe_u32 v11, v1, 3, 2
v_lshl_add_u32 v11, v11, 2, v8
v_bfe_u32 v12, v1, 2, 1
v_mul_u32_u24 v12, 14, v12
v_min_u32 v13, 13, v11
v_add_u32 v13, v13, v12
v_lshlrev_b32 v13, 1, v13
v_mul_u32_u24 v14, 224, v3
v_add_u32 v{vWPA}, v13, v14
v_lshl_add_u32 v{vWPB}, v3, 20, v{vWPA}
v_and_b32 v9, 31, v1
v_lshlrev_b32 v240, 7, v9
v_bfe_u32 v10, v1, 1, 3
v_xor_b32 v10, v10, v3
v_lshl_add_u32 v240, v10, 4, v240
v_add_u32 v240, s{sXO}, v240
v_xor_b32 v241, 32, v240
v_xor_b32 v242, 64, v240
v_xor_b32 v243, 96, v240
v_mov_b32 v250, 0
v_mov_b32 v251, 0""")
_m2 = len(P.items)
I(f"""v_lshlrev_b32 v2, 4, v1
v_lshlrev_b32 v4, 2, v1
v_add_u32 v12, v12, v11
v_cmp_gt_u32 vcc, 14, v11
v_lshrrev_b32 v7, 2, v1
v_mul_u32_u24 v7, 2688, v7
v_cndmask_b32 v12, 28, v12, vcc
v_and_b32 v13, 15, v12
v_lshlrev_b32 v13, 4, v13
v_lshrrev_b32 v12, 4, v12
v_lshl_add_u32 v13, v12, 3, v13
v_lshl_add_u32 v13, v3, 8, v13
v_add_u32 v{vKVX}, {L_KVX}, v13
v_lshlrev_b32 v11, 4, v8
v_min_u32 v11, 40, v11
v_add_u32 v7, v7, v11""")
_m0 = _m2 if MORE else len(P.items)
I(f"""s_lshl_b32 s{sA}, s{sW}, 5
v_add_u32 v10, s{sA}, v9
v_mul_u32_u24 v10, 208, v10
v_mul_u32_u24 v11, 96, v3
v_add_u32 v{vIMW}, v10, v11
v_lshrrev_b32 v10, 4, v1
v_bfe_u32 v15, v1, 2, 2
v_lshl_add_u32 v10, v10, 3, v15
v_mul_u32_u24 v10, 208, v10
v_and_b32 v11, 1, v1
v_mul_u32_u24 v11, 96, v11
v_add_u32 v10, v10, v11
v_bfe_u32 v11, v1, 1, 1
v_lshl_add_u32 v10, v11, 3, v10
v_add_u32 v{vKB}, {L_IMG}, v10
s_lshl_b32 s{sA}, s{sW}, 4
v_add_u32 v{vKA}, s{sA}, v{vKB}
v_add_u32 v{vFPD}, s{sWM}, v2
s_lshl_b32 s{sD}, s{sW}, 7
s_add_u32 s{sD}, s{sD}, 4096
v_lshlrev_b32 v0, 1, v1
v_add_u32 v{vFPC}, s{sD}, v0
v_lshrrev_b32 v12, 3, v1
v_mul_u32_u24 v14, 896, v12
v_and_b32 v13, 7, v1
v_xor_b32 v12, v12, v13
v_lshl_add_u32 v{vXRD0}, v12, 4, v14
v_add_u32 v{vXRD1}, {7168-1024}, v{vXRD0}
v_bfe_u32 v12, v1, 4, 1
v_lshlrev_b32 v11, 2, v12
v_xor_b32 v11, v11, v13
v_lshl_add_u32 v{vWO0}, v11, 4, v14
v_add_u32 v{vWO1}, {7168-1024}, v{vWO0}
s_and_b32 s{sA}, s{sW}, 1
s_lshl_b32 s{sA}, s{sA}, 12
s_add_u32 s{sA}, s{sA}, {L_XCH}
v_lshlrev_b32 v10, 7, v9
v_lshl_add_u32 v10, v3, 3, v10
v_add_u32 v10, s{sA}, v10
s_lshr_b32 s{sA}, s{sW}, 1
s_lshl_b32 s{sB}, s{sA}, 2
v_xor_b32 v13, s{sB}, v13
v_lshl_add_u32 v{vXRR}, v13, 4, v10
v_mad_u32_u24 v10, v3, 14, v15
v_lshlrev_b32 v10, 7, v10
v_bfe_u32 v13, v1, 3, 1
v_xor_b32 v13, v13, v3
v_xor_b32 v13, s{sA}, v13
v_lshl_add_u32 v10, v13, 6, v10
v_lshl_add_u32 v10, v12, 5, v10
v_lshl_add_u32 v10, v8, 3, v10
s_mul_i32 s{sA}, s{sA}, {4*28*128}
s_add_u32 s{sA}, s{sA}, {L_WO}
v_add_u32 v{vWOR}, s{sA}, v10
v_lshl_add_u32 v11, v3, 3, v15
v_lshlrev_b32 v11, 6, v11
v_lshl_add_u32 v12, v12, 2, v8
v_cmp_lt_u32 vcc, 5, v12
v_xor_b32 v13, 1, v12
v_cndmask_b32 v12, v12, v13, vcc
v_lshl_add_u32 v11, v12, 3, v11
v_add_u32 v13, {L_WK}, v11""")
I(f"""v_bfe_u32 v10, v1, 2, 1
v_bfe_u32 v14, v1, 4, 1
v_lshl_add_u32 v10, v14, 1, v10
v_cmp_eq_u32 vcc, v10, v3
v_and_b32 v10, 1, v1
v_lshlrev_b32 v10, 4, v10
v_mov_b32 v14, 0x3f80
v_lshlrev_b32 v10, v10, v14
v_cndmask_b32 v10, 0, v10, vcc
v_bfe_u32 v14, v1, 3, 1
v_bfe_u32 v15, v1, 1, 1
v_lshl_add_u32 v14, v14, 1, v15""")
for q in range(4): I(f"v_cmp_eq_u32 vcc, {q}, v14\nv_cndmask_b32 v15, 0, v10, vcc\nv_accvgpr_write_b32 a{220+q}, v15")
I("v_add_u32 v9, 896, v7")
deferred += P.items[_m0:]; del P.items[_m0:]
NDEF0 = opt("ndef0", 0)
P.add(deferred[:NDEF0]); deferred = deferred[NDEF0:]
L2N = 0
if L2N:
    I(f"""s_mov_b32 s{sCt}, 0x60504020
s_cmp_ge_u32 s{sH}, 8
s_cselect_b32 s{sCt}, 0x53020100, s{sCt}
s_and_b32 s{sD}, s{sH}, 7
s_lshl_b32 s{sD}, s{sD}, 2
s_lshr_b32 s{sCt}, s{sCt}, s{sD}
s_and_b32 s{sCt}, s{sCt}, 15
s_and_b32 s{sD}, s{sT}, 3
s_mul_i32 s{sD}, s{sD}, 7
s_add_u32 s{sCt}, s{sCt}, s{sD}
s_lshl_b32 s{sCt}, s{sCt}, 2
s_add_u32 s{sCt}, s{sCt}, s{sW}
s_mul_i32 s66, s{sCt}, 14336
s_add_u32 s81, s66, 57344
s_lshl_b32 s{sD}, s{sH}, 1
s_lshr_b32 s{sD}, 0xa111444a, s{sD}
s_and_b32 s{sD}, s{sD}, 3
s_cmp_ge_u32 s{sD}, 1
s_cselect_b32 s66, s66, 0x10000000
s_cmp_ge_u32 s{sD}, 2
s_cselect_b32 s81, s81, 0x10000000
v_add_u32 v143, 7168, v6""")
def l2n(k): return mk(f"s_mov_b32 exec_hi, 0xffffff\nbuffer_load_dword v{142}, v{6 if k % 2 == 0 else 143}, {W1}, s{66 if k < 2 else 81} offen\ns_mov_b32 exec_hi, -1")
stamp("setup done", "p")
def wphi(dst, tmp, so):
    q = []
    for t in range(2):
        for j in range(8):
            d = 16 * t + 8 * (j >> 2) + (j & 3)
            av = vWPB if (t == 1 and j >= 4) else vWPA
            r = (dst if j % 2 == 0 else tmp) + 4 * t + j // 2
            op = "buffer_load_short_d16" if j % 2 == 0 else "buffer_load_short_d16_hi"
            q += mk(f"{op} v{r}, v{av}, {WPHI}, s{so} offen offset:{d*56}")
    return q
def wkdma(g): return flat(dmag([7], WQKV, sWB, f"s{sKW+g}", sWM, L_WK + 4096*g, f"wk{g}"))
def wvdma(g): return flat(dmag([9], WQKV, sWB, f"s{sKW+g}", sWM, L_WV + 4096*g, f"wv{g}"))
def wqdma(g): return flat(dmag([7], WQKV, sWQ, f"s{sKW+g}", sWM, L_WQ + 4096*g, f"wq{g}"))
if opt("fake", 0):
    I(f"""v_mov_b32 v7, v2
v_add_u32 v9, 24576, v2
s_mul_i32 s{sWB}, s{sH}, 73728
s_add_u32 s{sWB}, s{sWB}, s{sWM}
s_mul_i32 s{sWQ}, s{sHQ}, 73728
s_add_u32 s{sWQ}, s{sWQ}, s{sWM}
s_add_u32 s{sWQ}, s{sWQ}, 45056""")
    for g in range(7): I(f"s_lshl_b32 s{sKW+g}, s{sKX+g}, 5")
XF = 16
NX0 = opt("nx0", 3)
if opt("wt1", 0): P.add(wtouch(opt("wt1", 0), 249))
WPP = opt("wpp", 1)
if WPP == 1: P.add(wphi(WPK, WPT, 66) + wphi(WPQ, WPT+8, 81))
for g in range(NXE, NX0): P.add(xdma(g))
if WPP == 2: P.add(wphi(WPK, WPT, 66) + wphi(WPQ, WPT+8, 81))
pend = [xdma(g) for g in range(NX0, 7)]
wkl = [wkdma(g) for g in range(7)]
if TM and TM < NX0: P.add(sm_ld)
elif TM: pend[TM - NX0] = pend[TM - NX0] + sm_ld
if opt("wt2", 0): pend[-1] = pend[-1] + wtouch(opt("wt2", 0), 248)
pend.append(wkl.pop(0) + (wphi(WPK, WPT, 66) if not WPP else []))
pend.append(wkl.pop(0) + (wphi(WPQ, WPT+8, 81) if not WPP else []))
while len(pend) < 7: pend.append(wkl.pop(0))
def xrd(g): return flat([mk(f"ds_read_b128 {v(XF+16*g+4*e,4)}, v{240+e} offset:{4096*g}") for e in range(4)])
_n = opt("ndefx", 0)
while 0 < _n < len(deferred) and deferred[_n-1].op.startswith("s_cmp"): _n += 1
P.add(deferred[:_n]); deferred = deferred[_n:]
P.wait("x0"); P.add(xrd(0))
for g in range(7):
    if pend: P.add(pend.pop(0))
    if g + 1 < 7: P.wait(f"x{g+1}"); P.add(xrd(g + 1))
    for i in range(16):
        r = XF + 16*g + i
        I(f"v_dot2c_f32_bf16 v250, s{sONES}, v{r}\nv_dot2c_f32_bf16 v251, v{r}, v{r}")
    nd_ = -(-len(deferred) // max(1, opt("ndi", 4) - g)) if g < opt("ndi", 4) else len(deferred)
    while 0 < nd_ < len(deferred) and deferred[nd_-1].op.startswith("s_cmp"): nd_ += 1
    P.add(deferred[:nd_]); deferred = deferred[nd_:]
    if g == 0: stamp("x0 done", "p")
for x_ in pend: P.add(x_)
if opt("tp", 0) == 2:
    I(f"""s_mul_i32 s{sCt}, s2, {52*128}
s_mul_i32 s{sD}, s{sW}, {13*128}
s_add_u32 s{sCt}, s{sCt}, s{sD}
s_mov_b64 exec, 0x1fff
buffer_load_dword v254, v6, {W2}, s{sCt} offen
buffer_load_dword v255, v6, {W1}, s{sCt} offen
s_mov_b64 exec, -1""")
stamp("x stats done", "mp")
I(f"""v_permlane32_swap_b32 v250, v251
v_readfirstlane_b32 s{sA}, v5
s_nop 0
v_add_f32 v250, v250, v251
v_mul_f32 v250, {fhex(-1/448)}, v250
v_mov_b32 v251, v250
s_or_b32 s{sA}, s{sA}, 1
s_mul_i32 s{sA}, s{sA}, 0x9E3779B5
v_mov_b32 v5, s{sA}
s_mov_b32 s{sA}, 0x3f80
v_permlane32_swap_b32 v250, v251
s_mov_b32 s{sB}, 0x3f800000""")
fin = mk(f"""v_fma_f32 v251, -v250, v250, -v251
v_max_f32 v251, 0, v251
v_add_f32 v251, 0x3727c5ac, v251
v_rsq_f32 v251, v251
s_lshl_b32 s{sQ}, s{sC}, 7
s_mul_i32 s{sD}, s{sW}, {16*896}
v_mul_f32 v252, 0x3fb8aa3b, v251
v_mul_f32 v253, 0xbfb8aa3b, v251
s_add_u32 s{sQ}, s{sQ}, s{sD}
s_lshl_b32 s{sXO}, s{sW}, 11""")
if opt("noid", 1): fin = [mk(f"s_cmp_ge_u32 s{sRact}, 14\ns_cselect_b32 s22, 0, s22")] + fin
ACK = 144; ACV = 160; PK = 176; IMG = 208; TMP = 232
def norm(t):
    q = Prog(); tb = TMP + 8 * (t & 1)
    for i in range(4):
        r = XF + 4 * t + i
        q.I(f"v_dot2_f32_bf16 v{tb+2*i}, v{r}, s{sA}, v250\nv_dot2_f32_bf16 v{tb+2*i+1}, v{r}, s{sB}, v250")
    return q.items
def normc(t):
    tb = TMP + 8 * (t & 1)
    return flat([mk(f"v_cvt_pk_bf16_f32 v{XF+4*t+i}, v{tb+2*i}, v{tb+2*i+1}") for i in range(4)])
def l2t(srd, k, dst):
    return mk(f"""s_lshr_b32 s{sCt}, s2, 3
s_lshl_b32 s{sCt}, s{sCt}, 2
s_add_u32 s{sCt}, s{sCt}, s{sW}
s_mul_i32 s{sCt}, s{sCt}, {98*128}
s_mov_b32 exec_hi, 0x1ffff
s_add_u32 s{sCt}, s{sCt}, {k*49*128}
buffer_load_dword v{dst}, v6, {srd}, s{sCt} offen
s_mov_b32 exec_hi, -1""")
L2A, L2B = opt("l2a", -1), opt("l2b", -1)
touch = mk(f"""s_mul_i32 s{sCt}, s2, {52*128}
s_mul_i32 s56, s{sW}, {13*128}
s_add_u32 s{sCt}, s{sCt}, s56
s_mov_b64 exec, 0x1fff
buffer_load_dword v255, v6, {W1}, s{sCt} offen
buffer_load_dword v254, v6, {W2}, s{sCt} offen
s_mov_b64 exec, -1""")
TP = opt('tp', 0)
ns = norm(0)
for t in range(1, 28): ns += norm(t) + normc(t - 1)
ns += normc(27)
NBAR = opt("nbar", 100)
wvl = [wvdma(k) for k in range(7)]
if opt("loop2", 0):
    I("s_mov_b32 s80, 0\nL_lp2:\ns_mov_b32 s101, s100\ns_memtime s[78:79]\ns_waitcnt lgkmcnt(0)\ns_mov_b32 s99, s78")
    P.add([Ins(x.text) for x in ns])
    I("s_memtime s[78:79]\ns_waitcnt lgkmcnt(0)\ns_sub_u32 s100, s78, s99\ns_add_u32 s100, s100, s88\ns_add_u32 s80, s80, 1\ns_cmp_lt_u32 s80, 2\ns_cbranch_scc1 L_lp2")
    nstamp[0] = 14
P.add(sprinkle(ns[:NBAR], wkl, 0, opt("wkstep", 30)))
if opt("touch", 1) and TP == 1: P.add(touch)
I("s_barrier")
NWV0 = opt("nwv0", 4)
w0_ = [wvl.pop(0) for _ in range(NWV0)]
if L2N == 1: w0_[0] = l2n(0) + w0_[0]; w0_[-1] = w0_[-1] + l2n(2); wvl[-1] = wvl[-1] + l2n(1)
if L2N == 2: wvl[-1] = wvl[-1] + l2n(0) + l2n(2)
P.add(sprinkle(ns[NBAR:], w0_, opt("wv0", 30), opt("wvstep", 50)))
P.wait(*[f"wk{k}" for k in range(7)]); I("s_barrier")
stamp("wk landed", "p")
if opt("zy", 0): I(f"s_sleep {opt('zy', 0)}")
AH = 6
sW1B, sW1M, sW2E, sW2L = 40, 41, 42, 43
set2 = mk(f"""v_lshrrev_b32 v10, 4, v1
v_mul_u32_u24 v12, 3584, v10
v_lshlrev_b32 v10, 2, v10
v_and_b32 v13, 15, v1
v_xor_b32 v10, v10, v13
v_lshl_add_u32 v12, v10, 4, v12
v_add_u32 v13, {4*3584-1024}, v12
v_add_u32 v14, {2*(4*3584-1024)}, v12
v_add_u32 v15, {3*(4*3584-1024)}, v12
s_lshl_b32 s{sW1B}, s{sR}, 8
s_mul_i32 s{sD}, s{sW}, {16*3584}
s_add_u32 s{sW1B}, s{sW1B}, s{sD}
s_lshl_b32 s{sW1M}, s{sW}, 12
s_lshr_b32 s{sA}, s{sW}, 1
s_lshl_b32 s{sA}, s{sA}, 2
s_andn2_b32 s{sB}, 1, s{sW}
s_add_u32 s{sA}, s{sA}, s{sB}
s_lshl_b32 s{sB}, s{sU}, 1
s_add_u32 s44, s{sA}, s{sB}
s_xor_b32 s45, s44, 2
s_lshl_b32 s{sD}, s{sC}, 7
s_mul_i32 s{sW2E}, s44, {32*896}
s_add_u32 s{sW2E}, s{sW2E}, s{sD}
s_mul_i32 s{sW2L}, s45, {32*896}
s_add_u32 s{sW2L}, s{sW2L}, s{sD}
""")
vW2 = [vWO0, vWO1, 128, 129]
sSCR, sBIG = 46, 47
NA = opt("na", 0)
NUR = opt("nur", 2); NT1 = min(NA, opt("nt1", 99))
_u = list(range(14))
def take(n): return [_u.pop(0) for _ in range(min(n, len(_u)))]
UAW = take(NA); UR = take(NUR); UD = take(opt("nud", 2)); UE = take(3); UL = take(opt("nrl", 4)); UP = take(99)
assert all(j >= 7 for j in UL + UP) and all(j >= 4 for j in UE)
RAWS = UAW + UR + UL
def UA(j): return 16*j
def w2slot(j):
    if j in UE: return (sSCR, 4096*UE.index(j), 254)
    if j in UAW + UR + UD: return (sSCR, 4096*(j & 1), 254)
    return (sBIG, 4096*(UL + UP).index(j), 252)
def w2dma(j):
    mb, mo, _ = w2slot(j)
    return dmag(vW2, W2, sW2E if j < 7 else sW2L, (j%7)*256*896, mb, mo, f"w2_{j}", sDM)
def w2raw(j):
    ch = [mk(f"buffer_load_dwordx4 {a_(UA(j)+4*q,4)}, v{vW2[q]}, {W2}, s81 offen offset:{1024*q}") for q in range(4)]
    ch[0] = mk(f"s_add_u32 s81, s{sW2E if j < 7 else sW2L}, {(j%7)*256*896}") + ch[0]
    return ch
def w2rd(j):
    _, mo, av = w2slot(j)
    if j in RAWS: out = [mk(f"ds_write_b128 v{131 if j in UL else 134}, {a_(UA(j)+4*q,4)} offset:{mo+1024*q}") for q in range(4)]
    else: out = [[WaitTag([f"w2_{j}"])]]
    for e in range(2):
        for mu in range(2):
            for u in range(2): out.append(mk(f"ds_read_b64_tr_b16 {a_(UA(j)+8*e+4*mu+2*u,2)}, v{av+mu} offset:{mo+2048*e+1024*u}"))
    return out
raw = flat([w2raw(j) for j in UR])
rawA = flat([w2raw(j) for j in UAW])
if opt("noid", 1): set2 = [mk(f"s_cmp_ge_u32 s{sRact}, 14\ns_cselect_b32 s26, 0, s26")] + set2
set2 += mk(f"v_add_u32 v128, {2*(7168-1024)}, v{vWO0}\nv_add_u32 v129, {3*(7168-1024)}, v{vWO0}")
set2b = [x for x in set2 if isinstance(x, Ins) and x.cls == 'valu' and x.defs[0][1] < 128]
if opt("trim", 1):
    set2 = [mk(f"""s_cmp_eq_u32 s{sW}, 3
s_cselect_b64 vcc, {sHI}, 0
v_mov_b32 v143, 0x10000000
v_add_u32 v133, s{sWM}, v2
v_cndmask_b32 v142, v5, 0, vcc
v_cndmask_b32 v{vFPD}, v{vFPD}, v143, vcc
v_cndmask_b32 v{vFPC}, v{vFPC}, v143, vcc""")] + set2
set2b = [x for x in set2 if isinstance(x, list)] + set2b
set2a = [x for x in set2 if x not in set2b]
pro, gk = gemm_lds([(13, 1024*t, 1024*t + 256, (XF + 4*t, ACK, t == 0, False)) for t in range(28)], AH)
P.add(pro)
S = Sched(gk)
S.spread(wvl, 0, opt("wve", 16))
NQK = opt("nqk", 2)
S.spread([wqdma(k) for k in range(NQK)], opt("wve", 16), 28)
EARLY = opt("early", 0)
if EARLY:
    P.add(flat([x if isinstance(x, list) else [x] for x in fin + set2a])); fin = []
    wo_l = flat([dmag([vWO0, vWO1], WO, sQ, i*64*896, sXO, L_WO + 8192*i, "wo", sDM) for i in range(7)] + [dmag([vXRD0, vXRD1], X, sXRB, 0, sXO, L_XCH, "wo", sDM)])
    if EARLY == 2:
        S.spread([wo_l[2*i] + wo_l[2*i+1] for i in range(8)], 0, 28)
    else: S.spread([rawA.pop(0) for _ in range(min(len(rawA), opt("ne1", 8)))], 0, 28)
else: fin = fin + set2a
if TP == 3: S.at(opt("tpos", 22), touch)
for k, ps in enumerate((L2A, L2B)):
    if 0 <= ps < 28: S.at(ps, l2t(W1, k, 248 + k))
S.spread(fin + flat([mk(f"v_or_b32 v{WPK+q}, v{WPK+q}, v{WPT+q}\nv_or_b32 v{WPQ+q}, v{WPQ+q}, v{WPT+8+q}") for q in range(8)]), 2, 26)
P.add(S.emit())
def phi_pre(acc, wp):
    q = Prog()
    for i in range(8): q.I(f"v_cvt_pk_bf16_f32 v{acc+i}, v{acc+2*i}, v{acc+2*i+1}")
    q.I(f"{MF} {v(PK,16)}, {v(wp,4)}, {v(acc,4)}, 0\n{MF} {v(PK,16)}, {v(wp+4,4)}, {v(acc+4,4)}, {v(PK,16)}")
    return q.items
stamp("k gemm done", "mp")
wql = [wqdma(k) for k in range(NQK, 7)]
P.add(wql.pop(0))
P.add(phi_pre(ACK, WPK))
imw = flat([mk(f"ds_write_b128 v{vIMW}, {v(IMG+4*i,4)} offset:{L_IMG+16*i}") for i in range(3)]) + mk(f"ds_write_b64 v{vIMW}, {v(IMG+12,2)} offset:{L_IMG+48}")
smk = sprinkle(softmax(PK, TMP, IMG, True), [wql.pop(0) for _ in range(min(len(wql), opt("nwq0", 3)))], 10, opt("wqs", 40))
if EARLY: smk = sprinkle(smk, [rawA.pop(0) for _ in range(min(len(rawA), opt("ne2", 8)))], 5, 16)
WEAVE = opt("weave", 1)
pro, gv = gemm_lds([(11, L_WV + 1024*t, L_WV + 1024*t + 256, (XF + 4*t, ACV, t == 0, False)) for t in range(28)], AH)
S = Sched(gv)
if not WEAVE:
    P.add(smk)
    P.wait(*[f"wv{k}" for k in range(7)]); I("s_barrier")
    stamp("softmax k done", "p")
    P.add(pro)
    S.spread(imw, 2, 10)
else:
    smf = softmax(PK, TMP, IMG, 2)
    n0 = next(i for i, x in enumerate(smf) if x.op == "v_exp_f32")
    P.wait(*[f"wv{k}" for k in range(4)]); I("s_barrier")
    P.add(pro)
    P.add(smf[:n0])
    stamp("softmax k done", "p")
    S.spread(smf[n0:] + imw, 0, 28)
    S.at(15 - AH, [WaitTag(["wv4", "wv5", "wv6"])] + mk("s_barrier"), 1.0)
    wql = [wqdma(k) for k in range(NQK + 1, 7)]
wo_l = flat([dmag([vWO0, vWO1], WO, sQ, i*64*896, sXO, L_WO + 8192*i, "wo", sDM) for i in range(7)] + [dmag([vXRD0, vXRD1], X, sXRB, 0, sXO, L_XCH, "wo", sDM)])
if EARLY == 2: wo_l = []
S.spread(wql, 0, opt('wqe', 10))
if EARLY: S.spread([rawA.pop(0) for _ in range(min(len(rawA), opt("ne3", 8)))], 0, 22)
if L2A >= 0 or L2N: touch = [x for x in touch if W1 not in x.text]
if L2N == 1: S.at(opt("l2p", 14), l2n(3))
if L2N == 2: S.at(opt("l2p", 14), l2n(1) + l2n(3))
tlb = []
if opt("tlb", 0) & 1: tlb += mk(f"s_mov_b64 exec, 1\nbuffer_load_dword v248, v6, {OUT}, s{sOUT} offen\ns_mov_b64 exec, -1")
if opt("tlb", 0) & 2: tlb += mk(f"v_lshlrev_b32 v249, 20, v1\ns_mov_b64 exec, 0xffff\nbuffer_load_dword v249, v249, {WS}, 0 offen offset:4092\ns_mov_b64 exec, -1")
if tlb: S.at(opt("tlbp", 13), tlb)
if opt("touch", 1) and TP == 0: S.at(opt("tpos", 11), touch)
for k, ps in enumerate((L2A, L2B)):
    if 200 <= ps < 228: S.at(ps - 200, l2t(W1, k, 248 + k))
S.spread([wo_l.pop(0) for _ in range(2*opt("nwo0", 0))], opt("wos", 17), opt("woe2", 28))
P.add(S.emit())
for k in range(0, 16, 2): I(f"v_pk_mul_f32 {v(ACV+k,2)}, {v(ACV+k,2)}, v[250:251] op_sel:[0,1] op_sel_hi:[1,1]")
I(f"v_cndmask_b32 v{ACV+12}, v{ACV+12}, 1.0, {sHI}")
for i in range(8): I(f"v_cvt_pk_bf16_f32 v{IMG+16+i}, v{ACV+2*i}, v{ACV+2*i+1}")
for i in range(4, 6): I(f"ds_write_b128 v{vIMW}, {v(IMG+4*i,4)} offset:{L_IMG+16*i}")
P.wait("wq0", "wq1", "wq2", "wq3")
I("s_waitcnt lgkmcnt(0)\ns_barrier")
stamp("img written", "p")
KA = 144; KBv = 208; KD = 176
for k in range(4):
    for u in range(2):
        I(f"ds_read_b64_tr_b16 {v(KA+4*k+2*u,2)}, v{vKA} offset:{(32*k+4*u)*208}")
    for nu in range(2):
        for u in range(2):
            I(f"ds_read_b64_tr_b16 {v(KBv+8*k+4*nu+2*u,2)}, v{vKB} offset:{(32*k+4*u)*208+64+16*nu}")
proq, gq = gemm_lds([(11, L_WQ + 1024*t, L_WQ + 1024*t + 256, (XF + 4*t, ACV, t == 0, False)) for t in range(28)], AH)
for k in range(4):
    for nu in range(2):
        I(f"v_mfma_f32_16x16x32_bf16 {v(KD+4*nu,4)}, {v(KA+4*k,4)}, {v(KBv+8*k+4*nu,4)}, {'0' if k == 0 else v(KD+4*nu,4)}")
P.add(proq[:8])
for i in range(4): I(f"v_cvt_pk_bf16_f32 v{KD+8+i}, v{KD+2*i}, v{KD+2*i+1}")
I(f"buffer_store_dwordx4 {v(KD+8,4)}, v2, {WS}, s{sPST} offen sc1")
I(f"v_xor_b32 v10, v{KD+8}, v5")
I(f"buffer_store_short v10, v0, {WS}, s{sPCK} offen sc1")
if GATE & 1: P.add(flag_store(16))
P.add(proq[8:])
stamp("partial stored", "mp")
S = Sched(gq)
ROTP = opt("rotp", 1)
if ROTP:
    rp = []
    for b in range(4): rp += mk(f"s_lshr_b32 s{50+b}, s{sT}, 2\ns_add_u32 s{50+b}, s{50+b}, {b}\ns_and_b32 s{50+b}, s{50+b}, 3\ns_mul_i32 s{50+b}, s{50+b}, {4*4608}\ns_add_u32 s{50+b}, s{50+b}, s{sP}")
    S.spread(rp, 4, 20)
bgA = wo_l + rawA
nq = min(len(bgA), opt("nq", 16))
S.spread(bgA[:nq], 0, 28)
S.spread(set2b, 2, 18)
G0 = gate("g0", vPO, vPF)
if GATE & 1: S.at(opt("g0", 14), G0.load(0))
S.at(15 - AH, [WaitTag(["wq4", "wq5", "wq6"])] + mk("s_barrier"), 1.0)
P.add(S.emit())
stamp("q gemm done", "p")
G = 16; GC = 80; SA = 96
FP = Fetch("fp", [([f"s_add_u32 s{sCt}, s{50 + (T >> 2) if ROTP else sP}, {4608*(T & 3 if ROTP else T)}\nbuffer_load_dwordx4 {v(G+4*T,4)}, v{vFPD}, {WS}, s{sCt} offen sc1\nbuffer_load_ushort v{GC+T}, v{vFPC}, {WS}, s{sCt} offen sc1"],
                   [G+4*T, GC+T]) for T in range(16)])
NFE = opt("nfe", 4)
for T in range(NFE): P.add(FP.load(T))
P.add(phi_pre(ACV, WPQ))
I("s_barrier")
PQ = 208
smq = softmax(PK, TMP, PQ, True); f0 = opt("fp0", 30)
P.add(sprinkle(smq[:f0], bgA[nq:], 0, opt("as", 8)))
P.add(sprinkle(smq[f0:], [FP.load(T) for T in range(NFE, 16)], 0, opt("fpstep", 6)))
stamp("softmax q done", "p")
w1_l = flat([dmag([12, 13, 14, 15], W1, sW1B, i*64*3584, sW1M, 16384*i, "w1", sDM) for i in range(7)])
def fpb(b):
    t = []
    for k, T in enumerate(range(4*b, 4*b+4)):
        t.append(f"v_bitop3_b32 v{10 if k == 0 else 9}, v{G+4*T}, v{GC+T}, v{142 if opt('trim', 1) else 5} {X3}" + ("" if k == 0 else "\nv_or_b32 v10, v10, v9"))
    return "\n".join(t) + "\nv_cmp_ne_u16 vcc, 0, v10"
RI = TAIL.I if (opt("ool", 15) & 1) else I
if not (opt("ool", 15) & 1): I("s_branch L_fp_go")
RI("L_fp_retry:" + ("\ns_add_u32 s80, s80, 1" if DIAG else ""), unc=True)
for b in range(4):
    RI(fpb(b) + f"\ns_cbranch_vccz L_fp_k{b}\n" + "\n".join(FP.pieces[T][0][0] for T in range(4*b, 4*b+4)) + f"\nL_fp_k{b}:", unc=True)
RI(GUARD, unc=True)
if (opt("ool", 15) & 1): RI("s_branch L_fp_go", unc=True)
I("L_fp_go:")
I(fpb(0) + "\ns_cbranch_vccnz L_fp_retry")
S = Sched([mk(f"{MF} {v(SA,16)}, a[220:223], {v(G+4*T,4)}, {'0' if T == 0 else v(SA,16)}") for T in range(16)])
for b in range(1, 4): S.spread(mk(fpb(b) + "\ns_cbranch_vccnz L_fp_retry"), 4*b - 3, 4*b)
S.spread([w1_l.pop(0) for _ in range(opt("nw1a", 8))], opt("w1as", 2), 16)
P.add(S.emit())
I(f"v_add_u32 v9, {L_KVX}, v{133 if opt('trim', 1) else vFPD}")
for i in range(4): I(f"v_cvt_pk_bf16_f32 v{SA+8+i}, v{SA+2*i}, v{SA+2*i+1}")
I(f"ds_write_b128 v9, {v(SA+8,4)}\ns_waitcnt lgkmcnt(0)\ns_barrier")
stamp("kv summed", "mp")
KVA = 32; OD = 48
for q in range(7): I(f"ds_read_b64 {v(KVA+2*q,2)}, v{vKVX} offset:{512*q}")
P.add(w1_l.pop(0))
for s in range(3):
    I(f"{MF} {v(OD,16)}, {v(KVA+4*s,4)}, {v(PQ+4*s,4)}, {'0' if s == 0 else v(OD,16)}")
    if s == 1: P.add(w1_l.pop(0))
I(f"v_mfma_f32_32x32x8_bf16 {v(OD,16)}, {v(KVA+12,2)}, {v(PQ+12,2)}, {v(OD,16)}")
I(f"""s_lshl_b32 s{sP}, s{sTILE}, 15
s_lshr_b32 s{sB}, s{sW}, 1
s_lshl_b32 s{sB}, s{sB}, 13
s_add_u32 s{sP}, s{sP}, s{sB}
s_and_b32 s{sA}, s{sH}, 8
s_lshl_b32 s{sB}, s{sA}, 11
s_add_u32 s{sP}, s{sP}, s{sB}
s_add_u32 s{sP}, s{sP}, {WS_O}
s_xor_b32 s50, s{sP}, 16384
s_mul_i32 s{sB}, s{sA}, 3584
v_add_u32 v142, s{sB}, v{vWOR}
s_sub_u32 s{sB}, 28672, s{sB}
v_add_u32 v143, s{sB}, v{vWOR}
v_and_b32 v7, 31, v1
v_mul_u32_u24 v7, 896, v7
v_add_f32 v{OD+14}, 0x358637bd, v{OD+14}
v_rcp_f32 v{OD+14}, v{OD+14}
v_lshl_add_u32 v7, v3, 4, v7""")
for k in range(0, 14, 2): I(f"v_pk_mul_f32 {v(OD+k,2)}, {v(OD+k,2)}, {v(OD+14,2)} op_sel_hi:[1,0]")
for k in range(4): I(f"v_cvt_pk_bf16_f32 v{64+k}, v{OD+2*k}, v{OD+2*k+1}")
I(f"buffer_store_dwordx4 v[64:67], v2, {WS}, s{sOST} offen sc1")
for k in range(4, 7): I(f"v_cvt_pk_bf16_f32 v{64+k}, v{OD+2*k}, v{OD+2*k+1}")
I(f"""v_bitop3_b32 v71, v64, v5, s{sMASK} bitop3:0x28
v_and_b32 v6, s{sMASK}, v5
buffer_store_dwordx4 v[68:71], v2, {WS}, s{sOST} offen offset:1024 sc1""")
if GATE & 2: P.add(flag_store(7))
stamp("o stored", "mo")
P.wait("wo")
I(f"s_cmp_ge_u32 s{sRact}, 14\ns_cbranch_scc1 L_idle\ns_barrier")
wor = []
for s in range(16):
    hh, e = s >> 1, s & 1
    for k, av in (((0, 142), (1, 9)) if hh < 4 else ((0, 143), (1, vWOR))):
        for u in range(2):
            wor += mk(f"ds_read_b64_tr_b16 {a_(128+8*s+4*k+2*u,2)}, v{av} offset:{(28*(hh&3)+8*e+4*u)*128}")
XR = 224
xrr = []
for i in range(4): xrr += mk((f"v_xor_b32 v10, {16*i}, v{vXRR}\n" if i else "") + f"ds_read_b64 {v(XR+2*i,2)}, v{10 if i else vXRR}")
I(f"s_add_u32 s{sA}, s{sW1M}, {L_XCH}\nv_add_u32 v132, s{sA}, v2\nv_xor_b32 v133, 8192, v132\nv_xor_b32 v9, 64, v142\nv_xor_b32 v{vWOR}, 64, v143")
P.add(xrr)
G1 = gate("g1", vPO, vPF)
nb_ = min(opt("nw1b", 16), len(w1_l) - 8)
wor = sprinkle(wor, [w1_l.pop(0) for _ in range(nb_)], 0, opt("w1bs", 4))
OB = 16
FO = Fetch("fo", [([f"s_add_u32 s{sCt}, s{sP if hh < 4 else 50}, {2048*(hh&3)}\nbuffer_load_dwordx4 {v(OB+8*hh,4)}, v2, {WS}, s{sCt} offen sc1\nbuffer_load_dwordx4 {v(OB+8*hh+4,4)}, v2, {WS}, s{sCt} offen offset:1024 sc1"],
                   [OB+8*hh, OB+8*hh+7]) for hh in range(8)], masked=True, nre=opt('reo', 2))
NOE = opt("noe", 4)
FEP = opt("fep", 56)
P.add(sprinkle(wor, flat([FO.loadc(hh) for hh in range(NOE)]), FEP, 3))
stamp("pre o fetch", "o")
AO, AT = 80, 96
set3 = mk(f"""s_mul_i32 s{sSCR}, s{sW}, 12288
s_mul_i32 s{sBIG}, s{sW}, 28672
v_add_u32 v131, s{sBIG}, v2
s_lshl_b32 s{sB}, s{sC}, 1
s_lshr_b32 s{sD}, s{sW}, 1
s_add_u32 s{sB}, s{sB}, s{sD}
s_mul_i32 s{sA}, s{sTILE}, 14
s_add_u32 s{sB}, s{sB}, s{sA}
s_mul_i32 s{sPST}, s{sB}, 2432
s_add_u32 s{sPST}, s{sPST}, {WS_H}
s_lshr_b32 s48, s{sW}, 1
s_nop 0
v_bfe_u32 v9, v1, 2, 2
v_lshl_add_u32 v240, v3, 2, v9
v_lshlrev_b32 v254, 7, v240
v_lshlrev_b32 v240, 8, v240
v_xor_b32 v9, s{sW}, v9
v_lshl_add_u32 v240, v9, 6, v240
v_bfe_u32 v9, v1, 4, 1
v_lshlrev_b32 v9, 5, v9
v_lshl_add_u32 v9, v8, 3, v9
v_add_u32 v240, v240, v9
v_add_u32 v254, v254, v9
v_bfe_u32 v9, v1, 3, 1
v_xor_b32 v9, s48, v9
v_lshl_add_u32 v254, v9, 6, v254
s_add_u32 s{sSCR}, s{sSCR}, {L_SCR}
v_add_u32 v252, s{sBIG}, v254
v_xor_b32 v253, 64, v252
v_add_u32 v254, s{sSCR}, v254
v_add_u32 v134, s{sSCR}, v2
v_xor_b32 v255, 64, v254
v_xor_b32 v241, 64, v240
v_xor_b32 v242, 128, v240
v_xor_b32 v243, 192, v240""") + flat([mk(f"v_add_u32 v{244+m}, 57344, v{240+m}") for m in range(4)])
pre2 = []
for i in range(8): pre2 += mk(f"v_lshlrev_b32 v{112+2*i}, 16, v{XR+i}\nv_and_b32 v{113+2*i}, s{sHIM}, v{XR+i}")
for s in range(1, 16, 2): pre2 += mk(f"v_accvgpr_write_b32 a{128+8*s+3}, 0\nv_accvgpr_write_b32 a{128+8*s+7}, 0")
if GATE & 2:
    P.add(pre2); P.add(G1.check(0, 0))
    stamp("gate1", "o")
    for hh in range(8): P.add(FO.load(hh))
else:
    P.add(pre2[16:]); P.add(set3)
    I("s_waitcnt lgkmcnt(0)\ns_barrier")
    P.add(sprinkle(flat(flat([w2rd(j) for j in UAW[:NT1]])), [w1_l.pop(0) for _ in range(min(len(w1_l), opt("nw1s", 4)))], 0, 8))
    stamp("shadow done", "o")
    LG = opt("lg", -1)
    P.add(sprinkle(pre2[:16], [FO.load(hh) for hh in range(NOE, 8)] if LG < 0 else [], 0, 2))
if NA: I("s_waitcnt lgkmcnt(0)\ns_barrier")
stamp("fo issued", "o")
g2 = []
for s in range(16):
    for k, acc in ((1, AT), (0, AO)):
        c = ("0" if k else v(112,16)) if s == 0 else v(acc,16)
        g2.append(mk(f"{MF} {v(acc,16)}, {a_(128+8*s+4*k,4)}, {v(OB+4*s,4)}, {c}"))

P.add(FO.check(0, 3))
stamp("fo0", "o")
S = Sched(g2)
for hh in range(1, 8): S.spread(FO.checkc(hh, 3 if hh < 4 else 7), 4*hh - 3, 4*hh)
if LG >= 0: S.spread(flat([FO.loadc(hh) for hh in range(NOE, 8)]), LG, LG + 6)
S.spread(w1_l + [raw.pop(0) for _ in range(min(len(raw), opt("rawb", 8)))], LG + 6 if LG >= 0 else 0, opt('p2e', 32))
P.add(S.emit())
stamp("p2 gemm done", "o")
for i in range(4): I(f"ds_write_b128 v132, {v(AT+4*i,4)} offset:{1024*i}")
I("v_mov_b32 v112, 0\nv_mov_b32 v113, 0\ns_waitcnt lgkmcnt(0)\ns_barrier")
for i in range(4): I(f"ds_read_b128 {v(AT+4*i,4)}, v133 offset:{1024*i}")
HR = XR
for k in range(0, 8, 2): I(f"v_pk_add_f32 {v(AO+k,2)}, {v(AO+k,2)}, {v(AT+k,2)}")
for i in range(4): I(f"v_cvt_pk_bf16_f32 v{HR+i}, v{AO+2*i}, v{AO+2*i+1}")
I(f"buffer_store_dwordx4 {v(HR,4)}, v2, {WS}, s{sPST} offen sc1")
for k in range(8, 16, 2): I(f"v_pk_add_f32 {v(AO+k,2)}, {v(AO+k,2)}, {v(AT+k,2)}")
for i in range(4, 8): I(f"v_cvt_pk_bf16_f32 v{HR+i}, v{AO+2*i}, v{AO+2*i+1}")
I(f"buffer_store_dwordx4 {v(HR+4,4)}, v2, {WS}, s{sPST} offen offset:1024 sc1")
for i in range(8): I(f"v_dot2c_f32_bf16 v112, s{sONES}, v{HR+i}\nv_dot2c_f32_bf16 v113, v{HR+i}, v{HR+i}")
I(f"""v_bitop3_b32 v10, v{HR}, v{HR+4}, v5 {X3}
v_permlane32_swap_b32 v112, v113
v_add_f32 v112, v112, v113
buffer_store_dword v112, v4, {WS}, s{sPST} offen offset:2048 sc1
v_xor_b32 v113, v10, v112
buffer_store_short v113, v0, {WS}, s{sPST} offen offset:2304 sc1""")
def selft(sreg, nl): return mk(f"s_mov_b64 exec, {(1 << nl) - 1}\nbuffer_load_dword v135, v134, {WS}, s{sreg} offen sc1\ns_mov_b64 exec, -1")
SELF = opt("self", 0)
if SELF & 1: P.add(selft(sPST, 20))
if GATE & 4: P.add(flag_store(14))
stamp("h stored", "moh")
HB = 16; ST = 192
ACC = [144, 160, 176, 192]; AUG = 232
set4 = mk(f"""s_lshl_b32 s{sB}, s{sT3}, 2
s_add_u32 s{sB}, s{sB}, s{sW}
s_mul_i32 s{sP}, s{sB}, {14*2432}
s_add_u32 s{sP}, s{sP}, {WS_H}
s_mul_i32 s{sA}, s{sB}, 56
s_lshl_b32 s{sD}, s{sR}, 2
s_add_u32 s{sA}, s{sA}, s{sD}
s_mul_i32 s{sQ}, s{sA}, 2176
s_add_u32 s{sQ}, s{sQ}, {WS_H1}
v_lshlrev_b32 v13, 3, v1
s_lshl_b32 s{sA}, s{sW}, 9
s_add_u32 s{sA}, s{sA}, {L_AUG}
v_add_u32 v13, s{sA}, v13
v_mov_b32 v222, 0""")
FH = Fetch("fh", [([f"s_add_u32 s{sCt}, s{sP}, {2432*p}\nbuffer_load_dwordx4 {v(HB+8*p,4)}, v2, {WS}, s{sCt} offen sc1\nbuffer_load_dwordx4 {v(HB+8*p+4,4)}, v2, {WS}, s{sCt} offen offset:1024 sc1\n"
                    f"buffer_load_dword v{ST+2*p}, v4, {WS}, s{sCt} offen offset:2048 sc1\nbuffer_load_ushort v{ST+2*p+1}, v0, {WS}, s{sCt} offen offset:2304 sc1"],
                   [HB+8*p, HB+8*p+4, ST+2*p, ST+2*p+1]) for p in range(14)], nre=opt('reh', 2))
for i in range(4): I(f"v_mov_b32 v{AUG+i}, s{sONES}")
P.wait("w1"); I("s_barrier")
stamp("w1 landed", "h")
if opt("zz", 0): I(f"s_sleep {opt('zz', 0)}")
def w1a(t, k): return (240 + k + (4 if t >= 14 else 0), (t % 14) * 4096, (t % 14) * 4096 + 2048)
st3 = [w1a(t, 0) + ((AUG, ACC[2], t == 0, True),) for t in range(28)]
TWO = opt("two", 0); N1 = 2 if TWO else 3
for t in range(28):
    for k in range(N1): st3.append(w1a(t, k) + ((HB + 4*t, ACC[k], t == 0, False),))
for t in range(28):
    for k in range(N1, 4): st3.append(w1a(t, k) + ((HB + 4*t, ACC[k], t == 0, False),))
pro, g3 = gemm_lds(st3, AH)
P.add(pro)
S3 = Sched(g3)
S3.spread(set4, 0, 8)
S3.spread(raw + flat([w2dma(j) for j in UD]), opt("c0s", 0), opt("c0e", 10)); raw = []
NH0 = opt("nh0", 4); H0 = opt("h0", 26)
G2 = gate("g2", vPO, vPF)
if GATE & 4:
    S3.at(opt("g2", 12), G2.load(0), 0.9)
    S3.at(27, G2.check(0, 0) + stampi("gate2", "h") + flat([FH.load(p) for p in range(NH0)]), 0.5)
else: S3.spread(flat([FH.loadc(p) for p in range(NH0)]), H0, 27)
cs = ACC[2]
csx = mk(f"""v_cvt_pk_bf16_f32 v{AUG}, v{cs}, v{cs}
v_lshlrev_b32 v{AUG+1}, 16, v{AUG}
v_sub_f32 v{AUG+1}, v{cs}, v{AUG+1}
v_cvt_pk_bf16_f32 v{AUG}, v{cs}, v{AUG+1}
v_and_b32 v{AUG+1}, 0xffff, v{AUG}
v_cndmask_b32 v{AUG}, v{AUG}, 0, {sHI}
v_cndmask_b32 v{AUG+1}, v{AUG+1}, 0, {sHI}
ds_write_b64 v13, {v(AUG,2)}""")
S3.at(27, stampi("colsum done", "h") + csx + FH.check(0, NH0 - 1) + stampi("fh0", "h"), 1.0)
B0 = 28
for p in range(14):
    b = B0 + 2*N1*p
    if p + NH0 < 14:
        for k_, c_ in enumerate(FH.loadc(p + NH0)): S3.at(b + ((0, 2, 1, 3) if TWO else (0, 2, 4, 4))[k_], c_, 0.2)
    S3.at(b, mk(f"v_add_f32 v222, v222, v{ST+2*p}"), 0.0)
    if p + 1 < 14: S3.spread(FH.checkc(p + 1, min(13, p + NH0 - 1)), b + 1, b + 2*N1)
    if p in (3, 7, 11): S3.at(b + 2*N1 - 1, stampi(f"fh{p+1}", "h"), 1.0)
S3.at(B0 + 14, mk("s_barrier") + flat([mk(f"v_xor_b32 v9, {512*k}, v13\nds_read_b64 {v(AUG+2*k,2)}, v9") for k in range(1, 4)]), 0.0)
mid = mk(f"""v_mul_f32 v220, {fhex(1/448)}, v222
v_mov_b32 v221, v220
s_nop 0
v_permlane32_swap_b32 v220, v221
v_fma_f32 v221, -v220, v220, v221
v_max_f32 v221, 0, v221
v_add_f32 v221, 0x3727c5ac, v221
v_rsq_f32 v251, v221
v_cvt_pk_bf16_f32 v222, -v220, -v220
v_lshlrev_b32 v9, 16, v222
v_sub_f32 v9, -v220, v9
v_cvt_pk_bf16_f32 v223, v9, 0
v_mul_f32 v250, v221, v251
v_mul_f32 v251, 0xbfb8aa3b, v251
v_cndmask_b32 v222, v222, 0, {sHI}
v_cndmask_b32 v223, v223, 0, {sHI}""")
S3.spread(mid, *((B0 + 53, B0 + 59) if TWO else (B0 + 79, B0 + 84)))
def aug(k): return mk(f"v_mfma_f32_32x32x8_bf16 {v(ACC[k],16)}, {v(AUG+2*k,2)}, v[222:223], {v(ACC[k],16)}")
SLT = 132
def silu(k, pk):
    q = Prog(); a = ACC[k]; t = 208
    q.I(f"s_xor_b32 s50, s{sW}, {k}\ns_mul_i32 s50, s50, 2176\ns_add_u32 s50, s50, s{sQ}")
    for half in range(2):
        b = a + 8 * half
        if pk:
            for j in range(0, 8, 2): q.I(f"v_pk_mul_f32 {v(t+j,2)}, {v(b+j,2)}, v[250:251] op_sel:[0,1] op_sel_hi:[1,1]")
        else:
            for j in range(8): q.I(f"v_mul_f32 v{t+j}, v{b+j}, v251")
        for j in range(8): q.I(f"v_exp_f32 v{t+j}, v{t+j}")
        if pk:
            for j in range(0, 8, 2): q.I(f"v_pk_fma_f32 {v(t+j,2)}, {v(t+j,2)}, v[250:251], v[250:251] op_sel_hi:[1,0,0]")
        else:
            for j in range(8): q.I(f"v_fma_f32 v{t+j}, v{t+j}, v250, v250")
        for j in range(8): q.I(f"v_rcp_f32 v{t+j}, v{t+j}")
        if pk:
            for j in range(0, 8, 2): q.I(f"v_pk_mul_f32 {v(b+j,2)}, {v(b+j,2)}, {v(t+j,2)}")
        else:
            for j in range(8): q.I(f"v_mul_f32 v{b+j}, v{b+j}, v{t+j}")
        for j in range(4): q.I(f"v_cvt_pk_bf16_f32 v{b+j}, v{b+2*j}, v{b+2*j+1}")
        q.I(f"buffer_store_dwordx4 {v(b,4)}, v2, {WS}, s50 offen offset:{1024*half} sc1")
    q.I(f"v_bitop3_b32 v216, v5, v{a}, v{a+8} {X3}")
    q.I(f"buffer_store_short v216, v0, {WS}, s50 offen offset:2048 sc1")
    return q.items + ([selft(50, 18)] if SELF & 2 and not pk else [])
E0 = B0 + 28*N1
assert not raw
if TWO:
    S3.spread(flat([w2rd(j) for j in UD + UR + UAW[NT1:]]), B0 + 8, B0 + 42)
    S3.at(B0 + 34, mk("s_barrier"), 0.0)
    S3.spread(flat([w2dma(j) for j in UE]), B0 + 48, E0 + opt("wde", 12))
else:
    S3.spread(flat([w2rd(j) for j in UD + UR + UAW[NT1:]]), B0 + 22, B0 + 58)
    S3.at(B0 + 44, mk("s_barrier"), 0.0)
    S3.spread(flat([w2dma(j) for j in UE]), B0 + opt('twd', 64), E0)
B4 = 16
CKR = [240, 241, 244, 245, 248, 249, 217, 218, 219, 130, 242, 246, 243, 247]
C4 = [[a_(224,16), a_(240,16)], [v(ACC[0],16), v(ACC[1],16)]]
set5 = mk(f"""s_mul_i32 s{sA}, s{sTILE}, 56
s_xor_b32 s{sB}, s{sTILE}, 1
s_mul_i32 s{sB}, s{sB}, 56
s_add_u32 s51, s{sB}, s44
s_add_u32 s52, s{sA}, s44
s_add_u32 s53, s{sB}, s45
s_add_u32 s54, s{sA}, s45""")
for k in range(4):
    set5 += mk(f"s_mul_i32 s{51+k}, s{51+k}, 2176\ns_add_u32 s{51+k}, s{51+k}, {WS_H1}")
S3.spread(set5, B0 + 42, B0 + 52)
def piece4(n):
    st, i = n // 7, n % 7; r = B4 + 8 * (n % 14); c = CKR[n % 14]
    return ([f"s_add_u32 s{sCt}, s{51+st}, {8*2176*i}\nbuffer_load_dwordx4 {v(r,4)}, v2, {WS}, s{sCt} offen sc1\nbuffer_load_dwordx4 {v(r+4,4)}, v2, {WS}, s{sCt} offen offset:1024 sc1\n"
             f"buffer_load_ushort v{c}, v0, {WS}, s{sCt} offen offset:2048 sc1"], [r, r+4, c])
F4 = Fetch("f4", [piece4(n) for n in range(28)], nre=opt("re4", 3))
ND = opt("nd", 5)
N0 = ND if TWO else opt("n0", 4)
rawl = flat([w2raw(j) for j in UL])
nr0 = min(len(rawl), opt("nr0", 6))
if TWO:
    S3.at(E0 - 1, stampi("p3 pass1 done", "mh"), 1.0)
    g3[E0 + 3] = aug(0) + g3[E0 + 3]; g3[E0 + 4] = aug(1) + g3[E0 + 4]
    S3.spread(silu(0, False) + [stampi("silu0 done", "e")], E0 + 5, E0 + opt("s0e", 21))
    S3.spread(silu(1, False), E0 + opt("s0e", 21), E0 + opt("s1e", 44))
    S3.spread(rawl, E0 + opt("wde", 12), E0 + opt("rle", 36))
    DEEP = opt("deep", 0)
    if DEEP:
        rng = [(opt("a0", -18), opt("b0", 4)), (opt("a1", 6), opt("b1", 24)), (opt("a2", 26), opt("b2", 50)), (opt("a3", 50), opt("b3", 78))]
        f4pos = []
        for n in range(28):
            a, b = rng[n // 7]
            for k_, c_ in enumerate(F4.loadc(n)):
                pos = a + (b - a) * ((n % 7) + (0, 0.45, 0.9)[k_]) / 7
                lo = (4*n + 4 - 56) if n < 14 else 4*(n - 14) + 4
                pos = max(pos, lo + 0.01*k_); assert pos < 4*n - 3 or n == 0, (n, pos)
                f4pos.append((pos, c_))
        for i_ in range(1, len(f4pos)): assert f4pos[i_][0] >= f4pos[i_-1][0], i_
        import math
        for pos, c_ in f4pos:
            if pos < 0: S3.at(E0 + 56 + math.floor(pos), c_, pos - math.floor(pos))
    else: S3.spread(flat([F4.loadc(n) for n in range(ND)]), E0 + opt("f4s", 52), E0 + 56)
    P.add(S3.emit())
    P.add(aug(2) + aug(3))
else:
    S3.at(E0 - 1, stampi("p3 pass1 done", "mh") + aug(0) + aug(1) + aug(2) + sprinkle(silu(0, True), rawl[:nr0], 3, opt('r0s', 12)) + stampi("silu0 done", "e"), 1.0)
    S3.spread(silu(1, False) + (silu(2, False) if opt("s2p", 1) else []), E0, E0 + opt("t1e", 26))
    S3.spread(rawl[nr0:], E0, E0 + opt("tre", 20))
    S3.spread(flat([F4.loadc(n) for n in range(N0)]), E0 + opt("f4t", 20), E0 + 28)
    P.add(S3.emit())
    P.add(aug(3))
I("s_barrier")
stamp("p3 gemm done", "me")
g4 = []
for n in range(28):
    st, i = n // 7, n % 7; hf, par = st >> 1, st & 1
    for e in range(2):
        for mu in range(2):
            zero = hf == 0 and i == 0 and e == 0 and not (par == 1 and mu == 0)
            g4.append(mk(f"{MF} {C4[par][mu]}, {a_(UA(7*hf+i)+8*e+4*mu,4)}, {v(B4+8*(n%14)+4*e,4)}, {'0' if zero else C4[par][mu]}"))
P.add(F4.check(0, N0 - 1))
S = Sched(g4)
nxt = N0
for n in range(28):
    prev = nxt
    if nxt < 28 and not (TWO and DEEP):
        if nxt < n + ND and nxt + 1 < 28:
            for k_, c_ in enumerate(F4.loadc(nxt) + F4.loadc(nxt + 1)): S.at(4*n + (0, 1, 1, 2, 3, 3)[k_], c_, 0.2 + 0.01*k_)
            nxt += 2
        else:
            for k_, c_ in enumerate(F4.loadc(nxt)): S.at(4*n + (0, 2, 1)[k_], c_, 0.2)
            nxt += 1
    if n + 1 < 28: S.spread(F4.checkc(n + 1, max(n + 1, prev - 1)), 4*n + 2, 4*n + 4)
    if n in (6, 13, 20): S.at(4*n + 3, stampi(f"stage{n//7} done", "e"), 1.0)
unp = []
for i in range(8): unp += mk(f"v_lshlrev_b32 v{ACC[0]+2*i}, 16, v{HR+i}\nv_and_b32 v{ACC[0]+1+2*i}, s{sHIM}, v{HR+i}")
if TWO and DEEP:
    for pos, c_ in f4pos:
        if pos >= 0: S.at(int(pos), c_, pos - int(pos))
S2E, S3E = opt("s2e", 16), opt("s3e", 16)
if opt("s2p", 1) and not TWO: S2E = 1
else: S.spread(silu(2, False), 0, S2E)
S.spread(unp, 22, 27)
S.spread(silu(3, False), S2E, S3E)
S.spread(flat([w2rd(j) for j in UE if j < 7]), 0, 14)
S.spread(flat([w2dma(j) for j in UP]), opt("w2a", 20), opt("w2b", 46))
for j in [x for x in UE + UL + UP if x >= 7]: S.spread(w2rd(j), 44 + 5*(j-7), 49 + 5*(j-7))
S.at(82, mk(f"""s_lshl_b32 s{sA}, s{sW}, 14
v_add_u32 v13, s{sA}, v2
v_xor_b32 v9, 16384, v13
v_xor_b32 v12, 32768, v13
v_xor_b32 v14, 49152, v13
s_waitcnt lgkmcnt(0)
s_barrier"""))
S.spread([mk(f"ds_write_b128 v{9 if mu == 0 else 14}, {a_(224+16*mu+4*i,4)} offset:{4096*(2*mu+1)+1024*i}") for mu in range(2) for i in range(4)], 87, 99)
S.at(100, mk("s_waitcnt lgkmcnt(0)\ns_barrier"), 0.0)
S.spread([mk(f"ds_read_b128 {v(ACC[2+mu]+4*i,4)}, v13 offset:{4096*(2*mu+1)+1024*i}") for mu in range(2) for i in range(4)], 100, 104)
S.spread([mk(f"v_add_f32 v{ACC[2]+k}, v{ACC[2]+k}, v{ACC[3]+k}") for k in range(16)], 107, 112)
P.add(S.emit())
stamp("p4 gemm done", "me")
for i in range(4): I(f"ds_write_b128 v12, {v(ACC[1]+4*i,4)} offset:{8192+1024*i}")
if opt("cout", 0):
    I(f"""v_lshlrev_b32 v16, 3, v3
v_sub_u32 v16, v{vXRR}, v16
v_lshlrev_b32 v17, 4, v3
v_xor_b32 v16, v16, v17
v_xor_b32 v17, 32, v16
s_add_u32 s{sA}, s{sXO}, {L_XCH}
v_add_u32 v18, s{sA}, v2""")
I("s_waitcnt lgkmcnt(0)\ns_barrier")
for i in range(4): I(f"ds_read_b128 {v(ACC[3]+4*i,4)}, v13 offset:{8192+1024*i}")
for k in range(0, 16, 2): I(f"v_pk_add_f32 {v(ACC[0]+k,2)}, {v(ACC[0]+k,2)}, {v(ACC[2]+k,2)}")
for hf in range(2):
    b = ACC[0] + 8*hf
    for k in range(0, 8, 2): I(f"v_pk_add_f32 {v(b+k,2)}, {v(b+k,2)}, {v(ACC[3]+8*hf+k,2)}")
    for i in range(4): I(f"v_cvt_pk_bf16_f32 v{96+4*hf+i}, v{b+2*i}, v{b+2*i+1}")
    if not opt("cout", 0):
        I(f"v_permlane32_swap_b32 v{96+4*hf}, v{98+4*hf}\nv_permlane32_swap_b32 v{97+4*hf}, v{99+4*hf}\nbuffer_store_dwordx4 {v(96+4*hf,4)}, v7, {OUT}, s{sOUT} offen offset:{32*hf} {OPT.get('ofl', '')}")
    else:
        I(f"v_permlane32_swap_b32 v{96+4*hf}, v{98+4*hf}\nv_permlane32_swap_b32 v{97+4*hf}, v{99+4*hf}\nds_write_b128 v{16+hf}, {v(96+4*hf,4)}")
if opt("cout", 0):
    I("s_waitcnt lgkmcnt(0)\ns_barrier")
    for i in range(2): I(f"ds_read_b128 {v(104+4*i,4)}, v18 offset:{1024*i}")
    for i in range(2): I(f"buffer_store_dwordx4 {v(104+4*i,4)}, v{vXRD0+i}, {OUT}, s{sXRB} offen offset:{1024*i} {OPT.get('ofl', '')}")
stamp("end", "mpohez")
I(f"""s_cmp_lg_u32 s2, 0
s_cbranch_scc1 L_ex0
v_mov_b32 v9, 0""")
I(f"buffer_store_dword v5, v9, {WS}, 0 offen sc1", unc=True)
I("L_ex0:")
if opt("enc", 0):
    mode = opt("enc", 0)
    if mode <= 4:
        I(f"s_bfe_u32 s{sA}, s80, {hex(0x80000 | (8*(mode-1)))}\ns_min_u32 s{sA}, s{sA}, 1\ns_mul_i32 s{sA}, s{sA}, 2000", unc=True)
    else:
        I(f"s_waitcnt lgkmcnt(0)\ns_sub_u32 s{sA}, s{sSTAMP+2}, s78\ns_mul_i32 s{sA}, s{sA}, 4", unc=True)
    I(f"""s_memrealtime s[40:41]
s_waitcnt lgkmcnt(0)
L_enc:
s_memrealtime s[42:43]
s_waitcnt lgkmcnt(0)
s_sub_u32 s42, s42, s40
s_cmp_lt_u32 s42, s{sA}
s_cbranch_scc1 L_enc
s_branch L_end""", unc=True)
if opt("dbg", 0):
    I(f"""s_cmp_lg_u32 s{sW}, 0
s_cbranch_scc1 L_end
s_load_dwordx2 s[40:41], s[0:1], 64
s_mov_b32 s42, 256
s_mov_b32 s43, 0x20000
s_mov_b64 exec, 1
v_mov_b32 v9, 0
s_waitcnt lgkmcnt(0)""", unc=True)
    for k in range(nstamp[0]):
        I(f"s_sub_u32 s{sA}, s{sSTAMP+2*k}, s78\nv_mov_b32 v10, s{sA}\nbuffer_atomic_umax v10, v9, s[40:43], 0 offen offset:{4*k}\ns_nop 1", unc=True)
    I(f"""v_mov_b32 v10, s78
buffer_atomic_umax v10, v9, s[40:43], 0 offen offset:32
s_not_b32 s{sA}, s78
v_mov_b32 v11, s{sA}
buffer_atomic_umax v11, v9, s[40:43], 0 offen offset:36
v_mov_b32 v12, s{sSTAMP+2*(nstamp[0]-1)}
buffer_atomic_umax v12, v9, s[40:43], 0 offen offset:40
v_mov_b32 v13, s80
buffer_atomic_add v13, v9, s[40:43], 0 offen offset:44
s_branch L_end""", unc=True)
I("L_exit:")
if DIAG and not opt("dbg", 0):
    I(f"s_cmp_lg_u32 s{sW}, {opt('dw', 0)}\ns_cbranch_scc1 L_end\ns_lshl_b32 s{sA}, s2, 7\ns_add_u32 s{sA}, s{sA}, {WS_DIAG}\nv_mov_b32 v9, 0", unc=True)
    for k in range(nstamp[0]):
        I(f"s_waitcnt lgkmcnt(0)\nv_mov_b32 v10, s{sSTAMP+2*k}\nbuffer_store_dword v10, v9, {WS}, s{sA} offen offset:{4*k}", unc=True)
    if SEL == ["z"]: I(f"v_mov_b32 v10, s78\nbuffer_store_dword v10, v9, {WS}, s{sA} offen offset:120", unc=True)
    I(f"v_mov_b32 v10, s80\nbuffer_store_dword v10, v9, {WS}, s{sA} offen offset:124", unc=True)
I("L_end:\ns_endpgm")
I(f"""L_idle:
s_and_b32 s{sA}, s{sT2}, 1
s_lshl_b32 s{sA}, s{sA}, 1
s_add_u32 s{sA}, s{sA}, s{sRact}
s_sub_u32 s{sA}, s{sA}, 14
s_lshl_b32 s{sA}, s{sA}, 2
s_add_u32 s{sA}, s{sA}, s{sW}
s_lshl_b32 s{sA}, s{sA}, 13
v_lshlrev_b32 v9, 7, v1
s_lshr_b32 s{sD}, s{sT2}, 1
s_mul_i32 s{sD}, s{sD}, {8*56*2176}
s_add_u32 s{sD}, s{sD}, {WS_H1}
s_add_u32 s{sD}, s{sD}, s{sA}
s_mov_b32 s{sB}, {opt("idle2", 0)}
s_cmp_eq_u32 s{sB}, 0
s_cbranch_scc1 L_idle3
L_idle2:
buffer_load_dword v11, v9, {WS}, s{sD} offen {OPT.get("i2f", "")}
s_add_u32 s{sD}, s{sD}, {16*8192}
s_sub_u32 s{sB}, s{sB}, 1
s_cmp_lg_u32 s{sB}, 0
s_cbranch_scc1 L_idle2
L_idle3:
s_mov_b32 s{sB}, {opt("idle", 0)}
s_cmp_eq_u32 s{sB}, 0
s_cbranch_scc1 L_exit
L_idle1:
buffer_load_dword v11, v9, {W2}, s{sA} offen
s_add_u32 s{sA}, s{sA}, {16*8192}
s_sub_u32 s{sB}, s{sB}, 1
s_cmp_lg_u32 s{sB}, 0
s_cbranch_scc1 L_idle1
s_branch L_exit""", unc=True)
P.add(TAIL.items)

for it in P.items:
    if isinstance(it, Ins) and it.text.startswith('buffer_load_dword v142,'): it.defs = []
for it in P.items:
    if isinstance(it, Ins) and it.op == "buffer_load_dwordx4":
        for bit, srd in ((1, W1), (2, W2), (4, WO), (8, WQKV), (16, X)):
            if opt("wf", 0) & bit and srd in it.text:
                fl = OPT.get("wfl", "nt")
                it.text = it.text.replace(" lds", f" {fl} lds") if it.text.endswith(" lds") else it.text + " " + fl
PL = opt("plain", 0)
for it in P.items:
    if isinstance(it, Ins) and it.op.startswith("buffer_store") and "sc1" in it.text:
        ish1 = " s50 " in it.text or " s49 " in it.text
        ish = ("v[224:227]" in it.text or "v[228:231]" in it.text or "v112," in it.text or "v113," in it.text)
        if (ish and PL & 1) or (ish1 and PL & 2): it.text = it.text.replace(" sc1", OPT.get("pfl", ""))
if opt("pld", 0):
    c = 0
    for it in P.items:
        if isinstance(it, Ins) and it.op.startswith("buffer_load") and "sc1" in it.text and " s56 " in it.text and not it.uncounted:
            c += 1
            kind = 0 if c <= 48 else 1 if c <= 104 else 2
            if opt("pld", 0) & kind: it.text = it.text.replace(" sc1", OPT.get("lfl", ""))
if opt("nochk", 0):
    new = []; seen_end = False
    for it in P.items:
        if isinstance(it, Ins):
            if opt("nochk", 0) == 2 and not seen_end:
                if it.text.startswith("L_exit"): seen_end = True
                elif it.uncounted or it.op in ("s_cbranch_vccz", "s_branch"): continue
            if it.op == "s_cbranch_vccz" and not it.uncounted: it = Ins(it.text.replace("s_cbranch_vccz", "s_branch"))
            elif it.op == "s_cbranch_vccnz" and not it.uncounted: continue
            t = it.text
            if it.op.startswith("buffer_store") and "sc1" in t and not it.uncounted:
                kind = 8 if " s50 " in t else 4 if ("v[224" in t or "v[228" in t or "v112," in t or "v113," in t) else 2 if f" s{sOST} " in t else 1
                if opt("nost", 0) & kind: continue
            if it.op.startswith("buffer_load") and "sc1" in t and " s56 " in t and not it.uncounted:
                cnt_ld = globals().setdefault("_c", [0]); cnt_ld[0] += 1; c = cnt_ld[0]
                kind = 1 if c <= 32 else 2 if c <= 48 else 4 if c <= 104 else 8
                if opt("nold", 0) & kind: continue
        new.append(it)
    P.items = new
body, items = render(P.items)
if opt("align", 1):
    import subprocess, re as _re
    open("_al.s", "w").write('.amdgcn_target "amdgcn-amd-amdhsa--gfx950"\n.text\n' + body)
    subprocess.run(["clang", "-x", "assembler", "-target", "amdgcn-amd-amdhsa", "-mcpu=gfx950", "-c", "_al.s", "-o", "_al.o"], check=True)
    dis = subprocess.run(["llvm-objdump", "-d", "--mcpu=gfx950", "_al.o"], capture_output=True, text=True).stdout
    sizes = [4 * len(m.group(1).split()) for m in _re.finditer(r"// [0-9A-F]{12}: ((?:[0-9A-F]{8} ?)+)", dis)]
    real = [i for i in items if i.cls not in ('label', 'dir')]
    assert len(sizes) == len(real), (len(sizes), len(real))
    sz = {id(i): n for i, n in zip(real, sizes)}
    new = []; off = 0; nal = 0; MINRUN = opt("minrun", 6)
    for k, it in enumerate(items):
        if id(it) in sz and sz[id(it)] == 8 and off % 8 == 4 and not it.uncounted:
            run = 0
            for j in items[k:k + MINRUN + 4]:
                if id(j) not in sz: continue
                if sz[id(j)] != 8 or j.cls == 'mfma': break
                run += 1
            if run >= MINRUN:
                p = new[-1] if new else None
                if p is not None and p.cls == 'valu' and sz.get(id(p)) == 4 and not p.op.startswith(('v_permlane', 'v_dot2c', 'v_readfirst', 'v_accvgpr', 'v_cmp', 'v_cndmask')) and not p.op.endswith('_e64'):
                    p.text = p.text.replace(p.op, p.op + "_e64", 1)
                else: new.append(Ins("s_nop 0"))
                off += 4; nal += 1
        new.append(it); off += sz.get(id(it), 0)
    items = new
    body = '\n'.join(('' if i.cls == 'label' else '  ') + i.text for i in items) + '\n'
    print("alignment fixes:", nal, "code bytes", off)
hdr = open("cdna_kernels/" + NAME + ".s.ref").read().split("; Override launch")[0]
out = hdr + f"""; @launch grid=(256,1,1) block=(256,1,1) lds={LDS_SIZE}
.amdgcn_target "amdgcn-amd-amdhsa--gfx950"
.text
.globl {NAME}_kernel
.p2align 8
.type {NAME}_kernel,@function
{NAME}_kernel:
{body}.fill 2048, 4, 0xbf810000
.section .rodata,"a"
.p2align 6
.amdhsa_kernel {NAME}_kernel
  .amdhsa_next_free_vgpr 512
  .amdhsa_next_free_sgpr 102
  .amdhsa_accum_offset 256
  .amdhsa_group_segment_fixed_size 0
  .amdhsa_kernarg_size 80
  .amdhsa_user_sgpr_count 2
  .amdhsa_user_sgpr_kernarg_segment_ptr 1
  .amdhsa_system_sgpr_workgroup_id_x 1
.end_amdhsa_kernel
"""
open(sys.argv[1], "w").write(out)
n = sum(1 for i in items if i.cls not in ('label', 'dir'))
nu_ = sum(1 for i in items if i.cls not in ('label', 'dir') and i.uncounted)
print("instructions:", n, "(slow path", nu_, ") nops:", sum(1 for i in items if i.op == 's_nop'), "waits:", sum(1 for i in items if i.op == 's_waitcnt'), "stamps", nstamp[0])
```

```python
import sys, struct
from asmlib import *

NAME = "sequential_preLN__linear_kernel_hedgehog__dense_activation_silu__prompt"
DIAG = int(sys.argv[2]) if len(sys.argv) > 2 else 0
OPT = dict(a.split('=') for a in sys.argv[3:])
def opt(k, d): return int(OPT[k], 0) if k in OPT else d

WS_PART = 0x40000
WS_O    = 0x240000
WS_H    = 0x440000
WS_H1   = 0x680000
WS_DIAG = 0xE80000
WS_FLG  = 0xF00000
WS_SIZE = 0xF80000
XW = 28672
L_WV, L_WQ, L_WK, L_WO = 0, 28672, 57344, 86016
L_IMG = L_WK
L_KVX = 143360
L_XCH = 147456
L_SCR = 114688
L_AUG = 161792
LDS_SIZE = 163840
sW, sT, sH, sT2, sR = 3, 4, 5, 6, 7
X, WQKV, WPHI, WO, W1, W2, OUT, WS = [f"s[{i}:{i+3}]" for i in range(8, 40, 4)]
sKX, sKW = 40, 47
sHQ, sHIM = 54, 55
sRET = "s[56:57]"
sSPIN, sP, sU, sC, sMASK, sQ = 58, 59, 60, 61, 62, 63
sHI = "s[64:65]"
sLOG = "s[66:67]"
sONES, sTILE = 68, 69
sA, sB, sCt, sD = 70, 71, 72, 73
sRact, sXO = 74, 75
sWB, sWQ = 76, 77
sLAST, sFLAG, sWM, sPST, sPCK, sOST, sXRB, sOUT = 80, 81, 82, 83, 84, 85, 86, 87
sSTAMP = 88

def v(a, n=1): return f"v{a}" if n == 1 else f"v[{a}:{a+n-1}]"
def a_(a, n=1): return f"a{a}" if n == 1 else f"a[{a}:{a+n-1}]"
def fhex(x): return hex(struct.unpack('<I', struct.pack('<f', x))[0])
def flat(l): return sum(l, [])
P = Prog(); I = P.I
TAIL = Prog()
nstamp = [0]
SEL = OPT.get("st", "m").split(",")
PICK = [int(x) for x in OPT["pick"].split(",")] if "pick" in OPT else None
allst = [0]
def stampi(name, grp="m"):
    idx = allst[0]; allst[0] += 1
    if opt("jit", 0) and idx in (3, 7, 9, 11, 13, 17, 19, 21, 25, 26, 27, 28, 29):
        return mk(f"""s_memtime s[88:89]
s_waitcnt lgkmcnt(0)
s_mul_i32 s88, s88, 0x9E3779B1
s_lshr_b32 s88, s88, {opt("jit", 0)}
L_jit{idx}:
s_sleep 8
s_sub_u32 s88, s88, 1
s_cmp_gt_i32 s88, 0
s_cbranch_scc1 L_jit{idx}""")
    if not DIAG: return []
    if PICK is not None:
        if name != "start" and idx not in PICK:
            print(f"   - {idx}: {name}"); return []
    elif name != "start" and not (set(grp) & set(SEL)): return []
    k = nstamp[0]; nstamp[0] += 1
    assert k < 7
    print(f"stamp {k}: [{idx}] {name}")
    op = "s_memtime" if DIAG == 2 else "s_memrealtime"
    return mk(f"{op} s[{sSTAMP+2*k}:{sSTAMP+2*k+1}]")
def stamp(name, grp="m"): P.add(stampi(name, grp))
X3 = "bitop3:0x96"

def chk_code(regs, masked):
    r = list(regs)
    if masked: return f"v_bitop3_b32 v10, v{r[0]}, v{r[1]}, s{sMASK} bitop3:0x28\nv_cmp_ne_u32 vcc, v10, v6"
    if len(r) == 1: return f"v_cmp_ne_u32 vcc, v{r[0]}, v5"
    if len(r) == 2: t = f"v_xor_b32 v10, v{r[0]}, v{r[1]}"
    else:
        t = f"v_bitop3_b32 v10, v{r[0]}, v{r[1]}, v{r[2]} {X3}"
        if len(r) == 4: t += f"\nv_xor_b32 v10, v10, v{r[3]}"
    return t + "\nv_cmp_ne_u16 vcc, v10, v5"

sFL, sDM = 56, 57
GUARD = f"s_add_u32 s{sSPIN}, s{sSPIN}, 1\ns_cmp_gt_u32 s{sSPIN}, 0x40000\ns_cbranch_scc1 L_end\ns_waitcnt vmcnt(0)"
class Fetch:
    def __init__(self, name, pieces, masked=False, nre=1):
        self.name, self.pieces, self.masked, self.nre = name, pieces, masked, nre
    def loadc(self, i):
        it = flat([mk(c.replace(f"s{sCt}", f"s{sFL}")) for c in self.pieces[i][0]])
        out = []; cur = []
        for x in it:
            cur.append(x)
            if x.cls == 'vmem': out.append(cur); cur = []
        return out
    def load(self, i): return flat(self.loadc(i))
    def stub(self, i, last):
        n = self.name
        wgt = {"fo": 0x100, "fh": 0x10000, "f4": 0x1000000}.get(n, 1)
        rel = (f"s_add_u32 s80, s80, {wgt}\n" if DIAG else "") + "\n".join(c for j in range(i, min(last, i + self.nre - 1) + 1) for c in self.pieces[j][0])
        if opt("ool", 15) & {"fo": 2, "fh": 4, "f4": 8}[n]:
            TAIL.I(f"L_{n}_r{i}:\n" + rel + "\n" + GUARD + "\n" + chk_code(self.pieces[i][1], self.masked) + f"\ns_cbranch_vccnz L_{n}_r{i}\ns_branch L_{n}_ok{i}", unc=True)
            return mk(f"s_cbranch_vccnz L_{n}_r{i}\nL_{n}_ok{i}:")
        return mk(f"s_cbranch_vccz L_{n}_ok{i}\nL_{n}_r{i}:") + \
               mk(rel + "\n" + GUARD + "\n" + chk_code(self.pieces[i][1], self.masked) + f"\ns_cbranch_vccnz L_{n}_r{i}", unc=True) + mk(f"L_{n}_ok{i}:")
    def checkc(self, i, last):
        return [[x] for x in mk(chk_code(self.pieces[i][1], self.masked))] + [self.stub(i, last)]
    def check(self, i, last): return flat(self.checkc(i, last))

sFS, sFP = 80, 81
vL512, vPO, vPF = 0, 142, 143
def flag_store(nl): return mk(f"s_mov_b64 exec, {(1 << nl) - 1}\nbuffer_store_dword v5, v{vL512}, {WS}, s{sFS} offen sc1\ns_mov_b64 exec, -1")
def gate(name, vo, vf): return Fetch(name, [([f"buffer_load_dword v{vf}, v{vo}, {WS}, s{sFP} offen sc1"], [vf])])
GATE = opt("gate", 0)

def cost(it):
    if isinstance(it, WaitTag): return 4
    if it.cls in ('label', 'dir') or it.uncounted: return 0
    if it.op.startswith(TRANS) or 'permlane' in it.op: return 8
    if it.op.startswith('ds_write_b128'): return 28
    if it.cls == 'mfma': return 8
    return 4.5
class Sched:
    def __init__(self, groups):
        self.groups = groups; self.gap = [[] for _ in groups]; self.seq = 0
    def at(self, g, items, frac=0.5):
        self.seq += 1; self.gap[g].append((frac, self.seq, list(items)))
    def spread(self, chunks, a, b):
        chunks = [c if isinstance(c, list) else [c] for c in chunks]
        tot = sum(cost(i) for c in chunks for i in c) or 1; acc = 0
        for c in chunks:
            pos = a + (b - a) * acc / tot
            self.at(int(pos), c, pos - int(pos))
            acc += sum(cost(i) for i in c)
    def emit(self):
        out = []
        for g, gp in zip(self.groups, self.gap):
            out += g
            for _, _, c in sorted(gp, key=lambda x: (x[0], x[1])): out += c
        return out
def sprinkle(items, groups, start, step):
    out = []; groups = list(groups); nxt = start
    for i, it in enumerate(items):
        if groups and i == nxt: out += groups.pop(0); nxt += step
        out.append(it)
    for g in groups: out += g
    return out

def softmax(p, t, o, pk):
    q = Prog(); J = q.I
    m, n = t + 14, t + 15; r0, r1 = t + 16, t + 17
    J(f"v_max3_f32 v{m}, v{p}, v{p+1}, v{p+2}\nv_max3_f32 v{n}, -v{p}, -v{p+1}, -v{p+2}")
    for k in range(3, 13, 2):
        J(f"v_max3_f32 v{m}, v{m}, v{p+k}, v{p+k+1}\nv_max3_f32 v{n}, v{n}, -v{p+k}, -v{p+k+1}")
    J(f"""v_max_f32 v{m}, v{m}, v{p+13}
v_max_f32 v{n}, v{n}, -v{p+13}
v_permlane32_swap_b32 v{m}, v{n}
v_max_f32 v{m}, v{m}, v{n}
v_mul_f32 v{m}, v253, v{m}
v_mov_b32 v{n}, v{m}
v_permlane32_swap_b32 v{m}, v{n}""")
    if pk:
        for k in range(0, 14, 2):
            J(f"v_pk_fma_f32 {v(t+k,2)}, {v(p+k,2)}, v[252:253], {v(m,2)} op_sel_hi:[1,0,0]")
            J(f"v_pk_fma_f32 {v(p+k,2)}, {v(p+k,2)}, v[252:253], {v(m,2)} op_sel:[0,1,1] op_sel_hi:[1,1,1]")
    if pk == 2:
        for k in range(14):
            J(f"v_exp_f32 v{t+k}, v{t+k}\nv_exp_f32 v{p+k}, v{p+k}")
            if k >= 2:
                a0 = f"v{t}" if k == 2 else f"v{r0}"; a1 = f"v{p}" if k == 2 else f"v{r1}"
                J(f"v_add_f32 v{r0}, {a0}, v{t+k-1}\nv_add_f32 v{r1}, {a1}, v{p+k-1}")
        J(f"v_add_f32 v{m}, v{r0}, v{t+13}\nv_add_f32 v{n}, v{r1}, v{p+13}")
    elif pk:
        for k in range(14): J(f"v_exp_f32 v{t+k}, v{t+k}")
        for k in range(14): J(f"v_exp_f32 v{p+k}, v{p+k}")
        J(f"v_pk_add_f32 {v(m,2)}, {v(t,2)}, {v(t+2,2)}\nv_pk_add_f32 {v(r0,2)}, {v(p,2)}, {v(p+2,2)}")
        for k in range(4, 14, 2):
            J(f"v_pk_add_f32 {v(m,2)}, {v(m,2)}, {v(t+k,2)}\nv_pk_add_f32 {v(r0,2)}, {v(r0,2)}, {v(p+k,2)}")
        J(f"v_add_f32 v{m}, v{m}, v{n}\nv_add_f32 v{n}, v{r0}, v{r1}")
    else:
        for k in range(14):
            J(f"v_fma_f32 v{t+k}, v{p+k}, v252, v{m}\nv_fma_f32 v{p+k}, v{p+k}, v253, v{n}\nv_exp_f32 v{t+k}, v{t+k}\nv_exp_f32 v{p+k}, v{p+k}")
            if k >= 2:
                a0 = f"v{t}" if k == 2 else f"v{r0}"; a1 = f"v{p}" if k == 2 else f"v{r1}"
                J(f"v_add_f32 v{r0}, {a0}, v{t+k-1}\nv_add_f32 v{r1}, {a1}, v{p+k-1}")
        J(f"v_add_f32 v{m}, v{r0}, v{t+13}\nv_add_f32 v{n}, v{r1}, v{p+13}")
    J(f"""v_permlane32_swap_b32 v{m}, v{n}
v_add_f32 v{m}, v{m}, v{n}
v_rcp_f32 v{m}, v{m}
v_mov_b32 v{n}, v{m}
v_permlane32_swap_b32 v{m}, v{n}""")
    if pk == 1:
        for k in range(0, 14, 2):
            J(f"v_pk_mul_f32 {v(t+k,2)}, {v(t+k,2)}, {v(m,2)} op_sel_hi:[1,0]")
            J(f"v_pk_mul_f32 {v(p+k,2)}, {v(p+k,2)}, {v(m,2)} op_sel:[0,1] op_sel_hi:[1,1]")
    else:
        for k in range(14): J(f"v_mul_f32 v{t+k}, v{t+k}, v{m}\nv_mul_f32 v{p+k}, v{p+k}, v{n}")
    for k in range(7): J(f"v_cvt_pk_bf16_f32 v{o+k}, v{t+2*k}, v{t+2*k+1}")
    for k in range(7): J(f"v_cvt_pk_bf16_f32 v{o+7+k}, v{p+2*k}, v{p+2*k+1}")
    return q.items

def dmag(vaddrs, srd, sbase, sadd, mbase, madd, tag, sreg=None):
    sr = sCt if sreg is None else sreg
    ch = [mk(f"buffer_load_dwordx4 v{a}, {srd}, s{sr} offen offset:{1024*i} lds", tag=tag) for i, a in enumerate(vaddrs)]
    ch[0] = mk(f"s_add_u32 m0, s{mbase}, {madd}\ns_add_u32 s{sr}, s{sbase}, {sadd}") + ch[0]
    return ch

MF = "v_mfma_f32_32x32x16_bf16"
RINGA, NRING = 224, 8
def gemm_lds(steps, ahead=6):
    def rd(i):
        av, o1, o2 = steps[i][:3]; r = RINGA + 4 * (i % NRING)
        return mk(f"ds_read_b64_tr_b16 {a_(r,2)}, v{av} offset:{o1}\nds_read_b64_tr_b16 {a_(r+2,2)}, v{av} offset:{o2}")
    rds = [rd(i) for i in range(len(steps))]
    groups = []
    for i, st in enumerate(steps):
        r = RINGA + 4 * (i % NRING); b, acc, first, swap = st[3]
        A, B = a_(r, 4), v(b, 4)
        if swap: A, B = B, A
        g = mk(f"{MF} {v(acc,16)}, {A}, {B}, {'0' if first else v(acc,16)}")
        if i % 2 == 0 and i + 1 < len(steps):
            r2 = RINGA + 4 * ((i + 1) % NRING); g[0].extra = [('a', r2 + x) for x in range(4)]
        groups.append(g + (rds[i + ahead] if i + ahead < len(steps) else []))
    return flat(rds[:ahead]), groups

FAST = opt('fast', 1)
LO = """s_load_dwordx2 s[12:13], s[0:1], 8
s_load_dwordx2 s[16:17], s[0:1], 16
s_load_dwordx2 s[20:21], s[0:1], 24
s_load_dwordx2 s[24:25], s[0:1], 40
s_load_dwordx2 s[28:29], s[0:1], 48
s_load_dwordx2 s[32:33], s[0:1], 56
s_load_dwordx2 s[36:37], s[0:1], 72
"""
CP = f"""v_lshlrev_b32 v3, 4, v1
v_lshl_add_u32 v3, v2, 6, v3
v_lshl_add_u32 v3, v2, 4, v3
v_add_u32 v3, s{sCt}, v3
v_lshlrev_b32 v3, 7, v3
s_and_b32 s76, s76, 0xffffff00
s_mov_b64 exec, 31
global_load_dword v236, v3, s[76:77]
s_mov_b64 exec, -1
"""
MAP1 = [f"""{"s_lshr_b32 s4, s70, 1" if opt("pair", 1) else "s_and_b32 s4, s70, 3"}
s_lshl_b32 s{sT}, s{sT}, 2
s_and_b32 s{sD}, s{sB}, 3
s_add_u32 s{sT}, s{sT}, s{sD}
{"s_and_b32 s59, s70, 1" if opt("pair", 1) else "s_lshr_b32 s59, s70, 2"}
s_lshl_b32 s{sH}, s{sP}, 3
s_lshr_b32 s{sD}, s{sB}, 2
s_add_u32 s{sH}, s{sH}, s{sD}
s_mul_i32 s{sP}, s{sT}, {opt("rt", 2)}
s_add_u32 s{sD}, s{sD}, s{sP}
s_mul_i32 s{sP}, s{sD}, 37
s_lshr_b32 s{sP}, s{sP}, 8
s_mul_i32 s{sP}, s{sP}, 7
s_sub_u32 s{sD}, s{sD}, s{sP}
s_lshl_b32 s{sKX}, s{sD}, 7
""",
f"""s_lshl_b32 s{sT}, s{sA}, 1
s_lshr_b32 s{sD}, s{sB}, 4
s_add_u32 s{sT}, s{sT}, s{sD}
s_mov_b32 s{sH}, s{sCt}
s_and_b32 s{sD}, s{sH}, 7
s_cmp_eq_u32 s{sD}, 7
s_cselect_b32 s{sD}, 3, s{sD}
s_lshl_b32 s{sKX}, s{sD}, 7
""",
f"""s_mov_b32 s{sT}, s{sCt}
s_lshl_b32 s{sH}, s{sA}, 1
s_lshr_b32 s{sD}, s{sB}, 4
s_add_u32 s{sH}, s{sH}, s{sD}
s_and_b32 s{sD}, s{sH}, 7
s_mul_i32 s{sD}, s{sD}, 3
s_mul_i32 s{sP}, s{sD}, 37
s_lshr_b32 s{sP}, s{sP}, 8
s_mul_i32 s{sP}, s{sP}, 7
s_sub_u32 s{sD}, s{sD}, s{sP}
s_lshl_b32 s{sKX}, s{sD}, 7
"""][opt("map1", 0)]
if DIAG: I("s_memrealtime s[78:79]")
I(f"""s_cmp_ge_u32 s2, 256
s_cbranch_scc1 L_end
s_load_dwordx2 s[8:9], s[0:1], 0
{LO if not FAST else ''}{"s_waitcnt lgkmcnt(0)" + chr(10) + "s_memrealtime s[88:89]" if opt("bare", 0) else ""}
s_getpc_b64 s[76:77]
v_and_b32 v1, 63, v0
v_lshrrev_b32 v2, 6, v0
s_and_b32 s{sA}, s2, 7
v_readfirstlane_b32 s{sW}, v2
s_lshr_b32 s{sB}, s2, 3
s_and_b32 s{sCt}, s{sB}, 15
{CP if FAST < 2 else ''}{MAP1}
s_mov_b32 s10, 1835008
s_mov_b32 s11, 0x20000
v_lshrrev_b32 v2, 3, v1
v_mul_u32_u24 v244, 896, v2
v_lshrrev_b32 v2, 4, v1
v_and_b32 v8, 7, v1
v_xor_b32 v2, v2, v8
v_lshl_add_u32 v244, v2, 4, v244
v_xor_b32 v245, 64, v244
v_add_u32 v245, {7168-1024}, v245
v_add_u32 v246, {2*(7168-1024)}, v244
v_add_u32 v247, {2*(7168-1024)}, v245
s_lshl_b32 s{sQ}, s{sT}, 2
s_add_u32 s{sQ}, s{sQ}, s{sW}
s_mul_i32 s{sQ}, s{sQ}, {32*896}
s_lshr_b32 s{sXO}, s{sW}, 1
s_add_u32 s{sXO}, s{sXO}, s{sW}
s_mul_i32 s{sXO}, s{sXO}, {XW}
s_waitcnt lgkmcnt(0)""")
st0 = stampi("start")
if not opt("bare", 0): P.add(st0)
def xdma(g): return flat(dmag([244, 245, 246, 247], X, sQ, f"s{sKX+g}", sXO, 4096*g, f"x{g}"))
P.add(xdma(0))
if FAST: I(LO)
if FAST == 2: I(f"v_lshrrev_b32 v2, 6, v0\ns_and_b32 s{sCt}, s{sB}, 15\n" + CP)
I(f"""s_mov_b32 s14, {0 if opt('abl',0)&8 else 1204224}
s_mov_b32 s15, 0x20000
v_and_b32 v8, 3, v1""")
def wtouch(mask16, dst):
    m = mask16 | (mask16 << 16)
    return mk(f"s_mov_b32 exec_lo, {hex(m)}\ns_mov_b32 exec_hi, {hex(m)}\nbuffer_load_dword v{dst}, v255, {WQKV}, 0 offen\ns_mov_b64 exec, -1")
def kxs(g): return mk(f"s_add_u32 s{sKX+g}, s{sKX+g-1}, 128\ns_cmp_ge_u32 s{sKX+g}, 896\ns_cselect_b32 s{sD}, 896, 0\ns_sub_u32 s{sKX+g}, s{sKX+g}, s{sD}")
NXE = opt("nxe", 2)
if opt("wtfirst", 1) and opt("wt0", 0): P.add(wtouch(opt("wt0", 0), 237))
for g in range(1, NXE): P.add(kxs(g) + xdma(g))
if not opt("wtfirst", 1) and opt("wt0", 0): P.add(wtouch(opt("wt0", 0), 237))
if FAST: I("s_waitcnt lgkmcnt(0)")
if opt("wsoff", 0): I(f"s_add_u32 s36, s36, {opt('wsoff', 0)}\ns_addc_u32 s37, s37, 0")
I(f"""s_mov_b32 s38, {WS_SIZE}
s_mov_b32 s39, 0x20000
s_mov_b32 s18, 25088
s_mov_b32 s19, 0x20000
s_mov_b32 s22, {0 if opt('abl',0)&4 else 401408}
s_mov_b32 s23, 0x20000
s_xor_b32 s{sHQ}, s{sH}, 1
v_mov_b32 v11, 0
v_lshlrev_b32 v6, 7, v1""")
TM = opt("tm", 0)
sm_ld = mk(f"""s_mov_b64 exec, 1
buffer_load_dword v5, v6, {WS}, 0 offen sc1""")
if opt("two_", 1): sm_ld += mk(f"""s_lshl_b32 s56, s2, 2
s_add_u32 s56, s56, s{sW}
s_lshl_b32 s56, s56, 9
s_mov_b64 exec, 15
buffer_load_dword v238, v6, {WO}, s56 offen""")
if opt("twp", 0): sm_ld += mk(f"""s_and_b32 s{sCt}, s{sH}, 14
s_mul_i32 s{sCt}, s{sCt}, 1568
s_mul_i32 s56, s{sW}, 896
s_add_u32 s{sCt}, s{sCt}, s56
s_mov_b64 exec, 127
buffer_load_dword v239, v6, {WPHI}, s{sCt} offen""")
sm_ld += mk("s_mov_b64 exec, -1")
if TM == 0: P.add(sm_ld)
for g in range(NXE, 7): P.add(kxs(g))
MORE = opt("more", 0)
I(f"s_mov_b32 s{sONES}, 0x3f803f80\ns_mul_i32 s66, s{sH}, 1568\ns_mul_i32 s81, s{sHQ}, 1568")
_m1 = len(P.items)
I(f"""s_lshl_b32 s{sT2}, s{sA}, 1
s_lshr_b32 s{sD}, s{sB}, 4
s_add_u32 s{sT2}, s{sT2}, s{sD}
s_and_b32 s{sRact}, s{sB}, 15
s_min_u32 s{sR}, s{sRact}, 13
s_mov_b32 s26, {0 if opt('abl',0)&1 else 1605632}
s_mov_b32 s27, 0x20000
s_mov_b32 s30, {0 if opt('abl',0)&2 else 1605632}
s_mov_b32 s31, 0x20000
s_mov_b32 s34, 1835008
s_mov_b32 s35, 0x20000
s_mov_b32 s64, 0
s_mov_b32 s65, -1
s_mov_b32 s{sMASK}, 0xbfffbfff
s_mov_b32 s{sHIM}, 0xffff0000
s_mov_b32 s{sSPIN}, 0
s_mov_b32 s80, 0
s_cmp_ge_u32 s{sR}, 7
s_cselect_b32 s{sU}, 1, 0
s_mul_i32 s{sA}, s{sU}, 7
s_sub_u32 s{sC}, s{sR}, s{sA}""")
sT3 = 67
if opt("map3", 1):
    I(f"""s_and_b32 s{sA}, s{sT2}, 12
s_and_b32 s{sD}, s{sT2}, 1
s_lshl_b32 s{sD}, s{sD}, 1
s_add_u32 s{sA}, s{sA}, s{sD}
s_add_u32 s{sT3}, s{sA}, s{sU}
s_bfe_u32 s{sA}, s{sT2}, 0x10001
s_mul_i32 s{sA}, s{sA}, 7
s_add_u32 s{sR}, s{sA}, s{sC}""")
else: I(f"s_mov_b32 s{sT3}, s{sT2}")
for g in range(7): I(f"s_mul_i32 s{sKW+g}, s{sKX+g}, {172032//128}")
I(f"""s_mul_i32 s{sWB}, s{sH}, 56
s_mul_i32 s{sD}, s{sW}, 43008
s_add_u32 s{sWB}, s{sWB}, s{sD}
s_mul_i32 s{sWQ}, s{sHQ}, 56
s_add_u32 s{sWQ}, s{sWQ}, s{sD}
s_add_u32 s{sWB}, s{sWB}, 896
s_lshl_b32 s{sWM}, s{sW}, 10""")
_m0 = _m1 if MORE else len(P.items)
I(f"""s_lshl_b32 s{sA}, s{sH}, 4
s_add_u32 s{sA}, s{sA}, s{sT}
s_mul_i32 s{sA}, s{sA}, 4608
s_add_u32 s{sA}, s{sA}, {WS_PART}
s_add_u32 s{sPST}, s{sA}, s{sWM}
s_lshl_b32 s{sD}, s{sW}, 7
s_add_u32 s{sA}, s{sA}, s{sD}
s_add_u32 s{sPCK}, s{sA}, 4096
s_lshl_b32 s{sA}, s{sT}, 2
s_add_u32 s{sA}, s{sA}, s{sW}
s_lshl_b32 s{sA}, s{sA}, 15
s_lshl_b32 s{sB}, s{sHQ}, 11
s_add_u32 s{sA}, s{sA}, s{sB}
s_add_u32 s{sOST}, s{sA}, {WS_O}
s_lshl_b32 s{sA}, s{sT2}, 2
s_lshl_b32 s{sB}, s{sU}, 1
s_add_u32 s{sA}, s{sA}, s{sB}
s_and_b32 s{sB}, s{sW}, 1
s_add_u32 s{sTILE}, s{sA}, s{sB}
s_mul_i32 s{sA}, s{sA}, {32*896}
s_lshl_b32 s{sB}, s{sC}, 7
s_add_u32 s{sA}, s{sA}, s{sB}
s_mul_i32 s{sD}, s{sW}, {16*896}
s_add_u32 s{sXRB}, s{sA}, s{sD}
s_mul_i32 s{sA}, s{sTILE}, {32*896}
s_add_u32 s{sA}, s{sA}, s{sB}
s_lshr_b32 s{sB}, s{sW}, 1
s_lshl_b32 s{sB}, s{sB}, 6
s_add_u32 s{sOUT}, s{sA}, s{sB}
s_mul_i32 s{sP}, s{sHQ}, {16*4608}
s_add_u32 s{sP}, s{sP}, {WS_PART}""")
deferred = P.items[_m0:]; del P.items[_m0:]
WPK, WPQ, WPT = 192, 200, 208
vWPA, vWPB, vKVX, vIMW, vKA, vKB, vFPD, vFPC, vWO0, vWO1, vXRD0, vXRD1, vXRR, vWOR = range(128, 142)
I(f"""v_lshrrev_b32 v3, 5, v1
v_bfe_u32 v11, v1, 3, 2
v_lshl_add_u32 v11, v11, 2, v8
v_bfe_u32 v12, v1, 2, 1
v_mul_u32_u24 v12, 14, v12
v_min_u32 v13, 13, v11
v_add_u32 v13, v13, v12
v_lshlrev_b32 v13, 1, v13
v_mul_u32_u24 v14, 224, v3
v_add_u32 v{vWPA}, v13, v14
v_lshl_add_u32 v{vWPB}, v3, 20, v{vWPA}
v_and_b32 v9, 31, v1
v_lshlrev_b32 v240, 7, v9
v_bfe_u32 v10, v1, 1, 3
v_xor_b32 v10, v10, v3
v_lshl_add_u32 v240, v10, 4, v240
v_add_u32 v240, s{sXO}, v240
v_xor_b32 v241, 32, v240
v_xor_b32 v242, 64, v240
v_xor_b32 v243, 96, v240
v_mov_b32 v250, 0
v_mov_b32 v251, 0""")
_m2 = len(P.items)
I(f"""v_lshlrev_b32 v2, 4, v1
v_lshlrev_b32 v4, 2, v1
v_add_u32 v12, v12, v11
v_cmp_gt_u32 vcc, 14, v11
v_lshrrev_b32 v7, 2, v1
v_mul_u32_u24 v7, 2688, v7
v_cndmask_b32 v12, 28, v12, vcc
v_and_b32 v13, 15, v12
v_lshlrev_b32 v13, 4, v13
v_lshrrev_b32 v12, 4, v12
v_lshl_add_u32 v13, v12, 3, v13
v_lshl_add_u32 v13, v3, 8, v13
v_add_u32 v{vKVX}, {L_KVX}, v13
v_lshlrev_b32 v11, 4, v8
v_min_u32 v11, 40, v11
v_add_u32 v7, v7, v11""")
_m0 = _m2 if MORE else len(P.items)
I(f"""s_lshl_b32 s{sA}, s{sW}, 5
v_add_u32 v10, s{sA}, v9
v_mul_u32_u24 v10, 208, v10
v_mul_u32_u24 v11, 96, v3
v_add_u32 v{vIMW}, v10, v11
v_lshrrev_b32 v10, 4, v1
v_bfe_u32 v15, v1, 2, 2
v_lshl_add_u32 v10, v10, 3, v15
v_mul_u32_u24 v10, 208, v10
v_and_b32 v11, 1, v1
v_mul_u32_u24 v11, 96, v11
v_add_u32 v10, v10, v11
v_bfe_u32 v11, v1, 1, 1
v_lshl_add_u32 v10, v11, 3, v10
v_add_u32 v{vKB}, {L_IMG}, v10
s_lshl_b32 s{sA}, s{sW}, 4
v_add_u32 v{vKA}, s{sA}, v{vKB}
v_add_u32 v{vFPD}, s{sWM}, v2
s_lshl_b32 s{sD}, s{sW}, 7
s_add_u32 s{sD}, s{sD}, 4096
v_lshlrev_b32 v0, 1, v1
v_add_u32 v{vFPC}, s{sD}, v0
v_lshrrev_b32 v12, 3, v1
v_mul_u32_u24 v14, 896, v12
v_and_b32 v13, 7, v1
v_xor_b32 v12, v12, v13
v_lshl_add_u32 v{vXRD0}, v12, 4, v14
v_add_u32 v{vXRD1}, {7168-1024}, v{vXRD0}
v_bfe_u32 v12, v1, 4, 1
v_lshlrev_b32 v11, 2, v12
v_xor_b32 v11, v11, v13
v_lshl_add_u32 v{vWO0}, v11, 4, v14
v_add_u32 v{vWO1}, {7168-1024}, v{vWO0}
s_and_b32 s{sA}, s{sW}, 1
s_lshl_b32 s{sA}, s{sA}, 12
s_add_u32 s{sA}, s{sA}, {L_XCH}
v_lshlrev_b32 v10, 7, v9
v_lshl_add_u32 v10, v3, 3, v10
v_add_u32 v10, s{sA}, v10
s_lshr_b32 s{sA}, s{sW}, 1
s_lshl_b32 s{sB}, s{sA}, 2
v_xor_b32 v13, s{sB}, v13
v_lshl_add_u32 v{vXRR}, v13, 4, v10
v_mad_u32_u24 v10, v3, 14, v15
v_lshlrev_b32 v10, 7, v10
v_bfe_u32 v13, v1, 3, 1
v_xor_b32 v13, v13, v3
v_xor_b32 v13, s{sA}, v13
v_lshl_add_u32 v10, v13, 6, v10
v_lshl_add_u32 v10, v12, 5, v10
v_lshl_add_u32 v10, v8, 3, v10
s_mul_i32 s{sA}, s{sA}, {4*28*128}
s_add_u32 s{sA}, s{sA}, {L_WO}
v_add_u32 v{vWOR}, s{sA}, v10
v_lshl_add_u32 v11, v3, 3, v15
v_lshlrev_b32 v11, 6, v11
v_lshl_add_u32 v12, v12, 2, v8
v_cmp_lt_u32 vcc, 5, v12
v_xor_b32 v13, 1, v12
v_cndmask_b32 v12, v12, v13, vcc
v_lshl_add_u32 v11, v12, 3, v11
v_add_u32 v13, {L_WK}, v11""")
I(f"""v_bfe_u32 v10, v1, 2, 1
v_bfe_u32 v14, v1, 4, 1
v_lshl_add_u32 v10, v14, 1, v10
v_cmp_eq_u32 vcc, v10, v3
v_and_b32 v10, 1, v1
v_lshlrev_b32 v10, 4, v10
v_mov_b32 v14, 0x3f80
v_lshlrev_b32 v10, v10, v14
v_cndmask_b32 v10, 0, v10, vcc
v_bfe_u32 v14, v1, 3, 1
v_bfe_u32 v15, v1, 1, 1
v_lshl_add_u32 v14, v14, 1, v15""")
for q in range(4): I(f"v_cmp_eq_u32 vcc, {q}, v14\nv_cndmask_b32 v15, 0, v10, vcc\nv_accvgpr_write_b32 a{220+q}, v15")
I("v_add_u32 v9, 896, v7")
deferred += P.items[_m0:]; del P.items[_m0:]
RELOC = opt("reloc", 1)
if RELOC:
    deferred = mk(f"""v_bfe_u32 v15, v1, 2, 2
v_bfe_u32 v12, v1, 4, 1
v_lshl_add_u32 v11, v3, 3, v15
v_lshlrev_b32 v11, 6, v11
v_lshl_add_u32 v12, v12, 2, v8
v_cmp_lt_u32 vcc, 5, v12
v_xor_b32 v13, 1, v12
v_add_u32 v9, 896, v7
v_lshlrev_b32 v0, 1, v1
v_cndmask_b32 v12, v12, v13, vcc
v_lshl_add_u32 v11, v12, 3, v11
v_add_u32 v13, {L_WK}, v11""")
    snA = mk(f"""s_lshl_b32 s{sA}, s{sH}, 4
s_add_u32 s{sA}, s{sA}, s{sT}
s_mul_i32 s{sA}, s{sA}, 4608
s_add_u32 s{sA}, s{sA}, {WS_PART}
s_add_u32 s{sPST}, s{sA}, s{sWM}
s_lshl_b32 s{sD}, s{sW}, 7
s_add_u32 s{sA}, s{sA}, s{sD}
s_add_u32 s{sPCK}, s{sA}, 4096
s_mul_i32 s{sP}, s{sHQ}, {16*4608}
s_add_u32 s{sP}, s{sP}, {WS_PART}""")
    snB = mk(f"""s_lshl_b32 s{sA}, s{sT2}, 2
s_lshl_b32 s{sB}, s{sU}, 1
s_add_u32 s{sA}, s{sA}, s{sB}
s_and_b32 s{sB}, s{sW}, 1
s_add_u32 s{sTILE}, s{sA}, s{sB}
s_mul_i32 s{sA}, s{sA}, {32*896}
s_lshl_b32 s{sB}, s{sC}, 7
s_add_u32 s{sA}, s{sA}, s{sB}
s_mul_i32 s{sD}, s{sW}, {16*896}
s_add_u32 s{sXRB}, s{sA}, s{sD}""")
    snC = mk(f"""v_bfe_u32 v10, v1, 2, 1
v_bfe_u32 v9, v1, 4, 1
v_lshl_add_u32 v10, v9, 1, v10
v_cmp_eq_u32 vcc, v10, v3
v_and_b32 v10, 1, v1
v_lshlrev_b32 v10, 4, v10
v_mov_b32 v9, 0x3f80
v_lshlrev_b32 v10, v10, v9
v_cndmask_b32 v10, 0, v10, vcc
v_bfe_u32 v9, v1, 3, 1
v_bfe_u32 v143, v1, 1, 1
v_lshl_add_u32 v9, v9, 1, v143""")
    for q in range(4): snC += mk(f"v_cmp_eq_u32 s[{40+2*(q&1)+6}:{41+2*(q&1)+6}], {q}, v9") if False else []
    snC2 = flat([mk(f"v_cmp_eq_u32 vcc, {q}, v9\nv_cndmask_b32 v143, 0, v10, vcc\nv_accvgpr_write_b32 a{220+q}, v143") for q in range(4)])
    snD = mk(f"""s_lshl_b32 s{sA}, s{sT}, 2
s_add_u32 s{sA}, s{sA}, s{sW}
s_lshl_b32 s{sA}, s{sA}, 15
s_lshl_b32 s{sB}, s{sHQ}, 11
s_add_u32 s{sA}, s{sA}, s{sB}
s_add_u32 s{sOST}, s{sA}, {WS_O}
s_mul_i32 s{sA}, s{sTILE}, {32*896}
s_lshl_b32 s{sB}, s{sC}, 7
s_add_u32 s{sA}, s{sA}, s{sB}
s_lshr_b32 s{sB}, s{sW}, 1
s_lshl_b32 s{sB}, s{sB}, 6
s_add_u32 s{sOUT}, s{sA}, s{sB}""")
    snE = mk(f"""v_add_u32 v{vFPD}, s{sWM}, v2
s_lshl_b32 s{sD}, s{sW}, 7
s_add_u32 s{sD}, s{sD}, 4096
v_add_u32 v{vFPC}, s{sD}, v0
v_lshrrev_b32 v12, 3, v1
v_mul_u32_u24 v14, 896, v12
v_and_b32 v13, 7, v1
v_xor_b32 v12, v12, v13
v_lshl_add_u32 v{vXRD0}, v12, 4, v14
v_add_u32 v{vXRD1}, {7168-1024}, v{vXRD0}
v_bfe_u32 v12, v1, 4, 1
v_lshlrev_b32 v12, 2, v12
v_xor_b32 v12, v12, v13
v_lshl_add_u32 v{vWO0}, v12, 4, v14
v_add_u32 v{vWO1}, {7168-1024}, v{vWO0}
v_add_u32 v128, {2*(7168-1024)}, v{vWO0}
v_add_u32 v129, {3*(7168-1024)}, v{vWO0}""")
    snF = mk(f"""s_and_b32 s{sA}, s{sW}, 1
s_lshl_b32 s{sA}, s{sA}, 12
s_add_u32 s{sA}, s{sA}, {L_XCH}
v_and_b32 v9, 31, v1
v_lshlrev_b32 v10, 7, v9
v_lshl_add_u32 v10, v3, 3, v10
v_add_u32 v10, s{sA}, v10
s_lshr_b32 s{sA}, s{sW}, 1
s_lshl_b32 s{sB}, s{sA}, 2
v_and_b32 v9, 7, v1
v_xor_b32 v9, s{sB}, v9
v_lshl_add_u32 v{vXRR}, v9, 4, v10
v_bfe_u32 v9, v1, 2, 2
v_mad_u32_u24 v10, v3, 14, v9
v_lshlrev_b32 v10, 7, v10
v_bfe_u32 v9, v1, 3, 1
v_xor_b32 v9, v9, v3
v_xor_b32 v9, s{sA}, v9
v_lshl_add_u32 v10, v9, 6, v10
v_bfe_u32 v9, v1, 4, 1
v_lshl_add_u32 v10, v9, 5, v10
v_lshl_add_u32 v10, v8, 3, v10
s_mul_i32 s{sA}, s{sA}, {4*28*128}
s_add_u32 s{sA}, s{sA}, {L_WO}
v_add_u32 v{vWOR}, s{sA}, v10""")
    snG = mk(f"""v_and_b32 v10, 31, v1
s_lshl_b32 s{sA}, s{sW}, 5
v_add_u32 v10, s{sA}, v10
v_mul_u32_u24 v10, 208, v10
v_mul_u32_u24 v12, 96, v3
v_add_u32 v{vIMW}, v10, v12
v_lshrrev_b32 v10, 4, v1
v_lshl_add_u32 v10, v10, 3, v15
v_mul_u32_u24 v10, 208, v10
v_and_b32 v12, 1, v1
v_mul_u32_u24 v12, 96, v12
v_add_u32 v10, v10, v12
v_bfe_u32 v12, v1, 1, 1
v_lshl_add_u32 v10, v12, 3, v10
v_add_u32 v{vKB}, {L_IMG}, v10
s_lshl_b32 s{sA}, s{sW}, 4
v_add_u32 v{vKA}, s{sA}, v{vKB}""")
    if opt("gx", 1): deferred += snG; snG = []
    if opt("cx", 0): deferred += snC + snC2 + mk("v_add_u32 v9, 896, v7"); snC = []; snC2 = []
else: snA = snB = snC = snC2 = snD = snE = snF = snG = []
NDEF0 = opt("ndef0", 0)
P.add(deferred[:NDEF0]); deferred = deferred[NDEF0:]
L2N = 0
if L2N:
    I(f"""s_mov_b32 s{sCt}, 0x60504020
s_cmp_ge_u32 s{sH}, 8
s_cselect_b32 s{sCt}, 0x53020100, s{sCt}
s_and_b32 s{sD}, s{sH}, 7
s_lshl_b32 s{sD}, s{sD}, 2
s_lshr_b32 s{sCt}, s{sCt}, s{sD}
s_and_b32 s{sCt}, s{sCt}, 15
s_and_b32 s{sD}, s{sT}, 3
s_mul_i32 s{sD}, s{sD}, 7
s_add_u32 s{sCt}, s{sCt}, s{sD}
s_lshl_b32 s{sCt}, s{sCt}, 2
s_add_u32 s{sCt}, s{sCt}, s{sW}
s_mul_i32 s66, s{sCt}, 14336
s_add_u32 s81, s66, 57344
s_lshl_b32 s{sD}, s{sH}, 1
s_lshr_b32 s{sD}, 0xa111444a, s{sD}
s_and_b32 s{sD}, s{sD}, 3
s_cmp_ge_u32 s{sD}, 1
s_cselect_b32 s66, s66, 0x10000000
s_cmp_ge_u32 s{sD}, 2
s_cselect_b32 s81, s81, 0x10000000
v_add_u32 v143, 7168, v6""")
def l2n(k): return mk(f"s_mov_b32 exec_hi, 0xffffff\nbuffer_load_dword v{142}, v{6 if k % 2 == 0 else 143}, {W1}, s{66 if k < 2 else 81} offen\ns_mov_b32 exec_hi, -1")
stamp("setup done", "p")
def wphi(dst, tmp, so):
    q = []
    for t in range(2):
        for j in range(8):
            d = 16 * t + 8 * (j >> 2) + (j & 3)
            av = vWPB if (t == 1 and j >= 4) else vWPA
            r = (dst if j % 2 == 0 else tmp) + 4 * t + j // 2
            op = "buffer_load_short_d16" if j % 2 == 0 else "buffer_load_short_d16_hi"
            q += mk(f"{op} v{r}, v{av}, {WPHI}, s{so} offen offset:{d*56}")
    return q
def wkdma(g): return flat(dmag([7], WQKV, sWB, f"s{sKW+g}", sWM, L_WK + 4096*g, f"wk{g}"))
def wvdma(g): return flat(dmag([9], WQKV, sWB, f"s{sKW+g}", sWM, L_WV + 4096*g, f"wv{g}"))
def wqdma(g): return flat(dmag([7], WQKV, sWQ, f"s{sKW+g}", sWM, L_WQ + 4096*g, f"wq{g}"))
if opt("fake", 0):
    I(f"""v_mov_b32 v7, v2
v_add_u32 v9, 24576, v2
s_mul_i32 s{sWB}, s{sH}, 73728
s_add_u32 s{sWB}, s{sWB}, s{sWM}
s_mul_i32 s{sWQ}, s{sHQ}, 73728
s_add_u32 s{sWQ}, s{sWQ}, s{sWM}
s_add_u32 s{sWQ}, s{sWQ}, 45056""")
    for g in range(7): I(f"s_lshl_b32 s{sKW+g}, s{sKX+g}, 5")
XF = 16
NX0 = opt("nx0", 3)
if opt("wt1", 0): P.add(wtouch(opt("wt1", 0), 249))
WPP = opt("wpp", 1)
if WPP == 1: P.add(wphi(WPK, WPT, 66) + wphi(WPQ, WPT+8, 81))
for g in range(NXE, NX0): P.add(xdma(g))
if WPP == 2: P.add(wphi(WPK, WPT, 66) + wphi(WPQ, WPT+8, 81))
pend = [xdma(g) for g in range(NX0, 7)]
wkl = [wkdma(g) for g in range(7)]
if TM and TM < NX0: P.add(sm_ld)
elif TM: pend[TM - NX0] = pend[TM - NX0] + sm_ld
if opt("wt2", 0): pend[-1] = pend[-1] + wtouch(opt("wt2", 0), 248)
pend.append(wkl.pop(0) + (wphi(WPK, WPT, 66) if not WPP else []))
pend.append(wkl.pop(0) + (wphi(WPQ, WPT+8, 81) if not WPP else []))
while len(pend) < 7: pend.append(wkl.pop(0))
def xrd(g): return flat([mk(f"ds_read_b128 {v(XF+16*g+4*e,4)}, v{240+e} offset:{4096*g}") for e in range(4)])
_n = opt("ndefx", 0)
while 0 < _n < len(deferred) and deferred[_n-1].op.startswith("s_cmp"): _n += 1
P.add(deferred[:_n]); deferred = deferred[_n:]
P.wait("x0"); P.add(xrd(0))
for g in range(7):
    if pend: P.add(pend.pop(0))
    if g + 1 < 7: P.wait(f"x{g+1}"); P.add(xrd(g + 1))
    for i in range(16):
        r = XF + 16*g + i
        I(f"v_dot2c_f32_bf16 v250, s{sONES}, v{r}\nv_dot2c_f32_bf16 v251, v{r}, v{r}")
    nd_ = -(-len(deferred) // max(1, opt("ndi", 4) - g)) if g < opt("ndi", 4) else len(deferred)
    while 0 < nd_ < len(deferred) and deferred[nd_-1].op.startswith("s_cmp"): nd_ += 1
    P.add(deferred[:nd_]); deferred = deferred[nd_:]
    if g == 0: stamp("x0 done", "p")
for x_ in pend: P.add(x_)
if opt("tp", 0) == 2:
    I(f"""s_mul_i32 s{sCt}, s2, {52*128}
s_mul_i32 s{sD}, s{sW}, {13*128}
s_add_u32 s{sCt}, s{sCt}, s{sD}
s_mov_b64 exec, 0x1fff
buffer_load_dword v254, v6, {W2}, s{sCt} offen
buffer_load_dword v255, v6, {W1}, s{sCt} offen
s_mov_b64 exec, -1""")
stamp("x stats done", "mp")
I(f"""v_permlane32_swap_b32 v250, v251
v_readfirstlane_b32 s{sA}, v5
s_nop 0
v_add_f32 v250, v250, v251
v_mul_f32 v250, {fhex(-1/448)}, v250
v_mov_b32 v251, v250
s_or_b32 s{sA}, s{sA}, 1
s_mul_i32 s{sA}, s{sA}, 0x9E3779B5
v_mov_b32 v5, s{sA}
s_mov_b32 s{sA}, 0x3f80
v_permlane32_swap_b32 v250, v251
s_mov_b32 s{sB}, 0x3f800000""")
fin = mk(f"""v_fma_f32 v251, -v250, v250, -v251
v_max_f32 v251, 0, v251
v_add_f32 v251, 0x3727c5ac, v251
v_rsq_f32 v251, v251
s_lshl_b32 s{sQ}, s{sC}, 7
s_mul_i32 s{sD}, s{sW}, {16*896}
v_mul_f32 v252, 0x3fb8aa3b, v251
v_mul_f32 v253, 0xbfb8aa3b, v251
s_add_u32 s{sQ}, s{sQ}, s{sD}
s_lshl_b32 s{sXO}, s{sW}, 11""")
if opt("noid", 1): fin = [mk(f"s_cmp_ge_u32 s{sRact}, 14\ns_cselect_b32 s22, 0, s22")] + fin
ACK = 144; ACV = 160; PK = 176; IMG = 208; TMP = 232
def norm(t):
    q = Prog(); tb = TMP + 8 * (t & 1)
    for i in range(4):
        r = XF + 4 * t + i
        q.I(f"v_dot2_f32_bf16 v{tb+2*i}, v{r}, s{sA}, v250\nv_dot2_f32_bf16 v{tb+2*i+1}, v{r}, s{sB}, v250")
    return q.items
def normc(t):
    tb = TMP + 8 * (t & 1)
    return flat([mk(f"v_cvt_pk_bf16_f32 v{XF+4*t+i}, v{tb+2*i}, v{tb+2*i+1}") for i in range(4)])
def l2t(srd, k, dst):
    return mk(f"""s_lshr_b32 s{sCt}, s2, 3
s_lshl_b32 s{sCt}, s{sCt}, 2
s_add_u32 s{sCt}, s{sCt}, s{sW}
s_mul_i32 s{sCt}, s{sCt}, {98*128}
s_mov_b32 exec_hi, 0x1ffff
s_add_u32 s{sCt}, s{sCt}, {k*49*128}
buffer_load_dword v{dst}, v6, {srd}, s{sCt} offen
s_mov_b32 exec_hi, -1""")
L2A, L2B = opt("l2a", -1), opt("l2b", -1)
touch = mk(f"""s_mul_i32 s{sCt}, s2, {52*128}
s_mul_i32 s56, s{sW}, {13*128}
s_add_u32 s{sCt}, s{sCt}, s56
s_mov_b64 exec, 0x1fff
buffer_load_dword v255, v6, {W1}, s{sCt} offen
buffer_load_dword v254, v6, {W2}, s{sCt} offen
s_mov_b64 exec, -1""")
TP = opt('tp', 0)
ns = norm(0)
for t in range(1, 28): ns += norm(t) + normc(t - 1)
ns += normc(27)
NBAR = opt("nbar", 100)
wvl = [wvdma(k) for k in range(7)]
if opt("loop2", 0):
    I("s_mov_b32 s80, 0\nL_lp2:\ns_mov_b32 s101, s100\ns_memtime s[78:79]\ns_waitcnt lgkmcnt(0)\ns_mov_b32 s99, s78")
    P.add([Ins(x.text) for x in ns])
    I("s_memtime s[78:79]\ns_waitcnt lgkmcnt(0)\ns_sub_u32 s100, s78, s99\ns_add_u32 s100, s100, s88\ns_add_u32 s80, s80, 1\ns_cmp_lt_u32 s80, 2\ns_cbranch_scc1 L_lp2")
    nstamp[0] = 14
P.add(sprinkle(ns[:NBAR], wkl, 0, opt("wkstep", 30)))
if opt("touch", 1) and TP == 1: P.add(touch)
I("s_barrier")
NWV0 = opt("nwv0", 4)
w0_ = [wvl.pop(0) for _ in range(NWV0)]
if L2N == 1: w0_[0] = l2n(0) + w0_[0]; w0_[-1] = w0_[-1] + l2n(2); wvl[-1] = wvl[-1] + l2n(1)
if L2N == 2: wvl[-1] = wvl[-1] + l2n(0) + l2n(2)
P.add(sprinkle(ns[NBAR:], w0_, opt("wv0", 30), opt("wvstep", 50)))
P.wait(*[f"wk{k}" for k in range(7)]); I("s_barrier")
stamp("wk landed", "p")
if opt("zy", 0): I(f"s_sleep {opt('zy', 0)}")
AH = 6
sW1B, sW1M, sW2E, sW2L = 40, 41, 42, 43
set2 = mk(f"""v_lshrrev_b32 v10, 4, v1
v_mul_u32_u24 v12, 3584, v10
v_lshlrev_b32 v10, 2, v10
v_and_b32 v13, 15, v1
v_xor_b32 v10, v10, v13
v_lshl_add_u32 v12, v10, 4, v12
v_add_u32 v13, {4*3584-1024}, v12
v_add_u32 v14, {2*(4*3584-1024)}, v12
v_add_u32 v15, {3*(4*3584-1024)}, v12
s_lshl_b32 s{sW1B}, s{sR}, 8
s_mul_i32 s{sD}, s{sW}, {16*3584}
s_add_u32 s{sW1B}, s{sW1B}, s{sD}
s_lshl_b32 s{sW1M}, s{sW}, 12
s_lshr_b32 s{sA}, s{sW}, 1
s_lshl_b32 s{sA}, s{sA}, 2
s_andn2_b32 s{sB}, 1, s{sW}
s_add_u32 s{sA}, s{sA}, s{sB}
s_lshl_b32 s{sB}, s{sU}, 1
s_add_u32 s44, s{sA}, s{sB}
s_xor_b32 s45, s44, 2
s_lshl_b32 s{sD}, s{sC}, 7
s_mul_i32 s{sW2E}, s44, {32*896}
s_add_u32 s{sW2E}, s{sW2E}, s{sD}
s_mul_i32 s{sW2L}, s45, {32*896}
s_add_u32 s{sW2L}, s{sW2L}, s{sD}
""")
vW2 = [vWO0, vWO1, 128, 129]
sSCR, sBIG = 46, 47
NA = opt("na", 0)
NUR = opt("nur", 2); NT1 = min(NA, opt("nt1", 99))
_u = list(range(14))
def take(n): return [_u.pop(0) for _ in range(min(n, len(_u)))]
UAW = take(NA); UR = take(NUR); UD = take(opt("nud", 2)); UE = take(3); UL = take(opt("nrl", 4)); UP = take(99)
assert all(j >= 7 for j in UL + UP) and all(j >= 4 for j in UE)
RAWS = UAW + UR + UL
def UA(j): return 16*j
def w2slot(j):
    if j in UE: return (sSCR, 4096*UE.index(j), 254)
    if j in UAW + UR + UD: return (sSCR, 4096*(j & 1), 254)
    return (sBIG, 4096*(UL + UP).index(j), 252)
def w2dma(j):
    mb, mo, _ = w2slot(j)
    return dmag(vW2, W2, sW2E if j < 7 else sW2L, (j%7)*256*896, mb, mo, f"w2_{j}", sDM)
def w2raw(j):
    ch = [mk(f"buffer_load_dwordx4 {a_(UA(j)+4*q,4)}, v{vW2[q]}, {W2}, s81 offen offset:{1024*q}") for q in range(4)]
    ch[0] = mk(f"s_add_u32 s81, s{sW2E if j < 7 else sW2L}, {(j%7)*256*896}") + ch[0]
    return ch
def w2rd(j):
    _, mo, av = w2slot(j)
    if j in RAWS: out = [mk(f"ds_write_b128 v{131 if j in UL else 134}, {a_(UA(j)+4*q,4)} offset:{mo+1024*q}") for q in range(4)]
    else: out = [[WaitTag([f"w2_{j}"])]]
    for e in range(2):
        for mu in range(2):
            for u in range(2): out.append(mk(f"ds_read_b64_tr_b16 {a_(UA(j)+8*e+4*mu+2*u,2)}, v{av+mu} offset:{mo+2048*e+1024*u}"))
    return out
raw = flat([w2raw(j) for j in UR])
rawA = flat([w2raw(j) for j in UAW])
if opt("noid", 1): set2 = [mk(f"s_cmp_ge_u32 s{sRact}, 14\ns_cselect_b32 s26, 0, s26")] + set2
if not RELOC: set2 += mk(f"v_add_u32 v128, {2*(7168-1024)}, v{vWO0}\nv_add_u32 v129, {3*(7168-1024)}, v{vWO0}")
set2b = [x for x in set2 if isinstance(x, Ins) and x.cls == 'valu' and x.defs[0][1] < 128]
if opt("trim", 1):
    set2 = [mk(f"""s_cmp_eq_u32 s{sW}, 3
s_cselect_b64 vcc, {sHI}, 0
v_mov_b32 v143, 0x10000000
v_add_u32 v133, s{sWM}, v2
v_cndmask_b32 v142, v5, 0, vcc
v_cndmask_b32 v{vFPD}, v{vFPD}, v143, vcc
v_cndmask_b32 v{vFPC}, v{vFPC}, v143, vcc""")] + set2
set2b = [x for x in set2 if isinstance(x, list)] + set2b
set2a = [x for x in set2 if x not in set2b]
pro, gk = gemm_lds([(13, 1024*t, 1024*t + 256, (XF + 4*t, ACK, t == 0, False)) for t in range(28)], AH)
P.add(pro)
S = Sched(gk)
S.spread(wvl, 0, opt("wve", 16))
NQK = opt("nqk", 2)
S.spread([wqdma(k) for k in range(NQK)], opt("wve", 16), 28)
EARLY = opt("early", 0)
if EARLY:
    P.add(flat([x if isinstance(x, list) else [x] for x in fin + set2a])); fin = []
    wo_l = flat([dmag([vWO0, vWO1], WO, sQ, i*64*896, sXO, L_WO + 8192*i, "wo", sDM) for i in range(7)] + [dmag([vXRD0, vXRD1], X, sXRB, 0, sXO, L_XCH, "wo", sDM)])
    if EARLY == 2:
        S.spread([wo_l[2*i] + wo_l[2*i+1] for i in range(8)], 0, 28)
    else: S.spread([rawA.pop(0) for _ in range(min(len(rawA), opt("ne1", 8)))], 0, 28)
else: fin = fin + set2a + snG
if TP == 3: S.at(opt("tpos", 22), touch)
for k, ps in enumerate((L2A, L2B)):
    if 0 <= ps < 28: S.at(ps, l2t(W1, k, 248 + k))
S.spread(fin + flat([mk(f"v_or_b32 v{WPK+q}, v{WPK+q}, v{WPT+q}\nv_or_b32 v{WPQ+q}, v{WPQ+q}, v{WPT+8+q}") for q in range(8)]), 2, 26)
P.add(S.emit())
def phi_pre(acc, wp):
    q = Prog()
    for i in range(8): q.I(f"v_cvt_pk_bf16_f32 v{acc+i}, v{acc+2*i}, v{acc+2*i+1}")
    q.I(f"{MF} {v(PK,16)}, {v(wp,4)}, {v(acc,4)}, 0\n{MF} {v(PK,16)}, {v(wp+4,4)}, {v(acc+4,4)}, {v(PK,16)}")
    return q.items
stamp("k gemm done", "mp")
wql = [wqdma(k) for k in range(NQK, 7)]
P.add(wql.pop(0))
P.add(snA)
P.add(phi_pre(ACK, WPK))
imw = flat([mk(f"ds_write_b128 v{vIMW}, {v(IMG+4*i,4)} offset:{L_IMG+16*i}") for i in range(3)]) + mk(f"ds_write_b64 v{vIMW}, {v(IMG+12,2)} offset:{L_IMG+48}")
smk = sprinkle(softmax(PK, TMP, IMG, True), [wql.pop(0) for _ in range(min(len(wql), opt("nwq0", 3)))], 10, opt("wqs", 40))
if EARLY: smk = sprinkle(smk, [rawA.pop(0) for _ in range(min(len(rawA), opt("ne2", 8)))], 5, 16)
WEAVE = opt("weave", 1)
pro, gv = gemm_lds([(11, L_WV + 1024*t, L_WV + 1024*t + 256, (XF + 4*t, ACV, t == 0, False)) for t in range(28)], AH)
S = Sched(gv)
if not WEAVE:
    P.add(smk)
    P.wait(*[f"wv{k}" for k in range(7)]); I("s_barrier")
    stamp("softmax k done", "p")
    P.add(pro)
    S.spread(imw, 2, 10)
else:
    smf = softmax(PK, TMP, IMG, 2)
    n0 = next(i for i, x in enumerate(smf) if x.op == "v_exp_f32")
    P.wait(*[f"wv{k}" for k in range(4)]); I("s_barrier")
    P.add(pro)
    P.add(smf[:n0])
    stamp("softmax k done", "p")
    S.spread(smf[n0:] + imw, 0, 28)
    S.at(15 - AH, [WaitTag(["wv4", "wv5", "wv6"])] + mk("s_barrier"), 1.0)
    wql = [wqdma(k) for k in range(NQK + 1, 7)]
wo_l = flat([dmag([vWO0, vWO1], WO, sQ, i*64*896, sXO, L_WO + 8192*i, "wo", sDM) for i in range(7)] + [dmag([vXRD0, vXRD1], X, sXRB, 0, sXO, L_XCH, "wo", sDM)])
if EARLY == 2: wo_l = []
S.spread(wql, 0, opt('wqe', 10))
if EARLY: S.spread([rawA.pop(0) for _ in range(min(len(rawA), opt("ne3", 8)))], 0, 22)
if L2A >= 0 or L2N: touch = [x for x in touch if W1 not in x.text]
if L2N == 1: S.at(opt("l2p", 14), l2n(3))
if L2N == 2: S.at(opt("l2p", 14), l2n(1) + l2n(3))
tlb = []
if opt("tlb", 0) & 1: tlb += mk(f"s_mov_b64 exec, 1\nbuffer_load_dword v248, v6, {OUT}, s{sOUT} offen\ns_mov_b64 exec, -1")
if opt("tlb", 0) & 2: tlb += mk(f"v_lshlrev_b32 v249, 20, v1\ns_mov_b64 exec, 0xffff\nbuffer_load_dword v249, v249, {WS}, 0 offen offset:4092\ns_mov_b64 exec, -1")
if tlb: S.at(opt("tlbp", 13), tlb)
if opt("touch", 1) and TP == 0: S.at(opt("tpos", 11), touch)
for k, ps in enumerate((L2A, L2B)):
    if 200 <= ps < 228: S.at(ps - 200, l2t(W1, k, 248 + k))
S.spread([wo_l.pop(0) for _ in range(2*opt("nwo0", 0))], opt("wos", 17), opt("woe2", 28))
P.add(S.emit())
P.add(snB)
for k in range(0, 16, 2): I(f"v_pk_mul_f32 {v(ACV+k,2)}, {v(ACV+k,2)}, v[250:251] op_sel:[0,1] op_sel_hi:[1,1]")
I(f"v_cndmask_b32 v{ACV+12}, v{ACV+12}, 1.0, {sHI}")
for i in range(8): I(f"v_cvt_pk_bf16_f32 v{IMG+16+i}, v{ACV+2*i}, v{ACV+2*i+1}")
for i in range(4, 6): I(f"ds_write_b128 v{vIMW}, {v(IMG+4*i,4)} offset:{L_IMG+16*i}")
P.wait("wq0", "wq1", "wq2", "wq3")
I("s_waitcnt lgkmcnt(0)\ns_barrier")
stamp("img written", "p")
KA = 144; KBv = 208; KD = 176
for k in range(4):
    for u in range(2):
        I(f"ds_read_b64_tr_b16 {v(KA+4*k+2*u,2)}, v{vKA} offset:{(32*k+4*u)*208}")
    for nu in range(2):
        for u in range(2):
            I(f"ds_read_b64_tr_b16 {v(KBv+8*k+4*nu+2*u,2)}, v{vKB} offset:{(32*k+4*u)*208+64+16*nu}")
P.add(snE)
proq, gq = gemm_lds([(11, L_WQ + 1024*t, L_WQ + 1024*t + 256, (XF + 4*t, ACV, t == 0, False)) for t in range(28)], AH)
for k in range(4):
    for nu in range(2):
        I(f"v_mfma_f32_16x16x32_bf16 {v(KD+4*nu,4)}, {v(KA+4*k,4)}, {v(KBv+8*k+4*nu,4)}, {'0' if k == 0 else v(KD+4*nu,4)}")
P.add(proq[:8])
for i in range(4): I(f"v_cvt_pk_bf16_f32 v{KD+8+i}, v{KD+2*i}, v{KD+2*i+1}")
I(f"buffer_store_dwordx4 {v(KD+8,4)}, v2, {WS}, s{sPST} offen sc1")
I(f"v_xor_b32 v10, v{KD+8}, v5")
I(f"buffer_store_short v10, v0, {WS}, s{sPCK} offen sc1")
if GATE & 1: P.add(flag_store(16))
P.add(proq[8:])
stamp("partial stored", "mp")
S = Sched(gq)
ROTP = opt("rotp", 1)
if ROTP:
    rp = []
    for b in range(4): rp += mk(f"s_lshr_b32 s{50+b}, s{sT}, 2\ns_add_u32 s{50+b}, s{50+b}, {b}\ns_and_b32 s{50+b}, s{50+b}, 3\ns_mul_i32 s{50+b}, s{50+b}, {4*4608}\ns_add_u32 s{50+b}, s{50+b}, s{sP}")
    S.spread(rp, 4, 20)
bgA = wo_l + rawA
nq = min(len(bgA), opt("nq", 16))
S.spread(bgA[:nq], 0, 28)
S.spread(set2b, 2, 18)
G0 = gate("g0", vPO, vPF)
if GATE & 1: S.at(opt("g0", 14), G0.load(0))
S.at(15 - AH, [WaitTag(["wq4", "wq5", "wq6"])] + mk("s_barrier"), 1.0)
P.add(S.emit())
stamp("q gemm done", "p")
G = 16; GC = 80; SA = 96
FP = Fetch("fp", [([f"s_add_u32 s{sCt}, s{50 + (T >> 2) if ROTP else sP}, {4608*(T & 3 if ROTP else T)}\nbuffer_load_dwordx4 {v(G+4*T,4)}, v{vFPD}, {WS}, s{sCt} offen sc1\nbuffer_load_ushort v{GC+T}, v{vFPC}, {WS}, s{sCt} offen sc1"],
                   [G+4*T, GC+T]) for T in range(16)])
NFE = opt("nfe", 4)
for T in range(NFE): P.add(FP.load(T))
P.add(phi_pre(ACV, WPQ))
I("s_barrier")
P.add(snC + snC2)
PQ = 208
smq = softmax(PK, TMP, PQ, True); f0 = opt("fp0", 30)
P.add(sprinkle(smq[:f0], bgA[nq:], 0, opt("as", 8)))
P.add(sprinkle(smq[f0:], [FP.load(T) for T in range(NFE, 16)], 0, opt("fpstep", 6)))
stamp("softmax q done", "p")
w1_l = flat([dmag([12, 13, 14, 15], W1, sW1B, i*64*3584, sW1M, 16384*i, "w1", sDM) for i in range(7)])
def fpb(b):
    t = []
    for k, T in enumerate(range(4*b, 4*b+4)):
        t.append(f"v_bitop3_b32 v{10 if k == 0 else 9}, v{G+4*T}, v{GC+T}, v{142 if opt('trim', 1) else 5} {X3}" + ("" if k == 0 else "\nv_or_b32 v10, v10, v9"))
    return "\n".join(t) + "\nv_cmp_ne_u16 vcc, 0, v10"
RI = TAIL.I if (opt("ool", 15) & 1) else I
if not (opt("ool", 15) & 1): I("s_branch L_fp_go")
RI("L_fp_retry:" + ("\ns_add_u32 s80, s80, 1" if DIAG else ""), unc=True)
for b in range(4):
    RI(fpb(b) + f"\ns_cbranch_vccz L_fp_k{b}\n" + "\n".join(FP.pieces[T][0][0] for T in range(4*b, 4*b+4)) + f"\nL_fp_k{b}:", unc=True)
RI(GUARD, unc=True)
if (opt("ool", 15) & 1): RI("s_branch L_fp_go", unc=True)
I("L_fp_go:")
I(fpb(0) + "\ns_cbranch_vccnz L_fp_retry")
S = Sched([mk(f"{MF} {v(SA,16)}, a[220:223], {v(G+4*T,4)}, {'0' if T == 0 else v(SA,16)}") for T in range(16)])
for b in range(1, 4): S.spread(mk(fpb(b) + "\ns_cbranch_vccnz L_fp_retry"), 4*b - 3, 4*b)
S.spread([w1_l.pop(0) for _ in range(opt("nw1a", 8))], opt("w1as", 2), 16)
P.add(S.emit())
I(f"v_add_u32 v9, {L_KVX}, v{133 if opt('trim', 1) else vFPD}")
P.add(snD)
for i in range(4): I(f"v_cvt_pk_bf16_f32 v{SA+8+i}, v{SA+2*i}, v{SA+2*i+1}")
I(f"ds_write_b128 v9, {v(SA+8,4)}\ns_waitcnt lgkmcnt(0)\ns_barrier")
stamp("kv summed", "mp")
KVA = 32; OD = 48
for q in range(7): I(f"ds_read_b64 {v(KVA+2*q,2)}, v{vKVX} offset:{512*q}")
P.add(snF)
P.add(w1_l.pop(0))
for s in range(3):
    I(f"{MF} {v(OD,16)}, {v(KVA+4*s,4)}, {v(PQ+4*s,4)}, {'0' if s == 0 else v(OD,16)}")
    if s == 1: P.add(w1_l.pop(0))
I(f"v_mfma_f32_32x32x8_bf16 {v(OD,16)}, {v(KVA+12,2)}, {v(PQ+12,2)}, {v(OD,16)}")
I(f"""s_lshl_b32 s{sP}, s{sTILE}, 15
s_lshr_b32 s{sB}, s{sW}, 1
s_lshl_b32 s{sB}, s{sB}, 13
s_add_u32 s{sP}, s{sP}, s{sB}
s_and_b32 s{sA}, s{sH}, 8
s_lshl_b32 s{sB}, s{sA}, 11
s_add_u32 s{sP}, s{sP}, s{sB}
s_add_u32 s{sP}, s{sP}, {WS_O}
s_xor_b32 s50, s{sP}, 16384
s_mul_i32 s{sB}, s{sA}, 3584
v_add_u32 v142, s{sB}, v{vWOR}
s_sub_u32 s{sB}, 28672, s{sB}
v_add_u32 v143, s{sB}, v{vWOR}
v_and_b32 v7, 31, v1
v_mul_u32_u24 v7, 896, v7
v_add_f32 v{OD+14}, 0x358637bd, v{OD+14}
v_rcp_f32 v{OD+14}, v{OD+14}
v_lshl_add_u32 v7, v3, 4, v7""")
for k in range(0, 14, 2): I(f"v_pk_mul_f32 {v(OD+k,2)}, {v(OD+k,2)}, {v(OD+14,2)} op_sel_hi:[1,0]")
for k in range(4): I(f"v_cvt_pk_bf16_f32 v{64+k}, v{OD+2*k}, v{OD+2*k+1}")
I(f"buffer_store_dwordx4 v[64:67], v2, {WS}, s{sOST} offen sc1")
for k in range(4, 7): I(f"v_cvt_pk_bf16_f32 v{64+k}, v{OD+2*k}, v{OD+2*k+1}")
I(f"""v_bitop3_b32 v71, v64, v5, s{sMASK} bitop3:0x28
v_and_b32 v6, s{sMASK}, v5
buffer_store_dwordx4 v[68:71], v2, {WS}, s{sOST} offen offset:1024 sc1""")
if GATE & 2: P.add(flag_store(7))
stamp("o stored", "mo")
P.wait("wo")
I(f"s_cmp_ge_u32 s{sRact}, 14\ns_cbranch_scc1 L_idle\ns_barrier")
wor = []
for s in range(16):
    hh, e = s >> 1, s & 1
    for k, av in (((0, 142), (1, 9)) if hh < 4 else ((0, 143), (1, vWOR))):
        for u in range(2):
            wor += mk(f"ds_read_b64_tr_b16 {a_(128+8*s+4*k+2*u,2)}, v{av} offset:{(28*(hh&3)+8*e+4*u)*128}")
XR = 224
xrr = []
for i in range(4): xrr += mk((f"v_xor_b32 v10, {16*i}, v{vXRR}\n" if i else "") + f"ds_read_b64 {v(XR+2*i,2)}, v{10 if i else vXRR}")
I(f"s_add_u32 s{sA}, s{sW1M}, {L_XCH}\nv_add_u32 v132, s{sA}, v2\nv_xor_b32 v133, 8192, v132\nv_xor_b32 v9, 64, v142\nv_xor_b32 v{vWOR}, 64, v143")
P.add(xrr)
G1 = gate("g1", vPO, vPF)
nb_ = min(opt("nw1b", 16), len(w1_l) - 8)
wor = sprinkle(wor, [w1_l.pop(0) for _ in range(nb_)], 0, opt("w1bs", 4))
OB = 16
FO = Fetch("fo", [([f"s_add_u32 s{sCt}, s{sP if hh < 4 else 50}, {2048*(hh&3)}\nbuffer_load_dwordx4 {v(OB+8*hh,4)}, v2, {WS}, s{sCt} offen sc1\nbuffer_load_dwordx4 {v(OB+8*hh+4,4)}, v2, {WS}, s{sCt} offen offset:1024 sc1"],
                   [OB+8*hh, OB+8*hh+7]) for hh in range(8)], masked=True, nre=opt('reo', 2))
NOE = opt("noe", 4)
FEP = opt("fep", 56)
P.add(sprinkle(wor, flat([FO.loadc(hh) for hh in range(NOE)]), FEP, 3))
stamp("pre o fetch", "o")
AO, AT = 80, 96
set3 = mk(f"""s_mul_i32 s{sSCR}, s{sW}, 12288
s_mul_i32 s{sBIG}, s{sW}, 28672
v_add_u32 v131, s{sBIG}, v2
s_lshl_b32 s{sB}, s{sC}, 1
s_lshr_b32 s{sD}, s{sW}, 1
s_add_u32 s{sB}, s{sB}, s{sD}
s_mul_i32 s{sA}, s{sTILE}, 14
s_add_u32 s{sB}, s{sB}, s{sA}
s_mul_i32 s{sPST}, s{sB}, 2432
s_add_u32 s{sPST}, s{sPST}, {WS_H}
s_lshr_b32 s48, s{sW}, 1
s_nop 0
v_bfe_u32 v9, v1, 2, 2
v_lshl_add_u32 v240, v3, 2, v9
v_lshlrev_b32 v254, 7, v240
v_lshlrev_b32 v240, 8, v240
v_xor_b32 v9, s{sW}, v9
v_lshl_add_u32 v240, v9, 6, v240
v_bfe_u32 v9, v1, 4, 1
v_lshlrev_b32 v9, 5, v9
v_lshl_add_u32 v9, v8, 3, v9
v_add_u32 v240, v240, v9
v_add_u32 v254, v254, v9
v_bfe_u32 v9, v1, 3, 1
v_xor_b32 v9, s48, v9
v_lshl_add_u32 v254, v9, 6, v254
s_add_u32 s{sSCR}, s{sSCR}, {L_SCR}
v_add_u32 v252, s{sBIG}, v254
v_xor_b32 v253, 64, v252
v_add_u32 v254, s{sSCR}, v254
v_add_u32 v134, s{sSCR}, v2
v_xor_b32 v255, 64, v254
v_xor_b32 v241, 64, v240
v_xor_b32 v242, 128, v240
v_xor_b32 v243, 192, v240""") + flat([mk(f"v_add_u32 v{244+m}, 57344, v{240+m}") for m in range(4)])
pre2 = []
for i in range(8): pre2 += mk(f"v_lshlrev_b32 v{112+2*i}, 16, v{XR+i}\nv_and_b32 v{113+2*i}, s{sHIM}, v{XR+i}")
for s in range(1, 16, 2): pre2 += mk(f"v_accvgpr_write_b32 a{128+8*s+3}, 0\nv_accvgpr_write_b32 a{128+8*s+7}, 0")
if GATE & 2:
    P.add(pre2); P.add(G1.check(0, 0))
    stamp("gate1", "o")
    for hh in range(8): P.add(FO.load(hh))
else:
    P.add(pre2[16:]); P.add(set3)
    I("s_waitcnt lgkmcnt(0)\ns_barrier")
    P.add(sprinkle(flat(flat([w2rd(j) for j in UAW[:NT1]])), [w1_l.pop(0) for _ in range(min(len(w1_l), opt("nw1s", 4)))], 0, 8))
    stamp("shadow done", "o")
    LG = opt("lg", -1)
    P.add(sprinkle(pre2[:16], [FO.load(hh) for hh in range(NOE, 8)] if LG < 0 else [], 0, 2))
if NA: I("s_waitcnt lgkmcnt(0)\ns_barrier")
stamp("fo issued", "o")
g2 = []
for s in range(16):
    for k, acc in ((1, AT), (0, AO)):
        c = ("0" if k else v(112,16)) if s == 0 else v(acc,16)
        g2.append(mk(f"{MF} {v(acc,16)}, {a_(128+8*s+4*k,4)}, {v(OB+4*s,4)}, {c}"))

if opt("rord", 1): g2[28:32] = [g2[28], g2[30], g2[29], g2[31]]
P.add(FO.check(0, 3))
stamp("fo0", "o")
S = Sched(g2)
for hh in range(1, 8): S.spread(FO.checkc(hh, 3 if hh < 4 else 7), 4*hh - 3, 4*hh)
if LG >= 0: S.spread(flat([FO.loadc(hh) for hh in range(NOE, 8)]), LG, LG + 6)
S.spread(w1_l + [raw.pop(0) for _ in range(min(len(raw), opt("rawb", 8)))], LG + 6 if LG >= 0 else 0, opt('p2e', 32))
P.add(S.emit())
stamp("p2 gemm done", "o")
for i in range(4): I(f"ds_write_b128 v132, {v(AT+4*i,4)} offset:{1024*i}")
I("v_mov_b32 v112, 0\nv_mov_b32 v113, 0\ns_waitcnt lgkmcnt(0)\ns_barrier")
for i in range(4): I(f"ds_read_b128 {v(AT+4*i,4)}, v133 offset:{1024*i}")
HR = XR
for k in range(0, 8, 2): I(f"v_pk_add_f32 {v(AO+k,2)}, {v(AO+k,2)}, {v(AT+k,2)}")
for i in range(4): I(f"v_cvt_pk_bf16_f32 v{HR+i}, v{AO+2*i}, v{AO+2*i+1}")
I(f"buffer_store_dwordx4 {v(HR,4)}, v2, {WS}, s{sPST} offen sc1")
for k in range(8, 16, 2): I(f"v_pk_add_f32 {v(AO+k,2)}, {v(AO+k,2)}, {v(AT+k,2)}")
for i in range(4, 8): I(f"v_cvt_pk_bf16_f32 v{HR+i}, v{AO+2*i}, v{AO+2*i+1}")
I(f"buffer_store_dwordx4 {v(HR+4,4)}, v2, {WS}, s{sPST} offen offset:1024 sc1")
for i in range(8): I(f"v_dot2c_f32_bf16 v112, s{sONES}, v{HR+i}\nv_dot2c_f32_bf16 v113, v{HR+i}, v{HR+i}")
I(f"""v_bitop3_b32 v10, v{HR}, v{HR+4}, v5 {X3}
v_permlane32_swap_b32 v112, v113
v_add_f32 v112, v112, v113
buffer_store_dword v112, v4, {WS}, s{sPST} offen offset:2048 sc1
v_xor_b32 v113, v10, v112
buffer_store_short v113, v0, {WS}, s{sPST} offen offset:2304 sc1""")
def selft(sreg, nl): return mk(f"s_mov_b64 exec, {(1 << nl) - 1}\nbuffer_load_dword v135, v134, {WS}, s{sreg} offen sc1\ns_mov_b64 exec, -1")
SELF = opt("self", 0)
if SELF & 1: P.add(selft(sPST, 20))
if GATE & 4: P.add(flag_store(14))
stamp("h stored", "moh")
HB = 16; ST = 192
ACC = [144, 160, 176, 192]; AUG = 232
set4 = mk(f"""s_lshl_b32 s{sB}, s{sT3}, 2
s_add_u32 s{sB}, s{sB}, s{sW}
s_mul_i32 s{sP}, s{sB}, {14*2432}
s_add_u32 s{sP}, s{sP}, {WS_H}
s_mul_i32 s{sA}, s{sB}, 56
s_lshl_b32 s{sD}, s{sR}, 2
s_add_u32 s{sA}, s{sA}, s{sD}
s_mul_i32 s{sQ}, s{sA}, 2176
s_add_u32 s{sQ}, s{sQ}, {WS_H1}
v_lshlrev_b32 v13, 3, v1
s_lshl_b32 s{sA}, s{sW}, 9
s_add_u32 s{sA}, s{sA}, {L_AUG}
v_add_u32 v13, s{sA}, v13
v_mov_b32 v222, 0""")
FH = Fetch("fh", [([f"s_add_u32 s{sCt}, s{sP}, {2432*p}\nbuffer_load_dwordx4 {v(HB+8*p,4)}, v2, {WS}, s{sCt} offen sc1\nbuffer_load_dwordx4 {v(HB+8*p+4,4)}, v2, {WS}, s{sCt} offen offset:1024 sc1\n"
                    f"buffer_load_dword v{ST+2*p}, v4, {WS}, s{sCt} offen offset:2048 sc1\nbuffer_load_ushort v{ST+2*p+1}, v0, {WS}, s{sCt} offen offset:2304 sc1"],
                   [HB+8*p, HB+8*p+4, ST+2*p, ST+2*p+1]) for p in range(14)], nre=opt('reh', 2))
for i in range(4): I(f"v_mov_b32 v{AUG+i}, s{sONES}")
P.wait("w1"); I("s_barrier")
stamp("w1 landed", "h")
if opt("zz", 0): I(f"s_sleep {opt('zz', 0)}")
def w1a(t, k): return (240 + k + (4 if t >= 14 else 0), (t % 14) * 4096, (t % 14) * 4096 + 2048)
st3 = [w1a(t, 0) + ((AUG, ACC[2], t == 0, True),) for t in range(28)]
TWO = opt("two", 0); N1 = 2 if TWO else 3
for t in range(28):
    for k in range(N1): st3.append(w1a(t, k) + ((HB + 4*t, ACC[k], t == 0, False),))
for t in range(28):
    for k in range(N1, 4): st3.append(w1a(t, k) + ((HB + 4*t, ACC[k], t == 0, False),))
pro, g3 = gemm_lds(st3, AH)
P.add(pro)
S3 = Sched(g3)
S3.spread(set4, 0, 8)
S3.spread(raw + flat([w2dma(j) for j in UD]), opt("c0s", 0), opt("c0e", 10)); raw = []
NH0 = opt("nh0", 4); H0 = opt("h0", 26)
G2 = gate("g2", vPO, vPF)
if GATE & 4:
    S3.at(opt("g2", 12), G2.load(0), 0.9)
    S3.at(27, G2.check(0, 0) + stampi("gate2", "h") + flat([FH.load(p) for p in range(NH0)]), 0.5)
else: S3.spread(flat([FH.loadc(p) for p in range(NH0)]), H0, 27)
cs = ACC[2]
csx = mk(f"""v_cvt_pk_bf16_f32 v{AUG}, v{cs}, v{cs}
v_lshlrev_b32 v{AUG+1}, 16, v{AUG}
v_sub_f32 v{AUG+1}, v{cs}, v{AUG+1}
v_cvt_pk_bf16_f32 v{AUG}, v{cs}, v{AUG+1}
v_and_b32 v{AUG+1}, 0xffff, v{AUG}
v_cndmask_b32 v{AUG}, v{AUG}, 0, {sHI}
v_cndmask_b32 v{AUG+1}, v{AUG+1}, 0, {sHI}
ds_write_b64 v13, {v(AUG,2)}""")
S3.at(27, stampi("colsum done", "h") + csx + FH.check(0, NH0 - 1) + stampi("fh0", "h"), 1.0)
B0 = 28
for p in range(14):
    b = B0 + 2*N1*p
    if p + NH0 < 14:
        for k_, c_ in enumerate(FH.loadc(p + NH0)): S3.at(b + ((0, 2, 1, 3) if TWO else (0, 2, 4, 4))[k_], c_, 0.2)
    S3.at(b, mk(f"v_add_f32 v222, v222, v{ST+2*p}"), 0.0)
    if p + 1 < 14: S3.spread(FH.checkc(p + 1, min(13, p + NH0 - 1)), b + 1, b + 2*N1)
    if p in (3, 7, 11): S3.at(b + 2*N1 - 1, stampi(f"fh{p+1}", "h"), 1.0)
S3.at(B0 + 14, mk("s_barrier") + flat([mk(f"v_xor_b32 v9, {512*k}, v13\nds_read_b64 {v(AUG+2*k,2)}, v9") for k in range(1, 4)]), 0.0)
mid = mk(f"""v_mul_f32 v220, {fhex(1/448)}, v222
v_mov_b32 v221, v220
s_nop 0
v_permlane32_swap_b32 v220, v221
v_fma_f32 v221, -v220, v220, v221
v_max_f32 v221, 0, v221
v_add_f32 v221, 0x3727c5ac, v221
v_rsq_f32 v251, v221
v_cvt_pk_bf16_f32 v222, -v220, -v220
v_lshlrev_b32 v9, 16, v222
v_sub_f32 v9, -v220, v9
v_cvt_pk_bf16_f32 v223, v9, 0
v_mul_f32 v250, v221, v251
v_mul_f32 v251, 0xbfb8aa3b, v251
v_cndmask_b32 v222, v222, 0, {sHI}
v_cndmask_b32 v223, v223, 0, {sHI}""")
S3.spread(mid, *((B0 + 53, B0 + 59) if TWO else (B0 + 79, B0 + 84)))
def aug(k): return mk(f"v_mfma_f32_32x32x8_bf16 {v(ACC[k],16)}, {v(AUG+2*k,2)}, v[222:223], {v(ACC[k],16)}")
SLT = 132
def silu(k, pk):
    q = Prog(); a = ACC[k]; t = 208
    q.I(f"s_xor_b32 s50, s{sW}, {k}\ns_mul_i32 s50, s50, 2176\ns_add_u32 s50, s50, s{sQ}")
    for half in range(2):
        b = a + 8 * half
        if pk:
            for j in range(0, 8, 2): q.I(f"v_pk_mul_f32 {v(t+j,2)}, {v(b+j,2)}, v[250:251] op_sel:[0,1] op_sel_hi:[1,1]")
        else:
            for j in range(8): q.I(f"v_mul_f32 v{t+j}, v{b+j}, v251")
        for j in range(8): q.I(f"v_exp_f32 v{t+j}, v{t+j}")
        if pk:
            for j in range(0, 8, 2): q.I(f"v_pk_fma_f32 {v(t+j,2)}, {v(t+j,2)}, v[250:251], v[250:251] op_sel_hi:[1,0,0]")
        else:
            for j in range(8): q.I(f"v_fma_f32 v{t+j}, v{t+j}, v250, v250")
        for j in range(8): q.I(f"v_rcp_f32 v{t+j}, v{t+j}")
        if pk:
            for j in range(0, 8, 2): q.I(f"v_pk_mul_f32 {v(b+j,2)}, {v(b+j,2)}, {v(t+j,2)}")
        else:
            for j in range(8): q.I(f"v_mul_f32 v{b+j}, v{b+j}, v{t+j}")
        for j in range(4): q.I(f"v_cvt_pk_bf16_f32 v{b+j}, v{b+2*j}, v{b+2*j+1}")
        q.I(f"buffer_store_dwordx4 {v(b,4)}, v2, {WS}, s50 offen offset:{1024*half} sc1")
    q.I(f"v_bitop3_b32 v216, v5, v{a}, v{a+8} {X3}")
    q.I(f"buffer_store_short v216, v0, {WS}, s50 offen offset:2048 sc1")
    return q.items + ([selft(50, 18)] if SELF & 2 and not pk else [])
E0 = B0 + 28*N1
assert not raw
if TWO:
    S3.spread(flat([w2rd(j) for j in UD + UR + UAW[NT1:]]), B0 + 8, B0 + 42)
    S3.at(B0 + 34, mk("s_barrier"), 0.0)
    S3.spread(flat([w2dma(j) for j in UE]), B0 + 48, E0 + opt("wde", 12))
else:
    S3.spread(flat([w2rd(j) for j in UD + UR + UAW[NT1:]]), B0 + 22, B0 + 58)
    S3.at(B0 + 44, mk("s_barrier"), 0.0)
    S3.spread(flat([w2dma(j) for j in UE]), B0 + opt('twd', 64), E0)
B4 = 16
CKR = [240, 241, 244, 245, 248, 249, 217, 218, 219, 130, 242, 246, 243, 247]
C4 = [[a_(224,16), a_(240,16)], [v(ACC[0],16), v(ACC[1],16)]]
set5 = mk(f"""s_mul_i32 s{sA}, s{sTILE}, 56
s_xor_b32 s{sB}, s{sTILE}, 1
s_mul_i32 s{sB}, s{sB}, 56
s_add_u32 s51, s{sB}, s44
s_add_u32 s52, s{sA}, s44
s_add_u32 s53, s{sB}, s45
s_add_u32 s54, s{sA}, s45""")
for k in range(4):
    set5 += mk(f"s_mul_i32 s{51+k}, s{51+k}, 2176\ns_add_u32 s{51+k}, s{51+k}, {WS_H1}")
S3.spread(set5, B0 + 42, B0 + 52)
def piece4(n):
    st, i = n // 7, n % 7; r = B4 + 8 * (n % 14); c = CKR[n % 14]
    return ([f"s_add_u32 s{sCt}, s{51+st}, {8*2176*i}\nbuffer_load_dwordx4 {v(r,4)}, v2, {WS}, s{sCt} offen sc1\nbuffer_load_dwordx4 {v(r+4,4)}, v2, {WS}, s{sCt} offen offset:1024 sc1\n"
             f"buffer_load_ushort v{c}, v0, {WS}, s{sCt} offen offset:2048 sc1"], [r, r+4, c])
F4 = Fetch("f4", [piece4(n) for n in range(28)], nre=opt("re4", 3))
ND = opt("nd", 5)
N0 = ND if TWO else opt("n0", 4)
rawl = flat([w2raw(j) for j in UL])
nr0 = min(len(rawl), opt("nr0", 6))
if TWO:
    S3.at(E0 - 1, stampi("p3 pass1 done", "mh"), 1.0)
    g3[E0 + 3] = aug(0) + g3[E0 + 3]; g3[E0 + 4] = aug(1) + g3[E0 + 4]
    S3.spread(silu(0, False) + [stampi("silu0 done", "e")], E0 + 5, E0 + opt("s0e", 21))
    S3.spread(silu(1, False), E0 + opt("s0e", 21), E0 + opt("s1e", 44))
    S3.spread(rawl, E0 + opt("wde", 12), E0 + opt("rle", 36))
    DEEP = opt("deep", 0)
    if DEEP:
        rng = [(opt("a0", -18), opt("b0", 4)), (opt("a1", 6), opt("b1", 24)), (opt("a2", 26), opt("b2", 50)), (opt("a3", 50), opt("b3", 78))]
        f4pos = []
        for n in range(28):
            a, b = rng[n // 7]
            for k_, c_ in enumerate(F4.loadc(n)):
                pos = a + (b - a) * ((n % 7) + (0, 0.45, 0.9)[k_]) / 7
                lo = (4*n + 4 - 56) if n < 14 else 4*(n - 14) + 4
                pos = max(pos, lo + 0.01*k_); assert pos < 4*n - 3 or n == 0, (n, pos)
                f4pos.append((pos, c_))
        for i_ in range(1, len(f4pos)): assert f4pos[i_][0] >= f4pos[i_-1][0], i_
        import math
        for pos, c_ in f4pos:
            if pos < 0: S3.at(E0 + 56 + math.floor(pos), c_, pos - math.floor(pos))
    else: S3.spread(flat([F4.loadc(n) for n in range(ND)]), E0 + opt("f4s", 52), E0 + 56)
    P.add(S3.emit())
    P.add(aug(2) + aug(3))
else:
    S3.at(E0 - 1, stampi("p3 pass1 done", "mh") + aug(0) + aug(1) + aug(2) + sprinkle(silu(0, True), rawl[:nr0], 3, opt('r0s', 12)) + stampi("silu0 done", "e"), 1.0)
    S3.spread(silu(1, False) + (silu(2, False) if opt("s2p", 1) else []), E0, E0 + opt("t1e", 26))
    S3.spread(rawl[nr0:], E0, E0 + opt("tre", 20))
    S3.spread(flat([F4.loadc(n) for n in range(N0)]), E0 + opt("f4t", 20), E0 + 28)
    P.add(S3.emit())
    P.add(aug(3))
I("s_barrier")
stamp("p3 gemm done", "me")
g4 = []
for n in range(28):
    st, i = n // 7, n % 7; hf, par = st >> 1, st & 1
    for e in range(2):
        for mu in range(2):
            zero = hf == 0 and i == 0 and e == 0 and not (par == 1 and mu == 0)
            g4.append(mk(f"{MF} {C4[par][mu]}, {a_(UA(7*hf+i)+8*e+4*mu,4)}, {v(B4+8*(n%14)+4*e,4)}, {'0' if zero else C4[par][mu]}"))
if opt("rord", 1): g4[108:112] = [g4[109], g4[111], g4[108], g4[110]]
P.add(F4.check(0, N0 - 1))
S = Sched(g4)
nxt = N0
for n in range(28):
    prev = nxt
    if nxt < 28 and not (TWO and DEEP):
        if nxt < n + ND and nxt + 1 < 28:
            for k_, c_ in enumerate(F4.loadc(nxt) + F4.loadc(nxt + 1)): S.at(4*n + (0, 1, 1, 2, 3, 3)[k_], c_, 0.2 + 0.01*k_)
            nxt += 2
        else:
            for k_, c_ in enumerate(F4.loadc(nxt)): S.at(4*n + (0, 2, 1)[k_], c_, 0.2)
            nxt += 1
    if n + 1 < 28: S.spread(F4.checkc(n + 1, max(n + 1, prev - 1)), 4*n + 2, 4*n + 4)
    if n in (6, 13, 20): S.at(4*n + 3, stampi(f"stage{n//7} done", "e"), 1.0)
unp = []
for i in range(8): unp += mk(f"v_lshlrev_b32 v{ACC[0]+2*i}, 16, v{HR+i}\nv_and_b32 v{ACC[0]+1+2*i}, s{sHIM}, v{HR+i}")
if TWO and DEEP:
    for pos, c_ in f4pos:
        if pos >= 0: S.at(int(pos), c_, pos - int(pos))
S2E, S3E = opt("s2e", 16), opt("s3e", 16)
if opt("s2p", 1) and not TWO: S2E = 1
else: S.spread(silu(2, False), 0, S2E)
S.spread(unp, 22, 27)
S.spread(silu(3, False), S2E, S3E)
S.spread(flat([w2rd(j) for j in UE if j < 7]), 0, 14)
S.spread(flat([w2dma(j) for j in UP]), opt("w2a", 20), opt("w2b", 46))
for j in [x for x in UE + UL + UP if x >= 7]: S.spread(w2rd(j), 44 + 5*(j-7), 49 + 5*(j-7))
S.at(82, mk(f"""s_lshl_b32 s{sA}, s{sW}, 14
v_add_u32 v13, s{sA}, v2
v_xor_b32 v9, 16384, v13
v_xor_b32 v12, 32768, v13
v_xor_b32 v14, 49152, v13
s_waitcnt lgkmcnt(0)
s_barrier"""))
S.spread([mk(f"ds_write_b128 v{9 if mu == 0 else 14}, {a_(224+16*mu+4*i,4)} offset:{4096*(2*mu+1)+1024*i}") for mu in range(2) for i in range(4)], 87, 99)
S.at(100, mk("s_waitcnt lgkmcnt(0)\ns_barrier"), 0.0)
S.spread([mk(f"ds_read_b128 {v(ACC[2+mu]+4*i,4)}, v13 offset:{4096*(2*mu+1)+1024*i}") for mu in range(2) for i in range(4)], 100, 104)
S.spread([mk(f"v_add_f32 v{ACC[2]+k}, v{ACC[2]+k}, v{ACC[3]+k}") for k in range(16)], 107, 112)
P.add(S.emit())
stamp("p4 gemm done", "me")
for i in range(4): I(f"ds_write_b128 v12, {v(ACC[1]+4*i,4)} offset:{8192+1024*i}")
if opt("cout", 0):
    I(f"""v_lshlrev_b32 v16, 3, v3
v_sub_u32 v16, v{vXRR}, v16
v_lshlrev_b32 v17, 4, v3
v_xor_b32 v16, v16, v17
v_xor_b32 v17, 32, v16
s_add_u32 s{sA}, s{sXO}, {L_XCH}
v_add_u32 v18, s{sA}, v2""")
I("s_waitcnt lgkmcnt(0)\ns_barrier")
for i in range(4): I(f"ds_read_b128 {v(ACC[3]+4*i,4)}, v13 offset:{8192+1024*i}")
for k in range(0, 16, 2): I(f"v_pk_add_f32 {v(ACC[0]+k,2)}, {v(ACC[0]+k,2)}, {v(ACC[2]+k,2)}")
for hf in range(2):
    b = ACC[0] + 8*hf
    for k in range(0, 8, 2): I(f"v_pk_add_f32 {v(b+k,2)}, {v(b+k,2)}, {v(ACC[3]+8*hf+k,2)}")
    for i in range(4): I(f"v_cvt_pk_bf16_f32 v{96+4*hf+i}, v{b+2*i}, v{b+2*i+1}")
    if not opt("cout", 0):
        I(f"v_permlane32_swap_b32 v{96+4*hf}, v{98+4*hf}\nv_permlane32_swap_b32 v{97+4*hf}, v{99+4*hf}\nbuffer_store_dwordx4 {v(96+4*hf,4)}, v7, {OUT}, s{sOUT} offen offset:{32*hf} {OPT.get('ofl', '')}")
    else:
        I(f"v_permlane32_swap_b32 v{96+4*hf}, v{98+4*hf}\nv_permlane32_swap_b32 v{97+4*hf}, v{99+4*hf}\nds_write_b128 v{16+hf}, {v(96+4*hf,4)}")
if opt("cout", 0):
    I("s_waitcnt lgkmcnt(0)\ns_barrier")
    for i in range(2): I(f"ds_read_b128 {v(104+4*i,4)}, v18 offset:{1024*i}")
    for i in range(2): I(f"buffer_store_dwordx4 {v(104+4*i,4)}, v{vXRD0+i}, {OUT}, s{sXRB} offen offset:{1024*i} {OPT.get('ofl', '')}")
stamp("end", "mpohez")
I(f"""s_cmp_lg_u32 s2, 0
s_cbranch_scc1 L_ex0
v_mov_b32 v9, 0""")
I(f"buffer_store_dword v5, v9, {WS}, 0 offen sc1", unc=True)
I("L_ex0:")
if opt("enc", 0):
    mode = opt("enc", 0)
    if mode <= 4:
        I(f"s_bfe_u32 s{sA}, s80, {hex(0x80000 | (8*(mode-1)))}\ns_min_u32 s{sA}, s{sA}, 1\ns_mul_i32 s{sA}, s{sA}, 2000", unc=True)
    else:
        I(f"s_waitcnt lgkmcnt(0)\ns_sub_u32 s{sA}, s{sSTAMP+2}, s78\ns_mul_i32 s{sA}, s{sA}, 4", unc=True)
    I(f"""s_memrealtime s[40:41]
s_waitcnt lgkmcnt(0)
L_enc:
s_memrealtime s[42:43]
s_waitcnt lgkmcnt(0)
s_sub_u32 s42, s42, s40
s_cmp_lt_u32 s42, s{sA}
s_cbranch_scc1 L_enc
s_branch L_end""", unc=True)
if opt("dbg", 0):
    I(f"""s_cmp_lg_u32 s{sW}, 0
s_cbranch_scc1 L_end
s_load_dwordx2 s[40:41], s[0:1], 64
s_mov_b32 s42, 256
s_mov_b32 s43, 0x20000
s_mov_b64 exec, 1
v_mov_b32 v9, 0
s_waitcnt lgkmcnt(0)""", unc=True)
    for k in range(nstamp[0]):
        I(f"s_sub_u32 s{sA}, s{sSTAMP+2*k}, s78\nv_mov_b32 v10, s{sA}\nbuffer_atomic_umax v10, v9, s[40:43], 0 offen offset:{4*k}\ns_nop 1", unc=True)
    I(f"""v_mov_b32 v10, s78
buffer_atomic_umax v10, v9, s[40:43], 0 offen offset:32
s_not_b32 s{sA}, s78
v_mov_b32 v11, s{sA}
buffer_atomic_umax v11, v9, s[40:43], 0 offen offset:36
v_mov_b32 v12, s{sSTAMP+2*(nstamp[0]-1)}
buffer_atomic_umax v12, v9, s[40:43], 0 offen offset:40
v_mov_b32 v13, s80
buffer_atomic_add v13, v9, s[40:43], 0 offen offset:44
s_branch L_end""", unc=True)
I("L_exit:")
if DIAG and not opt("dbg", 0):
    I(f"s_cmp_lg_u32 s{sW}, {opt('dw', 0)}\ns_cbranch_scc1 L_end\ns_lshl_b32 s{sA}, s2, 7\ns_add_u32 s{sA}, s{sA}, {WS_DIAG}\nv_mov_b32 v9, 0", unc=True)
    for k in range(nstamp[0]):
        I(f"s_waitcnt lgkmcnt(0)\nv_mov_b32 v10, s{sSTAMP+2*k}\nbuffer_store_dword v10, v9, {WS}, s{sA} offen offset:{4*k}", unc=True)
    if SEL == ["z"]: I(f"v_mov_b32 v10, s78\nbuffer_store_dword v10, v9, {WS}, s{sA} offen offset:120", unc=True)
    I(f"v_mov_b32 v10, s80\nbuffer_store_dword v10, v9, {WS}, s{sA} offen offset:124", unc=True)
I("L_end:\ns_endpgm")
I(f"""L_idle:
s_and_b32 s{sA}, s{sT2}, 1
s_lshl_b32 s{sA}, s{sA}, 1
s_add_u32 s{sA}, s{sA}, s{sRact}
s_sub_u32 s{sA}, s{sA}, 14
s_lshl_b32 s{sA}, s{sA}, 2
s_add_u32 s{sA}, s{sA}, s{sW}
s_lshl_b32 s{sA}, s{sA}, 13
v_lshlrev_b32 v9, 7, v1
s_lshr_b32 s{sD}, s{sT2}, 1
s_mul_i32 s{sD}, s{sD}, {8*56*2176}
s_add_u32 s{sD}, s{sD}, {WS_H1}
s_add_u32 s{sD}, s{sD}, s{sA}
s_mov_b32 s{sB}, {opt("idle2", 0)}
s_cmp_eq_u32 s{sB}, 0
s_cbranch_scc1 L_idle3
L_idle2:
buffer_load_dword v11, v9, {WS}, s{sD} offen {OPT.get("i2f", "")}
s_add_u32 s{sD}, s{sD}, {16*8192}
s_sub_u32 s{sB}, s{sB}, 1
s_cmp_lg_u32 s{sB}, 0
s_cbranch_scc1 L_idle2
L_idle3:
s_mov_b32 s{sB}, {opt("idle", 0)}
s_cmp_eq_u32 s{sB}, 0
s_cbranch_scc1 L_exit
L_idle1:
buffer_load_dword v11, v9, {W2}, s{sA} offen
s_add_u32 s{sA}, s{sA}, {16*8192}
s_sub_u32 s{sB}, s{sB}, 1
s_cmp_lg_u32 s{sB}, 0
s_cbranch_scc1 L_idle1
s_branch L_exit""", unc=True)
P.add(TAIL.items)

for it in P.items:
    if isinstance(it, Ins) and it.text.startswith('buffer_load_dword v142,'): it.defs = []
for it in P.items:
    if isinstance(it, Ins) and it.op == "buffer_load_dwordx4":
        for bit, srd in ((1, W1), (2, W2), (4, WO), (8, WQKV), (16, X)):
            if opt("wf", 0) & bit and srd in it.text:
                fl = OPT.get("wfl", "nt")
                it.text = it.text.replace(" lds", f" {fl} lds") if it.text.endswith(" lds") else it.text + " " + fl
PL = opt("plain", 0)
for it in P.items:
    if isinstance(it, Ins) and it.op.startswith("buffer_store") and "sc1" in it.text:
        ish1 = " s50 " in it.text or " s49 " in it.text
        ish = ("v[224:227]" in it.text or "v[228:231]" in it.text or "v112," in it.text or "v113," in it.text)
        if (ish and PL & 1) or (ish1 and PL & 2): it.text = it.text.replace(" sc1", OPT.get("pfl", ""))
if opt("pld", 0):
    c = 0
    for it in P.items:
        if isinstance(it, Ins) and it.op.startswith("buffer_load") and "sc1" in it.text and " s56 " in it.text and not it.uncounted:
            c += 1
            kind = 0 if c <= 48 else 1 if c <= 104 else 2
            if opt("pld", 0) & kind: it.text = it.text.replace(" sc1", OPT.get("lfl", ""))
if opt("nochk", 0):
    new = []; seen_end = False
    for it in P.items:
        if isinstance(it, Ins):
            if opt("nochk", 0) == 2 and not seen_end:
                if it.text.startswith("L_exit"): seen_end = True
                elif it.uncounted or it.op in ("s_cbranch_vccz", "s_branch"): continue
            if it.op == "s_cbranch_vccz" and not it.uncounted: it = Ins(it.text.replace("s_cbranch_vccz", "s_branch"))
            elif it.op == "s_cbranch_vccnz" and not it.uncounted: continue
            t = it.text
            if it.op.startswith("buffer_store") and "sc1" in t and not it.uncounted:
                kind = 8 if " s50 " in t else 4 if ("v[224" in t or "v[228" in t or "v112," in t or "v113," in t) else 2 if f" s{sOST} " in t else 1
                if opt("nost", 0) & kind: continue
            if it.op.startswith("buffer_load") and "sc1" in t and " s56 " in t and not it.uncounted:
                cnt_ld = globals().setdefault("_c", [0]); cnt_ld[0] += 1; c = cnt_ld[0]
                kind = 1 if c <= 32 else 2 if c <= 48 else 4 if c <= 104 else 8
                if opt("nold", 0) & kind: continue
        new.append(it)
    P.items = new
body, items = render(P.items)
if opt("align", 1):
    import subprocess, re as _re
    open("_al.s", "w").write('.amdgcn_target "amdgcn-amd-amdhsa--gfx950"\n.text\n' + body)
    subprocess.run(["clang", "-x", "assembler", "-target", "amdgcn-amd-amdhsa", "-mcpu=gfx950", "-c", "_al.s", "-o", "_al.o"], check=True)
    dis = subprocess.run(["llvm-objdump", "-d", "--mcpu=gfx950", "_al.o"], capture_output=True, text=True).stdout
    sizes = [4 * len(m.group(1).split()) for m in _re.finditer(r"// [0-9A-F]{12}: ((?:[0-9A-F]{8} ?)+)", dis)]
    real = [i for i in items if i.cls not in ('label', 'dir')]
    assert len(sizes) == len(real), (len(sizes), len(real))
    sz = {id(i): n for i, n in zip(real, sizes)}
    new = []; off = 0; nal = 0; MINRUN = opt("minrun", 6)
    for k, it in enumerate(items):
        if id(it) in sz and sz[id(it)] == 8 and off % 8 == 4 and not it.uncounted:
            run = 0
            for j in items[k:k + MINRUN + 4]:
                if id(j) not in sz: continue
                if sz[id(j)] != 8 or j.cls == 'mfma': break
                run += 1
            if run >= MINRUN:
                p = new[-1] if new else None
                if p is not None and p.cls == 'valu' and sz.get(id(p)) == 4 and not p.op.startswith(('v_permlane', 'v_dot2c', 'v_readfirst', 'v_accvgpr', 'v_cmp', 'v_cndmask')) and not p.op.endswith('_e64'):
                    p.text = p.text.replace(p.op, p.op + "_e64", 1)
                else: new.append(Ins("s_nop 0"))
                off += 4; nal += 1
        new.append(it); off += sz.get(id(it), 0)
    items = new
    body = '\n'.join(('' if i.cls == 'label' else '  ') + i.text for i in items) + '\n'
    print("alignment fixes:", nal, "code bytes", off)
hdr = open("cdna_kernels/" + NAME + ".s.ref").read().split("; Override launch")[0]
out = hdr + f"""; @launch grid=(256,1,1) block=(256,1,1) lds={LDS_SIZE}
.amdgcn_target "amdgcn-amd-amdhsa--gfx950"
.text
.globl {NAME}_kernel
.p2align 8
.type {NAME}_kernel,@function
{NAME}_kernel:
{body}.fill 2048, 4, 0xbf810000
.section .rodata,"a"
.p2align 6
.amdhsa_kernel {NAME}_kernel
  .amdhsa_next_free_vgpr 512
  .amdhsa_next_free_sgpr 102
  .amdhsa_accum_offset 256
  .amdhsa_group_segment_fixed_size 0
  .amdhsa_kernarg_size 80
  .amdhsa_user_sgpr_count 2
  .amdhsa_user_sgpr_kernarg_segment_ptr 1
  .amdhsa_system_sgpr_workgroup_id_x 1
.end_amdhsa_kernel
"""
open(sys.argv[1], "w").write(out)
n = sum(1 for i in items if i.cls not in ('label', 'dir'))
nu_ = sum(1 for i in items if i.cls not in ('label', 'dir') and i.uncounted)
print("instructions:", n, "(slow path", nu_, ") nops:", sum(1 for i in items if i.op == 's_nop'), "waits:", sum(1 for i in items if i.op == 's_waitcnt'), "stamps", nstamp[0])
```

```python
import sys, struct
from asmlib import *

NAME = "sequential_preLN__linear_kernel_hedgehog__dense_activation_silu__prompt"
DIAG = int(sys.argv[2]) if len(sys.argv) > 2 else 0
OPT = dict(a.split('=') for a in sys.argv[3:])
def opt(k, d): return int(OPT[k], 0) if k in OPT else d

WS_PART = 0x40000
WS_O    = 0x240000
WS_H    = 0x440000
WS_H1   = 0x680000
WS_DIAG = 0xE80000
WS_FLG  = 0xF00000
WS_SIZE = 0xF80000
XW = 28672
L_WV, L_WQ, L_WK, L_WO = 0, 28672, 57344, 86016
L_IMG = L_WK
L_KVX = 143360
L_XCH = 147456
L_SCR = 114688
L_AUG = 161792
LDS_SIZE = 163840
sW, sT, sH, sT2, sR = 3, 4, 5, 6, 7
X, WQKV, WPHI, WO, W1, W2, OUT, WS = [f"s[{i}:{i+3}]" for i in range(8, 40, 4)]
sKX, sKW = 40, 47
sHQ, sHIM = 54, 55
sRET = "s[56:57]"
sSPIN, sP, sU, sC, sMASK, sQ = 58, 59, 60, 61, 62, 63
sHI = "s[64:65]"
sLOG = "s[66:67]"
sONES, sTILE = 68, 69
sA, sB, sCt, sD = 70, 71, 72, 73
sRact, sXO = 74, 75
sWB, sWQ = 76, 77
sLAST, sFLAG, sWM, sPST, sPCK, sOST, sXRB, sOUT = 80, 81, 82, 83, 84, 85, 86, 87
sSTAMP = 88

def v(a, n=1): return f"v{a}" if n == 1 else f"v[{a}:{a+n-1}]"
def a_(a, n=1): return f"a{a}" if n == 1 else f"a[{a}:{a+n-1}]"
def fhex(x): return hex(struct.unpack('<I', struct.pack('<f', x))[0])
def flat(l): return sum(l, [])
P = Prog(); I = P.I
TAIL = Prog()
nstamp = [0]
SEL = OPT.get("st", "m").split(",")
PICK = [int(x) for x in OPT["pick"].split(",")] if "pick" in OPT else None
allst = [0]
def stampi(name, grp="m"):
    idx = allst[0]; allst[0] += 1
    if opt("jit", 0) and idx in (3, 7, 9, 11, 13, 17, 19, 21, 25, 26, 27, 28, 29):
        return mk(f"""s_memtime s[88:89]
s_waitcnt lgkmcnt(0)
s_mul_i32 s88, s88, 0x9E3779B1
s_lshr_b32 s88, s88, {opt("jit", 0)}
L_jit{idx}:
s_sleep 8
s_sub_u32 s88, s88, 1
s_cmp_gt_i32 s88, 0
s_cbranch_scc1 L_jit{idx}""")
    if not DIAG: return []
    if PICK is not None:
        if name != "start" and idx not in PICK:
            print(f"   - {idx}: {name}"); return []
    elif name != "start" and not (set(grp) & set(SEL)): return []
    k = nstamp[0]; nstamp[0] += 1
    assert k < 7
    print(f"stamp {k}: [{idx}] {name}")
    op = "s_memtime" if DIAG == 2 else "s_memrealtime"
    return mk(f"{op} s[{sSTAMP+2*k}:{sSTAMP+2*k+1}]")
def stamp(name, grp="m"): P.add(stampi(name, grp))
X3 = "bitop3:0x96"

def chk_code(regs, masked):
    r = list(regs)
    if masked: return f"v_bitop3_b32 v10, v{r[0]}, v{r[1]}, s{sMASK} bitop3:0x28\nv_cmp_ne_u32 vcc, v10, v6"
    if len(r) == 1: return f"v_cmp_ne_u32 vcc, v{r[0]}, v5"
    if len(r) == 2: t = f"v_xor_b32 v10, v{r[0]}, v{r[1]}"
    else:
        t = f"v_bitop3_b32 v10, v{r[0]}, v{r[1]}, v{r[2]} {X3}"
        if len(r) == 4: t += f"\nv_xor_b32 v10, v10, v{r[3]}"
    return t + "\nv_cmp_ne_u16 vcc, v10, v5"

sFL, sDM = 56, 57
GUARD = f"s_add_u32 s{sSPIN}, s{sSPIN}, 1\ns_cmp_gt_u32 s{sSPIN}, 0x40000\ns_cbranch_scc1 L_end\ns_waitcnt vmcnt(0)"
class Fetch:
    def __init__(self, name, pieces, masked=False, nre=1):
        self.name, self.pieces, self.masked, self.nre = name, pieces, masked, nre
    def loadc(self, i):
        it = flat([mk(c.replace(f"s{sCt}", f"s{sFL}")) for c in self.pieces[i][0]])
        out = []; cur = []
        for x in it:
            cur.append(x)
            if x.cls == 'vmem': out.append(cur); cur = []
        return out
    def load(self, i): return flat(self.loadc(i))
    def stub(self, i, last):
        n = self.name
        wgt = {"fo": 0x100, "fh": 0x10000, "f4": 0x1000000}.get(n, 1)
        rel = (f"s_add_u32 s80, s80, {wgt}\n" if DIAG else "") + "\n".join(c for j in range(i, min(last, i + self.nre - 1) + 1) for c in self.pieces[j][0])
        if opt("ool", 15) & {"fo": 2, "fh": 4, "f4": 8}[n]:
            TAIL.I(f"L_{n}_r{i}:\n" + rel + "\n" + GUARD + "\n" + chk_code(self.pieces[i][1], self.masked) + f"\ns_cbranch_vccnz L_{n}_r{i}\ns_branch L_{n}_ok{i}", unc=True)
            return mk(f"s_cbranch_vccnz L_{n}_r{i}\nL_{n}_ok{i}:")
        return mk(f"s_cbranch_vccz L_{n}_ok{i}\nL_{n}_r{i}:") + \
               mk(rel + "\n" + GUARD + "\n" + chk_code(self.pieces[i][1], self.masked) + f"\ns_cbranch_vccnz L_{n}_r{i}", unc=True) + mk(f"L_{n}_ok{i}:")
    def checkc(self, i, last):
        return [[x] for x in mk(chk_code(self.pieces[i][1], self.masked))] + [self.stub(i, last)]
    def check(self, i, last): return flat(self.checkc(i, last))

sFS, sFP = 80, 81
vL512, vPO, vPF = 0, 142, 143
def flag_store(nl): return mk(f"s_mov_b64 exec, {(1 << nl) - 1}\nbuffer_store_dword v5, v{vL512}, {WS}, s{sFS} offen sc1\ns_mov_b64 exec, -1")
def gate(name, vo, vf): return Fetch(name, [([f"buffer_load_dword v{vf}, v{vo}, {WS}, s{sFP} offen sc1"], [vf])])
GATE = opt("gate", 0)

def cost(it):
    if isinstance(it, WaitTag): return 4
    if it.cls in ('label', 'dir') or it.uncounted: return 0
    if it.op.startswith(TRANS) or 'permlane' in it.op: return 8
    if it.op.startswith('ds_write_b128'): return 28
    if it.cls == 'mfma': return 8
    return 4.5
class Sched:
    def __init__(self, groups):
        self.groups = groups; self.gap = [[] for _ in groups]; self.seq = 0
    def at(self, g, items, frac=0.5):
        self.seq += 1; self.gap[g].append((frac, self.seq, list(items)))
    def spread(self, chunks, a, b):
        chunks = [c if isinstance(c, list) else [c] for c in chunks]
        tot = sum(cost(i) for c in chunks for i in c) or 1; acc = 0
        for c in chunks:
            pos = a + (b - a) * acc / tot
            self.at(int(pos), c, pos - int(pos))
            acc += sum(cost(i) for i in c)
    def emit(self):
        out = []
        for g, gp in zip(self.groups, self.gap):
            out += g
            for _, _, c in sorted(gp, key=lambda x: (x[0], x[1])): out += c
        return out
def sprinkle(items, groups, start, step):
    out = []; groups = list(groups); nxt = start
    for i, it in enumerate(items):
        if groups and i == nxt: out += groups.pop(0); nxt += step
        out.append(it)
    for g in groups: out += g
    return out

def softmax(p, t, o, pk):
    q = Prog(); J = q.I
    m, n = t + 14, t + 15; r0, r1 = t + 16, t + 17
    J(f"v_max3_f32 v{m}, v{p}, v{p+1}, v{p+2}\nv_max3_f32 v{n}, -v{p}, -v{p+1}, -v{p+2}")
    for k in range(3, 13, 2):
        J(f"v_max3_f32 v{m}, v{m}, v{p+k}, v{p+k+1}\nv_max3_f32 v{n}, v{n}, -v{p+k}, -v{p+k+1}")
    J(f"""v_max_f32 v{m}, v{m}, v{p+13}
v_max_f32 v{n}, v{n}, -v{p+13}
v_permlane32_swap_b32 v{m}, v{n}
v_max_f32 v{m}, v{m}, v{n}
v_mul_f32 v{m}, v253, v{m}
v_mov_b32 v{n}, v{m}
v_permlane32_swap_b32 v{m}, v{n}""")
    if pk:
        for k in range(0, 14, 2):
            J(f"v_pk_fma_f32 {v(t+k,2)}, {v(p+k,2)}, v[252:253], {v(m,2)} op_sel_hi:[1,0,0]")
            J(f"v_pk_fma_f32 {v(p+k,2)}, {v(p+k,2)}, v[252:253], {v(m,2)} op_sel:[0,1,1] op_sel_hi:[1,1,1]")
    if pk == 2:
        for k in range(14):
            J(f"v_exp_f32 v{t+k}, v{t+k}\nv_exp_f32 v{p+k}, v{p+k}")
            if k >= 2:
                a0 = f"v{t}" if k == 2 else f"v{r0}"; a1 = f"v{p}" if k == 2 else f"v{r1}"
                J(f"v_add_f32 v{r0}, {a0}, v{t+k-1}\nv_add_f32 v{r1}, {a1}, v{p+k-1}")
        J(f"v_add_f32 v{m}, v{r0}, v{t+13}\nv_add_f32 v{n}, v{r1}, v{p+13}")
    elif pk:
        for k in range(14): J(f"v_exp_f32 v{t+k}, v{t+k}")
        for k in range(14): J(f"v_exp_f32 v{p+k}, v{p+k}")
        J(f"v_pk_add_f32 {v(m,2)}, {v(t,2)}, {v(t+2,2)}\nv_pk_add_f32 {v(r0,2)}, {v(p,2)}, {v(p+2,2)}")
        for k in range(4, 14, 2):
            J(f"v_pk_add_f32 {v(m,2)}, {v(m,2)}, {v(t+k,2)}\nv_pk_add_f32 {v(r0,2)}, {v(r0,2)}, {v(p+k,2)}")
        J(f"v_add_f32 v{m}, v{m}, v{n}\nv_add_f32 v{n}, v{r0}, v{r1}")
    else:
        for k in range(14):
            J(f"v_fma_f32 v{t+k}, v{p+k}, v252, v{m}\nv_fma_f32 v{p+k}, v{p+k}, v253, v{n}\nv_exp_f32 v{t+k}, v{t+k}\nv_exp_f32 v{p+k}, v{p+k}")
            if k >= 2:
                a0 = f"v{t}" if k == 2 else f"v{r0}"; a1 = f"v{p}" if k == 2 else f"v{r1}"
                J(f"v_add_f32 v{r0}, {a0}, v{t+k-1}\nv_add_f32 v{r1}, {a1}, v{p+k-1}")
        J(f"v_add_f32 v{m}, v{r0}, v{t+13}\nv_add_f32 v{n}, v{r1}, v{p+13}")
    J(f"""v_permlane32_swap_b32 v{m}, v{n}
v_add_f32 v{m}, v{m}, v{n}
v_rcp_f32 v{m}, v{m}
v_mov_b32 v{n}, v{m}
v_permlane32_swap_b32 v{m}, v{n}""")
    if pk == 1:
        for k in range(0, 14, 2):
            J(f"v_pk_mul_f32 {v(t+k,2)}, {v(t+k,2)}, {v(m,2)} op_sel_hi:[1,0]")
            J(f"v_pk_mul_f32 {v(p+k,2)}, {v(p+k,2)}, {v(m,2)} op_sel:[0,1] op_sel_hi:[1,1]")
    else:
        for k in range(14): J(f"v_mul_f32 v{t+k}, v{t+k}, v{m}\nv_mul_f32 v{p+k}, v{p+k}, v{n}")
    for k in range(7): J(f"v_cvt_pk_bf16_f32 v{o+k}, v{t+2*k}, v{t+2*k+1}")
    for k in range(7): J(f"v_cvt_pk_bf16_f32 v{o+7+k}, v{p+2*k}, v{p+2*k+1}")
    return q.items

def dmag(vaddrs, srd, sbase, sadd, mbase, madd, tag, sreg=None):
    sr = sCt if sreg is None else sreg
    ch = [mk(f"buffer_load_dwordx4 v{a}, {srd}, s{sr} offen offset:{1024*i} lds", tag=tag) for i, a in enumerate(vaddrs)]
    ch[0] = mk(f"s_add_u32 m0, s{mbase}, {madd}\ns_add_u32 s{sr}, s{sbase}, {sadd}") + ch[0]
    return ch

MF = "v_mfma_f32_32x32x16_bf16"
RINGA, NRING = 224, 8
def gemm_lds(steps, ahead=6):
    def rd(i):
        av, o1, o2 = steps[i][:3]; r = RINGA + 4 * (i % NRING)
        return mk(f"ds_read_b64_tr_b16 {a_(r,2)}, v{av} offset:{o1}\nds_read_b64_tr_b16 {a_(r+2,2)}, v{av} offset:{o2}")
    rds = [rd(i) for i in range(len(steps))]
    groups = []
    for i, st in enumerate(steps):
        r = RINGA + 4 * (i % NRING); b, acc, first, swap = st[3]
        A, B = a_(r, 4), v(b, 4)
        if swap: A, B = B, A
        g = mk(f"{MF} {v(acc,16)}, {A}, {B}, {'0' if first else v(acc,16)}")
        if i % 2 == 0 and i + 1 < len(steps):
            r2 = RINGA + 4 * ((i + 1) % NRING); g[0].extra = [('a', r2 + x) for x in range(4)]
        groups.append(g + (rds[i + ahead] if i + ahead < len(steps) else []))
    return flat(rds[:ahead]), groups

FAST = opt('fast', 1)
LO = """s_load_dwordx2 s[12:13], s[0:1], 8
s_load_dwordx2 s[16:17], s[0:1], 16
s_load_dwordx2 s[20:21], s[0:1], 24
s_load_dwordx2 s[24:25], s[0:1], 40
s_load_dwordx2 s[28:29], s[0:1], 48
s_load_dwordx2 s[32:33], s[0:1], 56
s_load_dwordx2 s[36:37], s[0:1], 72
"""
CP = f"""v_lshlrev_b32 v3, 4, v1
v_lshl_add_u32 v3, v2, 6, v3
v_lshl_add_u32 v3, v2, 4, v3
v_add_u32 v3, s{sCt}, v3
v_lshlrev_b32 v3, 7, v3
s_and_b32 s76, s76, 0xffffff00
s_mov_b64 exec, 31
global_load_dword v236, v3, s[76:77]
s_mov_b64 exec, -1
"""
MAP1 = [f"""{"s_lshr_b32 s4, s70, 1" if opt("pair", 1) else "s_and_b32 s4, s70, 3"}
s_lshl_b32 s{sT}, s{sT}, 2
s_and_b32 s{sD}, s{sB}, 3
s_add_u32 s{sT}, s{sT}, s{sD}
{"s_and_b32 s59, s70, 1" if opt("pair", 1) else "s_lshr_b32 s59, s70, 2"}
s_lshl_b32 s{sH}, s{sP}, 3
s_lshr_b32 s{sD}, s{sB}, 2
s_add_u32 s{sH}, s{sH}, s{sD}
s_mul_i32 s{sP}, s{sT}, {opt("rt", 2)}
s_add_u32 s{sD}, s{sD}, s{sP}
s_mul_i32 s{sP}, s{sD}, 37
s_lshr_b32 s{sP}, s{sP}, 8
s_mul_i32 s{sP}, s{sP}, 7
s_sub_u32 s{sD}, s{sD}, s{sP}
s_lshl_b32 s{sKX}, s{sD}, 7
""",
f"""s_lshl_b32 s{sT}, s{sA}, 1
s_lshr_b32 s{sD}, s{sB}, 4
s_add_u32 s{sT}, s{sT}, s{sD}
s_mov_b32 s{sH}, s{sCt}
s_and_b32 s{sD}, s{sH}, 7
s_cmp_eq_u32 s{sD}, 7
s_cselect_b32 s{sD}, 3, s{sD}
s_lshl_b32 s{sKX}, s{sD}, 7
""",
f"""s_mov_b32 s{sT}, s{sCt}
s_lshl_b32 s{sH}, s{sA}, 1
s_lshr_b32 s{sD}, s{sB}, 4
s_add_u32 s{sH}, s{sH}, s{sD}
s_and_b32 s{sD}, s{sH}, 7
s_mul_i32 s{sD}, s{sD}, 3
s_mul_i32 s{sP}, s{sD}, 37
s_lshr_b32 s{sP}, s{sP}, 8
s_mul_i32 s{sP}, s{sP}, 7
s_sub_u32 s{sD}, s{sD}, s{sP}
s_lshl_b32 s{sKX}, s{sD}, 7
"""][opt("map1", 0)]
if DIAG: I("s_memrealtime s[78:79]")
I(f"""s_cmp_ge_u32 s2, 256
s_cbranch_scc1 L_end
s_load_dwordx2 s[8:9], s[0:1], 0
{LO if not FAST else ''}{"s_waitcnt lgkmcnt(0)" + chr(10) + "s_memrealtime s[88:89]" if opt("bare", 0) else ""}
s_getpc_b64 s[76:77]
v_and_b32 v1, 63, v0
v_lshrrev_b32 v2, 6, v0
s_and_b32 s{sA}, s2, 7
v_readfirstlane_b32 s{sW}, v2
s_lshr_b32 s{sB}, s2, 3
s_and_b32 s{sCt}, s{sB}, 15
{CP if FAST < 2 else ''}{MAP1}
s_mov_b32 s10, 1835008
s_mov_b32 s11, 0x20000
v_lshrrev_b32 v2, 3, v1
v_mul_u32_u24 v244, 896, v2
v_lshrrev_b32 v2, 4, v1
v_and_b32 v8, 7, v1
v_xor_b32 v2, v2, v8
v_lshl_add_u32 v244, v2, 4, v244
v_xor_b32 v245, 64, v244
v_add_u32 v245, {7168-1024}, v245
v_add_u32 v246, {2*(7168-1024)}, v244
v_add_u32 v247, {2*(7168-1024)}, v245
s_lshl_b32 s{sQ}, s{sT}, 2
s_add_u32 s{sQ}, s{sQ}, s{sW}
s_mul_i32 s{sQ}, s{sQ}, {32*896}
s_lshr_b32 s{sXO}, s{sW}, 1
s_add_u32 s{sXO}, s{sXO}, s{sW}
s_mul_i32 s{sXO}, s{sXO}, {XW}
s_waitcnt lgkmcnt(0)""")
st0 = stampi("start")
if not opt("bare", 0): P.add(st0)
def xdma(g): return flat(dmag([244, 245, 246, 247], X, sQ, f"s{sKX+g}", sXO, 4096*g, f"x{g}"))
P.add(xdma(0))
if FAST: I(LO)
if FAST == 2: I(f"v_lshrrev_b32 v2, 6, v0\ns_and_b32 s{sCt}, s{sB}, 15\n" + CP)
I(f"""s_mov_b32 s14, {0 if opt('abl',0)&8 else 1204224}
s_mov_b32 s15, 0x20000
v_and_b32 v8, 3, v1""")
def wtouch(mask16, dst):
    m = mask16 | (mask16 << 16)
    return mk(f"s_mov_b32 exec_lo, {hex(m)}\ns_mov_b32 exec_hi, {hex(m)}\nbuffer_load_dword v{dst}, v255, {WQKV}, 0 offen\ns_mov_b64 exec, -1")
def kxs(g): return mk(f"s_add_u32 s{sKX+g}, s{sKX+g-1}, 128\ns_cmp_ge_u32 s{sKX+g}, 896\ns_cselect_b32 s{sD}, 896, 0\ns_sub_u32 s{sKX+g}, s{sKX+g}, s{sD}")
NXE = opt("nxe", 2)
if opt("wtfirst", 1) and opt("wt0", 0): P.add(wtouch(opt("wt0", 0), 237))
for g in range(1, NXE): P.add(kxs(g) + xdma(g))
if not opt("wtfirst", 1) and opt("wt0", 0): P.add(wtouch(opt("wt0", 0), 237))
if FAST: I("s_waitcnt lgkmcnt(0)")
if opt("wsoff", 0): I(f"s_add_u32 s36, s36, {opt('wsoff', 0)}\ns_addc_u32 s37, s37, 0")
I(f"""s_mov_b32 s38, {WS_SIZE}
s_mov_b32 s39, 0x20000
s_mov_b32 s18, 25088
s_mov_b32 s19, 0x20000
s_mov_b32 s22, {0 if opt('abl',0)&4 else 401408}
s_mov_b32 s23, 0x20000
s_xor_b32 s{sHQ}, s{sH}, 1
v_mov_b32 v11, 0
v_lshlrev_b32 v6, 7, v1""")
TM = opt("tm", 0)
sm_ld = mk(f"""s_mov_b64 exec, 1
buffer_load_dword v5, v6, {WS}, 0 offen sc1""")
if opt("two_", 1): sm_ld += mk(f"""s_lshl_b32 s56, s2, 2
s_add_u32 s56, s56, s{sW}
s_lshl_b32 s56, s56, 9
s_mov_b64 exec, 15
buffer_load_dword v238, v6, {WO}, s56 offen""")
if opt("twp", 0): sm_ld += mk(f"""s_and_b32 s{sCt}, s{sH}, 14
s_mul_i32 s{sCt}, s{sCt}, 1568
s_mul_i32 s56, s{sW}, 896
s_add_u32 s{sCt}, s{sCt}, s56
s_mov_b64 exec, 127
buffer_load_dword v239, v6, {WPHI}, s{sCt} offen""")
sm_ld += mk("s_mov_b64 exec, -1")
if TM == 0: P.add(sm_ld)
for g in range(NXE, 7): P.add(kxs(g))
MORE = opt("more", 0)
I(f"s_mov_b32 s{sONES}, 0x3f803f80\ns_mul_i32 s66, s{sH}, 1568\ns_mul_i32 s81, s{sHQ}, 1568")
_m1 = len(P.items)
I(f"""s_lshl_b32 s{sT2}, s{sA}, 1
s_lshr_b32 s{sD}, s{sB}, 4
s_add_u32 s{sT2}, s{sT2}, s{sD}
s_and_b32 s{sRact}, s{sB}, 15
s_min_u32 s{sR}, s{sRact}, 13
s_mov_b32 s26, {0 if opt('abl',0)&1 else 1605632}
s_mov_b32 s27, 0x20000
s_mov_b32 s30, {0 if opt('abl',0)&2 else 1605632}
s_mov_b32 s31, 0x20000
s_mov_b32 s34, 1835008
s_mov_b32 s35, 0x20000
s_mov_b32 s64, 0
s_mov_b32 s65, -1
s_mov_b32 s{sMASK}, 0xbfffbfff
s_mov_b32 s{sHIM}, 0xffff0000
s_mov_b32 s{sSPIN}, 0
s_mov_b32 s80, 0
s_cmp_ge_u32 s{sR}, 7
s_cselect_b32 s{sU}, 1, 0
s_mul_i32 s{sA}, s{sU}, 7
s_sub_u32 s{sC}, s{sR}, s{sA}""")
sT3 = 67
if opt("map3", 1):
    I(f"""s_and_b32 s{sA}, s{sT2}, 12
s_and_b32 s{sD}, s{sT2}, 1
s_lshl_b32 s{sD}, s{sD}, 1
s_add_u32 s{sA}, s{sA}, s{sD}
s_add_u32 s{sT3}, s{sA}, s{sU}
s_bfe_u32 s{sA}, s{sT2}, 0x10001
s_mul_i32 s{sA}, s{sA}, 7
s_add_u32 s{sR}, s{sA}, s{sC}""")
else: I(f"s_mov_b32 s{sT3}, s{sT2}")
for g in range(7): I(f"s_mul_i32 s{sKW+g}, s{sKX+g}, {172032//128}")
I(f"""s_mul_i32 s{sWB}, s{sH}, 56
s_mul_i32 s{sD}, s{sW}, 43008
s_add_u32 s{sWB}, s{sWB}, s{sD}
s_mul_i32 s{sWQ}, s{sHQ}, 56
s_add_u32 s{sWQ}, s{sWQ}, s{sD}
s_add_u32 s{sWB}, s{sWB}, 896
s_lshl_b32 s{sWM}, s{sW}, 10""")
_m0 = _m1 if MORE else len(P.items)
I(f"""s_lshl_b32 s{sA}, s{sH}, 4
s_add_u32 s{sA}, s{sA}, s{sT}
s_mul_i32 s{sA}, s{sA}, 4608
s_add_u32 s{sA}, s{sA}, {WS_PART}
s_add_u32 s{sPST}, s{sA}, s{sWM}
s_lshl_b32 s{sD}, s{sW}, 7
s_add_u32 s{sA}, s{sA}, s{sD}
s_add_u32 s{sPCK}, s{sA}, 4096
s_lshl_b32 s{sA}, s{sT}, 2
s_add_u32 s{sA}, s{sA}, s{sW}
s_lshl_b32 s{sA}, s{sA}, 15
s_lshl_b32 s{sB}, s{sHQ}, 11
s_add_u32 s{sA}, s{sA}, s{sB}
s_add_u32 s{sOST}, s{sA}, {WS_O}
s_lshl_b32 s{sA}, s{sT2}, 2
s_lshl_b32 s{sB}, s{sU}, 1
s_add_u32 s{sA}, s{sA}, s{sB}
s_and_b32 s{sB}, s{sW}, 1
s_add_u32 s{sTILE}, s{sA}, s{sB}
s_mul_i32 s{sA}, s{sA}, {32*896}
s_lshl_b32 s{sB}, s{sC}, 7
s_add_u32 s{sA}, s{sA}, s{sB}
s_mul_i32 s{sD}, s{sW}, {16*896}
s_add_u32 s{sXRB}, s{sA}, s{sD}
s_mul_i32 s{sA}, s{sTILE}, {32*896}
s_add_u32 s{sA}, s{sA}, s{sB}
s_lshr_b32 s{sB}, s{sW}, 1
s_lshl_b32 s{sB}, s{sB}, 6
s_add_u32 s{sOUT}, s{sA}, s{sB}
s_mul_i32 s{sP}, s{sHQ}, {16*4608}
s_add_u32 s{sP}, s{sP}, {WS_PART}""")
deferred = P.items[_m0:]; del P.items[_m0:]
WPK, WPQ, WPT = 192, 200, 208
vWPA, vWPB, vKVX, vIMW, vKA, vKB, vFPD, vFPC, vWO0, vWO1, vXRD0, vXRD1, vXRR, vWOR = range(128, 142)
I(f"""v_lshrrev_b32 v3, 5, v1
v_bfe_u32 v11, v1, 3, 2
v_lshl_add_u32 v11, v11, 2, v8
v_bfe_u32 v12, v1, 2, 1
v_mul_u32_u24 v12, 14, v12
v_min_u32 v13, 13, v11
v_add_u32 v13, v13, v12
v_lshlrev_b32 v13, 1, v13
v_mul_u32_u24 v14, 224, v3
v_add_u32 v{vWPA}, v13, v14
v_lshl_add_u32 v{vWPB}, v3, 20, v{vWPA}
v_and_b32 v9, 31, v1
v_lshlrev_b32 v240, 7, v9
v_bfe_u32 v10, v1, 1, 3
v_xor_b32 v10, v10, v3
v_lshl_add_u32 v240, v10, 4, v240
v_add_u32 v240, s{sXO}, v240
v_xor_b32 v241, 32, v240
v_xor_b32 v242, 64, v240
v_xor_b32 v243, 96, v240
v_mov_b32 v250, 0
v_mov_b32 v251, 0""")
_m2 = len(P.items)
I(f"""v_lshlrev_b32 v2, 4, v1
v_lshlrev_b32 v4, 2, v1
v_add_u32 v12, v12, v11
v_cmp_gt_u32 vcc, 14, v11
v_lshrrev_b32 v7, 2, v1
v_mul_u32_u24 v7, 2688, v7
v_cndmask_b32 v12, 28, v12, vcc
v_and_b32 v13, 15, v12
v_lshlrev_b32 v13, 4, v13
v_lshrrev_b32 v12, 4, v12
v_lshl_add_u32 v13, v12, 3, v13
v_lshl_add_u32 v13, v3, 8, v13
v_add_u32 v{vKVX}, {L_KVX}, v13
v_lshlrev_b32 v11, 4, v8
v_min_u32 v11, 40, v11
v_add_u32 v7, v7, v11""")
_m0 = _m2 if MORE else len(P.items)
I(f"""s_lshl_b32 s{sA}, s{sW}, 5
v_add_u32 v10, s{sA}, v9
v_mul_u32_u24 v10, 208, v10
v_mul_u32_u24 v11, 96, v3
v_add_u32 v{vIMW}, v10, v11
v_lshrrev_b32 v10, 4, v1
v_bfe_u32 v15, v1, 2, 2
v_lshl_add_u32 v10, v10, 3, v15
v_mul_u32_u24 v10, 208, v10
v_and_b32 v11, 1, v1
v_mul_u32_u24 v11, 96, v11
v_add_u32 v10, v10, v11
v_bfe_u32 v11, v1, 1, 1
v_lshl_add_u32 v10, v11, 3, v10
v_add_u32 v{vKB}, {L_IMG}, v10
s_lshl_b32 s{sA}, s{sW}, 4
v_add_u32 v{vKA}, s{sA}, v{vKB}
v_add_u32 v{vFPD}, s{sWM}, v2
s_lshl_b32 s{sD}, s{sW}, 7
s_add_u32 s{sD}, s{sD}, 4096
v_lshlrev_b32 v0, 1, v1
v_add_u32 v{vFPC}, s{sD}, v0
v_lshrrev_b32 v12, 3, v1
v_mul_u32_u24 v14, 896, v12
v_and_b32 v13, 7, v1
v_xor_b32 v12, v12, v13
v_lshl_add_u32 v{vXRD0}, v12, 4, v14
v_add_u32 v{vXRD1}, {7168-1024}, v{vXRD0}
v_bfe_u32 v12, v1, 4, 1
v_lshlrev_b32 v11, 2, v12
v_xor_b32 v11, v11, v13
v_lshl_add_u32 v{vWO0}, v11, 4, v14
v_add_u32 v{vWO1}, {7168-1024}, v{vWO0}
s_and_b32 s{sA}, s{sW}, 1
s_lshl_b32 s{sA}, s{sA}, 12
s_add_u32 s{sA}, s{sA}, {L_XCH}
v_lshlrev_b32 v10, 7, v9
v_lshl_add_u32 v10, v3, 3, v10
v_add_u32 v10, s{sA}, v10
s_lshr_b32 s{sA}, s{sW}, 1
s_lshl_b32 s{sB}, s{sA}, 2
v_xor_b32 v13, s{sB}, v13
v_lshl_add_u32 v{vXRR}, v13, 4, v10
v_mad_u32_u24 v10, v3, 14, v15
v_lshlrev_b32 v10, 7, v10
v_bfe_u32 v13, v1, 3, 1
v_xor_b32 v13, v13, v3
v_xor_b32 v13, s{sA}, v13
v_lshl_add_u32 v10, v13, 6, v10
v_lshl_add_u32 v10, v12, 5, v10
v_lshl_add_u32 v10, v8, 3, v10
s_mul_i32 s{sA}, s{sA}, {4*28*128}
s_add_u32 s{sA}, s{sA}, {L_WO}
v_add_u32 v{vWOR}, s{sA}, v10
v_lshl_add_u32 v11, v3, 3, v15
v_lshlrev_b32 v11, 6, v11
v_lshl_add_u32 v12, v12, 2, v8
v_cmp_lt_u32 vcc, 5, v12
v_xor_b32 v13, 1, v12
v_cndmask_b32 v12, v12, v13, vcc
v_lshl_add_u32 v11, v12, 3, v11
v_add_u32 v13, {L_WK}, v11""")
I(f"""v_bfe_u32 v10, v1, 2, 1
v_bfe_u32 v14, v1, 4, 1
v_lshl_add_u32 v10, v14, 1, v10
v_cmp_eq_u32 vcc, v10, v3
v_and_b32 v10, 1, v1
v_lshlrev_b32 v10, 4, v10
v_mov_b32 v14, 0x3f80
v_lshlrev_b32 v10, v10, v14
v_cndmask_b32 v10, 0, v10, vcc
v_bfe_u32 v14, v1, 3, 1
v_bfe_u32 v15, v1, 1, 1
v_lshl_add_u32 v14, v14, 1, v15""")
for q in range(4): I(f"v_cmp_eq_u32 vcc, {q}, v14\nv_cndmask_b32 v15, 0, v10, vcc\nv_accvgpr_write_b32 a{220+q}, v15")
I("v_add_u32 v9, 896, v7")
deferred += P.items[_m0:]; del P.items[_m0:]
RELOC = opt("reloc", 0)
if RELOC:
    deferred = mk(f"""v_bfe_u32 v15, v1, 2, 2
v_bfe_u32 v12, v1, 4, 1
v_lshl_add_u32 v11, v3, 3, v15
v_lshlrev_b32 v11, 6, v11
v_lshl_add_u32 v12, v12, 2, v8
v_cmp_lt_u32 vcc, 5, v12
v_xor_b32 v13, 1, v12
v_add_u32 v9, 896, v7
v_lshlrev_b32 v0, 1, v1
v_cndmask_b32 v12, v12, v13, vcc
v_lshl_add_u32 v11, v12, 3, v11
v_add_u32 v13, {L_WK}, v11""")
    snA = mk(f"""s_lshl_b32 s{sA}, s{sH}, 4
s_add_u32 s{sA}, s{sA}, s{sT}
s_mul_i32 s{sA}, s{sA}, 4608
s_add_u32 s{sA}, s{sA}, {WS_PART}
s_add_u32 s{sPST}, s{sA}, s{sWM}
s_lshl_b32 s{sD}, s{sW}, 7
s_add_u32 s{sA}, s{sA}, s{sD}
s_add_u32 s{sPCK}, s{sA}, 4096
s_mul_i32 s{sP}, s{sHQ}, {16*4608}
s_add_u32 s{sP}, s{sP}, {WS_PART}""")
    snB = mk(f"""s_lshl_b32 s{sA}, s{sT2}, 2
s_lshl_b32 s{sB}, s{sU}, 1
s_add_u32 s{sA}, s{sA}, s{sB}
s_and_b32 s{sB}, s{sW}, 1
s_add_u32 s{sTILE}, s{sA}, s{sB}
s_mul_i32 s{sA}, s{sA}, {32*896}
s_lshl_b32 s{sB}, s{sC}, 7
s_add_u32 s{sA}, s{sA}, s{sB}
s_mul_i32 s{sD}, s{sW}, {16*896}
s_add_u32 s{sXRB}, s{sA}, s{sD}""")
    snC = mk(f"""v_bfe_u32 v10, v1, 2, 1
v_bfe_u32 v9, v1, 4, 1
v_lshl_add_u32 v10, v9, 1, v10
v_cmp_eq_u32 vcc, v10, v3
v_and_b32 v10, 1, v1
v_lshlrev_b32 v10, 4, v10
v_mov_b32 v9, 0x3f80
v_lshlrev_b32 v10, v10, v9
v_cndmask_b32 v10, 0, v10, vcc
v_bfe_u32 v9, v1, 3, 1
v_bfe_u32 v143, v1, 1, 1
v_lshl_add_u32 v9, v9, 1, v143""")
    for q in range(4): snC += mk(f"v_cmp_eq_u32 s[{40+2*(q&1)+6}:{41+2*(q&1)+6}], {q}, v9") if False else []
    snC2 = flat([mk(f"v_cmp_eq_u32 vcc, {q}, v9\nv_cndmask_b32 v143, 0, v10, vcc\nv_accvgpr_write_b32 a{220+q}, v143") for q in range(4)])
    snD = mk(f"""s_lshl_b32 s{sA}, s{sT}, 2
s_add_u32 s{sA}, s{sA}, s{sW}
s_lshl_b32 s{sA}, s{sA}, 15
s_lshl_b32 s{sB}, s{sHQ}, 11
s_add_u32 s{sA}, s{sA}, s{sB}
s_add_u32 s{sOST}, s{sA}, {WS_O}
s_mul_i32 s{sA}, s{sTILE}, {32*896}
s_lshl_b32 s{sB}, s{sC}, 7
s_add_u32 s{sA}, s{sA}, s{sB}
s_lshr_b32 s{sB}, s{sW}, 1
s_lshl_b32 s{sB}, s{sB}, 6
s_add_u32 s{sOUT}, s{sA}, s{sB}""")
    snE = mk(f"""v_add_u32 v{vFPD}, s{sWM}, v2
s_lshl_b32 s{sD}, s{sW}, 7
s_add_u32 s{sD}, s{sD}, 4096
v_add_u32 v{vFPC}, s{sD}, v0
v_lshrrev_b32 v12, 3, v1
v_mul_u32_u24 v14, 896, v12
v_and_b32 v13, 7, v1
v_xor_b32 v12, v12, v13
v_lshl_add_u32 v{vXRD0}, v12, 4, v14
v_add_u32 v{vXRD1}, {7168-1024}, v{vXRD0}
v_bfe_u32 v12, v1, 4, 1
v_lshlrev_b32 v12, 2, v12
v_xor_b32 v12, v12, v13
v_lshl_add_u32 v{vWO0}, v12, 4, v14
v_add_u32 v{vWO1}, {7168-1024}, v{vWO0}
v_add_u32 v128, {2*(7168-1024)}, v{vWO0}
v_add_u32 v129, {3*(7168-1024)}, v{vWO0}""")
    snF = mk(f"""s_and_b32 s{sA}, s{sW}, 1
s_lshl_b32 s{sA}, s{sA}, 12
s_add_u32 s{sA}, s{sA}, {L_XCH}
v_and_b32 v9, 31, v1
v_lshlrev_b32 v10, 7, v9
v_lshl_add_u32 v10, v3, 3, v10
v_add_u32 v10, s{sA}, v10
s_lshr_b32 s{sA}, s{sW}, 1
s_lshl_b32 s{sB}, s{sA}, 2
v_and_b32 v9, 7, v1
v_xor_b32 v9, s{sB}, v9
v_lshl_add_u32 v{vXRR}, v9, 4, v10
v_bfe_u32 v9, v1, 2, 2
v_mad_u32_u24 v10, v3, 14, v9
v_lshlrev_b32 v10, 7, v10
v_bfe_u32 v9, v1, 3, 1
v_xor_b32 v9, v9, v3
v_xor_b32 v9, s{sA}, v9
v_lshl_add_u32 v10, v9, 6, v10
v_bfe_u32 v9, v1, 4, 1
v_lshl_add_u32 v10, v9, 5, v10
v_lshl_add_u32 v10, v8, 3, v10
s_mul_i32 s{sA}, s{sA}, {4*28*128}
s_add_u32 s{sA}, s{sA}, {L_WO}
v_add_u32 v{vWOR}, s{sA}, v10""")
    snG = mk(f"""v_and_b32 v10, 31, v1
s_lshl_b32 s{sA}, s{sW}, 5
v_add_u32 v10, s{sA}, v10
v_mul_u32_u24 v10, 208, v10
v_mul_u32_u24 v12, 96, v3
v_add_u32 v{vIMW}, v10, v12
v_lshrrev_b32 v10, 4, v1
v_lshl_add_u32 v10, v10, 3, v15
v_mul_u32_u24 v10, 208, v10
v_and_b32 v12, 1, v1
v_mul_u32_u24 v12, 96, v12
v_add_u32 v10, v10, v12
v_bfe_u32 v12, v1, 1, 1
v_lshl_add_u32 v10, v12, 3, v10
v_add_u32 v{vKB}, {L_IMG}, v10
s_lshl_b32 s{sA}, s{sW}, 4
v_add_u32 v{vKA}, s{sA}, v{vKB}""")
    if opt("gx", 1): deferred += snG; snG = []
    if opt("cx", 0): deferred += snC + snC2 + mk("v_add_u32 v9, 896, v7"); snC = []; snC2 = []
else: snA = snB = snC = snC2 = snD = snE = snF = snG = []
NDEF0 = opt("ndef0", 0)
P.add(deferred[:NDEF0]); deferred = deferred[NDEF0:]
L2N = 0
if L2N:
    I(f"""s_mov_b32 s{sCt}, 0x60504020
s_cmp_ge_u32 s{sH}, 8
s_cselect_b32 s{sCt}, 0x53020100, s{sCt}
s_and_b32 s{sD}, s{sH}, 7
s_lshl_b32 s{sD}, s{sD}, 2
s_lshr_b32 s{sCt}, s{sCt}, s{sD}
s_and_b32 s{sCt}, s{sCt}, 15
s_and_b32 s{sD}, s{sT}, 3
s_mul_i32 s{sD}, s{sD}, 7
s_add_u32 s{sCt}, s{sCt}, s{sD}
s_lshl_b32 s{sCt}, s{sCt}, 2
s_add_u32 s{sCt}, s{sCt}, s{sW}
s_mul_i32 s66, s{sCt}, 14336
s_add_u32 s81, s66, 57344
s_lshl_b32 s{sD}, s{sH}, 1
s_lshr_b32 s{sD}, 0xa111444a, s{sD}
s_and_b32 s{sD}, s{sD}, 3
s_cmp_ge_u32 s{sD}, 1
s_cselect_b32 s66, s66, 0x10000000
s_cmp_ge_u32 s{sD}, 2
s_cselect_b32 s81, s81, 0x10000000
v_add_u32 v143, 7168, v6""")
def l2n(k): return mk(f"s_mov_b32 exec_hi, 0xffffff\nbuffer_load_dword v{142}, v{6 if k % 2 == 0 else 143}, {W1}, s{66 if k < 2 else 81} offen\ns_mov_b32 exec_hi, -1")
stamp("setup done", "p")
def wphi(dst, tmp, so):
    q = []
    for t in range(2):
        for j in range(8):
            d = 16 * t + 8 * (j >> 2) + (j & 3)
            av = vWPB if (t == 1 and j >= 4) else vWPA
            r = (dst if j % 2 == 0 else tmp) + 4 * t + j // 2
            op = "buffer_load_short_d16" if j % 2 == 0 else "buffer_load_short_d16_hi"
            q += mk(f"{op} v{r}, v{av}, {WPHI}, s{so} offen offset:{d*56}")
    return q
def wkdma(g): return flat(dmag([7], WQKV, sWB, f"s{sKW+g}", sWM, L_WK + 4096*g, f"wk{g}"))
def wvdma(g): return flat(dmag([9], WQKV, sWB, f"s{sKW+g}", sWM, L_WV + 4096*g, f"wv{g}"))
def wqdma(g): return flat(dmag([7], WQKV, sWQ, f"s{sKW+g}", sWM, L_WQ + 4096*g, f"wq{g}"))
if opt("fake", 0):
    I(f"""v_mov_b32 v7, v2
v_add_u32 v9, 24576, v2
s_mul_i32 s{sWB}, s{sH}, 73728
s_add_u32 s{sWB}, s{sWB}, s{sWM}
s_mul_i32 s{sWQ}, s{sHQ}, 73728
s_add_u32 s{sWQ}, s{sWQ}, s{sWM}
s_add_u32 s{sWQ}, s{sWQ}, 45056""")
    for g in range(7): I(f"s_lshl_b32 s{sKW+g}, s{sKX+g}, 5")
XF = 16
NX0 = opt("nx0", 3)
if opt("wt1", 0): P.add(wtouch(opt("wt1", 0), 249))
WPP = opt("wpp", 1)
if WPP == 1: P.add(wphi(WPK, WPT, 66) + wphi(WPQ, WPT+8, 81))
for g in range(NXE, NX0): P.add(xdma(g))
if WPP == 2: P.add(wphi(WPK, WPT, 66) + wphi(WPQ, WPT+8, 81))
pend = [xdma(g) for g in range(NX0, 7)]
wkl = [wkdma(g) for g in range(7)]
if TM and TM < NX0: P.add(sm_ld)
elif TM: pend[TM - NX0] = pend[TM - NX0] + sm_ld
if opt("wt2", 0): pend[-1] = pend[-1] + wtouch(opt("wt2", 0), 248)
pend.append(wkl.pop(0) + (wphi(WPK, WPT, 66) if not WPP else []))
pend.append(wkl.pop(0) + (wphi(WPQ, WPT+8, 81) if not WPP else []))
while len(pend) < 7: pend.append(wkl.pop(0))
def xrd(g): return flat([mk(f"ds_read_b128 {v(XF+16*g+4*e,4)}, v{240+e} offset:{4096*g}") for e in range(4)])
_n = opt("ndefx", 0)
while 0 < _n < len(deferred) and deferred[_n-1].op.startswith("s_cmp"): _n += 1
P.add(deferred[:_n]); deferred = deferred[_n:]
P.wait("x0"); P.add(xrd(0))
for g in range(7):
    if pend: P.add(pend.pop(0))
    if g + 1 < 7: P.wait(f"x{g+1}"); P.add(xrd(g + 1))
    for i in range(16):
        r = XF + 16*g + i
        I(f"v_dot2c_f32_bf16 v250, s{sONES}, v{r}\nv_dot2c_f32_bf16 v251, v{r}, v{r}")
    nd_ = -(-len(deferred) // max(1, opt("ndi", 4) - g)) if g < opt("ndi", 4) else len(deferred)
    while 0 < nd_ < len(deferred) and deferred[nd_-1].op.startswith("s_cmp"): nd_ += 1
    P.add(deferred[:nd_]); deferred = deferred[nd_:]
    if g == 0: stamp("x0 done", "p")
for x_ in pend: P.add(x_)
if opt("tp", 0) == 2:
    I(f"""s_mul_i32 s{sCt}, s2, {52*128}
s_mul_i32 s{sD}, s{sW}, {13*128}
s_add_u32 s{sCt}, s{sCt}, s{sD}
s_mov_b64 exec, 0x1fff
buffer_load_dword v254, v6, {W2}, s{sCt} offen
buffer_load_dword v255, v6, {W1}, s{sCt} offen
s_mov_b64 exec, -1""")
stamp("x stats done", "mp")
I(f"""v_permlane32_swap_b32 v250, v251
v_readfirstlane_b32 s{sA}, v5
s_nop 0
v_add_f32 v250, v250, v251
v_mul_f32 v250, {fhex(-1/448)}, v250
v_mov_b32 v251, v250
s_or_b32 s{sA}, s{sA}, 1
s_mul_i32 s{sA}, s{sA}, 0x9E3779B5
v_mov_b32 v5, s{sA}
s_mov_b32 s{sA}, 0x3f80
v_permlane32_swap_b32 v250, v251
s_mov_b32 s{sB}, 0x3f800000""")
fin = mk(f"""v_fma_f32 v251, -v250, v250, -v251
v_max_f32 v251, 0, v251
v_add_f32 v251, 0x3727c5ac, v251
v_rsq_f32 v251, v251
s_lshl_b32 s{sQ}, s{sC}, 7
s_mul_i32 s{sD}, s{sW}, {16*896}
v_mul_f32 v252, 0x3fb8aa3b, v251
v_mul_f32 v253, 0xbfb8aa3b, v251
s_add_u32 s{sQ}, s{sQ}, s{sD}
s_lshl_b32 s{sXO}, s{sW}, 11""")
if opt("noid", 1): fin = [mk(f"s_cmp_ge_u32 s{sRact}, 14\ns_cselect_b32 s22, 0, s22")] + fin
ACK = 144; ACV = 160; PK = 176; IMG = 208; TMP = 232
def norm(t):
    q = Prog(); tb = TMP + 8 * (t & 1)
    for i in range(4):
        r = XF + 4 * t + i
        q.I(f"v_dot2_f32_bf16 v{tb+2*i}, v{r}, s{sA}, v250\nv_dot2_f32_bf16 v{tb+2*i+1}, v{r}, s{sB}, v250")
    return q.items
def normc(t):
    tb = TMP + 8 * (t & 1)
    return flat([mk(f"v_cvt_pk_bf16_f32 v{XF+4*t+i}, v{tb+2*i}, v{tb+2*i+1}") for i in range(4)])
def l2t(srd, k, dst):
    return mk(f"""s_lshr_b32 s{sCt}, s2, 3
s_lshl_b32 s{sCt}, s{sCt}, 2
s_add_u32 s{sCt}, s{sCt}, s{sW}
s_mul_i32 s{sCt}, s{sCt}, {98*128}
s_mov_b32 exec_hi, 0x1ffff
s_add_u32 s{sCt}, s{sCt}, {k*49*128}
buffer_load_dword v{dst}, v6, {srd}, s{sCt} offen
s_mov_b32 exec_hi, -1""")
L2A, L2B = opt("l2a", -1), opt("l2b", -1)
touch = mk(f"""s_mul_i32 s{sCt}, s2, {52*128}
s_mul_i32 s56, s{sW}, {13*128}
s_add_u32 s{sCt}, s{sCt}, s56
s_mov_b64 exec, 0x1fff
buffer_load_dword v255, v6, {W1}, s{sCt} offen
buffer_load_dword v254, v6, {W2}, s{sCt} offen
s_mov_b64 exec, -1""")
TP = opt('tp', 0)
ns = norm(0)
for t in range(1, 28): ns += norm(t) + normc(t - 1)
ns += normc(27)
NBAR = opt("nbar", 100)
wvl = [wvdma(k) for k in range(7)]
if opt("loop2", 0):
    I("s_mov_b32 s80, 0\nL_lp2:\ns_mov_b32 s101, s100\ns_memtime s[78:79]\ns_waitcnt lgkmcnt(0)\ns_mov_b32 s99, s78")
    P.add([Ins(x.text) for x in ns])
    I("s_memtime s[78:79]\ns_waitcnt lgkmcnt(0)\ns_sub_u32 s100, s78, s99\ns_add_u32 s100, s100, s88\ns_add_u32 s80, s80, 1\ns_cmp_lt_u32 s80, 2\ns_cbranch_scc1 L_lp2")
    nstamp[0] = 14
P.add(sprinkle(ns[:NBAR], wkl, 0, opt("wkstep", 30)))
if opt("touch", 1) and TP == 1: P.add(touch)
I("s_barrier")
NWV0 = opt("nwv0", 4)
w0_ = [wvl.pop(0) for _ in range(NWV0)]
if L2N == 1: w0_[0] = l2n(0) + w0_[0]; w0_[-1] = w0_[-1] + l2n(2); wvl[-1] = wvl[-1] + l2n(1)
if L2N == 2: wvl[-1] = wvl[-1] + l2n(0) + l2n(2)
P.add(sprinkle(ns[NBAR:], w0_, opt("wv0", 30), opt("wvstep", 50)))
P.wait(*[f"wk{k}" for k in range(7)]); I("s_barrier")
stamp("wk landed", "p")
if opt("zy", 0): I(f"s_sleep {opt('zy', 0)}")
AH = 6
sW1B, sW1M, sW2E, sW2L = 40, 41, 42, 43
set2 = mk(f"""v_lshrrev_b32 v10, 4, v1
v_mul_u32_u24 v12, 3584, v10
v_lshlrev_b32 v10, 2, v10
v_and_b32 v13, 15, v1
v_xor_b32 v10, v10, v13
v_lshl_add_u32 v12, v10, 4, v12
v_add_u32 v13, {4*3584-1024}, v12
v_add_u32 v14, {2*(4*3584-1024)}, v12
v_add_u32 v15, {3*(4*3584-1024)}, v12
s_lshl_b32 s{sW1B}, s{sR}, 8
s_mul_i32 s{sD}, s{sW}, {16*3584}
s_add_u32 s{sW1B}, s{sW1B}, s{sD}
s_lshl_b32 s{sW1M}, s{sW}, 12
s_lshr_b32 s{sA}, s{sW}, 1
s_lshl_b32 s{sA}, s{sA}, 2
s_andn2_b32 s{sB}, 1, s{sW}
s_add_u32 s{sA}, s{sA}, s{sB}
s_lshl_b32 s{sB}, s{sU}, 1
s_add_u32 s44, s{sA}, s{sB}
s_xor_b32 s45, s44, 2
s_lshl_b32 s{sD}, s{sC}, 7
s_mul_i32 s{sW2E}, s44, {32*896}
s_add_u32 s{sW2E}, s{sW2E}, s{sD}
s_mul_i32 s{sW2L}, s45, {32*896}
s_add_u32 s{sW2L}, s{sW2L}, s{sD}
""")
vW2 = [vWO0, vWO1, 128, 129]
sSCR, sBIG = 46, 47
NA = opt("na", 0)
NUR = opt("nur", 2); NT1 = min(NA, opt("nt1", 99))
_u = list(range(14))
def take(n): return [_u.pop(0) for _ in range(min(n, len(_u)))]
UAW = take(NA); UR = take(NUR); UD = take(opt("nud", 2)); UE = take(3); UL = take(opt("nrl", 4)); UP = take(99)
assert all(j >= 7 for j in UL + UP) and all(j >= 4 for j in UE)
RAWS = UAW + UR + UL
def UA(j): return 16*j
def w2slot(j):
    if j in UE: return (sSCR, 4096*UE.index(j), 254)
    if j in UAW + UR + UD: return (sSCR, 4096*(j & 1), 254)
    return (sBIG, 4096*(UL + UP).index(j), 252)
def w2dma(j):
    mb, mo, _ = w2slot(j)
    return dmag(vW2, W2, sW2E if j < 7 else sW2L, (j%7)*256*896, mb, mo, f"w2_{j}", sDM)
def w2raw(j):
    ch = [mk(f"buffer_load_dwordx4 {a_(UA(j)+4*q,4)}, v{vW2[q]}, {W2}, s81 offen offset:{1024*q}") for q in range(4)]
    ch[0] = mk(f"s_add_u32 s81, s{sW2E if j < 7 else sW2L}, {(j%7)*256*896}") + ch[0]
    return ch
def w2rd(j):
    _, mo, av = w2slot(j)
    if j in RAWS: out = [mk(f"ds_write_b128 v{131 if j in UL else 134}, {a_(UA(j)+4*q,4)} offset:{mo+1024*q}") for q in range(4)]
    else: out = [[WaitTag([f"w2_{j}"])]]
    for e in range(2):
        for mu in range(2):
            for u in range(2): out.append(mk(f"ds_read_b64_tr_b16 {a_(UA(j)+8*e+4*mu+2*u,2)}, v{av+mu} offset:{mo+2048*e+1024*u}"))
    return out
raw = flat([w2raw(j) for j in UR])
rawA = flat([w2raw(j) for j in UAW])
if opt("noid", 1): set2 = [mk(f"s_cmp_ge_u32 s{sRact}, 14\ns_cselect_b32 s26, 0, s26")] + set2
if not RELOC: set2 += mk(f"v_add_u32 v128, {2*(7168-1024)}, v{vWO0}\nv_add_u32 v129, {3*(7168-1024)}, v{vWO0}")
set2b = [x for x in set2 if isinstance(x, Ins) and x.cls == 'valu' and x.defs[0][1] < 128]
if opt("trim", 1):
    set2 = [mk(f"""s_cmp_eq_u32 s{sW}, 3
s_cselect_b64 vcc, {sHI}, 0
v_mov_b32 v143, 0x10000000
v_add_u32 v133, s{sWM}, v2
v_cndmask_b32 v142, v5, 0, vcc
v_cndmask_b32 v{vFPD}, v{vFPD}, v143, vcc
v_cndmask_b32 v{vFPC}, v{vFPC}, v143, vcc""")] + set2
set2b = [x for x in set2 if isinstance(x, list)] + set2b
set2a = [x for x in set2 if x not in set2b]
pro, gk = gemm_lds([(13, 1024*t, 1024*t + 256, (XF + 4*t, ACK, t == 0, False)) for t in range(28)], AH)
P.add(pro)
S = Sched(gk)
S.spread(wvl, 0, opt("wve", 16))
NQK = opt("nqk", 2)
S.spread([wqdma(k) for k in range(NQK)], opt("wve", 16), 28)
EARLY = opt("early", 0)
if EARLY:
    P.add(flat([x if isinstance(x, list) else [x] for x in fin + set2a])); fin = []
    wo_l = flat([dmag([vWO0, vWO1], WO, sQ, i*64*896, sXO, L_WO + 8192*i, "wo", sDM) for i in range(7)] + [dmag([vXRD0, vXRD1], X, sXRB, 0, sXO, L_XCH, "wo", sDM)])
    if EARLY == 2:
        S.spread([wo_l[2*i] + wo_l[2*i+1] for i in range(8)], 0, 28)
    else: S.spread([rawA.pop(0) for _ in range(min(len(rawA), opt("ne1", 8)))], 0, 28)
else: fin = fin + set2a + snG
if TP == 3: S.at(opt("tpos", 22), touch)
for k, ps in enumerate((L2A, L2B)):
    if 0 <= ps < 28: S.at(ps, l2t(W1, k, 248 + k))
S.spread(fin + flat([mk(f"v_or_b32 v{WPK+q}, v{WPK+q}, v{WPT+q}\nv_or_b32 v{WPQ+q}, v{WPQ+q}, v{WPT+8+q}") for q in range(8)]), 2, 26)
P.add(S.emit())
def phi_pre(acc, wp):
    q = Prog()
    for i in range(8): q.I(f"v_cvt_pk_bf16_f32 v{acc+i}, v{acc+2*i}, v{acc+2*i+1}")
    q.I(f"{MF} {v(PK,16)}, {v(wp,4)}, {v(acc,4)}, 0\n{MF} {v(PK,16)}, {v(wp+4,4)}, {v(acc+4,4)}, {v(PK,16)}")
    return q.items
stamp("k gemm done", "mp")
wql = [wqdma(k) for k in range(NQK, 7)]
P.add(wql.pop(0))
P.add(snA)
P.add(phi_pre(ACK, WPK))
imw = flat([mk(f"ds_write_b128 v{vIMW}, {v(IMG+4*i,4)} offset:{L_IMG+16*i}") for i in range(3)]) + mk(f"ds_write_b64 v{vIMW}, {v(IMG+12,2)} offset:{L_IMG+48}")
smk = sprinkle(softmax(PK, TMP, IMG, True), [wql.pop(0) for _ in range(min(len(wql), opt("nwq0", 3)))], 10, opt("wqs", 40))
if EARLY: smk = sprinkle(smk, [rawA.pop(0) for _ in range(min(len(rawA), opt("ne2", 8)))], 5, 16)
WEAVE = opt("weave", 1)
pro, gv = gemm_lds([(11, L_WV + 1024*t, L_WV + 1024*t + 256, (XF + 4*t, ACV, t == 0, False)) for t in range(28)], AH)
S = Sched(gv)
if not WEAVE:
    P.add(smk)
    P.wait(*[f"wv{k}" for k in range(7)]); I("s_barrier")
    stamp("softmax k done", "p")
    P.add(pro)
    S.spread(imw, 2, 10)
else:
    smf = softmax(PK, TMP, IMG, 2)
    n0 = next(i for i, x in enumerate(smf) if x.op == "v_exp_f32")
    P.wait(*[f"wv{k}" for k in range(4)]); I("s_barrier")
    P.add(pro)
    P.add(smf[:n0])
    stamp("softmax k done", "p")
    S.spread(smf[n0:] + imw, 0, 28)
    S.at(15 - AH, [WaitTag(["wv4", "wv5", "wv6"])] + mk("s_barrier"), 1.0)
    wql = [wqdma(k) for k in range(NQK + 1, 7)]
wo_l = flat([dmag([vWO0, vWO1], WO, sQ, i*64*896, sXO, L_WO + 8192*i, "wo", sDM) for i in range(7)] + [dmag([vXRD0, vXRD1], X, sXRB, 0, sXO, L_XCH, "wo", sDM)])
if EARLY == 2: wo_l = []
S.spread(wql, 0, opt('wqe', 10))
if EARLY: S.spread([rawA.pop(0) for _ in range(min(len(rawA), opt("ne3", 8)))], 0, 22)
if L2A >= 0 or L2N: touch = [x for x in touch if W1 not in x.text]
if L2N == 1: S.at(opt("l2p", 14), l2n(3))
if L2N == 2: S.at(opt("l2p", 14), l2n(1) + l2n(3))
tlb = []
if opt("tlb", 0) & 1: tlb += mk(f"s_mov_b64 exec, 1\nbuffer_load_dword v248, v6, {OUT}, s{sOUT} offen\ns_mov_b64 exec, -1")
if opt("tlb", 0) & 2: tlb += mk(f"v_lshlrev_b32 v249, 20, v1\ns_mov_b64 exec, 0xffff\nbuffer_load_dword v249, v249, {WS}, 0 offen offset:4092\ns_mov_b64 exec, -1")
if tlb: S.at(opt("tlbp", 13), tlb)
if opt("touch", 1) and TP == 0: S.at(opt("tpos", 11), touch)
for k, ps in enumerate((L2A, L2B)):
    if 200 <= ps < 228: S.at(ps - 200, l2t(W1, k, 248 + k))
S.spread([wo_l.pop(0) for _ in range(2*opt("nwo0", 0))], opt("wos", 17), opt("woe2", 28))
P.add(S.emit())
P.add(snB)
for k in range(0, 16, 2): I(f"v_pk_mul_f32 {v(ACV+k,2)}, {v(ACV+k,2)}, v[250:251] op_sel:[0,1] op_sel_hi:[1,1]")
I(f"v_cndmask_b32 v{ACV+12}, v{ACV+12}, 1.0, {sHI}")
for i in range(8): I(f"v_cvt_pk_bf16_f32 v{IMG+16+i}, v{ACV+2*i}, v{ACV+2*i+1}")
for i in range(4, 6): I(f"ds_write_b128 v{vIMW}, {v(IMG+4*i,4)} offset:{L_IMG+16*i}")
P.wait("wq0", "wq1", "wq2", "wq3")
I("s_waitcnt lgkmcnt(0)\ns_barrier")
stamp("img written", "p")
KA = 144; KBv = 208; KD = 176
for k in range(4):
    for u in range(2):
        I(f"ds_read_b64_tr_b16 {v(KA+4*k+2*u,2)}, v{vKA} offset:{(32*k+4*u)*208}")
    for nu in range(2):
        for u in range(2):
            I(f"ds_read_b64_tr_b16 {v(KBv+8*k+4*nu+2*u,2)}, v{vKB} offset:{(32*k+4*u)*208+64+16*nu}")
P.add(snE)
proq, gq = gemm_lds([(11, L_WQ + 1024*t, L_WQ + 1024*t + 256, (XF + 4*t, ACV, t == 0, False)) for t in range(28)], AH)
for k in range(4):
    for nu in range(2):
        I(f"v_mfma_f32_16x16x32_bf16 {v(KD+4*nu,4)}, {v(KA+4*k,4)}, {v(KBv+8*k+4*nu,4)}, {'0' if k == 0 else v(KD+4*nu,4)}")
P.add(proq[:8])
for i in range(4): I(f"v_cvt_pk_bf16_f32 v{KD+8+i}, v{KD+2*i}, v{KD+2*i+1}")
I(f"buffer_store_dwordx4 {v(KD+8,4)}, v2, {WS}, s{sPST} offen sc1")
I(f"v_xor_b32 v10, v{KD+8}, v5")
I(f"buffer_store_short v10, v0, {WS}, s{sPCK} offen sc1")
if GATE & 1: P.add(flag_store(16))
P.add(proq[8:])
stamp("partial stored", "mp")
S = Sched(gq)
ROTP = opt("rotp", 1)
if ROTP:
    rp = []
    for b in range(4): rp += mk(f"s_lshr_b32 s{50+b}, s{sT}, 2\ns_add_u32 s{50+b}, s{50+b}, {b}\ns_and_b32 s{50+b}, s{50+b}, 3\ns_mul_i32 s{50+b}, s{50+b}, {4*4608}\ns_add_u32 s{50+b}, s{50+b}, s{sP}")
    S.spread(rp, 4, 20)
bgA = wo_l + rawA
nq = min(len(bgA), opt("nq", 16))
S.spread(bgA[:nq], 0, 28)
S.spread(set2b, 2, 18)
G0 = gate("g0", vPO, vPF)
if GATE & 1: S.at(opt("g0", 14), G0.load(0))
S.at(15 - AH, [WaitTag(["wq4", "wq5", "wq6"])] + mk("s_barrier"), 1.0)
P.add(S.emit())
stamp("q gemm done", "p")
G = 16; GC = 80; SA = 96
FP = Fetch("fp", [([f"s_add_u32 s{sCt}, s{50 + (T >> 2) if ROTP else sP}, {4608*(T & 3 if ROTP else T)}\nbuffer_load_dwordx4 {v(G+4*T,4)}, v{vFPD}, {WS}, s{sCt} offen sc1\nbuffer_load_ushort v{GC+T}, v{vFPC}, {WS}, s{sCt} offen sc1"],
                   [G+4*T, GC+T]) for T in range(16)])
NFE = opt("nfe", 4)
for T in range(NFE): P.add(FP.load(T))
P.add(phi_pre(ACV, WPQ))
I("s_barrier")
P.add(snC + snC2)
PQ = 208
smq = softmax(PK, TMP, PQ, True); f0 = opt("fp0", 30)
P.add(sprinkle(smq[:f0], bgA[nq:], 0, opt("as", 8)))
P.add(sprinkle(smq[f0:], [FP.load(T) for T in range(NFE, 16)], 0, opt("fpstep", 6)))
stamp("softmax q done", "p")
w1_l = flat([dmag([12, 13, 14, 15], W1, sW1B, i*64*3584, sW1M, 16384*i, "w1", sDM) for i in range(7)])
def fpb(b):
    t = []
    for k, T in enumerate(range(4*b, 4*b+4)):
        t.append(f"v_bitop3_b32 v{10 if k == 0 else 9}, v{G+4*T}, v{GC+T}, v{142 if opt('trim', 1) else 5} {X3}" + ("" if k == 0 else "\nv_or_b32 v10, v10, v9"))
    return "\n".join(t) + "\nv_cmp_ne_u16 vcc, 0, v10"
RI = TAIL.I if (opt("ool", 15) & 1) else I
if not (opt("ool", 15) & 1): I("s_branch L_fp_go")
RI("L_fp_retry:" + ("\ns_add_u32 s80, s80, 1" if DIAG else ""), unc=True)
for b in range(4):
    RI(fpb(b) + f"\ns_cbranch_vccz L_fp_k{b}\n" + "\n".join(FP.pieces[T][0][0] for T in range(4*b, 4*b+4)) + f"\nL_fp_k{b}:", unc=True)
RI(GUARD, unc=True)
if (opt("ool", 15) & 1): RI("s_branch L_fp_go", unc=True)
I("L_fp_go:")
I(fpb(0) + "\ns_cbranch_vccnz L_fp_retry")
S = Sched([mk(f"{MF} {v(SA,16)}, a[220:223], {v(G+4*T,4)}, {'0' if T == 0 else v(SA,16)}") for T in range(16)])
for b in range(1, 4): S.spread(mk(fpb(b) + "\ns_cbranch_vccnz L_fp_retry"), 4*b - 3, 4*b)
S.spread([w1_l.pop(0) for _ in range(opt("nw1a", 8))], opt("w1as", 2), 16)
P.add(S.emit())
I(f"v_add_u32 v9, {L_KVX}, v{133 if opt('trim', 1) else vFPD}")
P.add(snD)
for i in range(4): I(f"v_cvt_pk_bf16_f32 v{SA+8+i}, v{SA+2*i}, v{SA+2*i+1}")
I(f"ds_write_b128 v9, {v(SA+8,4)}\ns_waitcnt lgkmcnt(0)\ns_barrier")
stamp("kv summed", "mp")
KVA = 32; OD = 48
for q in range(7): I(f"ds_read_b64 {v(KVA+2*q,2)}, v{vKVX} offset:{512*q}")
P.add(snF)
P.add(w1_l.pop(0))
for s in range(3):
    I(f"{MF} {v(OD,16)}, {v(KVA+4*s,4)}, {v(PQ+4*s,4)}, {'0' if s == 0 else v(OD,16)}")
    if s == 1: P.add(w1_l.pop(0))
I(f"v_mfma_f32_32x32x8_bf16 {v(OD,16)}, {v(KVA+12,2)}, {v(PQ+12,2)}, {v(OD,16)}")
I(f"""s_lshl_b32 s{sP}, s{sTILE}, 15
s_lshr_b32 s{sB}, s{sW}, 1
s_lshl_b32 s{sB}, s{sB}, 13
s_add_u32 s{sP}, s{sP}, s{sB}
s_and_b32 s{sA}, s{sH}, 8
s_lshl_b32 s{sB}, s{sA}, 11
s_add_u32 s{sP}, s{sP}, s{sB}
s_add_u32 s{sP}, s{sP}, {WS_O}
s_xor_b32 s50, s{sP}, 16384
s_mul_i32 s{sB}, s{sA}, 3584
v_add_u32 v142, s{sB}, v{vWOR}
s_sub_u32 s{sB}, 28672, s{sB}
v_add_u32 v143, s{sB}, v{vWOR}
v_and_b32 v7, 31, v1
v_mul_u32_u24 v7, 896, v7
v_add_f32 v{OD+14}, 0x358637bd, v{OD+14}
v_rcp_f32 v{OD+14}, v{OD+14}
v_lshl_add_u32 v7, v3, 4, v7""")
for k in range(0, 14, 2): I(f"v_pk_mul_f32 {v(OD+k,2)}, {v(OD+k,2)}, {v(OD+14,2)} op_sel_hi:[1,0]")
for k in range(4): I(f"v_cvt_pk_bf16_f32 v{64+k}, v{OD+2*k}, v{OD+2*k+1}")
I(f"buffer_store_dwordx4 v[64:67], v2, {WS}, s{sOST} offen sc1")
for k in range(4, 7): I(f"v_cvt_pk_bf16_f32 v{64+k}, v{OD+2*k}, v{OD+2*k+1}")
I(f"""v_bitop3_b32 v71, v64, v5, s{sMASK} bitop3:0x28
v_and_b32 v6, s{sMASK}, v5
buffer_store_dwordx4 v[68:71], v2, {WS}, s{sOST} offen offset:1024 sc1""")
if GATE & 2: P.add(flag_store(7))
stamp("o stored", "mo")
P.wait("wo")
I(f"s_cmp_ge_u32 s{sRact}, 14\ns_cbranch_scc1 L_idle\ns_barrier")
wor = []
for s in range(16):
    hh, e = s >> 1, s & 1
    for k, av in (((0, 142), (1, 9)) if hh < 4 else ((0, 143), (1, vWOR))):
        for u in range(2):
            wor += mk(f"ds_read_b64_tr_b16 {a_(128+8*s+4*k+2*u,2)}, v{av} offset:{(28*(hh&3)+8*e+4*u)*128}")
XR = 224
xrr = []
for i in range(4): xrr += mk((f"v_xor_b32 v10, {16*i}, v{vXRR}\n" if i else "") + f"ds_read_b64 {v(XR+2*i,2)}, v{10 if i else vXRR}")
I(f"s_add_u32 s{sA}, s{sW1M}, {L_XCH}\nv_add_u32 v132, s{sA}, v2\nv_xor_b32 v133, 8192, v132\nv_xor_b32 v9, 64, v142\nv_xor_b32 v{vWOR}, 64, v143")
P.add(xrr)
G1 = gate("g1", vPO, vPF)
nb_ = min(opt("nw1b", 16), len(w1_l) - 8)
wor = sprinkle(wor, [w1_l.pop(0) for _ in range(nb_)], 0, opt("w1bs", 4))
OB = 16
FO = Fetch("fo", [([f"s_add_u32 s{sCt}, s{sP if hh < 4 else 50}, {2048*(hh&3)}\nbuffer_load_dwordx4 {v(OB+8*hh,4)}, v2, {WS}, s{sCt} offen sc1\nbuffer_load_dwordx4 {v(OB+8*hh+4,4)}, v2, {WS}, s{sCt} offen offset:1024 sc1"],
                   [OB+8*hh, OB+8*hh+7]) for hh in range(8)], masked=True, nre=opt('reo', 2))
NOE = opt("noe", 4)
FEP = opt("fep", 56)
P.add(sprinkle(wor, flat([FO.loadc(hh) for hh in range(NOE)]), FEP, 3))
stamp("pre o fetch", "o")
AO, AT = 80, 96
set3 = mk(f"""s_mul_i32 s{sSCR}, s{sW}, 12288
s_mul_i32 s{sBIG}, s{sW}, 28672
v_add_u32 v131, s{sBIG}, v2
s_lshl_b32 s{sB}, s{sC}, 1
s_lshr_b32 s{sD}, s{sW}, 1
s_add_u32 s{sB}, s{sB}, s{sD}
s_mul_i32 s{sA}, s{sTILE}, 14
s_add_u32 s{sB}, s{sB}, s{sA}
s_mul_i32 s{sPST}, s{sB}, 2432
s_add_u32 s{sPST}, s{sPST}, {WS_H}
s_lshr_b32 s48, s{sW}, 1
s_nop 0
v_bfe_u32 v9, v1, 2, 2
v_lshl_add_u32 v240, v3, 2, v9
v_lshlrev_b32 v254, 7, v240
v_lshlrev_b32 v240, 8, v240
v_xor_b32 v9, s{sW}, v9
v_lshl_add_u32 v240, v9, 6, v240
v_bfe_u32 v9, v1, 4, 1
v_lshlrev_b32 v9, 5, v9
v_lshl_add_u32 v9, v8, 3, v9
v_add_u32 v240, v240, v9
v_add_u32 v254, v254, v9
v_bfe_u32 v9, v1, 3, 1
v_xor_b32 v9, s48, v9
v_lshl_add_u32 v254, v9, 6, v254
s_add_u32 s{sSCR}, s{sSCR}, {L_SCR}
v_add_u32 v252, s{sBIG}, v254
v_xor_b32 v253, 64, v252
v_add_u32 v254, s{sSCR}, v254
v_add_u32 v134, s{sSCR}, v2
v_xor_b32 v255, 64, v254
v_xor_b32 v241, 64, v240
v_xor_b32 v242, 128, v240
v_xor_b32 v243, 192, v240""") + flat([mk(f"v_add_u32 v{244+m}, 57344, v{240+m}") for m in range(4)])
pre2 = []
for i in range(8): pre2 += mk(f"v_lshlrev_b32 v{112+2*i}, 16, v{XR+i}\nv_and_b32 v{113+2*i}, s{sHIM}, v{XR+i}")
for s in range(1, 16, 2): pre2 += mk(f"v_accvgpr_write_b32 a{128+8*s+3}, 0\nv_accvgpr_write_b32 a{128+8*s+7}, 0")
if GATE & 2:
    P.add(pre2); P.add(G1.check(0, 0))
    stamp("gate1", "o")
    for hh in range(8): P.add(FO.load(hh))
else:
    P.add(pre2[16:]); P.add(set3)
    I("s_waitcnt lgkmcnt(0)\ns_barrier")
    P.add(sprinkle(flat(flat([w2rd(j) for j in UAW[:NT1]])), [w1_l.pop(0) for _ in range(min(len(w1_l), opt("nw1s", 4)))], 0, 8))
    stamp("shadow done", "o")
    LG = opt("lg", -1)
    P.add(sprinkle(pre2[:16], [FO.load(hh) for hh in range(NOE, 8)] if LG < 0 else [], 0, 2))
if NA: I("s_waitcnt lgkmcnt(0)\ns_barrier")
stamp("fo issued", "o")
g2 = []
for s in range(16):
    for k, acc in ((1, AT), (0, AO)):
        c = ("0" if k else v(112,16)) if s == 0 else v(acc,16)
        g2.append(mk(f"{MF} {v(acc,16)}, {a_(128+8*s+4*k,4)}, {v(OB+4*s,4)}, {c}"))

if opt("rord", 0): g2[28:32] = [g2[28], g2[30], g2[29], g2[31]]
P.add(FO.check(0, 3))
stamp("fo0", "o")
S = Sched(g2)
for hh in range(1, 8): S.spread(FO.checkc(hh, 3 if hh < 4 else 7), 4*hh - 3, 4*hh)
if LG >= 0: S.spread(flat([FO.loadc(hh) for hh in range(NOE, 8)]), LG, LG + 6)
S.spread(w1_l + [raw.pop(0) for _ in range(min(len(raw), opt("rawb", 8)))], LG + 6 if LG >= 0 else 0, opt('p2e', 32))
P.add(S.emit())
stamp("p2 gemm done", "o")
for i in range(4): I(f"ds_write_b128 v132, {v(AT+4*i,4)} offset:{1024*i}")
I("v_mov_b32 v112, 0\nv_mov_b32 v113, 0\ns_waitcnt lgkmcnt(0)\ns_barrier")
for i in range(4): I(f"ds_read_b128 {v(AT+4*i,4)}, v133 offset:{1024*i}")
HR = XR
for k in range(0, 8, 2): I(f"v_pk_add_f32 {v(AO+k,2)}, {v(AO+k,2)}, {v(AT+k,2)}")
for i in range(4): I(f"v_cvt_pk_bf16_f32 v{HR+i}, v{AO+2*i}, v{AO+2*i+1}")
I(f"buffer_store_dwordx4 {v(HR,4)}, v2, {WS}, s{sPST} offen sc1")
for k in range(8, 16, 2): I(f"v_pk_add_f32 {v(AO+k,2)}, {v(AO+k,2)}, {v(AT+k,2)}")
for i in range(4, 8): I(f"v_cvt_pk_bf16_f32 v{HR+i}, v{AO+2*i}, v{AO+2*i+1}")
I(f"buffer_store_dwordx4 {v(HR+4,4)}, v2, {WS}, s{sPST} offen offset:1024 sc1")
for i in range(8): I(f"v_dot2c_f32_bf16 v112, s{sONES}, v{HR+i}\nv_dot2c_f32_bf16 v113, v{HR+i}, v{HR+i}")
I(f"""v_bitop3_b32 v10, v{HR}, v{HR+4}, v5 {X3}
v_permlane32_swap_b32 v112, v113
v_add_f32 v112, v112, v113
buffer_store_dword v112, v4, {WS}, s{sPST} offen offset:2048 sc1
v_xor_b32 v113, v10, v112
buffer_store_short v113, v0, {WS}, s{sPST} offen offset:2304 sc1""")
def selft(sreg, nl): return mk(f"s_mov_b64 exec, {(1 << nl) - 1}\nbuffer_load_dword v135, v134, {WS}, s{sreg} offen sc1\ns_mov_b64 exec, -1")
SELF = opt("self", 0)
if SELF & 1: P.add(selft(sPST, 20))
if GATE & 4: P.add(flag_store(14))
stamp("h stored", "moh")
HB = 16; ST = 192
ACC = [144, 160, 176, 192]; AUG = 232
set4 = mk(f"""s_lshl_b32 s{sB}, s{sT3}, 2
s_add_u32 s{sB}, s{sB}, s{sW}
s_mul_i32 s{sP}, s{sB}, {14*2432}
s_add_u32 s{sP}, s{sP}, {WS_H}
s_mul_i32 s{sA}, s{sB}, 56
s_lshl_b32 s{sD}, s{sR}, 2
s_add_u32 s{sA}, s{sA}, s{sD}
s_mul_i32 s{sQ}, s{sA}, 2176
s_add_u32 s{sQ}, s{sQ}, {WS_H1}
v_lshlrev_b32 v13, 3, v1
s_lshl_b32 s{sA}, s{sW}, 9
s_add_u32 s{sA}, s{sA}, {L_AUG}
v_add_u32 v13, s{sA}, v13
v_mov_b32 v222, 0""")
FH = Fetch("fh", [([f"s_add_u32 s{sCt}, s{sP}, {2432*p}\nbuffer_load_dwordx4 {v(HB+8*p,4)}, v2, {WS}, s{sCt} offen sc1\nbuffer_load_dwordx4 {v(HB+8*p+4,4)}, v2, {WS}, s{sCt} offen offset:1024 sc1\n"
                    f"buffer_load_dword v{ST+2*p}, v4, {WS}, s{sCt} offen offset:2048 sc1\nbuffer_load_ushort v{ST+2*p+1}, v0, {WS}, s{sCt} offen offset:2304 sc1"],
                   [HB+8*p, HB+8*p+4, ST+2*p, ST+2*p+1]) for p in range(14)], nre=opt('reh', 2))
for i in range(4): I(f"v_mov_b32 v{AUG+i}, s{sONES}")
P.wait("w1"); I("s_barrier")
stamp("w1 landed", "h")
if opt("zz", 0): I(f"s_sleep {opt('zz', 0)}")
def w1a(t, k): return (240 + k + (4 if t >= 14 else 0), (t % 14) * 4096, (t % 14) * 4096 + 2048)
st3 = [w1a(t, 0) + ((AUG, ACC[2], t == 0, True),) for t in range(28)]
TWO = opt("two", 0); N1 = 2 if TWO else 3
for t in range(28):
    for k in range(N1): st3.append(w1a(t, k) + ((HB + 4*t, ACC[k], t == 0, False),))
for t in range(28):
    for k in range(N1, 4): st3.append(w1a(t, k) + ((HB + 4*t, ACC[k], t == 0, False),))
pro, g3 = gemm_lds(st3, AH)
P.add(pro)
S3 = Sched(g3)
S3.spread(set4, 0, 8)
S3.spread(raw + flat([w2dma(j) for j in UD]), opt("c0s", 0), opt("c0e", 10)); raw = []
NH0 = opt("nh0", 4); H0 = opt("h0", 26)
G2 = gate("g2", vPO, vPF)
if GATE & 4:
    S3.at(opt("g2", 12), G2.load(0), 0.9)
    S3.at(27, G2.check(0, 0) + stampi("gate2", "h") + flat([FH.load(p) for p in range(NH0)]), 0.5)
else: S3.spread(flat([FH.loadc(p) for p in range(NH0)]), H0, 27)
cs = ACC[2]
csx = mk(f"""v_cvt_pk_bf16_f32 v{AUG}, v{cs}, v{cs}
v_lshlrev_b32 v{AUG+1}, 16, v{AUG}
v_sub_f32 v{AUG+1}, v{cs}, v{AUG+1}
v_cvt_pk_bf16_f32 v{AUG}, v{cs}, v{AUG+1}
v_and_b32 v{AUG+1}, 0xffff, v{AUG}
v_cndmask_b32 v{AUG}, v{AUG}, 0, {sHI}
v_cndmask_b32 v{AUG+1}, v{AUG+1}, 0, {sHI}
ds_write_b64 v13, {v(AUG,2)}""")
S3.at(27, stampi("colsum done", "h") + csx + FH.check(0, NH0 - 1) + stampi("fh0", "h"), 1.0)
B0 = 28
for p in range(14):
    b = B0 + 2*N1*p
    if p + NH0 < 14:
        for k_, c_ in enumerate(FH.loadc(p + NH0)): S3.at(b + ((0, 2, 1, 3) if TWO else (0, 2, 4, 4))[k_], c_, 0.2)
    S3.at(b, mk(f"v_add_f32 v222, v222, v{ST+2*p}"), 0.0)
    if p + 1 < 14: S3.spread(FH.checkc(p + 1, min(13, p + NH0 - 1)), b + 1, b + 2*N1)
    if p in (3, 7, 11): S3.at(b + 2*N1 - 1, stampi(f"fh{p+1}", "h"), 1.0)
S3.at(B0 + 14, mk("s_barrier") + flat([mk(f"v_xor_b32 v9, {512*k}, v13\nds_read_b64 {v(AUG+2*k,2)}, v9") for k in range(1, 4)]), 0.0)
mid = mk(f"""v_mul_f32 v220, {fhex(1/448)}, v222
v_mov_b32 v221, v220
s_nop 0
v_permlane32_swap_b32 v220, v221
v_fma_f32 v221, -v220, v220, v221
v_max_f32 v221, 0, v221
v_add_f32 v221, 0x3727c5ac, v221
v_rsq_f32 v251, v221
v_cvt_pk_bf16_f32 v222, -v220, -v220
v_lshlrev_b32 v9, 16, v222
v_sub_f32 v9, -v220, v9
v_cvt_pk_bf16_f32 v223, v9, 0
v_mul_f32 v250, v221, v251
v_mul_f32 v251, 0xbfb8aa3b, v251
v_cndmask_b32 v222, v222, 0, {sHI}
v_cndmask_b32 v223, v223, 0, {sHI}""")
S3.spread(mid, *((B0 + 53, B0 + 59) if TWO else (B0 + 79, B0 + 84)))
def aug(k): return mk(f"v_mfma_f32_32x32x8_bf16 {v(ACC[k],16)}, {v(AUG+2*k,2)}, v[222:223], {v(ACC[k],16)}")
SLT = 132
def silu(k, pk):
    q = Prog(); a = ACC[k]; t = 208
    q.I(f"s_xor_b32 s50, s{sW}, {k}\ns_mul_i32 s50, s50, 2176\ns_add_u32 s50, s50, s{sQ}")
    for half in range(2):
        b = a + 8 * half
        if pk:
            for j in range(0, 8, 2): q.I(f"v_pk_mul_f32 {v(t+j,2)}, {v(b+j,2)}, v[250:251] op_sel:[0,1] op_sel_hi:[1,1]")
        else:
            for j in range(8): q.I(f"v_mul_f32 v{t+j}, v{b+j}, v251")
        for j in range(8): q.I(f"v_exp_f32 v{t+j}, v{t+j}")
        if pk:
            for j in range(0, 8, 2): q.I(f"v_pk_fma_f32 {v(t+j,2)}, {v(t+j,2)}, v[250:251], v[250:251] op_sel_hi:[1,0,0]")
        else:
            for j in range(8): q.I(f"v_fma_f32 v{t+j}, v{t+j}, v250, v250")
        for j in range(8): q.I(f"v_rcp_f32 v{t+j}, v{t+j}")
        if pk:
            for j in range(0, 8, 2): q.I(f"v_pk_mul_f32 {v(b+j,2)}, {v(b+j,2)}, {v(t+j,2)}")
        else:
            for j in range(8): q.I(f"v_mul_f32 v{b+j}, v{b+j}, v{t+j}")
        for j in range(4): q.I(f"v_cvt_pk_bf16_f32 v{b+j}, v{b+2*j}, v{b+2*j+1}")
        q.I(f"buffer_store_dwordx4 {v(b,4)}, v2, {WS}, s50 offen offset:{1024*half} sc1")
    q.I(f"v_bitop3_b32 v216, v5, v{a}, v{a+8} {X3}")
    q.I(f"buffer_store_short v216, v0, {WS}, s50 offen offset:2048 sc1")
    return q.items + ([selft(50, 18)] if SELF & 2 and not pk else [])
E0 = B0 + 28*N1
assert not raw
if TWO:
    S3.spread(flat([w2rd(j) for j in UD + UR + UAW[NT1:]]), B0 + 8, B0 + 42)
    S3.at(B0 + 34, mk("s_barrier"), 0.0)
    S3.spread(flat([w2dma(j) for j in UE]), B0 + 48, E0 + opt("wde", 12))
else:
    S3.spread(flat([w2rd(j) for j in UD + UR + UAW[NT1:]]), B0 + 22, B0 + 58)
    S3.at(B0 + 44, mk("s_barrier"), 0.0)
    S3.spread(flat([w2dma(j) for j in UE]), B0 + opt('twd', 64), E0)
B4 = 16
CKR = [240, 241, 244, 245, 248, 249, 217, 218, 219, 130, 242, 246, 243, 247]
C4 = [[a_(224,16), a_(240,16)], [v(ACC[0],16), v(ACC[1],16)]]
set5 = mk(f"""s_mul_i32 s{sA}, s{sTILE}, 56
s_xor_b32 s{sB}, s{sTILE}, 1
s_mul_i32 s{sB}, s{sB}, 56
s_add_u32 s51, s{sB}, s44
s_add_u32 s52, s{sA}, s44
s_add_u32 s53, s{sB}, s45
s_add_u32 s54, s{sA}, s45""")
for k in range(4):
    set5 += mk(f"s_mul_i32 s{51+k}, s{51+k}, 2176\ns_add_u32 s{51+k}, s{51+k}, {WS_H1}")
S3.spread(set5, B0 + 42, B0 + 52)
def piece4(n):
    st, i = n // 7, n % 7; r = B4 + 8 * (n % 14); c = CKR[n % 14]
    return ([f"s_add_u32 s{sCt}, s{51+st}, {8*2176*i}\nbuffer_load_dwordx4 {v(r,4)}, v2, {WS}, s{sCt} offen sc1\nbuffer_load_dwordx4 {v(r+4,4)}, v2, {WS}, s{sCt} offen offset:1024 sc1\n"
             f"buffer_load_ushort v{c}, v0, {WS}, s{sCt} offen offset:2048 sc1"], [r, r+4, c])
F4 = Fetch("f4", [piece4(n) for n in range(28)], nre=opt("re4", 3))
ND = opt("nd", 5)
N0 = ND if TWO else opt("n0", 4)
rawl = flat([w2raw(j) for j in UL])
nr0 = min(len(rawl), opt("nr0", 6))
if TWO:
    S3.at(E0 - 1, stampi("p3 pass1 done", "mh"), 1.0)
    g3[E0 + 3] = aug(0) + g3[E0 + 3]; g3[E0 + 4] = aug(1) + g3[E0 + 4]
    S3.spread(silu(0, False) + [stampi("silu0 done", "e")], E0 + 5, E0 + opt("s0e", 21))
    S3.spread(silu(1, False), E0 + opt("s0e", 21), E0 + opt("s1e", 44))
    S3.spread(rawl, E0 + opt("wde", 12), E0 + opt("rle", 36))
    DEEP = opt("deep", 0)
    if DEEP:
        rng = [(opt("a0", -18), opt("b0", 4)), (opt("a1", 6), opt("b1", 24)), (opt("a2", 26), opt("b2", 50)), (opt("a3", 50), opt("b3", 78))]
        f4pos = []
        for n in range(28):
            a, b = rng[n // 7]
            for k_, c_ in enumerate(F4.loadc(n)):
                pos = a + (b - a) * ((n % 7) + (0, 0.45, 0.9)[k_]) / 7
                lo = (4*n + 4 - 56) if n < 14 else 4*(n - 14) + 4
                pos = max(pos, lo + 0.01*k_); assert pos < 4*n - 3 or n == 0, (n, pos)
                f4pos.append((pos, c_))
        for i_ in range(1, len(f4pos)): assert f4pos[i_][0] >= f4pos[i_-1][0], i_
        import math
        for pos, c_ in f4pos:
            if pos < 0: S3.at(E0 + 56 + math.floor(pos), c_, pos - math.floor(pos))
    else: S3.spread(flat([F4.loadc(n) for n in range(ND)]), E0 + opt("f4s", 52), E0 + 56)
    P.add(S3.emit())
    P.add(aug(2) + aug(3))
else:
    S3.at(E0 - 1, stampi("p3 pass1 done", "mh") + aug(0) + aug(1) + aug(2) + sprinkle(silu(0, True), rawl[:nr0], 3, opt('r0s', 12)) + stampi("silu0 done", "e"), 1.0)
    S3.spread(silu(1, False) + (silu(2, False) if opt("s2p", 1) else []), E0, E0 + opt("t1e", 26))
    S3.spread(rawl[nr0:], E0, E0 + opt("tre", 20))
    S3.spread(flat([F4.loadc(n) for n in range(N0)]), E0 + opt("f4t", 20), E0 + 28)
    P.add(S3.emit())
    P.add(aug(3))
I("s_barrier")
stamp("p3 gemm done", "me")
g4 = []
for n in range(28):
    st, i = n // 7, n % 7; hf, par = st >> 1, st & 1
    for e in range(2):
        for mu in range(2):
            zero = hf == 0 and i == 0 and e == 0 and not (par == 1 and mu == 0)
            g4.append(mk(f"{MF} {C4[par][mu]}, {a_(UA(7*hf+i)+8*e+4*mu,4)}, {v(B4+8*(n%14)+4*e,4)}, {'0' if zero else C4[par][mu]}"))
if opt("rord", 0): g4[108:112] = [g4[109], g4[111], g4[108], g4[110]]
P.add(F4.check(0, N0 - 1))
S = Sched(g4)
nxt = N0
for n in range(28):
    prev = nxt
    if nxt < 28 and not (TWO and DEEP):
        if nxt < n + ND and nxt + 1 < 28:
            for k_, c_ in enumerate(F4.loadc(nxt) + F4.loadc(nxt + 1)): S.at(4*n + (0, 1, 1, 2, 3, 3)[k_], c_, 0.2 + 0.01*k_)
            nxt += 2
        else:
            for k_, c_ in enumerate(F4.loadc(nxt)): S.at(4*n + (0, 2, 1)[k_], c_, 0.2)
            nxt += 1
    if n + 1 < 28: S.spread(F4.checkc(n + 1, max(n + 1, prev - 1)), 4*n + 2, 4*n + 4)
    if n in (6, 13, 20): S.at(4*n + 3, stampi(f"stage{n//7} done", "e"), 1.0)
unp = []
for i in range(8): unp += mk(f"v_lshlrev_b32 v{ACC[0]+2*i}, 16, v{HR+i}\nv_and_b32 v{ACC[0]+1+2*i}, s{sHIM}, v{HR+i}")
if TWO and DEEP:
    for pos, c_ in f4pos:
        if pos >= 0: S.at(int(pos), c_, pos - int(pos))
S2E, S3E = opt("s2e", 16), opt("s3e", 16)
if opt("s2p", 1) and not TWO: S2E = 1
else: S.spread(silu(2, False), 0, S2E)
S.spread(unp, 22, 27)
S.spread(silu(3, False), S2E, S3E)
S.spread(flat([w2rd(j) for j in UE if j < 7]), 0, 14)
S.spread(flat([w2dma(j) for j in UP]), opt("w2a", 20), opt("w2b", 46))
for j in [x for x in UE + UL + UP if x >= 7]: S.spread(w2rd(j), 44 + 5*(j-7), 49 + 5*(j-7))
S.at(82, mk(f"""s_lshl_b32 s{sA}, s{sW}, 14
v_add_u32 v13, s{sA}, v2
v_xor_b32 v9, 16384, v13
v_xor_b32 v12, 32768, v13
v_xor_b32 v14, 49152, v13
s_waitcnt lgkmcnt(0)
s_barrier"""))
S.spread([mk(f"ds_write_b128 v{9 if mu == 0 else 14}, {a_(224+16*mu+4*i,4)} offset:{4096*(2*mu+1)+1024*i}") for mu in range(2) for i in range(4)], 87, 99)
S.at(100, mk("s_waitcnt lgkmcnt(0)\ns_barrier"), 0.0)
S.spread([mk(f"ds_read_b128 {v(ACC[2+mu]+4*i,4)}, v13 offset:{4096*(2*mu+1)+1024*i}") for mu in range(2) for i in range(4)], 100, 104)
S.spread([mk(f"v_add_f32 v{ACC[2]+k}, v{ACC[2]+k}, v{ACC[3]+k}") for k in range(16)], 107, 112)
P.add(S.emit())
stamp("p4 gemm done", "me")
for i in range(4): I(f"ds_write_b128 v12, {v(ACC[1]+4*i,4)} offset:{8192+1024*i}")
if opt("cout", 0):
    I(f"""v_lshlrev_b32 v16, 3, v3
v_sub_u32 v16, v{vXRR}, v16
v_lshlrev_b32 v17, 4, v3
v_xor_b32 v16, v16, v17
v_xor_b32 v17, 32, v16
s_add_u32 s{sA}, s{sXO}, {L_XCH}
v_add_u32 v18, s{sA}, v2""")
I("s_waitcnt lgkmcnt(0)\ns_barrier")
for i in range(4): I(f"ds_read_b128 {v(ACC[3]+4*i,4)}, v13 offset:{8192+1024*i}")
for k in range(0, 16, 2): I(f"v_pk_add_f32 {v(ACC[0]+k,2)}, {v(ACC[0]+k,2)}, {v(ACC[2]+k,2)}")
for hf in range(2):
    b = ACC[0] + 8*hf
    for k in range(0, 8, 2): I(f"v_pk_add_f32 {v(b+k,2)}, {v(b+k,2)}, {v(ACC[3]+8*hf+k,2)}")
    for i in range(4): I(f"v_cvt_pk_bf16_f32 v{96+4*hf+i}, v{b+2*i}, v{b+2*i+1}")
    if not opt("cout", 0):
        I(f"v_permlane32_swap_b32 v{96+4*hf}, v{98+4*hf}\nv_permlane32_swap_b32 v{97+4*hf}, v{99+4*hf}\nbuffer_store_dwordx4 {v(96+4*hf,4)}, v7, {OUT}, s{sOUT} offen offset:{32*hf} {OPT.get('ofl', '')}")
    else:
        I(f"v_permlane32_swap_b32 v{96+4*hf}, v{98+4*hf}\nv_permlane32_swap_b32 v{97+4*hf}, v{99+4*hf}\nds_write_b128 v{16+hf}, {v(96+4*hf,4)}")
if opt("cout", 0):
    I("s_waitcnt lgkmcnt(0)\ns_barrier")
    for i in range(2): I(f"ds_read_b128 {v(104+4*i,4)}, v18 offset:{1024*i}")
    for i in range(2): I(f"buffer_store_dwordx4 {v(104+4*i,4)}, v{vXRD0+i}, {OUT}, s{sXRB} offen offset:{1024*i} {OPT.get('ofl', '')}")
stamp("end", "mpohez")
I(f"""s_cmp_lg_u32 s2, 0
s_cbranch_scc1 L_ex0
v_mov_b32 v9, 0""")
I(f"buffer_store_dword v5, v9, {WS}, 0 offen sc1", unc=True)
I("L_ex0:")
if opt("enc", 0):
    mode = opt("enc", 0)
    if mode <= 4:
        I(f"s_bfe_u32 s{sA}, s80, {hex(0x80000 | (8*(mode-1)))}\ns_min_u32 s{sA}, s{sA}, 1\ns_mul_i32 s{sA}, s{sA}, 2000", unc=True)
    else:
        I(f"s_waitcnt lgkmcnt(0)\ns_sub_u32 s{sA}, s{sSTAMP+2}, s78\ns_mul_i32 s{sA}, s{sA}, 4", unc=True)
    I(f"""s_memrealtime s[40:41]
s_waitcnt lgkmcnt(0)
L_enc:
s_memrealtime s[42:43]
s_waitcnt lgkmcnt(0)
s_sub_u32 s42, s42, s40
s_cmp_lt_u32 s42, s{sA}
s_cbranch_scc1 L_enc
s_branch L_end""", unc=True)
if opt("dbg", 0):
    I(f"""s_cmp_lg_u32 s{sW}, 0
s_cbranch_scc1 L_end
s_load_dwordx2 s[40:41], s[0:1], 64
s_mov_b32 s42, 256
s_mov_b32 s43, 0x20000
s_mov_b64 exec, 1
v_mov_b32 v9, 0
s_waitcnt lgkmcnt(0)""", unc=True)
    for k in range(nstamp[0]):
        I(f"s_sub_u32 s{sA}, s{sSTAMP+2*k}, s78\nv_mov_b32 v10, s{sA}\nbuffer_atomic_umax v10, v9, s[40:43], 0 offen offset:{4*k}\ns_nop 1", unc=True)
    I(f"""v_mov_b32 v10, s78
buffer_atomic_umax v10, v9, s[40:43], 0 offen offset:32
s_not_b32 s{sA}, s78
v_mov_b32 v11, s{sA}
buffer_atomic_umax v11, v9, s[40:43], 0 offen offset:36
v_mov_b32 v12, s{sSTAMP+2*(nstamp[0]-1)}
buffer_atomic_umax v12, v9, s[40:43], 0 offen offset:40
v_mov_b32 v13, s80
buffer_atomic_add v13, v9, s[40:43], 0 offen offset:44
s_branch L_end""", unc=True)
I("L_exit:")
if DIAG and not opt("dbg", 0):
    I(f"s_cmp_lg_u32 s{sW}, {opt('dw', 0)}\ns_cbranch_scc1 L_end\ns_lshl_b32 s{sA}, s2, 7\ns_add_u32 s{sA}, s{sA}, {WS_DIAG}\nv_mov_b32 v9, 0", unc=True)
    for k in range(nstamp[0]):
        I(f"s_waitcnt lgkmcnt(0)\nv_mov_b32 v10, s{sSTAMP+2*k}\nbuffer_store_dword v10, v9, {WS}, s{sA} offen offset:{4*k}", unc=True)
    if SEL == ["z"]: I(f"v_mov_b32 v10, s78\nbuffer_store_dword v10, v9, {WS}, s{sA} offen offset:120", unc=True)
    I(f"v_mov_b32 v10, s80\nbuffer_store_dword v10, v9, {WS}, s{sA} offen offset:124", unc=True)
I("L_end:\ns_endpgm")
if not (opt("idle", 0) or opt("idle2", 0)):
    for it in P.items:
        if isinstance(it, Ins) and it.text == "s_cbranch_scc1 L_idle": it.text = "s_cbranch_scc1 L_exit"
else: I(f"""L_idle:
s_and_b32 s{sA}, s{sT2}, 1
s_lshl_b32 s{sA}, s{sA}, 1
s_add_u32 s{sA}, s{sA}, s{sRact}
s_sub_u32 s{sA}, s{sA}, 14
s_lshl_b32 s{sA}, s{sA}, 2
s_add_u32 s{sA}, s{sA}, s{sW}
s_lshl_b32 s{sA}, s{sA}, 13
v_lshlrev_b32 v9, 7, v1
s_lshr_b32 s{sD}, s{sT2}, 1
s_mul_i32 s{sD}, s{sD}, {8*56*2176}
s_add_u32 s{sD}, s{sD}, {WS_H1}
s_add_u32 s{sD}, s{sD}, s{sA}
s_mov_b32 s{sB}, {opt("idle2", 0)}
s_cmp_eq_u32 s{sB}, 0
s_cbranch_scc1 L_idle3
L_idle2:
buffer_load_dword v11, v9, {WS}, s{sD} offen {OPT.get("i2f", "")}
s_add_u32 s{sD}, s{sD}, {16*8192}
s_sub_u32 s{sB}, s{sB}, 1
s_cmp_lg_u32 s{sB}, 0
s_cbranch_scc1 L_idle2
L_idle3:
s_mov_b32 s{sB}, {opt("idle", 0)}
s_cmp_eq_u32 s{sB}, 0
s_cbranch_scc1 L_exit
L_idle1:
buffer_load_dword v11, v9, {W2}, s{sA} offen
s_add_u32 s{sA}, s{sA}, {16*8192}
s_sub_u32 s{sB}, s{sB}, 1
s_cmp_lg_u32 s{sB}, 0
s_cbranch_scc1 L_idle1
s_branch L_exit""", unc=True)
P.add(TAIL.items)

for it in P.items:
    if isinstance(it, Ins) and it.text.startswith('buffer_load_dword v142,'): it.defs = []
for it in P.items:
    if isinstance(it, Ins) and it.op == "buffer_load_dwordx4":
        for bit, srd in ((1, W1), (2, W2), (4, WO), (8, WQKV), (16, X)):
            if opt("wf", 0) & bit and srd in it.text:
                fl = OPT.get("wfl", "nt")
                it.text = it.text.replace(" lds", f" {fl} lds") if it.text.endswith(" lds") else it.text + " " + fl
PL = opt("plain", 0)
for it in P.items:
    if isinstance(it, Ins) and it.op.startswith("buffer_store") and "sc1" in it.text:
        ish1 = " s50 " in it.text or " s49 " in it.text
        ish = ("v[224:227]" in it.text or "v[228:231]" in it.text or "v112," in it.text or "v113," in it.text)
        if (ish and PL & 1) or (ish1 and PL & 2): it.text = it.text.replace(" sc1", OPT.get("pfl", ""))
if opt("pld", 0):
    c = 0
    for it in P.items:
        if isinstance(it, Ins) and it.op.startswith("buffer_load") and "sc1" in it.text and " s56 " in it.text and not it.uncounted:
            c += 1
            kind = 0 if c <= 48 else 1 if c <= 104 else 2
            if opt("pld", 0) & kind: it.text = it.text.replace(" sc1", OPT.get("lfl", ""))
if opt("nochk", 0):
    new = []; seen_end = False
    for it in P.items:
        if isinstance(it, Ins):
            if opt("nochk", 0) == 2 and not seen_end:
                if it.text.startswith("L_exit"): seen_end = True
                elif it.uncounted or it.op in ("s_cbranch_vccz", "s_branch"): continue
            if it.op == "s_cbranch_vccz" and not it.uncounted: it = Ins(it.text.replace("s_cbranch_vccz", "s_branch"))
            elif it.op == "s_cbranch_vccnz" and not it.uncounted: continue
            t = it.text
            if it.op.startswith("buffer_store") and "sc1" in t and not it.uncounted:
                kind = 8 if " s50 " in t else 4 if ("v[224" in t or "v[228" in t or "v112," in t or "v113," in t) else 2 if f" s{sOST} " in t else 1
                if opt("nost", 0) & kind: continue
            if it.op.startswith("buffer_load") and "sc1" in t and " s56 " in t and not it.uncounted:
                cnt_ld = globals().setdefault("_c", [0]); cnt_ld[0] += 1; c = cnt_ld[0]
                kind = 1 if c <= 32 else 2 if c <= 48 else 4 if c <= 104 else 8
                if opt("nold", 0) & kind: continue
        new.append(it)
    P.items = new
body, items = render(P.items)
if opt("align", 1):
    import subprocess, re as _re
    open("_al.s", "w").write('.amdgcn_target "amdgcn-amd-amdhsa--gfx950"\n.text\n' + body)
    subprocess.run(["clang", "-x", "assembler", "-target", "amdgcn-amd-amdhsa", "-mcpu=gfx950", "-c", "_al.s", "-o", "_al.o"], check=True)
    dis = subprocess.run(["llvm-objdump", "-d", "--mcpu=gfx950", "_al.o"], capture_output=True, text=True).stdout
    sizes = [4 * len(m.group(1).split()) for m in _re.finditer(r"// [0-9A-F]{12}: ((?:[0-9A-F]{8} ?)+)", dis)]
    real = [i for i in items if i.cls not in ('label', 'dir')]
    assert len(sizes) == len(real), (len(sizes), len(real))
    sz = {id(i): n for i, n in zip(real, sizes)}
    new = []; off = 0; nal = 0; MINRUN = opt("minrun", 6)
    for k, it in enumerate(items):
        if id(it) in sz and sz[id(it)] == 8 and off % 8 == 4 and not it.uncounted:
            run = 0
            for j in items[k:k + MINRUN + 4]:
                if id(j) not in sz: continue
                if sz[id(j)] != 8 or j.cls == 'mfma': break
                run += 1
            if run >= MINRUN:
                p = new[-1] if new else None
                if p is not None and p.cls == 'valu' and sz.get(id(p)) == 4 and not p.op.startswith(('v_permlane', 'v_dot2c', 'v_readfirst', 'v_accvgpr', 'v_cmp', 'v_cndmask')) and not p.op.endswith('_e64'):
                    p.text = p.text.replace(p.op, p.op + "_e64", 1)
                else: new.append(Ins("s_nop 0"))
                off += 4; nal += 1
        new.append(it); off += sz.get(id(it), 0)
    items = new
    body = '\n'.join(('' if i.cls == 'label' else '  ') + i.text for i in items) + '\n'
    print("alignment fixes:", nal, "code bytes", off)
hdr = open("cdna_kernels/" + NAME + ".s.ref").read().split("; Override launch")[0]
doc = """; Persistent single-launch implementation (256 WGs x 4 waves, one WG per CU), generated by a script:
"""
out = hdr + doc + f"""; @launch grid=(256,1,1) block=(256,1,1) lds={LDS_SIZE}
.amdgcn_target "amdgcn-amd-amdhsa--gfx950"
.text
.globl {NAME}_kernel
.p2align 8
.type {NAME}_kernel,@function
{NAME}_kernel:
{body}.fill 2048, 4, 0xbf810000
.section .rodata,"a"
.p2align 6
.amdhsa_kernel {NAME}_kernel
  .amdhsa_next_free_vgpr 512
  .amdhsa_next_free_sgpr 102
  .amdhsa_accum_offset 256
  .amdhsa_group_segment_fixed_size 0
  .amdhsa_kernarg_size 80
  .amdhsa_user_sgpr_count 2
  .amdhsa_user_sgpr_kernarg_segment_ptr 1
  .amdhsa_system_sgpr_workgroup_id_x 1
.end_amdhsa_kernel
"""
open(sys.argv[1], "w").write(out)
n = sum(1 for i in items if i.cls not in ('label', 'dir'))
nu_ = sum(1 for i in items if i.cls not in ('label', 'dir') and i.uncounted)
print("instructions:", n, "(slow path", nu_, ") nops:", sum(1 for i in items if i.op == 's_nop'), "waits:", sum(1 for i in items if i.op == 's_waitcnt'), "stamps", nstamp[0])
```

```python
import sys, struct
from asmlib import *

NAME = "sequential_preLN__linear_kernel_hedgehog__dense_activation_silu__prompt"
DIAG = int(sys.argv[2]) if len(sys.argv) > 2 else 0
OPT = dict(a.split('=') for a in sys.argv[3:])
def opt(k, d): return int(OPT[k], 0) if k in OPT else d

WS_PART = 0x40000
WS_O    = 0x240000
WS_H    = 0x440000
WS_H1   = 0x680000
WS_DIAG = 0xE80000
WS_FLG  = 0xF00000
WS_SIZE = 0xF80000
XW = 28672
L_WV, L_WQ, L_WK, L_WO = 0, 28672, 57344, 86016
L_IMG = L_WK
L_KVX = 143360
L_XCH = 147456
L_SCR = 114688
L_AUG = 161792
LDS_SIZE = 163840
sW, sT, sH, sT2, sR = 3, 4, 5, 6, 7
X, WQKV, WPHI, WO, W1, W2, OUT, WS = [f"s[{i}:{i+3}]" for i in range(8, 40, 4)]
sKX, sKW = 40, 47
sHQ, sHIM = 54, 55
sRET = "s[56:57]"
sSPIN, sP, sU, sC, sMASK, sQ = 58, 59, 60, 61, 62, 63
sHI = "s[64:65]"
sLOG = "s[66:67]"
sONES, sTILE = 68, 69
sA, sB, sCt, sD = 70, 71, 72, 73
sRact, sXO = 74, 75
sWB, sWQ = 76, 77
sLAST, sFLAG, sWM, sPST, sPCK, sOST, sXRB, sOUT = 80, 81, 82, 83, 84, 85, 86, 87
sSTAMP = 88

def v(a, n=1): return f"v{a}" if n == 1 else f"v[{a}:{a+n-1}]"
def a_(a, n=1): return f"a{a}" if n == 1 else f"a[{a}:{a+n-1}]"
def fhex(x): return hex(struct.unpack('<I', struct.pack('<f', x))[0])
def flat(l): return sum(l, [])
P = Prog(); I = P.I
TAIL = Prog()
nstamp = [0]
SEL = OPT.get("st", "m").split(",")
PICK = [int(x) for x in OPT["pick"].split(",")] if "pick" in OPT else None
allst = [0]
def stampi(name, grp="m"):
    idx = allst[0]; allst[0] += 1
    if opt("jit", 0) and idx in (3, 7, 9, 11, 13, 17, 19, 21, 25, 26, 27, 28, 29):
        return mk(f"""s_memtime s[88:89]
s_waitcnt lgkmcnt(0)
s_mul_i32 s88, s88, 0x9E3779B1
s_lshr_b32 s88, s88, {opt("jit", 0)}
L_jit{idx}:
s_sleep 8
s_sub_u32 s88, s88, 1
s_cmp_gt_i32 s88, 0
s_cbranch_scc1 L_jit{idx}""")
    if not DIAG: return []
    if PICK is not None:
        if name != "start" and idx not in PICK:
            print(f"   - {idx}: {name}"); return []
    elif name != "start" and not (set(grp) & set(SEL)): return []
    k = nstamp[0]; nstamp[0] += 1
    assert k < 7
    print(f"stamp {k}: [{idx}] {name}")
    op = "s_memtime" if DIAG == 2 else "s_memrealtime"
    return mk(f"{op} s[{sSTAMP+2*k}:{sSTAMP+2*k+1}]")
def stamp(name, grp="m"): P.add(stampi(name, grp))
X3 = "bitop3:0x96"

def chk_code(regs, masked):
    r = list(regs)
    if masked: return f"v_bitop3_b32 v10, v{r[0]}, v{r[1]}, s{sMASK} bitop3:0x28\nv_cmp_ne_u32 vcc, v10, v6"
    if len(r) == 1: return f"v_cmp_ne_u32 vcc, v{r[0]}, v5"
    if len(r) == 2: t = f"v_xor_b32 v10, v{r[0]}, v{r[1]}"
    else:
        t = f"v_bitop3_b32 v10, v{r[0]}, v{r[1]}, v{r[2]} {X3}"
        if len(r) == 4: t += f"\nv_xor_b32 v10, v10, v{r[3]}"
    return t + "\nv_cmp_ne_u16 vcc, v10, v5"

sFL, sDM = 56, 57
GUARD = f"s_add_u32 s{sSPIN}, s{sSPIN}, 1\ns_cmp_gt_u32 s{sSPIN}, 0x40000\ns_cbranch_scc1 L_end\ns_waitcnt vmcnt(0)"
class Fetch:
    def __init__(self, name, pieces, masked=False, nre=1):
        self.name, self.pieces, self.masked, self.nre = name, pieces, masked, nre
    def loadc(self, i):
        it = flat([mk(c.replace(f"s{sCt}", f"s{sFL}")) for c in self.pieces[i][0]])
        out = []; cur = []
        for x in it:
            cur.append(x)
            if x.cls == 'vmem': out.append(cur); cur = []
        return out
    def load(self, i): return flat(self.loadc(i))
    def stub(self, i, last):
        n = self.name
        wgt = {"fo": 0x100, "fh": 0x10000, "f4": 0x1000000}.get(n, 1)
        rel = (f"s_add_u32 s80, s80, {wgt}\n" if DIAG else "") + "\n".join(c for j in range(i, min(last, i + self.nre - 1) + 1) for c in self.pieces[j][0])
        if opt("ool", 15) & {"fo": 2, "fh": 4, "f4": 8}[n]:
            TAIL.I(f"L_{n}_r{i}:\n" + rel + "\n" + GUARD + "\n" + chk_code(self.pieces[i][1], self.masked) + f"\ns_cbranch_vccnz L_{n}_r{i}\ns_branch L_{n}_ok{i}", unc=True)
            return mk(f"s_cbranch_vccnz L_{n}_r{i}\nL_{n}_ok{i}:")
        return mk(f"s_cbranch_vccz L_{n}_ok{i}\nL_{n}_r{i}:") + \
               mk(rel + "\n" + GUARD + "\n" + chk_code(self.pieces[i][1], self.masked) + f"\ns_cbranch_vccnz L_{n}_r{i}", unc=True) + mk(f"L_{n}_ok{i}:")
    def checkc(self, i, last):
        return [[x] for x in mk(chk_code(self.pieces[i][1], self.masked))] + [self.stub(i, last)]
    def check(self, i, last): return flat(self.checkc(i, last))

sFS, sFP = 80, 81
vL512, vPO, vPF = 0, 142, 143
def flag_store(nl): return mk(f"s_mov_b64 exec, {(1 << nl) - 1}\nbuffer_store_dword v5, v{vL512}, {WS}, s{sFS} offen sc1\ns_mov_b64 exec, -1")
def gate(name, vo, vf): return Fetch(name, [([f"buffer_load_dword v{vf}, v{vo}, {WS}, s{sFP} offen sc1"], [vf])])
GATE = opt("gate", 0)

def cost(it):
    if isinstance(it, WaitTag): return 4
    if it.cls in ('label', 'dir') or it.uncounted: return 0
    if it.op.startswith(TRANS) or 'permlane' in it.op: return 8
    if it.op.startswith('ds_write_b128'): return 28
    if it.cls == 'mfma': return 8
    return 4.5
class Sched:
    def __init__(self, groups):
        self.groups = groups; self.gap = [[] for _ in groups]; self.seq = 0
    def at(self, g, items, frac=0.5):
        self.seq += 1; self.gap[g].append((frac, self.seq, list(items)))
    def spread(self, chunks, a, b):
        chunks = [c if isinstance(c, list) else [c] for c in chunks]
        tot = sum(cost(i) for c in chunks for i in c) or 1; acc = 0
        for c in chunks:
            pos = a + (b - a) * acc / tot
            self.at(int(pos), c, pos - int(pos))
            acc += sum(cost(i) for i in c)
    def emit(self):
        out = []
        for g, gp in zip(self.groups, self.gap):
            out += g
            for _, _, c in sorted(gp, key=lambda x: (x[0], x[1])): out += c
        return out
def sprinkle(items, groups, start, step):
    out = []; groups = list(groups); nxt = start
    for i, it in enumerate(items):
        if groups and i == nxt: out += groups.pop(0); nxt += step
        out.append(it)
    for g in groups: out += g
    return out

def softmax(p, t, o, pk):
    q = Prog(); J = q.I
    m, n = t + 14, t + 15; r0, r1 = t + 16, t + 17
    J(f"v_max3_f32 v{m}, v{p}, v{p+1}, v{p+2}\nv_max3_f32 v{n}, -v{p}, -v{p+1}, -v{p+2}")
    for k in range(3, 13, 2):
        J(f"v_max3_f32 v{m}, v{m}, v{p+k}, v{p+k+1}\nv_max3_f32 v{n}, v{n}, -v{p+k}, -v{p+k+1}")
    J(f"""v_max_f32 v{m}, v{m}, v{p+13}
v_max_f32 v{n}, v{n}, -v{p+13}
v_permlane32_swap_b32 v{m}, v{n}
v_max_f32 v{m}, v{m}, v{n}
v_mul_f32 v{m}, v253, v{m}
v_mov_b32 v{n}, v{m}
v_permlane32_swap_b32 v{m}, v{n}""")
    if pk:
        for k in range(0, 14, 2):
            J(f"v_pk_fma_f32 {v(t+k,2)}, {v(p+k,2)}, v[252:253], {v(m,2)} op_sel_hi:[1,0,0]")
            J(f"v_pk_fma_f32 {v(p+k,2)}, {v(p+k,2)}, v[252:253], {v(m,2)} op_sel:[0,1,1] op_sel_hi:[1,1,1]")
    if pk == 2:
        for k in range(14):
            J(f"v_exp_f32 v{t+k}, v{t+k}\nv_exp_f32 v{p+k}, v{p+k}")
            if k >= 2:
                a0 = f"v{t}" if k == 2 else f"v{r0}"; a1 = f"v{p}" if k == 2 else f"v{r1}"
                J(f"v_add_f32 v{r0}, {a0}, v{t+k-1}\nv_add_f32 v{r1}, {a1}, v{p+k-1}")
        J(f"v_add_f32 v{m}, v{r0}, v{t+13}\nv_add_f32 v{n}, v{r1}, v{p+13}")
    elif pk:
        for k in range(14): J(f"v_exp_f32 v{t+k}, v{t+k}")
        for k in range(14): J(f"v_exp_f32 v{p+k}, v{p+k}")
        J(f"v_pk_add_f32 {v(m,2)}, {v(t,2)}, {v(t+2,2)}\nv_pk_add_f32 {v(r0,2)}, {v(p,2)}, {v(p+2,2)}")
        for k in range(4, 14, 2):
            J(f"v_pk_add_f32 {v(m,2)}, {v(m,2)}, {v(t+k,2)}\nv_pk_add_f32 {v(r0,2)}, {v(r0,2)}, {v(p+k,2)}")
        J(f"v_add_f32 v{m}, v{m}, v{n}\nv_add_f32 v{n}, v{r0}, v{r1}")
    else:
        for k in range(14):
            J(f"v_fma_f32 v{t+k}, v{p+k}, v252, v{m}\nv_fma_f32 v{p+k}, v{p+k}, v253, v{n}\nv_exp_f32 v{t+k}, v{t+k}\nv_exp_f32 v{p+k}, v{p+k}")
            if k >= 2:
                a0 = f"v{t}" if k == 2 else f"v{r0}"; a1 = f"v{p}" if k == 2 else f"v{r1}"
                J(f"v_add_f32 v{r0}, {a0}, v{t+k-1}\nv_add_f32 v{r1}, {a1}, v{p+k-1}")
        J(f"v_add_f32 v{m}, v{r0}, v{t+13}\nv_add_f32 v{n}, v{r1}, v{p+13}")
    J(f"""v_permlane32_swap_b32 v{m}, v{n}
v_add_f32 v{m}, v{m}, v{n}
v_rcp_f32 v{m}, v{m}
v_mov_b32 v{n}, v{m}
v_permlane32_swap_b32 v{m}, v{n}""")
    if pk == 1:
        for k in range(0, 14, 2):
            J(f"v_pk_mul_f32 {v(t+k,2)}, {v(t+k,2)}, {v(m,2)} op_sel_hi:[1,0]")
            J(f"v_pk_mul_f32 {v(p+k,2)}, {v(p+k,2)}, {v(m,2)} op_sel:[0,1] op_sel_hi:[1,1]")
    else:
        for k in range(14): J(f"v_mul_f32 v{t+k}, v{t+k}, v{m}\nv_mul_f32 v{p+k}, v{p+k}, v{n}")
    for k in range(7): J(f"v_cvt_pk_bf16_f32 v{o+k}, v{t+2*k}, v{t+2*k+1}")
    for k in range(7): J(f"v_cvt_pk_bf16_f32 v{o+7+k}, v{p+2*k}, v{p+2*k+1}")
    return q.items

def dmag(vaddrs, srd, sbase, sadd, mbase, madd, tag, sreg=None):
    sr = sCt if sreg is None else sreg
    ch = [mk(f"buffer_load_dwordx4 v{a}, {srd}, s{sr} offen offset:{1024*i} lds", tag=tag) for i, a in enumerate(vaddrs)]
    ch[0] = mk(f"s_add_u32 m0, s{mbase}, {madd}\ns_add_u32 s{sr}, s{sbase}, {sadd}") + ch[0]
    return ch

MF = "v_mfma_f32_32x32x16_bf16"
RINGA, NRING = 224, 8
def gemm_lds(steps, ahead=6):
    def rd(i):
        av, o1, o2 = steps[i][:3]; r = RINGA + 4 * (i % NRING)
        return mk(f"ds_read_b64_tr_b16 {a_(r,2)}, v{av} offset:{o1}\nds_read_b64_tr_b16 {a_(r+2,2)}, v{av} offset:{o2}")
    rds = [rd(i) for i in range(len(steps))]
    groups = []
    for i, st in enumerate(steps):
        r = RINGA + 4 * (i % NRING); b, acc, first, swap = st[3]
        A, B = a_(r, 4), v(b, 4)
        if swap: A, B = B, A
        g = mk(f"{MF} {v(acc,16)}, {A}, {B}, {'0' if first else v(acc,16)}")
        if i % 2 == 0 and i + 1 < len(steps):
            r2 = RINGA + 4 * ((i + 1) % NRING); g[0].extra = [('a', r2 + x) for x in range(4)]
        groups.append(g + (rds[i + ahead] if i + ahead < len(steps) else []))
    return flat(rds[:ahead]), groups

FAST = opt('fast', 1)
LO = """s_load_dwordx2 s[12:13], s[0:1], 8
s_load_dwordx2 s[16:17], s[0:1], 16
s_load_dwordx2 s[20:21], s[0:1], 24
s_load_dwordx2 s[24:25], s[0:1], 40
s_load_dwordx2 s[28:29], s[0:1], 48
s_load_dwordx2 s[32:33], s[0:1], 56
s_load_dwordx2 s[36:37], s[0:1], 72
"""
CP = f"""v_lshlrev_b32 v3, 4, v1
v_lshl_add_u32 v3, v2, 6, v3
v_lshl_add_u32 v3, v2, 4, v3
v_add_u32 v3, s{sCt}, v3
v_lshlrev_b32 v3, 7, v3
s_and_b32 s76, s76, 0xffffff00
s_mov_b64 exec, 31
global_load_dword v236, v3, s[76:77]
s_mov_b64 exec, -1
"""
MAP1 = [f"""{"s_lshr_b32 s4, s70, 1" if opt("pair", 1) else "s_and_b32 s4, s70, 3"}
s_lshl_b32 s{sT}, s{sT}, 2
s_and_b32 s{sD}, s{sB}, 3
s_add_u32 s{sT}, s{sT}, s{sD}
{"s_and_b32 s59, s70, 1" if opt("pair", 1) else "s_lshr_b32 s59, s70, 2"}
s_lshl_b32 s{sH}, s{sP}, 3
s_lshr_b32 s{sD}, s{sB}, 2
s_add_u32 s{sH}, s{sH}, s{sD}
s_mul_i32 s{sP}, s{sT}, {opt("rt", 2)}
s_add_u32 s{sD}, s{sD}, s{sP}
s_mul_i32 s{sP}, s{sD}, 37
s_lshr_b32 s{sP}, s{sP}, 8
s_mul_i32 s{sP}, s{sP}, 7
s_sub_u32 s{sD}, s{sD}, s{sP}
s_lshl_b32 s{sKX}, s{sD}, 7
""",
f"""s_lshl_b32 s{sT}, s{sA}, 1
s_lshr_b32 s{sD}, s{sB}, 4
s_add_u32 s{sT}, s{sT}, s{sD}
s_mov_b32 s{sH}, s{sCt}
s_and_b32 s{sD}, s{sH}, 7
s_cmp_eq_u32 s{sD}, 7
s_cselect_b32 s{sD}, 3, s{sD}
s_lshl_b32 s{sKX}, s{sD}, 7
""",
f"""s_mov_b32 s{sT}, s{sCt}
s_lshl_b32 s{sH}, s{sA}, 1
s_lshr_b32 s{sD}, s{sB}, 4
s_add_u32 s{sH}, s{sH}, s{sD}
s_and_b32 s{sD}, s{sH}, 7
s_mul_i32 s{sD}, s{sD}, 3
s_mul_i32 s{sP}, s{sD}, 37
s_lshr_b32 s{sP}, s{sP}, 8
s_mul_i32 s{sP}, s{sP}, 7
s_sub_u32 s{sD}, s{sD}, s{sP}
s_lshl_b32 s{sKX}, s{sD}, 7
"""][opt("map1", 0)]
if DIAG: I("s_memrealtime s[78:79]")
I(f"""s_cmp_ge_u32 s2, 256
s_cbranch_scc1 L_end
s_load_dwordx2 s[8:9], s[0:1], 0
{LO if not FAST else ''}{"s_waitcnt lgkmcnt(0)" + chr(10) + "s_memrealtime s[88:89]" if opt("bare", 0) else ""}
s_getpc_b64 s[76:77]
v_and_b32 v1, 63, v0
v_lshrrev_b32 v2, 6, v0
s_and_b32 s{sA}, s2, 7
v_readfirstlane_b32 s{sW}, v2
s_lshr_b32 s{sB}, s2, 3
s_and_b32 s{sCt}, s{sB}, 15
{CP if FAST < 2 else ''}{MAP1}
s_mov_b32 s10, 1835008
s_mov_b32 s11, 0x20000
v_lshrrev_b32 v2, 3, v1
v_mul_u32_u24 v244, 896, v2
v_lshrrev_b32 v2, 4, v1
v_and_b32 v8, 7, v1
v_xor_b32 v2, v2, v8
v_lshl_add_u32 v244, v2, 4, v244
v_xor_b32 v245, 64, v244
v_add_u32 v245, {7168-1024}, v245
v_add_u32 v246, {2*(7168-1024)}, v244
v_add_u32 v247, {2*(7168-1024)}, v245
s_lshl_b32 s{sQ}, s{sT}, 2
s_add_u32 s{sQ}, s{sQ}, s{sW}
s_mul_i32 s{sQ}, s{sQ}, {32*896}
s_lshr_b32 s{sXO}, s{sW}, 1
s_add_u32 s{sXO}, s{sXO}, s{sW}
s_mul_i32 s{sXO}, s{sXO}, {XW}
s_waitcnt lgkmcnt(0)""")
st0 = stampi("start")
if not opt("bare", 0): P.add(st0)
def xdma(g): return flat(dmag([244, 245, 246, 247], X, sQ, f"s{sKX+g}", sXO, 4096*g, f"x{g}"))
P.add(xdma(0))
if FAST: I(LO)
if FAST == 2: I(f"v_lshrrev_b32 v2, 6, v0\ns_and_b32 s{sCt}, s{sB}, 15\n" + CP)
I(f"""s_mov_b32 s14, {0 if opt('abl',0)&8 else 1204224}
s_mov_b32 s15, 0x20000
v_and_b32 v8, 3, v1""")
def wtouch(mask16, dst):
    m = mask16 | (mask16 << 16)
    return mk(f"s_mov_b32 exec_lo, {hex(m)}\ns_mov_b32 exec_hi, {hex(m)}\nbuffer_load_dword v{dst}, v255, {WQKV}, 0 offen\ns_mov_b64 exec, -1")
def kxs(g): return mk(f"s_add_u32 s{sKX+g}, s{sKX+g-1}, 128\ns_cmp_ge_u32 s{sKX+g}, 896\ns_cselect_b32 s{sD}, 896, 0\ns_sub_u32 s{sKX+g}, s{sKX+g}, s{sD}")
NXE = opt("nxe", 2)
if opt("wtfirst", 1) and opt("wt0", 0): P.add(wtouch(opt("wt0", 0), 237))
for g in range(1, NXE): P.add(kxs(g) + xdma(g))
if not opt("wtfirst", 1) and opt("wt0", 0): P.add(wtouch(opt("wt0", 0), 237))
if FAST: I("s_waitcnt lgkmcnt(0)")
if opt("wsoff", 0): I(f"s_add_u32 s36, s36, {opt('wsoff', 0)}\ns_addc_u32 s37, s37, 0")
I(f"""s_mov_b32 s38, {WS_SIZE}
s_mov_b32 s39, 0x20000
s_mov_b32 s18, 25088
s_mov_b32 s19, 0x20000
s_mov_b32 s22, {0 if opt('abl',0)&4 else 401408}
s_mov_b32 s23, 0x20000
s_xor_b32 s{sHQ}, s{sH}, 1
v_mov_b32 v11, 0
v_lshlrev_b32 v6, 7, v1""")
TM = opt("tm", 0)
sm_ld = mk(f"""s_mov_b64 exec, 1
buffer_load_dword v5, v6, {WS}, 0 offen sc1""")
if opt("two_", 1): sm_ld += mk(f"""s_lshl_b32 s56, s2, 2
s_add_u32 s56, s56, s{sW}
s_lshl_b32 s56, s56, 9
s_mov_b64 exec, 15
buffer_load_dword v238, v6, {WO}, s56 offen""")
if opt("twp", 0): sm_ld += mk(f"""s_and_b32 s{sCt}, s{sH}, 14
s_mul_i32 s{sCt}, s{sCt}, 1568
s_mul_i32 s56, s{sW}, 896
s_add_u32 s{sCt}, s{sCt}, s56
s_mov_b64 exec, 127
buffer_load_dword v239, v6, {WPHI}, s{sCt} offen""")
wq_t = mk(f"""s_lshl_b32 s56, s2, 2
s_add_u32 s56, s56, s{sW}
s_mul_i32 s56, s56, 1280
s_mov_b64 exec, 0x3ff
buffer_load_dword v237, v6, {WQKV}, s56 offen
s_mov_b64 exec, -1""")
if opt("twq", 0) == 1: sm_ld += wq_t
sm_ld += mk("s_mov_b64 exec, -1")
if TM == 0: P.add(sm_ld)
for g in range(NXE, 7): P.add(kxs(g))
MORE = opt("more", 0)
I(f"s_mov_b32 s{sONES}, 0x3f803f80\ns_mul_i32 s66, s{sH}, 1568\ns_mul_i32 s81, s{sHQ}, 1568")
_m1 = len(P.items)
I(f"""s_lshl_b32 s{sT2}, s{sA}, 1
s_lshr_b32 s{sD}, s{sB}, 4
s_add_u32 s{sT2}, s{sT2}, s{sD}
s_and_b32 s{sRact}, s{sB}, 15
s_min_u32 s{sR}, s{sRact}, 13
s_mov_b32 s26, {0 if opt('abl',0)&1 else 1605632}
s_mov_b32 s27, 0x20000
s_mov_b32 s30, {0 if opt('abl',0)&2 else 1605632}
s_mov_b32 s31, 0x20000
s_mov_b32 s34, 1835008
s_mov_b32 s35, 0x20000
s_mov_b32 s64, 0
s_mov_b32 s65, -1
s_mov_b32 s{sMASK}, 0xbfffbfff
s_mov_b32 s{sHIM}, 0xffff0000
s_mov_b32 s{sSPIN}, 0
s_mov_b32 s80, 0
s_cmp_ge_u32 s{sR}, 7
s_cselect_b32 s{sU}, 1, 0
s_mul_i32 s{sA}, s{sU}, 7
s_sub_u32 s{sC}, s{sR}, s{sA}""")
sT3 = 67
if opt("map3", 1):
    I(f"""s_and_b32 s{sA}, s{sT2}, 12
s_and_b32 s{sD}, s{sT2}, 1
s_lshl_b32 s{sD}, s{sD}, 1
s_add_u32 s{sA}, s{sA}, s{sD}
s_add_u32 s{sT3}, s{sA}, s{sU}
s_bfe_u32 s{sA}, s{sT2}, 0x10001
s_mul_i32 s{sA}, s{sA}, 7
s_add_u32 s{sR}, s{sA}, s{sC}""")
else: I(f"s_mov_b32 s{sT3}, s{sT2}")
for g in range(7): I(f"s_mul_i32 s{sKW+g}, s{sKX+g}, {172032//128}")
I(f"""s_mul_i32 s{sWB}, s{sH}, 56
s_mul_i32 s{sD}, s{sW}, 43008
s_add_u32 s{sWB}, s{sWB}, s{sD}
s_mul_i32 s{sWQ}, s{sHQ}, 56
s_add_u32 s{sWQ}, s{sWQ}, s{sD}
s_add_u32 s{sWB}, s{sWB}, 896
s_lshl_b32 s{sWM}, s{sW}, 10""")
_m0 = _m1 if MORE else len(P.items)
I(f"""s_lshl_b32 s{sA}, s{sH}, 4
s_add_u32 s{sA}, s{sA}, s{sT}
s_mul_i32 s{sA}, s{sA}, 4608
s_add_u32 s{sA}, s{sA}, {WS_PART}
s_add_u32 s{sPST}, s{sA}, s{sWM}
s_lshl_b32 s{sD}, s{sW}, 7
s_add_u32 s{sA}, s{sA}, s{sD}
s_add_u32 s{sPCK}, s{sA}, 4096
s_lshl_b32 s{sA}, s{sT}, 2
s_add_u32 s{sA}, s{sA}, s{sW}
s_lshl_b32 s{sA}, s{sA}, 15
s_lshl_b32 s{sB}, s{sHQ}, 11
s_add_u32 s{sA}, s{sA}, s{sB}
s_add_u32 s{sOST}, s{sA}, {WS_O}
s_lshl_b32 s{sA}, s{sT2}, 2
s_lshl_b32 s{sB}, s{sU}, 1
s_add_u32 s{sA}, s{sA}, s{sB}
s_and_b32 s{sB}, s{sW}, 1
s_add_u32 s{sTILE}, s{sA}, s{sB}
s_mul_i32 s{sA}, s{sA}, {32*896}
s_lshl_b32 s{sB}, s{sC}, 7
s_add_u32 s{sA}, s{sA}, s{sB}
s_mul_i32 s{sD}, s{sW}, {16*896}
s_add_u32 s{sXRB}, s{sA}, s{sD}
s_mul_i32 s{sA}, s{sTILE}, {32*896}
s_add_u32 s{sA}, s{sA}, s{sB}
s_lshr_b32 s{sB}, s{sW}, 1
s_lshl_b32 s{sB}, s{sB}, 6
s_add_u32 s{sOUT}, s{sA}, s{sB}
s_mul_i32 s{sP}, s{sHQ}, {16*4608}
s_add_u32 s{sP}, s{sP}, {WS_PART}""")
deferred = P.items[_m0:]; del P.items[_m0:]
WPK, WPQ, WPT = 192, 200, 208
vWPA, vWPB, vKVX, vIMW, vKA, vKB, vFPD, vFPC, vWO0, vWO1, vXRD0, vXRD1, vXRR, vWOR = range(128, 142)
I(f"""v_lshrrev_b32 v3, 5, v1
v_bfe_u32 v11, v1, 3, 2
v_lshl_add_u32 v11, v11, 2, v8
v_bfe_u32 v12, v1, 2, 1
v_mul_u32_u24 v12, 14, v12
v_min_u32 v13, 13, v11
v_add_u32 v13, v13, v12
v_lshlrev_b32 v13, 1, v13
v_mul_u32_u24 v14, 224, v3
v_add_u32 v{vWPA}, v13, v14
v_lshl_add_u32 v{vWPB}, v3, 20, v{vWPA}
v_and_b32 v9, 31, v1
v_lshlrev_b32 v240, 7, v9
v_bfe_u32 v10, v1, 1, 3
v_xor_b32 v10, v10, v3
v_lshl_add_u32 v240, v10, 4, v240
v_add_u32 v240, s{sXO}, v240
v_xor_b32 v241, 32, v240
v_xor_b32 v242, 64, v240
v_xor_b32 v243, 96, v240
v_mov_b32 v250, 0
v_mov_b32 v251, 0""")
_m2 = len(P.items)
I(f"""v_lshlrev_b32 v2, 4, v1
v_lshlrev_b32 v4, 2, v1
v_add_u32 v12, v12, v11
v_cmp_gt_u32 vcc, 14, v11
v_lshrrev_b32 v7, 2, v1
v_mul_u32_u24 v7, 2688, v7
v_cndmask_b32 v12, 28, v12, vcc
v_and_b32 v13, 15, v12
v_lshlrev_b32 v13, 4, v13
v_lshrrev_b32 v12, 4, v12
v_lshl_add_u32 v13, v12, 3, v13
v_lshl_add_u32 v13, v3, 8, v13
v_add_u32 v{vKVX}, {L_KVX}, v13
v_lshlrev_b32 v11, 4, v8
v_min_u32 v11, 40, v11
v_add_u32 v7, v7, v11""")
_m0 = _m2 if MORE else len(P.items)
I(f"""s_lshl_b32 s{sA}, s{sW}, 5
v_add_u32 v10, s{sA}, v9
v_mul_u32_u24 v10, 208, v10
v_mul_u32_u24 v11, 96, v3
v_add_u32 v{vIMW}, v10, v11
v_lshrrev_b32 v10, 4, v1
v_bfe_u32 v15, v1, 2, 2
v_lshl_add_u32 v10, v10, 3, v15
v_mul_u32_u24 v10, 208, v10
v_and_b32 v11, 1, v1
v_mul_u32_u24 v11, 96, v11
v_add_u32 v10, v10, v11
v_bfe_u32 v11, v1, 1, 1
v_lshl_add_u32 v10, v11, 3, v10
v_add_u32 v{vKB}, {L_IMG}, v10
s_lshl_b32 s{sA}, s{sW}, 4
v_add_u32 v{vKA}, s{sA}, v{vKB}
v_add_u32 v{vFPD}, s{sWM}, v2
s_lshl_b32 s{sD}, s{sW}, 7
s_add_u32 s{sD}, s{sD}, 4096
v_lshlrev_b32 v0, 1, v1
v_add_u32 v{vFPC}, s{sD}, v0
v_lshrrev_b32 v12, 3, v1
v_mul_u32_u24 v14, 896, v12
v_and_b32 v13, 7, v1
v_xor_b32 v12, v12, v13
v_lshl_add_u32 v{vXRD0}, v12, 4, v14
v_add_u32 v{vXRD1}, {7168-1024}, v{vXRD0}
v_bfe_u32 v12, v1, 4, 1
v_lshlrev_b32 v11, 2, v12
v_xor_b32 v11, v11, v13
v_lshl_add_u32 v{vWO0}, v11, 4, v14
v_add_u32 v{vWO1}, {7168-1024}, v{vWO0}
s_and_b32 s{sA}, s{sW}, 1
s_lshl_b32 s{sA}, s{sA}, 12
s_add_u32 s{sA}, s{sA}, {L_XCH}
v_lshlrev_b32 v10, 7, v9
v_lshl_add_u32 v10, v3, 3, v10
v_add_u32 v10, s{sA}, v10
s_lshr_b32 s{sA}, s{sW}, 1
s_lshl_b32 s{sB}, s{sA}, 2
v_xor_b32 v13, s{sB}, v13
v_lshl_add_u32 v{vXRR}, v13, 4, v10
v_mad_u32_u24 v10, v3, 14, v15
v_lshlrev_b32 v10, 7, v10
v_bfe_u32 v13, v1, 3, 1
v_xor_b32 v13, v13, v3
v_xor_b32 v13, s{sA}, v13
v_lshl_add_u32 v10, v13, 6, v10
v_lshl_add_u32 v10, v12, 5, v10
v_lshl_add_u32 v10, v8, 3, v10
s_mul_i32 s{sA}, s{sA}, {4*28*128}
s_add_u32 s{sA}, s{sA}, {L_WO}
v_add_u32 v{vWOR}, s{sA}, v10
v_lshl_add_u32 v11, v3, 3, v15
v_lshlrev_b32 v11, 6, v11
v_lshl_add_u32 v12, v12, 2, v8
v_cmp_lt_u32 vcc, 5, v12
v_xor_b32 v13, 1, v12
v_cndmask_b32 v12, v12, v13, vcc
v_lshl_add_u32 v11, v12, 3, v11
v_add_u32 v13, {L_WK}, v11""")
I(f"""v_bfe_u32 v10, v1, 2, 1
v_bfe_u32 v14, v1, 4, 1
v_lshl_add_u32 v10, v14, 1, v10
v_cmp_eq_u32 vcc, v10, v3
v_and_b32 v10, 1, v1
v_lshlrev_b32 v10, 4, v10
v_mov_b32 v14, 0x3f80
v_lshlrev_b32 v10, v10, v14
v_cndmask_b32 v10, 0, v10, vcc
v_bfe_u32 v14, v1, 3, 1
v_bfe_u32 v15, v1, 1, 1
v_lshl_add_u32 v14, v14, 1, v15""")
for q in range(4): I(f"v_cmp_eq_u32 vcc, {q}, v14\nv_cndmask_b32 v15, 0, v10, vcc\nv_accvgpr_write_b32 a{220+q}, v15")
I("v_add_u32 v9, 896, v7")
deferred += P.items[_m0:]; del P.items[_m0:]
RELOC = opt("reloc", 0)
if RELOC:
    deferred = mk(f"""v_bfe_u32 v15, v1, 2, 2
v_bfe_u32 v12, v1, 4, 1
v_lshl_add_u32 v11, v3, 3, v15
v_lshlrev_b32 v11, 6, v11
v_lshl_add_u32 v12, v12, 2, v8
v_cmp_lt_u32 vcc, 5, v12
v_xor_b32 v13, 1, v12
v_add_u32 v9, 896, v7
v_lshlrev_b32 v0, 1, v1
v_cndmask_b32 v12, v12, v13, vcc
v_lshl_add_u32 v11, v12, 3, v11
v_add_u32 v13, {L_WK}, v11""")
    snA = mk(f"""s_lshl_b32 s{sA}, s{sH}, 4
s_add_u32 s{sA}, s{sA}, s{sT}
s_mul_i32 s{sA}, s{sA}, 4608
s_add_u32 s{sA}, s{sA}, {WS_PART}
s_add_u32 s{sPST}, s{sA}, s{sWM}
s_lshl_b32 s{sD}, s{sW}, 7
s_add_u32 s{sA}, s{sA}, s{sD}
s_add_u32 s{sPCK}, s{sA}, 4096
s_mul_i32 s{sP}, s{sHQ}, {16*4608}
s_add_u32 s{sP}, s{sP}, {WS_PART}""")
    snB = mk(f"""s_lshl_b32 s{sA}, s{sT2}, 2
s_lshl_b32 s{sB}, s{sU}, 1
s_add_u32 s{sA}, s{sA}, s{sB}
s_and_b32 s{sB}, s{sW}, 1
s_add_u32 s{sTILE}, s{sA}, s{sB}
s_mul_i32 s{sA}, s{sA}, {32*896}
s_lshl_b32 s{sB}, s{sC}, 7
s_add_u32 s{sA}, s{sA}, s{sB}
s_mul_i32 s{sD}, s{sW}, {16*896}
s_add_u32 s{sXRB}, s{sA}, s{sD}""")
    snC = mk(f"""v_bfe_u32 v10, v1, 2, 1
v_bfe_u32 v9, v1, 4, 1
v_lshl_add_u32 v10, v9, 1, v10
v_cmp_eq_u32 vcc, v10, v3
v_and_b32 v10, 1, v1
v_lshlrev_b32 v10, 4, v10
v_mov_b32 v9, 0x3f80
v_lshlrev_b32 v10, v10, v9
v_cndmask_b32 v10, 0, v10, vcc
v_bfe_u32 v9, v1, 3, 1
v_bfe_u32 v143, v1, 1, 1
v_lshl_add_u32 v9, v9, 1, v143""")
    for q in range(4): snC += mk(f"v_cmp_eq_u32 s[{40+2*(q&1)+6}:{41+2*(q&1)+6}], {q}, v9") if False else []
    snC2 = flat([mk(f"v_cmp_eq_u32 vcc, {q}, v9\nv_cndmask_b32 v143, 0, v10, vcc\nv_accvgpr_write_b32 a{220+q}, v143") for q in range(4)])
    snD = mk(f"""s_lshl_b32 s{sA}, s{sT}, 2
s_add_u32 s{sA}, s{sA}, s{sW}
s_lshl_b32 s{sA}, s{sA}, 15
s_lshl_b32 s{sB}, s{sHQ}, 11
s_add_u32 s{sA}, s{sA}, s{sB}
s_add_u32 s{sOST}, s{sA}, {WS_O}
s_mul_i32 s{sA}, s{sTILE}, {32*896}
s_lshl_b32 s{sB}, s{sC}, 7
s_add_u32 s{sA}, s{sA}, s{sB}
s_lshr_b32 s{sB}, s{sW}, 1
s_lshl_b32 s{sB}, s{sB}, 6
s_add_u32 s{sOUT}, s{sA}, s{sB}""")
    snE = mk(f"""v_add_u32 v{vFPD}, s{sWM}, v2
s_lshl_b32 s{sD}, s{sW}, 7
s_add_u32 s{sD}, s{sD}, 4096
v_add_u32 v{vFPC}, s{sD}, v0
v_lshrrev_b32 v12, 3, v1
v_mul_u32_u24 v14, 896, v12
v_and_b32 v13, 7, v1
v_xor_b32 v12, v12, v13
v_lshl_add_u32 v{vXRD0}, v12, 4, v14
v_add_u32 v{vXRD1}, {7168-1024}, v{vXRD0}
v_bfe_u32 v12, v1, 4, 1
v_lshlrev_b32 v12, 2, v12
v_xor_b32 v12, v12, v13
v_lshl_add_u32 v{vWO0}, v12, 4, v14
v_add_u32 v{vWO1}, {7168-1024}, v{vWO0}
v_add_u32 v128, {2*(7168-1024)}, v{vWO0}
v_add_u32 v129, {3*(7168-1024)}, v{vWO0}""")
    snF = mk(f"""s_and_b32 s{sA}, s{sW}, 1
s_lshl_b32 s{sA}, s{sA}, 12
s_add_u32 s{sA}, s{sA}, {L_XCH}
v_and_b32 v9, 31, v1
v_lshlrev_b32 v10, 7, v9
v_lshl_add_u32 v10, v3, 3, v10
v_add_u32 v10, s{sA}, v10
s_lshr_b32 s{sA}, s{sW}, 1
s_lshl_b32 s{sB}, s{sA}, 2
v_and_b32 v9, 7, v1
v_xor_b32 v9, s{sB}, v9
v_lshl_add_u32 v{vXRR}, v9, 4, v10
v_bfe_u32 v9, v1, 2, 2
v_mad_u32_u24 v10, v3, 14, v9
v_lshlrev_b32 v10, 7, v10
v_bfe_u32 v9, v1, 3, 1
v_xor_b32 v9, v9, v3
v_xor_b32 v9, s{sA}, v9
v_lshl_add_u32 v10, v9, 6, v10
v_bfe_u32 v9, v1, 4, 1
v_lshl_add_u32 v10, v9, 5, v10
v_lshl_add_u32 v10, v8, 3, v10
s_mul_i32 s{sA}, s{sA}, {4*28*128}
s_add_u32 s{sA}, s{sA}, {L_WO}
v_add_u32 v{vWOR}, s{sA}, v10""")
    snG = mk(f"""v_and_b32 v10, 31, v1
s_lshl_b32 s{sA}, s{sW}, 5
v_add_u32 v10, s{sA}, v10
v_mul_u32_u24 v10, 208, v10
v_mul_u32_u24 v12, 96, v3
v_add_u32 v{vIMW}, v10, v12
v_lshrrev_b32 v10, 4, v1
v_lshl_add_u32 v10, v10, 3, v15
v_mul_u32_u24 v10, 208, v10
v_and_b32 v12, 1, v1
v_mul_u32_u24 v12, 96, v12
v_add_u32 v10, v10, v12
v_bfe_u32 v12, v1, 1, 1
v_lshl_add_u32 v10, v12, 3, v10
v_add_u32 v{vKB}, {L_IMG}, v10
s_lshl_b32 s{sA}, s{sW}, 4
v_add_u32 v{vKA}, s{sA}, v{vKB}""")
    if opt("gx", 1): deferred += snG; snG = []
    if opt("cx", 0): deferred += snC + snC2 + mk("v_add_u32 v9, 896, v7"); snC = []; snC2 = []
else: snA = snB = snC = snC2 = snD = snE = snF = snG = []
NDEF0 = opt("ndef0", 0)
P.add(deferred[:NDEF0]); deferred = deferred[NDEF0:]
L2N = 0
if L2N:
    I(f"""s_mov_b32 s{sCt}, 0x60504020
s_cmp_ge_u32 s{sH}, 8
s_cselect_b32 s{sCt}, 0x53020100, s{sCt}
s_and_b32 s{sD}, s{sH}, 7
s_lshl_b32 s{sD}, s{sD}, 2
s_lshr_b32 s{sCt}, s{sCt}, s{sD}
s_and_b32 s{sCt}, s{sCt}, 15
s_and_b32 s{sD}, s{sT}, 3
s_mul_i32 s{sD}, s{sD}, 7
s_add_u32 s{sCt}, s{sCt}, s{sD}
s_lshl_b32 s{sCt}, s{sCt}, 2
s_add_u32 s{sCt}, s{sCt}, s{sW}
s_mul_i32 s66, s{sCt}, 14336
s_add_u32 s81, s66, 57344
s_lshl_b32 s{sD}, s{sH}, 1
s_lshr_b32 s{sD}, 0xa111444a, s{sD}
s_and_b32 s{sD}, s{sD}, 3
s_cmp_ge_u32 s{sD}, 1
s_cselect_b32 s66, s66, 0x10000000
s_cmp_ge_u32 s{sD}, 2
s_cselect_b32 s81, s81, 0x10000000
v_add_u32 v143, 7168, v6""")
def l2n(k): return mk(f"s_mov_b32 exec_hi, 0xffffff\nbuffer_load_dword v{142}, v{6 if k % 2 == 0 else 143}, {W1}, s{66 if k < 2 else 81} offen\ns_mov_b32 exec_hi, -1")
stamp("setup done", "p")
def wphi(dst, tmp, so):
    q = []
    for t in range(2):
        for j in range(8):
            d = 16 * t + 8 * (j >> 2) + (j & 3)
            av = vWPB if (t == 1 and j >= 4) else vWPA
            r = (dst if j % 2 == 0 else tmp) + 4 * t + j // 2
            op = "buffer_load_short_d16" if j % 2 == 0 else "buffer_load_short_d16_hi"
            q += mk(f"{op} v{r}, v{av}, {WPHI}, s{so} offen offset:{d*56}")
    return q
def wkdma(g): return flat(dmag([7], WQKV, sWB, f"s{sKW+g}", sWM, L_WK + 4096*g, f"wk{g}"))
def wvdma(g): return flat(dmag([9], WQKV, sWB, f"s{sKW+g}", sWM, L_WV + 4096*g, f"wv{g}"))
def wqdma(g): return flat(dmag([7], WQKV, sWQ, f"s{sKW+g}", sWM, L_WQ + 4096*g, f"wq{g}"))
if opt("fake", 0):
    I(f"""v_mov_b32 v7, v2
v_add_u32 v9, 24576, v2
s_mul_i32 s{sWB}, s{sH}, 73728
s_add_u32 s{sWB}, s{sWB}, s{sWM}
s_mul_i32 s{sWQ}, s{sHQ}, 73728
s_add_u32 s{sWQ}, s{sWQ}, s{sWM}
s_add_u32 s{sWQ}, s{sWQ}, 45056""")
    for g in range(7): I(f"s_lshl_b32 s{sKW+g}, s{sKX+g}, 5")
XF = 16
NX0 = opt("nx0", 3)
if opt("wt1", 0): P.add(wtouch(opt("wt1", 0), 249))
WPP = opt("wpp", 1)
if WPP == 1: P.add(wphi(WPK, WPT, 66) + wphi(WPQ, WPT+8, 81))
for g in range(NXE, NX0): P.add(xdma(g))
if WPP == 2: P.add(wphi(WPK, WPT, 66) + wphi(WPQ, WPT+8, 81))
pend = [xdma(g) for g in range(NX0, 7)]
wkl = [wkdma(g) for g in range(7)]
if opt("twq", 0) >= 3: pend[opt("twq", 0) - NX0] = pend[opt("twq", 0) - NX0] + wq_t
if opt("twq", 0) == 2: P.add(wq_t)
if TM and TM < NX0: P.add(sm_ld)
elif TM: pend[TM - NX0] = pend[TM - NX0] + sm_ld
if opt("wt2", 0): pend[-1] = pend[-1] + wtouch(opt("wt2", 0), 248)
pend.append(wkl.pop(0) + (wphi(WPK, WPT, 66) if not WPP else []))
pend.append(wkl.pop(0) + (wphi(WPQ, WPT+8, 81) if not WPP else []))
while len(pend) < 7: pend.append(wkl.pop(0))
def xrd(g): return flat([mk(f"ds_read_b128 {v(XF+16*g+4*e,4)}, v{240+e} offset:{4096*g}") for e in range(4)])
_n = opt("ndefx", 0)
while 0 < _n < len(deferred) and deferred[_n-1].op.startswith("s_cmp"): _n += 1
P.add(deferred[:_n]); deferred = deferred[_n:]
P.wait("x0"); P.add(xrd(0))
for g in range(7):
    if pend: P.add(pend.pop(0))
    if g + 1 < 7: P.wait(f"x{g+1}"); P.add(xrd(g + 1))
    for i in range(16):
        r = XF + 16*g + i
        I(f"v_dot2c_f32_bf16 v250, s{sONES}, v{r}\nv_dot2c_f32_bf16 v251, v{r}, v{r}")
    nd_ = -(-len(deferred) // max(1, opt("ndi", 4) - g)) if g < opt("ndi", 4) else len(deferred)
    while 0 < nd_ < len(deferred) and deferred[nd_-1].op.startswith("s_cmp"): nd_ += 1
    P.add(deferred[:nd_]); deferred = deferred[nd_:]
    if g == 0: stamp("x0 done", "p")
for x_ in pend: P.add(x_)
if opt("tp", 0) == 2:
    I(f"""s_mul_i32 s{sCt}, s2, {52*128}
s_mul_i32 s{sD}, s{sW}, {13*128}
s_add_u32 s{sCt}, s{sCt}, s{sD}
s_mov_b64 exec, 0x1fff
buffer_load_dword v254, v6, {W2}, s{sCt} offen
buffer_load_dword v255, v6, {W1}, s{sCt} offen
s_mov_b64 exec, -1""")
stamp("x stats done", "mp")
I(f"""v_permlane32_swap_b32 v250, v251
v_readfirstlane_b32 s{sA}, v5
s_nop 0
v_add_f32 v250, v250, v251
v_mul_f32 v250, {fhex(-1/448)}, v250
v_mov_b32 v251, v250
s_or_b32 s{sA}, s{sA}, 1
s_mul_i32 s{sA}, s{sA}, 0x9E3779B5
v_mov_b32 v5, s{sA}
s_mov_b32 s{sA}, 0x3f80
v_permlane32_swap_b32 v250, v251
s_mov_b32 s{sB}, 0x3f800000""")
fin = mk(f"""v_fma_f32 v251, -v250, v250, -v251
v_max_f32 v251, 0, v251
v_add_f32 v251, 0x3727c5ac, v251
v_rsq_f32 v251, v251
s_lshl_b32 s{sQ}, s{sC}, 7
s_mul_i32 s{sD}, s{sW}, {16*896}
v_mul_f32 v252, 0x3fb8aa3b, v251
v_mul_f32 v253, 0xbfb8aa3b, v251
s_add_u32 s{sQ}, s{sQ}, s{sD}
s_lshl_b32 s{sXO}, s{sW}, 11""")
if opt("noid", 1): fin = [mk(f"s_cmp_ge_u32 s{sRact}, 14\ns_cselect_b32 s22, 0, s22")] + fin
ACK = 144; ACV = 160; PK = 176; IMG = 208; TMP = 232
def norm(t):
    q = Prog(); tb = TMP + 8 * (t & 1)
    for i in range(4):
        r = XF + 4 * t + i
        q.I(f"v_dot2_f32_bf16 v{tb+2*i}, v{r}, s{sA}, v250\nv_dot2_f32_bf16 v{tb+2*i+1}, v{r}, s{sB}, v250")
    return q.items
def normc(t):
    tb = TMP + 8 * (t & 1)
    return flat([mk(f"v_cvt_pk_bf16_f32 v{XF+4*t+i}, v{tb+2*i}, v{tb+2*i+1}") for i in range(4)])
def l2t(srd, k, dst):
    return mk(f"""s_lshr_b32 s{sCt}, s2, 3
s_lshl_b32 s{sCt}, s{sCt}, 2
s_add_u32 s{sCt}, s{sCt}, s{sW}
s_mul_i32 s{sCt}, s{sCt}, {98*128}
s_mov_b32 exec_hi, 0x1ffff
s_add_u32 s{sCt}, s{sCt}, {k*49*128}
buffer_load_dword v{dst}, v6, {srd}, s{sCt} offen
s_mov_b32 exec_hi, -1""")
L2A, L2B = opt("l2a", -1), opt("l2b", -1)
touch = mk(f"""s_mul_i32 s{sCt}, s2, {52*128}
s_mul_i32 s56, s{sW}, {13*128}
s_add_u32 s{sCt}, s{sCt}, s56
s_mov_b64 exec, 0x1fff
buffer_load_dword v255, v6, {W1}, s{sCt} offen
buffer_load_dword v254, v6, {W2}, s{sCt} offen
s_mov_b64 exec, -1""")
TP = opt('tp', 0)
ns = norm(0)
for t in range(1, 28): ns += norm(t) + normc(t - 1)
ns += normc(27)
NBAR = opt("nbar", 100)
wvl = [wvdma(k) for k in range(7)]
if opt("loop2", 0):
    I("s_mov_b32 s80, 0\nL_lp2:\ns_mov_b32 s101, s100\ns_memtime s[78:79]\ns_waitcnt lgkmcnt(0)\ns_mov_b32 s99, s78")
    P.add([Ins(x.text) for x in ns])
    I("s_memtime s[78:79]\ns_waitcnt lgkmcnt(0)\ns_sub_u32 s100, s78, s99\ns_add_u32 s100, s100, s88\ns_add_u32 s80, s80, 1\ns_cmp_lt_u32 s80, 2\ns_cbranch_scc1 L_lp2")
    nstamp[0] = 14
P.add(sprinkle(ns[:NBAR], wkl, 0, opt("wkstep", 30)))
if opt("touch", 1) and TP == 1: P.add(touch)
I("s_barrier")
NWV0 = opt("nwv0", 4)
w0_ = [wvl.pop(0) for _ in range(NWV0)]
if L2N == 1: w0_[0] = l2n(0) + w0_[0]; w0_[-1] = w0_[-1] + l2n(2); wvl[-1] = wvl[-1] + l2n(1)
if L2N == 2: wvl[-1] = wvl[-1] + l2n(0) + l2n(2)
P.add(sprinkle(ns[NBAR:], w0_, opt("wv0", 30), opt("wvstep", 50)))
P.wait(*[f"wk{k}" for k in range(7)]); I("s_barrier")
stamp("wk landed", "p")
if opt("zy", 0): I(f"s_sleep {opt('zy', 0)}")
AH = 6
sW1B, sW1M, sW2E, sW2L = 40, 41, 42, 43
set2 = mk(f"""v_lshrrev_b32 v10, 4, v1
v_mul_u32_u24 v12, 3584, v10
v_lshlrev_b32 v10, 2, v10
v_and_b32 v13, 15, v1
v_xor_b32 v10, v10, v13
v_lshl_add_u32 v12, v10, 4, v12
v_add_u32 v13, {4*3584-1024}, v12
v_add_u32 v14, {2*(4*3584-1024)}, v12
v_add_u32 v15, {3*(4*3584-1024)}, v12
s_lshl_b32 s{sW1B}, s{sR}, 8
s_mul_i32 s{sD}, s{sW}, {16*3584}
s_add_u32 s{sW1B}, s{sW1B}, s{sD}
s_lshl_b32 s{sW1M}, s{sW}, 12
s_lshr_b32 s{sA}, s{sW}, 1
s_lshl_b32 s{sA}, s{sA}, 2
s_andn2_b32 s{sB}, 1, s{sW}
s_add_u32 s{sA}, s{sA}, s{sB}
s_lshl_b32 s{sB}, s{sU}, 1
s_add_u32 s44, s{sA}, s{sB}
s_xor_b32 s45, s44, 2
s_lshl_b32 s{sD}, s{sC}, 7
s_mul_i32 s{sW2E}, s44, {32*896}
s_add_u32 s{sW2E}, s{sW2E}, s{sD}
s_mul_i32 s{sW2L}, s45, {32*896}
s_add_u32 s{sW2L}, s{sW2L}, s{sD}
""")
vW2 = [vWO0, vWO1, 128, 129]
sSCR, sBIG = 46, 47
NA = opt("na", 0)
NUR = opt("nur", 2); NT1 = min(NA, opt("nt1", 99))
_u = list(range(14))
def take(n): return [_u.pop(0) for _ in range(min(n, len(_u)))]
UAW = take(NA); UR = take(NUR); UD = take(opt("nud", 2)); UE = take(3); UL = take(opt("nrl", 4)); UP = take(99)
assert all(j >= 7 for j in UL + UP) and all(j >= 4 for j in UE)
RAWS = UAW + UR + UL
def UA(j): return 16*j
def w2slot(j):
    if j in UE: return (sSCR, 4096*UE.index(j), 254)
    if j in UAW + UR + UD: return (sSCR, 4096*(j & 1), 254)
    return (sBIG, 4096*(UL + UP).index(j), 252)
def w2dma(j):
    mb, mo, _ = w2slot(j)
    return dmag(vW2, W2, sW2E if j < 7 else sW2L, (j%7)*256*896, mb, mo, f"w2_{j}", sDM)
def w2raw(j):
    ch = [mk(f"buffer_load_dwordx4 {a_(UA(j)+4*q,4)}, v{vW2[q]}, {W2}, s81 offen offset:{1024*q}") for q in range(4)]
    ch[0] = mk(f"s_add_u32 s81, s{sW2E if j < 7 else sW2L}, {(j%7)*256*896}") + ch[0]
    return ch
def w2rd(j):
    _, mo, av = w2slot(j)
    if j in RAWS: out = [mk(f"ds_write_b128 v{131 if j in UL else 134}, {a_(UA(j)+4*q,4)} offset:{mo+1024*q}") for q in range(4)]
    else: out = [[WaitTag([f"w2_{j}"])]]
    for e in range(2):
        for mu in range(2):
            for u in range(2): out.append(mk(f"ds_read_b64_tr_b16 {a_(UA(j)+8*e+4*mu+2*u,2)}, v{av+mu} offset:{mo+2048*e+1024*u}"))
    return out
raw = flat([w2raw(j) for j in UR])
rawA = flat([w2raw(j) for j in UAW])
if opt("noid", 1): set2 = [mk(f"s_cmp_ge_u32 s{sRact}, 14\ns_cselect_b32 s26, 0, s26")] + set2
if not RELOC: set2 += mk(f"v_add_u32 v128, {2*(7168-1024)}, v{vWO0}\nv_add_u32 v129, {3*(7168-1024)}, v{vWO0}")
set2b = [x for x in set2 if isinstance(x, Ins) and x.cls == 'valu' and x.defs[0][1] < 128]
if opt("trim", 1):
    set2 = [mk(f"""s_cmp_eq_u32 s{sW}, 3
s_cselect_b64 vcc, {sHI}, 0
v_mov_b32 v143, 0x10000000
v_add_u32 v133, s{sWM}, v2
v_cndmask_b32 v142, v5, 0, vcc
v_cndmask_b32 v{vFPD}, v{vFPD}, v143, vcc
v_cndmask_b32 v{vFPC}, v{vFPC}, v143, vcc""")] + set2
set2b = [x for x in set2 if isinstance(x, list)] + set2b
set2a = [x for x in set2 if x not in set2b]
pro, gk = gemm_lds([(13, 1024*t, 1024*t + 256, (XF + 4*t, ACK, t == 0, False)) for t in range(28)], AH)
P.add(pro)
S = Sched(gk)
S.spread(wvl, 0, opt("wve", 16))
NQK = opt("nqk", 2)
S.spread([wqdma(k) for k in range(NQK)], opt("wve", 16), 28)
EARLY = opt("early", 0)
if EARLY:
    P.add(flat([x if isinstance(x, list) else [x] for x in fin + set2a])); fin = []
    wo_l = flat([dmag([vWO0, vWO1], WO, sQ, i*64*896, sXO, L_WO + 8192*i, "wo", sDM) for i in range(7)] + [dmag([vXRD0, vXRD1], X, sXRB, 0, sXO, L_XCH, "wo", sDM)])
    if EARLY == 2:
        S.spread([wo_l[2*i] + wo_l[2*i+1] for i in range(8)], 0, 28)
    else: S.spread([rawA.pop(0) for _ in range(min(len(rawA), opt("ne1", 8)))], 0, 28)
else: fin = fin + set2a + snG
if TP == 3: S.at(opt("tpos", 22), touch)
for k, ps in enumerate((L2A, L2B)):
    if 0 <= ps < 28: S.at(ps, l2t(W1, k, 248 + k))
S.spread(fin + flat([mk(f"v_or_b32 v{WPK+q}, v{WPK+q}, v{WPT+q}\nv_or_b32 v{WPQ+q}, v{WPQ+q}, v{WPT+8+q}") for q in range(8)]), 2, 26)
P.add(S.emit())
def phi_pre(acc, wp):
    q = Prog()
    for i in range(8): q.I(f"v_cvt_pk_bf16_f32 v{acc+i}, v{acc+2*i}, v{acc+2*i+1}")
    q.I(f"{MF} {v(PK,16)}, {v(wp,4)}, {v(acc,4)}, 0\n{MF} {v(PK,16)}, {v(wp+4,4)}, {v(acc+4,4)}, {v(PK,16)}")
    return q.items
stamp("k gemm done", "mp")
wql = [wqdma(k) for k in range(NQK, 7)]
P.add(wql.pop(0))
P.add(snA)
P.add(phi_pre(ACK, WPK))
imw = flat([mk(f"ds_write_b128 v{vIMW}, {v(IMG+4*i,4)} offset:{L_IMG+16*i}") for i in range(3)]) + mk(f"ds_write_b64 v{vIMW}, {v(IMG+12,2)} offset:{L_IMG+48}")
smk = sprinkle(softmax(PK, TMP, IMG, True), [wql.pop(0) for _ in range(min(len(wql), opt("nwq0", 3)))], 10, opt("wqs", 40))
if EARLY: smk = sprinkle(smk, [rawA.pop(0) for _ in range(min(len(rawA), opt("ne2", 8)))], 5, 16)
WEAVE = opt("weave", 1)
pro, gv = gemm_lds([(11, L_WV + 1024*t, L_WV + 1024*t + 256, (XF + 4*t, ACV, t == 0, False)) for t in range(28)], AH)
S = Sched(gv)
if not WEAVE:
    P.add(smk)
    P.wait(*[f"wv{k}" for k in range(7)]); I("s_barrier")
    stamp("softmax k done", "p")
    P.add(pro)
    S.spread(imw, 2, 10)
else:
    smf = softmax(PK, TMP, IMG, 2)
    n0 = next(i for i, x in enumerate(smf) if x.op == "v_exp_f32")
    P.wait(*[f"wv{k}" for k in range(4)]); I("s_barrier")
    P.add(pro)
    P.add(smf[:n0])
    stamp("softmax k done", "p")
    S.spread(smf[n0:] + imw, 0, 28)
    S.at(15 - AH, [WaitTag(["wv4", "wv5", "wv6"])] + mk("s_barrier"), 1.0)
    wql = [wqdma(k) for k in range(NQK + 1, 7)]
wo_l = flat([dmag([vWO0, vWO1], WO, sQ, i*64*896, sXO, L_WO + 8192*i, "wo", sDM) for i in range(7)] + [dmag([vXRD0, vXRD1], X, sXRB, 0, sXO, L_XCH, "wo", sDM)])
if EARLY == 2: wo_l = []
S.spread(wql, 0, opt('wqe', 10))
if EARLY: S.spread([rawA.pop(0) for _ in range(min(len(rawA), opt("ne3", 8)))], 0, 22)
if L2A >= 0 or L2N: touch = [x for x in touch if W1 not in x.text]
if L2N == 1: S.at(opt("l2p", 14), l2n(3))
if L2N == 2: S.at(opt("l2p", 14), l2n(1) + l2n(3))
tlb = []
if opt("tlb", 0) & 1: tlb += mk(f"s_mov_b64 exec, 1\nbuffer_load_dword v248, v6, {OUT}, s{sOUT} offen\ns_mov_b64 exec, -1")
if opt("tlb", 0) & 2: tlb += mk(f"v_lshlrev_b32 v249, 20, v1\ns_mov_b64 exec, 0xffff\nbuffer_load_dword v249, v249, {WS}, 0 offen offset:4092\ns_mov_b64 exec, -1")
if tlb: S.at(opt("tlbp", 13), tlb)
if opt("touch", 1) and TP == 0: S.at(opt("tpos", 11), touch)
for k, ps in enumerate((L2A, L2B)):
    if 200 <= ps < 228: S.at(ps - 200, l2t(W1, k, 248 + k))
S.spread([wo_l.pop(0) for _ in range(2*opt("nwo0", 0))], opt("wos", 17), opt("woe2", 28))
P.add(S.emit())
P.add(snB)
for k in range(0, 16, 2): I(f"v_pk_mul_f32 {v(ACV+k,2)}, {v(ACV+k,2)}, v[250:251] op_sel:[0,1] op_sel_hi:[1,1]")
I(f"v_cndmask_b32 v{ACV+12}, v{ACV+12}, 1.0, {sHI}")
for i in range(8): I(f"v_cvt_pk_bf16_f32 v{IMG+16+i}, v{ACV+2*i}, v{ACV+2*i+1}")
for i in range(4, 6): I(f"ds_write_b128 v{vIMW}, {v(IMG+4*i,4)} offset:{L_IMG+16*i}")
P.wait("wq0", "wq1", "wq2", "wq3")
I("s_waitcnt lgkmcnt(0)\ns_barrier")
stamp("img written", "p")
KA = 144; KBv = 208; KD = 176
for k in range(4):
    for u in range(2):
        I(f"ds_read_b64_tr_b16 {v(KA+4*k+2*u,2)}, v{vKA} offset:{(32*k+4*u)*208}")
    for nu in range(2):
        for u in range(2):
            I(f"ds_read_b64_tr_b16 {v(KBv+8*k+4*nu+2*u,2)}, v{vKB} offset:{(32*k+4*u)*208+64+16*nu}")
P.add(snE)
proq, gq = gemm_lds([(11, L_WQ + 1024*t, L_WQ + 1024*t + 256, (XF + 4*t, ACV, t == 0, False)) for t in range(28)], AH)
for k in range(4):
    for nu in range(2):
        I(f"v_mfma_f32_16x16x32_bf16 {v(KD+4*nu,4)}, {v(KA+4*k,4)}, {v(KBv+8*k+4*nu,4)}, {'0' if k == 0 else v(KD+4*nu,4)}")
P.add(proq[:8])
for i in range(4): I(f"v_cvt_pk_bf16_f32 v{KD+8+i}, v{KD+2*i}, v{KD+2*i+1}")
I(f"buffer_store_dwordx4 {v(KD+8,4)}, v2, {WS}, s{sPST} offen sc1")
I(f"v_xor_b32 v10, v{KD+8}, v5")
I(f"buffer_store_short v10, v0, {WS}, s{sPCK} offen sc1")
if GATE & 1: P.add(flag_store(16))
P.add(proq[8:])
stamp("partial stored", "mp")
S = Sched(gq)
ROTP = opt("rotp", 1)
if ROTP:
    rp = []
    for b in range(4): rp += mk(f"s_lshr_b32 s{50+b}, s{sT}, 2\ns_add_u32 s{50+b}, s{50+b}, {b}\ns_and_b32 s{50+b}, s{50+b}, 3\ns_mul_i32 s{50+b}, s{50+b}, {4*4608}\ns_add_u32 s{50+b}, s{50+b}, s{sP}")
    S.spread(rp, 4, 20)
bgA = wo_l + rawA
nq = min(len(bgA), opt("nq", 16))
S.spread(bgA[:nq], 0, 28)
S.spread(set2b, 2, 18)
G0 = gate("g0", vPO, vPF)
if GATE & 1: S.at(opt("g0", 14), G0.load(0))
S.at(15 - AH, [WaitTag(["wq4", "wq5", "wq6"])] + mk("s_barrier"), 1.0)
P.add(S.emit())
stamp("q gemm done", "p")
G = 16; GC = 80; SA = 96
FP = Fetch("fp", [([f"s_add_u32 s{sCt}, s{50 + (T >> 2) if ROTP else sP}, {4608*(T & 3 if ROTP else T)}\nbuffer_load_dwordx4 {v(G+4*T,4)}, v{vFPD}, {WS}, s{sCt} offen sc1\nbuffer_load_ushort v{GC+T}, v{vFPC}, {WS}, s{sCt} offen sc1"],
                   [G+4*T, GC+T]) for T in range(16)])
NFE = opt("nfe", 4)
for T in range(NFE): P.add(FP.load(T))
P.add(phi_pre(ACV, WPQ))
I("s_barrier")
P.add(snC + snC2)
PQ = 208
smq = softmax(PK, TMP, PQ, True); f0 = opt("fp0", 30)
P.add(sprinkle(smq[:f0], bgA[nq:], 0, opt("as", 8)))
P.add(sprinkle(smq[f0:], [FP.load(T) for T in range(NFE, 16)], 0, opt("fpstep", 6)))
stamp("softmax q done", "p")
w1_l = flat([dmag([12, 13, 14, 15], W1, sW1B, i*64*3584, sW1M, 16384*i, "w1", sDM) for i in range(7)])
def fpb(b):
    t = []
    for k, T in enumerate(range(4*b, 4*b+4)):
        t.append(f"v_bitop3_b32 v{10 if k == 0 else 9}, v{G+4*T}, v{GC+T}, v{142 if opt('trim', 1) else 5} {X3}" + ("" if k == 0 else "\nv_or_b32 v10, v10, v9"))
    return "\n".join(t) + "\nv_cmp_ne_u16 vcc, 0, v10"
RI = TAIL.I if (opt("ool", 15) & 1) else I
if not (opt("ool", 15) & 1): I("s_branch L_fp_go")
RI("L_fp_retry:" + ("\ns_add_u32 s80, s80, 1" if DIAG else ""), unc=True)
for b in range(4):
    RI(fpb(b) + f"\ns_cbranch_vccz L_fp_k{b}\n" + "\n".join(FP.pieces[T][0][0] for T in range(4*b, 4*b+4)) + f"\nL_fp_k{b}:", unc=True)
RI(GUARD, unc=True)
if (opt("ool", 15) & 1): RI("s_branch L_fp_go", unc=True)
I("L_fp_go:")
I(fpb(0) + "\ns_cbranch_vccnz L_fp_retry")
S = Sched([mk(f"{MF} {v(SA,16)}, a[220:223], {v(G+4*T,4)}, {'0' if T == 0 else v(SA,16)}") for T in range(16)])
for b in range(1, 4): S.spread(mk(fpb(b) + "\ns_cbranch_vccnz L_fp_retry"), 4*b - 3, 4*b)
S.spread([w1_l.pop(0) for _ in range(opt("nw1a", 8))], opt("w1as", 2), 16)
P.add(S.emit())
I(f"v_add_u32 v9, {L_KVX}, v{133 if opt('trim', 1) else vFPD}")
P.add(snD)
for i in range(4): I(f"v_cvt_pk_bf16_f32 v{SA+8+i}, v{SA+2*i}, v{SA+2*i+1}")
I(f"ds_write_b128 v9, {v(SA+8,4)}\ns_waitcnt lgkmcnt(0)\ns_barrier")
stamp("kv summed", "mp")
KVA = 32; OD = 48
for q in range(7): I(f"ds_read_b64 {v(KVA+2*q,2)}, v{vKVX} offset:{512*q}")
P.add(snF)
P.add(w1_l.pop(0))
for s in range(3):
    I(f"{MF} {v(OD,16)}, {v(KVA+4*s,4)}, {v(PQ+4*s,4)}, {'0' if s == 0 else v(OD,16)}")
    if s == 1: P.add(w1_l.pop(0))
I(f"v_mfma_f32_32x32x8_bf16 {v(OD,16)}, {v(KVA+12,2)}, {v(PQ+12,2)}, {v(OD,16)}")
I(f"""s_lshl_b32 s{sP}, s{sTILE}, 15
s_lshr_b32 s{sB}, s{sW}, 1
s_lshl_b32 s{sB}, s{sB}, 13
s_add_u32 s{sP}, s{sP}, s{sB}
s_and_b32 s{sA}, s{sH}, 8
s_lshl_b32 s{sB}, s{sA}, 11
s_add_u32 s{sP}, s{sP}, s{sB}
s_add_u32 s{sP}, s{sP}, {WS_O}
s_xor_b32 s50, s{sP}, 16384
s_mul_i32 s{sB}, s{sA}, 3584
v_add_u32 v142, s{sB}, v{vWOR}
s_sub_u32 s{sB}, 28672, s{sB}
v_add_u32 v143, s{sB}, v{vWOR}
v_and_b32 v7, 31, v1
v_mul_u32_u24 v7, 896, v7
v_add_f32 v{OD+14}, 0x358637bd, v{OD+14}
v_rcp_f32 v{OD+14}, v{OD+14}
v_lshl_add_u32 v7, v3, 4, v7""")
for k in range(0, 14, 2): I(f"v_pk_mul_f32 {v(OD+k,2)}, {v(OD+k,2)}, {v(OD+14,2)} op_sel_hi:[1,0]")
for k in range(4): I(f"v_cvt_pk_bf16_f32 v{64+k}, v{OD+2*k}, v{OD+2*k+1}")
I(f"buffer_store_dwordx4 v[64:67], v2, {WS}, s{sOST} offen sc1")
for k in range(4, 7): I(f"v_cvt_pk_bf16_f32 v{64+k}, v{OD+2*k}, v{OD+2*k+1}")
I(f"""v_bitop3_b32 v71, v64, v5, s{sMASK} bitop3:0x28
v_and_b32 v6, s{sMASK}, v5
buffer_store_dwordx4 v[68:71], v2, {WS}, s{sOST} offen offset:1024 sc1""")
if GATE & 2: P.add(flag_store(7))
stamp("o stored", "mo")
P.wait("wo")
I(f"s_cmp_ge_u32 s{sRact}, 14\ns_cbranch_scc1 L_idle\ns_barrier")
wor = []
for s in range(16):
    hh, e = s >> 1, s & 1
    for k, av in (((0, 142), (1, 9)) if hh < 4 else ((0, 143), (1, vWOR))):
        for u in range(2):
            wor += mk(f"ds_read_b64_tr_b16 {a_(128+8*s+4*k+2*u,2)}, v{av} offset:{(28*(hh&3)+8*e+4*u)*128}")
XR = 224
xrr = []
for i in range(4): xrr += mk((f"v_xor_b32 v10, {16*i}, v{vXRR}\n" if i else "") + f"ds_read_b64 {v(XR+2*i,2)}, v{10 if i else vXRR}")
I(f"s_add_u32 s{sA}, s{sW1M}, {L_XCH}\nv_add_u32 v132, s{sA}, v2\nv_xor_b32 v133, 8192, v132\nv_xor_b32 v9, 64, v142\nv_xor_b32 v{vWOR}, 64, v143")
P.add(xrr)
G1 = gate("g1", vPO, vPF)
nb_ = min(opt("nw1b", 16), len(w1_l) - 8)
wor = sprinkle(wor, [w1_l.pop(0) for _ in range(nb_)], 0, opt("w1bs", 4))
OB = 16
FO = Fetch("fo", [([f"s_add_u32 s{sCt}, s{sP if hh < 4 else 50}, {2048*(hh&3)}\nbuffer_load_dwordx4 {v(OB+8*hh,4)}, v2, {WS}, s{sCt} offen sc1\nbuffer_load_dwordx4 {v(OB+8*hh+4,4)}, v2, {WS}, s{sCt} offen offset:1024 sc1"],
                   [OB+8*hh, OB+8*hh+7]) for hh in range(8)], masked=True, nre=opt('reo', 2))
NOE = opt("noe", 4)
FEP = opt("fep", 56)
P.add(sprinkle(wor, flat([FO.loadc(hh) for hh in range(NOE)]), FEP, 3))
stamp("pre o fetch", "o")
AO, AT = 80, 96
set3 = mk(f"""s_mul_i32 s{sSCR}, s{sW}, 12288
s_mul_i32 s{sBIG}, s{sW}, 28672
v_add_u32 v131, s{sBIG}, v2
s_lshl_b32 s{sB}, s{sC}, 1
s_lshr_b32 s{sD}, s{sW}, 1
s_add_u32 s{sB}, s{sB}, s{sD}
s_mul_i32 s{sA}, s{sTILE}, 14
s_add_u32 s{sB}, s{sB}, s{sA}
s_mul_i32 s{sPST}, s{sB}, 2432
s_add_u32 s{sPST}, s{sPST}, {WS_H}
s_lshr_b32 s48, s{sW}, 1
s_nop 0
v_bfe_u32 v9, v1, 2, 2
v_lshl_add_u32 v240, v3, 2, v9
v_lshlrev_b32 v254, 7, v240
v_lshlrev_b32 v240, 8, v240
v_xor_b32 v9, s{sW}, v9
v_lshl_add_u32 v240, v9, 6, v240
v_bfe_u32 v9, v1, 4, 1
v_lshlrev_b32 v9, 5, v9
v_lshl_add_u32 v9, v8, 3, v9
v_add_u32 v240, v240, v9
v_add_u32 v254, v254, v9
v_bfe_u32 v9, v1, 3, 1
v_xor_b32 v9, s48, v9
v_lshl_add_u32 v254, v9, 6, v254
s_add_u32 s{sSCR}, s{sSCR}, {L_SCR}
v_add_u32 v252, s{sBIG}, v254
v_xor_b32 v253, 64, v252
v_add_u32 v254, s{sSCR}, v254
v_add_u32 v134, s{sSCR}, v2
v_xor_b32 v255, 64, v254
v_xor_b32 v241, 64, v240
v_xor_b32 v242, 128, v240
v_xor_b32 v243, 192, v240""") + flat([mk(f"v_add_u32 v{244+m}, 57344, v{240+m}") for m in range(4)])
pre2 = []
for i in range(8): pre2 += mk(f"v_lshlrev_b32 v{112+2*i}, 16, v{XR+i}\nv_and_b32 v{113+2*i}, s{sHIM}, v{XR+i}")
for s in range(1, 16, 2): pre2 += mk(f"v_accvgpr_write_b32 a{128+8*s+3}, 0\nv_accvgpr_write_b32 a{128+8*s+7}, 0")
if GATE & 2:
    P.add(pre2); P.add(G1.check(0, 0))
    stamp("gate1", "o")
    for hh in range(8): P.add(FO.load(hh))
else:
    P.add(pre2[16:]); P.add(set3)
    I("s_waitcnt lgkmcnt(0)\ns_barrier")
    P.add(sprinkle(flat(flat([w2rd(j) for j in UAW[:NT1]])), [w1_l.pop(0) for _ in range(min(len(w1_l), opt("nw1s", 4)))], 0, 8))
    stamp("shadow done", "o")
    LG = opt("lg", -1)
    P.add(sprinkle(pre2[:16], [FO.load(hh) for hh in range(NOE, 8)] if LG < 0 else [], 0, 2))
if NA: I("s_waitcnt lgkmcnt(0)\ns_barrier")
stamp("fo issued", "o")
g2 = []
for s in range(16):
    for k, acc in ((1, AT), (0, AO)):
        c = ("0" if k else v(112,16)) if s == 0 else v(acc,16)
        g2.append(mk(f"{MF} {v(acc,16)}, {a_(128+8*s+4*k,4)}, {v(OB+4*s,4)}, {c}"))

if opt("rord", 0): g2[28:32] = [g2[28], g2[30], g2[29], g2[31]]
P.add(FO.check(0, 3))
stamp("fo0", "o")
S = Sched(g2)
for hh in range(1, 8): S.spread(FO.checkc(hh, 3 if hh < 4 else 7), 4*hh - 3, 4*hh)
if LG >= 0: S.spread(flat([FO.loadc(hh) for hh in range(NOE, 8)]), LG, LG + 6)
S.spread(w1_l + [raw.pop(0) for _ in range(min(len(raw), opt("rawb", 8)))], LG + 6 if LG >= 0 else 0, opt('p2e', 32))
P.add(S.emit())
stamp("p2 gemm done", "o")
for i in range(4): I(f"ds_write_b128 v132, {v(AT+4*i,4)} offset:{1024*i}")
I("v_mov_b32 v112, 0\nv_mov_b32 v113, 0\ns_waitcnt lgkmcnt(0)\ns_barrier")
for i in range(4): I(f"ds_read_b128 {v(AT+4*i,4)}, v133 offset:{1024*i}")
HR = XR
for k in range(0, 8, 2): I(f"v_pk_add_f32 {v(AO+k,2)}, {v(AO+k,2)}, {v(AT+k,2)}")
for i in range(4): I(f"v_cvt_pk_bf16_f32 v{HR+i}, v{AO+2*i}, v{AO+2*i+1}")
I(f"buffer_store_dwordx4 {v(HR,4)}, v2, {WS}, s{sPST} offen sc1")
for k in range(8, 16, 2): I(f"v_pk_add_f32 {v(AO+k,2)}, {v(AO+k,2)}, {v(AT+k,2)}")
for i in range(4, 8): I(f"v_cvt_pk_bf16_f32 v{HR+i}, v{AO+2*i}, v{AO+2*i+1}")
I(f"buffer_store_dwordx4 {v(HR+4,4)}, v2, {WS}, s{sPST} offen offset:1024 sc1")
for i in range(8): I(f"v_dot2c_f32_bf16 v112, s{sONES}, v{HR+i}\nv_dot2c_f32_bf16 v113, v{HR+i}, v{HR+i}")
I(f"""v_bitop3_b32 v10, v{HR}, v{HR+4}, v5 {X3}
v_permlane32_swap_b32 v112, v113
v_add_f32 v112, v112, v113
buffer_store_dword v112, v4, {WS}, s{sPST} offen offset:2048 sc1
v_xor_b32 v113, v10, v112
buffer_store_short v113, v0, {WS}, s{sPST} offen offset:2304 sc1""")
def selft(sreg, nl): return mk(f"s_mov_b64 exec, {(1 << nl) - 1}\nbuffer_load_dword v135, v134, {WS}, s{sreg} offen sc1\ns_mov_b64 exec, -1")
SELF = opt("self", 0)
if SELF & 1: P.add(selft(sPST, 20))
if GATE & 4: P.add(flag_store(14))
stamp("h stored", "moh")
HB = 16; ST = 192
ACC = [144, 160, 176, 192]; AUG = 232
set4 = mk(f"""s_lshl_b32 s{sB}, s{sT3}, 2
s_add_u32 s{sB}, s{sB}, s{sW}
s_mul_i32 s{sP}, s{sB}, {14*2432}
s_add_u32 s{sP}, s{sP}, {WS_H}
s_mul_i32 s{sA}, s{sB}, 56
s_lshl_b32 s{sD}, s{sR}, 2
s_add_u32 s{sA}, s{sA}, s{sD}
s_mul_i32 s{sQ}, s{sA}, 2176
s_add_u32 s{sQ}, s{sQ}, {WS_H1}
v_lshlrev_b32 v13, 3, v1
s_lshl_b32 s{sA}, s{sW}, 9
s_add_u32 s{sA}, s{sA}, {L_AUG}
v_add_u32 v13, s{sA}, v13
v_mov_b32 v222, 0""")
FH = Fetch("fh", [([f"s_add_u32 s{sCt}, s{sP}, {2432*p}\nbuffer_load_dwordx4 {v(HB+8*p,4)}, v2, {WS}, s{sCt} offen sc1\nbuffer_load_dwordx4 {v(HB+8*p+4,4)}, v2, {WS}, s{sCt} offen offset:1024 sc1\n"
                    f"buffer_load_dword v{ST+2*p}, v4, {WS}, s{sCt} offen offset:2048 sc1\nbuffer_load_ushort v{ST+2*p+1}, v0, {WS}, s{sCt} offen offset:2304 sc1"],
                   [HB+8*p, HB+8*p+4, ST+2*p, ST+2*p+1]) for p in range(14)], nre=opt('reh', 2))
for i in range(4): I(f"v_mov_b32 v{AUG+i}, s{sONES}")
P.wait("w1"); I("s_barrier")
stamp("w1 landed", "h")
if opt("zz", 0): I(f"s_sleep {opt('zz', 0)}")
def w1a(t, k): return (240 + k + (4 if t >= 14 else 0), (t % 14) * 4096, (t % 14) * 4096 + 2048)
st3 = [w1a(t, 0) + ((AUG, ACC[2], t == 0, True),) for t in range(28)]
TWO = opt("two", 0); N1 = 2 if TWO else 3
for t in range(28):
    for k in range(N1): st3.append(w1a(t, k) + ((HB + 4*t, ACC[k], t == 0, False),))
for t in range(28):
    for k in range(N1, 4): st3.append(w1a(t, k) + ((HB + 4*t, ACC[k], t == 0, False),))
pro, g3 = gemm_lds(st3, AH)
P.add(pro)
S3 = Sched(g3)
S3.spread(set4, 0, 8)
S3.spread(raw + flat([w2dma(j) for j in UD]), opt("c0s", 0), opt("c0e", 10)); raw = []
NH0 = opt("nh0", 4); H0 = opt("h0", 26)
G2 = gate("g2", vPO, vPF)
if GATE & 4:
    S3.at(opt("g2", 12), G2.load(0), 0.9)
    S3.at(27, G2.check(0, 0) + stampi("gate2", "h") + flat([FH.load(p) for p in range(NH0)]), 0.5)
else: S3.spread(flat([FH.loadc(p) for p in range(NH0)]), H0, 27)
cs = ACC[2]
csx = mk(f"""v_cvt_pk_bf16_f32 v{AUG}, v{cs}, v{cs}
v_lshlrev_b32 v{AUG+1}, 16, v{AUG}
v_sub_f32 v{AUG+1}, v{cs}, v{AUG+1}
v_cvt_pk_bf16_f32 v{AUG}, v{cs}, v{AUG+1}
v_and_b32 v{AUG+1}, 0xffff, v{AUG}
v_cndmask_b32 v{AUG}, v{AUG}, 0, {sHI}
v_cndmask_b32 v{AUG+1}, v{AUG+1}, 0, {sHI}
ds_write_b64 v13, {v(AUG,2)}""")
S3.at(27, stampi("colsum done", "h") + csx + FH.check(0, NH0 - 1) + stampi("fh0", "h"), 1.0)
B0 = 28
for p in range(14):
    b = B0 + 2*N1*p
    if p + NH0 < 14:
        for k_, c_ in enumerate(FH.loadc(p + NH0)): S3.at(b + ((0, 2, 1, 3) if TWO else (0, 2, 4, 4))[k_], c_, 0.2)
    S3.at(b, mk(f"v_add_f32 v222, v222, v{ST+2*p}"), 0.0)
    if p + 1 < 14: S3.spread(FH.checkc(p + 1, min(13, p + NH0 - 1)), b + 1, b + 2*N1)
    if p in (3, 7, 11): S3.at(b + 2*N1 - 1, stampi(f"fh{p+1}", "h"), 1.0)
S3.at(B0 + 14, mk("s_barrier") + flat([mk(f"v_xor_b32 v9, {512*k}, v13\nds_read_b64 {v(AUG+2*k,2)}, v9") for k in range(1, 4)]), 0.0)
mid = mk(f"""v_mul_f32 v220, {fhex(1/448)}, v222
v_mov_b32 v221, v220
s_nop 0
v_permlane32_swap_b32 v220, v221
v_fma_f32 v221, -v220, v220, v221
v_max_f32 v221, 0, v221
v_add_f32 v221, 0x3727c5ac, v221
v_rsq_f32 v251, v221
v_cvt_pk_bf16_f32 v222, -v220, -v220
v_lshlrev_b32 v9, 16, v222
v_sub_f32 v9, -v220, v9
v_cvt_pk_bf16_f32 v223, v9, 0
v_mul_f32 v250, v221, v251
v_mul_f32 v251, 0xbfb8aa3b, v251
v_cndmask_b32 v222, v222, 0, {sHI}
v_cndmask_b32 v223, v223, 0, {sHI}""")
S3.spread(mid, *((B0 + 53, B0 + 59) if TWO else (B0 + 79, B0 + 84)))
def aug(k): return mk(f"v_mfma_f32_32x32x8_bf16 {v(ACC[k],16)}, {v(AUG+2*k,2)}, v[222:223], {v(ACC[k],16)}")
SLT = 132
def silu(k, pk):
    q = Prog(); a = ACC[k]; t = 208
    q.I(f"s_xor_b32 s50, s{sW}, {k}\ns_mul_i32 s50, s50, 2176\ns_add_u32 s50, s50, s{sQ}")
    for half in range(2):
        b = a + 8 * half
        if pk:
            for j in range(0, 8, 2): q.I(f"v_pk_mul_f32 {v(t+j,2)}, {v(b+j,2)}, v[250:251] op_sel:[0,1] op_sel_hi:[1,1]")
        else:
            for j in range(8): q.I(f"v_mul_f32 v{t+j}, v{b+j}, v251")
        for j in range(8): q.I(f"v_exp_f32 v{t+j}, v{t+j}")
        if pk:
            for j in range(0, 8, 2): q.I(f"v_pk_fma_f32 {v(t+j,2)}, {v(t+j,2)}, v[250:251], v[250:251] op_sel_hi:[1,0,0]")
        else:
            for j in range(8): q.I(f"v_fma_f32 v{t+j}, v{t+j}, v250, v250")
        for j in range(8): q.I(f"v_rcp_f32 v{t+j}, v{t+j}")
        if pk:
            for j in range(0, 8, 2): q.I(f"v_pk_mul_f32 {v(b+j,2)}, {v(b+j,2)}, {v(t+j,2)}")
        else:
            for j in range(8): q.I(f"v_mul_f32 v{b+j}, v{b+j}, v{t+j}")
        for j in range(4): q.I(f"v_cvt_pk_bf16_f32 v{b+j}, v{b+2*j}, v{b+2*j+1}")
        q.I(f"buffer_store_dwordx4 {v(b,4)}, v2, {WS}, s50 offen offset:{1024*half} sc1")
    q.I(f"v_bitop3_b32 v216, v5, v{a}, v{a+8} {X3}")
    q.I(f"buffer_store_short v216, v0, {WS}, s50 offen offset:2048 sc1")
    return q.items + ([selft(50, 18)] if SELF & 2 and not pk else [])
E0 = B0 + 28*N1
assert not raw
if TWO:
    S3.spread(flat([w2rd(j) for j in UD + UR + UAW[NT1:]]), B0 + 8, B0 + 42)
    S3.at(B0 + 34, mk("s_barrier"), 0.0)
    S3.spread(flat([w2dma(j) for j in UE]), B0 + 48, E0 + opt("wde", 12))
else:
    S3.spread(flat([w2rd(j) for j in UD + UR + UAW[NT1:]]), B0 + 22, B0 + 58)
    S3.at(B0 + 44, mk("s_barrier"), 0.0)
    S3.spread(flat([w2dma(j) for j in UE]), B0 + opt('twd', 64), E0)
B4 = 16
CKR = [240, 241, 244, 245, 248, 249, 217, 218, 219, 130, 242, 246, 243, 247]
C4 = [[a_(224,16), a_(240,16)], [v(ACC[0],16), v(ACC[1],16)]]
set5 = mk(f"""s_mul_i32 s{sA}, s{sTILE}, 56
s_xor_b32 s{sB}, s{sTILE}, 1
s_mul_i32 s{sB}, s{sB}, 56
s_add_u32 s51, s{sB}, s44
s_add_u32 s52, s{sA}, s44
s_add_u32 s53, s{sB}, s45
s_add_u32 s54, s{sA}, s45""")
for k in range(4):
    set5 += mk(f"s_mul_i32 s{51+k}, s{51+k}, 2176\ns_add_u32 s{51+k}, s{51+k}, {WS_H1}")
S3.spread(set5, B0 + 42, B0 + 52)
def piece4(n):
    st, i = n // 7, n % 7; r = B4 + 8 * (n % 14); c = CKR[n % 14]
    return ([f"s_add_u32 s{sCt}, s{51+st}, {8*2176*i}\nbuffer_load_dwordx4 {v(r,4)}, v2, {WS}, s{sCt} offen sc1\nbuffer_load_dwordx4 {v(r+4,4)}, v2, {WS}, s{sCt} offen offset:1024 sc1\n"
             f"buffer_load_ushort v{c}, v0, {WS}, s{sCt} offen offset:2048 sc1"], [r, r+4, c])
F4 = Fetch("f4", [piece4(n) for n in range(28)], nre=opt("re4", 3))
ND = opt("nd", 5)
N0 = ND if TWO else opt("n0", 4)
rawl = flat([w2raw(j) for j in UL])
nr0 = min(len(rawl), opt("nr0", 6))
if TWO:
    S3.at(E0 - 1, stampi("p3 pass1 done", "mh"), 1.0)
    g3[E0 + 3] = aug(0) + g3[E0 + 3]; g3[E0 + 4] = aug(1) + g3[E0 + 4]
    S3.spread(silu(0, False) + [stampi("silu0 done", "e")], E0 + 5, E0 + opt("s0e", 21))
    S3.spread(silu(1, False), E0 + opt("s0e", 21), E0 + opt("s1e", 44))
    S3.spread(rawl, E0 + opt("wde", 12), E0 + opt("rle", 36))
    DEEP = opt("deep", 0)
    if DEEP:
        rng = [(opt("a0", -18), opt("b0", 4)), (opt("a1", 6), opt("b1", 24)), (opt("a2", 26), opt("b2", 50)), (opt("a3", 50), opt("b3", 78))]
        f4pos = []
        for n in range(28):
            a, b = rng[n // 7]
            for k_, c_ in enumerate(F4.loadc(n)):
                pos = a + (b - a) * ((n % 7) + (0, 0.45, 0.9)[k_]) / 7
                lo = (4*n + 4 - 56) if n < 14 else 4*(n - 14) + 4
                pos = max(pos, lo + 0.01*k_); assert pos < 4*n - 3 or n == 0, (n, pos)
                f4pos.append((pos, c_))
        for i_ in range(1, len(f4pos)): assert f4pos[i_][0] >= f4pos[i_-1][0], i_
        import math
        for pos, c_ in f4pos:
            if pos < 0: S3.at(E0 + 56 + math.floor(pos), c_, pos - math.floor(pos))
    else: S3.spread(flat([F4.loadc(n) for n in range(ND)]), E0 + opt("f4s", 52), E0 + 56)
    P.add(S3.emit())
    P.add(aug(2) + aug(3))
else:
    S3.at(E0 - 1, stampi("p3 pass1 done", "mh") + aug(0) + aug(1) + aug(2) + sprinkle(silu(0, True), rawl[:nr0], 3, opt('r0s', 12)) + stampi("silu0 done", "e"), 1.0)
    S3.spread(silu(1, False) + (silu(2, False) if opt("s2p", 1) else []), E0, E0 + opt("t1e", 26))
    S3.spread(rawl[nr0:], E0, E0 + opt("tre", 20))
    S3.spread(flat([F4.loadc(n) for n in range(N0)]), E0 + opt("f4t", 20), E0 + 28)
    P.add(S3.emit())
    P.add(aug(3))
I("s_barrier")
stamp("p3 gemm done", "me")
g4 = []
for n in range(28):
    st, i = n // 7, n % 7; hf, par = st >> 1, st & 1
    for e in range(2):
        for mu in range(2):
            zero = hf == 0 and i == 0 and e == 0 and not (par == 1 and mu == 0)
            g4.append(mk(f"{MF} {C4[par][mu]}, {a_(UA(7*hf+i)+8*e+4*mu,4)}, {v(B4+8*(n%14)+4*e,4)}, {'0' if zero else C4[par][mu]}"))
if opt("rord", 0): g4[108:112] = [g4[109], g4[111], g4[108], g4[110]]
P.add(F4.check(0, N0 - 1))
S = Sched(g4)
nxt = N0
for n in range(28):
    prev = nxt
    if nxt < 28 and not (TWO and DEEP):
        if nxt < n + ND and nxt + 1 < 28:
            for k_, c_ in enumerate(F4.loadc(nxt) + F4.loadc(nxt + 1)): S.at(4*n + (0, 1, 1, 2, 3, 3)[k_], c_, 0.2 + 0.01*k_)
            nxt += 2
        else:
            for k_, c_ in enumerate(F4.loadc(nxt)): S.at(4*n + (0, 2, 1)[k_], c_, 0.2)
            nxt += 1
    if n + 1 < 28: S.spread(F4.checkc(n + 1, max(n + 1, prev - 1)), 4*n + 2, 4*n + 4)
    if n in (6, 13, 20): S.at(4*n + 3, stampi(f"stage{n//7} done", "e"), 1.0)
unp = []
for i in range(8): unp += mk(f"v_lshlrev_b32 v{ACC[0]+2*i}, 16, v{HR+i}\nv_and_b32 v{ACC[0]+1+2*i}, s{sHIM}, v{HR+i}")
if TWO and DEEP:
    for pos, c_ in f4pos:
        if pos >= 0: S.at(int(pos), c_, pos - int(pos))
S2E, S3E = opt("s2e", 16), opt("s3e", 16)
if opt("s2p", 1) and not TWO: S2E = 1
else: S.spread(silu(2, False), 0, S2E)
S.spread(unp, 22, 27)
S.spread(silu(3, False), S2E, S3E)
S.spread(flat([w2rd(j) for j in UE if j < 7]), 0, 14)
S.spread(flat([w2dma(j) for j in UP]), opt("w2a", 20), opt("w2b", 46))
for j in [x for x in UE + UL + UP if x >= 7]: S.spread(w2rd(j), 44 + 5*(j-7), 49 + 5*(j-7))
S.at(82, mk(f"""s_lshl_b32 s{sA}, s{sW}, 14
v_add_u32 v13, s{sA}, v2
v_xor_b32 v9, 16384, v13
v_xor_b32 v12, 32768, v13
v_xor_b32 v14, 49152, v13
s_waitcnt lgkmcnt(0)
s_barrier"""))
S.spread([mk(f"ds_write_b128 v{9 if mu == 0 else 14}, {a_(224+16*mu+4*i,4)} offset:{4096*(2*mu+1)+1024*i}") for mu in range(2) for i in range(4)], 87, 99)
S.at(100, mk("s_waitcnt lgkmcnt(0)\ns_barrier"), 0.0)
S.spread([mk(f"ds_read_b128 {v(ACC[2+mu]+4*i,4)}, v13 offset:{4096*(2*mu+1)+1024*i}") for mu in range(2) for i in range(4)], 100, 104)
S.spread([mk(f"v_add_f32 v{ACC[2]+k}, v{ACC[2]+k}, v{ACC[3]+k}") for k in range(16)], 107, 112)
P.add(S.emit())
stamp("p4 gemm done", "me")
for i in range(4): I(f"ds_write_b128 v12, {v(ACC[1]+4*i,4)} offset:{8192+1024*i}")
if opt("cout", 0):
    I(f"""v_lshlrev_b32 v16, 3, v3
v_sub_u32 v16, v{vXRR}, v16
v_lshlrev_b32 v17, 4, v3
v_xor_b32 v16, v16, v17
v_xor_b32 v17, 32, v16
s_add_u32 s{sA}, s{sXO}, {L_XCH}
v_add_u32 v18, s{sA}, v2""")
I("s_waitcnt lgkmcnt(0)\ns_barrier")
for i in range(4): I(f"ds_read_b128 {v(ACC[3]+4*i,4)}, v13 offset:{8192+1024*i}")
for k in range(0, 16, 2): I(f"v_pk_add_f32 {v(ACC[0]+k,2)}, {v(ACC[0]+k,2)}, {v(ACC[2]+k,2)}")
for hf in range(2):
    b = ACC[0] + 8*hf
    for k in range(0, 8, 2): I(f"v_pk_add_f32 {v(b+k,2)}, {v(b+k,2)}, {v(ACC[3]+8*hf+k,2)}")
    for i in range(4): I(f"v_cvt_pk_bf16_f32 v{96+4*hf+i}, v{b+2*i}, v{b+2*i+1}")
    if not opt("cout", 0):
        I(f"v_permlane32_swap_b32 v{96+4*hf}, v{98+4*hf}\nv_permlane32_swap_b32 v{97+4*hf}, v{99+4*hf}\nbuffer_store_dwordx4 {v(96+4*hf,4)}, v7, {OUT}, s{sOUT} offen offset:{32*hf} {OPT.get('ofl', '')}")
    else:
        I(f"v_permlane32_swap_b32 v{96+4*hf}, v{98+4*hf}\nv_permlane32_swap_b32 v{97+4*hf}, v{99+4*hf}\nds_write_b128 v{16+hf}, {v(96+4*hf,4)}")
if opt("cout", 0):
    I("s_waitcnt lgkmcnt(0)\ns_barrier")
    for i in range(2): I(f"ds_read_b128 {v(104+4*i,4)}, v18 offset:{1024*i}")
    for i in range(2): I(f"buffer_store_dwordx4 {v(104+4*i,4)}, v{vXRD0+i}, {OUT}, s{sXRB} offen offset:{1024*i} {OPT.get('ofl', '')}")
stamp("end", "mpohez")
I(f"""s_cmp_lg_u32 s2, 0
s_cbranch_scc1 L_ex0
v_mov_b32 v9, 0""")
I(f"buffer_store_dword v5, v9, {WS}, 0 offen sc1", unc=True)
I("L_ex0:")
if opt("enc", 0):
    mode = opt("enc", 0)
    if mode <= 4:
        I(f"s_bfe_u32 s{sA}, s80, {hex(0x80000 | (8*(mode-1)))}\ns_min_u32 s{sA}, s{sA}, 1\ns_mul_i32 s{sA}, s{sA}, 2000", unc=True)
    else:
        I(f"s_waitcnt lgkmcnt(0)\ns_sub_u32 s{sA}, s{sSTAMP+2}, s78\ns_mul_i32 s{sA}, s{sA}, 4", unc=True)
    I(f"""s_memrealtime s[40:41]
s_waitcnt lgkmcnt(0)
L_enc:
s_memrealtime s[42:43]
s_waitcnt lgkmcnt(0)
s_sub_u32 s42, s42, s40
s_cmp_lt_u32 s42, s{sA}
s_cbranch_scc1 L_enc
s_branch L_end""", unc=True)
if opt("dbg", 0):
    I(f"""s_cmp_lg_u32 s{sW}, 0
s_cbranch_scc1 L_end
s_load_dwordx2 s[40:41], s[0:1], 64
s_mov_b32 s42, 256
s_mov_b32 s43, 0x20000
s_mov_b64 exec, 1
v_mov_b32 v9, 0
s_waitcnt lgkmcnt(0)""", unc=True)
    for k in range(nstamp[0]):
        I(f"s_sub_u32 s{sA}, s{sSTAMP+2*k}, s78\nv_mov_b32 v10, s{sA}\nbuffer_atomic_umax v10, v9, s[40:43], 0 offen offset:{4*k}\ns_nop 1", unc=True)
    I(f"""v_mov_b32 v10, s78
buffer_atomic_umax v10, v9, s[40:43], 0 offen offset:32
s_not_b32 s{sA}, s78
v_mov_b32 v11, s{sA}
buffer_atomic_umax v11, v9, s[40:43], 0 offen offset:36
v_mov_b32 v12, s{sSTAMP+2*(nstamp[0]-1)}
buffer_atomic_umax v12, v9, s[40:43], 0 offen offset:40
v_mov_b32 v13, s80
buffer_atomic_add v13, v9, s[40:43], 0 offen offset:44
s_branch L_end""", unc=True)
I("L_exit:")
if DIAG and not opt("dbg", 0):
    I(f"s_cmp_lg_u32 s{sW}, {opt('dw', 0)}\ns_cbranch_scc1 L_end\ns_lshl_b32 s{sA}, s2, 7\ns_add_u32 s{sA}, s{sA}, {WS_DIAG}\nv_mov_b32 v9, 0", unc=True)
    for k in range(nstamp[0]):
        I(f"s_waitcnt lgkmcnt(0)\nv_mov_b32 v10, s{sSTAMP+2*k}\nbuffer_store_dword v10, v9, {WS}, s{sA} offen offset:{4*k}", unc=True)
    if SEL == ["z"]: I(f"v_mov_b32 v10, s78\nbuffer_store_dword v10, v9, {WS}, s{sA} offen offset:120", unc=True)
    I(f"v_mov_b32 v10, s80\nbuffer_store_dword v10, v9, {WS}, s{sA} offen offset:124", unc=True)
I("L_end:\ns_endpgm")
if not (opt("idle", 0) or opt("idle2", 0)):
    for it in P.items:
        if isinstance(it, Ins) and it.text == "s_cbranch_scc1 L_idle": it.text = "s_cbranch_scc1 L_exit"
else: I(f"""L_idle:
s_and_b32 s{sA}, s{sT2}, 1
s_lshl_b32 s{sA}, s{sA}, 1
s_add_u32 s{sA}, s{sA}, s{sRact}
s_sub_u32 s{sA}, s{sA}, 14
s_lshl_b32 s{sA}, s{sA}, 2
s_add_u32 s{sA}, s{sA}, s{sW}
s_lshl_b32 s{sA}, s{sA}, 13
v_lshlrev_b32 v9, 7, v1
s_lshr_b32 s{sD}, s{sT2}, 1
s_mul_i32 s{sD}, s{sD}, {8*56*2176}
s_add_u32 s{sD}, s{sD}, {WS_H1}
s_add_u32 s{sD}, s{sD}, s{sA}
s_mov_b32 s{sB}, {opt("idle2", 0)}
s_cmp_eq_u32 s{sB}, 0
s_cbranch_scc1 L_idle3
L_idle2:
buffer_load_dword v11, v9, {WS}, s{sD} offen {OPT.get("i2f", "")}
s_add_u32 s{sD}, s{sD}, {16*8192}
s_sub_u32 s{sB}, s{sB}, 1
s_cmp_lg_u32 s{sB}, 0
s_cbranch_scc1 L_idle2
L_idle3:
s_mov_b32 s{sB}, {opt("idle", 0)}
s_cmp_eq_u32 s{sB}, 0
s_cbranch_scc1 L_exit
L_idle1:
buffer_load_dword v11, v9, {W2}, s{sA} offen
s_add_u32 s{sA}, s{sA}, {16*8192}
s_sub_u32 s{sB}, s{sB}, 1
s_cmp_lg_u32 s{sB}, 0
s_cbranch_scc1 L_idle1
s_branch L_exit""", unc=True)
P.add(TAIL.items)

for it in P.items:
    if isinstance(it, Ins) and it.text.startswith('buffer_load_dword v142,'): it.defs = []
for it in P.items:
    if isinstance(it, Ins) and it.op == "buffer_load_dwordx4":
        for bit, srd in ((1, W1), (2, W2), (4, WO), (8, WQKV), (16, X)):
            if opt("wf", 0) & bit and srd in it.text:
                fl = OPT.get("wfl", "nt")
                it.text = it.text.replace(" lds", f" {fl} lds") if it.text.endswith(" lds") else it.text + " " + fl
PL = opt("plain", 0)
for it in P.items:
    if isinstance(it, Ins) and it.op.startswith("buffer_store") and "sc1" in it.text:
        ish1 = " s50 " in it.text or " s49 " in it.text
        ish = ("v[224:227]" in it.text or "v[228:231]" in it.text or "v112," in it.text or "v113," in it.text)
        if (ish and PL & 1) or (ish1 and PL & 2): it.text = it.text.replace(" sc1", OPT.get("pfl", ""))
if opt("pld", 0):
    c = 0
    for it in P.items:
        if isinstance(it, Ins) and it.op.startswith("buffer_load") and "sc1" in it.text and " s56 " in it.text and not it.uncounted:
            c += 1
            kind = 0 if c <= 48 else 1 if c <= 104 else 2
            if opt("pld", 0) & kind: it.text = it.text.replace(" sc1", OPT.get("lfl", ""))
if opt("nochk", 0):
    new = []; seen_end = False
    for it in P.items:
        if isinstance(it, Ins):
            if opt("nochk", 0) == 2 and not seen_end:
                if it.text.startswith("L_exit"): seen_end = True
                elif it.uncounted or it.op in ("s_cbranch_vccz", "s_branch"): continue
            if it.op == "s_cbranch_vccz" and not it.uncounted: it = Ins(it.text.replace("s_cbranch_vccz", "s_branch"))
            elif it.op == "s_cbranch_vccnz" and not it.uncounted: continue
            t = it.text
            if it.op.startswith("buffer_store") and "sc1" in t and not it.uncounted:
                kind = 8 if " s50 " in t else 4 if ("v[224" in t or "v[228" in t or "v112," in t or "v113," in t) else 2 if f" s{sOST} " in t else 1
                if opt("nost", 0) & kind: continue
            if it.op.startswith("buffer_load") and "sc1" in t and " s56 " in t and not it.uncounted:
                cnt_ld = globals().setdefault("_c", [0]); cnt_ld[0] += 1; c = cnt_ld[0]
                kind = 1 if c <= 32 else 2 if c <= 48 else 4 if c <= 104 else 8
                if opt("nold", 0) & kind: continue
        new.append(it)
    P.items = new
body, items = render(P.items)
if opt("align", 1):
    import subprocess, re as _re
    open("_al.s", "w").write('.amdgcn_target "amdgcn-amd-amdhsa--gfx950"\n.text\n' + body)
    subprocess.run(["clang", "-x", "assembler", "-target", "amdgcn-amd-amdhsa", "-mcpu=gfx950", "-c", "_al.s", "-o", "_al.o"], check=True)
    dis = subprocess.run(["llvm-objdump", "-d", "--mcpu=gfx950", "_al.o"], capture_output=True, text=True).stdout
    sizes = [4 * len(m.group(1).split()) for m in _re.finditer(r"// [0-9A-F]{12}: ((?:[0-9A-F]{8} ?)+)", dis)]
    real = [i for i in items if i.cls not in ('label', 'dir')]
    assert len(sizes) == len(real), (len(sizes), len(real))
    sz = {id(i): n for i, n in zip(real, sizes)}
    new = []; off = 0; nal = 0; MINRUN = opt("minrun", 6)
    for k, it in enumerate(items):
        if id(it) in sz and sz[id(it)] == 8 and off % 8 == 4 and not it.uncounted:
            run = 0
            for j in items[k:k + MINRUN + 4]:
                if id(j) not in sz: continue
                if sz[id(j)] != 8 or j.cls == 'mfma': break
                run += 1
            if run >= MINRUN:
                p = new[-1] if new else None
                if p is not None and p.cls == 'valu' and sz.get(id(p)) == 4 and not p.op.startswith(('v_permlane', 'v_dot2c', 'v_readfirst', 'v_accvgpr', 'v_cmp', 'v_cndmask')) and not p.op.endswith('_e64'):
                    p.text = p.text.replace(p.op, p.op + "_e64", 1)
                else: new.append(Ins("s_nop 0"))
                off += 4; nal += 1
        new.append(it); off += sz.get(id(it), 0)
    items = new
    body = '\n'.join(('' if i.cls == 'label' else '  ') + i.text for i in items) + '\n'
    print("alignment fixes:", nal, "code bytes", off)
hdr = open("cdna_kernels/" + NAME + ".s.ref").read().split("; Override launch")[0]
doc = """; Persistent single-launch implementation (256 WGs x 4 waves, one WG per CU), generated by a script:
"""
out = hdr + doc + f"""; @launch grid=(256,1,1) block=(256,1,1) lds={LDS_SIZE}
.amdgcn_target "amdgcn-amd-amdhsa--gfx950"
.text
.globl {NAME}_kernel
.p2align 8
.type {NAME}_kernel,@function
{NAME}_kernel:
{body}.fill 2048, 4, 0xbf810000
.section .rodata,"a"
.p2align 6
.amdhsa_kernel {NAME}_kernel
  .amdhsa_next_free_vgpr 512
  .amdhsa_next_free_sgpr 102
  .amdhsa_accum_offset 256
  .amdhsa_group_segment_fixed_size 0
  .amdhsa_kernarg_size 80
  .amdhsa_user_sgpr_count 2
  .amdhsa_user_sgpr_kernarg_segment_ptr 1
  .amdhsa_system_sgpr_workgroup_id_x 1
.end_amdhsa_kernel
"""
open(sys.argv[1], "w").write(out)
n = sum(1 for i in items if i.cls not in ('label', 'dir'))
nu_ = sum(1 for i in items if i.cls not in ('label', 'dir') and i.uncounted)
print("instructions:", n, "(slow path", nu_, ") nops:", sum(1 for i in items if i.op == 's_nop'), "waits:", sum(1 for i in items if i.op == 's_waitcnt'), "stamps", nstamp[0])
```

```python
import sys, struct
from asmlib import *

NAME = "sequential_preLN__linear_kernel_hedgehog__dense_activation_silu__prompt"
DIAG = int(sys.argv[2]) if len(sys.argv) > 2 else 0
OPT = dict(a.split('=') for a in sys.argv[3:])
def opt(k, d): return int(OPT[k], 0) if k in OPT else d

WS_PART = 0x40000
WS_O    = 0x240000
WS_H    = 0x440000
WS_H1   = 0x680000
WS_DIAG = 0xE80000
WS_FLG  = 0xF00000
WS_SIZE = 0xF80000
XW = 28672
L_WV, L_WQ, L_WK, L_WO = 0, 28672, 57344, 86016
L_IMG = L_WK
L_KVX = 143360
L_XCH = 147456
L_SCR = 114688
L_AUG = 161792
LDS_SIZE = 163840
sW, sT, sH, sT2, sR = 3, 4, 5, 6, 7
X, WQKV, WPHI, WO, W1, W2, OUT, WS = [f"s[{i}:{i+3}]" for i in range(8, 40, 4)]
sKX, sKW = 40, 47
sHQ, sHIM = 54, 55
sRET = "s[56:57]"
sSPIN, sP, sU, sC, sMASK, sQ = 58, 59, 60, 61, 62, 63
sHI = "s[64:65]"
sLOG = "s[66:67]"
sONES, sTILE = 68, 69
sA, sB, sCt, sD = 70, 71, 72, 73
sRact, sXO = 74, 75
sWB, sWQ = 76, 77
sLAST, sFLAG, sWM, sPST, sPCK, sOST, sXRB, sOUT = 80, 81, 82, 83, 84, 85, 86, 87
sSTAMP = 88

def v(a, n=1): return f"v{a}" if n == 1 else f"v[{a}:{a+n-1}]"
def a_(a, n=1): return f"a{a}" if n == 1 else f"a[{a}:{a+n-1}]"
def fhex(x): return hex(struct.unpack('<I', struct.pack('<f', x))[0])
def flat(l): return sum(l, [])
P = Prog(); I = P.I
TAIL = Prog()
nstamp = [0]
SEL = OPT.get("st", "m").split(",")
PICK = [int(x) for x in OPT["pick"].split(",")] if "pick" in OPT else None
allst = [0]
def stampi(name, grp="m"):
    idx = allst[0]; allst[0] += 1
    if opt("jit", 0) and idx in (3, 7, 9, 11, 13, 17, 19, 21, 25, 26, 27, 28, 29):
        return mk(f"""s_memtime s[88:89]
s_waitcnt lgkmcnt(0)
s_mul_i32 s88, s88, 0x9E3779B1
s_lshr_b32 s88, s88, {opt("jit", 0)}
L_jit{idx}:
s_sleep 8
s_sub_u32 s88, s88, 1
s_cmp_gt_i32 s88, 0
s_cbranch_scc1 L_jit{idx}""")
    if not DIAG: return []
    if PICK is not None:
        if name != "start" and idx not in PICK:
            print(f"   - {idx}: {name}"); return []
    elif name != "start" and not (set(grp) & set(SEL)): return []
    k = nstamp[0]; nstamp[0] += 1
    assert k < 7
    print(f"stamp {k}: [{idx}] {name}")
    op = "s_memtime" if DIAG == 2 else "s_memrealtime"
    return mk(f"{op} s[{sSTAMP+2*k}:{sSTAMP+2*k+1}]")
def stamp(name, grp="m"): P.add(stampi(name, grp))
X3 = "bitop3:0x96"

def chk_code(regs, masked):
    r = list(regs)
    if masked: return f"v_bitop3_b32 v10, v{r[0]}, v{r[1]}, s{sMASK} bitop3:0x28\nv_cmp_ne_u32 vcc, v10, v6"
    if len(r) == 1: return f"v_cmp_ne_u32 vcc, v{r[0]}, v5"
    if len(r) == 2: t = f"v_xor_b32 v10, v{r[0]}, v{r[1]}"
    else:
        t = f"v_bitop3_b32 v10, v{r[0]}, v{r[1]}, v{r[2]} {X3}"
        if len(r) == 4: t += f"\nv_xor_b32 v10, v10, v{r[3]}"
    return t + "\nv_cmp_ne_u16 vcc, v10, v5"

sFL, sDM = 56, 57
GUARD = f"s_add_u32 s{sSPIN}, s{sSPIN}, 1\ns_cmp_gt_u32 s{sSPIN}, 0x40000\ns_cbranch_scc1 L_end\ns_waitcnt vmcnt(0)"
class Fetch:
    def __init__(self, name, pieces, masked=False, nre=1):
        self.name, self.pieces, self.masked, self.nre = name, pieces, masked, nre
    def loadc(self, i):
        it = flat([mk(c.replace(f"s{sCt}", f"s{sFL}")) for c in self.pieces[i][0]])
        out = []; cur = []
        for x in it:
            cur.append(x)
            if x.cls == 'vmem': out.append(cur); cur = []
        return out
    def load(self, i): return flat(self.loadc(i))
    def stub(self, i, last):
        n = self.name
        wgt = {"fo": 0x100, "fh": 0x10000, "f4": 0x1000000}.get(n, 1)
        rel = (f"s_add_u32 s80, s80, {wgt}\n" if DIAG else "") + "\n".join(c for j in range(i, min(last, i + self.nre - 1) + 1) for c in self.pieces[j][0])
        if opt("ool", 15) & {"fo": 2, "fh": 4, "f4": 8}[n]:
            TAIL.I(f"L_{n}_r{i}:\n" + rel + "\n" + GUARD + "\n" + chk_code(self.pieces[i][1], self.masked) + f"\ns_cbranch_vccnz L_{n}_r{i}\ns_branch L_{n}_ok{i}", unc=True)
            return mk(f"s_cbranch_vccnz L_{n}_r{i}\nL_{n}_ok{i}:")
        return mk(f"s_cbranch_vccz L_{n}_ok{i}\nL_{n}_r{i}:") + \
               mk(rel + "\n" + GUARD + "\n" + chk_code(self.pieces[i][1], self.masked) + f"\ns_cbranch_vccnz L_{n}_r{i}", unc=True) + mk(f"L_{n}_ok{i}:")
    def checkc(self, i, last):
        return [[x] for x in mk(chk_code(self.pieces[i][1], self.masked))] + [self.stub(i, last)]
    def check(self, i, last): return flat(self.checkc(i, last))

sFS, sFP = 80, 81
vL512, vPO, vPF = 0, 142, 143
def flag_store(nl): return mk(f"s_mov_b64 exec, {(1 << nl) - 1}\nbuffer_store_dword v5, v{vL512}, {WS}, s{sFS} offen sc1\ns_mov_b64 exec, -1")
def gate(name, vo, vf): return Fetch(name, [([f"buffer_load_dword v{vf}, v{vo}, {WS}, s{sFP} offen sc1"], [vf])])
GATE = opt("gate", 0)

def cost(it):
    if isinstance(it, WaitTag): return 4
    if it.cls in ('label', 'dir') or it.uncounted: return 0
    if it.op.startswith(TRANS) or 'permlane' in it.op: return 8
    if it.op.startswith('ds_write_b128'): return 28
    if it.cls == 'mfma': return 8
    return 4.5
class Sched:
    def __init__(self, groups):
        self.groups = groups; self.gap = [[] for _ in groups]; self.seq = 0
    def at(self, g, items, frac=0.5):
        self.seq += 1; self.gap[g].append((frac, self.seq, list(items)))
    def spread(self, chunks, a, b):
        chunks = [c if isinstance(c, list) else [c] for c in chunks]
        tot = sum(cost(i) for c in chunks for i in c) or 1; acc = 0
        for c in chunks:
            pos = a + (b - a) * acc / tot
            self.at(int(pos), c, pos - int(pos))
            acc += sum(cost(i) for i in c)
    def emit(self):
        out = []
        for g, gp in zip(self.groups, self.gap):
            out += g
            for _, _, c in sorted(gp, key=lambda x: (x[0], x[1])): out += c
        return out
def sprinkle(items, groups, start, step):
    out = []; groups = list(groups); nxt = start
    for i, it in enumerate(items):
        if groups and i == nxt: out += groups.pop(0); nxt += step
        out.append(it)
    for g in groups: out += g
    return out

def softmax(p, t, o, pk):
    q = Prog(); J = q.I
    m, n = t + 14, t + 15; r0, r1 = t + 16, t + 17
    J(f"v_max3_f32 v{m}, v{p}, v{p+1}, v{p+2}\nv_max3_f32 v{n}, -v{p}, -v{p+1}, -v{p+2}")
    for k in range(3, 13, 2):
        J(f"v_max3_f32 v{m}, v{m}, v{p+k}, v{p+k+1}\nv_max3_f32 v{n}, v{n}, -v{p+k}, -v{p+k+1}")
    J(f"""v_max_f32 v{m}, v{m}, v{p+13}
v_max_f32 v{n}, v{n}, -v{p+13}
v_permlane32_swap_b32 v{m}, v{n}
v_max_f32 v{m}, v{m}, v{n}
v_mul_f32 v{m}, v253, v{m}
v_mov_b32 v{n}, v{m}
v_permlane32_swap_b32 v{m}, v{n}""")
    if pk:
        for k in range(0, 14, 2):
            J(f"v_pk_fma_f32 {v(t+k,2)}, {v(p+k,2)}, v[252:253], {v(m,2)} op_sel_hi:[1,0,0]")
            J(f"v_pk_fma_f32 {v(p+k,2)}, {v(p+k,2)}, v[252:253], {v(m,2)} op_sel:[0,1,1] op_sel_hi:[1,1,1]")
    if pk == 2:
        for k in range(14):
            J(f"v_exp_f32 v{t+k}, v{t+k}\nv_exp_f32 v{p+k}, v{p+k}")
            if k >= 2:
                a0 = f"v{t}" if k == 2 else f"v{r0}"; a1 = f"v{p}" if k == 2 else f"v{r1}"
                J(f"v_add_f32 v{r0}, {a0}, v{t+k-1}\nv_add_f32 v{r1}, {a1}, v{p+k-1}")
        J(f"v_add_f32 v{m}, v{r0}, v{t+13}\nv_add_f32 v{n}, v{r1}, v{p+13}")
    elif pk:
        for k in range(14): J(f"v_exp_f32 v{t+k}, v{t+k}")
        for k in range(14): J(f"v_exp_f32 v{p+k}, v{p+k}")
        J(f"v_pk_add_f32 {v(m,2)}, {v(t,2)}, {v(t+2,2)}\nv_pk_add_f32 {v(r0,2)}, {v(p,2)}, {v(p+2,2)}")
        for k in range(4, 14, 2):
            J(f"v_pk_add_f32 {v(m,2)}, {v(m,2)}, {v(t+k,2)}\nv_pk_add_f32 {v(r0,2)}, {v(r0,2)}, {v(p+k,2)}")
        J(f"v_add_f32 v{m}, v{m}, v{n}\nv_add_f32 v{n}, v{r0}, v{r1}")
    else:
        for k in range(14):
            J(f"v_fma_f32 v{t+k}, v{p+k}, v252, v{m}\nv_fma_f32 v{p+k}, v{p+k}, v253, v{n}\nv_exp_f32 v{t+k}, v{t+k}\nv_exp_f32 v{p+k}, v{p+k}")
            if k >= 2:
                a0 = f"v{t}" if k == 2 else f"v{r0}"; a1 = f"v{p}" if k == 2 else f"v{r1}"
                J(f"v_add_f32 v{r0}, {a0}, v{t+k-1}\nv_add_f32 v{r1}, {a1}, v{p+k-1}")
        J(f"v_add_f32 v{m}, v{r0}, v{t+13}\nv_add_f32 v{n}, v{r1}, v{p+13}")
    J(f"""v_permlane32_swap_b32 v{m}, v{n}
v_add_f32 v{m}, v{m}, v{n}
v_rcp_f32 v{m}, v{m}
v_mov_b32 v{n}, v{m}
v_permlane32_swap_b32 v{m}, v{n}""")
    if pk == 1:
        for k in range(0, 14, 2):
            J(f"v_pk_mul_f32 {v(t+k,2)}, {v(t+k,2)}, {v(m,2)} op_sel_hi:[1,0]")
            J(f"v_pk_mul_f32 {v(p+k,2)}, {v(p+k,2)}, {v(m,2)} op_sel:[0,1] op_sel_hi:[1,1]")
    else:
        for k in range(14): J(f"v_mul_f32 v{t+k}, v{t+k}, v{m}\nv_mul_f32 v{p+k}, v{p+k}, v{n}")
    for k in range(7): J(f"v_cvt_pk_bf16_f32 v{o+k}, v{t+2*k}, v{t+2*k+1}")
    for k in range(7): J(f"v_cvt_pk_bf16_f32 v{o+7+k}, v{p+2*k}, v{p+2*k+1}")
    return q.items

def dmag(vaddrs, srd, sbase, sadd, mbase, madd, tag, sreg=None):
    sr = sCt if sreg is None else sreg
    ch = [mk(f"buffer_load_dwordx4 v{a}, {srd}, s{sr} offen offset:{1024*i} lds", tag=tag) for i, a in enumerate(vaddrs)]
    ch[0] = mk(f"s_add_u32 m0, s{mbase}, {madd}\ns_add_u32 s{sr}, s{sbase}, {sadd}") + ch[0]
    return ch

MF = "v_mfma_f32_32x32x16_bf16"
RINGA, NRING = 224, 8
def gemm_lds(steps, ahead=6):
    def rd(i):
        av, o1, o2 = steps[i][:3]; r = RINGA + 4 * (i % NRING)
        return mk(f"ds_read_b64_tr_b16 {a_(r,2)}, v{av} offset:{o1}\nds_read_b64_tr_b16 {a_(r+2,2)}, v{av} offset:{o2}")
    rds = [rd(i) for i in range(len(steps))]
    groups = []
    for i, st in enumerate(steps):
        r = RINGA + 4 * (i % NRING); b, acc, first, swap = st[3]
        A, B = a_(r, 4), v(b, 4)
        if swap: A, B = B, A
        g = mk(f"{MF} {v(acc,16)}, {A}, {B}, {'0' if first else v(acc,16)}")
        if i % 2 == 0 and i + 1 < len(steps):
            r2 = RINGA + 4 * ((i + 1) % NRING); g[0].extra = [('a', r2 + x) for x in range(4)]
        groups.append(g + (rds[i + ahead] if i + ahead < len(steps) else []))
    return flat(rds[:ahead]), groups

FAST = opt('fast', 1)
LO = """s_load_dwordx2 s[12:13], s[0:1], 8
s_load_dwordx2 s[16:17], s[0:1], 16
s_load_dwordx2 s[20:21], s[0:1], 24
s_load_dwordx2 s[24:25], s[0:1], 40
s_load_dwordx2 s[28:29], s[0:1], 48
s_load_dwordx2 s[32:33], s[0:1], 56
s_load_dwordx2 s[36:37], s[0:1], 72
"""
CP = f"""v_lshlrev_b32 v3, 4, v1
v_lshl_add_u32 v3, v2, 6, v3
v_lshl_add_u32 v3, v2, 4, v3
v_add_u32 v3, s{sCt}, v3
v_lshlrev_b32 v3, 7, v3
s_and_b32 s76, s76, 0xffffff00
s_mov_b64 exec, 31
global_load_dword v236, v3, s[76:77]
s_mov_b64 exec, -1
"""
MAP1 = [f"""{"s_lshr_b32 s4, s70, 1" if opt("pair", 1) else "s_and_b32 s4, s70, 3"}
s_lshl_b32 s{sT}, s{sT}, 2
s_and_b32 s{sD}, s{sB}, 3
s_add_u32 s{sT}, s{sT}, s{sD}
{"s_and_b32 s59, s70, 1" if opt("pair", 1) else "s_lshr_b32 s59, s70, 2"}
s_lshl_b32 s{sH}, s{sP}, 3
s_lshr_b32 s{sD}, s{sB}, 2
s_add_u32 s{sH}, s{sH}, s{sD}
s_mul_i32 s{sP}, s{sT}, {opt("rt", 2)}
s_add_u32 s{sD}, s{sD}, s{sP}
s_mul_i32 s{sP}, s{sD}, 37
s_lshr_b32 s{sP}, s{sP}, 8
s_mul_i32 s{sP}, s{sP}, 7
s_sub_u32 s{sD}, s{sD}, s{sP}
s_lshl_b32 s{sKX}, s{sD}, 7
""",
f"""s_lshl_b32 s{sT}, s{sA}, 1
s_lshr_b32 s{sD}, s{sB}, 4
s_add_u32 s{sT}, s{sT}, s{sD}
s_mov_b32 s{sH}, s{sCt}
s_and_b32 s{sD}, s{sH}, 7
s_cmp_eq_u32 s{sD}, 7
s_cselect_b32 s{sD}, 3, s{sD}
s_lshl_b32 s{sKX}, s{sD}, 7
""",
f"""s_mov_b32 s{sT}, s{sCt}
s_lshl_b32 s{sH}, s{sA}, 1
s_lshr_b32 s{sD}, s{sB}, 4
s_add_u32 s{sH}, s{sH}, s{sD}
s_and_b32 s{sD}, s{sH}, 7
s_mul_i32 s{sD}, s{sD}, 3
s_mul_i32 s{sP}, s{sD}, 37
s_lshr_b32 s{sP}, s{sP}, 8
s_mul_i32 s{sP}, s{sP}, 7
s_sub_u32 s{sD}, s{sD}, s{sP}
s_lshl_b32 s{sKX}, s{sD}, 7
"""][opt("map1", 0)]
if DIAG: I("s_memrealtime s[78:79]")
I(f"""s_cmp_ge_u32 s2, 256
s_cbranch_scc1 L_end
s_load_dwordx2 s[8:9], s[0:1], 0
{LO if not FAST else ''}{"s_waitcnt lgkmcnt(0)" + chr(10) + "s_memrealtime s[88:89]" if opt("bare", 0) else ""}
s_getpc_b64 s[76:77]
v_and_b32 v1, 63, v0
v_lshrrev_b32 v2, 6, v0
s_and_b32 s{sA}, s2, 7
v_readfirstlane_b32 s{sW}, v2
s_lshr_b32 s{sB}, s2, 3
s_and_b32 s{sCt}, s{sB}, 15
{CP if FAST < 2 else ''}{MAP1}
s_mov_b32 s10, 1835008
s_mov_b32 s11, 0x20000
v_lshrrev_b32 v2, 3, v1
v_mul_u32_u24 v244, 896, v2
v_lshrrev_b32 v2, 4, v1
v_and_b32 v8, 7, v1
v_xor_b32 v2, v2, v8
v_lshl_add_u32 v244, v2, 4, v244
v_xor_b32 v245, 64, v244
v_add_u32 v245, {7168-1024}, v245
v_add_u32 v246, {2*(7168-1024)}, v244
v_add_u32 v247, {2*(7168-1024)}, v245
s_lshl_b32 s{sQ}, s{sT}, 2
s_add_u32 s{sQ}, s{sQ}, s{sW}
s_mul_i32 s{sQ}, s{sQ}, {32*896}
s_lshr_b32 s{sXO}, s{sW}, 1
s_add_u32 s{sXO}, s{sXO}, s{sW}
s_mul_i32 s{sXO}, s{sXO}, {XW}
s_waitcnt lgkmcnt(0)""")
st0 = stampi("start")
if not opt("bare", 0): P.add(st0)
def xdma(g): return flat(dmag([244, 245, 246, 247], X, sQ, f"s{sKX+g}", sXO, 4096*g, f"x{g}"))
P.add(xdma(0))
if FAST: I(LO)
if FAST == 2: I(f"v_lshrrev_b32 v2, 6, v0\ns_and_b32 s{sCt}, s{sB}, 15\n" + CP)
I(f"""s_mov_b32 s14, {0 if opt('abl',0)&8 else 1204224}
s_mov_b32 s15, 0x20000
v_and_b32 v8, 3, v1""")
def wtouch(mask16, dst):
    m = mask16 | (mask16 << 16)
    return mk(f"s_mov_b32 exec_lo, {hex(m)}\ns_mov_b32 exec_hi, {hex(m)}\nbuffer_load_dword v{dst}, v255, {WQKV}, 0 offen\ns_mov_b64 exec, -1")
def kxs(g): return mk(f"s_add_u32 s{sKX+g}, s{sKX+g-1}, 128\ns_cmp_ge_u32 s{sKX+g}, 896\ns_cselect_b32 s{sD}, 896, 0\ns_sub_u32 s{sKX+g}, s{sKX+g}, s{sD}")
NXE = opt("nxe", 2)
if opt("wtfirst", 1) and opt("wt0", 0): P.add(wtouch(opt("wt0", 0), 237))
for g in range(1, NXE): P.add(kxs(g) + xdma(g))
if not opt("wtfirst", 1) and opt("wt0", 0): P.add(wtouch(opt("wt0", 0), 237))
if FAST: I("s_waitcnt lgkmcnt(0)")
if opt("wsoff", 0): I(f"s_add_u32 s36, s36, {opt('wsoff', 0)}\ns_addc_u32 s37, s37, 0")
I(f"""s_mov_b32 s38, {WS_SIZE}
s_mov_b32 s39, 0x20000
s_mov_b32 s18, 25088
s_mov_b32 s19, 0x20000
s_mov_b32 s22, {0 if opt('abl',0)&4 else 401408}
s_mov_b32 s23, 0x20000
s_xor_b32 s{sHQ}, s{sH}, 1
v_mov_b32 v11, 0
v_lshlrev_b32 v6, 7, v1""")
TM = opt("tm", 0)
sm_ld = mk(f"""s_mov_b64 exec, 1
buffer_load_dword v5, v6, {WS}, 0 offen sc1""")
if opt("two_", 1): sm_ld += mk(f"""s_lshl_b32 s56, s2, 2
s_add_u32 s56, s56, s{sW}
s_lshl_b32 s56, s56, 9
s_mov_b64 exec, 15
buffer_load_dword v238, v6, {WO}, s56 offen""")
if opt("twp", 0): sm_ld += mk(f"""s_and_b32 s{sCt}, s{sH}, 14
s_mul_i32 s{sCt}, s{sCt}, 1568
s_mul_i32 s56, s{sW}, 896
s_add_u32 s{sCt}, s{sCt}, s56
s_mov_b64 exec, 127
buffer_load_dword v239, v6, {WPHI}, s{sCt} offen""")
wq_t = mk(f"""s_lshl_b32 s56, s2, 2
s_add_u32 s56, s56, s{sW}
s_mul_i32 s56, s56, 1280
s_mov_b64 exec, 0x3ff
buffer_load_dword v237, v6, {WQKV}, s56 offen
s_mov_b64 exec, -1""")
if opt("twq", 0) == 1: sm_ld += wq_t
if opt("tp", 0) == 4:
    sm_ld += mk(f"""s_mov_b32 s26, 1605632
s_mov_b32 s27, 0x20000
s_mov_b32 s30, 1605632
s_mov_b32 s31, 0x20000
s_mul_i32 s{sCt}, s2, {52*128}
s_mul_i32 s56, s{sW}, {13*128}
s_add_u32 s{sCt}, s{sCt}, s56
s_mov_b64 exec, 0x1fff
buffer_load_dword v255, v6, {W1}, s{sCt} offen
buffer_load_dword v254, v6, {W2}, s{sCt} offen""")
sm_ld += mk("s_mov_b64 exec, -1")
if TM == 0: P.add(sm_ld)
for g in range(NXE, 7): P.add(kxs(g))
MORE = opt("more", 0)
I(f"s_mov_b32 s{sONES}, 0x3f803f80\ns_mul_i32 s66, s{sH}, 1568\ns_mul_i32 s81, s{sHQ}, 1568")
_m1 = len(P.items)
I(f"""s_lshl_b32 s{sT2}, s{sA}, 1
s_lshr_b32 s{sD}, s{sB}, 4
s_add_u32 s{sT2}, s{sT2}, s{sD}
s_and_b32 s{sRact}, s{sB}, 15
s_min_u32 s{sR}, s{sRact}, 13
s_mov_b32 s26, {0 if opt('abl',0)&1 else 1605632}
s_mov_b32 s27, 0x20000
s_mov_b32 s30, {0 if opt('abl',0)&2 else 1605632}
s_mov_b32 s31, 0x20000
s_mov_b32 s34, 1835008
s_mov_b32 s35, 0x20000
s_mov_b32 s64, 0
s_mov_b32 s65, -1
s_mov_b32 s{sMASK}, 0xbfffbfff
s_mov_b32 s{sHIM}, 0xffff0000
s_mov_b32 s{sSPIN}, 0
s_mov_b32 s80, 0
s_cmp_ge_u32 s{sR}, 7
s_cselect_b32 s{sU}, 1, 0
s_mul_i32 s{sA}, s{sU}, 7
s_sub_u32 s{sC}, s{sR}, s{sA}""")
sT3 = 67
if opt("map3", 1):
    I(f"""s_and_b32 s{sA}, s{sT2}, 12
s_and_b32 s{sD}, s{sT2}, 1
s_lshl_b32 s{sD}, s{sD}, 1
s_add_u32 s{sA}, s{sA}, s{sD}
s_add_u32 s{sT3}, s{sA}, s{sU}
s_bfe_u32 s{sA}, s{sT2}, 0x10001
s_mul_i32 s{sA}, s{sA}, 7
s_add_u32 s{sR}, s{sA}, s{sC}""")
else: I(f"s_mov_b32 s{sT3}, s{sT2}")
for g in range(7): I(f"s_mul_i32 s{sKW+g}, s{sKX+g}, {172032//128}")
I(f"""s_mul_i32 s{sWB}, s{sH}, 56
s_mul_i32 s{sD}, s{sW}, 43008
s_add_u32 s{sWB}, s{sWB}, s{sD}
s_mul_i32 s{sWQ}, s{sHQ}, 56
s_add_u32 s{sWQ}, s{sWQ}, s{sD}
s_add_u32 s{sWB}, s{sWB}, 896
s_lshl_b32 s{sWM}, s{sW}, 10""")
_m0 = _m1 if MORE else len(P.items)
I(f"""s_lshl_b32 s{sA}, s{sH}, 4
s_add_u32 s{sA}, s{sA}, s{sT}
s_mul_i32 s{sA}, s{sA}, 4608
s_add_u32 s{sA}, s{sA}, {WS_PART}
s_add_u32 s{sPST}, s{sA}, s{sWM}
s_lshl_b32 s{sD}, s{sW}, 7
s_add_u32 s{sA}, s{sA}, s{sD}
s_add_u32 s{sPCK}, s{sA}, 4096
s_lshl_b32 s{sA}, s{sT}, 2
s_add_u32 s{sA}, s{sA}, s{sW}
s_lshl_b32 s{sA}, s{sA}, 15
s_lshl_b32 s{sB}, s{sHQ}, 11
s_add_u32 s{sA}, s{sA}, s{sB}
s_add_u32 s{sOST}, s{sA}, {WS_O}
s_lshl_b32 s{sA}, s{sT2}, 2
s_lshl_b32 s{sB}, s{sU}, 1
s_add_u32 s{sA}, s{sA}, s{sB}
s_and_b32 s{sB}, s{sW}, 1
s_add_u32 s{sTILE}, s{sA}, s{sB}
s_mul_i32 s{sA}, s{sA}, {32*896}
s_lshl_b32 s{sB}, s{sC}, 7
s_add_u32 s{sA}, s{sA}, s{sB}
s_mul_i32 s{sD}, s{sW}, {16*896}
s_add_u32 s{sXRB}, s{sA}, s{sD}
s_mul_i32 s{sA}, s{sTILE}, {32*896}
s_add_u32 s{sA}, s{sA}, s{sB}
s_lshr_b32 s{sB}, s{sW}, 1
s_lshl_b32 s{sB}, s{sB}, 6
s_add_u32 s{sOUT}, s{sA}, s{sB}
s_mul_i32 s{sP}, s{sHQ}, {16*4608}
s_add_u32 s{sP}, s{sP}, {WS_PART}""")
deferred = P.items[_m0:]; del P.items[_m0:]
WPK, WPQ, WPT = 192, 200, 208
vWPA, vWPB, vKVX, vIMW, vKA, vKB, vFPD, vFPC, vWO0, vWO1, vXRD0, vXRD1, vXRR, vWOR = range(128, 142)
I(f"""v_lshrrev_b32 v3, 5, v1
v_bfe_u32 v11, v1, 3, 2
v_lshl_add_u32 v11, v11, 2, v8
v_bfe_u32 v12, v1, 2, 1
v_mul_u32_u24 v12, 14, v12
v_min_u32 v13, 13, v11
v_add_u32 v13, v13, v12
v_lshlrev_b32 v13, 1, v13
v_mul_u32_u24 v14, 224, v3
v_add_u32 v{vWPA}, v13, v14
v_lshl_add_u32 v{vWPB}, v3, 20, v{vWPA}
v_and_b32 v9, 31, v1
v_lshlrev_b32 v240, 7, v9
v_bfe_u32 v10, v1, 1, 3
v_xor_b32 v10, v10, v3
v_lshl_add_u32 v240, v10, 4, v240
v_add_u32 v240, s{sXO}, v240
v_xor_b32 v241, 32, v240
v_xor_b32 v242, 64, v240
v_xor_b32 v243, 96, v240
v_mov_b32 v250, 0
v_mov_b32 v251, 0""")
_m2 = len(P.items)
I(f"""v_lshlrev_b32 v2, 4, v1
v_lshlrev_b32 v4, 2, v1
v_add_u32 v12, v12, v11
v_cmp_gt_u32 vcc, 14, v11
v_lshrrev_b32 v7, 2, v1
v_mul_u32_u24 v7, 2688, v7
v_cndmask_b32 v12, 28, v12, vcc
v_and_b32 v13, 15, v12
v_lshlrev_b32 v13, 4, v13
v_lshrrev_b32 v12, 4, v12
v_lshl_add_u32 v13, v12, 3, v13
v_lshl_add_u32 v13, v3, 8, v13
v_add_u32 v{vKVX}, {L_KVX}, v13
v_lshlrev_b32 v11, 4, v8
v_min_u32 v11, 40, v11
v_add_u32 v7, v7, v11""")
_m0 = _m2 if MORE else len(P.items)
I(f"""s_lshl_b32 s{sA}, s{sW}, 5
v_add_u32 v10, s{sA}, v9
v_mul_u32_u24 v10, 208, v10
v_mul_u32_u24 v11, 96, v3
v_add_u32 v{vIMW}, v10, v11
v_lshrrev_b32 v10, 4, v1
v_bfe_u32 v15, v1, 2, 2
v_lshl_add_u32 v10, v10, 3, v15
v_mul_u32_u24 v10, 208, v10
v_and_b32 v11, 1, v1
v_mul_u32_u24 v11, 96, v11
v_add_u32 v10, v10, v11
v_bfe_u32 v11, v1, 1, 1
v_lshl_add_u32 v10, v11, 3, v10
v_add_u32 v{vKB}, {L_IMG}, v10
s_lshl_b32 s{sA}, s{sW}, 4
v_add_u32 v{vKA}, s{sA}, v{vKB}
v_add_u32 v{vFPD}, s{sWM}, v2
s_lshl_b32 s{sD}, s{sW}, 7
s_add_u32 s{sD}, s{sD}, 4096
v_lshlrev_b32 v0, 1, v1
v_add_u32 v{vFPC}, s{sD}, v0
v_lshrrev_b32 v12, 3, v1
v_mul_u32_u24 v14, 896, v12
v_and_b32 v13, 7, v1
v_xor_b32 v12, v12, v13
v_lshl_add_u32 v{vXRD0}, v12, 4, v14
v_add_u32 v{vXRD1}, {7168-1024}, v{vXRD0}
v_bfe_u32 v12, v1, 4, 1
v_lshlrev_b32 v11, 2, v12
v_xor_b32 v11, v11, v13
v_lshl_add_u32 v{vWO0}, v11, 4, v14
v_add_u32 v{vWO1}, {7168-1024}, v{vWO0}
s_and_b32 s{sA}, s{sW}, 1
s_lshl_b32 s{sA}, s{sA}, 12
s_add_u32 s{sA}, s{sA}, {L_XCH}
v_lshlrev_b32 v10, 7, v9
v_lshl_add_u32 v10, v3, 3, v10
v_add_u32 v10, s{sA}, v10
s_lshr_b32 s{sA}, s{sW}, 1
s_lshl_b32 s{sB}, s{sA}, 2
v_xor_b32 v13, s{sB}, v13
v_lshl_add_u32 v{vXRR}, v13, 4, v10
v_mad_u32_u24 v10, v3, 14, v15
v_lshlrev_b32 v10, 7, v10
v_bfe_u32 v13, v1, 3, 1
v_xor_b32 v13, v13, v3
v_xor_b32 v13, s{sA}, v13
v_lshl_add_u32 v10, v13, 6, v10
v_lshl_add_u32 v10, v12, 5, v10
v_lshl_add_u32 v10, v8, 3, v10
s_mul_i32 s{sA}, s{sA}, {4*28*128}
s_add_u32 s{sA}, s{sA}, {L_WO}
v_add_u32 v{vWOR}, s{sA}, v10
v_lshl_add_u32 v11, v3, 3, v15
v_lshlrev_b32 v11, 6, v11
v_lshl_add_u32 v12, v12, 2, v8
v_cmp_lt_u32 vcc, 5, v12
v_xor_b32 v13, 1, v12
v_cndmask_b32 v12, v12, v13, vcc
v_lshl_add_u32 v11, v12, 3, v11
v_add_u32 v13, {L_WK}, v11""")
I(f"""v_bfe_u32 v10, v1, 2, 1
v_bfe_u32 v14, v1, 4, 1
v_lshl_add_u32 v10, v14, 1, v10
v_cmp_eq_u32 vcc, v10, v3
v_and_b32 v10, 1, v1
v_lshlrev_b32 v10, 4, v10
v_mov_b32 v14, 0x3f80
v_lshlrev_b32 v10, v10, v14
v_cndmask_b32 v10, 0, v10, vcc
v_bfe_u32 v14, v1, 3, 1
v_bfe_u32 v15, v1, 1, 1
v_lshl_add_u32 v14, v14, 1, v15""")
for q in range(4): I(f"v_cmp_eq_u32 vcc, {q}, v14\nv_cndmask_b32 v15, 0, v10, vcc\nv_accvgpr_write_b32 a{220+q}, v15")
I("v_add_u32 v9, 896, v7")
deferred += P.items[_m0:]; del P.items[_m0:]
RELOC = opt("reloc", 0)
if RELOC:
    deferred = mk(f"""v_bfe_u32 v15, v1, 2, 2
v_bfe_u32 v12, v1, 4, 1
v_lshl_add_u32 v11, v3, 3, v15
v_lshlrev_b32 v11, 6, v11
v_lshl_add_u32 v12, v12, 2, v8
v_cmp_lt_u32 vcc, 5, v12
v_xor_b32 v13, 1, v12
v_add_u32 v9, 896, v7
v_lshlrev_b32 v0, 1, v1
v_cndmask_b32 v12, v12, v13, vcc
v_lshl_add_u32 v11, v12, 3, v11
v_add_u32 v13, {L_WK}, v11""")
    snA = mk(f"""s_lshl_b32 s{sA}, s{sH}, 4
s_add_u32 s{sA}, s{sA}, s{sT}
s_mul_i32 s{sA}, s{sA}, 4608
s_add_u32 s{sA}, s{sA}, {WS_PART}
s_add_u32 s{sPST}, s{sA}, s{sWM}
s_lshl_b32 s{sD}, s{sW}, 7
s_add_u32 s{sA}, s{sA}, s{sD}
s_add_u32 s{sPCK}, s{sA}, 4096
s_mul_i32 s{sP}, s{sHQ}, {16*4608}
s_add_u32 s{sP}, s{sP}, {WS_PART}""")
    snB = mk(f"""s_lshl_b32 s{sA}, s{sT2}, 2
s_lshl_b32 s{sB}, s{sU}, 1
s_add_u32 s{sA}, s{sA}, s{sB}
s_and_b32 s{sB}, s{sW}, 1
s_add_u32 s{sTILE}, s{sA}, s{sB}
s_mul_i32 s{sA}, s{sA}, {32*896}
s_lshl_b32 s{sB}, s{sC}, 7
s_add_u32 s{sA}, s{sA}, s{sB}
s_mul_i32 s{sD}, s{sW}, {16*896}
s_add_u32 s{sXRB}, s{sA}, s{sD}""")
    snC = mk(f"""v_bfe_u32 v10, v1, 2, 1
v_bfe_u32 v9, v1, 4, 1
v_lshl_add_u32 v10, v9, 1, v10
v_cmp_eq_u32 vcc, v10, v3
v_and_b32 v10, 1, v1
v_lshlrev_b32 v10, 4, v10
v_mov_b32 v9, 0x3f80
v_lshlrev_b32 v10, v10, v9
v_cndmask_b32 v10, 0, v10, vcc
v_bfe_u32 v9, v1, 3, 1
v_bfe_u32 v143, v1, 1, 1
v_lshl_add_u32 v9, v9, 1, v143""")
    for q in range(4): snC += mk(f"v_cmp_eq_u32 s[{40+2*(q&1)+6}:{41+2*(q&1)+6}], {q}, v9") if False else []
    snC2 = flat([mk(f"v_cmp_eq_u32 vcc, {q}, v9\nv_cndmask_b32 v143, 0, v10, vcc\nv_accvgpr_write_b32 a{220+q}, v143") for q in range(4)])
    snD = mk(f"""s_lshl_b32 s{sA}, s{sT}, 2
s_add_u32 s{sA}, s{sA}, s{sW}
s_lshl_b32 s{sA}, s{sA}, 15
s_lshl_b32 s{sB}, s{sHQ}, 11
s_add_u32 s{sA}, s{sA}, s{sB}
s_add_u32 s{sOST}, s{sA}, {WS_O}
s_mul_i32 s{sA}, s{sTILE}, {32*896}
s_lshl_b32 s{sB}, s{sC}, 7
s_add_u32 s{sA}, s{sA}, s{sB}
s_lshr_b32 s{sB}, s{sW}, 1
s_lshl_b32 s{sB}, s{sB}, 6
s_add_u32 s{sOUT}, s{sA}, s{sB}""")
    snE = mk(f"""v_add_u32 v{vFPD}, s{sWM}, v2
s_lshl_b32 s{sD}, s{sW}, 7
s_add_u32 s{sD}, s{sD}, 4096
v_add_u32 v{vFPC}, s{sD}, v0
v_lshrrev_b32 v12, 3, v1
v_mul_u32_u24 v14, 896, v12
v_and_b32 v13, 7, v1
v_xor_b32 v12, v12, v13
v_lshl_add_u32 v{vXRD0}, v12, 4, v14
v_add_u32 v{vXRD1}, {7168-1024}, v{vXRD0}
v_bfe_u32 v12, v1, 4, 1
v_lshlrev_b32 v12, 2, v12
v_xor_b32 v12, v12, v13
v_lshl_add_u32 v{vWO0}, v12, 4, v14
v_add_u32 v{vWO1}, {7168-1024}, v{vWO0}
v_add_u32 v128, {2*(7168-1024)}, v{vWO0}
v_add_u32 v129, {3*(7168-1024)}, v{vWO0}""")
    snF = mk(f"""s_and_b32 s{sA}, s{sW}, 1
s_lshl_b32 s{sA}, s{sA}, 12
s_add_u32 s{sA}, s{sA}, {L_XCH}
v_and_b32 v9, 31, v1
v_lshlrev_b32 v10, 7, v9
v_lshl_add_u32 v10, v3, 3, v10
v_add_u32 v10, s{sA}, v10
s_lshr_b32 s{sA}, s{sW}, 1
s_lshl_b32 s{sB}, s{sA}, 2
v_and_b32 v9, 7, v1
v_xor_b32 v9, s{sB}, v9
v_lshl_add_u32 v{vXRR}, v9, 4, v10
v_bfe_u32 v9, v1, 2, 2
v_mad_u32_u24 v10, v3, 14, v9
v_lshlrev_b32 v10, 7, v10
v_bfe_u32 v9, v1, 3, 1
v_xor_b32 v9, v9, v3
v_xor_b32 v9, s{sA}, v9
v_lshl_add_u32 v10, v9, 6, v10
v_bfe_u32 v9, v1, 4, 1
v_lshl_add_u32 v10, v9, 5, v10
v_lshl_add_u32 v10, v8, 3, v10
s_mul_i32 s{sA}, s{sA}, {4*28*128}
s_add_u32 s{sA}, s{sA}, {L_WO}
v_add_u32 v{vWOR}, s{sA}, v10""")
    snG = mk(f"""v_and_b32 v10, 31, v1
s_lshl_b32 s{sA}, s{sW}, 5
v_add_u32 v10, s{sA}, v10
v_mul_u32_u24 v10, 208, v10
v_mul_u32_u24 v12, 96, v3
v_add_u32 v{vIMW}, v10, v12
v_lshrrev_b32 v10, 4, v1
v_lshl_add_u32 v10, v10, 3, v15
v_mul_u32_u24 v10, 208, v10
v_and_b32 v12, 1, v1
v_mul_u32_u24 v12, 96, v12
v_add_u32 v10, v10, v12
v_bfe_u32 v12, v1, 1, 1
v_lshl_add_u32 v10, v12, 3, v10
v_add_u32 v{vKB}, {L_IMG}, v10
s_lshl_b32 s{sA}, s{sW}, 4
v_add_u32 v{vKA}, s{sA}, v{vKB}""")
    if opt("gx", 1): deferred += snG; snG = []
    if opt("cx", 0): deferred += snC + snC2 + mk("v_add_u32 v9, 896, v7"); snC = []; snC2 = []
else: snA = snB = snC = snC2 = snD = snE = snF = snG = []
NDEF0 = opt("ndef0", 0)
P.add(deferred[:NDEF0]); deferred = deferred[NDEF0:]
L2N = 0
if L2N:
    I(f"""s_mov_b32 s{sCt}, 0x60504020
s_cmp_ge_u32 s{sH}, 8
s_cselect_b32 s{sCt}, 0x53020100, s{sCt}
s_and_b32 s{sD}, s{sH}, 7
s_lshl_b32 s{sD}, s{sD}, 2
s_lshr_b32 s{sCt}, s{sCt}, s{sD}
s_and_b32 s{sCt}, s{sCt}, 15
s_and_b32 s{sD}, s{sT}, 3
s_mul_i32 s{sD}, s{sD}, 7
s_add_u32 s{sCt}, s{sCt}, s{sD}
s_lshl_b32 s{sCt}, s{sCt}, 2
s_add_u32 s{sCt}, s{sCt}, s{sW}
s_mul_i32 s66, s{sCt}, 14336
s_add_u32 s81, s66, 57344
s_lshl_b32 s{sD}, s{sH}, 1
s_lshr_b32 s{sD}, 0xa111444a, s{sD}
s_and_b32 s{sD}, s{sD}, 3
s_cmp_ge_u32 s{sD}, 1
s_cselect_b32 s66, s66, 0x10000000
s_cmp_ge_u32 s{sD}, 2
s_cselect_b32 s81, s81, 0x10000000
v_add_u32 v143, 7168, v6""")
def l2n(k): return mk(f"s_mov_b32 exec_hi, 0xffffff\nbuffer_load_dword v{142}, v{6 if k % 2 == 0 else 143}, {W1}, s{66 if k < 2 else 81} offen\ns_mov_b32 exec_hi, -1")
stamp("setup done", "p")
def wphi(dst, tmp, so):
    q = []
    for t in range(2):
        for j in range(8):
            d = 16 * t + 8 * (j >> 2) + (j & 3)
            av = vWPB if (t == 1 and j >= 4) else vWPA
            r = (dst if j % 2 == 0 else tmp) + 4 * t + j // 2
            op = "buffer_load_short_d16" if j % 2 == 0 else "buffer_load_short_d16_hi"
            q += mk(f"{op} v{r}, v{av}, {WPHI}, s{so} offen offset:{d*56}")
    return q
def wkdma(g): return flat(dmag([7], WQKV, sWB, f"s{sKW+g}", sWM, L_WK + 4096*g, f"wk{g}"))
def wvdma(g): return flat(dmag([9], WQKV, sWB, f"s{sKW+g}", sWM, L_WV + 4096*g, f"wv{g}"))
def wqdma(g): return flat(dmag([7], WQKV, sWQ, f"s{sKW+g}", sWM, L_WQ + 4096*g, f"wq{g}"))
if opt("fake", 0):
    I(f"""v_mov_b32 v7, v2
v_add_u32 v9, 24576, v2
s_mul_i32 s{sWB}, s{sH}, 73728
s_add_u32 s{sWB}, s{sWB}, s{sWM}
s_mul_i32 s{sWQ}, s{sHQ}, 73728
s_add_u32 s{sWQ}, s{sWQ}, s{sWM}
s_add_u32 s{sWQ}, s{sWQ}, 45056""")
    for g in range(7): I(f"s_lshl_b32 s{sKW+g}, s{sKX+g}, 5")
XF = 16
NX0 = opt("nx0", 3)
if opt("wt1", 0): P.add(wtouch(opt("wt1", 0), 249))
WPP = opt("wpp", 1)
if WPP == 1: P.add(wphi(WPK, WPT, 66) + wphi(WPQ, WPT+8, 81))
for g in range(NXE, NX0): P.add(xdma(g))
if WPP == 2: P.add(wphi(WPK, WPT, 66) + wphi(WPQ, WPT+8, 81))
pend = [xdma(g) for g in range(NX0, 7)]
wkl = [wkdma(g) for g in range(7)]
if opt("twq", 0) >= 3: pend[opt("twq", 0) - NX0] = pend[opt("twq", 0) - NX0] + wq_t
if opt("twq", 0) == 2: P.add(wq_t)
if TM and TM < NX0: P.add(sm_ld)
elif TM: pend[TM - NX0] = pend[TM - NX0] + sm_ld
if opt("wt2", 0): pend[-1] = pend[-1] + wtouch(opt("wt2", 0), 248)
pend.append(wkl.pop(0) + (wphi(WPK, WPT, 66) if not WPP else []))
pend.append(wkl.pop(0) + (wphi(WPQ, WPT+8, 81) if not WPP else []))
while len(pend) < 7: pend.append(wkl.pop(0))
def xrd(g): return flat([mk(f"ds_read_b128 {v(XF+16*g+4*e,4)}, v{240+e} offset:{4096*g}") for e in range(4)])
_n = opt("ndefx", 0)
while 0 < _n < len(deferred) and deferred[_n-1].op.startswith("s_cmp"): _n += 1
P.add(deferred[:_n]); deferred = deferred[_n:]
P.wait("x0"); P.add(xrd(0))
for g in range(7):
    if pend: P.add(pend.pop(0))
    if g + 1 < 7: P.wait(f"x{g+1}"); P.add(xrd(g + 1))
    for i in range(16):
        r = XF + 16*g + i
        I(f"v_dot2c_f32_bf16 v250, s{sONES}, v{r}\nv_dot2c_f32_bf16 v251, v{r}, v{r}")
    nd_ = -(-len(deferred) // max(1, opt("ndi", 4) - g)) if g < opt("ndi", 4) else len(deferred)
    while 0 < nd_ < len(deferred) and deferred[nd_-1].op.startswith("s_cmp"): nd_ += 1
    P.add(deferred[:nd_]); deferred = deferred[nd_:]
    if g == 0: stamp("x0 done", "p")
for x_ in pend: P.add(x_)
if opt("tp", 0) == 2:
    I(f"""s_mul_i32 s{sCt}, s2, {52*128}
s_mul_i32 s{sD}, s{sW}, {13*128}
s_add_u32 s{sCt}, s{sCt}, s{sD}
s_mov_b64 exec, 0x1fff
buffer_load_dword v254, v6, {W2}, s{sCt} offen
buffer_load_dword v255, v6, {W1}, s{sCt} offen
s_mov_b64 exec, -1""")
stamp("x stats done", "mp")
I(f"""v_permlane32_swap_b32 v250, v251
v_readfirstlane_b32 s{sA}, v5
s_nop 0
v_add_f32 v250, v250, v251
v_mul_f32 v250, {fhex(-1/448)}, v250
v_mov_b32 v251, v250
s_or_b32 s{sA}, s{sA}, 1
s_mul_i32 s{sA}, s{sA}, 0x9E3779B5
v_mov_b32 v5, s{sA}
s_mov_b32 s{sA}, 0x3f80
v_permlane32_swap_b32 v250, v251
s_mov_b32 s{sB}, 0x3f800000""")
fin = mk(f"""v_fma_f32 v251, -v250, v250, -v251
v_max_f32 v251, 0, v251
v_add_f32 v251, 0x3727c5ac, v251
v_rsq_f32 v251, v251
s_lshl_b32 s{sQ}, s{sC}, 7
s_mul_i32 s{sD}, s{sW}, {16*896}
v_mul_f32 v252, 0x3fb8aa3b, v251
v_mul_f32 v253, 0xbfb8aa3b, v251
s_add_u32 s{sQ}, s{sQ}, s{sD}
s_lshl_b32 s{sXO}, s{sW}, 11""")
if opt("noid", 1): fin = [mk(f"s_cmp_ge_u32 s{sRact}, 14\ns_cselect_b32 s22, 0, s22")] + fin
ACK = 144; ACV = 160; PK = 176; IMG = 208; TMP = 232
def norm(t):
    q = Prog(); tb = TMP + 8 * (t & 1)
    for i in range(4):
        r = XF + 4 * t + i
        q.I(f"v_dot2_f32_bf16 v{tb+2*i}, v{r}, s{sA}, v250\nv_dot2_f32_bf16 v{tb+2*i+1}, v{r}, s{sB}, v250")
    return q.items
def normc(t):
    tb = TMP + 8 * (t & 1)
    return flat([mk(f"v_cvt_pk_bf16_f32 v{XF+4*t+i}, v{tb+2*i}, v{tb+2*i+1}") for i in range(4)])
def l2t(srd, k, dst):
    return mk(f"""s_lshr_b32 s{sCt}, s2, 3
s_lshl_b32 s{sCt}, s{sCt}, 2
s_add_u32 s{sCt}, s{sCt}, s{sW}
s_mul_i32 s{sCt}, s{sCt}, {98*128}
s_mov_b32 exec_hi, 0x1ffff
s_add_u32 s{sCt}, s{sCt}, {k*49*128}
buffer_load_dword v{dst}, v6, {srd}, s{sCt} offen
s_mov_b32 exec_hi, -1""")
L2A, L2B = opt("l2a", -1), opt("l2b", -1)
touch = mk(f"""s_mul_i32 s{sCt}, s2, {52*128}
s_mul_i32 s56, s{sW}, {13*128}
s_add_u32 s{sCt}, s{sCt}, s56
s_mov_b64 exec, 0x1fff
buffer_load_dword v255, v6, {W1}, s{sCt} offen
buffer_load_dword v254, v6, {W2}, s{sCt} offen
s_mov_b64 exec, -1""")
TP = opt('tp', 0)
ns = norm(0)
for t in range(1, 28): ns += norm(t) + normc(t - 1)
ns += normc(27)
NBAR = opt("nbar", 100)
wvl = [wvdma(k) for k in range(7)]
if opt("loop2", 0):
    I("s_mov_b32 s80, 0\nL_lp2:\ns_mov_b32 s101, s100\ns_memtime s[78:79]\ns_waitcnt lgkmcnt(0)\ns_mov_b32 s99, s78")
    P.add([Ins(x.text) for x in ns])
    I("s_memtime s[78:79]\ns_waitcnt lgkmcnt(0)\ns_sub_u32 s100, s78, s99\ns_add_u32 s100, s100, s88\ns_add_u32 s80, s80, 1\ns_cmp_lt_u32 s80, 2\ns_cbranch_scc1 L_lp2")
    nstamp[0] = 14
P.add(sprinkle(ns[:NBAR], wkl, 0, opt("wkstep", 30)))
if opt("touch", 1) and TP == 1: P.add(touch)
I("s_barrier")
NWV0 = opt("nwv0", 4)
w0_ = [wvl.pop(0) for _ in range(NWV0)]
if L2N == 1: w0_[0] = l2n(0) + w0_[0]; w0_[-1] = w0_[-1] + l2n(2); wvl[-1] = wvl[-1] + l2n(1)
if L2N == 2: wvl[-1] = wvl[-1] + l2n(0) + l2n(2)
P.add(sprinkle(ns[NBAR:], w0_, opt("wv0", 30), opt("wvstep", 50)))
P.wait(*[f"wk{k}" for k in range(7)]); I("s_barrier")
stamp("wk landed", "p")
if opt("zy", 0): I(f"s_sleep {opt('zy', 0)}")
AH = 6
sW1B, sW1M, sW2E, sW2L = 40, 41, 42, 43
set2 = mk(f"""v_lshrrev_b32 v10, 4, v1
v_mul_u32_u24 v12, 3584, v10
v_lshlrev_b32 v10, 2, v10
v_and_b32 v13, 15, v1
v_xor_b32 v10, v10, v13
v_lshl_add_u32 v12, v10, 4, v12
v_add_u32 v13, {4*3584-1024}, v12
v_add_u32 v14, {2*(4*3584-1024)}, v12
v_add_u32 v15, {3*(4*3584-1024)}, v12
s_lshl_b32 s{sW1B}, s{sR}, 8
s_mul_i32 s{sD}, s{sW}, {16*3584}
s_add_u32 s{sW1B}, s{sW1B}, s{sD}
s_lshl_b32 s{sW1M}, s{sW}, 12
s_lshr_b32 s{sA}, s{sW}, 1
s_lshl_b32 s{sA}, s{sA}, 2
s_andn2_b32 s{sB}, 1, s{sW}
s_add_u32 s{sA}, s{sA}, s{sB}
s_lshl_b32 s{sB}, s{sU}, 1
s_add_u32 s44, s{sA}, s{sB}
s_xor_b32 s45, s44, 2
s_lshl_b32 s{sD}, s{sC}, 7
s_mul_i32 s{sW2E}, s44, {32*896}
s_add_u32 s{sW2E}, s{sW2E}, s{sD}
s_mul_i32 s{sW2L}, s45, {32*896}
s_add_u32 s{sW2L}, s{sW2L}, s{sD}
""")
vW2 = [vWO0, vWO1, 128, 129]
sSCR, sBIG = 46, 47
NA = opt("na", 0)
NUR = opt("nur", 2); NT1 = min(NA, opt("nt1", 99))
_u = list(range(14))
def take(n): return [_u.pop(0) for _ in range(min(n, len(_u)))]
UAW = take(NA); UR = take(NUR); UD = take(opt("nud", 2)); UE = take(3); UL = take(opt("nrl", 4)); UP = take(99)
assert all(j >= 7 for j in UL + UP) and all(j >= 4 for j in UE)
RAWS = UAW + UR + UL
def UA(j): return 16*j
def w2slot(j):
    if j in UE: return (sSCR, 4096*UE.index(j), 254)
    if j in UAW + UR + UD: return (sSCR, 4096*(j & 1), 254)
    return (sBIG, 4096*(UL + UP).index(j), 252)
def w2dma(j):
    mb, mo, _ = w2slot(j)
    return dmag(vW2, W2, sW2E if j < 7 else sW2L, (j%7)*256*896, mb, mo, f"w2_{j}", sDM)
def w2raw(j):
    ch = [mk(f"buffer_load_dwordx4 {a_(UA(j)+4*q,4)}, v{vW2[q]}, {W2}, s81 offen offset:{1024*q}") for q in range(4)]
    ch[0] = mk(f"s_add_u32 s81, s{sW2E if j < 7 else sW2L}, {(j%7)*256*896}") + ch[0]
    return ch
def w2rd(j):
    _, mo, av = w2slot(j)
    if j in RAWS: out = [mk(f"ds_write_b128 v{131 if j in UL else 134}, {a_(UA(j)+4*q,4)} offset:{mo+1024*q}") for q in range(4)]
    else: out = [[WaitTag([f"w2_{j}"])]]
    for e in range(2):
        for mu in range(2):
            for u in range(2): out.append(mk(f"ds_read_b64_tr_b16 {a_(UA(j)+8*e+4*mu+2*u,2)}, v{av+mu} offset:{mo+2048*e+1024*u}"))
    return out
raw = flat([w2raw(j) for j in UR])
rawA = flat([w2raw(j) for j in UAW])
if opt("noid", 1): set2 = [mk(f"s_cmp_ge_u32 s{sRact}, 14\ns_cselect_b32 s26, 0, s26")] + set2
if not RELOC: set2 += mk(f"v_add_u32 v128, {2*(7168-1024)}, v{vWO0}\nv_add_u32 v129, {3*(7168-1024)}, v{vWO0}")
set2b = [x for x in set2 if isinstance(x, Ins) and x.cls == 'valu' and x.defs[0][1] < 128]
if opt("trim", 1):
    set2 = [mk(f"""s_cmp_eq_u32 s{sW}, 3
s_cselect_b64 vcc, {sHI}, 0
v_mov_b32 v143, 0x10000000
v_add_u32 v133, s{sWM}, v2
v_cndmask_b32 v142, v5, 0, vcc
v_cndmask_b32 v{vFPD}, v{vFPD}, v143, vcc
v_cndmask_b32 v{vFPC}, v{vFPC}, v143, vcc""")] + set2
set2b = [x for x in set2 if isinstance(x, list)] + set2b
set2a = [x for x in set2 if x not in set2b]
pro, gk = gemm_lds([(13, 1024*t, 1024*t + 256, (XF + 4*t, ACK, t == 0, False)) for t in range(28)], AH)
P.add(pro)
S = Sched(gk)
S.spread(wvl, 0, opt("wve", 16))
NQK = opt("nqk", 2)
S.spread([wqdma(k) for k in range(NQK)], opt("wve", 16), 28)
EARLY = opt("early", 0)
if EARLY:
    P.add(flat([x if isinstance(x, list) else [x] for x in fin + set2a])); fin = []
    wo_l = flat([dmag([vWO0, vWO1], WO, sQ, i*64*896, sXO, L_WO + 8192*i, "wo", sDM) for i in range(7)] + [dmag([vXRD0, vXRD1], X, sXRB, 0, sXO, L_XCH, "wo", sDM)])
    if EARLY == 2:
        S.spread([wo_l[2*i] + wo_l[2*i+1] for i in range(8)], 0, 28)
    else: S.spread([rawA.pop(0) for _ in range(min(len(rawA), opt("ne1", 8)))], 0, 28)
else: fin = fin + set2a + snG
if TP == 3: S.at(opt("tpos", 22), touch)
for k, ps in enumerate((L2A, L2B)):
    if 0 <= ps < 28: S.at(ps, l2t(W1, k, 248 + k))
S.spread(fin + flat([mk(f"v_or_b32 v{WPK+q}, v{WPK+q}, v{WPT+q}\nv_or_b32 v{WPQ+q}, v{WPQ+q}, v{WPT+8+q}") for q in range(8)]), 2, 26)
P.add(S.emit())
def phi_pre(acc, wp):
    q = Prog()
    for i in range(8): q.I(f"v_cvt_pk_bf16_f32 v{acc+i}, v{acc+2*i}, v{acc+2*i+1}")
    q.I(f"{MF} {v(PK,16)}, {v(wp,4)}, {v(acc,4)}, 0\n{MF} {v(PK,16)}, {v(wp+4,4)}, {v(acc+4,4)}, {v(PK,16)}")
    return q.items
stamp("k gemm done", "mp")
wql = [wqdma(k) for k in range(NQK, 7)]
P.add(wql.pop(0))
P.add(snA)
P.add(phi_pre(ACK, WPK))
imw = flat([mk(f"ds_write_b128 v{vIMW}, {v(IMG+4*i,4)} offset:{L_IMG+16*i}") for i in range(3)]) + mk(f"ds_write_b64 v{vIMW}, {v(IMG+12,2)} offset:{L_IMG+48}")
smk = sprinkle(softmax(PK, TMP, IMG, True), [wql.pop(0) for _ in range(min(len(wql), opt("nwq0", 3)))], 10, opt("wqs", 40))
if EARLY: smk = sprinkle(smk, [rawA.pop(0) for _ in range(min(len(rawA), opt("ne2", 8)))], 5, 16)
WEAVE = opt("weave", 1)
pro, gv = gemm_lds([(11, L_WV + 1024*t, L_WV + 1024*t + 256, (XF + 4*t, ACV, t == 0, False)) for t in range(28)], AH)
S = Sched(gv)
if not WEAVE:
    P.add(smk)
    P.wait(*[f"wv{k}" for k in range(7)]); I("s_barrier")
    stamp("softmax k done", "p")
    P.add(pro)
    S.spread(imw, 2, 10)
else:
    smf = softmax(PK, TMP, IMG, 2)
    n0 = next(i for i, x in enumerate(smf) if x.op == "v_exp_f32")
    P.wait(*[f"wv{k}" for k in range(4)]); I("s_barrier")
    P.add(pro)
    P.add(smf[:n0])
    stamp("softmax k done", "p")
    S.spread(smf[n0:] + imw, 0, 28)
    S.at(15 - AH, [WaitTag(["wv4", "wv5", "wv6"])] + mk("s_barrier"), 1.0)
    wql = [wqdma(k) for k in range(NQK + 1, 7)]
wo_l = flat([dmag([vWO0, vWO1], WO, sQ, i*64*896, sXO, L_WO + 8192*i, "wo", sDM) for i in range(7)] + [dmag([vXRD0, vXRD1], X, sXRB, 0, sXO, L_XCH, "wo", sDM)])
if EARLY == 2: wo_l = []
S.spread(wql, 0, opt('wqe', 10))
if EARLY: S.spread([rawA.pop(0) for _ in range(min(len(rawA), opt("ne3", 8)))], 0, 22)
if L2A >= 0 or L2N: touch = [x for x in touch if W1 not in x.text]
if L2N == 1: S.at(opt("l2p", 14), l2n(3))
if L2N == 2: S.at(opt("l2p", 14), l2n(1) + l2n(3))
tlb = []
if opt("tlb", 0) & 1: tlb += mk(f"s_mov_b64 exec, 1\nbuffer_load_dword v248, v6, {OUT}, s{sOUT} offen\ns_mov_b64 exec, -1")
if opt("tlb", 0) & 2: tlb += mk(f"v_lshlrev_b32 v249, 20, v1\ns_mov_b64 exec, 0xffff\nbuffer_load_dword v249, v249, {WS}, 0 offen offset:4092\ns_mov_b64 exec, -1")
if tlb: S.at(opt("tlbp", 13), tlb)
if opt("touch", 1) and TP == 0: S.at(opt("tpos", 11), touch)
for k, ps in enumerate((L2A, L2B)):
    if 200 <= ps < 228: S.at(ps - 200, l2t(W1, k, 248 + k))
S.spread([wo_l.pop(0) for _ in range(2*opt("nwo0", 0))], opt("wos", 17), opt("woe2", 28))
P.add(S.emit())
P.add(snB)
for k in range(0, 16, 2): I(f"v_pk_mul_f32 {v(ACV+k,2)}, {v(ACV+k,2)}, v[250:251] op_sel:[0,1] op_sel_hi:[1,1]")
I(f"v_cndmask_b32 v{ACV+12}, v{ACV+12}, 1.0, {sHI}")
for i in range(8): I(f"v_cvt_pk_bf16_f32 v{IMG+16+i}, v{ACV+2*i}, v{ACV+2*i+1}")
for i in range(4, 6): I(f"ds_write_b128 v{vIMW}, {v(IMG+4*i,4)} offset:{L_IMG+16*i}")
P.wait("wq0", "wq1", "wq2", "wq3")
I("s_waitcnt lgkmcnt(0)\ns_barrier")
stamp("img written", "p")
KA = 144; KBv = 208; KD = 176
for k in range(4):
    for u in range(2):
        I(f"ds_read_b64_tr_b16 {v(KA+4*k+2*u,2)}, v{vKA} offset:{(32*k+4*u)*208}")
    for nu in range(2):
        for u in range(2):
            I(f"ds_read_b64_tr_b16 {v(KBv+8*k+4*nu+2*u,2)}, v{vKB} offset:{(32*k+4*u)*208+64+16*nu}")
P.add(snE)
proq, gq = gemm_lds([(11, L_WQ + 1024*t, L_WQ + 1024*t + 256, (XF + 4*t, ACV, t == 0, False)) for t in range(28)], AH)
for k in range(4):
    for nu in range(2):
        I(f"v_mfma_f32_16x16x32_bf16 {v(KD+4*nu,4)}, {v(KA+4*k,4)}, {v(KBv+8*k+4*nu,4)}, {'0' if k == 0 else v(KD+4*nu,4)}")
P.add(proq[:8])
for i in range(4): I(f"v_cvt_pk_bf16_f32 v{KD+8+i}, v{KD+2*i}, v{KD+2*i+1}")
I(f"buffer_store_dwordx4 {v(KD+8,4)}, v2, {WS}, s{sPST} offen sc1")
I(f"v_xor_b32 v10, v{KD+8}, v5")
I(f"buffer_store_short v10, v0, {WS}, s{sPCK} offen sc1")
if GATE & 1: P.add(flag_store(16))
P.add(proq[8:])
stamp("partial stored", "mp")
S = Sched(gq)
ROTP = opt("rotp", 1)
if ROTP:
    rp = []
    for b in range(4): rp += mk(f"s_lshr_b32 s{50+b}, s{sT}, 2\ns_add_u32 s{50+b}, s{50+b}, {b}\ns_and_b32 s{50+b}, s{50+b}, 3\ns_mul_i32 s{50+b}, s{50+b}, {4*4608}\ns_add_u32 s{50+b}, s{50+b}, s{sP}")
    S.spread(rp, 4, 20)
bgA = wo_l + rawA
nq = min(len(bgA), opt("nq", 16))
S.spread(bgA[:nq], 0, 28)
S.spread(set2b, 2, 18)
G0 = gate("g0", vPO, vPF)
if GATE & 1: S.at(opt("g0", 14), G0.load(0))
S.at(15 - AH, [WaitTag(["wq4", "wq5", "wq6"])] + mk("s_barrier"), 1.0)
P.add(S.emit())
stamp("q gemm done", "p")
G = 16; GC = 80; SA = 96
FP = Fetch("fp", [([f"s_add_u32 s{sCt}, s{50 + (T >> 2) if ROTP else sP}, {4608*(T & 3 if ROTP else T)}\nbuffer_load_dwordx4 {v(G+4*T,4)}, v{vFPD}, {WS}, s{sCt} offen sc1\nbuffer_load_ushort v{GC+T}, v{vFPC}, {WS}, s{sCt} offen sc1"],
                   [G+4*T, GC+T]) for T in range(16)])
NFE = opt("nfe", 4)
for T in range(NFE): P.add(FP.load(T))
P.add(phi_pre(ACV, WPQ))
I("s_barrier")
P.add(snC + snC2)
PQ = 208
smq = softmax(PK, TMP, PQ, True); f0 = opt("fp0", 30)
P.add(sprinkle(smq[:f0], bgA[nq:], 0, opt("as", 8)))
P.add(sprinkle(smq[f0:], [FP.load(T) for T in range(NFE, 16)], 0, opt("fpstep", 6)))
stamp("softmax q done", "p")
w1_l = flat([dmag([12, 13, 14, 15], W1, sW1B, i*64*3584, sW1M, 16384*i, "w1", sDM) for i in range(7)])
def fpb(b):
    t = []
    for k, T in enumerate(range(4*b, 4*b+4)):
        t.append(f"v_bitop3_b32 v{10 if k == 0 else 9}, v{G+4*T}, v{GC+T}, v{142 if opt('trim', 1) else 5} {X3}" + ("" if k == 0 else "\nv_or_b32 v10, v10, v9"))
    return "\n".join(t) + "\nv_cmp_ne_u16 vcc, 0, v10"
RI = TAIL.I if (opt("ool", 15) & 1) else I
if not (opt("ool", 15) & 1): I("s_branch L_fp_go")
RI("L_fp_retry:" + ("\ns_add_u32 s80, s80, 1" if DIAG else ""), unc=True)
for b in range(4):
    RI(fpb(b) + f"\ns_cbranch_vccz L_fp_k{b}\n" + "\n".join(FP.pieces[T][0][0] for T in range(4*b, 4*b+4)) + f"\nL_fp_k{b}:", unc=True)
RI(GUARD, unc=True)
if (opt("ool", 15) & 1): RI("s_branch L_fp_go", unc=True)
I("L_fp_go:")
I(fpb(0) + "\ns_cbranch_vccnz L_fp_retry")
S = Sched([mk(f"{MF} {v(SA,16)}, a[220:223], {v(G+4*T,4)}, {'0' if T == 0 else v(SA,16)}") for T in range(16)])
for b in range(1, 4): S.spread(mk(fpb(b) + "\ns_cbranch_vccnz L_fp_retry"), 4*b - 3, 4*b)
S.spread([w1_l.pop(0) for _ in range(opt("nw1a", 8))], opt("w1as", 2), 16)
P.add(S.emit())
I(f"v_add_u32 v9, {L_KVX}, v{133 if opt('trim', 1) else vFPD}")
P.add(snD)
for i in range(4): I(f"v_cvt_pk_bf16_f32 v{SA+8+i}, v{SA+2*i}, v{SA+2*i+1}")
I(f"ds_write_b128 v9, {v(SA+8,4)}\ns_waitcnt lgkmcnt(0)\ns_barrier")
stamp("kv summed", "mp")
KVA = 32; OD = 48
for q in range(7): I(f"ds_read_b64 {v(KVA+2*q,2)}, v{vKVX} offset:{512*q}")
P.add(snF)
P.add(w1_l.pop(0))
for s in range(3):
    I(f"{MF} {v(OD,16)}, {v(KVA+4*s,4)}, {v(PQ+4*s,4)}, {'0' if s == 0 else v(OD,16)}")
    if s == 1: P.add(w1_l.pop(0))
I(f"v_mfma_f32_32x32x8_bf16 {v(OD,16)}, {v(KVA+12,2)}, {v(PQ+12,2)}, {v(OD,16)}")
I(f"""s_lshl_b32 s{sP}, s{sTILE}, 15
s_lshr_b32 s{sB}, s{sW}, 1
s_lshl_b32 s{sB}, s{sB}, 13
s_add_u32 s{sP}, s{sP}, s{sB}
s_and_b32 s{sA}, s{sH}, 8
s_lshl_b32 s{sB}, s{sA}, 11
s_add_u32 s{sP}, s{sP}, s{sB}
s_add_u32 s{sP}, s{sP}, {WS_O}
s_xor_b32 s50, s{sP}, 16384
s_mul_i32 s{sB}, s{sA}, 3584
v_add_u32 v142, s{sB}, v{vWOR}
s_sub_u32 s{sB}, 28672, s{sB}
v_add_u32 v143, s{sB}, v{vWOR}
v_and_b32 v7, 31, v1
v_mul_u32_u24 v7, 896, v7
v_add_f32 v{OD+14}, 0x358637bd, v{OD+14}
v_rcp_f32 v{OD+14}, v{OD+14}
v_lshl_add_u32 v7, v3, 4, v7""")
for k in range(0, 14, 2): I(f"v_pk_mul_f32 {v(OD+k,2)}, {v(OD+k,2)}, {v(OD+14,2)} op_sel_hi:[1,0]")
for k in range(4): I(f"v_cvt_pk_bf16_f32 v{64+k}, v{OD+2*k}, v{OD+2*k+1}")
I(f"buffer_store_dwordx4 v[64:67], v2, {WS}, s{sOST} offen sc1")
for k in range(4, 7): I(f"v_cvt_pk_bf16_f32 v{64+k}, v{OD+2*k}, v{OD+2*k+1}")
I(f"""v_bitop3_b32 v71, v64, v5, s{sMASK} bitop3:0x28
v_and_b32 v6, s{sMASK}, v5
buffer_store_dwordx4 v[68:71], v2, {WS}, s{sOST} offen offset:1024 sc1""")
if GATE & 2: P.add(flag_store(7))
stamp("o stored", "mo")
P.wait("wo")
I(f"s_cmp_ge_u32 s{sRact}, 14\ns_cbranch_scc1 L_idle\ns_barrier")
wor = []
for s in range(16):
    hh, e = s >> 1, s & 1
    for k, av in (((0, 142), (1, 9)) if hh < 4 else ((0, 143), (1, vWOR))):
        for u in range(2):
            wor += mk(f"ds_read_b64_tr_b16 {a_(128+8*s+4*k+2*u,2)}, v{av} offset:{(28*(hh&3)+8*e+4*u)*128}")
XR = 224
xrr = []
for i in range(4): xrr += mk((f"v_xor_b32 v10, {16*i}, v{vXRR}\n" if i else "") + f"ds_read_b64 {v(XR+2*i,2)}, v{10 if i else vXRR}")
I(f"s_add_u32 s{sA}, s{sW1M}, {L_XCH}\nv_add_u32 v132, s{sA}, v2\nv_xor_b32 v133, 8192, v132\nv_xor_b32 v9, 64, v142\nv_xor_b32 v{vWOR}, 64, v143")
P.add(xrr)
G1 = gate("g1", vPO, vPF)
nb_ = min(opt("nw1b", 16), len(w1_l) - 8)
wor = sprinkle(wor, [w1_l.pop(0) for _ in range(nb_)], 0, opt("w1bs", 4))
OB = 16
FO = Fetch("fo", [([f"s_add_u32 s{sCt}, s{sP if hh < 4 else 50}, {2048*(hh&3)}\nbuffer_load_dwordx4 {v(OB+8*hh,4)}, v2, {WS}, s{sCt} offen sc1\nbuffer_load_dwordx4 {v(OB+8*hh+4,4)}, v2, {WS}, s{sCt} offen offset:1024 sc1"],
                   [OB+8*hh, OB+8*hh+7]) for hh in range(8)], masked=True, nre=opt('reo', 2))
NOE = opt("noe", 4)
FEP = opt("fep", 56)
P.add(sprinkle(wor, flat([FO.loadc(hh) for hh in range(NOE)]), FEP, 3))
stamp("pre o fetch", "o")
AO, AT = 80, 96
set3 = mk(f"""s_mul_i32 s{sSCR}, s{sW}, 12288
s_mul_i32 s{sBIG}, s{sW}, 28672
v_add_u32 v131, s{sBIG}, v2
s_lshl_b32 s{sB}, s{sC}, 1
s_lshr_b32 s{sD}, s{sW}, 1
s_add_u32 s{sB}, s{sB}, s{sD}
s_mul_i32 s{sA}, s{sTILE}, 14
s_add_u32 s{sB}, s{sB}, s{sA}
s_mul_i32 s{sPST}, s{sB}, 2432
s_add_u32 s{sPST}, s{sPST}, {WS_H}
s_lshr_b32 s48, s{sW}, 1
s_nop 0
v_bfe_u32 v9, v1, 2, 2
v_lshl_add_u32 v240, v3, 2, v9
v_lshlrev_b32 v254, 7, v240
v_lshlrev_b32 v240, 8, v240
v_xor_b32 v9, s{sW}, v9
v_lshl_add_u32 v240, v9, 6, v240
v_bfe_u32 v9, v1, 4, 1
v_lshlrev_b32 v9, 5, v9
v_lshl_add_u32 v9, v8, 3, v9
v_add_u32 v240, v240, v9
v_add_u32 v254, v254, v9
v_bfe_u32 v9, v1, 3, 1
v_xor_b32 v9, s48, v9
v_lshl_add_u32 v254, v9, 6, v254
s_add_u32 s{sSCR}, s{sSCR}, {L_SCR}
v_add_u32 v252, s{sBIG}, v254
v_xor_b32 v253, 64, v252
v_add_u32 v254, s{sSCR}, v254
v_add_u32 v134, s{sSCR}, v2
v_xor_b32 v255, 64, v254
v_xor_b32 v241, 64, v240
v_xor_b32 v242, 128, v240
v_xor_b32 v243, 192, v240""") + flat([mk(f"v_add_u32 v{244+m}, 57344, v{240+m}") for m in range(4)])
pre2 = []
for i in range(8): pre2 += mk(f"v_lshlrev_b32 v{112+2*i}, 16, v{XR+i}\nv_and_b32 v{113+2*i}, s{sHIM}, v{XR+i}")
for s in range(1, 16, 2): pre2 += mk(f"v_accvgpr_write_b32 a{128+8*s+3}, 0\nv_accvgpr_write_b32 a{128+8*s+7}, 0")
if GATE & 2:
    P.add(pre2); P.add(G1.check(0, 0))
    stamp("gate1", "o")
    for hh in range(8): P.add(FO.load(hh))
else:
    P.add(pre2[16:]); P.add(set3)
    I("s_waitcnt lgkmcnt(0)\ns_barrier")
    P.add(sprinkle(flat(flat([w2rd(j) for j in UAW[:NT1]])), [w1_l.pop(0) for _ in range(min(len(w1_l), opt("nw1s", 4)))], 0, 8))
    stamp("shadow done", "o")
    LG = opt("lg", -1)
    P.add(sprinkle(pre2[:16], [FO.load(hh) for hh in range(NOE, 8)] if LG < 0 else [], 0, 2))
if NA: I("s_waitcnt lgkmcnt(0)\ns_barrier")
stamp("fo issued", "o")
g2 = []
for s in range(16):
    for k, acc in ((1, AT), (0, AO)):
        c = ("0" if k else v(112,16)) if s == 0 else v(acc,16)
        g2.append(mk(f"{MF} {v(acc,16)}, {a_(128+8*s+4*k,4)}, {v(OB+4*s,4)}, {c}"))

if opt("rord", 0): g2[28:32] = [g2[28], g2[30], g2[29], g2[31]]
P.add(FO.check(0, 3))
stamp("fo0", "o")
S = Sched(g2)
for hh in range(1, 8): S.spread(FO.checkc(hh, 3 if hh < 4 else 7), 4*hh - 3, 4*hh)
if LG >= 0: S.spread(flat([FO.loadc(hh) for hh in range(NOE, 8)]), LG, LG + 6)
S.spread(w1_l + [raw.pop(0) for _ in range(min(len(raw), opt("rawb", 8)))], LG + 6 if LG >= 0 else 0, opt('p2e', 32))
P.add(S.emit())
stamp("p2 gemm done", "o")
for i in range(4): I(f"ds_write_b128 v132, {v(AT+4*i,4)} offset:{1024*i}")
I("v_mov_b32 v112, 0\nv_mov_b32 v113, 0\ns_waitcnt lgkmcnt(0)\ns_barrier")
for i in range(4): I(f"ds_read_b128 {v(AT+4*i,4)}, v133 offset:{1024*i}")
HR = XR
for k in range(0, 8, 2): I(f"v_pk_add_f32 {v(AO+k,2)}, {v(AO+k,2)}, {v(AT+k,2)}")
for i in range(4): I(f"v_cvt_pk_bf16_f32 v{HR+i}, v{AO+2*i}, v{AO+2*i+1}")
I(f"buffer_store_dwordx4 {v(HR,4)}, v2, {WS}, s{sPST} offen sc1")
for k in range(8, 16, 2): I(f"v_pk_add_f32 {v(AO+k,2)}, {v(AO+k,2)}, {v(AT+k,2)}")
for i in range(4, 8): I(f"v_cvt_pk_bf16_f32 v{HR+i}, v{AO+2*i}, v{AO+2*i+1}")
I(f"buffer_store_dwordx4 {v(HR+4,4)}, v2, {WS}, s{sPST} offen offset:1024 sc1")
for i in range(8): I(f"v_dot2c_f32_bf16 v112, s{sONES}, v{HR+i}\nv_dot2c_f32_bf16 v113, v{HR+i}, v{HR+i}")
I(f"""v_bitop3_b32 v10, v{HR}, v{HR+4}, v5 {X3}
v_permlane32_swap_b32 v112, v113
v_add_f32 v112, v112, v113
buffer_store_dword v112, v4, {WS}, s{sPST} offen offset:2048 sc1
v_xor_b32 v113, v10, v112
buffer_store_short v113, v0, {WS}, s{sPST} offen offset:2304 sc1""")
def selft(sreg, nl): return mk(f"s_mov_b64 exec, {(1 << nl) - 1}\nbuffer_load_dword v135, v134, {WS}, s{sreg} offen sc1\ns_mov_b64 exec, -1")
SELF = opt("self", 0)
if SELF & 1: P.add(selft(sPST, 20))
if GATE & 4: P.add(flag_store(14))
stamp("h stored", "moh")
HB = 16; ST = 192
ACC = [144, 160, 176, 192]; AUG = 232
set4 = mk(f"""s_lshl_b32 s{sB}, s{sT3}, 2
s_add_u32 s{sB}, s{sB}, s{sW}
s_mul_i32 s{sP}, s{sB}, {14*2432}
s_add_u32 s{sP}, s{sP}, {WS_H}
s_mul_i32 s{sA}, s{sB}, 56
s_lshl_b32 s{sD}, s{sR}, 2
s_add_u32 s{sA}, s{sA}, s{sD}
s_mul_i32 s{sQ}, s{sA}, 2176
s_add_u32 s{sQ}, s{sQ}, {WS_H1}
v_lshlrev_b32 v13, 3, v1
s_lshl_b32 s{sA}, s{sW}, 9
s_add_u32 s{sA}, s{sA}, {L_AUG}
v_add_u32 v13, s{sA}, v13
v_mov_b32 v222, 0""")
FH = Fetch("fh", [([f"s_add_u32 s{sCt}, s{sP}, {2432*p}\nbuffer_load_dwordx4 {v(HB+8*p,4)}, v2, {WS}, s{sCt} offen sc1\nbuffer_load_dwordx4 {v(HB+8*p+4,4)}, v2, {WS}, s{sCt} offen offset:1024 sc1\n"
                    f"buffer_load_dword v{ST+2*p}, v4, {WS}, s{sCt} offen offset:2048 sc1\nbuffer_load_ushort v{ST+2*p+1}, v0, {WS}, s{sCt} offen offset:2304 sc1"],
                   [HB+8*p, HB+8*p+4, ST+2*p, ST+2*p+1]) for p in range(14)], nre=opt('reh', 2))
for i in range(4): I(f"v_mov_b32 v{AUG+i}, s{sONES}")
P.wait("w1"); I("s_barrier")
stamp("w1 landed", "h")
if opt("zz", 0): I(f"s_sleep {opt('zz', 0)}")
def w1a(t, k): return (240 + k + (4 if t >= 14 else 0), (t % 14) * 4096, (t % 14) * 4096 + 2048)
st3 = [w1a(t, 0) + ((AUG, ACC[2], t == 0, True),) for t in range(28)]
TWO = opt("two", 0); N1 = 2 if TWO else 3
for t in range(28):
    for k in range(N1): st3.append(w1a(t, k) + ((HB + 4*t, ACC[k], t == 0, False),))
for t in range(28):
    for k in range(N1, 4): st3.append(w1a(t, k) + ((HB + 4*t, ACC[k], t == 0, False),))
pro, g3 = gemm_lds(st3, AH)
P.add(pro)
S3 = Sched(g3)
S3.spread(set4, 0, 8)
S3.spread(raw + flat([w2dma(j) for j in UD]), opt("c0s", 0), opt("c0e", 10)); raw = []
NH0 = opt("nh0", 4); H0 = opt("h0", 26)
G2 = gate("g2", vPO, vPF)
if GATE & 4:
    S3.at(opt("g2", 12), G2.load(0), 0.9)
    S3.at(27, G2.check(0, 0) + stampi("gate2", "h") + flat([FH.load(p) for p in range(NH0)]), 0.5)
else: S3.spread(flat([FH.loadc(p) for p in range(NH0)]), H0, 27)
cs = ACC[2]
csx = mk(f"""v_cvt_pk_bf16_f32 v{AUG}, v{cs}, v{cs}
v_lshlrev_b32 v{AUG+1}, 16, v{AUG}
v_sub_f32 v{AUG+1}, v{cs}, v{AUG+1}
v_cvt_pk_bf16_f32 v{AUG}, v{cs}, v{AUG+1}
v_and_b32 v{AUG+1}, 0xffff, v{AUG}
v_cndmask_b32 v{AUG}, v{AUG}, 0, {sHI}
v_cndmask_b32 v{AUG+1}, v{AUG+1}, 0, {sHI}
ds_write_b64 v13, {v(AUG,2)}""")
S3.at(27, stampi("colsum done", "h") + csx + FH.check(0, NH0 - 1) + stampi("fh0", "h"), 1.0)
B0 = 28
for p in range(14):
    b = B0 + 2*N1*p
    if p + NH0 < 14:
        for k_, c_ in enumerate(FH.loadc(p + NH0)): S3.at(b + ((0, 2, 1, 3) if TWO else (0, 2, 4, 4))[k_], c_, 0.2)
    S3.at(b, mk(f"v_add_f32 v222, v222, v{ST+2*p}"), 0.0)
    if p + 1 < 14: S3.spread(FH.checkc(p + 1, min(13, p + NH0 - 1)), b + 1, b + 2*N1)
    if p in (3, 7, 11): S3.at(b + 2*N1 - 1, stampi(f"fh{p+1}", "h"), 1.0)
S3.at(B0 + 14, mk("s_barrier") + flat([mk(f"v_xor_b32 v9, {512*k}, v13\nds_read_b64 {v(AUG+2*k,2)}, v9") for k in range(1, 4)]), 0.0)
mid = mk(f"""v_mul_f32 v220, {fhex(1/448)}, v222
v_mov_b32 v221, v220
s_nop 0
v_permlane32_swap_b32 v220, v221
v_fma_f32 v221, -v220, v220, v221
v_max_f32 v221, 0, v221
v_add_f32 v221, 0x3727c5ac, v221
v_rsq_f32 v251, v221
v_cvt_pk_bf16_f32 v222, -v220, -v220
v_lshlrev_b32 v9, 16, v222
v_sub_f32 v9, -v220, v9
v_cvt_pk_bf16_f32 v223, v9, 0
v_mul_f32 v250, v221, v251
v_mul_f32 v251, 0xbfb8aa3b, v251
v_cndmask_b32 v222, v222, 0, {sHI}
v_cndmask_b32 v223, v223, 0, {sHI}""")
S3.spread(mid, *((B0 + 53, B0 + 59) if TWO else (B0 + 79, B0 + 84)))
def aug(k): return mk(f"v_mfma_f32_32x32x8_bf16 {v(ACC[k],16)}, {v(AUG+2*k,2)}, v[222:223], {v(ACC[k],16)}")
SLT = 132
def silu(k, pk):
    q = Prog(); a = ACC[k]; t = 208
    q.I(f"s_xor_b32 s50, s{sW}, {k}\ns_mul_i32 s50, s50, 2176\ns_add_u32 s50, s50, s{sQ}")
    for half in range(2):
        b = a + 8 * half
        if pk:
            for j in range(0, 8, 2): q.I(f"v_pk_mul_f32 {v(t+j,2)}, {v(b+j,2)}, v[250:251] op_sel:[0,1] op_sel_hi:[1,1]")
        else:
            for j in range(8): q.I(f"v_mul_f32 v{t+j}, v{b+j}, v251")
        for j in range(8): q.I(f"v_exp_f32 v{t+j}, v{t+j}")
        if pk:
            for j in range(0, 8, 2): q.I(f"v_pk_fma_f32 {v(t+j,2)}, {v(t+j,2)}, v[250:251], v[250:251] op_sel_hi:[1,0,0]")
        else:
            for j in range(8): q.I(f"v_fma_f32 v{t+j}, v{t+j}, v250, v250")
        for j in range(8): q.I(f"v_rcp_f32 v{t+j}, v{t+j}")
        if pk:
            for j in range(0, 8, 2): q.I(f"v_pk_mul_f32 {v(b+j,2)}, {v(b+j,2)}, {v(t+j,2)}")
        else:
            for j in range(8): q.I(f"v_mul_f32 v{b+j}, v{b+j}, v{t+j}")
        for j in range(4): q.I(f"v_cvt_pk_bf16_f32 v{b+j}, v{b+2*j}, v{b+2*j+1}")
        q.I(f"buffer_store_dwordx4 {v(b,4)}, v2, {WS}, s50 offen offset:{1024*half} sc1")
    q.I(f"v_bitop3_b32 v216, v5, v{a}, v{a+8} {X3}")
    q.I(f"buffer_store_short v216, v0, {WS}, s50 offen offset:2048 sc1")
    return q.items + ([selft(50, 18)] if SELF & 2 and not pk else [])
E0 = B0 + 28*N1
assert not raw
if TWO:
    S3.spread(flat([w2rd(j) for j in UD + UR + UAW[NT1:]]), B0 + 8, B0 + 42)
    S3.at(B0 + 34, mk("s_barrier"), 0.0)
    S3.spread(flat([w2dma(j) for j in UE]), B0 + 48, E0 + opt("wde", 12))
else:
    S3.spread(flat([w2rd(j) for j in UD + UR + UAW[NT1:]]), B0 + 22, B0 + 58)
    S3.at(B0 + 44, mk("s_barrier"), 0.0)
    S3.spread(flat([w2dma(j) for j in UE]), B0 + opt('twd', 64), E0)
B4 = 16
CKR = [240, 241, 244, 245, 248, 249, 217, 218, 219, 130, 242, 246, 243, 247]
C4 = [[a_(224,16), a_(240,16)], [v(ACC[0],16), v(ACC[1],16)]]
set5 = mk(f"""s_mul_i32 s{sA}, s{sTILE}, 56
s_xor_b32 s{sB}, s{sTILE}, 1
s_mul_i32 s{sB}, s{sB}, 56
s_add_u32 s51, s{sB}, s44
s_add_u32 s52, s{sA}, s44
s_add_u32 s53, s{sB}, s45
s_add_u32 s54, s{sA}, s45""")
for k in range(4):
    set5 += mk(f"s_mul_i32 s{51+k}, s{51+k}, 2176\ns_add_u32 s{51+k}, s{51+k}, {WS_H1}")
S3.spread(set5, B0 + 42, B0 + 52)
def piece4(n):
    st, i = n // 7, n % 7; r = B4 + 8 * (n % 14); c = CKR[n % 14]
    return ([f"s_add_u32 s{sCt}, s{51+st}, {8*2176*i}\nbuffer_load_dwordx4 {v(r,4)}, v2, {WS}, s{sCt} offen sc1\nbuffer_load_dwordx4 {v(r+4,4)}, v2, {WS}, s{sCt} offen offset:1024 sc1\n"
             f"buffer_load_ushort v{c}, v0, {WS}, s{sCt} offen offset:2048 sc1"], [r, r+4, c])
F4 = Fetch("f4", [piece4(n) for n in range(28)], nre=opt("re4", 3))
ND = opt("nd", 5)
N0 = ND if TWO else opt("n0", 4)
rawl = flat([w2raw(j) for j in UL])
nr0 = min(len(rawl), opt("nr0", 6))
if TWO:
    S3.at(E0 - 1, stampi("p3 pass1 done", "mh"), 1.0)
    g3[E0 + 3] = aug(0) + g3[E0 + 3]; g3[E0 + 4] = aug(1) + g3[E0 + 4]
    S3.spread(silu(0, False) + [stampi("silu0 done", "e")], E0 + 5, E0 + opt("s0e", 21))
    S3.spread(silu(1, False), E0 + opt("s0e", 21), E0 + opt("s1e", 44))
    S3.spread(rawl, E0 + opt("wde", 12), E0 + opt("rle", 36))
    DEEP = opt("deep", 0)
    if DEEP:
        rng = [(opt("a0", -18), opt("b0", 4)), (opt("a1", 6), opt("b1", 24)), (opt("a2", 26), opt("b2", 50)), (opt("a3", 50), opt("b3", 78))]
        f4pos = []
        for n in range(28):
            a, b = rng[n // 7]
            for k_, c_ in enumerate(F4.loadc(n)):
                pos = a + (b - a) * ((n % 7) + (0, 0.45, 0.9)[k_]) / 7
                lo = (4*n + 4 - 56) if n < 14 else 4*(n - 14) + 4
                pos = max(pos, lo + 0.01*k_); assert pos < 4*n - 3 or n == 0, (n, pos)
                f4pos.append((pos, c_))
        for i_ in range(1, len(f4pos)): assert f4pos[i_][0] >= f4pos[i_-1][0], i_
        import math
        for pos, c_ in f4pos:
            if pos < 0: S3.at(E0 + 56 + math.floor(pos), c_, pos - math.floor(pos))
    else: S3.spread(flat([F4.loadc(n) for n in range(ND)]), E0 + opt("f4s", 52), E0 + 56)
    P.add(S3.emit())
    P.add(aug(2) + aug(3))
else:
    S3.at(E0 - 1, stampi("p3 pass1 done", "mh") + aug(0) + aug(1) + aug(2) + sprinkle(silu(0, True), rawl[:nr0], 3, opt('r0s', 12)) + stampi("silu0 done", "e"), 1.0)
    S3.spread(silu(1, False) + (silu(2, False) if opt("s2p", 1) else []), E0, E0 + opt("t1e", 26))
    S3.spread(rawl[nr0:], E0, E0 + opt("tre", 20))
    S3.spread(flat([F4.loadc(n) for n in range(N0)]), E0 + opt("f4t", 20), E0 + 28)
    P.add(S3.emit())
    P.add(aug(3))
I("s_barrier")
stamp("p3 gemm done", "me")
g4 = []
for n in range(28):
    st, i = n // 7, n % 7; hf, par = st >> 1, st & 1
    for e in range(2):
        for mu in range(2):
            zero = hf == 0 and i == 0 and e == 0 and not (par == 1 and mu == 0)
            g4.append(mk(f"{MF} {C4[par][mu]}, {a_(UA(7*hf+i)+8*e+4*mu,4)}, {v(B4+8*(n%14)+4*e,4)}, {'0' if zero else C4[par][mu]}"))
if opt("rord", 0): g4[108:112] = [g4[109], g4[111], g4[108], g4[110]]
P.add(F4.check(0, N0 - 1))
S = Sched(g4)
nxt = N0
for n in range(28):
    prev = nxt
    if nxt < 28 and not (TWO and DEEP):
        if nxt < n + ND and nxt + 1 < 28:
            for k_, c_ in enumerate(F4.loadc(nxt) + F4.loadc(nxt + 1)): S.at(4*n + (0, 1, 1, 2, 3, 3)[k_], c_, 0.2 + 0.01*k_)
            nxt += 2
        else:
            for k_, c_ in enumerate(F4.loadc(nxt)): S.at(4*n + (0, 2, 1)[k_], c_, 0.2)
            nxt += 1
    if n + 1 < 28: S.spread(F4.checkc(n + 1, max(n + 1, prev - 1)), 4*n + 2, 4*n + 4)
    if n in (6, 13, 20): S.at(4*n + 3, stampi(f"stage{n//7} done", "e"), 1.0)
unp = []
for i in range(8): unp += mk(f"v_lshlrev_b32 v{ACC[0]+2*i}, 16, v{HR+i}\nv_and_b32 v{ACC[0]+1+2*i}, s{sHIM}, v{HR+i}")
if TWO and DEEP:
    for pos, c_ in f4pos:
        if pos >= 0: S.at(int(pos), c_, pos - int(pos))
S2E, S3E = opt("s2e", 16), opt("s3e", 16)
if opt("s2p", 1) and not TWO: S2E = 1
else: S.spread(silu(2, False), 0, S2E)
S.spread(unp, 22, 27)
S.spread(silu(3, False), S2E, S3E)
S.spread(flat([w2rd(j) for j in UE if j < 7]), 0, 14)
S.spread(flat([w2dma(j) for j in UP]), opt("w2a", 20), opt("w2b", 46))
for j in [x for x in UE + UL + UP if x >= 7]: S.spread(w2rd(j), 44 + 5*(j-7), 49 + 5*(j-7))
S.at(82, mk(f"""s_lshl_b32 s{sA}, s{sW}, 14
v_add_u32 v13, s{sA}, v2
v_xor_b32 v9, 16384, v13
v_xor_b32 v12, 32768, v13
v_xor_b32 v14, 49152, v13
s_waitcnt lgkmcnt(0)
s_barrier"""))
S.spread([mk(f"ds_write_b128 v{9 if mu == 0 else 14}, {a_(224+16*mu+4*i,4)} offset:{4096*(2*mu+1)+1024*i}") for mu in range(2) for i in range(4)], 87, 99)
S.at(100, mk("s_waitcnt lgkmcnt(0)\ns_barrier"), 0.0)
S.spread([mk(f"ds_read_b128 {v(ACC[2+mu]+4*i,4)}, v13 offset:{4096*(2*mu+1)+1024*i}") for mu in range(2) for i in range(4)], 100, 104)
S.spread([mk(f"v_add_f32 v{ACC[2]+k}, v{ACC[2]+k}, v{ACC[3]+k}") for k in range(16)], 107, 112)
P.add(S.emit())
stamp("p4 gemm done", "me")
for i in range(4): I(f"ds_write_b128 v12, {v(ACC[1]+4*i,4)} offset:{8192+1024*i}")
if opt("cout", 0):
    I(f"""v_lshlrev_b32 v16, 3, v3
v_sub_u32 v16, v{vXRR}, v16
v_lshlrev_b32 v17, 4, v3
v_xor_b32 v16, v16, v17
v_xor_b32 v17, 32, v16
s_add_u32 s{sA}, s{sXO}, {L_XCH}
v_add_u32 v18, s{sA}, v2""")
I("s_waitcnt lgkmcnt(0)\ns_barrier")
for i in range(4): I(f"ds_read_b128 {v(ACC[3]+4*i,4)}, v13 offset:{8192+1024*i}")
for k in range(0, 16, 2): I(f"v_pk_add_f32 {v(ACC[0]+k,2)}, {v(ACC[0]+k,2)}, {v(ACC[2]+k,2)}")
for hf in range(2):
    b = ACC[0] + 8*hf
    for k in range(0, 8, 2): I(f"v_pk_add_f32 {v(b+k,2)}, {v(b+k,2)}, {v(ACC[3]+8*hf+k,2)}")
    for i in range(4): I(f"v_cvt_pk_bf16_f32 v{96+4*hf+i}, v{b+2*i}, v{b+2*i+1}")
    if not opt("cout", 0):
        I(f"v_permlane32_swap_b32 v{96+4*hf}, v{98+4*hf}\nv_permlane32_swap_b32 v{97+4*hf}, v{99+4*hf}\nbuffer_store_dwordx4 {v(96+4*hf,4)}, v7, {OUT}, s{sOUT} offen offset:{32*hf} {OPT.get('ofl', '')}")
    else:
        I(f"v_permlane32_swap_b32 v{96+4*hf}, v{98+4*hf}\nv_permlane32_swap_b32 v{97+4*hf}, v{99+4*hf}\nds_write_b128 v{16+hf}, {v(96+4*hf,4)}")
if opt("cout", 0):
    I("s_waitcnt lgkmcnt(0)\ns_barrier")
    for i in range(2): I(f"ds_read_b128 {v(104+4*i,4)}, v18 offset:{1024*i}")
    for i in range(2): I(f"buffer_store_dwordx4 {v(104+4*i,4)}, v{vXRD0+i}, {OUT}, s{sXRB} offen offset:{1024*i} {OPT.get('ofl', '')}")
stamp("end", "mpohez")
I(f"""s_cmp_lg_u32 s2, 0
s_cbranch_scc1 L_ex0
v_mov_b32 v9, 0""")
I(f"buffer_store_dword v5, v9, {WS}, 0 offen sc1", unc=True)
I("L_ex0:")
if opt("enc", 0):
    mode = opt("enc", 0)
    if mode <= 4:
        I(f"s_bfe_u32 s{sA}, s80, {hex(0x80000 | (8*(mode-1)))}\ns_min_u32 s{sA}, s{sA}, 1\ns_mul_i32 s{sA}, s{sA}, 2000", unc=True)
    else:
        I(f"s_waitcnt lgkmcnt(0)\ns_sub_u32 s{sA}, s{sSTAMP+2}, s78\ns_mul_i32 s{sA}, s{sA}, 4", unc=True)
    I(f"""s_memrealtime s[40:41]
s_waitcnt lgkmcnt(0)
L_enc:
s_memrealtime s[42:43]
s_waitcnt lgkmcnt(0)
s_sub_u32 s42, s42, s40
s_cmp_lt_u32 s42, s{sA}
s_cbranch_scc1 L_enc
s_branch L_end""", unc=True)
if opt("dbg", 0):
    I(f"""s_cmp_lg_u32 s{sW}, 0
s_cbranch_scc1 L_end
s_load_dwordx2 s[40:41], s[0:1], 64
s_mov_b32 s42, 256
s_mov_b32 s43, 0x20000
s_mov_b64 exec, 1
v_mov_b32 v9, 0
s_waitcnt lgkmcnt(0)""", unc=True)
    for k in range(nstamp[0]):
        I(f"s_sub_u32 s{sA}, s{sSTAMP+2*k}, s78\nv_mov_b32 v10, s{sA}\nbuffer_atomic_umax v10, v9, s[40:43], 0 offen offset:{4*k}\ns_nop 1", unc=True)
    I(f"""v_mov_b32 v10, s78
buffer_atomic_umax v10, v9, s[40:43], 0 offen offset:32
s_not_b32 s{sA}, s78
v_mov_b32 v11, s{sA}
buffer_atomic_umax v11, v9, s[40:43], 0 offen offset:36
v_mov_b32 v12, s{sSTAMP+2*(nstamp[0]-1)}
buffer_atomic_umax v12, v9, s[40:43], 0 offen offset:40
v_mov_b32 v13, s80
buffer_atomic_add v13, v9, s[40:43], 0 offen offset:44
s_branch L_end""", unc=True)
I("L_exit:")
if DIAG and not opt("dbg", 0):
    I(f"s_cmp_lg_u32 s{sW}, {opt('dw', 0)}\ns_cbranch_scc1 L_end\ns_lshl_b32 s{sA}, s2, 7\ns_add_u32 s{sA}, s{sA}, {WS_DIAG}\nv_mov_b32 v9, 0", unc=True)
    for k in range(nstamp[0]):
        I(f"s_waitcnt lgkmcnt(0)\nv_mov_b32 v10, s{sSTAMP+2*k}\nbuffer_store_dword v10, v9, {WS}, s{sA} offen offset:{4*k}", unc=True)
    if SEL == ["z"]: I(f"v_mov_b32 v10, s78\nbuffer_store_dword v10, v9, {WS}, s{sA} offen offset:120", unc=True)
    I(f"v_mov_b32 v10, s80\nbuffer_store_dword v10, v9, {WS}, s{sA} offen offset:124", unc=True)
I("L_end:\ns_endpgm")
if not (opt("idle", 0) or opt("idle2", 0)):
    for it in P.items:
        if isinstance(it, Ins) and it.text == "s_cbranch_scc1 L_idle": it.text = "s_cbranch_scc1 L_exit"
else: I(f"""L_idle:
s_and_b32 s{sA}, s{sT2}, 1
s_lshl_b32 s{sA}, s{sA}, 1
s_add_u32 s{sA}, s{sA}, s{sRact}
s_sub_u32 s{sA}, s{sA}, 14
s_lshl_b32 s{sA}, s{sA}, 2
s_add_u32 s{sA}, s{sA}, s{sW}
s_lshl_b32 s{sA}, s{sA}, 13
v_lshlrev_b32 v9, 7, v1
s_lshr_b32 s{sD}, s{sT2}, 1
s_mul_i32 s{sD}, s{sD}, {8*56*2176}
s_add_u32 s{sD}, s{sD}, {WS_H1}
s_add_u32 s{sD}, s{sD}, s{sA}
s_mov_b32 s{sB}, {opt("idle2", 0)}
s_cmp_eq_u32 s{sB}, 0
s_cbranch_scc1 L_idle3
L_idle2:
buffer_load_dword v11, v9, {WS}, s{sD} offen {OPT.get("i2f", "")}
s_add_u32 s{sD}, s{sD}, {16*8192}
s_sub_u32 s{sB}, s{sB}, 1
s_cmp_lg_u32 s{sB}, 0
s_cbranch_scc1 L_idle2
L_idle3:
s_mov_b32 s{sB}, {opt("idle", 0)}
s_cmp_eq_u32 s{sB}, 0
s_cbranch_scc1 L_exit
L_idle1:
buffer_load_dword v11, v9, {W2}, s{sA} offen
s_add_u32 s{sA}, s{sA}, {16*8192}
s_sub_u32 s{sB}, s{sB}, 1
s_cmp_lg_u32 s{sB}, 0
s_cbranch_scc1 L_idle1
s_branch L_exit""", unc=True)
P.add(TAIL.items)

for it in P.items:
    if isinstance(it, Ins) and it.text.startswith('buffer_load_dword v142,'): it.defs = []
for it in P.items:
    if isinstance(it, Ins) and it.op == "buffer_load_dwordx4":
        for bit, srd in ((1, W1), (2, W2), (4, WO), (8, WQKV), (16, X)):
            if opt("wf", 0) & bit and srd in it.text:
                fl = OPT.get("wfl", "nt")
                it.text = it.text.replace(" lds", f" {fl} lds") if it.text.endswith(" lds") else it.text + " " + fl
PL = opt("plain", 0)
for it in P.items:
    if isinstance(it, Ins) and it.op.startswith("buffer_store") and "sc1" in it.text:
        ish1 = " s50 " in it.text or " s49 " in it.text
        ish = ("v[224:227]" in it.text or "v[228:231]" in it.text or "v112," in it.text or "v113," in it.text)
        if (ish and PL & 1) or (ish1 and PL & 2): it.text = it.text.replace(" sc1", OPT.get("pfl", ""))
if opt("pld", 0):
    c = 0
    for it in P.items:
        if isinstance(it, Ins) and it.op.startswith("buffer_load") and "sc1" in it.text and " s56 " in it.text and not it.uncounted:
            c += 1
            kind = 0 if c <= 48 else 1 if c <= 104 else 2
            if opt("pld", 0) & kind: it.text = it.text.replace(" sc1", OPT.get("lfl", ""))
if opt("nochk", 0):
    new = []; seen_end = False
    for it in P.items:
        if isinstance(it, Ins):
            if opt("nochk", 0) == 2 and not seen_end:
                if it.text.startswith("L_exit"): seen_end = True
                elif it.uncounted or it.op in ("s_cbranch_vccz", "s_branch"): continue
            if it.op == "s_cbranch_vccz" and not it.uncounted: it = Ins(it.text.replace("s_cbranch_vccz", "s_branch"))
            elif it.op == "s_cbranch_vccnz" and not it.uncounted: continue
            t = it.text
            if it.op.startswith("buffer_store") and "sc1" in t and not it.uncounted:
                kind = 8 if " s50 " in t else 4 if ("v[224" in t or "v[228" in t or "v112," in t or "v113," in t) else 2 if f" s{sOST} " in t else 1
                if opt("nost", 0) & kind: continue
            if it.op.startswith("buffer_load") and "sc1" in t and " s56 " in t and not it.uncounted:
                cnt_ld = globals().setdefault("_c", [0]); cnt_ld[0] += 1; c = cnt_ld[0]
                kind = 1 if c <= 32 else 2 if c <= 48 else 4 if c <= 104 else 8
                if opt("nold", 0) & kind: continue
        new.append(it)
    P.items = new
body, items = render(P.items)
if opt("align", 1):
    import subprocess, re as _re
    open("_al.s", "w").write('.amdgcn_target "amdgcn-amd-amdhsa--gfx950"\n.text\n' + body)
    subprocess.run(["clang", "-x", "assembler", "-target", "amdgcn-amd-amdhsa", "-mcpu=gfx950", "-c", "_al.s", "-o", "_al.o"], check=True)
    dis = subprocess.run(["llvm-objdump", "-d", "--mcpu=gfx950", "_al.o"], capture_output=True, text=True).stdout
    sizes = [4 * len(m.group(1).split()) for m in _re.finditer(r"// [0-9A-F]{12}: ((?:[0-9A-F]{8} ?)+)", dis)]
    real = [i for i in items if i.cls not in ('label', 'dir')]
    assert len(sizes) == len(real), (len(sizes), len(real))
    sz = {id(i): n for i, n in zip(real, sizes)}
    new = []; off = 0; nal = 0; MINRUN = opt("minrun", 6)
    for k, it in enumerate(items):
        if id(it) in sz and sz[id(it)] == 8 and off % 8 == 4 and not it.uncounted:
            run = 0
            for j in items[k:k + MINRUN + 4]:
                if id(j) not in sz: continue
                if sz[id(j)] != 8 or j.cls == 'mfma': break
                run += 1
            if run >= MINRUN:
                p = new[-1] if new else None
                if p is not None and p.cls == 'valu' and sz.get(id(p)) == 4 and not p.op.startswith(('v_permlane', 'v_dot2c', 'v_readfirst', 'v_accvgpr', 'v_cmp', 'v_cndmask')) and not p.op.endswith('_e64'):
                    p.text = p.text.replace(p.op, p.op + "_e64", 1)
                else: new.append(Ins("s_nop 0"))
                off += 4; nal += 1
        new.append(it); off += sz.get(id(it), 0)
    items = new
    body = '\n'.join(('' if i.cls == 'label' else '  ') + i.text for i in items) + '\n'
    print("alignment fixes:", nal, "code bytes", off)
hdr = open("cdna_kernels/" + NAME + ".s.ref").read().split("; Override launch")[0]
doc = """; Persistent single-launch implementation (256 WGs x 4 waves, one WG per CU), generated by a script:
"""
out = hdr + doc + f"""; @launch grid=(256,1,1) block=(256,1,1) lds={LDS_SIZE}
.amdgcn_target "amdgcn-amd-amdhsa--gfx950"
.text
.globl {NAME}_kernel
.p2align 8
.type {NAME}_kernel,@function
{NAME}_kernel:
{body}.fill 2048, 4, 0xbf810000
.section .rodata,"a"
.p2align 6
.amdhsa_kernel {NAME}_kernel
  .amdhsa_next_free_vgpr 512
  .amdhsa_next_free_sgpr 102
  .amdhsa_accum_offset 256
  .amdhsa_group_segment_fixed_size 0
  .amdhsa_kernarg_size 80
  .amdhsa_user_sgpr_count 2
  .amdhsa_user_sgpr_kernarg_segment_ptr 1
  .amdhsa_system_sgpr_workgroup_id_x 1
.end_amdhsa_kernel
"""
open(sys.argv[1], "w").write(out)
n = sum(1 for i in items if i.cls not in ('label', 'dir'))
nu_ = sum(1 for i in items if i.cls not in ('label', 'dir') and i.uncounted)
print("instructions:", n, "(slow path", nu_, ") nops:", sum(1 for i in items if i.op == 's_nop'), "waits:", sum(1 for i in items if i.op == 's_waitcnt'), "stamps", nstamp[0])
```

```python
import sys, struct
from asmlib import *

NAME = "sequential_preLN__linear_kernel_hedgehog__dense_activation_silu__prompt"
DIAG = int(sys.argv[2]) if len(sys.argv) > 2 else 0
OPT = dict(a.split('=') for a in sys.argv[3:])
def opt(k, d): return int(OPT[k], 0) if k in OPT else d

WS_PART = 0x40000
WS_O    = 0x240000
WS_H    = 0x440000
WS_H1   = 0x680000
WS_DIAG = 0xE80000
WS_FLG  = 0xF00000
WS_SIZE = 0xF80000
XW = 28672
L_WV, L_WQ, L_WK, L_WO = 0, 28672, 57344, 86016
L_IMG = L_WK
L_KVX = 143360
L_XCH = 147456
L_SCR = 114688
L_AUG = 161792
LDS_SIZE = 163840
sW, sT, sH, sT2, sR = 3, 4, 5, 6, 7
X, WQKV, WPHI, WO, W1, W2, OUT, WS = [f"s[{i}:{i+3}]" for i in range(8, 40, 4)]
sKX, sKW = 40, 47
sHQ, sHIM = 54, 55
sRET = "s[56:57]"
sSPIN, sP, sU, sC, sMASK, sQ = 58, 59, 60, 61, 62, 63
sHI = "s[64:65]"
sLOG = "s[66:67]"
sONES, sTILE = 68, 69
sA, sB, sCt, sD = 70, 71, 72, 73
sRact, sXO = 74, 75
sWB, sWQ = 76, 77
sLAST, sFLAG, sWM, sPST, sPCK, sOST, sXRB, sOUT = 80, 81, 82, 83, 84, 85, 86, 87
sSTAMP = 88

def v(a, n=1): return f"v{a}" if n == 1 else f"v[{a}:{a+n-1}]"
def a_(a, n=1): return f"a{a}" if n == 1 else f"a[{a}:{a+n-1}]"
def fhex(x): return hex(struct.unpack('<I', struct.pack('<f', x))[0])
def flat(l): return sum(l, [])
P = Prog(); I = P.I
TAIL = Prog()
nstamp = [0]
SEL = OPT.get("st", "m").split(",")
PICK = [int(x) for x in OPT["pick"].split(",")] if "pick" in OPT else None
allst = [0]
def stampi(name, grp="m"):
    idx = allst[0]; allst[0] += 1
    if opt("jit", 0) and idx in (3, 7, 9, 11, 13, 17, 19, 21, 25, 26, 27, 28, 29):
        return mk(f"""s_memtime s[88:89]
s_waitcnt lgkmcnt(0)
s_mul_i32 s88, s88, 0x9E3779B1
s_lshr_b32 s88, s88, {opt("jit", 0)}
L_jit{idx}:
s_sleep 8
s_sub_u32 s88, s88, 1
s_cmp_gt_i32 s88, 0
s_cbranch_scc1 L_jit{idx}""")
    if not DIAG: return []
    if PICK is not None:
        if name != "start" and idx not in PICK:
            print(f"   - {idx}: {name}"); return []
    elif name != "start" and not (set(grp) & set(SEL)): return []
    k = nstamp[0]; nstamp[0] += 1
    assert k < 7
    print(f"stamp {k}: [{idx}] {name}")
    op = "s_memtime" if DIAG == 2 else "s_memrealtime"
    return mk(f"{op} s[{sSTAMP+2*k}:{sSTAMP+2*k+1}]")
def stamp(name, grp="m"): P.add(stampi(name, grp))
X3 = "bitop3:0x96"

def chk_code(regs, masked):
    r = list(regs)
    if masked: return f"v_bitop3_b32 v10, v{r[0]}, v{r[1]}, s{sMASK} bitop3:0x28\nv_cmp_ne_u32 vcc, v10, v6"
    if len(r) == 1: return f"v_cmp_ne_u32 vcc, v{r[0]}, v5"
    if len(r) == 2: t = f"v_xor_b32 v10, v{r[0]}, v{r[1]}"
    else:
        t = f"v_bitop3_b32 v10, v{r[0]}, v{r[1]}, v{r[2]} {X3}"
        if len(r) == 4: t += f"\nv_xor_b32 v10, v10, v{r[3]}"
    return t + "\nv_cmp_ne_u16 vcc, v10, v5"

sFL, sDM = 56, 57
GUARD = f"s_add_u32 s{sSPIN}, s{sSPIN}, 1\ns_cmp_gt_u32 s{sSPIN}, 0x40000\ns_cbranch_scc1 L_end\ns_waitcnt vmcnt(0)"
class Fetch:
    def __init__(self, name, pieces, masked=False, nre=1):
        self.name, self.pieces, self.masked, self.nre = name, pieces, masked, nre
    def loadc(self, i):
        it = flat([mk(c.replace(f"s{sCt}", f"s{sFL}")) for c in self.pieces[i][0]])
        out = []; cur = []
        for x in it:
            cur.append(x)
            if x.cls == 'vmem': out.append(cur); cur = []
        return out
    def load(self, i): return flat(self.loadc(i))
    def stub(self, i, last):
        n = self.name
        wgt = {"fo": 0x100, "fh": 0x10000, "f4": 0x1000000}.get(n, 1)
        rel = (f"s_add_u32 s80, s80, {wgt}\n" if DIAG else "") + "\n".join(c for j in range(i, min(last, i + self.nre - 1) + 1) for c in self.pieces[j][0])
        if opt("ool", 15) & {"fo": 2, "fh": 4, "f4": 8}[n]:
            TAIL.I(f"L_{n}_r{i}:\n" + rel + "\n" + GUARD + "\n" + chk_code(self.pieces[i][1], self.masked) + f"\ns_cbranch_vccnz L_{n}_r{i}\ns_branch L_{n}_ok{i}", unc=True)
            return mk(f"s_cbranch_vccnz L_{n}_r{i}\nL_{n}_ok{i}:")
        return mk(f"s_cbranch_vccz L_{n}_ok{i}\nL_{n}_r{i}:") + \
               mk(rel + "\n" + GUARD + "\n" + chk_code(self.pieces[i][1], self.masked) + f"\ns_cbranch_vccnz L_{n}_r{i}", unc=True) + mk(f"L_{n}_ok{i}:")
    def checkc(self, i, last):
        return [[x] for x in mk(chk_code(self.pieces[i][1], self.masked))] + [self.stub(i, last)]
    def check(self, i, last): return flat(self.checkc(i, last))

sFS, sFP = 80, 81
vL512, vPO, vPF = 0, 142, 143
def flag_store(nl): return mk(f"s_mov_b64 exec, {(1 << nl) - 1}\nbuffer_store_dword v5, v{vL512}, {WS}, s{sFS} offen sc1\ns_mov_b64 exec, -1")
def gate(name, vo, vf): return Fetch(name, [([f"buffer_load_dword v{vf}, v{vo}, {WS}, s{sFP} offen sc1"], [vf])])
GATE = opt("gate", 0)

def cost(it):
    if isinstance(it, WaitTag): return 4
    if it.cls in ('label', 'dir') or it.uncounted: return 0
    if it.op.startswith(TRANS) or 'permlane' in it.op: return 8
    if it.op.startswith('ds_write_b128'): return 28
    if it.cls == 'mfma': return 8
    return 4.5
class Sched:
    def __init__(self, groups):
        self.groups = groups; self.gap = [[] for _ in groups]; self.seq = 0
    def at(self, g, items, frac=0.5):
        self.seq += 1; self.gap[g].append((frac, self.seq, list(items)))
    def spread(self, chunks, a, b):
        chunks = [c if isinstance(c, list) else [c] for c in chunks]
        tot = sum(cost(i) for c in chunks for i in c) or 1; acc = 0
        for c in chunks:
            pos = a + (b - a) * acc / tot
            self.at(int(pos), c, pos - int(pos))
            acc += sum(cost(i) for i in c)
    def emit(self):
        out = []
        for g, gp in zip(self.groups, self.gap):
            out += g
            for _, _, c in sorted(gp, key=lambda x: (x[0], x[1])): out += c
        return out
def sprinkle(items, groups, start, step):
    out = []; groups = list(groups); nxt = start
    for i, it in enumerate(items):
        if groups and i == nxt: out += groups.pop(0); nxt += step
        out.append(it)
    for g in groups: out += g
    return out

def softmax(p, t, o, pk):
    q = Prog(); J = q.I
    m, n = t + 14, t + 15; r0, r1 = t + 16, t + 17
    J(f"v_max3_f32 v{m}, v{p}, v{p+1}, v{p+2}\nv_max3_f32 v{n}, -v{p}, -v{p+1}, -v{p+2}")
    for k in range(3, 13, 2):
        J(f"v_max3_f32 v{m}, v{m}, v{p+k}, v{p+k+1}\nv_max3_f32 v{n}, v{n}, -v{p+k}, -v{p+k+1}")
    J(f"""v_max_f32 v{m}, v{m}, v{p+13}
v_max_f32 v{n}, v{n}, -v{p+13}
v_permlane32_swap_b32 v{m}, v{n}
v_max_f32 v{m}, v{m}, v{n}
v_mul_f32 v{m}, v253, v{m}
v_mov_b32 v{n}, v{m}
v_permlane32_swap_b32 v{m}, v{n}""")
    if pk:
        for k in range(0, 14, 2):
            J(f"v_pk_fma_f32 {v(t+k,2)}, {v(p+k,2)}, v[252:253], {v(m,2)} op_sel_hi:[1,0,0]")
            J(f"v_pk_fma_f32 {v(p+k,2)}, {v(p+k,2)}, v[252:253], {v(m,2)} op_sel:[0,1,1] op_sel_hi:[1,1,1]")
    if pk == 2:
        for k in range(14):
            J(f"v_exp_f32 v{t+k}, v{t+k}\nv_exp_f32 v{p+k}, v{p+k}")
            if k >= 2:
                a0 = f"v{t}" if k == 2 else f"v{r0}"; a1 = f"v{p}" if k == 2 else f"v{r1}"
                J(f"v_add_f32 v{r0}, {a0}, v{t+k-1}\nv_add_f32 v{r1}, {a1}, v{p+k-1}")
        J(f"v_add_f32 v{m}, v{r0}, v{t+13}\nv_add_f32 v{n}, v{r1}, v{p+13}")
    elif pk:
        for k in range(14): J(f"v_exp_f32 v{t+k}, v{t+k}")
        for k in range(14): J(f"v_exp_f32 v{p+k}, v{p+k}")
        J(f"v_pk_add_f32 {v(m,2)}, {v(t,2)}, {v(t+2,2)}\nv_pk_add_f32 {v(r0,2)}, {v(p,2)}, {v(p+2,2)}")
        for k in range(4, 14, 2):
            J(f"v_pk_add_f32 {v(m,2)}, {v(m,2)}, {v(t+k,2)}\nv_pk_add_f32 {v(r0,2)}, {v(r0,2)}, {v(p+k,2)}")
        J(f"v_add_f32 v{m}, v{m}, v{n}\nv_add_f32 v{n}, v{r0}, v{r1}")
    else:
        for k in range(14):
            J(f"v_fma_f32 v{t+k}, v{p+k}, v252, v{m}\nv_fma_f32 v{p+k}, v{p+k}, v253, v{n}\nv_exp_f32 v{t+k}, v{t+k}\nv_exp_f32 v{p+k}, v{p+k}")
            if k >= 2:
                a0 = f"v{t}" if k == 2 else f"v{r0}"; a1 = f"v{p}" if k == 2 else f"v{r1}"
                J(f"v_add_f32 v{r0}, {a0}, v{t+k-1}\nv_add_f32 v{r1}, {a1}, v{p+k-1}")
        J(f"v_add_f32 v{m}, v{r0}, v{t+13}\nv_add_f32 v{n}, v{r1}, v{p+13}")
    J(f"""v_permlane32_swap_b32 v{m}, v{n}
v_add_f32 v{m}, v{m}, v{n}
v_rcp_f32 v{m}, v{m}
v_mov_b32 v{n}, v{m}
v_permlane32_swap_b32 v{m}, v{n}""")
    if pk == 1:
        for k in range(0, 14, 2):
            J(f"v_pk_mul_f32 {v(t+k,2)}, {v(t+k,2)}, {v(m,2)} op_sel_hi:[1,0]")
            J(f"v_pk_mul_f32 {v(p+k,2)}, {v(p+k,2)}, {v(m,2)} op_sel:[0,1] op_sel_hi:[1,1]")
    else:
        for k in range(14): J(f"v_mul_f32 v{t+k}, v{t+k}, v{m}\nv_mul_f32 v{p+k}, v{p+k}, v{n}")
    for k in range(7): J(f"v_cvt_pk_bf16_f32 v{o+k}, v{t+2*k}, v{t+2*k+1}")
    for k in range(7): J(f"v_cvt_pk_bf16_f32 v{o+7+k}, v{p+2*k}, v{p+2*k+1}")
    return q.items

def dmag(vaddrs, srd, sbase, sadd, mbase, madd, tag, sreg=None):
    sr = sCt if sreg is None else sreg
    ch = [mk(f"buffer_load_dwordx4 v{a}, {srd}, s{sr} offen offset:{1024*i} lds", tag=tag) for i, a in enumerate(vaddrs)]
    ch[0] = mk(f"s_add_u32 m0, s{mbase}, {madd}\ns_add_u32 s{sr}, s{sbase}, {sadd}") + ch[0]
    return ch

MF = "v_mfma_f32_32x32x16_bf16"
RINGA, NRING = 224, 8
def gemm_lds(steps, ahead=6):
    def rd(i):
        av, o1, o2 = steps[i][:3]; r = RINGA + 4 * (i % NRING)
        return mk(f"ds_read_b64_tr_b16 {a_(r,2)}, v{av} offset:{o1}\nds_read_b64_tr_b16 {a_(r+2,2)}, v{av} offset:{o2}")
    rds = [rd(i) for i in range(len(steps))]
    groups = []
    for i, st in enumerate(steps):
        r = RINGA + 4 * (i % NRING); b, acc, first, swap = st[3]
        A, B = a_(r, 4), v(b, 4)
        if swap: A, B = B, A
        g = mk(f"{MF} {v(acc,16)}, {A}, {B}, {'0' if first else v(acc,16)}")
        if i % 2 == 0 and i + 1 < len(steps):
            r2 = RINGA + 4 * ((i + 1) % NRING); g[0].extra = [('a', r2 + x) for x in range(4)]
        groups.append(g + (rds[i + ahead] if i + ahead < len(steps) else []))
    return flat(rds[:ahead]), groups

FAST = opt('fast', 1)
LO = """s_load_dwordx2 s[12:13], s[0:1], 8
s_load_dwordx2 s[16:17], s[0:1], 16
s_load_dwordx2 s[20:21], s[0:1], 24
s_load_dwordx2 s[24:25], s[0:1], 40
s_load_dwordx2 s[28:29], s[0:1], 48
s_load_dwordx2 s[32:33], s[0:1], 56
s_load_dwordx2 s[36:37], s[0:1], 72
"""
CP = f"""v_lshlrev_b32 v3, 4, v1
v_lshl_add_u32 v3, v2, 6, v3
v_lshl_add_u32 v3, v2, 4, v3
v_add_u32 v3, s{sCt}, v3
v_lshlrev_b32 v3, 7, v3
s_and_b32 s76, s76, 0xffffff00
s_mov_b64 exec, 31
global_load_dword v236, v3, s[76:77]
s_mov_b64 exec, -1
"""
MAP1 = [f"""{"s_lshr_b32 s4, s70, 1" if opt("pair", 1) else "s_and_b32 s4, s70, 3"}
s_lshl_b32 s{sT}, s{sT}, 2
s_and_b32 s{sD}, s{sB}, 3
s_add_u32 s{sT}, s{sT}, s{sD}
{"s_and_b32 s59, s70, 1" if opt("pair", 1) else "s_lshr_b32 s59, s70, 2"}
s_lshl_b32 s{sH}, s{sP}, 3
s_lshr_b32 s{sD}, s{sB}, 2
s_add_u32 s{sH}, s{sH}, s{sD}
s_mul_i32 s{sP}, s{sT}, {opt("rt", 2)}
s_add_u32 s{sD}, s{sD}, s{sP}
s_mul_i32 s{sP}, s{sD}, 37
s_lshr_b32 s{sP}, s{sP}, 8
s_mul_i32 s{sP}, s{sP}, 7
s_sub_u32 s{sD}, s{sD}, s{sP}
s_lshl_b32 s{sKX}, s{sD}, 7
""",
f"""s_lshl_b32 s{sT}, s{sA}, 1
s_lshr_b32 s{sD}, s{sB}, 4
s_add_u32 s{sT}, s{sT}, s{sD}
s_mov_b32 s{sH}, s{sCt}
s_and_b32 s{sD}, s{sH}, 7
s_cmp_eq_u32 s{sD}, 7
s_cselect_b32 s{sD}, 3, s{sD}
s_lshl_b32 s{sKX}, s{sD}, 7
""",
f"""s_mov_b32 s{sT}, s{sCt}
s_lshl_b32 s{sH}, s{sA}, 1
s_lshr_b32 s{sD}, s{sB}, 4
s_add_u32 s{sH}, s{sH}, s{sD}
s_and_b32 s{sD}, s{sH}, 7
s_mul_i32 s{sD}, s{sD}, 3
s_mul_i32 s{sP}, s{sD}, 37
s_lshr_b32 s{sP}, s{sP}, 8
s_mul_i32 s{sP}, s{sP}, 7
s_sub_u32 s{sD}, s{sD}, s{sP}
s_lshl_b32 s{sKX}, s{sD}, 7
"""][opt("map1", 0)]
if DIAG: I("s_memrealtime s[78:79]")
I(f"""s_cmp_ge_u32 s2, 256
s_cbranch_scc1 L_end
s_load_dwordx2 s[8:9], s[0:1], 0
{LO if not FAST else ''}{"s_waitcnt lgkmcnt(0)" + chr(10) + "s_memrealtime s[88:89]" if opt("bare", 0) else ""}
s_getpc_b64 s[76:77]
v_and_b32 v1, 63, v0
v_lshrrev_b32 v2, 6, v0
s_and_b32 s{sA}, s2, 7
v_readfirstlane_b32 s{sW}, v2
s_lshr_b32 s{sB}, s2, 3
s_and_b32 s{sCt}, s{sB}, 15
{CP if FAST < 2 else ''}{MAP1}
s_mov_b32 s10, 1835008
s_mov_b32 s11, 0x20000
v_lshrrev_b32 v2, 3, v1
v_mul_u32_u24 v244, 896, v2
v_lshrrev_b32 v2, 4, v1
v_and_b32 v8, 7, v1
v_xor_b32 v2, v2, v8
v_lshl_add_u32 v244, v2, 4, v244
v_xor_b32 v245, 64, v244
v_add_u32 v245, {7168-1024}, v245
v_add_u32 v246, {2*(7168-1024)}, v244
v_add_u32 v247, {2*(7168-1024)}, v245
s_lshl_b32 s{sQ}, s{sT}, 2
s_add_u32 s{sQ}, s{sQ}, s{sW}
s_mul_i32 s{sQ}, s{sQ}, {32*896}
s_lshr_b32 s{sXO}, s{sW}, 1
s_add_u32 s{sXO}, s{sXO}, s{sW}
s_mul_i32 s{sXO}, s{sXO}, {XW}
s_waitcnt lgkmcnt(0)""")
st0 = stampi("start")
if not opt("bare", 0): P.add(st0)
def xdma(g): return flat(dmag([244, 245, 246, 247], X, sQ, f"s{sKX+g}", sXO, 4096*g, f"x{g}"))
P.add(xdma(0))
if FAST: I(LO)
if FAST == 2: I(f"v_lshrrev_b32 v2, 6, v0\ns_and_b32 s{sCt}, s{sB}, 15\n" + CP)
I(f"""s_mov_b32 s14, {0 if opt('abl',0)&8 else 1204224}
s_mov_b32 s15, 0x20000
v_and_b32 v8, 3, v1""")
def wtouch(mask16, dst):
    m = mask16 | (mask16 << 16)
    return mk(f"s_mov_b32 exec_lo, {hex(m)}\ns_mov_b32 exec_hi, {hex(m)}\nbuffer_load_dword v{dst}, v255, {WQKV}, 0 offen\ns_mov_b64 exec, -1")
def kxs(g): return mk(f"s_add_u32 s{sKX+g}, s{sKX+g-1}, 128\ns_cmp_ge_u32 s{sKX+g}, 896\ns_cselect_b32 s{sD}, 896, 0\ns_sub_u32 s{sKX+g}, s{sKX+g}, s{sD}")
NXE = opt("nxe", 2)
if opt("wtfirst", 1) and opt("wt0", 0): P.add(wtouch(opt("wt0", 0), 237))
for g in range(1, NXE): P.add(kxs(g) + xdma(g))
if not opt("wtfirst", 1) and opt("wt0", 0): P.add(wtouch(opt("wt0", 0), 237))
if FAST: I("s_waitcnt lgkmcnt(0)")
if opt("wsoff", 0): I(f"s_add_u32 s36, s36, {opt('wsoff', 0)}\ns_addc_u32 s37, s37, 0")
I(f"""s_mov_b32 s38, {WS_SIZE}
s_mov_b32 s39, 0x20000
s_mov_b32 s18, 25088
s_mov_b32 s19, 0x20000
s_mov_b32 s22, {0 if opt('abl',0)&4 else 401408}
s_mov_b32 s23, 0x20000
s_xor_b32 s{sHQ}, s{sH}, 1
v_mov_b32 v11, 0
v_lshlrev_b32 v6, 7, v1""")
TM = opt("tm", 0)
sm_ld = mk(f"""s_mov_b64 exec, 1
buffer_load_dword v5, v6, {WS}, 0 offen sc1""")
if opt("two_", 1): sm_ld += mk(f"""s_lshl_b32 s56, s2, 2
s_add_u32 s56, s56, s{sW}
s_lshl_b32 s56, s56, 9
s_mov_b64 exec, 15
buffer_load_dword v238, v6, {WO}, s56 offen""")
if opt("twp", 0): sm_ld += mk(f"""s_and_b32 s{sCt}, s{sH}, 14
s_mul_i32 s{sCt}, s{sCt}, 1568
s_mul_i32 s56, s{sW}, 896
s_add_u32 s{sCt}, s{sCt}, s56
s_mov_b64 exec, 127
buffer_load_dword v239, v6, {WPHI}, s{sCt} offen""")
wq_t = mk(f"""s_lshl_b32 s56, s2, 2
s_add_u32 s56, s56, s{sW}
s_mul_i32 s56, s56, 1280
s_mov_b64 exec, 0x3ff
buffer_load_dword v237, v6, {WQKV}, s56 offen
s_mov_b64 exec, -1""")
if opt("twq", 0) == 1: sm_ld += wq_t
if opt("tp", 0) == 4:
    sm_ld += mk(f"""s_mov_b32 s26, 1605632
s_mov_b32 s27, 0x20000
s_mov_b32 s30, 1605632
s_mov_b32 s31, 0x20000
s_mul_i32 s{sCt}, s2, {52*128}
s_mul_i32 s56, s{sW}, {13*128}
s_add_u32 s{sCt}, s{sCt}, s56
s_mov_b64 exec, 0x1fff
buffer_load_dword v255, v6, {W1}, s{sCt} offen
buffer_load_dword v254, v6, {W2}, s{sCt} offen""")
sm_ld += mk("s_mov_b64 exec, -1")
if TM == 0: P.add(sm_ld)
for g in range(NXE, 7): P.add(kxs(g))
MORE = opt("more", 0)
I(f"s_mov_b32 s{sONES}, 0x3f803f80\ns_mul_i32 s66, s{sH}, 1568\ns_mul_i32 s81, s{sHQ}, 1568")
_m1 = len(P.items)
I(f"""s_lshl_b32 s{sT2}, s{sA}, 1
s_lshr_b32 s{sD}, s{sB}, 4
s_add_u32 s{sT2}, s{sT2}, s{sD}
s_and_b32 s{sRact}, s{sB}, 15
s_min_u32 s{sR}, s{sRact}, 13
s_mov_b32 s26, {0 if opt('abl',0)&1 else 1605632}
s_mov_b32 s27, 0x20000
s_mov_b32 s30, {0 if opt('abl',0)&2 else 1605632}
s_mov_b32 s31, 0x20000
s_mov_b32 s34, 1835008
s_mov_b32 s35, 0x20000
s_mov_b32 s64, 0
s_mov_b32 s65, -1
s_mov_b32 s{sMASK}, 0xbfffbfff
s_mov_b32 s{sHIM}, 0xffff0000
s_mov_b32 s{sSPIN}, 0
s_mov_b32 s80, 0
s_cmp_ge_u32 s{sR}, 7
s_cselect_b32 s{sU}, 1, 0
s_mul_i32 s{sA}, s{sU}, 7
s_sub_u32 s{sC}, s{sR}, s{sA}""")
sT3 = 67
if opt("map3", 1):
    I(f"""s_and_b32 s{sA}, s{sT2}, 12
s_and_b32 s{sD}, s{sT2}, 1
s_lshl_b32 s{sD}, s{sD}, 1
s_add_u32 s{sA}, s{sA}, s{sD}
s_add_u32 s{sT3}, s{sA}, s{sU}
s_bfe_u32 s{sA}, s{sT2}, 0x10001
s_mul_i32 s{sA}, s{sA}, 7
s_add_u32 s{sR}, s{sA}, s{sC}""")
else: I(f"s_mov_b32 s{sT3}, s{sT2}")
for g in range(7): I(f"s_mul_i32 s{sKW+g}, s{sKX+g}, {172032//128}")
I(f"""s_mul_i32 s{sWB}, s{sH}, 56
s_mul_i32 s{sD}, s{sW}, 43008
s_add_u32 s{sWB}, s{sWB}, s{sD}
s_mul_i32 s{sWQ}, s{sHQ}, 56
s_add_u32 s{sWQ}, s{sWQ}, s{sD}
s_add_u32 s{sWB}, s{sWB}, 896
s_lshl_b32 s{sWM}, s{sW}, 10""")
_m0 = _m1 if MORE else len(P.items)
I(f"""s_lshl_b32 s{sA}, s{sH}, 4
s_add_u32 s{sA}, s{sA}, s{sT}
s_mul_i32 s{sA}, s{sA}, 4608
s_add_u32 s{sA}, s{sA}, {WS_PART}
s_add_u32 s{sPST}, s{sA}, s{sWM}
s_lshl_b32 s{sD}, s{sW}, 7
s_add_u32 s{sA}, s{sA}, s{sD}
s_add_u32 s{sPCK}, s{sA}, 4096
s_lshl_b32 s{sA}, s{sT}, 2
s_add_u32 s{sA}, s{sA}, s{sW}
s_lshl_b32 s{sA}, s{sA}, 15
s_lshl_b32 s{sB}, s{sHQ}, 11
s_add_u32 s{sA}, s{sA}, s{sB}
s_add_u32 s{sOST}, s{sA}, {WS_O}
s_lshl_b32 s{sA}, s{sT2}, 2
s_lshl_b32 s{sB}, s{sU}, 1
s_add_u32 s{sA}, s{sA}, s{sB}
s_and_b32 s{sB}, s{sW}, 1
s_add_u32 s{sTILE}, s{sA}, s{sB}
s_mul_i32 s{sA}, s{sA}, {32*896}
s_lshl_b32 s{sB}, s{sC}, 7
s_add_u32 s{sA}, s{sA}, s{sB}
s_mul_i32 s{sD}, s{sW}, {16*896}
s_add_u32 s{sXRB}, s{sA}, s{sD}
s_mul_i32 s{sA}, s{sTILE}, {32*896}
s_add_u32 s{sA}, s{sA}, s{sB}
s_lshr_b32 s{sB}, s{sW}, 1
s_lshl_b32 s{sB}, s{sB}, 6
s_add_u32 s{sOUT}, s{sA}, s{sB}
s_mul_i32 s{sP}, s{sHQ}, {16*4608}
s_add_u32 s{sP}, s{sP}, {WS_PART}""")
deferred = P.items[_m0:]; del P.items[_m0:]
WPK, WPQ, WPT = 192, 200, 208
vWPA, vWPB, vKVX, vIMW, vKA, vKB, vFPD, vFPC, vWO0, vWO1, vXRD0, vXRD1, vXRR, vWOR = range(128, 142)
I(f"""v_lshrrev_b32 v3, 5, v1
v_bfe_u32 v11, v1, 3, 2
v_lshl_add_u32 v11, v11, 2, v8
v_bfe_u32 v12, v1, 2, 1
v_mul_u32_u24 v12, 14, v12
v_min_u32 v13, 13, v11
v_add_u32 v13, v13, v12
v_lshlrev_b32 v13, 1, v13
v_mul_u32_u24 v14, 224, v3
v_add_u32 v{vWPA}, v13, v14
v_lshl_add_u32 v{vWPB}, v3, 20, v{vWPA}
v_and_b32 v9, 31, v1
v_lshlrev_b32 v240, 7, v9
v_bfe_u32 v10, v1, 1, 3
v_xor_b32 v10, v10, v3
v_lshl_add_u32 v240, v10, 4, v240
v_add_u32 v240, s{sXO}, v240
v_xor_b32 v241, 32, v240
v_xor_b32 v242, 64, v240
v_xor_b32 v243, 96, v240
v_mov_b32 v250, 0
v_mov_b32 v251, 0""")
_m2 = len(P.items)
I(f"""v_lshlrev_b32 v2, 4, v1
v_lshlrev_b32 v4, 2, v1
v_add_u32 v12, v12, v11
v_cmp_gt_u32 vcc, 14, v11
v_lshrrev_b32 v7, 2, v1
v_mul_u32_u24 v7, 2688, v7
v_cndmask_b32 v12, 28, v12, vcc
v_and_b32 v13, 15, v12
v_lshlrev_b32 v13, 4, v13
v_lshrrev_b32 v12, 4, v12
v_lshl_add_u32 v13, v12, 3, v13
v_lshl_add_u32 v13, v3, 8, v13
v_add_u32 v{vKVX}, {L_KVX}, v13
v_lshlrev_b32 v11, 4, v8
v_min_u32 v11, 40, v11
v_add_u32 v7, v7, v11""")
_m0 = _m2 if MORE else len(P.items)
I(f"""s_lshl_b32 s{sA}, s{sW}, 5
v_add_u32 v10, s{sA}, v9
v_mul_u32_u24 v10, 208, v10
v_mul_u32_u24 v11, 96, v3
v_add_u32 v{vIMW}, v10, v11
v_lshrrev_b32 v10, 4, v1
v_bfe_u32 v15, v1, 2, 2
v_lshl_add_u32 v10, v10, 3, v15
v_mul_u32_u24 v10, 208, v10
v_and_b32 v11, 1, v1
v_mul_u32_u24 v11, 96, v11
v_add_u32 v10, v10, v11
v_bfe_u32 v11, v1, 1, 1
v_lshl_add_u32 v10, v11, 3, v10
v_add_u32 v{vKB}, {L_IMG}, v10
s_lshl_b32 s{sA}, s{sW}, 4
v_add_u32 v{vKA}, s{sA}, v{vKB}
v_add_u32 v{vFPD}, s{sWM}, v2
s_lshl_b32 s{sD}, s{sW}, 7
s_add_u32 s{sD}, s{sD}, 4096
v_lshlrev_b32 v0, 1, v1
v_add_u32 v{vFPC}, s{sD}, v0
v_lshrrev_b32 v12, 3, v1
v_mul_u32_u24 v14, 896, v12
v_and_b32 v13, 7, v1
v_xor_b32 v12, v12, v13
v_lshl_add_u32 v{vXRD0}, v12, 4, v14
v_add_u32 v{vXRD1}, {7168-1024}, v{vXRD0}
v_bfe_u32 v12, v1, 4, 1
v_lshlrev_b32 v11, 2, v12
v_xor_b32 v11, v11, v13
v_lshl_add_u32 v{vWO0}, v11, 4, v14
v_add_u32 v{vWO1}, {7168-1024}, v{vWO0}
s_and_b32 s{sA}, s{sW}, 1
s_lshl_b32 s{sA}, s{sA}, 12
s_add_u32 s{sA}, s{sA}, {L_XCH}
v_lshlrev_b32 v10, 7, v9
v_lshl_add_u32 v10, v3, 3, v10
v_add_u32 v10, s{sA}, v10
s_lshr_b32 s{sA}, s{sW}, 1
s_lshl_b32 s{sB}, s{sA}, 2
v_xor_b32 v13, s{sB}, v13
v_lshl_add_u32 v{vXRR}, v13, 4, v10
v_mad_u32_u24 v10, v3, 14, v15
v_lshlrev_b32 v10, 7, v10
v_bfe_u32 v13, v1, 3, 1
v_xor_b32 v13, v13, v3
v_xor_b32 v13, s{sA}, v13
v_lshl_add_u32 v10, v13, 6, v10
v_lshl_add_u32 v10, v12, 5, v10
v_lshl_add_u32 v10, v8, 3, v10
s_mul_i32 s{sA}, s{sA}, {4*28*128}
s_add_u32 s{sA}, s{sA}, {L_WO}
v_add_u32 v{vWOR}, s{sA}, v10
v_lshl_add_u32 v11, v3, 3, v15
v_lshlrev_b32 v11, 6, v11
v_lshl_add_u32 v12, v12, 2, v8
v_cmp_lt_u32 vcc, 5, v12
v_xor_b32 v13, 1, v12
v_cndmask_b32 v12, v12, v13, vcc
v_lshl_add_u32 v11, v12, 3, v11
v_add_u32 v13, {L_WK}, v11""")
I(f"""v_bfe_u32 v10, v1, 2, 1
v_bfe_u32 v14, v1, 4, 1
v_lshl_add_u32 v10, v14, 1, v10
v_cmp_eq_u32 vcc, v10, v3
v_and_b32 v10, 1, v1
v_lshlrev_b32 v10, 4, v10
v_mov_b32 v14, 0x3f80
v_lshlrev_b32 v10, v10, v14
v_cndmask_b32 v10, 0, v10, vcc
v_bfe_u32 v14, v1, 3, 1
v_bfe_u32 v15, v1, 1, 1
v_lshl_add_u32 v14, v14, 1, v15""")
for q in range(4): I(f"v_cmp_eq_u32 vcc, {q}, v14\nv_cndmask_b32 v15, 0, v10, vcc\nv_accvgpr_write_b32 a{220+q}, v15")
I("v_add_u32 v9, 896, v7")
deferred += P.items[_m0:]; del P.items[_m0:]
RELOC = opt("reloc", 0)
if RELOC:
    deferred = mk(f"""v_bfe_u32 v15, v1, 2, 2
v_bfe_u32 v12, v1, 4, 1
v_lshl_add_u32 v11, v3, 3, v15
v_lshlrev_b32 v11, 6, v11
v_lshl_add_u32 v12, v12, 2, v8
v_cmp_lt_u32 vcc, 5, v12
v_xor_b32 v13, 1, v12
v_add_u32 v9, 896, v7
v_lshlrev_b32 v0, 1, v1
v_cndmask_b32 v12, v12, v13, vcc
v_lshl_add_u32 v11, v12, 3, v11
v_add_u32 v13, {L_WK}, v11""")
    snA = mk(f"""s_lshl_b32 s{sA}, s{sH}, 4
s_add_u32 s{sA}, s{sA}, s{sT}
s_mul_i32 s{sA}, s{sA}, 4608
s_add_u32 s{sA}, s{sA}, {WS_PART}
s_add_u32 s{sPST}, s{sA}, s{sWM}
s_lshl_b32 s{sD}, s{sW}, 7
s_add_u32 s{sA}, s{sA}, s{sD}
s_add_u32 s{sPCK}, s{sA}, 4096
s_mul_i32 s{sP}, s{sHQ}, {16*4608}
s_add_u32 s{sP}, s{sP}, {WS_PART}""")
    snB = mk(f"""s_lshl_b32 s{sA}, s{sT2}, 2
s_lshl_b32 s{sB}, s{sU}, 1
s_add_u32 s{sA}, s{sA}, s{sB}
s_and_b32 s{sB}, s{sW}, 1
s_add_u32 s{sTILE}, s{sA}, s{sB}
s_mul_i32 s{sA}, s{sA}, {32*896}
s_lshl_b32 s{sB}, s{sC}, 7
s_add_u32 s{sA}, s{sA}, s{sB}
s_mul_i32 s{sD}, s{sW}, {16*896}
s_add_u32 s{sXRB}, s{sA}, s{sD}""")
    snC = mk(f"""v_bfe_u32 v10, v1, 2, 1
v_bfe_u32 v9, v1, 4, 1
v_lshl_add_u32 v10, v9, 1, v10
v_cmp_eq_u32 vcc, v10, v3
v_and_b32 v10, 1, v1
v_lshlrev_b32 v10, 4, v10
v_mov_b32 v9, 0x3f80
v_lshlrev_b32 v10, v10, v9
v_cndmask_b32 v10, 0, v10, vcc
v_bfe_u32 v9, v1, 3, 1
v_bfe_u32 v143, v1, 1, 1
v_lshl_add_u32 v9, v9, 1, v143""")
    for q in range(4): snC += mk(f"v_cmp_eq_u32 s[{40+2*(q&1)+6}:{41+2*(q&1)+6}], {q}, v9") if False else []
    snC2 = flat([mk(f"v_cmp_eq_u32 vcc, {q}, v9\nv_cndmask_b32 v143, 0, v10, vcc\nv_accvgpr_write_b32 a{220+q}, v143") for q in range(4)])
    snD = mk(f"""s_lshl_b32 s{sA}, s{sT}, 2
s_add_u32 s{sA}, s{sA}, s{sW}
s_lshl_b32 s{sA}, s{sA}, 15
s_lshl_b32 s{sB}, s{sHQ}, 11
s_add_u32 s{sA}, s{sA}, s{sB}
s_add_u32 s{sOST}, s{sA}, {WS_O}
s_mul_i32 s{sA}, s{sTILE}, {32*896}
s_lshl_b32 s{sB}, s{sC}, 7
s_add_u32 s{sA}, s{sA}, s{sB}
s_lshr_b32 s{sB}, s{sW}, 1
s_lshl_b32 s{sB}, s{sB}, 6
s_add_u32 s{sOUT}, s{sA}, s{sB}""")
    snE = mk(f"""v_add_u32 v{vFPD}, s{sWM}, v2
s_lshl_b32 s{sD}, s{sW}, 7
s_add_u32 s{sD}, s{sD}, 4096
v_add_u32 v{vFPC}, s{sD}, v0
v_lshrrev_b32 v12, 3, v1
v_mul_u32_u24 v14, 896, v12
v_and_b32 v13, 7, v1
v_xor_b32 v12, v12, v13
v_lshl_add_u32 v{vXRD0}, v12, 4, v14
v_add_u32 v{vXRD1}, {7168-1024}, v{vXRD0}
v_bfe_u32 v12, v1, 4, 1
v_lshlrev_b32 v12, 2, v12
v_xor_b32 v12, v12, v13
v_lshl_add_u32 v{vWO0}, v12, 4, v14
v_add_u32 v{vWO1}, {7168-1024}, v{vWO0}
v_add_u32 v128, {2*(7168-1024)}, v{vWO0}
v_add_u32 v129, {3*(7168-1024)}, v{vWO0}""")
    snF = mk(f"""s_and_b32 s{sA}, s{sW}, 1
s_lshl_b32 s{sA}, s{sA}, 12
s_add_u32 s{sA}, s{sA}, {L_XCH}
v_and_b32 v9, 31, v1
v_lshlrev_b32 v10, 7, v9
v_lshl_add_u32 v10, v3, 3, v10
v_add_u32 v10, s{sA}, v10
s_lshr_b32 s{sA}, s{sW}, 1
s_lshl_b32 s{sB}, s{sA}, 2
v_and_b32 v9, 7, v1
v_xor_b32 v9, s{sB}, v9
v_lshl_add_u32 v{vXRR}, v9, 4, v10
v_bfe_u32 v9, v1, 2, 2
v_mad_u32_u24 v10, v3, 14, v9
v_lshlrev_b32 v10, 7, v10
v_bfe_u32 v9, v1, 3, 1
v_xor_b32 v9, v9, v3
v_xor_b32 v9, s{sA}, v9
v_lshl_add_u32 v10, v9, 6, v10
v_bfe_u32 v9, v1, 4, 1
v_lshl_add_u32 v10, v9, 5, v10
v_lshl_add_u32 v10, v8, 3, v10
s_mul_i32 s{sA}, s{sA}, {4*28*128}
s_add_u32 s{sA}, s{sA}, {L_WO}
v_add_u32 v{vWOR}, s{sA}, v10""")
    snG = mk(f"""v_and_b32 v10, 31, v1
s_lshl_b32 s{sA}, s{sW}, 5
v_add_u32 v10, s{sA}, v10
v_mul_u32_u24 v10, 208, v10
v_mul_u32_u24 v12, 96, v3
v_add_u32 v{vIMW}, v10, v12
v_lshrrev_b32 v10, 4, v1
v_lshl_add_u32 v10, v10, 3, v15
v_mul_u32_u24 v10, 208, v10
v_and_b32 v12, 1, v1
v_mul_u32_u24 v12, 96, v12
v_add_u32 v10, v10, v12
v_bfe_u32 v12, v1, 1, 1
v_lshl_add_u32 v10, v12, 3, v10
v_add_u32 v{vKB}, {L_IMG}, v10
s_lshl_b32 s{sA}, s{sW}, 4
v_add_u32 v{vKA}, s{sA}, v{vKB}""")
    if opt("gx", 1): deferred += snG; snG = []
    if opt("cx", 0): deferred += snC + snC2 + mk("v_add_u32 v9, 896, v7"); snC = []; snC2 = []
else: snA = snB = snC = snC2 = snD = snE = snF = snG = []
NDEF0 = opt("ndef0", 0)
P.add(deferred[:NDEF0]); deferred = deferred[NDEF0:]
L2N = 0
if L2N:
    I(f"""s_mov_b32 s{sCt}, 0x60504020
s_cmp_ge_u32 s{sH}, 8
s_cselect_b32 s{sCt}, 0x53020100, s{sCt}
s_and_b32 s{sD}, s{sH}, 7
s_lshl_b32 s{sD}, s{sD}, 2
s_lshr_b32 s{sCt}, s{sCt}, s{sD}
s_and_b32 s{sCt}, s{sCt}, 15
s_and_b32 s{sD}, s{sT}, 3
s_mul_i32 s{sD}, s{sD}, 7
s_add_u32 s{sCt}, s{sCt}, s{sD}
s_lshl_b32 s{sCt}, s{sCt}, 2
s_add_u32 s{sCt}, s{sCt}, s{sW}
s_mul_i32 s66, s{sCt}, 14336
s_add_u32 s81, s66, 57344
s_lshl_b32 s{sD}, s{sH}, 1
s_lshr_b32 s{sD}, 0xa111444a, s{sD}
s_and_b32 s{sD}, s{sD}, 3
s_cmp_ge_u32 s{sD}, 1
s_cselect_b32 s66, s66, 0x10000000
s_cmp_ge_u32 s{sD}, 2
s_cselect_b32 s81, s81, 0x10000000
v_add_u32 v143, 7168, v6""")
def l2n(k): return mk(f"s_mov_b32 exec_hi, 0xffffff\nbuffer_load_dword v{142}, v{6 if k % 2 == 0 else 143}, {W1}, s{66 if k < 2 else 81} offen\ns_mov_b32 exec_hi, -1")
stamp("setup done", "p")
def wphi(dst, tmp, so):
    q = []
    for t in range(2):
        for j in range(8):
            d = 16 * t + 8 * (j >> 2) + (j & 3)
            av = vWPB if (t == 1 and j >= 4) else vWPA
            r = (dst if j % 2 == 0 else tmp) + 4 * t + j // 2
            op = "buffer_load_short_d16" if j % 2 == 0 else "buffer_load_short_d16_hi"
            q += mk(f"{op} v{r}, v{av}, {WPHI}, s{so} offen offset:{d*56}")
    return q
def wkdma(g): return flat(dmag([7], WQKV, sWB, f"s{sKW+g}", sWM, L_WK + 4096*g, f"wk{g}"))
def wvdma(g): return flat(dmag([9], WQKV, sWB, f"s{sKW+g}", sWM, L_WV + 4096*g, f"wv{g}"))
def wqdma(g): return flat(dmag([7], WQKV, sWQ, f"s{sKW+g}", sWM, L_WQ + 4096*g, f"wq{g}"))
if opt("fake", 0):
    I(f"""v_mov_b32 v7, v2
v_add_u32 v9, 24576, v2
s_mul_i32 s{sWB}, s{sH}, 73728
s_add_u32 s{sWB}, s{sWB}, s{sWM}
s_mul_i32 s{sWQ}, s{sHQ}, 73728
s_add_u32 s{sWQ}, s{sWQ}, s{sWM}
s_add_u32 s{sWQ}, s{sWQ}, 45056""")
    for g in range(7): I(f"s_lshl_b32 s{sKW+g}, s{sKX+g}, 5")
XF = 16
NX0 = opt("nx0", 3)
if opt("wt1", 0): P.add(wtouch(opt("wt1", 0), 249))
WPP = opt("wpp", 1)
if WPP == 1: P.add(wphi(WPK, WPT, 66) + wphi(WPQ, WPT+8, 81))
for g in range(NXE, NX0): P.add(xdma(g))
if WPP == 2: P.add(wphi(WPK, WPT, 66) + wphi(WPQ, WPT+8, 81))
pend = [xdma(g) for g in range(NX0, 7)]
wkl = [wkdma(g) for g in range(7)]
if opt("twq", 0) >= 3: pend[opt("twq", 0) - NX0] = pend[opt("twq", 0) - NX0] + wq_t
if opt("twq", 0) == 2: P.add(wq_t)
if TM and TM < NX0: P.add(sm_ld)
elif TM: pend[TM - NX0] = pend[TM - NX0] + sm_ld
if opt("wt2", 0): pend[-1] = pend[-1] + wtouch(opt("wt2", 0), 248)
pend.append(wkl.pop(0) + (wphi(WPK, WPT, 66) if not WPP else []))
pend.append(wkl.pop(0) + (wphi(WPQ, WPT+8, 81) if not WPP else []))
while len(pend) < 7: pend.append(wkl.pop(0))
def xrd(g): return flat([mk(f"ds_read_b128 {v(XF+16*g+4*e,4)}, v{240+e} offset:{4096*g}") for e in range(4)])
_n = opt("ndefx", 0)
while 0 < _n < len(deferred) and deferred[_n-1].op.startswith("s_cmp"): _n += 1
P.add(deferred[:_n]); deferred = deferred[_n:]
P.wait("x0"); P.add(xrd(0))
for g in range(7):
    if pend: P.add(pend.pop(0))
    if g + 1 < 7: P.wait(f"x{g+1}"); P.add(xrd(g + 1))
    for i in range(16):
        r = XF + 16*g + i
        I(f"v_dot2c_f32_bf16 v250, s{sONES}, v{r}\nv_dot2c_f32_bf16 v251, v{r}, v{r}")
    nd_ = -(-len(deferred) // max(1, opt("ndi", 4) - g)) if g < opt("ndi", 4) else len(deferred)
    while 0 < nd_ < len(deferred) and deferred[nd_-1].op.startswith("s_cmp"): nd_ += 1
    P.add(deferred[:nd_]); deferred = deferred[nd_:]
    if g == 0: stamp("x0 done", "p")
for x_ in pend: P.add(x_)
if opt("tp", 0) == 2:
    I(f"""s_mul_i32 s{sCt}, s2, {52*128}
s_mul_i32 s{sD}, s{sW}, {13*128}
s_add_u32 s{sCt}, s{sCt}, s{sD}
s_mov_b64 exec, 0x1fff
buffer_load_dword v254, v6, {W2}, s{sCt} offen
buffer_load_dword v255, v6, {W1}, s{sCt} offen
s_mov_b64 exec, -1""")
stamp("x stats done", "mp")
I(f"""v_permlane32_swap_b32 v250, v251
v_readfirstlane_b32 s{sA}, v5
s_nop 0
v_add_f32 v250, v250, v251
v_mul_f32 v250, {fhex(-1/448)}, v250
v_mov_b32 v251, v250
s_or_b32 s{sA}, s{sA}, 1
s_mul_i32 s{sA}, s{sA}, 0x9E3779B5
v_mov_b32 v5, s{sA}
s_mov_b32 s{sA}, 0x3f80
v_permlane32_swap_b32 v250, v251
s_mov_b32 s{sB}, 0x3f800000""")
fin = mk(f"""v_fma_f32 v251, -v250, v250, -v251
v_max_f32 v251, 0, v251
v_add_f32 v251, 0x3727c5ac, v251
v_rsq_f32 v251, v251
s_lshl_b32 s{sQ}, s{sC}, 7
s_mul_i32 s{sD}, s{sW}, {16*896}
v_mul_f32 v252, 0x3fb8aa3b, v251
v_mul_f32 v253, 0xbfb8aa3b, v251
s_add_u32 s{sQ}, s{sQ}, s{sD}
s_lshl_b32 s{sXO}, s{sW}, 11""")
if opt("noid", 1): fin = [mk(f"s_cmp_ge_u32 s{sRact}, 14\ns_cselect_b32 s22, 0, s22")] + fin
ACK = 144; ACV = 160; PK = 176; IMG = 208; TMP = 232
def norm(t):
    q = Prog(); tb = TMP + 8 * (t & 1)
    for i in range(4):
        r = XF + 4 * t + i
        q.I(f"v_dot2_f32_bf16 v{tb+2*i}, v{r}, s{sA}, v250\nv_dot2_f32_bf16 v{tb+2*i+1}, v{r}, s{sB}, v250")
    return q.items
def normc(t):
    tb = TMP + 8 * (t & 1)
    return flat([mk(f"v_cvt_pk_bf16_f32 v{XF+4*t+i}, v{tb+2*i}, v{tb+2*i+1}") for i in range(4)])
def l2t(srd, k, dst):
    return mk(f"""s_lshr_b32 s{sCt}, s2, 3
s_lshl_b32 s{sCt}, s{sCt}, 2
s_add_u32 s{sCt}, s{sCt}, s{sW}
s_mul_i32 s{sCt}, s{sCt}, {98*128}
s_mov_b32 exec_hi, 0x1ffff
s_add_u32 s{sCt}, s{sCt}, {k*49*128}
buffer_load_dword v{dst}, v6, {srd}, s{sCt} offen
s_mov_b32 exec_hi, -1""")
L2A, L2B = opt("l2a", -1), opt("l2b", -1)
touch = mk(f"""s_mul_i32 s{sCt}, s2, {52*128}
s_mul_i32 s56, s{sW}, {13*128}
s_add_u32 s{sCt}, s{sCt}, s56
s_mov_b64 exec, 0x1fff
buffer_load_dword v255, v6, {W1}, s{sCt} offen
buffer_load_dword v254, v6, {W2}, s{sCt} offen
s_mov_b64 exec, -1""")
TP = opt('tp', 0)
ns = norm(0)
for t in range(1, 28): ns += norm(t) + normc(t - 1)
ns += normc(27)
NBAR = opt("nbar", 100)
wvl = [wvdma(k) for k in range(7)]
if opt("loop2", 0):
    I("s_mov_b32 s80, 0\nL_lp2:\ns_mov_b32 s101, s100\ns_memtime s[78:79]\ns_waitcnt lgkmcnt(0)\ns_mov_b32 s99, s78")
    P.add([Ins(x.text) for x in ns])
    I("s_memtime s[78:79]\ns_waitcnt lgkmcnt(0)\ns_sub_u32 s100, s78, s99\ns_add_u32 s100, s100, s88\ns_add_u32 s80, s80, 1\ns_cmp_lt_u32 s80, 2\ns_cbranch_scc1 L_lp2")
    nstamp[0] = 14
P.add(sprinkle(ns[:NBAR], wkl, 0, opt("wkstep", 30)))
if opt("touch", 1) and TP == 1: P.add(touch)
I("s_barrier")
NWV0 = opt("nwv0", 4)
w0_ = [wvl.pop(0) for _ in range(NWV0)]
if L2N == 1: w0_[0] = l2n(0) + w0_[0]; w0_[-1] = w0_[-1] + l2n(2); wvl[-1] = wvl[-1] + l2n(1)
if L2N == 2: wvl[-1] = wvl[-1] + l2n(0) + l2n(2)
P.add(sprinkle(ns[NBAR:], w0_, opt("wv0", 30), opt("wvstep", 50)))
P.wait(*[f"wk{k}" for k in range(7)]); I("s_barrier")
stamp("wk landed", "p")
if opt("zy", 0): I(f"s_sleep {opt('zy', 0)}")
AH = 6
sW1B, sW1M, sW2E, sW2L = 40, 41, 42, 43
set2 = mk(f"""v_lshrrev_b32 v10, 4, v1
v_mul_u32_u24 v12, 3584, v10
v_lshlrev_b32 v10, 2, v10
v_and_b32 v13, 15, v1
v_xor_b32 v10, v10, v13
v_lshl_add_u32 v12, v10, 4, v12
v_add_u32 v13, {4*3584-1024}, v12
v_add_u32 v14, {2*(4*3584-1024)}, v12
v_add_u32 v15, {3*(4*3584-1024)}, v12
s_lshl_b32 s{sW1B}, s{sR}, 8
s_mul_i32 s{sD}, s{sW}, {16*3584}
s_add_u32 s{sW1B}, s{sW1B}, s{sD}
s_lshl_b32 s{sW1M}, s{sW}, 12
s_lshr_b32 s{sA}, s{sW}, 1
s_lshl_b32 s{sA}, s{sA}, 2
s_andn2_b32 s{sB}, 1, s{sW}
s_add_u32 s{sA}, s{sA}, s{sB}
s_lshl_b32 s{sB}, s{sU}, 1
s_add_u32 s44, s{sA}, s{sB}
s_xor_b32 s45, s44, 2
s_lshl_b32 s{sD}, s{sC}, 7
s_mul_i32 s{sW2E}, s44, {32*896}
s_add_u32 s{sW2E}, s{sW2E}, s{sD}
s_mul_i32 s{sW2L}, s45, {32*896}
s_add_u32 s{sW2L}, s{sW2L}, s{sD}
""")
vW2 = [vWO0, vWO1, 128, 129]
sSCR, sBIG = 46, 47
NA = opt("na", 0)
NUR = opt("nur", 2); NT1 = min(NA, opt("nt1", 99))
_u = list(range(14))
def take(n): return [_u.pop(0) for _ in range(min(n, len(_u)))]
UAW = take(NA); UR = take(NUR); UD = take(opt("nud", 2)); UE = take(3); UL = take(opt("nrl", 4)); UP = take(99)
assert all(j >= 7 for j in UL + UP) and all(j >= 4 for j in UE)
RAWS = UAW + UR + UL
def UA(j): return 16*j
def w2slot(j):
    if j in UE: return (sSCR, 4096*UE.index(j), 254)
    if j in UAW + UR + UD: return (sSCR, 4096*(j & 1), 254)
    return (sBIG, 4096*(UL + UP).index(j), 252)
def w2dma(j):
    mb, mo, _ = w2slot(j)
    return dmag(vW2, W2, sW2E if j < 7 else sW2L, (j%7)*256*896, mb, mo, f"w2_{j}", sDM)
def w2raw(j):
    ch = [mk(f"buffer_load_dwordx4 {a_(UA(j)+4*q,4)}, v{vW2[q]}, {W2}, s81 offen offset:{1024*q}") for q in range(4)]
    ch[0] = mk(f"s_add_u32 s81, s{sW2E if j < 7 else sW2L}, {(j%7)*256*896}") + ch[0]
    return ch
def w2rd(j):
    _, mo, av = w2slot(j)
    if j in RAWS: out = [mk(f"ds_write_b128 v{131 if j in UL else 134}, {a_(UA(j)+4*q,4)} offset:{mo+1024*q}") for q in range(4)]
    else: out = [[WaitTag([f"w2_{j}"])]]
    for e in range(2):
        for mu in range(2):
            for u in range(2): out.append(mk(f"ds_read_b64_tr_b16 {a_(UA(j)+8*e+4*mu+2*u,2)}, v{av+mu} offset:{mo+2048*e+1024*u}"))
    return out
raw = flat([w2raw(j) for j in UR])
rawA = flat([w2raw(j) for j in UAW])
if opt("noid", 1): set2 = [mk(f"s_cmp_ge_u32 s{sRact}, 14\ns_cselect_b32 s26, 0, s26")] + set2
if not RELOC: set2 += mk(f"v_add_u32 v128, {2*(7168-1024)}, v{vWO0}\nv_add_u32 v129, {3*(7168-1024)}, v{vWO0}")
set2b = [x for x in set2 if isinstance(x, Ins) and x.cls == 'valu' and x.defs[0][1] < 128]
if opt("trim", 1):
    set2 = [mk(f"""s_cmp_eq_u32 s{sW}, 3
s_cselect_b64 vcc, {sHI}, 0
v_mov_b32 v143, 0x10000000
v_add_u32 v133, s{sWM}, v2
v_cndmask_b32 v142, v5, 0, vcc
v_cndmask_b32 v{vFPD}, v{vFPD}, v143, vcc
v_cndmask_b32 v{vFPC}, v{vFPC}, v143, vcc""")] + set2
set2b = [x for x in set2 if isinstance(x, list)] + set2b
set2a = [x for x in set2 if x not in set2b]
pro, gk = gemm_lds([(13, 1024*t, 1024*t + 256, (XF + 4*t, ACK, t == 0, False)) for t in range(28)], AH)
P.add(pro)
S = Sched(gk)
S.spread(wvl, 0, opt("wve", 16))
NQK = opt("nqk", 2)
S.spread([wqdma(k) for k in range(NQK)], opt("wve", 16), 28)
EARLY = opt("early", 0)
if EARLY:
    P.add(flat([x if isinstance(x, list) else [x] for x in fin + set2a])); fin = []
    wo_l = flat([dmag([vWO0, vWO1], WO, sQ, i*64*896, sXO, L_WO + 8192*i, "wo", sDM) for i in range(7)] + [dmag([vXRD0, vXRD1], X, sXRB, 0, sXO, L_XCH, "wo", sDM)])
    if EARLY == 2:
        S.spread([wo_l[2*i] + wo_l[2*i+1] for i in range(8)], 0, 28)
    else: S.spread([rawA.pop(0) for _ in range(min(len(rawA), opt("ne1", 8)))], 0, 28)
else: fin = fin + set2a + snG
if TP == 3: S.at(opt("tpos", 22), touch)
for k, ps in enumerate((L2A, L2B)):
    if 0 <= ps < 28: S.at(ps, l2t(W1, k, 248 + k))
S.spread(fin + flat([mk(f"v_or_b32 v{WPK+q}, v{WPK+q}, v{WPT+q}\nv_or_b32 v{WPQ+q}, v{WPQ+q}, v{WPT+8+q}") for q in range(8)]), 2, 26)
P.add(S.emit())
def phi_pre(acc, wp):
    q = Prog()
    for i in range(8): q.I(f"v_cvt_pk_bf16_f32 v{acc+i}, v{acc+2*i}, v{acc+2*i+1}")
    q.I(f"{MF} {v(PK,16)}, {v(wp,4)}, {v(acc,4)}, 0\n{MF} {v(PK,16)}, {v(wp+4,4)}, {v(acc+4,4)}, {v(PK,16)}")
    return q.items
stamp("k gemm done", "mp")
wql = [wqdma(k) for k in range(NQK, 7)]
P.add(wql.pop(0))
P.add(snA)
P.add(phi_pre(ACK, WPK))
imw = flat([mk(f"ds_write_b128 v{vIMW}, {v(IMG+4*i,4)} offset:{L_IMG+16*i}") for i in range(3)]) + mk(f"ds_write_b64 v{vIMW}, {v(IMG+12,2)} offset:{L_IMG+48}")
smk = sprinkle(softmax(PK, TMP, IMG, True), [wql.pop(0) for _ in range(min(len(wql), opt("nwq0", 3)))], 10, opt("wqs", 40))
if EARLY: smk = sprinkle(smk, [rawA.pop(0) for _ in range(min(len(rawA), opt("ne2", 8)))], 5, 16)
WEAVE = opt("weave", 1)
pro, gv = gemm_lds([(11, L_WV + 1024*t, L_WV + 1024*t + 256, (XF + 4*t, ACV, t == 0, False)) for t in range(28)], AH)
S = Sched(gv)
if not WEAVE:
    P.add(smk)
    P.wait(*[f"wv{k}" for k in range(7)]); I("s_barrier")
    stamp("softmax k done", "p")
    P.add(pro)
    S.spread(imw, 2, 10)
else:
    smf = softmax(PK, TMP, IMG, 2)
    n0 = next(i for i, x in enumerate(smf) if x.op == "v_exp_f32")
    P.wait(*[f"wv{k}" for k in range(4)]); I("s_barrier")
    P.add(pro)
    P.add(smf[:n0])
    stamp("softmax k done", "p")
    S.spread(smf[n0:] + imw, 0, 28)
    S.at(15 - AH, [WaitTag(["wv4", "wv5", "wv6"])] + mk("s_barrier"), 1.0)
    wql = [wqdma(k) for k in range(NQK + 1, 7)]
wo_l = flat([dmag([vWO0, vWO1], WO, sQ, i*64*896, sXO, L_WO + 8192*i, "wo", sDM) for i in range(7)] + [dmag([vXRD0, vXRD1], X, sXRB, 0, sXO, L_XCH, "wo", sDM)])
if EARLY == 2: wo_l = []
S.spread(wql, 0, opt('wqe', 10))
if EARLY: S.spread([rawA.pop(0) for _ in range(min(len(rawA), opt("ne3", 8)))], 0, 22)
if L2A >= 0 or L2N: touch = [x for x in touch if W1 not in x.text]
if L2N == 1: S.at(opt("l2p", 14), l2n(3))
if L2N == 2: S.at(opt("l2p", 14), l2n(1) + l2n(3))
tlb = []
if opt("tlb", 0) & 1: tlb += mk(f"s_mov_b64 exec, 1\nbuffer_load_dword v248, v6, {OUT}, s{sOUT} offen\ns_mov_b64 exec, -1")
if opt("tlb", 0) & 2: tlb += mk(f"v_lshlrev_b32 v249, 20, v1\ns_mov_b64 exec, 0xffff\nbuffer_load_dword v249, v249, {WS}, 0 offen offset:4092\ns_mov_b64 exec, -1")
if tlb: S.at(opt("tlbp", 13), tlb)
if opt("touch", 1) and TP == 0: S.at(opt("tpos", 11), touch)
for k, ps in enumerate((L2A, L2B)):
    if 200 <= ps < 228: S.at(ps - 200, l2t(W1, k, 248 + k))
S.spread([wo_l.pop(0) for _ in range(2*opt("nwo0", 0))], opt("wos", 17), opt("woe2", 28))
P.add(S.emit())
P.add(snB)
for k in range(0, 16, 2): I(f"v_pk_mul_f32 {v(ACV+k,2)}, {v(ACV+k,2)}, v[250:251] op_sel:[0,1] op_sel_hi:[1,1]")
I(f"v_cndmask_b32 v{ACV+12}, v{ACV+12}, 1.0, {sHI}")
for i in range(8): I(f"v_cvt_pk_bf16_f32 v{IMG+16+i}, v{ACV+2*i}, v{ACV+2*i+1}")
for i in range(4, 6): I(f"ds_write_b128 v{vIMW}, {v(IMG+4*i,4)} offset:{L_IMG+16*i}")
P.wait("wq0", "wq1", "wq2", "wq3")
I("s_waitcnt lgkmcnt(0)\ns_barrier")
stamp("img written", "p")
KA = 144; KBv = 208; KD = 176
for k in range(4):
    for u in range(2):
        I(f"ds_read_b64_tr_b16 {v(KA+4*k+2*u,2)}, v{vKA} offset:{(32*k+4*u)*208}")
    for nu in range(2):
        for u in range(2):
            I(f"ds_read_b64_tr_b16 {v(KBv+8*k+4*nu+2*u,2)}, v{vKB} offset:{(32*k+4*u)*208+64+16*nu}")
P.add(snE)
proq, gq = gemm_lds([(11, L_WQ + 1024*t, L_WQ + 1024*t + 256, (XF + 4*t, ACV, t == 0, False)) for t in range(28)], AH)
for k in range(4):
    for nu in range(2):
        I(f"v_mfma_f32_16x16x32_bf16 {v(KD+4*nu,4)}, {v(KA+4*k,4)}, {v(KBv+8*k+4*nu,4)}, {'0' if k == 0 else v(KD+4*nu,4)}")
P.add(proq[:8])
for i in range(4): I(f"v_cvt_pk_bf16_f32 v{KD+8+i}, v{KD+2*i}, v{KD+2*i+1}")
I(f"buffer_store_dwordx4 {v(KD+8,4)}, v2, {WS}, s{sPST} offen sc1")
I(f"v_xor_b32 v10, v{KD+8}, v5")
I(f"buffer_store_short v10, v0, {WS}, s{sPCK} offen sc1")
if GATE & 1: P.add(flag_store(16))
P.add(proq[8:])
stamp("partial stored", "mp")
S = Sched(gq)
ROTP = opt("rotp", 1)
if ROTP:
    rp = []
    for b in range(4): rp += mk(f"s_lshr_b32 s{50+b}, s{sT}, 2\ns_add_u32 s{50+b}, s{50+b}, {b}\ns_and_b32 s{50+b}, s{50+b}, 3\ns_mul_i32 s{50+b}, s{50+b}, {4*4608}\ns_add_u32 s{50+b}, s{50+b}, s{sP}")
    S.spread(rp, 4, 20)
bgA = wo_l + rawA
nq = min(len(bgA), opt("nq", 16))
S.spread(bgA[:nq], 0, 28)
S.spread(set2b, 2, 18)
G0 = gate("g0", vPO, vPF)
if GATE & 1: S.at(opt("g0", 14), G0.load(0))
S.at(15 - AH, [WaitTag(["wq4", "wq5", "wq6"])] + mk("s_barrier"), 1.0)
P.add(S.emit())
stamp("q gemm done", "p")
G = 16; GC = 80; SA = 96
FP = Fetch("fp", [([f"s_add_u32 s{sCt}, s{50 + (T >> 2) if ROTP else sP}, {4608*(T & 3 if ROTP else T)}\nbuffer_load_dwordx4 {v(G+4*T,4)}, v{vFPD}, {WS}, s{sCt} offen sc1\nbuffer_load_ushort v{GC+T}, v{vFPC}, {WS}, s{sCt} offen sc1"],
                   [G+4*T, GC+T]) for T in range(16)])
NFE = opt("nfe", 4)
for T in range(NFE): P.add(FP.load(T))
P.add(phi_pre(ACV, WPQ))
I("s_barrier")
P.add(snC + snC2)
PQ = 208
smq = softmax(PK, TMP, PQ, True); f0 = opt("fp0", 30)
P.add(sprinkle(smq[:f0], bgA[nq:], 0, opt("as", 8)))
P.add(sprinkle(smq[f0:], [FP.load(T) for T in range(NFE, 16)], 0, opt("fpstep", 6)))
stamp("softmax q done", "p")
w1_l = flat([dmag([12, 13, 14, 15], W1, sW1B, i*64*3584, sW1M, 16384*i, "w1", sDM) for i in range(7)])
def fpb(b):
    t = []
    for k, T in enumerate(range(4*b, 4*b+4)):
        t.append(f"v_bitop3_b32 v{10 if k == 0 else 9}, v{G+4*T}, v{GC+T}, v{142 if opt('trim', 1) else 5} {X3}" + ("" if k == 0 else "\nv_or_b32 v10, v10, v9"))
    return "\n".join(t) + "\nv_cmp_ne_u16 vcc, 0, v10"
RI = TAIL.I if (opt("ool", 15) & 1) else I
if not (opt("ool", 15) & 1): I("s_branch L_fp_go")
RI("L_fp_retry:" + ("\ns_add_u32 s80, s80, 1" if DIAG else ""), unc=True)
for b in range(4):
    RI(fpb(b) + f"\ns_cbranch_vccz L_fp_k{b}\n" + "\n".join(FP.pieces[T][0][0] for T in range(4*b, 4*b+4)) + f"\nL_fp_k{b}:", unc=True)
RI(GUARD, unc=True)
if (opt("ool", 15) & 1): RI("s_branch L_fp_go", unc=True)
I("L_fp_go:")
I(fpb(0) + "\ns_cbranch_vccnz L_fp_retry")
S = Sched([mk(f"{MF} {v(SA,16)}, a[220:223], {v(G+4*T,4)}, {'0' if T == 0 else v(SA,16)}") for T in range(16)])
for b in range(1, 4): S.spread(mk(fpb(b) + "\ns_cbranch_vccnz L_fp_retry"), 4*b - 3, 4*b)
S.spread([w1_l.pop(0) for _ in range(opt("nw1a", 8))], opt("w1as", 2), 16)
P.add(S.emit())
I(f"v_add_u32 v9, {L_KVX}, v{133 if opt('trim', 1) else vFPD}")
P.add(snD)
for i in range(4): I(f"v_cvt_pk_bf16_f32 v{SA+8+i}, v{SA+2*i}, v{SA+2*i+1}")
I(f"ds_write_b128 v9, {v(SA+8,4)}\ns_waitcnt lgkmcnt(0)\ns_barrier")
stamp("kv summed", "mp")
KVA = 32; OD = 48
for q in range(7): I(f"ds_read_b64 {v(KVA+2*q,2)}, v{vKVX} offset:{512*q}")
P.add(snF)
P.add(w1_l.pop(0))
for s in range(3):
    I(f"{MF} {v(OD,16)}, {v(KVA+4*s,4)}, {v(PQ+4*s,4)}, {'0' if s == 0 else v(OD,16)}")
    if s == 1: P.add(w1_l.pop(0))
I(f"v_mfma_f32_32x32x8_bf16 {v(OD,16)}, {v(KVA+12,2)}, {v(PQ+12,2)}, {v(OD,16)}")
I(f"""s_lshl_b32 s{sP}, s{sTILE}, 15
s_lshr_b32 s{sB}, s{sW}, 1
s_lshl_b32 s{sB}, s{sB}, 13
s_add_u32 s{sP}, s{sP}, s{sB}
s_and_b32 s{sA}, s{sH}, 8
s_lshl_b32 s{sB}, s{sA}, 11
s_add_u32 s{sP}, s{sP}, s{sB}
s_add_u32 s{sP}, s{sP}, {WS_O}
s_xor_b32 s50, s{sP}, 16384
s_mul_i32 s{sB}, s{sA}, 3584
v_add_u32 v142, s{sB}, v{vWOR}
s_sub_u32 s{sB}, 28672, s{sB}
v_add_u32 v143, s{sB}, v{vWOR}
v_and_b32 v7, 31, v1
v_mul_u32_u24 v7, 896, v7
v_add_f32 v{OD+14}, 0x358637bd, v{OD+14}
v_rcp_f32 v{OD+14}, v{OD+14}
v_lshl_add_u32 v7, v3, 4, v7""")
for k in range(0, 14, 2): I(f"v_pk_mul_f32 {v(OD+k,2)}, {v(OD+k,2)}, {v(OD+14,2)} op_sel_hi:[1,0]")
for k in range(4): I(f"v_cvt_pk_bf16_f32 v{64+k}, v{OD+2*k}, v{OD+2*k+1}")
I(f"buffer_store_dwordx4 v[64:67], v2, {WS}, s{sOST} offen sc1")
for k in range(4, 7): I(f"v_cvt_pk_bf16_f32 v{64+k}, v{OD+2*k}, v{OD+2*k+1}")
I(f"""v_bitop3_b32 v71, v64, v5, s{sMASK} bitop3:0x28
v_and_b32 v6, s{sMASK}, v5
buffer_store_dwordx4 v[68:71], v2, {WS}, s{sOST} offen offset:1024 sc1""")
if GATE & 2: P.add(flag_store(7))
stamp("o stored", "mo")
P.wait("wo")
I(f"s_cmp_ge_u32 s{sRact}, 14\ns_cbranch_scc1 L_idle\ns_barrier")
wor = []
for s in range(16):
    hh, e = s >> 1, s & 1
    for k, av in (((0, 142), (1, 9)) if hh < 4 else ((0, 143), (1, vWOR))):
        for u in range(2):
            wor += mk(f"ds_read_b64_tr_b16 {a_(128+8*s+4*k+2*u,2)}, v{av} offset:{(28*(hh&3)+8*e+4*u)*128}")
XR = 224
xrr = []
for i in range(4): xrr += mk((f"v_xor_b32 v10, {16*i}, v{vXRR}\n" if i else "") + f"ds_read_b64 {v(XR+2*i,2)}, v{10 if i else vXRR}")
I(f"s_add_u32 s{sA}, s{sW1M}, {L_XCH}\nv_add_u32 v132, s{sA}, v2\nv_xor_b32 v133, 8192, v132\nv_xor_b32 v9, 64, v142\nv_xor_b32 v{vWOR}, 64, v143")
P.add(xrr)
G1 = gate("g1", vPO, vPF)
nb_ = min(opt("nw1b", 16), len(w1_l) - 8)
wor = sprinkle(wor, [w1_l.pop(0) for _ in range(nb_)], 0, opt("w1bs", 4))
OB = 16
FO = Fetch("fo", [([f"s_add_u32 s{sCt}, s{sP if hh < 4 else 50}, {2048*(hh&3)}\nbuffer_load_dwordx4 {v(OB+8*hh,4)}, v2, {WS}, s{sCt} offen sc1\nbuffer_load_dwordx4 {v(OB+8*hh+4,4)}, v2, {WS}, s{sCt} offen offset:1024 sc1"],
                   [OB+8*hh, OB+8*hh+7]) for hh in range(8)], masked=True, nre=opt('reo', 2))
NOE = opt("noe", 4)
FEP = opt("fep", 56)
P.add(sprinkle(wor, flat([FO.loadc(hh) for hh in range(NOE)]), FEP, 3))
stamp("pre o fetch", "o")
AO, AT = 80, 96
set3 = mk(f"""s_mul_i32 s{sSCR}, s{sW}, 12288
s_mul_i32 s{sBIG}, s{sW}, 28672
v_add_u32 v131, s{sBIG}, v2
s_lshl_b32 s{sB}, s{sC}, 1
s_lshr_b32 s{sD}, s{sW}, 1
s_add_u32 s{sB}, s{sB}, s{sD}
s_mul_i32 s{sA}, s{sTILE}, 14
s_add_u32 s{sB}, s{sB}, s{sA}
s_mul_i32 s{sPST}, s{sB}, 2432
s_add_u32 s{sPST}, s{sPST}, {WS_H}
s_lshr_b32 s48, s{sW}, 1
s_nop 0
v_bfe_u32 v9, v1, 2, 2
v_lshl_add_u32 v240, v3, 2, v9
v_lshlrev_b32 v254, 7, v240
v_lshlrev_b32 v240, 8, v240
v_xor_b32 v9, s{sW}, v9
v_lshl_add_u32 v240, v9, 6, v240
v_bfe_u32 v9, v1, 4, 1
v_lshlrev_b32 v9, 5, v9
v_lshl_add_u32 v9, v8, 3, v9
v_add_u32 v240, v240, v9
v_add_u32 v254, v254, v9
v_bfe_u32 v9, v1, 3, 1
v_xor_b32 v9, s48, v9
v_lshl_add_u32 v254, v9, 6, v254
s_add_u32 s{sSCR}, s{sSCR}, {L_SCR}
v_add_u32 v252, s{sBIG}, v254
v_xor_b32 v253, 64, v252
v_add_u32 v254, s{sSCR}, v254
v_add_u32 v134, s{sSCR}, v2
v_xor_b32 v255, 64, v254
v_xor_b32 v241, 64, v240
v_xor_b32 v242, 128, v240
v_xor_b32 v243, 192, v240""") + flat([mk(f"v_add_u32 v{244+m}, 57344, v{240+m}") for m in range(4)])
pre2 = []
for i in range(8): pre2 += mk(f"v_lshlrev_b32 v{112+2*i}, 16, v{XR+i}\nv_and_b32 v{113+2*i}, s{sHIM}, v{XR+i}")
for s in range(1, 16, 2): pre2 += mk(f"v_accvgpr_write_b32 a{128+8*s+3}, 0\nv_accvgpr_write_b32 a{128+8*s+7}, 0")
if GATE & 2:
    P.add(pre2); P.add(G1.check(0, 0))
    stamp("gate1", "o")
    for hh in range(8): P.add(FO.load(hh))
else:
    P.add(pre2[16:]); P.add(set3)
    I("s_waitcnt lgkmcnt(0)\ns_barrier")
    P.add(sprinkle(flat(flat([w2rd(j) for j in UAW[:NT1]])), [w1_l.pop(0) for _ in range(min(len(w1_l), opt("nw1s", 4)))], 0, 8))
    stamp("shadow done", "o")
    LG = opt("lg", -1)
    P.add(sprinkle(pre2[:16], [FO.load(hh) for hh in range(NOE, 8)] if LG < 0 else [], 0, 2))
if NA: I("s_waitcnt lgkmcnt(0)\ns_barrier")
stamp("fo issued", "o")
g2 = []
for s in range(16):
    for k, acc in ((1, AT), (0, AO)):
        c = ("0" if k else v(112,16)) if s == 0 else v(acc,16)
        g2.append(mk(f"{MF} {v(acc,16)}, {a_(128+8*s+4*k,4)}, {v(OB+4*s,4)}, {c}"))

if opt("rord", 0): g2[28:32] = [g2[28], g2[30], g2[29], g2[31]]
P.add(FO.check(0, 3))
stamp("fo0", "o")
S = Sched(g2)
for hh in range(1, 8): S.spread(FO.checkc(hh, 3 if hh < 4 else 7), 4*hh - 3, 4*hh)
if LG >= 0: S.spread(flat([FO.loadc(hh) for hh in range(NOE, 8)]), LG, LG + 6)
S.spread(w1_l + [raw.pop(0) for _ in range(min(len(raw), opt("rawb", 8)))], LG + 6 if LG >= 0 else 0, opt('p2e', 32))
P.add(S.emit())
stamp("p2 gemm done", "o")
for i in range(4): I(f"ds_write_b128 v132, {v(AT+4*i,4)} offset:{1024*i}")
I("v_mov_b32 v112, 0\nv_mov_b32 v113, 0\ns_waitcnt lgkmcnt(0)\ns_barrier")
for i in range(4): I(f"ds_read_b128 {v(AT+4*i,4)}, v133 offset:{1024*i}")
HR = XR
for k in range(0, 8, 2): I(f"v_pk_add_f32 {v(AO+k,2)}, {v(AO+k,2)}, {v(AT+k,2)}")
for i in range(4): I(f"v_cvt_pk_bf16_f32 v{HR+i}, v{AO+2*i}, v{AO+2*i+1}")
I(f"buffer_store_dwordx4 {v(HR,4)}, v2, {WS}, s{sPST} offen sc1")
for k in range(8, 16, 2): I(f"v_pk_add_f32 {v(AO+k,2)}, {v(AO+k,2)}, {v(AT+k,2)}")
for i in range(4, 8): I(f"v_cvt_pk_bf16_f32 v{HR+i}, v{AO+2*i}, v{AO+2*i+1}")
I(f"buffer_store_dwordx4 {v(HR+4,4)}, v2, {WS}, s{sPST} offen offset:1024 sc1")
for i in range(8): I(f"v_dot2c_f32_bf16 v112, s{sONES}, v{HR+i}\nv_dot2c_f32_bf16 v113, v{HR+i}, v{HR+i}")
I(f"""v_bitop3_b32 v10, v{HR}, v{HR+4}, v5 {X3}
v_permlane32_swap_b32 v112, v113
v_add_f32 v112, v112, v113
buffer_store_dword v112, v4, {WS}, s{sPST} offen offset:2048 sc1
v_xor_b32 v113, v10, v112
buffer_store_short v113, v0, {WS}, s{sPST} offen offset:2304 sc1""")
def selft(sreg, nl): return mk(f"s_mov_b64 exec, {(1 << nl) - 1}\nbuffer_load_dword v135, v134, {WS}, s{sreg} offen sc1\ns_mov_b64 exec, -1")
SELF = opt("self", 0)
if SELF & 1: P.add(selft(sPST, 20))
if GATE & 4: P.add(flag_store(14))
stamp("h stored", "moh")
HB = 16; ST = 192
ACC = [144, 160, 176, 192]; AUG = 232
set4 = mk(f"""s_lshl_b32 s{sB}, s{sT3}, 2
s_add_u32 s{sB}, s{sB}, s{sW}
s_mul_i32 s{sP}, s{sB}, {14*2432}
s_add_u32 s{sP}, s{sP}, {WS_H}
s_mul_i32 s{sA}, s{sB}, 56
s_lshl_b32 s{sD}, s{sR}, 2
s_add_u32 s{sA}, s{sA}, s{sD}
s_mul_i32 s{sQ}, s{sA}, 2176
s_add_u32 s{sQ}, s{sQ}, {WS_H1}
v_lshlrev_b32 v13, 3, v1
s_lshl_b32 s{sA}, s{sW}, 9
s_add_u32 s{sA}, s{sA}, {L_AUG}
v_add_u32 v13, s{sA}, v13
v_mov_b32 v222, 0""")
FH = Fetch("fh", [([f"s_add_u32 s{sCt}, s{sP}, {2432*p}\nbuffer_load_dwordx4 {v(HB+8*p,4)}, v2, {WS}, s{sCt} offen sc1\nbuffer_load_dwordx4 {v(HB+8*p+4,4)}, v2, {WS}, s{sCt} offen offset:1024 sc1\n"
                    f"buffer_load_dword v{ST+2*p}, v4, {WS}, s{sCt} offen offset:2048 sc1\nbuffer_load_ushort v{ST+2*p+1}, v0, {WS}, s{sCt} offen offset:2304 sc1"],
                   [HB+8*p, HB+8*p+4, ST+2*p, ST+2*p+1]) for p in range(14)], nre=opt('reh', 2))
for i in range(4): I(f"v_mov_b32 v{AUG+i}, s{sONES}")
P.wait("w1"); I("s_barrier")
stamp("w1 landed", "h")
if opt("zz", 0): I(f"s_sleep {opt('zz', 0)}")
def w1a(t, k): return (240 + k + (4 if t >= 14 else 0), (t % 14) * 4096, (t % 14) * 4096 + 2048)
st3 = [w1a(t, 0) + ((AUG, ACC[2], t == 0, True),) for t in range(28)]
TWO = opt("two", 0); N1 = 2 if TWO else 3
for t in range(28):
    for k in range(N1): st3.append(w1a(t, k) + ((HB + 4*t, ACC[k], t == 0, False),))
for t in range(28):
    for k in range(N1, 4): st3.append(w1a(t, k) + ((HB + 4*t, ACC[k], t == 0, False),))
pro, g3 = gemm_lds(st3, AH)
P.add(pro)
S3 = Sched(g3)
S3.spread(set4, 0, 8)
S3.spread(raw + flat([w2dma(j) for j in UD]), opt("c0s", 0), opt("c0e", 10)); raw = []
NH0 = opt("nh0", 4); H0 = opt("h0", 26)
G2 = gate("g2", vPO, vPF)
if GATE & 4:
    S3.at(opt("g2", 12), G2.load(0), 0.9)
    S3.at(27, G2.check(0, 0) + stampi("gate2", "h") + flat([FH.load(p) for p in range(NH0)]), 0.5)
else: S3.spread(flat([FH.loadc(p) for p in range(NH0)]), H0, 27)
cs = ACC[2]
csx = mk(f"""v_cvt_pk_bf16_f32 v{AUG}, v{cs}, v{cs}
v_lshlrev_b32 v{AUG+1}, 16, v{AUG}
v_sub_f32 v{AUG+1}, v{cs}, v{AUG+1}
v_cvt_pk_bf16_f32 v{AUG}, v{cs}, v{AUG+1}
v_and_b32 v{AUG+1}, 0xffff, v{AUG}
v_cndmask_b32 v{AUG}, v{AUG}, 0, {sHI}
v_cndmask_b32 v{AUG+1}, v{AUG+1}, 0, {sHI}
ds_write_b64 v13, {v(AUG,2)}""")
S3.at(27, stampi("colsum done", "h") + csx + FH.check(0, NH0 - 1) + stampi("fh0", "h"), 1.0)
B0 = 28
for p in range(14):
    b = B0 + 2*N1*p
    if p + NH0 < 14:
        for k_, c_ in enumerate(FH.loadc(p + NH0)): S3.at(b + ((0, 2, 1, 3) if TWO else (0, 2, 4, 4))[k_], c_, 0.2)
    S3.at(b, mk(f"v_add_f32 v222, v222, v{ST+2*p}"), 0.0)
    if p + 1 < 14: S3.spread(FH.checkc(p + 1, min(13, p + NH0 - 1)), b + 1, b + 2*N1)
    if p in (3, 7, 11): S3.at(b + 2*N1 - 1, stampi(f"fh{p+1}", "h"), 1.0)
S3.at(B0 + 14, mk("s_barrier") + flat([mk(f"v_xor_b32 v9, {512*k}, v13\nds_read_b64 {v(AUG+2*k,2)}, v9") for k in range(1, 4)]), 0.0)
mid = mk(f"""v_mul_f32 v220, {fhex(1/448)}, v222
v_mov_b32 v221, v220
s_nop 0
v_permlane32_swap_b32 v220, v221
v_fma_f32 v221, -v220, v220, v221
v_max_f32 v221, 0, v221
v_add_f32 v221, 0x3727c5ac, v221
v_rsq_f32 v251, v221
v_cvt_pk_bf16_f32 v222, -v220, -v220
v_lshlrev_b32 v9, 16, v222
v_sub_f32 v9, -v220, v9
v_cvt_pk_bf16_f32 v223, v9, 0
v_mul_f32 v250, v221, v251
v_mul_f32 v251, 0xbfb8aa3b, v251
v_cndmask_b32 v222, v222, 0, {sHI}
v_cndmask_b32 v223, v223, 0, {sHI}""")
S3.spread(mid, *((B0 + 53, B0 + 59) if TWO else (B0 + 79, B0 + 84)))
def aug(k): return mk(f"v_mfma_f32_32x32x8_bf16 {v(ACC[k],16)}, {v(AUG+2*k,2)}, v[222:223], {v(ACC[k],16)}")
SLT = 132
def silu(k, pk):
    q = Prog(); a = ACC[k]; t = 208
    q.I(f"s_xor_b32 s50, s{sW}, {k}\ns_mul_i32 s50, s50, 2176\ns_add_u32 s50, s50, s{sQ}")
    for half in range(2):
        b = a + 8 * half
        if pk:
            for j in range(0, 8, 2): q.I(f"v_pk_mul_f32 {v(t+j,2)}, {v(b+j,2)}, v[250:251] op_sel:[0,1] op_sel_hi:[1,1]")
        else:
            for j in range(8): q.I(f"v_mul_f32 v{t+j}, v{b+j}, v251")
        for j in range(8): q.I(f"v_exp_f32 v{t+j}, v{t+j}")
        if pk:
            for j in range(0, 8, 2): q.I(f"v_pk_fma_f32 {v(t+j,2)}, {v(t+j,2)}, v[250:251], v[250:251] op_sel_hi:[1,0,0]")
        else:
            for j in range(8): q.I(f"v_fma_f32 v{t+j}, v{t+j}, v250, v250")
        for j in range(8): q.I(f"v_rcp_f32 v{t+j}, v{t+j}")
        if pk:
            for j in range(0, 8, 2): q.I(f"v_pk_mul_f32 {v(b+j,2)}, {v(b+j,2)}, {v(t+j,2)}")
        else:
            for j in range(8): q.I(f"v_mul_f32 v{b+j}, v{b+j}, v{t+j}")
        for j in range(4): q.I(f"v_cvt_pk_bf16_f32 v{b+j}, v{b+2*j}, v{b+2*j+1}")
        q.I(f"buffer_store_dwordx4 {v(b,4)}, v2, {WS}, s50 offen offset:{1024*half} sc1")
    q.I(f"v_bitop3_b32 v216, v5, v{a}, v{a+8} {X3}")
    q.I(f"buffer_store_short v216, v0, {WS}, s50 offen offset:2048 sc1")
    return q.items + ([selft(50, 18)] if SELF & 2 and not pk else [])
E0 = B0 + 28*N1
assert not raw
if TWO:
    S3.spread(flat([w2rd(j) for j in UD + UR + UAW[NT1:]]), B0 + 8, B0 + 42)
    S3.at(B0 + 34, mk("s_barrier"), 0.0)
    S3.spread(flat([w2dma(j) for j in UE]), B0 + 48, E0 + opt("wde", 12))
else:
    S3.spread(flat([w2rd(j) for j in UD + UR + UAW[NT1:]]), B0 + 22, B0 + 58)
    S3.at(B0 + 44, mk("s_barrier"), 0.0)
    S3.spread(flat([w2dma(j) for j in UE]), B0 + opt('twd', 64), E0)
B4 = 16
CKR = [240, 241, 244, 245, 248, 249, 217, 218, 219, 130, 242, 246, 243, 247]
C4 = [[a_(224,16), a_(240,16)], [v(ACC[0],16), v(ACC[1],16)]]
set5 = mk(f"""s_mul_i32 s{sA}, s{sTILE}, 56
s_xor_b32 s{sB}, s{sTILE}, 1
s_mul_i32 s{sB}, s{sB}, 56
s_add_u32 s51, s{sB}, s44
s_add_u32 s52, s{sA}, s44
s_add_u32 s53, s{sB}, s45
s_add_u32 s54, s{sA}, s45""")
for k in range(4):
    set5 += mk(f"s_mul_i32 s{51+k}, s{51+k}, 2176\ns_add_u32 s{51+k}, s{51+k}, {WS_H1}")
S3.spread(set5, B0 + 42, B0 + 52)
def piece4(n):
    st, i = n // 7, n % 7; r = B4 + 8 * (n % 14); c = CKR[n % 14]
    return ([f"s_add_u32 s{sCt}, s{51+st}, {8*2176*i}\nbuffer_load_dwordx4 {v(r,4)}, v2, {WS}, s{sCt} offen sc1\nbuffer_load_dwordx4 {v(r+4,4)}, v2, {WS}, s{sCt} offen offset:1024 sc1\n"
             f"buffer_load_ushort v{c}, v0, {WS}, s{sCt} offen offset:2048 sc1"], [r, r+4, c])
F4 = Fetch("f4", [piece4(n) for n in range(28)], nre=opt("re4", 3))
ND = opt("nd", 5)
N0 = ND if TWO else opt("n0", 4)
rawl = flat([w2raw(j) for j in UL])
nr0 = min(len(rawl), opt("nr0", 6))
if TWO:
    S3.at(E0 - 1, stampi("p3 pass1 done", "mh"), 1.0)
    g3[E0 + 3] = aug(0) + g3[E0 + 3]; g3[E0 + 4] = aug(1) + g3[E0 + 4]
    S3.spread(silu(0, False) + [stampi("silu0 done", "e")], E0 + 5, E0 + opt("s0e", 21))
    S3.spread(silu(1, False), E0 + opt("s0e", 21), E0 + opt("s1e", 44))
    S3.spread(rawl, E0 + opt("wde", 12), E0 + opt("rle", 36))
    DEEP = opt("deep", 0)
    if DEEP:
        rng = [(opt("a0", -18), opt("b0", 4)), (opt("a1", 6), opt("b1", 24)), (opt("a2", 26), opt("b2", 50)), (opt("a3", 50), opt("b3", 78))]
        f4pos = []
        for n in range(28):
            a, b = rng[n // 7]
            for k_, c_ in enumerate(F4.loadc(n)):
                pos = a + (b - a) * ((n % 7) + (0, 0.45, 0.9)[k_]) / 7
                lo = (4*n + 4 - 56) if n < 14 else 4*(n - 14) + 4
                pos = max(pos, lo + 0.01*k_); assert pos < 4*n - 3 or n == 0, (n, pos)
                f4pos.append((pos, c_))
        for i_ in range(1, len(f4pos)): assert f4pos[i_][0] >= f4pos[i_-1][0], i_
        import math
        for pos, c_ in f4pos:
            if pos < 0: S3.at(E0 + 56 + math.floor(pos), c_, pos - math.floor(pos))
    else: S3.spread(flat([F4.loadc(n) for n in range(ND)]), E0 + opt("f4s", 52), E0 + 56)
    P.add(S3.emit())
    P.add(aug(2) + aug(3))
else:
    S3.at(E0 - 1, stampi("p3 pass1 done", "mh") + aug(0) + aug(1) + aug(2) + sprinkle(silu(0, True), rawl[:nr0], 3, opt('r0s', 12)) + stampi("silu0 done", "e"), 1.0)
    S3.spread(silu(1, False) + (silu(2, False) if opt("s2p", 1) else []), E0, E0 + opt("t1e", 26))
    S3.spread(rawl[nr0:], E0, E0 + opt("tre", 20))
    S3.spread(flat([F4.loadc(n) for n in range(N0)]), E0 + opt("f4t", 20), E0 + 28)
    P.add(S3.emit())
    P.add(aug(3))
I("s_barrier")
stamp("p3 gemm done", "me")
g4 = []
for n in range(28):
    st, i = n // 7, n % 7; hf, par = st >> 1, st & 1
    for e in range(2):
        for mu in range(2):
            zero = hf == 0 and i == 0 and e == 0 and not (par == 1 and mu == 0)
            g4.append(mk(f"{MF} {C4[par][mu]}, {a_(UA(7*hf+i)+8*e+4*mu,4)}, {v(B4+8*(n%14)+4*e,4)}, {'0' if zero else C4[par][mu]}"))
if opt("rord", 0): g4[108:112] = [g4[109], g4[111], g4[108], g4[110]]
P.add(F4.check(0, N0 - 1))
S = Sched(g4)
nxt = N0
for n in range(28):
    prev = nxt
    if nxt < 28 and not (TWO and DEEP):
        if nxt < n + ND and nxt + 1 < 28:
            for k_, c_ in enumerate(F4.loadc(nxt) + F4.loadc(nxt + 1)): S.at(4*n + (0, 1, 1, 2, 3, 3)[k_], c_, 0.2 + 0.01*k_)
            nxt += 2
        else:
            for k_, c_ in enumerate(F4.loadc(nxt)): S.at(4*n + (0, 2, 1)[k_], c_, 0.2)
            nxt += 1
    if n + 1 < 28: S.spread(F4.checkc(n + 1, max(n + 1, prev - 1)), 4*n + 2, 4*n + 4)
    if n in (6, 13, 20): S.at(4*n + 3, stampi(f"stage{n//7} done", "e"), 1.0)
unp = []
for i in range(8): unp += mk(f"v_lshlrev_b32 v{ACC[0]+2*i}, 16, v{HR+i}\nv_and_b32 v{ACC[0]+1+2*i}, s{sHIM}, v{HR+i}")
if TWO and DEEP:
    for pos, c_ in f4pos:
        if pos >= 0: S.at(int(pos), c_, pos - int(pos))
S2E, S3E = opt("s2e", 16), opt("s3e", 16)
if opt("s2p", 1) and not TWO: S2E = 1
else: S.spread(silu(2, False), 0, S2E)
S.spread(unp, 22, 27)
S.spread(silu(3, False), S2E, S3E)
S.spread(flat([w2rd(j) for j in UE if j < 7]), 0, 14)
S.spread(flat([w2dma(j) for j in UP]), opt("w2a", 20), opt("w2b", 46))
for j in [x for x in UE + UL + UP if x >= 7]: S.spread(w2rd(j), 44 + 5*(j-7), 49 + 5*(j-7))
S.at(82, mk(f"""s_lshl_b32 s{sA}, s{sW}, 14
v_add_u32 v13, s{sA}, v2
v_xor_b32 v9, 16384, v13
v_xor_b32 v12, 32768, v13
v_xor_b32 v14, 49152, v13
s_waitcnt lgkmcnt(0)
s_barrier"""))
S.spread([mk(f"ds_write_b128 v{9 if mu == 0 else 14}, {a_(224+16*mu+4*i,4)} offset:{4096*(2*mu+1)+1024*i}") for mu in range(2) for i in range(4)], 87, 99)
if opt("ep", 0) >= 3:
    S.at(opt("epp", 93), mk(f"""s_or_b32 s{sA}, s2, s{sW}
s_cselect_b32 s{sA}, 0x10000000, 0
s_mov_b32 exec_hi, 0
buffer_store_dword v5, v4, {WS}, s{sA} offen {'sc1' if opt("ep", 0) == 3 else ''}
s_mov_b32 exec_hi, -1"""), 0.9)
S.at(100, mk("s_waitcnt lgkmcnt(0)\ns_barrier"), 0.0)
S.spread([mk(f"ds_read_b128 {v(ACC[2+mu]+4*i,4)}, v13 offset:{4096*(2*mu+1)+1024*i}") for mu in range(2) for i in range(4)], 100, 104)
S.spread([mk(f"v_add_f32 v{ACC[2]+k}, v{ACC[2]+k}, v{ACC[3]+k}") for k in range(16)], 107, 112)
P.add(S.emit())
stamp("p4 gemm done", "me")
for i in range(4): I(f"ds_write_b128 v12, {v(ACC[1]+4*i,4)} offset:{8192+1024*i}")
if opt("cout", 0):
    I(f"""v_lshlrev_b32 v16, 3, v3
v_sub_u32 v16, v{vXRR}, v16
v_lshlrev_b32 v17, 4, v3
v_xor_b32 v16, v16, v17
v_xor_b32 v17, 32, v16
s_add_u32 s{sA}, s{sXO}, {L_XCH}
v_add_u32 v18, s{sA}, v2""")
I("s_waitcnt lgkmcnt(0)\ns_barrier")
for i in range(4): I(f"ds_read_b128 {v(ACC[3]+4*i,4)}, v13 offset:{8192+1024*i}")
for k in range(0, 16, 2): I(f"v_pk_add_f32 {v(ACC[0]+k,2)}, {v(ACC[0]+k,2)}, {v(ACC[2]+k,2)}")
for hf in range(2):
    b = ACC[0] + 8*hf
    for k in range(0, 8, 2): I(f"v_pk_add_f32 {v(b+k,2)}, {v(b+k,2)}, {v(ACC[3]+8*hf+k,2)}")
    for i in range(4): I(f"v_cvt_pk_bf16_f32 v{96+4*hf+i}, v{b+2*i}, v{b+2*i+1}")
    if not opt("cout", 0):
        I(f"v_permlane32_swap_b32 v{96+4*hf}, v{98+4*hf}\nv_permlane32_swap_b32 v{97+4*hf}, v{99+4*hf}\nbuffer_store_dwordx4 {v(96+4*hf,4)}, v7, {OUT}, s{sOUT} offen offset:{32*hf} {OPT.get('ofl', '')}")
    else:
        I(f"v_permlane32_swap_b32 v{96+4*hf}, v{98+4*hf}\nv_permlane32_swap_b32 v{97+4*hf}, v{99+4*hf}\nds_write_b128 v{16+hf}, {v(96+4*hf,4)}")
if opt("cout", 0):
    I("s_waitcnt lgkmcnt(0)\ns_barrier")
    for i in range(2): I(f"ds_read_b128 {v(104+4*i,4)}, v18 offset:{1024*i}")
    for i in range(2): I(f"buffer_store_dwordx4 {v(104+4*i,4)}, v{vXRD0+i}, {OUT}, s{sXRB} offen offset:{1024*i} {OPT.get('ofl', '')}")
stamp("end", "mpohez")
EP = opt("ep", 0)
if EP in (0, 1, 2):
    I(f"""s_cmp_lg_u32 s2, 0
s_cbranch_scc1 L_ex0
v_mov_b32 v9, 0""")
    if EP: I(f"s_cmp_lg_u32 s{sW}, 0\ns_cbranch_scc1 L_ex0\ns_mov_b64 exec, 1")
    I(f"buffer_store_dword v5, v9, {WS}, 0 offen {'' if EP == 2 else 'sc1'}", unc=True)
    I("L_ex0:")
if opt("enc", 0):
    mode = opt("enc", 0)
    if mode <= 4:
        I(f"s_bfe_u32 s{sA}, s80, {hex(0x80000 | (8*(mode-1)))}\ns_min_u32 s{sA}, s{sA}, 1\ns_mul_i32 s{sA}, s{sA}, 2000", unc=True)
    else:
        I(f"s_waitcnt lgkmcnt(0)\ns_sub_u32 s{sA}, s{sSTAMP+2}, s78\ns_mul_i32 s{sA}, s{sA}, 4", unc=True)
    I(f"""s_memrealtime s[40:41]
s_waitcnt lgkmcnt(0)
L_enc:
s_memrealtime s[42:43]
s_waitcnt lgkmcnt(0)
s_sub_u32 s42, s42, s40
s_cmp_lt_u32 s42, s{sA}
s_cbranch_scc1 L_enc
s_branch L_end""", unc=True)
if opt("dbg", 0):
    I(f"""s_cmp_lg_u32 s{sW}, 0
s_cbranch_scc1 L_end
s_load_dwordx2 s[40:41], s[0:1], 64
s_mov_b32 s42, 256
s_mov_b32 s43, 0x20000
s_mov_b64 exec, 1
v_mov_b32 v9, 0
s_waitcnt lgkmcnt(0)""", unc=True)
    for k in range(nstamp[0]):
        I(f"s_sub_u32 s{sA}, s{sSTAMP+2*k}, s78\nv_mov_b32 v10, s{sA}\nbuffer_atomic_umax v10, v9, s[40:43], 0 offen offset:{4*k}\ns_nop 1", unc=True)
    I(f"""v_mov_b32 v10, s78
buffer_atomic_umax v10, v9, s[40:43], 0 offen offset:32
s_not_b32 s{sA}, s78
v_mov_b32 v11, s{sA}
buffer_atomic_umax v11, v9, s[40:43], 0 offen offset:36
v_mov_b32 v12, s{sSTAMP+2*(nstamp[0]-1)}
buffer_atomic_umax v12, v9, s[40:43], 0 offen offset:40
v_mov_b32 v13, s80
buffer_atomic_add v13, v9, s[40:43], 0 offen offset:44
s_branch L_end""", unc=True)
I("L_exit:")
if DIAG and not opt("dbg", 0):
    I(f"s_cmp_lg_u32 s{sW}, {opt('dw', 0)}\ns_cbranch_scc1 L_end\ns_lshl_b32 s{sA}, s2, 7\ns_add_u32 s{sA}, s{sA}, {WS_DIAG}\nv_mov_b32 v9, 0", unc=True)
    for k in range(nstamp[0]):
        I(f"s_waitcnt lgkmcnt(0)\nv_mov_b32 v10, s{sSTAMP+2*k}\nbuffer_store_dword v10, v9, {WS}, s{sA} offen offset:{4*k}", unc=True)
    if SEL == ["z"]: I(f"v_mov_b32 v10, s78\nbuffer_store_dword v10, v9, {WS}, s{sA} offen offset:120", unc=True)
    I(f"v_mov_b32 v10, s80\nbuffer_store_dword v10, v9, {WS}, s{sA} offen offset:124", unc=True)
I("L_end:\ns_endpgm")
if not (opt("idle", 0) or opt("idle2", 0)):
    for it in P.items:
        if isinstance(it, Ins) and it.text == "s_cbranch_scc1 L_idle": it.text = "s_cbranch_scc1 L_exit"
else: I(f"""L_idle:
s_and_b32 s{sA}, s{sT2}, 1
s_lshl_b32 s{sA}, s{sA}, 1
s_add_u32 s{sA}, s{sA}, s{sRact}
s_sub_u32 s{sA}, s{sA}, 14
s_lshl_b32 s{sA}, s{sA}, 2
s_add_u32 s{sA}, s{sA}, s{sW}
s_lshl_b32 s{sA}, s{sA}, 13
v_lshlrev_b32 v9, 7, v1
s_lshr_b32 s{sD}, s{sT2}, 1
s_mul_i32 s{sD}, s{sD}, {8*56*2176}
s_add_u32 s{sD}, s{sD}, {WS_H1}
s_add_u32 s{sD}, s{sD}, s{sA}
s_mov_b32 s{sB}, {opt("idle2", 0)}
s_cmp_eq_u32 s{sB}, 0
s_cbranch_scc1 L_idle3
L_idle2:
buffer_load_dword v11, v9, {WS}, s{sD} offen {OPT.get("i2f", "")}
s_add_u32 s{sD}, s{sD}, {16*8192}
s_sub_u32 s{sB}, s{sB}, 1
s_cmp_lg_u32 s{sB}, 0
s_cbranch_scc1 L_idle2
L_idle3:
s_mov_b32 s{sB}, {opt("idle", 0)}
s_cmp_eq_u32 s{sB}, 0
s_cbranch_scc1 L_exit
L_idle1:
buffer_load_dword v11, v9, {W2}, s{sA} offen
s_add_u32 s{sA}, s{sA}, {16*8192}
s_sub_u32 s{sB}, s{sB}, 1
s_cmp_lg_u32 s{sB}, 0
s_cbranch_scc1 L_idle1
s_branch L_exit""", unc=True)
P.add(TAIL.items)

for it in P.items:
    if isinstance(it, Ins) and it.text.startswith('buffer_load_dword v142,'): it.defs = []
for it in P.items:
    if isinstance(it, Ins) and it.op == "buffer_load_dwordx4":
        for bit, srd in ((1, W1), (2, W2), (4, WO), (8, WQKV), (16, X)):
            if opt("wf", 0) & bit and srd in it.text:
                fl = OPT.get("wfl", "nt")
                it.text = it.text.replace(" lds", f" {fl} lds") if it.text.endswith(" lds") else it.text + " " + fl
PL = opt("plain", 0)
for it in P.items:
    if isinstance(it, Ins) and it.op.startswith("buffer_store") and "sc1" in it.text:
        ish1 = " s50 " in it.text or " s49 " in it.text
        ish = ("v[224:227]" in it.text or "v[228:231]" in it.text or "v112," in it.text or "v113," in it.text)
        if (ish and PL & 1) or (ish1 and PL & 2): it.text = it.text.replace(" sc1", OPT.get("pfl", ""))
if opt("pld", 0):
    c = 0
    for it in P.items:
        if isinstance(it, Ins) and it.op.startswith("buffer_load") and "sc1" in it.text and " s56 " in it.text and not it.uncounted:
            c += 1
            kind = 0 if c <= 48 else 1 if c <= 104 else 2
            if opt("pld", 0) & kind: it.text = it.text.replace(" sc1", OPT.get("lfl", ""))
if opt("nochk", 0):
    new = []; seen_end = False
    for it in P.items:
        if isinstance(it, Ins):
            if opt("nochk", 0) == 2 and not seen_end:
                if it.text.startswith("L_exit"): seen_end = True
                elif it.uncounted or it.op in ("s_cbranch_vccz", "s_branch"): continue
            if it.op == "s_cbranch_vccz" and not it.uncounted: it = Ins(it.text.replace("s_cbranch_vccz", "s_branch"))
            elif it.op == "s_cbranch_vccnz" and not it.uncounted: continue
            t = it.text
            if it.op.startswith("buffer_store") and "sc1" in t and not it.uncounted:
                kind = 8 if " s50 " in t else 4 if ("v[224" in t or "v[228" in t or "v112," in t or "v113," in t) else 2 if f" s{sOST} " in t else 1
                if opt("nost", 0) & kind: continue
            if it.op.startswith("buffer_load") and "sc1" in t and " s56 " in t and not it.uncounted:
                cnt_ld = globals().setdefault("_c", [0]); cnt_ld[0] += 1; c = cnt_ld[0]
                kind = 1 if c <= 32 else 2 if c <= 48 else 4 if c <= 104 else 8
                if opt("nold", 0) & kind: continue
        new.append(it)
    P.items = new
body, items = render(P.items)
if opt("align", 1):
    import subprocess, re as _re
    open("_al.s", "w").write('.amdgcn_target "amdgcn-amd-amdhsa--gfx950"\n.text\n' + body)
    subprocess.run(["clang", "-x", "assembler", "-target", "amdgcn-amd-amdhsa", "-mcpu=gfx950", "-c", "_al.s", "-o", "_al.o"], check=True)
    dis = subprocess.run(["llvm-objdump", "-d", "--mcpu=gfx950", "_al.o"], capture_output=True, text=True).stdout
    sizes = [4 * len(m.group(1).split()) for m in _re.finditer(r"// [0-9A-F]{12}: ((?:[0-9A-F]{8} ?)+)", dis)]
    real = [i for i in items if i.cls not in ('label', 'dir')]
    assert len(sizes) == len(real), (len(sizes), len(real))
    sz = {id(i): n for i, n in zip(real, sizes)}
    new = []; off = 0; nal = 0; MINRUN = opt("minrun", 6)
    for k, it in enumerate(items):
        if id(it) in sz and sz[id(it)] == 8 and off % 8 == 4 and not it.uncounted:
            run = 0
            for j in items[k:k + MINRUN + 4]:
                if id(j) not in sz: continue
                if sz[id(j)] != 8 or j.cls == 'mfma': break
                run += 1
            if run >= MINRUN:
                p = new[-1] if new else None
                if p is not None and p.cls == 'valu' and sz.get(id(p)) == 4 and not p.op.startswith(('v_permlane', 'v_dot2c', 'v_readfirst', 'v_accvgpr', 'v_cmp', 'v_cndmask')) and not p.op.endswith('_e64'):
                    p.text = p.text.replace(p.op, p.op + "_e64", 1)
                else: new.append(Ins("s_nop 0"))
                off += 4; nal += 1
        new.append(it); off += sz.get(id(it), 0)
    items = new
    body = '\n'.join(('' if i.cls == 'label' else '  ') + i.text for i in items) + '\n'
    print("alignment fixes:", nal, "code bytes", off)
hdr = open("cdna_kernels/" + NAME + ".s.ref").read().split("; Override launch")[0]
doc = """; Persistent single-launch implementation (256 WGs x 4 waves, one WG per CU), generated by a script:
"""
out = hdr + doc + f"""; @launch grid=(256,1,1) block=(256,1,1) lds={LDS_SIZE}
.amdgcn_target "amdgcn-amd-amdhsa--gfx950"
.text
.globl {NAME}_kernel
.p2align 8
.type {NAME}_kernel,@function
{NAME}_kernel:
{body}.fill 2048, 4, 0xbf810000
.section .rodata,"a"
.p2align 6
.amdhsa_kernel {NAME}_kernel
  .amdhsa_next_free_vgpr 512
  .amdhsa_next_free_sgpr 102
  .amdhsa_accum_offset 256
  .amdhsa_group_segment_fixed_size 0
  .amdhsa_kernarg_size 80
  .amdhsa_user_sgpr_count 2
  .amdhsa_user_sgpr_kernarg_segment_ptr 1
  .amdhsa_system_sgpr_workgroup_id_x 1
.end_amdhsa_kernel
"""
open(sys.argv[1], "w").write(out)
n = sum(1 for i in items if i.cls not in ('label', 'dir'))
nu_ = sum(1 for i in items if i.cls not in ('label', 'dir') and i.uncounted)
print("instructions:", n, "(slow path", nu_, ") nops:", sum(1 for i in items if i.op == 's_nop'), "waits:", sum(1 for i in items if i.op == 's_waitcnt'), "stamps", nstamp[0])
```
